```python
import torch

def _softmax(x, axis=-1):
    return torch.softmax(x, dim=axis)
def _gelu(x):
    return torch.nn.functional.gelu(x, approximate="tanh")
def _silu(x):
    return torch.nn.functional.silu(x)
def _sigmoid(x):
    return torch.sigmoid(x)
def _layernorm(x, axis=-1, eps=1e-5):
    m = x.mean(dim=axis, keepdim=True)
    v = x.var(dim=axis, keepdim=True, unbiased=False)
    return (x - m) / torch.sqrt(v + eps)
def _scatter_add(tgt, idx, src, axis=0):
    return tgt.clone().index_add_(axis, idx, src)
def _segment_sum(src, seg, n):
    out = torch.zeros((n,) + src.shape[1:], dtype=src.dtype)
    return out.index_add_(0, seg, src)
def _pad(x, pw):
    flat = tuple(v for pair in reversed(pw) for v in pair)
    return torch.nn.functional.pad(x, flat)

kernel_name = 'interleave_layers__sliding_local_dilated__glu_gated_reglu__prompt'

def setup_inputs():

    _w = (lambda a: (lambda t: t.to(torch.bfloat16) if t.is_floating_point() else t)(torch.as_tensor(a)))
    def _A_setup():
        B, S, D = 1, 2048, 512
        return {
            "x": _w((lambda *s: torch.randn(*s, dtype=torch.bfloat16) * 0.05)(B, S, D)),
            "wqkv": _w((lambda *s: torch.randn(*s, dtype=torch.bfloat16) * 0.05)(D, 3 * D)),
            "wo": _w((lambda *s: torch.randn(*s, dtype=torch.bfloat16) * 0.05)(D, D)),
        }
    _A_in = _A_setup()

    def _B_setup():
        B, S, D, F = 1, 2048, 512, 1792
        return {
            "x": _w((lambda *s: torch.randn(*s, dtype=torch.bfloat16) * 0.05)(B, S, D)),
            "W_gate": _w((lambda *s: torch.randn(*s, dtype=torch.bfloat16) * 0.8)(D, F) * (2.0 / D) ** 0.5),
            "W_up": _w((lambda *s: torch.randn(*s, dtype=torch.bfloat16) * 0.8)(D, F) * (2.0 / D) ** 0.5),
            "W_down": _w((lambda *s: torch.randn(*s, dtype=torch.bfloat16) * 0.8)(F, D) * (1.0 / F) ** 0.5),
        }
    _B_in = _B_setup()

    return {
        "A_x": _A_in["x"],
        "A_wqkv": _A_in["wqkv"],
        "A_wo": _A_in["wo"],
        "B_x": _B_in["x"],
        "B_W_gate": _B_in["W_gate"],
        "B_W_up": _B_in["W_up"],
        "B_W_down": _B_in["W_down"],
    }

def reference(A_x, A_wqkv, A_wo, B_x, B_W_gate, B_W_up, B_W_down):
    def _A_ref(x, wqkv, wo):
        B, S, D = x.shape
        H = 32; Dh = D // H
        W, dil = 8, 2
        qkv = (lambda x, *d: x.permute(*d))((x @ wqkv).reshape(B, S, 3, H, Dh), 2, 0, 3, 1, 4)
        q, k, v = qkv[0], qkv[1], qkv[2]
        scale = Dh ** -0.5
        pos = torch.arange(S)
        off = torch.arange(W) * dil
        idx = pos[:, None] - off[None, :]
        mask = idx >= 0
        idx_c = torch.where(mask, idx, 0).reshape(-1)
        kg = k[:, :, idx_c, :].reshape(B, H, S, W, Dh)
        vg = v[:, :, idx_c, :].reshape(B, H, S, W, Dh)
        logits = torch.einsum("bhsd,bhswd->bhsw", q, kg) * scale
        logits = torch.where(mask[None, None, :, :], logits, -1e9)
        attn = _softmax(logits, axis=-1)
        o = torch.einsum("bhsw,bhswd->bhsd", attn, vg)
        return (lambda x, *d: x.permute(*d))(o, 0, 2, 1, 3).reshape(B, S, D) @ wo

    def _B_ref(x, W_gate, W_up, W_down):
        gate = torch.einsum("bsd,df->bsf", x, W_gate)
        up = torch.einsum("bsd,df->bsf", x, W_up)
        gate = gate * (lambda x, dt: x.to(dt))(gate > 0, gate.dtype)
        h = gate * up
        return torch.einsum("bsf,fd->bsd", h, W_down)

    x = A_x
    x = x + _A_ref(_layernorm(x, axis=-1), A_wqkv, A_wo)
    x = x + _B_ref(_layernorm(x, axis=-1), B_W_gate, B_W_up, B_W_down)
    x = x + _A_ref(_layernorm(x, axis=-1), A_wqkv, A_wo)
    x = x + _B_ref(_layernorm(x, axis=-1), B_W_gate, B_W_up, B_W_down)
    return x
```

```python
import re

TRANS = ("v_exp_f32", "v_log_f32", "v_rcp_f32", "v_rsq_f32", "v_sqrt_f32", "v_sin_f32", "v_cos_f32")

def regs_of(tok):
    tok = tok.strip()
    neg = tok.lstrip("-")
    if neg.startswith("abs(") and neg.endswith(")"):
        neg = neg[4:-1]
    if neg.startswith("|") and neg.endswith("|"):
        neg = neg[1:-1]
    m = re.fullmatch(r"([vas])(\d+)", neg)
    if m:
        return [(m.group(1), int(m.group(2)))]
    m = re.fullmatch(r"([vas])\[(\d+):(\d+)\]", neg)
    if m:
        return [(m.group(1), i) for i in range(int(m.group(2)), int(m.group(3)) + 1)]
    if neg == "vcc":
        return [("s", 106), ("s", 107)]
    if neg == "vcc_lo":
        return [("s", 106)]
    if neg == "vcc_hi":
        return [("s", 107)]
    if neg == "exec":
        return [("s", 126), ("s", 127)]
    if neg == "m0":
        return [("s", 124)]
    return []

class Ins:
    __slots__ = ("text", "mn", "cls", "dst", "src", "srcc", "passes", "extra")
    def __init__(self, text):
        self.text = text
        t = text.split(";")[0].strip()
        self.dst, self.src, self.srcc, self.passes, self.extra = [], [], [], 0, ""
        if not t or t.endswith(":") or t.startswith("."):
            self.mn, self.cls = t, "pseudo"
            return
        parts = t.split(None, 1)
        mn = parts[0]
        self.mn = mn
        ops = []
        if len(parts) > 1:
            raw = [o.strip() for o in parts[1].split(",")]
            last = raw[-1].split()
            raw[-1] = last[0] if last else ""
            self.extra = " ".join(last[1:])
            ops = raw
        R = [regs_of(o) for o in ops]
        flat = lambda xs: [r for x in xs for r in x]
        if mn.startswith("v_mfma"):
            self.cls = "mfma"
            self.dst, self.src, self.srcc = R[0], R[1] + R[2], R[3]
            self.passes = 8 if "32x32" in mn else 4
        elif mn.startswith("v_"):
            self.cls = "valu"
            if mn.startswith("v_cmp"):
                self.dst, self.src = R[0], flat(R[1:])
            elif mn.startswith(("v_add_co", "v_sub_co", "v_addc_co", "v_subb_co")):
                self.dst, self.src = R[0] + R[1], flat(R[2:])
            elif mn.startswith("v_permlane") and "swap" in mn:
                self.dst, self.src = R[0] + R[1], R[0] + R[1]
            elif mn.startswith(("v_fmac", "v_dot2c", "v_writelane")):
                self.dst, self.src = R[0], flat(R)
            elif mn == "v_nop":
                pass
            else:
                self.dst, self.src = R[0], flat(R[1:])
                if "dpp" in mn:
                    self.src = self.src + R[0]
        elif mn.startswith("ds_"):
            self.cls = "ds"
            if mn.startswith(("ds_read", "ds_bpermute", "ds_permute", "ds_swizzle")):
                self.dst, self.src = R[0], flat(R[1:])
            else:
                self.src = flat(R)
        elif mn.startswith(("buffer_", "global_")):
            self.cls = "vmem"
            if mn in ("buffer_wbl2", "buffer_inv"):
                pass
            elif "lds" in self.extra.split() or "_lds_" in mn:
                self.src = flat(R) + [("s", 124)]
            elif "load" in mn:
                self.dst, self.src = R[0], flat(R[1:])
            else:
                self.src = flat(R)
        elif mn.startswith(("s_load", "s_memtime", "s_memrealtime")):
            self.cls = "smem"
            self.dst, self.src = R[0], flat(R[1:])
        elif mn.startswith("s_"):
            self.cls = "salu"
            if mn.startswith(("s_cmp", "s_cbranch", "s_branch", "s_waitcnt", "s_nop", "s_barrier", "s_endpgm",
                              "s_sleep", "s_setprio", "s_bitcmp")):
                self.src = flat(R)
            else:
                self.dst, self.src = (R[0] if R else []), flat(R[1:])
                if "saveexec" in mn:
                    self.dst = self.dst + regs_of("exec")
        else:
            raise ValueError("unknown instruction: " + text)

    def states(self):
        if self.cls == "pseudo":
            return 0
        if self.mn == "s_nop":
            return int(self.text.split()[1], 0) + 1
        return 1

def required(p, c):
    need = 0
    pd = set(p.dst)
    cs, cc, cd = set(c.src), set(c.srcc), set(c.dst)
    vec = lambda s: {r for r in s if r[0] in "va"}
    sc = lambda s: {r for r in s if r[0] == "s"}
    if p.cls == "valu":
        isdot = p.mn.startswith("v_dot")
        if c.cls == "mfma" and vec(pd) & (cs | cc):
            need = max(need, 3 if isdot else 2)
        if isdot and vec(pd) & (cs | cd):
            same = c.mn == p.mn
            if not same:
                need = max(need, 3)
            else:
                ops = [o.strip() for o in c.text.split(None, 1)[1].split(",")]
                ab = set(regs_of(ops[1]) + regs_of(ops[2].split()[0]))
                if pd & ab:
                    need = max(need, 3)
        if c.cls == "valu":
            if c.mn.startswith("v_permlane") and vec(pd) & cs:
                need = max(need, 2)
            if "dpp" in c.mn and vec(pd) & cs:
                need = max(need, 2)
            if c.mn.startswith(("v_readlane", "v_readfirstlane")) and vec(pd) & cs:
                need = max(need, 1)
            if p.mn.startswith(TRANS) and vec(pd) & cs:
                need = max(need, 1)
            if "sdwa" in p.mn and vec(pd) & (cs | cd):
                need = max(need, 1)
            if sc(pd) & cs:
                need = max(need, 4 if c.mn.startswith(("v_readlane", "v_writelane")) else 2)
        if c.cls == "vmem" and sc(pd) & cs:
            need = max(need, 5)
        if c.cls in ("salu", "smem") and sc(pd) & cs:
            need = max(need, 1)
    elif p.cls == "mfma":
        big = {4: 8, 8: 12}[p.passes]
        if c.cls == "mfma":
            if pd & cs:
                need = max(need, big)
            if pd & cc:
                if not (p.dst == c.srcc and p.passes == c.passes):
                    need = max(need, {4: 6, 8: 10}[p.passes])
            elif pd & cd:
                need = max(need, {4: 6, 8: 10}[p.passes])
        elif c.cls in ("valu", "ds", "vmem"):
            if pd & (cs | cd):
                need = max(need, big)
            if set(p.srcc) & cd:
                need = max(need, {4: 3, 8: 7}[p.passes])
    elif p.cls == "vmem":
        if not p.dst and ("x4" in p.mn or "x3" in p.mn) and "store" in p.mn:
            data = set(regs_of(p.text.split(None, 1)[1].split(",")[0 if p.mn.startswith("buffer") else 1]))
            if data & cd:
                need = max(need, 2)
    elif p.cls == "ds":
        if p.mn.startswith("ds_write_b128") and c.cls == "valu" and vec(set(p.src)) & cd:
            need = max(need, 1)
    elif p.cls == "salu":
        if ("s", 124) in pd and c.cls == "vmem" and ("s", 124) in cs:
            need = max(need, 1)
    return need

def hazard_pass(lines):
    out = []
    added = 0
    for text in lines:
        c = Ins(text)
        if c.cls != "pseudo":
            dist, worst = 0, 0
            for p in reversed(out):
                if dist >= 12:
                    break
                if p.cls != "pseudo":
                    worst = max(worst, required(p, c) - dist)
                    dist += p.states()
            if worst > 0:
                out.append(Ins("s_nop %d" % (worst - 1)))
                added += worst
        out.append(c)
    return [i.text for i in out], added

class Asm:
    def __init__(self):
        self.lines = []
        self.vm_n = 0; self.vm_done = 0; self.vm_tag = {}
        self.ds_n = 0; self.ds_done = 0; self.ds_tag = {}
        self.uid = 0
    def I(self, text):
        for t in text.split("\n"):
            t = t.strip()
            if t:
                self.lines.append(t)
    def label(self, base):
        self.uid += 1
        return "L_%s_%d" % (base, self.uid)
    def vm(self, text, tag=None):
        if self.vm_n - self.vm_done >= 62:
            self.vm_wait_n(self.vm_done + 1)
        self.I(text)
        self.vm_n += 1
        if tag is not None:
            self.vm_tag[tag] = self.vm_n
        return self.vm_n
    def vm_wait_n(self, seq):
        if seq > self.vm_done:
            self.I("s_waitcnt vmcnt(%d)" % (self.vm_n - seq))
            self.vm_done = seq
    def vm_wait(self, tag):
        self.vm_wait_n(self.vm_tag[tag])
    def vm_drain(self, force=False):
        if force or self.vm_n > self.vm_done:
            self.I("s_waitcnt vmcnt(0)")
        self.vm_done = self.vm_n
    def ds(self, text, tag=None):
        if self.ds_n - self.ds_done >= 15:
            self.ds_wait_n(self.ds_done + 1)
        self.I(text)
        self.ds_n += 1
        if tag is not None:
            self.ds_tag[tag] = self.ds_n
        return self.ds_n
    def ds_wait_n(self, seq):
        if seq > self.ds_done:
            self.I("s_waitcnt lgkmcnt(%d)" % (self.ds_n - seq))
            self.ds_done = seq
    def ds_wait(self, tag):
        self.ds_wait_n(self.ds_tag[tag])
    def ds_drain(self, force=False):
        if force or self.ds_n > self.ds_done:
            self.I("s_waitcnt lgkmcnt(0)")
        self.ds_done = self.ds_n
    def run(self, op):
        k = op[0]
        if k == "i": self.I(op[1])
        elif k == "vm": self.vm(op[1], op[2] if len(op) > 2 else None)
        elif k == "ds": self.ds(op[1], op[2] if len(op) > 2 else None)
        elif k == "wvm": self.vm_wait(op[1])
        elif k == "wds": self.ds_wait(op[1])
        elif k == "dsdrain": self.ds_drain()
        elif k == "vmdrain": self.vm_drain()
        elif k == "call": op[1]()
        else: raise ValueError(op)
    def run_all(self, ops):
        for op in ops:
            self.run(op)

class Slots:
    def __init__(self):
        self.pre, self.mf, self.post = [], [], []
    def add(self, mfma, pre=()):
        self.pre.append(list(pre)); self.mf.append(mfma); self.post.append([])
        return len(self.mf) - 1
    def n(self):
        return len(self.mf)
    def after(self, i, *ops):
        self.post[min(max(i, 0), len(self.mf) - 1)].extend(ops)
    def before(self, i, *ops):
        self.pre[i].extend(ops)
    def spread(self, groups, first, last):
        n = len(groups)
        for k, g in enumerate(groups):
            pos = first + (k * (last - first + 1)) // max(n, 1)
            self.after(pos, *g)
    def emit(self, a):
        for i in range(len(self.mf)):
            a.run_all(self.pre[i])
            a.I(self.mf[i])
            a.run_all(self.post[i])
```

```python
FL = 0x1000
HFL = 0xA000
FLAG_END = 0xC000
STAMP = 0x10000
WQ = 0x100000; WQ_STRIDE = 102400
WO = WQ + 16 * WQ_STRIDE; WO_STRIDE = 65536
WG = WO + 8 * WO_STRIDE; WG_STRIDE = 232 * 1024
WD = WG + 16 * WG_STRIDE; WD_STRIDE = 229376
WEND = WD + 8 * WD_STRIDE
ACT = 0xA00000; ACT_STRIDE = 0x200000
assert WEND <= ACT
XB = [i * 131072 for i in range(4)]
OB = [(4 + i) * 131072 for i in range(2)]
HB = [6 * 131072 + i * 458752 for i in range(2)]
SB = [6 * 131072 + 2 * 458752 + i * 8192 for i in range(4)]
HX = [SB[3] + 8192 + i * 16384 for i in range(2)]
assert HX[1] + 16384 <= ACT_STRIDE
WS_USED = ACT + 16 * ACT_STRIDE
```

```python
import sys
from dsl import Asm, Slots, hazard_pass
import layout as LY

NAME = "interleave_layers__sliding_local_dilated__glu_gated_reglu__prompt"
OPT = dict(stamps=0, stop=99)
for arg in sys.argv[2:]:
    k, v = arg.split("=")
    OPT[k] = int(v)

def vr(b, n): return "v[%d:%d]" % (b, b + n - 1)
def ar(b, n): return "a[%d:%d]" % (b, b + n - 1)
def magic(d): return (1 << 32) // d + 1

def srd(a, base, lo, nbytes):
    a.I("s_mov_b32 s%d, s%d" % (base, lo))
    a.I("s_and_b32 s%d, s%d, 0xffff" % (base + 1, lo + 1))
    a.I("s_mov_b32 s%d, 0x%x" % (base + 2, nbytes))
    a.I("s_mov_b32 s%d, 0x20000" % (base + 3))

def sdivmod(a, q, r, x, d, tmp):
    a.I("s_mul_hi_u32 %s, %s, 0x%x" % (q, x, magic(d)))
    a.I("s_mul_i32 %s, %s, %d" % (tmp, q, d))
    a.I("s_sub_u32 %s, %s, %s" % (r, x, tmp))

WS = "s[8:11]"

def hi_lo_pack(a, dst, src, t0):
    a.I("v_cvt_pk_bf16_f32 v%d, v%d, v%d" % (dst, src, src))
    a.I("v_lshlrev_b32 v%d, 16, v%d" % (t0, dst))
    a.I("v_sub_f32 v%d, v%d, v%d" % (t0, src, t0))
    a.I("v_cvt_pk_bf16_f32 v%d, v%d, v%d" % (dst, src, t0))

def gen_format(a):
    a.I("fmt_kernel:")
    a.I("s_cmp_ge_u32 s2, 256\ns_cbranch_scc1 L_fmt_done")
    a.I("s_load_dwordx4 s[36:39], s[0:1], 8")
    a.I("s_load_dwordx4 s[40:43], s[0:1], 32")
    a.I("s_load_dwordx2 s[44:45], s[0:1], 48")
    a.I("s_load_dwordx2 s[4:5], s[0:1], 72")
    a.I("v_lshrrev_b32 v1, 6, v0")
    a.I("v_mov_b32 v60, v0")
    a.I("v_readfirstlane_b32 s20, v1")
    a.I("v_and_b32 v0, 63, v0")
    a.I("v_lshlrev_b32 v1, 4, v0")
    a.I("v_lshrrev_b32 v2, 3, v0")
    a.I("v_and_b32 v3, 7, v0\nv_lshlrev_b32 v3, 4, v3")
    a.I("v_bfe_u32 v4, v0, 2, 2")
    a.I("v_and_b32 v5, 3, v0")
    a.I("v_bfe_u32 v6, v0, 4, 1")
    a.I("v_lshrrev_b32 v7, 5, v0")
    a.I("v_lshrrev_b32 v8, 4, v0")
    a.I("v_mov_b32 v40, 0x3f803f80\nv_mov_b32 v41, 0x3f803f80\nv_mov_b32 v42, 0x3f803f80\nv_mov_b32 v43, 0x3f803f80")
    a.I("s_waitcnt lgkmcnt(0)")
    srd(a, 8, 4, LY.WS_USED)
    srd(a, 12, 36, 512 * 1536 * 2)
    srd(a, 16, 38, 512 * 512 * 2)
    srd(a, 48, 40, 512 * 1792 * 2)
    srd(a, 52, 42, 512 * 1792 * 2)
    srd(a, 56, 44, 1792 * 512 * 2)
    a.I("s_cmp_ge_u32 s2, %d\ns_cbranch_scc1 L_fmt_noclr" % (LY.FLAG_END // 4096))
    a.I("v_mov_b32 v44, 0\nv_mov_b32 v45, 0\nv_mov_b32 v46, 0\nv_mov_b32 v47, 0")
    a.I("v_lshlrev_b32 v60, 4, v60\ns_lshl_b32 s21, s2, 12")
    a.I("buffer_store_dwordx4 v[44:47], v60, %s, s21 offen" % WS)
    a.I("L_fmt_noclr:")
    a.I("s_lshl_b32 s22, s20, 11")

    def tile_dma(srdn, stride, s_cu, s_kk, ldsbase, vt):
        a.I("v_mul_u32_u24 v%d, %d, v2\nv_add_u32 v%d, v%d, v3" % (vt, stride, vt, vt))
        a.I("s_lshl_b32 s23, %s, 6\ns_lshl_b32 s24, s20, 4\ns_add_u32 s23, s23, s24" % s_kk)
        a.I("s_mul_i32 s23, s23, %d\ns_lshl_b32 s24, %s, 7\ns_add_u32 s23, s23, s24" % (stride, s_cu))
        a.I("s_add_u32 m0, s22, %d" % ldsbase)
        a.I("s_add_u32 s24, s23, %d" % (8 * stride - 1024))
        a.I("buffer_load_dwordx4 v%d, s[%d:%d], s23 offen lds" % (vt, srdn, srdn + 3))
        a.I("buffer_load_dwordx4 v%d, s[%d:%d], s24 offen offset:1024 lds" % (vt, srdn, srdn + 3))

    a.I("s_cmp_ge_u32 s2, 224\ns_cbranch_scc1 L_fmt_nob")
    sdivmod(a, "s27", "s26", "s2", 28, "s21")
    a.I("s_and_b32 s28, s2, 7\ns_lshr_b32 s29, s2, 3")
    tile_dma(48, 3584, "s26", "s27", 8192, 10)
    tile_dma(52, 3584, "s26", "s27", 16384, 10)
    tile_dma(56, 1024, "s28", "s29", 24576, 11)
    a.I("L_fmt_nob:")
    a.I("s_cmp_ge_u32 s2, 192\ns_cbranch_scc1 L_fmt_wo")
    sdivmod(a, "s31", "s30", "s2", 24, "s21")
    tile_dma(12, 3072, "s30", "s31", 0, 12)
    a.I("s_waitcnt vmcnt(0)\ns_barrier")
    a.I("v_lshlrev_b32 v13, 3, v8\nv_add_u32 v13, v13, v4\nv_lshlrev_b32 v13, 7, v13")
    a.I("v_lshlrev_b32 v14, 3, v5\nv_add_u32 v13, v13, v14\ns_lshl_b32 s21, s20, 5\nv_add_u32 v13, s21, v13")
    for sp in range(2):
        for half in range(2):
            a.I("ds_read_b64_tr_b16 %s, v13 offset:%d" % (vr(16 + 4 * sp + 2 * half, 2), (32 * sp + 4 * half) * 128))
    a.I("s_and_b32 s21, s30, 7\ns_lshl_b32 s21, s21, 1\ns_lshr_b32 s23, s20, 1\ns_add_u32 s21, s21, s23")
    a.I("s_mul_i32 s21, s21, %d\ns_add_u32 s21, s21, %d" % (LY.WQ_STRIDE, LY.WQ))
    a.I("s_lshr_b32 s23, s30, 3\ns_lshl_b32 s23, s23, 1\ns_and_b32 s24, s20, 1\ns_add_u32 s23, s23, s24")
    a.I("s_mul_i32 s24, s31, 12288\ns_lshl_b32 s25, s23, 10\ns_add_u32 s24, s24, s25\ns_add_u32 s24, s24, s21")
    a.I("s_add_u32 s25, s24, 6144")
    a.I("s_waitcnt lgkmcnt(0)")
    a.I("buffer_store_dwordx4 v[16:19], v1, %s, s24 offen" % WS)
    a.I("buffer_store_dwordx4 v[20:23], v1, %s, s25 offen" % WS)
    a.I("v_mfma_f32_16x16x32_bf16 v[24:27], v[40:43], v[16:19], 0")
    a.I("v_mfma_f32_16x16x32_bf16 v[24:27], v[40:43], v[20:23], v[24:27]")
    a.I("s_lshl_b32 s23, s23, 9\ns_add_u32 s21, s21, s23\ns_add_u32 s21, s21, 98304")
    a.I("s_lshr_b32 s23, s31, 1\ns_lshl_b32 s23, s23, 7\ns_and_b32 s24, s31, 1\ns_lshl_b32 s24, s24, 2")
    a.I("s_add_u32 s21, s21, s23\ns_add_u32 s21, s21, s24")
    a.I("v_and_b32 v14, 15, v0\nv_lshlrev_b32 v14, 3, v14")
    hi_lo_pack(a, 28, 24, 29)
    a.I("buffer_store_dword v28, v14, %s, s21 offen" % WS)
    a.I("s_branch L_fmt_b")
    a.I("L_fmt_wo:")
    a.I("s_sub_u32 s21, s2, 192\ns_and_b32 s30, s21, 7\ns_lshr_b32 s31, s21, 3")
    tile_dma(16, 1024, "s30", "s31", 0, 12)
    a.I("s_waitcnt vmcnt(0)\ns_barrier")
    a.I("s_lshr_b32 s21, s20, 1\ns_lshl_b32 s21, s21, 5\ns_and_b32 s23, s20, 1\ns_lshl_b32 s23, s23, 3\ns_add_u32 s21, s21, s23")
    a.I("v_lshlrev_b32 v13, 2, v7\nv_add_u32 v13, v13, v4\nv_add_u32 v13, s21, v13\nv_lshlrev_b32 v13, 7, v13")
    a.I("v_lshlrev_b32 v14, 6, v6\nv_lshlrev_b32 v15, 4, v5\nv_add3_u32 v13, v13, v14, v15")
    for cb in range(2):
        for half in range(2):
            a.I("ds_read_b64_tr_b16 %s, v13 offset:%d" % (vr(16 + 4 * cb + 2 * half, 2), 16 * half * 128 + 8 * cb))
    a.I("s_lshl_b32 s21, s31, 2\ns_add_u32 s21, s21, s20\ns_lshl_b32 s21, s21, 11")
    a.I("s_lshl_b32 s23, s30, 16\ns_add_u32 s21, s21, s23\ns_add_u32 s21, s21, %d" % LY.WO)
    a.I("s_waitcnt lgkmcnt(0)")
    a.I("buffer_store_dwordx4 v[16:19], v1, %s, s21 offen" % WS)
    a.I("buffer_store_dwordx4 v[20:23], v1, %s, s21 offen offset:1024" % WS)
    a.I("L_fmt_b:")
    a.I("s_cmp_ge_u32 s2, 224\ns_cbranch_scc1 L_fmt_done")
    a.I("v_lshlrev_b32 v13, 3, v7\nv_add_u32 v13, v13, v4\nv_lshlrev_b32 v13, 7, v13")
    a.I("v_mov_b32 v9, v13")
    a.I("v_lshrrev_b32 v14, 1, v5\nv_lshlrev_b32 v14, 13, v14\nv_and_b32 v15, 1, v5\nv_lshlrev_b32 v15, 4, v15")
    a.I("v_add3_u32 v13, v13, v14, v15\nv_lshlrev_b32 v14, 3, v6\ns_lshl_b32 s21, s20, 5\nv_add3_u32 v13, v13, v14, s21")
    for sp in range(4):
        for half in range(2):
            a.I("ds_read_b64_tr_b16 %s, v13 offset:%d" % (vr(64 + 4 * sp + 2 * half, 2), 8192 + (16 * sp + 4 * half) * 128))
    a.I("v_lshlrev_b32 v14, 6, v6\nv_lshlrev_b32 v15, 4, v5\nv_add3_u32 v9, v9, v14, v15\nv_add_u32 v9, s22, v9")
    for cb in range(2):
        for half in range(2):
            a.I("ds_read_b64_tr_b16 %s, v9 offset:%d" % (vr(80 + 4 * cb + 2 * half, 2), 24576 + 4 * half * 128 + 8 * cb))
    a.I("s_lshl_b32 s21, s26, 2\ns_add_u32 s21, s21, s20")
    sdivmod(a, "s23", "s24", "s21", 7, "s25")
    a.I("s_mul_i32 s23, s23, %d\ns_add_u32 s23, s23, %d" % (LY.WG_STRIDE, LY.WG))
    a.I("s_mul_i32 s25, s24, 33\ns_cmp_lt_u32 s24, 3\ns_cselect_b32 s24, s24, s25\ns_cselect_b32 s25, 3, 1\ns_lshl_b32 s25, s25, 10")
    a.I("s_lshl_b32 s24, s24, 10\ns_add_u32 s23, s23, s24")
    a.I("s_lshl_b32 s24, s27, 2\ns_mul_i32 s24, s24, s25\ns_add_u32 s24, s24, s23")
    a.I("s_waitcnt lgkmcnt(4)")
    for sp in range(4):
        a.I("buffer_store_dwordx4 %s, v1, %s, s24 offen" % (vr(64 + 4 * sp, 4), WS))
        a.I("v_mfma_f32_32x32x16_bf16 v[96:111], v[40:43], %s, %s" % (vr(64 + 4 * sp, 4), "0" if sp == 0 else "v[96:111]"))
        a.I("s_add_u32 s24, s24, s25")
    a.I("s_lshl_b32 s21, s29, 2\ns_add_u32 s21, s21, s20\ns_lshl_b32 s21, s21, 11")
    a.I("s_mul_i32 s24, s28, %d\ns_add_u32 s21, s21, s24\ns_add_u32 s21, s21, %d" % (LY.WD_STRIDE, LY.WD))
    a.I("s_waitcnt lgkmcnt(0)")
    a.I("buffer_store_dwordx4 v[80:83], v1, %s, s21 offen" % WS)
    a.I("buffer_store_dwordx4 v[84:87], v1, %s, s21 offen offset:1024" % WS)
    a.I("s_lshl_b32 s25, s25, 5\ns_add_u32 s23, s23, s25")
    a.I("s_lshr_b32 s24, s27, 2\ns_lshl_b32 s24, s24, 9\ns_and_b32 s25, s27, 3\ns_lshl_b32 s25, s25, 2")
    a.I("s_add_u32 s23, s23, s24\ns_add_u32 s23, s23, s25")
    a.I("v_and_b32 v14, 31, v0\nv_lshlrev_b32 v14, 4, v14")
    hi_lo_pack(a, 28, 96, 29)
    a.I("buffer_store_dword v28, v14, %s, s23 offen" % WS)
    a.I("L_fmt_done:\ns_endpgm")

sW, sJ, sR, sC, sG, sN, sNONCE, sSLOW = ("s%d" % i for i in range(20, 28))
sGB, sXLD, sXST, sOST, sOLD, sHST, sHLD, sWQ, sWG, sWO, sWD, sLW = ("s%d" % i for i in range(28, 40))
sMA, sMB = "s[40:41]", "s[42:43]"
sFLG, sFLW, sHALO, sHFL, sTAB, sSST, sONE, sHDST, sHDFL, sFV = ("s%d" % i for i in range(44, 54))
sTA, sTW, sTD, sTS, sT0, sT1, sT2, sSPIN = ("s%d" % i for i in range(56, 64))
sMH = "s[64:65]"
sSAVE = "s[66:67]"
sST = 68
XIN, OUT = "s[12:15]", "s[16:19]"
vL, vL16, vL16b, vL16c, vQ, vE, vFL, vSTAMP = 0, 1, 2, 3, 4, 5, 6, 7
XRES = 8
T = 16
X, ACC, F = 32, 160, 224
aROW, aST, aSQ, aSH, aSG, aSD, aXW, aXR, aHX, aHWR, aHWS, aHST, aHSS = range(224, 237)
aBC, aBP, aBP0, aMC = 240, 244, 248, 252
L_HALO, L_KV, L_TAB = 102400, 114688, 124928
L_SCR_WO, L_SCR_DN = 49152, 131072
NEG = "0xf149f2ca"

def ldsaddr(off):
    b = off >> 16
    return "v%d offset:%d" % ((vL16, vL16b, vL16c)[b], off & 0xffff)

class Main:
    def __init__(self):
        self.a = Asm()
        self.nstamp = 0

    def stamp(self):
        if not OPT["stamps"]:
            return
        a = self.a
        a.I("s_memtime s[%d:%d]" % (sST, sST + 1))
        a.ds_drain(force=True)
        a.I("v_writelane_b32 v%d, s%d, %d" % (vSTAMP, sST, self.nstamp))
        self.nstamp += 1

    def getc(self, v, acc):
        return "v_accvgpr_read_b32 v%d, a%d" % (v, acc)

    def prologue(self):
        a = self.a
        a.I("main_kernel:")
        a.I("s_cmp_ge_u32 s2, 256\ns_cbranch_scc1 L_main_done")
        a.I("s_load_dwordx2 s[4:5], s[0:1], 72\ns_load_dwordx2 s[6:7], s[0:1], 0\ns_load_dwordx2 s[70:71], s[0:1], 56")
        a.I("v_lshrrev_b32 v16, 6, v0\nv_and_b32 v0, 63, v0\nv_mov_b32 v%d, 0" % vSTAMP)
        a.I("v_readfirstlane_b32 %s, v16" % sW)
        a.I("s_and_b32 %s, s2, 7\ns_lshr_b32 %s, s2, 3" % (sN, sT0))
        a.I("s_and_b32 %s, %s, 15\ns_lshr_b32 %s, %s, 4" % (sJ, sT0, sT1, sT0))
        a.I("s_lshl_b32 %s, %s, 1\ns_add_u32 %s, %s, %s" % (sG, sN, sG, sG, sT1))
        a.I("s_lshr_b32 %s, %s, 3\ns_and_b32 %s, %s, 7" % (sR, sJ, sC, sJ))
        a.I("s_mov_b32 %s, 16\ns_mov_b32 %s, 0\ns_mov_b32 %s, 0x3f803f80" % (sNONCE, sSLOW, sONE))
        a.I("s_getreg_b32 %s, hwreg(HW_REG_XCC_ID, 0, 4)\ns_add_u32 %s, %s, %s" % (sFV, sFV, sFV, sNONCE))
        a.I("s_lshl_b32 %s, %s, 21\ns_add_u32 %s, %s, 0x%x" % (sGB, sG, sGB, sGB, LY.ACT))
        def lin(dst, base, terms):
            first = True
            for reg, mul in terms:
                a.I("s_mul_i32 %s, %s, %d" % (sT2, reg, mul))
                a.I("s_add_u32 %s, %s, %s" % (dst, base if first else dst, sT2))
                first = False
        lin(sXLD, sGB, [(sW, 32768)])
        lin(sXST, sGB, [(sR, 65536), (sC, 4096)])
        lin(sOST, sXLD, [(sJ, 2048)])
        lin(sOLD, sGB, [(sR, 65536), (sW, 8192)])
        lin(sHST, sGB, [(sW, 114688), (sJ, 7168)])
        lin(sHLD, sGB, [(sR, 229376), (sW, 28672)])
        lin(sWQ, str(LY.WQ), [(sJ, LY.WQ_STRIDE)])
        lin(sWG, str(LY.WG), [(sJ, LY.WG_STRIDE)])
        lin(sWO, str(LY.WO), [(sC, LY.WO_STRIDE), (sW, 16384)])
        lin(sWD, str(LY.WD), [(sC, LY.WD_STRIDE), (sW, 57344)])
        lin(sFLG, str(LY.FL), [(sG, 256)])
        lin(sFLW, sFLG, [(sJ, 16), (sW, 4)])
        lin(sHFL, str(LY.HFL), [(sG, 128)])
        lin(sHDFL, sHFL, [(sC, 4)])
        a.I("s_add_u32 %s, %s, 256" % (sHDFL, sHDFL))
        lin(sTAB, str(L_TAB), [(sW, 512)])
        lin(sSST, sGB, [(sR, 4096), (sC, 8)])
        a.I("s_add_u32 %s, %s, 0x%x" % (sHDST, sGB, 2 * LY.ACT_STRIDE))
        a.I("s_lshl_b32 %s, %s, 10" % (sLW, sW))
        a.I("s_cmp_eq_u32 %s, 0\ns_cselect_b32 %s, 0x%x, %s" % (sN, sHALO, 0x40000000, sGB))
        a.I("s_cselect_b32 s64, 0, 0xff\ns_mov_b32 s65, 0")
        a.I("s_cmp_ge_u32 %s, 2\ns_cselect_b32 s40, 0, -1\ns_cselect_b32 s41, -1, 0" % sW)
        a.I("s_lshl_b32 %s, %s, 1\ns_lshl_b32 %s, %s, 4\ns_add_u32 %s, %s, %s" % (sT0, sR, sT2, sW, sT0, sT0, sT2))
        a.I("s_mov_b32 s42, 0x3333\ns_mov_b32 s43, 0\ns_lshl_b64 s[42:43], s[42:43], %s" % sT0)
        t8, kc, tok, g, hh, t32, u0, u1 = range(16, 24)
        a.I("v_lshlrev_b32 v%d, 4, v0\nv_add_u32 v%d, 0x10000, v%d\nv_add_u32 v%d, 0x20000, v%d" % (vL16, vL16b, vL16, vL16c, vL16))
        a.I("v_lshlrev_b32 v%d, 2, v0" % vFL)
        a.I("v_and_b32 v%d, 7, v0\nv_lshrrev_b32 v%d, 3, v0\nv_and_b32 v%d, 15, v0\nv_lshrrev_b32 v%d, 4, v0" % (t8, kc, tok, g))
        a.I("v_lshrrev_b32 v%d, 5, v0\nv_and_b32 v%d, 31, v0" % (hh, t32))
        a.I("v_lshlrev_b32 v%d, 4, v%d\nv_lshl_add_u32 v%d, v%d, 9, v%d" % (u0, tok, vQ, g, u0))
        a.I("s_lshl_b32 %s, %s, 3\nv_add_u32 v24, %s, v%d" % (sT0, sW, sT0, t8))
        a.I("v_lshlrev_b32 v%d, 4, v24\nv_lshl_add_u32 v%d, v%d, 9, v%d" % (u0, vE, kc, u0))
        def put(acc): a.I("v_accvgpr_write_b32 a%d, v%d" % (acc, u1))
        a.I("v_and_b32 v%d, 1, v%d\nv_lshlrev_b32 v%d, 7, v%d\nv_xor_b32 v%d, v%d, v%d" % (u1, kc, u1, u1, u1, u1, vE)); put(aXR)
        a.I("v_lshlrev_b32 v%d, 7, v%d\nv_xor_b32 v%d, v%d, v%d\ns_lshl_b32 %s, %s, 13\nv_add_u32 v%d, %s, v%d" %
            (u1, hh, u1, u1, vL16, sT0, sW, u1, sT0, u1)); put(aXW)
        a.I("s_lshl_b32 %s, %s, 18\ns_lshl_b32 %s, %s, 17\ns_add_u32 %s, %s, %s" % (sT0, sN, sT2, sR, sT0, sT0, sT2))
        a.I("s_lshl_b32 %s, %s, 10\ns_add_u32 %s, %s, %s\ns_lshl_b32 %s, %s, 7\ns_add_u32 %s, %s, %s" %
            (sT2, sT1, sT0, sT0, sT2, sT2, sC, sT0, sT0, sT2))
        a.I("v_lshlrev_b32 v%d, 11, v24\nv_lshl_add_u32 v%d, v%d, 4, v%d\nv_add_u32 v%d, %s, v%d" % (u1, u1, kc, u1, u1, sT0, u1)); put(aROW)
        a.I("v_lshl_add_u32 v%d, v%d, 5, v24\nv_lshlrev_b32 v%d, 6, v%d\nv_and_b32 v%d, 1, v%d\nv_lshl_add_u32 v%d, v%d, 2, v%d" %
            (u1, hh, u1, u1, u0, g, u1, u0, u1)); put(aST)
        a.I("v_lshlrev_b32 v%d, 6, v%d\nv_lshl_add_u32 v%d, v%d, 2, v%d\ns_lshl_b32 %s, %s, 3\ns_add_u32 %s, %s, 8192\nv_add_u32 v%d, %s, v%d" %
            (u1, t8, u1, u0, u1, sT0, sC, sT0, sT0, u1, sT0, u1))
        a.I("v_xor_b32 v%d, 1, v%d\nv_lshl_add_u32 v%d, v%d, 30, v%d" % (u0, hh, u1, u0, u1)); put(aHSS)
        a.I("s_lshl_b32 %s, %s, 10\nv_add_u32 v%d, %s, v%d" % (sT0, sC, u1, sT0, vL16)); put(aHST)
        a.I("v_lshlrev_b32 v%d, 4, v%d\nv_lshl_add_u32 v%d, v%d, 6, v%d" % (u0, g, u1, tok, u0)); put(aSQ)
        a.I("v_lshl_add_u32 v%d, v%d, 6, v%d" % (u1, t8, u0)); put(aSH)
        a.I("v_lshlrev_b32 v%d, 5, v%d\nv_lshl_add_u32 v%d, v%d, 6, v%d" % (u0, hh, u1, t32, u0)); put(aSG)
        a.I("v_lshlrev_b32 v%d, 3, v%d\nv_lshl_add_u32 v%d, v24, 6, v%d" % (u0, kc, u1, u0)); put(aSD)
        a.I("v_lshlrev_b32 v%d, 4, v%d\nv_lshl_add_u32 v%d, v%d, 7, v%d\nv_add_u32 v%d, %d, v%d" % (u0, t8, u1, g, u0, u1, L_HALO, u1)); put(aHX)
        a.I("v_lshrrev_b32 v%d, 2, v%d\nv_lshlrev_b32 v%d, 8, v%d\nv_lshl_add_u32 v%d, v%d, 6, v%d" % (u0, tok, u0, u0, u0, g, u0))
        a.I("v_and_b32 v%d, 3, v%d\nv_lshl_add_u32 v%d, v%d, 1, v%d\nv_add_u32 v%d, 1024, v%d" % (u1, tok, u0, u1, u0, u1, vL16))
        a.I("s_cmp_ge_u32 %s, 2\ns_cselect_b64 vcc, -1, 0\ns_cselect_b32 %s, 2, 16" % (sW, sT2))
        a.I("v_cndmask_b32 v%d, v%d, v%d, vcc" % (u1, u0, u1))
        a.I("s_and_b32 %s, %s, 1\ns_lshl_b32 %s, %s, 3\ns_add_u32 %s, %s, %d\nv_add_u32 v%d, %s, v%d" % (sT0, sW, sT0, sT0, sT0, sT0, L_KV, u1, sT0, u1)); put(aHWR)
        a.I("v_mov_b32 v%d, %s" % (u1, sT2)); put(aHWS)
        a.I("s_or_b32 %s, %s, %s\ns_cmp_eq_u32 %s, 0\ns_cselect_b64 %s, -1, 0" % (sT0, sN, sW, sT0, sSAVE))
        a.I("v_mov_b32 v25, %s\nv_mov_b32 v28, 0" % NEG)
        for r in range(4):
            a.I("v_lshlrev_b32 v%d, 2, v%d\nv_sub_u32 v%d, v%d, v%d\nv_subrev_u32 v%d, %d, v%d" % (u0, g, u0, tok, u0, u0, r, u0))
            a.I("v_cmp_gt_u32 vcc, 8, v%d\nv_cndmask_b32 v%d, v25, v28, vcc" % (u0, u1)); put(aBC + r)
            a.I("v_cmp_gt_i32 vcc, -8, v%d\nv_cndmask_b32 v%d, v25, v28, vcc" % (u0, u1)); put(aBP + r)
            a.I("v_cndmask_b32 v%d, v%d, v25, %s" % (u1, u1, sSAVE)); put(aBP0 + r)
            a.I("v_mov_b32 v27, %s\nv_cmp_le_i32 vcc, 0, v%d\nv_cndmask_b32 v%d, v28, v27, vcc" % ("0xffff0000" if r & 1 else "0xffff", u0, u1))
            if r & 1:
                a.I("v_or_b32 v%d, v%d, v26" % (u1, u1)); put(aMC + r // 2)
            else:
                a.I("v_mov_b32 v26, v%d" % u1)
        a.I("s_waitcnt lgkmcnt(0)")
        srd(a, 8, 4, LY.WS_USED)
        srd(a, 12, 6, 2048 * 1024)
        srd(a, 16, 70, 2048 * 1024)

    def signal(self, h, first=False):
        a = self.a
        a.I("s_add_u32 %s, %s, %d\nv_mov_b32 v30, %s\nv_mov_b32 v31, 0" % (sTS, sFLW, h * 4096, sFV))
        if first:
            a.vm("buffer_store_dword v30, v31, %s, %s offen sc1" % (WS, sTS))
            return
        slow, done = a.label("slow"), a.label("sig")
        a.I("s_cmp_lg_u32 %s, 0\ns_cbranch_scc1 %s" % (sSLOW, slow))
        a.vm("buffer_store_dword v30, v31, %s, %s offen" % (WS, sTS))
        a.I("s_branch %s\n%s:" % (done, slow))
        a.I("buffer_wbl2 sc1\ns_waitcnt vmcnt(0)")
        a.I("buffer_store_dword v30, v31, %s, %s offen sc1" % (WS, sTS))
        a.I("%s:" % done)

    def poll(self, soff, add, mask, first=False):
        a = self.a
        loop, ok = a.label("poll"), a.label("ok")
        a.I("s_add_u32 %s, %s, %d\ns_mov_b32 %s, 0x40000" % (sTA, soff, add, sSPIN))
        a.I("%s:" % loop)
        a.I("buffer_load_dword v30, v%d, %s, %s offen sc1" % (vFL, WS, sTA))
        a.I("s_sub_u32 %s, %s, 1\ns_cbranch_scc1 L_main_done" % (sSPIN, sSPIN))
        a.vm_drain(force=True)
        a.I("v_subrev_u32 v31, %s, v30\nv_cmp_lt_u32 vcc, 15, v31" % sNONCE)
        if mask:
            a.I("s_and_b64 vcc, vcc, %s" % mask)
        else:
            a.I("s_and_b64 vcc, vcc, exec")
        a.I("s_cbranch_scc1 %s" % loop)
        if first:
            a.I("v_cmp_ne_u32 vcc, %s, v30\ns_cmp_lg_u64 vcc, 0\ns_cselect_b32 %s, 1, 0" % (sFV, sSLOW))
        else:
            a.I("s_cmp_lg_u32 %s, 0\ns_cbranch_scc0 %s\nbuffer_inv sc1\ns_waitcnt vmcnt(0)\n%s:" % (sSLOW, ok, ok))

    def dma_chunk(self, sbase, goff, loff, n, tag, sc=""):
        ops = [[("i", "s_mul_i32 %s, %s, %d" % (sT2, sLW, n)),
                ("i", "s_add_u32 m0, %s, %d" % (sT2, loff)),
                ("i", "s_add_u32 %s, %s, %s" % (sTW, sbase, sT2)),
                ("i", "s_add_u32 %s, %s, %d" % (sTW, sTW, goff))]]
        for k in range(n):
            ops.append([("vm", "buffer_load_dwordx4 v%d, %s, %s offen offset:%d%s lds" % (vL16, WS, sTW, k * 1024, sc), tag)])
        return ops

    def wq_chunks(self):
        out = []
        for i in range(7):
            out.append(self.dma_chunk(sWQ, i * 16384, i * 16384, 4 if i < 6 else 1, ("wq", i)))
        return out

    def wg_chunk(self, i):
        return self.dma_chunk(sWG, i * 16384, ((i + 5) % 10) * 16384, 4 if i < 14 else 2, ("wg", i))

    def reg_loads(self, dsts, sbase, offs, stmp, vaddr, tagbase, sc=""):
        ops, cur = [], None
        for k, (d, off) in enumerate(zip(dsts, offs)):
            g = []
            if cur is None or not (0 <= off - cur < 4096):
                cur = off
                g.append(("i", "s_add_u32 %s, %s, %d" % (stmp, sbase, off)))
            g.append(("vm", "buffer_load_dwordx4 %s, v%d, %s, %s offen offset:%d%s" % (d, vaddr, WS, stmp, off - cur, sc), (tagbase, k)))
            ops.append(g)
        return ops

    def flat(self, groups):
        return [op for g in groups for op in g]

    def ln_from_sums(self, s1, s2, t):
        return [("i", x) for x in (
            "v_mul_f32 v%d, 0x3b000000, v%d" % (s1, s1),
            "v_mul_f32 v%d, v%d, v%d" % (t, s1, s1),
            "v_mul_f32 v%d, 0x3b000000, v%d" % (s2, s2),
            "v_sub_f32 v%d, v%d, v%d" % (s2, s2, t),
            "v_max_f32 v%d, 0, v%d" % (s2, s2),
            "v_cvt_pk_bf16_f32 v%d, v%d, v%d" % (s2, s2, s2),
            "v_lshlrev_b32 v%d, 16, v%d" % (s2, s2),
            "v_add_f32 v%d, 0x3727c5ac, v%d" % (s2, s2),
            "v_cvt_pk_bf16_f32 v%d, v%d, v%d" % (s2, s2, s2),
            "v_lshlrev_b32 v%d, 16, v%d" % (s2, s2),
            "v_sqrt_f32 v%d, v%d" % (s2, s2),
            "v_cvt_pk_bf16_f32 v%d, v%d, v%d" % (s2, s2, s2),
            "v_lshlrev_b32 v%d, 16, v%d" % (s2, s2),
            "v_rcp_f32 v%d, v%d" % (s2, s2))]

    S1 = (26, 27); S2 = (28, 29)
    def pub_tb_ops(self, tb, xi, sc=""):
        p = XRES + 4 * tb
        ops = [("i", "s_add_u32 %s, %s, %d" % (sTS, sXST, LY.XB[xi] + tb * 32768)),
               ("vm", "buffer_store_dwordx4 %s, v%d, %s, %s offen%s" % (vr(p, 4), vE, WS, sTS, sc))]
        for k in range(4):
            c1 = "0" if k == 0 else "v%d" % self.S1[tb]
            c2 = "0" if k == 0 else "v%d" % self.S2[tb]
            ops.append(("i", "v_dot2_f32_bf16 v%d, v%d, %s, %s" % (self.S1[tb], p + k, sONE, c1)))
            ops.append(("i", "v_dot2_f32_bf16 v%d, v%d, v%d, %s" % (self.S2[tb], p + k, p + k, c2)))
        return ops

    def pub_finish(self, xi, h, halo_pass, first=False, post=()):
        a = self.a
        sc = " sc1" if first else ""
        a.I(self.getc(25, aST))
        a.I("s_add_u32 %s, %s, %d" % (sTS, sSST, LY.SB[xi]))
        a.I("v_permlane32_swap_b32 v26, v27\nv_permlane32_swap_b32 v28, v29")
        a.I("v_add_f32 v26, v26, v27\nv_add_f32 v28, v28, v29")
        a.I("v_permlane16_swap_b32 v26, v28\nv_add_f32 v26, v26, v28")
        a.I("v_add_f32_dpp v26, v26, v26 row_ror:8 row_mask:0xf bank_mask:0xf")
        a.vm("buffer_store_dword v26, v25, %s, %s offen%s" % (WS, sTS, sc), "pub")
        a.run_all(post)
        a.vm_wait("pub")
        self.signal(h, first)
        if halo_pass is not None:
            skip = a.label("nohalo")
            a.I("s_cmp_lg_u32 %s, 3\ns_cbranch_scc1 %s\ns_cmp_lg_u32 %s, 1\ns_cbranch_scc1 %s\ns_cmp_eq_u32 %s, 7\ns_cbranch_scc1 %s" %
                (sW, skip, sR, skip, sN, skip))
            a.I(self.getc(24, aHST) + "\n" + self.getc(25, aHSS))
            a.I("s_add_u32 %s, %s, %d" % (sTS, sHDST, LY.HX[halo_pass]))
            a.I("buffer_store_dwordx4 %s, v24, %s, %s offen sc1" % (vr(XRES + 4, 4), WS, sTS))
            a.I("buffer_store_dword v26, v25, %s, %s offen sc1" % (WS, sTS))
            a.I("s_add_u32 %s, %s, %d\ns_waitcnt vmcnt(0)" % (sTS, sHDFL, halo_pass * 2048))
            a.I("buffer_store_dword v30, v31, %s, %s offen sc1" % (WS, sTS))
            a.I("%s:" % skip)

    def p0(self):
        a = self.a
        a.I(self.getc(24, aROW) + "\ns_mov_b32 %s, 65536" % sT0)
        a.vm("buffer_load_dwordx4 %s, v24, %s, 0 offen" % (vr(XRES, 4), XIN), "x0")
        a.vm("buffer_load_dwordx4 %s, v24, %s, %s offen" % (vr(XRES + 4, 4), XIN, sT0), "x1")
        a.vm_wait("x0")
        a.run_all(self.pub_tb_ops(0, 0, " sc1"))
        a.vm_wait("x1")
        a.run_all(self.pub_tb_ops(1, 0, " sc1"))
        post = self.flat([g for ch in self.wq_chunks() for g in ch])
        self.pub_finish(0, 0, 0, first=True, post=post)

    def qkv(self, ps):
        a = self.a
        xi = 2 * ps
        self.poll(sFLG, (4 * ps) * 4096, None if ps == 0 else sMA, first=(ps == 0))
        self.poll(sHFL, ps * 2048, sMH)
        self.stamp()
        HX, HW, HW2, NM, RL, CQ, RR = 16, 17, 18, 20, 26, 28, ACC + 52
        a.run_all(self.flat(self.dma_chunk(sHALO, LY.HX[ps], L_HALO, 2, "halo", " sc1")))
        a.I(self.getc(30, aSQ) + "\n" + self.getc(31, aSH) + "\n" + self.getc(HX, aHX))
        xl = self.reg_loads([vr(X + 8 * s + 4 * b, 4) for s in range(16) for b in range(2)], sXLD,
                            [LY.XB[xi] + s * 2048 + b * 256 for s in range(16) for b in range(2)], sTA, vQ, "x", " sc1")
        a.run_all(self.flat(xl[:4]))
        a.I("s_lshl_b32 %s, %s, 1\ns_add_u32 %s, %s, %s\ns_add_u32 %s, %s, %d" % (sT0, sLW, sT0, sT0, sGB, sT0, sT0, LY.SB[xi]))
        a.I("s_add_u32 %s, %s, %d" % (sT1, sHALO, LY.HX[ps] + 8192))
        a.vm("buffer_load_dwordx4 %s, v30, %s, %s offen sc1" % (vr(RR, 4), WS, sT0))
        a.vm("buffer_load_dwordx4 %s, v30, %s, %s offen offset:1024 sc1" % (vr(RR + 4, 4), WS, sT0))
        a.vm("buffer_load_dwordx4 %s, v31, %s, %s offen sc1" % (vr(RR + 8, 4), WS, sT1), "st")
        a.run_all(self.flat(xl[4:]))
        a.I("s_add_u32 %s, %s, 2048\nv_add_u32 v%d, %s, v%d\nv_add_u32 v%d, 0xc000, v%d" % (sT0, sLW, HW, sT0, vL16, HW2, HW))
        a.vm_wait("halo")
        a.I("s_barrier")
        reads = []
        for s in range(17):
            for f in range(8):
                d = F + 4 * f
                if s < 16:
                    if f < 6: t = "ds_read_b128 %s, %s" % (vr(d, 4), ldsaddr(s * 6144 + f * 1024))
                    elif f == 6: t = "ds_read_b128 %s, v%d offset:%d" % (vr(d, 4), HW if s < 8 else HW2, (s % 8) * 6144)
                    else: t = "ds_read_b128 %s, v%d offset:%d" % (vr(d, 4), HX, s * 512)
                else:
                    if f < 6: t = "ds_read_b64 %s, v30 offset:%d" % (vr(d, 2), f * 512)
                    elif f == 6: t = "ds_read_b64 %s, v31" % vr(d, 2)
                    else: continue
                reads.append(("ds", t, ("f", s, f)))
        sl = Slots()
        last_use = {}
        acc = lambda blk, b: vr(ACC + 8 * blk + 4 * b, 4)
        for s in range(17):
            for f in range(7):
                for b in range(2 if f < 6 else 1):
                    pre = []
                    if b == 0:
                        pre.append(("wds", ("f", s, 7 if (f == 6 and s < 16) else f)))
                    if f == 0 and s < 16:
                        pre.append(("wvm", ("x", 2 * s + b)))
                    n = 4 if s < 16 else 2
                    w = vr(F + 4 * f, n)
                    if f < 6: x = vr(X + 8 * s + 4 * b, 4) if s < 16 else vr(NM + 2 * b, 2)
                    else: x = vr(F + 28, 4) if s < 16 else vr(NM + 4, 2)
                    A, B = (w, x) if f < 4 else (x, w)
                    d = acc(f, b)
                    mn = "v_mfma_f32_16x16x32_bf16" if s < 16 else "v_mfma_f32_16x16x16_bf16"
                    i = sl.add("%s %s, %s, %s, %s" % (mn, d, A, B, "0" if s == 0 else d), pre)
                    last_use[(s, f)] = i
            last_use[(s, 7)] = last_use[(s, 6)]
        for rd in reads:
            _, s, f = rd[2]
            if s == 0: a.run(rd)
            else: sl.after(last_use[(s - 1, f)], rd)
        A0, A1, AH = RR, RR + 4, RR + 8
        st = [[("wvm", "st")]]
        for r_ in (A0, A1, AH):
            st.append([("i", "v_add_f32 v%d, v%d, v%d" % (r_, r_, r_ + 2))])
            st.append([("i", "v_add_f32 v%d, v%d, v%d" % (r_ + 1, r_ + 1, r_ + 3))])
        for o in (0, 1):
            st.append([("i", "v_mov_b32 v%d, v%d" % (AH + 2, AH + o))])
            st.append([("i", "v_permlane32_swap_b32 v%d, v%d" % (A0 + o, A1 + o))])
            st.append([("i", "v_permlane32_swap_b32 v%d, v%d" % (AH + o, AH + 2))])
            st.append([("i", "v_add_f32 v%d, v%d, v%d" % (A0 + o, A0 + o, A1 + o))])
            st.append([("i", "v_add_f32 v%d, v%d, v%d" % (AH + o, AH + o, AH + 2))])
            st.append([("i", "v_permlane16_swap_b32 v%d, v%d" % (A0 + o, AH + o))])
            st.append([("i", "v_add_f32 v%d, v%d, v%d" % (A0 + o, A0 + o, AH + o))])
        st += [[op] for op in self.ln_from_sums(A0, A0 + 1, A0 + 2)]
        st.append([("i", "v_cvt_pk_bf16_f32 v%d, -v%d, -v%d" % (A0, A0, A0))])
        st.append([("i", "v_add_u32 v19, %s, v%d" % (sTAB, vFL))])
        st.append([("i", "v_and_or_b32 v30, v%d, 63, %s" % (vFL, sTAB))])
        st.append([("i", "v_and_or_b32 v31, v0, 48, %s" % sTAB)])
        st.append([("ds", "ds_write2st64_b32 v19, v%d, v%d offset0:0 offset1:1" % (A0 + 1, A0))])
        row = {0: 0, 1: 2, 2: 1}
        for b in range(3):
            o = 64 + row[b] * 16
            st.append([("ds", "ds_read2_b32 %s, v30 offset0:%d offset1:%d" % (vr(NM + 2 * b, 2), o, o))])
        st.append([("ds", "ds_read2_b32 %s, v30 offset0:0 offset1:32" % vr(RL, 2))])
        for b in range(3):
            st.append([("ds", "ds_read_b128 %s, v31 offset:%d" % (vr(RR + 4 * b, 4), row[b] * 64), "tab")])
        st.append([("i", "v_lshlrev_b32 v30, 3, v0")])
        st.append([("i", "v_add_u32 v30, 98304, v30")])
        st.append([("i", "s_lshr_b32 %s, %s, 1" % (sT0, sLW)), ("i", "s_add_u32 %s, %s, 1024" % (sT0, sT0))])
        st.append([("i", "v_add_u32 v31, %s, v30" % sT0)])
        st.append([("wds", "tab"), ("i", "v_mul_f32 v%d, 0x3eb8aa3b, v%d" % (CQ, RL))])
        st.append([("i", "v_mul_f32 v%d, 0x3eb8aa3b, v%d" % (CQ + 1, RL + 1))])
        sl.spread(st, 13 * 4, 13 * 13)
        wo = self.reg_loads([vr(X + 4 * k, 4) for k in range(16)], sWO, [k * 1024 for k in range(16)], sTD, vL16, "wo")
        sl.spread(wo, 13 * 10, 13 * 17 - 1)
        sl.emit(a)
        self.stamp()
        Y = X + 64
        Qp = lambda b, h: Y + 4 * h + 2 * b
        Kp = lambda b, h: Y + 8 + 6 * h + 2 * (b + 1)
        Vp = lambda b, h: Y + 20 + 6 * h + 2 * (b + 1)
        HP, ONES, BC, BP, BP0, MC = Y + 32, Y + 34, Y + 36, Y + 40, Y + 44, Y + 48
        ar_ = lambda blk, b: ACC + 8 * blk + 4 * b
        a.I(self.getc(16, aHWR) + "\n" + self.getc(19, aHWS))
        a.I("s_lshl_b32 %s, %s, 1\ns_add_u32 %s, %s, %d" % (sT0, sLW, sT0, sT0, L_KV))
        a.I("v_add_u32 v17, v16, v19\nv_add_u32 v18, v17, v19\nv_add_u32 v19, v18, v19")
        a.I("v_add_u32 v30, %s, v%d" % (sT0, vL16))
        def scale_pack(dst, src, sc):
            for r in range(4):
                a.I("v_mul_f32 v%d, v%d, v%d" % (src + r, src + r, sc(r)))
            a.I("v_cvt_pk_bf16_f32 v%d, v%d, v%d\nv_cvt_pk_bf16_f32 v%d, v%d, v%d" % (dst, src, src + 1, dst + 1, src + 2, src + 3))
        for h in range(2):
            scale_pack(Kp(1, h), ar_(2 + h, 1), lambda r: RL + 1)
            a.ds("ds_write_b64 v30, %s offset:%d" % (vr(Kp(1, h), 2), 2048 + 8 * h))
        for h in range(2):
            scale_pack(Vp(1, h), ar_(4 + h, 1), lambda r: RR + 4 + r)
            a.ds("ds_write_b64 v30, %s offset:%d" % (vr(Vp(1, h), 2), 3072 + 8 * h))
        scale_pack(HP, ar_(6, 0), lambda r: RR + 8 + r)
        a.ds("ds_write_b16 v16, v%d" % HP)
        a.ds("ds_write_b16_d16_hi v17, v%d" % HP)
        a.ds("ds_write_b16 v18, v%d" % (HP + 1))
        a.ds("ds_write_b16_d16_hi v19, v%d" % (HP + 1))
        for h in range(2):
            scale_pack(Kp(0, h), ar_(2 + h, 0), lambda r: RL)
        for b in range(2):
            for h in range(2):
                s_ = ar_(h, b)
                a.I("v_cvt_pk_bf16_f32 v%d, v%d, v%d\nv_cvt_pk_bf16_f32 v%d, v%d, v%d" % (Qp(b, h), s_, s_ + 1, Qp(b, h) + 1, s_ + 2, s_ + 3))
        for r in range(4):
            a.I(self.getc(BC + r, aBC + r) + "\n" + self.getc(BP + r, aBP + r) + "\n" + self.getc(BP0 + r, aBP0 + r))
        a.ds_drain()
        a.I("s_barrier")
        for h in range(2):
            a.ds("ds_read_b64 %s, v30 offset:%d" % (vr(Kp(-1, h), 2), 8 * h), ("kp", h))
        for h in range(2):
            a.ds("ds_read_b64 %s, v30 offset:%d" % (vr(Vp(-1, h), 2), 1024 + 8 * h), ("vp", h))
        units = [(1, 0), (1, 1), (0, 0), (0, 1)]
        SC = lambda u: F + 8 * u
        SP = lambda u: F + 8 * u + 4
        for u, (b, h) in enumerate(units):
            a.I("v_mfma_f32_16x16x16_bf16 %s, %s, %s, %s" % (vr(SC(u), 4), vr(Kp(b, h), 2), vr(Qp(b, h), 2), vr(BC, 4)))
        for h in range(2):
            scale_pack(Vp(0, h), ar_(4 + h, 0), lambda r: RR + r)
        for u, (b, h) in enumerate(units):
            if b == 0: a.ds_wait(("kp", h))
            a.I("v_mfma_f32_16x16x16_bf16 %s, %s, %s, %s" % (vr(SP(u), 4), vr(Kp(b - 1, h), 2), vr(Qp(b, h), 2), vr(BP if b else BP0, 4)))
        pf = [g for i in self.wg_first(ps) for g in self.wg_chunk(i)]
        body = []
        e = lambda t: body.append(("i", t))
        e(self.getc(MC, aMC)); e(self.getc(MC + 1, aMC + 1))
        e("v_mov_b32 v%d, %s" % (ONES, sONE)); e("v_mov_b32 v%d, %s" % (ONES + 1, sONE))
        M = [ACC + u for u in range(4)]
        for u in range(4):
            for r in range(4):
                e("v_max_f32 v%d, v%d, v%d" % (SC(u) + r, SC(u) + r, SP(u) + r))
            e("v_max3_f32 v%d, v%d, v%d, v%d" % (M[u], SC(u), SC(u) + 1, SC(u) + 2))
            e("v_max_f32 v%d, v%d, v%d" % (M[u], M[u], SC(u) + 3))
        e("v_permlane32_swap_b32 v%d, v%d" % (M[0], M[1])); e("v_permlane32_swap_b32 v%d, v%d" % (M[2], M[3]))
        e("v_max_f32 v%d, v%d, v%d" % (M[0], M[0], M[1])); e("v_max_f32 v%d, v%d, v%d" % (M[2], M[2], M[3]))
        e("v_permlane16_swap_b32 v%d, v%d" % (M[0], M[2])); e("v_max_f32 v%d, v%d, v%d" % (M[0], M[0], M[2]))
        e("v_mov_b32 v%d, v%d" % (M[2], M[0])); e("v_permlane16_swap_b32 v%d, v%d" % (M[0], M[2]))
        e("v_mov_b32 v%d, v%d" % (M[1], M[0])); e("v_mov_b32 v%d, v%d" % (M[3], M[2]))
        e("v_permlane32_swap_b32 v%d, v%d" % (M[0], M[1])); e("v_permlane32_swap_b32 v%d, v%d" % (M[2], M[3]))
        PM = lambda u: ACC + 4 + 2 * u
        PS = lambda u: ACC + 12 + 4 * u
        SUMv = lambda u: SP(u)
        for u, (b, h) in enumerate(units):
            e("v_mul_f32 v%d, v%d, v%d" % (M[u], M[u], CQ + b))
            for r in range(4):
                e("v_fma_f32 v%d, v%d, v%d, -v%d" % (SC(u) + r, SC(u) + r, CQ + b, M[u]))
            for r in range(4):
                e("v_exp_f32 v%d, v%d" % (SC(u) + r, SC(u) + r))
            for k in range(2):
                e("v_cvt_pk_bf16_f32 v%d, v%d, v%d" % (PM(u) + k, SC(u) + 2 * k, SC(u) + 2 * k + 1))
            for k in range(2):
                e("v_bfi_b32 v%d, v%d, 0, v%d" % (PS(u) + k, MC + k, PM(u) + k))
                e("v_and_b32 v%d, v%d, v%d" % (PS(u) + 2 + k, MC + k, PM(u) + k))
            e("v_mfma_f32_16x16x16_bf16 %s, %s, %s, 0" % (vr(SUMv(u), 4), vr(ONES, 2), vr(PM(u), 2)))
            if b == 0: body.append(("wds", ("vp", h)))
            e("v_mfma_f32_16x16x32_bf16 %s, %s, %s, 0" % (vr(SC(u), 4), vr(Vp(b - 1, h), 4), vr(PS(u), 4)))
        OP = lambda b: ACC + 28 + 4 * b
        e("s_add_u32 %s, %s, %d" % (sTS, sOST, LY.OB[ps]))
        for u, (b, h) in enumerate(units):
            e("v_rcp_f32 v%d, v%d" % (SUMv(u), SUMv(u)))
            for r in range(4):
                e("v_mul_f32 v%d, v%d, v%d" % (SC(u) + r, SC(u) + r, SUMv(u)))
            for k in range(2):
                e("v_cvt_pk_bf16_f32 v%d, v%d, v%d" % (OP(b) + 2 * h + k, SC(u) + 2 * k, SC(u) + 2 * k + 1))
            if h == 1:
                body.append(("vm", "buffer_store_dwordx4 %s, v%d, %s, %s offen offset:%d" % (vr(OP(b), 4), vQ, WS, sTS, b * 256), "o"))
        a.run_all(body)
        a.run_all(self.flat(pf))
        a.vm_wait("o")
        self.signal(4 * ps + 1)
        self.stamp()

    def wg_first(self, ps): return (0, 1, 3)
    def wg_mid(self, ps): return (4, 5, 6)
    def wg_late(self, ps): return (2, 7)

    def ksplit(self, kind, ps):
        a = self.a
        dn = kind == "dn"
        nk = 28 if dn else 8
        final = dn and ps == 1
        xo = 2 * ps + (2 if dn else 1)
        self.poll(sFLG, (4 * ps + (3 if dn else 1)) * 4096, sMB)
        self.stamp()
        ring = 32 if dn else 16
        abase = X if dn else X + 64
        tbs = 114688 if dn else 32768
        sb, boff = (sHLD, LY.HB[ps]) if dn else (sOLD, LY.OB[ps])
        order = [(tb, s) for tb in range(2) for s in range(nk)]
        areg = lambda k: vr(abase + 4 * (k % ring), 4)
        ld = self.reg_loads([areg(k) for k in range(2 * nk)], sb, [boff + tb * tbs + s * 1024 for tb, s in order], sTA, vL16, "act", " sc1")
        a.run_all(self.flat(ld[:ring]))
        R0, R1, XW, XR, U = 24, 25, 30, 31, 16
        scr = L_SCR_DN if dn else L_SCR_WO
        if dn:
            a.I(self.getc(XW, aSD))
            a.I("s_lshl_b32 %s, %s, 12\ns_add_u32 %s, %s, %s\ns_add_u32 %s, %s, %d" % (sT0, sR, sT0, sT0, sGB, sT0, sT0, LY.SB[xo - 1]))
            a.vm("buffer_load_dwordx2 %s, v%d, %s, %s offen sc1" % (vr(U, 2), XW, WS, sT0))
            a.vm("buffer_load_dwordx2 %s, v%d, %s, %s offen offset:2048 sc1" % (vr(U + 2, 2), XW, WS, sT0), "st")
        a.I(self.getc(XW, aXW) + "\n" + self.getc(XR, aXR))
        a.I("v_add_u32 v%d, %d, v%d\nv_add_u32 v%d, %d, v%d" % (XW, scr, XW, XR, scr, XR))
        sl = Slots()
        accr = lambda tb, cb: ACC + 32 * tb + 16 * cb
        for k, (tb, s) in enumerate(order):
            for cb in range(2):
                w = ar(8 * s + 4 * cb, 4) if dn else vr(X + 8 * s + 4 * cb, 4)
                d = vr(accr(tb, cb), 16)
                i = sl.add("v_mfma_f32_32x32x16_bf16 %s, %s, %s, %s" % (d, w, areg(k), "0" if s == 0 else d),
                           [("wvm", ("act", k))] if cb == 0 else [])
            if k + ring < 2 * nk:
                sl.after(i, *ld[k + ring])
        def writes(tb):
            return [[("ds", "ds_write_b128 v%d, %s offset:%d" % (XW, vr(accr(tb, cb) + 4 * jq, 4), cb * 4096 + jq * 1024))]
                    for cb in range(2) for jq in range(4)]
        def reads(tb):
            return [[("ds", "ds_read_b128 %s, v%d offset:%d" % (vr(F + 8 * src + 4 * cb, 4), XR, src * 8192 + cb * 4096), ("r", src))]
                    for src in range(4) for cb in range(2)]
        def unpack(tb):
            g = []
            for k in range(4):
                g.append([("i", "v_lshlrev_b32 v%d, 16, v%d" % (U + 2 * k, XRES + 4 * tb + k))])
                g.append([("i", "v_and_b32 v%d, 0xffff0000, v%d" % (U + 2 * k + 1, XRES + 4 * tb + k))])
            return g
        def finalize(tb):
            g = [[("wds", ("r", 1))]]
            g += [[("i", "v_add_f32 v%d, v%d, v%d" % (F + e_, F + e_, F + 8 + e_))] for e_ in range(8)]
            g.append([("wds", ("r", 3))])
            g += [[("i", "v_add_f32 v%d, v%d, v%d" % (F + 16 + e_, F + 16 + e_, F + 24 + e_))] for e_ in range(8)]
            g += [[("i", "v_add_f32 v%d, v%d, v%d" % (F + e_, F + e_, F + 16 + e_))] for e_ in range(8)]
            for e_ in range(8):
                if dn: g.append([("i", "v_fma_f32 v%d, v%d, v%d, v%d" % (F + e_, F + e_, R0 + tb, U + e_))])
                else: g.append([("i", "v_add_f32 v%d, v%d, v%d" % (F + e_, F + e_, U + e_))])
            g += [[("i", "v_cvt_pk_bf16_f32 v%d, v%d, v%d" % (XRES + 4 * tb + k, F + 2 * k, F + 2 * k + 1))] for k in range(4)]
            if final:
                g.append([("i", self.getc(U, aROW)), ("i", "s_mov_b32 %s, %d" % (sTS, tb * 65536)),
                          ("vm", "buffer_store_dwordx4 %s, v%d, %s, %s offen" % (vr(XRES + 4 * tb, 4), U, OUT, sTS))])
            else:
                g += [[op] for op in self.pub_tb_ops(tb, xo)]
            return g
        bar = [[("dsdrain",), ("i", "s_barrier")]]
        half = 2 * nk
        if dn:
            st = [[("wvm", "st")],
                  [("i", "v_permlane32_swap_b32 v%d, v%d" % (U, U + 2))], [("i", "v_permlane32_swap_b32 v%d, v%d" % (U + 1, U + 3))],
                  [("i", "v_add_f32 v%d, v%d, v%d" % (U, U, U + 2))], [("i", "v_add_f32 v%d, v%d, v%d" % (U + 1, U + 1, U + 3))],
                  [("i", "v_permlane16_swap_b32 v%d, v%d" % (U, U + 1))], [("i", "v_add_f32 v%d, v%d, v%d" % (U, U, U + 1))],
                  [("i", "v_add_f32_dpp v%d, v%d, v%d row_ror:8 row_mask:0xf bank_mask:0xf" % (U, U, U))],
                  [("i", "v_mov_b32 v%d, v%d" % (U + 1, U))], [("i", "v_permlane16_swap_b32 v%d, v%d" % (U, U + 1))]]
            st += [[op] for op in self.ln_from_sums(U, U + 1, U + 2)]
            st += [[("i", "v_mul_f32 v%d, v%d, v%d" % (R0, U + 1, U + 1))], [("i", "v_mul_f32 v%d, v%d, v%d" % (R1, U + 1, U + 1))],
                   [("i", "v_permlane32_swap_b32 v%d, v%d" % (R0, R1))]]
            seq = writes(0)
            sl.spread(seq, half + 2, half + 10)
            seq = st + unpack(0) + bar + reads(0) + finalize(0) + unpack(1) + bar
            sl.spread(seq, half + 12, 2 * half - 2)
            sl.emit(a)
            a.run_all(self.flat(writes(1) + bar + reads(1) + finalize(1)))
        else:
            pf = [g for i in self.wg_mid(ps) for g in self.wg_chunk(i)]
            sl.spread(pf, 2, half - 1)
            sl.spread(unpack(0), 0, half - 1)
            sl.spread(writes(0), half + 2, 2 * half - 3)
            sl.emit(a)
            a.run_all(self.flat(bar + reads(0) + bar + writes(1) + finalize(0) + unpack(1) + bar + reads(1) + finalize(1)))
        self.stamp()
        if final:
            return
        if dn:
            post = self.flat([g for ch in self.wq_chunks() for g in ch])
            self.pub_finish(xo, 4, 1, post=post)
        else:
            post = self.flat([g for i in self.wg_late(ps) for g in self.wg_chunk(i)])
            self.pub_finish(xo, 4 * ps + 2, None, post=post)
        self.stamp()

    def gu(self, ps):
        a = self.a
        xi = 2 * ps + 1
        self.poll(sFLG, (4 * ps + 2) * 4096, sMA)
        self.stamp()
        SS, NM, HPK, HT, NR = 16, 24, 28, F + 24, 6
        xl = self.reg_loads([vr(X + 4 * s, 4) for s in range(32)], sXLD, [LY.XB[xi] + s * 1024 for s in range(32)], sTA, vL16, "x", " sc1")
        a.run_all(self.flat(xl))
        a.I(self.getc(NM, aSG))
        a.I("s_lshl_b32 %s, %s, 1\ns_add_u32 %s, %s, %s\ns_add_u32 %s, %s, %d" % (sT0, sLW, sT0, sT0, sGB, sT0, sT0, LY.SB[xi]))
        a.vm("buffer_load_dwordx4 %s, v%d, %s, %s offen sc1" % (vr(SS, 4), NM, WS, sT0))
        a.vm("buffer_load_dwordx4 %s, v%d, %s, %s offen offset:16 sc1" % (vr(SS + 4, 4), NM, WS, sT0), "st")
        a.I("s_barrier")
        order = [(bl, s) for s in range(33) for bl in range(3)] + [(bl, s) for bl in range(3, 7) for s in range(33)]
        accb = {0: 0, 1: 1, 2: 2, 3: 3, 4: 0, 5: 1, 6: 2}
        sl = Slots()
        end = {}
        for k, (bl, s) in enumerate(order):
            d = vr(ACC + 16 * accb[bl], 16)
            pre = [("wds", ("f", k))]
            if bl == 0 and s < 32: pre.append(("wvm", ("x", s)))
            x = vr(X + 4 * s, 4) if s < 32 else vr(NM, 4)
            sl.add("v_mfma_f32_32x32x16_bf16 %s, %s, %s, %s" % (d, vr(F + 4 * (k % NR), 4), x, "0" if s == 0 else d), pre)
            end[bl] = k
        LA = NR - 1
        def rd(k):
            off = ((k // 16 + 5) % 10) * 16384 + (k % 16) * 1024
            return ("ds", "ds_read_b128 %s, %s" % (vr(F + 4 * (k % NR), 4), ldsaddr(off)), ("f", k))
        for k in range(LA):
            a.run(rd(k))
        for k in range(LA, len(order)):
            if k % 16 == 0 and k // 16 >= 1:
                ch = k // 16
                ops = [("wvm", ("wg", ch))] if ch >= 8 else []
                if ch >= 8 or 2 <= ch <= 6:
                    sl.after(k - LA, *(ops + [("i", "s_barrier")]))
            sl.after(k - LA, rd(k))
        sl.spread(self.wg_chunk(8) + self.wg_chunk(9), 4, 26)
        for ch in range(10, 15):
            first = (ch - 8) * 16 - LA + 1
            sl.spread(self.wg_chunk(ch), first, first + 12)
        st = [[("wvm", "st")]]
        st += [[("i", "v_add_f32 v%d, v%d, v%d" % (SS, SS, SS + 2))], [("i", "v_add_f32 v%d, v%d, v%d" % (SS + 4, SS + 4, SS + 6))],
               [("i", "v_add_f32 v%d, v%d, v%d" % (SS, SS, SS + 4))], [("i", "v_mov_b32 v%d, v%d" % (SS + 1, SS))],
               [("i", "v_permlane32_swap_b32 v%d, v%d" % (SS, SS + 1))], [("i", "v_add_f32 v%d, v%d, v%d" % (SS, SS, SS + 1))],
               [("i", "v_mul_f32 v%d, 0xbb000000, v%d" % (SS, SS))]]
        st += [[("i", "v_cvt_pk_bf16_f32 v%d, v%d, v%d" % (NM + k, SS, SS))] for k in range(4)]
        pos = 3 * 31
        sl.spread(st, pos, pos + 2)
        def epi(bl):
            b = ACC + 16 * accb[bl]
            g = []
            for e_ in range(8):
                ga = b + (e_ // 4) * 8 + e_ % 4
                g.append([("i", "v_max_f32 v%d, 0, v%d" % (HT + e_, ga))])
                g.append([("i", "v_mul_f32 v%d, v%d, v%d" % (HT + e_, HT + e_, ga + 4))])
            g += [[("i", "v_cvt_pk_bf16_f32 v%d, v%d, v%d" % (HPK + k, HT + 2 * k, HT + 2 * k + 1))] for k in range(4)]
            g.append([("i", "s_add_u32 %s, %s, %d" % (sTS, sHST, LY.HB[ps] + bl * 1024)),
                      ("vm", "buffer_store_dwordx4 %s, v%d, %s, %s offen" % (vr(HPK, 4), vL16, WS, sTS), "h")])
            return g
        sl.spread(epi(0) + epi(1), end[2] + 3, end[3] - 1)
        sl.spread(epi(2) + epi(3), end[3] + 3, end[4] - 1)
        sl.spread(epi(4), end[4] + 3, end[5] - 8)
        sl.spread(epi(5), end[5] + 3, end[6] - 8)
        if ps == 0:
            wd = self.reg_loads([ar(4 * k, 4) for k in range(56)], sWD, [k * 1024 for k in range(56)], sTD, vL16, "wd")
            sl.spread(wd, 100, end[6] - 16)
        sl.emit(a)
        a.run_all(self.flat(epi(6)))
        self.stamp()
        a.vm_drain()
        self.signal(4 * ps + 3)
        a.I("s_barrier")
        self.stamp()

    def build(self):
        a = self.a
        self.prologue()
        self.stamp()
        steps = [lambda: self.p0()]
        for ps in range(2):
            steps += [lambda ps=ps: self.qkv(ps), lambda ps=ps: self.ksplit("wo", ps), lambda ps=ps: self.gu(ps), lambda ps=ps: self.ksplit("dn", ps)]
        for i, st in enumerate(steps):
            if i <= OPT["stop"]:
                st()
        if OPT["stamps"]:
            self.stamp()
            a.I("s_lshl_b32 %s, s2, 10\ns_lshl_b32 %s, %s, 8\ns_add_u32 %s, %s, %s\ns_add_u32 %s, %s, %d" % (sT0, sT1, sW, sT0, sT0, sT1, sT0, sT0, LY.STAMP))
            a.I("buffer_store_dword v%d, v%d, %s, %s offen" % (vSTAMP, vFL, WS, sT0))
        a.I("L_main_done:\ns_endpgm")
        return a.lines

def kd(name, vgpr, accum, sgpr):
    return """.amdhsa_kernel %s
  .amdhsa_next_free_vgpr %d
  .amdhsa_next_free_sgpr %d
  .amdhsa_accum_offset %d
  .amdhsa_group_segment_fixed_size 0
  .amdhsa_kernarg_size 80
  .amdhsa_user_sgpr_count 2
  .amdhsa_user_sgpr_kernarg_segment_ptr 1
  .amdhsa_system_sgpr_workgroup_id_x 1
  .amdhsa_float_denorm_mode_32 3
.end_amdhsa_kernel""" % (name, vgpr, sgpr, accum)

def main():
    f = Asm(); gen_format(f)
    fl, n1 = hazard_pass(f.lines)
    ml, n2 = hazard_pass(Main().build())
    out = ["; Generated by gen/gen.py: weight re-layout kernel followed by one persistent kernel for all four layers.",
           "; @launch kernel=fmt_kernel grid=(256,1,1) block=(256,1,1) lds=32768",
           "; @launch kernel=main_kernel grid=(256,1,1) block=(256,1,1) lds=163840",
           '.amdgcn_target "amdgcn-amd-amdhsa--gfx950"', ".text"]
    for name, lines in (("fmt_kernel", fl), ("main_kernel", ml)):
        out += [".globl %s" % name, ".p2align 8", ".type %s,@function" % name]
        out += [l if l.endswith(":") else "    " + l for l in lines]
    out += ['.section .rodata,"a"', ".p2align 6", kd("fmt_kernel", 128, 128, 64), ".p2align 6", kd("main_kernel", 512, 256, 80)]
    open(sys.argv[1], "w").write("\n".join(out) + "\n")
    print("instructions: fmt %d main %d ; wait states added: %d %d" % (len(fl), len(ml), n1, n2))

main()
```

```python
import re

TRANS = ("v_exp_f32", "v_log_f32", "v_rcp_f32", "v_rsq_f32", "v_sqrt_f32", "v_sin_f32", "v_cos_f32")

def regs_of(tok):
    tok = tok.strip()
    neg = tok.lstrip("-")
    if neg.startswith("abs(") and neg.endswith(")"):
        neg = neg[4:-1]
    if neg.startswith("|") and neg.endswith("|"):
        neg = neg[1:-1]
    m = re.fullmatch(r"([vas])(\d+)", neg)
    if m:
        return [(m.group(1), int(m.group(2)))]
    m = re.fullmatch(r"([vas])\[(\d+):(\d+)\]", neg)
    if m:
        return [(m.group(1), i) for i in range(int(m.group(2)), int(m.group(3)) + 1)]
    if neg == "vcc":
        return [("s", 106), ("s", 107)]
    if neg == "vcc_lo":
        return [("s", 106)]
    if neg == "vcc_hi":
        return [("s", 107)]
    if neg == "exec":
        return [("s", 126), ("s", 127)]
    if neg == "m0":
        return [("s", 124)]
    return []

class Ins:
    __slots__ = ("text", "mn", "cls", "dst", "src", "srcc", "passes", "extra")
    def __init__(self, text):
        self.text = text
        t = text.split(";")[0].strip()
        self.dst, self.src, self.srcc, self.passes, self.extra = [], [], [], 0, ""
        if not t or t.endswith(":") or t.startswith("."):
            self.mn, self.cls = t, "pseudo"
            return
        t = re.sub(r"\s+(op_sel|op_sel_hi|neg_lo|neg_hi):\[[^\]]*\]", "", t)
        t = re.sub(r"hwreg\([^)]*\)", "hwreg", t)
        parts = t.split(None, 1)
        mn = parts[0]
        self.mn = mn
        ops = []
        if len(parts) > 1:
            raw = [o.strip() for o in parts[1].split(",")]
            last = raw[-1].split()
            raw[-1] = last[0] if last else ""
            self.extra = " ".join(last[1:])
            ops = raw
        R = [regs_of(o) for o in ops]
        flat = lambda xs: [r for x in xs for r in x]
        if mn.startswith("v_mfma"):
            self.cls = "mfma"
            self.dst, self.src, self.srcc = R[0], R[1] + R[2], R[3]
            self.passes = 8 if "32x32" in mn else 4
        elif mn.startswith("v_"):
            self.cls = "valu"
            if mn.startswith("v_cmp"):
                self.dst, self.src = R[0], flat(R[1:])
            elif mn.startswith(("v_add_co", "v_sub_co", "v_addc_co", "v_subb_co")):
                self.dst, self.src = R[0] + R[1], flat(R[2:])
            elif mn.startswith("v_permlane") and "swap" in mn:
                self.dst, self.src = R[0] + R[1], R[0] + R[1]
            elif mn.startswith(("v_fmac", "v_dot2c", "v_writelane")):
                self.dst, self.src = R[0], flat(R)
            elif mn == "v_nop":
                pass
            else:
                self.dst, self.src = R[0], flat(R[1:])
                if "dpp" in mn:
                    self.src = self.src + R[0]
        elif mn.startswith("ds_"):
            self.cls = "ds"
            if mn.startswith(("ds_read", "ds_bpermute", "ds_permute", "ds_swizzle")):
                self.dst, self.src = R[0], flat(R[1:])
            else:
                self.src = flat(R)
        elif mn.startswith(("buffer_", "global_")):
            self.cls = "vmem"
            if mn in ("buffer_wbl2", "buffer_inv"):
                pass
            elif "lds" in self.extra.split() or "_lds_" in mn:
                self.src = flat(R) + [("s", 124)]
            elif "load" in mn:
                self.dst, self.src = R[0], flat(R[1:])
            else:
                self.src = flat(R)
        elif mn.startswith(("s_load", "s_memtime", "s_memrealtime")):
            self.cls = "smem"
            self.dst, self.src = R[0], flat(R[1:])
        elif mn.startswith("s_"):
            self.cls = "salu"
            if mn.startswith(("s_cmp", "s_cbranch", "s_branch", "s_waitcnt", "s_nop", "s_barrier", "s_endpgm",
                              "s_sleep", "s_setprio", "s_bitcmp")):
                self.src = flat(R)
            else:
                self.dst, self.src = (R[0] if R else []), flat(R[1:])
                if "saveexec" in mn:
                    self.dst = self.dst + regs_of("exec")
        else:
            raise ValueError("unknown instruction: " + text)

    def states(self):
        if self.cls == "pseudo":
            return 0
        if self.mn == "s_nop":
            return int(self.text.split()[1], 0) + 1
        return 1

def required(p, c):
    need = 0
    pd = set(p.dst)
    cs, cc, cd = set(c.src), set(c.srcc), set(c.dst)
    vec = lambda s: {r for r in s if r[0] in "va"}
    sc = lambda s: {r for r in s if r[0] == "s"}
    if p.cls == "valu":
        isdot = p.mn.startswith("v_dot")
        if c.cls == "mfma" and vec(pd) & (cs | cc):
            need = max(need, 3 if isdot else 2)
        if isdot and vec(pd) & (cs | cd):
            same = c.mn == p.mn
            if not same:
                need = max(need, 3)
            else:
                ops = [o.strip() for o in c.text.split(None, 1)[1].split(",")]
                ab = set(regs_of(ops[1]) + regs_of(ops[2].split()[0]))
                if pd & ab:
                    need = max(need, 3)
        if c.cls == "valu":
            if c.mn.startswith("v_permlane") and vec(pd) & cs:
                need = max(need, 2)
            if "dpp" in c.mn and vec(pd) & cs:
                need = max(need, 2)
            if c.mn.startswith(("v_readlane", "v_readfirstlane")) and vec(pd) & cs:
                need = max(need, 1)
            if p.mn.startswith(TRANS) and vec(pd) & cs:
                need = max(need, 1)
            if "sdwa" in p.mn and vec(pd) & (cs | cd):
                need = max(need, 1)
            if sc(pd) & cs:
                need = max(need, 4 if c.mn.startswith(("v_readlane", "v_writelane")) else 2)
        if c.cls == "vmem" and sc(pd) & cs:
            need = max(need, 5)
        if c.cls in ("salu", "smem") and sc(pd) & cs:
            need = max(need, 1)
    elif p.cls == "mfma":
        big = {4: 8, 8: 12}[p.passes]
        if c.cls == "mfma":
            if pd & cs:
                need = max(need, big)
            if pd & cc:
                if not (p.dst == c.srcc and p.passes == c.passes):
                    need = max(need, {4: 6, 8: 10}[p.passes])
            elif pd & cd:
                need = max(need, {4: 6, 8: 10}[p.passes])
        elif c.cls in ("valu", "ds", "vmem"):
            if pd & (cs | cd):
                need = max(need, big)
            if set(p.srcc) & cd:
                need = max(need, {4: 3, 8: 7}[p.passes])
    elif p.cls == "vmem":
        if not p.dst and ("x4" in p.mn or "x3" in p.mn) and "store" in p.mn:
            data = set(regs_of(p.text.split(None, 1)[1].split(",")[0 if p.mn.startswith("buffer") else 1]))
            if data & cd:
                need = max(need, 2)
    elif p.cls == "ds":
        if p.mn.startswith("ds_write_b128") and c.cls == "valu" and vec(set(p.src)) & cd:
            need = max(need, 1)
    elif p.cls == "salu":
        if ("s", 124) in pd and c.cls == "vmem" and ("s", 124) in cs:
            need = max(need, 1)
    return need

def hazard_pass(lines):
    out = []
    added = 0
    for text in lines:
        c = Ins(text)
        if c.cls != "pseudo":
            dist, worst = 0, 0
            for p in reversed(out):
                if dist >= 12:
                    break
                if p.cls != "pseudo":
                    worst = max(worst, required(p, c) - dist)
                    dist += p.states()
            if worst > 0:
                out.append(Ins("s_nop %d" % (worst - 1)))
                added += worst
        out.append(c)
    return [i.text for i in out], added

class Asm:
    def __init__(self):
        self.lines = []
        self.vm_n = 0; self.vm_done = 0; self.vm_tag = {}
        self.ds_n = 0; self.ds_done = 0; self.ds_tag = {}
        self.uid = 0
        self.state = {}
    def I(self, text):
        for t in text.split("\n"):
            t = t.strip()
            if t:
                self.lines.append(t)
    def label(self, base):
        self.uid += 1
        return "L_%s_%d" % (base, self.uid)
    def vm(self, text, tag=None):
        if self.vm_n - self.vm_done >= 62:
            self.vm_wait_n(self.vm_done + 1)
        self.I(text)
        self.vm_n += 1
        if tag is not None:
            assert tag not in self.vm_tag, tag
            self.vm_tag[tag] = self.vm_n
        return self.vm_n
    def forget(self, keep=()):
        self.vm_tag = {t: n for t, n in self.vm_tag.items() if (t[0] if isinstance(t, tuple) else t) in keep}
        self.ds_tag = {}
    def setreg(self, key, text):
        if self.state.get(key) != text:
            self.I(text)
            self.state[key] = text
    def vm_wait_n(self, seq):
        if seq > self.vm_done:
            self.I("s_waitcnt vmcnt(%d)" % (self.vm_n - seq))
            self.vm_done = seq
    def vm_wait(self, tag):
        self.vm_wait_n(self.vm_tag[tag])
    def vm_drain(self, force=False):
        if force or self.vm_n > self.vm_done:
            self.I("s_waitcnt vmcnt(0)")
        self.vm_done = self.vm_n
    def ds(self, text, tag=None):
        if self.ds_n - self.ds_done >= 15:
            self.ds_wait_n(self.ds_done + 1)
        self.I(text)
        self.ds_n += 1
        if tag is not None:
            self.ds_tag[tag] = self.ds_n
        return self.ds_n
    def ds_wait_n(self, seq):
        if seq > self.ds_done:
            self.I("s_waitcnt lgkmcnt(%d)" % (self.ds_n - seq))
            self.ds_done = seq
    def ds_wait(self, tag):
        self.ds_wait_n(self.ds_tag[tag])
    def ds_drain(self, force=False):
        if force or self.ds_n > self.ds_done:
            self.I("s_waitcnt lgkmcnt(0)")
        self.ds_done = self.ds_n
    def run(self, op):
        k = op[0]
        if k in ("i", "atom"): self.I(op[1])
        elif k == "vm": self.vm(op[1], op[2] if len(op) > 2 else None)
        elif k == "ds": self.ds(op[1], op[2] if len(op) > 2 else None)
        elif k == "wvm": self.vm_wait(op[1])
        elif k == "wds": self.ds_wait(op[1])
        elif k == "dsdrain": self.ds_drain()
        elif k == "vmdrain": self.vm_drain()
        elif k == "set": self.setreg(op[1], op[2])
        elif k == "call": op[1]()
        else: raise ValueError(op)
    def run_all(self, ops):
        for op in ops:
            self.run(op)

def split_ops(ops):
    out = []
    for op in ops:
        if op[0] == "i":
            out += [("i", t.strip()) for t in op[1].split("\n") if t.strip()]
        else:
            out.append(op)
    return out

def op_cost(a, op):
    k = op[0]
    if k == "set":
        return [] if a.state.get(op[1]) == op[2] else [(False, 4)] * len(op[2].split("\n"))
    if k == "wvm":
        return [] if a.vm_tag[op[1]] <= a.vm_done else [(False, 4)]
    if k == "wds":
        return [] if a.ds_tag[op[1]] <= a.ds_done else [(False, 4)]
    if k in ("dsdrain", "vmdrain"):
        return [(False, 4)]
    if k in ("mark", "need"):
        return []
    res = []
    for t in op[1].split("\n"):
        c = Ins(t)
        if c.cls == "pseudo": continue
        if c.mn == "s_barrier": res.append((False, 20))
        elif c.cls in ("salu", "smem"): res.append((False, 4))
        elif c.cls == "vmem" and "store_dwordx4" in c.mn: res.append((True, 20))
        elif c.cls == "vmem" or c.mn.startswith(TRANS) or c.mn.startswith(("ds_write_b128", "v_permlane")): res.append((True, 8))
        else: res.append((True, 4))
    return res

def needs_nop(a, op):
    if op[0] not in ("i", "ds", "vm", "atom"):
        return False
    c = Ins(op[1].split("\n")[0])
    if c.cls == "pseudo":
        return False
    dist = 0
    for t in reversed(a.lines[-14:]):
        p = Ins(t)
        if p.cls == "pseudo": continue
        if required(p, c) > dist: return True
        dist += p.states()
    return False

class Slots:
    def __init__(self):
        self.pre, self.mf, self.post = [], [], []
        self.streams = {}
        self.patience = 10
    def add(self, mfma, pre=()):
        self.pre.append(list(pre)); self.mf.append(mfma); self.post.append([])
        return len(self.mf) - 1
    def n(self):
        return len(self.mf)
    def after(self, i, *ops):
        self.post[min(max(i, 0), len(self.mf) - 1)].extend(ops)
    def put(self, name, i, ops):
        self.streams.setdefault(name, []).extend((i, op) for op in split_ops(ops))
    def spread(self, groups, first, last, name="v"):
        n = len(groups)
        for k, g in enumerate(groups):
            self.put(name, first + (k * (last - first + 1)) // max(n, 1), g)
    def pace(self, groups, first, every, last=None, name="m"):
        last = len(self.mf) - 1 if last is None else last
        pos = float(first)
        for k, g in enumerate(groups):
            step = every
            if isinstance(g, tuple):
                pos = max(pos, g[0])
                if len(g) > 2: step = g[2]
                g = g[1]
            if pos > last:
                return [x[1] if isinstance(x, tuple) else x for x in groups[k:]]
            for op in g:
                self.put(name, int(pos) - (1 if op[0] == "set" else 0), [op])
            if any(op[0] == "vm" for op in g):
                pos += step
        return []
    def emit(self, a):
        marks = set()
        over = 0
        def run(op):
            if op[0] == "mark": marks.add(op[1])
            elif op[0] == "need": assert op[1] in marks, op
            elif op[0] == "atom": a.I(op[1])
            else: a.run(op)
        def waits(ops):
            n0 = len(a.lines)
            for op in ops: run(op)
            new = a.lines[n0:]
            if len(new) >= 2 and all(t.startswith("s_waitcnt") for t in new):
                last = {t.split()[1][:2]: t.split()[1] for t in new}
                a.lines[n0:] = ["s_waitcnt " + " ".join(sorted(last.values(), reverse=True))]
            return len(a.lines) - n0
        def advance(t, cost):
            for vec, c in cost:
                t = (max(t, 8) if vec else t) + c
            return t
        names = sorted(self.streams)
        head = {n: 0 for n in names}
        last = {n: -1 for n in names}
        waits(self.pre[0])
        for i in range(len(self.mf)):
            a.I(self.mf[i])
            G = 32 if "32x32" in self.mf[i] else 16
            nxt = self.pre[i + 1] if i + 1 < len(self.mf) else []
            fixed = split_ops(self.post[i])
            issued = {op[2] for op in fixed if op[0] in ("ds", "vm") and len(op) > 2}
            ready = lambda op: op[0] == "wds" and op[1] in a.ds_tag or op[0] == "wvm" and op[1] in a.vm_tag
            early = [op for op in nxt if ready(op)]
            late = [op for op in nxt if not ready(op)]
            t = 4 + 4 * waits(early)
            def fill(t, limit, scalar_only):
                progress = True
                while progress:
                    progress = False
                    for n in sorted(names, key=lambda n: last[n]):
                        q = self.streams[n]
                        while head[n] < len(q) and q[head[n]][0] <= i:
                            op = q[head[n]][1]
                            cost = op_cost(a, op)
                            if scalar_only and any(v for v, _ in cost): break
                            t2 = advance(t, cost)
                            big = not scalar_only and (advance(4, cost) > G and t <= 8 or n != "m" and i - q[head[n]][0] >= self.patience and t <= limit)
                            if (t2 > limit and not big) or needs_nop(a, op): break
                            run(op); t = t2; head[n] += 1; progress = True
                            if any(v for v, _ in cost): last[n] = i
                return t
            t = fill(t, 8, True)
            for op in fixed:
                t = advance(t, op_cost(a, op)); run(op)
            t = fill(t, G - (4 if late else 0), False)
            t += 4 * waits(late)
            over += max(0, t - G)
        left = [op for n in names for _, op in self.streams[n][head[n]:]]
        for op in left: run(op)
        return over, len(left)
```

```python
import os
SEP = int(os.environ.get("SEP", "0"))
GS0 = int(os.environ.get("GS0", "10"))
EPOCH = 0
FL = 0x1000
HFL = 0xA000
XF = 0x24000
FA = 0x14000
FB = 0x1C000
STAMP = 0x40000
WQ = 0x100000; WQ_STRIDE = 102400
WO = WQ + 16 * WQ_STRIDE; WO_STRIDE = 65536
WG = WO + 8 * WO_STRIDE; WG_STRIDE = 232 * 1024
WD = WG + 16 * WG_STRIDE; WD_STRIDE = 229376
WEND = WD + 8 * WD_STRIDE
ACT = 0xA00000; ACT_SHIFT = 21 if SEP else 20; ACT_STRIDE = 1 << ACT_SHIFT
assert WEND <= ACT
if SEP:
    XB = [i * 131072 for i in range(4)]
    OB = [(4 + i) * 131072 for i in range(2)]
    HB = [6 * 131072 + i * 458752 for i in range(2)]
    SB = [HB[1] + 458752 + i * 8192 for i in range(4)]
else:
    XB = [0] * 4; OB = [131072, 262144]; HB = [262144] * 2; SB = [262144 + 458752] * 4
HX = [SB[3] + 8192 + i * 16384 for i in range(2)]
assert HX[1] + 16384 <= ACT_STRIDE
WS_USED = ACT + 16 * ACT_STRIDE
```

```python
import sys
from dsl import Asm, Slots, hazard_pass
import layout as LY

NAME = "interleave_layers__sliding_local_dilated__glu_gated_reglu__prompt"
OPT = dict(stamps=0, lite="-", hitw=0,
           q_up=8, q_every=45, q_hf=6, q_chk=6, q_h0=9, a_every=14, k_up=10, g_up=8, g_tail=12,
           g_every0=22, g_xlead0=200, g_wmin0=260, g_wmax0=500, g_slack0=20, g_wcost0=44, g_dcost0=22,
           g_every1=22, g_xlead1=200, g_wmin1=260, g_wmax1=500, g_slack1=20, g_wcost1=44, g_dcost1=22,
           wq_late1="-", dn_pre=6, q0_up=4, q0_lead=10, q0_every=25,
           wg_q0="-", wg_att0="0", wg_h10="-", wg_wo0="1", wg_h20="2",
           wg_q1="34", wg_att1="0", wg_h11="-", wg_wo1="1", wg_h21="-",
           touch=1)
for arg in sys.argv[2:]:
    k, v = arg.split("=")
    OPT[k] = v if isinstance(OPT[k], str) else int(v)

def vr(b, n): return "v[%d:%d]" % (b, b + n - 1)
def ar(b, n): return "a[%d:%d]" % (b, b + n - 1)
def magic(d): return (1 << 32) // d + 1
OOB = 0x40000000

WS, XIN, OUT = "s[8:11]", "s[12:15]", "s[16:19]"
sW, sJ, sR, sC, sG, sN, sNONCE, sSLOW = ("s%d" % i for i in range(20, 28))
sGB, sXLD, sXST, sOST, sXR, sHST, sSLD, sWQ, sWG, sWO, sWD, sLW = ("s%d" % i for i in range(28, 40))
sMA, sMB = "s[40:41]", "s[42:43]"
sFLG, sFLW, sHALO, sHFL, sTAB, sSST, sONE, sHDST, sHDFL, sP = ("s%d" % i for i in range(44, 54))
sMH = "s[54:55]"
sTA, sTW, sTD, sTS, sT0, sT1, sT2, sSPIN = ("s%d" % i for i in range(56, 64))
sOLD = ["s%d" % i for i in range(64, 68)]
sHLD = ["s%d" % i for i in range(68, 72)]
sXW = ["s%d" % i for i in range(72, 75)]
sFBO, sB0, sB1, sB2, sB3 = "s75", "s76", "s77", "s78", "s79"
SRC_A, SRC_G, SRC_U, SRC_D = 80, 84, 88, 92
sLW2, sLW4, sWQ4, sWG4 = "s96", "s97", "s98", "s99"
sST = 100
sHALO2 = sP
vL, vL16, vL16b, vL16c, vQ, vF1, vFL, vSTAMP = 0, 1, 2, 3, 4, 5, 6, 7
XRES = 8
X, ACC, F = 32, 160, 224
aROW, aST, aSQ, aSH, aSG, aHX, aHWR, aHWS, aHST, aHSS, aFB, aCSQ, aCSG, aTO, aTH = range(224, 239)
aBC, aBP, aBP0, aMC = 240, 244, 248, 252
L_HALO, L_RS, L_KV, L_TAB, L_FMT = 102400, 110592, 114688, 124928, 131072
L_SCR_WO, L_SCR_DN = 32768, 114688
NEG = "0xf149f2ca"

def ldsaddr(off):
    return "v%d offset:%d" % ((vL16, vL16b, vL16c)[off >> 16], off & 0xffff)

def isvm(g): return any(op[0] == "vm" for op in g)

class Main:
    def __init__(self):
        self.a = Asm()
        self.nstamp = 0
        self.cold = []
        self.nlite = 0

    def stamp(self, key=None):
        if not OPT["stamps"] or (key is not None and OPT["lite"] != key):
            return
        a = self.a
        a.I("s_memtime s[%d:%d]" % (sST, sST + 1))
        a.ds_drain(force=True)
        for k in range(self.nlite):
            a.I("v_writelane_b32 v%d, s%d, %d" % (vSTAMP, 80 + 2 * k, self.nstamp))
            self.nstamp += 1
        self.nlite = 0
        a.I("v_writelane_b32 v%d, s%d, %d" % (vSTAMP, sST, self.nstamp))
        self.nstamp += 1

    def lite(self, sl, key, slots):
        if OPT["lite"] != key:
            return
        for i in slots[:8]:
            sl.after(i, ("i", "s_memtime s[%d:%d]" % (80 + 2 * self.nlite, 81 + 2 * self.nlite)))
            self.nlite += 1

    def report(self, name, r):
        print("  %s: cycles over budget %d, ops left after the loop %d" % ((name,) + r))

    def getc(self, v, acc): return "v_accvgpr_read_b32 v%d, a%d" % (v, acc)
    def flat(self, groups): return [op for g in groups for op in g]
    def digits(self, key): return tuple(int(c, 16) for c in str(OPT[key]) if c != "-")
    def wgs(self, where, ps): return [g for i in self.digits("wg_%s%d" % (where, ps)) for g in self.wg_chunk(i)]
    def wg_early(self, ps): return sum((self.digits("wg_%s%d" % (w, ps)) for w in ("q", "att", "h1", "wo", "h2")), ())
    def wq_late(self, ps): return tuple(range(7)) if ps == 0 else self.digits("wq_late1")

    def srd(self, base, lo, hi, nbytes):
        self.a.I("s_mov_b32 s%d, %s\ns_and_b32 s%d, %s, 0xffff\ns_mov_b32 s%d, %s\ns_mov_b32 s%d, 0x20000" %
                 (base, lo, base + 1, hi, base + 2, nbytes, base + 3))

    def lin(self, dst, base, terms):
        first = True
        for reg, mul in terms:
            self.a.I("s_mul_i32 %s, %s, %d\ns_add_u32 %s, %s, %s" % (sT2, reg, mul, dst, base if first else dst, sT2))
            first = False

    def sdivmod(self, q, r, x, d):
        self.a.I("s_mul_hi_u32 %s, %s, 0x%x\ns_mul_i32 %s, %s, %d\ns_sub_u32 %s, %s, %s" % (q, x, magic(d), sT2, q, d, r, x, sT2))

    def hi_lo(self, dst, src, t):
        return ["v_cvt_pk_bf16_f32 v%d, v%d, v%d" % (dst, src, src), "v_lshlrev_b32 v%d, 16, v%d" % (t, dst),
                "v_sub_f32 v%d, v%d, v%d" % (t, src, t), "v_cvt_pk_bf16_f32 v%d, v%d, v%d" % (dst, src, t)]

    def weave(self, body, groups, first, every):
        k = 0
        for n_, op in enumerate(body):
            if n_ >= first and (n_ - first) % every == 0:
                while k < len(groups):
                    g = groups[k]; k += 1
                    self.a.run_all(g)
                    if isvm(g): break
            self.a.run(op)
        return groups[k:]

    def signal(self, h, wait=None):
        a = self.a
        slow, done = a.label("slow"), a.label("sig")
        a.I("s_add_u32 %s, %s, %d\nv_mov_b32 v30, %s\ns_cmp_lg_u32 %s, 0" % (sTS, sFLW, h * 4096, sNONCE, sSLOW))
        if wait is None: a.vm_drain()
        else: a.vm_wait(wait)
        a.I("s_cbranch_scc1 %s" % slow)
        a.vm("buffer_store_dword v30, v%d, %s, %s offen" % (vF1, WS, sTS))
        a.I("%s:" % done)
        self.cold.append("%s:\nbuffer_wbl2 sc1\ns_waitcnt vmcnt(0)\nbuffer_store_dword v30, v%d, %s, %s offen sc1\ns_branch %s" % (slow, vF1, WS, sTS, done))

    def spin(self, load, test):
        a = self.a
        loop = a.label("poll")
        a.I("s_mov_b32 %s, 0x40000\n%s:\n%s" % (sSPIN, loop, load))
        a.I("s_sub_u32 %s, %s, 1\ns_cbranch_scc1 L_main_done" % (sSPIN, sSPIN))
        a.vm_drain(force=True)
        a.I("%s\ns_cbranch_scc1 %s" % (test, loop))

    def poll(self, h, mask):
        a = self.a
        a.state.pop(sTA, None)
        a.forget()
        a.I("s_add_u32 %s, %s, %d" % (sTA, sFLG, h * 4096))
        self.spin("buffer_load_dword v30, v%d, %s, %s offen sc1" % (vFL, WS, sTA),
                  "v_cmp_ne_u32 vcc, %s, v30\ns_and_b64 vcc, vcc, %s" % (sNONCE, mask))
        acq, ok = a.label("acq"), a.label("ok")
        a.I("s_cmp_lg_u32 %s, 0\ns_cbranch_scc1 %s\n%s:" % (sSLOW, acq, ok))
        self.cold.append("%s:\nbuffer_inv sc1\ns_waitcnt vmcnt(0)\ns_branch %s" % (acq, ok))

    def late_check(self, load, reg, mask, tag):
        a = self.a
        spin, back = a.label("lspin"), a.label("lback")
        cmp_, and_ = "v_cmp_ne_u32 vcc, %s, v%d" % (sNONCE, reg), "s_and_b64 vcc, vcc, %s" % mask
        self.cold.append("%s:\ns_mov_b32 %s, 0x40000\n%s_l:\n%s\ns_sub_u32 %s, %s, 1\ns_cbranch_scc1 L_main_done\ns_waitcnt vmcnt(0)\n%s\n%s\ns_cbranch_scc1 %s_l\ns_branch %s"
                         % (spin, sSPIN, spin, load, sSPIN, sSPIN, cmp_, and_, spin, back))
        return [("vm", load, tag)], [("wvm", tag), ("i", cmp_), ("atom", and_ + "\ns_cbranch_scc1 %s\n%s:" % (spin, back))]

    def dma_chunk(self, sbase, goff, loff, n, tag, sc=""):
        sw = {1: sLW, 2: sLW2, 4: sLW4}[n]
        setup = [("set", sTW, "s_add_u32 %s, %s, %d" % (sTW, sbase, goff)), ("set", "m0", "s_add_u32 m0, %s, %d" % (sw, loff))]
        return [setup + [("vm", "buffer_load_dwordx4 v%d, %s, %s offen offset:%d%s lds" % (vL16, WS, sTW, k * 1024, sc), tag if k == n - 1 else None)]
                for k in range(n)]

    def wq_chunk(self, i): return self.dma_chunk(sWQ4 if i < 6 else sWQ, i * 16384, i * 16384, 4 if i < 6 else 1, ("wq", i), " sc1")
    def wg_chunk(self, i): return self.dma_chunk(sWG4 if i < 14 else sWG, i * 16384, ((i + 5) % 10) * 16384, 4 if i < 14 else 2, ("wg", i), " sc1")

    def reg_loads(self, dsts, bases, offs, stmp, vaddr, tagbase):
        ops, cur = [], None
        for k, (d, sb, off) in enumerate(zip(dsts, bases, offs)):
            if cur is None or cur[0] != sb or not (0 <= off - cur[1] < 4096):
                cur = (sb, off)
            ops.append([("set", stmp, "s_add_u32 %s, %s, %d" % (stmp, sb, cur[1])),
                        ("vm", "buffer_load_dwordx4 %s, v%d, %s, %s offen offset:%d sc1" % (d, vaddr, WS, stmp, off - cur[1]), (tagbase, k))])
        return ops

    def touch(self, acc, sbase, off, tmp):
        if not OPT["touch"]: return []
        return [[("i", self.getc(tmp, acc) + "\ns_add_u32 %s, %s, %d" % (sTS, sbase, off)),
                 ("vm", "buffer_load_dword a255, v%d, %s, %s offen sc1" % (tmp, WS, sTS))]]

    def ln_from_sums(self, s1, s2, t):
        return [("i", x) for x in (
            "v_mul_f32 v%d, 0x3b000000, v%d" % (s1, s1),
            "v_mul_f32 v%d, v%d, v%d" % (t, s1, s1),
            "v_mul_f32 v%d, 0x3b000000, v%d" % (s2, s2),
            "v_sub_f32 v%d, v%d, v%d" % (s2, s2, t),
            "v_max_f32 v%d, 0, v%d" % (s2, s2),
            "v_cvt_pk_bf16_f32 v%d, v%d, v%d" % (s2, s2, s2),
            "v_lshlrev_b32 v%d, 16, v%d" % (s2, s2),
            "v_add_f32 v%d, 0x3727c5ac, v%d" % (s2, s2),
            "v_cvt_pk_bf16_f32 v%d, v%d, v%d" % (s2, s2, s2),
            "v_lshlrev_b32 v%d, 16, v%d" % (s2, s2),
            "v_sqrt_f32 v%d, v%d" % (s2, s2),
            "v_cvt_pk_bf16_f32 v%d, v%d, v%d" % (s2, s2, s2),
            "v_lshlrev_b32 v%d, 16, v%d" % (s2, s2),
            "v_rcp_f32 v%d, v%d" % (s2, s2))]

    def publish(self, xi, halo_pass):
        a = self.a
        S1, S2, S3, S4, AD = 26, 27, 28, 29, 25
        a.I("s_add_u32 %s, %s, %d" % (sTS, sXST, LY.XB[xi]))
        for e in range(2):
            a.vm("buffer_store_dwordx4 %s, v%d, %s, %s offen offset:%d" % (vr(XRES + 4 * e, 4), vQ, WS, sTS, e * 2048))
        for k in range(4):
            for d, p, o in ((S1, XRES + k, sONE), (S2, XRES + k, None), (S3, XRES + 4 + k, sONE), (S4, XRES + 4 + k, None)):
                a.I("v_dot2_f32_bf16 v%d, v%d, %s, %s" % (d, p, o or "v%d" % p, "v%d" % d if k else "0"))
        a.I(self.getc(AD, aST) + "\ns_add_u32 %s, %s, %d" % (sTS, sSST, LY.SB[xi]))
        a.I("v_add_f32 v%d, v%d, v%d\nv_add_f32 v%d, v%d, v%d" % (S1, S1, S3, S2, S2, S4))
        a.I("v_permlane32_swap_b32 v%d, v%d\nv_add_f32 v%d, v%d, v%d\nv_mov_b32 v%d, v%d" % (S1, S2, S1, S1, S2, S2, S1))
        a.I("v_permlane16_swap_b32 v%d, v%d\nv_add_f32 v%d, v%d, v%d" % (S1, S2, S1, S1, S2))
        a.vm("buffer_store_dword v%d, v%d, %s, %s offen" % (S1, AD, WS, sTS), "pub")
        if halo_pass is not None:
            a.I(self.getc(AD - 1, aHST) + "\n" + self.getc(AD, aHSS) + "\ns_add_u32 %s, %s, %d" % (sTS, sHDST, LY.HX[halo_pass]))
            for e in range(2):
                a.vm("buffer_store_dwordx4 %s, v%d, %s, %s offen offset:%d sc1" % (vr(XRES + 4 * e, 4), AD - 1, WS, sTS, e * 512))
            a.vm("buffer_store_dword v%d, v%d, %s, %s offen sc1" % (S1, AD, WS, sTS), "hpub")

    def halo_flag(self, halo_pass):
        a = self.a
        a.I("s_add_u32 %s, %s, %d" % (sTS, sHDFL, halo_pass * 16384))
        a.vm_wait("hpub")
        a.vm("buffer_store_dword v30, v%d, %s, %s offen sc1" % (vF1, WS, sTS))

    def startup(self):
        a = self.a
        a.I("%s_kernel:" % NAME)
        a.I("s_cmp_ge_u32 s2, 256\ns_cbranch_scc1 L_main_done")
        a.I("s_load_dwordx16 s[64:79], s[0:1], 0\ns_load_dwordx2 s[4:5], s[0:1], 72")
        if OPT["stamps"]:
            a.I("s_memrealtime s[6:7]")
        a.I("s_getpc_b64 s[56:57]\nL_pc:\ns_lshr_b32 s58, s2, 3\ns_lshl_b32 s58, s58, 11")
        a.I("v_lshrrev_b32 v16, 6, v0\nv_lshrrev_b32 v17, 4, v0\nv_lshlrev_b32 v17, 7, v17\nv_add_u32 v17, s58, v17")
        a.I("v_min_u32 v17, L_code_end-L_pc-4, v17\nv_and_b32 v0, 63, v0\nv_readfirstlane_b32 %s, v16" % sW)
        a.vm("global_load_dword v31, v17, s[56:57]")
        a.I("v_mov_b32 v%d, 0" % vSTAMP)
        a.I("s_and_b32 %s, s2, 7\ns_lshr_b32 %s, s2, 3" % (sN, sT0))
        a.I("s_and_b32 %s, %s, 15\ns_lshr_b32 %s, %s, 4" % (sJ, sT0, sP, sT0))
        a.I("s_lshr_b32 %s, %s, 3\ns_and_b32 %s, %s, 7" % (sR, sJ, sC, sJ))
        t8, kc, tok, g, hh, t32, u0, u1, rr, cc, q16, vA, vR, vB, vD = range(16, 31)
        a.I("v_lshlrev_b32 v%d, 4, v0\nv_and_b32 v%d, 7, v0\nv_lshrrev_b32 v%d, 3, v0\nv_and_b32 v%d, 15, v0\nv_lshrrev_b32 v%d, 4, v0" % (vL16, t8, kc, tok, g))
        cuA, kkA, stA = "s28", "s29", "s30"
        self.sdivmod(kkA, cuA, "s2", 24)
        a.I("s_sub_u32 %s, s2, 192\ns_and_b32 %s, %s, 7\ns_lshr_b32 %s, %s, 3" % (sT0, sT1, sT0, sT0, sT0))
        a.I("s_cmp_lt_u32 s2, 192\ns_cselect_b32 %s, %s, %s\ns_cselect_b32 %s, %s, %s\ns_cselect_b32 %s, 3, 1\ns_lshl_b32 %s, %s, 10" %
            (cuA, cuA, sT1, kkA, kkA, sT0, stA, stA, stA))
        a.I("v_lshlrev_b32 v%d, 4, v%d\nv_mad_u32_u24 v%d, v%d, %s, v%d" % (u0, t8, vA, kc, stA, u0))
        a.I("s_lshl_b32 %s, %s, 2\ns_add_u32 %s, %s, %s\ns_lshl_b32 %s, %s, 4\ns_mul_i32 %s, %s, %s" % (sT0, kkA, sT0, sT0, sW, sT0, sT0, sT0, sT0, stA))
        a.I("s_lshl_b32 %s, %s, 7\ns_add_u32 %s, %s, %s\ns_lshl_b32 %s, %s, 3\ns_add_u32 %s, %s, %s\ns_sub_u32 %s, %s, 1024" %
            (sT1, cuA, sT0, sT0, sT1, sT1, stA, sT1, sT1, sT0, sT1, sT1))
        a.I("s_lshl_b32 %s, %s, 11\ns_add_u32 m0, %s, %d" % (sLW2, sW, sLW2, L_FMT))
        a.I("s_lshl_b32 s31, %s, 1\ns_add_u32 s31, s31, %s\ns_lshl_b32 s31, s31, 2\ns_add_u32 s31, s31, %s\ns_lshl_b32 s31, s31, 5" % (sN, sR, sW))
        a.I("s_add_u32 s31, s31, %s\ns_lshl_b32 s31, s31, 3\ns_add_u32 s31, s31, %s\ns_lshl_b32 s31, s31, 7" % (sP, sC))
        a.I("v_lshlrev_b32 v%d, 11, v%d\nv_lshl_add_u32 v%d, v%d, 4, v%d\nv_add_u32 v%d, s31, v%d" % (vR, tok, vR, g, vR, vR, vR))
        a.I("s_waitcnt lgkmcnt(0)")
        a.I("s_load_dword %s, s[4:5], %d" % (sNONCE, LY.EPOCH))
        a.I("s_cmp_lt_u32 s2, 192\ns_cselect_b32 s%d, s66, s68\ns_cselect_b32 s%d, s67, s69\ns_and_b32 s%d, s%d, 0xffff" % (SRC_A, SRC_A + 1, SRC_A + 1, SRC_A + 1))
        a.I("s_lshl_b32 s%d, %s, 9\ns_mov_b32 s%d, 0x20000" % (SRC_A + 2, stA, SRC_A + 3))
        sa = "s[%d:%d]" % (SRC_A, SRC_A + 3)
        a.vm("buffer_load_dwordx4 v%d, %s, %s offen lds" % (vA, sa, sT0))
        a.vm("buffer_load_dwordx4 v%d, %s, %s offen offset:1024 lds" % (vA, sa, sT1), "fa")
        self.srd(12, "s64", "s65", 2048 * 1024)
        a.vm("buffer_load_dwordx4 %s, v%d, %s, 0 offen" % (vr(XRES, 4), vR, XIN))
        a.vm("buffer_load_dwordx4 %s, v%d, %s, 0 offen offset:64" % (vr(XRES + 4, 4), vR, XIN), "x")
        self.srd(8, "s4", "s5", LY.WS_USED)
        self.srd(16, "s78", "s79", 2048 * 1024)
        self.srd(SRC_G, "s72", "s73", 512 * 3584)
        self.srd(SRC_U, "s74", "s75", 512 * 3584)
        self.srd(SRC_D, "s76", "s77", 1792 * 1024)
        def put(acc): a.I("v_accvgpr_write_b32 a%d, v%d" % (acc, u1))
        a.I("v_accvgpr_write_b32 a%d, v%d" % (aROW, vR))
        dA, dA2, dCS = "s3", "s0", "s1"
        a.I("s_and_b32 %s, %s, 7\ns_lshl_b32 %s, %s, 1\ns_lshr_b32 %s, %s, 1\ns_add_u32 %s, %s, %s" % (sT0, cuA, sT0, sT0, sT1, sW, sT0, sT0, sT1))
        a.I("s_mul_i32 %s, %s, %d\ns_add_u32 %s, %s, %d" % (sT0, sT0, LY.WQ_STRIDE, sT0, sT0, LY.WQ))
        a.I("s_lshr_b32 %s, %s, 3\ns_lshl_b32 %s, %s, 1\ns_and_b32 %s, %s, 1\ns_add_u32 %s, %s, %s" % (sT1, cuA, sT1, sT1, sT2, sW, sT1, sT1, sT2))
        self.lin(dA, sT0, [(kkA, 12288), (sT1, 1024)])
        self.lin(dCS, sT0, [(kkA, 64), (sT1, 512)])
        a.I("s_add_u32 %s, %s, 98304" % (dCS, dCS))
        self.lin(sT0, str(LY.WO), [(cuA, LY.WO_STRIDE), (kkA, 8192), (sW, 1024)])
        a.I("s_cmp_lt_u32 s2, 192\ns_cselect_b32 %s, %s, %s\ns_cselect_b32 %s, %s, 0x%x\ns_cselect_b32 %s, 6, 4\ns_cselect_b64 vcc, -1, 0" %
            (dA, dA, sT0, dCS, dCS, OOB, dA2))
        a.I("s_lshl_b32 %s, %s, 10\ns_add_u32 %s, %s, %s" % (dA2, dA2, dA2, dA2, dA))
        a.I("v_bfe_u32 v%d, v0, 2, 2\nv_and_b32 v%d, 3, v0\nv_bfe_u32 v%d, v0, 4, 1\nv_lshrrev_b32 v%d, 5, v0\nv_and_b32 v%d, 31, v0" % (rr, cc, q16, hh, t32))
        TA0, TA1, TD, TG, ONES = ACC + 48, ACC + 49, ACC + 50, ACC + 51, ACC + 52
        a.I("v_lshl_add_u32 v%d, v%d, 3, v%d\nv_lshlrev_b32 v%d, 7, v%d\nv_lshl_add_u32 v%d, v%d, 2, v%d\nv_lshlrev_b32 v%d, 7, v%d" % (u0, g, rr, u0, u0, u1, g, rr, u1, u1))
        a.I("s_lshr_b32 %s, %s, 1\ns_lshl_b32 %s, %s, 6\ns_and_b32 %s, %s, 1\ns_lshl_b32 %s, %s, 3\ns_add_u32 %s, %s, %s\ns_add_u32 %s, %s, %d" %
            (sT0, sW, sT0, sT0, sT1, sW, sT1, sT1, sT0, sT0, sT1, sT0, sT0, L_FMT))
        a.I("v_lshl_add_u32 v%d, v%d, 4, %s\nv_add_u32 v%d, v%d, v%d\nv_add_u32 v%d, v%d, v%d" % (TA1, cc, sT0, TD, TA1, u0, u1, u1, TA1))
        a.I("s_lshl_b32 %s, %s, 5\ns_add_u32 %s, %s, %d\nv_lshl_add_u32 v%d, v%d, 3, %s\nv_add_u32 v%d, v%d, v%d" % (sT0, sW, sT0, sT0, L_FMT, TA0, cc, sT0, u0, u0, TA0))
        a.I("v_cndmask_b32 v%d, v%d, v%d, vcc\nv_add_u32 v%d, 512, v%d\nv_add_u32 v%d, 2048, v%d\nv_cndmask_b32 v%d, v%d, v%d, vcc" % (TA0, u1, u0, u0, u0, u1, u1, TA1, u1, u0))
        a.I("v_lshl_add_u32 v%d, v%d, 3, v%d\nv_lshlrev_b32 v%d, 7, v%d\nv_lshrrev_b32 v%d, 1, v%d\nv_lshl_add_u32 v%d, v%d, 13, v%d" % (TG, hh, rr, TG, TG, u0, cc, TG, u0, TG))
        a.I("v_and_b32 v%d, 1, v%d\nv_lshl_add_u32 v%d, v%d, 4, v%d\nv_lshl_add_u32 v%d, v%d, 3, v%d\nv_add_u32 v%d, %s, v%d" % (u0, cc, TG, u0, TG, TG, q16, TG, TG, sT0, TG))
        for k in range(4): a.I("v_mov_b32 v%d, 0x3f803f80" % (ONES + k))
        cuG, kkG, sSG, sSD = "s28", "s29", "s4", "s5"
        self.sdivmod(kkG, cuG, "s2", 28)
        a.I("v_lshlrev_b32 v%d, 4, v%d\nv_mul_u32_u24 v%d, 3584, v%d\nv_add_u32 v%d, v%d, v%d\nv_lshl_add_u32 v%d, v%d, 10, v%d" % (u0, t8, vB, kc, vB, vB, u0, vD, kc, u0))
        a.I("s_waitcnt lgkmcnt(0)")
        self.lin(sSG, "0", [(kkG, 64 * 3584), (sW, 16 * 3584), (cuG, 128)])
        a.I("s_lshr_b32 %s, s2, 3" % sT0)
        self.lin(sSD, "0", [(sT0, 65536), (sW, 16384), (sN, 128)])
        self.lin(sB3, str(LY.WD), [(sN, LY.WD_STRIDE), (sT0, 8192), (sW, 1024)])
        a.I("s_lshl_b32 %s, %s, 2\ns_add_u32 %s, %s, %s" % (cuG, cuG, cuG, cuG, sW))
        self.sdivmod(sT0, sT1, cuG, 7)
        self.lin(sB2, str(LY.WG), [(sT0, LY.WG_STRIDE)])
        a.I("s_mul_i32 %s, %s, 33\ns_cmp_lt_u32 %s, 3\ns_cselect_b32 %s, %s, %s\ns_cselect_b32 %s, 3, 1" % (sT0, sT1, sT1, sT1, sT1, sT0, sB1))
        a.I("s_lshl_b32 %s, %s, 10\ns_lshl_b32 %s, %s, 10\ns_add_u32 %s, %s, %s" % (sB1, sB1, sT1, sT1, sB2, sB2, sT1))
        a.I("s_lshl_b32 %s, %s, 2\ns_mul_i32 %s, %s, %s\ns_add_u32 %s, %s, %s" % (sT0, kkG, sT0, sT0, sB1, sB0, sB2, sT0))
        self.lin(sB2, sB2, [(sB1, 32), (kkG, 128)])
        a.I("s_cmp_lt_u32 s2, 224")
        for r_ in (sSG, sSD, sB0, sB2, sB3): a.I("s_cselect_b32 %s, %s, 0x%x" % (r_, r_, OOB))
        a.I("s_add_u32 %s, %s, 0x9e3779b1\ns_mov_b32 %s, 0\ns_mov_b32 %s, 0x3f803f80" % (sNONCE, sNONCE, sSLOW, sONE))
        a.I("s_lshl_b32 %s, %s, 1\ns_add_u32 %s, %s, %s" % (sG, sN, sG, sG, sP))
        a.I("v_cmp_ne_u32 vcc, 0, v0\nv_mov_b32 v%d, 0x%x\nv_lshlrev_b32 v%d, 2, v0\nv_cndmask_b32 v%d, 0, v%d, vcc" % (vF1, OOB, vFL, vF1, vF1))
        sXA, sXV = "s31", "s35"
        self.lin(sXA, str(LY.XF), [(sG, 128)])
        a.I("s_getreg_b32 %s, hwreg(HW_REG_XCC_ID, 0, 4)\ns_xor_b32 %s, %s, %s\nv_mov_b32 v%d, %s" % (sXV, sXV, sXV, sNONCE, u1, sXV))
        self.lin(sT0, sXA, [(sJ, 4)])
        a.I("s_cmp_eq_u32 %s, 0\ns_cselect_b32 %s, %s, 0x%x" % (sW, sT0, sT0, OOB))
        a.vm("buffer_store_dword v%d, v%d, %s, %s offen sc1" % (u1, vF1, WS, sT0))
        a.I("v_mov_b32 v%d, %s\nv_mov_b32 v%d, %s" % (ACC + 56, sXA, ACC + 57, sXV))
        a.I("s_lshl_b32 %s, %s, %d\ns_add_u32 %s, %s, 0x%x" % (sGB, sG, LY.ACT_SHIFT, sGB, sGB, LY.ACT))
        lin = self.lin
        lin(sXLD, sGB, [(sW, 32768)])
        a.I("s_lshr_b32 %s, %s, 1\ns_and_b32 %s, %s, 1" % (sT0, sW, sT1, sW))
        lin(sXST, sGB, [(sR, 65536), (sC, 4096), (sT0, 32768), (sT1, 256)])
        lin(sOST, sXLD, [(sJ, 2048)])
        lin(sHST, sGB, [(sW, 114688), (sJ, 7168)])
        lin(sSLD, sGB, [(sW, 2048)])
        lin(sSST, sGB, [(sR, 4096), (sC, 8), (sW, 1024)])
        if OPT["touch"]:
            a.I("v_and_b32 v%d, 1, v0\nv_lshlrev_b32 v%d, 7, v%d\nv_bfe_u32 v%d, v0, 1, 3\nv_lshl_add_u32 v%d, v%d, 9, v%d\nv_add_u32 v%d, %s, v%d" %
                (u0, u0, u0, u1, u0, u1, u0, u0, sXST, u0))
            a.I("s_add_u32 %s, %s, %d\nv_lshlrev_b32 v%d, 7, v%d\nv_add_u32 v%d, %s, v%d\nv_cmp_gt_u32 vcc, 16, v0\nv_cndmask_b32 v%d, v%d, v%d, vcc" %
                (sT0, sOST, LY.OB[0], u1, tok, u1, sT0, u1, u0, u1, u0))
            a.I("s_add_u32 %s, %s, %d\nv_lshlrev_b32 v%d, 7, v%d\nv_add_u32 v%d, %s, v%d\nv_cmp_gt_u32 vcc, 32, v0\nv_cndmask_b32 v%d, v%d, v%d, vcc" %
                (sT0, sSST, LY.SB[0], u1, t8, u1, sT0, u1, u0, u1, u0))
            a.vm("buffer_load_dword v31, v%d, %s, 0 offen sc1" % (u0, WS))
        for i in range(4):
            a.I("s_add_u32 %s, %s, %d\ns_and_b32 %s, %s, 3\ns_lshr_b32 %s, %s, 1\ns_and_b32 %s, %s, 1" % (sTA, sW, i + 1, sTA, sTA, sT0, sTA, sT1, sTA))
            lin(sOLD[i], sGB, [(sR, 65536), (sW, 8192), (sT0, 32768), (sT1, 256)])
            lin(sHLD[i], sGB, [(sR, 229376), (sW, 28672), (sT0, 114688), (sT1, 256)])
            if i < 3: lin(sXW[i], str(i * 4096), [(sTA, 12288)])
        lin(sXR, "0", [(sW, 12288)])
        lin(sWQ, str(LY.WQ), [(sJ, LY.WQ_STRIDE * (1 - OPT["hitw"]))])
        lin(sWG, str(LY.WG), [(sJ, LY.WG_STRIDE * (1 - OPT["hitw"]))])
        lin(sWO, str(LY.WO), [(sC, LY.WO_STRIDE * (1 - OPT["hitw"])), (sW, 16384)])
        lin(sWD, str(LY.WD), [(sC, LY.WD_STRIDE * (1 - OPT["hitw"])), (sW, 57344)])
        lin(sFLG, str(LY.FL), [(sG, 256)])
        lin(sFLW, sFLG, [(sJ, 16), (sW, 4)])
        lin(sHFL, str(LY.HFL), [(sG, 1024)])
        lin(sHDFL, sHFL, [(sC, 128)])
        lin(sTAB, str(L_TAB), [(sW, 512)])
        lin(sFBO, str(LY.FA), [("s2", 128)])
        a.I("s_add_u32 %s, %s, 2048\ns_add_u32 %s, %s, 0x%x" % (sHDFL, sHDFL, sHDST, sGB, 2 * LY.ACT_STRIDE))
        a.I("s_cmp_eq_u32 %s, 0\ns_cselect_b32 %s, %s, 0x%x" % (sW, sFBO, sFBO, OOB))
        a.I("s_lshl_b32 %s, %s, 2\ns_add_u32 %s, %s, %s\ns_cmp_eq_u32 %s, 7\ns_cselect_b32 %s, 0, %s\ns_cmp_eq_u32 %s, 7" % (sT0, sR, sT0, sT0, sW, sN, sT0, sT0, sT0))
        a.I("s_cselect_b32 %s, %s, 0x%x\ns_cselect_b32 %s, %s, 0x%x" % (sHDST, sHDST, OOB, sHDFL, sHDFL, OOB))
        a.I("s_lshl_b32 %s, %s, 10\ns_lshl_b32 %s, %s, 12\ns_add_u32 %s, %s, %s\ns_add_u32 %s, %s, %s" % (sLW, sW, sLW4, sW, sWQ4, sWQ, sLW4, sWG4, sWG, sLW4))
        a.I("s_cmp_eq_u32 %s, 0\ns_cselect_b32 %s, 0x%x, %s\ns_cselect_b32 s54, 0, 0xff\ns_mov_b32 s55, 0" % (sN, sHALO, OOB, sGB))
        a.I("s_add_u32 %s, %s, %s\ns_add_u32 %s, %s, %s\ns_add_u32 %s, %s, %s" % (sHALO2, sHALO, sLW2, sWQ, sWQ, sLW, sWG, sWG, sLW2))
        a.I("s_lshr_b32 %s, %s, 1\ns_lshl_b32 %s, %s, 5\ns_and_b32 %s, %s, 1\ns_lshl_b32 %s, %s, 1\ns_add_u32 %s, %s, %s" % (sT0, sW, sT0, sT0, sT1, sW, sT1, sT1, sT0, sT0, sT1))
        a.I("s_mov_b32 s40, 0x33333333\ns_mov_b32 s41, 0\ns_lshl_b64 s[40:41], s[40:41], %s" % sT0)
        a.I("s_lshl_b32 %s, %s, 1\ns_lshl_b32 %s, %s, 4\ns_add_u32 %s, %s, %s" % (sT0, sR, sT2, sW, sT0, sT0, sT2))
        a.I("s_mov_b32 s42, 0x3333\ns_mov_b32 s43, 0\ns_lshl_b64 s[42:43], s[42:43], %s" % sT0)
        a.I("v_add_u32 v%d, 0x10000, v%d\nv_add_u32 v%d, 0x20000, v%d" % (vL16b, vL16, vL16c, vL16))
        a.I("v_lshlrev_b32 v%d, 4, v%d\nv_lshl_add_u32 v%d, v%d, 9, v%d" % (u0, tok, vQ, g, u0))
        a.I("v_lshlrev_b32 v%d, 6, v%d\nv_lshl_add_u32 v%d, v%d, 2, v%d\nv_lshl_add_u32 v%d, v%d, 30, v%d" % (u1, tok, u1, hh, u1, u1, q16, u1)); put(aST)
        a.I("v_bfe_u32 v%d, v0, 3, 1\nv_xor_b32 v%d, 1, v%d\nv_lshlrev_b32 v%d, 29, v%d" % (vA, vA, vA, vA, vA))
        a.I("s_lshl_b32 %s, %s, 3\ns_add_u32 %s, %s, %d\nv_add3_u32 v%d, v%d, v%d, %s" % (sT0, sC, sT0, sT0, 8192 - 512, u1, u1, vA, sT0)); put(aHSS)
        a.I("v_lshlrev_b32 v%d, 4, v%d\nv_lshl_add_u32 v%d, v%d, 7, v%d\nv_add_u32 v%d, %d, v%d" % (u0, t8, u0, g, u0, u1, L_HALO, u0)); put(aHX)
        a.I("s_lshl_b32 %s, %s, 10\nv_add3_u32 v%d, v%d, v%d, %s" % (sT0, sC, u1, u0, vA, sT0)); put(aHST)
        a.I("v_lshlrev_b32 v%d, 4, v%d\nv_lshl_add_u32 v%d, v%d, 6, v%d" % (u0, g, u1, tok, u0)); put(aSQ)
        a.I("v_lshl_add_u32 v%d, v%d, 6, v%d" % (u1, t8, u0)); put(aSH)
        a.I("v_lshlrev_b32 v%d, 5, v%d\nv_lshl_add_u32 v%d, v%d, 6, v%d" % (u0, hh, u1, t32, u0)); put(aSG)
        a.I("v_lshlrev_b32 v%d, 7, v%d" % (u1, tok)); put(aTO)
        a.I("v_min_u32 v%d, 55, v0\nv_lshlrev_b32 v%d, 7, v%d" % (u1, u1, u1)); put(aTH)
        a.I("v_lshlrev_b32 v%d, 8, v%d\nv_lshl_add_u32 v%d, v%d, 6, v%d\nv_lshl_add_u32 v%d, v%d, 1, v%d\nv_add_u32 v%d, 1024, v%d" % (u0, rr, u0, g, u0, u0, cc, u0, u1, vL16))
        a.I("s_cmp_ge_u32 %s, 2\ns_cselect_b64 vcc, -1, 0\ns_cselect_b32 %s, 2, 16\nv_cndmask_b32 v%d, v%d, v%d, vcc" % (sW, sT1, u1, u0, u1))
        a.I("s_and_b32 %s, %s, 1\ns_lshl_b32 %s, %s, 3\ns_add_u32 %s, %s, %d\nv_add_u32 v%d, %s, v%d" % (sT0, sW, sT0, sT0, sT0, sT0, L_KV, u1, sT0, u1)); put(aHWR)
        a.I("v_mov_b32 v%d, %s" % (u1, sT1)); put(aHWS)
        FAV = ACC + 58
        a.I("s_lshr_b32 %s, %s, 1\nv_mul_u32_u24 v%d, 24, v%d\nv_lshl_add_u32 v%d, v%d, 3, v%d\nv_add_u32 v%d, %s, v%d" % (sT0, sJ, u0, t8, u0, kc, u0, u0, sT0, u0))
        a.I("s_add_u32 %s, %s, 192\nv_lshl_add_u32 v%d, v%d, 3, %s\nv_cmp_gt_u32 vcc, 24, v0\nv_cndmask_b32 v%d, v%d, v%d, vcc" % (sT0, sC, u1, t8, sT0, u0, u1, u0))
        a.I("v_lshlrev_b32 v%d, 7, v%d\nv_add_u32 v%d, %d, v%d" % (u0, u0, FAV, LY.FA, u0))
        a.I("s_mul_i32 %s, %s, 7\ns_add_u32 %s, %s, 6\ns_lshr_b32 %s, %s, 2\ns_lshr_b32 %s, %s, 2" % (sT0, sJ, sT1, sT0, sT0, sT0, sT1, sT1))
        a.I("v_add_u32 v%d, %s, v%d\nv_min_u32 v%d, %s, v%d\nv_mad_u32_u24 v%d, v%d, 28, v%d" % (u0, sT0, kc, u0, sT1, u0, u0, t8, u0))
        a.I("v_min_u32 v%d, 27, v%d\nv_lshl_add_u32 v%d, v%d, 3, %s\nv_cmp_gt_u32 vcc, 32, v0\nv_cndmask_b32 v%d, v%d, v%d, vcc" % (u1, t32, u1, u1, sC, u0, u1, u0))
        a.I("v_lshlrev_b32 v%d, 7, v%d\nv_add_u32 v%d, %d, v%d" % (u0, u0, u1, LY.FB, u0)); put(aFB)
        NG, Z, M0_, M1_ = rr, cc, q16, hh
        a.I("s_or_b32 %s, %s, %s\ns_cmp_eq_u32 %s, 0\ns_cselect_b64 s[56:57], -1, 0" % (sT0, sN, sW, sT0))
        a.I("v_mov_b32 v%d, %s\nv_mov_b32 v%d, 0" % (NG, NEG, Z))
        for r in range(4):
            a.I("v_lshlrev_b32 v%d, 2, v%d\nv_sub_u32 v%d, v%d, v%d\nv_subrev_u32 v%d, %d, v%d" % (u0, g, u0, tok, u0, u0, r, u0))
            a.I("v_cmp_gt_u32 vcc, 8, v%d\nv_cndmask_b32 v%d, v%d, v%d, vcc" % (u0, u1, NG, Z)); put(aBC + r)
            a.I("v_cmp_gt_i32 vcc, -8, v%d\nv_cndmask_b32 v%d, v%d, v%d, vcc" % (u0, u1, NG, Z)); put(aBP + r)
            a.I("v_cndmask_b32 v%d, v%d, v%d, s[56:57]" % (u1, u1, NG)); put(aBP0 + r)
            a.I("v_mov_b32 v%d, %s\nv_cmp_le_i32 vcc, 0, v%d\nv_cndmask_b32 v%d, v%d, v%d, vcc" % (M0_, "0xffff0000" if r & 1 else "0xffff", u0, u1, Z, M0_))
            if r & 1:
                a.I("v_or_b32 v%d, v%d, v%d" % (u1, u1, M1_)); put(aMC + r // 2)
            else:
                a.I("v_mov_b32 v%d, v%d" % (M1_, u1))
        a.I("v_mov_b32 v%d, v%d\nv_mov_b32 v%d, v%d\nv_lshl_add_u32 v%d, v%d, 2, v%d" % (ACC + 59, vB, ACC + 60, vD, ACC + 56, tok, ACC + 56))
        a.I("v_lshlrev_b32 v%d, 2, v%d\nv_lshl_add_u32 v%d, v%d, 28, v%d" % (ACC + 61, tok, ACC + 61, g, ACC + 61))
        if OPT["stamps"]:
            a.I("v_writelane_b32 v%d, s6, 62" % vSTAMP)
        self.stamp()
        a.vm_wait("fa")
        a.I("s_barrier")
        for sp in range(2):
            for half in range(2):
                a.ds("ds_read_b64_tr_b16 %s, v%d offset:%d" % (vr(ACC + 4 * sp + 2 * half, 2), (TA0, TA1)[half], sp * 4096), ("t", sp))
        self.stamp("p")
        for sp in range(2):
            a.ds_wait(("t", sp))
            a.vm("buffer_store_dwordx4 %s, v%d, %s, %s offen sc1" % (vr(ACC + 4 * sp, 4), vL16, WS, (dA, dA2)[sp]))
            a.I("v_mfma_f32_16x16x32_bf16 %s, %s, %s, %s" % (vr(ACC + 8, 4), vr(ONES, 4), vr(ACC + 4 * sp, 4), vr(ACC + 8, 4) if sp else "0"))
        a.I("\n".join(self.hi_lo(ACC + 12, ACC + 8, ACC + 13)))
        a.vm("buffer_store_dword v%d, v%d, %s, %s offen sc1" % (ACC + 12, ACC + 61, WS, dCS), "fas")
        a.vm_wait("x")
        self.publish(0, 0)
        xload = "buffer_load_dword v31, v%d, %s, 0 offen sc1" % (ACC + 56, WS)
        a.vm(xload, "xf")
        for srdn, so, va, stride, lo in ((SRC_G, sSG, ACC + 59, 3584, 8192), (SRC_U, sSG, ACC + 59, 3584, 16384), (SRC_D, sSD, ACC + 60, 1024, 24576)):
            a.I("s_add_u32 m0, %s, %d\ns_add_u32 %s, %s, %d" % (sLW2, L_FMT + lo, sT0, so, 8 * stride - 1024))
            a.vm("buffer_load_dwordx4 v%d, s[%d:%d], %s offen lds" % (va, srdn, srdn + 3, so))
            a.vm("buffer_load_dwordx4 v%d, s[%d:%d], %s offen offset:1024 lds" % (va, srdn, srdn + 3, sT0))
        self.stamp("p")
        a.I("v_mov_b32 v30, %s" % sNONCE)
        a.vm_wait("fas")
        a.I("s_barrier")
        a.vm("buffer_store_dword v30, v%d, %s, %s offen sc1" % (vF1, WS, sFBO))
        a.I("s_add_u32 %s, %s, %d" % (sFBO, sFBO, LY.FB - LY.FA))
        self.stamp("p")
        spin, back = a.label("xspin"), a.label("xback")
        test = "v_xor_b32 v29, %s, v31\nv_cmp_lt_u32 vcc, 15, v29\ns_and_b64 vcc, vcc, exec" % sNONCE
        a.vm_wait("xf")
        a.I("%s\ns_cbranch_scc1 %s\n%s:" % (test, spin, back))
        self.cold.append("%s:\ns_mov_b32 %s, 0x40000\n%s_l:\n%s\ns_sub_u32 %s, %s, 1\ns_cbranch_scc1 L_main_done\ns_waitcnt vmcnt(0)\n%s\ns_cbranch_scc1 %s_l\ns_branch %s"
                         % (spin, sSPIN, spin, xload, sSPIN, sSPIN, test, spin, back))
        a.I("v_cmp_ne_u32 vcc, v%d, v31\ns_cmp_lg_u64 vcc, 0\ns_cselect_b32 %s, 1, 0" % (ACC + 57, sSLOW))
        self.signal(0, "pub")
        self.halo_flag(0)
        self.stamp("p")
        a.vm_drain()
        self.stamp("p")
        self.spin("buffer_load_dword v30, v%d, %s, 0 offen sc1" % (FAV, WS), "v_cmp_ne_u32 vcc, %s, v30\ns_and_b64 vcc, vcc, exec" % sNONCE)
        self.stamp("p")
        self.fmt_regs = (TG, TD, ONES)

    def second_unit(self):
        a = self.a
        TG, TD, ONES = self.fmt_regs
        G, D, CS = ACC, ACC + 16, ACC + 32
        for sp in range(4):
            for half in range(2):
                a.ds("ds_read_b64_tr_b16 %s, v%d offset:%d" % (vr(G + 4 * sp + 2 * half, 2), TG, 8192 + (16 * sp + 4 * half) * 128), ("tg", sp))
        for sp in range(2):
            for half in range(2):
                a.ds("ds_read_b64_tr_b16 %s, v%d offset:%d" % (vr(D + 4 * sp + 2 * half, 2), TD, 24576 + (32 * sp + 4 * half) * 128), ("td", sp))
        for sp in range(4):
            a.ds_wait(("tg", sp))
            a.vm("buffer_store_dwordx4 %s, v%d, %s, %s offen sc1" % (vr(G + 4 * sp, 4), vL16, WS, sB0))
            a.I("v_mfma_f32_32x32x16_bf16 %s, %s, %s, %s" % (vr(CS, 16), vr(ONES, 4), vr(G + 4 * sp, 4), vr(CS, 16) if sp else "0"))
            a.I("s_add_u32 %s, %s, %s" % (sB0, sB0, sB1))
        for sp in range(2):
            a.ds_wait(("td", sp))
            a.vm("buffer_store_dwordx4 %s, v%d, %s, %s offen sc1" % (vr(D + 4 * sp, 4), vL16, WS, sB3))
            a.I("s_add_u32 %s, %s, 4096" % (sB3, sB3))
        a.I("v_lshrrev_b32 v%d, 5, v0\nv_lshl_add_u32 v%d, v%d, 30, v%d" % (D + 9, D + 9, D + 9, vFL))
        a.I("\n".join(self.hi_lo(D + 8, CS, CS + 1)))
        a.vm("buffer_store_dword v%d, v%d, %s, %s offen sc1" % (D + 8, D + 9, WS, sB2), "fbs")

    def qkv(self, ps):
        a = self.a
        xi = 2 * ps
        late = self.wq_late(ps)
        wql = [g for ch in late for g in self.wq_chunk(ch)]
        pre = []
        if ps == 0:
            a.forget()
            pre, wql = wql[:4], wql[4:]
            a.run_all(self.flat(pre))
        self.poll(4 * ps, sMA)
        self.stamp()
        HX, HW, HW2, HF, NM, RL, CQ, RR = 16, 17, 18, 19, 20, 26, 28, ACC + 52
        xl = self.reg_loads([vr(X + 8 * s + 4 * b, 4) for s in range(16) for b in range(2)], [sXLD] * 32,
                            [LY.XB[xi] + s * 2048 + b * 256 for s in range(16) for b in range(2)], sTA, vQ, "x")
        UP = OPT["q_up"] if ps else OPT["q0_up"]
        a.run_all(self.flat(xl[:UP]))
        if ps == 0:
            late = late[1:]
            a.run_all(self.flat(wql[:4])); wql = wql[4:]
        a.I("s_barrier")
        if ps == 0:
            self.second_unit()
        a.I(self.getc(30, aSQ) + "\n" + self.getc(31, aSH) + "\n" + self.getc(HX, aHX))
        a.I("s_add_u32 %s, %s, 2048\nv_add_u32 v%d, %s, v%d\nv_add_u32 v%d, 0xc000, v%d\nv_lshlrev_b32 v%d, 7, v0" % (sT0, sLW, HW, sT0, vL16, HW2, HW, CQ))
        sl = Slots()
        use = {}
        acc = lambda blk, b: vr(ACC + 8 * blk + 4 * b, 4)
        hbuf = lambda t: (F + 24, X)[t % 2]
        step0 = {}
        H0 = OPT["q_h0"]
        hpos = {}
        for t in range(16):
            p = (t * 6 * (16 - H0)) // 16 + 1
            hpos.setdefault((H0 + p // 6, p % 6), []).append(t)
        hpos[(16, 1)] = [16]
        CSA = X + 93
        def halo_mfma(t):
            d = acc(6, 0)
            if t < 16:
                i = sl.add("v_mfma_f32_16x16x32_bf16 %s, %s, %s, %s" % (d, vr(hbuf(t) + 4, 4), vr(hbuf(t), 4), "0" if t == 0 else d), [("wds", ("hx", t))])
            else:
                i = sl.add("v_mfma_f32_16x16x16_bf16 %s, %s, %s, %s" % (d, vr(NM + 4, 2), vr(hbuf(t), 2), d), [("wds", ("hw", t))])
            use[("h", t)] = i
        for s in range(17):
            step0[s] = sl.n()
            for f in range(6):
                for b in range(2):
                    pre_ = []
                    if b == 0: pre_.append(("wds", ("f", s, f)))
                    if f == 0 and s < 16: pre_.append(("wvm", ("x", 2 * s + b)))
                    w = vr(F + 4 * f, 4 if s < 16 else 2)
                    x = vr(X + 8 * s + 4 * b, 4) if s < 16 else vr(NM + 2 * b, 2)
                    A, B = (w, x) if f < 4 else (x, w)
                    d = acc(f, b)
                    mn = "v_mfma_f32_16x16x32_bf16" if s < 16 else "v_mfma_f32_16x16x16_bf16"
                    use[(s, f)] = sl.add("%s %s, %s, %s, %s" % (mn, d, A, B, "0" if s == 0 else d), pre_)
                for t in hpos.get((s, f), ()): halo_mfma(t)
        reads = []
        for s in range(17):
            for f in range(6):
                d = F + 4 * f
                if s < 16: t = "ds_read_b128 %s, %s" % (vr(d, 4), ldsaddr(s * 6144 + f * 1024))
                else: t = "ds_read2st64_b32 %s, v%d offset0:%d offset1:%d" % (vr(d, 2), CSA, 2 * f, 2 * f + 1)
                reads.append((use[(s - 1, f)] if s else -1, (6 * s + f) // 16, ("ds", t, ("f", s, f))))
        hbar = step0[H0 - 1] + 4
        for t in range(17):
            pos = use[("h", t - 2)] if t >= 2 else hbar + 2 + 2 * t
            if t < 16:
                reads.append((pos, (6 * t + 5) // 16, ("ds", "ds_read_b128 %s, v%d offset:%d" % (vr(hbuf(t), 4), HW if t < 8 else HW2, (t % 8) * 6144), ("hw", t))))
                reads.append((pos + (1 if t >= 2 else 0), 0, ("ds", "ds_read_b128 %s, v%d offset:%d" % (vr(hbuf(t) + 4, 4), HX, t * 512), ("hx", t))))
            else:
                reads.append((pos, 6, ("ds", "ds_read2st64_b32 %s, v%d offset0:4 offset1:5" % (vr(hbuf(t), 2), CSA + 1), ("hw", t))))
        sl.put("c", step0[12], [("i", "v_add_u32 v%d, 98304, v%d\ns_lshr_b32 %s, %s, 1\nv_add_u32 v%d, %s, v%d" % (CSA, vFL, sT2, sLW, CSA + 1, sT2, CSA)), ("mark", "csaddr")])
        sl.after(step0[14], ("need", "csaddr"))
        sl.pre[step0[16]].append(("wds", ("nm", 2)))
        chbar = {}
        for ch in late:
            ops = [("wvm", ("wq", ch))] + ([("wvm", "fbs")] if ps == 0 and ch == 4 else []) + [("i", "s_barrier")]
            p = chbar[ch] = min(p for p, c, _ in reads if c == ch)
            sl.after(p, *ops)
            if ps == 0 and ch == 4:
                sl.put("v", p + 1, [("i", "v_mov_b32 v%d, %s" % (NM, sNONCE)), ("vm", "buffer_store_dword v%d, v%d, %s, %s offen sc1" % (NM, vF1, WS, sFBO))])
        sl.after(hbar, ("wvm", "halo"), ("i", "s_barrier"))
        for pos, _, rd in reads:
            if pos < 0: a.run(rd)
            else: sl.after(pos, rd)
        l_hf, g_chk = self.late_check("buffer_load_dword v%d, v%d, %s, %s offen sc1" % (HF, CQ, WS, sT1), HF, sMH, "hf")
        g_hf = [("i", "v_and_b32 v%d, 0x380, v%d\ns_add_u32 %s, %s, %d" % (CQ, CQ, sT1, sHFL, ps * 16384))] + l_hf
        g_hd = self.dma_chunk(sHALO2, LY.HX[ps], L_HALO, 2, "halo", " sc1")
        g_hs = [("i", "s_add_u32 %s, %s, %d" % (sT1, sHALO, LY.HX[ps] + 8192)),
                ("vm", "buffer_load_dwordx4 %s, v31, %s, %s offen sc1" % (vr(RR + 8, 4), WS, sT1), "st")]
        g_s0 = [("i", "s_add_u32 %s, %s, %d" % (sT0, sSLD, LY.SB[xi])), ("vm", "buffer_load_dwordx4 %s, v30, %s, %s offen sc1" % (vr(RR, 4), WS, sT0))]
        g_s1 = [("vm", "buffer_load_dwordx4 %s, v30, %s, %s offen offset:1024 sc1" % (vr(RR + 4, 4), WS, sT0))]
        wo = self.reg_loads([vr(X + 8 + 4 * k, 4) for k in range(16)], [sWO] * 16, [k * 1024 for k in range(16)], sTD, vL16, "wo")
        rest = xl[UP:]
        h1, h2 = OPT["q_hf"], OPT["q_hf"] + OPT["q_chk"] - 2
        seq = rest[:h1] + [g_hf, g_s0, g_s1] + rest[h1:h2] + [g_chk] + g_hd + [g_hs] + rest[h2:]
        if wql:
            due, d = [], sl.n()
            for g in reversed(seq):
                tag = g[-1][2] if len(g[-1]) > 2 else None
                if isinstance(tag, tuple) and tag[0] == "x": d = step0[tag[1] // 2]
                due.append((d, g))
            due.reverse()
            d, wdue = 0, []
            for g in reversed(wql):
                if g[-1][2] is not None: d = chbar[g[-1][2][1]] - OPT["q0_lead"]
                wdue.append((d, g)); d -= 6
            seq = [g for _, g in sorted(due + wdue[::-1], key=lambda t: t[0])]
        if ps: seq += self.touch(aTO, sOST, LY.OB[ps], CQ + 1)
        seq += self.wgs("q", ps)
        seq += [(step0[2 + k // 2], g) for k, g in enumerate(wo)]
        left = sl.pace(seq, 0, (OPT["q_every"] if ps else OPT["q0_every"]) / 10)
        A0, A1, AH = RR, RR + 4, RR + 8
        st = [[("wvm", "st")]]
        for r_ in (A0, A1, AH):
            st.append([("i", "v_add_f32 v%d, v%d, v%d" % (r_, r_, r_ + 2))])
            st.append([("i", "v_add_f32 v%d, v%d, v%d" % (r_ + 1, r_ + 1, r_ + 3))])
        for o in (0, 1): st.append([("i", "v_mov_b32 v%d, v%d" % (AH + 2 + o, AH + o))])
        for o in (0, 1): st.append([("i", "v_permlane32_swap_b32 v%d, v%d" % (A0 + o, A1 + o))])
        for o in (0, 1): st.append([("i", "v_permlane32_swap_b32 v%d, v%d" % (AH + o, AH + 2 + o))])
        for o in (0, 1): st.append([("i", "v_add_f32 v%d, v%d, v%d" % (A0 + o, A0 + o, A1 + o))])
        for o in (0, 1): st.append([("i", "v_add_f32 v%d, v%d, v%d" % (AH + o, AH + o, AH + 2 + o))])
        for o in (0, 1): st.append([("i", "v_permlane16_swap_b32 v%d, v%d" % (A0 + o, AH + o))])
        for o in (0, 1): st.append([("i", "v_add_f32 v%d, v%d, v%d" % (A0 + o, A0 + o, AH + o))])
        st += [[op] for op in self.ln_from_sums(A0, A0 + 1, A0 + 2)]
        st.append([("i", "v_cvt_pk_bf16_f32 v%d, -v%d, -v%d" % (A0, A0, A0))])
        st.append([("i", "v_add_u32 v%d, %s, v%d" % (HF, sTAB, vFL))])
        st.append([("i", "v_and_or_b32 v30, v%d, 63, %s" % (vFL, sTAB))])
        st.append([("i", "v_and_or_b32 v31, v0, 48, %s" % sTAB)])
        st.append([("ds", "ds_write2st64_b32 v%d, v%d, v%d offset0:0 offset1:1" % (HF, A0 + 1, A0))])
        row = {0: 0, 1: 2, 2: 1}
        for b in range(3):
            o = 64 + row[b] * 16
            st.append([("ds", "ds_read2_b32 %s, v30 offset0:%d offset1:%d" % (vr(NM + 2 * b, 2), o, o), ("nm", b))])
        st.append([("ds", "ds_read2_b32 %s, v30 offset0:0 offset1:32" % vr(RL, 2))])
        for b in range(3):
            st.append([("ds", "ds_read_b128 %s, v31 offset:%d" % (vr(RR + 4 * b, 4), row[b] * 64), ("tab", b))])
        sl.spread(st, step0[H0], step0[14])
        Y = X + 72
        BC, BP, BP0, MC, ONES, KW = Y, Y + 4, Y + 8, Y + 12, Y + 14, Y + 16
        sl.put("v", step0[16], [("wds", ("tab", 2)), ("i", "v_mul_f32 v%d, 0x3eb8aa3b, v%d\nv_mul_f32 v%d, 0x3eb8aa3b, v%d" % (CQ, RL, CQ + 1, RL + 1))])
        cst = [[("i", self.getc(Y + k, aBC + k))] for k in range(14)]
        cst += [[("i", "v_mov_b32 v%d, %s" % (ONES + k, sONE))] for k in range(2)]
        cst += [[("i", self.getc(KW, aHWR))], [("i", self.getc(KW + 3, aHWS))], [("i", "s_add_u32 %s, %s, %d" % (sT2, sLW2, L_KV))],
                [("i", "v_add_u32 v%d, v%d, v%d" % (KW + 1, KW, KW + 3))], [("i", "v_add_u32 v%d, %s, v%d" % (KW + 4, sT2, vL16))],
                [("i", "v_add_u32 v%d, v%d, v%d" % (KW + 2, KW + 1, KW + 3))], [("i", "v_add_u32 v%d, v%d, v%d" % (KW + 3, KW + 2, KW + 3))]]
        sl.spread(cst, step0[14], sl.n() - 2, "c")
        self.lite(sl, "q", [step0[s] for s in (0, 2, 4, 6, 8, 10, 12, 14)])
        self.report("qkv%d" % ps, sl.emit(a))
        self.stamp()
        Z = X + 96
        Qp = lambda b, h: Z + 4 * h + 2 * b
        Kp = lambda b, h: Z + 8 + 6 * h + 2 * (b + 1)
        Vp = lambda b, h: Z + 20 + 6 * h + 2 * (b + 1)
        HP = NM
        ar_ = lambda blk, b: ACC + 8 * blk + 4 * b
        body = []
        e = lambda t: body.extend(("i", x) for x in t.split("\n"))
        def pack(dst, src): e("v_cvt_pk_bf16_f32 v%d, v%d, v%d\nv_cvt_pk_bf16_f32 v%d, v%d, v%d" % (dst, src, src + 1, dst + 1, src + 2, src + 3))
        def scale_l(src, b):
            for k in range(2): e("v_pk_mul_f32 %s, %s, %s op_sel:[0,%d] op_sel_hi:[1,%d]" % (vr(src + 2 * k, 2), vr(src + 2 * k, 2), vr(RL, 2), b, b))
        def scale_r(src, r0):
            for k in range(2): e("v_pk_mul_f32 %s, %s, %s" % (vr(src + 2 * k, 2), vr(src + 2 * k, 2), vr(r0 + 2 * k, 2)))
        for b in range(2):
            for h in range(2): pack(Qp(b, h), ar_(h, b))
        scale_r(ar_(6, 0), RR + 8)
        for h in range(2): scale_l(ar_(2 + h, 1), 1)
        pack(HP, ar_(6, 0))
        for h in range(2): pack(Kp(1, h), ar_(2 + h, 1))
        body.append(("ds", "ds_write_b16 v%d, v%d" % (KW, HP)))
        body.append(("ds", "ds_write_b16_d16_hi v%d, v%d" % (KW + 1, HP)))
        body.append(("ds", "ds_write_b16 v%d, v%d" % (KW + 2, HP + 1)))
        body.append(("ds", "ds_write_b16_d16_hi v%d, v%d" % (KW + 3, HP + 1)))
        for h in range(2): scale_r(ar_(4 + h, 1), RR + 4)
        for h in range(2): body.append(("ds", "ds_write_b64 v%d, %s offset:%d" % (KW + 4, vr(Kp(1, h), 2), 2048 + 8 * h)))
        for h in range(2): pack(Vp(1, h), ar_(4 + h, 1))
        for h in range(2): body.append(("ds", "ds_write_b64 v%d, %s offset:%d" % (KW + 4, vr(Vp(1, h), 2), 3072 + 8 * h)))
        for h in range(2): scale_l(ar_(2 + h, 0), 0)
        for h in range(2): scale_r(ar_(4 + h, 0), RR)
        for h in range(2): pack(Kp(0, h), ar_(2 + h, 0))
        body.append(("dsdrain",)); e("s_barrier")
        nbar = len(body)
        for h in range(2): body.append(("ds", "ds_read_b64 %s, v%d offset:%d" % (vr(Kp(-1, h), 2), KW + 4, 8 * h), ("kp", h)))
        for h in range(2): body.append(("ds", "ds_read_b64 %s, v%d offset:%d" % (vr(Vp(-1, h), 2), KW + 4, 1024 + 8 * h), ("vp", h)))
        units = [(1, 0), (1, 1), (0, 0), (0, 1)]
        SC = lambda u: F + 8 * u
        SP = lambda u: F + 8 * u + 4
        smf = lambda d, kb, u, bias: "v_mfma_f32_16x16x16_bf16 %s, %s, %s, %s" % (vr(d, 4), vr(Kp(kb, units[u][1]), 2), vr(Qp(*units[u]), 2), vr(bias, 4))
        M = [ACC + u for u in range(4)]
        def merge(u):
            for r in range(4): e("v_max_f32 v%d, v%d, v%d" % (SC(u) + r, SC(u) + r, SP(u) + r))
            e("v_max3_f32 v%d, v%d, v%d, v%d\nv_max_f32 v%d, v%d, v%d" % (M[u], SC(u), SC(u) + 1, SC(u) + 2, M[u], M[u], SC(u) + 3))
        e(smf(SC(0), 1, 0, BC)); pack(Vp(0, 0), ar_(4, 0))
        e(smf(SP(0), 0, 0, BP)); pack(Vp(0, 1), ar_(5, 0))
        e(smf(SC(1), 1, 1, BC)); e(smf(SP(1), 0, 1, BP)); e(smf(SC(2), 0, 2, BC)); e(smf(SC(3), 0, 3, BC))
        body.append(("wds", ("kp", 1)))
        e(smf(SP(2), -1, 2, BP0)); e(smf(SP(3), -1, 3, BP0))
        for u in range(4): merge(u)
        e("v_permlane32_swap_b32 v%d, v%d\nv_max_f32 v%d, v%d, v%d" % (M[0], M[1], M[0], M[0], M[1]))
        e("v_permlane32_swap_b32 v%d, v%d\nv_max_f32 v%d, v%d, v%d" % (M[2], M[3], M[2], M[2], M[3]))
        e("v_permlane16_swap_b32 v%d, v%d\nv_max_f32 v%d, v%d, v%d\nv_max_f32 v%d, v%d, v%d" % (M[0], M[2], M[1], M[0], M[2], M[2], M[0], M[2]))
        e("v_permlane16_swap_b32 v%d, v%d" % (M[1], M[2]))
        e("v_mul_f32 v%d, v%d, v%d\nv_mul_f32 v%d, v%d, v%d" % (M[0], M[1], CQ + 1, M[1], M[1], CQ + 1))
        e("v_mul_f32 v%d, v%d, v%d\nv_mul_f32 v%d, v%d, v%d" % (M[3], M[2], CQ, M[2], M[2], CQ))
        e("v_permlane32_swap_b32 v%d, v%d\nv_permlane32_swap_b32 v%d, v%d" % (M[0], M[1], M[2], M[3]))
        for u, (b, h) in enumerate(units):
            for k in range(2):
                e("v_pk_fma_f32 %s, %s, %s, %s op_sel:[0,%d,%d] op_sel_hi:[1,%d,%d] neg_lo:[0,0,1] neg_hi:[0,0,1]" %
                  (vr(SC(u) + 2 * k, 2), vr(SC(u) + 2 * k, 2), vr(CQ, 2), vr(ACC + 2 * (u // 2), 2), b, u % 2, b, u % 2))
        PM = lambda u: ACC + 4 + 2 * u
        PS = lambda u: ACC + 12 + 4 * u
        OP = lambda b: ACC + 28 + 4 * b
        def fin(u):
            b, h = units[u]
            e("v_rcp_f32 v%d, v%d" % (SP(u), SP(u)))
            for r in range(4): e("v_mul_f32 v%d, v%d, v%d" % (SC(u) + r, SC(u) + r, SP(u)))
            pack(OP(b) + 2 * h, SC(u))
            if h == 1:
                body.append(("vm", "buffer_store_dwordx4 %s, v%d, %s, %s offen offset:%d" % (vr(OP(b), 4), vQ, WS, sT0, b * 256), "o" if b == 0 else None))
        e("s_add_u32 %s, %s, %d" % (sT0, sOST, LY.OB[ps]))
        for u, (b, h) in enumerate(units):
            for r in range(4): e("v_exp_f32 v%d, v%d" % (SC(u) + r, SC(u) + r))
            if u == 2: body.append(("wds", ("vp", 1)))
            pack(PM(u), SC(u))
            for k in range(2):
                e("v_bfi_b32 v%d, v%d, 0, v%d\nv_and_b32 v%d, v%d, v%d" % (PS(u) + k, MC + k, PM(u) + k, PS(u) + 2 + k, MC + k, PM(u) + k))
            e("v_mfma_f32_16x16x16_bf16 %s, %s, %s, 0" % (vr(SP(u), 4), vr(ONES, 2), vr(PM(u), 2)))
            if u >= 1:
                e("v_mfma_f32_16x16x32_bf16 %s, %s, %s, 0" % (vr(SC(u - 1), 4), vr(Vp(units[u - 1][0] - 1, units[u - 1][1]), 4), vr(PS(u - 1), 4)))
        e("v_mfma_f32_16x16x32_bf16 %s, %s, %s, 0" % (vr(SC(3), 4), vr(Vp(-1, 1), 4), vr(PS(3), 4)))
        for u in range(4): fin(u)
        att = self.wgs("att", ps)
        if ps == 0:
            l_fb, g_fb = self.late_check("buffer_load_dword v%d, v%d, %s, 0 offen sc1" % (HF, HX, WS), HF, "exec", "fb")
            left = [[("i", self.getc(HX, aFB))] + l_fb] + left
            att = [[("i", op[1]) if op[0] == "atom" else op for op in g_fb]] + att
        left = self.weave(body[:nbar], left, 0, OPT["a_every"])
        left = self.weave(body[nbar:], left + att, 4, OPT["a_every"])
        print("  attention: %d groups left for the hand-off" % len(left))
        self.stamp()
        self.signal(4 * ps + 1, "o")
        a.run_all(self.flat(left + self.wgs("h1", ps)))
        self.stamp()

    def ksplit(self, kind, ps):
        a = self.a
        dn = kind == "dn"
        nk = 14 if dn else 4
        final = dn and ps == 1
        xo = 2 * ps + (2 if dn else 1)
        self.poll(4 * ps + (3 if dn else 1), sMB)
        self.stamp()
        bases, boff = (sHLD, LY.HB[ps]) if dn else (sOLD, LY.OB[ps])
        order = [(i, s) for i in range(4) for s in range(nk)]
        areg = lambda k: vr(X + (72 + 4 * (k % 16)) % 128, 4)
        ld = self.reg_loads([areg(k) for k in range(4 * nk)], [bases[i] for i, s in order], [boff + s * 2048 for i, s in order], sTA, vQ, "act")
        UP = OPT["k_up"]
        a.run_all(self.flat(ld[:UP]))
        XW, XR, R, P, U = 16, 19, 20, (ACC + 32, ACC + 48, F), F + 16
        vb, io = (vL16b, L_SCR_DN - 65536) if dn else (vL16, L_SCR_WO)
        for i in range(3): a.I("v_add_u32 v%d, %s, v%d" % (XW + i, sXW[i], vb))
        a.I("v_add_u32 v%d, %s, v%d" % (XR, sXR, vb))
        if dn:
            a.I("s_lshl_b32 %s, %s, 2\ns_add_u32 %s, %s, %s\ns_lshl_b32 %s, %s, 6\ns_add_u32 %s, %s, %d\nv_and_or_b32 v%d, v%d, 63, %s" %
                (sT0, sR, sT0, sT0, sW, sT0, sT0, sT0, sT0, L_RS, R, vFL, sT0))
            a.ds("ds_read_b32 v%d, v%d" % (R, R), "rs")
        for k in range(8):
            a.I("v_lshlrev_b32 v%d, 16, v%d\nv_and_b32 v%d, 0xffff0000, v%d" % (U + 2 * k, XRES + k, U + 2 * k + 1, XRES + k))
        sl = Slots()
        accr = lambda i, cb: ACC + 16 * (i % 2) + 4 * cb
        for k, (i, s) in enumerate(order):
            for cb in range(4):
                w = ar(16 * s + 4 * cb, 4) if dn else vr(X + 8 + 16 * s + 4 * cb, 4)
                d = vr(accr(i, cb), 4)
                n_ = sl.add("v_mfma_f32_16x16x32_bf16 %s, %s, %s, %s" % (d, w, areg(k), "0" if s == 0 else d), [("wvm", ("act", k))] if cb == 0 else [])
            if k + UP < 4 * nk:
                sl.put("m", n_ - 3, ld[k + UP])
        blk = 4 * nk
        writes = lambda i: [[("ds", "ds_write_b128 v%d, %s offset:%d" % (XW + i, vr(accr(i, cb), 4), io + cb * 1024))] for cb in range(4)] + [[("mark", ("w", i))]]
        reads = lambda i: [[("ds", "ds_read_b128 %s, v%d offset:%d" % (vr(P[i] + 4 * cb, 4), XR, io + i * 4096 + cb * 1024), ("r", i, cb))] for cb in range(4)]
        add = lambda d, s_: [[("i", "v_add_f32 v%d, v%d, v%d" % (d + e_, d + e_, s_ + e_))] for e_ in range(16)]
        bar = [[("dsdrain",), ("i", "s_barrier")]]
        for i in range(2): sl.after((i + 2) * blk - 1, ("need", ("w", i)))
        tail = []
        if dn:
            for i in range(3): sl.spread(writes(i), (i + 1) * blk + 1, (i + 1) * blk + 17)
            seq = bar + reads(0) + reads(1) + reads(2) + [[("wds", ("r", 1, 3))]] + add(P[0], P[1]) + [[("wds", ("r", 2, 3))]] + add(P[0], P[2])
            seq += [[("i", "v_fma_f32 v%d, v%d, v%d, v%d" % (U + e_, P[0] + e_, R, U + e_))] for e_ in range(16)]
            sl.spread(seq, 3 * blk + 19, 4 * blk - 3)
            pf = [] if final else [g for i in range(7) if i not in self.wq_late(1) for g in self.wq_chunk(i)]
        else:
            for i in range(2): sl.spread(writes(i), (i + 1) * blk + 1, (i + 2) * blk - 2)
            sl.spread(bar + reads(0) + reads(1) + writes(2), 3 * blk, 4 * blk - 2)
            pf = self.touch(aTH, sHST, LY.HB[ps], R) + self.wgs("wo", ps)
        pf = sl.pace(pf, 4 * blk - 4 * UP + 2, 4.4)
        self.lite(sl, kind, [(k * 4 * blk) // 8 for k in range(8)])
        self.report(kind + str(ps), sl.emit(a))
        self.stamp()
        pk = lambda op, d, x, y, z="": a.I("%s %s, %s, %s%s" % (op, vr(d, 2), vr(x, 2), vr(y, 2), z))
        A = accr(3, 0)
        if dn:
            for k in range(8): pk("v_pk_fma_f32", A + 2 * k, A + 2 * k, R, ", %s op_sel_hi:[1,0,1]" % vr(U + 2 * k, 2))
        else:
            a.ds_wait(("r", 1, 3))
            for k in range(4): pk("v_pk_add_f32", U + 2 * k, U + 2 * k, P[0] + 2 * k)
            a.run_all(self.flat(bar + reads(2)))
            for k in range(4, 8): pk("v_pk_add_f32", U + 2 * k, U + 2 * k, P[0] + 2 * k)
            for k in range(8): pk("v_pk_add_f32", A + 2 * k, A + 2 * k, P[1] + 2 * k)
            for k in range(8): pk("v_pk_add_f32", A + 2 * k, A + 2 * k, U + 2 * k)
            for k in range(8):
                a.ds_wait(("r", 2, k // 2))
                pk("v_pk_add_f32", A + 2 * k, A + 2 * k, P[2] + 2 * k)
        for k in range(8): a.I("v_cvt_pk_bf16_f32 v%d, v%d, v%d" % (XRES + k, A + 2 * k, A + 2 * k + 1))
        if final:
            a.I(self.getc(XW, aROW))
            for e_ in range(2): a.vm("buffer_store_dwordx4 %s, v%d, %s, 0 offen offset:%d" % (vr(XRES + 4 * e_, 4), XW, OUT, e_ * 64))
            self.stamp()
            return
        self.publish(xo, 1 if dn else None)
        self.stamp()
        n = OPT["dn_pre"] if dn else 0
        a.run_all(self.flat(pf[:n]))
        self.signal(4 if dn else 4 * ps + 2, "pub")
        if dn: self.halo_flag(1)
        a.run_all(self.flat(pf[n:] + ([] if dn else self.wgs("h2", ps))))
        self.stamp()

    def gu(self, ps):
        a = self.a
        xi = 2 * ps + 1
        self.poll(4 * ps + 2, sMA)
        self.stamp()
        SS, NM, HPK, CSA, NR = 16, 24, 28, 21, 8
        xl = self.reg_loads([vr(X + 4 * s, 4) for s in range(32)], [sXLD] * 32, [LY.XB[xi] + s * 1024 for s in range(32)], sTA, vL16, "x")
        UP = OPT["g_up"]
        a.run_all(self.flat(xl[:UP]))
        a.I("s_barrier")
        a.I(self.getc(NM, aSG) + "\ns_add_u32 %s, %s, %d" % (sT0, sSLD, LY.SB[xi]))
        g_st = [[("vm", "buffer_load_dwordx4 %s, v%d, %s, %s offen sc1" % (vr(SS, 4), NM, WS, sT0))],
                [("vm", "buffer_load_dwordx4 %s, v%d, %s, %s offen offset:16 sc1" % (vr(SS + 4, 4), NM, WS, sT0), "st")]]
        early = self.wg_early(ps)
        order = [(bl, s) for s in range(33) for bl in range(3)] + [(bl, s) for bl in range(3, 7) for s in range(33)]
        accb = {0: 0, 1: 1, 2: 2, 3: 3, 4: 0, 5: 1, 6: 2}
        sl = Slots()
        end = {}
        for k, (bl, s) in enumerate(order):
            d = vr(ACC + 16 * accb[bl], 16)
            pre = [("wds", ("f", k))]
            if bl == 0 and s < 32: pre.append(("wvm", ("x", s)))
            x = vr(X + 4 * s, 4) if s < 32 else vr(NM, 4)
            sl.add("v_mfma_f32_32x32x16_bf16 %s, %s, %s, %s" % (d, vr(F + 4 * (k % NR), 4), x, "0" if s == 0 else d), pre)
            end[bl] = k
        LA = 6
        def rd(k):
            off = ((k // 16 + 5) % 10) * 16384 + (k % 16) * 1024
            d = F + 4 * (k % NR)
            if order[k][1] < 32:
                return [("ds", "ds_read_b128 %s, %s" % (vr(d, 4), ldsaddr(off)), ("f", k))]
            return [("need", "csg"), ("i", "v_add_u32 v%d, %d, v%d" % (CSA, off, vFL)),
                    ("ds", "ds_read2st64_b32 %s, v%d offset0:0 offset1:1" % (vr(d, 2), CSA)),
                    ("ds", "ds_read2st64_b32 %s, v%d offset0:2 offset1:3" % (vr(d + 2, 2), CSA), ("f", k))]
        assert 0 in early and not set(early) & {7, 8, 9} and len(set(early)) == len(early)
        assert not set(self.digits("wg_q%d" % ps)) - {3, 4} and 2 not in early[:len(early) - len(self.digits("wg_h2%d" % ps))]
        for k in range(LA): a.run_all(rd(k))
        barpos = {}
        for k in range(LA, len(order)):
            if k % 16 == 0:
                ch = k // 16
                if ch not in early or 2 <= ch <= 6:
                    if ch not in early: sl.pre[k - LA + 1].append(("wvm", ("wg", ch)))
                    sl.after(k - LA, *(([("wvm", ("wg", ch))] if ch not in early else []) + [("i", "s_barrier")]))
                    barpos[ch] = k - LA
            sl.after(k - LA, *rd(k))
        wl = [(barpos[ch - 8] + 2 if ch >= 10 else 0, g) for ch in range(15) if ch not in early for g in self.wg_chunk(ch)]
        wd = self.reg_loads([ar(4 * k, 4) for k in range(56)], [sWD] * 56, [k * 1024 for k in range(56)], sTD, vL16, "wd") if ps == 0 else []
        xs = [(3 * (UP + n_), g) for n_, g in enumerate(xl[UP:])]
        xs[14 - UP:14 - UP] = [(3 * 14, g) for g in g_st]
        wdue = [barpos[ch] - 4 * (len(self.wg_chunk(ch)) - 1 - n_) for ch in range(15) if ch not in early for n_ in range(len(self.wg_chunk(ch)))]
        P = lambda key: OPT["g_%s%d" % (key, ps)] / 10
        pos, fab, ix, iw, idd, seq = 0.0, 0.0, 0, 0, 0, []
        last = end[6] - OPT["g_tail"]
        while ix < len(xs) or iw < len(wl) or (idd < len(wd) and pos <= last):
            xu = ix < len(xs) and xs[ix][0] - pos <= P("xlead")
            wok = iw < len(wl) and wl[iw][0] <= pos
            wu = wok and wdue[iw] - pos <= P("wmin")
            free = fab <= pos + P("slack")
            if xu and (not wu or xs[ix][0] <= wdue[iw] - P("wmin") + P("xlead")): pick = "x"
            elif wu: pick = "w"
            elif free and wok and (idd >= len(wd) or wdue[iw] - pos <= P("wmax")): pick = "w"
            elif free and idd < len(wd) and pos <= last: pick = "d"
            elif ix < len(xs): pick = "x"
            else:
                pos = int(pos) + 1; continue
            if pick == "x": g = xs[ix][1]; ix += 1
            elif pick == "w": g = wl[iw][1]; iw += 1; fab = max(fab, pos) + P("wcost")
            else: g = wd[idd]; idd += 1; fab = max(fab, pos) + P("dcost")
            behind = (ix < len(xs) and xs[ix][0] - pos < 0.7 * P("xlead")) or (iw < len(wl) and wdue[iw] - pos < 0.7 * P("wmin"))
            seq.append((pos, g)); pos += 1.0 if behind else P("every")
        assert not sl.pace(seq, 0, 0)
        left = wd[idd:]
        st = [[("wvm", "st")]]
        for o in (0, 1): st.append([("i", "v_add_f32 v%d, v%d, v%d" % (SS + o, SS + o, SS + 2 + o))])
        for o in (0, 1): st.append([("i", "v_add_f32 v%d, v%d, v%d" % (SS + 4 + o, SS + 4 + o, SS + 6 + o))])
        for o in (0, 1): st.append([("i", "v_add_f32 v%d, v%d, v%d" % (SS + o, SS + o, SS + 4 + o))])
        for o in (0, 1): st.append([("i", "v_mov_b32 v%d, v%d" % (SS + 2 + o, SS + o))])
        st.append([("mark", "csg")])
        for o in (0, 1): st.append([("i", "v_permlane32_swap_b32 v%d, v%d" % (SS + o, SS + 2 + o))])
        for o in (0, 1): st.append([("i", "v_add_f32 v%d, v%d, v%d" % (SS + o, SS + o, SS + 2 + o))])
        st += [[op] for op in self.ln_from_sums(SS, SS + 1, SS + 2)]
        st += [[("i", "v_cvt_pk_bf16_f32 v%d, -v%d, -v%d" % (NM + k, SS, SS))] for k in range(4)] + [[("mark", "nm")]]
        st += [[("i", "v_mul_f32 v%d, v%d, v%d" % (SS + 1, SS + 1, SS + 1))],
               [("i", "s_lshr_b32 %s, %s, 3\ns_add_u32 %s, %s, %d" % (sT0, sLW, sT0, sT0, L_RS))],
               [("i", "v_and_b32 v%d, 127, v%d" % (SS, vFL))], [("i", "v_add_u32 v%d, %s, v%d" % (SS, sT0, SS))]]
        sl.after(94, ("need", "nm"))
        sl.spread(st, 56, 90)
        def epi(bl):
            b = ACC + 16 * accb[bl]
            g = []
            for e_ in range(8):
                ga = b + (e_ // 4) * 8 + e_ % 4
                g.append([("i", "v_max_f32 v%d, 0, v%d" % (ga, ga))])
            for e_ in range(8):
                ga = b + (e_ // 4) * 8 + e_ % 4
                g.append([("i", "v_mul_f32 v%d, v%d, v%d" % (ga, ga, ga + 4))])
            g += [[("i", "v_cvt_pk_bf16_f32 v%d, v%d, v%d" % (HPK + k, b + (k // 2) * 8 + (k % 2) * 2, b + (k // 2) * 8 + (k % 2) * 2 + 1))] for k in range(4)]
            if bl < 3: g.append([("mark", ("epi", bl))])
            g.append([("i", "s_add_u32 %s, %s, %d" % (sTS, sHST, LY.HB[ps] + bl * 1024)),
                      ("vm", "buffer_store_dwordx4 %s, v%d, %s, %s offen" % (vr(HPK, 4), vL16, WS, sTS))])
            return g
        for bl in range(3): sl.after(end[bl + 3], ("need", ("epi", bl)))
        sl.spread(epi(0) + epi(1), end[2] + 3, end[3] - 1)
        sl.spread(epi(2) + epi(3), end[3] + 3, end[4] - 1)
        sl.spread(epi(4), end[4] + 3, end[5] - 8)
        sl.spread(epi(5), end[5] + 3, end[6] - 8)
        sl.put("v", barpos[13] + 1, [("ds", "ds_write_b32 v%d, v%d" % (SS, SS + 1))])
        if ps == 0:
            sl.put("v", end[6] - 4, [("i", "s_or_b32 %s, s2, %s" % (sT0, sW)), ("atom", "s_cmp_eq_u32 %s, 0\ns_cselect_b32 %s, %d, 0x%x" % (sT0, sT0, LY.EPOCH, OOB)),
                                     ("i", "v_mov_b32 v%d, %s" % (SS + 2, sNONCE)),
                                     ("vm", "buffer_store_dword v%d, v%d, %s, %s offen" % (SS + 2, vF1, WS, sT0))])
        self.lite(sl, "g", [0, 24, 48, 72, 98, 131, 164, 197])
        self.report("gu%d" % ps, sl.emit(a))
        a.run_all(self.flat(epi(6)))
        self.stamp()
        self.signal(4 * ps + 3)
        print("  gu: %d loads left for the hand-off" % len(left))
        a.run_all(self.flat(left))
        a.ds_drain()
        a.I("s_barrier")
        self.stamp()

    def build(self):
        a = self.a
        self.startup()
        for ps in range(2):
            self.qkv(ps); self.ksplit("wo", ps); self.gu(ps); self.ksplit("dn", ps)
        if OPT["stamps"]:
            a.I("s_waitcnt vmcnt(0)\ns_memrealtime s[6:7]\ns_waitcnt lgkmcnt(0)\nv_writelane_b32 v%d, s6, 63" % vSTAMP)
            a.I("s_lshl_b32 %s, s2, 10\ns_lshl_b32 %s, %s, 8\ns_add_u32 %s, %s, %s\ns_add_u32 %s, %s, %d" % (sT0, sT1, sW, sT0, sT0, sT1, sT0, sT0, LY.STAMP))
            a.I("buffer_store_dword v%d, v%d, %s, %s offen" % (vSTAMP, vFL, WS, sT0))
        a.I("L_main_done:\ns_endpgm")
        for c in self.cold: a.I(c)
        a.I("L_code_end:")
        return a.lines

def main():
    ml, n2 = hazard_pass(Main().build())
    k = NAME + "_kernel"
    out = ["; Generated by gen/gen.py: one persistent kernel (weight re-layout, then four layers with flag hand-offs). " + " ".join(sys.argv[2:]),
           "; @launch grid=(256,1,1) block=(256,1,1) lds=163840",
           '.amdgcn_target "amdgcn-amd-amdhsa--gfx950"', ".text",
           ".globl %s" % k, ".p2align 8", ".type %s,@function" % k]
    out += [l if l.endswith(":") else "    " + l for l in ml]
    out += ['.section .rodata,"a"', ".p2align 6", """.amdhsa_kernel %s
  .amdhsa_next_free_vgpr 512
  .amdhsa_next_free_sgpr 102
  .amdhsa_accum_offset 256
  .amdhsa_group_segment_fixed_size 0
  .amdhsa_kernarg_size 80
  .amdhsa_user_sgpr_count 2
  .amdhsa_user_sgpr_kernarg_segment_ptr 1
  .amdhsa_system_sgpr_workgroup_id_x 1
  .amdhsa_float_denorm_mode_32 3
.end_amdhsa_kernel""" % k]
    open(sys.argv[1], "w").write("\n".join(out) + "\n")
    print("instructions: %d ; wait states added: %d" % (len(ml), n2))

main()
```

```python
import sys
from dsl import Asm, Slots, hazard_pass
import layout as LY

NAME = "interleave_layers__sliding_local_dilated__glu_gated_reglu__prompt"
OPT = dict(stamps=0, lite="-", hitw=0,
           q_up=8, q_every=45, q_hf=6, q_chk=6, q_h0=9, a_every=14, k_up=10, g_up=8, g_tail=12,
           g_every0=22, g_xlead0=200, g_wmin0=260, g_wmax0=500, g_slack0=20, g_wcost0=44, g_dcost0=22,
           g_every1=22, g_xlead1=200, g_wmin1=260, g_wmax1=500, g_slack1=20, g_wcost1=44, g_dcost1=22,
           wq_late1="-", dn_pre=6, q0_up=4, q0_lead=10, q0_every=25,
           wg_q0="-", wg_att0="0", wg_h10="-", wg_wo0="1", wg_h20="2",
           wg_q1="34", wg_att1="0", wg_h11="-", wg_wo1="1", wg_h21="-",
           touch=1, diagpad=0)
for arg in sys.argv[2:]:
    k, v = arg.split("=")
    OPT[k] = v if isinstance(OPT[k], str) else int(v)

def vr(b, n): return "v[%d:%d]" % (b, b + n - 1)
def ar(b, n): return "a[%d:%d]" % (b, b + n - 1)
def magic(d): return (1 << 32) // d + 1
OOB = 0x40000000

WS, XIN, OUT = "s[8:11]", "s[12:15]", "s[16:19]"
sW, sJ, sR, sC, sG, sN, sNONCE, sSLOW = ("s%d" % i for i in range(20, 28))
sGB, sXLD, sXST, sOST, sXR, sHST, sSLD, sWQ, sWG, sWO, sWD, sLW = ("s%d" % i for i in range(28, 40))
sMA, sMB = "s[40:41]", "s[42:43]"
sFLG, sFLW, sHALO, sHFL, sTAB, sSST, sONE, sHDST, sHDFL, sP = ("s%d" % i for i in range(44, 54))
sMH = "s[54:55]"
sTA, sTW, sTD, sTS, sT0, sT1, sT2, sSPIN = ("s%d" % i for i in range(56, 64))
sOLD = ["s%d" % i for i in range(64, 68)]
sHLD = ["s%d" % i for i in range(68, 72)]
sXW = ["s%d" % i for i in range(72, 75)]
sFBO, sB0, sB1, sB2, sB3 = "s75", "s76", "s77", "s78", "s79"
SRC_A, SRC_G, SRC_U, SRC_D = 80, 84, 88, 92
sLW2, sLW4, sWQ4, sWG4 = "s96", "s97", "s98", "s99"
sST = 100
sHALO2 = sP
vL, vL16, vL16b, vL16c, vQ, vF1, vFL, vSTAMP = 0, 1, 2, 3, 4, 5, 6, 7
XRES = 8
X, ACC, F = 32, 160, 224
aROW, aST, aSQ, aSH, aSG, aHX, aHWR, aHWS, aHST, aHSS, aFB, aCSQ, aCSG, aTO, aTH = range(224, 239)
aBC, aBP, aBP0, aMC = 240, 244, 248, 252
L_HALO, L_RS, L_KV, L_TAB, L_FMT = 102400, 110592, 114688, 124928, 131072
L_SCR_WO, L_SCR_DN = 32768, 114688
NEG = "0xf149f2ca"

def ldsaddr(off):
    return "v%d offset:%d" % ((vL16, vL16b, vL16c)[off >> 16], off & 0xffff)

def isvm(g): return any(op[0] == "vm" for op in g)

class Main:
    def __init__(self):
        self.a = Asm()
        self.nstamp = 0
        self.cold = []
        self.nlite = 0

    def stamp(self, key=None):
        if not OPT["stamps"] or (key is not None and OPT["lite"] != key):
            return
        a = self.a
        a.I("s_memtime s[%d:%d]" % (sST, sST + 1))
        a.ds_drain(force=True)
        for k in range(self.nlite):
            a.I("v_writelane_b32 v%d, s%d, %d" % (vSTAMP, 80 + 2 * k, self.nstamp))
            self.nstamp += 1
        self.nlite = 0
        a.I("v_writelane_b32 v%d, s%d, %d" % (vSTAMP, sST, self.nstamp))
        self.nstamp += 1

    def lite(self, sl, key, slots):
        if OPT["lite"] != key:
            return
        for i in slots[:8]:
            sl.after(i, ("i", "s_memtime s[%d:%d]" % (80 + 2 * self.nlite, 81 + 2 * self.nlite)))
            self.nlite += 1

    def report(self, name, r):
        print("  %s: cycles over budget %d, ops left after the loop %d" % ((name,) + r))

    def getc(self, v, acc): return "v_accvgpr_read_b32 v%d, a%d" % (v, acc)
    def flat(self, groups): return [op for g in groups for op in g]
    def digits(self, key): return tuple(int(c, 16) for c in str(OPT[key]) if c != "-")
    def wgs(self, where, ps): return [g for i in self.digits("wg_%s%d" % (where, ps)) for g in self.wg_chunk(i)]
    def wg_early(self, ps): return sum((self.digits("wg_%s%d" % (w, ps)) for w in ("q", "att", "h1", "wo", "h2")), ())
    def wq_late(self, ps): return tuple(range(7)) if ps == 0 else self.digits("wq_late1")

    def srd(self, base, lo, hi, nbytes):
        self.a.I("s_mov_b32 s%d, %s\ns_and_b32 s%d, %s, 0xffff\ns_mov_b32 s%d, %s\ns_mov_b32 s%d, 0x20000" %
                 (base, lo, base + 1, hi, base + 2, nbytes, base + 3))

    def lin(self, dst, base, terms):
        first = True
        for reg, mul in terms:
            self.a.I("s_mul_i32 %s, %s, %d\ns_add_u32 %s, %s, %s" % (sT2, reg, mul, dst, base if first else dst, sT2))
            first = False

    def sdivmod(self, q, r, x, d):
        self.a.I("s_mul_hi_u32 %s, %s, 0x%x\ns_mul_i32 %s, %s, %d\ns_sub_u32 %s, %s, %s" % (q, x, magic(d), sT2, q, d, r, x, sT2))

    def hi_lo(self, dst, src, t):
        return ["v_cvt_pk_bf16_f32 v%d, v%d, v%d" % (dst, src, src), "v_lshlrev_b32 v%d, 16, v%d" % (t, dst),
                "v_sub_f32 v%d, v%d, v%d" % (t, src, t), "v_cvt_pk_bf16_f32 v%d, v%d, v%d" % (dst, src, t)]

    def weave(self, body, groups, first, every):
        k = 0
        for n_, op in enumerate(body):
            if n_ >= first and (n_ - first) % every == 0:
                while k < len(groups):
                    g = groups[k]; k += 1
                    self.a.run_all(g)
                    if isvm(g): break
            self.a.run(op)
        return groups[k:]

    def signal(self, h, wait=None):
        a = self.a
        slow, done = a.label("slow"), a.label("sig")
        a.I("s_add_u32 %s, %s, %d\nv_mov_b32 v30, %s\ns_cmp_lg_u32 %s, 0" % (sTS, sFLW, h * 4096, sNONCE, sSLOW))
        if wait is None: a.vm_drain()
        else: a.vm_wait(wait)
        a.I("s_cbranch_scc1 %s" % slow)
        a.vm("buffer_store_dword v30, v%d, %s, %s offen" % (vF1, WS, sTS))
        a.I("%s:" % done)
        self.cold.append("%s:\nbuffer_wbl2 sc1\ns_waitcnt vmcnt(0)\nbuffer_store_dword v30, v%d, %s, %s offen sc1\ns_branch %s" % (slow, vF1, WS, sTS, done))

    def spin(self, load, test):
        a = self.a
        loop = a.label("poll")
        a.I("s_mov_b32 %s, 0x40000\n%s:\n%s" % (sSPIN, loop, load))
        a.I("s_sub_u32 %s, %s, 1\ns_cbranch_scc1 L_main_done" % (sSPIN, sSPIN))
        a.vm_drain(force=True)
        a.I("%s\ns_cbranch_scc1 %s" % (test, loop))

    def poll(self, h, mask):
        a = self.a
        a.state.pop(sTA, None)
        a.forget()
        a.I("s_add_u32 %s, %s, %d" % (sTA, sFLG, h * 4096))
        self.spin("buffer_load_dword v30, v%d, %s, %s offen sc1" % (vFL, WS, sTA),
                  "v_cmp_ne_u32 vcc, %s, v30\ns_and_b64 vcc, vcc, %s" % (sNONCE, mask))
        acq, ok = a.label("acq"), a.label("ok")
        a.I("s_cmp_lg_u32 %s, 0\ns_cbranch_scc1 %s\n%s:" % (sSLOW, acq, ok))
        self.cold.append("%s:\nbuffer_inv sc1\ns_waitcnt vmcnt(0)\ns_branch %s" % (acq, ok))

    def late_check(self, load, reg, mask, tag):
        a = self.a
        spin, back = a.label("lspin"), a.label("lback")
        cmp_, and_ = "v_cmp_ne_u32 vcc, %s, v%d" % (sNONCE, reg), "s_and_b64 vcc, vcc, %s" % mask
        self.cold.append("%s:\ns_mov_b32 %s, 0x40000\n%s_l:\n%s\ns_sub_u32 %s, %s, 1\ns_cbranch_scc1 L_main_done\ns_waitcnt vmcnt(0)\n%s\n%s\ns_cbranch_scc1 %s_l\ns_branch %s"
                         % (spin, sSPIN, spin, load, sSPIN, sSPIN, cmp_, and_, spin, back))
        return [("vm", load, tag)], [("wvm", tag), ("i", cmp_), ("atom", and_ + "\ns_cbranch_scc1 %s\n%s:" % (spin, back))]

    def dma_chunk(self, sbase, goff, loff, n, tag, sc=""):
        sw = {1: sLW, 2: sLW2, 4: sLW4}[n]
        setup = [("set", sTW, "s_add_u32 %s, %s, %d" % (sTW, sbase, goff)), ("set", "m0", "s_add_u32 m0, %s, %d" % (sw, loff))]
        return [setup + [("vm", "buffer_load_dwordx4 v%d, %s, %s offen offset:%d%s lds" % (vL16, WS, sTW, k * 1024, sc), tag if k == n - 1 else None)]
                for k in range(n)]

    def wq_chunk(self, i): return self.dma_chunk(sWQ4 if i < 6 else sWQ, i * 16384, i * 16384, 4 if i < 6 else 1, ("wq", i), " sc1")
    def wg_chunk(self, i): return self.dma_chunk(sWG4 if i < 14 else sWG, i * 16384, ((i + 5) % 10) * 16384, 4 if i < 14 else 2, ("wg", i), " sc1")

    def reg_loads(self, dsts, bases, offs, stmp, vaddr, tagbase):
        ops, cur = [], None
        for k, (d, sb, off) in enumerate(zip(dsts, bases, offs)):
            if cur is None or cur[0] != sb or not (0 <= off - cur[1] < 4096):
                cur = (sb, off)
            ops.append([("set", stmp, "s_add_u32 %s, %s, %d" % (stmp, sb, cur[1])),
                        ("vm", "buffer_load_dwordx4 %s, v%d, %s, %s offen offset:%d sc1" % (d, vaddr, WS, stmp, off - cur[1]), (tagbase, k))])
        return ops

    def touch(self, acc, sbase, off, tmp):
        if not OPT["touch"]: return []
        return [[("i", self.getc(tmp, acc) + "\ns_add_u32 %s, %s, %d" % (sTS, sbase, off)),
                 ("vm", "buffer_load_dword a255, v%d, %s, %s offen sc1" % (tmp, WS, sTS))]]

    def ln_from_sums(self, s1, s2, t):
        return [("i", x) for x in (
            "v_mul_f32 v%d, 0x3b000000, v%d" % (s1, s1),
            "v_mul_f32 v%d, v%d, v%d" % (t, s1, s1),
            "v_mul_f32 v%d, 0x3b000000, v%d" % (s2, s2),
            "v_sub_f32 v%d, v%d, v%d" % (s2, s2, t),
            "v_max_f32 v%d, 0, v%d" % (s2, s2),
            "v_cvt_pk_bf16_f32 v%d, v%d, v%d" % (s2, s2, s2),
            "v_lshlrev_b32 v%d, 16, v%d" % (s2, s2),
            "v_add_f32 v%d, 0x3727c5ac, v%d" % (s2, s2),
            "v_cvt_pk_bf16_f32 v%d, v%d, v%d" % (s2, s2, s2),
            "v_lshlrev_b32 v%d, 16, v%d" % (s2, s2),
            "v_sqrt_f32 v%d, v%d" % (s2, s2),
            "v_cvt_pk_bf16_f32 v%d, v%d, v%d" % (s2, s2, s2),
            "v_lshlrev_b32 v%d, 16, v%d" % (s2, s2),
            "v_rcp_f32 v%d, v%d" % (s2, s2))]

    def publish(self, xi, halo_pass):
        a = self.a
        S1, S2, S3, S4, AD = 26, 27, 28, 29, 25
        a.I("s_add_u32 %s, %s, %d" % (sTS, sXST, LY.XB[xi]))
        for e in range(2):
            a.vm("buffer_store_dwordx4 %s, v%d, %s, %s offen offset:%d" % (vr(XRES + 4 * e, 4), vQ, WS, sTS, e * 2048))
        for k in range(4):
            for d, p, o in ((S1, XRES + k, sONE), (S2, XRES + k, None), (S3, XRES + 4 + k, sONE), (S4, XRES + 4 + k, None)):
                a.I("v_dot2_f32_bf16 v%d, v%d, %s, %s" % (d, p, o or "v%d" % p, "v%d" % d if k else "0"))
        a.I(self.getc(AD, aST) + "\ns_add_u32 %s, %s, %d" % (sTS, sSST, LY.SB[xi]))
        a.I("v_add_f32 v%d, v%d, v%d\nv_add_f32 v%d, v%d, v%d" % (S1, S1, S3, S2, S2, S4))
        a.I("v_permlane32_swap_b32 v%d, v%d\nv_add_f32 v%d, v%d, v%d\nv_mov_b32 v%d, v%d" % (S1, S2, S1, S1, S2, S2, S1))
        a.I("v_permlane16_swap_b32 v%d, v%d\nv_add_f32 v%d, v%d, v%d" % (S1, S2, S1, S1, S2))
        a.vm("buffer_store_dword v%d, v%d, %s, %s offen" % (S1, AD, WS, sTS), "pub")
        if halo_pass is not None:
            a.I(self.getc(AD - 1, aHST) + "\n" + self.getc(AD, aHSS) + "\ns_add_u32 %s, %s, %d" % (sTS, sHDST, LY.HX[halo_pass]))
            for e in range(2):
                a.vm("buffer_store_dwordx4 %s, v%d, %s, %s offen offset:%d sc1" % (vr(XRES + 4 * e, 4), AD - 1, WS, sTS, e * 512))
            a.vm("buffer_store_dword v%d, v%d, %s, %s offen sc1" % (S1, AD, WS, sTS), "hpub")

    def halo_flag(self, halo_pass):
        a = self.a
        a.I("s_add_u32 %s, %s, %d" % (sTS, sHDFL, halo_pass * 16384))
        a.vm_wait("hpub")
        a.vm("buffer_store_dword v30, v%d, %s, %s offen sc1" % (vF1, WS, sTS))

    def startup(self):
        a = self.a
        a.I("%s_kernel:" % NAME)
        a.I("s_cmp_ge_u32 s2, 256\ns_cbranch_scc1 L_main_done")
        a.I("s_load_dwordx16 s[64:79], s[0:1], 0\ns_load_dwordx2 s[4:5], s[0:1], 72")
        if OPT["stamps"] or OPT["diagpad"]:
            a.I("s_memrealtime s[6:7]")
        a.I("s_getpc_b64 s[56:57]\nL_pc:\ns_lshr_b32 s58, s2, 3\ns_lshl_b32 s58, s58, 11")
        a.I("v_lshrrev_b32 v16, 6, v0\nv_lshrrev_b32 v17, 4, v0\nv_lshlrev_b32 v17, 7, v17\nv_add_u32 v17, s58, v17")
        a.I("v_min_u32 v17, L_code_end-L_pc-4, v17\nv_and_b32 v0, 63, v0\nv_readfirstlane_b32 %s, v16" % sW)
        a.vm("global_load_dword v31, v17, s[56:57]")
        a.I("v_mov_b32 v%d, 0" % vSTAMP)
        a.I("s_and_b32 %s, s2, 7\ns_lshr_b32 %s, s2, 3" % (sN, sT0))
        a.I("s_and_b32 %s, %s, 15\ns_lshr_b32 %s, %s, 4" % (sJ, sT0, sP, sT0))
        a.I("s_lshr_b32 %s, %s, 3\ns_and_b32 %s, %s, 7" % (sR, sJ, sC, sJ))
        t8, kc, tok, g, hh, t32, u0, u1, rr, cc, q16, vA, vR, vB, vD = range(16, 31)
        a.I("v_lshlrev_b32 v%d, 4, v0\nv_and_b32 v%d, 7, v0\nv_lshrrev_b32 v%d, 3, v0\nv_and_b32 v%d, 15, v0\nv_lshrrev_b32 v%d, 4, v0" % (vL16, t8, kc, tok, g))
        cuA, kkA, stA = "s28", "s29", "s30"
        self.sdivmod(kkA, cuA, "s2", 24)
        a.I("s_sub_u32 %s, s2, 192\ns_and_b32 %s, %s, 7\ns_lshr_b32 %s, %s, 3" % (sT0, sT1, sT0, sT0, sT0))
        a.I("s_cmp_lt_u32 s2, 192\ns_cselect_b32 %s, %s, %s\ns_cselect_b32 %s, %s, %s\ns_cselect_b32 %s, 3, 1\ns_lshl_b32 %s, %s, 10" %
            (cuA, cuA, sT1, kkA, kkA, sT0, stA, stA, stA))
        a.I("v_lshlrev_b32 v%d, 4, v%d\nv_mad_u32_u24 v%d, v%d, %s, v%d" % (u0, t8, vA, kc, stA, u0))
        a.I("s_lshl_b32 %s, %s, 2\ns_add_u32 %s, %s, %s\ns_lshl_b32 %s, %s, 4\ns_mul_i32 %s, %s, %s" % (sT0, kkA, sT0, sT0, sW, sT0, sT0, sT0, sT0, stA))
        a.I("s_lshl_b32 %s, %s, 7\ns_add_u32 %s, %s, %s\ns_lshl_b32 %s, %s, 3\ns_add_u32 %s, %s, %s\ns_sub_u32 %s, %s, 1024" %
            (sT1, cuA, sT0, sT0, sT1, sT1, stA, sT1, sT1, sT0, sT1, sT1))
        a.I("s_lshl_b32 %s, %s, 11\ns_add_u32 m0, %s, %d" % (sLW2, sW, sLW2, L_FMT))
        a.I("s_lshl_b32 s31, %s, 1\ns_add_u32 s31, s31, %s\ns_lshl_b32 s31, s31, 2\ns_add_u32 s31, s31, %s\ns_lshl_b32 s31, s31, 5" % (sN, sR, sW))
        a.I("s_add_u32 s31, s31, %s\ns_lshl_b32 s31, s31, 3\ns_add_u32 s31, s31, %s\ns_lshl_b32 s31, s31, 7" % (sP, sC))
        a.I("v_lshlrev_b32 v%d, 11, v%d\nv_lshl_add_u32 v%d, v%d, 4, v%d\nv_add_u32 v%d, s31, v%d" % (vR, tok, vR, g, vR, vR, vR))
        a.I("s_waitcnt lgkmcnt(0)")
        a.I("s_load_dword %s, s[4:5], %d" % (sNONCE, LY.EPOCH))
        a.I("s_cmp_lt_u32 s2, 192\ns_cselect_b32 s%d, s66, s68\ns_cselect_b32 s%d, s67, s69\ns_and_b32 s%d, s%d, 0xffff" % (SRC_A, SRC_A + 1, SRC_A + 1, SRC_A + 1))
        a.I("s_lshl_b32 s%d, %s, 9\ns_mov_b32 s%d, 0x20000" % (SRC_A + 2, stA, SRC_A + 3))
        sa = "s[%d:%d]" % (SRC_A, SRC_A + 3)
        a.vm("buffer_load_dwordx4 v%d, %s, %s offen lds" % (vA, sa, sT0))
        a.vm("buffer_load_dwordx4 v%d, %s, %s offen offset:1024 lds" % (vA, sa, sT1), "fa")
        self.srd(12, "s64", "s65", 2048 * 1024)
        a.vm("buffer_load_dwordx4 %s, v%d, %s, 0 offen" % (vr(XRES, 4), vR, XIN))
        a.vm("buffer_load_dwordx4 %s, v%d, %s, 0 offen offset:64" % (vr(XRES + 4, 4), vR, XIN), "x")
        self.srd(8, "s4", "s5", LY.WS_USED)
        self.srd(16, "s78", "s79", 2048 * 1024)
        self.srd(SRC_G, "s72", "s73", 512 * 3584)
        self.srd(SRC_U, "s74", "s75", 512 * 3584)
        self.srd(SRC_D, "s76", "s77", 1792 * 1024)
        def put(acc): a.I("v_accvgpr_write_b32 a%d, v%d" % (acc, u1))
        a.I("v_accvgpr_write_b32 a%d, v%d" % (aROW, vR))
        dA, dA2, dCS = "s3", "s0", "s1"
        a.I("s_and_b32 %s, %s, 7\ns_lshl_b32 %s, %s, 1\ns_lshr_b32 %s, %s, 1\ns_add_u32 %s, %s, %s" % (sT0, cuA, sT0, sT0, sT1, sW, sT0, sT0, sT1))
        a.I("s_mul_i32 %s, %s, %d\ns_add_u32 %s, %s, %d" % (sT0, sT0, LY.WQ_STRIDE, sT0, sT0, LY.WQ))
        a.I("s_lshr_b32 %s, %s, 3\ns_lshl_b32 %s, %s, 1\ns_and_b32 %s, %s, 1\ns_add_u32 %s, %s, %s" % (sT1, cuA, sT1, sT1, sT2, sW, sT1, sT1, sT2))
        self.lin(dA, sT0, [(kkA, 12288), (sT1, 1024)])
        self.lin(dCS, sT0, [(kkA, 64), (sT1, 512)])
        a.I("s_add_u32 %s, %s, 98304" % (dCS, dCS))
        self.lin(sT0, str(LY.WO), [(cuA, LY.WO_STRIDE), (kkA, 8192), (sW, 1024)])
        a.I("s_cmp_lt_u32 s2, 192\ns_cselect_b32 %s, %s, %s\ns_cselect_b32 %s, %s, 0x%x\ns_cselect_b32 %s, 6, 4\ns_cselect_b64 vcc, -1, 0" %
            (dA, dA, sT0, dCS, dCS, OOB, dA2))
        a.I("s_lshl_b32 %s, %s, 10\ns_add_u32 %s, %s, %s" % (dA2, dA2, dA2, dA2, dA))
        a.I("v_bfe_u32 v%d, v0, 2, 2\nv_and_b32 v%d, 3, v0\nv_bfe_u32 v%d, v0, 4, 1\nv_lshrrev_b32 v%d, 5, v0\nv_and_b32 v%d, 31, v0" % (rr, cc, q16, hh, t32))
        TA0, TA1, TD, TG, ONES = ACC + 48, ACC + 49, ACC + 50, ACC + 51, ACC + 52
        a.I("v_lshl_add_u32 v%d, v%d, 3, v%d\nv_lshlrev_b32 v%d, 7, v%d\nv_lshl_add_u32 v%d, v%d, 2, v%d\nv_lshlrev_b32 v%d, 7, v%d" % (u0, g, rr, u0, u0, u1, g, rr, u1, u1))
        a.I("s_lshr_b32 %s, %s, 1\ns_lshl_b32 %s, %s, 6\ns_and_b32 %s, %s, 1\ns_lshl_b32 %s, %s, 3\ns_add_u32 %s, %s, %s\ns_add_u32 %s, %s, %d" %
            (sT0, sW, sT0, sT0, sT1, sW, sT1, sT1, sT0, sT0, sT1, sT0, sT0, L_FMT))
        a.I("v_lshl_add_u32 v%d, v%d, 4, %s\nv_add_u32 v%d, v%d, v%d\nv_add_u32 v%d, v%d, v%d" % (TA1, cc, sT0, TD, TA1, u0, u1, u1, TA1))
        a.I("s_lshl_b32 %s, %s, 5\ns_add_u32 %s, %s, %d\nv_lshl_add_u32 v%d, v%d, 3, %s\nv_add_u32 v%d, v%d, v%d" % (sT0, sW, sT0, sT0, L_FMT, TA0, cc, sT0, u0, u0, TA0))
        a.I("v_cndmask_b32 v%d, v%d, v%d, vcc\nv_add_u32 v%d, 512, v%d\nv_add_u32 v%d, 2048, v%d\nv_cndmask_b32 v%d, v%d, v%d, vcc" % (TA0, u1, u0, u0, u0, u1, u1, TA1, u1, u0))
        a.I("v_lshl_add_u32 v%d, v%d, 3, v%d\nv_lshlrev_b32 v%d, 7, v%d\nv_lshrrev_b32 v%d, 1, v%d\nv_lshl_add_u32 v%d, v%d, 13, v%d" % (TG, hh, rr, TG, TG, u0, cc, TG, u0, TG))
        a.I("v_and_b32 v%d, 1, v%d\nv_lshl_add_u32 v%d, v%d, 4, v%d\nv_lshl_add_u32 v%d, v%d, 3, v%d\nv_add_u32 v%d, %s, v%d" % (u0, cc, TG, u0, TG, TG, q16, TG, TG, sT0, TG))
        for k in range(4): a.I("v_mov_b32 v%d, 0x3f803f80" % (ONES + k))
        cuG, kkG, sSG, sSD = "s28", "s29", "s4", "s5"
        self.sdivmod(kkG, cuG, "s2", 28)
        a.I("v_lshlrev_b32 v%d, 4, v%d\nv_mul_u32_u24 v%d, 3584, v%d\nv_add_u32 v%d, v%d, v%d\nv_lshl_add_u32 v%d, v%d, 10, v%d" % (u0, t8, vB, kc, vB, vB, u0, vD, kc, u0))
        a.I("s_waitcnt lgkmcnt(0)")
        self.lin(sSG, "0", [(kkG, 64 * 3584), (sW, 16 * 3584), (cuG, 128)])
        a.I("s_lshr_b32 %s, s2, 3" % sT0)
        self.lin(sSD, "0", [(sT0, 65536), (sW, 16384), (sN, 128)])
        self.lin(sB3, str(LY.WD), [(sN, LY.WD_STRIDE), (sT0, 8192), (sW, 1024)])
        a.I("s_lshl_b32 %s, %s, 2\ns_add_u32 %s, %s, %s" % (cuG, cuG, cuG, cuG, sW))
        self.sdivmod(sT0, sT1, cuG, 7)
        self.lin(sB2, str(LY.WG), [(sT0, LY.WG_STRIDE)])
        a.I("s_mul_i32 %s, %s, 33\ns_cmp_lt_u32 %s, 3\ns_cselect_b32 %s, %s, %s\ns_cselect_b32 %s, 3, 1" % (sT0, sT1, sT1, sT1, sT1, sT0, sB1))
        a.I("s_lshl_b32 %s, %s, 10\ns_lshl_b32 %s, %s, 10\ns_add_u32 %s, %s, %s" % (sB1, sB1, sT1, sT1, sB2, sB2, sT1))
        a.I("s_lshl_b32 %s, %s, 2\ns_mul_i32 %s, %s, %s\ns_add_u32 %s, %s, %s" % (sT0, kkG, sT0, sT0, sB1, sB0, sB2, sT0))
        self.lin(sB2, sB2, [(sB1, 32), (kkG, 128)])
        a.I("s_cmp_lt_u32 s2, 224")
        for r_ in (sSG, sSD, sB0, sB2, sB3): a.I("s_cselect_b32 %s, %s, 0x%x" % (r_, r_, OOB))
        a.I("s_add_u32 %s, %s, 0x9e3779b1\ns_mov_b32 %s, 0\ns_mov_b32 %s, 0x3f803f80" % (sNONCE, sNONCE, sSLOW, sONE))
        a.I("s_lshl_b32 %s, %s, 1\ns_add_u32 %s, %s, %s" % (sG, sN, sG, sG, sP))
        a.I("v_cmp_ne_u32 vcc, 0, v0\nv_mov_b32 v%d, 0x%x\nv_lshlrev_b32 v%d, 2, v0\nv_cndmask_b32 v%d, 0, v%d, vcc" % (vF1, OOB, vFL, vF1, vF1))
        sXA, sXV = "s31", "s35"
        self.lin(sXA, str(LY.XF), [(sG, 128)])
        a.I("s_getreg_b32 %s, hwreg(HW_REG_XCC_ID, 0, 4)\ns_xor_b32 %s, %s, %s\nv_mov_b32 v%d, %s" % (sXV, sXV, sXV, sNONCE, u1, sXV))
        self.lin(sT0, sXA, [(sJ, 4)])
        a.I("s_cmp_eq_u32 %s, 0\ns_cselect_b32 %s, %s, 0x%x" % (sW, sT0, sT0, OOB))
        a.vm("buffer_store_dword v%d, v%d, %s, %s offen sc1" % (u1, vF1, WS, sT0))
        a.I("v_mov_b32 v%d, %s\nv_mov_b32 v%d, %s" % (ACC + 56, sXA, ACC + 57, sXV))
        a.I("s_lshl_b32 %s, %s, %d\ns_add_u32 %s, %s, 0x%x" % (sGB, sG, LY.ACT_SHIFT, sGB, sGB, LY.ACT))
        lin = self.lin
        lin(sXLD, sGB, [(sW, 32768)])
        a.I("s_lshr_b32 %s, %s, 1\ns_and_b32 %s, %s, 1" % (sT0, sW, sT1, sW))
        lin(sXST, sGB, [(sR, 65536), (sC, 4096), (sT0, 32768), (sT1, 256)])
        lin(sOST, sXLD, [(sJ, 2048)])
        lin(sHST, sGB, [(sW, 114688), (sJ, 7168)])
        lin(sSLD, sGB, [(sW, 2048)])
        lin(sSST, sGB, [(sR, 4096), (sC, 8), (sW, 1024)])
        if OPT["touch"]:
            a.I("v_and_b32 v%d, 1, v0\nv_lshlrev_b32 v%d, 7, v%d\nv_bfe_u32 v%d, v0, 1, 3\nv_lshl_add_u32 v%d, v%d, 9, v%d\nv_add_u32 v%d, %s, v%d" %
                (u0, u0, u0, u1, u0, u1, u0, u0, sXST, u0))
            a.I("s_add_u32 %s, %s, %d\nv_lshlrev_b32 v%d, 7, v%d\nv_add_u32 v%d, %s, v%d\nv_cmp_gt_u32 vcc, 16, v0\nv_cndmask_b32 v%d, v%d, v%d, vcc" %
                (sT0, sOST, LY.OB[0], u1, tok, u1, sT0, u1, u0, u1, u0))
            a.I("s_add_u32 %s, %s, %d\nv_lshlrev_b32 v%d, 7, v%d\nv_add_u32 v%d, %s, v%d\nv_cmp_gt_u32 vcc, 32, v0\nv_cndmask_b32 v%d, v%d, v%d, vcc" %
                (sT0, sSST, LY.SB[0], u1, t8, u1, sT0, u1, u0, u1, u0))
            a.vm("buffer_load_dword v31, v%d, %s, 0 offen sc1" % (u0, WS))
        for i in range(4):
            a.I("s_add_u32 %s, %s, %d\ns_and_b32 %s, %s, 3\ns_lshr_b32 %s, %s, 1\ns_and_b32 %s, %s, 1" % (sTA, sW, i + 1, sTA, sTA, sT0, sTA, sT1, sTA))
            lin(sOLD[i], sGB, [(sR, 65536), (sW, 8192), (sT0, 32768), (sT1, 256)])
            lin(sHLD[i], sGB, [(sR, 229376), (sW, 28672), (sT0, 114688), (sT1, 256)])
            if i < 3: lin(sXW[i], str(i * 4096), [(sTA, 12288)])
        lin(sXR, "0", [(sW, 12288)])
        lin(sWQ, str(LY.WQ), [(sJ, LY.WQ_STRIDE * (1 - OPT["hitw"]))])
        lin(sWG, str(LY.WG), [(sJ, LY.WG_STRIDE * (1 - OPT["hitw"]))])
        lin(sWO, str(LY.WO), [(sC, LY.WO_STRIDE * (1 - OPT["hitw"])), (sW, 16384)])
        lin(sWD, str(LY.WD), [(sC, LY.WD_STRIDE * (1 - OPT["hitw"])), (sW, 57344)])
        lin(sFLG, str(LY.FL), [(sG, 256)])
        lin(sFLW, sFLG, [(sJ, 16), (sW, 4)])
        lin(sHFL, str(LY.HFL), [(sG, 1024)])
        lin(sHDFL, sHFL, [(sC, 128)])
        lin(sTAB, str(L_TAB), [(sW, 512)])
        lin(sFBO, str(LY.FA), [("s2", 128)])
        a.I("s_add_u32 %s, %s, 2048\ns_add_u32 %s, %s, 0x%x" % (sHDFL, sHDFL, sHDST, sGB, 2 * LY.ACT_STRIDE))
        a.I("s_cmp_eq_u32 %s, 0\ns_cselect_b32 %s, %s, 0x%x" % (sW, sFBO, sFBO, OOB))
        a.I("s_lshl_b32 %s, %s, 2\ns_add_u32 %s, %s, %s\ns_cmp_eq_u32 %s, 7\ns_cselect_b32 %s, 0, %s\ns_cmp_eq_u32 %s, 7" % (sT0, sR, sT0, sT0, sW, sN, sT0, sT0, sT0))
        a.I("s_cselect_b32 %s, %s, 0x%x\ns_cselect_b32 %s, %s, 0x%x" % (sHDST, sHDST, OOB, sHDFL, sHDFL, OOB))
        a.I("s_lshl_b32 %s, %s, 10\ns_lshl_b32 %s, %s, 12\ns_add_u32 %s, %s, %s\ns_add_u32 %s, %s, %s" % (sLW, sW, sLW4, sW, sWQ4, sWQ, sLW4, sWG4, sWG, sLW4))
        a.I("s_cmp_eq_u32 %s, 0\ns_cselect_b32 %s, 0x%x, %s\ns_cselect_b32 s54, 0, 0xff\ns_mov_b32 s55, 0" % (sN, sHALO, OOB, sGB))
        a.I("s_add_u32 %s, %s, %s\ns_add_u32 %s, %s, %s\ns_add_u32 %s, %s, %s" % (sHALO2, sHALO, sLW2, sWQ, sWQ, sLW, sWG, sWG, sLW2))
        a.I("s_lshr_b32 %s, %s, 1\ns_lshl_b32 %s, %s, 5\ns_and_b32 %s, %s, 1\ns_lshl_b32 %s, %s, 1\ns_add_u32 %s, %s, %s" % (sT0, sW, sT0, sT0, sT1, sW, sT1, sT1, sT0, sT0, sT1))
        a.I("s_mov_b32 s40, 0x33333333\ns_mov_b32 s41, 0\ns_lshl_b64 s[40:41], s[40:41], %s" % sT0)
        a.I("s_lshl_b32 %s, %s, 1\ns_lshl_b32 %s, %s, 4\ns_add_u32 %s, %s, %s" % (sT0, sR, sT2, sW, sT0, sT0, sT2))
        a.I("s_mov_b32 s42, 0x3333\ns_mov_b32 s43, 0\ns_lshl_b64 s[42:43], s[42:43], %s" % sT0)
        a.I("v_add_u32 v%d, 0x10000, v%d\nv_add_u32 v%d, 0x20000, v%d" % (vL16b, vL16, vL16c, vL16))
        a.I("v_lshlrev_b32 v%d, 4, v%d\nv_lshl_add_u32 v%d, v%d, 9, v%d" % (u0, tok, vQ, g, u0))
        a.I("v_lshlrev_b32 v%d, 6, v%d\nv_lshl_add_u32 v%d, v%d, 2, v%d\nv_lshl_add_u32 v%d, v%d, 30, v%d" % (u1, tok, u1, hh, u1, u1, q16, u1)); put(aST)
        a.I("v_bfe_u32 v%d, v0, 3, 1\nv_xor_b32 v%d, 1, v%d\nv_lshlrev_b32 v%d, 29, v%d" % (vA, vA, vA, vA, vA))
        a.I("s_lshl_b32 %s, %s, 3\ns_add_u32 %s, %s, %d\nv_add3_u32 v%d, v%d, v%d, %s" % (sT0, sC, sT0, sT0, 8192 - 512, u1, u1, vA, sT0)); put(aHSS)
        a.I("v_lshlrev_b32 v%d, 4, v%d\nv_lshl_add_u32 v%d, v%d, 7, v%d\nv_add_u32 v%d, %d, v%d" % (u0, t8, u0, g, u0, u1, L_HALO, u0)); put(aHX)
        a.I("s_lshl_b32 %s, %s, 10\nv_add3_u32 v%d, v%d, v%d, %s" % (sT0, sC, u1, u0, vA, sT0)); put(aHST)
        a.I("v_lshlrev_b32 v%d, 4, v%d\nv_lshl_add_u32 v%d, v%d, 6, v%d" % (u0, g, u1, tok, u0)); put(aSQ)
        a.I("v_lshl_add_u32 v%d, v%d, 6, v%d" % (u1, t8, u0)); put(aSH)
        a.I("v_lshlrev_b32 v%d, 5, v%d\nv_lshl_add_u32 v%d, v%d, 6, v%d" % (u0, hh, u1, t32, u0)); put(aSG)
        a.I("v_lshlrev_b32 v%d, 7, v%d" % (u1, tok)); put(aTO)
        a.I("v_min_u32 v%d, 55, v0\nv_lshlrev_b32 v%d, 7, v%d" % (u1, u1, u1)); put(aTH)
        a.I("v_lshlrev_b32 v%d, 8, v%d\nv_lshl_add_u32 v%d, v%d, 6, v%d\nv_lshl_add_u32 v%d, v%d, 1, v%d\nv_add_u32 v%d, 1024, v%d" % (u0, rr, u0, g, u0, u0, cc, u0, u1, vL16))
        a.I("s_cmp_ge_u32 %s, 2\ns_cselect_b64 vcc, -1, 0\ns_cselect_b32 %s, 2, 16\nv_cndmask_b32 v%d, v%d, v%d, vcc" % (sW, sT1, u1, u0, u1))
        a.I("s_and_b32 %s, %s, 1\ns_lshl_b32 %s, %s, 3\ns_add_u32 %s, %s, %d\nv_add_u32 v%d, %s, v%d" % (sT0, sW, sT0, sT0, sT0, sT0, L_KV, u1, sT0, u1)); put(aHWR)
        a.I("v_mov_b32 v%d, %s" % (u1, sT1)); put(aHWS)
        FAV = ACC + 58
        a.I("s_lshr_b32 %s, %s, 1\nv_mul_u32_u24 v%d, 24, v%d\nv_lshl_add_u32 v%d, v%d, 3, v%d\nv_add_u32 v%d, %s, v%d" % (sT0, sJ, u0, t8, u0, kc, u0, u0, sT0, u0))
        a.I("s_add_u32 %s, %s, 192\nv_lshl_add_u32 v%d, v%d, 3, %s\nv_cmp_gt_u32 vcc, 24, v0\nv_cndmask_b32 v%d, v%d, v%d, vcc" % (sT0, sC, u1, t8, sT0, u0, u1, u0))
        a.I("v_lshlrev_b32 v%d, 7, v%d\nv_add_u32 v%d, %d, v%d" % (u0, u0, FAV, LY.FA, u0))
        a.I("s_mul_i32 %s, %s, 7\ns_add_u32 %s, %s, 6\ns_lshr_b32 %s, %s, 2\ns_lshr_b32 %s, %s, 2" % (sT0, sJ, sT1, sT0, sT0, sT0, sT1, sT1))
        a.I("v_add_u32 v%d, %s, v%d\nv_min_u32 v%d, %s, v%d\nv_mad_u32_u24 v%d, v%d, 28, v%d" % (u0, sT0, kc, u0, sT1, u0, u0, t8, u0))
        a.I("v_min_u32 v%d, 27, v%d\nv_lshl_add_u32 v%d, v%d, 3, %s\nv_cmp_gt_u32 vcc, 32, v0\nv_cndmask_b32 v%d, v%d, v%d, vcc" % (u1, t32, u1, u1, sC, u0, u1, u0))
        a.I("v_lshlrev_b32 v%d, 7, v%d\nv_add_u32 v%d, %d, v%d" % (u0, u0, u1, LY.FB, u0)); put(aFB)
        NG, Z, M0_, M1_ = rr, cc, q16, hh
        a.I("s_or_b32 %s, %s, %s\ns_cmp_eq_u32 %s, 0\ns_cselect_b64 s[56:57], -1, 0" % (sT0, sN, sW, sT0))
        a.I("v_mov_b32 v%d, %s\nv_mov_b32 v%d, 0" % (NG, NEG, Z))
        for r in range(4):
            a.I("v_lshlrev_b32 v%d, 2, v%d\nv_sub_u32 v%d, v%d, v%d\nv_subrev_u32 v%d, %d, v%d" % (u0, g, u0, tok, u0, u0, r, u0))
            a.I("v_cmp_gt_u32 vcc, 8, v%d\nv_cndmask_b32 v%d, v%d, v%d, vcc" % (u0, u1, NG, Z)); put(aBC + r)
            a.I("v_cmp_gt_i32 vcc, -8, v%d\nv_cndmask_b32 v%d, v%d, v%d, vcc" % (u0, u1, NG, Z)); put(aBP + r)
            a.I("v_cndmask_b32 v%d, v%d, v%d, s[56:57]" % (u1, u1, NG)); put(aBP0 + r)
            a.I("v_mov_b32 v%d, %s\nv_cmp_le_i32 vcc, 0, v%d\nv_cndmask_b32 v%d, v%d, v%d, vcc" % (M0_, "0xffff0000" if r & 1 else "0xffff", u0, u1, Z, M0_))
            if r & 1:
                a.I("v_or_b32 v%d, v%d, v%d" % (u1, u1, M1_)); put(aMC + r // 2)
            else:
                a.I("v_mov_b32 v%d, v%d" % (M1_, u1))
        a.I("v_mov_b32 v%d, v%d\nv_mov_b32 v%d, v%d\nv_lshl_add_u32 v%d, v%d, 2, v%d" % (ACC + 59, vB, ACC + 60, vD, ACC + 56, tok, ACC + 56))
        a.I("v_lshlrev_b32 v%d, 2, v%d\nv_lshl_add_u32 v%d, v%d, 28, v%d" % (ACC + 61, tok, ACC + 61, g, ACC + 61))
        if OPT["stamps"]:
            a.I("v_writelane_b32 v%d, s6, 62" % vSTAMP)
        self.stamp()
        a.vm_wait("fa")
        a.I("s_barrier")
        for sp in range(2):
            for half in range(2):
                a.ds("ds_read_b64_tr_b16 %s, v%d offset:%d" % (vr(ACC + 4 * sp + 2 * half, 2), (TA0, TA1)[half], sp * 4096), ("t", sp))
        self.stamp("p")
        for sp in range(2):
            a.ds_wait(("t", sp))
            a.vm("buffer_store_dwordx4 %s, v%d, %s, %s offen sc1" % (vr(ACC + 4 * sp, 4), vL16, WS, (dA, dA2)[sp]))
            a.I("v_mfma_f32_16x16x32_bf16 %s, %s, %s, %s" % (vr(ACC + 8, 4), vr(ONES, 4), vr(ACC + 4 * sp, 4), vr(ACC + 8, 4) if sp else "0"))
        a.I("\n".join(self.hi_lo(ACC + 12, ACC + 8, ACC + 13)))
        a.vm("buffer_store_dword v%d, v%d, %s, %s offen sc1" % (ACC + 12, ACC + 61, WS, dCS), "fas")
        a.vm_wait("x")
        self.publish(0, 0)
        xload = "buffer_load_dword v31, v%d, %s, 0 offen sc1" % (ACC + 56, WS)
        a.vm(xload, "xf")
        for srdn, so, va, stride, lo in ((SRC_G, sSG, ACC + 59, 3584, 8192), (SRC_U, sSG, ACC + 59, 3584, 16384), (SRC_D, sSD, ACC + 60, 1024, 24576)):
            a.I("s_add_u32 m0, %s, %d\ns_add_u32 %s, %s, %d" % (sLW2, L_FMT + lo, sT0, so, 8 * stride - 1024))
            a.vm("buffer_load_dwordx4 v%d, s[%d:%d], %s offen lds" % (va, srdn, srdn + 3, so))
            a.vm("buffer_load_dwordx4 v%d, s[%d:%d], %s offen offset:1024 lds" % (va, srdn, srdn + 3, sT0))
        self.stamp("p")
        a.I("v_mov_b32 v30, %s" % sNONCE)
        a.vm_wait("fas")
        a.I("s_barrier")
        a.vm("buffer_store_dword v30, v%d, %s, %s offen sc1" % (vF1, WS, sFBO))
        a.I("s_add_u32 %s, %s, %d" % (sFBO, sFBO, LY.FB - LY.FA))
        self.stamp("p")
        spin, back = a.label("xspin"), a.label("xback")
        test = "v_xor_b32 v29, %s, v31\nv_cmp_lt_u32 vcc, 15, v29\ns_and_b64 vcc, vcc, exec" % sNONCE
        a.vm_wait("xf")
        a.I("%s\ns_cbranch_scc1 %s\n%s:" % (test, spin, back))
        self.cold.append("%s:\ns_mov_b32 %s, 0x40000\n%s_l:\n%s\ns_sub_u32 %s, %s, 1\ns_cbranch_scc1 L_main_done\ns_waitcnt vmcnt(0)\n%s\ns_cbranch_scc1 %s_l\ns_branch %s"
                         % (spin, sSPIN, spin, xload, sSPIN, sSPIN, test, spin, back))
        a.I("v_cmp_ne_u32 vcc, v%d, v31\ns_cmp_lg_u64 vcc, 0\ns_cselect_b32 %s, 1, 0" % (ACC + 57, sSLOW))
        self.signal(0, "pub")
        self.halo_flag(0)
        self.stamp("p")
        a.vm_drain()
        self.stamp("p")
        self.spin("buffer_load_dword v30, v%d, %s, 0 offen sc1" % (FAV, WS), "v_cmp_ne_u32 vcc, %s, v30\ns_and_b64 vcc, vcc, exec" % sNONCE)
        self.stamp("p")
        self.fmt_regs = (TG, TD, ONES)

    def second_unit(self):
        a = self.a
        TG, TD, ONES = self.fmt_regs
        G, D, CS = ACC, ACC + 16, ACC + 32
        for sp in range(4):
            for half in range(2):
                a.ds("ds_read_b64_tr_b16 %s, v%d offset:%d" % (vr(G + 4 * sp + 2 * half, 2), TG, 8192 + (16 * sp + 4 * half) * 128), ("tg", sp))
        for sp in range(2):
            for half in range(2):
                a.ds("ds_read_b64_tr_b16 %s, v%d offset:%d" % (vr(D + 4 * sp + 2 * half, 2), TD, 24576 + (32 * sp + 4 * half) * 128), ("td", sp))
        for sp in range(4):
            a.ds_wait(("tg", sp))
            a.vm("buffer_store_dwordx4 %s, v%d, %s, %s offen sc1" % (vr(G + 4 * sp, 4), vL16, WS, sB0))
            a.I("v_mfma_f32_32x32x16_bf16 %s, %s, %s, %s" % (vr(CS, 16), vr(ONES, 4), vr(G + 4 * sp, 4), vr(CS, 16) if sp else "0"))
            a.I("s_add_u32 %s, %s, %s" % (sB0, sB0, sB1))
        for sp in range(2):
            a.ds_wait(("td", sp))
            a.vm("buffer_store_dwordx4 %s, v%d, %s, %s offen sc1" % (vr(D + 4 * sp, 4), vL16, WS, sB3))
            a.I("s_add_u32 %s, %s, 4096" % (sB3, sB3))
        a.I("v_lshrrev_b32 v%d, 5, v0\nv_lshl_add_u32 v%d, v%d, 30, v%d" % (D + 9, D + 9, D + 9, vFL))
        a.I("\n".join(self.hi_lo(D + 8, CS, CS + 1)))
        a.vm("buffer_store_dword v%d, v%d, %s, %s offen sc1" % (D + 8, D + 9, WS, sB2), "fbs")

    def qkv(self, ps):
        a = self.a
        xi = 2 * ps
        late = self.wq_late(ps)
        wql = [g for ch in late for g in self.wq_chunk(ch)]
        pre = []
        if ps == 0:
            a.forget()
            pre, wql = wql[:4], wql[4:]
            a.run_all(self.flat(pre))
        self.poll(4 * ps, sMA)
        self.stamp()
        HX, HW, HW2, HF, NM, RL, CQ, RR = 16, 17, 18, 19, 20, 26, 28, ACC + 52
        xl = self.reg_loads([vr(X + 8 * s + 4 * b, 4) for s in range(16) for b in range(2)], [sXLD] * 32,
                            [LY.XB[xi] + s * 2048 + b * 256 for s in range(16) for b in range(2)], sTA, vQ, "x")
        UP = OPT["q_up"] if ps else OPT["q0_up"]
        a.run_all(self.flat(xl[:UP]))
        if ps == 0:
            late = late[1:]
            a.run_all(self.flat(wql[:4])); wql = wql[4:]
        a.I("s_barrier")
        if ps == 0:
            self.second_unit()
        a.I(self.getc(30, aSQ) + "\n" + self.getc(31, aSH) + "\n" + self.getc(HX, aHX))
        a.I("s_add_u32 %s, %s, 2048\nv_add_u32 v%d, %s, v%d\nv_add_u32 v%d, 0xc000, v%d\nv_lshlrev_b32 v%d, 7, v0" % (sT0, sLW, HW, sT0, vL16, HW2, HW, CQ))
        sl = Slots()
        use = {}
        acc = lambda blk, b: vr(ACC + 8 * blk + 4 * b, 4)
        hbuf = lambda t: (F + 24, X)[t % 2]
        step0 = {}
        H0 = OPT["q_h0"]
        hpos = {}
        for t in range(16):
            p = (t * 6 * (16 - H0)) // 16 + 1
            hpos.setdefault((H0 + p // 6, p % 6), []).append(t)
        hpos[(16, 1)] = [16]
        CSA = X + 93
        def halo_mfma(t):
            d = acc(6, 0)
            if t < 16:
                i = sl.add("v_mfma_f32_16x16x32_bf16 %s, %s, %s, %s" % (d, vr(hbuf(t) + 4, 4), vr(hbuf(t), 4), "0" if t == 0 else d), [("wds", ("hx", t))])
            else:
                i = sl.add("v_mfma_f32_16x16x16_bf16 %s, %s, %s, %s" % (d, vr(NM + 4, 2), vr(hbuf(t), 2), d), [("wds", ("hw", t))])
            use[("h", t)] = i
        for s in range(17):
            step0[s] = sl.n()
            for f in range(6):
                for b in range(2):
                    pre_ = []
                    if b == 0: pre_.append(("wds", ("f", s, f)))
                    if f == 0 and s < 16: pre_.append(("wvm", ("x", 2 * s + b)))
                    w = vr(F + 4 * f, 4 if s < 16 else 2)
                    x = vr(X + 8 * s + 4 * b, 4) if s < 16 else vr(NM + 2 * b, 2)
                    A, B = (w, x) if f < 4 else (x, w)
                    d = acc(f, b)
                    mn = "v_mfma_f32_16x16x32_bf16" if s < 16 else "v_mfma_f32_16x16x16_bf16"
                    use[(s, f)] = sl.add("%s %s, %s, %s, %s" % (mn, d, A, B, "0" if s == 0 else d), pre_)
                for t in hpos.get((s, f), ()): halo_mfma(t)
        reads = []
        for s in range(17):
            for f in range(6):
                d = F + 4 * f
                if s < 16: t = "ds_read_b128 %s, %s" % (vr(d, 4), ldsaddr(s * 6144 + f * 1024))
                else: t = "ds_read2st64_b32 %s, v%d offset0:%d offset1:%d" % (vr(d, 2), CSA, 2 * f, 2 * f + 1)
                reads.append((use[(s - 1, f)] if s else -1, (6 * s + f) // 16, ("ds", t, ("f", s, f))))
        hbar = step0[H0 - 1] + 4
        for t in range(17):
            pos = use[("h", t - 2)] if t >= 2 else hbar + 2 + 2 * t
            if t < 16:
                reads.append((pos, (6 * t + 5) // 16, ("ds", "ds_read_b128 %s, v%d offset:%d" % (vr(hbuf(t), 4), HW if t < 8 else HW2, (t % 8) * 6144), ("hw", t))))
                reads.append((pos + (1 if t >= 2 else 0), 0, ("ds", "ds_read_b128 %s, v%d offset:%d" % (vr(hbuf(t) + 4, 4), HX, t * 512), ("hx", t))))
            else:
                reads.append((pos, 6, ("ds", "ds_read2st64_b32 %s, v%d offset0:4 offset1:5" % (vr(hbuf(t), 2), CSA + 1), ("hw", t))))
        sl.put("c", step0[12], [("i", "v_add_u32 v%d, 98304, v%d\ns_lshr_b32 %s, %s, 1\nv_add_u32 v%d, %s, v%d" % (CSA, vFL, sT2, sLW, CSA + 1, sT2, CSA)), ("mark", "csaddr")])
        sl.after(step0[14], ("need", "csaddr"))
        sl.pre[step0[16]].append(("wds", ("nm", 2)))
        chbar = {}
        for ch in late:
            ops = [("wvm", ("wq", ch))] + ([("wvm", "fbs")] if ps == 0 and ch == 4 else []) + [("i", "s_barrier")]
            p = chbar[ch] = min(p for p, c, _ in reads if c == ch)
            sl.after(p, *ops)
            if ps == 0 and ch == 4:
                sl.put("v", p + 1, [("i", "v_mov_b32 v%d, %s" % (NM, sNONCE)), ("vm", "buffer_store_dword v%d, v%d, %s, %s offen sc1" % (NM, vF1, WS, sFBO))])
        sl.after(hbar, ("wvm", "halo"), ("i", "s_barrier"))
        for pos, _, rd in reads:
            if pos < 0: a.run(rd)
            else: sl.after(pos, rd)
        l_hf, g_chk = self.late_check("buffer_load_dword v%d, v%d, %s, %s offen sc1" % (HF, CQ, WS, sT1), HF, sMH, "hf")
        g_hf = [("i", "v_and_b32 v%d, 0x380, v%d\ns_add_u32 %s, %s, %d" % (CQ, CQ, sT1, sHFL, ps * 16384))] + l_hf
        g_hd = self.dma_chunk(sHALO2, LY.HX[ps], L_HALO, 2, "halo", " sc1")
        g_hs = [("i", "s_add_u32 %s, %s, %d" % (sT1, sHALO, LY.HX[ps] + 8192)),
                ("vm", "buffer_load_dwordx4 %s, v31, %s, %s offen sc1" % (vr(RR + 8, 4), WS, sT1), "st")]
        g_s0 = [("i", "s_add_u32 %s, %s, %d" % (sT0, sSLD, LY.SB[xi])), ("vm", "buffer_load_dwordx4 %s, v30, %s, %s offen sc1" % (vr(RR, 4), WS, sT0))]
        g_s1 = [("vm", "buffer_load_dwordx4 %s, v30, %s, %s offen offset:1024 sc1" % (vr(RR + 4, 4), WS, sT0))]
        wo = self.reg_loads([vr(X + 8 + 4 * k, 4) for k in range(16)], [sWO] * 16, [k * 1024 for k in range(16)], sTD, vL16, "wo")
        rest = xl[UP:]
        h1, h2 = OPT["q_hf"], OPT["q_hf"] + OPT["q_chk"] - 2
        seq = rest[:h1] + [g_hf, g_s0, g_s1] + rest[h1:h2] + [g_chk] + g_hd + [g_hs] + rest[h2:]
        if wql:
            due, d = [], sl.n()
            for g in reversed(seq):
                tag = g[-1][2] if len(g[-1]) > 2 else None
                if isinstance(tag, tuple) and tag[0] == "x": d = step0[tag[1] // 2]
                due.append((d, g))
            due.reverse()
            d, wdue = 0, []
            for g in reversed(wql):
                if g[-1][2] is not None: d = chbar[g[-1][2][1]] - OPT["q0_lead"]
                wdue.append((d, g)); d -= 6
            seq = [g for _, g in sorted(due + wdue[::-1], key=lambda t: t[0])]
        if ps: seq += self.touch(aTO, sOST, LY.OB[ps], CQ + 1)
        seq += self.wgs("q", ps)
        seq += [(step0[2 + k // 2], g) for k, g in enumerate(wo)]
        left = sl.pace(seq, 0, (OPT["q_every"] if ps else OPT["q0_every"]) / 10)
        A0, A1, AH = RR, RR + 4, RR + 8
        st = [[("wvm", "st")]]
        for r_ in (A0, A1, AH):
            st.append([("i", "v_add_f32 v%d, v%d, v%d" % (r_, r_, r_ + 2))])
            st.append([("i", "v_add_f32 v%d, v%d, v%d" % (r_ + 1, r_ + 1, r_ + 3))])
        for o in (0, 1): st.append([("i", "v_mov_b32 v%d, v%d" % (AH + 2 + o, AH + o))])
        for o in (0, 1): st.append([("i", "v_permlane32_swap_b32 v%d, v%d" % (A0 + o, A1 + o))])
        for o in (0, 1): st.append([("i", "v_permlane32_swap_b32 v%d, v%d" % (AH + o, AH + 2 + o))])
        for o in (0, 1): st.append([("i", "v_add_f32 v%d, v%d, v%d" % (A0 + o, A0 + o, A1 + o))])
        for o in (0, 1): st.append([("i", "v_add_f32 v%d, v%d, v%d" % (AH + o, AH + o, AH + 2 + o))])
        for o in (0, 1): st.append([("i", "v_permlane16_swap_b32 v%d, v%d" % (A0 + o, AH + o))])
        for o in (0, 1): st.append([("i", "v_add_f32 v%d, v%d, v%d" % (A0 + o, A0 + o, AH + o))])
        st += [[op] for op in self.ln_from_sums(A0, A0 + 1, A0 + 2)]
        st.append([("i", "v_cvt_pk_bf16_f32 v%d, -v%d, -v%d" % (A0, A0, A0))])
        st.append([("i", "v_add_u32 v%d, %s, v%d" % (HF, sTAB, vFL))])
        st.append([("i", "v_and_or_b32 v30, v%d, 63, %s" % (vFL, sTAB))])
        st.append([("i", "v_and_or_b32 v31, v0, 48, %s" % sTAB)])
        st.append([("ds", "ds_write2st64_b32 v%d, v%d, v%d offset0:0 offset1:1" % (HF, A0 + 1, A0))])
        row = {0: 0, 1: 2, 2: 1}
        for b in range(3):
            o = 64 + row[b] * 16
            st.append([("ds", "ds_read2_b32 %s, v30 offset0:%d offset1:%d" % (vr(NM + 2 * b, 2), o, o), ("nm", b))])
        st.append([("ds", "ds_read2_b32 %s, v30 offset0:0 offset1:32" % vr(RL, 2))])
        for b in range(3):
            st.append([("ds", "ds_read_b128 %s, v31 offset:%d" % (vr(RR + 4 * b, 4), row[b] * 64), ("tab", b))])
        sl.spread(st, step0[H0], step0[14])
        Y = X + 72
        BC, BP, BP0, MC, ONES, KW = Y, Y + 4, Y + 8, Y + 12, Y + 14, Y + 16
        sl.put("v", step0[16], [("wds", ("tab", 2)), ("i", "v_mul_f32 v%d, 0x3eb8aa3b, v%d\nv_mul_f32 v%d, 0x3eb8aa3b, v%d" % (CQ, RL, CQ + 1, RL + 1))])
        cst = [[("i", self.getc(Y + k, aBC + k))] for k in range(14)]
        cst += [[("i", "v_mov_b32 v%d, %s" % (ONES + k, sONE))] for k in range(2)]
        cst += [[("i", self.getc(KW, aHWR))], [("i", self.getc(KW + 3, aHWS))], [("i", "s_add_u32 %s, %s, %d" % (sT2, sLW2, L_KV))],
                [("i", "v_add_u32 v%d, v%d, v%d" % (KW + 1, KW, KW + 3))], [("i", "v_add_u32 v%d, %s, v%d" % (KW + 4, sT2, vL16))],
                [("i", "v_add_u32 v%d, v%d, v%d" % (KW + 2, KW + 1, KW + 3))], [("i", "v_add_u32 v%d, v%d, v%d" % (KW + 3, KW + 2, KW + 3))]]
        sl.spread(cst, step0[14], sl.n() - 2, "c")
        self.lite(sl, "q", [step0[s] for s in (0, 2, 4, 6, 8, 10, 12, 14)])
        self.report("qkv%d" % ps, sl.emit(a))
        self.stamp()
        Z = X + 96
        Qp = lambda b, h: Z + 4 * h + 2 * b
        Kp = lambda b, h: Z + 8 + 6 * h + 2 * (b + 1)
        Vp = lambda b, h: Z + 20 + 6 * h + 2 * (b + 1)
        HP = NM
        ar_ = lambda blk, b: ACC + 8 * blk + 4 * b
        body = []
        e = lambda t: body.extend(("i", x) for x in t.split("\n"))
        def pack(dst, src): e("v_cvt_pk_bf16_f32 v%d, v%d, v%d\nv_cvt_pk_bf16_f32 v%d, v%d, v%d" % (dst, src, src + 1, dst + 1, src + 2, src + 3))
        def scale_l(src, b):
            for k in range(2): e("v_pk_mul_f32 %s, %s, %s op_sel:[0,%d] op_sel_hi:[1,%d]" % (vr(src + 2 * k, 2), vr(src + 2 * k, 2), vr(RL, 2), b, b))
        def scale_r(src, r0):
            for k in range(2): e("v_pk_mul_f32 %s, %s, %s" % (vr(src + 2 * k, 2), vr(src + 2 * k, 2), vr(r0 + 2 * k, 2)))
        for b in range(2):
            for h in range(2): pack(Qp(b, h), ar_(h, b))
        scale_r(ar_(6, 0), RR + 8)
        for h in range(2): scale_l(ar_(2 + h, 1), 1)
        pack(HP, ar_(6, 0))
        for h in range(2): pack(Kp(1, h), ar_(2 + h, 1))
        body.append(("ds", "ds_write_b16 v%d, v%d" % (KW, HP)))
        body.append(("ds", "ds_write_b16_d16_hi v%d, v%d" % (KW + 1, HP)))
        body.append(("ds", "ds_write_b16 v%d, v%d" % (KW + 2, HP + 1)))
        body.append(("ds", "ds_write_b16_d16_hi v%d, v%d" % (KW + 3, HP + 1)))
        for h in range(2): scale_r(ar_(4 + h, 1), RR + 4)
        for h in range(2): body.append(("ds", "ds_write_b64 v%d, %s offset:%d" % (KW + 4, vr(Kp(1, h), 2), 2048 + 8 * h)))
        for h in range(2): pack(Vp(1, h), ar_(4 + h, 1))
        for h in range(2): body.append(("ds", "ds_write_b64 v%d, %s offset:%d" % (KW + 4, vr(Vp(1, h), 2), 3072 + 8 * h)))
        for h in range(2): scale_l(ar_(2 + h, 0), 0)
        for h in range(2): scale_r(ar_(4 + h, 0), RR)
        for h in range(2): pack(Kp(0, h), ar_(2 + h, 0))
        body.append(("dsdrain",)); e("s_barrier")
        nbar = len(body)
        for h in range(2): body.append(("ds", "ds_read_b64 %s, v%d offset:%d" % (vr(Kp(-1, h), 2), KW + 4, 8 * h), ("kp", h)))
        for h in range(2): body.append(("ds", "ds_read_b64 %s, v%d offset:%d" % (vr(Vp(-1, h), 2), KW + 4, 1024 + 8 * h), ("vp", h)))
        units = [(1, 0), (1, 1), (0, 0), (0, 1)]
        SC = lambda u: F + 8 * u
        SP = lambda u: F + 8 * u + 4
        smf = lambda d, kb, u, bias: "v_mfma_f32_16x16x16_bf16 %s, %s, %s, %s" % (vr(d, 4), vr(Kp(kb, units[u][1]), 2), vr(Qp(*units[u]), 2), vr(bias, 4))
        M = [ACC + u for u in range(4)]
        def merge(u):
            for r in range(4): e("v_max_f32 v%d, v%d, v%d" % (SC(u) + r, SC(u) + r, SP(u) + r))
            e("v_max3_f32 v%d, v%d, v%d, v%d\nv_max_f32 v%d, v%d, v%d" % (M[u], SC(u), SC(u) + 1, SC(u) + 2, M[u], M[u], SC(u) + 3))
        e(smf(SC(0), 1, 0, BC)); pack(Vp(0, 0), ar_(4, 0))
        e(smf(SP(0), 0, 0, BP)); pack(Vp(0, 1), ar_(5, 0))
        e(smf(SC(1), 1, 1, BC)); e(smf(SP(1), 0, 1, BP)); e(smf(SC(2), 0, 2, BC)); e(smf(SC(3), 0, 3, BC))
        body.append(("wds", ("kp", 1)))
        e(smf(SP(2), -1, 2, BP0)); e(smf(SP(3), -1, 3, BP0))
        for u in range(4): merge(u)
        e("v_permlane32_swap_b32 v%d, v%d\nv_max_f32 v%d, v%d, v%d" % (M[0], M[1], M[0], M[0], M[1]))
        e("v_permlane32_swap_b32 v%d, v%d\nv_max_f32 v%d, v%d, v%d" % (M[2], M[3], M[2], M[2], M[3]))
        e("v_permlane16_swap_b32 v%d, v%d\nv_max_f32 v%d, v%d, v%d\nv_max_f32 v%d, v%d, v%d" % (M[0], M[2], M[1], M[0], M[2], M[2], M[0], M[2]))
        e("v_permlane16_swap_b32 v%d, v%d" % (M[1], M[2]))
        e("v_mul_f32 v%d, v%d, v%d\nv_mul_f32 v%d, v%d, v%d" % (M[0], M[1], CQ + 1, M[1], M[1], CQ + 1))
        e("v_mul_f32 v%d, v%d, v%d\nv_mul_f32 v%d, v%d, v%d" % (M[3], M[2], CQ, M[2], M[2], CQ))
        e("v_permlane32_swap_b32 v%d, v%d\nv_permlane32_swap_b32 v%d, v%d" % (M[0], M[1], M[2], M[3]))
        for u, (b, h) in enumerate(units):
            for k in range(2):
                e("v_pk_fma_f32 %s, %s, %s, %s op_sel:[0,%d,%d] op_sel_hi:[1,%d,%d] neg_lo:[0,0,1] neg_hi:[0,0,1]" %
                  (vr(SC(u) + 2 * k, 2), vr(SC(u) + 2 * k, 2), vr(CQ, 2), vr(ACC + 2 * (u // 2), 2), b, u % 2, b, u % 2))
        PM = lambda u: ACC + 4 + 2 * u
        PS = lambda u: ACC + 12 + 4 * u
        OP = lambda b: ACC + 28 + 4 * b
        def fin(u):
            b, h = units[u]
            e("v_rcp_f32 v%d, v%d" % (SP(u), SP(u)))
            for r in range(4): e("v_mul_f32 v%d, v%d, v%d" % (SC(u) + r, SC(u) + r, SP(u)))
            pack(OP(b) + 2 * h, SC(u))
            if h == 1:
                body.append(("vm", "buffer_store_dwordx4 %s, v%d, %s, %s offen offset:%d" % (vr(OP(b), 4), vQ, WS, sT0, b * 256), "o" if b == 0 else None))
        e("s_add_u32 %s, %s, %d" % (sT0, sOST, LY.OB[ps]))
        for u, (b, h) in enumerate(units):
            for r in range(4): e("v_exp_f32 v%d, v%d" % (SC(u) + r, SC(u) + r))
            if u == 2: body.append(("wds", ("vp", 1)))
            pack(PM(u), SC(u))
            for k in range(2):
                e("v_bfi_b32 v%d, v%d, 0, v%d\nv_and_b32 v%d, v%d, v%d" % (PS(u) + k, MC + k, PM(u) + k, PS(u) + 2 + k, MC + k, PM(u) + k))
            e("v_mfma_f32_16x16x16_bf16 %s, %s, %s, 0" % (vr(SP(u), 4), vr(ONES, 2), vr(PM(u), 2)))
            if u >= 1:
                e("v_mfma_f32_16x16x32_bf16 %s, %s, %s, 0" % (vr(SC(u - 1), 4), vr(Vp(units[u - 1][0] - 1, units[u - 1][1]), 4), vr(PS(u - 1), 4)))
        e("v_mfma_f32_16x16x32_bf16 %s, %s, %s, 0" % (vr(SC(3), 4), vr(Vp(-1, 1), 4), vr(PS(3), 4)))
        for u in range(4): fin(u)
        att = self.wgs("att", ps)
        if ps == 0:
            l_fb, g_fb = self.late_check("buffer_load_dword v%d, v%d, %s, 0 offen sc1" % (HF, HX, WS), HF, "exec", "fb")
            left = [[("i", self.getc(HX, aFB))] + l_fb] + left
            att = [[("i", op[1]) if op[0] == "atom" else op for op in g_fb]] + att
        left = self.weave(body[:nbar], left, 0, OPT["a_every"])
        left = self.weave(body[nbar:], left + att, 4, OPT["a_every"])
        print("  attention: %d groups left for the hand-off" % len(left))
        self.stamp()
        self.signal(4 * ps + 1, "o")
        a.run_all(self.flat(left + self.wgs("h1", ps)))
        self.stamp()

    def ksplit(self, kind, ps):
        a = self.a
        dn = kind == "dn"
        nk = 14 if dn else 4
        final = dn and ps == 1
        xo = 2 * ps + (2 if dn else 1)
        self.poll(4 * ps + (3 if dn else 1), sMB)
        self.stamp()
        bases, boff = (sHLD, LY.HB[ps]) if dn else (sOLD, LY.OB[ps])
        order = [(i, s) for i in range(4) for s in range(nk)]
        areg = lambda k: vr(X + (72 + 4 * (k % 16)) % 128, 4)
        ld = self.reg_loads([areg(k) for k in range(4 * nk)], [bases[i] for i, s in order], [boff + s * 2048 for i, s in order], sTA, vQ, "act")
        UP = OPT["k_up"]
        a.run_all(self.flat(ld[:UP]))
        XW, XR, R, P, U = 16, 19, 20, (ACC + 32, ACC + 48, F), F + 16
        vb, io = (vL16b, L_SCR_DN - 65536) if dn else (vL16, L_SCR_WO)
        for i in range(3): a.I("v_add_u32 v%d, %s, v%d" % (XW + i, sXW[i], vb))
        a.I("v_add_u32 v%d, %s, v%d" % (XR, sXR, vb))
        if dn:
            a.I("s_lshl_b32 %s, %s, 2\ns_add_u32 %s, %s, %s\ns_lshl_b32 %s, %s, 6\ns_add_u32 %s, %s, %d\nv_and_or_b32 v%d, v%d, 63, %s" %
                (sT0, sR, sT0, sT0, sW, sT0, sT0, sT0, sT0, L_RS, R, vFL, sT0))
            a.ds("ds_read_b32 v%d, v%d" % (R, R), "rs")
        for k in range(8):
            a.I("v_lshlrev_b32 v%d, 16, v%d\nv_and_b32 v%d, 0xffff0000, v%d" % (U + 2 * k, XRES + k, U + 2 * k + 1, XRES + k))
        sl = Slots()
        accr = lambda i, cb: ACC + 16 * (i % 2) + 4 * cb
        for k, (i, s) in enumerate(order):
            for cb in range(4):
                w = ar(16 * s + 4 * cb, 4) if dn else vr(X + 8 + 16 * s + 4 * cb, 4)
                d = vr(accr(i, cb), 4)
                n_ = sl.add("v_mfma_f32_16x16x32_bf16 %s, %s, %s, %s" % (d, w, areg(k), "0" if s == 0 else d), [("wvm", ("act", k))] if cb == 0 else [])
            if k + UP < 4 * nk:
                sl.put("m", n_ - 3, ld[k + UP])
        blk = 4 * nk
        writes = lambda i: [[("ds", "ds_write_b128 v%d, %s offset:%d" % (XW + i, vr(accr(i, cb), 4), io + cb * 1024))] for cb in range(4)] + [[("mark", ("w", i))]]
        reads = lambda i: [[("ds", "ds_read_b128 %s, v%d offset:%d" % (vr(P[i] + 4 * cb, 4), XR, io + i * 4096 + cb * 1024), ("r", i, cb))] for cb in range(4)]
        add = lambda d, s_: [[("i", "v_add_f32 v%d, v%d, v%d" % (d + e_, d + e_, s_ + e_))] for e_ in range(16)]
        bar = [[("dsdrain",), ("i", "s_barrier")]]
        for i in range(2): sl.after((i + 2) * blk - 1, ("need", ("w", i)))
        tail = []
        if dn:
            for i in range(3): sl.spread(writes(i), (i + 1) * blk + 1, (i + 1) * blk + 17)
            seq = bar + reads(0) + reads(1) + reads(2) + [[("wds", ("r", 1, 3))]] + add(P[0], P[1]) + [[("wds", ("r", 2, 3))]] + add(P[0], P[2])
            seq += [[("i", "v_fma_f32 v%d, v%d, v%d, v%d" % (U + e_, P[0] + e_, R, U + e_))] for e_ in range(16)]
            sl.spread(seq, 3 * blk + 19, 4 * blk - 3)
            pf = [] if final else [g for i in range(7) if i not in self.wq_late(1) for g in self.wq_chunk(i)]
        else:
            for i in range(2): sl.spread(writes(i), (i + 1) * blk + 1, (i + 2) * blk - 2)
            sl.spread(bar + reads(0) + reads(1) + writes(2), 3 * blk, 4 * blk - 2)
            pf = self.touch(aTH, sHST, LY.HB[ps], R) + self.wgs("wo", ps)
        pf = sl.pace(pf, 4 * blk - 4 * UP + 2, 4.4)
        self.lite(sl, kind, [(k * 4 * blk) // 8 for k in range(8)])
        self.report(kind + str(ps), sl.emit(a))
        self.stamp()
        pk = lambda op, d, x, y, z="": a.I("%s %s, %s, %s%s" % (op, vr(d, 2), vr(x, 2), vr(y, 2), z))
        A = accr(3, 0)
        if dn:
            for k in range(8): pk("v_pk_fma_f32", A + 2 * k, A + 2 * k, R, ", %s op_sel_hi:[1,0,1]" % vr(U + 2 * k, 2))
        else:
            a.ds_wait(("r", 1, 3))
            for k in range(4): pk("v_pk_add_f32", U + 2 * k, U + 2 * k, P[0] + 2 * k)
            a.run_all(self.flat(bar + reads(2)))
            for k in range(4, 8): pk("v_pk_add_f32", U + 2 * k, U + 2 * k, P[0] + 2 * k)
            for k in range(8): pk("v_pk_add_f32", A + 2 * k, A + 2 * k, P[1] + 2 * k)
            for k in range(8): pk("v_pk_add_f32", A + 2 * k, A + 2 * k, U + 2 * k)
            for k in range(8):
                a.ds_wait(("r", 2, k // 2))
                pk("v_pk_add_f32", A + 2 * k, A + 2 * k, P[2] + 2 * k)
        for k in range(8): a.I("v_cvt_pk_bf16_f32 v%d, v%d, v%d" % (XRES + k, A + 2 * k, A + 2 * k + 1))
        if final:
            a.I(self.getc(XW, aROW))
            for e_ in range(2): a.vm("buffer_store_dwordx4 %s, v%d, %s, 0 offen offset:%d" % (vr(XRES + 4 * e_, 4), XW, OUT, e_ * 64))
            self.stamp()
            return
        self.publish(xo, 1 if dn else None)
        self.stamp()
        n = OPT["dn_pre"] if dn else 0
        a.run_all(self.flat(pf[:n]))
        self.signal(4 if dn else 4 * ps + 2, "pub")
        if dn: self.halo_flag(1)
        a.run_all(self.flat(pf[n:] + ([] if dn else self.wgs("h2", ps))))
        self.stamp()

    def gu(self, ps):
        a = self.a
        xi = 2 * ps + 1
        self.poll(4 * ps + 2, sMA)
        self.stamp()
        SS, NM, HPK, CSA, NR = 16, 24, 28, 21, 8
        xl = self.reg_loads([vr(X + 4 * s, 4) for s in range(32)], [sXLD] * 32, [LY.XB[xi] + s * 1024 for s in range(32)], sTA, vL16, "x")
        UP = OPT["g_up"]
        a.run_all(self.flat(xl[:UP]))
        a.I("s_barrier")
        a.I(self.getc(NM, aSG) + "\ns_add_u32 %s, %s, %d" % (sT0, sSLD, LY.SB[xi]))
        g_st = [[("vm", "buffer_load_dwordx4 %s, v%d, %s, %s offen sc1" % (vr(SS, 4), NM, WS, sT0))],
                [("vm", "buffer_load_dwordx4 %s, v%d, %s, %s offen offset:16 sc1" % (vr(SS + 4, 4), NM, WS, sT0), "st")]]
        early = self.wg_early(ps)
        order = [(bl, s) for s in range(33) for bl in range(3)] + [(bl, s) for bl in range(3, 7) for s in range(33)]
        accb = {0: 0, 1: 1, 2: 2, 3: 3, 4: 0, 5: 1, 6: 2}
        sl = Slots()
        end = {}
        for k, (bl, s) in enumerate(order):
            d = vr(ACC + 16 * accb[bl], 16)
            pre = [("wds", ("f", k))]
            if bl == 0 and s < 32: pre.append(("wvm", ("x", s)))
            x = vr(X + 4 * s, 4) if s < 32 else vr(NM, 4)
            sl.add("v_mfma_f32_32x32x16_bf16 %s, %s, %s, %s" % (d, vr(F + 4 * (k % NR), 4), x, "0" if s == 0 else d), pre)
            end[bl] = k
        LA = 6
        def rd(k):
            off = ((k // 16 + 5) % 10) * 16384 + (k % 16) * 1024
            d = F + 4 * (k % NR)
            if order[k][1] < 32:
                return [("ds", "ds_read_b128 %s, %s" % (vr(d, 4), ldsaddr(off)), ("f", k))]
            return [("need", "csg"), ("i", "v_add_u32 v%d, %d, v%d" % (CSA, off, vFL)),
                    ("ds", "ds_read2st64_b32 %s, v%d offset0:0 offset1:1" % (vr(d, 2), CSA)),
                    ("ds", "ds_read2st64_b32 %s, v%d offset0:2 offset1:3" % (vr(d + 2, 2), CSA), ("f", k))]
        assert 0 in early and not set(early) & {7, 8, 9} and len(set(early)) == len(early)
        assert not set(self.digits("wg_q%d" % ps)) - {3, 4} and 2 not in early[:len(early) - len(self.digits("wg_h2%d" % ps))]
        for k in range(LA): a.run_all(rd(k))
        barpos = {}
        for k in range(LA, len(order)):
            if k % 16 == 0:
                ch = k // 16
                if ch not in early or 2 <= ch <= 6:
                    if ch not in early: sl.pre[k - LA + 1].append(("wvm", ("wg", ch)))
                    sl.after(k - LA, *(([("wvm", ("wg", ch))] if ch not in early else []) + [("i", "s_barrier")]))
                    barpos[ch] = k - LA
            sl.after(k - LA, *rd(k))
        wl = [(barpos[ch - 8] + 2 if ch >= 10 else 0, g) for ch in range(15) if ch not in early for g in self.wg_chunk(ch)]
        wd = self.reg_loads([ar(4 * k, 4) for k in range(56)], [sWD] * 56, [k * 1024 for k in range(56)], sTD, vL16, "wd") if ps == 0 else []
        xs = [(3 * (UP + n_), g) for n_, g in enumerate(xl[UP:])]
        xs[14 - UP:14 - UP] = [(3 * 14, g) for g in g_st]
        wdue = [barpos[ch] - 4 * (len(self.wg_chunk(ch)) - 1 - n_) for ch in range(15) if ch not in early for n_ in range(len(self.wg_chunk(ch)))]
        P = lambda key: OPT["g_%s%d" % (key, ps)] / 10
        pos, fab, ix, iw, idd, seq = 0.0, 0.0, 0, 0, 0, []
        last = end[6] - OPT["g_tail"]
        while ix < len(xs) or iw < len(wl) or (idd < len(wd) and pos <= last):
            xu = ix < len(xs) and xs[ix][0] - pos <= P("xlead")
            wok = iw < len(wl) and wl[iw][0] <= pos
            wu = wok and wdue[iw] - pos <= P("wmin")
            free = fab <= pos + P("slack")
            if xu and (not wu or xs[ix][0] <= wdue[iw] - P("wmin") + P("xlead")): pick = "x"
            elif wu: pick = "w"
            elif free and wok and (idd >= len(wd) or wdue[iw] - pos <= P("wmax")): pick = "w"
            elif free and idd < len(wd) and pos <= last: pick = "d"
            elif ix < len(xs): pick = "x"
            else:
                pos = int(pos) + 1; continue
            if pick == "x": g = xs[ix][1]; ix += 1
            elif pick == "w": g = wl[iw][1]; iw += 1; fab = max(fab, pos) + P("wcost")
            else: g = wd[idd]; idd += 1; fab = max(fab, pos) + P("dcost")
            behind = (ix < len(xs) and xs[ix][0] - pos < 0.7 * P("xlead")) or (iw < len(wl) and wdue[iw] - pos < 0.7 * P("wmin"))
            seq.append((pos, g)); pos += 1.0 if behind else P("every")
        assert not sl.pace(seq, 0, 0)
        left = wd[idd:]
        st = [[("wvm", "st")]]
        for o in (0, 1): st.append([("i", "v_add_f32 v%d, v%d, v%d" % (SS + o, SS + o, SS + 2 + o))])
        for o in (0, 1): st.append([("i", "v_add_f32 v%d, v%d, v%d" % (SS + 4 + o, SS + 4 + o, SS + 6 + o))])
        for o in (0, 1): st.append([("i", "v_add_f32 v%d, v%d, v%d" % (SS + o, SS + o, SS + 4 + o))])
        for o in (0, 1): st.append([("i", "v_mov_b32 v%d, v%d" % (SS + 2 + o, SS + o))])
        st.append([("mark", "csg")])
        for o in (0, 1): st.append([("i", "v_permlane32_swap_b32 v%d, v%d" % (SS + o, SS + 2 + o))])
        for o in (0, 1): st.append([("i", "v_add_f32 v%d, v%d, v%d" % (SS + o, SS + o, SS + 2 + o))])
        st += [[op] for op in self.ln_from_sums(SS, SS + 1, SS + 2)]
        st += [[("i", "v_cvt_pk_bf16_f32 v%d, -v%d, -v%d" % (NM + k, SS, SS))] for k in range(4)] + [[("mark", "nm")]]
        st += [[("i", "v_mul_f32 v%d, v%d, v%d" % (SS + 1, SS + 1, SS + 1))],
               [("i", "s_lshr_b32 %s, %s, 3\ns_add_u32 %s, %s, %d" % (sT0, sLW, sT0, sT0, L_RS))],
               [("i", "v_and_b32 v%d, 127, v%d" % (SS, vFL))], [("i", "v_add_u32 v%d, %s, v%d" % (SS, sT0, SS))]]
        sl.after(94, ("need", "nm"))
        sl.spread(st, 56, 90)
        def epi(bl):
            b = ACC + 16 * accb[bl]
            g = []
            for e_ in range(8):
                ga = b + (e_ // 4) * 8 + e_ % 4
                g.append([("i", "v_max_f32 v%d, 0, v%d" % (ga, ga))])
            for e_ in range(8):
                ga = b + (e_ // 4) * 8 + e_ % 4
                g.append([("i", "v_mul_f32 v%d, v%d, v%d" % (ga, ga, ga + 4))])
            g += [[("i", "v_cvt_pk_bf16_f32 v%d, v%d, v%d" % (HPK + k, b + (k // 2) * 8 + (k % 2) * 2, b + (k // 2) * 8 + (k % 2) * 2 + 1))] for k in range(4)]
            if bl < 3: g.append([("mark", ("epi", bl))])
            g.append([("i", "s_add_u32 %s, %s, %d" % (sTS, sHST, LY.HB[ps] + bl * 1024)),
                      ("vm", "buffer_store_dwordx4 %s, v%d, %s, %s offen" % (vr(HPK, 4), vL16, WS, sTS))])
            return g
        for bl in range(3): sl.after(end[bl + 3], ("need", ("epi", bl)))
        sl.spread(epi(0) + epi(1), end[2] + 3, end[3] - 1)
        sl.spread(epi(2) + epi(3), end[3] + 3, end[4] - 1)
        sl.spread(epi(4), end[4] + 3, end[5] - 8)
        sl.spread(epi(5), end[5] + 3, end[6] - 8)
        sl.put("v", barpos[13] + 1, [("ds", "ds_write_b32 v%d, v%d" % (SS, SS + 1))])
        if ps == 0:
            sl.put("v", end[6] - 4, [("i", "s_or_b32 %s, s2, %s" % (sT0, sW)), ("atom", "s_cmp_eq_u32 %s, 0\ns_cselect_b32 %s, %d, 0x%x" % (sT0, sT0, LY.EPOCH, OOB)),
                                     ("i", "v_mov_b32 v%d, %s" % (SS + 2, sNONCE)),
                                     ("vm", "buffer_store_dword v%d, v%d, %s, %s offen" % (SS + 2, vF1, WS, sT0))])
        self.lite(sl, "g", [0, 24, 48, 72, 98, 131, 164, 197])
        self.report("gu%d" % ps, sl.emit(a))
        a.run_all(self.flat(epi(6)))
        self.stamp()
        self.signal(4 * ps + 3)
        print("  gu: %d loads left for the hand-off" % len(left))
        a.run_all(self.flat(left))
        a.ds_drain()
        a.I("s_barrier")
        self.stamp()

    def build(self):
        a = self.a
        self.startup()
        for ps in range(2):
            self.qkv(ps); self.ksplit("wo", ps); self.gu(ps); self.ksplit("dn", ps)
        if OPT["stamps"]:
            a.I("s_waitcnt vmcnt(0)\ns_memrealtime s[6:7]\ns_waitcnt lgkmcnt(0)\nv_writelane_b32 v%d, s6, 63" % vSTAMP)
            a.I("s_lshl_b32 %s, s2, 10\ns_lshl_b32 %s, %s, 8\ns_add_u32 %s, %s, %s\ns_add_u32 %s, %s, %d" % (sT0, sT1, sW, sT0, sT0, sT1, sT0, sT0, LY.STAMP))
            a.I("buffer_store_dword v%d, v%d, %s, %s offen" % (vSTAMP, vFL, WS, sT0))
        if OPT["diagpad"]:
            a.I("L_pad:\ns_memrealtime s[80:81]\ns_waitcnt lgkmcnt(0)\ns_sub_u32 s80, s80, s6\ns_cmp_lt_u32 s80, %d\ns_cbranch_scc1 L_pad" % OPT["diagpad"])
        a.I("L_main_done:\ns_endpgm")
        for c in self.cold: a.I(c)
        a.I("L_code_end:")
        return a.lines

def main():
    ml, n2 = hazard_pass(Main().build())
    k = NAME + "_kernel"
    out = ["; Generated by gen/gen.py: one persistent kernel (weight re-layout, then four layers with flag hand-offs). " + " ".join(sys.argv[2:]),
           "; @launch grid=(256,1,1) block=(256,1,1) lds=163840",
           '.amdgcn_target "amdgcn-amd-amdhsa--gfx950"', ".text",
           ".globl %s" % k, ".p2align 8", ".type %s,@function" % k]
    out += [l if l.endswith(":") else "    " + l for l in ml]
    out += ['.section .rodata,"a"', ".p2align 6", """.amdhsa_kernel %s
  .amdhsa_next_free_vgpr 512
  .amdhsa_next_free_sgpr 102
  .amdhsa_accum_offset 256
  .amdhsa_group_segment_fixed_size 0
  .amdhsa_kernarg_size 80
  .amdhsa_user_sgpr_count 2
  .amdhsa_user_sgpr_kernarg_segment_ptr 1
  .amdhsa_system_sgpr_workgroup_id_x 1
  .amdhsa_float_denorm_mode_32 3
.end_amdhsa_kernel""" % k]
    open(sys.argv[1], "w").write("\n".join(out) + "\n")
    print("instructions: %d ; wait states added: %d" % (len(ml), n2))

main()
```

```python
import sys
from dsl import Asm, Slots, hazard_pass
import layout as LY

NAME = "interleave_layers__sliding_local_dilated__glu_gated_reglu__prompt"
OPT = dict(stamps=0, lite="-", hitw=0,
           q_up=8, q_every=45, q_hf=6, q_chk=6, q_h0=9, a_every=14, k_up=10, g_up=8, g_tail=12,
           g_every0=22, g_xlead0=200, g_wmin0=260, g_wmax0=500, g_slack0=20, g_wcost0=44, g_dcost0=22,
           g_every1=22, g_xlead1=200, g_wmin1=260, g_wmax1=500, g_slack1=20, g_wcost1=44, g_dcost1=22,
           wq_late1="-", dn_pre=6, q0_up=4, q0_lead=10, q0_every=25,
           wg_q0="-", wg_att0="0", wg_h10="-", wg_wo0="1", wg_h20="2",
           wg_q1="34", wg_att1="0", wg_h11="-", wg_wo1="1", wg_h21="2",
           touch=0, diagpad=0, diagat=0, diagwg=100, b_early=1, order="bao", q0_w=2, q0_fb=6, a_quiet=60, wd_q=0, wd_att=0, wd_h1=0, wd_wo=0, wd_h2=0)
for arg in sys.argv[2:]:
    k, v = arg.split("=")
    OPT[k] = v if isinstance(OPT[k], str) else int(v)

def vr(b, n): return "v[%d:%d]" % (b, b + n - 1)
def ar(b, n): return "a[%d:%d]" % (b, b + n - 1)
def magic(d): return (1 << 32) // d + 1
OOB = 0x40000000

WS, XIN, OUT = "s[8:11]", "s[12:15]", "s[16:19]"
sW, sJ, sR, sC, sG, sN, sNONCE, sSLOW = ("s%d" % i for i in range(20, 28))
sGB, sXLD, sXST, sOST, sXR, sHST, sSLD, sWQ, sWG, sWO, sWD, sLW = ("s%d" % i for i in range(28, 40))
sMA, sMB = "s[40:41]", "s[42:43]"
sFLG, sFLW, sHALO, sHFL, sTAB, sSST, sONE, sHDST, sHDFL, sP = ("s%d" % i for i in range(44, 54))
sMH = "s[54:55]"
sTA, sTW, sTD, sTS, sT0, sT1, sT2, sSPIN = ("s%d" % i for i in range(56, 64))
sOLD = ["s%d" % i for i in range(64, 68)]
sHLD = ["s%d" % i for i in range(68, 72)]
sXW = ["s%d" % i for i in range(72, 75)]
sFBO, sB0, sB1, sB2, sB3 = "s75", "s76", "s77", "s78", "s79"
SRC_A, SRC_G, SRC_U, SRC_D = 80, 84, 88, 92
sLW2, sLW4, sWQ4, sWG4 = "s96", "s97", "s98", "s99"
sST = 100
sHALO2 = sP
vL, vL16, vL16b, vL16c, vQ, vF1, vFL, vSTAMP = 0, 1, 2, 3, 4, 5, 6, 7
XRES = 8
X, ACC, F = 32, 160, 224
aROW, aST, aSQ, aSH, aSG, aHX, aHWR, aHWS, aHST, aHSS, aFB, aCSQ, aCSG, aTO, aTH = range(224, 239)
aBC, aBP, aBP0, aMC = 240, 244, 248, 252
L_HALO, L_RS, L_KV, L_TAB, L_FMT = 102400, 110592, 114688, 124928, 131072
L_SCR_WO, L_SCR_DN = 32768, 114688
NEG = "0xf149f2ca"

def ldsaddr(off):
    return "v%d offset:%d" % ((vL16, vL16b, vL16c)[off >> 16], off & 0xffff)

def isvm(g): return any(op[0] == "vm" for op in g)

class Main:
    def __init__(self):
        self.a = Asm()
        self.nstamp = 0
        self.cold = []
        self.nlite = 0
        self.wd = None
        self.ncall = 0

    def stamp(self, key=None):
        self.ncall += 1
        if OPT["diagpad"] and OPT["diagat"] == self.ncall:
            self.a.I("s_memrealtime s[%d:%d]" % (sST, sST + 1))
            self.a.ds_drain(force=True)
        if not OPT["stamps"] or (key is not None and OPT["lite"] != key):
            return
        a = self.a
        a.I("s_memtime s[%d:%d]" % (sST, sST + 1))
        a.ds_drain(force=True)
        for k in range(self.nlite):
            a.I("v_writelane_b32 v%d, s%d, %d" % (vSTAMP, 80 + 2 * k, self.nstamp))
            self.nstamp += 1
        self.nlite = 0
        a.I("v_writelane_b32 v%d, s%d, %d" % (vSTAMP, sST, self.nstamp))
        self.nstamp += 1

    def lite(self, sl, key, slots):
        if OPT["lite"] != key:
            return
        for i in slots[:8]:
            sl.after(i, ("i", "s_memtime s[%d:%d]" % (80 + 2 * self.nlite, 81 + 2 * self.nlite)))
            self.nlite += 1

    def report(self, name, r):
        print("  %s: cycles over budget %d, ops left after the loop %d" % ((name,) + r))

    def getc(self, v, acc): return "v_accvgpr_read_b32 v%d, a%d" % (v, acc)
    def flat(self, groups): return [op for g in groups for op in g]
    def digits(self, key): return tuple(int(c, 16) for c in str(OPT[key]) if c != "-")
    def wgs(self, where, ps): return [g for i in self.digits("wg_%s%d" % (where, ps)) for g in self.wg_chunk(i)]
    def wg_early(self, ps): return sum((self.digits("wg_%s%d" % (w, ps)) for w in ("q", "att", "h1", "wo", "h2")), ())
    def wq_late(self, ps): return tuple(range(7)) if ps == 0 else self.digits("wq_late1")

    def srd(self, base, lo, hi, nbytes):
        self.a.I("s_mov_b32 s%d, %s\ns_and_b32 s%d, %s, 0xffff\ns_mov_b32 s%d, %s\ns_mov_b32 s%d, 0x20000" %
                 (base, lo, base + 1, hi, base + 2, nbytes, base + 3))

    def lin(self, dst, base, terms):
        first = True
        for reg, mul in terms:
            self.a.I("s_mul_i32 %s, %s, %d\ns_add_u32 %s, %s, %s" % (sT2, reg, mul, dst, base if first else dst, sT2))
            first = False

    def sdivmod(self, q, r, x, d):
        self.a.I("s_mul_hi_u32 %s, %s, 0x%x\ns_mul_i32 %s, %s, %d\ns_sub_u32 %s, %s, %s" % (q, x, magic(d), sT2, q, d, r, x, sT2))

    def hi_lo(self, dst, src, t):
        return ["v_cvt_pk_bf16_f32 v%d, v%d, v%d" % (dst, src, src), "v_lshlrev_b32 v%d, 16, v%d" % (t, dst),
                "v_sub_f32 v%d, v%d, v%d" % (t, src, t), "v_cvt_pk_bf16_f32 v%d, v%d, v%d" % (dst, src, t)]

    def weave(self, body, groups, first, every):
        k = 0
        for n_, op in enumerate(body):
            if n_ >= first and (n_ - first) % every == 0:
                while k < len(groups):
                    g = groups[k]; k += 1
                    self.a.run_all(g)
                    if isvm(g): break
            self.a.run(op)
        return groups[k:]

    def signal(self, h, wait=None, halo_pass=None):
        a = self.a
        slow, done = a.label("slow"), a.label("sig")
        a.I("v_mov_b32 v30, %s" % sNONCE)
        if halo_pass is not None:
            h1, b1, h2, b2 = a.label("halo"), a.label("hback"), a.label("halo"), a.label("hback")
            n = a.vm_n - max(a.vm_tag[wait], a.vm_done)
            a.I("s_cmp_lg_u32 %s, 0x%x\ns_cbranch_scc1 %s" % (sHDST, OOB, h1))
            st = "\n".join("buffer_store_dwordx4 %s, v24, %s, %s offen offset:%d sc1" % (vr(XRES + 4 * e, 4), WS, sTS, e * 512) for e in range(2))
            self.cold.append("%s:\n%s\n%s\ns_add_u32 %s, %s, %d\n%s\nbuffer_store_dword v26, v25, %s, %s offen sc1\ns_waitcnt vmcnt(%d)\ns_branch %s" %
                             (h1, self.getc(24, aHST), self.getc(25, aHSS), sTS, sHDST, LY.HX[halo_pass], st, WS, sTS, n + 3, b1))
            self.cold.append("%s:\ns_add_u32 %s, %s, %d\ns_waitcnt vmcnt(1)\nbuffer_store_dword v30, v%d, %s, %s offen sc1\ns_branch %s" %
                             (h2, sTS, sHDFL, halo_pass * 16384, vF1, WS, sTS, b2))
            a.vm_wait(wait)
            a.I("%s:\ns_add_u32 %s, %s, %d\ns_cmp_lg_u32 %s, 0" % (b1, sTS, sFLW, h * 4096, sSLOW))
        else:
            a.I("s_add_u32 %s, %s, %d\ns_cmp_lg_u32 %s, 0" % (sTS, sFLW, h * 4096, sSLOW))
            if wait is None: a.vm_drain()
            else: a.vm_wait(wait)
        a.I("s_cbranch_scc1 %s" % slow)
        a.vm("buffer_store_dword v30, v%d, %s, %s offen" % (vF1, WS, sTS))
        a.I("%s:" % done)
        self.cold.append("%s:\nbuffer_wbl2 sc1\ns_waitcnt vmcnt(0)\nbuffer_store_dword v30, v%d, %s, %s offen sc1\ns_branch %s" % (slow, vF1, WS, sTS, done))
        if halo_pass is not None:
            a.I("s_cmp_lg_u32 %s, 0x%x\ns_cbranch_scc1 %s\n%s:" % (sHDST, OOB, h2, b2))

    def spin(self, load, test):
        a = self.a
        loop = a.label("poll")
        a.I("s_mov_b32 %s, 0x40000\n%s:\n%s" % (sSPIN, loop, load))
        a.I("s_sub_u32 %s, %s, 1\ns_cbranch_scc1 L_main_done" % (sSPIN, sSPIN))
        a.vm_drain(force=True)
        a.I("%s\ns_cbranch_scc1 %s" % (test, loop))

    def poll(self, h, mask, also=None):
        a = self.a
        a.state.pop(sTA, None)
        a.forget()
        a.I("s_add_u32 %s, %s, %d" % (sTA, sFLG, h * 4096))
        load = "buffer_load_dword v30, v%d, %s, %s offen sc1" % (vFL, WS, sTA)
        test = "v_cmp_ne_u32 vcc, %s, v30\ns_and_b64 vcc, vcc, %s" % (sNONCE, mask)
        if also is not None:
            load += "\nbuffer_load_dword v31, v%d, %s, 0 offen sc1" % (also, WS)
            test = "v_cmp_ne_u32 s[60:61], %s, v31\n%s\ns_or_b64 vcc, vcc, s[60:61]" % (sNONCE, test)
        self.spin(load, test)
        acq, ok = a.label("acq"), a.label("ok")
        a.I("s_cmp_lg_u32 %s, 0\ns_cbranch_scc1 %s\n%s:" % (sSLOW, acq, ok))
        self.cold.append("%s:\nbuffer_inv sc1\ns_waitcnt vmcnt(0)\ns_branch %s" % (acq, ok))

    def late_check(self, load, reg, mask, tag):
        a = self.a
        spin, back = a.label("lspin"), a.label("lback")
        cmp_, and_ = "v_cmp_ne_u32 vcc, %s, v%d" % (sNONCE, reg), "s_and_b64 vcc, vcc, %s" % mask
        self.cold.append("%s:\ns_mov_b32 %s, 0x40000\n%s_l:\n%s\ns_sub_u32 %s, %s, 1\ns_cbranch_scc1 L_main_done\ns_waitcnt vmcnt(0)\n%s\n%s\ns_cbranch_scc1 %s_l\ns_branch %s"
                         % (spin, sSPIN, spin, load, sSPIN, sSPIN, cmp_, and_, spin, back))
        return [("vm", load, tag)], [("wvm", tag), ("i", cmp_), ("atom", and_ + "\ns_cbranch_scc1 %s\n%s:" % (spin, back))]

    def dma_chunk(self, sbase, goff, loff, n, tag, sc=""):
        sw = {1: sLW, 2: sLW2, 4: sLW4}[n]
        setup = [("set", sTW, "s_add_u32 %s, %s, %d" % (sTW, sbase, goff)), ("set", "m0", "s_add_u32 m0, %s, %d" % (sw, loff))]
        return [setup + [("vm", "buffer_load_dwordx4 v%d, %s, %s offen offset:%d%s lds" % (vL16, WS, sTW, k * 1024, sc), tag if k == n - 1 else None)]
                for k in range(n)]

    def wq_chunk(self, i): return self.dma_chunk(sWQ4 if i < 6 else sWQ, i * 16384, i * 16384, 4 if i < 6 else 1, ("wq", i), " sc1")
    def wg_chunk(self, i): return self.dma_chunk(sWG4 if i < 14 else sWG, i * 16384, ((i + 5) % 10) * 16384, 4 if i < 14 else 2, ("wg", i), " sc1")

    def reg_loads(self, dsts, bases, offs, stmp, vaddr, tagbase):
        ops, cur = [], None
        for k, (d, sb, off) in enumerate(zip(dsts, bases, offs)):
            if cur is None or cur[0] != sb or not (0 <= off - cur[1] < 4096):
                cur = (sb, off)
            ops.append([("set", stmp, "s_add_u32 %s, %s, %d" % (stmp, sb, cur[1])),
                        ("vm", "buffer_load_dwordx4 %s, v%d, %s, %s offen offset:%d sc1" % (d, vaddr, WS, stmp, off - cur[1]), (tagbase, k))])
        return ops

    def touch(self, acc, sbase, off, tmp):
        if not OPT["touch"]: return []
        return [[("i", self.getc(tmp, acc) + "\ns_add_u32 %s, %s, %d" % (sT1, sbase, off)),
                 ("vm", "buffer_load_dword a255, v%d, %s, %s offen sc1" % (tmp, WS, sT1))]]

    def ln_from_sums(self, s1, s2, t):
        return [("i", x) for x in (
            "v_mul_f32 v%d, 0x3b000000, v%d" % (s1, s1),
            "v_mul_f32 v%d, v%d, v%d" % (t, s1, s1),
            "v_mul_f32 v%d, 0x3b000000, v%d" % (s2, s2),
            "v_sub_f32 v%d, v%d, v%d" % (s2, s2, t),
            "v_max_f32 v%d, 0, v%d" % (s2, s2),
            "v_cvt_pk_bf16_f32 v%d, v%d, v%d" % (s2, s2, s2),
            "v_lshlrev_b32 v%d, 16, v%d" % (s2, s2),
            "v_add_f32 v%d, 0x3727c5ac, v%d" % (s2, s2),
            "v_cvt_pk_bf16_f32 v%d, v%d, v%d" % (s2, s2, s2),
            "v_lshlrev_b32 v%d, 16, v%d" % (s2, s2),
            "v_sqrt_f32 v%d, v%d" % (s2, s2),
            "v_cvt_pk_bf16_f32 v%d, v%d, v%d" % (s2, s2, s2),
            "v_lshlrev_b32 v%d, 16, v%d" % (s2, s2),
            "v_rcp_f32 v%d, v%d" % (s2, s2))]

    def publish(self, xi):
        a = self.a
        S1, S2, S3, S4, AD = 26, 27, 28, 29, 25
        a.I("s_add_u32 %s, %s, %d" % (sTS, sXST, LY.XB[xi]))
        for e in range(2):
            a.vm("buffer_store_dwordx4 %s, v%d, %s, %s offen offset:%d" % (vr(XRES + 4 * e, 4), vQ, WS, sTS, e * 2048))
        for k in range(4):
            for d, p, o in ((S1, XRES + k, sONE), (S2, XRES + k, None), (S3, XRES + 4 + k, sONE), (S4, XRES + 4 + k, None)):
                a.I("v_dot2_f32_bf16 v%d, v%d, %s, %s" % (d, p, o or "v%d" % p, "v%d" % d if k else "0"))
        a.I(self.getc(AD, aST) + "\ns_add_u32 %s, %s, %d" % (sTS, sSST, LY.SB[xi]))
        a.I("v_add_f32 v%d, v%d, v%d\nv_add_f32 v%d, v%d, v%d" % (S1, S1, S3, S2, S2, S4))
        a.I("v_permlane32_swap_b32 v%d, v%d\nv_add_f32 v%d, v%d, v%d\nv_mov_b32 v%d, v%d" % (S1, S2, S1, S1, S2, S2, S1))
        a.I("v_permlane16_swap_b32 v%d, v%d\nv_add_f32 v%d, v%d, v%d" % (S1, S2, S1, S1, S2))
        a.vm("buffer_store_dword v%d, v%d, %s, %s offen" % (S1, AD, WS, sTS), "pub")

    def startup(self):
        a = self.a
        lin = self.lin
        t8, kc, tok, g, hh, t32, u0, u1, rr, cc, q16, vA, vR, vB, vD, TA0, TA1, TD, TG, CSW, XA, XV, FAV = range(X, X + 23)
        ONES = X + 24
        def put(acc): a.I("v_accvgpr_write_b32 a%d, v%d" % (acc, u1))
        a.I("%s_kernel:" % NAME)
        a.I("s_cmp_ge_u32 s2, 256\ns_cbranch_scc1 L_main_done")
        a.I("s_load_dwordx16 s[64:79], s[0:1], 0\ns_load_dwordx2 s[4:5], s[0:1], 72")
        if OPT["stamps"] or OPT["diagpad"]:
            a.I("s_memrealtime s[6:7]")
        if OPT["stamps"]:
            a.I("s_memtime s[%d:%d]" % (sST, sST + 1))
        a.I("s_getpc_b64 s[56:57]\nL_pc:\ns_lshr_b32 s58, s2, 3\ns_lshl_b32 s58, s58, 11")
        a.I("v_lshrrev_b32 v16, 6, v0\nv_lshrrev_b32 v17, 4, v0\nv_lshlrev_b32 v17, 7, v17\nv_add_u32 v17, s58, v17")
        a.I("v_min_u32 v17, L_code_end-L_pc-4, v17\nv_and_b32 v0, 63, v0\nv_readfirstlane_b32 %s, v16" % sW)
        a.vm("global_load_dword a255, v17, s[56:57]")
        a.I("s_and_b32 %s, s2, 7\ns_bfe_u32 %s, s2, 0x40003\ns_lshr_b32 %s, s2, 7" % (sN, sJ, sP))
        a.I("s_lshr_b32 %s, %s, 3\ns_and_b32 %s, %s, 7" % (sR, sJ, sC, sJ))
        a.I("v_and_b32 v%d, 7, v0\nv_lshrrev_b32 v%d, 3, v0\nv_and_b32 v%d, 15, v0\nv_lshrrev_b32 v%d, 4, v0" % (t8, kc, tok, g))
        cuA, kkA, stA, cuG, kkG, sSG, sSD, kkD = "s28", "s29", "s30", "s32", "s33", "s34", "s35", "s36"
        self.sdivmod(kkA, cuA, "s2", 24)
        a.I("s_sub_u32 %s, s2, 192\ns_lshr_b32 %s, %s, 3" % (sT0, sT0, sT0))
        a.I("s_cmp_lt_u32 s2, 192\ns_cselect_b32 %s, %s, %s\ns_cselect_b32 %s, %s, %s\ns_cselect_b32 %s, 3, 1\ns_lshl_b32 %s, %s, 10" %
            (cuA, cuA, sN, kkA, kkA, sT0, stA, stA, stA))
        a.I("v_lshlrev_b32 v%d, 4, v%d\nv_mad_u32_u24 v%d, v%d, %s, v%d" % (u0, t8, vA, kc, stA, u0))
        a.I("s_lshl_b32 %s, %s, 2\ns_add_u32 %s, %s, %s\ns_lshl_b32 %s, %s, 4\ns_mul_i32 %s, %s, %s" % (sT0, kkA, sT0, sT0, sW, sT0, sT0, sT0, sT0, stA))
        a.I("s_lshl_b32 %s, %s, 7\ns_add_u32 %s, %s, %s\ns_lshl_b32 %s, %s, 3\ns_add_u32 %s, %s, %s\ns_sub_u32 %s, %s, 1024" %
            (sT1, cuA, sT0, sT0, sT1, sT1, stA, sT1, sT1, sT0, sT1, sT1))
        a.I("s_lshl_b32 %s, %s, 11\ns_add_u32 m0, %s, %d" % (sLW2, sW, sLW2, L_FMT))
        a.I("s_lshl_b32 s31, %s, 1\ns_add_u32 s31, s31, %s\ns_lshl_b32 s31, s31, 2\ns_add_u32 s31, s31, %s\ns_lshl_b32 s31, s31, 5" % (sN, sR, sW))
        a.I("s_add_u32 s31, s31, %s\ns_lshl_b32 s31, s31, 3\ns_add_u32 s31, s31, %s\ns_lshl_b32 s31, s31, 7" % (sP, sC))
        a.I("v_lshlrev_b32 v%d, 11, v%d\nv_lshl_add_u32 v%d, v%d, 4, v%d\nv_add_u32 v%d, s31, v%d" % (vR, tok, vR, g, vR, vR, vR))
        self.sdivmod(kkG, cuG, "s2", 28)
        a.I("v_mul_u32_u24 v%d, 3584, v%d\nv_add_u32 v%d, v%d, v%d\nv_lshl_add_u32 v%d, v%d, 10, v%d" % (vB, kc, vB, vB, u0, vD, kc, u0))
        a.I("s_lshr_b32 %s, s2, 3" % kkD)
        lin(sSG, "0", [(kkG, 64 * 3584), (sW, 16 * 3584), (cuG, 128)])
        lin(sSD, "0", [(kkD, 65536), (sW, 16384), (sN, 128)])
        a.I("s_waitcnt lgkmcnt(0)")
        a.I("s_load_dword %s, s[4:5], %d" % (sNONCE, LY.EPOCH))
        a.I("s_cmp_lt_u32 s2, 192\ns_cselect_b32 s%d, s66, s68\ns_cselect_b32 s%d, s67, s69\ns_and_b32 s%d, s%d, 0xffff" % (SRC_A, SRC_A + 1, SRC_A + 1, SRC_A + 1))
        a.I("s_lshl_b32 s%d, %s, 9\ns_mov_b32 s%d, 0x20000" % (SRC_A + 2, stA, SRC_A + 3))
        sa = "s[%d:%d]" % (SRC_A, SRC_A + 3)
        a.vm("buffer_load_dwordx4 v%d, %s, %s offen lds" % (vA, sa, sT0))
        a.vm("buffer_load_dwordx4 v%d, %s, %s offen offset:1024 lds" % (vA, sa, sT1), "fa")
        self.srd(12, "s64", "s65", 2048 * 1024)
        a.vm("buffer_load_dwordx4 %s, v%d, %s, 0 offen" % (vr(XRES, 4), vR, XIN))
        a.vm("buffer_load_dwordx4 %s, v%d, %s, 0 offen offset:64" % (vr(XRES + 4, 4), vR, XIN), "x")
        if OPT["stamps"]:
            a.I("v_mov_b32 v%d, 0\nv_writelane_b32 v%d, s6, 62\nv_writelane_b32 v%d, s%d, 0" % (vSTAMP, vSTAMP, vSTAMP, sST))
            self.nstamp = 1
        self.srd(SRC_G, "s72", "s73", 512 * 3584)
        self.srd(SRC_U, "s74", "s75", 512 * 3584)
        self.srd(SRC_D, "s76", "s77", 1792 * 1024)
        def b_loads():
            for srdn, so, va, stride, lo in ((SRC_G, sSG, vB, 3584, 8192), (SRC_U, sSG, vB, 3584, 16384), (SRC_D, sSD, vD, 1024, 24576)):
                a.I("s_add_u32 m0, %s, %d\ns_add_u32 %s, %s, %d" % (sLW2, L_FMT + lo, sT0, so, 8 * stride - 1024))
                a.vm("buffer_load_dwordx4 v%d, s[%d:%d], %s offen lds" % (va, srdn, srdn + 3, so))
                a.vm("buffer_load_dwordx4 v%d, s[%d:%d], %s offen offset:1024 lds" % (va, srdn, srdn + 3, sT0), ("fb", lo))
        if OPT["b_early"]: b_loads()
        self.srd(8, "s4", "s5", LY.WS_USED)
        self.srd(16, "s78", "s79", 2048 * 1024)
        a.I("v_accvgpr_write_b32 a%d, v%d\nv_lshlrev_b32 v%d, 4, v0" % (aROW, vR, vL16))
        dA, dA2, dCS = "s3", "s0", "s1"
        a.I("s_and_b32 %s, %s, 7\ns_lshl_b32 %s, %s, 1\ns_lshr_b32 %s, %s, 1\ns_add_u32 %s, %s, %s" % (sT0, cuA, sT0, sT0, sT1, sW, sT0, sT0, sT1))
        a.I("s_mul_i32 %s, %s, %d\ns_add_u32 %s, %s, %d" % (sT0, sT0, LY.WQ_STRIDE, sT0, sT0, LY.WQ))
        a.I("s_lshr_b32 %s, %s, 3\ns_lshl_b32 %s, %s, 1\ns_and_b32 %s, %s, 1\ns_add_u32 %s, %s, %s" % (sT1, cuA, sT1, sT1, sT2, sW, sT1, sT1, sT2))
        lin(dA, sT0, [(kkA, 12288), (sT1, 1024)])
        lin(dCS, sT0, [(kkA, 64), (sT1, 512)])
        a.I("s_add_u32 %s, %s, 98304" % (dCS, dCS))
        lin(sT0, str(LY.WO), [(cuA, LY.WO_STRIDE), (kkA, 8192), (sW, 1024)])
        a.I("s_cmp_lt_u32 s2, 192\ns_cselect_b32 %s, %s, %s\ns_cselect_b32 %s, %s, 0x%x\ns_cselect_b32 %s, 6, 4\ns_cselect_b64 vcc, -1, 0" %
            (dA, dA, sT0, dCS, dCS, OOB, dA2))
        a.I("s_lshl_b32 %s, %s, 10\ns_add_u32 %s, %s, %s" % (dA2, dA2, dA2, dA2, dA))
        a.I("v_bfe_u32 v%d, v0, 2, 2\nv_and_b32 v%d, 3, v0\nv_bfe_u32 v%d, v0, 4, 1\nv_lshrrev_b32 v%d, 5, v0\nv_and_b32 v%d, 31, v0" % (rr, cc, q16, hh, t32))
        a.I("v_lshl_add_u32 v%d, v%d, 3, v%d\nv_lshlrev_b32 v%d, 7, v%d\nv_lshl_add_u32 v%d, v%d, 2, v%d\nv_lshlrev_b32 v%d, 7, v%d" % (u0, g, rr, u0, u0, u1, g, rr, u1, u1))
        a.I("s_lshr_b32 %s, %s, 1\ns_lshl_b32 %s, %s, 6\ns_and_b32 %s, %s, 1\ns_lshl_b32 %s, %s, 3\ns_add_u32 %s, %s, %s\ns_add_u32 %s, %s, %d" %
            (sT0, sW, sT0, sT0, sT1, sW, sT1, sT1, sT0, sT0, sT1, sT0, sT0, L_FMT))
        a.I("v_lshl_add_u32 v%d, v%d, 4, %s\nv_add_u32 v%d, v%d, v%d\nv_add_u32 v%d, v%d, v%d" % (TA1, cc, sT0, TD, TA1, u0, u1, u1, TA1))
        a.I("s_lshl_b32 %s, %s, 5\ns_add_u32 %s, %s, %d\nv_lshl_add_u32 v%d, v%d, 3, %s\nv_add_u32 v%d, v%d, v%d" % (sT0, sW, sT0, sT0, L_FMT, TA0, cc, sT0, u0, u0, TA0))
        a.I("v_cndmask_b32 v%d, v%d, v%d, vcc\nv_add_u32 v%d, 512, v%d\nv_add_u32 v%d, 2048, v%d\nv_cndmask_b32 v%d, v%d, v%d, vcc" % (TA0, u1, u0, u0, u0, u1, u1, TA1, u1, u0))
        a.I("v_lshl_add_u32 v%d, v%d, 3, v%d\nv_lshlrev_b32 v%d, 7, v%d\nv_lshrrev_b32 v%d, 1, v%d\nv_lshl_add_u32 v%d, v%d, 13, v%d" % (TG, hh, rr, TG, TG, u0, cc, TG, u0, TG))
        a.I("v_and_b32 v%d, 1, v%d\nv_lshl_add_u32 v%d, v%d, 4, v%d\nv_lshl_add_u32 v%d, v%d, 3, v%d\nv_add_u32 v%d, %s, v%d" % (u0, cc, TG, u0, TG, TG, q16, TG, TG, sT0, TG))
        for k in range(4): a.I("v_mov_b32 v%d, 0x3f803f80" % (ONES + k))
        a.I("v_lshlrev_b32 v%d, 2, v%d\nv_lshl_add_u32 v%d, v%d, 28, v%d" % (CSW, tok, CSW, g, CSW))
        a.I("s_mov_b32 %s, 0\ns_mov_b32 %s, 0x3f803f80\ns_lshl_b32 %s, %s, 1\ns_add_u32 %s, %s, %s" % (sSLOW, sONE, sG, sN, sG, sG, sP))
        a.I("v_cmp_ne_u32 vcc, 0, v0\nv_mov_b32 v%d, 0x%x\nv_lshlrev_b32 v%d, 2, v0\nv_cndmask_b32 v%d, 0, v%d, vcc" % (vF1, OOB, vFL, vF1, vF1))
        a.I("s_lshl_b32 %s, %s, %d\ns_add_u32 %s, %s, 0x%x" % (sGB, sG, LY.ACT_SHIFT, sGB, sGB, LY.ACT))
        lin(sXLD, sGB, [(sW, 32768)])
        a.I("s_lshr_b32 %s, %s, 1\ns_and_b32 %s, %s, 1" % (sT0, sW, sT1, sW))
        lin(sXST, sGB, [(sR, 65536), (sC, 4096), (sT0, 32768), (sT1, 256)])
        lin(sOST, sXLD, [(sJ, 2048)])
        lin(sSST, sGB, [(sR, 4096), (sC, 8), (sW, 1024)])
        if OPT["touch"]:
            a.I("v_and_b32 v%d, 1, v0\nv_lshlrev_b32 v%d, 7, v%d\nv_bfe_u32 v%d, v0, 1, 3\nv_lshl_add_u32 v%d, v%d, 9, v%d\nv_add_u32 v%d, %s, v%d" %
                (u0, u0, u0, u1, u0, u1, u0, u0, sXST, u0))
            a.I("s_add_u32 %s, %s, %d\nv_lshlrev_b32 v%d, 7, v%d\nv_add_u32 v%d, %s, v%d\nv_cmp_gt_u32 vcc, 16, v0\nv_cndmask_b32 v%d, v%d, v%d, vcc" %
                (sT0, sOST, LY.OB[0], u1, tok, u1, sT0, u1, u0, u1, u0))
            a.I("s_add_u32 %s, %s, %d\nv_lshlrev_b32 v%d, 7, v%d\nv_add_u32 v%d, %s, v%d\nv_cmp_gt_u32 vcc, 32, v0\nv_cndmask_b32 v%d, v%d, v%d, vcc" %
                (sT0, sSST, LY.SB[0], u1, t8, u1, sT0, u1, u0, u1, u0))
            a.vm("buffer_load_dword a255, v%d, %s, 0 offen sc1" % (u0, WS))
        lin(sT0, str(LY.XF), [(sG, 128)])
        a.I("v_lshl_add_u32 v%d, v%d, 2, %s" % (XA, tok, sT0))
        lin(sT0, sT0, [(sJ, 4)])
        a.I("s_cmp_eq_u32 %s, 0\ns_cselect_b32 %s, %s, 0x%x\ns_getreg_b32 %s, hwreg(HW_REG_XCC_ID, 0, 4)" % (sW, sT0, sT0, OOB, sT1))
        a.I("v_lshlrev_b32 v%d, 4, v%d\nv_lshl_add_u32 v%d, v%d, 9, v%d" % (u0, tok, vQ, g, u0))
        a.I("v_lshlrev_b32 v%d, 6, v%d\nv_lshl_add_u32 v%d, v%d, 2, v%d\nv_lshl_add_u32 v%d, v%d, 30, v%d" % (u1, tok, u1, hh, u1, u1, q16, u1)); put(aST)
        a.I("s_waitcnt lgkmcnt(0)\ns_add_u32 %s, %s, 0x9e3779b1\ns_xor_b32 %s, %s, %s\nv_mov_b32 v%d, %s" % (sNONCE, sNONCE, sT1, sT1, sNONCE, XV, sT1))
        a.vm("buffer_store_dword v%d, v%d, %s, %s offen sc1" % (XV, vF1, WS, sT0))
        self.stamp("p")
        a.vm_wait("fa")
        a.I("s_barrier")
        for sp in range(2):
            for half in range(2):
                a.ds("ds_read_b64_tr_b16 %s, v%d offset:%d" % (vr(ACC + 4 * sp + 2 * half, 2), (TA0, TA1)[half], sp * 4096), ("t", sp))
        self.stamp("p")
        for sp in range(2):
            a.ds_wait(("t", sp))
            a.vm("buffer_store_dwordx4 %s, v%d, %s, %s offen sc1" % (vr(ACC + 4 * sp, 4), vL16, WS, (dA, dA2)[sp]))
            a.I("v_mfma_f32_16x16x32_bf16 %s, %s, %s, %s" % (vr(ACC + 8, 4), vr(ONES, 4), vr(ACC + 4 * sp, 4), vr(ACC + 8, 4) if sp else "0"))
        a.I("v_bfe_u32 v%d, v0, 3, 1\nv_xor_b32 v%d, 1, v%d\nv_lshlrev_b32 v%d, 29, v%d" % (vA, vA, vA, vA, vA))
        a.I("s_lshl_b32 %s, %s, 3\ns_add_u32 %s, %s, %d\nv_add3_u32 v%d, v%d, v%d, %s" % (sT0, sC, sT0, sT0, 8192 - 512, u1, u1, vA, sT0)); put(aHSS)
        a.I("\n".join(self.hi_lo(ACC + 12, ACC + 8, ACC + 13)))
        a.vm("buffer_store_dword v%d, v%d, %s, %s offen sc1" % (ACC + 12, CSW, WS, dCS), "fas")
        if not OPT["b_early"]: b_loads()
        a.vm_wait("x")
        self.publish(0)
        xload = "buffer_load_dword v31, v%d, %s, 0 offen sc1" % (XA, WS)
        a.vm(xload, "xf")
        self.stamp("p")
        lin(sB3, str(LY.WD), [(sN, LY.WD_STRIDE), (kkD, 8192), (sW, 1024)])
        a.I("s_lshl_b32 %s, %s, 2\ns_add_u32 %s, %s, %s" % (cuG, cuG, cuG, cuG, sW))
        self.sdivmod(sT0, sT1, cuG, 7)
        lin(sB2, str(LY.WG), [(sT0, LY.WG_STRIDE)])
        a.I("s_mul_i32 %s, %s, 33\ns_cmp_lt_u32 %s, 3\ns_cselect_b32 %s, %s, %s\ns_cselect_b32 %s, 3, 1" % (sT0, sT1, sT1, sT1, sT1, sT0, sB1))
        a.I("s_lshl_b32 %s, %s, 10\ns_lshl_b32 %s, %s, 10\ns_add_u32 %s, %s, %s" % (sB1, sB1, sT1, sT1, sB2, sB2, sT1))
        a.I("s_lshl_b32 %s, %s, 2\ns_mul_i32 %s, %s, %s\ns_add_u32 %s, %s, %s" % (sT0, kkG, sT0, sT0, sB1, sB0, sB2, sT0))
        lin(sB2, sB2, [(sB1, 32), (kkG, 128)])
        a.I("s_cmp_lt_u32 s2, 224")
        for r_ in (sB0, sB2, sB3): a.I("s_cselect_b32 %s, %s, 0x%x" % (r_, r_, OOB))
        lin(sFLG, str(LY.FL), [(sG, 256)])
        lin(sFLW, sFLG, [(sJ, 16), (sW, 4)])
        lin(sHFL, str(LY.HFL), [(sG, 1024)])
        lin(sHDFL, sHFL, [(sC, 128)])
        lin(sFBO, str(LY.FA), [("s2", 128)])
        a.I("s_add_u32 %s, %s, 2048\ns_add_u32 %s, %s, 0x%x" % (sHDFL, sHDFL, sHDST, sGB, 2 * LY.ACT_STRIDE))
        a.I("s_cmp_eq_u32 %s, 0\ns_cselect_b32 %s, %s, 0x%x" % (sW, sFBO, sFBO, OOB))
        a.I("s_lshl_b32 %s, %s, 2\ns_add_u32 %s, %s, %s\ns_cmp_eq_u32 %s, 7\ns_cselect_b32 %s, 0, %s\ns_cmp_eq_u32 %s, 7" % (sT0, sR, sT0, sT0, sW, sN, sT0, sT0, sT0))
        a.I("s_cselect_b32 %s, %s, 0x%x" % (sHDST, sHDST, OOB))
        a.I("v_lshlrev_b32 v%d, 4, v%d\nv_lshl_add_u32 v%d, v%d, 7, v%d\nv_add_u32 v%d, %d, v%d" % (u0, t8, u0, g, u0, u1, L_HALO, u0)); put(aHX)
        a.I("s_lshl_b32 %s, %s, 10\nv_add3_u32 v%d, v%d, v%d, %s" % (sT0, sC, u1, u0, vA, sT0)); put(aHST)
        def second_unit():
            G, D, CS = ACC + 16, ACC + 32, ACC + 48
            a.vm_wait(("fb", 24576))
            a.I("s_barrier")
            for sp in range(4):
                for half in range(2):
                    a.ds("ds_read_b64_tr_b16 %s, v%d offset:%d" % (vr(G + 4 * sp + 2 * half, 2), TG, 8192 + (16 * sp + 4 * half) * 128), ("tg", sp))
            for sp in range(2):
                for half in range(2):
                    a.ds("ds_read_b64_tr_b16 %s, v%d offset:%d" % (vr(D + 4 * sp + 2 * half, 2), TD, 24576 + (32 * sp + 4 * half) * 128), ("td", sp))
            for sp in range(4):
                a.ds_wait(("tg", sp))
                a.vm("buffer_store_dwordx4 %s, v%d, %s, %s offen sc1" % (vr(G + 4 * sp, 4), vL16, WS, sB0))
                a.I("v_mfma_f32_32x32x16_bf16 %s, %s, %s, %s" % (vr(CS, 16), vr(ONES, 4), vr(G + 4 * sp, 4), vr(CS, 16) if sp else "0"))
                a.I("s_add_u32 %s, %s, %s" % (sB0, sB0, sB1))
            for sp in range(2):
                a.ds_wait(("td", sp))
                a.vm("buffer_store_dwordx4 %s, v%d, %s, %s offen sc1" % (vr(D + 4 * sp, 4), vL16, WS, sB3))
                a.I("s_add_u32 %s, %s, 4096" % (sB3, sB3))
            a.I("v_lshl_add_u32 v%d, v%d, 30, v%d" % (D + 9, hh, vFL))
            a.I("\n".join(self.hi_lo(D + 8, CS, CS + 1)))
            a.vm("buffer_store_dword v%d, v%d, %s, %s offen sc1" % (D + 8, D + 9, WS, sB2), "fbs")
            self.stamp("p")
        def first_flags():
            a.I("v_mov_b32 v30, %s" % sNONCE)
            a.vm_wait("fas")
            a.I("s_barrier")
            a.vm("buffer_store_dword v30, v%d, %s, %s offen sc1" % (vF1, WS, sFBO))
            a.I("s_add_u32 %s, %s, %d" % (sFBO, sFBO, LY.FB - LY.FA))
            self.stamp("p")
        def own_flags():
            spin, back = a.label("xspin"), a.label("xback")
            test = "v_xor_b32 v29, %s, v31\nv_cmp_lt_u32 vcc, 15, v29\ns_and_b64 vcc, vcc, exec" % sNONCE
            a.vm_wait("xf")
            a.I("%s\ns_cbranch_scc1 %s\n%s:" % (test, spin, back))
            self.cold.append("%s:\ns_mov_b32 %s, 0x40000\n%s_l:\n%s\ns_sub_u32 %s, %s, 1\ns_cbranch_scc1 L_main_done\ns_waitcnt vmcnt(0)\n%s\ns_cbranch_scc1 %s_l\ns_branch %s"
                             % (spin, sSPIN, spin, xload, sSPIN, sSPIN, test, spin, back))
            a.I("v_cmp_ne_u32 vcc, v%d, v31\ns_cmp_lg_u64 vcc, 0\ns_cselect_b32 %s, 1, 0" % (XV, sSLOW))
            self.signal(0, "pub", 0)
            self.stamp("p")
        for step in OPT["order"]:
            {"b": second_unit, "a": first_flags, "o": own_flags}[step]()
        lin(sHST, sGB, [(sW, 114688), (sJ, 7168)])
        lin(sSLD, sGB, [(sW, 2048)])
        lin(sOLD[3], sGB, [(sR, 65536), (sW, 8192)])
        lin(sHLD[3], sGB, [(sR, 229376), (sW, 28672)])
        for i in range(4):
            a.I("s_add_u32 %s, %s, %d\ns_and_b32 %s, %s, 3\ns_lshr_b32 %s, %s, 1\ns_and_b32 %s, %s, 1" % (sTA, sW, i + 1, sTA, sTA, sT0, sTA, sT1, sTA))
            lin(sOLD[i], sOLD[3], [(sT0, 32768), (sT1, 256)])
            lin(sHLD[i], sHLD[3], [(sT0, 114688), (sT1, 256)])
            if i < 3: lin(sXW[i], str(i * 4096), [(sTA, 12288)])
        lin(sXR, "0", [(sW, 12288)])
        lin(sWQ, str(LY.WQ), [(sJ, LY.WQ_STRIDE * (1 - OPT["hitw"]))])
        lin(sWG, str(LY.WG), [(sJ, LY.WG_STRIDE * (1 - OPT["hitw"]))])
        lin(sWO, str(LY.WO), [(sC, LY.WO_STRIDE * (1 - OPT["hitw"])), (sW, 16384)])
        lin(sWD, str(LY.WD), [(sC, LY.WD_STRIDE * (1 - OPT["hitw"])), (sW, 57344)])
        lin(sTAB, str(L_TAB), [(sW, 512)])
        a.I("s_lshl_b32 %s, %s, 10\ns_lshl_b32 %s, %s, 12\ns_add_u32 %s, %s, %s\ns_add_u32 %s, %s, %s" % (sLW, sW, sLW4, sW, sWQ4, sWQ, sLW4, sWG4, sWG, sLW4))
        a.I("s_cmp_eq_u32 %s, 0\ns_cselect_b32 %s, 0x%x, %s\ns_cselect_b32 s54, 0, 0xff\ns_mov_b32 s55, 0" % (sN, sHALO, OOB, sGB))
        a.I("s_add_u32 %s, %s, %s\ns_add_u32 %s, %s, %s\ns_add_u32 %s, %s, %s" % (sHALO2, sHALO, sLW2, sWQ, sWQ, sLW, sWG, sWG, sLW2))
        a.I("s_lshr_b32 %s, %s, 1\ns_lshl_b32 %s, %s, 5\ns_and_b32 %s, %s, 1\ns_lshl_b32 %s, %s, 1\ns_add_u32 %s, %s, %s" % (sT0, sW, sT0, sT0, sT1, sW, sT1, sT1, sT0, sT0, sT1))
        a.I("s_mov_b32 s40, 0x33333333\ns_mov_b32 s41, 0\ns_lshl_b64 s[40:41], s[40:41], %s" % sT0)
        a.I("s_lshl_b32 %s, %s, 1\ns_lshl_b32 %s, %s, 4\ns_add_u32 %s, %s, %s" % (sT0, sR, sT2, sW, sT0, sT0, sT2))
        a.I("s_mov_b32 s42, 0x3333\ns_mov_b32 s43, 0\ns_lshl_b64 s[42:43], s[42:43], %s" % sT0)
        a.I("v_add_u32 v%d, 0x10000, v%d\nv_add_u32 v%d, 0x20000, v%d" % (vL16b, vL16, vL16c, vL16))
        a.I("v_lshlrev_b32 v%d, 4, v%d\nv_lshl_add_u32 v%d, v%d, 6, v%d" % (u0, g, u1, tok, u0)); put(aSQ)
        a.I("v_lshl_add_u32 v%d, v%d, 6, v%d" % (u1, t8, u0)); put(aSH)
        a.I("v_lshlrev_b32 v%d, 5, v%d\nv_lshl_add_u32 v%d, v%d, 6, v%d" % (u0, hh, u1, t32, u0)); put(aSG)
        a.I("v_lshlrev_b32 v%d, 7, v%d" % (u1, tok)); put(aTO)
        a.I("v_min_u32 v%d, 55, v0\nv_lshlrev_b32 v%d, 7, v%d" % (u1, u1, u1)); put(aTH)
        a.I("v_lshlrev_b32 v%d, 7, v%d\nv_lshl_add_u32 v%d, v%d, 5, v%d\nv_lshl_add_u32 v%d, v%d, 1, v%d\nv_lshlrev_b32 v%d, 3, v0" % (u0, rr, u0, g, u0, u0, cc, u0, u1))
        a.I("s_cmp_ge_u32 %s, 2\ns_cselect_b64 vcc, -1, 0\ns_cselect_b32 %s, 2, 8\nv_cndmask_b32 v%d, v%d, v%d, vcc" % (sW, sT1, u1, u0, u1))
        a.I("s_lshr_b32 %s, %s, 1\ns_add_u32 %s, %s, %d\nv_add_u32 v%d, %s, v%d" % (sT0, sLW, sT0, sT0, L_KV, u1, sT0, u1)); put(aHWR)
        a.I("v_mov_b32 v%d, %s" % (u1, sT1)); put(aHWS)
        a.I("s_lshr_b32 %s, %s, 1\nv_mul_u32_u24 v%d, 24, v%d\nv_lshl_add_u32 v%d, v%d, 3, v%d\nv_add_u32 v%d, %s, v%d" % (sT0, sJ, u0, t8, u0, kc, u0, u0, sT0, u0))
        a.I("s_add_u32 %s, %s, 192\nv_lshl_add_u32 v%d, v%d, 3, %s\nv_cmp_gt_u32 vcc, 24, v0\nv_cndmask_b32 v%d, v%d, v%d, vcc" % (sT0, sC, u1, t8, sT0, u0, u1, u0))
        a.I("v_lshlrev_b32 v%d, 7, v%d\nv_add_u32 v%d, %d, v%d" % (u0, u0, FAV, LY.FA, u0))
        a.I("s_mul_i32 %s, %s, 7\ns_add_u32 %s, %s, 6\ns_lshr_b32 %s, %s, 2\ns_lshr_b32 %s, %s, 2" % (sT0, sJ, sT1, sT0, sT0, sT0, sT1, sT1))
        a.I("v_add_u32 v%d, %s, v%d\nv_min_u32 v%d, %s, v%d\nv_mad_u32_u24 v%d, v%d, 28, v%d" % (u0, sT0, kc, u0, sT1, u0, u0, t8, u0))
        a.I("v_min_u32 v%d, 27, v%d\nv_lshl_add_u32 v%d, v%d, 3, %s\nv_cmp_gt_u32 vcc, 32, v0\nv_cndmask_b32 v%d, v%d, v%d, vcc" % (u1, t32, u1, u1, sC, u0, u1, u0))
        a.I("v_lshlrev_b32 v%d, 7, v%d\nv_add_u32 v%d, %d, v%d" % (u0, u0, u1, LY.FB, u0)); put(aFB)
        NG, Z, M0_, M1_ = rr, cc, q16, hh
        a.I("s_or_b32 %s, %s, %s\ns_cmp_eq_u32 %s, 0\ns_cselect_b64 s[56:57], -1, 0" % (sT0, sN, sW, sT0))
        a.I("v_mov_b32 v%d, %s\nv_mov_b32 v%d, 0\nv_lshlrev_b32 v%d, 2, v%d\nv_sub_u32 v%d, v%d, v%d" % (NG, NEG, Z, vA, g, vA, tok, vA))
        for r in range(4):
            a.I("v_subrev_u32 v%d, %d, v%d\nv_mov_b32 v%d, %s" % (u0, r, vA, M0_, "0xffff0000" if r & 1 else "0xffff"))
            a.I("v_cmp_gt_u32 vcc, 8, v%d\nv_cmp_gt_i32 s[58:59], -8, v%d\nv_cmp_le_i32 s[60:61], 0, v%d" % (u0, u0, u0))
            a.I("v_cndmask_b32 v%d, v%d, v%d, vcc" % (u1, NG, Z)); put(aBC + r)
            a.I("v_cndmask_b32 v%d, v%d, v%d, s[58:59]" % (u1, NG, Z)); put(aBP + r)
            a.I("v_cndmask_b32 v%d, v%d, v%d, s[56:57]" % (u1, u1, NG)); put(aBP0 + r)
            if r & 1:
                a.I("v_cndmask_b32 v%d, v%d, v%d, s[60:61]\nv_or_b32 v%d, v%d, v%d" % (u1, Z, M0_, u1, u1, M1_)); put(aMC + r // 2)
            else:
                a.I("v_cndmask_b32 v%d, v%d, v%d, s[60:61]" % (M1_, Z, M0_))
        self.stamp("p")
        a.vm_wait("fbs")
        a.I("s_barrier")
        a.vm("buffer_store_dword v30, v%d, %s, %s offen sc1" % (vF1, WS, sFBO))
        self.stamp("p")
        self.fav = FAV

    def qkv(self, ps):
        a = self.a
        xi = 2 * ps
        late = self.wq_late(ps)
        wql = [g for ch in late for g in self.wq_chunk(ch)]
        self.poll(4 * ps, sMA, self.fav if ps == 0 else None)
        self.stamp()
        HX, HW, HW2, HF, NM, RL, CQ, RR = 16, 17, 18, 19, 20, 26, 28, ACC + 52
        xl = self.reg_loads([vr(X + 8 * s + 4 * b, 4) for s in range(16) for b in range(2)], [sXLD] * 32,
                            [LY.XB[xi] + s * 2048 + b * 256 for s in range(16) for b in range(2)], sTA, vQ, "x")
        UP = OPT["q_up"] if ps else OPT["q0_up"]
        if ps == 0:
            late = late[1:]
            n = 4 + OPT["q0_w"]
            a.run_all(self.flat(wql[:4] + xl[:UP] + wql[4:n])); wql = wql[n:]
        else:
            a.run_all(self.flat(xl[:UP]))
        a.I(self.getc(30, aSQ) + "\n" + self.getc(31, aSH) + "\n" + self.getc(HX, aHX))
        a.I("s_add_u32 %s, %s, 2048\nv_add_u32 v%d, %s, v%d\nv_add_u32 v%d, 0xc000, v%d\nv_lshlrev_b32 v%d, 7, v0" % (sT0, sLW, HW, sT0, vL16, HW2, HW, CQ))
        if ps == 0: a.vm_wait(("wq", 0))
        a.I("s_barrier")
        sl = Slots()
        use = {}
        acc = lambda blk, b: vr(ACC + 8 * blk + 4 * b, 4)
        hbuf = lambda t: (F + 24, X)[t % 2]
        step0 = {}
        H0 = OPT["q_h0"]
        hpos = {}
        for t in range(16):
            p = (t * 6 * (16 - H0)) // 16 + 1
            hpos.setdefault((H0 + p // 6, p % 6), []).append(t)
        Y, Z = X + 8, X + 96
        BC, BP, BP0, MC, ONES, KW, CSA = Y, Y + 4, Y + 8, Y + 12, Y + 14, Y + 16, Y + 21
        def halo_mfma(t):
            d = acc(6, 0)
            if t < 16:
                i = sl.add("v_mfma_f32_16x16x32_bf16 %s, %s, %s, %s" % (d, vr(hbuf(t) + 4, 4), vr(hbuf(t), 4), "0" if t == 0 else d), [("wds", ("hx", t))])
            else:
                i = sl.add("v_mfma_f32_16x16x16_bf16 %s, %s, %s, %s" % (d, vr(NM + 4, 2), vr(hbuf(t), 2), d), [("wds", ("hw", t))])
            use[("h", t)] = i
        for s in range(17):
            step0[s] = sl.n()
            if s == 16: halo_mfma(16)
            for f in range(6):
                for b in range(2):
                    pre_ = []
                    if b == 0: pre_.append(("wds", ("f", s, f)))
                    if f == 0 and s < 16: pre_.append(("wvm", ("x", 2 * s + b)))
                    w = vr(F + 4 * f, 4 if s < 16 else 2)
                    x = vr(X + 8 * s + 4 * b, 4) if s < 16 else vr(NM + 2 * b, 2)
                    A, B = (w, x) if f < 4 else (x, w)
                    d = acc(f, b)
                    mn = "v_mfma_f32_16x16x32_bf16" if s < 16 else "v_mfma_f32_16x16x16_bf16"
                    use[(s, f)] = sl.add("%s %s, %s, %s, %s" % (mn, d, A, B, "0" if s == 0 else d), pre_)
                for t in hpos.get((s, f), ()): halo_mfma(t)
        reads = []
        for s in range(17):
            for f in range(6):
                d = F + 4 * f
                if s < 16: t = "ds_read_b128 %s, %s" % (vr(d, 4), ldsaddr(s * 6144 + f * 1024))
                else: t = "ds_read2st64_b32 %s, v%d offset0:%d offset1:%d" % (vr(d, 2), CSA, 2 * f, 2 * f + 1)
                reads.append((use[(s - 1, f)] if s else -1, (6 * s + f) // 16, ("ds", t, ("f", s, f))))
        hbar = step0[H0 - 1] + 4
        for t in range(17):
            pos = use[("h", t - 2)] if t >= 2 else hbar + 2 + 2 * t
            if t < 16:
                reads.append((pos, (6 * t + 5) // 16, ("ds", "ds_read_b128 %s, v%d offset:%d" % (vr(hbuf(t), 4), HW if t < 8 else HW2, (t % 8) * 6144), ("hw", t))))
                reads.append((pos + (1 if t >= 2 else 0), 0, ("ds", "ds_read_b128 %s, v%d offset:%d" % (vr(hbuf(t) + 4, 4), HX, t * 512), ("hx", t))))
            else:
                reads.append((pos, 6, ("ds", "ds_read2st64_b32 %s, v%d offset0:4 offset1:5" % (vr(hbuf(t), 2), CSA + 1), ("hw", t))))
        sl.put("c", step0[4], [("i", "v_add_u32 v%d, 98304, v%d\ns_lshr_b32 %s, %s, 1\nv_add_u32 v%d, %s, v%d" % (CSA, vFL, sT2, sLW, CSA + 1, sT2, CSA)), ("mark", "csaddr")])
        sl.after(step0[14], ("need", "csaddr"))
        sl.pre[step0[16]].append(("wds", ("nm", 2)))
        chbar = {}
        for ch in late:
            ops = [("wvm", ("wq", ch)), ("i", "s_barrier")]
            p = chbar[ch] = min(p for p, c, _ in reads if c == ch)
            sl.after(p, *ops)
        sl.after(hbar, ("wvm", "halo"), ("i", "s_barrier"))
        for pos, _, rd in reads:
            if pos < 0: a.run(rd)
            else: sl.after(pos, rd)
        l_hf, g_chk = self.late_check("buffer_load_dword v%d, v%d, %s, %s offen sc1" % (HF, CQ, WS, sT1), HF, sMH, "hf")
        g_hf = [("i", "v_and_b32 v%d, 0x380, v%d\ns_add_u32 %s, %s, %d" % (CQ, CQ, sT1, sHFL, ps * 16384))] + l_hf
        g_hd = self.dma_chunk(sHALO2, LY.HX[ps], L_HALO, 2, "halo", " sc1")
        g_hs = [("i", "s_add_u32 %s, %s, %d" % (sT1, sHALO, LY.HX[ps] + 8192)),
                ("vm", "buffer_load_dwordx4 %s, v31, %s, %s offen sc1" % (vr(RR + 8, 4), WS, sT1), "st")]
        g_s0 = [("i", "s_add_u32 %s, %s, %d" % (sT0, sSLD, LY.SB[xi])), ("vm", "buffer_load_dwordx4 %s, v30, %s, %s offen sc1" % (vr(RR, 4), WS, sT0))]
        g_s1 = [("vm", "buffer_load_dwordx4 %s, v30, %s, %s offen offset:1024 sc1" % (vr(RR + 4, 4), WS, sT0))]
        wo = self.reg_loads([vr(X + 32 + 4 * k, 4) for k in range(16)], [sWO] * 16, [k * 1024 for k in range(16)], sTD, vL16, "wo")
        rest = xl[UP:]
        h1, h2 = OPT["q_hf"], OPT["q_hf"] + OPT["q_chk"] - 2
        seq = rest[:h1] + [g_hf, g_s0, g_s1] + rest[h1:h2] + [g_chk] + g_hd + [g_hs] + rest[h2:]
        if wql:
            due, d = [], sl.n()
            for g in reversed(seq):
                tag = g[-1][2] if len(g[-1]) > 2 else None
                if isinstance(tag, tuple) and tag[0] == "x": d = step0[tag[1] // 2]
                due.append((d, g))
            due.reverse()
            d, wdue = 0, []
            for g in reversed(wql):
                if g[-1][2] is not None: d = chbar[g[-1][2][1]] - OPT["q0_lead"]
                wdue.append((d, g)); d -= 6
            seq = [g for _, g in sorted(due + wdue[::-1], key=lambda t: t[0])]
        if ps: seq += self.touch(aTO, sOST, LY.OB[ps], CQ + 1)
        else:
            l_fb, g_fb = self.late_check("buffer_load_dword v%d, v%d, %s, 0 offen sc1" % (Y + 23, CQ + 1, WS), Y + 23, "exec", "fb")
            n = len(seq) - OPT["q0_fb"]
            seq = seq[:n] + [(step0[4], [("i", self.getc(CQ + 1, aFB))] + l_fb)] + seq[n:] + [g_fb + [("mark", "fb")]]
            sl.after(step0[16] - 1, ("need", "fb"))
        seq += self.wgs("q", ps) + self.wds("q", ps)
        seq += [(step0[5 + k // 2], g) for k, g in enumerate(wo)]
        left = sl.pace(seq, 0, (OPT["q_every"] if ps else OPT["q0_every"]) / 10)
        A0, A1, AH = RR, RR + 4, RR + 8
        st = [[("wvm", "st")]]
        for r_ in (A0, A1, AH):
            st.append([("i", "v_add_f32 v%d, v%d, v%d" % (r_, r_, r_ + 2))])
            st.append([("i", "v_add_f32 v%d, v%d, v%d" % (r_ + 1, r_ + 1, r_ + 3))])
        for o in (0, 1): st.append([("i", "v_mov_b32 v%d, v%d" % (AH + 2 + o, AH + o))])
        for o in (0, 1): st.append([("i", "v_permlane32_swap_b32 v%d, v%d" % (A0 + o, A1 + o))])
        for o in (0, 1): st.append([("i", "v_permlane32_swap_b32 v%d, v%d" % (AH + o, AH + 2 + o))])
        for o in (0, 1): st.append([("i", "v_add_f32 v%d, v%d, v%d" % (A0 + o, A0 + o, A1 + o))])
        for o in (0, 1): st.append([("i", "v_add_f32 v%d, v%d, v%d" % (AH + o, AH + o, AH + 2 + o))])
        for o in (0, 1): st.append([("i", "v_permlane16_swap_b32 v%d, v%d" % (A0 + o, AH + o))])
        for o in (0, 1): st.append([("i", "v_add_f32 v%d, v%d, v%d" % (A0 + o, A0 + o, AH + o))])
        st += [[op] for op in self.ln_from_sums(A0, A0 + 1, A0 + 2)]
        st.append([("i", "v_cvt_pk_bf16_f32 v%d, -v%d, -v%d" % (A0, A0, A0))])
        st.append([("i", "v_add_u32 v%d, %s, v%d" % (HF, sTAB, vFL))])
        st.append([("i", "v_and_or_b32 v30, v%d, 63, %s" % (vFL, sTAB))])
        st.append([("i", "v_and_or_b32 v31, v0, 48, %s" % sTAB)])
        st.append([("ds", "ds_write2st64_b32 v%d, v%d, v%d offset0:0 offset1:1" % (HF, A0 + 1, A0))])
        row = {0: 0, 1: 2, 2: 1}
        for b in range(3):
            o = 64 + row[b] * 16
            st.append([("ds", "ds_read2_b32 %s, v30 offset0:%d offset1:%d" % (vr(NM + 2 * b, 2), o, o), ("nm", b))])
        st.append([("ds", "ds_read2_b32 %s, v30 offset0:0 offset1:32" % vr(RL, 2))])
        for b in range(3):
            st.append([("ds", "ds_read_b128 %s, v31 offset:%d" % (vr(RR + 4 * b, 4), row[b] * 64), ("tab", b))])
        sl.spread(st, step0[H0], step0[14])
        cst = [[("i", self.getc(Y + k, aBC + k))] for k in range(14)]
        cst += [[("i", "v_mov_b32 v%d, %s" % (ONES + k, sONE))] for k in range(2)]
        cst += [[("i", self.getc(KW, aHWR))], [("i", self.getc(KW + 3, aHWS))], [("i", "s_add_u32 %s, %s, %d" % (sT2, sLW2, L_KV))],
                [("i", "v_add_u32 v%d, v%d, v%d" % (KW + 1, KW, KW + 3))], [("i", "v_lshl_add_u32 v%d, v0, 3, %s" % (KW + 4, sT2))],
                [("i", "v_add_u32 v%d, v%d, v%d" % (KW + 2, KW + 1, KW + 3))], [("i", "v_add_u32 v%d, v%d, v%d" % (KW + 3, KW + 2, KW + 3))]]
        sl.spread(cst, step0[4] + 2, step0[8], "c")
        Qp = lambda b, h: Z + 4 * h + 2 * b
        Kp = lambda b, h: Z + 8 + 6 * h + 2 * (b + 1)
        Vp = lambda b, h: Z + 20 + 6 * h + 2 * (b + 1)
        HP, HA = HX, ACC + 48
        ar_ = lambda blk, b: ACC + 8 * blk + 4 * b
        cvt = lambda d, s_: "v_cvt_pk_bf16_f32 v%d, v%d, v%d" % (d, s_, s_ + 1)
        tl = [("wds", ("tab", 2)), ("i", "v_mul_f32 v%d, 0x3eb8aa3b, v%d\nv_mul_f32 v%d, 0x3eb8aa3b, v%d" % (CQ, RL, CQ + 1, RL + 1))]
        tl += [("i", "v_mul_f32 v%d, v%d, v%d" % (HA + r, HA + r, RR + 8 + r)) for r in range(4)]
        tl += [("i", cvt(HP, HA)), ("i", cvt(HP + 1, HA + 2))]
        hw = [("ds", "ds_write_b16%s v%d, v%d" % ("_d16_hi" if r & 1 else "", KW + r, HP + r // 2)) for r in range(4)]
        qs = [(h, b) for h in range(2) for b in range(2)]
        for n_, (h, b) in enumerate(qs):
            tl += [hw[n_], ("i", cvt(Qp(b, h), ar_(h, b))), ("i", cvt(Qp(b, h) + 1, ar_(h, b) + 2))]
        sl.put("v", step0[16], tl)
        self.lite(sl, "q", [step0[s] for s in (0, 2, 4, 6, 8, 10, 12, 14)])
        self.report("qkv%d" % ps, sl.emit(a))
        self.stamp()
        body = []
        e = lambda t: body.extend(("i", x) for x in t.split("\n"))
        def pack(dst, src): e(cvt(dst, src) + "\n" + cvt(dst + 1, src + 2))
        def scale_l(src, b):
            for k in range(2): e("v_pk_mul_f32 %s, %s, %s op_sel:[0,%d] op_sel_hi:[1,%d]" % (vr(src + 2 * k, 2), vr(src + 2 * k, 2), vr(RL, 2), b, b))
        def scale_r(src, r0):
            for k in range(2): e("v_pk_mul_f32 %s, %s, %s" % (vr(src + 2 * k, 2), vr(src + 2 * k, 2), vr(r0 + 2 * k, 2)))
        kvw = lambda src, part: body.append(("ds", "ds_write_b64 v%d, %s offset:%d" % (KW + 4, vr(src, 2), 2048 + 512 * part)))
        for h in range(2):
            scale_l(ar_(2 + h, 1), 1); pack(Kp(1, h), ar_(2 + h, 1)); kvw(Kp(1, h), h); scale_l(ar_(2 + h, 0), 0)
        for h in range(2):
            scale_r(ar_(4 + h, 1), RR + 4); pack(Vp(1, h), ar_(4 + h, 1)); kvw(Vp(1, h), 2 + h); scale_r(ar_(4 + h, 0), RR)
        units = [(1, 0), (1, 1), (0, 0), (0, 1)]
        SC = lambda u: F + 8 * u
        SP = lambda u: F + 8 * u + 4
        smf = lambda d, kb, u, bias: "v_mfma_f32_16x16x16_bf16 %s, %s, %s, %s" % (vr(d, 4), vr(Kp(kb, units[u][1]), 2), vr(Qp(*units[u]), 2), vr(bias, 4))
        M = [ACC + u for u in range(4)]
        def merge(u):
            return ["v_max_f32 v%d, v%d, v%d" % (SC(u) + r, SC(u) + r, SP(u) + r) for r in range(4)] + [
                "v_max3_f32 v%d, v%d, v%d, v%d" % (M[u], SC(u), SC(u) + 1, SC(u) + 2), "v_max_f32 v%d, v%d, v%d" % (M[u], M[u], SC(u) + 3)]
        e(smf(SC(0), 1, 0, BC)); pack(Kp(0, 0), ar_(2, 0))
        e(smf(SC(1), 1, 1, BC)); pack(Kp(0, 1), ar_(3, 0))
        e(smf(SP(0), 0, 0, BP))
        body.append(("dsdrain",)); e("s_barrier")
        nbar = len(body)
        rdkv = lambda dst, part, tag: body.append(("ds", "ds_read_b64 %s, v%d offset:%d" % (vr(dst, 2), KW + 4, 512 * part), tag))
        e(smf(SP(1), 0, 1, BP)); rdkv(Kp(-1, 0), 0, ("kp", 0)); rdkv(Kp(-1, 1), 1, ("kp", 1))
        e(smf(SC(2), 0, 2, BC)); rdkv(Vp(-1, 0), 2, ("vp", 0)); rdkv(Vp(-1, 1), 3, ("vp", 1))
        e(smf(SC(3), 0, 3, BC)); pack(Vp(0, 0), ar_(4, 0)); pack(Vp(0, 1), ar_(5, 0))
        m0, m1 = merge(0), merge(1)
        e("\n".join(m0))
        body.append(("wds", ("kp", 1)))
        e(smf(SP(2), -1, 2, BP0)); e("\n".join(m1[:2]))
        e(smf(SP(3), -1, 3, BP0)); e("\n".join(m1[2:]))
        e("s_add_u32 %s, %s, %d" % (sT0, sOST, LY.OB[ps]))
        e("\n".join(merge(2)[:2]))
        e("v_permlane32_swap_b32 v%d, v%d" % (M[0], M[1]))
        e("\n".join(merge(2)[2:] + merge(3)))
        e("v_max_f32 v%d, v%d, v%d" % (M[0], M[0], M[1]))
        e("v_permlane32_swap_b32 v%d, v%d\nv_max_f32 v%d, v%d, v%d" % (M[2], M[3], M[2], M[2], M[3]))
        e("v_permlane16_swap_b32 v%d, v%d\nv_max_f32 v%d, v%d, v%d\nv_max_f32 v%d, v%d, v%d" % (M[0], M[2], M[1], M[0], M[2], M[2], M[0], M[2]))
        e("v_permlane16_swap_b32 v%d, v%d" % (M[1], M[2]))
        e("v_mul_f32 v%d, v%d, v%d\nv_mul_f32 v%d, v%d, v%d" % (M[0], M[1], CQ + 1, M[1], M[1], CQ + 1))
        e("v_mul_f32 v%d, v%d, v%d\nv_mul_f32 v%d, v%d, v%d" % (M[3], M[2], CQ, M[2], M[2], CQ))
        def shift(u):
            for k in range(2):
                e("v_pk_fma_f32 %s, %s, %s, %s op_sel:[0,%d,%d] op_sel_hi:[1,%d,%d] neg_lo:[0,0,1] neg_hi:[0,0,1]" %
                  (vr(SC(u) + 2 * k, 2), vr(SC(u) + 2 * k, 2), vr(CQ, 2), vr(ACC + 2 * (u // 2), 2), units[u][0], u % 2, units[u][0], u % 2))
        e("v_permlane32_swap_b32 v%d, v%d" % (M[0], M[1])); shift(0)
        e("v_permlane32_swap_b32 v%d, v%d" % (M[2], M[3])); shift(1); shift(2); shift(3)
        PM = lambda u: ACC + 4 + 2 * u
        PS = lambda u: ACC + 12 + 4 * u
        OP = lambda b: ACC + 28 + 4 * b
        pv = lambda u: "v_mfma_f32_16x16x32_bf16 %s, %s, %s, 0" % (vr(SC(u), 4), vr(Vp(units[u][0] - 1, units[u][1]), 4), vr(PS(u), 4))
        for u, (b, h) in enumerate(units):
            for r in range(4):
                e("v_exp_f32 v%d, v%d" % (SC(u) + r, SC(u) + r))
                if r == 1 and u >= 1: e(pv(u - 1))
            if u == 2: body.append(("wds", ("vp", 1)))
            if u >= 2: e("v_rcp_f32 v%d, v%d" % (SP(u - 2), SP(u - 2)))
            pack(PM(u), SC(u))
            for k in range(2):
                e("v_bfi_b32 v%d, v%d, 0, v%d\nv_and_b32 v%d, v%d, v%d" % (PS(u) + k, MC + k, PM(u) + k, PS(u) + 2 + k, MC + k, PM(u) + k))
            e("v_mfma_f32_16x16x16_bf16 %s, %s, %s, 0" % (vr(SP(u), 4), vr(ONES, 2), vr(PM(u), 2)))
        e("v_rcp_f32 v%d, v%d" % (SP(2), SP(2)))
        e(pv(3))
        def fin(u, packed):
            b, h = units[u]
            if packed:
                for k in range(2): e("v_pk_mul_f32 %s, %s, %s op_sel_hi:[1,0]" % (vr(SC(u) + 2 * k, 2), vr(SC(u) + 2 * k, 2), vr(SP(u), 2)))
            else:
                for r in range(4): e("v_mul_f32 v%d, v%d, v%d" % (SC(u) + r, SC(u) + r, SP(u)))
            pack(OP(b) + 2 * h, SC(u))
            if h == 1:
                body.append(("vm", "buffer_store_dwordx4 %s, v%d, %s, %s offen offset:%d" % (vr(OP(b), 4), vQ, WS, sT0, b * 256), "o" if b == 0 else None))
        fin(0, False); fin(1, True)
        e("v_rcp_f32 v%d, v%d" % (SP(3), SP(3)))
        fin(2, True); fin(3, True)
        left = self.weave(body[:nbar], left, 0, OPT["a_every"])
        stop = len(body) - OPT["a_quiet"]
        left = self.weave(body[nbar:stop], left + self.wgs("att", ps) + self.wds("att", ps), 4, OPT["a_every"])
        a.run_all(body[stop:])
        print("  attention: %d groups left for the hand-off" % len(left))
        self.stamp()
        self.signal(4 * ps + 1, "o")
        a.run_all(self.flat(left + self.wgs("h1", ps) + self.wds("h1", ps)))
        self.stamp()

    def wds(self, where, ps):
        if ps: return []
        if self.wd is None:
            self.wd = self.reg_loads([ar(4 * k, 4) for k in range(56)], [sWD] * 56, [k * 1024 for k in range(56)], sTD, vL16, "wd")
        n = OPT.get("wd_" + where, 56)
        out, self.wd = self.wd[:n], self.wd[n:]
        return out

    def ksplit(self, kind, ps):
        a = self.a
        dn = kind == "dn"
        nk = 14 if dn else 4
        final = dn and ps == 1
        xo = 2 * ps + (2 if dn else 1)
        self.poll(4 * ps + (3 if dn else 1), sMB)
        self.stamp()
        bases, boff = (sHLD, LY.HB[ps]) if dn else (sOLD, LY.OB[ps])
        order = [(i, s) for i in range(4) for s in range(nk)]
        areg = lambda k: vr(X + (96 + 4 * (k % 16)) % 128, 4)
        ld = self.reg_loads([areg(k) for k in range(4 * nk)], [bases[i] for i, s in order], [boff + s * 2048 for i, s in order], sTA, vQ, "act")
        UP = OPT["k_up"]
        a.run_all(self.flat(ld[:UP]))
        XW, XR, R, P, U = 16, 19, 20, (ACC + 32, ACC + 48, F), F + 16
        vb, io = (vL16b, L_SCR_DN - 65536) if dn else (vL16, L_SCR_WO)
        for i in range(3): a.I("v_add_u32 v%d, %s, v%d" % (XW + i, sXW[i], vb))
        a.I("v_add_u32 v%d, %s, v%d" % (XR, sXR, vb))
        if dn:
            a.I("s_lshl_b32 %s, %s, 2\ns_add_u32 %s, %s, %s\ns_lshl_b32 %s, %s, 6\ns_add_u32 %s, %s, %d\nv_and_or_b32 v%d, v%d, 63, %s" %
                (sT0, sR, sT0, sT0, sW, sT0, sT0, sT0, sT0, L_RS, R, vFL, sT0))
            a.ds("ds_read_b32 v%d, v%d" % (R, R), "rs")
        for k in range(8):
            a.I("v_lshlrev_b32 v%d, 16, v%d\nv_and_b32 v%d, 0xffff0000, v%d" % (U + 2 * k, XRES + k, U + 2 * k + 1, XRES + k))
        sl = Slots()
        accr = lambda i, cb: ACC + 16 * (i % 2) + 4 * cb
        for k, (i, s) in enumerate(order):
            for cb in range(4):
                w = ar(16 * s + 4 * cb, 4) if dn else vr(X + 32 + 16 * s + 4 * cb, 4)
                d = vr(accr(i, cb), 4)
                n_ = sl.add("v_mfma_f32_16x16x32_bf16 %s, %s, %s, %s" % (d, w, areg(k), "0" if s == 0 else d), [("wvm", ("act", k))] if cb == 0 else [])
            if k + UP < 4 * nk:
                sl.put("m", n_ - 3, ld[k + UP])
        blk = 4 * nk
        writes = lambda i: [[("ds", "ds_write_b128 v%d, %s offset:%d" % (XW + i, vr(accr(i, cb), 4), io + cb * 1024))] for cb in range(4)] + [[("mark", ("w", i))]]
        reads = lambda i: [[("ds", "ds_read_b128 %s, v%d offset:%d" % (vr(P[i] + 4 * cb, 4), XR, io + i * 4096 + cb * 1024), ("r", i, cb))] for cb in range(4)]
        add = lambda d, s_: [[("i", "v_add_f32 v%d, v%d, v%d" % (d + e_, d + e_, s_ + e_))] for e_ in range(16)]
        bar = [[("dsdrain",), ("i", "s_barrier")]]
        for i in range(2): sl.after((i + 2) * blk - 1, ("need", ("w", i)))
        tail = []
        if dn:
            for i in range(3): sl.spread(writes(i), (i + 1) * blk + 1, (i + 1) * blk + 17)
            seq = bar + reads(0) + reads(1) + reads(2) + [[("wds", ("r", 1, 3))]] + add(P[0], P[1]) + [[("wds", ("r", 2, 3))]] + add(P[0], P[2])
            seq += [[("i", "v_fma_f32 v%d, v%d, v%d, v%d" % (U + e_, P[0] + e_, R, U + e_))] for e_ in range(16)]
            sl.spread(seq, 3 * blk + 19, 4 * blk - 3)
            pf = [] if final else [g for i in range(7) if i not in self.wq_late(1) for g in self.wq_chunk(i)]
        else:
            for i in range(2): sl.spread(writes(i), (i + 1) * blk + 1, (i + 2) * blk - 2)
            sl.spread(bar + reads(0) + reads(1) + writes(2), 3 * blk, 4 * blk - 2)
            pf = self.wgs("wo", ps) + self.wds("wo", ps)
        pf = sl.pace(pf, 4 * blk - 4 * UP + 2, 4.4)
        self.lite(sl, kind, [(k * 4 * blk) // 8 for k in range(8)])
        self.report(kind + str(ps), sl.emit(a))
        self.stamp()
        pk = lambda op, d, x, y, z="": a.I("%s %s, %s, %s%s" % (op, vr(d, 2), vr(x, 2), vr(y, 2), z))
        A = accr(3, 0)
        if dn:
            for k in range(8): pk("v_pk_fma_f32", A + 2 * k, A + 2 * k, R, ", %s op_sel_hi:[1,0,1]" % vr(U + 2 * k, 2))
        else:
            a.ds_wait(("r", 1, 3))
            for k in range(4): pk("v_pk_add_f32", U + 2 * k, U + 2 * k, P[0] + 2 * k)
            a.run_all(self.flat(bar + reads(2)))
            for k in range(4, 8): pk("v_pk_add_f32", U + 2 * k, U + 2 * k, P[0] + 2 * k)
            for k in range(8): pk("v_pk_add_f32", A + 2 * k, A + 2 * k, P[1] + 2 * k)
            for k in range(8): pk("v_pk_add_f32", A + 2 * k, A + 2 * k, U + 2 * k)
            for k in range(8):
                a.ds_wait(("r", 2, k // 2))
                pk("v_pk_add_f32", A + 2 * k, A + 2 * k, P[2] + 2 * k)
        for k in range(8): a.I("v_cvt_pk_bf16_f32 v%d, v%d, v%d" % (XRES + k, A + 2 * k, A + 2 * k + 1))
        if final:
            a.I(self.getc(XW, aROW))
            for e_ in range(2): a.vm("buffer_store_dwordx4 %s, v%d, %s, 0 offen offset:%d" % (vr(XRES + 4 * e_, 4), XW, OUT, e_ * 64))
            self.stamp()
            return
        self.publish(xo)
        self.stamp()
        n = OPT["dn_pre"] if dn else 0
        a.run_all(self.flat(pf[:n]))
        self.signal(4 if dn else 4 * ps + 2, "pub", 1 if dn else None)
        a.run_all(self.flat(pf[n:] + ([] if dn else self.wgs("h2", ps) + self.wds("h2", ps))))
        self.stamp()

    def gu(self, ps):
        a = self.a
        xi = 2 * ps + 1
        self.poll(4 * ps + 2, sMA)
        self.stamp()
        SS, NM, HPK, CSA, NR = 16, 24, 28, 21, 8
        xl = self.reg_loads([vr(X + 4 * s, 4) for s in range(32)], [sXLD] * 32, [LY.XB[xi] + s * 1024 for s in range(32)], sTA, vL16, "x")
        UP = OPT["g_up"]
        a.run_all(self.flat(xl[:UP]))
        a.I("s_barrier")
        a.I(self.getc(NM, aSG) + "\ns_add_u32 %s, %s, %d" % (sT0, sSLD, LY.SB[xi]))
        g_st = [[("vm", "buffer_load_dwordx4 %s, v%d, %s, %s offen sc1" % (vr(SS, 4), NM, WS, sT0))],
                [("vm", "buffer_load_dwordx4 %s, v%d, %s, %s offen offset:16 sc1" % (vr(SS + 4, 4), NM, WS, sT0), "st")]]
        early = self.wg_early(ps)
        order = [(bl, s) for s in range(33) for bl in range(3)] + [(bl, s) for bl in range(3, 7) for s in range(33)]
        accb = {0: 0, 1: 1, 2: 2, 3: 3, 4: 0, 5: 1, 6: 2}
        sl = Slots()
        end = {}
        for k, (bl, s) in enumerate(order):
            d = vr(ACC + 16 * accb[bl], 16)
            pre = [("wds", ("f", k))]
            if bl == 0 and s < 32: pre.append(("wvm", ("x", s)))
            x = vr(X + 4 * s, 4) if s < 32 else vr(NM, 4)
            sl.add("v_mfma_f32_32x32x16_bf16 %s, %s, %s, %s" % (d, vr(F + 4 * (k % NR), 4), x, "0" if s == 0 else d), pre)
            end[bl] = k
        LA = 6
        def rd(k):
            off = ((k // 16 + 5) % 10) * 16384 + (k % 16) * 1024
            d = F + 4 * (k % NR)
            if order[k][1] < 32:
                return [("ds", "ds_read_b128 %s, %s" % (vr(d, 4), ldsaddr(off)), ("f", k))]
            return [("need", "csg"), ("i", "v_add_u32 v%d, %d, v%d" % (CSA, off, vFL)),
                    ("ds", "ds_read2st64_b32 %s, v%d offset0:0 offset1:1" % (vr(d, 2), CSA)),
                    ("ds", "ds_read2st64_b32 %s, v%d offset0:2 offset1:3" % (vr(d + 2, 2), CSA), ("f", k))]
        assert 0 in early and not set(early) & {7, 8, 9} and len(set(early)) == len(early)
        assert not set(self.digits("wg_q%d" % ps)) - {3, 4} and 2 not in early[:len(early) - len(self.digits("wg_h2%d" % ps))]
        for k in range(LA): a.run_all(rd(k))
        barpos = {}
        for k in range(LA, len(order)):
            if k % 16 == 0:
                ch = k // 16
                if ch not in early or 2 <= ch <= 6:
                    if ch not in early: sl.pre[k - LA + 1].append(("wvm", ("wg", ch)))
                    sl.after(k - LA, *(([("wvm", ("wg", ch))] if ch not in early else []) + [("i", "s_barrier")]))
                    barpos[ch] = k - LA
            sl.after(k - LA, *rd(k))
        wl = [(barpos[ch - 8] + 2 if ch >= 10 else 0, g) for ch in range(15) if ch not in early for g in self.wg_chunk(ch)]
        wd = self.wds("rest", ps)
        xs = [(3 * (UP + n_), g) for n_, g in enumerate(xl[UP:])]
        xs[14 - UP:14 - UP] = [(3 * 14, g) for g in g_st]
        xs += [(96, g) for g in self.touch(aTH, sHST, LY.HB[ps], HPK)]
        wdue = [barpos[ch] - 4 * (len(self.wg_chunk(ch)) - 1 - n_) for ch in range(15) if ch not in early for n_ in range(len(self.wg_chunk(ch)))]
        P = lambda key: OPT["g_%s%d" % (key, ps)] / 10
        pos, fab, ix, iw, idd, seq = 0.0, 0.0, 0, 0, 0, []
        last = end[6] - OPT["g_tail"]
        while ix < len(xs) or iw < len(wl) or (idd < len(wd) and pos <= last):
            xu = ix < len(xs) and xs[ix][0] - pos <= P("xlead")
            wok = iw < len(wl) and wl[iw][0] <= pos
            wu = wok and wdue[iw] - pos <= P("wmin")
            free = fab <= pos + P("slack")
            if xu and (not wu or xs[ix][0] <= wdue[iw] - P("wmin") + P("xlead")): pick = "x"
            elif wu: pick = "w"
            elif free and wok and (idd >= len(wd) or wdue[iw] - pos <= P("wmax")): pick = "w"
            elif free and idd < len(wd) and pos <= last: pick = "d"
            elif ix < len(xs): pick = "x"
            else:
                pos = int(pos) + 1; continue
            if pick == "x": g = xs[ix][1]; ix += 1
            elif pick == "w": g = wl[iw][1]; iw += 1; fab = max(fab, pos) + P("wcost")
            else: g = wd[idd]; idd += 1; fab = max(fab, pos) + P("dcost")
            behind = (ix < len(xs) and xs[ix][0] - pos < 0.7 * P("xlead")) or (iw < len(wl) and wdue[iw] - pos < 0.7 * P("wmin"))
            seq.append((pos, g)); pos += 1.0 if behind else P("every")
        assert not sl.pace(seq, 0, 0)
        left = wd[idd:]
        st = [[("wvm", "st")]]
        for o in (0, 1): st.append([("i", "v_add_f32 v%d, v%d, v%d" % (SS + o, SS + o, SS + 2 + o))])
        for o in (0, 1): st.append([("i", "v_add_f32 v%d, v%d, v%d" % (SS + 4 + o, SS + 4 + o, SS + 6 + o))])
        for o in (0, 1): st.append([("i", "v_add_f32 v%d, v%d, v%d" % (SS + o, SS + o, SS + 4 + o))])
        for o in (0, 1): st.append([("i", "v_mov_b32 v%d, v%d" % (SS + 2 + o, SS + o))])
        st.append([("mark", "csg")])
        for o in (0, 1): st.append([("i", "v_permlane32_swap_b32 v%d, v%d" % (SS + o, SS + 2 + o))])
        for o in (0, 1): st.append([("i", "v_add_f32 v%d, v%d, v%d" % (SS + o, SS + o, SS + 2 + o))])
        st += [[op] for op in self.ln_from_sums(SS, SS + 1, SS + 2)]
        st += [[("i", "v_cvt_pk_bf16_f32 v%d, -v%d, -v%d" % (NM + k, SS, SS))] for k in range(4)] + [[("mark", "nm")]]
        st += [[("i", "v_mul_f32 v%d, v%d, v%d" % (SS + 1, SS + 1, SS + 1))],
               [("i", "s_lshr_b32 %s, %s, 3\ns_add_u32 %s, %s, %d" % (sT0, sLW, sT0, sT0, L_RS))],
               [("i", "v_and_b32 v%d, 127, v%d" % (SS, vFL))], [("i", "v_add_u32 v%d, %s, v%d" % (SS, sT0, SS))]]
        sl.after(94, ("need", "nm"))
        sl.spread(st, 56, 90)
        def epi(bl):
            b = ACC + 16 * accb[bl]
            g = []
            for e_ in range(8):
                ga = b + (e_ // 4) * 8 + e_ % 4
                g.append([("i", "v_max_f32 v%d, 0, v%d" % (ga, ga))])
            for e_ in range(8):
                ga = b + (e_ // 4) * 8 + e_ % 4
                g.append([("i", "v_mul_f32 v%d, v%d, v%d" % (ga, ga, ga + 4))])
            g += [[("i", "v_cvt_pk_bf16_f32 v%d, v%d, v%d" % (HPK + k, b + (k // 2) * 8 + (k % 2) * 2, b + (k // 2) * 8 + (k % 2) * 2 + 1))] for k in range(4)]
            if bl < 3: g.append([("mark", ("epi", bl))])
            g.append([("i", "s_add_u32 %s, %s, %d" % (sTS, sHST, LY.HB[ps] + bl * 1024)),
                      ("vm", "buffer_store_dwordx4 %s, v%d, %s, %s offen" % (vr(HPK, 4), vL16, WS, sTS))])
            return g
        for bl in range(3): sl.after(end[bl + 3], ("need", ("epi", bl)))
        sl.spread(epi(0) + epi(1), end[2] + 3, end[3] - 1)
        sl.spread(epi(2) + epi(3), end[3] + 3, end[4] - 1)
        sl.spread(epi(4), end[4] + 3, end[5] - 8)
        sl.spread(epi(5), end[5] + 3, end[6] - 8)
        sl.put("v", barpos[13] + 1, [("ds", "ds_write_b32 v%d, v%d" % (SS, SS + 1))])
        if ps == 0:
            sl.put("v", end[6] - 4, [("i", "s_or_b32 %s, s2, %s" % (sT0, sW)), ("atom", "s_cmp_eq_u32 %s, 0\ns_cselect_b32 %s, %d, 0x%x" % (sT0, sT0, LY.EPOCH, OOB)),
                                     ("i", "v_mov_b32 v%d, %s" % (SS + 2, sNONCE)),
                                     ("vm", "buffer_store_dword v%d, v%d, %s, %s offen" % (SS + 2, vF1, WS, sT0))])
        self.lite(sl, "g", [0, 24, 48, 72, 98, 131, 164, 197])
        self.report("gu%d" % ps, sl.emit(a))
        a.run_all(self.flat(epi(6)))
        self.stamp()
        self.signal(4 * ps + 3)
        print("  gu: %d loads left for the hand-off" % len(left))
        a.run_all(self.flat(left))
        a.ds_drain()
        a.I("s_barrier")
        self.stamp()

    def build(self):
        a = self.a
        self.startup()
        for ps in range(2):
            self.qkv(ps); self.ksplit("wo", ps); self.gu(ps); self.ksplit("dn", ps)
        if OPT["stamps"]:
            a.I("s_waitcnt vmcnt(0)\ns_memrealtime s[6:7]\ns_waitcnt lgkmcnt(0)\nv_writelane_b32 v%d, s6, 63" % vSTAMP)
            a.I("s_lshl_b32 %s, s2, 10\ns_lshl_b32 %s, %s, 8\ns_add_u32 %s, %s, %s\ns_add_u32 %s, %s, %d" % (sT0, sT1, sW, sT0, sT0, sT1, sT0, sT0, LY.STAMP))
            a.I("buffer_store_dword v%d, v%d, %s, %s offen" % (vSTAMP, vFL, WS, sT0))
        if OPT["diagpad"]:
            a.I("s_mov_b32 s82, %d" % OPT["diagpad"])
            if OPT["diagat"]:
                a.I("s_sub_u32 s83, s%d, s6\ns_lshl_b32 s83, s83, 2" % sST)
                if OPT["diagwg"] >= 0: a.I("s_cmp_eq_u32 s2, %d\ns_cselect_b32 s83, s83, 0" % OPT["diagwg"])
                a.I("s_add_u32 s82, s82, s83")
            a.I("L_pad:\ns_memrealtime s[80:81]\ns_waitcnt lgkmcnt(0)\ns_sub_u32 s80, s80, s6\ns_cmp_lt_u32 s80, s82\ns_cbranch_scc1 L_pad")
        a.I("L_main_done:\ns_endpgm")
        for c in self.cold: a.I(c)
        a.I("L_code_end:")
        return a.lines

def main():
    ml, n2 = hazard_pass(Main().build())
    k = NAME + "_kernel"
    out = ["; Generated by gen/gen.py: one persistent kernel (weight re-layout, then four layers with flag hand-offs). " + " ".join(sys.argv[2:]),
           "; @launch grid=(256,1,1) block=(256,1,1) lds=163840",
           '.amdgcn_target "amdgcn-amd-amdhsa--gfx950"', ".text",
           ".globl %s" % k, ".p2align 8", ".type %s,@function" % k]
    out += [l if l.endswith(":") else "    " + l for l in ml]
    out += ['.section .rodata,"a"', ".p2align 6", """.amdhsa_kernel %s
  .amdhsa_next_free_vgpr 512
  .amdhsa_next_free_sgpr 102
  .amdhsa_accum_offset 256
  .amdhsa_group_segment_fixed_size 0
  .amdhsa_kernarg_size 80
  .amdhsa_user_sgpr_count 2
  .amdhsa_user_sgpr_kernarg_segment_ptr 1
  .amdhsa_system_sgpr_workgroup_id_x 1
  .amdhsa_float_denorm_mode_32 3
.end_amdhsa_kernel""" % k]
    open(sys.argv[1], "w").write("\n".join(out) + "\n")
    print("instructions: %d ; wait states added: %d" % (len(ml), n2))

main()
```

```python
import sys
from dsl import Asm, Slots, hazard_pass
import layout as LY

NAME = "interleave_layers__sliding_local_dilated__glu_gated_reglu__prompt"
OPT = dict(stamps=0, lite="-", hitw=0,
           q_up=8, q_every=45, q_hf=6, q_chk=6, q_h0=9, a_every=14, k_up=10, g_up=4, g_tail=24, g_la=6, g_xsp=8, g_stat=6,
           g_every0=44, g_xlead0=400, g_wmin0=440, g_wmax0=800, g_slack0=40, g_wcost0=60, g_dcost0=30,
           g_every1=44, g_xlead1=400, g_wmin1=440, g_wmax1=800, g_slack1=40, g_wcost1=60, g_dcost1=30,
           wq_late1="-", dn_pre=6, q0_up=6, q0_lead=20, q0_every=20,
           wg_q0="-", wg_att0="0", wg_h10="1", wg_wo0="3", wg_h20="2",
           wg_q1="34", wg_att1="0", wg_h11="-", wg_wo1="15", wg_h21="2",
           touch=0, h_wt="0", otouch=1, diagpad=0, diagat=0, diagwg=100, b_pos=1, q0_split=1, q0_n1=6, q0_hf=2, order="ao", rt=0, predrain=0, tlb=1, q0_b=0, q0_fbch=3, q0_fbs=10, q0_w=6, q0_fb=6, a_quiet=60, wd_q=0, wd_att=0, wd_h1=0, wd_wo=0, wd_h2=0)
for arg in sys.argv[2:]:
    k, v = arg.split("=")
    OPT[k] = v if isinstance(OPT[k], str) else int(v)

def vr(b, n): return "v[%d:%d]" % (b, b + n - 1)
def ar(b, n): return "a[%d:%d]" % (b, b + n - 1)
def magic(d): return (1 << 32) // d + 1
OOB = 0x40000000
GS0 = LY.GS0

WS, XIN, OUT = "s[8:11]", "s[12:15]", "s[16:19]"
sW, sJ, sR, sC, sG, sN, sNONCE, sSLOW = ("s%d" % i for i in range(20, 28))
sGB, sXLD, sXST, sOST, sXR, sHST, sSLD, sWQ, sWG, sWO, sWD, sLW = ("s%d" % i for i in range(28, 40))
sMA, sMB = "s[40:41]", "s[42:43]"
sFLG, sFLW, sHALO, sHFL, sTAB, sSST, sONE, sHDST, sHDFL, sP = ("s%d" % i for i in range(44, 54))
sMH = "s[54:55]"
sTA, sTW, sTD, sTS, sT0, sT1, sT2, sSPIN = ("s%d" % i for i in range(56, 64))
sOLD = ["s%d" % i for i in range(64, 68)]
sHLD = ["s%d" % i for i in range(68, 72)]
sXW = ["s%d" % i for i in range(72, 75)]
sFBO, sB0, sB1, sB2, sB3 = "s75", "s76", "s77", "s78", "s79"
SRC_A, SRC_G, SRC_U, SRC_D = 80, 84, 88, 92
sLW2, sLW4, sWQ4, sWG4 = "s96", "s97", "s98", "s99"
sST = 100
sHALO2 = sP
sNH, sJUNK = "s12", "s13"
vL, vL16, vL16b, vL16c, vQ, vF1, vFL, vSTAMP = 0, 1, 2, 3, 4, 5, 6, 7
XRES = 8
X, ACC, F = 32, 160, 224
aROW, aST, aSQ, aSH, aSG, aHX, aHWR, aHWS, aHST, aHSS, aFB, aLINE, aTO, aTH = range(224, 238)
aBC, aBP, aBP0, aMC = 240, 244, 248, 252
L_HALO, L_RS, L_KV, L_TAB, L_FMT = 102400, 110592, 114688, 124928, 131072
L_SCR_WO, L_SCR_DN = 32768, 114688
NEG = "0xf149f2ca"

def ldsaddr(off):
    return "v%d offset:%d" % ((vL16, vL16b, vL16c)[off >> 16], off & 0xffff)

def isvm(g): return any(op[0] == "vm" for op in g)

class Main:
    def __init__(self):
        self.a = Asm()
        self.nstamp = 0
        self.cold = []
        self.nlite = 0
        self.wd = None
        self.ncall = 0

    def stamp(self, key=None):
        self.ncall += 1
        if OPT["diagpad"] and OPT["diagat"] == self.ncall:
            self.a.I("s_memrealtime s[%d:%d]" % (sST, sST + 1))
            self.a.ds_drain(force=True)
        if OPT["stamps"] != 1 or (key is not None and OPT["lite"] != key):
            return
        a = self.a
        a.I("s_memtime s[%d:%d]" % (sST, sST + 1))
        a.ds_drain(force=True)
        for k in range(self.nlite):
            a.I("v_writelane_b32 v%d, s%d, %d" % (vSTAMP, 80 + 2 * k, self.nstamp))
            self.nstamp += 1
        self.nlite = 0
        a.I("v_writelane_b32 v%d, s%d, %d" % (vSTAMP, sST, self.nstamp))
        self.nstamp += 1

    def lite(self, sl, key, slots):
        if OPT["lite"] != key:
            return
        for i in slots[:8]:
            sl.after(i, ("i", "s_memtime s[%d:%d]" % (80 + 2 * self.nlite, 81 + 2 * self.nlite)))
            self.nlite += 1

    def report(self, name, r):
        print("  %s: cycles over budget %d, ops left after the loop %d" % ((name,) + r))

    def getc(self, v, acc): return "v_accvgpr_read_b32 v%d, a%d" % (v, acc)
    def flat(self, groups): return [op for g in groups for op in g]
    def digits(self, key): return tuple(int(c, 16) for c in str(OPT[key]) if c != "-")
    def wgs(self, where, ps): return [g for i in self.digits("wg_%s%d" % (where, ps)) for g in self.wg_chunk(i)]
    def wg_early(self, ps): return sum((self.digits("wg_%s%d" % (w, ps)) for w in ("q", "att", "h1", "wo", "h2")), ())
    def wq_late(self, ps): return tuple(range(7)) if ps == 0 else self.digits("wq_late1")

    def srd(self, base, lo, hi, nbytes):
        self.a.I("s_mov_b32 s%d, %s\ns_and_b32 s%d, %s, 0xffff\ns_mov_b32 s%d, %s\ns_mov_b32 s%d, 0x20000" %
                 (base, lo, base + 1, hi, base + 2, nbytes, base + 3))

    def lin(self, dst, base, terms):
        first = True
        for reg, mul in terms:
            self.a.I("s_mul_i32 %s, %s, %d\ns_add_u32 %s, %s, %s" % (sT2, reg, mul, dst, base if first else dst, sT2))
            first = False

    def sdivmod(self, q, r, x, d):
        self.a.I("s_mul_hi_u32 %s, %s, 0x%x\ns_mul_i32 %s, %s, %d\ns_sub_u32 %s, %s, %s" % (q, x, magic(d), sT2, q, d, r, x, sT2))

    def hi_lo(self, dst, src, t):
        return ["v_cvt_pk_bf16_f32 v%d, v%d, v%d" % (dst, src, src), "v_lshlrev_b32 v%d, 16, v%d" % (t, dst),
                "v_sub_f32 v%d, v%d, v%d" % (t, src, t), "v_cvt_pk_bf16_f32 v%d, v%d, v%d" % (dst, src, t)]

    def weave(self, body, groups, first, every):
        k = 0
        for n_, op in enumerate(body):
            if n_ >= first and (n_ - first) % every == 0:
                while k < len(groups):
                    g = groups[k]; k += 1
                    self.a.run_all(g)
                    if isvm(g): break
            self.a.run(op)
        return groups[k:]

    def signal(self, h, wait=None, halo_pass=None):
        a = self.a
        slow, done = a.label("slow"), a.label("sig")
        a.I("s_add_u32 %s, %s, %d\nv_mov_b32 v30, %s" % (sNH, sNONCE, h, sNH))
        if halo_pass is not None:
            h1, b1, h2, b2 = a.label("halo"), a.label("hback"), a.label("halo"), a.label("hback")
            n = a.vm_n - max(a.vm_tag[wait], a.vm_done)
            a.I("s_cmp_lg_u32 %s, 0x%x\ns_cbranch_scc1 %s" % (sHDST, OOB, h1))
            st = "\n".join("buffer_store_dwordx4 %s, v24, %s, %s offen offset:%d sc1" % (vr(XRES + 4 * e, 4), WS, sTS, e * 512) for e in range(2))
            self.cold.append("%s:\n%s\n%s\ns_add_u32 %s, %s, %d\n%s\nbuffer_store_dword v26, v25, %s, %s offen sc1\ns_waitcnt vmcnt(%d)\ns_branch %s" %
                             (h1, self.getc(24, aHST), self.getc(25, aHSS), sTS, sHDST, LY.HX[halo_pass], st, WS, sTS, n + 3, b1))
            self.cold.append("%s:\ns_add_u32 %s, %s, %d\nv_mov_b32 v24, %s\n%s\ns_waitcnt vmcnt(1)\nbuffer_store_dword v24, v25, %s, %s offen sc1\ns_branch %s" %
                             (h2, sTS, sHDFL, halo_pass * 16384, sNONCE, self.getc(25, aLINE), WS, sTS, b2))
            a.vm_wait(wait)
            a.I("%s:\ns_cmp_lg_u32 %s, 0" % (b1, sSLOW))
        else:
            a.I("s_cmp_lg_u32 %s, 0" % sSLOW)
            if wait is None: a.vm_drain()
            else: a.vm_wait(wait)
        a.I("s_cbranch_scc1 %s" % slow)
        a.vm("buffer_store_dword v30, v%d, %s, %s offen" % (vF1, WS, sFLW))
        a.I("%s:" % done)
        self.cold.append("%s:\nbuffer_wbl2 sc1\ns_waitcnt vmcnt(0)\nbuffer_store_dword v30, v%d, %s, %s offen sc1\ns_branch %s" % (slow, vF1, WS, sFLW, done))
        self.sent = h
        if halo_pass is not None:
            a.I("s_cmp_lg_u32 %s, 0x%x\ns_cbranch_scc1 %s\n%s:" % (sHDST, OOB, h2, b2))

    def spin(self, load, test):
        a = self.a
        loop = a.label("poll")
        a.I("s_mov_b32 %s, 0x40000\n%s:\n%s" % (sSPIN, loop, load))
        a.I("s_sub_u32 %s, %s, 1\ns_cbranch_scc1 L_main_done" % (sSPIN, sSPIN))
        a.vm_drain(force=True)
        a.I("%s\ns_cbranch_scc1 %s" % (test, loop))

    def poll(self, h, mask, also=None):
        a = self.a
        a.forget()
        assert self.sent == h
        load = "buffer_load_dword v30, v%d, %s, %s offen sc1" % (vFL, WS, sFLG)
        test = "v_subrev_u32 v30, %s, v30\nv_cmp_lt_u32 vcc, 7, v30\ns_and_b64 vcc, vcc, %s" % (sNH, mask)
        if also is not None:
            load += "\nbuffer_load_dword v31, v%d, %s, 0 offen sc1" % (also, WS)
            test = "v_cmp_ne_u32 s[60:61], %s, v31\n%s\ns_or_b64 vcc, vcc, s[60:61]" % (sNONCE, test)
        self.spin(load, test)
        acq, ok = a.label("acq"), a.label("ok")
        a.I("s_cmp_lg_u32 %s, 0\ns_cbranch_scc1 %s\n%s:" % (sSLOW, acq, ok))
        self.cold.append("%s:\nbuffer_inv sc1\ns_waitcnt vmcnt(0)\ns_branch %s" % (acq, ok))

    def late_check(self, load, reg, mask, tag):
        a = self.a
        spin, back = a.label("lspin"), a.label("lback")
        cmp_, and_ = "v_cmp_ne_u32 vcc, %s, v%d" % (sNONCE, reg), "s_and_b64 vcc, vcc, %s" % mask
        self.cold.append("%s:\ns_mov_b32 %s, 0x40000\n%s_l:\n%s\ns_sub_u32 %s, %s, 1\ns_cbranch_scc1 L_main_done\ns_waitcnt vmcnt(0)\n%s\n%s\ns_cbranch_scc1 %s_l\ns_branch %s"
                         % (spin, sSPIN, spin, load, sSPIN, sSPIN, cmp_, and_, spin, back))
        return [("vm", load, tag)], [("wvm", tag), ("i", cmp_), ("atom", and_ + "\ns_cbranch_scc1 %s\n%s:" % (spin, back))]

    def dma_chunk(self, sbase, goff, loff, n, tag, sc=""):
        sw = {1: sLW, 2: sLW2, 4: sLW4}[n]
        setup = [("set", sTW, "s_add_u32 %s, %s, %d" % (sTW, sbase, goff)), ("set", "m0", "s_add_u32 m0, %s, %d" % (sw, loff))]
        return [setup + [("vm", "buffer_load_dwordx4 v%d, %s, %s offen offset:%d%s lds" % (vL16, WS, sTW, k * 1024, sc), tag if k == n - 1 else None)]
                for k in range(n)]

    def wq_chunk(self, i): return self.dma_chunk(sWQ4 if i < 6 else sWQ, i * 16384, i * 16384, 4 if i < 6 else 1, ("wq", i), " sc1")
    def wg_chunk(self, i): return self.dma_chunk(sWG4 if i < 14 else sWG, i * 16384, ((i + 5) % 10) * 16384, 4 if i < 14 else 2, ("wg", i), " sc1")

    def reg_loads(self, dsts, bases, offs, stmp, vaddr, tagbase):
        ops, cur = [], None
        for k, (d, sb, off) in enumerate(zip(dsts, bases, offs)):
            if cur is None or cur[0] != sb or not (0 <= off - cur[1] < 4096):
                cur = (sb, off)
            ops.append([("set", stmp, "s_add_u32 %s, %s, %d" % (stmp, sb, cur[1])),
                        ("vm", "buffer_load_dwordx4 %s, v%d, %s, %s offen offset:%d sc1" % (d, vaddr, WS, stmp, off - cur[1]), (tagbase, k))])
        return ops

    def touch(self, acc, sbase, off, tmp):
        return [[("i", self.getc(tmp, acc) + "\ns_add_u32 %s, %s, %d" % (sT1, sbase, off)),
                 ("vm", "buffer_load_dword a255, v%d, %s, %s offen sc1" % (tmp, WS, sT1))]]

    def ln_from_sums(self, s1, s2, t):
        return [("i", x) for x in (
            "v_mul_f32 v%d, 0x3b000000, v%d" % (s1, s1),
            "v_mul_f32 v%d, v%d, v%d" % (t, s1, s1),
            "v_mul_f32 v%d, 0x3b000000, v%d" % (s2, s2),
            "v_sub_f32 v%d, v%d, v%d" % (s2, s2, t),
            "v_max_f32 v%d, 0, v%d" % (s2, s2),
            "v_cvt_pk_bf16_f32 v%d, v%d, v%d" % (s2, s2, s2),
            "v_lshlrev_b32 v%d, 16, v%d" % (s2, s2),
            "v_add_f32 v%d, 0x3727c5ac, v%d" % (s2, s2),
            "v_cvt_pk_bf16_f32 v%d, v%d, v%d" % (s2, s2, s2),
            "v_lshlrev_b32 v%d, 16, v%d" % (s2, s2),
            "v_sqrt_f32 v%d, v%d" % (s2, s2),
            "v_cvt_pk_bf16_f32 v%d, v%d, v%d" % (s2, s2, s2),
            "v_lshlrev_b32 v%d, 16, v%d" % (s2, s2),
            "v_rcp_f32 v%d, v%d" % (s2, s2))]

    def publish(self, xi):
        a = self.a
        S1, S2, S3, S4, AD = 26, 27, 28, 29, 25
        a.I("s_add_u32 %s, %s, %d" % (sTS, sXST, LY.XB[xi]))
        for e in range(2):
            a.vm("buffer_store_dwordx4 %s, v%d, %s, %s offen offset:%d%s" % (vr(XRES + 4 * e, 4), vQ, WS, sTS, e * 2048, " sc1" if xi == 0 else ""))
        for k in range(4):
            for d, p, o in ((S1, XRES + k, sONE), (S2, XRES + k, None), (S3, XRES + 4 + k, sONE), (S4, XRES + 4 + k, None)):
                a.I("v_dot2_f32_bf16 v%d, v%d, %s, %s" % (d, p, o or "v%d" % p, "v%d" % d if k else "0"))
        a.I(self.getc(AD, aST) + "\ns_add_u32 %s, %s, %d" % (sTS, sSST, LY.SB[xi]))
        a.I("v_add_f32 v%d, v%d, v%d\nv_add_f32 v%d, v%d, v%d" % (S1, S1, S3, S2, S2, S4))
        a.I("v_permlane32_swap_b32 v%d, v%d\nv_add_f32 v%d, v%d, v%d\nv_mov_b32 v%d, v%d" % (S1, S2, S1, S1, S2, S2, S1))
        a.I("v_permlane16_swap_b32 v%d, v%d\nv_add_f32 v%d, v%d, v%d" % (S1, S2, S1, S1, S2))
        a.vm("buffer_store_dword v%d, v%d, %s, %s offen" % (S1, AD, WS, sTS), "pub")

    def startup(self):
        a = self.a
        lin = self.lin
        t8, kc, tok, g, hh, t32, u0, u1, rr, cc, q16, vA, vR, vB, vD, TA0, TA1, TD, TG, CSW, XA, XV, FAV, LINE = range(F, F + 24)
        ONES = F + 24
        def put(acc): a.I("v_accvgpr_write_b32 a%d, v%d" % (acc, u1))
        a.I("%s_kernel:" % NAME)
        a.I("s_cmp_ge_u32 s2, 256\ns_cbranch_scc1 L_main_done")
        a.I("s_load_dwordx16 s[64:79], s[0:1], 0\ns_load_dwordx2 s[4:5], s[0:1], 72")
        if OPT["stamps"] or OPT["diagpad"]:
            a.I("s_memrealtime s[98:99]")
        if OPT["stamps"]:
            a.I("s_memtime s[%d:%d]" % (sST, sST + 1))
        a.I("s_getpc_b64 s[56:57]\nL_pc:\ns_lshr_b32 s58, s2, 3\ns_lshl_b32 s58, s58, 11")
        a.I("v_lshrrev_b32 v16, 6, v0\nv_lshrrev_b32 v17, 4, v0\nv_lshlrev_b32 v17, 7, v17\nv_add_u32 v17, s58, v17")
        a.I("v_min_u32 v17, L_code_end-L_pc-4, v17\nv_and_b32 v0, 63, v0\nv_readfirstlane_b32 %s, v16" % sW)
        a.vm("global_load_dword a255, v17, s[56:57]")
        a.I("s_and_b32 %s, s2, 7\ns_bfe_u32 %s, s2, 0x40003\ns_lshr_b32 %s, s2, 7" % (sN, sJ, sP))
        a.I("s_lshr_b32 %s, %s, 3\ns_and_b32 %s, %s, 7" % (sR, sJ, sC, sJ))
        a.I("v_and_b32 v%d, 7, v0\nv_lshrrev_b32 v%d, 3, v0\nv_and_b32 v%d, 15, v0\nv_lshrrev_b32 v%d, 4, v0" % (t8, kc, tok, g))
        cuA, kkA, stA, cuG, kkG, sSG, sSD, kkD = "s28", "s29", "s30", "s32", "s33", "s6", "s7", "s36"
        self.sdivmod(kkA, cuA, "s2", 24)
        a.I("s_sub_u32 %s, s2, 192\ns_lshr_b32 %s, %s, 3" % (sT0, sT0, sT0))
        a.I("s_cmp_lt_u32 s2, 192\ns_cselect_b32 %s, %s, %s\ns_cselect_b32 %s, %s, %s\ns_cselect_b32 %s, 3, 1\ns_lshl_b32 %s, %s, 10" %
            (cuA, cuA, sN, kkA, kkA, sT0, stA, stA, stA))
        a.I("v_lshlrev_b32 v%d, 4, v%d\nv_mad_u32_u24 v%d, v%d, %s, v%d" % (u0, t8, vA, kc, stA, u0))
        a.I("s_lshl_b32 %s, %s, 2\ns_add_u32 %s, %s, %s\ns_lshl_b32 %s, %s, 4\ns_mul_i32 %s, %s, %s" % (sT0, kkA, sT0, sT0, sW, sT0, sT0, sT0, sT0, stA))
        a.I("s_lshl_b32 %s, %s, 7\ns_add_u32 %s, %s, %s\ns_lshl_b32 %s, %s, 3\ns_add_u32 %s, %s, %s\ns_sub_u32 %s, %s, 1024" %
            (sT1, cuA, sT0, sT0, sT1, sT1, stA, sT1, sT1, sT0, sT1, sT1))
        a.I("s_lshl_b32 %s, %s, 11\ns_add_u32 m0, %s, %d" % (sLW2, sW, sLW2, L_FMT))
        a.I("s_lshl_b32 s31, %s, 1\ns_add_u32 s31, s31, %s\ns_lshl_b32 s31, s31, 2\ns_add_u32 s31, s31, %s\ns_lshl_b32 s31, s31, 5" % (sN, sR, sW))
        a.I("s_add_u32 s31, s31, %s\ns_lshl_b32 s31, s31, 3\ns_add_u32 s31, s31, %s\ns_lshl_b32 s31, s31, 7" % (sP, sC))
        a.I("v_lshlrev_b32 v%d, 11, v%d\nv_lshl_add_u32 v%d, v%d, 4, v%d\nv_add_u32 v%d, s31, v%d" % (vR, tok, vR, g, vR, vR, vR))
        self.sdivmod(kkG, cuG, "s2", 28)
        a.I("v_mul_u32_u24 v%d, 3584, v%d\nv_add_u32 v%d, v%d, v%d\nv_lshl_add_u32 v%d, v%d, 10, v%d" % (vB, kc, vB, vB, u0, vD, kc, u0))
        a.I("s_lshr_b32 %s, s2, 3" % kkD)
        lin(sSG, "0", [(kkG, 64 * 3584), (sW, 16 * 3584), (cuG, 128)])
        lin(sSD, "0", [(kkD, 65536), (sW, 16384), (sN, 128)])
        a.I("s_lshl_b32 %s, %s, 1\ns_add_u32 %s, %s, %s" % (sG, sN, sG, sG, sP))
        lin(sFLG, str(LY.FL), [(sG, 256)])
        lin(sFLW, sFLG, [(sJ, 16), (sW, 4)])
        lin(sSST, str(LY.ACT), [(sG, LY.ACT_STRIDE), (sR, 4096), (sC, 8), (sW, 1024)])
        lin(sTS, sSST, [(sC, 120)])
        a.I("s_add_u32 %s, %s, %d\nv_mov_b32 v%d, %s\nv_mov_b32 v%d, %s\nv_cmp_gt_u32 vcc, 32, v0\nv_cndmask_b32 v%d, v%d, v%d, vcc" %
            (sTS, sTS, LY.SB[0], u1, sTS, XA, sFLW, XA, u1, XA))
        if OPT["tlb"]:
            a.I("v_min_u32 v%d, 4, v0\nv_mul_u32_u24 v%d, %d, v%d\nv_add_u32 v%d, %d, v%d\nv_cmp_gt_u32 vcc, 4, v0\nv_mov_b32 v%d, %d" %
                (u1, u1, 5 * LY.WG_STRIDE, u1, u1, LY.WG + LY.WG_STRIDE - 128, u1, XV, LY.ACT - 128))
            a.I("v_cndmask_b32 v%d, v%d, v%d, vcc\nv_cmp_gt_u32 vcc, 8, v0\nv_cndmask_b32 v%d, v%d, v%d, vcc" % (u1, XV, u1, XA, XA, u1))
        a.I("s_waitcnt lgkmcnt(0)")
        a.I("s_load_dword %s, s[4:5], %d" % (sNONCE, LY.EPOCH))
        a.I("s_cmp_lt_u32 s2, 192\ns_cselect_b32 s%d, s66, s68\ns_cselect_b32 s%d, s67, s69\ns_and_b32 s%d, s%d, 0xffff" % (SRC_A, SRC_A + 1, SRC_A + 1, SRC_A + 1))
        a.I("s_lshl_b32 s%d, %s, 9\ns_mov_b32 s%d, 0x20000" % (SRC_A + 2, stA, SRC_A + 3))
        sa = "s[%d:%d]" % (SRC_A, SRC_A + 3)
        a.vm("buffer_load_dwordx4 v%d, %s, %s offen lds" % (vA, sa, sT0))
        a.vm("buffer_load_dwordx4 v%d, %s, %s offen offset:1024 lds" % (vA, sa, sT1), "fa")
        self.srd(12, "s64", "s65", 2048 * 1024)
        a.vm("buffer_load_dwordx4 %s, v%d, %s, 0 offen" % (vr(XRES, 4), vR, XIN))
        a.vm("buffer_load_dwordx4 %s, v%d, %s, 0 offen offset:64" % (vr(XRES + 4, 4), vR, XIN), "x")
        if OPT["stamps"]:
            a.I("v_mov_b32 v%d, 0\nv_writelane_b32 v%d, s98, 62\nv_writelane_b32 v%d, s%d, 0" % (vSTAMP, vSTAMP, vSTAMP, sST))
            self.nstamp = 1
        if OPT["diagpad"]: a.I("s_mov_b32 s14, s98")
        self.srd(8, "s4", "s5", LY.WS_USED)
        a.vm("buffer_load_dword a255, v%d, %s, 0 offen sc1" % (XA, WS))
        self.srd(SRC_G, "s72", "s73", 512 * 3584)
        self.srd(SRC_U, "s74", "s75", 512 * 3584)
        self.srd(SRC_D, "s76", "s77", 1792 * 1024)
        def b_loads():
            for srdn, so, va, stride, lo in ((SRC_G, sSG, vB, 3584, 8192), (SRC_U, sSG, vB, 3584, 16384), (SRC_D, sSD, vD, 1024, 24576)):
                a.I("s_add_u32 m0, %s, %d\ns_add_u32 %s, %s, %d" % (sLW2, L_FMT + lo, sT0, so, 8 * stride - 1024))
                a.vm("buffer_load_dwordx4 v%d, s[%d:%d], %s offen lds" % (va, srdn, srdn + 3, so))
                a.vm("buffer_load_dwordx4 v%d, s[%d:%d], %s offen offset:1024 lds" % (va, srdn, srdn + 3, sT0), ("fb", lo))
        if OPT["b_pos"] == 0: b_loads()
        self.srd(16, "s78", "s79", 2048 * 1024)
        a.I("v_accvgpr_write_b32 a%d, v%d\nv_lshlrev_b32 v%d, 4, v0" % (aROW, vR, vL16))
        dA, dA2, dCS = "s3", "s0", "s1"
        a.I("s_and_b32 %s, %s, 7\ns_lshl_b32 %s, %s, 1\ns_lshr_b32 %s, %s, 1\ns_add_u32 %s, %s, %s" % (sT0, cuA, sT0, sT0, sT1, sW, sT0, sT0, sT1))
        a.I("s_mul_i32 %s, %s, %d\ns_add_u32 %s, %s, %d" % (sT0, sT0, LY.WQ_STRIDE, sT0, sT0, LY.WQ))
        a.I("s_lshr_b32 %s, %s, 3\ns_lshl_b32 %s, %s, 1\ns_and_b32 %s, %s, 1\ns_add_u32 %s, %s, %s" % (sT1, cuA, sT1, sT1, sT2, sW, sT1, sT1, sT2))
        lin(dA, sT0, [(kkA, 12288), (sT1, 1024)])
        lin(dCS, sT0, [(kkA, 64), (sT1, 512)])
        a.I("s_add_u32 %s, %s, 98304" % (dCS, dCS))
        lin(sT0, str(LY.WO), [(cuA, LY.WO_STRIDE), (kkA, 8192), (sW, 1024)])
        a.I("s_cmp_lt_u32 s2, 192\ns_cselect_b32 %s, %s, %s\ns_cselect_b32 %s, %s, 0x%x\ns_cselect_b32 %s, 6, 4\ns_cselect_b64 vcc, -1, 0" %
            (dA, dA, sT0, dCS, dCS, OOB, dA2))
        a.I("s_lshl_b32 %s, %s, 10\ns_add_u32 %s, %s, %s" % (dA2, dA2, dA2, dA2, dA))
        a.I("v_bfe_u32 v%d, v0, 2, 2\nv_and_b32 v%d, 3, v0\nv_bfe_u32 v%d, v0, 4, 1\nv_lshrrev_b32 v%d, 5, v0\nv_and_b32 v%d, 31, v0" % (rr, cc, q16, hh, t32))
        a.I("v_lshl_add_u32 v%d, v%d, 3, v%d\nv_lshlrev_b32 v%d, 7, v%d\nv_lshl_add_u32 v%d, v%d, 2, v%d\nv_lshlrev_b32 v%d, 7, v%d" % (u0, g, rr, u0, u0, u1, g, rr, u1, u1))
        a.I("s_lshr_b32 %s, %s, 1\ns_lshl_b32 %s, %s, 6\ns_and_b32 %s, %s, 1\ns_lshl_b32 %s, %s, 3\ns_add_u32 %s, %s, %s\ns_add_u32 %s, %s, %d" %
            (sT0, sW, sT0, sT0, sT1, sW, sT1, sT1, sT0, sT0, sT1, sT0, sT0, L_FMT))
        a.I("v_lshl_add_u32 v%d, v%d, 4, %s\nv_add_u32 v%d, v%d, v%d\nv_add_u32 v%d, v%d, v%d" % (TA1, cc, sT0, TD, TA1, u0, u1, u1, TA1))
        a.I("s_lshl_b32 %s, %s, 5\ns_add_u32 %s, %s, %d\nv_lshl_add_u32 v%d, v%d, 3, %s\nv_add_u32 v%d, v%d, v%d" % (sT0, sW, sT0, sT0, L_FMT, TA0, cc, sT0, u0, u0, TA0))
        a.I("v_mov_b32 v%d, v%d" % (TG, u0))
        a.I("v_cndmask_b32 v%d, v%d, v%d, vcc\nv_add_u32 v%d, 512, v%d\nv_add_u32 v%d, 2048, v%d\nv_cndmask_b32 v%d, v%d, v%d, vcc" % (TA0, u1, u0, u0, u0, u1, u1, TA1, u1, u0))
        for k in range(4): a.I("v_mov_b32 v%d, 0x3f803f80" % (ONES + k))
        a.I("v_lshlrev_b32 v%d, 2, v%d\nv_lshl_add_u32 v%d, v%d, 28, v%d" % (CSW, tok, CSW, g, CSW))
        a.I("s_mov_b32 %s, 0\ns_mov_b32 %s, 0x3f803f80" % (sSLOW, sONE))
        a.I("v_cmp_ne_u32 vcc, 0, v0\nv_mov_b32 v%d, 0x%x\nv_lshlrev_b32 v%d, 2, v0\nv_cndmask_b32 v%d, 0, v%d, vcc" % (vF1, OOB, vFL, vF1, vF1))
        a.I("s_lshl_b32 %s, %s, %d\ns_add_u32 %s, %s, 0x%x" % (sGB, sG, LY.ACT_SHIFT, sGB, sGB, LY.ACT))
        lin(sXLD, sGB, [(sW, 32768)])
        a.I("s_lshr_b32 %s, %s, 1\ns_and_b32 %s, %s, 1" % (sT0, sW, sT1, sW))
        lin(sXST, sGB, [(sR, 65536), (sC, 4096), (sT0, 32768), (sT1, 256)])
        lin(sOST, sXLD, [(sJ, 2048)])
        lin(sT0, str(LY.XF), [(sG, 2048)])
        a.I("v_lshl_add_u32 v%d, v%d, 7, %s\nv_lshl_add_u32 v%d, v%d, 30, v%d\nv_accvgpr_write_b32 a%d, v%d" % (XA, tok, sT0, LINE, hh, vFL, aLINE, LINE))
        lin(sT0, sT0, [(sJ, 128)])
        a.I("s_cmp_eq_u32 %s, 0\ns_cselect_b32 %s, %s, 0x%x\ns_getreg_b32 %s, hwreg(HW_REG_XCC_ID, 0, 4)" % (sW, sT0, sT0, OOB, sT1))
        a.I("v_lshlrev_b32 v%d, 4, v%d\nv_lshl_add_u32 v%d, v%d, 9, v%d" % (u0, tok, vQ, g, u0))
        a.I("v_lshlrev_b32 v%d, 6, v%d\nv_lshl_add_u32 v%d, v%d, 2, v%d\nv_lshl_add_u32 v%d, v%d, 30, v%d" % (u1, tok, u1, hh, u1, u1, q16, u1)); put(aST)
        a.I("s_waitcnt lgkmcnt(0)\ns_add_u32 %s, %s, 0x9e3779b1\ns_xor_b32 %s, %s, %s\nv_mov_b32 v%d, %s" % (sNONCE, sNONCE, sT1, sT1, sNONCE, XV, sT1))
        a.vm("buffer_store_dword v%d, v%d, %s, %s offen sc1" % (XV, LINE, WS, sT0))
        self.stamp("p")
        a.vm_wait("fa")
        a.I("s_barrier")
        for sp in range(2):
            for half in range(2):
                a.ds("ds_read_b64_tr_b16 %s, v%d offset:%d" % (vr(ACC + 4 * sp + 2 * half, 2), (TA0, TA1)[half], sp * 4096), ("t", sp))
        self.stamp("p")
        for sp in range(2):
            a.ds_wait(("t", sp))
            a.vm("buffer_store_dwordx4 %s, v%d, %s, %s offen sc1" % (vr(ACC + 4 * sp, 4), vL16, WS, (dA, dA2)[sp]))
            a.I("v_mfma_f32_16x16x32_bf16 %s, %s, %s, %s" % (vr(ACC + 8, 4), vr(ONES, 4), vr(ACC + 4 * sp, 4), vr(ACC + 8, 4) if sp else "0"))
        a.I("v_bfe_u32 v%d, v0, 3, 1\nv_xor_b32 v%d, 1, v%d\nv_lshlrev_b32 v%d, 29, v%d" % (vA, vA, vA, vA, vA))
        a.I("s_lshl_b32 %s, %s, 3\ns_add_u32 %s, %s, %d\nv_add3_u32 v%d, v%d, v%d, %s" % (sT0, sC, sT0, sT0, 8192 - 512, u1, u1, vA, sT0)); put(aHSS)
        a.I("\n".join(self.hi_lo(ACC + 12, ACC + 8, ACC + 13)))
        a.vm("buffer_store_dword v%d, v%d, %s, %s offen sc1" % (ACC + 12, CSW, WS, dCS), "fas")
        a.vm_wait("x")
        self.publish(0)
        xload = "buffer_load_dword v31, v%d, %s, 0 offen sc1" % (XA, WS)
        a.vm(xload, "xf")
        if OPT["b_pos"] == 1: b_loads()
        self.stamp("p")
        lin(sB3, str(LY.WD), [(sN, LY.WD_STRIDE), (kkD, 8192), (sW, 1024)])
        a.I("s_lshl_b32 %s, %s, 2\ns_add_u32 %s, %s, %s" % (cuG, cuG, cuG, cuG, sW))
        self.sdivmod(sT0, sT1, cuG, 7)
        lin(sB2, str(LY.WG), [(sT0, LY.WG_STRIDE)])
        S0, TL = GS0, 16 - GS0
        lin(sB0, sB2, [(kkG, 28 * 1024), (sT1, 2048)])
        lin(sB2, sB2, [(sT1, (2 * TL + 1) * 1024)])
        lin(sT0, sB2, [(kkG, 4096)])
        a.I("s_add_u32 %s, %s, %d\ns_cmp_lt_u32 %s, %d\ns_cselect_b32 %s, %s, %s\ns_cselect_b32 %s, 14, 2\ns_lshl_b32 %s, %s, 10" %
            (sT0, sT0, 12 * S0 * 1024, kkG, S0 // 2, sB0, sB0, sT0, sB1, sB1, sB1))
        lin(sB2, sB2, [(kkG, 64)])
        a.I("s_add_u32 %s, %s, %d" % (sB2, sB2, (14 * S0 + 2 * TL) * 1024))
        a.I("s_cmp_lt_u32 s2, 224")
        for r_ in (sB0, sB2, sB3): a.I("s_cselect_b32 %s, %s, 0x%x" % (r_, r_, OOB))
        lin(sHFL, str(LY.HFL), [(sG, 1024)])
        lin(sHDFL, sHFL, [(sC, 128)])
        lin(sFBO, str(LY.FA), [("s2", 128)])
        a.I("s_add_u32 %s, %s, 2048\ns_add_u32 %s, %s, 0x%x" % (sHDFL, sHDFL, sHDST, sGB, 2 * LY.ACT_STRIDE))
        a.I("s_cmp_eq_u32 %s, 0\ns_cselect_b32 %s, %s, 0x%x" % (sW, sFBO, sFBO, OOB))
        a.I("s_lshl_b32 %s, %s, 2\ns_add_u32 %s, %s, %s\ns_cmp_eq_u32 %s, 7\ns_cselect_b32 %s, 0, %s\ns_cmp_eq_u32 %s, 7" % (sT0, sR, sT0, sT0, sW, sN, sT0, sT0, sT0))
        a.I("s_cselect_b32 %s, %s, 0x%x" % (sHDST, sHDST, OOB))
        a.I("v_lshlrev_b32 v%d, 4, v%d\nv_lshl_add_u32 v%d, v%d, 7, v%d\nv_add_u32 v%d, %d, v%d" % (u0, t8, u0, g, u0, u1, L_HALO, u0)); put(aHX)
        a.I("s_lshl_b32 %s, %s, 10\nv_add3_u32 v%d, v%d, v%d, %s" % (sT0, sC, u1, u0, vA, sT0)); put(aHST)
        def second_unit():
            G, D, CS = ACC + 16, ACC + 32, ACC + 48
            if "b" in OPT["order"]:
                a.vm_wait(("fb", 24576))
                a.I("s_barrier")
            for n_ in range(4):
                for half in range(2):
                    a.ds("ds_read_b64_tr_b16 %s, v%d offset:%d" % (vr(G + 4 * n_ + 2 * half, 2), TG, 8192 * (1 + n_ % 2) + (32 * (n_ // 2) + 4 * half) * 128), ("tg", n_))
            for sp in range(2):
                for half in range(2):
                    a.ds("ds_read_b64_tr_b16 %s, v%d offset:%d" % (vr(D + 4 * sp + 2 * half, 2), TD, 24576 + (32 * sp + 4 * half) * 128), ("td", sp))
            for n_ in range(4):
                a.ds_wait(("tg", n_))
                a.vm("buffer_store_dwordx4 %s, v%d, %s, %s offen offset:%d sc1" % (vr(G + 4 * n_, 4), vL16, WS, sB0, (n_ % 2) * 1024))
                c_ = vr(CS + 4 * (n_ % 2), 4)
                a.I("v_mfma_f32_16x16x32_bf16 %s, %s, %s, %s" % (c_, vr(ONES, 4), vr(G + 4 * n_, 4), c_ if n_ >= 2 else "0"))
                if n_ == 1: a.I("s_add_u32 %s, %s, %s" % (sB0, sB0, sB1))
            for sp in range(2):
                a.ds_wait(("td", sp))
                a.vm("buffer_store_dwordx4 %s, v%d, %s, %s offen sc1" % (vr(D + 4 * sp, 4), vL16, WS, sB3))
                a.I("s_add_u32 %s, %s, 4096" % (sB3, sB3))
            a.I("v_cmp_gt_u32 vcc, 16, v0\nv_bfe_u32 v%d, v0, 4, 1\nv_mul_u32_u24 v%d, 448, v%d\nv_add_u32 v%d, v%d, v%d\nv_cndmask_b32 v%d, v%d, v%d, vcc" %
                (D + 9, D + 9, D + 9, D + 9, D + 9, LINE, CS, CS + 4, CS))
            a.I("\n".join(self.hi_lo(D + 8, CS, CS + 1)))
            a.vm("buffer_store_dword v%d, v%d, %s, %s offen sc1" % (D + 8, D + 9, WS, sB2), "fbs")
            self.stamp("p")
        def first_flags():
            a.I("v_mov_b32 v30, %s" % sNONCE)
            a.vm_wait("fas")
            a.I("s_barrier")
            a.vm("buffer_store_dword v30, v%d, %s, %s offen sc1" % (LINE, WS, sFBO))
            a.I("s_add_u32 %s, %s, %d" % (sFBO, sFBO, LY.FB - LY.FA))
            self.stamp("p")
        def own_flags():
            spin, back = a.label("xspin"), a.label("xback")
            test = "v_xor_b32 v29, %s, v31\nv_cmp_lt_u32 vcc, 15, v29\ns_and_b64 vcc, vcc, exec" % sNONCE
            a.vm_wait("xf")
            a.I("%s\ns_cbranch_scc1 %s\n%s:" % (test, spin, back))
            self.cold.append("%s:\ns_mov_b32 %s, 0x40000\n%s_l:\n%s\ns_sub_u32 %s, %s, 1\ns_cbranch_scc1 L_main_done\ns_waitcnt vmcnt(0)\n%s\ns_cbranch_scc1 %s_l\ns_branch %s"
                             % (spin, sSPIN, spin, xload, sSPIN, sSPIN, test, spin, back))
            a.I("v_cmp_ne_u32 vcc, v%d, v31\ns_cmp_lg_u64 vcc, 0\ns_cselect_b32 %s, 1, 0" % (XV, sSLOW))
            self.signal(0, "pub", 0)
            self.stamp("p")
        for step in OPT["order"]:
            {"b": second_unit, "a": first_flags, "o": own_flags}[step]()
        lin(sHST, sGB, [(sW, 114688), (sJ, 7168)])
        lin(sSLD, sGB, [(sW, 2048)])
        lin(sOLD[3], sGB, [(sR, 65536), (sW, 8192)])
        lin(sHLD[3], sGB, [(sR, 229376), (sW, 28672)])
        for i in range(4):
            a.I("s_add_u32 %s, %s, %d\ns_and_b32 %s, %s, 3\ns_lshr_b32 %s, %s, 1\ns_and_b32 %s, %s, 1" % (sTA, sW, i + 1, sTA, sTA, sT0, sTA, sT1, sTA))
            lin(sOLD[i], sOLD[3], [(sT0, 32768), (sT1, 256)])
            lin(sHLD[i], sHLD[3], [(sT0, 114688), (sT1, 256)])
            if i < 3: lin(sXW[i], str(i * 4096), [(sTA, 12288)])
        lin(sXR, "0", [(sW, 12288)])
        lin(sWQ, str(LY.WQ), [(sJ, LY.WQ_STRIDE * (1 - OPT["hitw"]))])
        lin(sWG, str(LY.WG), [(sJ, LY.WG_STRIDE * (1 - OPT["hitw"]))])
        lin(sWO, str(LY.WO), [(sC, LY.WO_STRIDE * (1 - OPT["hitw"])), (sW, 16384)])
        lin(sWD, str(LY.WD), [(sC, LY.WD_STRIDE * (1 - OPT["hitw"])), (sW, 57344)])
        lin(sTAB, str(L_TAB), [(sW, 512)])
        a.I("s_lshl_b32 %s, %s, 10\ns_lshl_b32 %s, %s, 12\ns_add_u32 %s, %s, %s\ns_add_u32 %s, %s, %s" % (sLW, sW, sLW4, sW, sWQ4, sWQ, sLW4, sWG4, sWG, sLW4))
        a.I("s_cmp_eq_u32 %s, 0\ns_cselect_b32 %s, 0x%x, %s\ns_cselect_b32 s54, 0, 0xff\ns_mov_b32 s55, 0" % (sN, sHALO, OOB, sGB))
        a.I("s_add_u32 %s, %s, %s\ns_add_u32 %s, %s, %s\ns_add_u32 %s, %s, %s" % (sHALO2, sHALO, sLW2, sWQ, sWQ, sLW, sWG, sWG, sLW2))
        a.I("s_lshr_b32 %s, %s, 1\ns_lshl_b32 %s, %s, 5\ns_and_b32 %s, %s, 1\ns_lshl_b32 %s, %s, 1\ns_add_u32 %s, %s, %s" % (sT0, sW, sT0, sT0, sT1, sW, sT1, sT1, sT0, sT0, sT1))
        a.I("s_mov_b32 s40, 0x33333333\ns_mov_b32 s41, 0\ns_lshl_b64 s[40:41], s[40:41], %s" % sT0)
        a.I("s_lshl_b32 %s, %s, 1\ns_lshl_b32 %s, %s, 4\ns_add_u32 %s, %s, %s" % (sT0, sR, sT2, sW, sT0, sT0, sT2))
        a.I("s_mov_b32 s42, 0x3333\ns_mov_b32 s43, 0\ns_lshl_b64 s[42:43], s[42:43], %s" % sT0)
        a.I("v_add_u32 v%d, 0x10000, v%d\nv_add_u32 v%d, 0x20000, v%d" % (vL16b, vL16, vL16c, vL16))
        a.I("v_lshlrev_b32 v%d, 4, v%d\nv_lshl_add_u32 v%d, v%d, 6, v%d" % (u0, g, u1, tok, u0)); put(aSQ)
        a.I("v_lshl_add_u32 v%d, v%d, 6, v%d" % (u1, t8, u0)); put(aSH)
        a.I("v_lshlrev_b32 v%d, 7, v%d" % (u1, tok)); put(aTO)
        a.I("v_lshlrev_b32 v%d, 7, v%d\nv_lshl_add_u32 v%d, v%d, 5, v%d\nv_lshl_add_u32 v%d, v%d, 1, v%d\nv_lshlrev_b32 v%d, 3, v0" % (u0, rr, u0, g, u0, u0, cc, u0, u1))
        a.I("s_cmp_ge_u32 %s, 2\ns_cselect_b64 vcc, -1, 0\ns_cselect_b32 %s, 2, 8\nv_cndmask_b32 v%d, v%d, v%d, vcc" % (sW, sT1, u1, u0, u1))
        a.I("s_lshr_b32 %s, %s, 1\ns_add_u32 %s, %s, %d\nv_add_u32 v%d, %s, v%d" % (sT0, sLW, sT0, sT0, L_KV, u1, sT0, u1)); put(aHWR)
        a.I("v_mov_b32 v%d, %s" % (u1, sT1)); put(aHWS)
        a.I("s_lshr_b32 %s, %s, 1\nv_mul_u32_u24 v%d, 24, v%d\nv_lshl_add_u32 v%d, v%d, 3, v%d\nv_add_u32 v%d, %s, v%d" % (sT0, sJ, u0, t8, u0, kc, u0, u0, sT0, u0))
        a.I("s_add_u32 %s, %s, 192\nv_lshl_add_u32 v%d, v%d, 3, %s\nv_cmp_gt_u32 vcc, 24, v0\nv_cndmask_b32 v%d, v%d, v%d, vcc" % (sT0, sC, u1, t8, sT0, u0, u1, u0))
        a.I("v_lshlrev_b32 v%d, 7, v%d\nv_add_u32 v%d, %d, v%d" % (u0, u0, FAV, LY.FA, u0))
        a.I("s_mul_i32 %s, %s, 7\ns_add_u32 %s, %s, 6\ns_lshr_b32 %s, %s, 2\ns_lshr_b32 %s, %s, 2" % (sT0, sJ, sT1, sT0, sT0, sT0, sT1, sT1))
        a.I("v_add_u32 v%d, %s, v%d\nv_min_u32 v%d, %s, v%d\nv_mad_u32_u24 v%d, v%d, 28, v%d" % (u0, sT0, kc, u0, sT1, u0, u0, t8, u0))
        a.I("v_min_u32 v%d, 27, v%d\nv_lshl_add_u32 v%d, v%d, 3, %s\nv_cmp_gt_u32 vcc, 32, v0\nv_cndmask_b32 v%d, v%d, v%d, vcc" % (u1, t32, u1, u1, sC, u0, u1, u0))
        a.I("v_lshlrev_b32 v%d, 7, v%d\nv_add_u32 v%d, %d, v%d" % (u0, u0, u1, LY.FB, u0)); put(aFB)
        NG, Z, M0_, M1_ = rr, cc, q16, hh
        a.I("s_or_b32 %s, %s, %s\ns_cmp_eq_u32 %s, 0\ns_cselect_b64 s[56:57], -1, 0" % (sT0, sN, sW, sT0))
        a.I("v_mov_b32 v%d, %s\nv_mov_b32 v%d, 0\nv_lshlrev_b32 v%d, 2, v%d\nv_sub_u32 v%d, v%d, v%d" % (NG, NEG, Z, vA, g, vA, tok, vA))
        for r in range(4):
            a.I("v_subrev_u32 v%d, %d, v%d\nv_mov_b32 v%d, %s" % (u0, r, vA, M0_, "0xffff0000" if r & 1 else "0xffff"))
            a.I("v_cmp_gt_u32 vcc, 8, v%d\nv_cmp_gt_i32 s[58:59], -8, v%d\nv_cmp_le_i32 s[60:61], 0, v%d" % (u0, u0, u0))
            a.I("v_cndmask_b32 v%d, v%d, v%d, vcc" % (u1, NG, Z)); put(aBC + r)
            a.I("v_cndmask_b32 v%d, v%d, v%d, s[58:59]" % (u1, NG, Z)); put(aBP + r)
            a.I("v_cndmask_b32 v%d, v%d, v%d, s[56:57]" % (u1, u1, NG)); put(aBP0 + r)
            if r & 1:
                a.I("v_cndmask_b32 v%d, v%d, v%d, s[60:61]\nv_or_b32 v%d, v%d, v%d" % (u1, Z, M0_, u1, u1, M1_)); put(aMC + r // 2)
            else:
                a.I("v_cndmask_b32 v%d, v%d, v%d, s[60:61]" % (M1_, Z, M0_))
        self.stamp("p")
        if "b" in OPT["order"]:
            a.vm_wait("fbs")
            a.I("s_barrier")
            a.vm("buffer_store_dword v30, v%d, %s, %s offen sc1" % (LINE, WS, sFBO))
        elif OPT["predrain"]:
            a.vm_drain()
        self.stamp("p")
        self.second_unit, self.b_loads = second_unit, b_loads
        self.fav = FAV

    def qkv(self, ps):
        a = self.a
        xi = 2 * ps
        late = self.wq_late(ps)
        lateb = ps == 0 and "b" not in OPT["order"]
        wql = [g for ch in late for g in self.wq_chunk(ch)]
        split = ps == 0 and OPT["q0_split"]
        self.poll(4 * ps, sMA, self.fav if ps == 0 and not split else None)
        self.stamp()
        HX, HW, HW2, HF, NM, RL, CQ, RR = 16, 17, 18, 19, 20, 26, 28, ACC + 52
        xl = self.reg_loads([vr(X + 8 * s + 4 * b, 4) for s in range(16) for b in range(2)], [sXLD] * 32,
                            [LY.XB[xi] + s * 2048 + b * 256 for s in range(16) for b in range(2)], sTA, vQ, "x")
        UP = OPT["q_up"] if ps else OPT["q0_up"]
        if ps == 0:
            late = late[1:]
            n = 4 + OPT["q0_w"]
            first = wql[:4] + xl[:UP] + wql[4:n]
            if split:
                l_fa, g_fa = self.late_check("buffer_load_dword v31, v%d, %s, 0 offen sc1" % (self.fav, WS), 31, "exec", "fa")
                n1 = OPT["q0_n1"]
                first = xl[:n1] + [l_fa] + xl[n1:UP] + [g_fa] + wql[:n]
            wql = wql[n:]
            if OPT["b_pos"] >= 2:
                k = OPT["b_pos"] - 2
                a.run_all(self.flat(first[:k])); first = first[k:]
                self.b_loads(); a.state.pop("m0", None)
            if lateb:
                k = len(first) - OPT["q0_b"]
                a.run_all(self.flat(first[:k])); first = first[k:]
                if OPT["b_pos"] >= 2: a.vm_wait(("fb", 24576))
                a.I("s_barrier")
                self.second_unit()
            a.run_all(self.flat(first))
        else:
            a.run_all(self.flat(xl[:UP]))
        a.I(self.getc(30, aSQ) + "\n" + self.getc(31, aSH) + "\n" + self.getc(HX, aHX))
        a.I("s_add_u32 %s, %s, 2048\nv_add_u32 v%d, %s, v%d\nv_add_u32 v%d, 0xc000, v%d\nv_lshlrev_b32 v%d, 7, v0" % (sT0, sLW, HW, sT0, vL16, HW2, HW, CQ))
        if ps == 0:
            a.vm_wait(("wq", 0))
        a.I("s_barrier")
        sl = Slots()
        use = {}
        acc = lambda blk, b: vr(ACC + 8 * blk + 4 * b, 4)
        hbuf = lambda t: (F + 24, X)[t % 2]
        step0 = {}
        H0 = OPT["q_h0"]
        hpos = {}
        for t in range(16):
            p = (t * 6 * (16 - H0)) // 16 + 1
            hpos.setdefault((H0 + p // 6, p % 6), []).append(t)
        Y, Z = X + 8, X + 96
        BC, BP, BP0, MC, ONES, KW, CSA = Y, Y + 4, Y + 8, Y + 12, Y + 14, Y + 16, Y + 21
        def halo_mfma(t):
            d = acc(6, 0)
            if t < 16:
                i = sl.add("v_mfma_f32_16x16x32_bf16 %s, %s, %s, %s" % (d, vr(hbuf(t) + 4, 4), vr(hbuf(t), 4), "0" if t == 0 else d), [("wds", ("hx", t))])
            else:
                i = sl.add("v_mfma_f32_16x16x16_bf16 %s, %s, %s, %s" % (d, vr(NM + 4, 2), vr(hbuf(t), 2), d), [("wds", ("hw", t))])
            use[("h", t)] = i
        for s in range(17):
            step0[s] = sl.n()
            if s == 16: halo_mfma(16)
            for f in range(6):
                for b in range(2):
                    pre_ = []
                    if b == 0: pre_.append(("wds", ("f", s, f)))
                    if f == 0 and s < 16: pre_.append(("wvm", ("x", 2 * s + b)))
                    w = vr(F + 4 * f, 4 if s < 16 else 2)
                    x = vr(X + 8 * s + 4 * b, 4) if s < 16 else vr(NM + 2 * b, 2)
                    A, B = (w, x) if f < 4 else (x, w)
                    d = acc(f, b)
                    mn = "v_mfma_f32_16x16x32_bf16" if s < 16 else "v_mfma_f32_16x16x16_bf16"
                    use[(s, f)] = sl.add("%s %s, %s, %s, %s" % (mn, d, A, B, "0" if s == 0 else d), pre_)
                for t in hpos.get((s, f), ()): halo_mfma(t)
        reads = []
        for s in range(17):
            for f in range(6):
                d = F + 4 * f
                if s < 16: t = "ds_read_b128 %s, %s" % (vr(d, 4), ldsaddr(s * 6144 + f * 1024))
                else: t = "ds_read2st64_b32 %s, v%d offset0:%d offset1:%d" % (vr(d, 2), CSA, 2 * f, 2 * f + 1)
                reads.append((use[(s - 1, f)] if s else -1, (6 * s + f) // 16, ("ds", t, ("f", s, f))))
        hbar = step0[H0 - 1] + 4
        for t in range(17):
            pos = use[("h", t - 2)] if t >= 2 else hbar + 2 + 2 * t
            if t < 16:
                reads.append((pos, (6 * t + 5) // 16, ("ds", "ds_read_b128 %s, v%d offset:%d" % (vr(hbuf(t), 4), HW if t < 8 else HW2, (t % 8) * 6144), ("hw", t))))
                reads.append((pos + (1 if t >= 2 else 0), 0, ("ds", "ds_read_b128 %s, v%d offset:%d" % (vr(hbuf(t) + 4, 4), HX, t * 512), ("hx", t))))
            else:
                reads.append((pos, 6, ("ds", "ds_read2st64_b32 %s, v%d offset0:4 offset1:5" % (vr(hbuf(t), 2), CSA + 1), ("hw", t))))
        sl.put("c", step0[4], [("i", "v_add_u32 v%d, 98304, v%d\ns_lshr_b32 %s, %s, 1\nv_add_u32 v%d, %s, v%d" % (CSA, vFL, sT2, sLW, CSA + 1, sT2, CSA)), ("mark", "csaddr")])
        sl.after(step0[14], ("need", "csaddr"))
        sl.pre[step0[16]].append(("wds", ("nm", 2)))
        chbar = {}
        for ch in late:
            ops = [("wvm", ("wq", ch)), ("i", "s_barrier")]
            p = chbar[ch] = min(p for p, c, _ in reads if c == ch)
            if lateb and ch == OPT["q0_fbch"]:
                ops.insert(0, ("wvm", "fbs"))
                sl.put("f", p + 1, [("i", "v_mov_b32 v%d, %s\n%s" % (NM, sNONCE, self.getc(NM + 1, aLINE))),
                                    ("vm", "buffer_store_dword v%d, v%d, %s, %s offen sc1" % (NM, NM + 1, WS, sFBO)), ("mark", "fbf")])
                sl.after(step0[H0], ("need", "fbf"))
            sl.after(p, *ops)
        sl.after(hbar, ("wvm", "halo"), ("i", "s_barrier"))
        for pos, _, rd in reads:
            if pos < 0: a.run(rd)
            else: sl.after(pos, rd)
        l_hf, g_chk = self.late_check("buffer_load_dword v%d, v%d, %s, %s offen sc1" % (HF, CQ, WS, sT1), HF, sMH, "hf")
        g_hf = [("i", "v_and_b32 v%d, 0x380, v%d\ns_add_u32 %s, %s, %d" % (CQ, CQ, sT1, sHFL, ps * 16384))] + l_hf
        g_hd = self.dma_chunk(sHALO2, LY.HX[ps], L_HALO, 2, "halo", " sc1")
        g_hs = [("i", "s_add_u32 %s, %s, %d" % (sT1, sHALO, LY.HX[ps] + 8192)),
                ("vm", "buffer_load_dwordx4 %s, v31, %s, %s offen sc1" % (vr(RR + 8, 4), WS, sT1), "st")]
        g_s0 = [("i", "s_add_u32 %s, %s, %d" % (sT0, sSLD, LY.SB[xi])), ("vm", "buffer_load_dwordx4 %s, v30, %s, %s offen sc1" % (vr(RR, 4), WS, sT0))]
        g_s1 = [("vm", "buffer_load_dwordx4 %s, v30, %s, %s offen offset:1024 sc1" % (vr(RR + 4, 4), WS, sT0))]
        wo = self.reg_loads([vr(X + 32 + 4 * k, 4) for k in range(16)], [sWO] * 16, [k * 1024 for k in range(16)], sTD, vL16, "wo")
        rest = xl[UP:]
        h1 = OPT["q_hf"] if ps else OPT["q0_hf"]
        h2 = h1 + OPT["q_chk"] - 2
        seq = rest[:h1] + [g_hf, g_s0, g_s1] + rest[h1:h2] + [g_chk] + g_hd + [g_hs] + rest[h2:]
        if wql:
            due, d = [], sl.n()
            for g in reversed(seq):
                tag = g[-1][2] if len(g[-1]) > 2 else None
                if isinstance(tag, tuple) and tag[0] == "x": d = step0[tag[1] // 2]
                due.append((d, g))
            due.reverse()
            d, wdue = 0, []
            for g in reversed(wql):
                if g[-1][2] is not None: d = chbar[g[-1][2][1]] - OPT["q0_lead"]
                wdue.append((d, g)); d -= 6
            seq = [g for _, g in sorted(due + wdue[::-1], key=lambda t: t[0])]
        if ps == 0:
            if OPT["otouch"]: seq += self.touch(aTO, sOST, LY.OB[ps], CQ)
            l_fb, g_fb = self.late_check("%s\nbuffer_load_dword v%d, v%d, %s, 0 offen sc1" % (self.getc(Y + 23, aFB), Y + 23, Y + 23, WS), Y + 23, "exec", "fb")
            l_fb = [("i", l_fb[0][1].split("\n")[0]), ("vm", l_fb[0][1].split("\n")[1], "fb")]
            seq += [(step0[5 + k // 2], g) for k, g in enumerate(wo)]
            n = len(seq) - OPT["q0_fb"]
            seq = seq[:n] + [(step0[OPT["q0_fbs"]], l_fb)] + seq[n:] + [(step0[OPT["q0_fbs"] + 3], g_fb)]
            seq += self.wgs("q", ps) + self.wds("q", ps)
        else:
            seq += self.wgs("q", ps) + [(step0[5 + k // 2], g) for k, g in enumerate(wo)]
        left = sl.pace(seq, 0, (OPT["q_every"] if ps else OPT["q0_every"]) / 10)
        A0, A1, AH = RR, RR + 4, RR + 8
        st = [[("wvm", "st")]]
        for r_ in (A0, A1, AH):
            st.append([("i", "v_add_f32 v%d, v%d, v%d" % (r_, r_, r_ + 2))])
            st.append([("i", "v_add_f32 v%d, v%d, v%d" % (r_ + 1, r_ + 1, r_ + 3))])
        for o in (0, 1): st.append([("i", "v_mov_b32 v%d, v%d" % (AH + 2 + o, AH + o))])
        for o in (0, 1): st.append([("i", "v_permlane32_swap_b32 v%d, v%d" % (A0 + o, A1 + o))])
        for o in (0, 1): st.append([("i", "v_permlane32_swap_b32 v%d, v%d" % (AH + o, AH + 2 + o))])
        for o in (0, 1): st.append([("i", "v_add_f32 v%d, v%d, v%d" % (A0 + o, A0 + o, A1 + o))])
        for o in (0, 1): st.append([("i", "v_add_f32 v%d, v%d, v%d" % (AH + o, AH + o, AH + 2 + o))])
        for o in (0, 1): st.append([("i", "v_permlane16_swap_b32 v%d, v%d" % (A0 + o, AH + o))])
        for o in (0, 1): st.append([("i", "v_add_f32 v%d, v%d, v%d" % (A0 + o, A0 + o, AH + o))])
        st += [[op] for op in self.ln_from_sums(A0, A0 + 1, A0 + 2)]
        st.append([("i", "v_cvt_pk_bf16_f32 v%d, -v%d, -v%d" % (A0, A0, A0))])
        st.append([("i", "v_add_u32 v%d, %s, v%d" % (HF, sTAB, vFL))])
        st.append([("i", "v_and_or_b32 v30, v%d, 63, %s" % (vFL, sTAB))])
        st.append([("i", "v_and_or_b32 v31, v0, 48, %s" % sTAB)])
        st.append([("ds", "ds_write2st64_b32 v%d, v%d, v%d offset0:0 offset1:1" % (HF, A0 + 1, A0))])
        row = {0: 0, 1: 2, 2: 1}
        for b in range(3):
            o = 64 + row[b] * 16
            st.append([("ds", "ds_read2_b32 %s, v30 offset0:%d offset1:%d" % (vr(NM + 2 * b, 2), o, o), ("nm", b))])
        st.append([("ds", "ds_read2_b32 %s, v30 offset0:0 offset1:32" % vr(RL, 2))])
        for b in range(3):
            st.append([("ds", "ds_read_b128 %s, v31 offset:%d" % (vr(RR + 4 * b, 4), row[b] * 64), ("tab", b))])
        sl.spread(st, step0[H0], step0[14])
        cst = [[("i", self.getc(Y + k, aBC + k))] for k in range(14)]
        cst += [[("i", "v_mov_b32 v%d, %s" % (ONES + k, sONE))] for k in range(2)]
        cst += [[("i", self.getc(KW, aHWR))], [("i", self.getc(KW + 3, aHWS))], [("i", "s_add_u32 %s, %s, %d" % (sT2, sLW2, L_KV))],
                [("i", "v_add_u32 v%d, v%d, v%d" % (KW + 1, KW, KW + 3))], [("i", "v_lshl_add_u32 v%d, v0, 3, %s" % (KW + 4, sT2))],
                [("i", "v_add_u32 v%d, v%d, v%d" % (KW + 2, KW + 1, KW + 3))], [("i", "v_add_u32 v%d, v%d, v%d" % (KW + 3, KW + 2, KW + 3))]]
        sl.spread(cst, step0[4] + 2, step0[8], "c")
        Qp = lambda b, h: Z + 4 * h + 2 * b
        Kp = lambda b, h: Z + 8 + 6 * h + 2 * (b + 1)
        Vp = lambda b, h: Z + 20 + 6 * h + 2 * (b + 1)
        HP, HA = HX, ACC + 48
        ar_ = lambda blk, b: ACC + 8 * blk + 4 * b
        cvt = lambda d, s_: "v_cvt_pk_bf16_f32 v%d, v%d, v%d" % (d, s_, s_ + 1)
        tl = [("wds", ("tab", 2)), ("i", "v_mul_f32 v%d, 0x3eb8aa3b, v%d\nv_mul_f32 v%d, 0x3eb8aa3b, v%d" % (CQ, RL, CQ + 1, RL + 1))]
        tl += [("i", "v_mul_f32 v%d, v%d, v%d" % (HA + r, HA + r, RR + 8 + r)) for r in range(4)]
        tl += [("i", cvt(HP, HA)), ("i", cvt(HP + 1, HA + 2))]
        hw = [("ds", "ds_write_b16%s v%d, v%d" % ("_d16_hi" if r & 1 else "", KW + r, HP + r // 2)) for r in range(4)]
        qs = [(h, b) for h in range(2) for b in range(2)]
        for n_, (h, b) in enumerate(qs):
            tl += [hw[n_], ("i", cvt(Qp(b, h), ar_(h, b))), ("i", cvt(Qp(b, h) + 1, ar_(h, b) + 2))]
        sl.put("v", step0[16], tl)
        self.lite(sl, "q", [step0[s] for s in (0, 2, 4, 6, 8, 10, 12, 14)])
        self.report("qkv%d" % ps, sl.emit(a))
        self.stamp()
        body = []
        e = lambda t: body.extend(("i", x) for x in t.split("\n"))
        def pack(dst, src): e(cvt(dst, src) + "\n" + cvt(dst + 1, src + 2))
        def scale_l(src, b):
            for k in range(2): e("v_pk_mul_f32 %s, %s, %s op_sel:[0,%d] op_sel_hi:[1,%d]" % (vr(src + 2 * k, 2), vr(src + 2 * k, 2), vr(RL, 2), b, b))
        def scale_r(src, r0):
            for k in range(2): e("v_pk_mul_f32 %s, %s, %s" % (vr(src + 2 * k, 2), vr(src + 2 * k, 2), vr(r0 + 2 * k, 2)))
        kvw = lambda src, part: body.append(("ds", "ds_write_b64 v%d, %s offset:%d" % (KW + 4, vr(src, 2), 2048 + 512 * part)))
        for h in range(2):
            scale_l(ar_(2 + h, 1), 1); pack(Kp(1, h), ar_(2 + h, 1)); kvw(Kp(1, h), h); scale_l(ar_(2 + h, 0), 0)
        for h in range(2):
            scale_r(ar_(4 + h, 1), RR + 4); pack(Vp(1, h), ar_(4 + h, 1)); kvw(Vp(1, h), 2 + h); scale_r(ar_(4 + h, 0), RR)
        units = [(1, 0), (1, 1), (0, 0), (0, 1)]
        SC = lambda u: F + 8 * u
        SP = lambda u: F + 8 * u + 4
        smf = lambda d, kb, u, bias: "v_mfma_f32_16x16x16_bf16 %s, %s, %s, %s" % (vr(d, 4), vr(Kp(kb, units[u][1]), 2), vr(Qp(*units[u]), 2), vr(bias, 4))
        M = [ACC + u for u in range(4)]
        def merge(u):
            return ["v_max_f32 v%d, v%d, v%d" % (SC(u) + r, SC(u) + r, SP(u) + r) for r in range(4)] + [
                "v_max3_f32 v%d, v%d, v%d, v%d" % (M[u], SC(u), SC(u) + 1, SC(u) + 2), "v_max_f32 v%d, v%d, v%d" % (M[u], M[u], SC(u) + 3)]
        e(smf(SC(0), 1, 0, BC)); pack(Kp(0, 0), ar_(2, 0))
        e(smf(SC(1), 1, 1, BC)); pack(Kp(0, 1), ar_(3, 0))
        e(smf(SP(0), 0, 0, BP))
        body.append(("dsdrain",)); e("s_barrier")
        nbar = len(body)
        rdkv = lambda dst, part, tag: body.append(("ds", "ds_read_b64 %s, v%d offset:%d" % (vr(dst, 2), KW + 4, 512 * part), tag))
        e(smf(SP(1), 0, 1, BP)); rdkv(Kp(-1, 0), 0, ("kp", 0)); rdkv(Kp(-1, 1), 1, ("kp", 1))
        e(smf(SC(2), 0, 2, BC)); rdkv(Vp(-1, 0), 2, ("vp", 0)); rdkv(Vp(-1, 1), 3, ("vp", 1))
        e(smf(SC(3), 0, 3, BC)); pack(Vp(0, 0), ar_(4, 0)); pack(Vp(0, 1), ar_(5, 0))
        m0, m1 = merge(0), merge(1)
        e("\n".join(m0))
        body.append(("wds", ("kp", 1)))
        e(smf(SP(2), -1, 2, BP0)); e("\n".join(m1[:2]))
        e(smf(SP(3), -1, 3, BP0)); e("\n".join(m1[2:]))
        e("s_add_u32 %s, %s, %d" % (sT0, sOST, LY.OB[ps]))
        e("\n".join(merge(2)[:2]))
        e("v_permlane32_swap_b32 v%d, v%d" % (M[0], M[1]))
        e("\n".join(merge(2)[2:] + merge(3)))
        e("v_max_f32 v%d, v%d, v%d" % (M[0], M[0], M[1]))
        e("v_permlane32_swap_b32 v%d, v%d\nv_max_f32 v%d, v%d, v%d" % (M[2], M[3], M[2], M[2], M[3]))
        e("v_permlane16_swap_b32 v%d, v%d\nv_max_f32 v%d, v%d, v%d\nv_max_f32 v%d, v%d, v%d" % (M[0], M[2], M[1], M[0], M[2], M[2], M[0], M[2]))
        e("v_permlane16_swap_b32 v%d, v%d" % (M[1], M[2]))
        e("v_mul_f32 v%d, v%d, v%d\nv_mul_f32 v%d, v%d, v%d" % (M[0], M[1], CQ + 1, M[1], M[1], CQ + 1))
        e("v_mul_f32 v%d, v%d, v%d\nv_mul_f32 v%d, v%d, v%d" % (M[3], M[2], CQ, M[2], M[2], CQ))
        def shift(u):
            for k in range(2):
                e("v_pk_fma_f32 %s, %s, %s, %s op_sel:[0,%d,%d] op_sel_hi:[1,%d,%d] neg_lo:[0,0,1] neg_hi:[0,0,1]" %
                  (vr(SC(u) + 2 * k, 2), vr(SC(u) + 2 * k, 2), vr(CQ, 2), vr(ACC + 2 * (u // 2), 2), units[u][0], u % 2, units[u][0], u % 2))
        e("v_permlane32_swap_b32 v%d, v%d" % (M[0], M[1])); shift(0)
        e("v_permlane32_swap_b32 v%d, v%d" % (M[2], M[3])); shift(1); shift(2); shift(3)
        PM = lambda u: ACC + 4 + 2 * u
        PS = lambda u: ACC + 12 + 4 * u
        OP = lambda b: ACC + 28 + 4 * b
        pv = lambda u: "v_mfma_f32_16x16x32_bf16 %s, %s, %s, 0" % (vr(SC(u), 4), vr(Vp(units[u][0] - 1, units[u][1]), 4), vr(PS(u), 4))
        for u, (b, h) in enumerate(units):
            for r in range(4):
                e("v_exp_f32 v%d, v%d" % (SC(u) + r, SC(u) + r))
                if r == 1 and u >= 1: e(pv(u - 1))
            if u == 2: body.append(("wds", ("vp", 1)))
            if u >= 2: e("v_rcp_f32 v%d, v%d" % (SP(u - 2), SP(u - 2)))
            pack(PM(u), SC(u))
            for k in range(2):
                e("v_bfi_b32 v%d, v%d, 0, v%d\nv_and_b32 v%d, v%d, v%d" % (PS(u) + k, MC + k, PM(u) + k, PS(u) + 2 + k, MC + k, PM(u) + k))
            e("v_mfma_f32_16x16x16_bf16 %s, %s, %s, 0" % (vr(SP(u), 4), vr(ONES, 2), vr(PM(u), 2)))
        e("v_rcp_f32 v%d, v%d" % (SP(2), SP(2)))
        e(pv(3))
        def fin(u, packed):
            b, h = units[u]
            if packed:
                for k in range(2): e("v_pk_mul_f32 %s, %s, %s op_sel_hi:[1,0]" % (vr(SC(u) + 2 * k, 2), vr(SC(u) + 2 * k, 2), vr(SP(u), 2)))
            else:
                for r in range(4): e("v_mul_f32 v%d, v%d, v%d" % (SC(u) + r, SC(u) + r, SP(u)))
            pack(OP(b) + 2 * h, SC(u))
            if h == 1:
                body.append(("vm", "buffer_store_dwordx4 %s, v%d, %s, %s offen offset:%d%s" % (vr(OP(b), 4), vQ, WS, sT0, b * 256, " sc1" if ps == 0 and not OPT["otouch"] else ""), "o" if b == 0 else None))
        fin(0, False); fin(1, True)
        e("v_rcp_f32 v%d, v%d" % (SP(3), SP(3)))
        fin(2, True); fin(3, True)
        left = self.weave(body[:nbar], left, 0, OPT["a_every"])
        stop = len(body) - OPT["a_quiet"]
        left = self.weave(body[nbar:stop], left + self.wgs("att", ps) + self.wds("att", ps), 4, OPT["a_every"])
        a.run_all(body[stop:])
        print("  attention: %d groups left for the hand-off" % len(left))
        self.stamp()
        self.signal(4 * ps + 1, "o")
        a.run_all(self.flat(left + self.wgs("h1", ps) + self.wds("h1", ps)))
        self.stamp()

    def wds(self, where, ps):
        if ps: return []
        if self.wd is None:
            self.wd = self.reg_loads([ar(4 * k, 4) for k in range(56)], [sWD] * 56, [k * 1024 for k in range(56)], sTD, vL16, "wd")
        n = OPT.get("wd_" + where, 56)
        out, self.wd = self.wd[:n], self.wd[n:]
        return out

    def ksplit(self, kind, ps):
        a = self.a
        dn = kind == "dn"
        nk = 14 if dn else 4
        final = dn and ps == 1
        xo = 2 * ps + (2 if dn else 1)
        self.poll(4 * ps + (3 if dn else 1), sMB)
        self.stamp()
        bases, boff = (sHLD, LY.HB[ps]) if dn else (sOLD, LY.OB[ps])
        order = [(i, s) for i in range(4) for s in range(nk)]
        areg = lambda k: vr(X + (96 + 4 * (k % 16)) % 128, 4)
        ld = self.reg_loads([areg(k) for k in range(4 * nk)], [bases[i] for i, s in order], [boff + s * 2048 for i, s in order], sTA, vQ, "act")
        UP = OPT["k_up"]
        a.run_all(self.flat(ld[:UP]))
        XW, XR, R, P, U = 16, 19, 20, (ACC + 32, ACC + 48, F), F + 16
        vb, io = (vL16b, L_SCR_DN - 65536) if dn else (vL16, L_SCR_WO)
        for i in range(3): a.I("v_add_u32 v%d, %s, v%d" % (XW + i, sXW[i], vb))
        a.I("v_add_u32 v%d, %s, v%d" % (XR, sXR, vb))
        if dn:
            a.I("s_lshl_b32 %s, %s, 2\ns_add_u32 %s, %s, %s\ns_lshl_b32 %s, %s, 6\ns_add_u32 %s, %s, %d\nv_and_or_b32 v%d, v%d, 63, %s" %
                (sT0, sR, sT0, sT0, sW, sT0, sT0, sT0, sT0, L_RS, R, vFL, sT0))
            a.ds("ds_read_b32 v%d, v%d" % (R, R), "rs")
        for k in range(8):
            a.I("v_lshlrev_b32 v%d, 16, v%d\nv_and_b32 v%d, 0xffff0000, v%d" % (U + 2 * k, XRES + k, U + 2 * k + 1, XRES + k))
        sl = Slots()
        accr = lambda i, cb: ACC + 16 * (i % 2) + 4 * cb
        for k, (i, s) in enumerate(order):
            for cb in range(4):
                w = ar(16 * s + 4 * cb, 4) if dn else vr(X + 32 + 16 * s + 4 * cb, 4)
                d = vr(accr(i, cb), 4)
                n_ = sl.add("v_mfma_f32_16x16x32_bf16 %s, %s, %s, %s" % (d, w, areg(k), "0" if s == 0 else d), [("wvm", ("act", k))] if cb == 0 else [])
            if k + UP < 4 * nk:
                sl.put("m", n_ - 3, ld[k + UP])
        blk = 4 * nk
        writes = lambda i: [[("ds", "ds_write_b128 v%d, %s offset:%d" % (XW + i, vr(accr(i, cb), 4), io + cb * 1024))] for cb in range(4)] + [[("mark", ("w", i))]]
        reads = lambda i: [[("ds", "ds_read_b128 %s, v%d offset:%d" % (vr(P[i] + 4 * cb, 4), XR, io + i * 4096 + cb * 1024), ("r", i, cb))] for cb in range(4)]
        add = lambda d, s_: [[("i", "v_add_f32 v%d, v%d, v%d" % (d + e_, d + e_, s_ + e_))] for e_ in range(16)]
        bar = [[("dsdrain",), ("i", "s_barrier")]]
        for i in range(2): sl.after((i + 2) * blk - 1, ("need", ("w", i)))
        tail = []
        if dn:
            for i in range(3): sl.spread(writes(i), (i + 1) * blk + 1, (i + 1) * blk + 17)
            seq = bar + reads(0) + reads(1) + reads(2) + [[("wds", ("r", 1, 3))]] + add(P[0], P[1]) + [[("wds", ("r", 2, 3))]] + add(P[0], P[2])
            seq += [[("i", "v_fma_f32 v%d, v%d, v%d, v%d" % (U + e_, P[0] + e_, R, U + e_))] for e_ in range(16)]
            sl.spread(seq, 3 * blk + 19, 4 * blk - 3)
            pf = [] if final else [g for i in range(7) if i not in self.wq_late(1) for g in self.wq_chunk(i)]
        else:
            for i in range(2): sl.spread(writes(i), (i + 1) * blk + 1, (i + 2) * blk - 2)
            sl.spread(bar + reads(0) + reads(1) + writes(2), 3 * blk, 4 * blk - 2)
            pf = self.wgs("wo", ps) + self.wds("wo", ps)
        pf = sl.pace(pf, 4 * blk - 4 * UP + 2, 4.4)
        self.lite(sl, kind, [(k * 4 * blk) // 8 for k in range(8)])
        self.report(kind + str(ps), sl.emit(a))
        self.stamp()
        pk = lambda op, d, x, y, z="": a.I("%s %s, %s, %s%s" % (op, vr(d, 2), vr(x, 2), vr(y, 2), z))
        A = accr(3, 0)
        if dn:
            for k in range(8): pk("v_pk_fma_f32", A + 2 * k, A + 2 * k, R, ", %s op_sel_hi:[1,0,1]" % vr(U + 2 * k, 2))
        else:
            a.ds_wait(("r", 1, 3))
            for k in range(4): pk("v_pk_add_f32", U + 2 * k, U + 2 * k, P[0] + 2 * k)
            a.run_all(self.flat(bar + reads(2)))
            for k in range(4, 8): pk("v_pk_add_f32", U + 2 * k, U + 2 * k, P[0] + 2 * k)
            for k in range(8): pk("v_pk_add_f32", A + 2 * k, A + 2 * k, P[1] + 2 * k)
            for k in range(8): pk("v_pk_add_f32", A + 2 * k, A + 2 * k, U + 2 * k)
            for k in range(8):
                a.ds_wait(("r", 2, k // 2))
                pk("v_pk_add_f32", A + 2 * k, A + 2 * k, P[2] + 2 * k)
        for k in range(8): a.I("v_cvt_pk_bf16_f32 v%d, v%d, v%d" % (XRES + k, A + 2 * k, A + 2 * k + 1))
        if final:
            a.I(self.getc(XW, aROW))
            for e_ in range(2): a.vm("buffer_store_dwordx4 %s, v%d, %s, 0 offen offset:%d" % (vr(XRES + 4 * e_, 4), XW, OUT, e_ * 64))
            self.stamp()
            return
        self.publish(xo)
        self.stamp()
        n = OPT["dn_pre"] if dn else 0
        a.run_all(self.flat(pf[:n]))
        self.signal(4 if dn else 4 * ps + 2, "pub", 1 if dn else None)
        a.run_all(self.flat(pf[n:] + ([] if dn else self.wgs("h2", ps) + self.wds("h2", ps))))
        self.stamp()

    def gu(self, ps):
        a = self.a
        xi = 2 * ps + 1
        self.poll(4 * ps + 2, sMA)
        self.stamp()
        S0, TL, NR, XR_ = GS0, 16 - GS0, 8, 10
        SS, NM, HPK, CSA = 16, 24, 28, 21
        A0 = X + 80
        xreg = lambda s, b: X + 8 * (s % XR_) + 4 * b
        acc = lambda bl, m, b: A0 + 16 * bl + 8 * b + 4 * m
        xl = self.reg_loads([vr(xreg(s, b), 4) for s in range(16) for b in range(2)], [sXLD] * 32,
                            [LY.XB[xi] + s * 2048 + b * 256 for s in range(16) for b in range(2)], sTA, vQ, "x")
        UP = OPT["g_up"]
        a.run_all(self.flat(xl[:UP]))
        a.I("s_barrier")
        a.I(self.getc(NM, aSQ) + "\ns_add_u32 %s, %s, %d" % (sT0, sSLD, LY.SB[xi]))
        g_st = [[("vm", "buffer_load_dwordx4 %s, v%d, %s, %s offen sc1" % (vr(SS, 4), NM, WS, sT0))],
                [("vm", "buffer_load_dwordx4 %s, v%d, %s, %s offen offset:1024 sc1" % (vr(SS + 4, 4), NM, WS, sT0), "st")]]
        early = self.wg_early(ps)
        assert 0 in early and not set(early) & {7, 8, 9} and len(set(early)) == len(early)
        assert not set(self.digits("wg_q%d" % ps)) - {3, 4} and 2 not in early[:len(early) - len(self.digits("wg_h2%d" % ps))]
        frags = [(s, bl, m) for s in range(S0) for bl in range(7) for m in range(2)]
        for bl in range(7): frags += [(s, bl, m) for s in range(S0, 16) for m in range(2)] + [(16, bl, 0)]
        sl = Slots()
        first, last, end, xfirst, xlast = {}, {}, {}, {}, {}
        for k, (s, bl, m) in enumerate(frags):
            w = F + 4 * (k % NR)
            for mm, b in ([(m, 0), (m, 1)] if s < 16 else [(0, 0), (1, 0), (0, 1), (1, 1)]):
                pre = [] if k in first else [("wds", ("f", k))]
                d = vr(acc(bl, mm, b), 4)
                if s < 16:
                    if (s, b) not in xfirst: pre.append(("wvm", ("x", 2 * s + b)))
                    n_ = sl.add("v_mfma_f32_16x16x32_bf16 %s, %s, %s, %s" % (d, vr(w, 4), vr(xreg(s, b), 4), "0" if s == 0 else d), pre)
                    xfirst.setdefault((s, b), n_); xlast[(s, b)] = n_
                else:
                    n_ = sl.add("v_mfma_f32_16x16x16_bf16 %s, %s, %s, %s" % (d, vr(w + 2 * mm, 2), vr(NM + 2 * b, 2), d), pre)
                first.setdefault(k, n_); last[k] = n_
            end[bl] = n_
        LA = OPT["g_la"]
        def rd(k):
            off = ((k // 16 + 5) % 10) * 16384 + (k % 16) * 1024
            d = F + 4 * (k % NR)
            if frags[k][0] < 16:
                return [("ds", "ds_read_b128 %s, %s" % (vr(d, 4), ldsaddr(off)), ("f", k))]
            return [("ds", "ds_read2st64_b32 %s, v%d offset0:%d offset1:%d" % (vr(d + 2 * m, 2), CSA + (off >> 16), (off & 0xffff) // 256 + 2 * m, (off & 0xffff) // 256 + 2 * m + 1),
                     ("f", k) if m else None) for m in range(2)]
        for k in range(LA): a.run_all(rd(k))
        barpos = {}
        for k in range(LA, len(frags)):
            if k % 16 == 0:
                ch = k // 16
                if ch not in early or 2 <= ch <= 6:
                    p = barpos[ch] = last[k - LA] - 1
                    if ch not in early: sl.pre[p + 1].append(("wvm", ("wg", ch)))
                    sl.after(p, *(([("wvm", ("wg", ch))] if ch not in early else []) + [("i", "s_barrier")]))
            sl.after(last[k - LA], *rd(k))
        wl = [(barpos[ch - 8] + 2 if ch >= 10 else 0, g) for ch in range(15) if ch not in early for g in self.wg_chunk(ch)]
        wdue = [barpos[ch] - 8 * (len(self.wg_chunk(ch)) - 1 - n_) for ch in range(15) if ch not in early for n_ in range(len(self.wg_chunk(ch)))]
        wd = self.wds("rest", ps)
        tail0 = xfirst[(S0, 0)]
        xs = []
        for n_ in range(UP, 32):
            s, b = divmod(n_, 2)
            due = min(xfirst[(s, b)], tail0 - (31 - n_) * OPT["g_xsp"])
            xs.append((due, xlast[(s - XR_, b)] + 1 if s >= XR_ else 0, xl[n_]))
        n_ = OPT["g_stat"]
        xs[n_:n_] = [(xs[n_][0], 0, g) for g in g_st]
        P = lambda key: OPT["g_%s%d" % (key, ps)] / 10
        pos, fab, ix, iw, idd, seq = 0.0, 0.0, 0, 0, 0, []
        stop = end[6] - OPT["g_tail"]
        while ix < len(xs) or iw < len(wl) or (idd < len(wd) and pos <= stop):
            xok = ix < len(xs) and xs[ix][1] <= pos
            xu = xok and xs[ix][0] - pos <= P("xlead")
            wok = iw < len(wl) and wl[iw][0] <= pos
            wu = wok and wdue[iw] - pos <= P("wmin")
            free = fab <= pos + P("slack")
            if xu and (not wu or xs[ix][0] <= wdue[iw] - P("wmin") + P("xlead")): pick = "x"
            elif wu: pick = "w"
            elif free and wok and (idd >= len(wd) or wdue[iw] - pos <= P("wmax")): pick = "w"
            elif free and idd < len(wd) and pos <= stop: pick = "d"
            elif xok: pick = "x"
            else:
                pos = int(pos) + 1; continue
            if pick == "x": g = xs[ix][2]; ix += 1
            elif pick == "w": g = wl[iw][1]; iw += 1; fab = max(fab, pos) + P("wcost")
            else: g = wd[idd]; idd += 1; fab = max(fab, pos) + P("dcost")
            behind = (ix < len(xs) and xs[ix][0] - pos < 0.7 * P("xlead")) or (iw < len(wl) and wdue[iw] - pos < 0.7 * P("wmin"))
            seq.append((pos, g)); pos += 2.0 if behind else P("every")
            if g is g_st[1]: stpos = pos
        assert not sl.pace(seq, 0, 0)
        left = wd[idd:]
        st = [[("wvm", "st")]]
        for r_ in (SS, SS + 4):
            for o in (0, 1): st.append([("i", "v_add_f32 v%d, v%d, v%d" % (r_ + o, r_ + o, r_ + 2 + o))])
        for o in (0, 1): st.append([("i", "v_permlane32_swap_b32 v%d, v%d" % (SS + o, SS + 4 + o))])
        for o in (0, 1): st.append([("i", "v_add_f32 v%d, v%d, v%d" % (SS + o, SS + o, SS + 4 + o))])
        for o in (0, 1): st.append([("i", "v_mov_b32 v%d, v%d" % (SS + 2 + o, SS + o))])
        for k in range(3): st.append([("i", "v_add_u32 v%d, %d, v%d" % (CSA + k, k << 16, vFL))])
        for o in (0, 1): st.append([("i", "v_permlane16_swap_b32 v%d, v%d" % (SS + o, SS + 2 + o))])
        for o in (0, 1): st.append([("i", "v_add_f32 v%d, v%d, v%d" % (SS + o, SS + o, SS + 2 + o))])
        st += [[op] for op in self.ln_from_sums(SS, SS + 1, SS + 2)]
        st += [[("i", "v_cvt_pk_bf16_f32 v%d, -v%d, -v%d" % (NM + k, SS, SS))] for k in range(4)]
        st += [[("i", "v_mul_f32 v%d, v%d, v%d" % (SS + 1, SS + 1, SS + 1))],
               [("i", "s_lshr_b32 %s, %s, 3\ns_add_u32 %s, %s, %d" % (sT0, sLW, sT0, sT0, L_RS))],
               [("i", "v_and_or_b32 v%d, v%d, 63, %s" % (SS, vFL, sT0))], [("i", "v_and_b32 v%d, 32, v0" % (SS + 2))],
               [("i", "v_lshl_add_u32 v%d, v%d, 1, v%d" % (SS, SS + 2, SS))]]
        st += [[("i", "v_permlane32_swap_b32 v%d, v%d" % (NM + k, NM + 2 + k))] for k in range(2)] + [[("mark", "nm")]]
        sl.after(tail0 - 2 * LA, ("need", "nm"))
        sl.spread(st, int(stpos) + 40, tail0 - 2 * LA - 10)
        def epi(bl, packed=False):
            g = []
            for b in range(2):
                ga = acc(bl, 0, b)
                g += [[("i", "v_max_f32 v%d, 0, v%d" % (ga + r, ga + r))] for r in range(4)]
                if packed: g += [[("i", "v_pk_mul_f32 %s, %s, %s" % (vr(ga + r, 2), vr(ga + r, 2), vr(ga + 4 + r, 2)))] for r in (0, 2)]
                else: g += [[("i", "v_mul_f32 v%d, v%d, v%d" % (ga + r, ga + r, ga + 4 + r))] for r in range(4)]
                g += [[("i", "v_cvt_pk_bf16_f32 v%d, v%d, v%d" % (HPK + 2 * b + k, ga + 2 * k, ga + 2 * k + 1))] for k in range(2)]
            g.append([("i", "s_add_u32 %s, %s, %d" % (sTS, sHST, LY.HB[ps] + bl * 1024))])
            g += [[("i", "v_permlane16_swap_b32 v%d, v%d" % (HPK + k, HPK + 2 + k))] for k in range(2)]
            g.append([("vm", "buffer_store_dwordx4 %s, v%d, %s, %s offen%s" % (vr(HPK, 4), vL16, WS, sTS, " sc1" if str(ps) in OPT["h_wt"] else ""))])
            return g
        for bl in range(6): sl.spread(epi(bl), end[bl] + 1, end[bl + 1] - 4)
        sl.put("c", barpos[13] + 1, [("ds", "ds_write_b32 v%d, v%d" % (SS, SS + 1))])
        if ps == 0:
            sl.put("c", end[6] - 8, [("i", "s_or_b32 %s, s2, %s" % (sT0, sW)), ("atom", "s_cmp_eq_u32 %s, 0\ns_cselect_b32 %s, %d, 0x%x" % (sT0, sT0, LY.EPOCH, OOB)),
                                     ("i", "v_mov_b32 v%d, %s" % (SS + 2, sNONCE)),
                                     ("vm", "buffer_store_dword v%d, v%d, %s, %s offen" % (SS + 2, vF1, WS, sT0))])
        self.lite(sl, "g", [56 * k for k in range(8)])
        self.report("gu%d" % ps, sl.emit(a))
        a.run_all(self.flat(epi(6, True)))
        self.stamp()
        self.signal(4 * ps + 3)
        print("  gu: %d loads left for the hand-off" % len(left))
        a.run_all(self.flat(left))
        a.ds_drain()
        a.I("s_barrier")
        self.stamp()

    def build(self):
        a = self.a
        self.startup()
        for ps in range(2):
            self.qkv(ps); self.ksplit("wo", ps); self.gu(ps); self.ksplit("dn", ps)
        if OPT["stamps"]:
            a.I("s_waitcnt vmcnt(0)\ns_memrealtime s[6:7]\ns_waitcnt lgkmcnt(0)\nv_writelane_b32 v%d, s6, 63" % vSTAMP)
            a.I("s_lshl_b32 %s, s2, 10\ns_lshl_b32 %s, %s, 8\ns_add_u32 %s, %s, %s\ns_add_u32 %s, %s, %d" % (sT0, sT1, sW, sT0, sT0, sT1, sT0, sT0, LY.STAMP))
            a.I("buffer_store_dword v%d, v%d, %s, %s offen" % (vSTAMP, vFL, WS, sT0))
        if OPT["diagpad"]:
            a.I("s_mov_b32 s82, %d" % OPT["diagpad"])
            if OPT["diagat"]:
                a.I("s_sub_u32 s83, s%d, s14\ns_lshl_b32 s83, s83, 2" % sST)
                if OPT["diagwg"] >= 0: a.I("s_cmp_eq_u32 s2, %d\ns_cselect_b32 s83, s83, 0" % OPT["diagwg"])
                a.I("s_add_u32 s82, s82, s83")
            a.I("L_pad:\ns_memrealtime s[80:81]\ns_waitcnt lgkmcnt(0)\ns_sub_u32 s80, s80, s14\ns_cmp_lt_u32 s80, s82\ns_cbranch_scc1 L_pad")
        a.I("L_main_done:\ns_endpgm")
        for c in self.cold: a.I(c)
        a.I("L_code_end:")
        return a.lines

def main():
    ml, n2 = hazard_pass(Main().build())
    k = NAME + "_kernel"
    out = ["; Generated by gen/gen.py: one persistent kernel (weight re-layout, then four layers with flag hand-offs). " + " ".join(sys.argv[2:]),
           "; @launch grid=(256,1,1) block=(256,1,1) lds=163840",
           '.amdgcn_target "amdgcn-amd-amdhsa--gfx950"', ".text",
           ".globl %s" % k, ".p2align 8", ".type %s,@function" % k]
    out += [l if l.endswith(":") else "    " + l for l in ml]
    out += ['.section .rodata,"a"', ".p2align 6", """.amdhsa_kernel %s
  .amdhsa_next_free_vgpr 512
  .amdhsa_next_free_sgpr 102
  .amdhsa_accum_offset 256
  .amdhsa_group_segment_fixed_size 0
  .amdhsa_kernarg_size 80
  .amdhsa_user_sgpr_count 2
  .amdhsa_user_sgpr_kernarg_segment_ptr 1
  .amdhsa_system_sgpr_workgroup_id_x 1
  .amdhsa_float_denorm_mode_32 3
.end_amdhsa_kernel""" % k]
    if OPT["rt"]: out = [l.replace("s_memtime", "s_memrealtime") for l in out]
    open(sys.argv[1], "w").write("\n".join(out) + "\n")
    print("instructions: %d ; wait states added: %d" % (len(ml), n2))

main()
```

```python
import sys
from dsl import Asm, Slots, hazard_pass
import layout as LY

NAME = "interleave_layers__sliding_local_dilated__glu_gated_reglu__prompt"
OPT = dict(stamps=0, lite="-", hitw=0,
           q_up=8, q_every=45, q_hf=8, q_chk=6, q_h0=10, a_every=14, k_up=8, g_up=4, g_tail=0, g_la=6, g_xsp=11, g_stat=6,
           g_every0=36, g_xlead0=400, g_wmin0=600, g_wmax0=1000, g_slack0=40, g_wcost0=60, g_dcost0=30,
           g_xmax0=9000, g_xmax1=800, g_every1=46, g_xlead1=400, g_wmin1=560, g_wmax1=700, g_slack1=40, g_wcost1=60, g_dcost1=30,
           wq_late1="-", dn_pre=6, q0_up=6, q0_lead=20, q0_every=20,
           wg_att0="0", wg_h10="-", wg_wo0="1", wg_h20="-",
           wg_att1="01", wg_h11="-", wg_wo1="2", wg_h21="-",
           keep="2345", q_wbar=12, w_pre=20, w_up=8, w_quiet=12, d_sig=16, d_sig2=-1, d_chk=8, g_epi=6, g_sig0=20, g_sig1=16, g_chk0=20, g_chk1=26, g_lat=18, g_h0=4, g_h1=6,
           touch=0, h_wt="0", otouch=1, diagpad=0, diagat=0, diagwg=100, b_pos=1, q0_split=0, q0_n1=6, q0_hf=6, order="ao", rt=0, c_early=0, b_spread=0, b_first=0, b_gap=3, pollf="nt", actf="sc1", wf="sc1", cpf=1, predrain=1, tlb=1, q0_b=0, q0_fbch=3, q0_fbs=15, q0_w=6, q0_tail=45, a_quiet=30, wd_q=0, wd_att=0, wd_h1=0, wd_wo=0, wd_h2=0)
for arg in sys.argv[2:]:
    k, v = arg.split("=")
    OPT[k] = v if isinstance(OPT[k], str) else int(v)

def vr(b, n): return "v[%d:%d]" % (b, b + n - 1)
def ar(b, n): return "a[%d:%d]" % (b, b + n - 1)
def magic(d): return (1 << 32) // d + 1
OOB = 0x40000000
GS0 = LY.GS0

WS, XIN, OUT = "s[8:11]", "s[12:15]", "s[16:19]"
sW, sJ, sR, sC, sG, sN, sNONCE, sSLOW = ("s%d" % i for i in range(20, 28))
sGB, sXLD, sXST, sOST, sXR, sHST, sSLD, sWQ, sWG, sWO, sWD, sLW = ("s%d" % i for i in range(28, 40))
sMA, sMB = "s[40:41]", "s[42:43]"
sFLG, sFLW, sHALO, sHFL, sTAB, sSST, sONE, sHDST, sHDFL, sP = ("s%d" % i for i in range(44, 54))
sMH = "s[54:55]"
sTA, sTW, sTD, sTS, sT0, sT1, sT2, sSPIN = ("s%d" % i for i in range(56, 64))
sHLD = ["s%d" % i for i in range(68, 72)]
sXW = ["s%d" % i for i in range(72, 75)]
sFBO, sB0, sB1, sB2, sB3 = "s75", "s76", "s77", "s78", "s79"
SRC_A, SRC_G, SRC_U, SRC_D = 80, 84, 88, 92
sLW2, sLW4, sWQ4, sWG4 = "s96", "s97", "s98", "s99"
sST = 100
sHALO2 = sP
sNH, sCPO, sPC, sSLOW2 = "s12", "s13", "s[4:5]", "s[0:1]"
sOL, sHSTEP, sMC = "s64", "s65", "s[66:67]"
vL, vL16, vL16b, vL16c, vQ, vF1, vFL, vSTAMP = 0, 1, 2, 3, 4, 5, 6, 7
XRES = 8
PA, PB = 22, 23
X, ACC, F = 32, 160, 224
aROW, aST, aSQ, aSH, aSG, aHX, aHWR, aHWS, aHST, aHSS, aFB, aLINE, aTO, aTH = range(224, 238)
aBC, aBP, aBP0, aMC = 240, 244, 248, 252
L_HALO, L_RS, L_KV, L_TAB, L_FMT = 102400, 110592, 114688, 124928, 131072
L_SCR_DN = 114688
WO_SLOT = (8, 9, 0, 1)
DN_S = ((2, 3, 4, 9, 10, 11), (1, 5, 8, 12), (0, 6, 7, 13))
DN_ORD = sum(DN_S, ())
NEG = "0xf149f2ca"

def ldsaddr(off):
    return "v%d offset:%d" % ((vL16, vL16b, vL16c)[off >> 16], off & 0xffff)

def isvm(g): return any(op[0] == "vm" for op in g)

class Main:
    def __init__(self):
        self.a = Asm()
        self.nstamp = 0
        self.cold = []
        self.nlite = 0
        self.wd = None
        self.ncall = 0

    def stamp(self, key=None):
        self.ncall += 1
        if OPT["diagpad"] and OPT["diagat"] == self.ncall:
            self.a.I("s_memrealtime s[%d:%d]" % (sST, sST + 1))
            self.a.ds_drain(force=True)
        if OPT["stamps"] != 1 or (key is not None and OPT["lite"] != key):
            return
        a = self.a
        a.I("s_memtime s[%d:%d]" % (sST, sST + 1))
        a.ds_drain(force=True)
        for k in range(self.nlite):
            a.I("v_writelane_b32 v%d, s%d, %d" % (vSTAMP, 80 + 2 * k, self.nstamp))
            self.nstamp += 1
        self.nlite = 0
        a.I("v_writelane_b32 v%d, s%d, %d" % (vSTAMP, sST, self.nstamp))
        self.nstamp += 1

    def lite(self, sl, key, slots):
        if OPT["lite"] != key:
            return
        for i in slots[:8]:
            sl.after(i, ("i", "s_memtime s[%d:%d]" % (80 + 2 * self.nlite, 81 + 2 * self.nlite)))
            self.nlite += 1

    def report(self, name, r):
        print("  %s: cycles over budget %d, ops left after the loop %d" % ((name,) + r))

    def getc(self, v, acc): return "v_accvgpr_read_b32 v%d, a%d" % (v, acc)
    def flat(self, groups): return [op for g in groups for op in g]
    def digits(self, key): return tuple(int(c, 16) for c in str(OPT[key]) if c != "-")
    def wgs(self, where, ps): return [g for i in self.digits("wg_%s%d" % (where, ps)) for g in self.wg_chunk(i, ps)]
    def wg_early(self, ps): return sum((self.digits("wg_%s%d" % (w, ps)) for w in ("att", "h1", "wo", "h2")), ())
    def wq_late(self, ps): return tuple(range(7)) if ps == 0 else self.digits("wq_late1")

    def srd(self, base, lo, hi, nbytes):
        self.a.I("s_mov_b32 s%d, %s\ns_and_b32 s%d, %s, 0xffff\ns_mov_b32 s%d, %s\ns_mov_b32 s%d, 0x20000" %
                 (base, lo, base + 1, hi, base + 2, nbytes, base + 3))

    def lin(self, dst, base, terms):
        first = True
        for reg, mul in terms:
            self.a.I("s_mul_i32 %s, %s, %d\ns_add_u32 %s, %s, %s" % (sT2, reg, mul, dst, base if first else dst, sT2))
            first = False

    def sdivmod(self, q, r, x, d):
        self.a.I("s_mul_hi_u32 %s, %s, 0x%x\ns_mul_i32 %s, %s, %d\ns_sub_u32 %s, %s, %s" % (q, x, magic(d), sT2, q, d, r, x, sT2))

    def hi_lo(self, dst, src, t):
        return ["v_cvt_pk_bf16_f32 v%d, v%d, v%d" % (dst, src, src), "v_lshlrev_b32 v%d, 16, v%d" % (t, dst),
                "v_sub_f32 v%d, v%d, v%d" % (t, src, t), "v_cvt_pk_bf16_f32 v%d, v%d, v%d" % (dst, src, t)]

    def weave(self, body, groups, first, every):
        k = 0
        for n_, op in enumerate(body):
            if n_ >= first and (n_ - first) % every == 0:
                while k < len(groups):
                    g = groups[k]; k += 1
                    self.a.run_all(g)
                    if isvm(g): break
            self.a.run(op)
        return groups[k:]

    def signal(self, h, wait=None, halo_pass=None):
        a = self.a
        slow, done = a.label("slow"), a.label("sig")
        a.I("s_add_u32 %s, %s, %d\nv_mov_b32 v30, %s" % (sNH, sNONCE, h, sNH))
        if halo_pass is not None:
            h1, b1, h2, b2 = a.label("halo"), a.label("hback"), a.label("halo"), a.label("hback")
            n = a.vm_n - max(a.vm_tag[wait], a.vm_done)
            a.I("s_cmp_lg_u32 %s, 0x%x\ns_cbranch_scc1 %s" % (sHDST, OOB, h1))
            st = "\n".join("buffer_store_dwordx4 %s, v24, %s, %s offen offset:%d sc1" % (vr(XRES + 4 * e, 4), WS, sTS, e * 512) for e in range(2))
            self.cold.append("%s:\n%s\n%s\ns_add_u32 %s, %s, %d\n%s\nbuffer_store_dword v26, v25, %s, %s offen sc1\ns_waitcnt vmcnt(%d)\ns_branch %s" %
                             (h1, self.getc(24, aHST), self.getc(25, aHSS), sTS, sHDST, LY.HX[halo_pass], st, WS, sTS, n + 3, b1))
            self.cold.append("%s:\ns_add_u32 %s, %s, %d\nv_mov_b32 v24, %s\n%s\ns_waitcnt vmcnt(1)\nbuffer_store_dword v24, v25, %s, %s offen sc1\ns_branch %s" %
                             (h2, sTS, sHDFL, halo_pass * 16384, sNONCE, self.getc(25, aLINE), WS, sTS, b2))
            a.vm_wait(wait)
            a.I("%s:\ns_cmp_lg_u32 %s, 0" % (b1, sSLOW))
        else:
            a.I("s_cmp_lg_u32 %s, 0" % sSLOW)
            if wait is None: a.vm_drain()
            else: a.vm_wait(wait)
        a.I("s_cbranch_scc1 %s" % slow)
        a.vm("buffer_store_dword v30, v%d, %s, %s offen" % (vF1, WS, sFLW))
        a.I("%s:" % done)
        self.cold.append("%s:\nbuffer_wbl2 sc1\ns_waitcnt vmcnt(0)\nbuffer_store_dword v30, v%d, %s, %s offen sc1\ns_branch %s" % (slow, vF1, WS, sFLW, done))
        self.sent = h
        if halo_pass is not None:
            a.I("s_cmp_lg_u32 %s, 0x%x\ns_cbranch_scc1 %s\n%s:" % (sHDST, OOB, h2, b2))

    def poll(self, h, mask, also=None, setup=None):
        a = self.a
        a.forget()
        assert self.sent == h
        if setup: setup()
        def loop(name, fl):
            ld = "buffer_load_dword v%d, v%d, %s, %s offen %s" % (PA, vFL, WS, sFLG, fl)
            ts = "v_subrev_u32 v%d, %s, v%d\nv_cmp_lt_u32 vcc, 15, v%d\ns_and_b64 vcc, vcc, %s" % (PA, sNH, PA, PA, mask)
            if also is not None:
                ld += "\nbuffer_load_dword v%d, v%d, %s, 0 offen sc1" % (PB, also, WS)
                ts = "v_cmp_ne_u32 s[60:61], %s, v%d\n%s\ns_or_b64 vcc, vcc, s[60:61]" % (sNONCE, PB, ts)
            return "%s:\n%s\ns_sub_u32 %s, %s, 1\ns_cbranch_scc1 L_main_done\ns_waitcnt vmcnt(0)\n%s\ns_cbranch_scc1 %s" % (name, ld, sSPIN, sSPIN, ts, name)
        far, ok = a.label("far"), a.label("ok")
        a.I("s_mov_b32 %s, 0x40000\ns_cmp_lg_u32 %s, 0\ns_cbranch_scc1 %s" % (sSPIN, sSLOW, far))
        a.I(loop(a.label("poll"), OPT["pollf"]) + "\n%s:" % ok)
        a.vm_done = a.vm_n
        self.cold.append(loop(far, "sc1") + "\nbuffer_inv sc1\ns_waitcnt vmcnt(0)\ns_branch %s" % ok)

    def signal_ops(self, h, wait, reg):
        a = self.a
        slow, done = a.label("slow"), a.label("sig")
        self.cold.append("%s:\nbuffer_wbl2 sc1\ns_waitcnt vmcnt(0)\nbuffer_store_dword v%d, v%d, %s, %s offen sc1\ns_branch %s" % (slow, reg, vF1, WS, sFLW, done))
        return [("i", "s_add_u32 %s, %s, %d" % (sNH, sNONCE, h)), ("i", "v_mov_b32 v%d, %s" % (reg, sNH)), ("wvm", wait),
                ("vm", "s_cmp_lg_u32 %s, 0\ns_cbranch_scc1 %s\nbuffer_store_dword v%d, v%d, %s, %s offen\n%s:" % (sSLOW, slow, reg, vF1, WS, sFLW, done))]

    def check_ops(self, h, mask, reg, tag):
        a = self.a
        spin, back = a.label("cspin"), a.label("cback")
        ld = lambda fl: "buffer_load_dword v%d, v%d, %s, %s offen %s" % (reg, vFL, WS, sFLG, fl)
        t = ["v_subrev_u32 v%d, s3, v%d" % (reg, reg), "v_cmp_lt_u32 vcc, 15, v%d" % reg, "s_and_b64 vcc, vcc, %s" % mask]
        loop = lambda name, fl: "%s:\n%s\ns_sub_u32 %s, %s, 1\ns_cbranch_scc1 L_main_done\ns_waitcnt vmcnt(0)\n%s\ns_cbranch_scc1 %s" % (name, ld(fl), sSPIN, sSPIN, "\n".join(t), name)
        self.cold.append("%s:\ns_mov_b32 %s, 0x40000\ns_cmp_lg_u32 %s, 0\ns_cbranch_scc1 %s_f\n%s\ns_branch %s\n%s\nbuffer_inv sc1\ns_waitcnt vmcnt(0)\ns_branch %s" %
                         (spin, sSPIN, sSLOW, spin, loop(spin + "_n", OPT["pollf"]), back, loop(spin + "_f", "sc1"), back))
        return [("vm", ld(OPT["pollf"]), tag)], [("i", "s_add_u32 s3, %s, %d" % (sNONCE, h)), ("wvm", tag), ("i", t[0]), ("i", t[1]),
                                                ("atom", "%s\ns_or_b64 vcc, vcc, %s\ns_cbranch_scc1 %s\n%s:" % (t[2], sSLOW2, spin, back))]

    def late_check(self, load, reg, mask, tag):
        a = self.a
        spin, back = a.label("lspin"), a.label("lback")
        cmp_, and_ = "v_cmp_ne_u32 vcc, %s, v%d" % (sNONCE, reg), "s_and_b64 vcc, vcc, %s" % mask
        self.cold.append("%s:\ns_mov_b32 %s, 0x40000\n%s_l:\n%s\ns_sub_u32 %s, %s, 1\ns_cbranch_scc1 L_main_done\ns_waitcnt vmcnt(0)\n%s\n%s\ns_cbranch_scc1 %s_l\ns_branch %s"
                         % (spin, sSPIN, spin, load, sSPIN, sSPIN, cmp_, and_, spin, back))
        return [("vm", load, tag)], [("wvm", tag), ("i", cmp_), ("atom", and_ + "\ns_cbranch_scc1 %s\n%s:" % (spin, back))]

    def dma_chunk(self, sbase, goff, loff, n, tag, sc=""):
        sw = {1: sLW, 2: sLW2, 4: sLW4}[n]
        setup = [("set", sTW, "s_add_u32 %s, %s, %d" % (sTW, sbase, goff)), ("set", "m0", "s_add_u32 m0, %s, %d" % (sw, loff))]
        return [setup + [("vm", "buffer_load_dwordx4 v%d, %s, %s offen offset:%d%s lds" % (vL16, WS, sTW, k * 1024, sc), tag if k == n - 1 else None)]
                for k in range(n)]

    def wq_chunk(self, i): return self.dma_chunk(sWQ4 if i < 6 else sWQ, i * 16384, i * 16384, 4 if i < 6 else 1, ("wq", i), " " + OPT["wf"].strip("-"))
    def kept(self): return self.digits("keep")
    def ring(self, ps):
        return [k for k in (2, 3, 4, 5, 6, 7, 8, 9, 0, 1) if ps or k not in self.kept()]
    def wg_slot(self, i, ps): return self.ring(ps)[i % len(self.ring(ps))]
    def wo_chunk(self, i): return self.dma_chunk(sWO, i * 16384, WO_SLOT[i] * 16384, 4, ("wo", i), " " + OPT["wf"].strip("-"))
    def wg_chunk(self, i, ps): return self.dma_chunk(sWG4 if i < 14 else sWG, i * 16384, self.wg_slot(i, ps) * 16384, 4 if i < 14 else 2, ("wg", i), " " + OPT["wf"].strip("-"))

    def reg_loads(self, dsts, bases, offs, stmp, vaddr, tagbase):
        ops, cur = [], None
        for k, (d, sb, off) in enumerate(zip(dsts, bases, offs)):
            if cur is None or cur[0] != sb or not (0 <= off - cur[1] < 4096):
                cur = (sb, off)
            ops.append([("set", stmp, "s_add_u32 %s, %s, %d" % (stmp, sb, cur[1])),
                        ("vm", "buffer_load_dwordx4 %s, v%d, %s, %s offen offset:%d %s" % (d, vaddr, WS, stmp, off - cur[1], OPT["wf" if tagbase[0] == "w" else "actf"].strip("-")), (tagbase, k))])
        return ops

    def touch(self, acc, sbase, off, tmp):
        return [[("i", self.getc(tmp, acc) + "\ns_add_u32 %s, %s, %d" % (sT1, sbase, off)),
                 ("vm", "buffer_load_dword a255, v%d, %s, %s offen sc1" % (tmp, WS, sT1))]]

    def code_touch(self, label, tmp, n=1):
        if not OPT["cpf"]: return []
        return [[("i", "s_add_u32 s15, %s, %s-L_pc+%d" % (sCPO, label, 16384 * k)), ("i", "s_min_u32 s15, s15, L_code_end-L_pc-4"),
                 ("i", "v_mov_b32 v%d, s15" % tmp), ("vm", "global_load_dword a255, v%d, %s" % (tmp, sPC))] for k in range(n)]

    def ln_from_sums(self, s1, s2, t):
        return [("i", x) for x in (
            "v_mul_f32 v%d, 0x3b000000, v%d" % (s1, s1),
            "v_mul_f32 v%d, v%d, v%d" % (t, s1, s1),
            "v_mul_f32 v%d, 0x3b000000, v%d" % (s2, s2),
            "v_sub_f32 v%d, v%d, v%d" % (s2, s2, t),
            "v_max_f32 v%d, 0, v%d" % (s2, s2),
            "v_cvt_pk_bf16_f32 v%d, v%d, v%d" % (s2, s2, s2),
            "v_lshlrev_b32 v%d, 16, v%d" % (s2, s2),
            "v_add_f32 v%d, 0x3727c5ac, v%d" % (s2, s2),
            "v_cvt_pk_bf16_f32 v%d, v%d, v%d" % (s2, s2, s2),
            "v_lshlrev_b32 v%d, 16, v%d" % (s2, s2),
            "v_sqrt_f32 v%d, v%d" % (s2, s2),
            "v_cvt_pk_bf16_f32 v%d, v%d, v%d" % (s2, s2, s2),
            "v_lshlrev_b32 v%d, 16, v%d" % (s2, s2),
            "v_rcp_f32 v%d, v%d" % (s2, s2))]

    def publish(self, xi):
        a = self.a
        S1, S2, S3, S4, AD = 26, 27, 28, 29, 25
        a.I("s_add_u32 %s, %s, %d" % (sTS, sXST, LY.XB[xi]))
        for e in range(2):
            a.vm("buffer_store_dwordx4 %s, v%d, %s, %s offen offset:%d%s" % (vr(XRES + 4 * e, 4), vQ, WS, sTS, e * 2048, " sc1" if xi == 0 else ""))
        for k in range(4):
            for d, p, o in ((S1, XRES + k, sONE), (S2, XRES + k, None), (S3, XRES + 4 + k, sONE), (S4, XRES + 4 + k, None)):
                a.I("v_dot2_f32_bf16 v%d, v%d, %s, %s" % (d, p, o or "v%d" % p, "v%d" % d if k else "0"))
        a.I(self.getc(AD, aST) + "\ns_add_u32 %s, %s, %d" % (sTS, sSST, LY.SB[xi]))
        a.I("v_add_f32 v%d, v%d, v%d\nv_add_f32 v%d, v%d, v%d" % (S1, S1, S3, S2, S2, S4))
        a.I("v_permlane32_swap_b32 v%d, v%d\nv_add_f32 v%d, v%d, v%d\nv_mov_b32 v%d, v%d" % (S1, S2, S1, S1, S2, S2, S1))
        a.I("v_permlane16_swap_b32 v%d, v%d\nv_add_f32 v%d, v%d, v%d" % (S1, S2, S1, S1, S2))
        a.vm("buffer_store_dword v%d, v%d, %s, %s offen" % (S1, AD, WS, sTS), "pub")

    def startup(self):
        a = self.a
        lin = self.lin
        t8, kc, tok, g, hh, t32, u0, u1, rr, cc, q16, vA, vR, vB, vD, TA0, TA1, TD, TG, CSW, XA, XV, FAV, LINE = range(F, F + 24)
        ONES = F + 24
        def put(acc): a.I("v_accvgpr_write_b32 a%d, v%d" % (acc, u1))
        a.I("%s_kernel:" % NAME)
        a.I("s_cmp_ge_u32 s2, 256\ns_cbranch_scc1 L_main_done")
        a.I("s_load_dwordx16 s[64:79], s[0:1], 0\ns_load_dwordx2 s[4:5], s[0:1], 72")
        if OPT["stamps"] or OPT["diagpad"]:
            a.I("s_memrealtime s[98:99]")
        if OPT["stamps"]:
            a.I("s_memtime s[%d:%d]" % (sST, sST + 1))
        a.I("s_getpc_b64 s[56:57]\nL_pc:\ns_lshr_b32 s58, s2, 3\ns_lshl_b32 s58, s58, 11")
        a.I("v_lshrrev_b32 v16, 6, v0\nv_lshrrev_b32 v17, 4, v0\nv_lshlrev_b32 v17, 7, v17\nv_add_u32 v17, s58, v17")
        a.I("v_min_u32 v17, L_code_end-L_pc-4, v17\nv_and_b32 v0, 63, v0\nv_readfirstlane_b32 %s, v16" % sW)
        a.vm("global_load_dword a255, v17, s[56:57]")
        a.I("s_and_b32 %s, s2, 7\ns_bfe_u32 %s, s2, 0x40003\ns_lshr_b32 %s, s2, 7" % (sN, sJ, sP))
        a.I("s_lshr_b32 %s, %s, 3\ns_and_b32 %s, %s, 7" % (sR, sJ, sC, sJ))
        a.I("v_and_b32 v%d, 7, v0\nv_lshrrev_b32 v%d, 3, v0\nv_and_b32 v%d, 15, v0\nv_lshrrev_b32 v%d, 4, v0" % (t8, kc, tok, g))
        cuA, kkA, stA, cuG, kkG, sSG, sSD, kkD = "s28", "s29", "s30", "s32", "s33", "s6", "s7", "s36"
        self.sdivmod(kkA, cuA, "s2", 24)
        a.I("s_sub_u32 %s, s2, 192\ns_lshr_b32 %s, %s, 3" % (sT0, sT0, sT0))
        a.I("s_cmp_lt_u32 s2, 192\ns_cselect_b32 %s, %s, %s\ns_cselect_b32 %s, %s, %s\ns_cselect_b32 %s, 3, 1\ns_lshl_b32 %s, %s, 10" %
            (cuA, cuA, sN, kkA, kkA, sT0, stA, stA, stA))
        a.I("v_lshlrev_b32 v%d, 4, v%d\nv_mad_u32_u24 v%d, v%d, %s, v%d" % (u0, t8, vA, kc, stA, u0))
        a.I("s_lshl_b32 %s, %s, 2\ns_add_u32 %s, %s, %s\ns_lshl_b32 %s, %s, 4\ns_mul_i32 %s, %s, %s" % (sT0, kkA, sT0, sT0, sW, sT0, sT0, sT0, sT0, stA))
        a.I("s_lshl_b32 %s, %s, 7\ns_add_u32 %s, %s, %s\ns_lshl_b32 %s, %s, 3\ns_add_u32 %s, %s, %s\ns_sub_u32 %s, %s, 1024" %
            (sT1, cuA, sT0, sT0, sT1, sT1, stA, sT1, sT1, sT0, sT1, sT1))
        a.I("s_lshl_b32 %s, %s, 11\ns_add_u32 m0, %s, %d" % (sLW2, sW, sLW2, L_FMT))
        a.I("s_lshl_b32 s31, %s, 1\ns_add_u32 s31, s31, %s\ns_lshl_b32 s31, s31, 2\ns_add_u32 s31, s31, %s\ns_lshl_b32 s31, s31, 5" % (sN, sR, sW))
        a.I("s_add_u32 s31, s31, %s\ns_lshl_b32 s31, s31, 3\ns_add_u32 s31, s31, %s\ns_lshl_b32 s31, s31, 7" % (sP, sC))
        a.I("v_lshlrev_b32 v%d, 11, v%d\nv_lshl_add_u32 v%d, v%d, 4, v%d\nv_add_u32 v%d, s31, v%d" % (vR, tok, vR, g, vR, vR, vR))
        self.sdivmod(kkG, cuG, "s2", 28)
        a.I("v_mul_u32_u24 v%d, 3584, v%d\nv_add_u32 v%d, v%d, v%d\nv_lshl_add_u32 v%d, v%d, 10, v%d" % (vB, kc, vB, vB, u0, vD, kc, u0))
        a.I("s_lshr_b32 %s, s2, 3" % kkD)
        lin(sSG, "0", [(kkG, 64 * 3584), (sW, 16 * 3584), (cuG, 128)])
        lin(sSD, "0", [(kkD, 65536), (sW, 16384), (sN, 128)])
        a.I("s_lshl_b32 %s, %s, 1\ns_add_u32 %s, %s, %s" % (sG, sN, sG, sG, sP))
        lin(sFLG, str(LY.FL), [(sG, 256)])
        lin(sFLW, sFLG, [(sJ, 16), (sW, 4)])
        lin(sSST, str(LY.ACT), [(sG, LY.ACT_STRIDE), (sR, 4096), (sC, 8), (sW, 1024)])
        lin(sTS, sSST, [(sC, 120)])
        a.I("s_add_u32 %s, %s, %d\nv_mov_b32 v%d, %s\nv_mov_b32 v%d, %s\nv_cmp_gt_u32 vcc, 32, v0\nv_cndmask_b32 v%d, v%d, v%d, vcc" %
            (sTS, sTS, LY.SB[0], u1, sTS, XA, sFLW, XA, u1, XA))
        if OPT["tlb"]:
            a.I("v_min_u32 v%d, 4, v0\nv_mul_u32_u24 v%d, %d, v%d\nv_add_u32 v%d, %d, v%d\nv_cmp_gt_u32 vcc, 4, v0\nv_mov_b32 v%d, %d" %
                (u1, u1, 5 * LY.WG_STRIDE, u1, u1, LY.WG + LY.WG_STRIDE - 128, u1, XV, LY.ACT - 128))
            a.I("v_cndmask_b32 v%d, v%d, v%d, vcc\nv_cmp_gt_u32 vcc, 8, v0\nv_cndmask_b32 v%d, v%d, v%d, vcc" % (u1, XV, u1, XA, XA, u1))
        a.I("s_waitcnt lgkmcnt(0)")
        a.I("s_load_dword %s, s[4:5], %d" % (sNONCE, LY.EPOCH))
        a.I("s_cmp_lt_u32 s2, 192\ns_cselect_b32 s%d, s66, s68\ns_cselect_b32 s%d, s67, s69\ns_and_b32 s%d, s%d, 0xffff" % (SRC_A, SRC_A + 1, SRC_A + 1, SRC_A + 1))
        a.I("s_lshl_b32 s%d, %s, 9\ns_mov_b32 s%d, 0x20000" % (SRC_A + 2, stA, SRC_A + 3))
        sa = "s[%d:%d]" % (SRC_A, SRC_A + 3)
        a.vm("buffer_load_dwordx4 v%d, %s, %s offen lds" % (vA, sa, sT0))
        a.vm("buffer_load_dwordx4 v%d, %s, %s offen offset:1024 lds" % (vA, sa, sT1), "fa")
        self.srd(12, "s64", "s65", 2048 * 1024)
        a.vm("buffer_load_dwordx4 %s, v%d, %s, 0 offen" % (vr(XRES, 4), vR, XIN))
        a.vm("buffer_load_dwordx4 %s, v%d, %s, 0 offen offset:64" % (vr(XRES + 4, 4), vR, XIN), "x")
        if OPT["stamps"]:
            a.I("v_mov_b32 v%d, 0\nv_writelane_b32 v%d, s98, 62\nv_writelane_b32 v%d, s%d, 0" % (vSTAMP, vSTAMP, vSTAMP, sST))
            self.nstamp = 1
        if OPT["diagpad"]: a.I("s_mov_b32 s14, s98")
        self.srd(8, "s4", "s5", LY.WS_USED)
        a.vm("buffer_load_dword a255, v%d, %s, 0 offen sc1" % (XA, WS))
        self.srd(SRC_G, "s72", "s73", 512 * 3584)
        self.srd(SRC_U, "s74", "s75", 512 * 3584)
        self.srd(SRC_D, "s76", "s77", 1792 * 1024)
        def b_loads():
            for srdn, so, va, stride, lo in ((SRC_G, sSG, vB, 3584, 8192), (SRC_U, sSG, vB, 3584, 16384), (SRC_D, sSD, vD, 1024, 24576)):
                a.I("s_add_u32 m0, %s, %d\ns_add_u32 %s, %s, %d" % (sLW2, L_FMT + lo, sT0, so, 8 * stride - 1024))
                a.vm("buffer_load_dwordx4 v%d, s[%d:%d], %s offen lds" % (va, srdn, srdn + 3, so))
                a.vm("buffer_load_dwordx4 v%d, s[%d:%d], %s offen offset:1024 lds" % (va, srdn, srdn + 3, sT0), ("fb", lo))
        if OPT["b_pos"] == 0: b_loads()
        elif OPT["tlb"] >= 2:
            for srdn, so in ((SRC_G, sSG), (SRC_U, sSG), (SRC_D, sSD)):
                a.vm("buffer_load_dword a255, off, s[%d:%d], %s" % (srdn, srdn + 3, so))
        self.srd(16, "s78", "s79", 2048 * 1024)
        a.I("v_accvgpr_write_b32 a%d, v%d\nv_lshlrev_b32 v%d, 4, v0" % (aROW, vR, vL16))
        dA, dA2, dCS = "s3", "s0", "s1"
        a.I("s_and_b32 %s, %s, 7\ns_lshl_b32 %s, %s, 1\ns_lshr_b32 %s, %s, 1\ns_add_u32 %s, %s, %s" % (sT0, cuA, sT0, sT0, sT1, sW, sT0, sT0, sT1))
        a.I("s_mul_i32 %s, %s, %d\ns_add_u32 %s, %s, %d" % (sT0, sT0, LY.WQ_STRIDE, sT0, sT0, LY.WQ))
        a.I("s_lshr_b32 %s, %s, 3\ns_lshl_b32 %s, %s, 1\ns_and_b32 %s, %s, 1\ns_add_u32 %s, %s, %s" % (sT1, cuA, sT1, sT1, sT2, sW, sT1, sT1, sT2))
        lin(dA, sT0, [(kkA, 12288), (sT1, 1024)])
        lin(dCS, sT0, [(kkA, 64), (sT1, 512)])
        a.I("s_add_u32 %s, %s, 98304" % (dCS, dCS))
        lin(sT0, str(LY.WO), [(cuA, LY.WO_STRIDE), (kkA, 8192), (sW, 1024)])
        a.I("s_cmp_lt_u32 s2, 192\ns_cselect_b32 %s, %s, %s\ns_cselect_b32 %s, %s, 0x%x\ns_cselect_b32 %s, 6, 4\ns_cselect_b64 vcc, -1, 0" %
            (dA, dA, sT0, dCS, dCS, OOB, dA2))
        a.I("s_lshl_b32 %s, %s, 10\ns_add_u32 %s, %s, %s" % (dA2, dA2, dA2, dA2, dA))
        a.I("v_bfe_u32 v%d, v0, 2, 2\nv_and_b32 v%d, 3, v0\nv_bfe_u32 v%d, v0, 4, 1\nv_lshrrev_b32 v%d, 5, v0\nv_and_b32 v%d, 31, v0" % (rr, cc, q16, hh, t32))
        a.I("v_lshl_add_u32 v%d, v%d, 3, v%d\nv_lshlrev_b32 v%d, 7, v%d\nv_lshl_add_u32 v%d, v%d, 2, v%d\nv_lshlrev_b32 v%d, 7, v%d" % (u0, g, rr, u0, u0, u1, g, rr, u1, u1))
        a.I("s_lshr_b32 %s, %s, 1\ns_lshl_b32 %s, %s, 6\ns_and_b32 %s, %s, 1\ns_lshl_b32 %s, %s, 3\ns_add_u32 %s, %s, %s\ns_add_u32 %s, %s, %d" %
            (sT0, sW, sT0, sT0, sT1, sW, sT1, sT1, sT0, sT0, sT1, sT0, sT0, L_FMT))
        a.I("v_lshl_add_u32 v%d, v%d, 4, %s\nv_add_u32 v%d, v%d, v%d\nv_add_u32 v%d, v%d, v%d" % (TA1, cc, sT0, TD, TA1, u0, u1, u1, TA1))
        a.I("s_lshl_b32 %s, %s, 5\ns_add_u32 %s, %s, %d\nv_lshl_add_u32 v%d, v%d, 3, %s\nv_add_u32 v%d, v%d, v%d" % (sT0, sW, sT0, sT0, L_FMT, TA0, cc, sT0, u0, u0, TA0))
        a.I("v_mov_b32 v%d, v%d" % (TG, u0))
        a.I("v_cndmask_b32 v%d, v%d, v%d, vcc\nv_add_u32 v%d, 512, v%d\nv_add_u32 v%d, 2048, v%d\nv_cndmask_b32 v%d, v%d, v%d, vcc" % (TA0, u1, u0, u0, u0, u1, u1, TA1, u1, u0))
        for k in range(4): a.I("v_mov_b32 v%d, 0x3f803f80" % (ONES + k))
        a.I("v_lshlrev_b32 v%d, 2, v%d\nv_lshl_add_u32 v%d, v%d, 28, v%d" % (CSW, tok, CSW, g, CSW))
        a.I("s_mov_b32 %s, 0\ns_mov_b32 %s, 0x3f803f80" % (sSLOW, sONE))
        a.I("v_cmp_ne_u32 vcc, 0, v0\nv_mov_b32 v%d, 0x%x\nv_lshlrev_b32 v%d, 2, v0\nv_cndmask_b32 v%d, 0, v%d, vcc" % (vF1, OOB, vFL, vF1, vF1))
        a.I("s_lshl_b32 %s, %s, %d\ns_add_u32 %s, %s, 0x%x" % (sGB, sG, LY.ACT_SHIFT, sGB, sGB, LY.ACT))
        lin(sXLD, sGB, [(sW, 32768)])
        a.I("s_lshr_b32 %s, %s, 1\ns_and_b32 %s, %s, 1" % (sT0, sW, sT1, sW))
        lin(sXST, sGB, [(sR, 65536), (sC, 4096), (sT0, 32768), (sT1, 256)])
        lin(sOST, sXLD, [(sJ, 2048)])
        lin(sT0, str(LY.XF), [(sG, 2048)])
        a.I("v_lshl_add_u32 v%d, v%d, 7, %s\nv_lshl_add_u32 v%d, v%d, 30, v%d\nv_accvgpr_write_b32 a%d, v%d" % (XA, tok, sT0, LINE, hh, vFL, aLINE, LINE))
        a.I("v_lshlrev_b32 v%d, 4, v%d\nv_lshl_add_u32 v%d, v%d, 9, v%d" % (u0, tok, vQ, g, u0))
        a.I("v_lshlrev_b32 v%d, 6, v%d\nv_lshl_add_u32 v%d, v%d, 2, v%d\nv_lshl_add_u32 v%d, v%d, 30, v%d" % (u1, tok, u1, hh, u1, u1, q16, u1)); put(aST)
        def die_id():
            lin(sT0, str(LY.XF), [(sG, 2048), (sJ, 128)])
            a.I("s_cmp_eq_u32 %s, 0\ns_cselect_b32 %s, %s, 0x%x\ns_getreg_b32 %s, hwreg(HW_REG_XCC_ID, 0, 4)" % (sW, sT0, sT0, OOB, sT1))
            a.I("s_waitcnt lgkmcnt(0)\ns_add_u32 %s, %s, 0x9e3779b1\ns_xor_b32 %s, %s, %s\nv_mov_b32 v%d, %s" % (sNONCE, sNONCE, sT1, sT1, sNONCE, XV, sT1))
            a.vm("buffer_store_dword v%d, v%d, %s, %s offen sc1" % (XV, LINE, WS, sT0))
            self.stamp("p")
        if OPT["c_early"] < 2: die_id()
        def constants():
            lin(sB3, str(LY.WD), [(sN, LY.WD_STRIDE), (kkD, 8192), (sW, 1024)])
            a.I("s_lshl_b32 %s, %s, 2\ns_add_u32 %s, %s, %s" % (cuG, cuG, cuG, cuG, sW))
            self.sdivmod(sT0, sT1, cuG, 7)
            lin(sB2, str(LY.WG), [(sT0, LY.WG_STRIDE)])
            a.I("s_sub_u32 %s, 6, %s\ns_bitcmp1_b32 %s, 0\ns_cselect_b32 %s, %s, %s" % (sT2, sT1, sT0, sT1, sT1, sT2))
            S0, TL = GS0, 16 - GS0
            lin(sB0, sB2, [(kkG, 28 * 1024), (sT1, 2048)])
            lin(sB2, sB2, [(sT1, (2 * TL + 1) * 1024)])
            lin(sT0, sB2, [(kkG, 4096)])
            a.I("s_add_u32 %s, %s, %d\ns_cmp_lt_u32 %s, %d\ns_cselect_b32 %s, %s, %s\ns_cselect_b32 %s, 14, 2\ns_lshl_b32 %s, %s, 10" %
                (sT0, sT0, 12 * S0 * 1024, kkG, S0 // 2, sB0, sB0, sT0, sB1, sB1, sB1))
            lin(sB2, sB2, [(kkG, 64)])
            a.I("s_add_u32 %s, %s, %d" % (sB2, sB2, (14 * S0 + 2 * TL) * 1024))
            a.I("s_cmp_lt_u32 s2, 224")
            for r_ in (sB0, sB2, sB3): a.I("s_cselect_b32 %s, %s, 0x%x" % (r_, r_, OOB))
            lin(sHFL, str(LY.HFL), [(sG, 1024)])
            lin(sHDFL, sHFL, [(sC, 128)])
            lin(sFBO, str(LY.FA), [("s2", 128)])
            a.I("s_add_u32 %s, %s, 2048\ns_add_u32 %s, %s, 0x%x" % (sHDFL, sHDFL, sHDST, sGB, 2 * LY.ACT_STRIDE))
            a.I("s_cmp_eq_u32 %s, 0\ns_cselect_b32 %s, %s, 0x%x" % (sW, sFBO, sFBO, OOB))
            a.I("s_lshl_b32 %s, %s, 2\ns_add_u32 %s, %s, %s\ns_cmp_eq_u32 %s, 7\ns_cselect_b32 %s, 0, %s\ns_cmp_eq_u32 %s, 7" % (sT0, sR, sT0, sT0, sW, sN, sT0, sT0, sT0))
            a.I("s_cselect_b32 %s, %s, 0x%x" % (sHDST, sHDST, OOB))
            a.I("v_lshlrev_b32 v%d, 4, v%d\nv_lshl_add_u32 v%d, v%d, 7, v%d\nv_add_u32 v%d, %d, v%d" % (u0, t8, u0, g, u0, u1, L_HALO, u0)); put(aHX)
            a.I("s_lshl_b32 %s, %s, 10\nv_add3_u32 v%d, v%d, v%d, %s" % (sT0, sC, u1, u0, vA, sT0)); put(aHST)
            if OPT["c_early"] == 2: die_id()
            a.I("s_lshr_b32 %s, s2, 3\ns_lshl_b32 %s, %s, 2\ns_add_u32 %s, %s, %s\ns_lshl_b32 %s, %s, 7" % (sCPO, sCPO, sCPO, sCPO, sCPO, sW, sCPO, sCPO))
            lin(sHST, sGB, [(sW, 114688), (sJ, 7168)])
            lin(sSLD, sGB, [(sW, 2048)])
            lin(sOL, sXST, [(sC, -4096)])
            a.I("s_bitcmp1_b32 %s, 0\ns_cselect_b32 %s, 1, -1\ns_cselect_b32 %s, 0, 6144\ns_lshl_b32 %s, %s, 10\ns_add_u32 %s, %s, %s" % (sJ, sHSTEP, sT0, sHSTEP, sHSTEP, sHST, sHST, sT0))
            a.I("s_lshr_b32 %s, %s, 1\ns_lshl_b32 %s, %s, 1\ns_add_u32 %s, %s, %s\ns_lshl_b32 s66, 0x11111111, %s\ns_mov_b32 s67, s66" % (sT0, sW, sT1, sR, sT0, sT0, sT1, sT0))
            lin(sHLD[3], sGB, [(sR, 229376), (sW, 28672)])
            for i in range(4):
                a.I("s_add_u32 %s, %s, %d\ns_and_b32 %s, %s, 3\ns_lshr_b32 %s, %s, 1\ns_and_b32 %s, %s, 1" % (sTA, sW, i + 1, sTA, sTA, sT0, sTA, sT1, sTA))
                lin(sHLD[i], sHLD[3], [(sT0, 114688), (sT1, 256)])
                if i < 3: lin(sXW[i], str(i * 4096), [(sTA, 12288)])
            lin(sXR, "0", [(sW, 12288)])
            lin(sWQ, str(LY.WQ), [(sJ, LY.WQ_STRIDE * (1 - OPT["hitw"]))])
            lin(sWG, str(LY.WG), [(sJ, LY.WG_STRIDE * (1 - OPT["hitw"]))])
            lin(sWO, str(LY.WO), [(sC, LY.WO_STRIDE * (1 - OPT["hitw"])), (sW, 4096)])
            lin(sWD, str(LY.WD), [(sC, LY.WD_STRIDE * (1 - OPT["hitw"])), (sW, 57344)])
            lin(sTAB, str(L_TAB), [(sW, 512)])
            a.I("s_lshl_b32 %s, %s, 10\ns_lshl_b32 %s, %s, 12\ns_add_u32 %s, %s, %s\ns_add_u32 %s, %s, %s" % (sLW, sW, sLW4, sW, sWQ4, sWQ, sLW4, sWG4, sWG, sLW4))
            a.I("s_cmp_eq_u32 %s, 0\ns_cselect_b32 %s, 0x%x, %s\ns_cselect_b32 s54, 0, 0xff\ns_mov_b32 s55, 0" % (sN, sHALO, OOB, sGB))
            a.I("s_add_u32 %s, %s, %s\ns_add_u32 %s, %s, %s\ns_add_u32 %s, %s, %s" % (sHALO2, sHALO, sLW2, sWQ, sWQ, sLW, sWG, sWG, sLW2))
            a.I("s_lshr_b32 %s, %s, 1\ns_lshl_b32 %s, %s, 5\ns_and_b32 %s, %s, 1\ns_lshl_b32 %s, %s, 1\ns_add_u32 %s, %s, %s" % (sT0, sW, sT0, sT0, sT1, sW, sT1, sT1, sT0, sT0, sT1))
            a.I("s_mov_b32 s40, 0x33333333\ns_mov_b32 s41, 0\ns_lshl_b64 s[40:41], s[40:41], %s" % sT0)
            a.I("s_lshl_b32 %s, %s, 1\ns_lshl_b32 %s, %s, 4\ns_add_u32 %s, %s, %s" % (sT0, sR, sT2, sW, sT0, sT0, sT2))
            a.I("s_mov_b32 s42, 0x3333\ns_mov_b32 s43, 0\ns_lshl_b64 s[42:43], s[42:43], %s" % sT0)
            a.I("v_add_u32 v%d, 0x10000, v%d\nv_add_u32 v%d, 0x20000, v%d" % (vL16b, vL16, vL16c, vL16))
            a.I("v_lshlrev_b32 v%d, 4, v%d\nv_lshl_add_u32 v%d, v%d, 6, v%d" % (u0, g, u1, tok, u0)); put(aSQ)
            a.I("v_lshl_add_u32 v%d, v%d, 6, v%d" % (u1, t8, u0)); put(aSH)
            a.I("v_lshlrev_b32 v%d, 7, v%d" % (u1, tok)); put(aTO)
            a.I("v_lshlrev_b32 v%d, 7, v%d\nv_lshl_add_u32 v%d, v%d, 5, v%d\nv_lshl_add_u32 v%d, v%d, 1, v%d\nv_lshlrev_b32 v%d, 3, v0" % (u0, rr, u0, g, u0, u0, cc, u0, u1))
            a.I("s_cmp_ge_u32 %s, 2\ns_cselect_b64 vcc, -1, 0\ns_cselect_b32 %s, 2, 8\nv_cndmask_b32 v%d, v%d, v%d, vcc" % (sW, sT1, u1, u0, u1))
            a.I("s_lshr_b32 %s, %s, 1\ns_add_u32 %s, %s, %d\nv_add_u32 v%d, %s, v%d" % (sT0, sLW, sT0, sT0, L_KV, u1, sT0, u1)); put(aHWR)
            a.I("v_mov_b32 v%d, %s" % (u1, sT1)); put(aHWS)
            a.I("v_min_u32 v%d, 6, v%d\ns_mul_i32 %s, %s, 7\nv_add_u32 v%d, %s, v%d" % (t32, t8, sT0, sW, t32, sT0, t32))
            a.I("s_lshl_b32 %s, %s, 1\nv_and_or_b32 v%d, v0, 1, %s" % (sT0, sW, t8, sT0))
            a.I("s_lshr_b32 %s, %s, 1\nv_mul_u32_u24 v%d, 24, v%d\nv_lshl_add_u32 v%d, v%d, 3, v%d\nv_add_u32 v%d, %s, v%d" % (sT0, sJ, u0, t8, u0, kc, u0, u0, sT0, u0))
            a.I("s_add_u32 %s, %s, 192\nv_lshl_add_u32 v%d, v%d, 3, %s\nv_cmp_gt_u32 vcc, 24, v0\nv_cndmask_b32 v%d, v%d, v%d, vcc" % (sT0, sC, u1, t8, sT0, u0, u1, u0))
            a.I("v_lshlrev_b32 v%d, 7, v%d\nv_add_u32 v%d, %d, v%d" % (u0, u0, FAV, LY.FA, u0))
            a.I("s_mul_i32 %s, %s, 7\ns_add_u32 %s, %s, 6\ns_lshr_b32 %s, %s, 2\ns_lshr_b32 %s, %s, 2" % (sT0, sJ, sT1, sT0, sT0, sT0, sT1, sT1))
            a.I("v_add_u32 v%d, %s, v%d\nv_min_u32 v%d, %s, v%d\nv_mad_u32_u24 v%d, v%d, 28, v%d" % (u0, sT0, kc, u0, sT1, u0, u0, t8, u0))
            a.I("v_lshl_add_u32 v%d, v%d, 3, %s\nv_cmp_gt_u32 vcc, 32, v0\nv_cndmask_b32 v%d, v%d, v%d, vcc" % (u1, t32, sC, u0, u1, u0))
            a.I("v_lshlrev_b32 v%d, 7, v%d\nv_add_u32 v%d, %d, v%d" % (u0, u0, u1, LY.FB, u0)); put(aFB)
            if OPT["c_early"] == 3: die_id()
            a.I("s_getpc_b64 %s\nL_pc2:\ns_sub_u32 s4, s4, L_pc2-L_pc\ns_subb_u32 s5, s5, 0" % sPC)
            NG, Z, M0_, M1_ = rr, cc, q16, hh
            a.I("s_or_b32 %s, %s, %s\ns_cmp_eq_u32 %s, 0\ns_cselect_b64 s[56:57], -1, 0" % (sT0, sN, sW, sT0))
            a.I("v_mov_b32 v%d, %s\nv_mov_b32 v%d, 0\nv_lshlrev_b32 v%d, 2, v%d\nv_sub_u32 v%d, v%d, v%d" % (NG, NEG, Z, vA, g, vA, tok, vA))
            for r in range(4):
                a.I("v_subrev_u32 v%d, %d, v%d\nv_mov_b32 v%d, %s" % (u0, r, vA, M0_, "0xffff0000" if r & 1 else "0xffff"))
                a.I("v_cmp_gt_u32 vcc, 8, v%d\nv_cmp_gt_i32 s[58:59], -8, v%d\nv_cmp_le_i32 s[60:61], 0, v%d" % (u0, u0, u0))
                a.I("v_cndmask_b32 v%d, v%d, v%d, vcc" % (u1, NG, Z)); put(aBC + r)
                a.I("v_cndmask_b32 v%d, v%d, v%d, s[58:59]" % (u1, NG, Z)); put(aBP + r)
                a.I("v_cndmask_b32 v%d, v%d, v%d, s[56:57]" % (u1, u1, NG)); put(aBP0 + r)
                if r & 1:
                    a.I("v_cndmask_b32 v%d, v%d, v%d, s[60:61]\nv_or_b32 v%d, v%d, v%d" % (u1, Z, M0_, u1, u1, M1_)); put(aMC + r // 2)
                else:
                    a.I("v_cndmask_b32 v%d, v%d, v%d, s[60:61]" % (M1_, Z, M0_))
        a.I("v_bfe_u32 v%d, v0, 3, 1\nv_xor_b32 v%d, 1, v%d\nv_lshlrev_b32 v%d, 29, v%d" % (vA, vA, vA, vA, vA))
        a.I("s_lshl_b32 %s, %s, 3\ns_add_u32 %s, %s, %d\nv_add3_u32 v%d, v%d, v%d, %s" % (sT0, sC, sT0, sT0, 8192 - 512, u1, u1, vA, sT0)); put(aHSS)
        if OPT["c_early"]: constants()
        self.stamp("p")
        a.vm_wait("fa")
        a.I("s_barrier")
        for sp in range(2):
            for half in range(2):
                a.ds("ds_read_b64_tr_b16 %s, v%d offset:%d" % (vr(ACC + 4 * sp + 2 * half, 2), (TA0, TA1)[half], sp * 4096), ("t", sp))
        self.stamp("p")
        for sp in range(2):
            a.ds_wait(("t", sp))
            a.vm("buffer_store_dwordx4 %s, v%d, %s, %s offen sc1" % (vr(ACC + 4 * sp, 4), vL16, WS, (dA, dA2)[sp]))
            a.I("v_mfma_f32_16x16x32_bf16 %s, %s, %s, %s" % (vr(ACC + 8, 4), vr(ONES, 4), vr(ACC + 4 * sp, 4), vr(ACC + 8, 4) if sp else "0"))
        a.I("\n".join(self.hi_lo(ACC + 12, ACC + 8, ACC + 13)))
        a.vm("buffer_store_dword v%d, v%d, %s, %s offen sc1" % (ACC + 12, CSW, WS, dCS), "fas")
        a.vm_wait("x")
        self.publish(0)
        xload = "buffer_load_dword v31, v%d, %s, 0 offen sc1" % (XA, WS)
        a.vm(xload, "xf")
        if OPT["b_pos"] == 1: b_loads()
        self.stamp("p")
        if not OPT["c_early"]: constants()
        def second_unit():
            G, D, CS = X + 96, X + 112, ACC + 48
            out = []
            def store(ops):
                if OPT["b_spread"] and "b" not in OPT["order"]: out.append(ops)
                else: a.run_all(ops)
            if "b" in OPT["order"]:
                a.vm_wait(("fb", 24576))
                a.I("s_barrier")
            for n_ in range(4):
                for half in range(2):
                    a.ds("ds_read_b64_tr_b16 %s, v%d offset:%d" % (vr(G + 4 * n_ + 2 * half, 2), TG, 8192 * (1 + n_ % 2) + (32 * (n_ // 2) + 4 * half) * 128), ("tg", n_))
            for sp in range(2):
                for half in range(2):
                    a.ds("ds_read_b64_tr_b16 %s, v%d offset:%d" % (vr(D + 4 * sp + 2 * half, 2), TD, 24576 + (32 * sp + 4 * half) * 128), ("td", sp))
            for n_ in range(4):
                a.ds_wait(("tg", n_))
                store(([("i", "s_add_u32 %s, %s, %s" % (sB0, sB0, sB1))] if n_ == 2 else []) +
                      [("vm", "buffer_store_dwordx4 %s, v%d, %s, %s offen offset:%d sc1" % (vr(G + 4 * n_, 4), vL16, WS, sB0, (n_ % 2) * 1024))])
                c_ = vr(CS + 4 * (n_ % 2), 4)
                a.I("v_mfma_f32_16x16x32_bf16 %s, %s, %s, %s" % (c_, vr(ONES, 4), vr(G + 4 * n_, 4), c_ if n_ >= 2 else "0"))
            for sp in range(2):
                a.ds_wait(("td", sp))
                store(([("i", "s_add_u32 %s, %s, 4096" % (sB3, sB3))] if sp else []) +
                      [("vm", "buffer_store_dwordx4 %s, v%d, %s, %s offen sc1" % (vr(D + 4 * sp, 4), vL16, WS, sB3))])
            a.I("v_cmp_gt_u32 vcc, 16, v0\nv_bfe_u32 v%d, v0, 4, 1\nv_mul_u32_u24 v%d, 448, v%d\nv_add_u32 v%d, v%d, v%d\nv_cndmask_b32 v%d, v%d, v%d, vcc" %
                (D + 9, D + 9, D + 9, D + 9, D + 9, LINE, CS, CS + 4, CS))
            a.I("\n".join(self.hi_lo(D + 8, CS, CS + 1)))
            store([("vm", "buffer_store_dword v%d, v%d, %s, %s offen sc1" % (D + 8, D + 9, WS, sB2), "fbs")])
            self.stamp("p")
            return out
        def first_flags():
            a.I("v_mov_b32 v30, %s" % sNONCE)
            a.vm_wait("fas")
            a.I("s_barrier")
            a.vm("buffer_store_dword v30, v%d, %s, %s offen sc1" % (LINE, WS, sFBO))
            a.I("s_add_u32 %s, %s, %d" % (sFBO, sFBO, LY.FB - LY.FA))
            self.stamp("p")
        def own_flags():
            spin, back = a.label("xspin"), a.label("xback")
            test = "v_xor_b32 v29, %s, v31\nv_cmp_lt_u32 vcc, 15, v29\ns_and_b64 vcc, vcc, exec" % sNONCE
            a.vm_wait("xf")
            a.I("%s\ns_cbranch_scc1 %s\n%s:" % (test, spin, back))
            self.cold.append("%s:\ns_mov_b32 %s, 0x40000\n%s_l:\n%s\ns_sub_u32 %s, %s, 1\ns_cbranch_scc1 L_main_done\ns_waitcnt vmcnt(0)\n%s\ns_cbranch_scc1 %s_l\ns_branch %s"
                             % (spin, sSPIN, spin, xload, sSPIN, sSPIN, test, spin, back))
            a.I("v_cmp_ne_u32 vcc, v%d, v31\ns_cmp_lg_u64 vcc, 0\ns_cselect_b32 %s, 1, 0\ns_mov_b32 s0, %s\ns_mov_b32 s1, 0" % (XV, sSLOW, sSLOW))
            self.signal(0, "pub", 0)
            self.stamp("p")
        for step in OPT["order"]:
            {"b": second_unit, "a": first_flags, "o": own_flags}[step]()
        self.stamp("p")
        if "b" in OPT["order"]:
            a.vm_wait("fbs")
            a.I("s_barrier")
            a.vm("buffer_store_dword v30, v%d, %s, %s offen sc1" % (LINE, WS, sFBO))
        elif OPT["predrain"]:
            a.vm_drain()
        self.stamp("p")
        self.second_unit, self.b_loads = second_unit, b_loads
        self.fav = FAV

    def qkv(self, ps):
        a = self.a
        xi = 2 * ps
        late = self.wq_late(ps)
        lateb = ps == 0 and "b" not in OPT["order"]
        bst = []
        wql = [g for ch in late for g in self.wq_chunk(ch)]
        split = ps == 0 and OPT["q0_split"]
        HX, HW, HW2, HF, NM, RL, CQ, RR = 16, 17, 18, 19, 20, 26, 28, ACC + 52
        def setup():
            a.I(self.getc(30, aSQ) + "\n" + self.getc(31, aSH) + "\n" + self.getc(HX, aHX))
            a.I("s_add_u32 %s, %s, 2048\nv_add_u32 v%d, %s, v%d\nv_add_u32 v%d, 0xc000, v%d\nv_lshlrev_b32 v%d, 7, v0" % (sT2, sLW, HW, sT2, vL16, HW2, HW, CQ))
        self.poll(6 * ps, sMA, self.fav if ps == 0 and not split else None, setup)
        self.stamp()
        xl = self.reg_loads([vr(X + 8 * s + 4 * b, 4) for s in range(16) for b in range(2)], [sXLD] * 32,
                            [LY.XB[xi] + s * 2048 + b * 256 for s in range(16) for b in range(2)], sTA, vQ, "x")
        UP = OPT["q_up"] if ps else OPT["q0_up"]
        if ps == 0:
            late = late[1:]
            n = 4 + OPT["q0_w"]
            first = wql[:4] + xl[:UP] + wql[4:n]
            if split:
                l_fa, g_fa = self.late_check("buffer_load_dword v%d, v%d, %s, 0 offen sc1" % (HF, self.fav, WS), HF, "exec", "fa")
                n1 = OPT["q0_n1"]
                first = xl[:n1] + [l_fa] + xl[n1:UP] + [g_fa + [("i", "s_barrier")]] + wql[:n]
            else:
                first = xl[:2] + [[("i", "s_barrier")]] + wql[:4] + xl[2:UP] + wql[4:n]
            wql = wql[n:]
            if OPT["b_pos"] >= 2:
                k = OPT["b_pos"] - 2
                a.run_all(self.flat(first[:k])); first = first[k:]
                self.b_loads(); a.state.pop("m0", None)
            if lateb:
                k = len(first) - OPT["q0_b"]
                a.run_all(self.flat(first[:k])); first = first[k:]
                if OPT["b_pos"] >= 2: a.vm_wait(("fb", 24576))
                a.I("s_barrier")
                bst = self.second_unit()
            a.run_all(self.flat(first))
        else:
            a.run_all(self.flat(xl[:UP]))
        if ps == 0:
            a.vm_wait(("wq", 0))
        a.I("s_barrier")
        sl = Slots()
        use = {}
        acc = lambda blk, b: vr(ACC + 8 * blk + 4 * b, 4)
        hbuf = lambda t: (F + 24, X)[t % 2]
        step0 = {}
        H0 = OPT["q_h0"]
        hpos = {}
        for t in range(16):
            p = (t * 6 * (16 - H0)) // 16 + 1
            hpos.setdefault((H0 + p // 6, p % 6), []).append(t)
        Y, Z = X + 8, X + 96
        BC, BP, BP0, MC, ONES, KW, CSA = Y, Y + 4, Y + 8, Y + 12, Y + 14, Y + 16, Y + 21
        def halo_mfma(t):
            d = acc(6, 0)
            if t < 16:
                i = sl.add("v_mfma_f32_16x16x32_bf16 %s, %s, %s, %s" % (d, vr(hbuf(t) + 4, 4), vr(hbuf(t), 4), "0" if t == 0 else d), [("wds", ("hx", t))])
            else:
                i = sl.add("v_mfma_f32_16x16x16_bf16 %s, %s, %s, %s" % (d, vr(NM + 4, 2), vr(hbuf(t), 2), d), [("wds", ("hw", t))])
            use[("h", t)] = i
        for s in range(17):
            step0[s] = sl.n()
            if s == 16: halo_mfma(16)
            for f in range(6):
                for b in range(2):
                    pre_ = []
                    if b == 0: pre_.append(("wds", ("f", s, f)))
                    if f == 0 and s < 16: pre_.append(("wvm", ("x", 2 * s + b)))
                    w = vr(F + 4 * f, 4 if s < 16 else 2)
                    x = vr(X + 8 * s + 4 * b, 4) if s < 16 else vr(NM + 2 * b, 2)
                    A, B = (w, x) if f < 4 else (x, w)
                    d = acc(f, b)
                    mn = "v_mfma_f32_16x16x32_bf16" if s < 16 else "v_mfma_f32_16x16x16_bf16"
                    use[(s, f)] = sl.add("%s %s, %s, %s, %s" % (mn, d, A, B, "0" if s == 0 else d), pre_)
                for t in hpos.get((s, f), ()): halo_mfma(t)
        reads = []
        for s in range(17):
            for f in range(6):
                d = F + 4 * f
                if s < 16: t = "ds_read_b128 %s, %s" % (vr(d, 4), ldsaddr(s * 6144 + f * 1024))
                else: t = "ds_read2st64_b32 %s, v%d offset0:%d offset1:%d" % (vr(d, 2), CSA, 2 * f, 2 * f + 1)
                reads.append((use[(s - 1, f)] if s else -1, (6 * s + f) // 16, ("ds", t, ("f", s, f))))
        hbar = step0[H0 - 1] + 4
        for t in range(17):
            pos = use[("h", t - 2)] if t >= 2 else hbar + 2 + 2 * t
            if t < 16:
                reads.append((pos, (6 * t + 5) // 16, ("ds", "ds_read_b128 %s, v%d offset:%d" % (vr(hbuf(t), 4), HW if t < 8 else HW2, (t % 8) * 6144), ("hw", t))))
                reads.append((pos + (1 if t >= 2 else 0), 0, ("ds", "ds_read_b128 %s, v%d offset:%d" % (vr(hbuf(t) + 4, 4), HX, t * 512), ("hx", t))))
            else:
                reads.append((pos, 6, ("ds", "ds_read2st64_b32 %s, v%d offset0:4 offset1:5" % (vr(hbuf(t), 2), CSA + 1), ("hw", t))))
        sl.put("c", step0[4], [("i", "v_add_u32 v%d, 98304, v%d\ns_lshr_b32 %s, %s, 1\nv_add_u32 v%d, %s, v%d" % (CSA, vFL, sT2, sLW, CSA + 1, sT2, CSA)), ("mark", "csaddr")])
        sl.after(step0[14], ("need", "csaddr"))
        sl.pre[step0[16]].append(("wds", ("nm", 2)))
        chbar = {}
        for ch in late:
            ops = [("wvm", ("wq", ch)), ("i", "s_barrier")]
            p = chbar[ch] = min(p for p, c, _ in reads if c == ch)
            if lateb and ch == OPT["q0_fbch"]:
                ops.insert(0, ("wvm", "fbs"))
                assert p >= step0[5]
                sl.put("f", p + 1, [("i", "v_mov_b32 v%d, %s\n%s" % (X + 32, sNONCE, self.getc(X + 33, aLINE))),
                                    ("vm", "buffer_store_dword v%d, v%d, %s, %s offen sc1" % (X + 32, X + 33, WS, sFBO))])
            sl.after(p, *ops)
        sl.after(hbar, ("wvm", "halo"), ("i", "s_barrier"))
        for pos, _, rd in reads:
            if pos < 0: a.run(rd)
            else: sl.after(pos, rd)
        l_hf, g_chk = self.late_check("buffer_load_dword v%d, v%d, %s, %s offen sc1" % (HF, CQ, WS, sT1), HF, sMH, "hf")
        g_hf = [("i", "v_and_b32 v%d, 0x380, v%d\ns_add_u32 %s, %s, %d" % (CQ, CQ, sT1, sHFL, ps * 16384))] + l_hf
        g_hd = self.dma_chunk(sHALO2, LY.HX[ps], L_HALO, 2, "halo", " sc1")
        g_hs = [("i", "s_add_u32 %s, %s, %d" % (sT1, sHALO, LY.HX[ps] + 8192)),
                ("vm", "buffer_load_dwordx4 %s, v31, %s, %s offen sc1" % (vr(RR + 8, 4), WS, sT1), "st")]
        g_s0 = [("i", "s_add_u32 %s, %s, %d" % (sT0, sSLD, LY.SB[xi])), ("vm", "buffer_load_dwordx4 %s, v30, %s, %s offen sc1" % (vr(RR, 4), WS, sT0))]
        g_s1 = [("vm", "buffer_load_dwordx4 %s, v30, %s, %s offen offset:1024 sc1" % (vr(RR + 4, 4), WS, sT0))]
        wbar = max(use[("h", 6)] + 2, step0[OPT["q_wbar"]])
        while sl.post[wbar]: wbar += 1
        sl.after(wbar, ("i", "s_barrier"))
        wo = [(0 if i < 2 else wbar + 2, g) for i in range(4) for g in self.wo_chunk(i)]
        rest = xl[UP:]
        h1 = OPT["q_hf"] if ps else OPT["q0_hf"]
        h2 = h1 + OPT["q_chk"] - 2
        seq = rest[:h1] + [g_hf, g_s0, g_s1] + rest[h1:h2] + [g_chk] + g_hd + [g_hs] + rest[h2:]
        if wql:
            due, d = [], sl.n()
            for g in reversed(seq):
                tag = g[-1][2] if len(g[-1]) > 2 else None
                if isinstance(tag, tuple) and tag[0] == "x": d = step0[tag[1] // 2]
                due.append((d, g))
            due.reverse()
            d, wdue = 0, []
            for g in reversed(wql):
                if g[-1][2] is not None: d = chbar[g[-1][2][1]] - OPT["q0_lead"]
                wdue.append((d, g)); d -= 6
            seq = [g for _, g in sorted(due + wdue[::-1], key=lambda t: t[0])]
        for n_, g in enumerate(bst):
            k = OPT["b_first"] + n_ * (OPT["b_gap"] + 1)
            assert not any(op[0] == "vm" and len(op) > 2 and isinstance(op[2], tuple) and op[2][0] == "x" and op[2][1] >= 24 for g2 in seq[:k] for op in g2)
            seq.insert(k, g)
        if ps == 0:
            if OPT["otouch"]: seq += self.touch(aTO, sOST, LY.OB[ps], CQ)
            l_fb, g_fb = self.late_check("%s\nbuffer_load_dword v%d, v%d, %s, 0 offen sc1" % (self.getc(Y + 23, aFB), Y + 23, Y + 23, WS), Y + 23, "exec", "fb")
            l_fb = [("i", l_fb[0][1].split("\n")[0]), ("vm", l_fb[0][1].split("\n")[1], "fb")]
            seq += [g + (OPT["q0_tail"] / 10,) for g in wo]
            sl.put("f", step0[OPT["q0_fbs"]], l_fb)
        else:
            seq += wo
        sl.put("g", step0[12], self.flat(self.code_touch("L_wo%d" % ps, CQ + 1)))
        left = sl.pace(seq, 0, (OPT["q_every"] if ps else OPT["q0_every"]) / 10)
        A0, A1, AH = RR, RR + 4, RR + 8
        st = [[("wvm", "st")]]
        for r_ in (A0, A1, AH):
            st.append([("i", "v_add_f32 v%d, v%d, v%d" % (r_, r_, r_ + 2))])
            st.append([("i", "v_add_f32 v%d, v%d, v%d" % (r_ + 1, r_ + 1, r_ + 3))])
        for o in (0, 1): st.append([("i", "v_mov_b32 v%d, v%d" % (AH + 2 + o, AH + o))])
        for o in (0, 1): st.append([("i", "v_permlane32_swap_b32 v%d, v%d" % (A0 + o, A1 + o))])
        for o in (0, 1): st.append([("i", "v_permlane32_swap_b32 v%d, v%d" % (AH + o, AH + 2 + o))])
        for o in (0, 1): st.append([("i", "v_add_f32 v%d, v%d, v%d" % (A0 + o, A0 + o, A1 + o))])
        for o in (0, 1): st.append([("i", "v_add_f32 v%d, v%d, v%d" % (AH + o, AH + o, AH + 2 + o))])
        for o in (0, 1): st.append([("i", "v_permlane16_swap_b32 v%d, v%d" % (A0 + o, AH + o))])
        for o in (0, 1): st.append([("i", "v_add_f32 v%d, v%d, v%d" % (A0 + o, A0 + o, AH + o))])
        st += [[op] for op in self.ln_from_sums(A0, A0 + 1, A0 + 2)]
        st.append([("i", "v_cvt_pk_bf16_f32 v%d, -v%d, -v%d" % (A0, A0, A0))])
        st.append([("i", "v_add_u32 v%d, %s, v%d" % (HF, sTAB, vFL))])
        st.append([("i", "v_and_or_b32 v30, v%d, 63, %s" % (vFL, sTAB))])
        st.append([("i", "v_and_or_b32 v31, v0, 48, %s" % sTAB)])
        st.append([("ds", "ds_write2st64_b32 v%d, v%d, v%d offset0:0 offset1:1" % (HF, A0 + 1, A0))])
        row = {0: 0, 1: 2, 2: 1}
        for b in range(3):
            o = 64 + row[b] * 16
            st.append([("ds", "ds_read2_b32 %s, v30 offset0:%d offset1:%d" % (vr(NM + 2 * b, 2), o, o), ("nm", b))])
        st.append([("ds", "ds_read2_b32 %s, v30 offset0:0 offset1:32" % vr(RL, 2))])
        for b in range(3):
            st.append([("ds", "ds_read_b128 %s, v31 offset:%d" % (vr(RR + 4 * b, 4), row[b] * 64), ("tab", b))])
        sl.spread(st, step0[H0], step0[14])
        cst = [[("i", self.getc(Y + k, aBC + k))] for k in range(14)]
        cst += [[("i", "v_mov_b32 v%d, %s" % (ONES + k, sONE))] for k in range(2)]
        cst += [[("i", self.getc(KW, aHWR))], [("i", self.getc(KW + 3, aHWS))], [("i", "s_add_u32 %s, %s, %d" % (sT2, sLW2, L_KV))],
                [("i", "v_add_u32 v%d, v%d, v%d" % (KW + 1, KW, KW + 3))], [("i", "v_lshl_add_u32 v%d, v0, 3, %s" % (KW + 4, sT2))],
                [("i", "v_add_u32 v%d, v%d, v%d" % (KW + 2, KW + 1, KW + 3))], [("i", "v_add_u32 v%d, v%d, v%d" % (KW + 3, KW + 2, KW + 3))]]
        sl.spread(cst, step0[4] + 2, step0[8], "c")
        Qp = lambda b, h: Z + 4 * h + 2 * b
        Kp = lambda b, h: Z + 8 + 6 * h + 2 * (b + 1)
        Vp = lambda b, h: Z + 20 + 6 * h + 2 * (b + 1)
        HP, HA = HX, ACC + 48
        ar_ = lambda blk, b: ACC + 8 * blk + 4 * b
        cvt = lambda d, s_: "v_cvt_pk_bf16_f32 v%d, v%d, v%d" % (d, s_, s_ + 1)
        tl = [("wds", ("tab", 2)), ("i", "v_mul_f32 v%d, 0x3eb8aa3b, v%d\nv_mul_f32 v%d, 0x3eb8aa3b, v%d" % (CQ, RL, CQ + 1, RL + 1))]
        tl += [("i", "v_mul_f32 v%d, v%d, v%d" % (HA + r, HA + r, RR + 8 + r)) for r in range(4)]
        tl += [("i", cvt(HP, HA)), ("i", cvt(HP + 1, HA + 2))]
        hw = [("ds", "ds_write_b16%s v%d, v%d" % ("_d16_hi" if r & 1 else "", KW + r, HP + r // 2)) for r in range(4)]
        qs = [(h, b) for h in range(2) for b in range(2)]
        for n_, (h, b) in enumerate(qs):
            tl += [hw[n_], ("i", cvt(Qp(b, h), ar_(h, b))), ("i", cvt(Qp(b, h) + 1, ar_(h, b) + 2))]
        sl.put("v", step0[16], tl)
        self.lite(sl, "q", [step0[s] for s in (0, 2, 4, 6, 8, 10, 12, 14)])
        self.report("qkv%d" % ps, sl.emit(a))
        self.stamp()
        body = []
        e = lambda t: body.extend(("i", x) for x in t.split("\n"))
        def pack(dst, src): e(cvt(dst, src) + "\n" + cvt(dst + 1, src + 2))
        def scale_l(src, b):
            for k in range(2): e("v_pk_mul_f32 %s, %s, %s op_sel:[0,%d] op_sel_hi:[1,%d]" % (vr(src + 2 * k, 2), vr(src + 2 * k, 2), vr(RL, 2), b, b))
        def scale_r(src, r0):
            for k in range(2): e("v_pk_mul_f32 %s, %s, %s" % (vr(src + 2 * k, 2), vr(src + 2 * k, 2), vr(r0 + 2 * k, 2)))
        kvw = lambda src, part: body.append(("ds", "ds_write_b64 v%d, %s offset:%d" % (KW + 4, vr(src, 2), 2048 + 512 * part)))
        for h in range(2):
            scale_l(ar_(2 + h, 1), 1); pack(Kp(1, h), ar_(2 + h, 1)); kvw(Kp(1, h), h); scale_l(ar_(2 + h, 0), 0)
        for h in range(2):
            scale_r(ar_(4 + h, 1), RR + 4); pack(Vp(1, h), ar_(4 + h, 1)); kvw(Vp(1, h), 2 + h); scale_r(ar_(4 + h, 0), RR)
        units = [(1, 0), (1, 1), (0, 0), (0, 1)]
        SC = lambda u: F + 8 * u
        SP = lambda u: F + 8 * u + 4
        smf = lambda d, kb, u, bias: "v_mfma_f32_16x16x16_bf16 %s, %s, %s, %s" % (vr(d, 4), vr(Kp(kb, units[u][1]), 2), vr(Qp(*units[u]), 2), vr(bias, 4))
        M = [ACC + u for u in range(4)]
        def merge(u):
            return ["v_max_f32 v%d, v%d, v%d" % (SC(u) + r, SC(u) + r, SP(u) + r) for r in range(4)] + [
                "v_max3_f32 v%d, v%d, v%d, v%d" % (M[u], SC(u), SC(u) + 1, SC(u) + 2), "v_max_f32 v%d, v%d, v%d" % (M[u], M[u], SC(u) + 3)]
        e(smf(SC(0), 1, 0, BC)); pack(Kp(0, 0), ar_(2, 0))
        e(smf(SC(1), 1, 1, BC)); pack(Kp(0, 1), ar_(3, 0))
        e(smf(SP(0), 0, 0, BP))
        if ps == 0: body.extend(g_fb)
        body.append(("wvm", ("wo", 1)))
        body.append(("dsdrain",)); e("s_barrier")
        nbar = len(body)
        rdkv = lambda dst, part, tag: body.append(("ds", "ds_read_b64 %s, v%d offset:%d" % (vr(dst, 2), KW + 4, 512 * part), tag))
        e(smf(SP(1), 0, 1, BP)); rdkv(Kp(-1, 0), 0, ("kp", 0)); rdkv(Kp(-1, 1), 1, ("kp", 1))
        e(smf(SC(2), 0, 2, BC)); rdkv(Vp(-1, 0), 2, ("vp", 0)); rdkv(Vp(-1, 1), 3, ("vp", 1))
        e(smf(SC(3), 0, 3, BC)); pack(Vp(0, 0), ar_(4, 0)); pack(Vp(0, 1), ar_(5, 0))
        m0, m1 = merge(0), merge(1)
        e("\n".join(m0))
        body.append(("wds", ("kp", 1)))
        e(smf(SP(2), -1, 2, BP0)); e("\n".join(m1[:2]))
        e(smf(SP(3), -1, 3, BP0)); e("\n".join(m1[2:]))
        e("s_add_u32 %s, %s, %d" % (sT0, sOST, LY.OB[ps]))
        e("\n".join(merge(2)[:2]))
        e("v_permlane32_swap_b32 v%d, v%d" % (M[0], M[1]))
        e("\n".join(merge(2)[2:] + merge(3)))
        e("v_max_f32 v%d, v%d, v%d" % (M[0], M[0], M[1]))
        e("v_permlane32_swap_b32 v%d, v%d\nv_max_f32 v%d, v%d, v%d" % (M[2], M[3], M[2], M[2], M[3]))
        e("v_permlane16_swap_b32 v%d, v%d\nv_max_f32 v%d, v%d, v%d\nv_max_f32 v%d, v%d, v%d" % (M[0], M[2], M[1], M[0], M[2], M[2], M[0], M[2]))
        e("v_permlane16_swap_b32 v%d, v%d" % (M[1], M[2]))
        e("v_mul_f32 v%d, v%d, v%d\nv_mul_f32 v%d, v%d, v%d" % (M[0], M[1], CQ + 1, M[1], M[1], CQ + 1))
        e("v_mul_f32 v%d, v%d, v%d\nv_mul_f32 v%d, v%d, v%d" % (M[3], M[2], CQ, M[2], M[2], CQ))
        def shift(u):
            for k in range(2):
                e("v_pk_fma_f32 %s, %s, %s, %s op_sel:[0,%d,%d] op_sel_hi:[1,%d,%d] neg_lo:[0,0,1] neg_hi:[0,0,1]" %
                  (vr(SC(u) + 2 * k, 2), vr(SC(u) + 2 * k, 2), vr(CQ, 2), vr(ACC + 2 * (u // 2), 2), units[u][0], u % 2, units[u][0], u % 2))
        e("v_permlane32_swap_b32 v%d, v%d" % (M[0], M[1])); shift(0)
        e("v_permlane32_swap_b32 v%d, v%d" % (M[2], M[3])); shift(1); shift(2); shift(3)
        PM = lambda u: ACC + 4 + 2 * u
        PS = lambda u: ACC + 12 + 4 * u
        OP = lambda b: ACC + 28 + 4 * b
        pv = lambda u: "v_mfma_f32_16x16x32_bf16 %s, %s, %s, 0" % (vr(SC(u), 4), vr(Vp(units[u][0] - 1, units[u][1]), 4), vr(PS(u), 4))
        for u, (b, h) in enumerate(units):
            for r in range(4):
                e("v_exp_f32 v%d, v%d" % (SC(u) + r, SC(u) + r))
                if r == 1 and u >= 1: e(pv(u - 1))
            if u == 2: body.append(("wds", ("vp", 1)))
            if u >= 2: e("v_rcp_f32 v%d, v%d" % (SP(u - 2), SP(u - 2)))
            pack(PM(u), SC(u))
            for k in range(2):
                e("v_bfi_b32 v%d, v%d, 0, v%d\nv_and_b32 v%d, v%d, v%d" % (PS(u) + k, MC + k, PM(u) + k, PS(u) + 2 + k, MC + k, PM(u) + k))
            e("v_mfma_f32_16x16x16_bf16 %s, %s, %s, 0" % (vr(SP(u), 4), vr(ONES, 2), vr(PM(u), 2)))
        e("v_rcp_f32 v%d, v%d" % (SP(2), SP(2)))
        e(pv(3))
        def fin(u, packed):
            b, h = units[u]
            if packed:
                for k in range(2): e("v_pk_mul_f32 %s, %s, %s op_sel_hi:[1,0]" % (vr(SC(u) + 2 * k, 2), vr(SC(u) + 2 * k, 2), vr(SP(u), 2)))
            else:
                for r in range(4): e("v_mul_f32 v%d, v%d, v%d" % (SC(u) + r, SC(u) + r, SP(u)))
            pack(OP(b) + 2 * h, SC(u))
            if h == 1:
                body.append(("vm", "buffer_store_dwordx4 %s, v%d, %s, %s offen offset:%d%s" % (vr(OP(b), 4), vQ, WS, sT0, b * 256, " sc1" if ps == 0 and not OPT["otouch"] else ""), "o" if b == 0 else None))
        fin(0, False); fin(1, True)
        e("v_rcp_f32 v%d, v%d" % (SP(3), SP(3)))
        fin(2, True); fin(3, True)
        left = self.weave(body[:nbar], left, 0, OPT["a_every"])
        stop = len(body) - OPT["a_quiet"]
        left = self.weave(body[nbar:stop], left + self.wgs("att", ps) + self.wds("att", ps), 4, OPT["a_every"])
        a.run_all(body[stop:])
        print("  attention: %d groups left for the hand-off" % len(left))
        self.stamp()
        self.wo_pre(0, OPT["w_pre"])
        self.signal(6 * ps + 1, "o")
        a.run_all(self.flat(left + self.wgs("h1", ps) + self.wds("h1", ps)))
        self.stamp()

    def wds(self, where, ps):
        if ps: return []
        if self.wd is None:
            ks = [4 * s + cb for s in DN_ORD for cb in range(4)]
            self.wd = self.reg_loads([ar(4 * k, 4) for k in ks], [sWD] * 56, [k * 1024 for k in ks], sTD, vL16, "wd")
        n = OPT.get("wd_" + where, 56)
        out, self.wd = self.wd[:n], self.wd[n:]
        return out

    WREG = [X + 4 * k for k in range(16)] + [ACC + 16 + 4 * k for k in range(12)] + [F + 4 * k for k in range(8)]
    def wo_read(self, k):
        return ("ds", "ds_read_b128 %s, %s" % (vr(self.WREG[k % 36], 4), ldsaddr(WO_SLOT[k // 16] * 16384 + (k % 16) * 1024)), ("w", k))
    def wo_pre(self, k0, k1):
        for k in range(k0, k1): self.a.run(self.wo_read(k))

    def finish(self, A, xo, h, pf, n, halo_pass):
        a = self.a
        for k in range(8): a.I("v_cvt_pk_bf16_f32 v%d, v%d, v%d" % (XRES + k, A + 2 * k, A + 2 * k + 1))
        if xo == 4:
            a.I(self.getc(16, aROW))
            for e_ in range(2): a.vm("buffer_store_dwordx4 %s, v16, %s, 0 offen offset:%d" % (vr(XRES + 4 * e_, 4), OUT, e_ * 64))
            self.stamp()
            return
        self.publish(xo)
        self.stamp()
        a.run_all(self.flat(pf[:n]))
        self.signal(h, "pub", halo_pass)
        a.run_all(self.flat(pf[n:]))
        self.stamp()

    def wo(self, ps):
        a = self.a
        def setup():
            for k in range(8):
                a.I("v_lshlrev_b32 v%d, 16, v%d\nv_and_b32 v%d, 0xffff0000, v%d" % (ACC + 2 * k, XRES + k, ACC + 2 * k + 1, XRES + k))
        keep = dict(a.ds_tag)
        if OPT["stamps"] and ps == 0:
            a.I("s_memtime s[%d:%d]" % (sST, sST + 1)); a.ds_drain(force=True); a.I("v_writelane_b32 v%d, s%d, 60" % (vSTAMP, sST))
        self.poll(6 * ps + 1, sMC, None, setup)
        a.ds_tag.update((t, n) for t, n in keep.items() if t[0] == "w")
        self.stamp()
        areg = lambda s: vr(X + 64 + 4 * s, 4)
        ld = self.reg_loads([areg(s) for s in range(16)], [sOL] * 16, [LY.OB[ps] + s * 2048 for s in range(16)], sTA, vQ, "act")
        UP = OPT["w_up"]
        rest = [self.wo_read(k) for k in range(OPT["w_pre"], 32)]
        for n_, g in enumerate(ld[:UP]):
            a.run_all(g)
            if n_ >= 3: a.run_all(rest[:3]); rest = rest[3:]
        a.run_all(rest)
        a.I("s_barrier")
        self.wo_pre(32, 36)
        sl = Slots()
        for k in range(64):
            s, cb = divmod(k, 4)
            d = vr(ACC + 4 * cb, 4)
            sl.add("v_mfma_f32_16x16x32_bf16 %s, %s, %s, %s" % (d, vr(self.WREG[k % 36], 4), areg(s), d),
                   [("wds", ("w", k))] + ([("wvm", ("act", s))] if cb == 0 else []))
            if cb == 0 and s + UP < 16: sl.put("m", k, ld[s + UP])
            if k + 36 < 64: sl.put("r", k, [self.wo_read(k + 36)])
        pf = sl.pace(self.wgs("wo", ps) + self.wds("wo", ps), 64 - 4 * UP + 2, 4.4, 64 - OPT["w_quiet"])
        self.lite(sl, "wo", [8 * k for k in range(8)])
        self.report("wo%d" % ps, sl.emit(a))
        self.stamp()
        self.finish(ACC, 2 * ps + 1, 6 * ps + 2, pf + self.wgs("h2", ps) + self.wds("h2", ps), 0, None)

    def dn_plan(self, ps):
        order = [(i, s) for lv in DN_S for i in range(3) for s in lv] + [(3, s) for s in range(14)]
        areg = lambda k: vr(X + 48 + 4 * (k % 16), 4)
        ld = self.reg_loads([areg(k) for k in range(56)], [sHLD[i] for i, s in order], [LY.HB[ps] + s * 2048 for i, s in order], sTA, vQ, "act")
        return order, areg, ld

    def dn(self, ps, issued, wd):
        a = self.a
        order, areg, ld = self.dn_plan(ps)
        XW, XR, R, P, U = 16, 19, 20, (ACC, ACC + 16, ACC + 32), ACC + 48
        io = L_SCR_DN - 65536
        UP = OPT["k_up"]
        widx = {s: n_ for n_, s in enumerate(DN_ORD)}
        wd_e = [g for g in wd if g[-1][2][1] < 24]
        wd_l = [g for g in wd if g[-1][2][1] >= 24]
        a.run_all(self.flat(ld[issued:UP] + wd_e))
        a.ds_drain()
        a.I("s_barrier")
        sl = Slots()
        accr = lambda i, cb: (X, X + 16, X + 32, X + 112)[i] + 4 * cb
        seen, endb = set(), {}
        for k, (i, s) in enumerate(order):
            for cb in range(4):
                d = vr(accr(i, cb), 4)
                pre = [("wvm", ("act", k))] if cb == 0 else []
                tag = ("wd", 4 * widx[s] + cb)
                if i == 0 and (tag in a.vm_tag or any(g[-1][2] == tag for g in wd_l)): pre.append(("wvm", tag))
                endb[i] = sl.add("v_mfma_f32_16x16x32_bf16 %s, %s, %s, %s" % (d, ar(16 * s + 4 * cb, 4), areg(k), d if (i, cb) in seen else "0"), pre)
                seen.add((i, cb))
        chk = {18: self.check_ops(6 * ps + 4, sMB, PA, "hf2"), 30: self.check_ops(6 * ps + 5, sMB, PA, "hf3")}
        if self.pending: sl.put("f", OPT["d_sig2"], self.pending)
        sl.put("f", OPT["d_sig"], self.signal_ops(6 * ps + 5, "h6", PB))
        extra = list(wd_l)
        for k in range(max(UP, issued), 56):
            p = 4 * (k - UP)
            if k + OPT["d_chk"] in chk: sl.put("m", p, chk[k + OPT["d_chk"]][0])
            if k in chk:
                due = [g for g in extra if g[-1][2][1] < (40 if k == 18 else 56)]
                sl.put("m", p, self.flat(due) + chk[k][1]); extra = extra[len(due):]
            sl.put("m", p, ld[k])
            sl.put("m", p, self.flat(extra[:1])); extra = extra[1:]
        su = [[("i", "v_add_u32 v%d, %s, v%d" % (XW + i, sXW[i], vL16b))] for i in range(3)] + [[("i", "v_add_u32 v%d, %s, v%d" % (XR, sXR, vL16b))]]
        su += [[("i", "s_lshl_b32 %s, %s, 2\ns_add_u32 %s, %s, %s\ns_lshl_b32 %s, %s, 6\ns_add_u32 %s, %s, %d\nv_and_or_b32 v%d, v%d, 63, %s" %
                 (sT0, sR, sT0, sT0, sW, sT0, sT0, sT0, sT0, L_RS, R, vFL, sT0)), ("ds", "ds_read_b32 v%d, v%d" % (R, R))]]
        for k in range(8):
            su += [[("i", "v_lshlrev_b32 v%d, 16, v%d" % (U + 2 * k, XRES + k))], [("i", "v_and_b32 v%d, 0xffff0000, v%d" % (U + 2 * k + 1, XRES + k))]]
        sl.spread(su, 20, 70)
        writes = lambda i: [[("ds", "ds_write_b128 v%d, %s offset:%d" % (XW + i, vr(accr(i, cb), 4), io + cb * 1024))] for cb in range(4)]
        reads = lambda i: [[("ds", "ds_read_b128 %s, v%d offset:%d" % (vr(P[i] + 4 * cb, 4), XR, io + i * 4096 + cb * 1024), ("r", i, cb))] for cb in range(4)]
        add = lambda d, s_: [[("i", "v_add_f32 v%d, v%d, v%d" % (d + e_, d + e_, s_ + e_))] for e_ in range(16)]
        for i in range(3): sl.spread(writes(i), endb[i] + 2, endb[i] + 17)
        seq = [[("dsdrain",), ("i", "s_barrier")]] + reads(0) + reads(1) + reads(2) + [[("wds", ("r", 1, 3))]] + add(P[0], P[1]) + [[("wds", ("r", 2, 3))]] + add(P[0], P[2])
        seq += [[("i", "v_fma_f32 v%d, v%d, v%d, v%d" % (U + e_, P[0] + e_, R, U + e_))] for e_ in range(16)]
        sl.spread(seq, endb[2] + 20, endb[3] - 2)
        pf = [] if ps else [g for i in range(7) if i not in self.wq_late(1) + self.kept() for g in self.wq_chunk(i)]
        pf = sl.pace(pf, 224 - 4 * UP + 2, 4.4)
        self.lite(sl, "dn", [28 * k for k in range(8)])
        self.report("dn%d" % ps, sl.emit(a))
        self.stamp()
        A = accr(3, 0)
        for k in range(8): a.I("v_pk_fma_f32 %s, %s, %s, %s op_sel_hi:[1,0,1]" % (vr(A + 2 * k, 2), vr(A + 2 * k, 2), vr(R, 2), vr(U + 2 * k, 2)))
        self.finish(A, 2 * ps + 2, 6, pf, OPT["dn_pre"], 1)

    def gu(self, ps):
        a = self.a
        xi = 2 * ps + 1
        self.poll(6 * ps + 2, sMA)
        self.stamp()
        S0, TL, NR, XR_ = GS0, 16 - GS0, 8, 10
        SS, NM, HPK, CSA = 16, 24, 28, 21
        A0 = X + 80
        xreg = lambda s, b: X + 8 * (s % XR_) + 4 * b
        acc = lambda bl, m, b: A0 + 16 * bl + 8 * b + 4 * m
        xl = self.reg_loads([vr(xreg(s, b), 4) for s in range(16) for b in range(2)], [sXLD] * 32,
                            [LY.XB[xi] + s * 2048 + b * 256 for s in range(16) for b in range(2)], sTA, vQ, "x")
        UP = OPT["g_up"]
        a.run_all(self.flat(xl[:UP]))
        a.I("s_barrier")
        a.I(self.getc(NM, aSQ) + "\ns_add_u32 %s, %s, %d" % (sT0, sSLD, LY.SB[xi]))
        g_st = [[("vm", "buffer_load_dwordx4 %s, v%d, %s, %s offen sc1" % (vr(SS, 4), NM, WS, sT0))],
                [("vm", "buffer_load_dwordx4 %s, v%d, %s, %s offen offset:1024 sc1" % (vr(SS + 4, 4), NM, WS, sT0), "st")]]
        early = self.wg_early(ps)
        NS = len(self.ring(ps))
        assert 0 in early and len(set(early)) == len(early) and all(c < NS and self.wg_slot(c, ps) not in WO_SLOT for c in early)
        assert all(self.wg_slot(c, ps) != 7 for c in self.digits("wg_att%d" % ps) + self.digits("wg_h1%d" % ps)) and not set(self.kept()) - {2, 3, 4, 5}
        frags = [(s, bl, m) for s in range(S0) for bl in range(7) for m in range(2)]
        for bl in range(7): frags += [(s, bl, m) for s in range(S0, 16) for m in range(2)] + [(16, bl, 0)]
        sl = Slots()
        first, last, end, xfirst, xlast = {}, {}, {}, {}, {}
        for k, (s, bl, m) in enumerate(frags):
            w = F + 4 * (k % NR)
            for mm, b in ([(m, 0), (m, 1)] if s < 16 else [(0, 0), (1, 0), (0, 1), (1, 1)]):
                pre = [] if k in first else [("wds", ("f", k))]
                d = vr(acc(bl, mm, b), 4)
                if s < 16:
                    if (s, b) not in xfirst: pre.append(("wvm", ("x", 2 * s + b)))
                    n_ = sl.add("v_mfma_f32_16x16x32_bf16 %s, %s, %s, %s" % (d, vr(w, 4), vr(xreg(s, b), 4), "0" if s == 0 else d), pre)
                    xfirst.setdefault((s, b), n_); xlast[(s, b)] = n_
                else:
                    n_ = sl.add("v_mfma_f32_16x16x16_bf16 %s, %s, %s, %s" % (d, vr(w + 2 * mm, 2), vr(NM + 2 * b, 2), d), pre)
                first.setdefault(k, n_); last[k] = n_
            end[bl] = n_
        LA = OPT["g_la"]
        def rd(k):
            off = self.wg_slot(k // 16, ps) * 16384 + (k % 16) * 1024
            d = F + 4 * (k % NR)
            if frags[k][0] < 16:
                return [("ds", "ds_read_b128 %s, %s" % (vr(d, 4), ldsaddr(off)), ("f", k))]
            return [("ds", "ds_read2st64_b32 %s, v%d offset0:%d offset1:%d" % (vr(d + 2 * m, 2), CSA + (off >> 16), (off & 0xffff) // 256 + 2 * m, (off & 0xffff) // 256 + 2 * m + 1),
                     ("f", k) if m else None) for m in range(2)]
        for k in range(LA): a.run_all(rd(k))
        barpos = {}
        for k in range(LA, len(frags)):
            if k % 16 == 0:
                ch = k // 16
                if ch not in early or 2 <= ch <= 16 - NS:
                    p = barpos[ch] = last[k - LA] - 1
                    if ch not in early: sl.pre[p + 1].append(("wvm", ("wg", ch)))
                    sl.after(p, *(([("wvm", ("wg", ch))] if ch not in early else []) + [("i", "s_barrier")]))
            sl.after(last[k - LA], *rd(k))
        wl = [(barpos[ch - NS + 2] + 2 if ch >= NS else 0, g) for ch in range(15) if ch not in early for g in self.wg_chunk(ch, ps)]
        wdue = [barpos[ch] - 8 * (len(self.wg_chunk(ch, ps)) - 1 - n_) for ch in range(15) if ch not in early for n_ in range(len(self.wg_chunk(ch, ps)))]
        wd = self.wds("rest", ps)
        tail0 = xfirst[(S0, 0)]
        xs = []
        for n_ in range(UP, 32):
            s, b = divmod(n_, 2)
            due = min(xfirst[(s, b)], tail0 - (31 - n_) * OPT["g_xsp"])
            xs.append((due, xlast[(s - XR_, b)] + 1 if s >= XR_ else 0, xl[n_]))
        n_ = OPT["g_stat"]
        xs[n_:n_] = [(xs[n_][0], 0, g) for g in g_st]
        P = lambda key: OPT["g_%s%d" % (key, ps)] / 10
        pos, fab, ix, iw, idd, seq = 0.0, 0.0, 0, 0, 0, []
        stop = end[6] - OPT["g_tail"]
        while ix < len(xs) or iw < len(wl) or (idd < len(wd) and pos <= stop):
            xok = ix < len(xs) and xs[ix][1] <= pos
            xu = xok and xs[ix][0] - pos <= P("xlead")
            wok = iw < len(wl) and wl[iw][0] <= pos
            wu = wok and wdue[iw] - pos <= P("wmin")
            free = fab <= pos + P("slack")
            if xu and (not wu or xs[ix][0] <= wdue[iw] - P("wmin") + P("xlead")): pick = "x"
            elif wu: pick = "w"
            elif free and wok and wdue[iw] - pos <= P("wmax"): pick = "w"
            elif free and idd < len(wd) and pos <= stop: pick = "d"
            elif xok and xs[ix][0] - pos <= P("xmax"): pick = "x"
            else:
                pos = int(pos) + 1; continue
            if pick == "x": g = xs[ix][2]; ix += 1
            elif pick == "w": g = wl[iw][1]; iw += 1; fab = max(fab, pos) + P("wcost")
            else: g = wd[idd]; idd += 1; fab = max(fab, pos) + P("dcost")
            behind = (ix < len(xs) and xs[ix][0] - pos < 0.7 * P("xlead")) or (iw < len(wl) and wdue[iw] - pos < 0.7 * P("wmin"))
            seq.append((pos, g)); pos += 2.0 if behind else P("every")
            if g is g_st[1]: stpos = pos
        assert not sl.pace(seq, 0, 0)
        left = wd[idd:]
        st = [[("wvm", "st")]]
        for r_ in (SS, SS + 4):
            for o in (0, 1): st.append([("i", "v_add_f32 v%d, v%d, v%d" % (r_ + o, r_ + o, r_ + 2 + o))])
        for o in (0, 1): st.append([("i", "v_permlane32_swap_b32 v%d, v%d" % (SS + o, SS + 4 + o))])
        for o in (0, 1): st.append([("i", "v_add_f32 v%d, v%d, v%d" % (SS + o, SS + o, SS + 4 + o))])
        for o in (0, 1): st.append([("i", "v_mov_b32 v%d, v%d" % (SS + 2 + o, SS + o))])
        for k in range(3): st.append([("i", "v_add_u32 v%d, %d, v%d" % (CSA + k, k << 16, vFL))])
        for o in (0, 1): st.append([("i", "v_permlane16_swap_b32 v%d, v%d" % (SS + o, SS + 2 + o))])
        for o in (0, 1): st.append([("i", "v_add_f32 v%d, v%d, v%d" % (SS + o, SS + o, SS + 2 + o))])
        st += [[op] for op in self.ln_from_sums(SS, SS + 1, SS + 2)]
        st += [[("i", "v_cvt_pk_bf16_f32 v%d, -v%d, -v%d" % (NM + k, SS, SS))] for k in range(4)]
        st += [[("i", "v_mul_f32 v%d, v%d, v%d" % (SS + 1, SS + 1, SS + 1))],
               [("i", "s_lshr_b32 %s, %s, 3\ns_add_u32 %s, %s, %d" % (sT0, sLW, sT0, sT0, L_RS))],
               [("i", "v_and_or_b32 v%d, v%d, 63, %s" % (SS, vFL, sT0))], [("i", "v_and_b32 v%d, 32, v0" % (SS + 2))],
               [("i", "v_lshl_add_u32 v%d, v%d, 1, v%d" % (SS, SS + 2, SS))]]
        st += [[("i", "v_permlane32_swap_b32 v%d, v%d" % (NM + k, NM + 2 + k))] for k in range(2)] + [[("mark", "nm")]]
        sl.after(tail0 - 2 * LA, ("need", "nm"))
        sl.spread(st, int(stpos) + 40, tail0 - 2 * LA - 10)
        def epi(bl, packed=False):
            g = []
            for b in range(2):
                ga = acc(bl, 0, b)
                g += [[("i", "v_max_f32 v%d, 0, v%d" % (ga + r, ga + r))] for r in range(4)]
                if packed: g += [[("i", "v_pk_mul_f32 %s, %s, %s" % (vr(ga + r, 2), vr(ga + r, 2), vr(ga + 4 + r, 2)))] for r in (0, 2)]
                else: g += [[("i", "v_mul_f32 v%d, v%d, v%d" % (ga + r, ga + r, ga + 4 + r))] for r in range(4)]
                g += [[("i", "v_cvt_pk_bf16_f32 v%d, v%d, v%d" % (HPK + 2 * b + k, ga + 2 * k, ga + 2 * k + 1))] for k in range(2)]
            g.append([("i", "s_add_u32 %s, %s, %s" % ((sTS, sTS, sHSTEP) if bl else (sTS, sHST, LY.HB[ps])))])
            g += [[("i", "v_permlane16_swap_b32 v%d, v%d" % (HPK + k, HPK + 2 + k))] for k in range(2)]
            g.append([("vm", "buffer_store_dwordx4 %s, v%d, %s, %s offen%s" % (vr(HPK, 4), vL16, WS, sTS, " sc1" if str(ps) in OPT["h_wt"] else ""), "h%d" % bl)])
            return g
        for bl in range(6): sl.spread(epi(bl), end[bl] + 1, end[bl + 1] - OPT["g_epi"])
        l_e, g_e = self.check_ops(6 * ps + 3, sMB, SS + 3, "he")
        sl.put("f", end[3] + OPT["g_sig%d" % ps], self.signal_ops(6 * ps + 3, "h2", SS + 4))
        self.pending = self.signal_ops(6 * ps + 4, "h4", SS + 4)
        if OPT["d_sig2"] < 0:
            sl.put("f", end[5] + OPT["g_sig%d" % ps], self.pending); self.pending = None
        nh = OPT["g_h%d" % ps]
        assert S0 >= 10 and nh <= 12
        p = end[6] - OPT["g_chk%d" % ps]
        sl.put("h", p - OPT["g_lat"], l_e)
        if nh:
            sl.put("h", p, g_e); g_e = []
            assert not sl.pace(self.dn_plan(ps)[2][:nh], p + 1, min(4.4, (end[6] - p - 2) / nh), name="h")
        sl.put("g", tail0, self.flat(self.code_touch("L_dn%d" % ps, SS + 3)))
        sl.put("c", max(tail0, barpos[2 + max(c for c in range(14) if self.wg_slot(c, ps) == 6)] + 1), [("ds", "ds_write_b32 v%d, v%d" % (SS, SS + 1))])
        if ps == 0:
            sl.put("c", end[6] - 8, [("i", "s_or_b32 %s, s2, %s" % (sT0, sW)), ("atom", "s_cmp_eq_u32 %s, 0\ns_cselect_b32 %s, %d, 0x%x" % (sT0, sT0, LY.EPOCH, OOB)),
                                     ("i", "v_mov_b32 v%d, %s" % (SS + 2, sNONCE)),
                                     ("vm", "buffer_store_dword v%d, v%d, %s, %s offen" % (SS + 2, vF1, WS, sT0))])
        self.lite(sl, "g", [56 * k for k in range(8)])
        self.report("gu%d" % ps, sl.emit(a))
        a.run_all(self.flat(epi(6, True)))
        self.stamp()
        a.run_all(g_e)
        self.stamp()
        print("  gu: %d loads left for the hand-off" % len(left))
        return nh, left

    def build(self):
        a = self.a
        self.startup()
        for ps in range(2):
            a.I("L_qkv%d:" % ps); self.qkv(ps)
            a.I("L_wo%d:" % ps); self.wo(ps)
            a.I("L_gu%d:" % ps); left = self.gu(ps)
            a.I("L_dn%d:" % ps); self.dn(ps, *left)
        if OPT["stamps"]:
            a.I("s_waitcnt vmcnt(0)\ns_memrealtime s[6:7]\ns_memtime s[80:81]\ns_waitcnt lgkmcnt(0)\nv_writelane_b32 v%d, s6, 63\nv_writelane_b32 v%d, s80, 61" % (vSTAMP, vSTAMP))
            a.I("s_lshl_b32 %s, s2, 10\ns_lshl_b32 %s, %s, 8\ns_add_u32 %s, %s, %s\ns_add_u32 %s, %s, %d" % (sT0, sT1, sW, sT0, sT0, sT1, sT0, sT0, LY.STAMP))
            a.I("buffer_store_dword v%d, v%d, %s, %s offen" % (vSTAMP, vFL, WS, sT0))
        if OPT["diagpad"]:
            a.I("s_mov_b32 s82, %d" % OPT["diagpad"])
            if OPT["diagat"]:
                a.I("s_sub_u32 s83, s%d, s14\ns_lshl_b32 s83, s83, 2" % sST)
                if OPT["diagwg"] >= 0: a.I("s_cmp_eq_u32 s2, %d\ns_cselect_b32 s83, s83, 0" % OPT["diagwg"])
                a.I("s_add_u32 s82, s82, s83")
            a.I("L_pad:\ns_memrealtime s[80:81]\ns_waitcnt lgkmcnt(0)\ns_sub_u32 s80, s80, s14\ns_cmp_lt_u32 s80, s82\ns_cbranch_scc1 L_pad")
        a.I("L_main_done:\ns_endpgm")
        for c in self.cold: a.I(c)
        a.I("L_code_end:")
        return a.lines

def main():
    ml, n2 = hazard_pass(Main().build())
    k = NAME + "_kernel"
    out = ["; Generated by gen/gen.py: one persistent kernel (weight re-layout, then four layers with flag hand-offs). " + " ".join(sys.argv[2:]),
           "; @launch grid=(256,1,1) block=(256,1,1) lds=163840",
           '.amdgcn_target "amdgcn-amd-amdhsa--gfx950"', ".text",
           ".globl %s" % k, ".p2align 8", ".type %s,@function" % k]
    out += [l if l.endswith(":") else "    " + l for l in ml]
    out += ['.section .rodata,"a"', ".p2align 6", """.amdhsa_kernel %s
  .amdhsa_next_free_vgpr 512
  .amdhsa_next_free_sgpr 102
  .amdhsa_accum_offset 256
  .amdhsa_group_segment_fixed_size 0
  .amdhsa_kernarg_size 80
  .amdhsa_user_sgpr_count 2
  .amdhsa_user_sgpr_kernarg_segment_ptr 1
  .amdhsa_system_sgpr_workgroup_id_x 1
  .amdhsa_float_denorm_mode_32 3
.end_amdhsa_kernel""" % k]
    if OPT["rt"]: out = [l.replace("s_memtime", "s_memrealtime") for l in out]
    open(sys.argv[1], "w").write("\n".join(out) + "\n")
    print("instructions: %d ; wait states added: %d" % (len(ml), n2))

main()
```

```python
import sys
from dsl import Asm, Slots, hazard_pass
import layout as LY

NAME = "interleave_layers__sliding_local_dilated__glu_gated_reglu__prompt"
OPT = dict(stamps=0, lite="-", hitw=0,
           q_up=8, q_every=45, q_hf=8, q_chk=6, q_h0=10, a_every=14, k_up=8, g_up=4, g_tail=0, g_la=6, g_xsp=11, g_stat=6,
           g_every0=36, g_xlead0=400, g_wmin0=600, g_wmax0=1000, g_slack0=40, g_wcost0=60, g_dcost0=30,
           g_xmax0=9000, g_xmax1=800, g_every1=46, g_xlead1=400, g_wmin1=560, g_wmax1=700, g_slack1=40, g_wcost1=60, g_dcost1=30,
           wq_late1="-", dn_pre=6, q0_up=6, q0_lead=20, q0_every=20,
           wg_att0="0", wg_h10="-", wg_wo0="1", wg_h20="-",
           wg_att1="01", wg_h11="-", wg_wo1="2", wg_h21="-",
           keep="2345", q_wbar=12, w_pre=20, w_up=8, w_quiet=12, d_sig=16, d_up2=11, d_ramp=8, d_sig2=-1, d_chk=8, g_epi=6, g_sig0=20, g_sig1=16, g_chk0=20, g_chk1=26, g_lat=18, g_h0=4, g_h1=6,
           touch=0, h_wt="0", otouch=1, diagpad=0, diagat=0, diagwg=100, b_pos=1, q0_split=0, q0_n1=6, q0_hf=6, order="ao", rt=0, outf="-", c_early=0, b_spread=0, b_first=0, b_gap=3, pollf="nt", actf="sc1", wf="sc1", cpf=1, predrain=1, q0_b=0, q0_fbch=3, q0_fbs=15, q0_w=6, q0_tail=45, a_quiet=30, wd_q=0, wd_att=0, wd_h1=0, wd_wo=0, wd_h2=0)
for arg in sys.argv[2:]:
    k, v = arg.split("=")
    OPT[k] = v if isinstance(OPT[k], str) else int(v)

def vr(b, n): return "v[%d:%d]" % (b, b + n - 1)
def ar(b, n): return "a[%d:%d]" % (b, b + n - 1)
def magic(d): return (1 << 32) // d + 1
OOB = 0x40000000
GS0 = LY.GS0

WS, XIN, OUT = "s[8:11]", "s[12:15]", "s[16:19]"
sW, sJ, sR, sC, sG, sN, sNONCE, sSLOW = ("s%d" % i for i in range(20, 28))
sGB, sXLD, sXST, sOST, sXR, sHST, sSLD, sWQ, sWG, sWO, sWD, sLW = ("s%d" % i for i in range(28, 40))
sMA, sMB = "s[40:41]", "s[42:43]"
sFLG, sFLW, sHALO, sHFL, sTAB, sSST, sONE, sHDST, sHDFL, sP = ("s%d" % i for i in range(44, 54))
sMH = "s[54:55]"
sTA, sTW, sTD, sTS, sT0, sT1, sT2, sSPIN = ("s%d" % i for i in range(56, 64))
sHLD = ["s%d" % i for i in range(68, 72)]
sXW = ["s%d" % i for i in range(72, 75)]
sFBO, sB0, sB1, sB2, sB3 = "s75", "s76", "s77", "s78", "s79"
SRC_A, SRC_G, SRC_U, SRC_D = 80, 84, 88, 92
sLW2, sLW4, sWQ4, sWG4 = "s96", "s97", "s98", "s99"
sST = 100
sHALO2 = sP
sNH, sCPO, sPC, sSLOW2 = "s12", "s13", "s[4:5]", "s[0:1]"
sOL, sHSTEP, sMC = "s64", "s65", "s[66:67]"
vL, vL16, vL16b, vL16c, vQ, vF1, vFL, vSTAMP = 0, 1, 2, 3, 4, 5, 6, 7
XRES = 8
PA, PB = 22, 23
X, ACC, F = 32, 160, 224
aROW, aST, aSQ, aSH, aSG, aHX, aHWR, aHWS, aHST, aHSS, aFB, aLINE, aTO, aTH = range(224, 238)
aBC, aBP, aBP0, aMC = 240, 244, 248, 252
L_HALO, L_RS, L_KV, L_TAB, L_FMT = 102400, 110592, 114688, 124928, 131072
L_SCR_DN = 114688
WO_SLOT = (8, 9, 0, 1)
DN_S = ((2, 3, 4, 9, 10, 11), (1, 5, 8, 12), (0, 6, 7, 13))
DN_ORD = sum(DN_S, ())
NEG = "0xf149f2ca"

def ldsaddr(off):
    return "v%d offset:%d" % ((vL16, vL16b, vL16c)[off >> 16], off & 0xffff)

def isvm(g): return any(op[0] == "vm" for op in g)

class Main:
    def __init__(self):
        self.a = Asm()
        self.nstamp = 0
        self.cold = []
        self.nlite = 0
        self.wd = None
        self.ncall = 0

    def stamp(self, key=None):
        self.ncall += 1
        if OPT["diagpad"] and OPT["diagat"] == self.ncall:
            self.a.I("s_memrealtime s[%d:%d]" % (sST, sST + 1))
            self.a.ds_drain(force=True)
        if OPT["stamps"] != 1 or (key is not None and OPT["lite"] != key):
            return
        a = self.a
        a.I("s_memtime s[%d:%d]" % (sST, sST + 1))
        a.ds_drain(force=True)
        for k in range(self.nlite):
            a.I("v_writelane_b32 v%d, s%d, %d" % (vSTAMP, 80 + 2 * k, self.nstamp))
            self.nstamp += 1
        self.nlite = 0
        a.I("v_writelane_b32 v%d, s%d, %d" % (vSTAMP, sST, self.nstamp))
        self.nstamp += 1

    def lite(self, sl, key, slots):
        if OPT["lite"] != key:
            return
        for i in slots[:8]:
            sl.after(i, ("i", "s_memtime s[%d:%d]" % (80 + 2 * self.nlite, 81 + 2 * self.nlite)))
            self.nlite += 1

    def report(self, name, r):
        print("  %s: cycles over budget %d, ops left after the loop %d" % ((name,) + r))

    def getc(self, v, acc): return "v_accvgpr_read_b32 v%d, a%d" % (v, acc)
    def flat(self, groups): return [op for g in groups for op in g]
    def digits(self, key): return tuple(int(c, 16) for c in str(OPT[key]) if c != "-")
    def wgs(self, where, ps): return [g for i in self.digits("wg_%s%d" % (where, ps)) for g in self.wg_chunk(i, ps)]
    def wg_early(self, ps): return sum((self.digits("wg_%s%d" % (w, ps)) for w in ("att", "h1", "wo", "h2")), ())
    def wq_late(self, ps): return tuple(range(7)) if ps == 0 else self.digits("wq_late1")

    def srd(self, base, lo, hi, nbytes):
        self.a.I("s_mov_b32 s%d, %s\ns_and_b32 s%d, %s, 0xffff\ns_mov_b32 s%d, %s\ns_mov_b32 s%d, 0x20000" %
                 (base, lo, base + 1, hi, base + 2, nbytes, base + 3))

    def lin(self, dst, base, terms):
        first = True
        for reg, mul in terms:
            self.a.I("s_mul_i32 %s, %s, %d\ns_add_u32 %s, %s, %s" % (sT2, reg, mul, dst, base if first else dst, sT2))
            first = False

    def sdivmod(self, q, r, x, d):
        self.a.I("s_mul_hi_u32 %s, %s, 0x%x\ns_mul_i32 %s, %s, %d\ns_sub_u32 %s, %s, %s" % (q, x, magic(d), sT2, q, d, r, x, sT2))

    def hi_lo(self, dst, src, t):
        return ["v_cvt_pk_bf16_f32 v%d, v%d, v%d" % (dst, src, src), "v_lshlrev_b32 v%d, 16, v%d" % (t, dst),
                "v_sub_f32 v%d, v%d, v%d" % (t, src, t), "v_cvt_pk_bf16_f32 v%d, v%d, v%d" % (dst, src, t)]

    def weave(self, body, groups, first, every):
        k = 0
        for n_, op in enumerate(body):
            if n_ >= first and (n_ - first) % every == 0:
                while k < len(groups):
                    g = groups[k]; k += 1
                    self.a.run_all(g)
                    if isvm(g): break
            self.a.run(op)
        return groups[k:]

    def signal(self, h, wait=None, halo_pass=None):
        a = self.a
        slow, done = a.label("slow"), a.label("sig")
        a.I("s_add_u32 %s, %s, %d\nv_mov_b32 v30, %s" % (sNH, sNONCE, h, sNH))
        if halo_pass is not None:
            h1, b1, h2, b2 = a.label("halo"), a.label("hback"), a.label("halo"), a.label("hback")
            n = a.vm_n - max(a.vm_tag[wait], a.vm_done)
            a.I("s_cmp_lg_u32 %s, 0x%x\ns_cbranch_scc1 %s" % (sHDST, OOB, h1))
            st = "\n".join("buffer_store_dwordx4 %s, v24, %s, %s offen offset:%d sc1" % (vr(XRES + 4 * e, 4), WS, sTS, e * 512) for e in range(2))
            self.cold.append("%s:\n%s\n%s\ns_add_u32 %s, %s, %d\n%s\nbuffer_store_dword v26, v25, %s, %s offen sc1\ns_waitcnt vmcnt(%d)\ns_branch %s" %
                             (h1, self.getc(24, aHST), self.getc(25, aHSS), sTS, sHDST, LY.HX[halo_pass], st, WS, sTS, n + 3, b1))
            self.cold.append("%s:\ns_add_u32 %s, %s, %d\nv_mov_b32 v24, %s\n%s\ns_waitcnt vmcnt(1)\nbuffer_store_dword v24, v25, %s, %s offen sc1\ns_branch %s" %
                             (h2, sTS, sHDFL, halo_pass * 16384, sNONCE, self.getc(25, aLINE), WS, sTS, b2))
            a.vm_wait(wait)
            a.I("%s:\ns_cmp_lg_u32 %s, 0" % (b1, sSLOW))
        else:
            a.I("s_cmp_lg_u32 %s, 0" % sSLOW)
            if wait is None: a.vm_drain()
            else: a.vm_wait(wait)
        a.I("s_cbranch_scc1 %s" % slow)
        a.vm("buffer_store_dword v30, v%d, %s, %s offen" % (vF1, WS, sFLW))
        a.I("%s:" % done)
        self.cold.append("%s:\nbuffer_wbl2 sc1\ns_waitcnt vmcnt(0)\nbuffer_store_dword v30, v%d, %s, %s offen sc1\ns_branch %s" % (slow, vF1, WS, sFLW, done))
        self.sent = h
        if halo_pass is not None:
            a.I("s_cmp_lg_u32 %s, 0x%x\ns_cbranch_scc1 %s\n%s:" % (sHDST, OOB, h2, b2))

    def poll(self, h, mask, also=None, setup=None):
        a = self.a
        a.forget()
        assert self.sent == h
        if setup: setup()
        def loop(name, fl):
            ld = "buffer_load_dword v%d, v%d, %s, %s offen %s" % (PA, vFL, WS, sFLG, fl)
            ts = "v_subrev_u32 v%d, %s, v%d\nv_cmp_lt_u32 vcc, 15, v%d\ns_and_b64 vcc, vcc, %s" % (PA, sNH, PA, PA, mask)
            if also is not None:
                ld += "\nbuffer_load_dword v%d, v%d, %s, 0 offen sc1" % (PB, also, WS)
                ts = "v_cmp_ne_u32 s[60:61], %s, v%d\n%s\ns_or_b64 vcc, vcc, s[60:61]" % (sNONCE, PB, ts)
            return "%s:\n%s\ns_sub_u32 %s, %s, 1\ns_cbranch_scc1 L_main_done\ns_waitcnt vmcnt(0)\n%s\ns_cbranch_scc1 %s" % (name, ld, sSPIN, sSPIN, ts, name)
        far, ok = a.label("far"), a.label("ok")
        a.I("s_mov_b32 %s, 0x40000\ns_cmp_lg_u32 %s, 0\ns_cbranch_scc1 %s" % (sSPIN, sSLOW, far))
        a.I(loop(a.label("poll"), OPT["pollf"]) + "\n%s:" % ok)
        a.vm_done = a.vm_n
        self.cold.append(loop(far, "sc1") + "\nbuffer_inv sc1\ns_waitcnt vmcnt(0)\ns_branch %s" % ok)

    def signal_ops(self, h, wait, reg):
        a = self.a
        slow, done = a.label("slow"), a.label("sig")
        self.cold.append("%s:\nbuffer_wbl2 sc1\ns_waitcnt vmcnt(0)\nbuffer_store_dword v%d, v%d, %s, %s offen sc1\ns_branch %s" % (slow, reg, vF1, WS, sFLW, done))
        return [("i", "s_add_u32 %s, %s, %d" % (sNH, sNONCE, h)), ("i", "v_mov_b32 v%d, %s" % (reg, sNH)), ("wvm", wait),
                ("vm", "s_cmp_lg_u32 %s, 0\ns_cbranch_scc1 %s\nbuffer_store_dword v%d, v%d, %s, %s offen\n%s:" % (sSLOW, slow, reg, vF1, WS, sFLW, done))]

    def check_ops(self, h, mask, reg, tag):
        a = self.a
        spin, back = a.label("cspin"), a.label("cback")
        ld = lambda fl: "buffer_load_dword v%d, v%d, %s, %s offen %s" % (reg, vFL, WS, sFLG, fl)
        t = ["v_subrev_u32 v%d, s3, v%d" % (reg, reg), "v_cmp_lt_u32 vcc, 15, v%d" % reg, "s_and_b64 vcc, vcc, %s" % mask]
        loop = lambda name, fl: "%s:\n%s\ns_sub_u32 %s, %s, 1\ns_cbranch_scc1 L_main_done\ns_waitcnt vmcnt(0)\n%s\ns_cbranch_scc1 %s" % (name, ld(fl), sSPIN, sSPIN, "\n".join(t), name)
        self.cold.append("%s:\ns_mov_b32 %s, 0x40000\ns_cmp_lg_u32 %s, 0\ns_cbranch_scc1 %s_f\n%s\ns_branch %s\n%s\nbuffer_inv sc1\ns_waitcnt vmcnt(0)\ns_branch %s" %
                         (spin, sSPIN, sSLOW, spin, loop(spin + "_n", OPT["pollf"]), back, loop(spin + "_f", "sc1"), back))
        return [("vm", ld(OPT["pollf"]), tag)], [("i", "s_add_u32 s3, %s, %d" % (sNONCE, h)), ("wvm", tag), ("i", t[0]), ("i", t[1]),
                                                ("atom", "%s\ns_or_b64 vcc, vcc, %s\ns_cbranch_scc1 %s\n%s:" % (t[2], sSLOW2, spin, back))]

    def late_check(self, load, reg, mask, tag):
        a = self.a
        spin, back = a.label("lspin"), a.label("lback")
        cmp_, and_ = "v_cmp_ne_u32 vcc, %s, v%d" % (sNONCE, reg), "s_and_b64 vcc, vcc, %s" % mask
        self.cold.append("%s:\ns_mov_b32 %s, 0x40000\n%s_l:\n%s\ns_sub_u32 %s, %s, 1\ns_cbranch_scc1 L_main_done\ns_waitcnt vmcnt(0)\n%s\n%s\ns_cbranch_scc1 %s_l\ns_branch %s"
                         % (spin, sSPIN, spin, load, sSPIN, sSPIN, cmp_, and_, spin, back))
        return [("vm", load, tag)], [("wvm", tag), ("i", cmp_), ("atom", and_ + "\ns_cbranch_scc1 %s\n%s:" % (spin, back))]

    def dma_chunk(self, sbase, goff, loff, n, tag, sc=""):
        sw = {1: sLW, 2: sLW2, 4: sLW4}[n]
        setup = [("set", sTW, "s_add_u32 %s, %s, %d" % (sTW, sbase, goff)), ("set", "m0", "s_add_u32 m0, %s, %d" % (sw, loff))]
        return [setup + [("vm", "buffer_load_dwordx4 v%d, %s, %s offen offset:%d%s lds" % (vL16, WS, sTW, k * 1024, sc), tag if k == n - 1 else None)]
                for k in range(n)]

    def wq_chunk(self, i): return self.dma_chunk(sWQ4 if i < 6 else sWQ, i * 16384, i * 16384, 4 if i < 6 else 1, ("wq", i), " " + OPT["wf"].strip("-"))
    def kept(self): return self.digits("keep")
    def ring(self, ps):
        return [k for k in (2, 3, 4, 5, 6, 7, 8, 9, 0, 1) if ps or k not in self.kept()]
    def wg_slot(self, i, ps): return self.ring(ps)[i % len(self.ring(ps))]
    def wo_chunk(self, i): return self.dma_chunk(sWO, i * 16384, WO_SLOT[i] * 16384, 4, ("wo", i), " " + OPT["wf"].strip("-"))
    def wg_chunk(self, i, ps): return self.dma_chunk(sWG4 if i < 14 else sWG, i * 16384, self.wg_slot(i, ps) * 16384, 4 if i < 14 else 2, ("wg", i), " " + OPT["wf"].strip("-"))

    def reg_loads(self, dsts, bases, offs, stmp, vaddr, tagbase):
        ops, cur = [], None
        for k, (d, sb, off) in enumerate(zip(dsts, bases, offs)):
            if cur is None or cur[0] != sb or not (0 <= off - cur[1] < 4096):
                cur = (sb, off)
            ops.append([("set", stmp, "s_add_u32 %s, %s, %d" % (stmp, sb, cur[1])),
                        ("vm", "buffer_load_dwordx4 %s, v%d, %s, %s offen offset:%d %s" % (d, vaddr, WS, stmp, off - cur[1], OPT["wf" if tagbase[0] == "w" else "actf"].strip("-")), (tagbase, k))])
        return ops

    def touch(self, acc, sbase, off, tmp):
        return [[("i", self.getc(tmp, acc) + "\ns_add_u32 %s, %s, %d" % (sT1, sbase, off)),
                 ("vm", "buffer_load_dword a255, v%d, %s, %s offen sc1" % (tmp, WS, sT1))]]

    def code_touch(self, label, tmp, n=1):
        if not OPT["cpf"]: return []
        return [[("i", "s_add_u32 s15, %s, %s-L_pc+%d" % (sCPO, label, 16384 * k)), ("i", "s_min_u32 s15, s15, L_code_end-L_pc-4"),
                 ("i", "v_mov_b32 v%d, s15" % tmp), ("vm", "global_load_dword a255, v%d, %s" % (tmp, sPC))] for k in range(n)]

    def ln_from_sums(self, s1, s2, t):
        return [("i", x) for x in (
            "v_mul_f32 v%d, 0x3b000000, v%d" % (s1, s1),
            "v_mul_f32 v%d, v%d, v%d" % (t, s1, s1),
            "v_mul_f32 v%d, 0x3b000000, v%d" % (s2, s2),
            "v_sub_f32 v%d, v%d, v%d" % (s2, s2, t),
            "v_max_f32 v%d, 0, v%d" % (s2, s2),
            "v_cvt_pk_bf16_f32 v%d, v%d, v%d" % (s2, s2, s2),
            "v_lshlrev_b32 v%d, 16, v%d" % (s2, s2),
            "v_add_f32 v%d, 0x3727c5ac, v%d" % (s2, s2),
            "v_cvt_pk_bf16_f32 v%d, v%d, v%d" % (s2, s2, s2),
            "v_lshlrev_b32 v%d, 16, v%d" % (s2, s2),
            "v_sqrt_f32 v%d, v%d" % (s2, s2),
            "v_cvt_pk_bf16_f32 v%d, v%d, v%d" % (s2, s2, s2),
            "v_lshlrev_b32 v%d, 16, v%d" % (s2, s2),
            "v_rcp_f32 v%d, v%d" % (s2, s2))]

    def publish(self, xi):
        a = self.a
        S1, S2, S3, S4, AD = 26, 27, 28, 29, 25
        a.I("s_add_u32 %s, %s, %d" % (sTS, sXST, LY.XB[xi]))
        for e in range(2):
            a.vm("buffer_store_dwordx4 %s, v%d, %s, %s offen offset:%d%s" % (vr(XRES + 4 * e, 4), vQ, WS, sTS, e * 2048, " sc1" if xi == 0 else ""))
        for k in range(4):
            for d, p, o in ((S1, XRES + k, sONE), (S2, XRES + k, None), (S3, XRES + 4 + k, sONE), (S4, XRES + 4 + k, None)):
                a.I("v_dot2_f32_bf16 v%d, v%d, %s, %s" % (d, p, o or "v%d" % p, "v%d" % d if k else "0"))
        a.I(self.getc(AD, aST) + "\ns_add_u32 %s, %s, %d" % (sTS, sSST, LY.SB[xi]))
        a.I("v_add_f32 v%d, v%d, v%d\nv_add_f32 v%d, v%d, v%d" % (S1, S1, S3, S2, S2, S4))
        a.I("v_permlane32_swap_b32 v%d, v%d\nv_add_f32 v%d, v%d, v%d\nv_mov_b32 v%d, v%d" % (S1, S2, S1, S1, S2, S2, S1))
        a.I("v_permlane16_swap_b32 v%d, v%d\nv_add_f32 v%d, v%d, v%d" % (S1, S2, S1, S1, S2))
        a.vm("buffer_store_dword v%d, v%d, %s, %s offen" % (S1, AD, WS, sTS), "pub")

    def startup(self):
        a = self.a
        lin = self.lin
        t8, kc, tok, g, hh, t32, u0, u1, rr, cc, q16, vA, vR, vB, vD, TA0, TA1, TD, TG, CSW, XA, XV, FAV, LINE = range(F, F + 24)
        ONES = F + 24
        def put(acc): a.I("v_accvgpr_write_b32 a%d, v%d" % (acc, u1))
        a.I("%s_kernel:" % NAME)
        a.I("s_cmp_ge_u32 s2, 256\ns_cbranch_scc1 L_main_done")
        a.I("s_load_dwordx16 s[64:79], s[0:1], 0\ns_load_dwordx2 s[4:5], s[0:1], 72")
        if OPT["stamps"] or OPT["diagpad"]:
            a.I("s_memrealtime s[98:99]")
        if OPT["stamps"]:
            a.I("s_memtime s[%d:%d]" % (sST, sST + 1))
        a.I("s_getpc_b64 s[56:57]\nL_pc:\ns_lshr_b32 s58, s2, 3\ns_lshl_b32 s58, s58, 11")
        a.I("v_lshrrev_b32 v16, 6, v0\nv_lshrrev_b32 v17, 4, v0\nv_lshlrev_b32 v17, 7, v17\nv_add_u32 v17, s58, v17")
        a.I("v_min_u32 v17, L_code_end-L_pc-4, v17\nv_and_b32 v0, 63, v0\nv_readfirstlane_b32 %s, v16" % sW)
        a.vm("global_load_dword a255, v17, s[56:57]")
        a.I("s_and_b32 %s, s2, 7\ns_bfe_u32 %s, s2, 0x40003\ns_lshr_b32 %s, s2, 7" % (sN, sJ, sP))
        a.I("s_lshr_b32 %s, %s, 3\ns_and_b32 %s, %s, 7" % (sR, sJ, sC, sJ))
        a.I("v_and_b32 v%d, 7, v0\nv_lshrrev_b32 v%d, 3, v0\nv_and_b32 v%d, 15, v0\nv_lshrrev_b32 v%d, 4, v0" % (t8, kc, tok, g))
        cuA, kkA, stA, cuG, kkG, sSG, sSD, kkD = "s28", "s29", "s30", "s32", "s33", "s6", "s7", "s36"
        self.sdivmod(kkA, cuA, "s2", 24)
        a.I("s_sub_u32 %s, s2, 192\ns_lshr_b32 %s, %s, 3" % (sT0, sT0, sT0))
        a.I("s_cmp_lt_u32 s2, 192\ns_cselect_b32 %s, %s, %s\ns_cselect_b32 %s, %s, %s\ns_cselect_b32 %s, 3, 1\ns_lshl_b32 %s, %s, 10" %
            (cuA, cuA, sN, kkA, kkA, sT0, stA, stA, stA))
        a.I("v_lshlrev_b32 v%d, 4, v%d\nv_mad_u32_u24 v%d, v%d, %s, v%d" % (u0, t8, vA, kc, stA, u0))
        a.I("s_lshl_b32 %s, %s, 2\ns_add_u32 %s, %s, %s\ns_lshl_b32 %s, %s, 4\ns_mul_i32 %s, %s, %s" % (sT0, kkA, sT0, sT0, sW, sT0, sT0, sT0, sT0, stA))
        a.I("s_lshl_b32 %s, %s, 7\ns_add_u32 %s, %s, %s\ns_lshl_b32 %s, %s, 3\ns_add_u32 %s, %s, %s\ns_sub_u32 %s, %s, 1024" %
            (sT1, cuA, sT0, sT0, sT1, sT1, stA, sT1, sT1, sT0, sT1, sT1))
        a.I("s_lshl_b32 %s, %s, 11\ns_add_u32 m0, %s, %d" % (sLW2, sW, sLW2, L_FMT))
        a.I("s_lshl_b32 s31, %s, 1\ns_add_u32 s31, s31, %s\ns_lshl_b32 s31, s31, 2\ns_add_u32 s31, s31, %s\ns_lshl_b32 s31, s31, 5" % (sN, sR, sW))
        a.I("s_add_u32 s31, s31, %s\ns_lshl_b32 s31, s31, 3\ns_add_u32 s31, s31, %s\ns_lshl_b32 s31, s31, 7" % (sP, sC))
        a.I("v_lshlrev_b32 v%d, 11, v%d\nv_lshl_add_u32 v%d, v%d, 4, v%d\nv_add_u32 v%d, s31, v%d" % (vR, tok, vR, g, vR, vR, vR))
        a.I("s_waitcnt lgkmcnt(0)")
        a.I("s_load_dword %s, s[4:5], %d" % (sNONCE, LY.EPOCH))
        a.I("s_cmp_lt_u32 s2, 192\ns_cselect_b32 s%d, s66, s68\ns_cselect_b32 s%d, s67, s69\ns_and_b32 s%d, s%d, 0xffff" % (SRC_A, SRC_A + 1, SRC_A + 1, SRC_A + 1))
        a.I("s_lshl_b32 s%d, %s, 9\ns_mov_b32 s%d, 0x20000" % (SRC_A + 2, stA, SRC_A + 3))
        sa = "s[%d:%d]" % (SRC_A, SRC_A + 3)
        a.vm("buffer_load_dwordx4 v%d, %s, %s offen lds" % (vA, sa, sT0))
        a.vm("buffer_load_dwordx4 v%d, %s, %s offen offset:1024 lds" % (vA, sa, sT1), "fa")
        self.srd(12, "s64", "s65", 2048 * 1024)
        a.vm("buffer_load_dwordx4 %s, v%d, %s, 0 offen" % (vr(XRES, 4), vR, XIN))
        a.vm("buffer_load_dwordx4 %s, v%d, %s, 0 offen offset:64" % (vr(XRES + 4, 4), vR, XIN), "x")
        if OPT["stamps"]:
            a.I("v_mov_b32 v%d, 0\nv_writelane_b32 v%d, s98, 62\nv_writelane_b32 v%d, s%d, 0" % (vSTAMP, vSTAMP, vSTAMP, sST))
            self.nstamp = 1
        if OPT["diagpad"]: a.I("s_mov_b32 s14, s98")
        self.stamp("p")
        self.srd(8, "s4", "s5", LY.WS_USED)
        a.I("s_lshl_b32 %s, %s, 1\ns_add_u32 %s, %s, %s" % (sG, sN, sG, sG, sP))
        lin(sFLG, str(LY.FL), [(sG, 256)])
        lin(sFLW, sFLG, [(sJ, 16), (sW, 4)])
        lin(sSST, str(LY.ACT), [(sG, LY.ACT_STRIDE), (sR, 4096), (sC, 8), (sW, 1024)])
        lin(sTS, sSST, [(sC, 120)])
        a.I("s_add_u32 %s, %s, %d\nv_mov_b32 v%d, %s\nv_mov_b32 v%d, %s\nv_cmp_gt_u32 vcc, 32, v0\nv_cndmask_b32 v%d, v%d, v%d, vcc" %
            (sTS, sTS, LY.SB[0], u1, sTS, XA, sFLW, XA, u1, XA))
        a.vm("buffer_load_dword a255, v%d, %s, 0 offen sc1" % (XA, WS))
        self.sdivmod(kkG, cuG, "s2", 28)
        a.I("v_mul_u32_u24 v%d, 3584, v%d\nv_add_u32 v%d, v%d, v%d\nv_lshl_add_u32 v%d, v%d, 10, v%d" % (vB, kc, vB, vB, u0, vD, kc, u0))
        a.I("s_lshr_b32 %s, s2, 3" % kkD)
        lin(sSG, "0", [(kkG, 64 * 3584), (sW, 16 * 3584), (cuG, 128)])
        lin(sSD, "0", [(kkD, 65536), (sW, 16384), (sN, 128)])
        self.srd(SRC_G, "s72", "s73", 512 * 3584)
        self.srd(SRC_U, "s74", "s75", 512 * 3584)
        self.srd(SRC_D, "s76", "s77", 1792 * 1024)
        def b_loads():
            for srdn, so, va, stride, lo in ((SRC_G, sSG, vB, 3584, 8192), (SRC_U, sSG, vB, 3584, 16384), (SRC_D, sSD, vD, 1024, 24576)):
                a.I("s_add_u32 m0, %s, %d\ns_add_u32 %s, %s, %d" % (sLW2, L_FMT + lo, sT0, so, 8 * stride - 1024))
                a.vm("buffer_load_dwordx4 v%d, s[%d:%d], %s offen lds" % (va, srdn, srdn + 3, so))
                a.vm("buffer_load_dwordx4 v%d, s[%d:%d], %s offen offset:1024 lds" % (va, srdn, srdn + 3, sT0), ("fb", lo))
        if OPT["b_pos"] == 0: b_loads()
        self.srd(16, "s78", "s79", 2048 * 1024)
        a.I("v_accvgpr_write_b32 a%d, v%d\nv_lshlrev_b32 v%d, 4, v0" % (aROW, vR, vL16))
        dA, dA2, dCS = "s3", "s0", "s1"
        a.I("s_and_b32 %s, %s, 7\ns_lshl_b32 %s, %s, 1\ns_lshr_b32 %s, %s, 1\ns_add_u32 %s, %s, %s" % (sT0, cuA, sT0, sT0, sT1, sW, sT0, sT0, sT1))
        a.I("s_mul_i32 %s, %s, %d\ns_add_u32 %s, %s, %d" % (sT0, sT0, LY.WQ_STRIDE, sT0, sT0, LY.WQ))
        a.I("s_lshr_b32 %s, %s, 3\ns_lshl_b32 %s, %s, 1\ns_and_b32 %s, %s, 1\ns_add_u32 %s, %s, %s" % (sT1, cuA, sT1, sT1, sT2, sW, sT1, sT1, sT2))
        lin(dA, sT0, [(kkA, 12288), (sT1, 1024)])
        lin(dCS, sT0, [(kkA, 64), (sT1, 512)])
        a.I("s_add_u32 %s, %s, 98304" % (dCS, dCS))
        lin(sT0, str(LY.WO), [(cuA, LY.WO_STRIDE), (kkA, 8192), (sW, 1024)])
        a.I("s_cmp_lt_u32 s2, 192\ns_cselect_b32 %s, %s, %s\ns_cselect_b32 %s, %s, 0x%x\ns_cselect_b32 %s, 6, 4\ns_cselect_b64 vcc, -1, 0" %
            (dA, dA, sT0, dCS, dCS, OOB, dA2))
        a.I("s_lshl_b32 %s, %s, 10\ns_add_u32 %s, %s, %s" % (dA2, dA2, dA2, dA2, dA))
        a.I("v_bfe_u32 v%d, v0, 2, 2\nv_and_b32 v%d, 3, v0\nv_bfe_u32 v%d, v0, 4, 1\nv_lshrrev_b32 v%d, 5, v0\nv_and_b32 v%d, 31, v0" % (rr, cc, q16, hh, t32))
        a.I("v_lshl_add_u32 v%d, v%d, 3, v%d\nv_lshlrev_b32 v%d, 7, v%d\nv_lshl_add_u32 v%d, v%d, 2, v%d\nv_lshlrev_b32 v%d, 7, v%d" % (u0, g, rr, u0, u0, u1, g, rr, u1, u1))
        a.I("s_lshr_b32 %s, %s, 1\ns_lshl_b32 %s, %s, 6\ns_and_b32 %s, %s, 1\ns_lshl_b32 %s, %s, 3\ns_add_u32 %s, %s, %s\ns_add_u32 %s, %s, %d" %
            (sT0, sW, sT0, sT0, sT1, sW, sT1, sT1, sT0, sT0, sT1, sT0, sT0, L_FMT))
        a.I("v_lshl_add_u32 v%d, v%d, 4, %s\nv_add_u32 v%d, v%d, v%d\nv_add_u32 v%d, v%d, v%d" % (TA1, cc, sT0, TD, TA1, u0, u1, u1, TA1))
        a.I("s_lshl_b32 %s, %s, 5\ns_add_u32 %s, %s, %d\nv_lshl_add_u32 v%d, v%d, 3, %s\nv_add_u32 v%d, v%d, v%d" % (sT0, sW, sT0, sT0, L_FMT, TA0, cc, sT0, u0, u0, TA0))
        a.I("v_mov_b32 v%d, v%d" % (TG, u0))
        a.I("v_cndmask_b32 v%d, v%d, v%d, vcc\nv_add_u32 v%d, 512, v%d\nv_add_u32 v%d, 2048, v%d\nv_cndmask_b32 v%d, v%d, v%d, vcc" % (TA0, u1, u0, u0, u0, u1, u1, TA1, u1, u0))
        for k in range(4): a.I("v_mov_b32 v%d, 0x3f803f80" % (ONES + k))
        a.I("v_lshlrev_b32 v%d, 2, v%d\nv_lshl_add_u32 v%d, v%d, 28, v%d" % (CSW, tok, CSW, g, CSW))
        a.I("s_mov_b32 %s, 0\ns_mov_b32 %s, 0x3f803f80" % (sSLOW, sONE))
        a.I("v_cmp_ne_u32 vcc, 0, v0\nv_mov_b32 v%d, 0x%x\nv_lshlrev_b32 v%d, 2, v0\nv_cndmask_b32 v%d, 0, v%d, vcc" % (vF1, OOB, vFL, vF1, vF1))
        a.I("s_lshl_b32 %s, %s, %d\ns_add_u32 %s, %s, 0x%x" % (sGB, sG, LY.ACT_SHIFT, sGB, sGB, LY.ACT))
        lin(sXLD, sGB, [(sW, 32768)])
        a.I("s_lshr_b32 %s, %s, 1\ns_and_b32 %s, %s, 1" % (sT0, sW, sT1, sW))
        lin(sXST, sGB, [(sR, 65536), (sC, 4096), (sT0, 32768), (sT1, 256)])
        lin(sOST, sXLD, [(sJ, 2048)])
        lin(sT0, str(LY.XF), [(sG, 2048)])
        a.I("v_lshl_add_u32 v%d, v%d, 7, %s\nv_lshl_add_u32 v%d, v%d, 30, v%d\nv_accvgpr_write_b32 a%d, v%d" % (XA, tok, sT0, LINE, hh, vFL, aLINE, LINE))
        a.I("v_lshlrev_b32 v%d, 4, v%d\nv_lshl_add_u32 v%d, v%d, 9, v%d" % (u0, tok, vQ, g, u0))
        a.I("v_lshlrev_b32 v%d, 6, v%d\nv_lshl_add_u32 v%d, v%d, 2, v%d\nv_lshl_add_u32 v%d, v%d, 30, v%d" % (u1, tok, u1, hh, u1, u1, q16, u1)); put(aST)
        def die_id():
            lin(sT0, str(LY.XF), [(sG, 2048), (sJ, 128)])
            a.I("s_cmp_eq_u32 %s, 0\ns_cselect_b32 %s, %s, 0x%x\ns_getreg_b32 %s, hwreg(HW_REG_XCC_ID, 0, 4)" % (sW, sT0, sT0, OOB, sT1))
            a.I("s_waitcnt lgkmcnt(0)\ns_add_u32 %s, %s, 0x9e3779b1\ns_xor_b32 %s, %s, %s\nv_mov_b32 v%d, %s" % (sNONCE, sNONCE, sT1, sT1, sNONCE, XV, sT1))
            a.vm("buffer_store_dword v%d, v%d, %s, %s offen sc1" % (XV, LINE, WS, sT0))
            self.stamp("p")
        if OPT["c_early"] < 2: die_id()
        def constants():
            lin(sB3, str(LY.WD), [(sN, LY.WD_STRIDE), (kkD, 8192), (sW, 1024)])
            a.I("s_lshl_b32 %s, %s, 2\ns_add_u32 %s, %s, %s" % (cuG, cuG, cuG, cuG, sW))
            self.sdivmod(sT0, sT1, cuG, 7)
            lin(sB2, str(LY.WG), [(sT0, LY.WG_STRIDE)])
            a.I("s_sub_u32 %s, 6, %s\ns_bitcmp1_b32 %s, 0\ns_cselect_b32 %s, %s, %s" % (sT2, sT1, sT0, sT1, sT1, sT2))
            S0, TL = GS0, 16 - GS0
            lin(sB0, sB2, [(kkG, 28 * 1024), (sT1, 2048)])
            lin(sB2, sB2, [(sT1, (2 * TL + 1) * 1024)])
            lin(sT0, sB2, [(kkG, 4096)])
            a.I("s_add_u32 %s, %s, %d\ns_cmp_lt_u32 %s, %d\ns_cselect_b32 %s, %s, %s\ns_cselect_b32 %s, 14, 2\ns_lshl_b32 %s, %s, 10" %
                (sT0, sT0, 12 * S0 * 1024, kkG, S0 // 2, sB0, sB0, sT0, sB1, sB1, sB1))
            lin(sB2, sB2, [(kkG, 64)])
            a.I("s_add_u32 %s, %s, %d" % (sB2, sB2, (14 * S0 + 2 * TL) * 1024))
            a.I("s_cmp_lt_u32 s2, 224")
            for r_ in (sB0, sB2, sB3): a.I("s_cselect_b32 %s, %s, 0x%x" % (r_, r_, OOB))
            lin(sHFL, str(LY.HFL), [(sG, 1024)])
            lin(sHDFL, sHFL, [(sC, 128)])
            lin(sFBO, str(LY.FA), [("s2", 128)])
            a.I("s_add_u32 %s, %s, 2048\ns_add_u32 %s, %s, 0x%x" % (sHDFL, sHDFL, sHDST, sGB, 2 * LY.ACT_STRIDE))
            a.I("s_cmp_eq_u32 %s, 0\ns_cselect_b32 %s, %s, 0x%x" % (sW, sFBO, sFBO, OOB))
            a.I("s_lshl_b32 %s, %s, 2\ns_add_u32 %s, %s, %s\ns_cmp_eq_u32 %s, 7\ns_cselect_b32 %s, 0, %s\ns_cmp_eq_u32 %s, 7" % (sT0, sR, sT0, sT0, sW, sN, sT0, sT0, sT0))
            a.I("s_cselect_b32 %s, %s, 0x%x" % (sHDST, sHDST, OOB))
            a.I("v_lshlrev_b32 v%d, 4, v%d\nv_lshl_add_u32 v%d, v%d, 7, v%d\nv_add_u32 v%d, %d, v%d" % (u0, t8, u0, g, u0, u1, L_HALO, u0)); put(aHX)
            a.I("s_lshl_b32 %s, %s, 10\nv_add3_u32 v%d, v%d, v%d, %s" % (sT0, sC, u1, u0, vA, sT0)); put(aHST)
            if "c" not in OPT["order"]: constants2()
        def constants2():
            if OPT["c_early"] == 2: die_id()
            a.I("s_lshr_b32 %s, s2, 3\ns_lshl_b32 %s, %s, 2\ns_add_u32 %s, %s, %s\ns_lshl_b32 %s, %s, 7" % (sCPO, sCPO, sCPO, sCPO, sCPO, sW, sCPO, sCPO))
            lin(sHST, sGB, [(sW, 114688), (sJ, 7168)])
            lin(sSLD, sGB, [(sW, 2048)])
            lin(sOL, sXST, [(sC, -4096)])
            a.I("s_bitcmp1_b32 %s, 0\ns_cselect_b32 %s, 1, -1\ns_cselect_b32 %s, 0, 6144\ns_lshl_b32 %s, %s, 10\ns_add_u32 %s, %s, %s" % (sJ, sHSTEP, sT0, sHSTEP, sHSTEP, sHST, sHST, sT0))
            a.I("s_lshr_b32 %s, %s, 1\ns_lshl_b32 %s, %s, 1\ns_add_u32 %s, %s, %s\ns_lshl_b32 s66, 0x11111111, %s\ns_mov_b32 s67, s66" % (sT0, sW, sT1, sR, sT0, sT0, sT1, sT0))
            lin(sHLD[3], sGB, [(sR, 229376), (sW, 28672)])
            for i in range(4):
                a.I("s_add_u32 %s, %s, %d\ns_and_b32 %s, %s, 3\ns_lshr_b32 %s, %s, 1\ns_and_b32 %s, %s, 1" % (sTA, sW, i + 1, sTA, sTA, sT0, sTA, sT1, sTA))
                lin(sHLD[i], sHLD[3], [(sT0, 114688), (sT1, 256)])
                if i < 3: lin(sXW[i], str(i * 4096), [(sTA, 12288)])
            lin(sXR, "0", [(sW, 12288)])
            lin(sWQ, str(LY.WQ), [(sJ, LY.WQ_STRIDE * (1 - OPT["hitw"]))])
            lin(sWG, str(LY.WG), [(sJ, LY.WG_STRIDE * (1 - OPT["hitw"]))])
            lin(sWO, str(LY.WO), [(sC, LY.WO_STRIDE * (1 - OPT["hitw"])), (sW, 4096)])
            lin(sWD, str(LY.WD), [(sC, LY.WD_STRIDE * (1 - OPT["hitw"])), (sW, 57344)])
            lin(sTAB, str(L_TAB), [(sW, 512)])
            a.I("s_lshl_b32 %s, %s, 10\ns_lshl_b32 %s, %s, 12\ns_add_u32 %s, %s, %s\ns_add_u32 %s, %s, %s" % (sLW, sW, sLW4, sW, sWQ4, sWQ, sLW4, sWG4, sWG, sLW4))
            a.I("s_cmp_eq_u32 %s, 0\ns_cselect_b32 %s, 0x%x, %s\ns_cselect_b32 s54, 0, 0xff\ns_mov_b32 s55, 0" % (sN, sHALO, OOB, sGB))
            a.I("s_add_u32 %s, %s, %s\ns_add_u32 %s, %s, %s\ns_add_u32 %s, %s, %s" % (sHALO2, sHALO, sLW2, sWQ, sWQ, sLW, sWG, sWG, sLW2))
            a.I("s_lshr_b32 %s, %s, 1\ns_lshl_b32 %s, %s, 5\ns_and_b32 %s, %s, 1\ns_lshl_b32 %s, %s, 1\ns_add_u32 %s, %s, %s" % (sT0, sW, sT0, sT0, sT1, sW, sT1, sT1, sT0, sT0, sT1))
            a.I("s_mov_b32 s40, 0x33333333\ns_mov_b32 s41, 0\ns_lshl_b64 s[40:41], s[40:41], %s" % sT0)
            a.I("s_lshl_b32 %s, %s, 1\ns_lshl_b32 %s, %s, 4\ns_add_u32 %s, %s, %s" % (sT0, sR, sT2, sW, sT0, sT0, sT2))
            a.I("s_mov_b32 s42, 0x3333\ns_mov_b32 s43, 0\ns_lshl_b64 s[42:43], s[42:43], %s" % sT0)
            a.I("v_add_u32 v%d, 0x10000, v%d\nv_add_u32 v%d, 0x20000, v%d" % (vL16b, vL16, vL16c, vL16))
            a.I("v_lshlrev_b32 v%d, 4, v%d\nv_lshl_add_u32 v%d, v%d, 6, v%d" % (u0, g, u1, tok, u0)); put(aSQ)
            a.I("v_lshl_add_u32 v%d, v%d, 6, v%d" % (u1, t8, u0)); put(aSH)
            a.I("v_lshlrev_b32 v%d, 7, v%d" % (u1, tok)); put(aTO)
            a.I("v_lshlrev_b32 v%d, 7, v%d\nv_lshl_add_u32 v%d, v%d, 5, v%d\nv_lshl_add_u32 v%d, v%d, 1, v%d\nv_lshlrev_b32 v%d, 3, v0" % (u0, rr, u0, g, u0, u0, cc, u0, u1))
            a.I("s_cmp_ge_u32 %s, 2\ns_cselect_b64 vcc, -1, 0\ns_cselect_b32 %s, 2, 8\nv_cndmask_b32 v%d, v%d, v%d, vcc" % (sW, sT1, u1, u0, u1))
            a.I("s_lshr_b32 %s, %s, 1\ns_add_u32 %s, %s, %d\nv_add_u32 v%d, %s, v%d" % (sT0, sLW, sT0, sT0, L_KV, u1, sT0, u1)); put(aHWR)
            a.I("v_mov_b32 v%d, %s" % (u1, sT1)); put(aHWS)
            a.I("v_min_u32 v%d, 6, v%d\ns_mul_i32 %s, %s, 7\nv_add_u32 v%d, %s, v%d" % (t32, t8, sT0, sW, t32, sT0, t32))
            a.I("s_lshl_b32 %s, %s, 1\nv_and_or_b32 v%d, v0, 1, %s" % (sT0, sW, t8, sT0))
            a.I("s_lshr_b32 %s, %s, 1\nv_mul_u32_u24 v%d, 24, v%d\nv_lshl_add_u32 v%d, v%d, 3, v%d\nv_add_u32 v%d, %s, v%d" % (sT0, sJ, u0, t8, u0, kc, u0, u0, sT0, u0))
            a.I("s_add_u32 %s, %s, 192\nv_lshl_add_u32 v%d, v%d, 3, %s\nv_cmp_gt_u32 vcc, 24, v0\nv_cndmask_b32 v%d, v%d, v%d, vcc" % (sT0, sC, u1, t8, sT0, u0, u1, u0))
            a.I("v_lshlrev_b32 v%d, 7, v%d\nv_add_u32 v%d, %d, v%d" % (u0, u0, FAV, LY.FA, u0))
            a.I("s_mul_i32 %s, %s, 7\ns_add_u32 %s, %s, 6\ns_lshr_b32 %s, %s, 2\ns_lshr_b32 %s, %s, 2" % (sT0, sJ, sT1, sT0, sT0, sT0, sT1, sT1))
            a.I("v_add_u32 v%d, %s, v%d\nv_min_u32 v%d, %s, v%d\nv_mad_u32_u24 v%d, v%d, 28, v%d" % (u0, sT0, kc, u0, sT1, u0, u0, t8, u0))
            a.I("v_lshl_add_u32 v%d, v%d, 3, %s\nv_cmp_gt_u32 vcc, 32, v0\nv_cndmask_b32 v%d, v%d, v%d, vcc" % (u1, t32, sC, u0, u1, u0))
            a.I("v_lshlrev_b32 v%d, 7, v%d\nv_add_u32 v%d, %d, v%d" % (u0, u0, u1, LY.FB, u0)); put(aFB)
            if OPT["c_early"] == 3: die_id()
            a.I("s_getpc_b64 %s\nL_pc2:\ns_sub_u32 s4, s4, L_pc2-L_pc\ns_subb_u32 s5, s5, 0" % sPC)
            NG, Z, M0_, M1_ = rr, cc, q16, hh
            a.I("s_or_b32 %s, %s, %s\ns_cmp_eq_u32 %s, 0\ns_cselect_b64 s[56:57], -1, 0" % (sT0, sN, sW, sT0))
            a.I("v_mov_b32 v%d, %s\nv_mov_b32 v%d, 0\nv_lshlrev_b32 v%d, 2, v%d\nv_sub_u32 v%d, v%d, v%d" % (NG, NEG, Z, vA, g, vA, tok, vA))
            for r in range(4):
                a.I("v_subrev_u32 v%d, %d, v%d\nv_mov_b32 v%d, %s" % (u0, r, vA, M0_, "0xffff0000" if r & 1 else "0xffff"))
                a.I("v_cmp_gt_u32 vcc, 8, v%d\nv_cmp_gt_i32 s[58:59], -8, v%d\nv_cmp_le_i32 s[60:61], 0, v%d" % (u0, u0, u0))
                a.I("v_cndmask_b32 v%d, v%d, v%d, vcc" % (u1, NG, Z)); put(aBC + r)
                a.I("v_cndmask_b32 v%d, v%d, v%d, s[58:59]" % (u1, NG, Z)); put(aBP + r)
                a.I("v_cndmask_b32 v%d, v%d, v%d, s[56:57]" % (u1, u1, NG)); put(aBP0 + r)
                if r & 1:
                    a.I("v_cndmask_b32 v%d, v%d, v%d, s[60:61]\nv_or_b32 v%d, v%d, v%d" % (u1, Z, M0_, u1, u1, M1_)); put(aMC + r // 2)
                else:
                    a.I("v_cndmask_b32 v%d, v%d, v%d, s[60:61]" % (M1_, Z, M0_))
        a.I("v_bfe_u32 v%d, v0, 3, 1\nv_xor_b32 v%d, 1, v%d\nv_lshlrev_b32 v%d, 29, v%d" % (vA, vA, vA, vA, vA))
        a.I("s_lshl_b32 %s, %s, 3\ns_add_u32 %s, %s, %d\nv_add3_u32 v%d, v%d, v%d, %s" % (sT0, sC, sT0, sT0, 8192 - 512, u1, u1, vA, sT0)); put(aHSS)
        if OPT["c_early"]: constants()
        self.stamp("p")
        if OPT["b_pos"] == -1: b_loads()
        a.vm_wait("fa")
        a.I("s_barrier")
        for sp in range(2):
            for half in range(2):
                a.ds("ds_read_b64_tr_b16 %s, v%d offset:%d" % (vr(ACC + 4 * sp + 2 * half, 2), (TA0, TA1)[half], sp * 4096), ("t", sp))
        self.stamp("p")
        for sp in range(2):
            a.ds_wait(("t", sp))
            a.vm("buffer_store_dwordx4 %s, v%d, %s, %s offen sc1" % (vr(ACC + 4 * sp, 4), vL16, WS, (dA, dA2)[sp]))
            a.I("v_mfma_f32_16x16x32_bf16 %s, %s, %s, %s" % (vr(ACC + 8, 4), vr(ONES, 4), vr(ACC + 4 * sp, 4), vr(ACC + 8, 4) if sp else "0"))
        a.I("\n".join(self.hi_lo(ACC + 12, ACC + 8, ACC + 13)))
        a.vm("buffer_store_dword v%d, v%d, %s, %s offen sc1" % (ACC + 12, CSW, WS, dCS), "fas")
        if OPT["b_pos"] == -2: b_loads()
        a.vm_wait("x")
        self.publish(0)
        xload = "buffer_load_dword v31, v%d, %s, 0 offen sc1" % (XA, WS)
        a.vm(xload, "xf")
        if OPT["b_pos"] == 1: b_loads()
        self.stamp("p")
        if not OPT["c_early"]: constants()
        def second_unit():
            G, D, CS = X + 96, X + 112, ACC + 48
            out = []
            def store(ops):
                if OPT["b_spread"] and "b" not in OPT["order"]: out.append(ops)
                else: a.run_all(ops)
            if "b" in OPT["order"]:
                a.vm_wait(("fb", 24576))
                a.I("s_barrier")
            for n_ in range(4):
                for half in range(2):
                    a.ds("ds_read_b64_tr_b16 %s, v%d offset:%d" % (vr(G + 4 * n_ + 2 * half, 2), TG, 8192 * (1 + n_ % 2) + (32 * (n_ // 2) + 4 * half) * 128), ("tg", n_))
            for sp in range(2):
                for half in range(2):
                    a.ds("ds_read_b64_tr_b16 %s, v%d offset:%d" % (vr(D + 4 * sp + 2 * half, 2), TD, 24576 + (32 * sp + 4 * half) * 128), ("td", sp))
            for n_ in range(4):
                a.ds_wait(("tg", n_))
                store(([("i", "s_add_u32 %s, %s, %s" % (sB0, sB0, sB1))] if n_ == 2 else []) +
                      [("vm", "buffer_store_dwordx4 %s, v%d, %s, %s offen offset:%d sc1" % (vr(G + 4 * n_, 4), vL16, WS, sB0, (n_ % 2) * 1024))])
                c_ = vr(CS + 4 * (n_ % 2), 4)
                a.I("v_mfma_f32_16x16x32_bf16 %s, %s, %s, %s" % (c_, vr(ONES, 4), vr(G + 4 * n_, 4), c_ if n_ >= 2 else "0"))
            for sp in range(2):
                a.ds_wait(("td", sp))
                store(([("i", "s_add_u32 %s, %s, 4096" % (sB3, sB3))] if sp else []) +
                      [("vm", "buffer_store_dwordx4 %s, v%d, %s, %s offen sc1" % (vr(D + 4 * sp, 4), vL16, WS, sB3))])
            a.I("v_cmp_gt_u32 vcc, 16, v0\nv_bfe_u32 v%d, v0, 4, 1\nv_mul_u32_u24 v%d, 448, v%d\nv_add_u32 v%d, v%d, v%d\nv_cndmask_b32 v%d, v%d, v%d, vcc" %
                (D + 9, D + 9, D + 9, D + 9, D + 9, LINE, CS, CS + 4, CS))
            a.I("\n".join(self.hi_lo(D + 8, CS, CS + 1)))
            store([("vm", "buffer_store_dword v%d, v%d, %s, %s offen sc1" % (D + 8, D + 9, WS, sB2), "fbs")])
            self.stamp("p")
            return out
        def first_flags():
            a.I("v_mov_b32 v30, %s" % sNONCE)
            a.vm_wait("fas")
            a.I("s_barrier")
            a.vm("buffer_store_dword v30, v%d, %s, %s offen sc1" % (LINE, WS, sFBO))
            a.I("s_add_u32 %s, %s, %d" % (sFBO, sFBO, LY.FB - LY.FA))
            self.stamp("p")
        def own_flags():
            spin, back = a.label("xspin"), a.label("xback")
            test = "v_xor_b32 v29, %s, v31\nv_cmp_lt_u32 vcc, 15, v29\ns_and_b64 vcc, vcc, exec" % sNONCE
            a.vm_wait("xf")
            a.I("%s\ns_cbranch_scc1 %s\n%s:" % (test, spin, back))
            self.cold.append("%s:\ns_mov_b32 %s, 0x40000\n%s_l:\n%s\ns_sub_u32 %s, %s, 1\ns_cbranch_scc1 L_main_done\ns_waitcnt vmcnt(0)\n%s\ns_cbranch_scc1 %s_l\ns_branch %s"
                             % (spin, sSPIN, spin, xload, sSPIN, sSPIN, test, spin, back))
            a.I("v_cmp_ne_u32 vcc, v%d, v31\ns_cmp_lg_u64 vcc, 0\ns_cselect_b32 %s, 1, 0\ns_mov_b32 s0, %s\ns_mov_b32 s1, 0" % (XV, sSLOW, sSLOW))
            self.signal(0, "pub", 0)
            self.stamp("p")
        for step in OPT["order"]:
            {"b": second_unit, "a": first_flags, "o": own_flags, "c": constants2}[step]()
        self.stamp("p")
        if "b" in OPT["order"]:
            a.vm_wait("fbs")
            a.I("s_barrier")
            a.vm("buffer_store_dword v30, v%d, %s, %s offen sc1" % (LINE, WS, sFBO))
        elif OPT["predrain"]:
            a.vm_drain()
        self.stamp("p")
        self.second_unit, self.b_loads = second_unit, b_loads
        self.fav = FAV

    def qkv(self, ps):
        a = self.a
        xi = 2 * ps
        late = self.wq_late(ps)
        lateb = ps == 0 and "b" not in OPT["order"]
        bst = []
        wql = [g for ch in late for g in self.wq_chunk(ch)]
        split = ps == 0 and OPT["q0_split"]
        HX, HW, HW2, HF, NM, RL, CQ, RR = 16, 17, 18, 19, 20, 26, 28, ACC + 52
        def setup():
            a.I(self.getc(30, aSQ) + "\n" + self.getc(31, aSH) + "\n" + self.getc(HX, aHX))
            a.I("s_add_u32 %s, %s, 2048\nv_add_u32 v%d, %s, v%d\nv_add_u32 v%d, 0xc000, v%d\nv_lshlrev_b32 v%d, 7, v0" % (sT2, sLW, HW, sT2, vL16, HW2, HW, CQ))
        self.poll(6 * ps, sMA, self.fav if ps == 0 and not split else None, setup)
        self.stamp()
        xl = self.reg_loads([vr(X + 8 * s + 4 * b, 4) for s in range(16) for b in range(2)], [sXLD] * 32,
                            [LY.XB[xi] + s * 2048 + b * 256 for s in range(16) for b in range(2)], sTA, vQ, "x")
        UP = OPT["q_up"] if ps else OPT["q0_up"]
        if ps == 0:
            late = late[1:]
            n = 4 + OPT["q0_w"]
            first = wql[:4] + xl[:UP] + wql[4:n]
            if split:
                l_fa, g_fa = self.late_check("buffer_load_dword v%d, v%d, %s, 0 offen sc1" % (HF, self.fav, WS), HF, "exec", "fa")
                n1 = OPT["q0_n1"]
                first = xl[:n1] + [l_fa] + xl[n1:UP] + [g_fa + [("i", "s_barrier")]] + wql[:n]
            else:
                first = xl[:2] + [[("i", "s_barrier")]] + wql[:4] + xl[2:UP] + wql[4:n]
            wql = wql[n:]
            if OPT["b_pos"] >= 2:
                k = OPT["b_pos"] - 2
                a.run_all(self.flat(first[:k])); first = first[k:]
                self.b_loads(); a.state.pop("m0", None)
            if lateb:
                k = len(first) - OPT["q0_b"]
                a.run_all(self.flat(first[:k])); first = first[k:]
                if OPT["b_pos"] >= 2: a.vm_wait(("fb", 24576))
                a.I("s_barrier")
                bst = self.second_unit()
            a.run_all(self.flat(first))
        else:
            a.run_all(self.flat(xl[:UP]))
        if ps == 0:
            a.vm_wait(("wq", 0))
        a.I("s_barrier")
        sl = Slots()
        use = {}
        acc = lambda blk, b: vr(ACC + 8 * blk + 4 * b, 4)
        hbuf = lambda t: (F + 24, X)[t % 2]
        step0 = {}
        H0 = OPT["q_h0"]
        hpos = {}
        for t in range(16):
            p = (t * 6 * (16 - H0)) // 16 + 1
            hpos.setdefault((H0 + p // 6, p % 6), []).append(t)
        Y, Z = X + 8, X + 96
        BC, BP, BP0, MC, ONES, KW, CSA = Y, Y + 4, Y + 8, Y + 12, Y + 14, Y + 16, Y + 21
        def halo_mfma(t):
            d = acc(6, 0)
            if t < 16:
                i = sl.add("v_mfma_f32_16x16x32_bf16 %s, %s, %s, %s" % (d, vr(hbuf(t) + 4, 4), vr(hbuf(t), 4), "0" if t == 0 else d), [("wds", ("hx", t))])
            else:
                i = sl.add("v_mfma_f32_16x16x16_bf16 %s, %s, %s, %s" % (d, vr(NM + 4, 2), vr(hbuf(t), 2), d), [("wds", ("hw", t))])
            use[("h", t)] = i
        for s in range(17):
            step0[s] = sl.n()
            if s == 16: halo_mfma(16)
            for f in range(6):
                for b in range(2):
                    pre_ = []
                    if b == 0: pre_.append(("wds", ("f", s, f)))
                    if f == 0 and s < 16: pre_.append(("wvm", ("x", 2 * s + b)))
                    w = vr(F + 4 * f, 4 if s < 16 else 2)
                    x = vr(X + 8 * s + 4 * b, 4) if s < 16 else vr(NM + 2 * b, 2)
                    A, B = (w, x) if f < 4 else (x, w)
                    d = acc(f, b)
                    mn = "v_mfma_f32_16x16x32_bf16" if s < 16 else "v_mfma_f32_16x16x16_bf16"
                    use[(s, f)] = sl.add("%s %s, %s, %s, %s" % (mn, d, A, B, "0" if s == 0 else d), pre_)
                for t in hpos.get((s, f), ()): halo_mfma(t)
        reads = []
        for s in range(17):
            for f in range(6):
                d = F + 4 * f
                if s < 16: t = "ds_read_b128 %s, %s" % (vr(d, 4), ldsaddr(s * 6144 + f * 1024))
                else: t = "ds_read2st64_b32 %s, v%d offset0:%d offset1:%d" % (vr(d, 2), CSA, 2 * f, 2 * f + 1)
                reads.append((use[(s - 1, f)] if s else -1, (6 * s + f) // 16, ("ds", t, ("f", s, f))))
        hbar = step0[H0 - 1] + 4
        for t in range(17):
            pos = use[("h", t - 2)] if t >= 2 else hbar + 2 + 2 * t
            if t < 16:
                reads.append((pos, (6 * t + 5) // 16, ("ds", "ds_read_b128 %s, v%d offset:%d" % (vr(hbuf(t), 4), HW if t < 8 else HW2, (t % 8) * 6144), ("hw", t))))
                reads.append((pos + (1 if t >= 2 else 0), 0, ("ds", "ds_read_b128 %s, v%d offset:%d" % (vr(hbuf(t) + 4, 4), HX, t * 512), ("hx", t))))
            else:
                reads.append((pos, 6, ("ds", "ds_read2st64_b32 %s, v%d offset0:4 offset1:5" % (vr(hbuf(t), 2), CSA + 1), ("hw", t))))
        sl.put("c", step0[4], [("i", "v_add_u32 v%d, 98304, v%d\ns_lshr_b32 %s, %s, 1\nv_add_u32 v%d, %s, v%d" % (CSA, vFL, sT2, sLW, CSA + 1, sT2, CSA)), ("mark", "csaddr")])
        sl.after(step0[14], ("need", "csaddr"))
        sl.pre[step0[16]].append(("wds", ("nm", 2)))
        chbar = {}
        for ch in late:
            ops = [("wvm", ("wq", ch)), ("i", "s_barrier")]
            p = chbar[ch] = min(p for p, c, _ in reads if c == ch)
            if lateb and ch == OPT["q0_fbch"]:
                ops.insert(0, ("wvm", "fbs"))
                assert p >= step0[5]
                sl.put("f", p + 1, [("i", "v_mov_b32 v%d, %s\n%s" % (X + 32, sNONCE, self.getc(X + 33, aLINE))),
                                    ("vm", "buffer_store_dword v%d, v%d, %s, %s offen sc1" % (X + 32, X + 33, WS, sFBO))])
            sl.after(p, *ops)
        sl.after(hbar, ("wvm", "halo"), ("i", "s_barrier"))
        for pos, _, rd in reads:
            if pos < 0: a.run(rd)
            else: sl.after(pos, rd)
        l_hf, g_chk = self.late_check("buffer_load_dword v%d, v%d, %s, %s offen sc1" % (HF, CQ, WS, sT1), HF, sMH, "hf")
        g_hf = [("i", "v_and_b32 v%d, 0x380, v%d\ns_add_u32 %s, %s, %d" % (CQ, CQ, sT1, sHFL, ps * 16384))] + l_hf
        g_hd = self.dma_chunk(sHALO2, LY.HX[ps], L_HALO, 2, "halo", " sc1")
        g_hs = [("i", "s_add_u32 %s, %s, %d" % (sT1, sHALO, LY.HX[ps] + 8192)),
                ("vm", "buffer_load_dwordx4 %s, v31, %s, %s offen sc1" % (vr(RR + 8, 4), WS, sT1), "st")]
        g_s0 = [("i", "s_add_u32 %s, %s, %d" % (sT0, sSLD, LY.SB[xi])), ("vm", "buffer_load_dwordx4 %s, v30, %s, %s offen sc1" % (vr(RR, 4), WS, sT0))]
        g_s1 = [("vm", "buffer_load_dwordx4 %s, v30, %s, %s offen offset:1024 sc1" % (vr(RR + 4, 4), WS, sT0))]
        wbar = max(use[("h", 6)] + 2, step0[OPT["q_wbar"]])
        while sl.post[wbar]: wbar += 1
        sl.after(wbar, ("i", "s_barrier"))
        wo = [(0 if i < 2 else wbar + 2, g) for i in range(4) for g in self.wo_chunk(i)]
        rest = xl[UP:]
        h1 = OPT["q_hf"] if ps else OPT["q0_hf"]
        h2 = h1 + OPT["q_chk"] - 2
        seq = rest[:h1] + [g_hf, g_s0, g_s1] + rest[h1:h2] + [g_chk] + g_hd + [g_hs] + rest[h2:]
        if wql:
            due, d = [], sl.n()
            for g in reversed(seq):
                tag = g[-1][2] if len(g[-1]) > 2 else None
                if isinstance(tag, tuple) and tag[0] == "x": d = step0[tag[1] // 2]
                due.append((d, g))
            due.reverse()
            d, wdue = 0, []
            for g in reversed(wql):
                if g[-1][2] is not None: d = chbar[g[-1][2][1]] - OPT["q0_lead"]
                wdue.append((d, g)); d -= 6
            seq = [g for _, g in sorted(due + wdue[::-1], key=lambda t: t[0])]
        for n_, g in enumerate(bst):
            k = OPT["b_first"] + n_ * (OPT["b_gap"] + 1)
            assert not any(op[0] == "vm" and len(op) > 2 and isinstance(op[2], tuple) and op[2][0] == "x" and op[2][1] >= 24 for g2 in seq[:k] for op in g2)
            seq.insert(k, g)
        if ps == 0:
            if OPT["otouch"]: seq += self.touch(aTO, sOST, LY.OB[ps], CQ)
            l_fb, g_fb = self.late_check("%s\nbuffer_load_dword v%d, v%d, %s, 0 offen sc1" % (self.getc(Y + 23, aFB), Y + 23, Y + 23, WS), Y + 23, "exec", "fb")
            l_fb = [("i", l_fb[0][1].split("\n")[0]), ("vm", l_fb[0][1].split("\n")[1], "fb")]
            seq += [g + (OPT["q0_tail"] / 10,) for g in wo]
            sl.put("f", step0[OPT["q0_fbs"]], l_fb)
        else:
            seq += wo
        sl.put("g", step0[12], self.flat(self.code_touch("L_wo%d" % ps, CQ + 1)))
        left = sl.pace(seq, 0, (OPT["q_every"] if ps else OPT["q0_every"]) / 10)
        A0, A1, AH = RR, RR + 4, RR + 8
        st = [[("wvm", "st")]]
        for r_ in (A0, A1, AH):
            st.append([("i", "v_add_f32 v%d, v%d, v%d" % (r_, r_, r_ + 2))])
            st.append([("i", "v_add_f32 v%d, v%d, v%d" % (r_ + 1, r_ + 1, r_ + 3))])
        for o in (0, 1): st.append([("i", "v_mov_b32 v%d, v%d" % (AH + 2 + o, AH + o))])
        for o in (0, 1): st.append([("i", "v_permlane32_swap_b32 v%d, v%d" % (A0 + o, A1 + o))])
        for o in (0, 1): st.append([("i", "v_permlane32_swap_b32 v%d, v%d" % (AH + o, AH + 2 + o))])
        for o in (0, 1): st.append([("i", "v_add_f32 v%d, v%d, v%d" % (A0 + o, A0 + o, A1 + o))])
        for o in (0, 1): st.append([("i", "v_add_f32 v%d, v%d, v%d" % (AH + o, AH + o, AH + 2 + o))])
        for o in (0, 1): st.append([("i", "v_permlane16_swap_b32 v%d, v%d" % (A0 + o, AH + o))])
        for o in (0, 1): st.append([("i", "v_add_f32 v%d, v%d, v%d" % (A0 + o, A0 + o, AH + o))])
        st += [[op] for op in self.ln_from_sums(A0, A0 + 1, A0 + 2)]
        st.append([("i", "v_cvt_pk_bf16_f32 v%d, -v%d, -v%d" % (A0, A0, A0))])
        st.append([("i", "v_add_u32 v%d, %s, v%d" % (HF, sTAB, vFL))])
        st.append([("i", "v_and_or_b32 v30, v%d, 63, %s" % (vFL, sTAB))])
        st.append([("i", "v_and_or_b32 v31, v0, 48, %s" % sTAB)])
        st.append([("ds", "ds_write2st64_b32 v%d, v%d, v%d offset0:0 offset1:1" % (HF, A0 + 1, A0))])
        row = {0: 0, 1: 2, 2: 1}
        for b in range(3):
            o = 64 + row[b] * 16
            st.append([("ds", "ds_read2_b32 %s, v30 offset0:%d offset1:%d" % (vr(NM + 2 * b, 2), o, o), ("nm", b))])
        st.append([("ds", "ds_read2_b32 %s, v30 offset0:0 offset1:32" % vr(RL, 2))])
        for b in range(3):
            st.append([("ds", "ds_read_b128 %s, v31 offset:%d" % (vr(RR + 4 * b, 4), row[b] * 64), ("tab", b))])
        sl.spread(st, step0[H0], step0[14])
        cst = [[("i", self.getc(Y + k, aBC + k))] for k in range(14)]
        cst += [[("i", "v_mov_b32 v%d, %s" % (ONES + k, sONE))] for k in range(2)]
        cst += [[("i", self.getc(KW, aHWR))], [("i", self.getc(KW + 3, aHWS))], [("i", "s_add_u32 %s, %s, %d" % (sT2, sLW2, L_KV))],
                [("i", "v_add_u32 v%d, v%d, v%d" % (KW + 1, KW, KW + 3))], [("i", "v_lshl_add_u32 v%d, v0, 3, %s" % (KW + 4, sT2))],
                [("i", "v_add_u32 v%d, v%d, v%d" % (KW + 2, KW + 1, KW + 3))], [("i", "v_add_u32 v%d, v%d, v%d" % (KW + 3, KW + 2, KW + 3))]]
        sl.spread(cst, step0[4] + 2, step0[8], "c")
        Qp = lambda b, h: Z + 4 * h + 2 * b
        Kp = lambda b, h: Z + 8 + 6 * h + 2 * (b + 1)
        Vp = lambda b, h: Z + 20 + 6 * h + 2 * (b + 1)
        HP, HA = HX, ACC + 48
        ar_ = lambda blk, b: ACC + 8 * blk + 4 * b
        cvt = lambda d, s_: "v_cvt_pk_bf16_f32 v%d, v%d, v%d" % (d, s_, s_ + 1)
        tl = [("wds", ("tab", 2)), ("i", "v_mul_f32 v%d, 0x3eb8aa3b, v%d\nv_mul_f32 v%d, 0x3eb8aa3b, v%d" % (CQ, RL, CQ + 1, RL + 1))]
        tl += [("i", "v_mul_f32 v%d, v%d, v%d" % (HA + r, HA + r, RR + 8 + r)) for r in range(4)]
        tl += [("i", cvt(HP, HA)), ("i", cvt(HP + 1, HA + 2))]
        hw = [("ds", "ds_write_b16%s v%d, v%d" % ("_d16_hi" if r & 1 else "", KW + r, HP + r // 2)) for r in range(4)]
        qs = [(h, b) for h in range(2) for b in range(2)]
        for n_, (h, b) in enumerate(qs):
            tl += [hw[n_], ("i", cvt(Qp(b, h), ar_(h, b))), ("i", cvt(Qp(b, h) + 1, ar_(h, b) + 2))]
        sl.put("v", step0[16], tl)
        self.lite(sl, "q", [step0[s] for s in (0, 2, 4, 6, 8, 10, 12, 14)])
        self.report("qkv%d" % ps, sl.emit(a))
        self.stamp()
        body = []
        e = lambda t: body.extend(("i", x) for x in t.split("\n"))
        def pack(dst, src): e(cvt(dst, src) + "\n" + cvt(dst + 1, src + 2))
        def scale_l(src, b):
            for k in range(2): e("v_pk_mul_f32 %s, %s, %s op_sel:[0,%d] op_sel_hi:[1,%d]" % (vr(src + 2 * k, 2), vr(src + 2 * k, 2), vr(RL, 2), b, b))
        def scale_r(src, r0):
            for k in range(2): e("v_pk_mul_f32 %s, %s, %s" % (vr(src + 2 * k, 2), vr(src + 2 * k, 2), vr(r0 + 2 * k, 2)))
        kvw = lambda src, part: body.append(("ds", "ds_write_b64 v%d, %s offset:%d" % (KW + 4, vr(src, 2), 2048 + 512 * part)))
        for h in range(2):
            scale_l(ar_(2 + h, 1), 1); pack(Kp(1, h), ar_(2 + h, 1)); kvw(Kp(1, h), h); scale_l(ar_(2 + h, 0), 0)
        for h in range(2):
            scale_r(ar_(4 + h, 1), RR + 4); pack(Vp(1, h), ar_(4 + h, 1)); kvw(Vp(1, h), 2 + h); scale_r(ar_(4 + h, 0), RR)
        units = [(1, 0), (1, 1), (0, 0), (0, 1)]
        SC = lambda u: F + 8 * u
        SP = lambda u: F + 8 * u + 4
        smf = lambda d, kb, u, bias: "v_mfma_f32_16x16x16_bf16 %s, %s, %s, %s" % (vr(d, 4), vr(Kp(kb, units[u][1]), 2), vr(Qp(*units[u]), 2), vr(bias, 4))
        M = [ACC + u for u in range(4)]
        def merge(u):
            return ["v_max_f32 v%d, v%d, v%d" % (SC(u) + r, SC(u) + r, SP(u) + r) for r in range(4)] + [
                "v_max3_f32 v%d, v%d, v%d, v%d" % (M[u], SC(u), SC(u) + 1, SC(u) + 2), "v_max_f32 v%d, v%d, v%d" % (M[u], M[u], SC(u) + 3)]
        e(smf(SC(0), 1, 0, BC)); pack(Kp(0, 0), ar_(2, 0))
        e(smf(SC(1), 1, 1, BC)); pack(Kp(0, 1), ar_(3, 0))
        e(smf(SP(0), 0, 0, BP))
        if ps == 0: body.extend(g_fb)
        body.append(("wvm", ("wo", 1)))
        body.append(("dsdrain",)); e("s_barrier")
        nbar = len(body)
        rdkv = lambda dst, part, tag: body.append(("ds", "ds_read_b64 %s, v%d offset:%d" % (vr(dst, 2), KW + 4, 512 * part), tag))
        e(smf(SP(1), 0, 1, BP)); rdkv(Kp(-1, 0), 0, ("kp", 0)); rdkv(Kp(-1, 1), 1, ("kp", 1))
        e(smf(SC(2), 0, 2, BC)); rdkv(Vp(-1, 0), 2, ("vp", 0)); rdkv(Vp(-1, 1), 3, ("vp", 1))
        e(smf(SC(3), 0, 3, BC)); pack(Vp(0, 0), ar_(4, 0)); pack(Vp(0, 1), ar_(5, 0))
        m0, m1 = merge(0), merge(1)
        e("\n".join(m0))
        body.append(("wds", ("kp", 1)))
        e(smf(SP(2), -1, 2, BP0)); e("\n".join(m1[:2]))
        e(smf(SP(3), -1, 3, BP0)); e("\n".join(m1[2:]))
        e("s_add_u32 %s, %s, %d" % (sT0, sOST, LY.OB[ps]))
        e("\n".join(merge(2)[:2]))
        e("v_permlane32_swap_b32 v%d, v%d" % (M[0], M[1]))
        e("\n".join(merge(2)[2:] + merge(3)))
        e("v_max_f32 v%d, v%d, v%d" % (M[0], M[0], M[1]))
        e("v_permlane32_swap_b32 v%d, v%d\nv_max_f32 v%d, v%d, v%d" % (M[2], M[3], M[2], M[2], M[3]))
        e("v_permlane16_swap_b32 v%d, v%d\nv_max_f32 v%d, v%d, v%d\nv_max_f32 v%d, v%d, v%d" % (M[0], M[2], M[1], M[0], M[2], M[2], M[0], M[2]))
        e("v_permlane16_swap_b32 v%d, v%d" % (M[1], M[2]))
        e("v_mul_f32 v%d, v%d, v%d\nv_mul_f32 v%d, v%d, v%d" % (M[0], M[1], CQ + 1, M[1], M[1], CQ + 1))
        e("v_mul_f32 v%d, v%d, v%d\nv_mul_f32 v%d, v%d, v%d" % (M[3], M[2], CQ, M[2], M[2], CQ))
        def shift(u):
            for k in range(2):
                e("v_pk_fma_f32 %s, %s, %s, %s op_sel:[0,%d,%d] op_sel_hi:[1,%d,%d] neg_lo:[0,0,1] neg_hi:[0,0,1]" %
                  (vr(SC(u) + 2 * k, 2), vr(SC(u) + 2 * k, 2), vr(CQ, 2), vr(ACC + 2 * (u // 2), 2), units[u][0], u % 2, units[u][0], u % 2))
        e("v_permlane32_swap_b32 v%d, v%d" % (M[0], M[1])); shift(0)
        e("v_permlane32_swap_b32 v%d, v%d" % (M[2], M[3])); shift(1); shift(2); shift(3)
        PM = lambda u: ACC + 4 + 2 * u
        PS = lambda u: ACC + 12 + 4 * u
        OP = lambda b: ACC + 28 + 4 * b
        pv = lambda u: "v_mfma_f32_16x16x32_bf16 %s, %s, %s, 0" % (vr(SC(u), 4), vr(Vp(units[u][0] - 1, units[u][1]), 4), vr(PS(u), 4))
        for u, (b, h) in enumerate(units):
            for r in range(4):
                e("v_exp_f32 v%d, v%d" % (SC(u) + r, SC(u) + r))
                if r == 1 and u >= 1: e(pv(u - 1))
            if u == 2: body.append(("wds", ("vp", 1)))
            if u >= 2: e("v_rcp_f32 v%d, v%d" % (SP(u - 2), SP(u - 2)))
            pack(PM(u), SC(u))
            for k in range(2):
                e("v_bfi_b32 v%d, v%d, 0, v%d\nv_and_b32 v%d, v%d, v%d" % (PS(u) + k, MC + k, PM(u) + k, PS(u) + 2 + k, MC + k, PM(u) + k))
            e("v_mfma_f32_16x16x16_bf16 %s, %s, %s, 0" % (vr(SP(u), 4), vr(ONES, 2), vr(PM(u), 2)))
        e("v_rcp_f32 v%d, v%d" % (SP(2), SP(2)))
        e(pv(3))
        def fin(u, packed):
            b, h = units[u]
            if packed:
                for k in range(2): e("v_pk_mul_f32 %s, %s, %s op_sel_hi:[1,0]" % (vr(SC(u) + 2 * k, 2), vr(SC(u) + 2 * k, 2), vr(SP(u), 2)))
            else:
                for r in range(4): e("v_mul_f32 v%d, v%d, v%d" % (SC(u) + r, SC(u) + r, SP(u)))
            pack(OP(b) + 2 * h, SC(u))
            if h == 1:
                body.append(("vm", "buffer_store_dwordx4 %s, v%d, %s, %s offen offset:%d%s" % (vr(OP(b), 4), vQ, WS, sT0, b * 256, " sc1" if ps == 0 and not OPT["otouch"] else ""), "o" if b == 0 else None))
        fin(0, False); fin(1, True)
        e("v_rcp_f32 v%d, v%d" % (SP(3), SP(3)))
        fin(2, True); fin(3, True)
        left = self.weave(body[:nbar], left, 0, OPT["a_every"])
        stop = len(body) - OPT["a_quiet"]
        left = self.weave(body[nbar:stop], left + self.wgs("att", ps) + self.wds("att", ps), 4, OPT["a_every"])
        a.run_all(body[stop:])
        print("  attention: %d groups left for the hand-off" % len(left))
        self.stamp()
        self.wo_pre(0, OPT["w_pre"])
        self.signal(6 * ps + 1, "o")
        a.run_all(self.flat(left + self.wgs("h1", ps) + self.wds("h1", ps)))
        self.stamp()

    def wds(self, where, ps):
        if ps: return []
        if self.wd is None:
            ks = [4 * s + cb for s in DN_ORD for cb in range(4)]
            self.wd = self.reg_loads([ar(4 * k, 4) for k in ks], [sWD] * 56, [k * 1024 for k in ks], sTD, vL16, "wd")
        n = OPT.get("wd_" + where, 56)
        out, self.wd = self.wd[:n], self.wd[n:]
        return out

    WREG = [X + 4 * k for k in range(16)] + [ACC + 16 + 4 * k for k in range(12)] + [F + 4 * k for k in range(8)]
    def wo_read(self, k):
        return ("ds", "ds_read_b128 %s, %s" % (vr(self.WREG[k % 36], 4), ldsaddr(WO_SLOT[k // 16] * 16384 + (k % 16) * 1024)), ("w", k))
    def wo_pre(self, k0, k1):
        for k in range(k0, k1): self.a.run(self.wo_read(k))

    def finish(self, A, xo, h, pf, n, halo_pass):
        a = self.a
        for k in range(8): a.I("v_cvt_pk_bf16_f32 v%d, v%d, v%d" % (XRES + k, A + 2 * k, A + 2 * k + 1))
        if xo == 4:
            a.I(self.getc(16, aROW))
            for e_ in range(2): a.vm("buffer_store_dwordx4 %s, v16, %s, 0 offen offset:%d %s" % (vr(XRES + 4 * e_, 4), OUT, e_ * 64, OPT["outf"].strip("-")))
            self.stamp()
            return
        self.publish(xo)
        self.stamp()
        a.run_all(self.flat(pf[:n]))
        self.signal(h, "pub", halo_pass)
        a.run_all(self.flat(pf[n:]))
        self.stamp()

    def wo(self, ps):
        a = self.a
        def setup():
            for k in range(8):
                a.I("v_lshlrev_b32 v%d, 16, v%d\nv_and_b32 v%d, 0xffff0000, v%d" % (ACC + 2 * k, XRES + k, ACC + 2 * k + 1, XRES + k))
        keep = dict(a.ds_tag)
        if OPT["stamps"] and ps == 0:
            a.I("s_memtime s[%d:%d]" % (sST, sST + 1)); a.ds_drain(force=True); a.I("v_writelane_b32 v%d, s%d, 60" % (vSTAMP, sST))
        self.poll(6 * ps + 1, sMC, None, setup)
        a.ds_tag.update((t, n) for t, n in keep.items() if t[0] == "w")
        self.stamp()
        areg = lambda s: vr(X + 64 + 4 * s, 4)
        ld = self.reg_loads([areg(s) for s in range(16)], [sOL] * 16, [LY.OB[ps] + s * 2048 for s in range(16)], sTA, vQ, "act")
        UP = OPT["w_up"]
        rest = [self.wo_read(k) for k in range(OPT["w_pre"], 32)]
        for n_, g in enumerate(ld[:UP]):
            a.run_all(g)
            if n_ >= 3: a.run_all(rest[:3]); rest = rest[3:]
        a.run_all(rest)
        a.I("s_barrier")
        self.wo_pre(32, 36)
        sl = Slots()
        for k in range(64):
            s, cb = divmod(k, 4)
            d = vr(ACC + 4 * cb, 4)
            sl.add("v_mfma_f32_16x16x32_bf16 %s, %s, %s, %s" % (d, vr(self.WREG[k % 36], 4), areg(s), d),
                   [("wds", ("w", k))] + ([("wvm", ("act", s))] if cb == 0 else []))
            if cb == 0 and s + UP < 16: sl.put("m", k, ld[s + UP])
            if k + 36 < 64: sl.put("r", k, [self.wo_read(k + 36)])
        pf = sl.pace(self.wgs("wo", ps) + self.wds("wo", ps), 64 - 4 * UP + 2, 4.4, 64 - OPT["w_quiet"])
        self.lite(sl, "wo", [8 * k for k in range(8)])
        self.report("wo%d" % ps, sl.emit(a))
        self.stamp()
        self.finish(ACC, 2 * ps + 1, 6 * ps + 2, pf + self.wgs("h2", ps) + self.wds("h2", ps), 0, None)

    def dn_plan(self, ps):
        order = [(i, s) for lv in DN_S for i in range(3) for s in lv] + [(3, s) for s in range(14)]
        areg = lambda k: vr(X + 48 + 4 * (k % 16), 4)
        ld = self.reg_loads([areg(k) for k in range(56)], [sHLD[i] for i, s in order], [LY.HB[ps] + s * 2048 for i, s in order], sTA, vQ, "act")
        return order, areg, ld

    def dn(self, ps, issued, wd):
        a = self.a
        order, areg, ld = self.dn_plan(ps)
        XW, XR, R, P, U = 16, 19, 20, (ACC, ACC + 16, ACC + 32), ACC + 48
        io = L_SCR_DN - 65536
        UP = OPT["k_up"]
        widx = {s: n_ for n_, s in enumerate(DN_ORD)}
        wd_e = [g for g in wd if g[-1][2][1] < 24]
        wd_l = [g for g in wd if g[-1][2][1] >= 24]
        a.run_all(self.flat(ld[issued:UP] + wd_e))
        a.ds_drain()
        a.I("s_barrier")
        sl = Slots()
        accr = lambda i, cb: (X, X + 16, X + 32, X + 112)[i] + 4 * cb
        seen, endb = set(), {}
        for k, (i, s) in enumerate(order):
            for cb in range(4):
                d = vr(accr(i, cb), 4)
                pre = [("wvm", ("act", k))] if cb == 0 else []
                tag = ("wd", 4 * widx[s] + cb)
                if i == 0 and (tag in a.vm_tag or any(g[-1][2] == tag for g in wd_l)): pre.append(("wvm", tag))
                endb[i] = sl.add("v_mfma_f32_16x16x32_bf16 %s, %s, %s, %s" % (d, ar(16 * s + 4 * cb, 4), areg(k), d if (i, cb) in seen else "0"), pre)
                seen.add((i, cb))
        chk = {18: self.check_ops(6 * ps + 4, sMB, PA, "hf2"), 30: self.check_ops(6 * ps + 5, sMB, PA, "hf3")}
        if self.pending: sl.put("f", OPT["d_sig2"], self.pending)
        sl.put("f", OPT["d_sig"], self.signal_ops(6 * ps + 5, "h6", PB))
        extra = list(wd_l)
        for k in range(max(UP, issued), 56):
            p = 4 * (k - min(OPT["d_up2"], UP + max(0, k - OPT["d_ramp"]) // 3))
            if k + OPT["d_chk"] in chk: sl.put("m", p, chk[k + OPT["d_chk"]][0])
            if k in chk:
                due = [g for g in extra if g[-1][2][1] < (40 if k == 18 else 56)]
                sl.put("m", p, self.flat(due) + chk[k][1]); extra = extra[len(due):]
            sl.put("m", p, ld[k])
            sl.put("m", p, self.flat(extra[:1])); extra = extra[1:]
        su = [[("i", "v_add_u32 v%d, %s, v%d" % (XW + i, sXW[i], vL16b))] for i in range(3)] + [[("i", "v_add_u32 v%d, %s, v%d" % (XR, sXR, vL16b))]]
        su += [[("i", "s_lshl_b32 %s, %s, 2\ns_add_u32 %s, %s, %s\ns_lshl_b32 %s, %s, 6\ns_add_u32 %s, %s, %d\nv_and_or_b32 v%d, v%d, 63, %s" %
                 (sT0, sR, sT0, sT0, sW, sT0, sT0, sT0, sT0, L_RS, R, vFL, sT0)), ("ds", "ds_read_b32 v%d, v%d" % (R, R))]]
        for k in range(8):
            su += [[("i", "v_lshlrev_b32 v%d, 16, v%d" % (U + 2 * k, XRES + k))], [("i", "v_and_b32 v%d, 0xffff0000, v%d" % (U + 2 * k + 1, XRES + k))]]
        sl.spread(su, 20, 70)
        writes = lambda i: [[("ds", "ds_write_b128 v%d, %s offset:%d" % (XW + i, vr(accr(i, cb), 4), io + cb * 1024))] for cb in range(4)]
        reads = lambda i: [[("ds", "ds_read_b128 %s, v%d offset:%d" % (vr(P[i] + 4 * cb, 4), XR, io + i * 4096 + cb * 1024), ("r", i, cb))] for cb in range(4)]
        add = lambda d, s_: [[("i", "v_add_f32 v%d, v%d, v%d" % (d + e_, d + e_, s_ + e_))] for e_ in range(16)]
        for i in range(3): sl.spread(writes(i), endb[i] + 2, endb[i] + 17)
        seq = [[("dsdrain",), ("i", "s_barrier")]] + reads(0) + reads(1) + reads(2) + [[("wds", ("r", 1, 3))]] + add(P[0], P[1]) + [[("wds", ("r", 2, 3))]] + add(P[0], P[2])
        seq += [[("i", "v_fma_f32 v%d, v%d, v%d, v%d" % (U + e_, P[0] + e_, R, U + e_))] for e_ in range(16)]
        sl.spread(seq, endb[2] + 20, endb[3] - 2)
        pf = [] if ps else [g for i in range(7) if i not in self.wq_late(1) + self.kept() for g in self.wq_chunk(i)]
        pf = sl.pace(pf, 224 - 4 * OPT["d_up2"] + 2, 4.4)
        self.lite(sl, "dn", [28 * k for k in range(8)])
        self.report("dn%d" % ps, sl.emit(a))
        self.stamp()
        A = accr(3, 0)
        for k in range(8): a.I("v_pk_fma_f32 %s, %s, %s, %s op_sel_hi:[1,0,1]" % (vr(A + 2 * k, 2), vr(A + 2 * k, 2), vr(R, 2), vr(U + 2 * k, 2)))
        self.finish(A, 2 * ps + 2, 6, pf, OPT["dn_pre"], 1)

    def gu(self, ps):
        a = self.a
        xi = 2 * ps + 1
        self.poll(6 * ps + 2, sMA)
        self.stamp()
        S0, TL, NR, XR_ = GS0, 16 - GS0, 8, 10
        SS, NM, HPK, CSA = 16, 24, 28, 21
        A0 = X + 80
        xreg = lambda s, b: X + 8 * (s % XR_) + 4 * b
        acc = lambda bl, m, b: A0 + 16 * bl + 8 * b + 4 * m
        xl = self.reg_loads([vr(xreg(s, b), 4) for s in range(16) for b in range(2)], [sXLD] * 32,
                            [LY.XB[xi] + s * 2048 + b * 256 for s in range(16) for b in range(2)], sTA, vQ, "x")
        UP = OPT["g_up"]
        a.run_all(self.flat(xl[:UP]))
        a.I("s_barrier")
        a.I(self.getc(NM, aSQ) + "\ns_add_u32 %s, %s, %d" % (sT0, sSLD, LY.SB[xi]))
        g_st = [[("vm", "buffer_load_dwordx4 %s, v%d, %s, %s offen sc1" % (vr(SS, 4), NM, WS, sT0))],
                [("vm", "buffer_load_dwordx4 %s, v%d, %s, %s offen offset:1024 sc1" % (vr(SS + 4, 4), NM, WS, sT0), "st")]]
        early = self.wg_early(ps)
        NS = len(self.ring(ps))
        assert 0 in early and len(set(early)) == len(early) and all(c < NS and self.wg_slot(c, ps) not in WO_SLOT for c in early)
        assert all(self.wg_slot(c, ps) != 7 for c in self.digits("wg_att%d" % ps) + self.digits("wg_h1%d" % ps)) and not set(self.kept()) - {2, 3, 4, 5}
        frags = [(s, bl, m) for s in range(S0) for bl in range(7) for m in range(2)]
        for bl in range(7): frags += [(s, bl, m) for s in range(S0, 16) for m in range(2)] + [(16, bl, 0)]
        sl = Slots()
        first, last, end, xfirst, xlast = {}, {}, {}, {}, {}
        for k, (s, bl, m) in enumerate(frags):
            w = F + 4 * (k % NR)
            for mm, b in ([(m, 0), (m, 1)] if s < 16 else [(0, 0), (1, 0), (0, 1), (1, 1)]):
                pre = [] if k in first else [("wds", ("f", k))]
                d = vr(acc(bl, mm, b), 4)
                if s < 16:
                    if (s, b) not in xfirst: pre.append(("wvm", ("x", 2 * s + b)))
                    n_ = sl.add("v_mfma_f32_16x16x32_bf16 %s, %s, %s, %s" % (d, vr(w, 4), vr(xreg(s, b), 4), "0" if s == 0 else d), pre)
                    xfirst.setdefault((s, b), n_); xlast[(s, b)] = n_
                else:
                    n_ = sl.add("v_mfma_f32_16x16x16_bf16 %s, %s, %s, %s" % (d, vr(w + 2 * mm, 2), vr(NM + 2 * b, 2), d), pre)
                first.setdefault(k, n_); last[k] = n_
            end[bl] = n_
        LA = OPT["g_la"]
        def rd(k):
            off = self.wg_slot(k // 16, ps) * 16384 + (k % 16) * 1024
            d = F + 4 * (k % NR)
            if frags[k][0] < 16:
                return [("ds", "ds_read_b128 %s, %s" % (vr(d, 4), ldsaddr(off)), ("f", k))]
            return [("ds", "ds_read2st64_b32 %s, v%d offset0:%d offset1:%d" % (vr(d + 2 * m, 2), CSA + (off >> 16), (off & 0xffff) // 256 + 2 * m, (off & 0xffff) // 256 + 2 * m + 1),
                     ("f", k) if m else None) for m in range(2)]
        for k in range(LA): a.run_all(rd(k))
        barpos = {}
        for k in range(LA, len(frags)):
            if k % 16 == 0:
                ch = k // 16
                if ch not in early or 2 <= ch <= 16 - NS:
                    p = barpos[ch] = last[k - LA] - 1
                    if ch not in early: sl.pre[p + 1].append(("wvm", ("wg", ch)))
                    sl.after(p, *(([("wvm", ("wg", ch))] if ch not in early else []) + [("i", "s_barrier")]))
            sl.after(last[k - LA], *rd(k))
        wl = [(barpos[ch - NS + 2] + 2 if ch >= NS else 0, g) for ch in range(15) if ch not in early for g in self.wg_chunk(ch, ps)]
        wdue = [barpos[ch] - 8 * (len(self.wg_chunk(ch, ps)) - 1 - n_) for ch in range(15) if ch not in early for n_ in range(len(self.wg_chunk(ch, ps)))]
        wd = self.wds("rest", ps)
        tail0 = xfirst[(S0, 0)]
        xs = []
        for n_ in range(UP, 32):
            s, b = divmod(n_, 2)
            due = min(xfirst[(s, b)], tail0 - (31 - n_) * OPT["g_xsp"])
            xs.append((due, xlast[(s - XR_, b)] + 1 if s >= XR_ else 0, xl[n_]))
        n_ = OPT["g_stat"]
        xs[n_:n_] = [(xs[n_][0], 0, g) for g in g_st]
        P = lambda key: OPT["g_%s%d" % (key, ps)] / 10
        pos, fab, ix, iw, idd, seq = 0.0, 0.0, 0, 0, 0, []
        stop = end[6] - OPT["g_tail"]
        while ix < len(xs) or iw < len(wl) or (idd < len(wd) and pos <= stop):
            xok = ix < len(xs) and xs[ix][1] <= pos
            xu = xok and xs[ix][0] - pos <= P("xlead")
            wok = iw < len(wl) and wl[iw][0] <= pos
            wu = wok and wdue[iw] - pos <= P("wmin")
            free = fab <= pos + P("slack")
            if xu and (not wu or xs[ix][0] <= wdue[iw] - P("wmin") + P("xlead")): pick = "x"
            elif wu: pick = "w"
            elif free and wok and wdue[iw] - pos <= P("wmax"): pick = "w"
            elif free and idd < len(wd) and pos <= stop: pick = "d"
            elif xok and xs[ix][0] - pos <= P("xmax"): pick = "x"
            else:
                pos = int(pos) + 1; continue
            if pick == "x": g = xs[ix][2]; ix += 1
            elif pick == "w": g = wl[iw][1]; iw += 1; fab = max(fab, pos) + P("wcost")
            else: g = wd[idd]; idd += 1; fab = max(fab, pos) + P("dcost")
            behind = (ix < len(xs) and xs[ix][0] - pos < 0.7 * P("xlead")) or (iw < len(wl) and wdue[iw] - pos < 0.7 * P("wmin"))
            seq.append((pos, g)); pos += 2.0 if behind else P("every")
            if g is g_st[1]: stpos = pos
        assert not sl.pace(seq, 0, 0)
        left = wd[idd:]
        st = [[("wvm", "st")]]
        for r_ in (SS, SS + 4):
            for o in (0, 1): st.append([("i", "v_add_f32 v%d, v%d, v%d" % (r_ + o, r_ + o, r_ + 2 + o))])
        for o in (0, 1): st.append([("i", "v_permlane32_swap_b32 v%d, v%d" % (SS + o, SS + 4 + o))])
        for o in (0, 1): st.append([("i", "v_add_f32 v%d, v%d, v%d" % (SS + o, SS + o, SS + 4 + o))])
        for o in (0, 1): st.append([("i", "v_mov_b32 v%d, v%d" % (SS + 2 + o, SS + o))])
        for k in range(3): st.append([("i", "v_add_u32 v%d, %d, v%d" % (CSA + k, k << 16, vFL))])
        for o in (0, 1): st.append([("i", "v_permlane16_swap_b32 v%d, v%d" % (SS + o, SS + 2 + o))])
        for o in (0, 1): st.append([("i", "v_add_f32 v%d, v%d, v%d" % (SS + o, SS + o, SS + 2 + o))])
        st += [[op] for op in self.ln_from_sums(SS, SS + 1, SS + 2)]
        st += [[("i", "v_cvt_pk_bf16_f32 v%d, -v%d, -v%d" % (NM + k, SS, SS))] for k in range(4)]
        st += [[("i", "v_mul_f32 v%d, v%d, v%d" % (SS + 1, SS + 1, SS + 1))],
               [("i", "s_lshr_b32 %s, %s, 3\ns_add_u32 %s, %s, %d" % (sT0, sLW, sT0, sT0, L_RS))],
               [("i", "v_and_or_b32 v%d, v%d, 63, %s" % (SS, vFL, sT0))], [("i", "v_and_b32 v%d, 32, v0" % (SS + 2))],
               [("i", "v_lshl_add_u32 v%d, v%d, 1, v%d" % (SS, SS + 2, SS))]]
        st += [[("i", "v_permlane32_swap_b32 v%d, v%d" % (NM + k, NM + 2 + k))] for k in range(2)] + [[("mark", "nm")]]
        sl.after(tail0 - 2 * LA, ("need", "nm"))
        sl.spread(st, int(stpos) + 40, tail0 - 2 * LA - 10)
        def epi(bl, packed=False):
            g = []
            for b in range(2):
                ga = acc(bl, 0, b)
                g += [[("i", "v_max_f32 v%d, 0, v%d" % (ga + r, ga + r))] for r in range(4)]
                if packed: g += [[("i", "v_pk_mul_f32 %s, %s, %s" % (vr(ga + r, 2), vr(ga + r, 2), vr(ga + 4 + r, 2)))] for r in (0, 2)]
                else: g += [[("i", "v_mul_f32 v%d, v%d, v%d" % (ga + r, ga + r, ga + 4 + r))] for r in range(4)]
                g += [[("i", "v_cvt_pk_bf16_f32 v%d, v%d, v%d" % (HPK + 2 * b + k, ga + 2 * k, ga + 2 * k + 1))] for k in range(2)]
            g.append([("i", "s_add_u32 %s, %s, %s" % ((sTS, sTS, sHSTEP) if bl else (sTS, sHST, LY.HB[ps])))])
            g += [[("i", "v_permlane16_swap_b32 v%d, v%d" % (HPK + k, HPK + 2 + k))] for k in range(2)]
            g.append([("vm", "buffer_store_dwordx4 %s, v%d, %s, %s offen%s" % (vr(HPK, 4), vL16, WS, sTS, " sc1" if str(ps) in OPT["h_wt"] else ""), "h%d" % bl)])
            return g
        for bl in range(6): sl.spread(epi(bl), end[bl] + 1, end[bl + 1] - OPT["g_epi"])
        l_e, g_e = self.check_ops(6 * ps + 3, sMB, SS + 3, "he")
        sl.put("f", end[3] + OPT["g_sig%d" % ps], self.signal_ops(6 * ps + 3, "h2", SS + 4))
        self.pending = self.signal_ops(6 * ps + 4, "h4", SS + 4)
        if OPT["d_sig2"] < 0:
            sl.put("f", end[5] + OPT["g_sig%d" % ps], self.pending); self.pending = None
        nh = OPT["g_h%d" % ps]
        assert S0 >= 10 and nh <= 12
        p = end[6] - OPT["g_chk%d" % ps]
        sl.put("h", p - OPT["g_lat"], l_e)
        if nh:
            sl.put("h", p, g_e); g_e = []
            assert not sl.pace(self.dn_plan(ps)[2][:nh], p + 1, min(4.4, (end[6] - p - 2) / nh), name="h")
        sl.put("g", tail0, self.flat(self.code_touch("L_dn%d" % ps, SS + 3)))
        sl.put("c", max(tail0, barpos[2 + max(c for c in range(14) if self.wg_slot(c, ps) == 6)] + 1), [("ds", "ds_write_b32 v%d, v%d" % (SS, SS + 1))])
        if ps == 0:
            sl.put("c", end[6] - 8, [("i", "s_or_b32 %s, s2, %s" % (sT0, sW)), ("atom", "s_cmp_eq_u32 %s, 0\ns_cselect_b32 %s, %d, 0x%x" % (sT0, sT0, LY.EPOCH, OOB)),
                                     ("i", "v_mov_b32 v%d, %s" % (SS + 2, sNONCE)),
                                     ("vm", "buffer_store_dword v%d, v%d, %s, %s offen" % (SS + 2, vF1, WS, sT0))])
        self.lite(sl, "g", [56 * k for k in range(8)])
        self.report("gu%d" % ps, sl.emit(a))
        a.run_all(self.flat(epi(6, True)))
        self.stamp()
        a.run_all(g_e)
        self.stamp()
        print("  gu: %d loads left for the hand-off" % len(left))
        return nh, left

    def build(self):
        a = self.a
        self.startup()
        for ps in range(2):
            a.I("L_qkv%d:" % ps); self.qkv(ps)
            a.I("L_wo%d:" % ps); self.wo(ps)
            a.I("L_gu%d:" % ps); left = self.gu(ps)
            a.I("L_dn%d:" % ps); self.dn(ps, *left)
        if OPT["stamps"]:
            a.I("s_waitcnt vmcnt(0)\ns_memrealtime s[6:7]\ns_memtime s[80:81]\ns_waitcnt lgkmcnt(0)\nv_writelane_b32 v%d, s6, 63\nv_writelane_b32 v%d, s80, 61" % (vSTAMP, vSTAMP))
            a.I("s_lshl_b32 %s, s2, 10\ns_lshl_b32 %s, %s, 8\ns_add_u32 %s, %s, %s\ns_add_u32 %s, %s, %d" % (sT0, sT1, sW, sT0, sT0, sT1, sT0, sT0, LY.STAMP))
            a.I("buffer_store_dword v%d, v%d, %s, %s offen" % (vSTAMP, vFL, WS, sT0))
        if OPT["diagpad"]:
            a.I("s_mov_b32 s82, %d" % OPT["diagpad"])
            if OPT["diagat"]:
                a.I("s_sub_u32 s83, s%d, s14\ns_lshl_b32 s83, s83, 2" % sST)
                if OPT["diagwg"] >= 0: a.I("s_cmp_eq_u32 s2, %d\ns_cselect_b32 s83, s83, 0" % OPT["diagwg"])
                a.I("s_add_u32 s82, s82, s83")
            a.I("L_pad:\ns_memrealtime s[80:81]\ns_waitcnt lgkmcnt(0)\ns_sub_u32 s80, s80, s14\ns_cmp_lt_u32 s80, s82\ns_cbranch_scc1 L_pad")
        a.I("L_main_done:\ns_endpgm")
        for c in self.cold: a.I(c)
        a.I("L_code_end:")
        return a.lines

def main():
    ml, n2 = hazard_pass(Main().build())
    k = NAME + "_kernel"
    out = ["; Generated by gen/gen.py: one persistent kernel (weight re-layout, then four layers with flag hand-offs). " + " ".join(sys.argv[2:]),
           "; @launch grid=(256,1,1) block=(256,1,1) lds=163840",
           '.amdgcn_target "amdgcn-amd-amdhsa--gfx950"', ".text",
           ".globl %s" % k, ".p2align 8", ".type %s,@function" % k]
    out += [l if l.endswith(":") else "    " + l for l in ml]
    out += ['.section .rodata,"a"', ".p2align 6", """.amdhsa_kernel %s
  .amdhsa_next_free_vgpr 512
  .amdhsa_next_free_sgpr 102
  .amdhsa_accum_offset 256
  .amdhsa_group_segment_fixed_size 0
  .amdhsa_kernarg_size 80
  .amdhsa_user_sgpr_count 2
  .amdhsa_user_sgpr_kernarg_segment_ptr 1
  .amdhsa_system_sgpr_workgroup_id_x 1
  .amdhsa_float_denorm_mode_32 3
.end_amdhsa_kernel""" % k]
    if OPT["rt"]: out = [l.replace("s_memtime", "s_memrealtime") for l in out]
    open(sys.argv[1], "w").write("\n".join(out) + "\n")
    print("instructions: %d ; wait states added: %d" % (len(ml), n2))

main()
```

```python
import sys
from dsl import Asm, Slots, hazard_pass
import layout as LY

NAME = "interleave_layers__sliding_local_dilated__glu_gated_reglu__prompt"
OPT = dict(stamps=0, lite="-", hitw=0,
           q_up=8, q_every=45, q_hf=8, q_chk=6, q_h0=10, a_every=14, k_up=8, g_up=4, g_tail=0, g_la=6, g_xsp=11, g_stat=6,
           g_every0=36, g_xlead0=400, g_wmin0=600, g_wmax0=1000, g_slack0=40, g_wcost0=60, g_dcost0=30,
           g_xmax0=9000, g_xmax1=800, g_every1=46, g_xlead1=400, g_wmin1=560, g_wmax1=700, g_slack1=40, g_wcost1=60, g_dcost1=30,
           wq_late1="-", dn_pre=6, q0_up=6, q0_lead=20, q0_every=20,
           wg_att0="0", wg_h10="-", wg_wo0="1", wg_h20="-",
           wg_att1="01", wg_h11="-", wg_wo1="2", wg_h21="-",
           keep="2345", q_wbar=12, w_pre=20, w_up=8, w_quiet=12, d_sig0=16, d_sig1=16, d_up2=11, d_ramp=8, d_mid0=-1, d_mid1=-1, d_chk=8, g_epi=6, g_sig0=27, g_sig1=16, g_chk0=20, g_chk1=26, g_lat0=18, g_lat1=18, g_h0=4, g_h1=6,
           touch=0, h_wt="-", wb=0, otouch=1, diagpad=0, diagat=0, diagwg=100, b_pos=1, q0_split=0, q0_n1=6, q0_hf=6, order="ao", rt=0, outf="-", c_early=0, b_spread=0, b_first=0, b_gap=3, pollf="nt", actf="sc1", wf="sc1", cpf=1, predrain=1, q0_b=0, q0_fbch=3, q0_fbs=15, q0_w=6, q0_tail=45, a_quiet=30, wd_q=0, wd_att=0, wd_h1=0, wd_wo=0, wd_h2=0)
for arg in sys.argv[2:]:
    k, v = arg.split("=")
    OPT[k] = v if isinstance(OPT[k], str) else int(v)

def vr(b, n): return "v[%d:%d]" % (b, b + n - 1)
def ar(b, n): return "a[%d:%d]" % (b, b + n - 1)
def magic(d): return (1 << 32) // d + 1
OOB = 0x40000000
GS0 = LY.GS0

WS, XIN, OUT = "s[8:11]", "s[12:15]", "s[16:19]"
sW, sJ, sR, sC, sG, sN, sNONCE, sSLOW = ("s%d" % i for i in range(20, 28))
sGB, sXLD, sXST, sOST, sXR, sHST, sSLD, sWQ, sWG, sWO, sWD, sLW = ("s%d" % i for i in range(28, 40))
sMA, sMB = "s[40:41]", "s[42:43]"
sFLG, sFLW, sHALO, sHFL, sTAB, sSST, sONE, sHDST, sHDFL, sP = ("s%d" % i for i in range(44, 54))
sMH = "s[54:55]"
sTA, sTW, sTD, sTS, sT0, sT1, sT2, sSPIN = ("s%d" % i for i in range(56, 64))
sHLD = ["s%d" % i for i in range(68, 72)]
sXW = ["s%d" % i for i in range(72, 75)]
sFBO, sB0, sB1, sB2, sB3 = "s75", "s76", "s77", "s78", "s79"
SRC_A, SRC_G, SRC_U, SRC_D = 80, 84, 88, 92
sLW2, sLW4, sWQ4, sWG4 = "s96", "s97", "s98", "s99"
sST = 100
sHALO2 = sP
sNH, sCPO, sPC, sSLOW2 = "s12", "s13", "s[4:5]", "s[0:1]"
sOL, sHSTEP, sMC = "s64", "s65", "s[66:67]"
vL, vL16, vL16b, vL16c, vQ, vF1, vFL, vSTAMP = 0, 1, 2, 3, 4, 5, 6, 7
XRES = 8
PA, PB = 22, 23
X, ACC, F = 32, 160, 224
aROW, aST, aSQ, aSH, aSG, aHX, aHWR, aHWS, aHST, aHSS, aFB, aLINE, aTO, aTH = range(224, 238)
aBC, aBP, aBP0, aMC = 240, 244, 248, 252
L_HALO, L_RS, L_KV, L_TAB, L_FMT = 102400, 110592, 114688, 124928, 131072
L_SCR_DN = 114688
WO_SLOT = (8, 9, 0, 1)
DN_S = ((2, 3, 4, 9, 10, 11), (1, 5, 8, 12), (0, 6, 7, 13))
DN_ORD = sum(DN_S, ())
NEG = "0xf149f2ca"

def ldsaddr(off):
    return "v%d offset:%d" % ((vL16, vL16b, vL16c)[off >> 16], off & 0xffff)

def isvm(g): return any(op[0] == "vm" for op in g)

class Main:
    def __init__(self):
        self.a = Asm()
        self.nstamp = 0
        self.cold = []
        self.nlite = 0
        self.wd = None
        self.ncall = 0

    def stamp(self, key=None):
        self.ncall += 1
        if OPT["diagpad"] and OPT["diagat"] == self.ncall:
            self.a.I("s_memrealtime s[%d:%d]" % (sST, sST + 1))
            self.a.ds_drain(force=True)
        if OPT["stamps"] != 1 or (key is not None and OPT["lite"] != key):
            return
        a = self.a
        a.I("s_memtime s[%d:%d]" % (sST, sST + 1))
        a.ds_drain(force=True)
        for k in range(self.nlite):
            a.I("v_writelane_b32 v%d, s%d, %d" % (vSTAMP, 80 + 2 * k, self.nstamp))
            self.nstamp += 1
        self.nlite = 0
        a.I("v_writelane_b32 v%d, s%d, %d" % (vSTAMP, sST, self.nstamp))
        self.nstamp += 1

    def lite(self, sl, key, slots):
        if OPT["lite"] != key:
            return
        for i in slots[:8]:
            sl.after(i, ("i", "s_memtime s[%d:%d]" % (80 + 2 * self.nlite, 81 + 2 * self.nlite)))
            self.nlite += 1

    def report(self, name, r):
        print("  %s: cycles over budget %d, ops left after the loop %d" % ((name,) + r))

    def getc(self, v, acc): return "v_accvgpr_read_b32 v%d, a%d" % (v, acc)
    def flat(self, groups): return [op for g in groups for op in g]
    def digits(self, key): return tuple(int(c, 16) for c in str(OPT[key]) if c != "-")
    def wgs(self, where, ps): return [g for i in self.digits("wg_%s%d" % (where, ps)) for g in self.wg_chunk(i, ps)]
    def wg_early(self, ps): return sum((self.digits("wg_%s%d" % (w, ps)) for w in ("att", "h1", "wo", "h2")), ())
    def wq_late(self, ps): return tuple(range(7)) if ps == 0 else self.digits("wq_late1")

    def srd(self, base, lo, hi, nbytes):
        self.a.I("s_mov_b32 s%d, %s\ns_and_b32 s%d, %s, 0xffff\ns_mov_b32 s%d, %s\ns_mov_b32 s%d, 0x20000" %
                 (base, lo, base + 1, hi, base + 2, nbytes, base + 3))

    def lin(self, dst, base, terms):
        first = True
        for reg, mul in terms:
            self.a.I("s_mul_i32 %s, %s, %d\ns_add_u32 %s, %s, %s" % (sT2, reg, mul, dst, base if first else dst, sT2))
            first = False

    def sdivmod(self, q, r, x, d):
        self.a.I("s_mul_hi_u32 %s, %s, 0x%x\ns_mul_i32 %s, %s, %d\ns_sub_u32 %s, %s, %s" % (q, x, magic(d), sT2, q, d, r, x, sT2))

    def hi_lo(self, dst, src, t):
        return ["v_cvt_pk_bf16_f32 v%d, v%d, v%d" % (dst, src, src), "v_lshlrev_b32 v%d, 16, v%d" % (t, dst),
                "v_sub_f32 v%d, v%d, v%d" % (t, src, t), "v_cvt_pk_bf16_f32 v%d, v%d, v%d" % (dst, src, t)]

    def weave(self, body, groups, first, every):
        k = 0
        for n_, op in enumerate(body):
            if n_ >= first and (n_ - first) % every == 0:
                while k < len(groups):
                    g = groups[k]; k += 1
                    self.a.run_all(g)
                    if isvm(g): break
            self.a.run(op)
        return groups[k:]

    def signal(self, h, wait=None, halo_pass=None):
        a = self.a
        slow, done = a.label("slow"), a.label("sig")
        a.I("s_add_u32 %s, %s, %d\nv_mov_b32 v30, %s" % (sNH, sNONCE, h, sNH))
        if halo_pass is not None:
            h1, b1, h2, b2 = a.label("halo"), a.label("hback"), a.label("halo"), a.label("hback")
            n = a.vm_n - max(a.vm_tag[wait], a.vm_done)
            a.I("s_cmp_lg_u32 %s, 0x%x\ns_cbranch_scc1 %s" % (sHDST, OOB, h1))
            st = "\n".join("buffer_store_dwordx4 %s, v24, %s, %s offen offset:%d sc1" % (vr(XRES + 4 * e, 4), WS, sTS, e * 512) for e in range(2))
            self.cold.append("%s:\n%s\n%s\ns_add_u32 %s, %s, %d\n%s\nbuffer_store_dword v26, v25, %s, %s offen sc1\ns_waitcnt vmcnt(%d)\ns_branch %s" %
                             (h1, self.getc(24, aHST), self.getc(25, aHSS), sTS, sHDST, LY.HX[halo_pass], st, WS, sTS, n + 3, b1))
            self.cold.append("%s:\ns_add_u32 %s, %s, %d\nv_mov_b32 v24, %s\n%s\ns_waitcnt vmcnt(1)\nbuffer_store_dword v24, v25, %s, %s offen sc1\ns_branch %s" %
                             (h2, sTS, sHDFL, halo_pass * 16384, sNONCE, self.getc(25, aLINE), WS, sTS, b2))
            a.vm_wait(wait)
            a.I("%s:\ns_cmp_lg_u32 %s, 0" % (b1, sSLOW))
        else:
            a.I("s_cmp_lg_u32 %s, 0" % sSLOW)
            if wait is None: a.vm_drain()
            else: a.vm_wait(wait)
        a.I("s_cbranch_scc1 %s" % slow)
        a.vm("buffer_store_dword v30, v%d, %s, %s offen" % (vF1, WS, sFLW))
        a.I("%s:" % done)
        self.cold.append("%s:\nbuffer_wbl2 sc1\ns_waitcnt vmcnt(0)\nbuffer_store_dword v30, v%d, %s, %s offen sc1\ns_branch %s" % (slow, vF1, WS, sFLW, done))
        self.sent = h
        if halo_pass is not None:
            a.I("s_cmp_lg_u32 %s, 0x%x\ns_cbranch_scc1 %s\n%s:" % (sHDST, OOB, h2, b2))

    def poll(self, h, mask, also=None, setup=None):
        a = self.a
        a.forget()
        assert self.sent == h
        if setup: setup()
        def loop(name, fl):
            ld = "buffer_load_dword v%d, v%d, %s, %s offen %s" % (PA, vFL, WS, sFLG, fl)
            ts = "v_subrev_u32 v%d, %s, v%d\nv_cmp_lt_u32 vcc, 15, v%d\ns_and_b64 vcc, vcc, %s" % (PA, sNH, PA, PA, mask)
            if also is not None:
                ld += "\nbuffer_load_dword v%d, v%d, %s, 0 offen sc1" % (PB, also, WS)
                ts = "v_cmp_ne_u32 s[60:61], %s, v%d\n%s\ns_or_b64 vcc, vcc, s[60:61]" % (sNONCE, PB, ts)
            return "%s:\n%s\ns_sub_u32 %s, %s, 1\ns_cbranch_scc1 L_main_done\ns_waitcnt vmcnt(0)\n%s\ns_cbranch_scc1 %s" % (name, ld, sSPIN, sSPIN, ts, name)
        far, ok = a.label("far"), a.label("ok")
        a.I("s_mov_b32 %s, 0x40000\ns_cmp_lg_u32 %s, 0\ns_cbranch_scc1 %s" % (sSPIN, sSLOW, far))
        a.I(loop(a.label("poll"), OPT["pollf"]) + "\n%s:" % ok)
        a.vm_done = a.vm_n
        self.cold.append(loop(far, "sc1") + "\nbuffer_inv sc1\ns_waitcnt vmcnt(0)\ns_branch %s" % ok)

    def signal_ops(self, h, wait, reg):
        a = self.a
        slow, done = a.label("slow"), a.label("sig")
        self.cold.append("%s:\nbuffer_wbl2 sc1\ns_waitcnt vmcnt(0)\nbuffer_store_dword v%d, v%d, %s, %s offen sc1\ns_branch %s" % (slow, reg, vF1, WS, sFLW, done))
        return [("i", "s_add_u32 %s, %s, %d" % (sNH, sNONCE, h)), ("i", "v_mov_b32 v%d, %s" % (reg, sNH)), ("wvm", wait),
                ("vm", "s_cmp_lg_u32 %s, 0\ns_cbranch_scc1 %s\nbuffer_store_dword v%d, v%d, %s, %s offen\n%s:" % (sSLOW, slow, reg, vF1, WS, sFLW, done))]

    def check_ops(self, h, mask, reg, tag):
        a = self.a
        spin, back = a.label("cspin"), a.label("cback")
        ld = lambda fl: "buffer_load_dword v%d, v%d, %s, %s offen %s" % (reg, vFL, WS, sFLG, fl)
        t = ["v_subrev_u32 v%d, s3, v%d" % (reg, reg), "v_cmp_lt_u32 vcc, 15, v%d" % reg, "s_and_b64 vcc, vcc, %s" % mask]
        loop = lambda name, fl: "%s:\n%s\ns_sub_u32 %s, %s, 1\ns_cbranch_scc1 L_main_done\ns_waitcnt vmcnt(0)\n%s\ns_cbranch_scc1 %s" % (name, ld(fl), sSPIN, sSPIN, "\n".join(t), name)
        self.cold.append("%s:\ns_mov_b32 %s, 0x40000\ns_cmp_lg_u32 %s, 0\ns_cbranch_scc1 %s_f\n%s\ns_branch %s\n%s\nbuffer_inv sc1\ns_waitcnt vmcnt(0)\ns_branch %s" %
                         (spin, sSPIN, sSLOW, spin, loop(spin + "_n", OPT["pollf"]), back, loop(spin + "_f", "sc1"), back))
        return [("vm", ld(OPT["pollf"]), tag)], [("i", "s_add_u32 s3, %s, %d" % (sNONCE, h)), ("wvm", tag), ("i", t[0]), ("i", t[1]),
                                                ("atom", "%s\ns_or_b64 vcc, vcc, %s\ns_cbranch_scc1 %s\n%s:" % (t[2], sSLOW2, spin, back))]

    def late_check(self, load, reg, mask, tag):
        a = self.a
        spin, back = a.label("lspin"), a.label("lback")
        cmp_, and_ = "v_cmp_ne_u32 vcc, %s, v%d" % (sNONCE, reg), "s_and_b64 vcc, vcc, %s" % mask
        self.cold.append("%s:\ns_mov_b32 %s, 0x40000\n%s_l:\n%s\ns_sub_u32 %s, %s, 1\ns_cbranch_scc1 L_main_done\ns_waitcnt vmcnt(0)\n%s\n%s\ns_cbranch_scc1 %s_l\ns_branch %s"
                         % (spin, sSPIN, spin, load, sSPIN, sSPIN, cmp_, and_, spin, back))
        return [("vm", load, tag)], [("wvm", tag), ("i", cmp_), ("atom", and_ + "\ns_cbranch_scc1 %s\n%s:" % (spin, back))]

    def dma_chunk(self, sbase, goff, loff, n, tag, sc=""):
        sw = {1: sLW, 2: sLW2, 4: sLW4}[n]
        setup = [("set", sTW, "s_add_u32 %s, %s, %d" % (sTW, sbase, goff)), ("set", "m0", "s_add_u32 m0, %s, %d" % (sw, loff))]
        return [setup + [("vm", "buffer_load_dwordx4 v%d, %s, %s offen offset:%d%s lds" % (vL16, WS, sTW, k * 1024, sc), tag if k == n - 1 else None)]
                for k in range(n)]

    def wq_chunk(self, i): return self.dma_chunk(sWQ4 if i < 6 else sWQ, i * 16384, i * 16384, 4 if i < 6 else 1, ("wq", i), " " + OPT["wf"].strip("-"))
    def kept(self): return self.digits("keep")
    def ring(self, ps):
        return [k for k in (2, 3, 4, 5, 6, 7, 8, 9, 0, 1) if ps or k not in self.kept()]
    def wg_slot(self, i, ps): return self.ring(ps)[i % len(self.ring(ps))]
    def wo_chunk(self, i): return self.dma_chunk(sWO, i * 16384, WO_SLOT[i] * 16384, 4, ("wo", i), " " + OPT["wf"].strip("-"))
    def wg_chunk(self, i, ps): return self.dma_chunk(sWG4 if i < 14 else sWG, i * 16384, self.wg_slot(i, ps) * 16384, 4 if i < 14 else 2, ("wg", i), " " + OPT["wf"].strip("-"))

    def reg_loads(self, dsts, bases, offs, stmp, vaddr, tagbase):
        ops, cur = [], None
        for k, (d, sb, off) in enumerate(zip(dsts, bases, offs)):
            if cur is None or cur[0] != sb or not (0 <= off - cur[1] < 4096):
                cur = (sb, off)
            ops.append([("set", stmp, "s_add_u32 %s, %s, %d" % (stmp, sb, cur[1])),
                        ("vm", "buffer_load_dwordx4 %s, v%d, %s, %s offen offset:%d %s" % (d, vaddr, WS, stmp, off - cur[1], OPT["wf" if tagbase[0] == "w" else "actf"].strip("-")), (tagbase, k))])
        return ops

    def touch(self, acc, sbase, off, tmp):
        return [[("i", self.getc(tmp, acc) + "\ns_add_u32 %s, %s, %d" % (sT1, sbase, off)),
                 ("vm", "buffer_load_dword a255, v%d, %s, %s offen sc1" % (tmp, WS, sT1))]]

    def code_touch(self, label, tmp, n=1):
        if not OPT["cpf"]: return []
        return [[("i", "s_add_u32 s15, %s, %s-L_pc+%d" % (sCPO, label, 16384 * k)), ("i", "s_min_u32 s15, s15, L_code_end-L_pc-4"),
                 ("i", "v_mov_b32 v%d, s15" % tmp), ("vm", "global_load_dword a255, v%d, %s" % (tmp, sPC))] for k in range(n)]

    def ln_from_sums(self, s1, s2, t):
        return [("i", x) for x in (
            "v_mul_f32 v%d, 0x3b000000, v%d" % (s1, s1),
            "v_mul_f32 v%d, v%d, v%d" % (t, s1, s1),
            "v_mul_f32 v%d, 0x3b000000, v%d" % (s2, s2),
            "v_sub_f32 v%d, v%d, v%d" % (s2, s2, t),
            "v_max_f32 v%d, 0, v%d" % (s2, s2),
            "v_cvt_pk_bf16_f32 v%d, v%d, v%d" % (s2, s2, s2),
            "v_lshlrev_b32 v%d, 16, v%d" % (s2, s2),
            "v_add_f32 v%d, 0x3727c5ac, v%d" % (s2, s2),
            "v_cvt_pk_bf16_f32 v%d, v%d, v%d" % (s2, s2, s2),
            "v_lshlrev_b32 v%d, 16, v%d" % (s2, s2),
            "v_sqrt_f32 v%d, v%d" % (s2, s2),
            "v_cvt_pk_bf16_f32 v%d, v%d, v%d" % (s2, s2, s2),
            "v_lshlrev_b32 v%d, 16, v%d" % (s2, s2),
            "v_rcp_f32 v%d, v%d" % (s2, s2))]

    def publish(self, xi):
        a = self.a
        S1, S2, S3, S4, AD = 26, 27, 28, 29, 25
        a.I("s_add_u32 %s, %s, %d" % (sTS, sXST, LY.XB[xi]))
        for e in range(2):
            a.vm("buffer_store_dwordx4 %s, v%d, %s, %s offen offset:%d%s" % (vr(XRES + 4 * e, 4), vQ, WS, sTS, e * 2048, " sc1" if xi == 0 else ""))
        for k in range(4):
            for d, p, o in ((S1, XRES + k, sONE), (S2, XRES + k, None), (S3, XRES + 4 + k, sONE), (S4, XRES + 4 + k, None)):
                a.I("v_dot2_f32_bf16 v%d, v%d, %s, %s" % (d, p, o or "v%d" % p, "v%d" % d if k else "0"))
        a.I(self.getc(AD, aST) + "\ns_add_u32 %s, %s, %d" % (sTS, sSST, LY.SB[xi]))
        a.I("v_add_f32 v%d, v%d, v%d\nv_add_f32 v%d, v%d, v%d" % (S1, S1, S3, S2, S2, S4))
        a.I("v_permlane32_swap_b32 v%d, v%d\nv_add_f32 v%d, v%d, v%d\nv_mov_b32 v%d, v%d" % (S1, S2, S1, S1, S2, S2, S1))
        a.I("v_permlane16_swap_b32 v%d, v%d\nv_add_f32 v%d, v%d, v%d" % (S1, S2, S1, S1, S2))
        a.vm("buffer_store_dword v%d, v%d, %s, %s offen" % (S1, AD, WS, sTS), "pub")

    def startup(self):
        a = self.a
        lin = self.lin
        t8, kc, tok, g, hh, t32, u0, u1, rr, cc, q16, vA, vR, vB, vD, TA0, TA1, TD, TG, CSW, XA, XV, FAV, LINE = range(F, F + 24)
        ONES = F + 24
        def put(acc): a.I("v_accvgpr_write_b32 a%d, v%d" % (acc, u1))
        a.I("%s_kernel:" % NAME)
        a.I("s_cmp_ge_u32 s2, 256\ns_cbranch_scc1 L_main_done")
        a.I("s_load_dwordx16 s[64:79], s[0:1], 0\ns_load_dwordx2 s[4:5], s[0:1], 72")
        if OPT["stamps"] or OPT["diagpad"]:
            a.I("s_memrealtime s[98:99]")
        if OPT["stamps"]:
            a.I("s_memtime s[%d:%d]" % (sST, sST + 1))
        a.I("s_getpc_b64 s[56:57]\nL_pc:\ns_lshr_b32 s58, s2, 3\ns_lshl_b32 s58, s58, 11")
        a.I("v_lshrrev_b32 v16, 6, v0\nv_lshrrev_b32 v17, 4, v0\nv_lshlrev_b32 v17, 7, v17\nv_add_u32 v17, s58, v17")
        a.I("v_min_u32 v17, L_code_end-L_pc-4, v17\nv_and_b32 v0, 63, v0\nv_readfirstlane_b32 %s, v16" % sW)
        a.vm("global_load_dword a255, v17, s[56:57]")
        a.I("s_and_b32 %s, s2, 7\ns_bfe_u32 %s, s2, 0x40003\ns_lshr_b32 %s, s2, 7" % (sN, sJ, sP))
        a.I("s_lshr_b32 %s, %s, 3\ns_and_b32 %s, %s, 7" % (sR, sJ, sC, sJ))
        a.I("v_and_b32 v%d, 7, v0\nv_lshrrev_b32 v%d, 3, v0\nv_and_b32 v%d, 15, v0\nv_lshrrev_b32 v%d, 4, v0" % (t8, kc, tok, g))
        cuA, kkA, stA, cuG, kkG, sSG, sSD, kkD = "s28", "s29", "s30", "s32", "s33", "s6", "s7", "s36"
        self.sdivmod(kkA, cuA, "s2", 24)
        a.I("s_sub_u32 %s, s2, 192\ns_lshr_b32 %s, %s, 3" % (sT0, sT0, sT0))
        a.I("s_cmp_lt_u32 s2, 192\ns_cselect_b32 %s, %s, %s\ns_cselect_b32 %s, %s, %s\ns_cselect_b32 %s, 3, 1\ns_lshl_b32 %s, %s, 10" %
            (cuA, cuA, sN, kkA, kkA, sT0, stA, stA, stA))
        a.I("v_lshlrev_b32 v%d, 4, v%d\nv_mad_u32_u24 v%d, v%d, %s, v%d" % (u0, t8, vA, kc, stA, u0))
        a.I("s_lshl_b32 %s, %s, 2\ns_add_u32 %s, %s, %s\ns_lshl_b32 %s, %s, 4\ns_mul_i32 %s, %s, %s" % (sT0, kkA, sT0, sT0, sW, sT0, sT0, sT0, sT0, stA))
        a.I("s_lshl_b32 %s, %s, 7\ns_add_u32 %s, %s, %s\ns_lshl_b32 %s, %s, 3\ns_add_u32 %s, %s, %s\ns_sub_u32 %s, %s, 1024" %
            (sT1, cuA, sT0, sT0, sT1, sT1, stA, sT1, sT1, sT0, sT1, sT1))
        a.I("s_lshl_b32 %s, %s, 11\ns_add_u32 m0, %s, %d" % (sLW2, sW, sLW2, L_FMT))
        a.I("s_lshl_b32 s31, %s, 1\ns_add_u32 s31, s31, %s\ns_lshl_b32 s31, s31, 2\ns_add_u32 s31, s31, %s\ns_lshl_b32 s31, s31, 5" % (sN, sR, sW))
        a.I("s_add_u32 s31, s31, %s\ns_lshl_b32 s31, s31, 3\ns_add_u32 s31, s31, %s\ns_lshl_b32 s31, s31, 7" % (sP, sC))
        a.I("v_lshlrev_b32 v%d, 11, v%d\nv_lshl_add_u32 v%d, v%d, 4, v%d\nv_add_u32 v%d, s31, v%d" % (vR, tok, vR, g, vR, vR, vR))
        a.I("s_waitcnt lgkmcnt(0)")
        a.I("s_load_dword %s, s[4:5], %d" % (sNONCE, LY.EPOCH))
        a.I("s_cmp_lt_u32 s2, 192\ns_cselect_b32 s%d, s66, s68\ns_cselect_b32 s%d, s67, s69\ns_and_b32 s%d, s%d, 0xffff" % (SRC_A, SRC_A + 1, SRC_A + 1, SRC_A + 1))
        a.I("s_lshl_b32 s%d, %s, 9\ns_mov_b32 s%d, 0x20000" % (SRC_A + 2, stA, SRC_A + 3))
        sa = "s[%d:%d]" % (SRC_A, SRC_A + 3)
        a.vm("buffer_load_dwordx4 v%d, %s, %s offen lds" % (vA, sa, sT0))
        a.vm("buffer_load_dwordx4 v%d, %s, %s offen offset:1024 lds" % (vA, sa, sT1), "fa")
        self.srd(12, "s64", "s65", 2048 * 1024)
        a.vm("buffer_load_dwordx4 %s, v%d, %s, 0 offen" % (vr(XRES, 4), vR, XIN))
        a.vm("buffer_load_dwordx4 %s, v%d, %s, 0 offen offset:64" % (vr(XRES + 4, 4), vR, XIN), "x")
        if OPT["stamps"]:
            a.I("v_mov_b32 v%d, 0\nv_writelane_b32 v%d, s98, 62\nv_writelane_b32 v%d, s%d, 0" % (vSTAMP, vSTAMP, vSTAMP, sST))
            self.nstamp = 1
        if OPT["diagpad"]: a.I("s_mov_b32 s14, s98")
        self.stamp("p")
        self.srd(8, "s4", "s5", LY.WS_USED)
        a.I("s_lshl_b32 %s, %s, 1\ns_add_u32 %s, %s, %s" % (sG, sN, sG, sG, sP))
        lin(sFLG, str(LY.FL), [(sG, 256)])
        lin(sFLW, sFLG, [(sJ, 16), (sW, 4)])
        lin(sSST, str(LY.ACT), [(sG, LY.ACT_STRIDE), (sR, 4096), (sC, 8), (sW, 1024)])
        lin(sTS, sSST, [(sC, 120)])
        a.I("s_add_u32 %s, %s, %d\nv_mov_b32 v%d, %s\nv_mov_b32 v%d, %s\nv_cmp_gt_u32 vcc, 32, v0\nv_cndmask_b32 v%d, v%d, v%d, vcc" %
            (sTS, sTS, LY.SB[0], u1, sTS, XA, sFLW, XA, u1, XA))
        a.vm("buffer_load_dword a255, v%d, %s, 0 offen sc1" % (XA, WS))
        self.sdivmod(kkG, cuG, "s2", 28)
        a.I("v_mul_u32_u24 v%d, 3584, v%d\nv_add_u32 v%d, v%d, v%d\nv_lshl_add_u32 v%d, v%d, 10, v%d" % (vB, kc, vB, vB, u0, vD, kc, u0))
        a.I("s_lshr_b32 %s, s2, 3" % kkD)
        lin(sSG, "0", [(kkG, 64 * 3584), (sW, 16 * 3584), (cuG, 128)])
        lin(sSD, "0", [(kkD, 65536), (sW, 16384), (sN, 128)])
        self.srd(SRC_G, "s72", "s73", 512 * 3584)
        self.srd(SRC_U, "s74", "s75", 512 * 3584)
        self.srd(SRC_D, "s76", "s77", 1792 * 1024)
        def b_loads():
            for srdn, so, va, stride, lo in ((SRC_G, sSG, vB, 3584, 8192), (SRC_U, sSG, vB, 3584, 16384), (SRC_D, sSD, vD, 1024, 24576)):
                a.I("s_add_u32 m0, %s, %d\ns_add_u32 %s, %s, %d" % (sLW2, L_FMT + lo, sT0, so, 8 * stride - 1024))
                a.vm("buffer_load_dwordx4 v%d, s[%d:%d], %s offen lds" % (va, srdn, srdn + 3, so))
                a.vm("buffer_load_dwordx4 v%d, s[%d:%d], %s offen offset:1024 lds" % (va, srdn, srdn + 3, sT0), ("fb", lo))
        if OPT["b_pos"] == 0: b_loads()
        self.srd(16, "s78", "s79", 2048 * 1024)
        a.I("v_accvgpr_write_b32 a%d, v%d\nv_lshlrev_b32 v%d, 4, v0" % (aROW, vR, vL16))
        dA, dA2, dCS = "s3", "s0", "s1"
        a.I("s_and_b32 %s, %s, 7\ns_lshl_b32 %s, %s, 1\ns_lshr_b32 %s, %s, 1\ns_add_u32 %s, %s, %s" % (sT0, cuA, sT0, sT0, sT1, sW, sT0, sT0, sT1))
        a.I("s_mul_i32 %s, %s, %d\ns_add_u32 %s, %s, %d" % (sT0, sT0, LY.WQ_STRIDE, sT0, sT0, LY.WQ))
        a.I("s_lshr_b32 %s, %s, 3\ns_lshl_b32 %s, %s, 1\ns_and_b32 %s, %s, 1\ns_add_u32 %s, %s, %s" % (sT1, cuA, sT1, sT1, sT2, sW, sT1, sT1, sT2))
        lin(dA, sT0, [(kkA, 12288), (sT1, 1024)])
        lin(dCS, sT0, [(kkA, 64), (sT1, 512)])
        a.I("s_add_u32 %s, %s, 98304" % (dCS, dCS))
        lin(sT0, str(LY.WO), [(cuA, LY.WO_STRIDE), (kkA, 8192), (sW, 1024)])
        a.I("s_cmp_lt_u32 s2, 192\ns_cselect_b32 %s, %s, %s\ns_cselect_b32 %s, %s, 0x%x\ns_cselect_b32 %s, 6, 4\ns_cselect_b64 vcc, -1, 0" %
            (dA, dA, sT0, dCS, dCS, OOB, dA2))
        a.I("s_lshl_b32 %s, %s, 10\ns_add_u32 %s, %s, %s" % (dA2, dA2, dA2, dA2, dA))
        a.I("v_bfe_u32 v%d, v0, 2, 2\nv_and_b32 v%d, 3, v0\nv_bfe_u32 v%d, v0, 4, 1\nv_lshrrev_b32 v%d, 5, v0\nv_and_b32 v%d, 31, v0" % (rr, cc, q16, hh, t32))
        a.I("v_lshl_add_u32 v%d, v%d, 3, v%d\nv_lshlrev_b32 v%d, 7, v%d\nv_lshl_add_u32 v%d, v%d, 2, v%d\nv_lshlrev_b32 v%d, 7, v%d" % (u0, g, rr, u0, u0, u1, g, rr, u1, u1))
        a.I("s_lshr_b32 %s, %s, 1\ns_lshl_b32 %s, %s, 6\ns_and_b32 %s, %s, 1\ns_lshl_b32 %s, %s, 3\ns_add_u32 %s, %s, %s\ns_add_u32 %s, %s, %d" %
            (sT0, sW, sT0, sT0, sT1, sW, sT1, sT1, sT0, sT0, sT1, sT0, sT0, L_FMT))
        a.I("v_lshl_add_u32 v%d, v%d, 4, %s\nv_add_u32 v%d, v%d, v%d\nv_add_u32 v%d, v%d, v%d" % (TA1, cc, sT0, TD, TA1, u0, u1, u1, TA1))
        a.I("s_lshl_b32 %s, %s, 5\ns_add_u32 %s, %s, %d\nv_lshl_add_u32 v%d, v%d, 3, %s\nv_add_u32 v%d, v%d, v%d" % (sT0, sW, sT0, sT0, L_FMT, TA0, cc, sT0, u0, u0, TA0))
        a.I("v_mov_b32 v%d, v%d" % (TG, u0))
        a.I("v_cndmask_b32 v%d, v%d, v%d, vcc\nv_add_u32 v%d, 512, v%d\nv_add_u32 v%d, 2048, v%d\nv_cndmask_b32 v%d, v%d, v%d, vcc" % (TA0, u1, u0, u0, u0, u1, u1, TA1, u1, u0))
        for k in range(4): a.I("v_mov_b32 v%d, 0x3f803f80" % (ONES + k))
        a.I("v_lshlrev_b32 v%d, 2, v%d\nv_lshl_add_u32 v%d, v%d, 28, v%d" % (CSW, tok, CSW, g, CSW))
        a.I("s_mov_b32 %s, 0\ns_mov_b32 %s, 0x3f803f80" % (sSLOW, sONE))
        a.I("v_cmp_ne_u32 vcc, 0, v0\nv_mov_b32 v%d, 0x%x\nv_lshlrev_b32 v%d, 2, v0\nv_cndmask_b32 v%d, 0, v%d, vcc" % (vF1, OOB, vFL, vF1, vF1))
        a.I("s_lshl_b32 %s, %s, %d\ns_add_u32 %s, %s, 0x%x" % (sGB, sG, LY.ACT_SHIFT, sGB, sGB, LY.ACT))
        lin(sXLD, sGB, [(sW, 32768)])
        a.I("s_lshr_b32 %s, %s, 1\ns_and_b32 %s, %s, 1" % (sT0, sW, sT1, sW))
        lin(sXST, sGB, [(sR, 65536), (sC, 4096), (sT0, 32768), (sT1, 256)])
        lin(sOST, sXLD, [(sJ, 2048)])
        lin(sT0, str(LY.XF), [(sG, 2048)])
        a.I("v_lshl_add_u32 v%d, v%d, 7, %s\nv_lshl_add_u32 v%d, v%d, 30, v%d\nv_accvgpr_write_b32 a%d, v%d" % (XA, tok, sT0, LINE, hh, vFL, aLINE, LINE))
        a.I("v_lshlrev_b32 v%d, 4, v%d\nv_lshl_add_u32 v%d, v%d, 9, v%d" % (u0, tok, vQ, g, u0))
        a.I("v_lshlrev_b32 v%d, 6, v%d\nv_lshl_add_u32 v%d, v%d, 2, v%d\nv_lshl_add_u32 v%d, v%d, 30, v%d" % (u1, tok, u1, hh, u1, u1, q16, u1)); put(aST)
        def die_id():
            lin(sT0, str(LY.XF), [(sG, 2048), (sJ, 128)])
            a.I("s_cmp_eq_u32 %s, 0\ns_cselect_b32 %s, %s, 0x%x\ns_getreg_b32 %s, hwreg(HW_REG_XCC_ID, 0, 4)" % (sW, sT0, sT0, OOB, sT1))
            a.I("s_waitcnt lgkmcnt(0)\ns_add_u32 %s, %s, 0x9e3779b1\ns_xor_b32 %s, %s, %s\nv_mov_b32 v%d, %s" % (sNONCE, sNONCE, sT1, sT1, sNONCE, XV, sT1))
            a.vm("buffer_store_dword v%d, v%d, %s, %s offen sc1" % (XV, LINE, WS, sT0))
            self.stamp("p")
        if OPT["c_early"] < 2: die_id()
        def constants():
            lin(sB3, str(LY.WD), [(sN, LY.WD_STRIDE), (kkD, 8192), (sW, 1024)])
            a.I("s_lshl_b32 %s, %s, 2\ns_add_u32 %s, %s, %s" % (cuG, cuG, cuG, cuG, sW))
            self.sdivmod(sT0, sT1, cuG, 7)
            lin(sB2, str(LY.WG), [(sT0, LY.WG_STRIDE)])
            a.I("s_sub_u32 %s, 6, %s\ns_bitcmp1_b32 %s, 0\ns_cselect_b32 %s, %s, %s" % (sT2, sT1, sT0, sT1, sT1, sT2))
            S0, TL = GS0, 16 - GS0
            lin(sB0, sB2, [(kkG, 28 * 1024), (sT1, 2048)])
            lin(sB2, sB2, [(sT1, (2 * TL + 1) * 1024)])
            lin(sT0, sB2, [(kkG, 4096)])
            a.I("s_add_u32 %s, %s, %d\ns_cmp_lt_u32 %s, %d\ns_cselect_b32 %s, %s, %s\ns_cselect_b32 %s, 14, 2\ns_lshl_b32 %s, %s, 10" %
                (sT0, sT0, 12 * S0 * 1024, kkG, S0 // 2, sB0, sB0, sT0, sB1, sB1, sB1))
            lin(sB2, sB2, [(kkG, 64)])
            a.I("s_add_u32 %s, %s, %d" % (sB2, sB2, (14 * S0 + 2 * TL) * 1024))
            a.I("s_cmp_lt_u32 s2, 224")
            for r_ in (sB0, sB2, sB3): a.I("s_cselect_b32 %s, %s, 0x%x" % (r_, r_, OOB))
            lin(sHFL, str(LY.HFL), [(sG, 1024)])
            lin(sHDFL, sHFL, [(sC, 128)])
            lin(sFBO, str(LY.FA), [("s2", 128)])
            a.I("s_add_u32 %s, %s, 2048\ns_add_u32 %s, %s, 0x%x" % (sHDFL, sHDFL, sHDST, sGB, 2 * LY.ACT_STRIDE))
            a.I("s_cmp_eq_u32 %s, 0\ns_cselect_b32 %s, %s, 0x%x" % (sW, sFBO, sFBO, OOB))
            a.I("s_lshl_b32 %s, %s, 2\ns_add_u32 %s, %s, %s\ns_cmp_eq_u32 %s, 7\ns_cselect_b32 %s, 0, %s\ns_cmp_eq_u32 %s, 7" % (sT0, sR, sT0, sT0, sW, sN, sT0, sT0, sT0))
            a.I("s_cselect_b32 %s, %s, 0x%x" % (sHDST, sHDST, OOB))
            a.I("v_lshlrev_b32 v%d, 4, v%d\nv_lshl_add_u32 v%d, v%d, 7, v%d\nv_add_u32 v%d, %d, v%d" % (u0, t8, u0, g, u0, u1, L_HALO, u0)); put(aHX)
            a.I("s_lshl_b32 %s, %s, 10\nv_add3_u32 v%d, v%d, v%d, %s" % (sT0, sC, u1, u0, vA, sT0)); put(aHST)
            if "c" not in OPT["order"]: constants2()
        def constants2():
            if OPT["c_early"] == 2: die_id()
            a.I("s_lshr_b32 %s, s2, 3\ns_lshl_b32 %s, %s, 2\ns_add_u32 %s, %s, %s\ns_lshl_b32 %s, %s, 7" % (sCPO, sCPO, sCPO, sCPO, sCPO, sW, sCPO, sCPO))
            lin(sHST, sGB, [(sW, 114688), (sJ, 7168)])
            lin(sSLD, sGB, [(sW, 2048)])
            lin(sOL, sXST, [(sC, -4096)])
            a.I("s_bitcmp1_b32 %s, 0\ns_cselect_b32 %s, 1, -1\ns_cselect_b32 %s, 0, 6144\ns_lshl_b32 %s, %s, 10\ns_add_u32 %s, %s, %s" % (sJ, sHSTEP, sT0, sHSTEP, sHSTEP, sHST, sHST, sT0))
            a.I("s_lshr_b32 %s, %s, 1\ns_lshl_b32 %s, %s, 1\ns_add_u32 %s, %s, %s\ns_lshl_b32 s66, 0x11111111, %s\ns_mov_b32 s67, s66" % (sT0, sW, sT1, sR, sT0, sT0, sT1, sT0))
            lin(sHLD[3], sGB, [(sR, 229376), (sW, 28672)])
            for i in range(4):
                a.I("s_add_u32 %s, %s, %d\ns_and_b32 %s, %s, 3\ns_lshr_b32 %s, %s, 1\ns_and_b32 %s, %s, 1" % (sTA, sW, i + 1, sTA, sTA, sT0, sTA, sT1, sTA))
                lin(sHLD[i], sHLD[3], [(sT0, 114688), (sT1, 256)])
                if i < 3: lin(sXW[i], str(i * 4096), [(sTA, 12288)])
            lin(sXR, "0", [(sW, 12288)])
            lin(sWQ, str(LY.WQ), [(sJ, LY.WQ_STRIDE * (1 - OPT["hitw"]))])
            lin(sWG, str(LY.WG), [(sJ, LY.WG_STRIDE * (1 - OPT["hitw"]))])
            lin(sWO, str(LY.WO), [(sC, LY.WO_STRIDE * (1 - OPT["hitw"])), (sW, 4096)])
            lin(sWD, str(LY.WD), [(sC, LY.WD_STRIDE * (1 - OPT["hitw"])), (sW, 57344)])
            lin(sTAB, str(L_TAB), [(sW, 512)])
            a.I("s_lshl_b32 %s, %s, 10\ns_lshl_b32 %s, %s, 12\ns_add_u32 %s, %s, %s\ns_add_u32 %s, %s, %s" % (sLW, sW, sLW4, sW, sWQ4, sWQ, sLW4, sWG4, sWG, sLW4))
            a.I("s_cmp_eq_u32 %s, 0\ns_cselect_b32 %s, 0x%x, %s\ns_cselect_b32 s54, 0, 0xff\ns_mov_b32 s55, 0" % (sN, sHALO, OOB, sGB))
            a.I("s_add_u32 %s, %s, %s\ns_add_u32 %s, %s, %s\ns_add_u32 %s, %s, %s" % (sHALO2, sHALO, sLW2, sWQ, sWQ, sLW, sWG, sWG, sLW2))
            a.I("s_lshr_b32 %s, %s, 1\ns_lshl_b32 %s, %s, 5\ns_and_b32 %s, %s, 1\ns_lshl_b32 %s, %s, 1\ns_add_u32 %s, %s, %s" % (sT0, sW, sT0, sT0, sT1, sW, sT1, sT1, sT0, sT0, sT1))
            a.I("s_mov_b32 s40, 0x33333333\ns_mov_b32 s41, 0\ns_lshl_b64 s[40:41], s[40:41], %s" % sT0)
            a.I("s_lshl_b32 %s, %s, 1\ns_lshl_b32 %s, %s, 4\ns_add_u32 %s, %s, %s" % (sT0, sR, sT2, sW, sT0, sT0, sT2))
            a.I("s_mov_b32 s42, 0x3333\ns_mov_b32 s43, 0\ns_lshl_b64 s[42:43], s[42:43], %s" % sT0)
            a.I("v_add_u32 v%d, 0x10000, v%d\nv_add_u32 v%d, 0x20000, v%d" % (vL16b, vL16, vL16c, vL16))
            a.I("v_lshlrev_b32 v%d, 4, v%d\nv_lshl_add_u32 v%d, v%d, 6, v%d" % (u0, g, u1, tok, u0)); put(aSQ)
            a.I("v_lshl_add_u32 v%d, v%d, 6, v%d" % (u1, t8, u0)); put(aSH)
            a.I("v_lshlrev_b32 v%d, 7, v%d" % (u1, tok)); put(aTO)
            a.I("v_lshlrev_b32 v%d, 7, v%d\nv_lshl_add_u32 v%d, v%d, 5, v%d\nv_lshl_add_u32 v%d, v%d, 1, v%d\nv_lshlrev_b32 v%d, 3, v0" % (u0, rr, u0, g, u0, u0, cc, u0, u1))
            a.I("s_cmp_ge_u32 %s, 2\ns_cselect_b64 vcc, -1, 0\ns_cselect_b32 %s, 2, 8\nv_cndmask_b32 v%d, v%d, v%d, vcc" % (sW, sT1, u1, u0, u1))
            a.I("s_lshr_b32 %s, %s, 1\ns_add_u32 %s, %s, %d\nv_add_u32 v%d, %s, v%d" % (sT0, sLW, sT0, sT0, L_KV, u1, sT0, u1)); put(aHWR)
            a.I("v_mov_b32 v%d, %s" % (u1, sT1)); put(aHWS)
            a.I("v_min_u32 v%d, 6, v%d\ns_mul_i32 %s, %s, 7\nv_add_u32 v%d, %s, v%d" % (t32, t8, sT0, sW, t32, sT0, t32))
            a.I("s_lshl_b32 %s, %s, 1\nv_and_or_b32 v%d, v0, 1, %s" % (sT0, sW, t8, sT0))
            a.I("s_lshr_b32 %s, %s, 1\nv_mul_u32_u24 v%d, 24, v%d\nv_lshl_add_u32 v%d, v%d, 3, v%d\nv_add_u32 v%d, %s, v%d" % (sT0, sJ, u0, t8, u0, kc, u0, u0, sT0, u0))
            a.I("s_add_u32 %s, %s, 192\nv_lshl_add_u32 v%d, v%d, 3, %s\nv_cmp_gt_u32 vcc, 24, v0\nv_cndmask_b32 v%d, v%d, v%d, vcc" % (sT0, sC, u1, t8, sT0, u0, u1, u0))
            a.I("v_lshlrev_b32 v%d, 7, v%d\nv_add_u32 v%d, %d, v%d" % (u0, u0, FAV, LY.FA, u0))
            a.I("s_mul_i32 %s, %s, 7\ns_add_u32 %s, %s, 6\ns_lshr_b32 %s, %s, 2\ns_lshr_b32 %s, %s, 2" % (sT0, sJ, sT1, sT0, sT0, sT0, sT1, sT1))
            a.I("v_add_u32 v%d, %s, v%d\nv_min_u32 v%d, %s, v%d\nv_mad_u32_u24 v%d, v%d, 28, v%d" % (u0, sT0, kc, u0, sT1, u0, u0, t8, u0))
            a.I("v_lshl_add_u32 v%d, v%d, 3, %s\nv_cmp_gt_u32 vcc, 32, v0\nv_cndmask_b32 v%d, v%d, v%d, vcc" % (u1, t32, sC, u0, u1, u0))
            a.I("v_lshlrev_b32 v%d, 7, v%d\nv_add_u32 v%d, %d, v%d" % (u0, u0, u1, LY.FB, u0)); put(aFB)
            if OPT["c_early"] == 3: die_id()
            a.I("s_getpc_b64 %s\nL_pc2:\ns_sub_u32 s4, s4, L_pc2-L_pc\ns_subb_u32 s5, s5, 0" % sPC)
            NG, Z, M0_, M1_ = rr, cc, q16, hh
            a.I("s_or_b32 %s, %s, %s\ns_cmp_eq_u32 %s, 0\ns_cselect_b64 s[56:57], -1, 0" % (sT0, sN, sW, sT0))
            a.I("v_mov_b32 v%d, %s\nv_mov_b32 v%d, 0\nv_lshlrev_b32 v%d, 2, v%d\nv_sub_u32 v%d, v%d, v%d" % (NG, NEG, Z, vA, g, vA, tok, vA))
            for r in range(4):
                a.I("v_subrev_u32 v%d, %d, v%d\nv_mov_b32 v%d, %s" % (u0, r, vA, M0_, "0xffff0000" if r & 1 else "0xffff"))
                a.I("v_cmp_gt_u32 vcc, 8, v%d\nv_cmp_gt_i32 s[58:59], -8, v%d\nv_cmp_le_i32 s[60:61], 0, v%d" % (u0, u0, u0))
                a.I("v_cndmask_b32 v%d, v%d, v%d, vcc" % (u1, NG, Z)); put(aBC + r)
                a.I("v_cndmask_b32 v%d, v%d, v%d, s[58:59]" % (u1, NG, Z)); put(aBP + r)
                a.I("v_cndmask_b32 v%d, v%d, v%d, s[56:57]" % (u1, u1, NG)); put(aBP0 + r)
                if r & 1:
                    a.I("v_cndmask_b32 v%d, v%d, v%d, s[60:61]\nv_or_b32 v%d, v%d, v%d" % (u1, Z, M0_, u1, u1, M1_)); put(aMC + r // 2)
                else:
                    a.I("v_cndmask_b32 v%d, v%d, v%d, s[60:61]" % (M1_, Z, M0_))
        a.I("v_bfe_u32 v%d, v0, 3, 1\nv_xor_b32 v%d, 1, v%d\nv_lshlrev_b32 v%d, 29, v%d" % (vA, vA, vA, vA, vA))
        a.I("s_lshl_b32 %s, %s, 3\ns_add_u32 %s, %s, %d\nv_add3_u32 v%d, v%d, v%d, %s" % (sT0, sC, sT0, sT0, 8192 - 512, u1, u1, vA, sT0)); put(aHSS)
        if OPT["c_early"]: constants()
        self.stamp("p")
        if OPT["b_pos"] == -1: b_loads()
        a.vm_wait("fa")
        a.I("s_barrier")
        for sp in range(2):
            for half in range(2):
                a.ds("ds_read_b64_tr_b16 %s, v%d offset:%d" % (vr(ACC + 4 * sp + 2 * half, 2), (TA0, TA1)[half], sp * 4096), ("t", sp))
        self.stamp("p")
        for sp in range(2):
            a.ds_wait(("t", sp))
            a.vm("buffer_store_dwordx4 %s, v%d, %s, %s offen sc1" % (vr(ACC + 4 * sp, 4), vL16, WS, (dA, dA2)[sp]))
            a.I("v_mfma_f32_16x16x32_bf16 %s, %s, %s, %s" % (vr(ACC + 8, 4), vr(ONES, 4), vr(ACC + 4 * sp, 4), vr(ACC + 8, 4) if sp else "0"))
        a.I("\n".join(self.hi_lo(ACC + 12, ACC + 8, ACC + 13)))
        a.vm("buffer_store_dword v%d, v%d, %s, %s offen sc1" % (ACC + 12, CSW, WS, dCS), "fas")
        if OPT["b_pos"] == -2: b_loads()
        a.vm_wait("x")
        self.publish(0)
        xload = "buffer_load_dword v31, v%d, %s, 0 offen sc1" % (XA, WS)
        a.vm(xload, "xf")
        if OPT["b_pos"] == 1: b_loads()
        self.stamp("p")
        if not OPT["c_early"]: constants()
        def second_unit():
            G, D, CS = X + 96, X + 112, ACC + 48
            out = []
            def store(ops):
                if OPT["b_spread"] and "b" not in OPT["order"]: out.append(ops)
                else: a.run_all(ops)
            if "b" in OPT["order"]:
                a.vm_wait(("fb", 24576))
                a.I("s_barrier")
            for n_ in range(4):
                for half in range(2):
                    a.ds("ds_read_b64_tr_b16 %s, v%d offset:%d" % (vr(G + 4 * n_ + 2 * half, 2), TG, 8192 * (1 + n_ % 2) + (32 * (n_ // 2) + 4 * half) * 128), ("tg", n_))
            for sp in range(2):
                for half in range(2):
                    a.ds("ds_read_b64_tr_b16 %s, v%d offset:%d" % (vr(D + 4 * sp + 2 * half, 2), TD, 24576 + (32 * sp + 4 * half) * 128), ("td", sp))
            for n_ in range(4):
                a.ds_wait(("tg", n_))
                store(([("i", "s_add_u32 %s, %s, %s" % (sB0, sB0, sB1))] if n_ == 2 else []) +
                      [("vm", "buffer_store_dwordx4 %s, v%d, %s, %s offen offset:%d sc1" % (vr(G + 4 * n_, 4), vL16, WS, sB0, (n_ % 2) * 1024))])
                c_ = vr(CS + 4 * (n_ % 2), 4)
                a.I("v_mfma_f32_16x16x32_bf16 %s, %s, %s, %s" % (c_, vr(ONES, 4), vr(G + 4 * n_, 4), c_ if n_ >= 2 else "0"))
            for sp in range(2):
                a.ds_wait(("td", sp))
                store(([("i", "s_add_u32 %s, %s, 4096" % (sB3, sB3))] if sp else []) +
                      [("vm", "buffer_store_dwordx4 %s, v%d, %s, %s offen sc1" % (vr(D + 4 * sp, 4), vL16, WS, sB3))])
            a.I("v_cmp_gt_u32 vcc, 16, v0\nv_bfe_u32 v%d, v0, 4, 1\nv_mul_u32_u24 v%d, 448, v%d\nv_add_u32 v%d, v%d, v%d\nv_cndmask_b32 v%d, v%d, v%d, vcc" %
                (D + 9, D + 9, D + 9, D + 9, D + 9, LINE, CS, CS + 4, CS))
            a.I("\n".join(self.hi_lo(D + 8, CS, CS + 1)))
            store([("vm", "buffer_store_dword v%d, v%d, %s, %s offen sc1" % (D + 8, D + 9, WS, sB2), "fbs")])
            self.stamp("p")
            return out
        def first_flags():
            a.I("v_mov_b32 v30, %s" % sNONCE)
            a.vm_wait("fas")
            a.I("s_barrier")
            a.vm("buffer_store_dword v30, v%d, %s, %s offen sc1" % (LINE, WS, sFBO))
            a.I("s_add_u32 %s, %s, %d" % (sFBO, sFBO, LY.FB - LY.FA))
            self.stamp("p")
        def own_flags():
            spin, back = a.label("xspin"), a.label("xback")
            test = "v_xor_b32 v29, %s, v31\nv_cmp_lt_u32 vcc, 15, v29\ns_and_b64 vcc, vcc, exec" % sNONCE
            a.vm_wait("xf")
            a.I("%s\ns_cbranch_scc1 %s\n%s:" % (test, spin, back))
            self.cold.append("%s:\ns_mov_b32 %s, 0x40000\n%s_l:\n%s\ns_sub_u32 %s, %s, 1\ns_cbranch_scc1 L_main_done\ns_waitcnt vmcnt(0)\n%s\ns_cbranch_scc1 %s_l\ns_branch %s"
                             % (spin, sSPIN, spin, xload, sSPIN, sSPIN, test, spin, back))
            a.I("v_cmp_ne_u32 vcc, v%d, v31\ns_cmp_lg_u64 vcc, 0\ns_cselect_b32 %s, 1, 0\ns_mov_b32 s0, %s\ns_mov_b32 s1, 0" % (XV, sSLOW, sSLOW))
            self.signal(0, "pub", 0)
            self.stamp("p")
        for step in OPT["order"]:
            {"b": second_unit, "a": first_flags, "o": own_flags, "c": constants2}[step]()
        self.stamp("p")
        if "b" in OPT["order"]:
            a.vm_wait("fbs")
            a.I("s_barrier")
            a.vm("buffer_store_dword v30, v%d, %s, %s offen sc1" % (LINE, WS, sFBO))
        elif OPT["predrain"]:
            a.vm_drain()
        self.stamp("p")
        self.second_unit, self.b_loads = second_unit, b_loads
        self.fav = FAV

    def qkv(self, ps):
        a = self.a
        xi = 2 * ps
        late = self.wq_late(ps)
        lateb = ps == 0 and "b" not in OPT["order"]
        bst = []
        wql = [g for ch in late for g in self.wq_chunk(ch)]
        split = ps == 0 and OPT["q0_split"]
        HX, HW, HW2, HF, NM, RL, CQ, RR = 16, 17, 18, 19, 20, 26, 28, ACC + 52
        def setup():
            a.I(self.getc(30, aSQ) + "\n" + self.getc(31, aSH) + "\n" + self.getc(HX, aHX))
            a.I("s_add_u32 %s, %s, 2048\nv_add_u32 v%d, %s, v%d\nv_add_u32 v%d, 0xc000, v%d\nv_lshlrev_b32 v%d, 7, v0" % (sT2, sLW, HW, sT2, vL16, HW2, HW, CQ))
        self.poll(6 * ps, sMA, self.fav if ps == 0 and not split else None, setup)
        self.stamp()
        xl = self.reg_loads([vr(X + 8 * s + 4 * b, 4) for s in range(16) for b in range(2)], [sXLD] * 32,
                            [LY.XB[xi] + s * 2048 + b * 256 for s in range(16) for b in range(2)], sTA, vQ, "x")
        UP = OPT["q_up"] if ps else OPT["q0_up"]
        if ps == 0:
            late = late[1:]
            n = 4 + OPT["q0_w"]
            first = wql[:4] + xl[:UP] + wql[4:n]
            if split:
                l_fa, g_fa = self.late_check("buffer_load_dword v%d, v%d, %s, 0 offen sc1" % (HF, self.fav, WS), HF, "exec", "fa")
                n1 = OPT["q0_n1"]
                first = xl[:n1] + [l_fa] + xl[n1:UP] + [g_fa + [("i", "s_barrier")]] + wql[:n]
            else:
                first = xl[:2] + [[("i", "s_barrier")]] + wql[:4] + xl[2:UP] + wql[4:n]
            wql = wql[n:]
            if OPT["b_pos"] >= 2:
                k = OPT["b_pos"] - 2
                a.run_all(self.flat(first[:k])); first = first[k:]
                self.b_loads(); a.state.pop("m0", None)
            if lateb:
                k = len(first) - OPT["q0_b"]
                a.run_all(self.flat(first[:k])); first = first[k:]
                if OPT["b_pos"] >= 2: a.vm_wait(("fb", 24576))
                a.I("s_barrier")
                bst = self.second_unit()
            a.run_all(self.flat(first))
        else:
            a.run_all(self.flat(xl[:UP]))
        if ps == 0:
            a.vm_wait(("wq", 0))
        a.I("s_barrier")
        sl = Slots()
        use = {}
        acc = lambda blk, b: vr(ACC + 8 * blk + 4 * b, 4)
        hbuf = lambda t: (F + 24, X)[t % 2]
        step0 = {}
        H0 = OPT["q_h0"]
        hpos = {}
        for t in range(16):
            p = (t * 6 * (16 - H0)) // 16 + 1
            hpos.setdefault((H0 + p // 6, p % 6), []).append(t)
        Y, Z = X + 8, X + 96
        BC, BP, BP0, MC, ONES, KW, CSA = Y, Y + 4, Y + 8, Y + 12, Y + 14, Y + 16, Y + 21
        def halo_mfma(t):
            d = acc(6, 0)
            if t < 16:
                i = sl.add("v_mfma_f32_16x16x32_bf16 %s, %s, %s, %s" % (d, vr(hbuf(t) + 4, 4), vr(hbuf(t), 4), "0" if t == 0 else d), [("wds", ("hx", t))])
            else:
                i = sl.add("v_mfma_f32_16x16x16_bf16 %s, %s, %s, %s" % (d, vr(NM + 4, 2), vr(hbuf(t), 2), d), [("wds", ("hw", t))])
            use[("h", t)] = i
        for s in range(17):
            step0[s] = sl.n()
            if s == 16: halo_mfma(16)
            for f in range(6):
                for b in range(2):
                    pre_ = []
                    if b == 0: pre_.append(("wds", ("f", s, f)))
                    if f == 0 and s < 16: pre_.append(("wvm", ("x", 2 * s + b)))
                    w = vr(F + 4 * f, 4 if s < 16 else 2)
                    x = vr(X + 8 * s + 4 * b, 4) if s < 16 else vr(NM + 2 * b, 2)
                    A, B = (w, x) if f < 4 else (x, w)
                    d = acc(f, b)
                    mn = "v_mfma_f32_16x16x32_bf16" if s < 16 else "v_mfma_f32_16x16x16_bf16"
                    use[(s, f)] = sl.add("%s %s, %s, %s, %s" % (mn, d, A, B, "0" if s == 0 else d), pre_)
                for t in hpos.get((s, f), ()): halo_mfma(t)
        reads = []
        for s in range(17):
            for f in range(6):
                d = F + 4 * f
                if s < 16: t = "ds_read_b128 %s, %s" % (vr(d, 4), ldsaddr(s * 6144 + f * 1024))
                else: t = "ds_read2st64_b32 %s, v%d offset0:%d offset1:%d" % (vr(d, 2), CSA, 2 * f, 2 * f + 1)
                reads.append((use[(s - 1, f)] if s else -1, (6 * s + f) // 16, ("ds", t, ("f", s, f))))
        hbar = step0[H0 - 1] + 4
        for t in range(17):
            pos = use[("h", t - 2)] if t >= 2 else hbar + 2 + 2 * t
            if t < 16:
                reads.append((pos, (6 * t + 5) // 16, ("ds", "ds_read_b128 %s, v%d offset:%d" % (vr(hbuf(t), 4), HW if t < 8 else HW2, (t % 8) * 6144), ("hw", t))))
                reads.append((pos + (1 if t >= 2 else 0), 0, ("ds", "ds_read_b128 %s, v%d offset:%d" % (vr(hbuf(t) + 4, 4), HX, t * 512), ("hx", t))))
            else:
                reads.append((pos, 6, ("ds", "ds_read2st64_b32 %s, v%d offset0:4 offset1:5" % (vr(hbuf(t), 2), CSA + 1), ("hw", t))))
        sl.put("c", step0[4], [("i", "v_add_u32 v%d, 98304, v%d\ns_lshr_b32 %s, %s, 1\nv_add_u32 v%d, %s, v%d" % (CSA, vFL, sT2, sLW, CSA + 1, sT2, CSA)), ("mark", "csaddr")])
        sl.after(step0[14], ("need", "csaddr"))
        sl.pre[step0[16]].append(("wds", ("nm", 2)))
        chbar = {}
        for ch in late:
            ops = [("wvm", ("wq", ch)), ("i", "s_barrier")]
            p = chbar[ch] = min(p for p, c, _ in reads if c == ch)
            if lateb and ch == OPT["q0_fbch"]:
                ops.insert(0, ("wvm", "fbs"))
                assert p >= step0[5]
                sl.put("f", p + 1, [("i", "v_mov_b32 v%d, %s\n%s" % (X + 32, sNONCE, self.getc(X + 33, aLINE))),
                                    ("vm", "buffer_store_dword v%d, v%d, %s, %s offen sc1" % (X + 32, X + 33, WS, sFBO))])
            sl.after(p, *ops)
        sl.after(hbar, ("wvm", "halo"), ("i", "s_barrier"))
        for pos, _, rd in reads:
            if pos < 0: a.run(rd)
            else: sl.after(pos, rd)
        l_hf, g_chk = self.late_check("buffer_load_dword v%d, v%d, %s, %s offen sc1" % (HF, CQ, WS, sT1), HF, sMH, "hf")
        g_hf = [("i", "v_and_b32 v%d, 0x380, v%d\ns_add_u32 %s, %s, %d" % (CQ, CQ, sT1, sHFL, ps * 16384))] + l_hf
        g_hd = self.dma_chunk(sHALO2, LY.HX[ps], L_HALO, 2, "halo", " sc1")
        g_hs = [("i", "s_add_u32 %s, %s, %d" % (sT1, sHALO, LY.HX[ps] + 8192)),
                ("vm", "buffer_load_dwordx4 %s, v31, %s, %s offen sc1" % (vr(RR + 8, 4), WS, sT1), "st")]
        g_s0 = [("i", "s_add_u32 %s, %s, %d" % (sT0, sSLD, LY.SB[xi])), ("vm", "buffer_load_dwordx4 %s, v30, %s, %s offen sc1" % (vr(RR, 4), WS, sT0))]
        g_s1 = [("vm", "buffer_load_dwordx4 %s, v30, %s, %s offen offset:1024 sc1" % (vr(RR + 4, 4), WS, sT0))]
        wbar = max(use[("h", 6)] + 2, step0[OPT["q_wbar"]])
        while sl.post[wbar]: wbar += 1
        sl.after(wbar, ("i", "s_barrier"))
        wo = [(0 if i < 2 else wbar + 2, g) for i in range(4) for g in self.wo_chunk(i)]
        rest = xl[UP:]
        h1 = OPT["q_hf"] if ps else OPT["q0_hf"]
        h2 = h1 + OPT["q_chk"] - 2
        seq = rest[:h1] + [g_hf, g_s0, g_s1] + rest[h1:h2] + [g_chk] + g_hd + [g_hs] + rest[h2:]
        if wql:
            due, d = [], sl.n()
            for g in reversed(seq):
                tag = g[-1][2] if len(g[-1]) > 2 else None
                if isinstance(tag, tuple) and tag[0] == "x": d = step0[tag[1] // 2]
                due.append((d, g))
            due.reverse()
            d, wdue = 0, []
            for g in reversed(wql):
                if g[-1][2] is not None: d = chbar[g[-1][2][1]] - OPT["q0_lead"]
                wdue.append((d, g)); d -= 6
            seq = [g for _, g in sorted(due + wdue[::-1], key=lambda t: t[0])]
        for n_, g in enumerate(bst):
            k = OPT["b_first"] + n_ * (OPT["b_gap"] + 1)
            assert not any(op[0] == "vm" and len(op) > 2 and isinstance(op[2], tuple) and op[2][0] == "x" and op[2][1] >= 24 for g2 in seq[:k] for op in g2)
            seq.insert(k, g)
        if ps == 0:
            if OPT["otouch"]: seq += self.touch(aTO, sOST, LY.OB[ps], CQ)
            l_fb, g_fb = self.late_check("%s\nbuffer_load_dword v%d, v%d, %s, 0 offen sc1" % (self.getc(Y + 23, aFB), Y + 23, Y + 23, WS), Y + 23, "exec", "fb")
            l_fb = [("i", l_fb[0][1].split("\n")[0]), ("vm", l_fb[0][1].split("\n")[1], "fb")]
            seq += [g + (OPT["q0_tail"] / 10,) for g in wo]
            sl.put("f", step0[OPT["q0_fbs"]], l_fb)
        else:
            seq += wo
        sl.put("g", step0[12], self.flat(self.code_touch("L_wo%d" % ps, CQ + 1)))
        left = sl.pace(seq, 0, (OPT["q_every"] if ps else OPT["q0_every"]) / 10)
        A0, A1, AH = RR, RR + 4, RR + 8
        st = [[("wvm", "st")]]
        for r_ in (A0, A1, AH):
            st.append([("i", "v_add_f32 v%d, v%d, v%d" % (r_, r_, r_ + 2))])
            st.append([("i", "v_add_f32 v%d, v%d, v%d" % (r_ + 1, r_ + 1, r_ + 3))])
        for o in (0, 1): st.append([("i", "v_mov_b32 v%d, v%d" % (AH + 2 + o, AH + o))])
        for o in (0, 1): st.append([("i", "v_permlane32_swap_b32 v%d, v%d" % (A0 + o, A1 + o))])
        for o in (0, 1): st.append([("i", "v_permlane32_swap_b32 v%d, v%d" % (AH + o, AH + 2 + o))])
        for o in (0, 1): st.append([("i", "v_add_f32 v%d, v%d, v%d" % (A0 + o, A0 + o, A1 + o))])
        for o in (0, 1): st.append([("i", "v_add_f32 v%d, v%d, v%d" % (AH + o, AH + o, AH + 2 + o))])
        for o in (0, 1): st.append([("i", "v_permlane16_swap_b32 v%d, v%d" % (A0 + o, AH + o))])
        for o in (0, 1): st.append([("i", "v_add_f32 v%d, v%d, v%d" % (A0 + o, A0 + o, AH + o))])
        st += [[op] for op in self.ln_from_sums(A0, A0 + 1, A0 + 2)]
        st.append([("i", "v_cvt_pk_bf16_f32 v%d, -v%d, -v%d" % (A0, A0, A0))])
        st.append([("i", "v_add_u32 v%d, %s, v%d" % (HF, sTAB, vFL))])
        st.append([("i", "v_and_or_b32 v30, v%d, 63, %s" % (vFL, sTAB))])
        st.append([("i", "v_and_or_b32 v31, v0, 48, %s" % sTAB)])
        st.append([("ds", "ds_write2st64_b32 v%d, v%d, v%d offset0:0 offset1:1" % (HF, A0 + 1, A0))])
        row = {0: 0, 1: 2, 2: 1}
        for b in range(3):
            o = 64 + row[b] * 16
            st.append([("ds", "ds_read2_b32 %s, v30 offset0:%d offset1:%d" % (vr(NM + 2 * b, 2), o, o), ("nm", b))])
        st.append([("ds", "ds_read2_b32 %s, v30 offset0:0 offset1:32" % vr(RL, 2))])
        for b in range(3):
            st.append([("ds", "ds_read_b128 %s, v31 offset:%d" % (vr(RR + 4 * b, 4), row[b] * 64), ("tab", b))])
        sl.spread(st, step0[H0], step0[14])
        cst = [[("i", self.getc(Y + k, aBC + k))] for k in range(14)]
        cst += [[("i", "v_mov_b32 v%d, %s" % (ONES + k, sONE))] for k in range(2)]
        cst += [[("i", self.getc(KW, aHWR))], [("i", self.getc(KW + 3, aHWS))], [("i", "s_add_u32 %s, %s, %d" % (sT2, sLW2, L_KV))],
                [("i", "v_add_u32 v%d, v%d, v%d" % (KW + 1, KW, KW + 3))], [("i", "v_lshl_add_u32 v%d, v0, 3, %s" % (KW + 4, sT2))],
                [("i", "v_add_u32 v%d, v%d, v%d" % (KW + 2, KW + 1, KW + 3))], [("i", "v_add_u32 v%d, v%d, v%d" % (KW + 3, KW + 2, KW + 3))]]
        sl.spread(cst, step0[4] + 2, step0[8], "c")
        Qp = lambda b, h: Z + 4 * h + 2 * b
        Kp = lambda b, h: Z + 8 + 6 * h + 2 * (b + 1)
        Vp = lambda b, h: Z + 20 + 6 * h + 2 * (b + 1)
        HP, HA = HX, ACC + 48
        ar_ = lambda blk, b: ACC + 8 * blk + 4 * b
        cvt = lambda d, s_: "v_cvt_pk_bf16_f32 v%d, v%d, v%d" % (d, s_, s_ + 1)
        tl = [("wds", ("tab", 2)), ("i", "v_mul_f32 v%d, 0x3eb8aa3b, v%d\nv_mul_f32 v%d, 0x3eb8aa3b, v%d" % (CQ, RL, CQ + 1, RL + 1))]
        tl += [("i", "v_mul_f32 v%d, v%d, v%d" % (HA + r, HA + r, RR + 8 + r)) for r in range(4)]
        tl += [("i", cvt(HP, HA)), ("i", cvt(HP + 1, HA + 2))]
        hw = [("ds", "ds_write_b16%s v%d, v%d" % ("_d16_hi" if r & 1 else "", KW + r, HP + r // 2)) for r in range(4)]
        qs = [(h, b) for h in range(2) for b in range(2)]
        for n_, (h, b) in enumerate(qs):
            tl += [hw[n_], ("i", cvt(Qp(b, h), ar_(h, b))), ("i", cvt(Qp(b, h) + 1, ar_(h, b) + 2))]
        sl.put("v", step0[16], tl)
        self.lite(sl, "q", [step0[s] for s in (0, 2, 4, 6, 8, 10, 12, 14)])
        self.report("qkv%d" % ps, sl.emit(a))
        self.stamp()
        body = []
        e = lambda t: body.extend(("i", x) for x in t.split("\n"))
        def pack(dst, src): e(cvt(dst, src) + "\n" + cvt(dst + 1, src + 2))
        def scale_l(src, b):
            for k in range(2): e("v_pk_mul_f32 %s, %s, %s op_sel:[0,%d] op_sel_hi:[1,%d]" % (vr(src + 2 * k, 2), vr(src + 2 * k, 2), vr(RL, 2), b, b))
        def scale_r(src, r0):
            for k in range(2): e("v_pk_mul_f32 %s, %s, %s" % (vr(src + 2 * k, 2), vr(src + 2 * k, 2), vr(r0 + 2 * k, 2)))
        kvw = lambda src, part: body.append(("ds", "ds_write_b64 v%d, %s offset:%d" % (KW + 4, vr(src, 2), 2048 + 512 * part)))
        for h in range(2):
            scale_l(ar_(2 + h, 1), 1); pack(Kp(1, h), ar_(2 + h, 1)); kvw(Kp(1, h), h); scale_l(ar_(2 + h, 0), 0)
        for h in range(2):
            scale_r(ar_(4 + h, 1), RR + 4); pack(Vp(1, h), ar_(4 + h, 1)); kvw(Vp(1, h), 2 + h); scale_r(ar_(4 + h, 0), RR)
        units = [(1, 0), (1, 1), (0, 0), (0, 1)]
        SC = lambda u: F + 8 * u
        SP = lambda u: F + 8 * u + 4
        smf = lambda d, kb, u, bias: "v_mfma_f32_16x16x16_bf16 %s, %s, %s, %s" % (vr(d, 4), vr(Kp(kb, units[u][1]), 2), vr(Qp(*units[u]), 2), vr(bias, 4))
        M = [ACC + u for u in range(4)]
        def merge(u):
            return ["v_max_f32 v%d, v%d, v%d" % (SC(u) + r, SC(u) + r, SP(u) + r) for r in range(4)] + [
                "v_max3_f32 v%d, v%d, v%d, v%d" % (M[u], SC(u), SC(u) + 1, SC(u) + 2), "v_max_f32 v%d, v%d, v%d" % (M[u], M[u], SC(u) + 3)]
        e(smf(SC(0), 1, 0, BC)); pack(Kp(0, 0), ar_(2, 0))
        e(smf(SC(1), 1, 1, BC)); pack(Kp(0, 1), ar_(3, 0))
        e(smf(SP(0), 0, 0, BP))
        if ps == 0: body.extend(g_fb)
        body.append(("wvm", ("wo", 1)))
        body.append(("dsdrain",)); e("s_barrier")
        nbar = len(body)
        rdkv = lambda dst, part, tag: body.append(("ds", "ds_read_b64 %s, v%d offset:%d" % (vr(dst, 2), KW + 4, 512 * part), tag))
        e(smf(SP(1), 0, 1, BP)); rdkv(Kp(-1, 0), 0, ("kp", 0)); rdkv(Kp(-1, 1), 1, ("kp", 1))
        e(smf(SC(2), 0, 2, BC)); rdkv(Vp(-1, 0), 2, ("vp", 0)); rdkv(Vp(-1, 1), 3, ("vp", 1))
        e(smf(SC(3), 0, 3, BC)); pack(Vp(0, 0), ar_(4, 0)); pack(Vp(0, 1), ar_(5, 0))
        m0, m1 = merge(0), merge(1)
        e("\n".join(m0))
        body.append(("wds", ("kp", 1)))
        e(smf(SP(2), -1, 2, BP0)); e("\n".join(m1[:2]))
        e(smf(SP(3), -1, 3, BP0)); e("\n".join(m1[2:]))
        e("s_add_u32 %s, %s, %d" % (sT0, sOST, LY.OB[ps]))
        e("\n".join(merge(2)[:2]))
        e("v_permlane32_swap_b32 v%d, v%d" % (M[0], M[1]))
        e("\n".join(merge(2)[2:] + merge(3)))
        e("v_max_f32 v%d, v%d, v%d" % (M[0], M[0], M[1]))
        e("v_permlane32_swap_b32 v%d, v%d\nv_max_f32 v%d, v%d, v%d" % (M[2], M[3], M[2], M[2], M[3]))
        e("v_permlane16_swap_b32 v%d, v%d\nv_max_f32 v%d, v%d, v%d\nv_max_f32 v%d, v%d, v%d" % (M[0], M[2], M[1], M[0], M[2], M[2], M[0], M[2]))
        e("v_permlane16_swap_b32 v%d, v%d" % (M[1], M[2]))
        e("v_mul_f32 v%d, v%d, v%d\nv_mul_f32 v%d, v%d, v%d" % (M[0], M[1], CQ + 1, M[1], M[1], CQ + 1))
        e("v_mul_f32 v%d, v%d, v%d\nv_mul_f32 v%d, v%d, v%d" % (M[3], M[2], CQ, M[2], M[2], CQ))
        def shift(u):
            for k in range(2):
                e("v_pk_fma_f32 %s, %s, %s, %s op_sel:[0,%d,%d] op_sel_hi:[1,%d,%d] neg_lo:[0,0,1] neg_hi:[0,0,1]" %
                  (vr(SC(u) + 2 * k, 2), vr(SC(u) + 2 * k, 2), vr(CQ, 2), vr(ACC + 2 * (u // 2), 2), units[u][0], u % 2, units[u][0], u % 2))
        e("v_permlane32_swap_b32 v%d, v%d" % (M[0], M[1])); shift(0)
        e("v_permlane32_swap_b32 v%d, v%d" % (M[2], M[3])); shift(1); shift(2); shift(3)
        PM = lambda u: ACC + 4 + 2 * u
        PS = lambda u: ACC + 12 + 4 * u
        OP = lambda b: ACC + 28 + 4 * b
        pv = lambda u: "v_mfma_f32_16x16x32_bf16 %s, %s, %s, 0" % (vr(SC(u), 4), vr(Vp(units[u][0] - 1, units[u][1]), 4), vr(PS(u), 4))
        for u, (b, h) in enumerate(units):
            for r in range(4):
                e("v_exp_f32 v%d, v%d" % (SC(u) + r, SC(u) + r))
                if r == 1 and u >= 1: e(pv(u - 1))
            if u == 2: body.append(("wds", ("vp", 1)))
            if u >= 2: e("v_rcp_f32 v%d, v%d" % (SP(u - 2), SP(u - 2)))
            pack(PM(u), SC(u))
            for k in range(2):
                e("v_bfi_b32 v%d, v%d, 0, v%d\nv_and_b32 v%d, v%d, v%d" % (PS(u) + k, MC + k, PM(u) + k, PS(u) + 2 + k, MC + k, PM(u) + k))
            e("v_mfma_f32_16x16x16_bf16 %s, %s, %s, 0" % (vr(SP(u), 4), vr(ONES, 2), vr(PM(u), 2)))
        e("v_rcp_f32 v%d, v%d" % (SP(2), SP(2)))
        e(pv(3))
        def fin(u, packed):
            b, h = units[u]
            if packed:
                for k in range(2): e("v_pk_mul_f32 %s, %s, %s op_sel_hi:[1,0]" % (vr(SC(u) + 2 * k, 2), vr(SC(u) + 2 * k, 2), vr(SP(u), 2)))
            else:
                for r in range(4): e("v_mul_f32 v%d, v%d, v%d" % (SC(u) + r, SC(u) + r, SP(u)))
            pack(OP(b) + 2 * h, SC(u))
            if h == 1:
                body.append(("vm", "buffer_store_dwordx4 %s, v%d, %s, %s offen offset:%d%s" % (vr(OP(b), 4), vQ, WS, sT0, b * 256, " sc1" if ps == 0 and not OPT["otouch"] else ""), "o" if b == 0 else None))
        fin(0, False); fin(1, True)
        e("v_rcp_f32 v%d, v%d" % (SP(3), SP(3)))
        fin(2, True); fin(3, True)
        left = self.weave(body[:nbar], left, 0, OPT["a_every"])
        stop = len(body) - OPT["a_quiet"]
        left = self.weave(body[nbar:stop], left + self.wgs("att", ps) + self.wds("att", ps), 4, OPT["a_every"])
        a.run_all(body[stop:])
        print("  attention: %d groups left for the hand-off" % len(left))
        self.stamp()
        self.wo_pre(0, OPT["w_pre"])
        self.signal(6 * ps + 1, "o")
        a.run_all(self.flat(left + self.wgs("h1", ps) + self.wds("h1", ps)))
        self.stamp()

    def wds(self, where, ps):
        if ps: return []
        if self.wd is None:
            ks = [4 * s + cb for s in DN_ORD for cb in range(4)]
            self.wd = self.reg_loads([ar(4 * k, 4) for k in ks], [sWD] * 56, [k * 1024 for k in ks], sTD, vL16, "wd")
        n = OPT.get("wd_" + where, 56)
        out, self.wd = self.wd[:n], self.wd[n:]
        return out

    WREG = [X + 4 * k for k in range(16)] + [ACC + 16 + 4 * k for k in range(12)] + [F + 4 * k for k in range(8)]
    def wo_read(self, k):
        return ("ds", "ds_read_b128 %s, %s" % (vr(self.WREG[k % 36], 4), ldsaddr(WO_SLOT[k // 16] * 16384 + (k % 16) * 1024)), ("w", k))
    def wo_pre(self, k0, k1):
        for k in range(k0, k1): self.a.run(self.wo_read(k))

    def finish(self, A, xo, h, pf, n, halo_pass):
        a = self.a
        for k in range(8): a.I("v_cvt_pk_bf16_f32 v%d, v%d, v%d" % (XRES + k, A + 2 * k, A + 2 * k + 1))
        if xo == 4:
            a.I(self.getc(16, aROW))
            for e_ in range(2): a.vm("buffer_store_dwordx4 %s, v16, %s, 0 offen offset:%d %s" % (vr(XRES + 4 * e_, 4), OUT, e_ * 64, OPT["outf"].strip("-")))
            self.stamp()
            return
        self.publish(xo)
        self.stamp()
        a.run_all(self.flat(pf[:n]))
        self.signal(h, "pub", halo_pass)
        a.run_all(self.flat(pf[n:]))
        self.stamp()

    def wo(self, ps):
        a = self.a
        def setup():
            for k in range(8):
                a.I("v_lshlrev_b32 v%d, 16, v%d\nv_and_b32 v%d, 0xffff0000, v%d" % (ACC + 2 * k, XRES + k, ACC + 2 * k + 1, XRES + k))
        keep = dict(a.ds_tag)
        if OPT["stamps"] and ps == 0:
            a.I("s_memtime s[%d:%d]" % (sST, sST + 1)); a.ds_drain(force=True); a.I("v_writelane_b32 v%d, s%d, 60" % (vSTAMP, sST))
        self.poll(6 * ps + 1, sMC, None, setup)
        a.ds_tag.update((t, n) for t, n in keep.items() if t[0] == "w")
        self.stamp()
        areg = lambda s: vr(X + 64 + 4 * s, 4)
        ld = self.reg_loads([areg(s) for s in range(16)], [sOL] * 16, [LY.OB[ps] + s * 2048 for s in range(16)], sTA, vQ, "act")
        UP = OPT["w_up"]
        rest = [self.wo_read(k) for k in range(OPT["w_pre"], 32)]
        for n_, g in enumerate(ld[:UP]):
            a.run_all(g)
            if n_ >= 3: a.run_all(rest[:3]); rest = rest[3:]
        a.run_all(rest)
        a.I("s_barrier")
        self.wo_pre(32, 36)
        sl = Slots()
        for k in range(64):
            s, cb = divmod(k, 4)
            d = vr(ACC + 4 * cb, 4)
            sl.add("v_mfma_f32_16x16x32_bf16 %s, %s, %s, %s" % (d, vr(self.WREG[k % 36], 4), areg(s), d),
                   [("wds", ("w", k))] + ([("wvm", ("act", s))] if cb == 0 else []))
            if cb == 0 and s + UP < 16: sl.put("m", k, ld[s + UP])
            if k + 36 < 64: sl.put("r", k, [self.wo_read(k + 36)])
        pf = sl.pace(self.wgs("wo", ps) + self.wds("wo", ps), 64 - 4 * UP + 2, 4.4, 64 - OPT["w_quiet"])
        self.lite(sl, "wo", [8 * k for k in range(8)])
        self.report("wo%d" % ps, sl.emit(a))
        self.stamp()
        self.finish(ACC, 2 * ps + 1, 6 * ps + 2, pf + self.wgs("h2", ps) + self.wds("h2", ps), 0, None)

    def dn_plan(self, ps):
        order = [(i, s) for lv in DN_S for i in range(3) for s in lv] + [(3, s) for s in range(14)]
        areg = lambda k: vr(X + 48 + 4 * (k % 16), 4)
        ld = self.reg_loads([areg(k) for k in range(56)], [sHLD[i] for i, s in order], [LY.HB[ps] + s * 2048 for i, s in order], sTA, vQ, "act")
        return order, areg, ld

    def dn(self, ps, issued, wd):
        a = self.a
        order, areg, ld = self.dn_plan(ps)
        XW, XR, R, P, U = 16, 19, 20, (ACC, ACC + 16, ACC + 32), ACC + 48
        io = L_SCR_DN - 65536
        UP = OPT["k_up"]
        widx = {s: n_ for n_, s in enumerate(DN_ORD)}
        wd_e = [g for g in wd if g[-1][2][1] < 24]
        wd_l = [g for g in wd if g[-1][2][1] >= 24]
        a.run_all(self.flat(ld[issued:UP] + wd_e))
        a.ds_drain()
        a.I("s_barrier")
        sl = Slots()
        accr = lambda i, cb: (X, X + 16, X + 32, X + 112)[i] + 4 * cb
        seen, endb = set(), {}
        for k, (i, s) in enumerate(order):
            for cb in range(4):
                d = vr(accr(i, cb), 4)
                pre = [("wvm", ("act", k))] if cb == 0 else []
                tag = ("wd", 4 * widx[s] + cb)
                if i == 0 and (tag in a.vm_tag or any(g[-1][2] == tag for g in wd_l)): pre.append(("wvm", tag))
                endb[i] = sl.add("v_mfma_f32_16x16x32_bf16 %s, %s, %s, %s" % (d, ar(16 * s + 4 * cb, 4), areg(k), d if (i, cb) in seen else "0"), pre)
                seen.add((i, cb))
        chk = {18: self.check_ops(6 * ps + 4, sMB, PA, "hf2"), 30: self.check_ops(6 * ps + 5, sMB, PA, "hf3")}
        if self.pending: sl.put("f", OPT["d_mid%d" % ps], self.pending)
        sl.put("f", OPT["d_sig%d" % ps], self.signal_ops(6 * ps + 5, "h6", PB))
        extra = list(wd_l)
        for k in range(max(UP, issued), 56):
            p = 4 * (k - min(OPT["d_up2"], UP + max(0, k - OPT["d_ramp"]) // 3))
            if k + OPT["d_chk"] in chk: sl.put("m", p, chk[k + OPT["d_chk"]][0])
            if k in chk:
                due = [g for g in extra if g[-1][2][1] < (40 if k == 18 else 56)]
                sl.put("m", p, self.flat(due) + chk[k][1]); extra = extra[len(due):]
            sl.put("m", p, ld[k])
            sl.put("m", p, self.flat(extra[:1])); extra = extra[1:]
        su = [[("i", "v_add_u32 v%d, %s, v%d" % (XW + i, sXW[i], vL16b))] for i in range(3)] + [[("i", "v_add_u32 v%d, %s, v%d" % (XR, sXR, vL16b))]]
        su += [[("i", "s_lshl_b32 %s, %s, 2\ns_add_u32 %s, %s, %s\ns_lshl_b32 %s, %s, 6\ns_add_u32 %s, %s, %d\nv_and_or_b32 v%d, v%d, 63, %s" %
                 (sT0, sR, sT0, sT0, sW, sT0, sT0, sT0, sT0, L_RS, R, vFL, sT0)), ("ds", "ds_read_b32 v%d, v%d" % (R, R))]]
        for k in range(8):
            su += [[("i", "v_lshlrev_b32 v%d, 16, v%d" % (U + 2 * k, XRES + k))], [("i", "v_and_b32 v%d, 0xffff0000, v%d" % (U + 2 * k + 1, XRES + k))]]
        sl.spread(su, 20, 70)
        writes = lambda i: [[("ds", "ds_write_b128 v%d, %s offset:%d" % (XW + i, vr(accr(i, cb), 4), io + cb * 1024))] for cb in range(4)]
        reads = lambda i: [[("ds", "ds_read_b128 %s, v%d offset:%d" % (vr(P[i] + 4 * cb, 4), XR, io + i * 4096 + cb * 1024), ("r", i, cb))] for cb in range(4)]
        add = lambda d, s_: [[("i", "v_add_f32 v%d, v%d, v%d" % (d + e_, d + e_, s_ + e_))] for e_ in range(16)]
        for i in range(3): sl.spread(writes(i), endb[i] + 2, endb[i] + 17)
        wb = []
        if ps and OPT["wb"]:
            go, back = a.label("wb"), a.label("wbback")
            self.cold.append("%s:\nbuffer_wbl2 sc1\ns_branch %s" % (go, back))
            wb = [[("i", "s_or_b32 %s, %s, %s" % (sT1, sJ, sW)),
                   ("vm", "s_cmp_eq_u32 %s, 0\ns_cbranch_scc1 %s\nbuffer_load_dword a255, off, %s, %s\n%s:" % (sT1, go, WS, sWQ, back))]]
        seq = [[("dsdrain",), ("i", "s_barrier")]] + wb + reads(0) + reads(1) + reads(2) + [[("wds", ("r", 1, 3))]] + add(P[0], P[1]) + [[("wds", ("r", 2, 3))]] + add(P[0], P[2])
        seq += [[("i", "v_fma_f32 v%d, v%d, v%d, v%d" % (U + e_, P[0] + e_, R, U + e_))] for e_ in range(16)]
        sl.spread(seq, endb[2] + 20, endb[3] - 2)
        pf = [] if ps else [g for i in range(7) if i not in self.wq_late(1) + self.kept() for g in self.wq_chunk(i)]
        pf = sl.pace(pf, 224 - 4 * OPT["d_up2"] + 2, 4.4)
        self.lite(sl, "dn", [28 * k for k in range(8)])
        self.report("dn%d" % ps, sl.emit(a))
        self.stamp()
        A = accr(3, 0)
        for k in range(8): a.I("v_pk_fma_f32 %s, %s, %s, %s op_sel_hi:[1,0,1]" % (vr(A + 2 * k, 2), vr(A + 2 * k, 2), vr(R, 2), vr(U + 2 * k, 2)))
        self.finish(A, 2 * ps + 2, 6, pf, OPT["dn_pre"], 1)

    def gu(self, ps):
        a = self.a
        xi = 2 * ps + 1
        self.poll(6 * ps + 2, sMA)
        self.stamp()
        S0, TL, NR, XR_ = GS0, 16 - GS0, 8, 10
        SS, NM, HPK, CSA = 16, 24, 28, 21
        A0 = X + 80
        xreg = lambda s, b: X + 8 * (s % XR_) + 4 * b
        acc = lambda bl, m, b: A0 + 16 * bl + 8 * b + 4 * m
        xl = self.reg_loads([vr(xreg(s, b), 4) for s in range(16) for b in range(2)], [sXLD] * 32,
                            [LY.XB[xi] + s * 2048 + b * 256 for s in range(16) for b in range(2)], sTA, vQ, "x")
        UP = OPT["g_up"]
        a.run_all(self.flat(xl[:UP]))
        a.I("s_barrier")
        a.I(self.getc(NM, aSQ) + "\ns_add_u32 %s, %s, %d" % (sT0, sSLD, LY.SB[xi]))
        g_st = [[("vm", "buffer_load_dwordx4 %s, v%d, %s, %s offen sc1" % (vr(SS, 4), NM, WS, sT0))],
                [("vm", "buffer_load_dwordx4 %s, v%d, %s, %s offen offset:1024 sc1" % (vr(SS + 4, 4), NM, WS, sT0), "st")]]
        early = self.wg_early(ps)
        NS = len(self.ring(ps))
        assert 0 in early and len(set(early)) == len(early) and all(c < NS and self.wg_slot(c, ps) not in WO_SLOT for c in early)
        assert all(self.wg_slot(c, ps) != 7 for c in self.digits("wg_att%d" % ps) + self.digits("wg_h1%d" % ps)) and not set(self.kept()) - {2, 3, 4, 5}
        frags = [(s, bl, m) for s in range(S0) for bl in range(7) for m in range(2)]
        for bl in range(7): frags += [(s, bl, m) for s in range(S0, 16) for m in range(2)] + [(16, bl, 0)]
        sl = Slots()
        first, last, end, xfirst, xlast = {}, {}, {}, {}, {}
        for k, (s, bl, m) in enumerate(frags):
            w = F + 4 * (k % NR)
            for mm, b in ([(m, 0), (m, 1)] if s < 16 else [(0, 0), (1, 0), (0, 1), (1, 1)]):
                pre = [] if k in first else [("wds", ("f", k))]
                d = vr(acc(bl, mm, b), 4)
                if s < 16:
                    if (s, b) not in xfirst: pre.append(("wvm", ("x", 2 * s + b)))
                    n_ = sl.add("v_mfma_f32_16x16x32_bf16 %s, %s, %s, %s" % (d, vr(w, 4), vr(xreg(s, b), 4), "0" if s == 0 else d), pre)
                    xfirst.setdefault((s, b), n_); xlast[(s, b)] = n_
                else:
                    n_ = sl.add("v_mfma_f32_16x16x16_bf16 %s, %s, %s, %s" % (d, vr(w + 2 * mm, 2), vr(NM + 2 * b, 2), d), pre)
                first.setdefault(k, n_); last[k] = n_
            end[bl] = n_
        LA = OPT["g_la"]
        def rd(k):
            off = self.wg_slot(k // 16, ps) * 16384 + (k % 16) * 1024
            d = F + 4 * (k % NR)
            if frags[k][0] < 16:
                return [("ds", "ds_read_b128 %s, %s" % (vr(d, 4), ldsaddr(off)), ("f", k))]
            return [("ds", "ds_read2st64_b32 %s, v%d offset0:%d offset1:%d" % (vr(d + 2 * m, 2), CSA + (off >> 16), (off & 0xffff) // 256 + 2 * m, (off & 0xffff) // 256 + 2 * m + 1),
                     ("f", k) if m else None) for m in range(2)]
        for k in range(LA): a.run_all(rd(k))
        barpos = {}
        for k in range(LA, len(frags)):
            if k % 16 == 0:
                ch = k // 16
                if ch not in early or 2 <= ch <= 16 - NS:
                    p = barpos[ch] = last[k - LA] - 1
                    if ch not in early: sl.pre[p + 1].append(("wvm", ("wg", ch)))
                    sl.after(p, *(([("wvm", ("wg", ch))] if ch not in early else []) + [("i", "s_barrier")]))
            sl.after(last[k - LA], *rd(k))
        wl = [(barpos[ch - NS + 2] + 2 if ch >= NS else 0, g) for ch in range(15) if ch not in early for g in self.wg_chunk(ch, ps)]
        wdue = [barpos[ch] - 8 * (len(self.wg_chunk(ch, ps)) - 1 - n_) for ch in range(15) if ch not in early for n_ in range(len(self.wg_chunk(ch, ps)))]
        wd = self.wds("rest", ps)
        tail0 = xfirst[(S0, 0)]
        xs = []
        for n_ in range(UP, 32):
            s, b = divmod(n_, 2)
            due = min(xfirst[(s, b)], tail0 - (31 - n_) * OPT["g_xsp"])
            xs.append((due, xlast[(s - XR_, b)] + 1 if s >= XR_ else 0, xl[n_]))
        n_ = OPT["g_stat"]
        xs[n_:n_] = [(xs[n_][0], 0, g) for g in g_st]
        P = lambda key: OPT["g_%s%d" % (key, ps)] / 10
        pos, fab, ix, iw, idd, seq = 0.0, 0.0, 0, 0, 0, []
        stop = end[6] - OPT["g_tail"]
        while ix < len(xs) or iw < len(wl) or (idd < len(wd) and pos <= stop):
            xok = ix < len(xs) and xs[ix][1] <= pos
            xu = xok and xs[ix][0] - pos <= P("xlead")
            wok = iw < len(wl) and wl[iw][0] <= pos
            wu = wok and wdue[iw] - pos <= P("wmin")
            free = fab <= pos + P("slack")
            if xu and (not wu or xs[ix][0] <= wdue[iw] - P("wmin") + P("xlead")): pick = "x"
            elif wu: pick = "w"
            elif free and wok and wdue[iw] - pos <= P("wmax"): pick = "w"
            elif free and idd < len(wd) and pos <= stop: pick = "d"
            elif xok and xs[ix][0] - pos <= P("xmax"): pick = "x"
            else:
                pos = int(pos) + 1; continue
            if pick == "x": g = xs[ix][2]; ix += 1
            elif pick == "w": g = wl[iw][1]; iw += 1; fab = max(fab, pos) + P("wcost")
            else: g = wd[idd]; idd += 1; fab = max(fab, pos) + P("dcost")
            behind = (ix < len(xs) and xs[ix][0] - pos < 0.7 * P("xlead")) or (iw < len(wl) and wdue[iw] - pos < 0.7 * P("wmin"))
            seq.append((pos, g)); pos += 2.0 if behind else P("every")
            if g is g_st[1]: stpos = pos
        assert not sl.pace(seq, 0, 0)
        left = wd[idd:]
        st = [[("wvm", "st")]]
        for r_ in (SS, SS + 4):
            for o in (0, 1): st.append([("i", "v_add_f32 v%d, v%d, v%d" % (r_ + o, r_ + o, r_ + 2 + o))])
        for o in (0, 1): st.append([("i", "v_permlane32_swap_b32 v%d, v%d" % (SS + o, SS + 4 + o))])
        for o in (0, 1): st.append([("i", "v_add_f32 v%d, v%d, v%d" % (SS + o, SS + o, SS + 4 + o))])
        for o in (0, 1): st.append([("i", "v_mov_b32 v%d, v%d" % (SS + 2 + o, SS + o))])
        for k in range(3): st.append([("i", "v_add_u32 v%d, %d, v%d" % (CSA + k, k << 16, vFL))])
        for o in (0, 1): st.append([("i", "v_permlane16_swap_b32 v%d, v%d" % (SS + o, SS + 2 + o))])
        for o in (0, 1): st.append([("i", "v_add_f32 v%d, v%d, v%d" % (SS + o, SS + o, SS + 2 + o))])
        st += [[op] for op in self.ln_from_sums(SS, SS + 1, SS + 2)]
        st += [[("i", "v_cvt_pk_bf16_f32 v%d, -v%d, -v%d" % (NM + k, SS, SS))] for k in range(4)]
        st += [[("i", "v_mul_f32 v%d, v%d, v%d" % (SS + 1, SS + 1, SS + 1))],
               [("i", "s_lshr_b32 %s, %s, 3\ns_add_u32 %s, %s, %d" % (sT0, sLW, sT0, sT0, L_RS))],
               [("i", "v_and_or_b32 v%d, v%d, 63, %s" % (SS, vFL, sT0))], [("i", "v_and_b32 v%d, 32, v0" % (SS + 2))],
               [("i", "v_lshl_add_u32 v%d, v%d, 1, v%d" % (SS, SS + 2, SS))]]
        st += [[("i", "v_permlane32_swap_b32 v%d, v%d" % (NM + k, NM + 2 + k))] for k in range(2)] + [[("mark", "nm")]]
        sl.after(tail0 - 2 * LA, ("need", "nm"))
        sl.spread(st, int(stpos) + 40, tail0 - 2 * LA - 10)
        def epi(bl, packed=False):
            g = []
            for b in range(2):
                ga = acc(bl, 0, b)
                g += [[("i", "v_max_f32 v%d, 0, v%d" % (ga + r, ga + r))] for r in range(4)]
                if packed: g += [[("i", "v_pk_mul_f32 %s, %s, %s" % (vr(ga + r, 2), vr(ga + r, 2), vr(ga + 4 + r, 2)))] for r in (0, 2)]
                else: g += [[("i", "v_mul_f32 v%d, v%d, v%d" % (ga + r, ga + r, ga + 4 + r))] for r in range(4)]
                g += [[("i", "v_cvt_pk_bf16_f32 v%d, v%d, v%d" % (HPK + 2 * b + k, ga + 2 * k, ga + 2 * k + 1))] for k in range(2)]
            g.append([("i", "s_add_u32 %s, %s, %s" % ((sTS, sTS, sHSTEP) if bl else (sTS, sHST, LY.HB[ps])))])
            g += [[("i", "v_permlane16_swap_b32 v%d, v%d" % (HPK + k, HPK + 2 + k))] for k in range(2)]
            g.append([("vm", "buffer_store_dwordx4 %s, v%d, %s, %s offen%s" % (vr(HPK, 4), vL16, WS, sTS, " sc1" if ps == 0 or str(bl) in OPT["h_wt"] else ""), "h%d" % bl)])
            return g
        for bl in range(6): sl.spread(epi(bl), end[bl] + 1, end[bl + 1] - OPT["g_epi"])
        l_e, g_e = self.check_ops(6 * ps + 3, sMB, SS + 3, "he")
        sl.put("f", end[3] + OPT["g_sig%d" % ps], self.signal_ops(6 * ps + 3, "h2", SS + 4))
        self.pending = self.signal_ops(6 * ps + 4, "h4", SS + 4)
        if OPT["d_mid%d" % ps] < 0:
            sl.put("f", end[5] + OPT["g_sig%d" % ps], self.pending); self.pending = None
        nh = OPT["g_h%d" % ps]
        assert S0 >= 10 and nh <= 12
        p = end[6] - OPT["g_chk%d" % ps]
        sl.put("h", p - OPT["g_lat%d" % ps], l_e)
        if nh:
            sl.put("h", p, g_e); g_e = []
            assert not sl.pace(self.dn_plan(ps)[2][:nh], p + 1, min(4.4, (end[6] - p - 2) / nh), name="h")
        sl.put("g", tail0, self.flat(self.code_touch("L_dn%d" % ps, SS + 3)))
        sl.put("c", max(tail0, barpos[2 + max(c for c in range(14) if self.wg_slot(c, ps) == 6)] + 1), [("ds", "ds_write_b32 v%d, v%d" % (SS, SS + 1))])
        if ps == 0:
            sl.put("c", end[6] - 8, [("i", "s_or_b32 %s, s2, %s" % (sT0, sW)), ("atom", "s_cmp_eq_u32 %s, 0\ns_cselect_b32 %s, %d, 0x%x" % (sT0, sT0, LY.EPOCH, OOB)),
                                     ("i", "v_mov_b32 v%d, %s" % (SS + 2, sNONCE)),
                                     ("vm", "buffer_store_dword v%d, v%d, %s, %s offen" % (SS + 2, vF1, WS, sT0))])
        self.lite(sl, "g", [56 * k for k in range(8)])
        self.report("gu%d" % ps, sl.emit(a))
        a.run_all(self.flat(epi(6, True)))
        self.stamp()
        a.run_all(g_e)
        self.stamp()
        print("  gu: %d loads left for the hand-off" % len(left))
        return nh, left

    def build(self):
        a = self.a
        self.startup()
        for ps in range(2):
            a.I("L_qkv%d:" % ps); self.qkv(ps)
            a.I("L_wo%d:" % ps); self.wo(ps)
            a.I("L_gu%d:" % ps); left = self.gu(ps)
            a.I("L_dn%d:" % ps); self.dn(ps, *left)
        if OPT["stamps"]:
            a.I("s_waitcnt vmcnt(0)\ns_memrealtime s[6:7]\ns_memtime s[80:81]\ns_waitcnt lgkmcnt(0)\nv_writelane_b32 v%d, s6, 63\nv_writelane_b32 v%d, s80, 61" % (vSTAMP, vSTAMP))
            a.I("s_lshl_b32 %s, s2, 10\ns_lshl_b32 %s, %s, 8\ns_add_u32 %s, %s, %s\ns_add_u32 %s, %s, %d" % (sT0, sT1, sW, sT0, sT0, sT1, sT0, sT0, LY.STAMP))
            a.I("buffer_store_dword v%d, v%d, %s, %s offen" % (vSTAMP, vFL, WS, sT0))
        if OPT["diagpad"]:
            a.I("s_mov_b32 s82, %d" % OPT["diagpad"])
            if OPT["diagat"]:
                a.I("s_sub_u32 s83, s%d, s14\ns_lshl_b32 s83, s83, 2" % sST)
                if OPT["diagwg"] >= 0: a.I("s_cmp_eq_u32 s2, %d\ns_cselect_b32 s83, s83, 0" % OPT["diagwg"])
                a.I("s_add_u32 s82, s82, s83")
            a.I("L_pad:\ns_memrealtime s[80:81]\ns_waitcnt lgkmcnt(0)\ns_sub_u32 s80, s80, s14\ns_cmp_lt_u32 s80, s82\ns_cbranch_scc1 L_pad")
        a.I("L_main_done:\ns_endpgm")
        for c in self.cold: a.I(c)
        a.I("L_code_end:")
        return a.lines

def main():
    ml, n2 = hazard_pass(Main().build())
    k = NAME + "_kernel"
    out = ["; Generated by gen/gen.py: one persistent kernel (weight re-layout, then four layers with flag hand-offs). " + " ".join(sys.argv[2:]),
           "; @launch grid=(256,1,1) block=(256,1,1) lds=163840",
           '.amdgcn_target "amdgcn-amd-amdhsa--gfx950"', ".text",
           ".globl %s" % k, ".p2align 8", ".type %s,@function" % k]
    out += [l if l.endswith(":") else "    " + l for l in ml]
    out += ['.section .rodata,"a"', ".p2align 6", """.amdhsa_kernel %s
  .amdhsa_next_free_vgpr 512
  .amdhsa_next_free_sgpr 102
  .amdhsa_accum_offset 256
  .amdhsa_group_segment_fixed_size 0
  .amdhsa_kernarg_size 80
  .amdhsa_user_sgpr_count 2
  .amdhsa_user_sgpr_kernarg_segment_ptr 1
  .amdhsa_system_sgpr_workgroup_id_x 1
  .amdhsa_float_denorm_mode_32 3
.end_amdhsa_kernel""" % k]
    if OPT["rt"]: out = [l.replace("s_memtime", "s_memrealtime") for l in out]
    open(sys.argv[1], "w").write("\n".join(out) + "\n")
    print("instructions: %d ; wait states added: %d" % (len(ml), n2))

main()
```

```python
import os
SEP = int(os.environ.get("SEP", "0"))
GS0 = int(os.environ.get("GS0", "10"))
LV = int(os.environ.get("LV", "0"))
EPOCH = 0
FL = 0x1000
HFL = 0xA000
XF = 0x24000
FA = 0x14000
FB = 0x1C000
STAMP = 0x40000
PAD = int(os.environ.get("PAD", "0"))
WQ = 0x100000; WQ_STRIDE = 102400 + PAD
WO = WQ + 16 * WQ_STRIDE; WO_STRIDE = 65536 + PAD
WG = WO + 8 * WO_STRIDE; WG_STRIDE = 232 * 1024 + PAD
WD = WG + 16 * WG_STRIDE; WD_STRIDE = 229376 + PAD
WEND = WD + 8 * WD_STRIDE
ACT = 0xA00000; ACT_SHIFT = 21 if SEP else 20; ACT_STRIDE = 1 << ACT_SHIFT
assert WEND <= ACT
if SEP:
    XB = [i * 131072 for i in range(4)]
    OB = [(4 + i) * 131072 for i in range(2)]
    HB = [6 * 131072 + i * 458752 for i in range(2)]
    SB = [HB[1] + 458752 + i * 8192 for i in range(4)]
else:
    XB = [0] * 4; OB = [131072, 262144]; HB = [262144] * 2; SB = [262144 + 458752] * 4
HX = [SB[3] + 8192 + i * 16384 for i in range(2)]
assert HX[1] + 16384 <= ACT_STRIDE
WS_USED = ACT + 16 * ACT_STRIDE
```

```python
import sys
from dsl import Asm, Slots, hazard_pass
import layout as LY

NAME = "interleave_layers__sliding_local_dilated__glu_gated_reglu__prompt"
OPT = dict(stamps=0, lite="-", hitw=0,
           q_up=8, q_every=45, q_hf=8, q_chk=6, q_h0=10, a_every=14, k_up=8, g_up=4, g_tail=0, g_la=7, g_xsp=11, g_stat=6,
           g_every0=36, g_xlead0=400, g_wmin0=600, g_wmax0=1000, g_slack0=40, g_wcost0=60, g_dcost0=30,
           g_xmax0=9000, g_xmax1=800, g_every1=46, g_xlead1=400, g_wmin1=560, g_wmax1=700, g_slack1=40, g_wcost1=60, g_dcost1=30,
           wq_late1="-", dn_pre=6, q0_up=6, q0_lead=20, q0_every=20,
           wg_att0="0", wg_h10="-", wg_wo0="1", wg_h20="-",
           wg_att1="01", wg_h11="-", wg_wo1="2", wg_h21="-",
           keep="2345", q_wbar=12, w_pre=20, w_up=8, w_quiet=12, d_sig0=16, d_sig1=16, d_up2=11, d_ramp=8, d_mid0=-1, d_mid1=-1, d_chk=8, g_epi=6, g_sig0=27, g_sig1=16, g_chk0=20, g_chk1=26, g_lat0=18, g_lat1=18, g_h0=4, g_h1=6,
           touch=0, h_wt="-", wb=1, otouch=1, diagpad=0, diagat=0, diagwg=100, b_pos=1, q0_split=0, q0_n1=6, q0_hf=6, order="ao", rt=0, follow="xgcpwud", f_pos=1, g_grp=3, q_grp=3, g_bar1=1, g_pair0=7, outf="-", c_early=0, b_spread=0, b_first=0, b_gap=3, pollf="nt", actf="sc1", wf="sc1", cpf=1, predrain=1, q0_b=0, q0_fbch=3, q0_fbs=15, q0_w=6, q0_tail=45, a_quiet=30, wd_q=0, wd_att=0, wd_h1=0, wd_wo=0, wd_h2=0)
for arg in sys.argv[2:]:
    k, v = arg.split("=")
    OPT[k] = v if isinstance(OPT[k], str) else int(v)

def vr(b, n): return "v[%d:%d]" % (b, b + n - 1)
def ar(b, n): return "a[%d:%d]" % (b, b + n - 1)
def magic(d): return (1 << 32) // d + 1
OOB = 0x40000000
GS0 = LY.GS0

WS, XIN, OUT = "s[8:11]", "s[12:15]", "s[16:19]"
sW, sJ, sR, sC, sG, sN, sNONCE, sSLOW = ("s%d" % i for i in range(20, 28))
sGB, sXLD, sXST, sOST, sXR, sHST, sSLD, sWQ, sWG, sWO, sWD, sLW = ("s%d" % i for i in range(28, 40))
sMA, sMB = "s[40:41]", "s[42:43]"
sFLG, sFLW, sHALO, sHFL, sTAB, sSST, sONE, sHDST, sHDFL, sP = ("s%d" % i for i in range(44, 54))
sMH = "s[54:55]"
sTA, sTW, sTD, sTS, sT0, sT1, sT2, sSPIN = ("s%d" % i for i in range(56, 64))
sHLD = ["s%d" % i for i in range(68, 72)]
sXW = ["s%d" % i for i in range(72, 75)]
sFBO, sB0, sB1, sB2, sB3 = "s75", "s76", "s77", "s78", "s79"
SRC_A, SRC_G, SRC_U, SRC_D = 80, 84, 88, 92
sLW2, sLW4, sWQ4, sWG4 = "s96", "s97", "s98", "s99"
sST = 100
sHALO2 = sP
sNH, sCPO, sPC, sSLOW2 = "s12", "s13", "s[4:5]", "s[0:1]"
sOL, sHSTEP, sMC = "s64", "s65", "s[66:67]"
vL, vL16, vL16b, vL16c, vQ, vF1, vFL, vSTAMP = 0, 1, 2, 3, 4, 5, 6, 7
XRES = 8
PA, PB = 22, 23
X, ACC, F = 32, 160, 224
aROW, aST, aSQ, aSH, aSG, aHX, aHWR, aHWS, aHST, aHSS, aFB, aLINE, aTO, aTH = range(224, 238)
aBC, aBP, aBP0, aMC = 240, 244, 248, 252
L_HALO, L_RS, L_KV, L_TAB, L_FMT = 102400, 110592, 114688, 124928, 131072
L_SCR_DN = 114688
WO_SLOT = (8, 9, 0, 1)
DN_S = ((2, 3, 4, 9, 10, 11), (1, 5, 8, 12), (0, 6, 7, 13))
DN_ORD = sum(DN_S, ())
NEG = "0xf149f2ca"

def ldsaddr(off):
    return "v%d offset:%d" % ((vL16, vL16b, vL16c)[off >> 16], off & 0xffff)

def isvm(g): return any(op[0] == "vm" for op in g)

class Main:
    def __init__(self):
        self.a = Asm()
        self.nstamp = 0
        self.cold = []
        self.nlite = 0
        self.wd = None
        self.ncall = 0

    def stamp(self, key=None):
        self.ncall += 1
        if OPT["diagpad"] and OPT["diagat"] == self.ncall:
            self.a.I("s_memrealtime s[%d:%d]" % (sST, sST + 1))
            self.a.ds_drain(force=True)
        if OPT["stamps"] != 1 or (key is not None and OPT["lite"] != key):
            return
        a = self.a
        a.I("s_memtime s[%d:%d]" % (sST, sST + 1))
        a.ds_drain(force=True)
        for k in range(self.nlite):
            a.I("v_writelane_b32 v%d, s%d, %d" % (vSTAMP, 80 + 2 * k, self.nstamp))
            self.nstamp += 1
        self.nlite = 0
        a.I("v_writelane_b32 v%d, s%d, %d" % (vSTAMP, sST, self.nstamp))
        self.nstamp += 1

    def lite(self, sl, key, slots):
        if OPT["lite"] != key:
            return
        for i in slots[:8]:
            sl.after(i, ("i", "s_memtime s[%d:%d]" % (80 + 2 * self.nlite, 81 + 2 * self.nlite)))
            self.nlite += 1

    def report(self, name, r):
        print("  %s: cycles over budget %d, ops left after the loop %d" % ((name,) + r))

    def getc(self, v, acc): return "v_accvgpr_read_b32 v%d, a%d" % (v, acc)
    def flat(self, groups): return [op for g in groups for op in g]
    def digits(self, key): return tuple(int(c, 16) for c in str(OPT[key]) if c != "-")
    def wgs(self, where, ps): return [g for i in self.digits("wg_%s%d" % (where, ps)) for g in self.wg_chunk(i, ps)]
    def wg_early(self, ps): return sum((self.digits("wg_%s%d" % (w, ps)) for w in ("att", "h1", "wo", "h2")), ())
    def wq_late(self, ps): return tuple(range(7)) if ps == 0 else self.digits("wq_late1")

    def srd(self, base, lo, hi, nbytes):
        self.a.I("s_mov_b32 s%d, %s\ns_and_b32 s%d, %s, 0xffff\ns_mov_b32 s%d, %s\ns_mov_b32 s%d, 0x20000" %
                 (base, lo, base + 1, hi, base + 2, nbytes, base + 3))

    def lin(self, dst, base, terms):
        first = True
        for reg, mul in terms:
            self.a.I("s_mul_i32 %s, %s, %d\ns_add_u32 %s, %s, %s" % (sT2, reg, mul, dst, base if first else dst, sT2))
            first = False

    def sdivmod(self, q, r, x, d):
        self.a.I("s_mul_hi_u32 %s, %s, 0x%x\ns_mul_i32 %s, %s, %d\ns_sub_u32 %s, %s, %s" % (q, x, magic(d), sT2, q, d, r, x, sT2))

    def hi_lo(self, dst, src, t):
        return ["v_cvt_pk_bf16_f32 v%d, v%d, v%d" % (dst, src, src), "v_lshlrev_b32 v%d, 16, v%d" % (t, dst),
                "v_sub_f32 v%d, v%d, v%d" % (t, src, t), "v_cvt_pk_bf16_f32 v%d, v%d, v%d" % (dst, src, t)]

    def weave(self, body, groups, first, every):
        k = 0
        for n_, op in enumerate(body):
            if n_ >= first and (n_ - first) % every == 0:
                while k < len(groups):
                    g = groups[k]; k += 1
                    self.a.run_all(g)
                    if isvm(g): break
            self.a.run(op)
        return groups[k:]

    def signal(self, h, wait=None, halo_pass=None):
        a = self.a
        slow, done = a.label("slow"), a.label("sig")
        a.I("s_add_u32 %s, %s, %d\nv_mov_b32 v30, %s" % (sNH, sNONCE, h, sNH))
        if halo_pass is not None:
            h1, b1, h2, b2 = a.label("halo"), a.label("hback"), a.label("halo"), a.label("hback")
            n = a.vm_n - max(a.vm_tag[wait], a.vm_done)
            a.I("s_cmp_lg_u32 %s, 0x%x\ns_cbranch_scc1 %s" % (sHDST, OOB, h1))
            st = "\n".join("buffer_store_dwordx4 %s, v24, %s, %s offen offset:%d sc1" % (vr(XRES + 4 * e, 4), WS, sTS, e * 512) for e in range(2))
            self.cold.append("%s:\n%s\n%s\ns_add_u32 %s, %s, %d\n%s\nbuffer_store_dword v26, v25, %s, %s offen sc1\ns_waitcnt vmcnt(%d)\ns_branch %s" %
                             (h1, self.getc(24, aHST), self.getc(25, aHSS), sTS, sHDST, LY.HX[halo_pass], st, WS, sTS, n + 3, b1))
            self.cold.append("%s:\ns_add_u32 %s, %s, %d\nv_mov_b32 v24, %s\n%s\ns_waitcnt vmcnt(1)\nbuffer_store_dword v24, v25, %s, %s offen sc1\ns_branch %s" %
                             (h2, sTS, sHDFL, halo_pass * 16384, sNONCE, self.getc(25, aLINE), WS, sTS, b2))
            a.vm_wait(wait)
            a.I("%s:\ns_cmp_lg_u32 %s, 0" % (b1, sSLOW))
        else:
            a.I("s_cmp_lg_u32 %s, 0" % sSLOW)
            if wait is None: a.vm_drain()
            else: a.vm_wait(wait)
        a.I("s_cbranch_scc1 %s" % slow)
        a.vm("buffer_store_dword v30, v%d, %s, %s offen" % (vF1, WS, sFLW))
        a.I("%s:" % done)
        self.cold.append("%s:\nbuffer_wbl2 sc1\ns_waitcnt vmcnt(0)\nbuffer_store_dword v30, v%d, %s, %s offen sc1\ns_branch %s" % (slow, vF1, WS, sFLW, done))
        self.sent = h
        if halo_pass is not None:
            a.I("s_cmp_lg_u32 %s, 0x%x\ns_cbranch_scc1 %s\n%s:" % (sHDST, OOB, h2, b2))

    def poll(self, h, mask, also=None, setup=None):
        a = self.a
        a.forget()
        assert self.sent == h
        if setup: setup()
        def loop(name, fl):
            ld = "buffer_load_dword v%d, v%d, %s, %s offen %s" % (PA, vFL, WS, sFLG, fl)
            ts = "v_subrev_u32 v%d, %s, v%d\nv_cmp_lt_u32 vcc, 15, v%d\ns_and_b64 vcc, vcc, %s" % (PA, sNH, PA, PA, mask)
            if also is not None:
                ld += "\nbuffer_load_dword v%d, v%d, %s, 0 offen sc1" % (PB, also, WS)
                ts = "v_cmp_ne_u32 s[60:61], %s, v%d\n%s\ns_or_b64 vcc, vcc, s[60:61]" % (sNONCE, PB, ts)
            return "%s:\n%s\ns_sub_u32 %s, %s, 1\ns_cbranch_scc1 L_main_done\ns_waitcnt vmcnt(0)\n%s\ns_cbranch_scc1 %s" % (name, ld, sSPIN, sSPIN, ts, name)
        far, ok = a.label("far"), a.label("ok")
        a.I("s_mov_b32 %s, 0x40000\ns_cmp_lg_u32 %s, 0\ns_cbranch_scc1 %s" % (sSPIN, sSLOW, far))
        a.I(loop(a.label("poll"), OPT["pollf"]) + "\n%s:" % ok)
        a.vm_done = a.vm_n
        self.cold.append(loop(far, "sc1") + "\nbuffer_inv sc1\ns_waitcnt vmcnt(0)\ns_branch %s" % ok)

    def signal_ops(self, h, wait, reg):
        a = self.a
        slow, done = a.label("slow"), a.label("sig")
        self.cold.append("%s:\nbuffer_wbl2 sc1\ns_waitcnt vmcnt(0)\nbuffer_store_dword v%d, v%d, %s, %s offen sc1\ns_branch %s" % (slow, reg, vF1, WS, sFLW, done))
        return [("i", "s_add_u32 %s, %s, %d" % (sNH, sNONCE, h)), ("i", "v_mov_b32 v%d, %s" % (reg, sNH)), ("wvm", wait),
                ("vm", "s_cmp_lg_u32 %s, 0\ns_cbranch_scc1 %s\nbuffer_store_dword v%d, v%d, %s, %s offen\n%s:" % (sSLOW, slow, reg, vF1, WS, sFLW, done))]

    def check_ops(self, h, mask, reg, tag):
        a = self.a
        spin, back = a.label("cspin"), a.label("cback")
        ld = lambda fl: "buffer_load_dword v%d, v%d, %s, %s offen %s" % (reg, vFL, WS, sFLG, fl)
        t = ["v_subrev_u32 v%d, s3, v%d" % (reg, reg), "v_cmp_lt_u32 vcc, 15, v%d" % reg, "s_and_b64 vcc, vcc, %s" % mask]
        loop = lambda name, fl: "%s:\n%s\ns_sub_u32 %s, %s, 1\ns_cbranch_scc1 L_main_done\ns_waitcnt vmcnt(0)\n%s\ns_cbranch_scc1 %s" % (name, ld(fl), sSPIN, sSPIN, "\n".join(t), name)
        self.cold.append("%s:\ns_mov_b32 %s, 0x40000\ns_cmp_lg_u32 %s, 0\ns_cbranch_scc1 %s_f\n%s\ns_branch %s\n%s\nbuffer_inv sc1\ns_waitcnt vmcnt(0)\ns_branch %s" %
                         (spin, sSPIN, sSLOW, spin, loop(spin + "_n", OPT["pollf"]), back, loop(spin + "_f", "sc1"), back))
        return [("vm", ld(OPT["pollf"]), tag)], [("i", "s_add_u32 s3, %s, %d" % (sNONCE, h)), ("wvm", tag), ("i", t[0]), ("i", t[1]),
                                                ("atom", "%s\ns_or_b64 vcc, vcc, %s\ns_cbranch_scc1 %s\n%s:" % (t[2], sSLOW2, spin, back))]

    def late_check(self, load, reg, mask, tag):
        a = self.a
        spin, back = a.label("lspin"), a.label("lback")
        cmp_, and_ = "v_cmp_ne_u32 vcc, %s, v%d" % (sNONCE, reg), "s_and_b64 vcc, vcc, %s" % mask
        self.cold.append("%s:\ns_mov_b32 %s, 0x40000\n%s_l:\n%s\ns_sub_u32 %s, %s, 1\ns_cbranch_scc1 L_main_done\ns_waitcnt vmcnt(0)\n%s\n%s\ns_cbranch_scc1 %s_l\ns_branch %s"
                         % (spin, sSPIN, spin, load, sSPIN, sSPIN, cmp_, and_, spin, back))
        return [("vm", load, tag)], [("wvm", tag), ("i", cmp_), ("atom", and_ + "\ns_cbranch_scc1 %s\n%s:" % (spin, back))]

    def dma_chunk(self, sbase, goff, loff, n, tag, sc=""):
        sw = {1: sLW, 2: sLW2, 4: sLW4}[n]
        setup = [("set", sTW, "s_add_u32 %s, %s, %d" % (sTW, sbase, goff)), ("set", "m0", "s_add_u32 m0, %s, %d" % (sw, loff))]
        return [setup + [("vm", "buffer_load_dwordx4 v%d, %s, %s offen offset:%d%s lds" % (vL16, WS, sTW, k * 1024, sc), tag if k == n - 1 else None)]
                for k in range(n)]

    def wq_chunk(self, i): return self.dma_chunk(sWQ4 if i < 6 else sWQ, i * 16384, i * 16384, 4 if i < 6 else 1, ("wq", i), " " + OPT["wf"].strip("-"))
    def kept(self): return self.digits("keep")
    def ring(self, ps):
        return [k for k in (2, 3, 4, 5, 6, 7, 8, 9, 0, 1) if ps or k not in self.kept()]
    def wg_slot(self, i, ps): return self.ring(ps)[i % len(self.ring(ps))]
    def wo_chunk(self, i): return self.dma_chunk(sWO, i * 16384, WO_SLOT[i] * 16384, 4, ("wo", i), " " + OPT["wf"].strip("-"))
    def wg_chunk(self, i, ps): return self.dma_chunk(sWG4 if i < 14 else sWG, i * 16384, self.wg_slot(i, ps) * 16384, 4 if i < 14 else 2, ("wg", i), " " + OPT["wf"].strip("-"))

    def reg_loads(self, dsts, bases, offs, stmp, vaddr, tagbase):
        ops, cur = [], None
        for k, (d, sb, off) in enumerate(zip(dsts, bases, offs)):
            if cur is None or cur[0] != sb or not (0 <= off - cur[1] < 4096):
                cur = (sb, off)
            ops.append([("set", stmp, "s_add_u32 %s, %s, %d" % (stmp, sb, cur[1])),
                        ("vm", "buffer_load_dwordx4 %s, v%d, %s, %s offen offset:%d %s" % (d, vaddr, WS, stmp, off - cur[1], OPT["wf" if tagbase[0] == "w" else "actf"].strip("-")), (tagbase, k))])
        return ops

    def touch(self, acc, sbase, off, tmp):
        return [[("i", self.getc(tmp, acc) + "\ns_add_u32 %s, %s, %d" % (sT1, sbase, off)),
                 ("vm", "buffer_load_dword a255, v%d, %s, %s offen sc1" % (tmp, WS, sT1))]]

    def code_touch(self, label, tmp, n=1):
        if not OPT["cpf"]: return []
        return [[("i", "s_add_u32 s15, %s, %s-L_pc+%d" % (sCPO, label, 16384 * k)), ("i", "s_min_u32 s15, s15, L_code_end-L_pc-4"),
                 ("i", "v_mov_b32 v%d, s15" % tmp), ("vm", "global_load_dword a255, v%d, %s" % (tmp, sPC))] for k in range(n)]

    def ln_from_sums(self, s1, s2, t):
        return [("i", x) for x in (
            "v_mul_f32 v%d, 0x3b000000, v%d" % (s1, s1),
            "v_mul_f32 v%d, v%d, v%d" % (t, s1, s1),
            "v_mul_f32 v%d, 0x3b000000, v%d" % (s2, s2),
            "v_sub_f32 v%d, v%d, v%d" % (s2, s2, t),
            "v_max_f32 v%d, 0, v%d" % (s2, s2),
            "v_cvt_pk_bf16_f32 v%d, v%d, v%d" % (s2, s2, s2),
            "v_lshlrev_b32 v%d, 16, v%d" % (s2, s2),
            "v_add_f32 v%d, 0x3727c5ac, v%d" % (s2, s2),
            "v_cvt_pk_bf16_f32 v%d, v%d, v%d" % (s2, s2, s2),
            "v_lshlrev_b32 v%d, 16, v%d" % (s2, s2),
            "v_sqrt_f32 v%d, v%d" % (s2, s2),
            "v_cvt_pk_bf16_f32 v%d, v%d, v%d" % (s2, s2, s2),
            "v_lshlrev_b32 v%d, 16, v%d" % (s2, s2),
            "v_rcp_f32 v%d, v%d" % (s2, s2))]

    def publish(self, xi):
        a = self.a
        S1, S2, S3, S4, AD = 26, 27, 28, 29, 25
        a.I("s_add_u32 %s, %s, %d" % (sTS, sXST, LY.XB[xi]))
        for e in range(2):
            a.vm("buffer_store_dwordx4 %s, v%d, %s, %s offen offset:%d%s" % (vr(XRES + 4 * e, 4), vQ, WS, sTS, e * 2048, " sc1" if xi == 0 else ""))
        for k in range(4):
            for d, p, o in ((S1, XRES + k, sONE), (S2, XRES + k, None), (S3, XRES + 4 + k, sONE), (S4, XRES + 4 + k, None)):
                a.I("v_dot2_f32_bf16 v%d, v%d, %s, %s" % (d, p, o or "v%d" % p, "v%d" % d if k else "0"))
        a.I(self.getc(AD, aST) + "\ns_add_u32 %s, %s, %d" % (sTS, sSST, LY.SB[xi]))
        a.I("v_add_f32 v%d, v%d, v%d\nv_add_f32 v%d, v%d, v%d" % (S1, S1, S3, S2, S2, S4))
        a.I("v_permlane32_swap_b32 v%d, v%d\nv_add_f32 v%d, v%d, v%d\nv_mov_b32 v%d, v%d" % (S1, S2, S1, S1, S2, S2, S1))
        a.I("v_permlane16_swap_b32 v%d, v%d\nv_add_f32 v%d, v%d, v%d" % (S1, S2, S1, S1, S2))
        a.vm("buffer_store_dword v%d, v%d, %s, %s offen" % (S1, AD, WS, sTS), "pub")

    def startup(self):
        a = self.a
        lin = self.lin
        t8, kc, tok, g, hh, t32, u0, u1, rr, cc, q16, vA, vR, vD, TA0, TA1, TD, XA, XV, FAV, LINE = range(F, F + 21)
        ONES = F + 24
        def put(acc): self.a.I("v_accvgpr_write_b32 a%d, v%d" % (acc, u1))
        a.I("%s_kernel:" % NAME)
        a.I("s_cmp_ge_u32 s2, 256\ns_cbranch_scc1 L_main_done")
        a.I("s_load_dwordx16 s[64:79], s[0:1], 0\ns_load_dwordx2 s[4:5], s[0:1], 72")
        if OPT["stamps"] or OPT["diagpad"]:
            a.I("s_memrealtime s[98:99]")
        if OPT["stamps"]:
            a.I("s_memtime s[%d:%d]" % (sST, sST + 1))
        a.I("s_getpc_b64 s[56:57]\nL_pc:\ns_lshr_b32 s58, s2, 3\ns_lshl_b32 s58, s58, 11")
        a.I("v_lshrrev_b32 v16, 6, v0\nv_lshrrev_b32 v17, 4, v0\nv_lshlrev_b32 v17, 7, v17\nv_add_u32 v17, s58, v17")
        a.I("v_min_u32 v17, L_code_end-L_pc-4, v17\nv_and_b32 v0, 63, v0\nv_readfirstlane_b32 %s, v16" % sW)
        a.I("global_load_dword a255, v17, s[56:57]")
        a.I("s_and_b32 %s, s2, 7\ns_bfe_u32 %s, s2, 0x40003\ns_lshr_b32 %s, s2, 7" % (sN, sJ, sP))
        a.I("s_lshr_b32 %s, %s, 3\ns_and_b32 %s, %s, 7" % (sR, sJ, sC, sJ))
        a.I("v_and_b32 v%d, 7, v0\nv_lshrrev_b32 v%d, 3, v0\nv_and_b32 v%d, 15, v0\nv_lshrrev_b32 v%d, 4, v0\nv_lshlrev_b32 v%d, 4, v%d" % (t8, kc, tok, g, u0, t8))
        a.I("s_lshl_b32 s31, %s, 1\ns_add_u32 s31, s31, %s\ns_lshl_b32 s31, s31, 2\ns_add_u32 s31, s31, %s\ns_lshl_b32 s31, s31, 5" % (sN, sR, sW))
        a.I("s_add_u32 s31, s31, %s\ns_lshl_b32 s31, s31, 3\ns_add_u32 s31, s31, %s\ns_lshl_b32 s31, s31, 7" % (sP, sC))
        a.I("v_lshlrev_b32 v%d, 11, v%d\nv_lshl_add_u32 v%d, v%d, 4, v%d\nv_add_u32 v%d, s31, v%d" % (vR, tok, vR, g, vR, vR, vR))
        a.I("s_lshl_b32 %s, %s, 12\ns_cmp_lg_u32 %s, 0\ns_cbranch_scc1 L_follow" % (sLW4, sW, sP))
        cu, kp, st, so, so2 = "s32", "s33", "s34", "s35", "s36"
        D4 = [sB0, sB1, sB2, sB3]
        dCS, dD = "s3", "s0"

        def tile_dma(srdn, va, s_off, stride, lds, tag):
            a = self.a
            a.I("s_add_u32 m0, %s, %d" % (sLW4, lds))
            for k in range(4):
                if k: a.I("s_add_u32 %s, %s, %s" % (sT0, s_off if k == 1 else sT0, stride))
                a.vm("buffer_load_dwordx4 v%d, s[%d:%d], %s offen offset:%d lds" % (va, srdn, srdn + 3, sT0 if k else s_off, k * 1024), tag if k == 3 else None)
        def x_loads():
            a = self.a
            self.srd(12, "s64", "s65", 2048 * 1024)
            a.vm("buffer_load_dwordx4 %s, v%d, %s, 0 offen" % (vr(XRES, 4), vR, XIN))
            a.vm("buffer_load_dwordx4 %s, v%d, %s, 0 offen offset:64" % (vr(XRES + 4, 4), vR, XIN), "x")
            if OPT["stamps"]:
                a.I("v_mov_b32 v%d, 0\nv_writelane_b32 v%d, s98, 62\nv_writelane_b32 v%d, s%d, 0" % (vSTAMP, vSTAMP, vSTAMP, sST))
                self.nstamp = 1
            if OPT["diagpad"]: a.I("s_mov_b32 s14, s98")
        def common():
            a = self.a
            self.srd(8, "s4", "s5", LY.WS_USED)
            a.I("s_lshl_b32 %s, %s, 1\ns_add_u32 %s, %s, %s" % (sG, sN, sG, sG, sP))
            a.I("s_lshl_b32 %s, %s, %d\ns_add_u32 %s, %s, 0x%x" % (sGB, sG, LY.ACT_SHIFT, sGB, sGB, LY.ACT))
            lin(sFLG, str(LY.FL), [(sG, 256)])
            lin(sFLW, sFLG, [(sJ, 16), (sW, 4)])
            lin(sSST, sGB, [(sR, 4096), (sC, 8), (sW, 1024)])
            lin(sTS, sSST, [(sC, 120)])
            a.I("s_add_u32 %s, %s, %d\nv_cmp_gt_u32 vcc, 32, v0\nv_mov_b32 v%d, %s\nv_mov_b32 v%d, %s\nv_cndmask_b32 v%d, v%d, v%d, vcc" %
                (sTS, sTS, LY.SB[0], u1, sTS, XA, sFLW, XA, u1, XA))
            a.vm("buffer_load_dword a255, v%d, %s, 0 offen sc1" % (XA, WS))
            self.srd(16, "s78", "s79", 2048 * 1024)
            a.I("v_accvgpr_write_b32 a%d, v%d\nv_lshlrev_b32 v%d, 4, v0\nv_lshlrev_b32 v%d, 2, v0" % (aROW, vR, vL16, vFL))
            a.I("v_bfe_u32 v%d, v0, 2, 2\nv_and_b32 v%d, 3, v0\nv_bfe_u32 v%d, v0, 4, 1\nv_lshrrev_b32 v%d, 5, v0" % (rr, cc, q16, hh))
            lin(sT0, str(LY.XF), [(sG, 2048)])
            a.I("v_lshl_add_u32 v%d, v%d, 7, %s\nv_lshl_add_u32 v%d, v%d, 30, v%d" % (XA, tok, sT0, LINE, hh, vFL))
            lin(sT0, sT0, [(sJ, 128)])
            a.I("s_cmp_eq_u32 %s, 0\ns_cselect_b32 %s, %s, 0x%x\ns_getreg_b32 %s, hwreg(HW_REG_XCC_ID, 0, 4)" % (sW, sT0, sT0, OOB, sT1))
            a.I("s_waitcnt lgkmcnt(0)\ns_add_u32 %s, %s, 0x9e3779b1\ns_xor_b32 %s, %s, %s\nv_mov_b32 v%d, %s" % (sNONCE, sNONCE, sT1, sT1, sNONCE, XV, sT1))
            a.vm("buffer_store_dword v%d, v%d, %s, %s offen sc1" % (XV, LINE, WS, sT0))
            a.I("v_lshl_add_u32 v%d, v%d, 3, v%d\nv_lshlrev_b32 v%d, 7, v%d" % (u0, g, rr, u0, u0))
            a.I("s_lshr_b32 %s, %s, 1\ns_and_b32 %s, %s, 1" % (sT0, sW, sT1, sW))
            lin(sXST, sGB, [(sR, 65536), (sC, 4096), (sT0, 32768), (sT1, 256)])
            a.I("s_lshl_b32 %s, %s, 6\ns_lshl_b32 %s, %s, 3\ns_add_u32 %s, %s, %s\nv_lshl_add_u32 v%d, v%d, 4, %s\nv_add_u32 v%d, v%d, v%d" %
                (sT0, sT0, sT1, sT1, sT0, sT0, sT1, TD, cc, sT0, TD, TD, u0))
            a.I("s_lshl_b32 %s, %s, 5\nv_lshl_add_u32 v%d, v%d, 3, %s\nv_add_u32 v%d, v%d, v%d" % (sT0, sW, TA0, cc, sT0, TA0, TA0, u0))
            for k in range(4): a.I("v_mov_b32 v%d, 0x3f803f80" % (ONES + k))
            a.I("s_mov_b32 %s, 0x3f803f80\nv_lshlrev_b32 v%d, 4, v%d\nv_lshl_add_u32 v%d, v%d, 9, v%d" % (sONE, u0, tok, vQ, g, u0))
            a.I("v_lshlrev_b32 v%d, 6, v%d\nv_lshl_add_u32 v%d, v%d, 2, v%d\nv_lshl_add_u32 v%d, v%d, 30, v%d" % (u1, tok, u1, hh, u1, u1, q16, u1)); put(aST)
        def tile_out(base, a0, a1, o1, lds, dst, cs):
            a = self.a
            for sp in range(4):
                a.ds("ds_read_b64_tr_b16 %s, v%d offset:%d" % (vr(base + 4 * sp, 2), a0, lds + sp * 4096))
                a.ds("ds_read_b64_tr_b16 %s, v%d offset:%d" % (vr(base + 4 * sp + 2, 2), a1, lds + sp * 4096 + o1), ("t", lds, sp))
            for sp in range(4):
                a.ds_wait(("t", lds, sp))
                a.vm("buffer_store_dwordx4 %s, v%d, %s, %s offen offset:%d sc1" % ((vr(base + 4 * sp, 4), vL16, WS) + dst(sp)))
                if cs: a.I("v_mfma_f32_16x16x32_bf16 %s, %s, %s, %s" % (vr(cs, 4), vr(ONES, 4), vr(base + 4 * sp, 4), vr(cs, 4) if sp else "0"))
        def cs_out(src, addr):
            a = self.a
            a.I("v_cmp_eq_u32 vcc, 0, v%d" % q16)
            a.I("\n".join(self.hi_lo(ACC + 60, src, ACC + 61)))
            a.I("v_cndmask_b32 v%d, 0, v%d, vcc" % (ACC + 60, ACC + 60))
            a.vm("buffer_store_dword v%d, v%d, %s, %s offen sc1" % (ACC + 60, addr, WS, dCS))
        xload = "buffer_load_dword v31, v%d, %s, 0 offen sc1" % (XA, WS)
        def pub():
            self.a.vm_wait("x")
            self.publish(0)
            self.a.vm(xload)

        self.sdivmod(kp, cu, "s2", 24)
        a.I("s_sub_u32 %s, %s, 12\ns_cmp_lt_u32 s2, 96\ns_cselect_b32 %s, %s, %s\ns_cselect_b32 %s, %s, %s\ns_cselect_b32 %s, 3, 1\ns_lshl_b32 %s, %s, 10" %
            (sT0, sJ, cu, cu, sN, kp, kp, sT0, st, st, st))
        a.I("v_mad_u32_u24 v%d, v%d, %s, v%d" % (vA, kc, st, u0))
        a.I("s_lshl_b32 %s, %s, 2\ns_add_u32 %s, %s, %s\ns_lshl_b32 %s, %s, 5\ns_mul_i32 %s, %s, %s\ns_lshl_b32 %s, %s, 7\ns_add_u32 %s, %s, %s" %
            (so, kp, so, so, sW, so, so, so, so, st, sT1, cu, so, so, sT1))
        a.I("s_lshl_b32 %s, %s, 3\ns_sub_u32 %s, %s, 1024" % (so2, st, so2, so2))
        a.I("s_lshl_b32 s%d, %s, 9\ns_mov_b32 s%d, 0x20000\ns_cmp_lt_u32 s2, 96\ns_waitcnt lgkmcnt(0)" % (SRC_A + 2, st, SRC_A + 3))
        a.I("s_load_dword %s, s[4:5], %d" % (sNONCE, LY.EPOCH))
        a.I("s_cselect_b32 s%d, s66, s68\ns_cselect_b32 s%d, s67, s69\ns_and_b32 s%d, s%d, 0xffff" % (SRC_A, SRC_A + 1, SRC_A + 1, SRC_A + 1))
        tile_dma(SRC_A, vA, so, so2, 0, "fa")
        x_loads()
        common()
        a.I("s_and_b32 %s, %s, 7\ns_lshl_b32 %s, %s, 1\ns_lshr_b32 %s, %s, 1\ns_add_u32 %s, %s, %s" % (sT0, cu, sT0, sT0, sT1, sW, sT0, sT0, sT1))
        a.I("s_mul_i32 %s, %s, %d\ns_add_u32 %s, %s, %d" % (sT0, sT0, LY.WQ_STRIDE, sT0, sT0, LY.WQ))
        a.I("s_lshr_b32 %s, %s, 3\ns_lshl_b32 %s, %s, 1\ns_and_b32 %s, %s, 1\ns_add_u32 %s, %s, %s" % (sT1, cu, sT1, sT1, sT2, sW, sT1, sT1, sT2))
        lin(D4[0], sT0, [(kp, 24576), (sT1, 1024)])
        lin(dCS, sT0, [(kp, 128), (sT1, 512)])
        a.I("s_add_u32 %s, %s, 98304" % (dCS, dCS))
        lin(sT0, str(LY.WO), [(cu, LY.WO_STRIDE), (kp, 16384), (sW, 1024)])
        a.I("s_cmp_lt_u32 s2, 96\ns_cselect_b32 %s, %s, %s\ns_cselect_b32 %s, %s, 0x%x\ns_cselect_b32 %s, 6, 4\ns_cselect_b64 vcc, -1, 0" %
            (D4[0], D4[0], sT0, dCS, dCS, OOB, sT1))
        a.I("s_lshl_b32 %s, %s, 10" % (sT1, sT1))
        for k in range(1, 4): a.I("s_add_u32 %s, %s, %s" % (D4[k], D4[k - 1], sT1))
        a.I("v_lshlrev_b32 v%d, 9, v%d\nv_sub_u32 v%d, v%d, v%d\nv_add_u32 v%d, 512, v%d\nv_add_u32 v%d, 2048, v%d" % (u0, g, TD, TD, u0, TA1, TA0, u0, TD))
        a.I("v_cndmask_b32 v%d, v%d, v%d, vcc\nv_cndmask_b32 v%d, v%d, v%d, vcc" % (TA0, TD, TA0, TA1, u0, TA1))
        self.stamp("p")
        a.vm_wait("fa")
        a.I("s_barrier")
        self.stamp("p")
        tile_out(ACC, TA0, TA1, 0, 0, lambda sp: (D4[sp], 0), ACC + 48)
        cs_out(ACC + 48, LINE)
        pub()
        self.stamp("p")
        a.I("L_join:")
        nst = self.nstamp
        self.a = b = Asm()
        b.I("L_follow:\ns_sub_u32 %s, s2, 128" % st)
        self.sdivmod(kp, cu, st, 28)
        b.I("v_mul_u32_u24 v%d, 3584, v%d\nv_add_u32 v%d, v%d, v%d\nv_lshl_add_u32 v%d, v%d, 10, v%d" % (vA, kc, vA, vA, u0, vD, kc, u0))
        lin(so, "0", [(kp, 128 * 3584), (sW, 32 * 3584), (cu, 128)])
        lin(so2, "0", [(sJ, 131072), (sW, 32768), (sN, 128)])
        b.I("s_waitcnt lgkmcnt(0)\ns_load_dword %s, s[4:5], %d" % (sNONCE, LY.EPOCH))
        steps = dict(g=lambda: tile_dma(SRC_G, vA, so, str(8 * 3584 - 1024), 0, "fg"), u=lambda: tile_dma(SRC_U, vA, so, str(8 * 3584 - 1024), 16384, "fu"),
                     d=lambda: tile_dma(SRC_D, vD, so2, str(7 * 1024), 32768, "fd"), x=x_loads, c=common, p=pub, w=b.vm_drain)
        self.srd(SRC_G, "s72", "s73", 512 * 3584)
        self.srd(SRC_U, "s74", "s75", 512 * 3584)
        self.srd(SRC_D, "s76", "s77", 1792 * 1024)
        for ch in OPT["follow"]: steps[ch]()
        lin(dD, str(LY.WD), [(sN, LY.WD_STRIDE), (sJ, 16384), (sW, 1024)])
        b.I("s_lshl_b32 %s, %s, 2\ns_add_u32 %s, %s, %s" % (cu, cu, cu, cu, sW))
        self.sdivmod(sT0, sT1, cu, 7)
        lin(dCS, str(LY.WG), [(sT0, LY.WG_STRIDE)])
        b.I("s_sub_u32 %s, 6, %s\ns_bitcmp1_b32 %s, 0\ns_cselect_b32 %s, %s, %s" % (sT2, sT1, sT0, sT1, sT1, sT2))
        S0, TL = GS0, 16 - GS0
        lin(so, dCS, [(kp, 56 * 1024), (sT1, 2048)])
        lin(dCS, dCS, [(sT1, (2 * TL + 1) * 1024)])
        lin(so2, dCS, [(kp, 8192)])
        for k in range(4):
            b.I("s_add_u32 %s, %s, %d\ns_add_u32 %s, %s, %d\ns_cmp_lt_u32 %s, %d\ns_cselect_b32 %s, %s, %s" %
                (sT0, so, 14 * 1024 * k, sT1, so2, (12 * S0 + 2 * k) * 1024, kp, (S0 - k + 3) // 4, D4[k], sT0, sT1))
        lin(dCS, dCS, [(kp, 128)])
        b.I("s_add_u32 %s, %s, %d\ns_cmp_lt_u32 s2, 240" % (dCS, dCS, (14 * S0 + 2 * TL) * 1024))
        for r_ in D4 + [dCS, dD]: b.I("s_cselect_b32 %s, %s, 0x%x" % (r_, r_, OOB))
        b.I("v_mul_u32_u24 v%d, 384, v%d\nv_add_u32 v%d, v%d, v%d" % (vA, hh, vA, vA, vFL))
        self.stamp("p")
        b.vm_wait("fu")
        b.I("s_barrier")
        self.stamp("p")
        tile_out(ACC, TA0, TA0, 512, 0, lambda sp: (D4[sp], 0), ACC + 48)
        tile_out(ACC + 16, TA0, TA0, 512, 16384, lambda sp: (D4[sp], 1024), ACC + 52)
        for k in range(4): b.I("s_add_u32 %s, %s, %d" % (D4[k], dD, 4096 * k))
        b.I("v_cmp_gt_u32 vcc, 32, v0\nv_cndmask_b32 v%d, v%d, v%d, vcc" % (ACC + 48, ACC + 52, ACC + 48))
        cs_out(ACC + 48, vA)
        b.vm_wait("fd")
        b.I("s_barrier")
        tile_out(ACC + 32, TD, TD, 512, 32768, lambda sp: (D4[sp], 0), None)
        if "p" not in OPT["follow"]: pub()
        self.stamp("p")
        b.I("s_branch L_join")
        assert nst == self.nstamp
        self.cold.append("\n".join(b.lines))
        self.a = a

        a.I("v_cmp_ne_u32 vcc, 0, v0\nv_mov_b32 v%d, 0x%x\nv_accvgpr_write_b32 a%d, v%d\nv_cndmask_b32 v%d, 0, v%d, vcc" % (vF1, OOB, aLINE, LINE, vF1, vF1))
        lin(sXLD, sGB, [(sW, 32768)])
        lin(sOST, sXLD, [(sJ, 2048)])
        lin(sHFL, str(LY.HFL), [(sG, 1024)])
        lin(sHDFL, sHFL, [(sC, 128)])
        lin(sFBO, str(LY.FA), [("s2", 128)])
        a.I("s_add_u32 %s, %s, 2048\ns_add_u32 %s, %s, 0x%x\ns_lshl_b32 %s, %s, 11" % (sHDFL, sHDFL, sHDST, sGB, 2 * LY.ACT_STRIDE, sLW2, sW))
        a.I("s_cmp_eq_u32 %s, 0\ns_cselect_b32 %s, %s, 0x%x" % (sW, sFBO, sFBO, OOB))
        a.I("s_lshl_b32 %s, %s, 2\ns_add_u32 %s, %s, %s\ns_cmp_eq_u32 %s, 7\ns_cselect_b32 %s, 0, %s\ns_cmp_eq_u32 %s, 7" % (sT0, sR, sT0, sT0, sW, sN, sT0, sT0, sT0))
        a.I("s_cselect_b32 %s, %s, 0x%x" % (sHDST, sHDST, OOB))
        a.I("v_bfe_u32 v%d, v0, 3, 1\nv_xor_b32 v%d, 1, v%d\nv_lshlrev_b32 v%d, 29, v%d" % (vA, vA, vA, vA, vA))
        a.I("s_lshl_b32 %s, %s, 3\ns_add_u32 %s, %s, %d\nv_add3_u32 v%d, v%d, v%d, %s" % (sT0, sC, sT0, sT0, 8192 - 512, u1, u1, vA, sT0)); put(aHSS)
        a.I("v_lshlrev_b32 v%d, 4, v%d\nv_lshl_add_u32 v%d, v%d, 7, v%d\nv_add_u32 v%d, %d, v%d" % (u0, t8, u0, g, u0, u1, L_HALO, u0)); put(aHX)
        a.I("s_lshl_b32 %s, %s, 10\nv_add3_u32 v%d, v%d, v%d, %s" % (sT0, sC, u1, u0, vA, sT0)); put(aHST)
        def flags():
            self.stamp("p")
            a.I("v_mov_b32 v30, %s" % sNONCE)
            a.vm_drain(force=True)
            a.I("s_barrier")
            a.vm("buffer_store_dword v30, v%d, %s, %s offen sc1" % (LINE, WS, sFBO))
            spin, back = a.label("xspin"), a.label("xback")
            test = "v_xor_b32 v29, %s, v31\nv_cmp_lt_u32 vcc, 15, v29\ns_and_b64 vcc, vcc, exec" % sNONCE
            a.I("%s\ns_cbranch_scc1 %s\n%s:" % (test, spin, back))
            self.cold.append("%s:\ns_mov_b32 %s, 0x40000\n%s_l:\n%s\ns_sub_u32 %s, %s, 1\ns_cbranch_scc1 L_main_done\ns_waitcnt vmcnt(0)\n%s\ns_cbranch_scc1 %s_l\ns_branch %s"
                             % (spin, sSPIN, spin, xload, sSPIN, sSPIN, test, spin, back))
            a.I("v_cmp_ne_u32 vcc, v%d, v31\ns_cmp_lg_u64 vcc, 0\ns_cselect_b32 %s, 1, 0\ns_mov_b32 s0, %s\ns_mov_b32 s1, 0" % (XV, sSLOW, sSLOW))
            self.signal(0, "pub", 0)
            self.stamp("p")
        if OPT["f_pos"] == 0: flags()
        a.I("s_lshr_b32 %s, s2, 3\ns_lshl_b32 %s, %s, 2\ns_add_u32 %s, %s, %s\ns_lshl_b32 %s, %s, 7" % (sCPO, sCPO, sCPO, sCPO, sCPO, sW, sCPO, sCPO))
        lin(sHST, sGB, [(sW, 114688), (sJ, 7168)])
        lin(sSLD, sGB, [(sW, 2048)])
        lin(sOL, sXST, [(sC, -4096)])
        a.I("s_bitcmp1_b32 %s, 0\ns_cselect_b32 %s, 1, -1\ns_cselect_b32 %s, 0, 6144\ns_lshl_b32 %s, %s, 10\ns_add_u32 %s, %s, %s" % (sJ, sHSTEP, sT0, sHSTEP, sHSTEP, sHST, sHST, sT0))
        a.I("s_lshr_b32 %s, %s, 1\ns_lshl_b32 %s, %s, 1\ns_add_u32 %s, %s, %s\ns_lshl_b32 s66, 0x11111111, %s\ns_mov_b32 s67, s66" % (sT0, sW, sT1, sR, sT0, sT0, sT1, sT0))
        lin(sHLD[3], sGB, [(sR, 229376), (sW, 28672)])
        for i in range(4):
            a.I("s_add_u32 %s, %s, %d\ns_and_b32 %s, %s, 3\ns_lshr_b32 %s, %s, 1\ns_and_b32 %s, %s, 1" % (sTA, sW, i + 1, sTA, sTA, sT0, sTA, sT1, sTA))
            lin(sHLD[i], sHLD[3], [(sT0, 114688), (sT1, 256)])
            if i < 3: lin(sXW[i], str(i * 4096), [(sTA, 12288)])
        lin(sXR, "0", [(sW, 12288)])
        lin(sWQ, str(LY.WQ), [(sJ, LY.WQ_STRIDE * (1 - OPT["hitw"]))])
        lin(sWG, str(LY.WG), [(sJ, LY.WG_STRIDE * (1 - OPT["hitw"]))])
        lin(sWO, str(LY.WO), [(sC, LY.WO_STRIDE * (1 - OPT["hitw"])), (sW, 4096)])
        lin(sWD, str(LY.WD), [(sC, LY.WD_STRIDE * (1 - OPT["hitw"])), (sW, 57344)])
        lin(sTAB, str(L_TAB), [(sW, 512)])
        a.I("s_lshl_b32 %s, %s, 10\ns_add_u32 %s, %s, %s\ns_add_u32 %s, %s, %s" % (sLW, sW, sWQ4, sWQ, sLW4, sWG4, sWG, sLW4))
        a.I("s_cmp_eq_u32 %s, 0\ns_cselect_b32 %s, 0x%x, %s\ns_cselect_b32 s54, 0, 0xff\ns_mov_b32 s55, 0" % (sN, sHALO, OOB, sGB))
        a.I("s_add_u32 %s, %s, %s\ns_add_u32 %s, %s, %s\ns_add_u32 %s, %s, %s" % (sHALO2, sHALO, sLW2, sWQ, sWQ, sLW, sWG, sWG, sLW2))
        a.I("s_lshr_b32 %s, %s, 1\ns_lshl_b32 %s, %s, 5\ns_and_b32 %s, %s, 1\ns_lshl_b32 %s, %s, 1\ns_add_u32 %s, %s, %s" % (sT0, sW, sT0, sT0, sT1, sW, sT1, sT1, sT0, sT0, sT1))
        a.I("s_mov_b32 s40, 0x33333333\ns_mov_b32 s41, 0\ns_lshl_b64 s[40:41], s[40:41], %s" % sT0)
        a.I("s_lshl_b32 %s, %s, 1\ns_lshl_b32 %s, %s, 4\ns_add_u32 %s, %s, %s" % (sT0, sR, sT2, sW, sT0, sT0, sT2))
        a.I("s_mov_b32 s42, 0x3333\ns_mov_b32 s43, 0\ns_lshl_b64 s[42:43], s[42:43], %s" % sT0)
        a.I("v_add_u32 v%d, 0x10000, v%d\nv_add_u32 v%d, 0x20000, v%d" % (vL16b, vL16, vL16c, vL16))
        a.I("v_lshlrev_b32 v%d, 4, v%d\nv_lshl_add_u32 v%d, v%d, 6, v%d" % (u0, g, u1, tok, u0)); put(aSQ)
        a.I("v_lshl_add_u32 v%d, v%d, 6, v%d" % (u1, t8, u0)); put(aSH)
        a.I("v_lshlrev_b32 v%d, 7, v%d" % (u1, tok)); put(aTO)
        a.I("v_lshlrev_b32 v%d, 7, v%d\nv_lshl_add_u32 v%d, v%d, 5, v%d\nv_lshl_add_u32 v%d, v%d, 1, v%d\nv_lshlrev_b32 v%d, 3, v0" % (u0, rr, u0, g, u0, u0, cc, u0, u1))
        a.I("s_cmp_ge_u32 %s, 2\ns_cselect_b64 vcc, -1, 0\ns_cselect_b32 %s, 2, 8\nv_cndmask_b32 v%d, v%d, v%d, vcc" % (sW, sT1, u1, u0, u1))
        a.I("s_lshr_b32 %s, %s, 1\ns_add_u32 %s, %s, %d\nv_add_u32 v%d, %s, v%d" % (sT0, sLW, sT0, sT0, L_KV, u1, sT0, u1)); put(aHWR)
        a.I("v_mov_b32 v%d, %s" % (u1, sT1)); put(aHWS)
        if OPT["f_pos"] == 1: flags()
        a.I("s_lshr_b32 %s, %s, 1\ns_mul_i32 %s, %s, 24\ns_add_u32 %s, %s, %s\nv_lshl_add_u32 v%d, v%d, 3, %s" % (sT0, sJ, sT1, sW, sT0, sT0, sT1, u0, kc, sT0))
        a.I("s_lshl_b32 %s, %s, 3\ns_add_u32 %s, %s, %s\ns_add_u32 %s, %s, 96\nv_mov_b32 v%d, %s\nv_cmp_gt_u32 vcc, 24, v0\nv_cndmask_b32 v%d, v%d, v%d, vcc" %
            (sT0, sW, sT0, sT0, sC, sT0, sT0, u1, sT0, u0, u1, u0))
        a.I("v_lshlrev_b32 v%d, 7, v%d\nv_add_u32 v%d, %d, v%d" % (u0, u0, FAV, LY.FA, u0))
        a.I("s_mul_i32 %s, %s, 7\ns_add_u32 %s, %s, 6\ns_lshr_b32 %s, %s, 2\ns_lshr_b32 %s, %s, 2" % (sT0, sJ, sT1, sT0, sT0, sT0, sT1, sT1))
        a.I("v_add_u32 v%d, %s, v%d\nv_min_u32 v%d, %s, v%d\ns_mul_i32 %s, %s, 28\nv_add_u32 v%d, %s, v%d" % (u0, sT0, kc, u0, sT1, u0, sT0, sW, u0, sT0, u0))
        a.I("s_add_u32 %s, %s, 112\nv_mov_b32 v%d, %s\nv_cndmask_b32 v%d, v%d, v%d, vcc" % (sT0, sJ, u1, sT0, u0, u1, u0))
        a.I("s_mul_i32 %s, %s, 7\ns_lshr_b32 %s, %s, 1\nv_add_u32 v%d, %s, v%d\nv_lshl_add_u32 v%d, v%d, 3, %s" % (sT0, sW, sT0, sT0, u1, sT0, cc, u1, u1, sC))
        a.I("v_cmp_gt_u32 vcc, 32, v0\nv_cndmask_b32 v%d, v%d, v%d, vcc" % (u0, u1, u0))
        a.I("v_lshlrev_b32 v%d, 7, v%d\nv_add_u32 v%d, %d, v%d" % (u0, u0, u1, LY.FA + 128 * 128, u0)); put(aFB)
        a.I("s_getpc_b64 %s\nL_pc2:\ns_sub_u32 s4, s4, L_pc2-L_pc\ns_subb_u32 s5, s5, 0" % sPC)
        NG, Z, M0_, M1_ = rr, cc, q16, hh
        a.I("s_or_b32 %s, %s, %s\ns_cmp_eq_u32 %s, 0\ns_cselect_b64 s[56:57], -1, 0" % (sT0, sN, sW, sT0))
        a.I("v_mov_b32 v%d, %s\nv_mov_b32 v%d, 0\nv_lshlrev_b32 v%d, 2, v%d\nv_sub_u32 v%d, v%d, v%d" % (NG, NEG, Z, vA, g, vA, tok, vA))
        for r in range(4):
            a.I("v_subrev_u32 v%d, %d, v%d\nv_mov_b32 v%d, %s" % (u0, r, vA, M0_, "0xffff0000" if r & 1 else "0xffff"))
            a.I("v_cmp_gt_u32 vcc, 8, v%d\nv_cmp_gt_i32 s[58:59], -8, v%d\nv_cmp_le_i32 s[60:61], 0, v%d" % (u0, u0, u0))
            a.I("v_cndmask_b32 v%d, v%d, v%d, vcc" % (u1, NG, Z)); put(aBC + r)
            a.I("v_cndmask_b32 v%d, v%d, v%d, s[58:59]" % (u1, NG, Z)); put(aBP + r)
            a.I("v_cndmask_b32 v%d, v%d, v%d, s[56:57]" % (u1, u1, NG)); put(aBP0 + r)
            if r & 1:
                a.I("v_cndmask_b32 v%d, v%d, v%d, s[60:61]\nv_or_b32 v%d, v%d, v%d" % (u1, Z, M0_, u1, u1, M1_)); put(aMC + r // 2)
            else:
                a.I("v_cndmask_b32 v%d, v%d, v%d, s[60:61]" % (M1_, Z, M0_))
        if OPT["f_pos"] == 2: flags()
        self.stamp("p")
        if OPT["predrain"]: a.vm_drain(force=True)
        self.stamp("p")
        self.fav = FAV

    def qkv(self, ps):
        a = self.a
        xi = 2 * ps
        late = self.wq_late(ps)
        wql = [g for ch in late for g in self.wq_chunk(ch)]
        split = ps == 0 and OPT["q0_split"]
        HX, HW, HW2, HF, NM, RL, CQ, RR = 16, 17, 18, 19, 20, 26, 28, ACC + 52
        def setup():
            a.I(self.getc(30, aSQ) + "\n" + self.getc(31, aSH) + "\n" + self.getc(HX, aHX))
            a.I("s_add_u32 %s, %s, 2048\nv_add_u32 v%d, %s, v%d\nv_add_u32 v%d, 0xc000, v%d\nv_lshlrev_b32 v%d, 7, v0" % (sT2, sLW, HW, sT2, vL16, HW2, HW, CQ))
        self.poll(6 * ps, sMA, self.fav if ps == 0 and not split else None, setup)
        self.stamp()
        xl = self.reg_loads([vr(X + 8 * s + 4 * b, 4) for s in range(16) for b in range(2)], [sXLD] * 32,
                            [LY.XB[xi] + s * 2048 + b * 256 for s in range(16) for b in range(2)], sTA, vQ, "x")
        UP = OPT["q_up"] if ps else OPT["q0_up"]
        if ps == 0:
            late = late[1:]
            n = 4 + OPT["q0_w"]
            first = wql[:4] + xl[:UP] + wql[4:n]
            if split:
                l_fa, g_fa = self.late_check("buffer_load_dword v%d, v%d, %s, 0 offen sc1" % (HF, self.fav, WS), HF, "exec", "fa")
                n1 = OPT["q0_n1"]
                first = xl[:n1] + [l_fa] + xl[n1:UP] + [g_fa + [("i", "s_barrier")]] + wql[:n]
            else:
                first = xl[:2] + [[("i", "s_barrier")]] + wql[:4] + xl[2:UP] + wql[4:n]
            wql = wql[n:]
            a.run_all(self.flat(first))
        else:
            a.run_all(self.flat(xl[:UP]))
        if ps == 0:
            a.vm_wait(("wq", 0))
        a.I("s_barrier")
        sl = Slots()
        use = {}
        acc = lambda blk, b: vr(ACC + 8 * blk + 4 * b, 4)
        hbuf = lambda t: (F + 24, X)[t % 2]
        step0 = {}
        H0 = OPT["q_h0"]
        hpos = {}
        for t in range(16):
            p = (t * 6 * (16 - H0)) // 16 + 1
            hpos.setdefault((H0 + p // 6, p % 6), []).append(t)
        Y, Z = X + 8, X + 96
        BC, BP, BP0, MC, ONES, KW, CSA = Y, Y + 4, Y + 8, Y + 12, Y + 14, Y + 16, Y + 21
        def halo_mfma(t):
            d = acc(6, 0)
            if t < 16:
                i = sl.add("v_mfma_f32_16x16x32_bf16 %s, %s, %s, %s" % (d, vr(hbuf(t) + 4, 4), vr(hbuf(t), 4), "0" if t == 0 else d), [("wds", ("hx", t))])
            else:
                i = sl.add("v_mfma_f32_16x16x16_bf16 %s, %s, %s, %s" % (d, vr(NM + 4, 2), vr(hbuf(t), 2), d), [("wds", ("hw", t))])
            use[("h", t)] = i
        for s in range(17):
            step0[s] = sl.n()
            if s == 16: halo_mfma(16)
            for f in range(6):
                for b in range(2):
                    pre_ = []
                    if b == 0: pre_.append(("wds", ("f", s, f // OPT["q_grp"] * OPT["q_grp"] + OPT["q_grp"] - 1)))
                    if f == 0 and s < 16: pre_.append(("wvm", ("x", 2 * s + (b if s == 0 else 1))))
                    w = vr(F + 4 * f, 4 if s < 16 else 2)
                    x = vr(X + 8 * s + 4 * b, 4) if s < 16 else vr(NM + 2 * b, 2)
                    A, B = (w, x) if f < 4 else (x, w)
                    d = acc(f, b)
                    mn = "v_mfma_f32_16x16x32_bf16" if s < 16 else "v_mfma_f32_16x16x16_bf16"
                    use[(s, f)] = sl.add("%s %s, %s, %s, %s" % (mn, d, A, B, "0" if s == 0 else d), pre_)
                for t in hpos.get((s, f), ()): halo_mfma(t)
        reads = []
        for s in range(17):
            for f in range(6):
                d = F + 4 * f
                if s < 16: t = "ds_read_b128 %s, %s" % (vr(d, 4), ldsaddr(s * 6144 + f * 1024))
                else: t = "ds_read2st64_b32 %s, v%d offset0:%d offset1:%d" % (vr(d, 2), CSA, 2 * f, 2 * f + 1)
                reads.append((use[(s - 1, f)] if s else -1, (6 * s + f) // 16, ("ds", t, ("f", s, f))))
        hbar = step0[H0 - 1] + 4
        for t in range(17):
            pos = use[("h", t - 2)] if t >= 2 else hbar + 2 + 2 * t
            if t < 16:
                reads.append((pos, (6 * t + 5) // 16, ("ds", "ds_read_b128 %s, v%d offset:%d" % (vr(hbuf(t), 4), HW if t < 8 else HW2, (t % 8) * 6144), ("hw", t))))
                reads.append((pos + (1 if t >= 2 else 0), 0, ("ds", "ds_read_b128 %s, v%d offset:%d" % (vr(hbuf(t) + 4, 4), HX, t * 512), ("hx", t))))
            else:
                reads.append((pos, 6, ("ds", "ds_read2st64_b32 %s, v%d offset0:4 offset1:5" % (vr(hbuf(t), 2), CSA + 1), ("hw", t))))
        sl.put("c", step0[4], [("i", "v_add_u32 v%d, 98304, v%d\ns_lshr_b32 %s, %s, 1\nv_add_u32 v%d, %s, v%d" % (CSA, vFL, sT2, sLW, CSA + 1, sT2, CSA)), ("mark", "csaddr")])
        sl.after(step0[14], ("need", "csaddr"))
        sl.pre[step0[16]].append(("wds", ("nm", 2)))
        chbar = {}
        for ch in late:
            ops = [("wvm", ("wq", ch)), ("i", "s_barrier")]
            p = chbar[ch] = min(p for p, c, _ in reads if c == ch)
            sl.after(p, *ops)
        sl.after(hbar, ("wvm", "halo"), ("i", "s_barrier"))
        for pos, _, rd in reads:
            if pos < 0: a.run(rd)
            else: sl.after(pos, rd)
        l_hf, g_chk = self.late_check("buffer_load_dword v%d, v%d, %s, %s offen sc1" % (HF, CQ, WS, sT1), HF, sMH, "hf")
        g_hf = [("i", "v_and_b32 v%d, 0x380, v%d\ns_add_u32 %s, %s, %d" % (CQ, CQ, sT1, sHFL, ps * 16384))] + l_hf
        g_hd = self.dma_chunk(sHALO2, LY.HX[ps], L_HALO, 2, "halo", " sc1")
        g_hs = [("i", "s_add_u32 %s, %s, %d" % (sT1, sHALO, LY.HX[ps] + 8192)),
                ("vm", "buffer_load_dwordx4 %s, v31, %s, %s offen sc1" % (vr(RR + 8, 4), WS, sT1), "st")]
        g_s0 = [("i", "s_add_u32 %s, %s, %d" % (sT0, sSLD, LY.SB[xi])), ("vm", "buffer_load_dwordx4 %s, v30, %s, %s offen sc1" % (vr(RR, 4), WS, sT0))]
        g_s1 = [("vm", "buffer_load_dwordx4 %s, v30, %s, %s offen offset:1024 sc1" % (vr(RR + 4, 4), WS, sT0))]
        wbar = max(use[("h", 6)] + 2, step0[OPT["q_wbar"]])
        while sl.post[wbar]: wbar += 1
        sl.after(wbar, ("i", "s_barrier"))
        wo = [(0 if i < 2 else wbar + 2, g) for i in range(4) for g in self.wo_chunk(i)]
        rest = xl[UP:]
        h1 = OPT["q_hf"] if ps else OPT["q0_hf"]
        h2 = h1 + OPT["q_chk"] - 2
        seq = rest[:h1] + [g_hf, g_s0, g_s1] + rest[h1:h2] + [g_chk] + g_hd + [g_hs] + rest[h2:]
        if wql:
            due, d = [], sl.n()
            for g in reversed(seq):
                tag = g[-1][2] if len(g[-1]) > 2 else None
                if isinstance(tag, tuple) and tag[0] == "x": d = step0[tag[1] // 2]
                due.append((d, g))
            due.reverse()
            d, wdue = 0, []
            for g in reversed(wql):
                if g[-1][2] is not None: d = chbar[g[-1][2][1]] - OPT["q0_lead"]
                wdue.append((d, g)); d -= 6
            seq = [g for _, g in sorted(due + wdue[::-1], key=lambda t: t[0])]
        if ps == 0:
            if OPT["otouch"]: seq += self.touch(aTO, sOST, LY.OB[ps], CQ)
            l_fb, g_fb = self.late_check("%s\nbuffer_load_dword v%d, v%d, %s, 0 offen sc1" % (self.getc(Y + 23, aFB), Y + 23, Y + 23, WS), Y + 23, "exec", "fb")
            l_fb = [("i", l_fb[0][1].split("\n")[0]), ("vm", l_fb[0][1].split("\n")[1], "fb")]
            seq += [g + (OPT["q0_tail"] / 10,) for g in wo]
            sl.put("f", step0[OPT["q0_fbs"]], l_fb)
        else:
            seq += wo
        sl.put("g", step0[12], self.flat(self.code_touch("L_wo%d" % ps, CQ + 1)))
        left = sl.pace(seq, 0, (OPT["q_every"] if ps else OPT["q0_every"]) / 10)
        A0, A1, AH = RR, RR + 4, RR + 8
        st = [[("wvm", "st")]]
        for r_ in (A0, A1, AH):
            st.append([("i", "v_add_f32 v%d, v%d, v%d" % (r_, r_, r_ + 2))])
            st.append([("i", "v_add_f32 v%d, v%d, v%d" % (r_ + 1, r_ + 1, r_ + 3))])
        for o in (0, 1): st.append([("i", "v_mov_b32 v%d, v%d" % (AH + 2 + o, AH + o))])
        for o in (0, 1): st.append([("i", "v_permlane32_swap_b32 v%d, v%d" % (A0 + o, A1 + o))])
        for o in (0, 1): st.append([("i", "v_permlane32_swap_b32 v%d, v%d" % (AH + o, AH + 2 + o))])
        for o in (0, 1): st.append([("i", "v_add_f32 v%d, v%d, v%d" % (A0 + o, A0 + o, A1 + o))])
        for o in (0, 1): st.append([("i", "v_add_f32 v%d, v%d, v%d" % (AH + o, AH + o, AH + 2 + o))])
        for o in (0, 1): st.append([("i", "v_permlane16_swap_b32 v%d, v%d" % (A0 + o, AH + o))])
        for o in (0, 1): st.append([("i", "v_add_f32 v%d, v%d, v%d" % (A0 + o, A0 + o, AH + o))])
        st += [[op] for op in self.ln_from_sums(A0, A0 + 1, A0 + 2)]
        st.append([("i", "v_cvt_pk_bf16_f32 v%d, -v%d, -v%d" % (A0, A0, A0))])
        st.append([("i", "v_add_u32 v%d, %s, v%d" % (HF, sTAB, vFL))])
        st.append([("i", "v_and_or_b32 v30, v%d, 63, %s" % (vFL, sTAB))])
        st.append([("i", "v_and_or_b32 v31, v0, 48, %s" % sTAB)])
        st.append([("ds", "ds_write2st64_b32 v%d, v%d, v%d offset0:0 offset1:1" % (HF, A0 + 1, A0))])
        row = {0: 0, 1: 2, 2: 1}
        for b in range(3):
            o = 64 + row[b] * 16
            st.append([("ds", "ds_read2_b32 %s, v30 offset0:%d offset1:%d" % (vr(NM + 2 * b, 2), o, o), ("nm", b))])
        st.append([("ds", "ds_read2_b32 %s, v30 offset0:0 offset1:32" % vr(RL, 2))])
        for b in range(3):
            st.append([("ds", "ds_read_b128 %s, v31 offset:%d" % (vr(RR + 4 * b, 4), row[b] * 64), ("tab", b))])
        sl.spread(st, step0[H0], step0[14])
        cst = [[("i", self.getc(Y + k, aBC + k))] for k in range(14)]
        cst += [[("i", "v_mov_b32 v%d, %s" % (ONES + k, sONE))] for k in range(2)]
        cst += [[("i", self.getc(KW, aHWR))], [("i", self.getc(KW + 3, aHWS))], [("i", "s_add_u32 %s, %s, %d" % (sT2, sLW2, L_KV))],
                [("i", "v_add_u32 v%d, v%d, v%d" % (KW + 1, KW, KW + 3))], [("i", "v_lshl_add_u32 v%d, v0, 3, %s" % (KW + 4, sT2))],
                [("i", "v_add_u32 v%d, v%d, v%d" % (KW + 2, KW + 1, KW + 3))], [("i", "v_add_u32 v%d, v%d, v%d" % (KW + 3, KW + 2, KW + 3))]]
        sl.spread(cst, step0[4] + 2, step0[8], "c")
        Qp = lambda b, h: Z + 4 * h + 2 * b
        Kp = lambda b, h: Z + 8 + 6 * h + 2 * (b + 1)
        Vp = lambda b, h: Z + 20 + 6 * h + 2 * (b + 1)
        HP, HA = HX, ACC + 48
        ar_ = lambda blk, b: ACC + 8 * blk + 4 * b
        cvt = lambda d, s_: "v_cvt_pk_bf16_f32 v%d, v%d, v%d" % (d, s_, s_ + 1)
        tl = [("wds", ("tab", 2)), ("i", "v_mul_f32 v%d, 0x3eb8aa3b, v%d\nv_mul_f32 v%d, 0x3eb8aa3b, v%d" % (CQ, RL, CQ + 1, RL + 1))]
        tl += [("i", "v_mul_f32 v%d, v%d, v%d" % (HA + r, HA + r, RR + 8 + r)) for r in range(4)]
        tl += [("i", cvt(HP, HA)), ("i", cvt(HP + 1, HA + 2))]
        hw = [("ds", "ds_write_b16%s v%d, v%d" % ("_d16_hi" if r & 1 else "", KW + r, HP + r // 2)) for r in range(4)]
        qs = [(h, b) for h in range(2) for b in range(2)]
        for n_, (h, b) in enumerate(qs):
            tl += [hw[n_], ("i", cvt(Qp(b, h), ar_(h, b))), ("i", cvt(Qp(b, h) + 1, ar_(h, b) + 2))]
        sl.put("v", step0[16], tl)
        self.lite(sl, "q", [step0[s] for s in (0, 2, 4, 6, 8, 10, 12, 14)])
        self.report("qkv%d" % ps, sl.emit(a))
        self.stamp()
        body = []
        e = lambda t: body.extend(("i", x) for x in t.split("\n"))
        def pack(dst, src): e(cvt(dst, src) + "\n" + cvt(dst + 1, src + 2))
        def scale_l(src, b):
            for k in range(2): e("v_pk_mul_f32 %s, %s, %s op_sel:[0,%d] op_sel_hi:[1,%d]" % (vr(src + 2 * k, 2), vr(src + 2 * k, 2), vr(RL, 2), b, b))
        def scale_r(src, r0):
            for k in range(2): e("v_pk_mul_f32 %s, %s, %s" % (vr(src + 2 * k, 2), vr(src + 2 * k, 2), vr(r0 + 2 * k, 2)))
        kvw = lambda src, part: body.append(("ds", "ds_write_b64 v%d, %s offset:%d" % (KW + 4, vr(src, 2), 2048 + 512 * part)))
        for h in range(2):
            scale_l(ar_(2 + h, 1), 1); pack(Kp(1, h), ar_(2 + h, 1)); kvw(Kp(1, h), h); scale_l(ar_(2 + h, 0), 0)
        for h in range(2):
            scale_r(ar_(4 + h, 1), RR + 4); pack(Vp(1, h), ar_(4 + h, 1)); kvw(Vp(1, h), 2 + h); scale_r(ar_(4 + h, 0), RR)
        units = [(1, 0), (1, 1), (0, 0), (0, 1)]
        SC = lambda u: F + 8 * u
        SP = lambda u: F + 8 * u + 4
        smf = lambda d, kb, u, bias: "v_mfma_f32_16x16x16_bf16 %s, %s, %s, %s" % (vr(d, 4), vr(Kp(kb, units[u][1]), 2), vr(Qp(*units[u]), 2), vr(bias, 4))
        M = [ACC + u for u in range(4)]
        def merge(u):
            return ["v_max_f32 v%d, v%d, v%d" % (SC(u) + r, SC(u) + r, SP(u) + r) for r in range(4)] + [
                "v_max3_f32 v%d, v%d, v%d, v%d" % (M[u], SC(u), SC(u) + 1, SC(u) + 2), "v_max_f32 v%d, v%d, v%d" % (M[u], M[u], SC(u) + 3)]
        e(smf(SC(0), 1, 0, BC)); pack(Kp(0, 0), ar_(2, 0))
        e(smf(SC(1), 1, 1, BC)); pack(Kp(0, 1), ar_(3, 0))
        e(smf(SP(0), 0, 0, BP))
        if ps == 0: body.extend(g_fb)
        body.append(("wvm", ("wo", 1)))
        body.append(("dsdrain",)); e("s_barrier")
        nbar = len(body)
        rdkv = lambda dst, part, tag: body.append(("ds", "ds_read_b64 %s, v%d offset:%d" % (vr(dst, 2), KW + 4, 512 * part), tag))
        e(smf(SP(1), 0, 1, BP)); rdkv(Kp(-1, 0), 0, ("kp", 0)); rdkv(Kp(-1, 1), 1, ("kp", 1))
        e(smf(SC(2), 0, 2, BC)); rdkv(Vp(-1, 0), 2, ("vp", 0)); rdkv(Vp(-1, 1), 3, ("vp", 1))
        e(smf(SC(3), 0, 3, BC)); pack(Vp(0, 0), ar_(4, 0)); pack(Vp(0, 1), ar_(5, 0))
        m0, m1 = merge(0), merge(1)
        e("\n".join(m0))
        body.append(("wds", ("kp", 1)))
        e(smf(SP(2), -1, 2, BP0)); e("\n".join(m1[:2]))
        e(smf(SP(3), -1, 3, BP0)); e("\n".join(m1[2:]))
        e("s_add_u32 %s, %s, %d" % (sT0, sOST, LY.OB[ps]))
        e("\n".join(merge(2)[:2]))
        e("v_permlane32_swap_b32 v%d, v%d" % (M[0], M[1]))
        e("\n".join(merge(2)[2:] + merge(3)))
        e("v_max_f32 v%d, v%d, v%d" % (M[0], M[0], M[1]))
        e("v_permlane32_swap_b32 v%d, v%d\nv_max_f32 v%d, v%d, v%d" % (M[2], M[3], M[2], M[2], M[3]))
        e("v_permlane16_swap_b32 v%d, v%d\nv_max_f32 v%d, v%d, v%d\nv_max_f32 v%d, v%d, v%d" % (M[0], M[2], M[1], M[0], M[2], M[2], M[0], M[2]))
        e("v_permlane16_swap_b32 v%d, v%d" % (M[1], M[2]))
        e("v_mul_f32 v%d, v%d, v%d\nv_mul_f32 v%d, v%d, v%d" % (M[0], M[1], CQ + 1, M[1], M[1], CQ + 1))
        e("v_mul_f32 v%d, v%d, v%d\nv_mul_f32 v%d, v%d, v%d" % (M[3], M[2], CQ, M[2], M[2], CQ))
        def shift(u):
            for k in range(2):
                e("v_pk_fma_f32 %s, %s, %s, %s op_sel:[0,%d,%d] op_sel_hi:[1,%d,%d] neg_lo:[0,0,1] neg_hi:[0,0,1]" %
                  (vr(SC(u) + 2 * k, 2), vr(SC(u) + 2 * k, 2), vr(CQ, 2), vr(ACC + 2 * (u // 2), 2), units[u][0], u % 2, units[u][0], u % 2))
        e("v_permlane32_swap_b32 v%d, v%d" % (M[0], M[1])); shift(0)
        e("v_permlane32_swap_b32 v%d, v%d" % (M[2], M[3])); shift(1); shift(2); shift(3)
        PM = lambda u: ACC + 4 + 2 * u
        PS = lambda u: ACC + 12 + 4 * u
        OP = lambda b: ACC + 28 + 4 * b
        pv = lambda u: "v_mfma_f32_16x16x32_bf16 %s, %s, %s, 0" % (vr(SC(u), 4), vr(Vp(units[u][0] - 1, units[u][1]), 4), vr(PS(u), 4))
        for u, (b, h) in enumerate(units):
            for r in range(4):
                e("v_exp_f32 v%d, v%d" % (SC(u) + r, SC(u) + r))
                if r == 1 and u >= 1: e(pv(u - 1))
            if u == 2: body.append(("wds", ("vp", 1)))
            if u >= 2: e("v_rcp_f32 v%d, v%d" % (SP(u - 2), SP(u - 2)))
            pack(PM(u), SC(u))
            for k in range(2):
                e("v_bfi_b32 v%d, v%d, 0, v%d\nv_and_b32 v%d, v%d, v%d" % (PS(u) + k, MC + k, PM(u) + k, PS(u) + 2 + k, MC + k, PM(u) + k))
            e("v_mfma_f32_16x16x16_bf16 %s, %s, %s, 0" % (vr(SP(u), 4), vr(ONES, 2), vr(PM(u), 2)))
        e("v_rcp_f32 v%d, v%d" % (SP(2), SP(2)))
        e(pv(3))
        def fin(u, packed):
            b, h = units[u]
            if packed:
                for k in range(2): e("v_pk_mul_f32 %s, %s, %s op_sel_hi:[1,0]" % (vr(SC(u) + 2 * k, 2), vr(SC(u) + 2 * k, 2), vr(SP(u), 2)))
            else:
                for r in range(4): e("v_mul_f32 v%d, v%d, v%d" % (SC(u) + r, SC(u) + r, SP(u)))
            pack(OP(b) + 2 * h, SC(u))
            if h == 1:
                body.append(("vm", "buffer_store_dwordx4 %s, v%d, %s, %s offen offset:%d%s" % (vr(OP(b), 4), vQ, WS, sT0, b * 256, " sc1" if ps == 0 and not OPT["otouch"] else ""), "o" if b == 0 else None))
        fin(0, False); fin(1, True)
        e("v_rcp_f32 v%d, v%d" % (SP(3), SP(3)))
        fin(2, True); fin(3, True)
        left = self.weave(body[:nbar], left, 0, OPT["a_every"])
        stop = len(body) - OPT["a_quiet"]
        left = self.weave(body[nbar:stop], left + self.wgs("att", ps) + self.wds("att", ps), 4, OPT["a_every"])
        a.run_all(body[stop:])
        print("  attention: %d groups left for the hand-off" % len(left))
        self.stamp()
        self.wo_pre(0, OPT["w_pre"])
        self.signal(6 * ps + 1, "o")
        a.run_all(self.flat(left + self.wgs("h1", ps) + self.wds("h1", ps)))
        self.stamp()

    def wds(self, where, ps):
        if ps: return []
        if self.wd is None:
            ks = [4 * s + cb for s in DN_ORD for cb in range(4)]
            self.wd = self.reg_loads([ar(4 * k, 4) for k in ks], [sWD] * 56, [k * 1024 for k in ks], sTD, vL16, "wd")
        n = OPT.get("wd_" + where, 56)
        out, self.wd = self.wd[:n], self.wd[n:]
        return out

    WREG = [X + 4 * k for k in range(16)] + [ACC + 16 + 4 * k for k in range(12)] + [F + 4 * k for k in range(8)]
    def wo_read(self, k):
        return ("ds", "ds_read_b128 %s, %s" % (vr(self.WREG[k % 36], 4), ldsaddr(WO_SLOT[k // 16] * 16384 + (k % 16) * 1024)), ("w", k))
    def wo_pre(self, k0, k1):
        for k in range(k0, k1): self.a.run(self.wo_read(k))

    def finish(self, A, xo, h, pf, n, halo_pass):
        a = self.a
        for k in range(8): a.I("v_cvt_pk_bf16_f32 v%d, v%d, v%d" % (XRES + k, A + 2 * k, A + 2 * k + 1))
        if xo == 4:
            a.I(self.getc(16, aROW))
            for e_ in range(2): a.vm("buffer_store_dwordx4 %s, v16, %s, 0 offen offset:%d %s" % (vr(XRES + 4 * e_, 4), OUT, e_ * 64, OPT["outf"].strip("-")))
            self.stamp()
            return
        self.publish(xo)
        self.stamp()
        a.run_all(self.flat(pf[:n]))
        self.signal(h, "pub", halo_pass)
        a.run_all(self.flat(pf[n:]))
        self.stamp()

    def wo(self, ps):
        a = self.a
        def setup():
            for k in range(8):
                a.I("v_lshlrev_b32 v%d, 16, v%d\nv_and_b32 v%d, 0xffff0000, v%d" % (ACC + 2 * k, XRES + k, ACC + 2 * k + 1, XRES + k))
        keep = dict(a.ds_tag)
        if OPT["stamps"] and ps == 0:
            a.I("s_memtime s[%d:%d]" % (sST, sST + 1)); a.ds_drain(force=True); a.I("v_writelane_b32 v%d, s%d, 60" % (vSTAMP, sST))
        self.poll(6 * ps + 1, sMC, None, setup)
        a.ds_tag.update((t, n) for t, n in keep.items() if t[0] == "w")
        self.stamp()
        areg = lambda s: vr(X + 64 + 4 * s, 4)
        ld = self.reg_loads([areg(s) for s in range(16)], [sOL] * 16, [LY.OB[ps] + s * 2048 for s in range(16)], sTA, vQ, "act")
        UP = OPT["w_up"]
        rest = [self.wo_read(k) for k in range(OPT["w_pre"], 32)]
        for n_, g in enumerate(ld[:UP]):
            a.run_all(g)
            if n_ >= 3: a.run_all(rest[:3]); rest = rest[3:]
        a.run_all(rest)
        a.I("s_barrier")
        self.wo_pre(32, 36)
        sl = Slots()
        for k in range(64):
            s, cb = divmod(k, 4)
            d = vr(ACC + 4 * cb, 4)
            sl.add("v_mfma_f32_16x16x32_bf16 %s, %s, %s, %s" % (d, vr(self.WREG[k % 36], 4), areg(s), d),
                   [("wds", ("w", k))] + ([("wvm", ("act", s))] if cb == 0 else []))
            if cb == 0 and s + UP < 16: sl.put("m", k, ld[s + UP])
            if k + 36 < 64: sl.put("r", k, [self.wo_read(k + 36)])
        pf = sl.pace(self.wgs("wo", ps) + self.wds("wo", ps), 64 - 4 * UP + 2, 4.4, 64 - OPT["w_quiet"])
        self.lite(sl, "wo", [8 * k for k in range(8)])
        self.report("wo%d" % ps, sl.emit(a))
        self.stamp()
        self.finish(ACC, 2 * ps + 1, 6 * ps + 2, pf + self.wgs("h2", ps) + self.wds("h2", ps), 0, None)

    def dn_plan(self, ps):
        order = [(i, s) for lv in DN_S for i in range(3) for s in lv] + [(3, s) for s in range(14)]
        areg = lambda k: vr(X + 48 + 4 * (k % 16), 4)
        ld = self.reg_loads([areg(k) for k in range(56)], [sHLD[i] for i, s in order], [LY.HB[ps] + s * 2048 for i, s in order], sTA, vQ, "act")
        return order, areg, ld

    def dn(self, ps, issued, wd):
        a = self.a
        order, areg, ld = self.dn_plan(ps)
        XW, XR, R, P, U = 16, 19, 20, (ACC, ACC + 16, ACC + 32), ACC + 48
        io = L_SCR_DN - 65536
        UP = OPT["k_up"]
        widx = {s: n_ for n_, s in enumerate(DN_ORD)}
        wd_e = [g for g in wd if g[-1][2][1] < 24]
        wd_l = [g for g in wd if g[-1][2][1] >= 24]
        a.run_all(self.flat(ld[issued:UP] + wd_e))
        a.ds_drain()
        a.I("s_barrier")
        sl = Slots()
        accr = lambda i, cb: (X, X + 16, X + 32, X + 112)[i] + 4 * cb
        seen, endb = set(), {}
        for k, (i, s) in enumerate(order):
            for cb in range(4):
                d = vr(accr(i, cb), 4)
                pre = [("wvm", ("act", k))] if cb == 0 else []
                tag = ("wd", 4 * widx[s] + cb)
                if i == 0 and (tag in a.vm_tag or any(g[-1][2] == tag for g in wd_l)): pre.append(("wvm", tag))
                endb[i] = sl.add("v_mfma_f32_16x16x32_bf16 %s, %s, %s, %s" % (d, ar(16 * s + 4 * cb, 4), areg(k), d if (i, cb) in seen else "0"), pre)
                seen.add((i, cb))
        chk = {18: self.check_ops(6 * ps + 4, sMB, PA, "hf2"), 30: self.check_ops(6 * ps + 5, sMB, PA, "hf3")}
        if self.pending: sl.put("f", OPT["d_mid%d" % ps], self.pending)
        sl.put("f", OPT["d_sig%d" % ps], self.signal_ops(6 * ps + 5, "h6", PB))
        extra = list(wd_l)
        for k in range(max(UP, issued), 56):
            p = 4 * (k - min(OPT["d_up2"], UP + max(0, k - OPT["d_ramp"]) // 3))
            if k + OPT["d_chk"] in chk: sl.put("m", p, chk[k + OPT["d_chk"]][0])
            if k in chk:
                due = [g for g in extra if g[-1][2][1] < (40 if k == 18 else 56)]
                sl.put("m", p, self.flat(due) + chk[k][1]); extra = extra[len(due):]
            sl.put("m", p, ld[k])
            sl.put("m", p, self.flat(extra[:1])); extra = extra[1:]
        su = [[("i", "v_add_u32 v%d, %s, v%d" % (XW + i, sXW[i], vL16b))] for i in range(3)] + [[("i", "v_add_u32 v%d, %s, v%d" % (XR, sXR, vL16b))]]
        su += [[("i", "s_lshl_b32 %s, %s, 2\ns_add_u32 %s, %s, %s\ns_lshl_b32 %s, %s, 6\ns_add_u32 %s, %s, %d\nv_and_or_b32 v%d, v%d, 63, %s" %
                 (sT0, sR, sT0, sT0, sW, sT0, sT0, sT0, sT0, L_RS, R, vFL, sT0)), ("ds", "ds_read_b32 v%d, v%d" % (R, R))]]
        for k in range(8):
            su += [[("i", "v_lshlrev_b32 v%d, 16, v%d" % (U + 2 * k, XRES + k))], [("i", "v_and_b32 v%d, 0xffff0000, v%d" % (U + 2 * k + 1, XRES + k))]]
        sl.spread(su, 20, 70)
        writes = lambda i: [[("ds", "ds_write_b128 v%d, %s offset:%d" % (XW + i, vr(accr(i, cb), 4), io + cb * 1024))] for cb in range(4)]
        reads = lambda i: [[("ds", "ds_read_b128 %s, v%d offset:%d" % (vr(P[i] + 4 * cb, 4), XR, io + i * 4096 + cb * 1024), ("r", i, cb))] for cb in range(4)]
        add = lambda d, s_: [[("i", "v_add_f32 v%d, v%d, v%d" % (d + e_, d + e_, s_ + e_))] for e_ in range(16)]
        for i in range(3): sl.spread(writes(i), endb[i] + 2, endb[i] + 17)
        wb = []
        if ps and OPT["wb"]:
            go, back = a.label("wb"), a.label("wbback")
            self.cold.append("%s:\nbuffer_wbl2 sc1\ns_branch %s" % (go, back))
            wb = [[("i", "s_or_b32 %s, %s, %s" % (sT1, sJ, sW) if OPT["wb"] == 1 else "s_lshr_b32 %s, s2, 3\ns_or_b32 %s, %s, %s" % (sT1, sT1, sT1, sW)),
                   ("vm", "s_cmp_eq_u32 %s, 0\ns_cbranch_scc1 %s\nbuffer_load_dword a255, off, %s, %s nt\n%s:" % (sT1, go, WS, sFLG, back))]]
        seq = [[("dsdrain",), ("i", "s_barrier")]] + wb + reads(0) + reads(1) + reads(2) + [[("wds", ("r", 1, 3))]] + add(P[0], P[1]) + [[("wds", ("r", 2, 3))]] + add(P[0], P[2])
        seq += [[("i", "v_fma_f32 v%d, v%d, v%d, v%d" % (U + e_, P[0] + e_, R, U + e_))] for e_ in range(16)]
        sl.spread(seq, endb[2] + 20, endb[3] - 2)
        pf = [] if ps else [g for i in range(7) if i not in self.wq_late(1) + self.kept() for g in self.wq_chunk(i)]
        pf = sl.pace(pf, 224 - 4 * OPT["d_up2"] + 2, 4.4)
        self.lite(sl, "dn", [28 * k for k in range(8)])
        self.report("dn%d" % ps, sl.emit(a))
        self.stamp()
        A = accr(3, 0)
        for k in range(8): a.I("v_pk_fma_f32 %s, %s, %s, %s op_sel_hi:[1,0,1]" % (vr(A + 2 * k, 2), vr(A + 2 * k, 2), vr(R, 2), vr(U + 2 * k, 2)))
        self.finish(A, 2 * ps + 2, 6, pf, OPT["dn_pre"], 1)

    def gu(self, ps):
        a = self.a
        xi = 2 * ps + 1
        self.poll(6 * ps + 2, sMA)
        self.stamp()
        S0, TL, NR, XR_ = GS0, 16 - GS0, 8, 10
        SS, NM, HPK, CSA = 16, 24, 28, 21
        A0 = X + 80
        xreg = lambda s, b: X + 8 * (s % XR_) + 4 * b
        acc = lambda bl, m, b: A0 + 16 * bl + 8 * b + 4 * m
        xl = self.reg_loads([vr(xreg(s, b), 4) for s in range(16) for b in range(2)], [sXLD] * 32,
                            [LY.XB[xi] + s * 2048 + b * 256 for s in range(16) for b in range(2)], sTA, vQ, "x")
        UP = OPT["g_up"]
        a.run_all(self.flat(xl[:UP]))
        a.I("s_barrier")
        a.I(self.getc(NM, aSQ) + "\ns_add_u32 %s, %s, %d" % (sT0, sSLD, LY.SB[xi]))
        g_st = [[("vm", "buffer_load_dwordx4 %s, v%d, %s, %s offen sc1" % (vr(SS, 4), NM, WS, sT0))],
                [("vm", "buffer_load_dwordx4 %s, v%d, %s, %s offen offset:1024 sc1" % (vr(SS + 4, 4), NM, WS, sT0), "st")]]
        early = self.wg_early(ps)
        NS = len(self.ring(ps))
        assert 0 in early and len(set(early)) == len(early) and all(c < NS and self.wg_slot(c, ps) not in WO_SLOT for c in early)
        assert all(self.wg_slot(c, ps) != 7 for c in self.digits("wg_att%d" % ps) + self.digits("wg_h1%d" % ps)) and not set(self.kept()) - {2, 3, 4, 5}
        frags = [(s, bl, m) for s in range(S0) for bl in range(7) for m in range(2)]
        for bl in range(7): frags += [(s, bl, m) for s in range(S0, 16) for m in range(2)] + [(16, bl, 0)]
        sl = Slots()
        first, last, end, xfirst, xlast = {}, {}, {}, {}, {}
        for k, (s, bl, m) in enumerate(frags):
            w = F + 4 * (k % NR)
            for mm, b in ([(m, 0), (m, 1)] if s < 16 else [(0, 0), (1, 0), (0, 1), (1, 1)]):
                G_ = OPT["g_grp"]
                pre = [] if k in first else [("wds", ("f", min(k // G_ * G_ + G_ - 1, len(frags) - 1)))]
                d = vr(acc(bl, mm, b), 4)
                if s < 16:
                    if (s, b) not in xfirst: pre.append(("wvm", ("x", 2 * s + (b if s == 0 else 1))))
                    n_ = sl.add("v_mfma_f32_16x16x32_bf16 %s, %s, %s, %s" % (d, vr(w, 4), vr(xreg(s, b), 4), "0" if s == 0 else d), pre)
                    xfirst.setdefault((s, b), n_); xlast[(s, b)] = n_
                else:
                    n_ = sl.add("v_mfma_f32_16x16x16_bf16 %s, %s, %s, %s" % (d, vr(w + 2 * mm, 2), vr(NM + 2 * b, 2), d), pre)
                first.setdefault(k, n_); last[k] = n_
            end[bl] = n_
        LA = OPT["g_la"]
        def rd(k):
            off = self.wg_slot(k // 16, ps) * 16384 + (k % 16) * 1024
            d = F + 4 * (k % NR)
            if frags[k][0] < 16:
                return [("ds", "ds_read_b128 %s, %s" % (vr(d, 4), ldsaddr(off)), ("f", k))]
            return [("ds", "ds_read2st64_b32 %s, v%d offset0:%d offset1:%d" % (vr(d + 2 * m, 2), CSA + (off >> 16), (off & 0xffff) // 256 + 2 * m, (off & 0xffff) // 256 + 2 * m + 1),
                     ("f", k) if m else None) for m in range(2)]
        for k in range(LA): a.run_all(rd(k))
        barpos, real = {}, []
        retire = lambda c: min(p for p in real if p > last[16 * c + 15])
        for k in range(LA, len(frags)):
            if k % 16 == 0:
                ch = k // 16
                pair = ps == 1 and OPT["g_bar1"] == 2 and ch >= OPT["g_pair0"]
                if pair and (ch - OPT["g_pair0"]) % 2:
                    barpos[ch] = barpos[ch - 1]
                elif ch not in early or 2 <= ch <= 16 - NS:
                    p = barpos[ch] = last[k - LA] - 1
                    real.append(p)
                    need = ch + 1 if pair and ch < 14 else ch
                    if need not in early: sl.pre[p + 1].append(("wvm", ("wg", need)))
                    sl.after(p, *(([("wvm", ("wg", need))] if need not in early else []) + [("i", "s_barrier")]))
            sl.after(last[k - LA], *rd(k))
        wl = [(retire(ch - NS) + 2 if ch >= NS else 0, g) for ch in range(15) if ch not in early for g in self.wg_chunk(ch, ps)]
        wdue = [barpos[ch] - 8 * (len(self.wg_chunk(ch, ps)) - 1 - n_) for ch in range(15) if ch not in early for n_ in range(len(self.wg_chunk(ch, ps)))]
        wd = self.wds("rest", ps)
        tail0 = xfirst[(S0, 0)]
        xs = []
        for n_ in range(UP, 32):
            s, b = divmod(n_, 2)
            due = min(xfirst[(s, b)], tail0 - (31 - n_) * OPT["g_xsp"])
            xs.append((due, xlast[(s - XR_, b)] + 1 if s >= XR_ else 0, xl[n_]))
        n_ = OPT["g_stat"]
        xs[n_:n_] = [(xs[n_][0], 0, g) for g in g_st]
        P = lambda key: OPT["g_%s%d" % (key, ps)] / 10
        pos, fab, ix, iw, idd, seq = 0.0, 0.0, 0, 0, 0, []
        stop = end[6] - OPT["g_tail"]
        while ix < len(xs) or iw < len(wl) or (idd < len(wd) and pos <= stop):
            xok = ix < len(xs) and xs[ix][1] <= pos
            xu = xok and xs[ix][0] - pos <= P("xlead")
            wok = iw < len(wl) and wl[iw][0] <= pos
            wu = wok and wdue[iw] - pos <= P("wmin")
            free = fab <= pos + P("slack")
            if xu and (not wu or xs[ix][0] <= wdue[iw] - P("wmin") + P("xlead")): pick = "x"
            elif wu: pick = "w"
            elif free and wok and wdue[iw] - pos <= P("wmax"): pick = "w"
            elif free and idd < len(wd) and pos <= stop: pick = "d"
            elif xok and xs[ix][0] - pos <= P("xmax"): pick = "x"
            else:
                pos = int(pos) + 1; continue
            if pick == "x": g = xs[ix][2]; ix += 1
            elif pick == "w": g = wl[iw][1]; iw += 1; fab = max(fab, pos) + P("wcost")
            else: g = wd[idd]; idd += 1; fab = max(fab, pos) + P("dcost")
            behind = (ix < len(xs) and xs[ix][0] - pos < 0.7 * P("xlead")) or (iw < len(wl) and wdue[iw] - pos < 0.7 * P("wmin"))
            seq.append((pos, g)); pos += 2.0 if behind else P("every")
            if g is g_st[1]: stpos = pos
        assert not sl.pace(seq, 0, 0)
        left = wd[idd:]
        st = [[("wvm", "st")]]
        for r_ in (SS, SS + 4):
            for o in (0, 1): st.append([("i", "v_add_f32 v%d, v%d, v%d" % (r_ + o, r_ + o, r_ + 2 + o))])
        for o in (0, 1): st.append([("i", "v_permlane32_swap_b32 v%d, v%d" % (SS + o, SS + 4 + o))])
        for o in (0, 1): st.append([("i", "v_add_f32 v%d, v%d, v%d" % (SS + o, SS + o, SS + 4 + o))])
        for o in (0, 1): st.append([("i", "v_mov_b32 v%d, v%d" % (SS + 2 + o, SS + o))])
        for k in range(3): st.append([("i", "v_add_u32 v%d, %d, v%d" % (CSA + k, k << 16, vFL))])
        for o in (0, 1): st.append([("i", "v_permlane16_swap_b32 v%d, v%d" % (SS + o, SS + 2 + o))])
        for o in (0, 1): st.append([("i", "v_add_f32 v%d, v%d, v%d" % (SS + o, SS + o, SS + 2 + o))])
        st += [[op] for op in self.ln_from_sums(SS, SS + 1, SS + 2)]
        st += [[("i", "v_cvt_pk_bf16_f32 v%d, -v%d, -v%d" % (NM + k, SS, SS))] for k in range(4)]
        st += [[("i", "v_mul_f32 v%d, v%d, v%d" % (SS + 1, SS + 1, SS + 1))],
               [("i", "s_lshr_b32 %s, %s, 3\ns_add_u32 %s, %s, %d" % (sT0, sLW, sT0, sT0, L_RS))],
               [("i", "v_and_or_b32 v%d, v%d, 63, %s" % (SS, vFL, sT0))], [("i", "v_and_b32 v%d, 32, v0" % (SS + 2))],
               [("i", "v_lshl_add_u32 v%d, v%d, 1, v%d" % (SS, SS + 2, SS))]]
        st += [[("i", "v_permlane32_swap_b32 v%d, v%d" % (NM + k, NM + 2 + k))] for k in range(2)] + [[("mark", "nm")]]
        sl.after(tail0 - 2 * LA, ("need", "nm"))
        sl.spread(st, int(stpos) + 40, tail0 - 2 * LA - 10)
        def epi(bl, packed=False):
            g = []
            for b in range(2):
                ga = acc(bl, 0, b)
                g += [[("i", "v_max_f32 v%d, 0, v%d" % (ga + r, ga + r))] for r in range(4)]
                if packed: g += [[("i", "v_pk_mul_f32 %s, %s, %s" % (vr(ga + r, 2), vr(ga + r, 2), vr(ga + 4 + r, 2)))] for r in (0, 2)]
                else: g += [[("i", "v_mul_f32 v%d, v%d, v%d" % (ga + r, ga + r, ga + 4 + r))] for r in range(4)]
                g += [[("i", "v_cvt_pk_bf16_f32 v%d, v%d, v%d" % (HPK + 2 * b + k, ga + 2 * k, ga + 2 * k + 1))] for k in range(2)]
            g.append([("i", "s_add_u32 %s, %s, %s" % ((sTS, sTS, sHSTEP) if bl else (sTS, sHST, LY.HB[ps])))])
            g += [[("i", "v_permlane16_swap_b32 v%d, v%d" % (HPK + k, HPK + 2 + k))] for k in range(2)]
            g.append([("vm", "buffer_store_dwordx4 %s, v%d, %s, %s offen%s" % (vr(HPK, 4), vL16, WS, sTS, " sc1" if ps == 0 or str(bl) in OPT["h_wt"] else ""), "h%d" % bl)])
            return g
        for bl in range(6): sl.spread(epi(bl), end[bl] + 1, end[bl + 1] - OPT["g_epi"])
        l_e, g_e = self.check_ops(6 * ps + 3, sMB, SS + 3, "he")
        sl.put("f", end[3] + OPT["g_sig%d" % ps], self.signal_ops(6 * ps + 3, "h2", SS + 4))
        self.pending = self.signal_ops(6 * ps + 4, "h4", SS + 4)
        if OPT["d_mid%d" % ps] < 0:
            sl.put("f", end[5] + OPT["g_sig%d" % ps], self.pending); self.pending = None
        nh = OPT["g_h%d" % ps]
        assert S0 >= 10 and nh <= 12
        p = end[6] - OPT["g_chk%d" % ps]
        sl.put("h", p - OPT["g_lat%d" % ps], l_e)
        if nh:
            sl.put("h", p, g_e); g_e = []
            assert not sl.pace(self.dn_plan(ps)[2][:nh], p + 1, min(4.4, (end[6] - p - 2) / nh), name="h")
        sl.put("g", tail0, self.flat(self.code_touch("L_dn%d" % ps, SS + 3)))
        sl.put("c", max(tail0, retire(max(c for c in range(14) if self.wg_slot(c, ps) == 6)) + 1), [("ds", "ds_write_b32 v%d, v%d" % (SS, SS + 1))])
        if ps == 0:
            sl.put("c", end[6] - 8, [("i", "s_or_b32 %s, s2, %s" % (sT0, sW)), ("atom", "s_cmp_eq_u32 %s, 0\ns_cselect_b32 %s, %d, 0x%x" % (sT0, sT0, LY.EPOCH, OOB)),
                                     ("i", "v_mov_b32 v%d, %s" % (SS + 2, sNONCE)),
                                     ("vm", "buffer_store_dword v%d, v%d, %s, %s offen" % (SS + 2, vF1, WS, sT0))])
        self.lite(sl, "g", [56 * k for k in range(8)])
        self.report("gu%d" % ps, sl.emit(a))
        a.run_all(self.flat(epi(6, True)))
        self.stamp()
        a.run_all(g_e)
        self.stamp()
        print("  gu: %d loads left for the hand-off" % len(left))
        return nh, left

    def build(self):
        a = self.a
        self.startup()
        for ps in range(2):
            a.I("L_qkv%d:" % ps); self.qkv(ps)
            a.I("L_wo%d:" % ps); self.wo(ps)
            a.I("L_gu%d:" % ps); left = self.gu(ps)
            a.I("L_dn%d:" % ps); self.dn(ps, *left)
        if OPT["stamps"]:
            a.I("s_waitcnt vmcnt(0)\ns_memrealtime s[6:7]\ns_memtime s[80:81]\ns_waitcnt lgkmcnt(0)\nv_writelane_b32 v%d, s6, 63\nv_writelane_b32 v%d, s80, 61" % (vSTAMP, vSTAMP))
            a.I("s_lshl_b32 %s, s2, 10\ns_lshl_b32 %s, %s, 8\ns_add_u32 %s, %s, %s\ns_add_u32 %s, %s, %d" % (sT0, sT1, sW, sT0, sT0, sT1, sT0, sT0, LY.STAMP))
            a.I("buffer_store_dword v%d, v%d, %s, %s offen" % (vSTAMP, vFL, WS, sT0))
        if OPT["diagpad"]:
            a.I("s_mov_b32 s82, %d" % OPT["diagpad"])
            if OPT["diagat"]:
                a.I("s_sub_u32 s83, s%d, s14\ns_lshl_b32 s83, s83, 2" % sST if OPT["diagat"] > 0 else "s_mov_b32 s83, 2000")
                if OPT["diagwg"] >= 0: a.I("s_cmp_eq_u32 s2, %d\ns_cselect_b32 s83, s83, 0" % OPT["diagwg"])
                a.I("s_add_u32 s82, s82, s83")
            a.I("L_pad:\ns_memrealtime s[80:81]\ns_waitcnt lgkmcnt(0)\ns_sub_u32 s80, s80, s14\ns_cmp_lt_u32 s80, s82\ns_cbranch_scc1 L_pad")
        a.I("L_main_done:\ns_endpgm")
        for c in self.cold: a.I(c)
        a.I("L_code_end:")
        return a.lines

def main():
    ml, n2 = hazard_pass(Main().build())
    k = NAME + "_kernel"
    out = ["; Generated by gen/gen.py: one persistent kernel (weight re-layout, then four layers with flag hand-offs). " + " ".join(sys.argv[2:]),
           "; @launch grid=(256,1,1) block=(256,1,1) lds=163840",
           '.amdgcn_target "amdgcn-amd-amdhsa--gfx950"', ".text",
           ".globl %s" % k, ".p2align 8", ".type %s,@function" % k]
    out += [l if l.endswith(":") else "    " + l for l in ml]
    out += ['.section .rodata,"a"', ".p2align 6", """.amdhsa_kernel %s
  .amdhsa_next_free_vgpr 512
  .amdhsa_next_free_sgpr 102
  .amdhsa_accum_offset 256
  .amdhsa_group_segment_fixed_size 0
  .amdhsa_kernarg_size 80
  .amdhsa_user_sgpr_count 2
  .amdhsa_user_sgpr_kernarg_segment_ptr 1
  .amdhsa_system_sgpr_workgroup_id_x 1
  .amdhsa_float_denorm_mode_32 3
.end_amdhsa_kernel""" % k]
    if OPT["rt"]: out = [l.replace("s_memtime", "s_memrealtime") for l in out]
    open(sys.argv[1], "w").write("\n".join(out) + "\n")
    print("instructions: %d ; wait states added: %d" % (len(ml), n2))

main()
```

```python
import re

TRANS = ("v_exp_f32", "v_log_f32", "v_rcp_f32", "v_rsq_f32", "v_sqrt_f32", "v_sin_f32", "v_cos_f32")

def regs_of(tok):
    tok = tok.strip()
    neg = tok.lstrip("-")
    if neg.startswith("abs(") and neg.endswith(")"):
        neg = neg[4:-1]
    if neg.startswith("|") and neg.endswith("|"):
        neg = neg[1:-1]
    m = re.fullmatch(r"([vas])(\d+)", neg)
    if m:
        return [(m.group(1), int(m.group(2)))]
    m = re.fullmatch(r"([vas])\[(\d+):(\d+)\]", neg)
    if m:
        return [(m.group(1), i) for i in range(int(m.group(2)), int(m.group(3)) + 1)]
    if neg == "vcc":
        return [("s", 106), ("s", 107)]
    if neg == "vcc_lo":
        return [("s", 106)]
    if neg == "vcc_hi":
        return [("s", 107)]
    if neg == "exec":
        return [("s", 126), ("s", 127)]
    if neg == "m0":
        return [("s", 124)]
    return []

class Ins:
    __slots__ = ("text", "mn", "cls", "dst", "src", "srcc", "passes", "extra")
    def __init__(self, text):
        self.text = text
        t = text.split(";")[0].strip()
        self.dst, self.src, self.srcc, self.passes, self.extra = [], [], [], 0, ""
        if not t or t.endswith(":") or t.startswith("."):
            self.mn, self.cls = t, "pseudo"
            return
        t = re.sub(r"\s+(op_sel|op_sel_hi|neg_lo|neg_hi|quad_perm):\[[^\]]*\]", "", t)
        t = re.sub(r"hwreg\([^)]*\)", "hwreg", t)
        parts = t.split(None, 1)
        mn = parts[0]
        self.mn = mn
        ops = []
        if len(parts) > 1:
            raw = [o.strip() for o in parts[1].split(",")]
            last = raw[-1].split()
            raw[-1] = last[0] if last else ""
            self.extra = " ".join(last[1:])
            ops = raw
        R = [regs_of(o) for o in ops]
        flat = lambda xs: [r for x in xs for r in x]
        if mn.startswith("v_mfma"):
            self.cls = "mfma"
            self.dst, self.src, self.srcc = R[0], R[1] + R[2], R[3]
            self.passes = 8 if "32x32" in mn else 4
        elif mn.startswith("v_"):
            self.cls = "valu"
            if mn.startswith("v_cmp"):
                self.dst, self.src = R[0], flat(R[1:])
            elif mn.startswith(("v_add_co", "v_sub_co", "v_addc_co", "v_subb_co")):
                self.dst, self.src = R[0] + R[1], flat(R[2:])
            elif mn.startswith("v_permlane") and "swap" in mn:
                self.dst, self.src = R[0] + R[1], R[0] + R[1]
            elif mn.startswith(("v_fmac", "v_dot2c", "v_writelane")):
                self.dst, self.src = R[0], flat(R)
            elif mn == "v_nop":
                pass
            else:
                self.dst, self.src = R[0], flat(R[1:])
                if "dpp" in mn:
                    self.src = self.src + R[0]
        elif mn.startswith("ds_"):
            self.cls = "ds"
            if mn.startswith(("ds_read", "ds_bpermute", "ds_permute", "ds_swizzle")):
                self.dst, self.src = R[0], flat(R[1:])
            else:
                self.src = flat(R)
        elif mn.startswith(("buffer_", "global_")):
            self.cls = "vmem"
            if mn in ("buffer_wbl2", "buffer_inv"):
                pass
            elif "lds" in self.extra.split() or "_lds_" in mn:
                self.src = flat(R) + [("s", 124)]
            elif "load" in mn:
                self.dst, self.src = R[0], flat(R[1:])
            else:
                self.src = flat(R)
        elif mn.startswith(("s_load", "s_memtime", "s_memrealtime")):
            self.cls = "smem"
            self.dst, self.src = R[0], flat(R[1:])
        elif mn.startswith("s_"):
            self.cls = "salu"
            if mn.startswith(("s_cmp", "s_cbranch", "s_branch", "s_waitcnt", "s_nop", "s_barrier", "s_endpgm",
                              "s_sleep", "s_setprio", "s_bitcmp")):
                self.src = flat(R)
            else:
                self.dst, self.src = (R[0] if R else []), flat(R[1:])
                if "saveexec" in mn:
                    self.dst = self.dst + regs_of("exec")
        else:
            raise ValueError("unknown instruction: " + text)

    def states(self):
        if self.cls == "pseudo":
            return 0
        if self.mn == "s_nop":
            return int(self.text.split()[1], 0) + 1
        return 1

def required(p, c):
    need = 0
    pd = set(p.dst)
    cs, cc, cd = set(c.src), set(c.srcc), set(c.dst)
    vec = lambda s: {r for r in s if r[0] in "va"}
    sc = lambda s: {r for r in s if r[0] == "s"}
    if p.cls == "valu":
        isdot = p.mn.startswith("v_dot")
        if c.cls == "mfma" and vec(pd) & (cs | cc):
            need = max(need, 3 if isdot else 2)
        if isdot and vec(pd) & (cs | cd):
            same = c.mn == p.mn
            if not same:
                need = max(need, 3)
            else:
                ops = [o.strip() for o in c.text.split(None, 1)[1].split(",")]
                ab = set(regs_of(ops[1]) + regs_of(ops[2].split()[0]))
                if pd & ab:
                    need = max(need, 3)
        if c.cls == "valu":
            if c.mn.startswith("v_permlane") and vec(pd) & cs:
                need = max(need, 2)
            if "dpp" in c.mn and vec(pd) & cs:
                need = max(need, 2)
            if c.mn.startswith(("v_readlane", "v_readfirstlane")) and vec(pd) & cs:
                need = max(need, 1)
            if p.mn.startswith(TRANS) and vec(pd) & cs:
                need = max(need, 1)
            if "sdwa" in p.mn and vec(pd) & (cs | cd):
                need = max(need, 1)
            if sc(pd) & cs:
                need = max(need, 4 if c.mn.startswith(("v_readlane", "v_writelane")) else 2)
        if c.cls == "vmem" and sc(pd) & cs:
            need = max(need, 5)
        if c.cls in ("salu", "smem") and sc(pd) & cs:
            need = max(need, 1)
    elif p.cls == "mfma":
        big = {4: 8, 8: 12}[p.passes]
        if c.cls == "mfma":
            if pd & cs:
                need = max(need, big)
            if pd & cc:
                if not (p.dst == c.srcc and p.mn == c.mn):
                    need = max(need, {4: 6, 8: 10}[p.passes])
            elif pd & cd:
                need = max(need, {4: 6, 8: 10}[p.passes])
        elif c.cls in ("valu", "ds", "vmem"):
            if pd & (cs | cd):
                need = max(need, big)
            if set(p.srcc) & cd:
                need = max(need, {4: 3, 8: 7}[p.passes])
    elif p.cls == "vmem":
        if not p.dst and ("x4" in p.mn or "x3" in p.mn) and "store" in p.mn:
            data = set(regs_of(p.text.split(None, 1)[1].split(",")[0 if p.mn.startswith("buffer") else 1]))
            if data & cd:
                need = max(need, 2)
    elif p.cls == "ds":
        if p.mn.startswith("ds_write_b128") and c.cls == "valu" and vec(set(p.src)) & cd:
            need = max(need, 1)
    elif p.cls == "salu":
        if ("s", 124) in pd and c.cls == "vmem" and ("s", 124) in cs:
            need = max(need, 1)
    return need

def hazard_pass(lines):
    out = []
    added = 0
    for text in lines:
        c = Ins(text)
        if c.cls != "pseudo":
            dist, worst = 0, 0
            for p in reversed(out):
                if dist >= 12:
                    break
                if p.cls != "pseudo":
                    worst = max(worst, required(p, c) - dist)
                    dist += p.states()
            if worst > 0:
                out.append(Ins("s_nop %d" % (worst - 1)))
                added += worst
        out.append(c)
    return [i.text for i in out], added

class Asm:
    def __init__(self):
        self.lines = []
        self.vm_n = 0; self.vm_done = 0; self.vm_tag = {}
        self.ds_n = 0; self.ds_done = 0; self.ds_tag = {}
        self.uid = 0
        self.state = {}
    def I(self, text):
        for t in text.split("\n"):
            t = t.strip()
            if t:
                self.lines.append(t)
    def label(self, base):
        self.uid += 1
        return "L_%s_%d" % (base, self.uid)
    def vm(self, text, tag=None):
        if self.vm_n - self.vm_done >= 62:
            self.vm_wait_n(self.vm_done + 1)
        self.I(text)
        self.vm_n += 1
        if tag is not None:
            assert tag not in self.vm_tag, tag
            self.vm_tag[tag] = self.vm_n
        return self.vm_n
    def forget(self, keep=()):
        self.vm_tag = {t: n for t, n in self.vm_tag.items() if (t[0] if isinstance(t, tuple) else t) in keep}
        self.ds_tag = {}
    def setreg(self, key, text):
        if self.state.get(key) != text:
            self.I(text)
            self.state[key] = text
    def vm_wait_n(self, seq):
        if seq > self.vm_done:
            self.I("s_waitcnt vmcnt(%d)" % (self.vm_n - seq))
            self.vm_done = seq
    def vm_wait(self, tag):
        self.vm_wait_n(self.vm_tag[tag])
    def vm_drain(self, force=False):
        if force or self.vm_n > self.vm_done:
            self.I("s_waitcnt vmcnt(0)")
        self.vm_done = self.vm_n
    def ds(self, text, tag=None):
        if self.ds_n - self.ds_done >= 15:
            self.ds_wait_n(self.ds_done + 1)
        self.I(text)
        self.ds_n += 1
        if tag is not None:
            self.ds_tag[tag] = self.ds_n
        return self.ds_n
    def ds_wait_n(self, seq):
        if seq > self.ds_done:
            self.I("s_waitcnt lgkmcnt(%d)" % (self.ds_n - seq))
            self.ds_done = seq
    def ds_wait(self, tag):
        self.ds_wait_n(self.ds_tag[tag])
    def ds_drain(self, force=False):
        if force or self.ds_n > self.ds_done:
            self.I("s_waitcnt lgkmcnt(0)")
        self.ds_done = self.ds_n
    def run(self, op):
        k = op[0]
        if k in ("i", "atom"): self.I(op[1])
        elif k == "vm": self.vm(op[1], op[2] if len(op) > 2 else None)
        elif k == "ds": self.ds(op[1], op[2] if len(op) > 2 else None)
        elif k == "wvm": self.vm_wait(op[1])
        elif k == "wds": self.ds_wait(op[1])
        elif k == "dsdrain": self.ds_drain()
        elif k == "vmdrain": self.vm_drain()
        elif k == "set": self.setreg(op[1], op[2])
        elif k == "call": op[1]()
        else: raise ValueError(op)
    def run_all(self, ops):
        for op in ops:
            self.run(op)

def split_ops(ops):
    out = []
    for op in ops:
        if op[0] == "i":
            out += [("i", t.strip()) for t in op[1].split("\n") if t.strip()]
        else:
            out.append(op)
    return out

def op_cost(a, op):
    k = op[0]
    if k == "set":
        return [] if a.state.get(op[1]) == op[2] else [(False, 4)] * len(op[2].split("\n"))
    if k == "wvm":
        return [] if a.vm_tag[op[1]] <= a.vm_done else [(False, 4)]
    if k == "wds":
        return [] if a.ds_tag[op[1]] <= a.ds_done else [(False, 4)]
    if k in ("dsdrain", "vmdrain"):
        return [(False, 4)]
    if k in ("mark", "need", "call"):
        return []
    res = []
    for t in op[1].split("\n"):
        c = Ins(t)
        if c.cls == "pseudo": continue
        if c.mn == "s_barrier": res.append((False, 20))
        elif c.cls == "mfma": res.append((True, 24))
        elif c.cls in ("salu", "smem"): res.append((False, 4))
        elif c.cls == "vmem" and "store_dwordx4" in c.mn: res.append((True, 20))
        elif c.cls == "vmem" or c.mn.startswith(TRANS) or c.mn.startswith(("ds_write_b128", "v_permlane")): res.append((True, 8))
        else: res.append((True, 4))
    return res

def needs_nop(a, op):
    if op[0] not in ("i", "ds", "vm", "atom"):
        return False
    c = Ins(op[1].split("\n")[0])
    if c.cls == "pseudo":
        return False
    dist = 0
    for t in reversed(a.lines[-14:]):
        p = Ins(t)
        if p.cls == "pseudo": continue
        if required(p, c) > dist: return True
        dist += p.states()
    return False

class Slots:
    def __init__(self):
        self.pre, self.mf, self.post = [], [], []
        self.streams = {}
        self.patience = 10
        self.mpatience = 999
    def add(self, mfma, pre=()):
        self.pre.append(list(pre)); self.mf.append(mfma); self.post.append([])
        return len(self.mf) - 1
    def n(self):
        return len(self.mf)
    def after(self, i, *ops):
        self.post[min(max(i, 0), len(self.mf) - 1)].extend(ops)
    def put(self, name, i, ops):
        self.streams.setdefault(name, []).extend((i, op) for op in split_ops(ops))
    def spread(self, groups, first, last, name="v"):
        n = len(groups)
        for k, g in enumerate(groups):
            self.put(name, first + (k * (last - first + 1)) // max(n, 1), g)
    def pace(self, groups, first, every, last=None, name="m"):
        last = len(self.mf) - 1 if last is None else last
        pos = float(first)
        for k, g in enumerate(groups):
            step = every
            if isinstance(g, tuple):
                pos = max(pos, g[0])
                if len(g) > 2: step = g[2]
                g = g[1]
            if pos > last:
                return [x[1] if isinstance(x, tuple) else x for x in groups[k:]]
            for op in g:
                self.put(name, int(pos) - (1 if op[0] == "set" else 0), [op])
            if any(op[0] == "vm" for op in g):
                pos += step
        return []
    def emit(self, a):
        marks = set()
        over = 0
        def run(op):
            if op[0] == "mark": marks.add(op[1])
            elif op[0] == "need": assert op[1] in marks, op
            elif op[0] == "atom": a.I(op[1])
            else: a.run(op)
        def waits(ops):
            n0 = len(a.lines)
            for op in ops: run(op)
            new = a.lines[n0:]
            if len(new) >= 2 and all(t.startswith("s_waitcnt") for t in new):
                last = {t.split()[1][:2]: t.split()[1] for t in new}
                a.lines[n0:] = ["s_waitcnt " + " ".join(sorted(last.values(), reverse=True))]
            return len(a.lines) - n0
        def advance(t, cost):
            for vec, c in cost:
                t = (max(t, 8) if vec else t) + c
            return t
        names = sorted(self.streams)
        head = {n: 0 for n in names}
        last = {n: -1 for n in names}
        waits(self.pre[0])
        for i in range(len(self.mf)):
            a.I(self.mf[i])
            G = 32 if "32x32" in self.mf[i] else 16
            nxt = self.pre[i + 1] if i + 1 < len(self.mf) else []
            fixed = split_ops(self.post[i])
            issued = {op[2] for op in fixed if op[0] in ("ds", "vm") and len(op) > 2}
            ready = lambda op: op[0] == "wds" and op[1] in a.ds_tag or op[0] == "wvm" and op[1] in a.vm_tag
            early = [op for op in nxt if ready(op)]
            late = [op for op in nxt if not ready(op)]
            t = 4 + 4 * waits(early)
            def fill(t, limit, scalar_only):
                progress = True
                while progress:
                    progress = False
                    for n in sorted(names, key=lambda n: last[n]):
                        q = self.streams[n]
                        while head[n] < len(q) and q[head[n]][0] <= i:
                            op = q[head[n]][1]
                            cost = op_cost(a, op)
                            if scalar_only and any(v for v, _ in cost): break
                            t2 = advance(t, cost)
                            big = not scalar_only and (advance(4, cost) > G and t <= 8 or i - q[head[n]][0] >= (self.mpatience if n == "m" else self.patience) and t <= limit - (4 if n == "m" else 0))
                            if (t2 > limit and not big) or needs_nop(a, op): break
                            run(op); t = t2; head[n] += 1; progress = True
                            if any(v for v, _ in cost): last[n] = i
                return t
            t = fill(t, 8, True)
            for op in fixed:
                t = advance(t, op_cost(a, op)); run(op)
            t = fill(t, G - (4 if late else 0), False)
            t += 4 * waits(late)
            over += max(0, t - G)
        left = [op for n in names for _, op in self.streams[n][head[n]:]]
        for op in left: run(op)
        return over, len(left)

def check_async(lines):
    vm, lg, bad = [], [], []
    for n, text in enumerate(lines):
        c = Ins(text)
        if c.mn == "s_endpgm": break
        if c.cls == "pseudo": continue
        if c.mn == "s_waitcnt":
            m = re.search(r"vmcnt\((\d+)\)", text)
            if m: vm = vm[len(vm) - int(m.group(1)):] if int(m.group(1)) < len(vm) else vm
            m = re.search(r"lgkmcnt\((\d+)\)", text)
            if m:
                k = int(m.group(1))
                if k == 0: lg = []
                else:
                    ds = [x for x in lg if x[0] == "ds"]
                    keep = ds[len(ds) - k:] if k < len(ds) else ds
                    lg = [x for x in lg if x[0] != "ds" or x in keep]
            continue
        rd, wr = set(c.src) | set(c.srcc), set(c.dst)
        for cls, pend in (("vmem", vm), ("lgkm", lg)):
            for kind, regs, at in pend:
                same = (c.cls == "vmem" and cls == "vmem") or (c.cls == "ds" and kind == "ds")
                hit = regs & (rd if same else rd | wr)
                hit.discard(("a", 255))
                if hit: bad.append((n, text, at, lines[at]))
        if c.cls == "vmem": vm.append(("vm", wr, n))
        elif c.cls in ("ds", "smem"): lg.append((c.cls, wr, n))
        assert len(vm) <= 63 and len([x for x in lg if x[0] == "ds"]) <= 15, (n, text)
    return bad
```

```python
import sys
from dsl import Asm, Slots, hazard_pass, check_async
import layout as LY

NAME = "interleave_layers__sliding_local_dilated__glu_gated_reglu__prompt"
OPT = dict(stamps=0, lite="-", hitw=0,
           q_up=8, q_every=45, q_hf=8, q_chk=6, q_h0=10, a_every=14, k_up=8, g_up=4, g_tail=0, g_la=7, g_xsp=11, g_stat=6,
           g_every0=36, g_xlead0=400, g_wmin0=600, g_wmax0=1000, g_slack0=40, g_wcost0=60, g_dcost0=30,
           g_xmax0=9000, g_xmax1=800, g_every1=46, g_xlead1=400, g_wmin1=560, g_wmax1=700, g_slack1=40, g_wcost1=60, g_dcost1=30,
           wq_late1="-", dn_pre=6, q0_up=6, q0_lead=20, q0_every=20,
           wg_att0="0", wg_h10="-", wg_wo0="1", wg_h20="-",
           wg_att1="01", wg_h11="-", wg_wo1="2", wg_h21="-",
           keep="2345", q_wbar=12, w_pre=20, w_up=8, w_quiet=12, d_sig0=16, d_sig1=16, d_up2=11, d_ramp=8, d_mid0=-1, d_mid1=-1, d_chk=8, g_epi=6, g_sig0=27, g_sig1=16, g_chk0=20, g_chk1=26, g_lat0=18, g_lat1=18, g_h0=4, g_h1=6,
           touch=0, h_wt="-", wb=1, otouch=1, diagpad=0, diagat=0, diagwg=100, b_pos=1, q0_split=0, q0_n1=6, q0_hf=6, order="ao", rt=0, q_mp0=999, q_mp1=2, q_vp=10, g_mp0=2, g_mp1=999, g_vp=10, d_w64=0, q_st=0, g_grp=3, q_grp=3, g_bar1=1, g_pair0=7, outf="-", c_early=0, b_spread=0, b_first=0, b_gap=3, pollf="nt", actf="sc1", wf="sc1", cpf=1, predrain=1, q0_b=0, q0_fbch=3, q0_fbs=15, q0_w=6, q0_tail=45, a_quiet=30, wd_q=0, wd_att=0, wd_h1=0, wd_wo=0, wd_h2=0)
for arg in sys.argv[2:]:
    k, v = arg.split("=")
    OPT[k] = v if isinstance(OPT[k], str) else int(v)

def vr(b, n): return "v[%d:%d]" % (b, b + n - 1)
def ar(b, n): return "a[%d:%d]" % (b, b + n - 1)
def magic(d): return (1 << 32) // d + 1
OOB = 0x40000000
GS0 = LY.GS0

WS, XIN, OUT = "s[8:11]", "s[12:15]", "s[16:19]"
sW, sJ, sR, sC, sG, sN, sNONCE, sSLOW = ("s%d" % i for i in range(20, 28))
sGB, sXLD, sXST, sOST, sXR, sHST, sSLD, sWQ, sWG, sWO, sWD, sLW = ("s%d" % i for i in range(28, 40))
sMA, sMB = "s[40:41]", "s[42:43]"
sFLG, sFLW, sHALO, sHFL, sTAB, sSST, sONE, sHDST, sHDFL, sP = ("s%d" % i for i in range(44, 54))
sMH = "s[54:55]"
sTA, sTW, sTD, sTS, sT0, sT1, sT2, sSPIN = ("s%d" % i for i in range(56, 64))
sHLD = ["s%d" % i for i in range(68, 72)]
sXW = ["s%d" % i for i in range(72, 75)]
sFBO, sB0, sB1, sB2, sB3 = "s75", "s76", "s77", "s78", "s79"
SRC_A, SRC_G, SRC_U, SRC_D = 80, 84, 88, 92
sLW2, sLW4, sWQ4, sWG4 = "s96", "s97", "s98", "s99"
sST = 100
sHALO2 = sP
sNH, sCPO, sPC, sSLOW2 = "s12", "s13", "s[4:5]", "s[0:1]"
sOL, sHSTEP, sMC = "s64", "s65", "s[66:67]"
vL, vL16, vL16b, vL16c, vQ, vF1, vFL, vSTAMP = 0, 1, 2, 3, 4, 5, 6, 7
XRES = 8
PA, PB = 22, 23
X, ACC, F = 32, 160, 224
aROW, aST, aSQ, aSH, aSG, aHX, aHWR, aHWS, aHST, aHSS, aFB, aLINE, aTO, aTH = range(224, 238)
aBC, aBP, aBP0, aMC = 240, 244, 248, 252
L_HALO, L_RS, L_KV, L_TAB, L_FMT = 102400, 110592, 114688, 124928, 131072
L_SCR_DN = 114688
WO_SLOT = (8, 9, 0, 1)
DN_S = ((2, 3, 4, 9, 10, 11), (1, 5, 8, 12), (0, 6, 7, 13))
DN_ORD = sum(DN_S, ())
NEG = "0xf149f2ca"

def ldsaddr(off):
    return "v%d offset:%d" % ((vL16, vL16b, vL16c)[off >> 16], off & 0xffff)

def isvm(g): return any(op[0] == "vm" for op in g)

class Main:
    def __init__(self):
        self.a = Asm()
        self.nstamp = 0
        self.cold = []
        self.nlite = 0
        self.wd = None
        self.ncall = 0

    def stamp(self, key=None):
        self.ncall += 1
        if OPT["diagpad"] and OPT["diagat"] == self.ncall:
            self.a.I("s_memrealtime s[%d:%d]" % (sST, sST + 1))
            self.a.ds_drain(force=True)
        if OPT["stamps"] != 1 or (key is not None and OPT["lite"] != key):
            return
        a = self.a
        a.I("s_memtime s[%d:%d]" % (sST, sST + 1))
        a.ds_drain(force=True)
        for k in range(self.nlite):
            a.I("v_writelane_b32 v%d, s%d, %d" % (vSTAMP, 80 + 2 * k, self.nstamp))
            self.nstamp += 1
        self.nlite = 0
        a.I("v_writelane_b32 v%d, s%d, %d" % (vSTAMP, sST, self.nstamp))
        self.nstamp += 1

    def lite(self, sl, key, slots):
        if OPT["lite"] != key:
            return
        for i in slots[:8]:
            sl.after(i, ("i", "s_memtime s[%d:%d]" % (80 + 2 * self.nlite, 81 + 2 * self.nlite)))
            self.nlite += 1

    def report(self, name, r):
        print("  %s: cycles over budget %d, ops left after the loop %d" % ((name,) + r))

    def getc(self, v, acc): return "v_accvgpr_read_b32 v%d, a%d" % (v, acc)
    def flat(self, groups): return [op for g in groups for op in g]
    def digits(self, key): return tuple(int(c, 16) for c in str(OPT[key]) if c != "-")
    def wgs(self, where, ps): return [g for i in self.digits("wg_%s%d" % (where, ps)) for g in self.wg_chunk(i, ps)]
    def wg_early(self, ps): return sum((self.digits("wg_%s%d" % (w, ps)) for w in ("att", "h1", "wo", "h2")), ())
    def wq_late(self, ps): return tuple(range(7)) if ps == 0 else self.digits("wq_late1")

    def srd(self, base, lo, hi, nbytes):
        self.a.I("s_mov_b32 s%d, %s\ns_and_b32 s%d, %s, 0xffff\ns_mov_b32 s%d, %s\ns_mov_b32 s%d, 0x20000" %
                 (base, lo, base + 1, hi, base + 2, nbytes, base + 3))

    def lin(self, dst, base, terms):
        first = True
        for reg, mul in terms:
            self.a.I("s_mul_i32 %s, %s, %d\ns_add_u32 %s, %s, %s" % (sT2, reg, mul, dst, base if first else dst, sT2))
            first = False

    def sdivmod(self, q, r, x, d):
        self.a.I("s_mul_hi_u32 %s, %s, 0x%x\ns_mul_i32 %s, %s, %d\ns_sub_u32 %s, %s, %s" % (q, x, magic(d), sT2, q, d, r, x, sT2))

    def hi_lo(self, dst, src, t):
        return ["v_cvt_pk_bf16_f32 v%d, v%d, v%d" % (dst, src, src), "v_lshlrev_b32 v%d, 16, v%d" % (t, dst),
                "v_sub_f32 v%d, v%d, v%d" % (t, src, t), "v_cvt_pk_bf16_f32 v%d, v%d, v%d" % (dst, src, t)]

    def weave(self, body, groups, first, every):
        k = 0
        for n_, op in enumerate(body):
            if n_ >= first and (n_ - first) % every == 0:
                while k < len(groups):
                    g = groups[k]; k += 1
                    self.a.run_all(g)
                    if isvm(g): break
            self.a.run(op)
        return groups[k:]

    def signal(self, h, wait=None, halo_pass=None):
        a = self.a
        slow, done = a.label("slow"), a.label("sig")
        a.I("s_add_u32 %s, %s, %d\nv_mov_b32 v30, %s" % (sNH, sNONCE, h, sNH))
        if halo_pass is not None:
            h1, b1, h2, b2 = a.label("halo"), a.label("hback"), a.label("halo"), a.label("hback")
            n = a.vm_n - max(a.vm_tag[wait], a.vm_done)
            a.I("s_cmp_lg_u32 %s, 0x%x\ns_cbranch_scc1 %s" % (sHDST, OOB, h1))
            st = "\n".join("buffer_store_dwordx4 %s, v24, %s, %s offen offset:%d sc1" % (vr(XRES + 4 * e, 4), WS, sTS, e * 512) for e in range(2))
            self.cold.append("%s:\n%s\n%s\ns_add_u32 %s, %s, %d\n%s\nbuffer_store_dword v26, v25, %s, %s offen sc1\ns_waitcnt vmcnt(%d)\ns_branch %s" %
                             (h1, self.getc(24, aHST), self.getc(25, aHSS), sTS, sHDST, LY.HX[halo_pass], st, WS, sTS, n + 3, b1))
            self.cold.append("%s:\ns_add_u32 %s, %s, %d\nv_mov_b32 v24, %s\n%s\ns_waitcnt vmcnt(1)\nbuffer_store_dword v24, v25, %s, %s offen sc1\ns_branch %s" %
                             (h2, sTS, sHDFL, halo_pass * 16384, sNONCE, self.getc(25, aLINE), WS, sTS, b2))
            a.vm_wait(wait)
            a.I("%s:\ns_cmp_lg_u32 %s, 0" % (b1, sSLOW))
        else:
            a.I("s_cmp_lg_u32 %s, 0" % sSLOW)
            if wait is None: a.vm_drain()
            else: a.vm_wait(wait)
        a.I("s_cbranch_scc1 %s" % slow)
        a.vm("buffer_store_dword v30, v%d, %s, %s offen" % (vF1, WS, sFLW))
        a.I("%s:" % done)
        self.cold.append("%s:\nbuffer_wbl2 sc1\ns_waitcnt vmcnt(0)\nbuffer_store_dword v30, v%d, %s, %s offen sc1\ns_branch %s" % (slow, vF1, WS, sFLW, done))
        self.sent = h
        if halo_pass is not None:
            a.I("s_cmp_lg_u32 %s, 0x%x\ns_cbranch_scc1 %s\n%s:" % (sHDST, OOB, h2, b2))

    def poll(self, h, mask, also=None, setup=None):
        a = self.a
        a.forget()
        assert self.sent == h
        if setup: setup()
        def loop(name, fl):
            ld = "buffer_load_dword v%d, v%d, %s, %s offen %s" % (PA, vFL, WS, sFLG, fl)
            ts = "v_subrev_u32 v%d, %s, v%d\nv_cmp_lt_u32 vcc, 15, v%d\ns_and_b64 vcc, vcc, %s" % (PA, sNH, PA, PA, mask)
            if also is not None:
                ld += "\nbuffer_load_dword v%d, v%d, %s, 0 offen sc1" % (PB, also, WS)
                ts = "v_cmp_ne_u32 s[60:61], %s, v%d\n%s\ns_or_b64 vcc, vcc, s[60:61]" % (sNONCE, PB, ts)
            return "%s:\n%s\ns_sub_u32 %s, %s, 1\ns_cbranch_scc1 L_main_done\ns_waitcnt vmcnt(0)\n%s\ns_cbranch_scc1 %s" % (name, ld, sSPIN, sSPIN, ts, name)
        far, ok = a.label("far"), a.label("ok")
        a.I("s_mov_b32 %s, 0x40000\ns_cmp_lg_u32 %s, 0\ns_cbranch_scc1 %s" % (sSPIN, sSLOW, far))
        a.I(loop(a.label("poll"), OPT["pollf"]) + "\n%s:" % ok)
        a.vm_done = a.vm_n
        self.cold.append(loop(far, "sc1") + "\nbuffer_inv sc1\ns_waitcnt vmcnt(0)\ns_branch %s" % ok)

    def signal_ops(self, h, wait, reg):
        a = self.a
        slow, done = a.label("slow"), a.label("sig")
        self.cold.append("%s:\nbuffer_wbl2 sc1\ns_waitcnt vmcnt(0)\nbuffer_store_dword v%d, v%d, %s, %s offen sc1\ns_branch %s" % (slow, reg, vF1, WS, sFLW, done))
        return [("i", "s_add_u32 %s, %s, %d" % (sNH, sNONCE, h)), ("i", "v_mov_b32 v%d, %s" % (reg, sNH)), ("wvm", wait),
                ("vm", "s_cmp_lg_u32 %s, 0\ns_cbranch_scc1 %s\nbuffer_store_dword v%d, v%d, %s, %s offen\n%s:" % (sSLOW, slow, reg, vF1, WS, sFLW, done))]

    def check_ops(self, h, mask, reg, tag):
        a = self.a
        spin, back = a.label("cspin"), a.label("cback")
        ld = lambda fl: "buffer_load_dword v%d, v%d, %s, %s offen %s" % (reg, vFL, WS, sFLG, fl)
        t = ["v_subrev_u32 v%d, s3, v%d" % (reg, reg), "v_cmp_lt_u32 vcc, 15, v%d" % reg, "s_and_b64 vcc, vcc, %s" % mask]
        loop = lambda name, fl: "%s:\n%s\ns_sub_u32 %s, %s, 1\ns_cbranch_scc1 L_main_done\ns_waitcnt vmcnt(0)\n%s\ns_cbranch_scc1 %s" % (name, ld(fl), sSPIN, sSPIN, "\n".join(t), name)
        self.cold.append("%s:\ns_mov_b32 %s, 0x40000\ns_cmp_lg_u32 %s, 0\ns_cbranch_scc1 %s_f\n%s\ns_branch %s\n%s\nbuffer_inv sc1\ns_waitcnt vmcnt(0)\ns_branch %s" %
                         (spin, sSPIN, sSLOW, spin, loop(spin + "_n", OPT["pollf"]), back, loop(spin + "_f", "sc1"), back))
        return [("vm", ld(OPT["pollf"]), tag)], [("i", "s_add_u32 s3, %s, %d" % (sNONCE, h)), ("wvm", tag), ("i", t[0]), ("i", t[1]),
                                                ("atom", "%s\ns_or_b64 vcc, vcc, %s\ns_cbranch_scc1 %s\n%s:" % (t[2], sSLOW2, spin, back))]

    def late_check(self, load, reg, mask, tag):
        a = self.a
        spin, back = a.label("lspin"), a.label("lback")
        cmp_, and_ = "v_cmp_ne_u32 vcc, %s, v%d" % (sNONCE, reg), "s_and_b64 vcc, vcc, %s" % mask
        self.cold.append("%s:\ns_mov_b32 %s, 0x40000\n%s_l:\n%s\ns_sub_u32 %s, %s, 1\ns_cbranch_scc1 L_main_done\ns_waitcnt vmcnt(0)\n%s\n%s\ns_cbranch_scc1 %s_l\ns_branch %s"
                         % (spin, sSPIN, spin, load, sSPIN, sSPIN, cmp_, and_, spin, back))
        return [("vm", load, tag)], [("wvm", tag), ("i", cmp_), ("atom", and_ + "\ns_cbranch_scc1 %s\n%s:" % (spin, back))]

    def dma_chunk(self, sbase, goff, loff, n, tag, sc=""):
        sw = {1: sLW, 2: sLW2, 4: sLW4}[n]
        setup = [("set", sTW, "s_add_u32 %s, %s, %d" % (sTW, sbase, goff)), ("set", "m0", "s_add_u32 m0, %s, %d" % (sw, loff))]
        return [setup + [("vm", "buffer_load_dwordx4 v%d, %s, %s offen offset:%d%s lds" % (vL16, WS, sTW, k * 1024, sc), tag if k == n - 1 else None)]
                for k in range(n)]

    def wq_chunk(self, i): return self.dma_chunk(sWQ4 if i < 6 else sWQ, i * 16384, i * 16384, 4 if i < 6 else 1, ("wq", i), " " + OPT["wf"].strip("-"))
    def kept(self): return self.digits("keep")
    def ring(self, ps):
        return [k for k in (2, 3, 4, 5, 6, 7, 8, 9, 0, 1) if ps or k not in self.kept()]
    def wg_slot(self, i, ps): return self.ring(ps)[i % len(self.ring(ps))]
    def wo_chunk(self, i): return self.dma_chunk(sWO, i * 16384, WO_SLOT[i] * 16384, 4, ("wo", i), " " + OPT["wf"].strip("-"))
    def wg_chunk(self, i, ps): return self.dma_chunk(sWG4 if i < 14 else sWG, i * 16384, self.wg_slot(i, ps) * 16384, 4 if i < 14 else 2, ("wg", i), " " + OPT["wf"].strip("-"))

    def reg_loads(self, dsts, bases, offs, stmp, vaddr, tagbase):
        ops, cur = [], None
        for k, (d, sb, off) in enumerate(zip(dsts, bases, offs)):
            if cur is None or cur[0] != sb or not (0 <= off - cur[1] < 4096):
                cur = (sb, off)
            ops.append([("set", stmp, "s_add_u32 %s, %s, %d" % (stmp, sb, cur[1])),
                        ("vm", "buffer_load_dwordx4 %s, v%d, %s, %s offen offset:%d %s" % (d, vaddr, WS, stmp, off - cur[1], OPT["wf" if tagbase[0] == "w" else "actf"].strip("-")), (tagbase, k))])
        return ops

    def touch(self, acc, sbase, off, tmp):
        return [[("i", self.getc(tmp, acc) + "\ns_add_u32 %s, %s, %d" % (sT1, sbase, off)),
                 ("vm", "buffer_load_dword a255, v%d, %s, %s offen sc1" % (tmp, WS, sT1))]]

    def code_touch(self, label, tmp, n=1):
        if not OPT["cpf"]: return []
        return [[("i", "s_add_u32 s15, %s, %s-L_pc+%d" % (sCPO, label, 16384 * k)), ("i", "s_min_u32 s15, s15, L_code_end-L_pc-4"),
                 ("i", "v_mov_b32 v%d, s15" % tmp), ("vm", "global_load_dword a255, v%d, %s" % (tmp, sPC))] for k in range(n)]

    def ln_from_sums(self, s1, s2, t):
        return [("i", x) for x in (
            "v_mul_f32 v%d, 0x3b000000, v%d" % (s1, s1),
            "v_mul_f32 v%d, v%d, v%d" % (t, s1, s1),
            "v_mul_f32 v%d, 0x3b000000, v%d" % (s2, s2),
            "v_sub_f32 v%d, v%d, v%d" % (s2, s2, t),
            "v_max_f32 v%d, 0, v%d" % (s2, s2),
            "v_cvt_pk_bf16_f32 v%d, v%d, v%d" % (s2, s2, s2),
            "v_lshlrev_b32 v%d, 16, v%d" % (s2, s2),
            "v_add_f32 v%d, 0x3727c5ac, v%d" % (s2, s2),
            "v_cvt_pk_bf16_f32 v%d, v%d, v%d" % (s2, s2, s2),
            "v_lshlrev_b32 v%d, 16, v%d" % (s2, s2),
            "v_sqrt_f32 v%d, v%d" % (s2, s2),
            "v_cvt_pk_bf16_f32 v%d, v%d, v%d" % (s2, s2, s2),
            "v_lshlrev_b32 v%d, 16, v%d" % (s2, s2),
            "v_rcp_f32 v%d, v%d" % (s2, s2))]

    def publish(self, xi):
        a = self.a
        S1, S2, S3, S4, AD = 26, 27, 28, 29, 25
        a.I("s_add_u32 %s, %s, %d" % (sTS, sXST, LY.XB[xi]))
        for e in range(2):
            a.vm("buffer_store_dwordx4 %s, v%d, %s, %s offen offset:%d%s" % (vr(XRES + 4 * e, 4), vQ, WS, sTS, e * 2048, " sc1" if xi == 0 else ""))
        for k in range(4):
            for d, p, o in ((S1, XRES + k, sONE), (S2, XRES + k, None), (S3, XRES + 4 + k, sONE), (S4, XRES + 4 + k, None)):
                a.I("v_dot2_f32_bf16 v%d, v%d, %s, %s" % (d, p, o or "v%d" % p, "v%d" % d if k else "0"))
        a.I(self.getc(AD, aST) + "\ns_add_u32 %s, %s, %d" % (sTS, sSST, LY.SB[xi]))
        a.I("v_add_f32 v%d, v%d, v%d\nv_add_f32 v%d, v%d, v%d" % (S1, S1, S3, S2, S2, S4))
        a.I("v_permlane32_swap_b32 v%d, v%d\nv_add_f32 v%d, v%d, v%d\nv_mov_b32 v%d, v%d" % (S1, S2, S1, S1, S2, S2, S1))
        a.I("v_permlane16_swap_b32 v%d, v%d\nv_add_f32 v%d, v%d, v%d" % (S1, S2, S1, S1, S2))
        a.vm("buffer_store_dword v%d, v%d, %s, %s offen" % (S1, AD, WS, sTS), "pub")

    def startup(self):
        a = self.a
        lin = self.lin
        t8, kc, tok, g, hh, t32, u0, u1, rr, cc, q16, vA, vR, vB, vD, TA0, TA1, TD, TG, CSW, XA, XV, FAV, LINE = range(F, F + 24)
        ONES = F + 24
        def put(acc): a.I("v_accvgpr_write_b32 a%d, v%d" % (acc, u1))
        a.I("%s_kernel:" % NAME)
        a.I("s_cmp_ge_u32 s2, 256\ns_cbranch_scc1 L_main_done")
        a.I("s_load_dwordx16 s[64:79], s[0:1], 0\ns_load_dwordx2 s[4:5], s[0:1], 72")
        if OPT["stamps"] or OPT["diagpad"]:
            a.I("s_memrealtime s[98:99]")
        if OPT["stamps"]:
            a.I("s_memtime s[%d:%d]" % (sST, sST + 1))
        a.I("s_getpc_b64 s[56:57]\nL_pc:\ns_lshr_b32 s58, s2, 3\ns_lshl_b32 s58, s58, 11")
        a.I("v_lshrrev_b32 v16, 6, v0\nv_lshrrev_b32 v17, 4, v0\nv_lshlrev_b32 v17, 7, v17\nv_add_u32 v17, s58, v17")
        a.I("v_min_u32 v17, L_code_end-L_pc-4, v17\nv_and_b32 v0, 63, v0\nv_readfirstlane_b32 %s, v16" % sW)
        a.vm("global_load_dword a255, v17, s[56:57]")
        a.I("s_and_b32 %s, s2, 7\ns_bfe_u32 %s, s2, 0x40003\ns_lshr_b32 %s, s2, 7" % (sN, sJ, sP))
        a.I("s_lshr_b32 %s, %s, 3\ns_and_b32 %s, %s, 7" % (sR, sJ, sC, sJ))
        a.I("v_and_b32 v%d, 7, v0\nv_lshrrev_b32 v%d, 3, v0\nv_and_b32 v%d, 15, v0\nv_lshrrev_b32 v%d, 4, v0" % (t8, kc, tok, g))
        cuA, kkA, stA, cuG, kkG, sSG, sSD, kkD = "s28", "s29", "s30", "s32", "s33", "s6", "s7", "s36"
        self.sdivmod(kkA, cuA, "s2", 24)
        a.I("s_sub_u32 %s, s2, 192\ns_lshr_b32 %s, %s, 3" % (sT0, sT0, sT0))
        a.I("s_cmp_lt_u32 s2, 192\ns_cselect_b32 %s, %s, %s\ns_cselect_b32 %s, %s, %s\ns_cselect_b32 %s, 3, 1\ns_lshl_b32 %s, %s, 10" %
            (cuA, cuA, sN, kkA, kkA, sT0, stA, stA, stA))
        a.I("v_lshlrev_b32 v%d, 4, v%d\nv_mad_u32_u24 v%d, v%d, %s, v%d" % (u0, t8, vA, kc, stA, u0))
        a.I("s_lshl_b32 %s, %s, 2\ns_add_u32 %s, %s, %s\ns_lshl_b32 %s, %s, 4\ns_mul_i32 %s, %s, %s" % (sT0, kkA, sT0, sT0, sW, sT0, sT0, sT0, sT0, stA))
        a.I("s_lshl_b32 %s, %s, 7\ns_add_u32 %s, %s, %s\ns_lshl_b32 %s, %s, 3\ns_add_u32 %s, %s, %s\ns_sub_u32 %s, %s, 1024" %
            (sT1, cuA, sT0, sT0, sT1, sT1, stA, sT1, sT1, sT0, sT1, sT1))
        a.I("s_lshl_b32 %s, %s, 11\ns_add_u32 m0, %s, %d" % (sLW2, sW, sLW2, L_FMT))
        a.I("s_lshl_b32 s31, %s, 1\ns_add_u32 s31, s31, %s\ns_lshl_b32 s31, s31, 2\ns_add_u32 s31, s31, %s\ns_lshl_b32 s31, s31, 5" % (sN, sR, sW))
        a.I("s_add_u32 s31, s31, %s\ns_lshl_b32 s31, s31, 3\ns_add_u32 s31, s31, %s\ns_lshl_b32 s31, s31, 7" % (sP, sC))
        a.I("v_lshlrev_b32 v%d, 11, v%d\nv_lshl_add_u32 v%d, v%d, 4, v%d\nv_add_u32 v%d, s31, v%d" % (vR, tok, vR, g, vR, vR, vR))
        a.I("s_waitcnt lgkmcnt(0)")
        a.I("s_load_dword %s, s[4:5], %d" % (sNONCE, LY.EPOCH))
        a.I("s_cmp_lt_u32 s2, 192\ns_cselect_b32 s%d, s66, s68\ns_cselect_b32 s%d, s67, s69\ns_and_b32 s%d, s%d, 0xffff" % (SRC_A, SRC_A + 1, SRC_A + 1, SRC_A + 1))
        a.I("s_lshl_b32 s%d, %s, 9\ns_mov_b32 s%d, 0x20000" % (SRC_A + 2, stA, SRC_A + 3))
        sa = "s[%d:%d]" % (SRC_A, SRC_A + 3)
        a.vm("buffer_load_dwordx4 v%d, %s, %s offen lds" % (vA, sa, sT0))
        a.vm("buffer_load_dwordx4 v%d, %s, %s offen offset:1024 lds" % (vA, sa, sT1), "fa")
        self.srd(12, "s64", "s65", 2048 * 1024)
        a.vm("buffer_load_dwordx4 %s, v%d, %s, 0 offen" % (vr(XRES, 4), vR, XIN))
        a.vm("buffer_load_dwordx4 %s, v%d, %s, 0 offen offset:64" % (vr(XRES + 4, 4), vR, XIN), "x")
        if OPT["stamps"]:
            a.I("v_mov_b32 v%d, 0\nv_writelane_b32 v%d, s98, 62\nv_writelane_b32 v%d, s%d, 0" % (vSTAMP, vSTAMP, vSTAMP, sST))
            self.nstamp = 1
        if OPT["diagpad"]: a.I("s_mov_b32 s14, s98")
        self.stamp("p")
        self.srd(8, "s4", "s5", LY.WS_USED)
        a.I("s_lshl_b32 %s, %s, 1\ns_add_u32 %s, %s, %s" % (sG, sN, sG, sG, sP))
        lin(sFLG, str(LY.FL), [(sG, 256)])
        lin(sFLW, sFLG, [(sJ, 16), (sW, 4)])
        lin(sSST, str(LY.ACT), [(sG, LY.ACT_STRIDE), (sR, 4096), (sC, 8), (sW, 1024)])
        lin(sTS, sSST, [(sC, 120)])
        a.I("s_add_u32 %s, %s, %d\nv_mov_b32 v%d, %s\nv_mov_b32 v%d, %s\nv_cmp_gt_u32 vcc, 32, v0\nv_cndmask_b32 v%d, v%d, v%d, vcc" %
            (sTS, sTS, LY.SB[0], u1, sTS, XA, sFLW, XA, u1, XA))
        a.vm("buffer_load_dword a255, v%d, %s, 0 offen sc1" % (XA, WS))
        self.sdivmod(kkG, cuG, "s2", 28)
        a.I("v_mul_u32_u24 v%d, 3584, v%d\nv_add_u32 v%d, v%d, v%d\nv_lshl_add_u32 v%d, v%d, 10, v%d" % (vB, kc, vB, vB, u0, vD, kc, u0))
        a.I("s_lshr_b32 %s, s2, 3" % kkD)
        lin(sSG, "0", [(kkG, 64 * 3584), (sW, 16 * 3584), (cuG, 128)])
        lin(sSD, "0", [(kkD, 65536), (sW, 16384), (sN, 128)])
        self.srd(SRC_G, "s72", "s73", 512 * 3584)
        self.srd(SRC_U, "s74", "s75", 512 * 3584)
        self.srd(SRC_D, "s76", "s77", 1792 * 1024)
        def b_loads():
            for srdn, so, va, stride, lo in ((SRC_G, sSG, vB, 3584, 8192), (SRC_U, sSG, vB, 3584, 16384), (SRC_D, sSD, vD, 1024, 24576)):
                a.I("s_add_u32 m0, %s, %d\ns_add_u32 %s, %s, %d" % (sLW2, L_FMT + lo, sT0, so, 8 * stride - 1024))
                a.vm("buffer_load_dwordx4 v%d, s[%d:%d], %s offen lds" % (va, srdn, srdn + 3, so))
                a.vm("buffer_load_dwordx4 v%d, s[%d:%d], %s offen offset:1024 lds" % (va, srdn, srdn + 3, sT0), ("fb", lo))
        if OPT["b_pos"] == 0: b_loads()
        self.srd(16, "s78", "s79", 2048 * 1024)
        a.I("v_accvgpr_write_b32 a%d, v%d\nv_lshlrev_b32 v%d, 4, v0" % (aROW, vR, vL16))
        dA, dA2, dCS = "s3", "s0", "s1"
        a.I("s_and_b32 %s, %s, 7\ns_lshl_b32 %s, %s, 1\ns_lshr_b32 %s, %s, 1\ns_add_u32 %s, %s, %s" % (sT0, cuA, sT0, sT0, sT1, sW, sT0, sT0, sT1))
        a.I("s_mul_i32 %s, %s, %d\ns_add_u32 %s, %s, %d" % (sT0, sT0, LY.WQ_STRIDE, sT0, sT0, LY.WQ))
        a.I("s_lshr_b32 %s, %s, 3\ns_lshl_b32 %s, %s, 1\ns_and_b32 %s, %s, 1\ns_add_u32 %s, %s, %s" % (sT1, cuA, sT1, sT1, sT2, sW, sT1, sT1, sT2))
        lin(dA, sT0, [(kkA, 12288), (sT1, 1024)])
        lin(dCS, sT0, [(kkA, 64), (sT1, 512)])
        a.I("s_add_u32 %s, %s, 98304" % (dCS, dCS))
        lin(sT0, str(LY.WO), [(cuA, LY.WO_STRIDE), (kkA, 8192), (sW, 1024)])
        a.I("s_cmp_lt_u32 s2, 192\ns_cselect_b32 %s, %s, %s\ns_cselect_b32 %s, %s, 0x%x\ns_cselect_b32 %s, 6, 4\ns_cselect_b64 vcc, -1, 0" %
            (dA, dA, sT0, dCS, dCS, OOB, dA2))
        a.I("s_lshl_b32 %s, %s, 10\ns_add_u32 %s, %s, %s" % (dA2, dA2, dA2, dA2, dA))
        a.I("v_bfe_u32 v%d, v0, 2, 2\nv_and_b32 v%d, 3, v0\nv_bfe_u32 v%d, v0, 4, 1\nv_lshrrev_b32 v%d, 5, v0\nv_and_b32 v%d, 31, v0" % (rr, cc, q16, hh, t32))
        a.I("v_lshl_add_u32 v%d, v%d, 3, v%d\nv_lshlrev_b32 v%d, 7, v%d\nv_lshl_add_u32 v%d, v%d, 2, v%d\nv_lshlrev_b32 v%d, 7, v%d" % (u0, g, rr, u0, u0, u1, g, rr, u1, u1))
        a.I("s_lshr_b32 %s, %s, 1\ns_lshl_b32 %s, %s, 6\ns_and_b32 %s, %s, 1\ns_lshl_b32 %s, %s, 3\ns_add_u32 %s, %s, %s\ns_add_u32 %s, %s, %d" %
            (sT0, sW, sT0, sT0, sT1, sW, sT1, sT1, sT0, sT0, sT1, sT0, sT0, L_FMT))
        a.I("v_lshl_add_u32 v%d, v%d, 4, %s\nv_add_u32 v%d, v%d, v%d\nv_add_u32 v%d, v%d, v%d" % (TA1, cc, sT0, TD, TA1, u0, u1, u1, TA1))
        a.I("s_lshl_b32 %s, %s, 5\ns_add_u32 %s, %s, %d\nv_lshl_add_u32 v%d, v%d, 3, %s\nv_add_u32 v%d, v%d, v%d" % (sT0, sW, sT0, sT0, L_FMT, TA0, cc, sT0, u0, u0, TA0))
        a.I("v_mov_b32 v%d, v%d" % (TG, u0))
        a.I("v_cndmask_b32 v%d, v%d, v%d, vcc\nv_add_u32 v%d, 512, v%d\nv_add_u32 v%d, 2048, v%d\nv_cndmask_b32 v%d, v%d, v%d, vcc" % (TA0, u1, u0, u0, u0, u1, u1, TA1, u1, u0))
        for k in range(4): a.I("v_mov_b32 v%d, 0x3f803f80" % (ONES + k))
        a.I("v_lshlrev_b32 v%d, 2, v%d\nv_lshl_add_u32 v%d, v%d, 28, v%d" % (CSW, tok, CSW, g, CSW))
        a.I("s_mov_b32 %s, 0\ns_mov_b32 %s, 0x3f803f80" % (sSLOW, sONE))
        a.I("v_cmp_ne_u32 vcc, 0, v0\nv_mov_b32 v%d, 0x%x\nv_lshlrev_b32 v%d, 2, v0\nv_cndmask_b32 v%d, 0, v%d, vcc" % (vF1, OOB, vFL, vF1, vF1))
        a.I("s_lshl_b32 %s, %s, %d\ns_add_u32 %s, %s, 0x%x" % (sGB, sG, LY.ACT_SHIFT, sGB, sGB, LY.ACT))
        lin(sXLD, sGB, [(sW, 32768)])
        a.I("s_lshr_b32 %s, %s, 1\ns_and_b32 %s, %s, 1" % (sT0, sW, sT1, sW))
        lin(sXST, sGB, [(sR, 65536), (sC, 4096), (sT0, 32768), (sT1, 256)])
        lin(sOST, sXLD, [(sJ, 2048)])
        lin(sT0, str(LY.XF), [(sG, 2048)])
        a.I("v_lshl_add_u32 v%d, v%d, 7, %s\nv_lshl_add_u32 v%d, v%d, 30, v%d\nv_accvgpr_write_b32 a%d, v%d" % (XA, tok, sT0, LINE, hh, vFL, aLINE, LINE))
        a.I("v_lshlrev_b32 v%d, 4, v%d\nv_lshl_add_u32 v%d, v%d, 9, v%d" % (u0, tok, vQ, g, u0))
        a.I("v_lshlrev_b32 v%d, 6, v%d\nv_lshl_add_u32 v%d, v%d, 2, v%d\nv_lshl_add_u32 v%d, v%d, 30, v%d" % (u1, tok, u1, hh, u1, u1, q16, u1)); put(aST)
        def die_id():
            lin(sT0, str(LY.XF), [(sG, 2048), (sJ, 128)])
            a.I("s_cmp_eq_u32 %s, 0\ns_cselect_b32 %s, %s, 0x%x\ns_getreg_b32 %s, hwreg(HW_REG_XCC_ID, 0, 4)" % (sW, sT0, sT0, OOB, sT1))
            a.I("s_waitcnt lgkmcnt(0)\ns_add_u32 %s, %s, 0x9e3779b1\ns_xor_b32 %s, %s, %s\nv_mov_b32 v%d, %s" % (sNONCE, sNONCE, sT1, sT1, sNONCE, XV, sT1))
            a.vm("buffer_store_dword v%d, v%d, %s, %s offen sc1" % (XV, LINE, WS, sT0))
            self.stamp("p")
        if OPT["c_early"] < 2: die_id()
        def constants():
            lin(sB3, str(LY.WD), [(sN, LY.WD_STRIDE), (kkD, 8192), (sW, 1024)])
            a.I("s_lshl_b32 %s, %s, 2\ns_add_u32 %s, %s, %s" % (cuG, cuG, cuG, cuG, sW))
            self.sdivmod(sT0, sT1, cuG, 7)
            lin(sB2, str(LY.WG), [(sT0, LY.WG_STRIDE)])
            a.I("s_sub_u32 %s, 6, %s\ns_bitcmp1_b32 %s, 0\ns_cselect_b32 %s, %s, %s" % (sT2, sT1, sT0, sT1, sT1, sT2))
            S0, TL = GS0, 16 - GS0
            lin(sB0, sB2, [(kkG, 28 * 1024), (sT1, 2048)])
            lin(sB2, sB2, [(sT1, (2 * TL + 1) * 1024)])
            lin(sT0, sB2, [(kkG, 4096)])
            a.I("s_add_u32 %s, %s, %d\ns_cmp_lt_u32 %s, %d\ns_cselect_b32 %s, %s, %s\ns_cselect_b32 %s, 14, 2\ns_lshl_b32 %s, %s, 10" %
                (sT0, sT0, 12 * S0 * 1024, kkG, S0 // 2, sB0, sB0, sT0, sB1, sB1, sB1))
            lin(sB2, sB2, [(kkG, 64)])
            a.I("s_add_u32 %s, %s, %d" % (sB2, sB2, (14 * S0 + 2 * TL) * 1024))
            a.I("s_cmp_lt_u32 s2, 224")
            for r_ in (sB0, sB2, sB3): a.I("s_cselect_b32 %s, %s, 0x%x" % (r_, r_, OOB))
            lin(sHFL, str(LY.HFL), [(sG, 1024)])
            lin(sHDFL, sHFL, [(sC, 128)])
            lin(sFBO, str(LY.FA), [("s2", 128)])
            a.I("s_add_u32 %s, %s, 2048\ns_add_u32 %s, %s, 0x%x" % (sHDFL, sHDFL, sHDST, sGB, 2 * LY.ACT_STRIDE))
            a.I("s_cmp_eq_u32 %s, 0\ns_cselect_b32 %s, %s, 0x%x" % (sW, sFBO, sFBO, OOB))
            a.I("s_lshl_b32 %s, %s, 2\ns_add_u32 %s, %s, %s\ns_cmp_eq_u32 %s, 7\ns_cselect_b32 %s, 0, %s\ns_cmp_eq_u32 %s, 7" % (sT0, sR, sT0, sT0, sW, sN, sT0, sT0, sT0))
            a.I("s_cselect_b32 %s, %s, 0x%x" % (sHDST, sHDST, OOB))
            a.I("v_lshlrev_b32 v%d, 4, v%d\nv_lshl_add_u32 v%d, v%d, 7, v%d\nv_add_u32 v%d, %d, v%d" % (u0, t8, u0, g, u0, u1, L_HALO, u0)); put(aHX)
            a.I("s_lshl_b32 %s, %s, 10\nv_add3_u32 v%d, v%d, v%d, %s" % (sT0, sC, u1, u0, vA, sT0)); put(aHST)
            if "c" not in OPT["order"]: constants2()
        def constants2():
            if OPT["c_early"] == 2: die_id()
            a.I("s_lshr_b32 %s, s2, 3\ns_lshl_b32 %s, %s, 2\ns_add_u32 %s, %s, %s\ns_lshl_b32 %s, %s, 7" % (sCPO, sCPO, sCPO, sCPO, sCPO, sW, sCPO, sCPO))
            lin(sHST, sGB, [(sW, 114688), (sJ, 7168)])
            lin(sSLD, sGB, [(sW, 2048)])
            lin(sOL, sXST, [(sC, -4096)])
            a.I("s_bitcmp1_b32 %s, 0\ns_cselect_b32 %s, 1, -1\ns_cselect_b32 %s, 0, 6144\ns_lshl_b32 %s, %s, 10\ns_add_u32 %s, %s, %s" % (sJ, sHSTEP, sT0, sHSTEP, sHSTEP, sHST, sHST, sT0))
            a.I("s_lshr_b32 %s, %s, 1\ns_lshl_b32 %s, %s, 1\ns_add_u32 %s, %s, %s\ns_lshl_b32 s66, 0x11111111, %s\ns_mov_b32 s67, s66" % (sT0, sW, sT1, sR, sT0, sT0, sT1, sT0))
            lin(sHLD[3], sGB, [(sR, 229376), (sW, 28672)])
            for i in range(4):
                a.I("s_add_u32 %s, %s, %d\ns_and_b32 %s, %s, 3\ns_lshr_b32 %s, %s, 1\ns_and_b32 %s, %s, 1" % (sTA, sW, i + 1, sTA, sTA, sT0, sTA, sT1, sTA))
                lin(sHLD[i], sHLD[3], [(sT0, 114688), (sT1, 256)])
                if i < 3: lin(sXW[i], str(i * 4096), [(sTA, 12288)])
            lin(sXR, "0", [(sW, 12288)])
            lin(sWQ, str(LY.WQ), [(sJ, LY.WQ_STRIDE * (1 - OPT["hitw"]))])
            lin(sWG, str(LY.WG), [(sJ, LY.WG_STRIDE * (1 - OPT["hitw"]))])
            lin(sWO, str(LY.WO), [(sC, LY.WO_STRIDE * (1 - OPT["hitw"])), (sW, 4096)])
            lin(sWD, str(LY.WD), [(sC, LY.WD_STRIDE * (1 - OPT["hitw"])), (sW, 57344)])
            lin(sTAB, str(L_TAB), [(sW, 512)])
            a.I("s_lshl_b32 %s, %s, 10\ns_lshl_b32 %s, %s, 12\ns_add_u32 %s, %s, %s\ns_add_u32 %s, %s, %s" % (sLW, sW, sLW4, sW, sWQ4, sWQ, sLW4, sWG4, sWG, sLW4))
            a.I("s_cmp_eq_u32 %s, 0\ns_cselect_b32 %s, 0x%x, %s\ns_cselect_b32 s54, 0, 0xff\ns_mov_b32 s55, 0" % (sN, sHALO, OOB, sGB))
            a.I("s_add_u32 %s, %s, %s\ns_add_u32 %s, %s, %s\ns_add_u32 %s, %s, %s" % (sHALO2, sHALO, sLW2, sWQ, sWQ, sLW, sWG, sWG, sLW2))
            a.I("s_lshr_b32 %s, %s, 1\ns_lshl_b32 %s, %s, 5\ns_and_b32 %s, %s, 1\ns_lshl_b32 %s, %s, 1\ns_add_u32 %s, %s, %s" % (sT0, sW, sT0, sT0, sT1, sW, sT1, sT1, sT0, sT0, sT1))
            a.I("s_mov_b32 s40, 0x33333333\ns_mov_b32 s41, 0\ns_lshl_b64 s[40:41], s[40:41], %s" % sT0)
            a.I("s_lshl_b32 %s, %s, 1\ns_lshl_b32 %s, %s, 4\ns_add_u32 %s, %s, %s" % (sT0, sR, sT2, sW, sT0, sT0, sT2))
            a.I("s_mov_b32 s42, 0x3333\ns_mov_b32 s43, 0\ns_lshl_b64 s[42:43], s[42:43], %s" % sT0)
            a.I("v_add_u32 v%d, 0x10000, v%d\nv_add_u32 v%d, 0x20000, v%d" % (vL16b, vL16, vL16c, vL16))
            a.I("v_lshlrev_b32 v%d, 4, v%d\nv_lshl_add_u32 v%d, v%d, 6, v%d" % (u0, g, u1, tok, u0)); put(aSQ)
            a.I("v_lshl_add_u32 v%d, v%d, 6, v%d" % (u1, t8, u0)); put(aSH)
            a.I("v_lshlrev_b32 v%d, 7, v%d" % (u1, tok)); put(aTO)
            a.I("v_lshlrev_b32 v%d, 7, v%d\nv_lshl_add_u32 v%d, v%d, 5, v%d\nv_lshl_add_u32 v%d, v%d, 1, v%d\nv_lshlrev_b32 v%d, 3, v0" % (u0, rr, u0, g, u0, u0, cc, u0, u1))
            a.I("s_cmp_ge_u32 %s, 2\ns_cselect_b64 vcc, -1, 0\ns_cselect_b32 %s, 2, 8\nv_cndmask_b32 v%d, v%d, v%d, vcc" % (sW, sT1, u1, u0, u1))
            a.I("s_lshr_b32 %s, %s, 1\ns_add_u32 %s, %s, %d\nv_add_u32 v%d, %s, v%d" % (sT0, sLW, sT0, sT0, L_KV, u1, sT0, u1)); put(aHWR)
            a.I("v_mov_b32 v%d, %s" % (u1, sT1)); put(aHWS)
            a.I("v_min_u32 v%d, 6, v%d\ns_mul_i32 %s, %s, 7\nv_add_u32 v%d, %s, v%d" % (t32, t8, sT0, sW, t32, sT0, t32))
            a.I("s_lshl_b32 %s, %s, 1\nv_and_or_b32 v%d, v0, 1, %s" % (sT0, sW, t8, sT0))
            a.I("s_lshr_b32 %s, %s, 1\nv_mul_u32_u24 v%d, 24, v%d\nv_lshl_add_u32 v%d, v%d, 3, v%d\nv_add_u32 v%d, %s, v%d" % (sT0, sJ, u0, t8, u0, kc, u0, u0, sT0, u0))
            a.I("s_add_u32 %s, %s, 192\nv_lshl_add_u32 v%d, v%d, 3, %s\nv_cmp_gt_u32 vcc, 24, v0\nv_cndmask_b32 v%d, v%d, v%d, vcc" % (sT0, sC, u1, t8, sT0, u0, u1, u0))
            a.I("v_lshlrev_b32 v%d, 7, v%d\nv_add_u32 v%d, %d, v%d" % (u0, u0, FAV, LY.FA, u0))
            a.I("s_mul_i32 %s, %s, 7\ns_add_u32 %s, %s, 6\ns_lshr_b32 %s, %s, 2\ns_lshr_b32 %s, %s, 2" % (sT0, sJ, sT1, sT0, sT0, sT0, sT1, sT1))
            a.I("v_add_u32 v%d, %s, v%d\nv_min_u32 v%d, %s, v%d\nv_mad_u32_u24 v%d, v%d, 28, v%d" % (u0, sT0, kc, u0, sT1, u0, u0, t8, u0))
            a.I("v_lshl_add_u32 v%d, v%d, 3, %s\nv_cmp_gt_u32 vcc, 32, v0\nv_cndmask_b32 v%d, v%d, v%d, vcc" % (u1, t32, sC, u0, u1, u0))
            a.I("v_lshlrev_b32 v%d, 7, v%d\nv_add_u32 v%d, %d, v%d" % (u0, u0, u1, LY.FB, u0)); put(aFB)
            if OPT["c_early"] == 3: die_id()
            a.I("s_getpc_b64 %s\nL_pc2:\ns_sub_u32 s4, s4, L_pc2-L_pc\ns_subb_u32 s5, s5, 0" % sPC)
            NG, Z, M0_, M1_ = rr, cc, q16, hh
            a.I("s_or_b32 %s, %s, %s\ns_cmp_eq_u32 %s, 0\ns_cselect_b64 s[56:57], -1, 0" % (sT0, sN, sW, sT0))
            a.I("v_mov_b32 v%d, %s\nv_mov_b32 v%d, 0\nv_lshlrev_b32 v%d, 2, v%d\nv_sub_u32 v%d, v%d, v%d" % (NG, NEG, Z, vA, g, vA, tok, vA))
            for r in range(4):
                a.I("v_subrev_u32 v%d, %d, v%d\nv_mov_b32 v%d, %s" % (u0, r, vA, M0_, "0xffff0000" if r & 1 else "0xffff"))
                a.I("v_cmp_gt_u32 vcc, 8, v%d\nv_cmp_gt_i32 s[58:59], -8, v%d\nv_cmp_le_i32 s[60:61], 0, v%d" % (u0, u0, u0))
                a.I("v_cndmask_b32 v%d, v%d, v%d, vcc" % (u1, NG, Z)); put(aBC + r)
                a.I("v_cndmask_b32 v%d, v%d, v%d, s[58:59]" % (u1, NG, Z)); put(aBP + r)
                a.I("v_cndmask_b32 v%d, v%d, v%d, s[56:57]" % (u1, u1, NG)); put(aBP0 + r)
                if r & 1:
                    a.I("v_cndmask_b32 v%d, v%d, v%d, s[60:61]\nv_or_b32 v%d, v%d, v%d" % (u1, Z, M0_, u1, u1, M1_)); put(aMC + r // 2)
                else:
                    a.I("v_cndmask_b32 v%d, v%d, v%d, s[60:61]" % (M1_, Z, M0_))
        a.I("v_bfe_u32 v%d, v0, 3, 1\nv_xor_b32 v%d, 1, v%d\nv_lshlrev_b32 v%d, 29, v%d" % (vA, vA, vA, vA, vA))
        a.I("s_lshl_b32 %s, %s, 3\ns_add_u32 %s, %s, %d\nv_add3_u32 v%d, v%d, v%d, %s" % (sT0, sC, sT0, sT0, 8192 - 512, u1, u1, vA, sT0)); put(aHSS)
        if OPT["c_early"]: constants()
        self.stamp("p")
        if OPT["b_pos"] == -1: b_loads()
        a.vm_wait("fa")
        a.I("s_barrier")
        for sp in range(2):
            for half in range(2):
                a.ds("ds_read_b64_tr_b16 %s, v%d offset:%d" % (vr(ACC + 4 * sp + 2 * half, 2), (TA0, TA1)[half], sp * 4096), ("t", sp))
        self.stamp("p")
        for sp in range(2):
            a.ds_wait(("t", sp))
            a.vm("buffer_store_dwordx4 %s, v%d, %s, %s offen sc1" % (vr(ACC + 4 * sp, 4), vL16, WS, (dA, dA2)[sp]))
            a.I("v_mfma_f32_16x16x32_bf16 %s, %s, %s, %s" % (vr(ACC + 8, 4), vr(ONES, 4), vr(ACC + 4 * sp, 4), vr(ACC + 8, 4) if sp else "0"))
        a.I("\n".join(self.hi_lo(ACC + 12, ACC + 8, ACC + 13)))
        a.vm("buffer_store_dword v%d, v%d, %s, %s offen sc1" % (ACC + 12, CSW, WS, dCS), "fas")
        if OPT["b_pos"] == -2: b_loads()
        a.vm_wait("x")
        self.publish(0)
        xload = "buffer_load_dword v31, v%d, %s, 0 offen sc1" % (XA, WS)
        a.vm(xload, "xf")
        if OPT["b_pos"] == 1: b_loads()
        self.stamp("p")
        if not OPT["c_early"]: constants()
        def second_unit():
            G, D, CS = X + 96, X + 112, ACC + 48
            out = []
            def store(ops):
                if OPT["b_spread"] and "b" not in OPT["order"]: out.append(ops)
                else: a.run_all(ops)
            if "b" in OPT["order"]:
                a.vm_wait(("fb", 24576))
                a.I("s_barrier")
            for n_ in range(4):
                for half in range(2):
                    a.ds("ds_read_b64_tr_b16 %s, v%d offset:%d" % (vr(G + 4 * n_ + 2 * half, 2), TG, 8192 * (1 + n_ % 2) + (32 * (n_ // 2) + 4 * half) * 128), ("tg", n_))
            for sp in range(2):
                for half in range(2):
                    a.ds("ds_read_b64_tr_b16 %s, v%d offset:%d" % (vr(D + 4 * sp + 2 * half, 2), TD, 24576 + (32 * sp + 4 * half) * 128), ("td", sp))
            for n_ in range(4):
                a.ds_wait(("tg", n_))
                store(([("i", "s_add_u32 %s, %s, %s" % (sB0, sB0, sB1))] if n_ == 2 else []) +
                      [("vm", "buffer_store_dwordx4 %s, v%d, %s, %s offen offset:%d sc1" % (vr(G + 4 * n_, 4), vL16, WS, sB0, (n_ % 2) * 1024))])
                c_ = vr(CS + 4 * (n_ % 2), 4)
                a.I("v_mfma_f32_16x16x32_bf16 %s, %s, %s, %s" % (c_, vr(ONES, 4), vr(G + 4 * n_, 4), c_ if n_ >= 2 else "0"))
            for sp in range(2):
                a.ds_wait(("td", sp))
                store(([("i", "s_add_u32 %s, %s, 4096" % (sB3, sB3))] if sp else []) +
                      [("vm", "buffer_store_dwordx4 %s, v%d, %s, %s offen sc1" % (vr(D + 4 * sp, 4), vL16, WS, sB3))])
            a.I("v_cmp_gt_u32 vcc, 16, v0\nv_bfe_u32 v%d, v0, 4, 1\nv_mul_u32_u24 v%d, 448, v%d\nv_add_u32 v%d, v%d, v%d\nv_cndmask_b32 v%d, v%d, v%d, vcc" %
                (D + 9, D + 9, D + 9, D + 9, D + 9, LINE, CS, CS + 4, CS))
            a.I("\n".join(self.hi_lo(D + 8, CS, CS + 1)))
            store([("vm", "buffer_store_dword v%d, v%d, %s, %s offen sc1" % (D + 8, D + 9, WS, sB2), "fbs")])
            self.stamp("p")
            return out
        def first_flags():
            a.I("v_mov_b32 v30, %s" % sNONCE)
            a.vm_wait("fas")
            a.I("s_barrier")
            a.vm("buffer_store_dword v30, v%d, %s, %s offen sc1" % (LINE, WS, sFBO))
            a.I("s_add_u32 %s, %s, %d" % (sFBO, sFBO, LY.FB - LY.FA))
            self.stamp("p")
        def own_flags():
            spin, back = a.label("xspin"), a.label("xback")
            test = "v_xor_b32 v29, %s, v31\nv_cmp_lt_u32 vcc, 15, v29\ns_and_b64 vcc, vcc, exec" % sNONCE
            a.vm_wait("xf")
            a.I("%s\ns_cbranch_scc1 %s\n%s:" % (test, spin, back))
            self.cold.append("%s:\ns_mov_b32 %s, 0x40000\n%s_l:\n%s\ns_sub_u32 %s, %s, 1\ns_cbranch_scc1 L_main_done\ns_waitcnt vmcnt(0)\n%s\ns_cbranch_scc1 %s_l\ns_branch %s"
                             % (spin, sSPIN, spin, xload, sSPIN, sSPIN, test, spin, back))
            a.I("v_cmp_ne_u32 vcc, v%d, v31\ns_cmp_lg_u64 vcc, 0\ns_cselect_b32 %s, 1, 0\ns_mov_b32 s0, %s\ns_mov_b32 s1, 0" % (XV, sSLOW, sSLOW))
            self.signal(0, "pub", 0)
            self.stamp("p")
        for step in OPT["order"]:
            {"b": second_unit, "a": first_flags, "o": own_flags, "c": constants2}[step]()
        self.stamp("p")
        if "b" in OPT["order"]:
            a.vm_wait("fbs")
            a.I("s_barrier")
            a.vm("buffer_store_dword v30, v%d, %s, %s offen sc1" % (LINE, WS, sFBO))
        elif OPT["predrain"]:
            a.vm_drain()
        self.stamp("p")
        self.second_unit, self.b_loads = second_unit, b_loads
        self.fav = FAV

    def qkv(self, ps):
        a = self.a
        xi = 2 * ps
        late = self.wq_late(ps)
        lateb = ps == 0 and "b" not in OPT["order"]
        bst = []
        wql = [g for ch in late for g in self.wq_chunk(ch)]
        split = ps == 0 and OPT["q0_split"]
        HX, HW, HW2, HF, NM, RL, CQ, RR = 16, 17, 18, 19, 20, 26, 28, ACC + 52
        def setup():
            a.I(self.getc(30, aSQ) + "\n" + self.getc(31, aSH) + "\n" + self.getc(HX, aHX))
            a.I("s_add_u32 %s, %s, 2048\nv_add_u32 v%d, %s, v%d\nv_add_u32 v%d, 0xc000, v%d\nv_lshlrev_b32 v%d, 7, v0" % (sT2, sLW, HW, sT2, vL16, HW2, HW, CQ))
        self.poll(6 * ps, sMA, self.fav if ps == 0 and not split else None, setup)
        self.stamp()
        xl = self.reg_loads([vr(X + 8 * s + 4 * b, 4) for s in range(16) for b in range(2)], [sXLD] * 32,
                            [LY.XB[xi] + s * 2048 + b * 256 for s in range(16) for b in range(2)], sTA, vQ, "x")
        UP = OPT["q_up"] if ps else OPT["q0_up"]
        if ps == 0:
            late = late[1:]
            n = 4 + OPT["q0_w"]
            first = wql[:4] + xl[:UP] + wql[4:n]
            if split:
                l_fa, g_fa = self.late_check("buffer_load_dword v%d, v%d, %s, 0 offen sc1" % (HF, self.fav, WS), HF, "exec", "fa")
                n1 = OPT["q0_n1"]
                first = xl[:n1] + [l_fa] + xl[n1:UP] + [g_fa + [("i", "s_barrier")]] + wql[:n]
            else:
                first = xl[:2] + [[("i", "s_barrier")]] + wql[:4] + xl[2:UP] + wql[4:n]
            wql = wql[n:]
            if OPT["b_pos"] >= 2:
                k = OPT["b_pos"] - 2
                a.run_all(self.flat(first[:k])); first = first[k:]
                self.b_loads(); a.state.pop("m0", None)
            if lateb:
                k = len(first) - OPT["q0_b"]
                a.run_all(self.flat(first[:k])); first = first[k:]
                if OPT["b_pos"] >= 2: a.vm_wait(("fb", 24576))
                a.I("s_barrier")
                bst = self.second_unit()
            a.run_all(self.flat(first))
        else:
            a.run_all(self.flat(xl[:UP]))
        if ps == 0:
            a.vm_wait(("wq", 0))
        a.I("s_barrier")
        sl = Slots()
        sl.mpatience, sl.patience = OPT["q_mp%d" % ps], OPT["q_vp"]
        use = {}
        acc = lambda blk, b: vr(ACC + 8 * blk + 4 * b, 4)
        hbuf = lambda t: (F + 24, X)[t % 2]
        step0 = {}
        H0 = OPT["q_h0"]
        hpos = {}
        for t in range(16):
            p = (t * 6 * (16 - H0)) // 16 + 1
            hpos.setdefault((H0 + p // 6, p % 6), []).append(t)
        Y, Z = X + 8, X + 96
        BC, BP, BP0, MC, ONES, KW, CSA = Y, Y + 4, Y + 8, Y + 12, Y + 14, Y + 16, Y + 21
        def halo_mfma(t):
            d = acc(6, 0)
            if t < 16:
                i = sl.add("v_mfma_f32_16x16x32_bf16 %s, %s, %s, %s" % (d, vr(hbuf(t) + 4, 4), vr(hbuf(t), 4), "0" if t == 0 else d), [("wds", ("hx", t))])
            else:
                i = sl.add("v_mfma_f32_16x16x16_bf16 %s, %s, %s, %s" % (d, vr(NM + 4, 2), vr(hbuf(t), 2), d), [("wds", ("hw", t))])
            use[("h", t)] = i
        for s in range(17):
            step0[s] = sl.n()
            if s == 16: halo_mfma(16)
            for f in range(6):
                for b in range(2):
                    pre_ = []
                    if b == 0: pre_.append(("wds", ("f", s, f // OPT["q_grp"] * OPT["q_grp"] + OPT["q_grp"] - 1)))
                    if f == 0 and s < 16: pre_.append(("wvm", ("x", 2 * s + (b if s == 0 else 1))))
                    w = vr(F + 4 * f, 4 if s < 16 else 2)
                    x = vr(X + 8 * s + 4 * b, 4) if s < 16 else vr(NM + 2 * b, 2)
                    A, B = (w, x) if f < 4 else (x, w)
                    d = acc(f, b)
                    mn = "v_mfma_f32_16x16x32_bf16" if s < 16 else "v_mfma_f32_16x16x16_bf16"
                    use[(s, f)] = sl.add("%s %s, %s, %s, %s" % (mn, d, A, B, "0" if s == 0 else d), pre_)
                for t in hpos.get((s, f), ()): halo_mfma(t)
        reads = []
        for s in range(17):
            for f in range(6):
                d = F + 4 * f
                if s < 16: t = "ds_read_b128 %s, %s" % (vr(d, 4), ldsaddr(s * 6144 + f * 1024))
                else: t = "ds_read2st64_b32 %s, v%d offset0:%d offset1:%d" % (vr(d, 2), CSA, 2 * f, 2 * f + 1)
                reads.append((use[(s - 1, f)] if s else -1, (6 * s + f) // 16, ("ds", t, ("f", s, f))))
        hbar = step0[H0 - 1] + 4
        for t in range(17):
            pos = use[("h", t - 2)] if t >= 2 else hbar + 2 + 2 * t
            if t < 16:
                reads.append((pos, (6 * t + 5) // 16, ("ds", "ds_read_b128 %s, v%d offset:%d" % (vr(hbuf(t), 4), HW if t < 8 else HW2, (t % 8) * 6144), ("hw", t))))
                reads.append((pos + (1 if t >= 2 else 0), 0, ("ds", "ds_read_b128 %s, v%d offset:%d" % (vr(hbuf(t) + 4, 4), HX, t * 512), ("hx", t))))
            else:
                reads.append((pos, 6, ("ds", "ds_read2st64_b32 %s, v%d offset0:4 offset1:5" % (vr(hbuf(t), 2), CSA + 1), ("hw", t))))
        sl.put("c", step0[4], [("i", "v_add_u32 v%d, 98304, v%d\ns_lshr_b32 %s, %s, 1\nv_add_u32 v%d, %s, v%d" % (CSA, vFL, sT2, sLW, CSA + 1, sT2, CSA)), ("mark", "csaddr")])
        sl.after(step0[14], ("need", "csaddr"))
        sl.pre[step0[16]].append(("wds", ("nm", 2)))
        chbar = {}
        for ch in late:
            ops = [("wvm", ("wq", ch)), ("i", "s_barrier")]
            p = chbar[ch] = min(p for p, c, _ in reads if c == ch)
            if lateb and ch == OPT["q0_fbch"]:
                ops.insert(0, ("wvm", "fbs"))
                assert p >= step0[5]
                sl.put("f", p + 1, [("i", "v_mov_b32 v%d, %s\n%s" % (X + 32, sNONCE, self.getc(X + 33, aLINE))),
                                    ("vm", "buffer_store_dword v%d, v%d, %s, %s offen sc1" % (X + 32, X + 33, WS, sFBO))])
            sl.after(p, *ops)
        sl.after(hbar, ("wvm", "halo"), ("i", "s_barrier"))
        for pos, _, rd in reads:
            if pos < 0: a.run(rd)
            else: sl.after(pos, rd)
        l_hf, g_chk = self.late_check("buffer_load_dword v%d, v%d, %s, %s offen sc1" % (HF, CQ, WS, sT1), HF, sMH, "hf")
        g_hf = [("i", "v_and_b32 v%d, 0x380, v%d\ns_add_u32 %s, %s, %d" % (CQ, CQ, sT1, sHFL, ps * 16384))] + l_hf
        g_hd = self.dma_chunk(sHALO2, LY.HX[ps], L_HALO, 2, "halo", " sc1")
        g_hs = [("i", "s_add_u32 %s, %s, %d" % (sT1, sHALO, LY.HX[ps] + 8192)),
                ("vm", "buffer_load_dwordx4 %s, v31, %s, %s offen sc1" % (vr(RR + 8, 4), WS, sT1), "st")]
        g_s0 = [("i", "s_add_u32 %s, %s, %d" % (sT0, sSLD, LY.SB[xi])), ("vm", "buffer_load_dwordx4 %s, v30, %s, %s offen sc1" % (vr(RR, 4), WS, sT0))]
        g_s1 = [("vm", "buffer_load_dwordx4 %s, v30, %s, %s offen offset:1024 sc1" % (vr(RR + 4, 4), WS, sT0))]
        wbar = max(use[("h", 6)] + 2, step0[OPT["q_wbar"]])
        while sl.post[wbar]: wbar += 1
        sl.after(wbar, ("i", "s_barrier"))
        wo = [(0 if i < 2 else wbar + 2, g) for i in range(4) for g in self.wo_chunk(i)]
        rest = xl[UP:]
        h1 = OPT["q_hf"] if ps else OPT["q0_hf"]
        h2 = h1 + OPT["q_chk"] - 2
        seq = rest[:h1] + [g_hf, g_s0, g_s1] + rest[h1:h2] + [g_chk] + g_hd + [g_hs] + rest[h2:]
        if wql:
            due, d = [], sl.n()
            for g in reversed(seq):
                tag = g[-1][2] if len(g[-1]) > 2 else None
                if isinstance(tag, tuple) and tag[0] == "x": d = step0[tag[1] // 2]
                due.append((d, g))
            due.reverse()
            d, wdue = 0, []
            for g in reversed(wql):
                if g[-1][2] is not None: d = chbar[g[-1][2][1]] - OPT["q0_lead"]
                wdue.append((d, g)); d -= 6
            seq = [g for _, g in sorted(due + wdue[::-1], key=lambda t: t[0])]
        for n_, g in enumerate(bst):
            k = OPT["b_first"] + n_ * (OPT["b_gap"] + 1)
            assert not any(op[0] == "vm" and len(op) > 2 and isinstance(op[2], tuple) and op[2][0] == "x" and op[2][1] >= 24 for g2 in seq[:k] for op in g2)
            seq.insert(k, g)
        if ps == 0:
            if OPT["otouch"]: seq += self.touch(aTO, sOST, LY.OB[ps], CQ)
            l_fb, g_fb = self.late_check("%s\nbuffer_load_dword v%d, v%d, %s, 0 offen sc1" % (self.getc(Y + 23, aFB), Y + 23, Y + 23, WS), Y + 23, "exec", "fb")
            l_fb = [("i", l_fb[0][1].split("\n")[0]), ("vm", l_fb[0][1].split("\n")[1], "fb")]
            seq += [g + (OPT["q0_tail"] / 10,) for g in wo]
            sl.put("f", step0[OPT["q0_fbs"]], l_fb)
        else:
            seq += wo
        sl.put("g", step0[12], self.flat(self.code_touch("L_wo%d" % ps, CQ + 1)))
        left = sl.pace(seq, 0, (OPT["q_every"] if ps else OPT["q0_every"]) / 10)
        A0, A1, AH = RR, RR + 4, RR + 8
        st = [[("wvm", "st")]]
        for r_ in (A0, A1, AH):
            st.append([("i", "v_add_f32 v%d, v%d, v%d" % (r_, r_, r_ + 2))])
            st.append([("i", "v_add_f32 v%d, v%d, v%d" % (r_ + 1, r_ + 1, r_ + 3))])
        for o in (0, 1): st.append([("i", "v_mov_b32 v%d, v%d" % (AH + 2 + o, AH + o))])
        for o in (0, 1): st.append([("i", "v_permlane32_swap_b32 v%d, v%d" % (A0 + o, A1 + o))])
        for o in (0, 1): st.append([("i", "v_permlane32_swap_b32 v%d, v%d" % (AH + o, AH + 2 + o))])
        for o in (0, 1): st.append([("i", "v_add_f32 v%d, v%d, v%d" % (A0 + o, A0 + o, A1 + o))])
        for o in (0, 1): st.append([("i", "v_add_f32 v%d, v%d, v%d" % (AH + o, AH + o, AH + 2 + o))])
        for o in (0, 1): st.append([("i", "v_permlane16_swap_b32 v%d, v%d" % (A0 + o, AH + o))])
        for o in (0, 1): st.append([("i", "v_add_f32 v%d, v%d, v%d" % (A0 + o, A0 + o, AH + o))])
        st += [[op] for op in self.ln_from_sums(A0, A0 + 1, A0 + 2)]
        st.append([("i", "v_cvt_pk_bf16_f32 v%d, -v%d, -v%d" % (A0, A0, A0))])
        st.append([("i", "v_add_u32 v%d, %s, v%d" % (HF, sTAB, vFL))])
        st.append([("i", "v_and_or_b32 v30, v%d, 63, %s" % (vFL, sTAB))])
        st.append([("i", "v_and_or_b32 v31, v0, 48, %s" % sTAB)])
        st.append([("ds", "ds_write2st64_b32 v%d, v%d, v%d offset0:0 offset1:1" % (HF, A0 + 1, A0))])
        row = {0: 0, 1: 2, 2: 1}
        for b in range(3):
            o = 64 + row[b] * 16
            st.append([("ds", "ds_read2_b32 %s, v30 offset0:%d offset1:%d" % (vr(NM + 2 * b, 2), o, o), ("nm", b))])
        st.append([("ds", "ds_read2_b32 %s, v30 offset0:0 offset1:32" % vr(RL, 2))])
        for b in range(3):
            st.append([("ds", "ds_read_b128 %s, v31 offset:%d" % (vr(RR + 4 * b, 4), row[b] * 64), ("tab", b))])
        sl.spread(st, step0[H0] - OPT["q_st"], step0[14])
        cst = [[("i", self.getc(Y + k, aBC + k))] for k in range(14)]
        cst += [[("i", "v_mov_b32 v%d, %s" % (ONES + k, sONE))] for k in range(2)]
        cst += [[("i", self.getc(KW, aHWR))], [("i", self.getc(KW + 3, aHWS))], [("i", "s_add_u32 %s, %s, %d" % (sT2, sLW2, L_KV))],
                [("i", "v_add_u32 v%d, v%d, v%d" % (KW + 1, KW, KW + 3))], [("i", "v_lshl_add_u32 v%d, v0, 3, %s" % (KW + 4, sT2))],
                [("i", "v_add_u32 v%d, v%d, v%d" % (KW + 2, KW + 1, KW + 3))], [("i", "v_add_u32 v%d, v%d, v%d" % (KW + 3, KW + 2, KW + 3))]]
        sl.spread(cst, step0[4] + 2, step0[8], "c")
        Qp = lambda b, h: Z + 4 * h + 2 * b
        Kp = lambda b, h: Z + 8 + 6 * h + 2 * (b + 1)
        Vp = lambda b, h: Z + 20 + 6 * h + 2 * (b + 1)
        HP, HA = HX, ACC + 48
        ar_ = lambda blk, b: ACC + 8 * blk + 4 * b
        cvt = lambda d, s_: "v_cvt_pk_bf16_f32 v%d, v%d, v%d" % (d, s_, s_ + 1)
        tl = [("wds", ("tab", 2)), ("i", "v_mul_f32 v%d, 0x3eb8aa3b, v%d\nv_mul_f32 v%d, 0x3eb8aa3b, v%d" % (CQ, RL, CQ + 1, RL + 1))]
        tl += [("i", "v_mul_f32 v%d, v%d, v%d" % (HA + r, HA + r, RR + 8 + r)) for r in range(4)]
        tl += [("i", cvt(HP, HA)), ("i", cvt(HP + 1, HA + 2))]
        hw = [("ds", "ds_write_b16%s v%d, v%d" % ("_d16_hi" if r & 1 else "", KW + r, HP + r // 2)) for r in range(4)]
        qs = [(h, b) for h in range(2) for b in range(2)]
        sl.put("v", step0[16], tl)
        for n_, (h, b) in enumerate(qs):
            sl.put("v", use[(16, h)], [hw[n_], ("i", cvt(Qp(b, h), ar_(h, b))), ("i", cvt(Qp(b, h) + 1, ar_(h, b) + 2))])
        self.lite(sl, "q", [step0[s] for s in (0, 2, 4, 6, 8, 10, 12, 14)])
        self.report("qkv%d" % ps, sl.emit(a))
        self.stamp()
        body = []
        e = lambda t: body.extend(("i", x) for x in t.split("\n"))
        def pack(dst, src): e(cvt(dst, src) + "\n" + cvt(dst + 1, src + 2))
        def scale_l(src, b):
            for k in range(2): e("v_pk_mul_f32 %s, %s, %s op_sel:[0,%d] op_sel_hi:[1,%d]" % (vr(src + 2 * k, 2), vr(src + 2 * k, 2), vr(RL, 2), b, b))
        def scale_r(src, r0):
            for k in range(2): e("v_pk_mul_f32 %s, %s, %s" % (vr(src + 2 * k, 2), vr(src + 2 * k, 2), vr(r0 + 2 * k, 2)))
        kvw = lambda src, part: body.append(("ds", "ds_write_b64 v%d, %s offset:%d" % (KW + 4, vr(src, 2), 2048 + 512 * part)))
        for h in range(2):
            scale_l(ar_(2 + h, 1), 1); pack(Kp(1, h), ar_(2 + h, 1)); kvw(Kp(1, h), h); scale_l(ar_(2 + h, 0), 0)
        for h in range(2):
            scale_r(ar_(4 + h, 1), RR + 4); pack(Vp(1, h), ar_(4 + h, 1)); kvw(Vp(1, h), 2 + h); scale_r(ar_(4 + h, 0), RR)
        units = [(1, 0), (1, 1), (0, 0), (0, 1)]
        SC = lambda u: F + 8 * u
        SP = lambda u: F + 8 * u + 4
        smf = lambda d, kb, u, bias: "v_mfma_f32_16x16x16_bf16 %s, %s, %s, %s" % (vr(d, 4), vr(Kp(kb, units[u][1]), 2), vr(Qp(*units[u]), 2), vr(bias, 4))
        M = [ACC + u for u in range(4)]
        def merge(u):
            return ["v_max_f32 v%d, v%d, v%d" % (SC(u) + r, SC(u) + r, SP(u) + r) for r in range(4)] + [
                "v_max3_f32 v%d, v%d, v%d, v%d" % (M[u], SC(u), SC(u) + 1, SC(u) + 2), "v_max_f32 v%d, v%d, v%d" % (M[u], M[u], SC(u) + 3)]
        e(smf(SC(0), 1, 0, BC)); pack(Kp(0, 0), ar_(2, 0))
        e(smf(SC(1), 1, 1, BC)); pack(Kp(0, 1), ar_(3, 0))
        e(smf(SP(0), 0, 0, BP))
        if ps == 0: body.extend(g_fb)
        body.append(("wvm", ("wo", 1)))
        body.append(("dsdrain",)); e("s_barrier")
        nbar = len(body)
        rdkv = lambda dst, part, tag: body.append(("ds", "ds_read_b64 %s, v%d offset:%d" % (vr(dst, 2), KW + 4, 512 * part), tag))
        e(smf(SP(1), 0, 1, BP)); rdkv(Kp(-1, 0), 0, ("kp", 0)); rdkv(Kp(-1, 1), 1, ("kp", 1))
        e(smf(SC(2), 0, 2, BC)); rdkv(Vp(-1, 0), 2, ("vp", 0)); rdkv(Vp(-1, 1), 3, ("vp", 1))
        e(smf(SC(3), 0, 3, BC)); pack(Vp(0, 0), ar_(4, 0)); pack(Vp(0, 1), ar_(5, 0))
        m0, m1 = merge(0), merge(1)
        e("\n".join(m0))
        body.append(("wds", ("kp", 1)))
        e(smf(SP(2), -1, 2, BP0)); e("\n".join(m1[:2]))
        e(smf(SP(3), -1, 3, BP0)); e("\n".join(m1[2:]))
        e("s_add_u32 %s, %s, %d" % (sT0, sOST, LY.OB[ps]))
        e("\n".join(merge(2)[:2]))
        e("v_permlane32_swap_b32 v%d, v%d" % (M[0], M[1]))
        e("\n".join(merge(2)[2:] + merge(3)))
        e("v_max_f32 v%d, v%d, v%d" % (M[0], M[0], M[1]))
        e("v_permlane32_swap_b32 v%d, v%d\nv_max_f32 v%d, v%d, v%d" % (M[2], M[3], M[2], M[2], M[3]))
        e("v_permlane16_swap_b32 v%d, v%d\nv_max_f32 v%d, v%d, v%d\nv_max_f32 v%d, v%d, v%d" % (M[0], M[2], M[1], M[0], M[2], M[2], M[0], M[2]))
        e("v_permlane16_swap_b32 v%d, v%d" % (M[1], M[2]))
        e("v_mul_f32 v%d, v%d, v%d\nv_mul_f32 v%d, v%d, v%d" % (M[0], M[1], CQ + 1, M[1], M[1], CQ + 1))
        e("v_mul_f32 v%d, v%d, v%d\nv_mul_f32 v%d, v%d, v%d" % (M[3], M[2], CQ, M[2], M[2], CQ))
        def shift(u):
            for k in range(2):
                e("v_pk_fma_f32 %s, %s, %s, %s op_sel:[0,%d,%d] op_sel_hi:[1,%d,%d] neg_lo:[0,0,1] neg_hi:[0,0,1]" %
                  (vr(SC(u) + 2 * k, 2), vr(SC(u) + 2 * k, 2), vr(CQ, 2), vr(ACC + 2 * (u // 2), 2), units[u][0], u % 2, units[u][0], u % 2))
        e("v_permlane32_swap_b32 v%d, v%d" % (M[0], M[1])); shift(0)
        e("v_permlane32_swap_b32 v%d, v%d" % (M[2], M[3])); shift(1); shift(2); shift(3)
        PM = lambda u: ACC + 4 + 2 * u
        PS = lambda u: ACC + 12 + 4 * u
        OP = lambda b: ACC + 28 + 4 * b
        pv = lambda u: "v_mfma_f32_16x16x32_bf16 %s, %s, %s, 0" % (vr(SC(u), 4), vr(Vp(units[u][0] - 1, units[u][1]), 4), vr(PS(u), 4))
        for u, (b, h) in enumerate(units):
            for r in range(4):
                e("v_exp_f32 v%d, v%d" % (SC(u) + r, SC(u) + r))
                if r == 1 and u >= 1: e(pv(u - 1))
            if u == 2: body.append(("wds", ("vp", 1)))
            if u >= 2: e("v_rcp_f32 v%d, v%d" % (SP(u - 2), SP(u - 2)))
            pack(PM(u), SC(u))
            for k in range(2):
                e("v_bfi_b32 v%d, v%d, 0, v%d\nv_and_b32 v%d, v%d, v%d" % (PS(u) + k, MC + k, PM(u) + k, PS(u) + 2 + k, MC + k, PM(u) + k))
            e("v_mfma_f32_16x16x16_bf16 %s, %s, %s, 0" % (vr(SP(u), 4), vr(ONES, 2), vr(PM(u), 2)))
        e("v_rcp_f32 v%d, v%d" % (SP(2), SP(2)))
        e(pv(3))
        def fin(u, packed):
            b, h = units[u]
            if packed:
                for k in range(2): e("v_pk_mul_f32 %s, %s, %s op_sel_hi:[1,0]" % (vr(SC(u) + 2 * k, 2), vr(SC(u) + 2 * k, 2), vr(SP(u), 2)))
            else:
                for r in range(4): e("v_mul_f32 v%d, v%d, v%d" % (SC(u) + r, SC(u) + r, SP(u)))
            pack(OP(b) + 2 * h, SC(u))
            if h == 1:
                body.append(("vm", "buffer_store_dwordx4 %s, v%d, %s, %s offen offset:%d%s" % (vr(OP(b), 4), vQ, WS, sT0, b * 256, " sc1" if ps == 0 and not OPT["otouch"] else ""), "o" if b == 0 else None))
        fin(0, False); fin(1, True)
        e("v_rcp_f32 v%d, v%d" % (SP(3), SP(3)))
        fin(2, True); fin(3, True)
        left = self.weave(body[:nbar], left, 0, OPT["a_every"])
        stop = len(body) - OPT["a_quiet"]
        left = self.weave(body[nbar:stop], left + self.wgs("att", ps) + self.wds("att", ps), 4, OPT["a_every"])
        a.run_all(body[stop:])
        print("  attention: %d groups left for the hand-off" % len(left))
        self.stamp()
        self.wo_pre(0, OPT["w_pre"])
        self.signal(6 * ps + 1, "o")
        a.run_all(self.flat(left + self.wgs("h1", ps) + self.wds("h1", ps)))
        self.stamp()

    def wds(self, where, ps):
        if ps: return []
        if self.wd is None:
            ks = [4 * s + cb for s in DN_ORD for cb in range(4)]
            self.wd = self.reg_loads([ar(4 * k, 4) for k in ks], [sWD] * 56, [k * 1024 for k in ks], sTD, vL16, "wd")
        n = OPT.get("wd_" + where, 56)
        out, self.wd = self.wd[:n], self.wd[n:]
        return out

    WREG = [X + 4 * k for k in range(16)] + [ACC + 16 + 4 * k for k in range(12)] + [F + 4 * k for k in range(8)]
    def wo_read(self, k):
        return ("ds", "ds_read_b128 %s, %s" % (vr(self.WREG[k % 36], 4), ldsaddr(WO_SLOT[k // 16] * 16384 + (k % 16) * 1024)), ("w", k))
    def wo_pre(self, k0, k1):
        for k in range(k0, k1): self.a.run(self.wo_read(k))

    def finish(self, A, xo, h, pf, n, halo_pass):
        a = self.a
        for k in range(8): a.I("v_cvt_pk_bf16_f32 v%d, v%d, v%d" % (XRES + k, A + 2 * k, A + 2 * k + 1))
        if xo == 4:
            a.I(self.getc(16, aROW))
            for e_ in range(2): a.vm("buffer_store_dwordx4 %s, v16, %s, 0 offen offset:%d %s" % (vr(XRES + 4 * e_, 4), OUT, e_ * 64, OPT["outf"].strip("-")))
            self.stamp()
            return
        self.publish(xo)
        self.stamp()
        a.run_all(self.flat(pf[:n]))
        self.signal(h, "pub", halo_pass)
        a.run_all(self.flat(pf[n:]))
        self.stamp()

    def wo(self, ps):
        a = self.a
        def setup():
            for k in range(8):
                a.I("v_lshlrev_b32 v%d, 16, v%d\nv_and_b32 v%d, 0xffff0000, v%d" % (ACC + 2 * k, XRES + k, ACC + 2 * k + 1, XRES + k))
        keep = dict(a.ds_tag)
        if OPT["stamps"] and ps == 0:
            a.I("s_memtime s[%d:%d]" % (sST, sST + 1)); a.ds_drain(force=True); a.I("v_writelane_b32 v%d, s%d, 60" % (vSTAMP, sST))
        self.poll(6 * ps + 1, sMC, None, setup)
        a.ds_tag.update((t, n) for t, n in keep.items() if t[0] == "w")
        self.stamp()
        areg = lambda s: vr(X + 64 + 4 * s, 4)
        ld = self.reg_loads([areg(s) for s in range(16)], [sOL] * 16, [LY.OB[ps] + s * 2048 for s in range(16)], sTA, vQ, "act")
        UP = OPT["w_up"]
        rest = [self.wo_read(k) for k in range(OPT["w_pre"], 32)]
        for n_, g in enumerate(ld[:UP]):
            a.run_all(g)
            if n_ >= 3: a.run_all(rest[:3]); rest = rest[3:]
        a.run_all(rest)
        a.I("s_barrier")
        self.wo_pre(32, 36)
        sl = Slots()
        for k in range(64):
            s, cb = divmod(k, 4)
            d = vr(ACC + 4 * cb, 4)
            sl.add("v_mfma_f32_16x16x32_bf16 %s, %s, %s, %s" % (d, vr(self.WREG[k % 36], 4), areg(s), d),
                   [("wds", ("w", k))] + ([("wvm", ("act", s))] if cb == 0 else []))
            if cb == 0 and s + UP < 16: sl.put("m", k, ld[s + UP])
            if k + 36 < 64: sl.put("r", k, [self.wo_read(k + 36)])
        pf = sl.pace(self.wgs("wo", ps) + self.wds("wo", ps), 64 - 4 * UP + 2, 4.4, 64 - OPT["w_quiet"])
        self.lite(sl, "wo", [8 * k for k in range(8)])
        self.report("wo%d" % ps, sl.emit(a))
        self.stamp()
        self.finish(ACC, 2 * ps + 1, 6 * ps + 2, pf + self.wgs("h2", ps) + self.wds("h2", ps), 0, None)

    def dn_plan(self, ps):
        order = [(i, s) for lv in DN_S for i in range(3) for s in lv] + [(3, s) for s in range(14)]
        areg = lambda k: vr(X + 48 + 4 * (k % 16), 4)
        ld = self.reg_loads([areg(k) for k in range(56)], [sHLD[i] for i, s in order], [LY.HB[ps] + s * 2048 for i, s in order], sTA, vQ, "act")
        return order, areg, ld

    def dn(self, ps, issued, wd):
        a = self.a
        order, areg, ld = self.dn_plan(ps)
        XW, XR, R, P, U = 16, 19, 20, (ACC, ACC + 16, ACC + 32), ACC + 48
        io = L_SCR_DN - 65536
        UP = OPT["k_up"]
        widx = {s: n_ for n_, s in enumerate(DN_ORD)}
        wd_e = [g for g in wd if g[-1][2][1] < 24]
        wd_l = [g for g in wd if g[-1][2][1] >= 24]
        a.run_all(self.flat(ld[issued:UP] + wd_e))
        a.ds_drain()
        a.I("s_barrier")
        sl = Slots()
        accr = lambda i, cb: (X, X + 16, X + 32, X + 112)[i] + 4 * cb
        seen, endb = set(), {}
        for k, (i, s) in enumerate(order):
            for cb in range(4):
                d = vr(accr(i, cb), 4)
                pre = [("wvm", ("act", k))] if cb == 0 else []
                tag = ("wd", 4 * widx[s] + cb)
                if i == 0 and (tag in a.vm_tag or any(g[-1][2] == tag for g in wd_l)): pre.append(("wvm", tag))
                endb[i] = sl.add("v_mfma_f32_16x16x32_bf16 %s, %s, %s, %s" % (d, ar(16 * s + 4 * cb, 4), areg(k), d if (i, cb) in seen else "0"), pre)
                seen.add((i, cb))
        chk = {18: self.check_ops(6 * ps + 4, sMB, PA, "hf2"), 30: self.check_ops(6 * ps + 5, sMB, PA, "hf3")}
        if self.pending: sl.put("f", OPT["d_mid%d" % ps], self.pending)
        sl.put("f", OPT["d_sig%d" % ps], self.signal_ops(6 * ps + 5, "h6", PB))
        extra = list(wd_l)
        for k in range(max(UP, issued), 56):
            p = 4 * (k - min(OPT["d_up2"], UP + max(0, k - OPT["d_ramp"]) // 3))
            if k + OPT["d_chk"] in chk: sl.put("m", p, chk[k + OPT["d_chk"]][0])
            if k in chk:
                due = [g for g in extra if g[-1][2][1] < (40 if k == 18 else 56)]
                sl.put("m", p, self.flat(due) + chk[k][1]); extra = extra[len(due):]
            sl.put("m", p, ld[k])
            sl.put("m", p, self.flat(extra[:1])); extra = extra[1:]
        su = [[("i", "v_add_u32 v%d, %s, v%d" % (XW + i, sXW[i], vL16b))] for i in range(3)] + [[("i", "v_add_u32 v%d, %s, v%d" % (XR, sXR, vL16b))]]
        su += [[("i", "s_lshl_b32 %s, %s, 2\ns_add_u32 %s, %s, %s\ns_lshl_b32 %s, %s, 6\ns_add_u32 %s, %s, %d\nv_and_or_b32 v%d, v%d, 63, %s" %
                 (sT0, sR, sT0, sT0, sW, sT0, sT0, sT0, sT0, L_RS, R, vFL, sT0)), ("ds", "ds_read_b32 v%d, v%d" % (R, R))]]
        for k in range(8):
            su += [[("i", "v_lshlrev_b32 v%d, 16, v%d" % (U + 2 * k, XRES + k))], [("i", "v_and_b32 v%d, 0xffff0000, v%d" % (U + 2 * k + 1, XRES + k))]]
        sl.spread(su, 20, 70)
        writes = lambda i: [[("ds", "ds_write_b128 v%d, %s offset:%d" % (XW + i, vr(accr(i, cb), 4), io + cb * 1024))] for cb in range(4)]
        if OPT["d_w64"]:
            writes = lambda i: [[("ds", "ds_write_b64 v%d, %s offset:%d" % (XW + i, vr(accr(i, cb) + 2 * e_, 2), io + cb * 1024 + 8 * e_))] for cb in range(4) for e_ in range(2)]
        reads = lambda i: [[("ds", "ds_read_b128 %s, v%d offset:%d" % (vr(P[i] + 4 * cb, 4), XR, io + i * 4096 + cb * 1024), ("r", i, cb))] for cb in range(4)]
        add = lambda d, s_: [[("i", "v_add_f32 v%d, v%d, v%d" % (d + e_, d + e_, s_ + e_))] for e_ in range(16)]
        for i in range(3): sl.spread(writes(i), endb[i] + 2, endb[i] + 17)
        wb = []
        if ps and OPT["wb"]:
            go, back = a.label("wb"), a.label("wbback")
            self.cold.append("%s:\nbuffer_wbl2 sc1\ns_branch %s" % (go, back))
            wb = [[("i", "s_or_b32 %s, %s, %s" % (sT1, sJ, sW) if OPT["wb"] == 1 else "s_lshr_b32 %s, s2, 3\ns_or_b32 %s, %s, %s" % (sT1, sT1, sT1, sW)),
                   ("vm", "s_cmp_eq_u32 %s, 0\ns_cbranch_scc1 %s\nbuffer_load_dword a255, off, %s, %s nt\n%s:" % (sT1, go, WS, sFLG, back))]]
        seq = [[("dsdrain",), ("i", "s_barrier")]] + wb + reads(0) + reads(1) + reads(2) + [[("wds", ("r", 1, 3))]] + add(P[0], P[1]) + [[("wds", ("r", 2, 3))]] + add(P[0], P[2])
        seq += [[("i", "v_fma_f32 v%d, v%d, v%d, v%d" % (U + e_, P[0] + e_, R, U + e_))] for e_ in range(16)]
        sl.spread(seq, endb[2] + 20, endb[3] - 2)
        pf = [] if ps else [g for i in range(7) if i not in self.wq_late(1) + self.kept() for g in self.wq_chunk(i)]
        pf = sl.pace(pf, 224 - 4 * OPT["d_up2"] + 2, 4.4)
        self.lite(sl, "dn", [28 * k for k in range(8)])
        self.report("dn%d" % ps, sl.emit(a))
        self.stamp()
        A = accr(3, 0)
        for k in range(8): a.I("v_pk_fma_f32 %s, %s, %s, %s op_sel_hi:[1,0,1]" % (vr(A + 2 * k, 2), vr(A + 2 * k, 2), vr(R, 2), vr(U + 2 * k, 2)))
        self.finish(A, 2 * ps + 2, 6, pf, OPT["dn_pre"], 1)

    def gu(self, ps):
        a = self.a
        xi = 2 * ps + 1
        self.poll(6 * ps + 2, sMA)
        self.stamp()
        S0, TL, NR, XR_ = GS0, 16 - GS0, 8, 10
        SS, NM, HPK, CSA = 16, 24, 28, 21
        A0 = X + 80
        xreg = lambda s, b: X + 8 * (s % XR_) + 4 * b
        acc = lambda bl, m, b: A0 + 16 * bl + 8 * b + 4 * m
        xl = self.reg_loads([vr(xreg(s, b), 4) for s in range(16) for b in range(2)], [sXLD] * 32,
                            [LY.XB[xi] + s * 2048 + b * 256 for s in range(16) for b in range(2)], sTA, vQ, "x")
        UP = OPT["g_up"]
        a.run_all(self.flat(xl[:UP]))
        a.I("s_barrier")
        a.I(self.getc(NM, aSQ) + "\ns_add_u32 %s, %s, %d" % (sT0, sSLD, LY.SB[xi]))
        g_st = [[("vm", "buffer_load_dwordx4 %s, v%d, %s, %s offen sc1" % (vr(SS, 4), NM, WS, sT0))],
                [("vm", "buffer_load_dwordx4 %s, v%d, %s, %s offen offset:1024 sc1" % (vr(SS + 4, 4), NM, WS, sT0), "st")]]
        early = self.wg_early(ps)
        NS = len(self.ring(ps))
        assert 0 in early and len(set(early)) == len(early) and all(c < NS and self.wg_slot(c, ps) not in WO_SLOT for c in early)
        assert all(self.wg_slot(c, ps) != 7 for c in self.digits("wg_att%d" % ps) + self.digits("wg_h1%d" % ps)) and not set(self.kept()) - {2, 3, 4, 5}
        frags = [(s, bl, m) for s in range(S0) for bl in range(7) for m in range(2)]
        for bl in range(7): frags += [(s, bl, m) for s in range(S0, 16) for m in range(2)] + [(16, bl, 0)]
        sl = Slots()
        sl.mpatience, sl.patience = OPT["g_mp%d" % ps], OPT["g_vp"]
        first, last, end, xfirst, xlast = {}, {}, {}, {}, {}
        for k, (s, bl, m) in enumerate(frags):
            w = F + 4 * (k % NR)
            for mm, b in ([(m, 0), (m, 1)] if s < 16 else [(0, 0), (0, 1), (1, 0), (1, 1)]):
                G_ = OPT["g_grp"]
                pre = [] if k in first else [("wds", ("f", min(k // G_ * G_ + G_ - 1, len(frags) - 1)))]
                d = vr(acc(bl, mm, b), 4)
                if s < 16:
                    if (s, b) not in xfirst: pre.append(("wvm", ("x", 2 * s + (b if s == 0 else 1))))
                    n_ = sl.add("v_mfma_f32_16x16x32_bf16 %s, %s, %s, %s" % (d, vr(w, 4), vr(xreg(s, b), 4), "0" if s == 0 else d), pre)
                    xfirst.setdefault((s, b), n_); xlast[(s, b)] = n_
                else:
                    n_ = sl.add("v_mfma_f32_16x16x16_bf16 %s, %s, %s, %s" % (d, vr(w + 2 * mm, 2), vr(NM + 2 * b, 2), d), pre)
                first.setdefault(k, n_); last[k] = n_
            end[bl] = n_
        LA = OPT["g_la"]
        def rd(k):
            off = self.wg_slot(k // 16, ps) * 16384 + (k % 16) * 1024
            d = F + 4 * (k % NR)
            if frags[k][0] < 16:
                return [("ds", "ds_read_b128 %s, %s" % (vr(d, 4), ldsaddr(off)), ("f", k))]
            return [("ds", "ds_read2st64_b32 %s, v%d offset0:%d offset1:%d" % (vr(d + 2 * m, 2), CSA + (off >> 16), (off & 0xffff) // 256 + 2 * m, (off & 0xffff) // 256 + 2 * m + 1),
                     ("f", k) if m else None) for m in range(2)]
        for k in range(LA): a.run_all(rd(k))
        barpos, real = {}, []
        retire = lambda c: min(p for p in real if p > last[16 * c + 15])
        for k in range(LA, len(frags)):
            if k % 16 == 0:
                ch = k // 16
                pair = ps == 1 and OPT["g_bar1"] == 2 and ch >= OPT["g_pair0"]
                if pair and (ch - OPT["g_pair0"]) % 2:
                    barpos[ch] = barpos[ch - 1]
                elif ch not in early or 2 <= ch <= 16 - NS:
                    p = barpos[ch] = last[k - LA] - 1
                    real.append(p)
                    need = ch + 1 if pair and ch < 14 else ch
                    if need not in early: sl.pre[p + 1].append(("wvm", ("wg", need)))
                    sl.after(p, *(([("wvm", ("wg", need))] if need not in early else []) + [("i", "s_barrier")]))
            sl.after(last[k - LA], *rd(k))
        wl = [(retire(ch - NS) + 2 if ch >= NS else 0, g) for ch in range(15) if ch not in early for g in self.wg_chunk(ch, ps)]
        wdue = [barpos[ch] - 8 * (len(self.wg_chunk(ch, ps)) - 1 - n_) for ch in range(15) if ch not in early for n_ in range(len(self.wg_chunk(ch, ps)))]
        wd = self.wds("rest", ps)
        tail0 = xfirst[(S0, 0)]
        xs = []
        for n_ in range(UP, 32):
            s, b = divmod(n_, 2)
            due = min(xfirst[(s, b)], tail0 - (31 - n_) * OPT["g_xsp"])
            xs.append((due, xlast[(s - XR_, b)] + 1 if s >= XR_ else 0, xl[n_]))
        n_ = OPT["g_stat"]
        xs[n_:n_] = [(xs[n_][0], 0, g) for g in g_st]
        P = lambda key: OPT["g_%s%d" % (key, ps)] / 10
        pos, fab, ix, iw, idd, seq = 0.0, 0.0, 0, 0, 0, []
        stop = end[6] - OPT["g_tail"]
        while ix < len(xs) or iw < len(wl) or (idd < len(wd) and pos <= stop):
            xok = ix < len(xs) and xs[ix][1] <= pos
            xu = xok and xs[ix][0] - pos <= P("xlead")
            wok = iw < len(wl) and wl[iw][0] <= pos
            wu = wok and wdue[iw] - pos <= P("wmin")
            free = fab <= pos + P("slack")
            if xu and (not wu or xs[ix][0] <= wdue[iw] - P("wmin") + P("xlead")): pick = "x"
            elif wu: pick = "w"
            elif free and wok and wdue[iw] - pos <= P("wmax"): pick = "w"
            elif free and idd < len(wd) and pos <= stop: pick = "d"
            elif xok and xs[ix][0] - pos <= P("xmax"): pick = "x"
            else:
                pos = int(pos) + 1; continue
            if pick == "x": g = xs[ix][2]; ix += 1
            elif pick == "w": g = wl[iw][1]; iw += 1; fab = max(fab, pos) + P("wcost")
            else: g = wd[idd]; idd += 1; fab = max(fab, pos) + P("dcost")
            behind = (ix < len(xs) and xs[ix][0] - pos < 0.7 * P("xlead")) or (iw < len(wl) and wdue[iw] - pos < 0.7 * P("wmin"))
            seq.append((pos, g)); pos += 2.0 if behind else P("every")
            if g is g_st[1]: stpos = pos
        assert not sl.pace(seq, 0, 0)
        left = wd[idd:]
        st = [[("wvm", "st")]]
        for r_ in (SS, SS + 4):
            for o in (0, 1): st.append([("i", "v_add_f32 v%d, v%d, v%d" % (r_ + o, r_ + o, r_ + 2 + o))])
        for o in (0, 1): st.append([("i", "v_permlane32_swap_b32 v%d, v%d" % (SS + o, SS + 4 + o))])
        for o in (0, 1): st.append([("i", "v_add_f32 v%d, v%d, v%d" % (SS + o, SS + o, SS + 4 + o))])
        for o in (0, 1): st.append([("i", "v_mov_b32 v%d, v%d" % (SS + 2 + o, SS + o))])
        for k in range(3): st.append([("i", "v_add_u32 v%d, %d, v%d" % (CSA + k, k << 16, vFL))])
        for o in (0, 1): st.append([("i", "v_permlane16_swap_b32 v%d, v%d" % (SS + o, SS + 2 + o))])
        for o in (0, 1): st.append([("i", "v_add_f32 v%d, v%d, v%d" % (SS + o, SS + o, SS + 2 + o))])
        st += [[op] for op in self.ln_from_sums(SS, SS + 1, SS + 2)]
        st += [[("i", "v_cvt_pk_bf16_f32 v%d, -v%d, -v%d" % (NM + k, SS, SS))] for k in range(4)]
        st += [[("i", "v_mul_f32 v%d, v%d, v%d" % (SS + 1, SS + 1, SS + 1))],
               [("i", "s_lshr_b32 %s, %s, 3\ns_add_u32 %s, %s, %d" % (sT0, sLW, sT0, sT0, L_RS))],
               [("i", "v_and_or_b32 v%d, v%d, 63, %s" % (SS, vFL, sT0))], [("i", "v_and_b32 v%d, 32, v0" % (SS + 2))],
               [("i", "v_lshl_add_u32 v%d, v%d, 1, v%d" % (SS, SS + 2, SS))]]
        st += [[("i", "v_permlane32_swap_b32 v%d, v%d" % (NM + k, NM + 2 + k))] for k in range(2)] + [[("mark", "nm")]]
        sl.after(tail0 - 2 * LA, ("need", "nm"))
        sl.spread(st, int(stpos) + 40, tail0 - 2 * LA - 10)
        def epi(bl, packed=False):
            g = []
            for b in range(2):
                ga = acc(bl, 0, b)
                g += [[("i", "v_max_f32 v%d, 0, v%d" % (ga + r, ga + r))] for r in range(4)]
                if packed: g += [[("i", "v_pk_mul_f32 %s, %s, %s" % (vr(ga + r, 2), vr(ga + r, 2), vr(ga + 4 + r, 2)))] for r in (0, 2)]
                else: g += [[("i", "v_mul_f32 v%d, v%d, v%d" % (ga + r, ga + r, ga + 4 + r))] for r in range(4)]
                g += [[("i", "v_cvt_pk_bf16_f32 v%d, v%d, v%d" % (HPK + 2 * b + k, ga + 2 * k, ga + 2 * k + 1))] for k in range(2)]
            g.append([("i", "s_add_u32 %s, %s, %s" % ((sTS, sTS, sHSTEP) if bl else (sTS, sHST, LY.HB[ps])))])
            g += [[("i", "v_permlane16_swap_b32 v%d, v%d" % (HPK + k, HPK + 2 + k))] for k in range(2)]
            g.append([("vm", "buffer_store_dwordx4 %s, v%d, %s, %s offen%s" % (vr(HPK, 4), vL16, WS, sTS, " sc1" if ps == 0 or str(bl) in OPT["h_wt"] else ""), "h%d" % bl)])
            return g
        for bl in range(6): sl.spread(epi(bl), end[bl] + 1, end[bl + 1] - OPT["g_epi"])
        l_e, g_e = self.check_ops(6 * ps + 3, sMB, SS + 3, "he")
        sl.put("f", end[3] + OPT["g_sig%d" % ps], self.signal_ops(6 * ps + 3, "h2", SS + 4))
        self.pending = self.signal_ops(6 * ps + 4, "h4", SS + 4)
        if OPT["d_mid%d" % ps] < 0:
            sl.put("f", end[5] + OPT["g_sig%d" % ps], self.pending); self.pending = None
        nh = OPT["g_h%d" % ps]
        assert S0 >= 10 and nh <= 12
        p = end[6] - OPT["g_chk%d" % ps]
        sl.put("h", p - OPT["g_lat%d" % ps], l_e)
        if nh:
            sl.put("h", p, g_e); g_e = []
            assert not sl.pace(self.dn_plan(ps)[2][:nh], p + 1, min(4.4, (end[6] - p - 2) / nh), name="h")
        sl.put("g", tail0, self.flat(self.code_touch("L_dn%d" % ps, SS + 3)))
        sl.put("c", max(tail0, retire(max(c for c in range(14) if self.wg_slot(c, ps) == 6)) + 1), [("ds", "ds_write_b32 v%d, v%d" % (SS, SS + 1))])
        if ps == 0:
            sl.put("c", end[6] - 8, [("i", "s_or_b32 %s, s2, %s" % (sT0, sW)), ("atom", "s_cmp_eq_u32 %s, 0\ns_cselect_b32 %s, %d, 0x%x" % (sT0, sT0, LY.EPOCH, OOB)),
                                     ("i", "v_mov_b32 v%d, %s" % (SS + 2, sNONCE)),
                                     ("vm", "buffer_store_dword v%d, v%d, %s, %s offen" % (SS + 2, vF1, WS, sT0))])
        self.lite(sl, "g", [56 * k for k in range(8)])
        self.report("gu%d" % ps, sl.emit(a))
        a.run_all(self.flat(epi(6, True)))
        self.stamp()
        a.run_all(g_e)
        self.stamp()
        print("  gu: %d loads left for the hand-off" % len(left))
        return nh, left

    def build(self):
        a = self.a
        self.startup()
        for ps in range(2):
            a.I("L_qkv%d:" % ps); self.qkv(ps)
            a.I("L_wo%d:" % ps); self.wo(ps)
            a.I("L_gu%d:" % ps); left = self.gu(ps)
            a.I("L_dn%d:" % ps); self.dn(ps, *left)
        if OPT["stamps"]:
            a.I("s_waitcnt vmcnt(0)\ns_memrealtime s[6:7]\ns_memtime s[80:81]\ns_waitcnt lgkmcnt(0)\nv_writelane_b32 v%d, s6, 63\nv_writelane_b32 v%d, s80, 61" % (vSTAMP, vSTAMP))
            a.I("s_lshl_b32 %s, s2, 10\ns_lshl_b32 %s, %s, 8\ns_add_u32 %s, %s, %s\ns_add_u32 %s, %s, %d" % (sT0, sT1, sW, sT0, sT0, sT1, sT0, sT0, LY.STAMP))
            a.I("buffer_store_dword v%d, v%d, %s, %s offen" % (vSTAMP, vFL, WS, sT0))
        if OPT["diagpad"]:
            a.I("s_mov_b32 s82, %d" % OPT["diagpad"])
            if OPT["diagat"]:
                a.I("s_sub_u32 s83, s%d, s14\ns_lshl_b32 s83, s83, 2" % sST)
                if OPT["diagwg"] >= 0: a.I("s_cmp_eq_u32 s2, %d\ns_cselect_b32 s83, s83, 0" % OPT["diagwg"])
                a.I("s_add_u32 s82, s82, s83")
            a.I("L_pad:\ns_memrealtime s[80:81]\ns_waitcnt lgkmcnt(0)\ns_sub_u32 s80, s80, s14\ns_cmp_lt_u32 s80, s82\ns_cbranch_scc1 L_pad")
        a.I("L_main_done:\ns_endpgm")
        for c in self.cold: a.I(c)
        a.I("L_code_end:")
        return a.lines

def main():
    ml, n2 = hazard_pass(Main().build())
    bad = check_async(ml)
    assert not bad, bad[:3]
    k = NAME + "_kernel"
    out = ["; Generated by gen/gen.py: one persistent kernel (weight re-layout, then four layers with flag hand-offs). " + " ".join(sys.argv[2:]),
           "; @launch grid=(256,1,1) block=(256,1,1) lds=163840",
           '.amdgcn_target "amdgcn-amd-amdhsa--gfx950"', ".text",
           ".globl %s" % k, ".p2align 8", ".type %s,@function" % k]
    out += [l if l.endswith(":") else "    " + l for l in ml]
    out += ['.section .rodata,"a"', ".p2align 6", """.amdhsa_kernel %s
  .amdhsa_next_free_vgpr 512
  .amdhsa_next_free_sgpr 102
  .amdhsa_accum_offset 256
  .amdhsa_group_segment_fixed_size 0
  .amdhsa_kernarg_size 80
  .amdhsa_user_sgpr_count 2
  .amdhsa_user_sgpr_kernarg_segment_ptr 1
  .amdhsa_system_sgpr_workgroup_id_x 1
  .amdhsa_float_denorm_mode_32 3
.end_amdhsa_kernel""" % k]
    if OPT["rt"]: out = [l.replace("s_memtime", "s_memrealtime") for l in out]
    open(sys.argv[1], "w").write("\n".join(out) + "\n")
    print("instructions: %d ; wait states added: %d" % (len(ml), n2))

main()
```

```python
import sys
from dsl import Asm, Slots, hazard_pass, check_async
import layout as LY

NAME = "interleave_layers__sliding_local_dilated__glu_gated_reglu__prompt"
OPT = dict(stamps=0, lite="-", hitw=0,
           q_up=8, q_every=45, q_hf=8, q_chk=6, q_h0=10, a_every=14, k_up=8, g_up=4, g_tail=0, g_la=7, g_xsp=11, g_stat=6,
           g_every0=36, g_xlead0=400, g_wmin0=600, g_wmax0=1000, g_slack0=40, g_wcost0=60, g_dcost0=30,
           g_xmax0=9000, g_xmax1=800, g_every1=46, g_xlead1=400, g_wmin1=560, g_wmax1=700, g_slack1=40, g_wcost1=60, g_dcost1=30,
           wq_late1="-", dn_pre=6, q0_up=6, q0_lead=20, q0_every=20,
           wg_att0="0", wg_h10="-", wg_wo0="1", wg_h20="-",
           wg_att1="01", wg_h11="-", wg_wo1="2", wg_h21="-",
           keep="2345", q_wbar=12, w_pre=20, w_up=8, w_quiet=12, d_sig0=16, d_sig1=16, d_up2=11, d_ramp=8, d_mid0=-1, d_mid1=-1, d_chk=8, g_epi=6, g_sig0=27, g_sig1=16, g_chk0=20, g_chk1=26, g_lat0=18, g_lat1=18, g_h0=4, g_h1=6,
           touch=0, h_st0="sssssss", h_st1="sspppp p".replace(" ", ""), x0f="sc1", wb=1, otouch=1, diagpad=0, diagat=0, diagwg=100, b_pos=1, q0_split=0, q0_n1=6, q0_hf=6, order="ao", rt=0, q_mp0=999, q_mp1=2, q_vp=10, g_mp0=2, g_mp1=999, g_vp=10, d_w64=0, q_st=0, g_grp=3, q_grp=3, g_bar1=1, g_pair0=7, outf="nt", c_early=0, b_spread=0, b_first=0, b_gap=3, pollf="nt", actf="sc1", wf="sc1", cpf=1, predrain=1, q0_b=0, q0_fbch=3, q0_fbs=15, q0_w=6, q0_tail=45, a_quiet=30, wd_q=0, wd_att=0, wd_h1=0, wd_wo=0, wd_h2=0)
for arg in sys.argv[2:]:
    k, v = arg.split("=")
    OPT[k] = v if isinstance(OPT[k], str) else int(v)

def vr(b, n): return "v[%d:%d]" % (b, b + n - 1)
def ar(b, n): return "a[%d:%d]" % (b, b + n - 1)
def magic(d): return (1 << 32) // d + 1
OOB = 0x40000000
GS0 = LY.GS0

WS, XIN, OUT = "s[8:11]", "s[12:15]", "s[16:19]"
sW, sJ, sR, sC, sG, sN, sNONCE, sSLOW = ("s%d" % i for i in range(20, 28))
sGB, sXLD, sXST, sOST, sXR, sHST, sSLD, sWQ, sWG, sWO, sWD, sLW = ("s%d" % i for i in range(28, 40))
sMA, sMB = "s[40:41]", "s[42:43]"
sFLG, sFLW, sHALO, sHFL, sTAB, sSST, sONE, sHDST, sHDFL, sP = ("s%d" % i for i in range(44, 54))
sMH = "s[54:55]"
sTA, sTW, sTD, sTS, sT0, sT1, sT2, sSPIN = ("s%d" % i for i in range(56, 64))
sHLD = ["s%d" % i for i in range(68, 72)]
sXW = ["s%d" % i for i in range(72, 75)]
sFBO, sB0, sB1, sB2, sB3 = "s75", "s76", "s77", "s78", "s79"
SRC_A, SRC_G, SRC_U, SRC_D = 80, 84, 88, 92
sLW2, sLW4, sWQ4, sWG4 = "s96", "s97", "s98", "s99"
sST = 100
sHALO2 = sP
sNH, sCPO, sPC, sSLOW2 = "s12", "s13", "s[4:5]", "s[0:1]"
sOL, sHSTEP, sMC = "s64", "s65", "s[66:67]"
vL, vL16, vL16b, vL16c, vQ, vF1, vFL, vSTAMP = 0, 1, 2, 3, 4, 5, 6, 7
XRES = 8
PA, PB = 22, 23
X, ACC, F = 32, 160, 224
aROW, aST, aSQ, aSH, aSG, aHX, aHWR, aHWS, aHST, aHSS, aFB, aLINE, aTO, aTH = range(224, 238)
aBC, aBP, aBP0, aMC = 240, 244, 248, 252
L_HALO, L_RS, L_KV, L_TAB, L_FMT = 102400, 110592, 114688, 124928, 131072
L_SCR_DN = 114688
WO_SLOT = (8, 9, 0, 1)
DN_S = ((2, 3, 4, 9, 10, 11), (1, 5, 8, 12), (0, 6, 7, 13))
DN_ORD = sum(DN_S, ())
NEG = "0xf149f2ca"

def ldsaddr(off):
    return "v%d offset:%d" % ((vL16, vL16b, vL16c)[off >> 16], off & 0xffff)

def isvm(g): return any(op[0] == "vm" for op in g)

class Main:
    def __init__(self):
        self.a = Asm()
        self.nstamp = 0
        self.cold = []
        self.nlite = 0
        self.wd = None
        self.ncall = 0

    def stamp(self, key=None):
        self.ncall += 1
        if OPT["diagpad"] and OPT["diagat"] == self.ncall:
            self.a.I("s_memrealtime s[%d:%d]" % (sST, sST + 1))
            self.a.ds_drain(force=True)
        if OPT["stamps"] != 1 or (key is not None and OPT["lite"] != key):
            return
        a = self.a
        a.I("s_memtime s[%d:%d]" % (sST, sST + 1))
        a.ds_drain(force=True)
        for k in range(self.nlite):
            a.I("v_writelane_b32 v%d, s%d, %d" % (vSTAMP, 80 + 2 * k, self.nstamp))
            self.nstamp += 1
        self.nlite = 0
        a.I("v_writelane_b32 v%d, s%d, %d" % (vSTAMP, sST, self.nstamp))
        self.nstamp += 1

    def lite(self, sl, key, slots):
        if OPT["lite"] != key:
            return
        for i in slots[:8]:
            sl.after(i, ("i", "s_memtime s[%d:%d]" % (80 + 2 * self.nlite, 81 + 2 * self.nlite)))
            self.nlite += 1

    def report(self, name, r):
        print("  %s: cycles over budget %d, ops left after the loop %d" % ((name,) + r))

    def getc(self, v, acc): return "v_accvgpr_read_b32 v%d, a%d" % (v, acc)
    def flat(self, groups): return [op for g in groups for op in g]
    def digits(self, key): return tuple(int(c, 16) for c in str(OPT[key]) if c != "-")
    def wgs(self, where, ps): return [g for i in self.digits("wg_%s%d" % (where, ps)) for g in self.wg_chunk(i, ps)]
    def wg_early(self, ps): return sum((self.digits("wg_%s%d" % (w, ps)) for w in ("att", "h1", "wo", "h2")), ())
    def wq_late(self, ps): return tuple(range(7)) if ps == 0 else self.digits("wq_late1")

    def srd(self, base, lo, hi, nbytes):
        self.a.I("s_mov_b32 s%d, %s\ns_and_b32 s%d, %s, 0xffff\ns_mov_b32 s%d, %s\ns_mov_b32 s%d, 0x20000" %
                 (base, lo, base + 1, hi, base + 2, nbytes, base + 3))

    def lin(self, dst, base, terms):
        first = True
        for reg, mul in terms:
            self.a.I("s_mul_i32 %s, %s, %d\ns_add_u32 %s, %s, %s" % (sT2, reg, mul, dst, base if first else dst, sT2))
            first = False

    def sdivmod(self, q, r, x, d):
        self.a.I("s_mul_hi_u32 %s, %s, 0x%x\ns_mul_i32 %s, %s, %d\ns_sub_u32 %s, %s, %s" % (q, x, magic(d), sT2, q, d, r, x, sT2))

    def hi_lo(self, dst, src, t):
        return ["v_cvt_pk_bf16_f32 v%d, v%d, v%d" % (dst, src, src), "v_lshlrev_b32 v%d, 16, v%d" % (t, dst),
                "v_sub_f32 v%d, v%d, v%d" % (t, src, t), "v_cvt_pk_bf16_f32 v%d, v%d, v%d" % (dst, src, t)]

    def weave(self, body, groups, first, every):
        k = 0
        for n_, op in enumerate(body):
            if n_ >= first and (n_ - first) % every == 0:
                while k < len(groups):
                    g = groups[k]; k += 1
                    self.a.run_all(g)
                    if isvm(g): break
            self.a.run(op)
        return groups[k:]

    def signal(self, h, wait=None, halo_pass=None):
        a = self.a
        slow, done = a.label("slow"), a.label("sig")
        a.I("s_add_u32 %s, %s, %d\nv_mov_b32 v30, %s" % (sNH, sNONCE, h, sNH))
        if halo_pass is not None:
            h1, b1, h2, b2 = a.label("halo"), a.label("hback"), a.label("halo"), a.label("hback")
            n = a.vm_n - max(a.vm_tag[wait], a.vm_done)
            a.I("s_cmp_lg_u32 %s, 0x%x\ns_cbranch_scc1 %s" % (sHDST, OOB, h1))
            st = "\n".join("buffer_store_dwordx4 %s, v24, %s, %s offen offset:%d sc1" % (vr(XRES + 4 * e, 4), WS, sTS, e * 512) for e in range(2))
            self.cold.append("%s:\n%s\n%s\ns_add_u32 %s, %s, %d\n%s\nbuffer_store_dword v26, v25, %s, %s offen sc1\ns_waitcnt vmcnt(%d)\ns_branch %s" %
                             (h1, self.getc(24, aHST), self.getc(25, aHSS), sTS, sHDST, LY.HX[halo_pass], st, WS, sTS, n + 3, b1))
            self.cold.append("%s:\ns_add_u32 %s, %s, %d\nv_mov_b32 v24, %s\n%s\ns_waitcnt vmcnt(1)\nbuffer_store_dword v24, v25, %s, %s offen sc1\ns_branch %s" %
                             (h2, sTS, sHDFL, halo_pass * 16384, sNONCE, self.getc(25, aLINE), WS, sTS, b2))
            a.vm_wait(wait)
            a.I("%s:\ns_cmp_lg_u32 %s, 0" % (b1, sSLOW))
        else:
            a.I("s_cmp_lg_u32 %s, 0" % sSLOW)
            if wait is None: a.vm_drain()
            else: a.vm_wait(wait)
        a.I("s_cbranch_scc1 %s" % slow)
        a.vm("buffer_store_dword v30, v%d, %s, %s offen" % (vF1, WS, sFLW))
        a.I("%s:" % done)
        self.cold.append("%s:\nbuffer_wbl2 sc1\ns_waitcnt vmcnt(0)\nbuffer_store_dword v30, v%d, %s, %s offen sc1\ns_branch %s" % (slow, vF1, WS, sFLW, done))
        self.sent = h
        if halo_pass is not None:
            a.I("s_cmp_lg_u32 %s, 0x%x\ns_cbranch_scc1 %s\n%s:" % (sHDST, OOB, h2, b2))

    def poll(self, h, mask, also=None, setup=None):
        a = self.a
        a.forget()
        assert self.sent == h
        if setup: setup()
        def loop(name, fl):
            ld = "buffer_load_dword v%d, v%d, %s, %s offen %s" % (PA, vFL, WS, sFLG, fl)
            ts = "v_subrev_u32 v%d, %s, v%d\nv_cmp_lt_u32 vcc, 15, v%d\ns_and_b64 vcc, vcc, %s" % (PA, sNH, PA, PA, mask)
            if also is not None:
                ld += "\nbuffer_load_dword v%d, v%d, %s, 0 offen sc1" % (PB, also, WS)
                ts = "v_cmp_ne_u32 s[60:61], %s, v%d\n%s\ns_or_b64 vcc, vcc, s[60:61]" % (sNONCE, PB, ts)
            return "%s:\n%s\ns_sub_u32 %s, %s, 1\ns_cbranch_scc1 L_main_done\ns_waitcnt vmcnt(0)\n%s\ns_cbranch_scc1 %s" % (name, ld, sSPIN, sSPIN, ts, name)
        far, ok = a.label("far"), a.label("ok")
        a.I("s_mov_b32 %s, 0x40000\ns_cmp_lg_u32 %s, 0\ns_cbranch_scc1 %s" % (sSPIN, sSLOW, far))
        a.I(loop(a.label("poll"), OPT["pollf"]) + "\n%s:" % ok)
        a.vm_done = a.vm_n
        self.cold.append(loop(far, "sc1") + "\nbuffer_inv sc1\ns_waitcnt vmcnt(0)\ns_branch %s" % ok)

    def signal_ops(self, h, wait, reg):
        a = self.a
        slow, done = a.label("slow"), a.label("sig")
        self.cold.append("%s:\nbuffer_wbl2 sc1\ns_waitcnt vmcnt(0)\nbuffer_store_dword v%d, v%d, %s, %s offen sc1\ns_branch %s" % (slow, reg, vF1, WS, sFLW, done))
        return [("i", "s_add_u32 %s, %s, %d" % (sNH, sNONCE, h)), ("i", "v_mov_b32 v%d, %s" % (reg, sNH)), ("wvm", wait),
                ("vm", "s_cmp_lg_u32 %s, 0\ns_cbranch_scc1 %s\nbuffer_store_dword v%d, v%d, %s, %s offen\n%s:" % (sSLOW, slow, reg, vF1, WS, sFLW, done))]

    def check_ops(self, h, mask, reg, tag):
        a = self.a
        spin, back = a.label("cspin"), a.label("cback")
        ld = lambda fl: "buffer_load_dword v%d, v%d, %s, %s offen %s" % (reg, vFL, WS, sFLG, fl)
        t = ["v_subrev_u32 v%d, s3, v%d" % (reg, reg), "v_cmp_lt_u32 vcc, 15, v%d" % reg, "s_and_b64 vcc, vcc, %s" % mask]
        loop = lambda name, fl: "%s:\n%s\ns_sub_u32 %s, %s, 1\ns_cbranch_scc1 L_main_done\ns_waitcnt vmcnt(0)\n%s\ns_cbranch_scc1 %s" % (name, ld(fl), sSPIN, sSPIN, "\n".join(t), name)
        self.cold.append("%s:\ns_mov_b32 %s, 0x40000\ns_cmp_lg_u32 %s, 0\ns_cbranch_scc1 %s_f\n%s\ns_branch %s\n%s\nbuffer_inv sc1\ns_waitcnt vmcnt(0)\ns_branch %s" %
                         (spin, sSPIN, sSLOW, spin, loop(spin + "_n", OPT["pollf"]), back, loop(spin + "_f", "sc1"), back))
        return [("vm", ld(OPT["pollf"]), tag)], [("i", "s_add_u32 s3, %s, %d" % (sNONCE, h)), ("wvm", tag), ("i", t[0]), ("i", t[1]),
                                                ("atom", "%s\ns_or_b64 vcc, vcc, %s\ns_cbranch_scc1 %s\n%s:" % (t[2], sSLOW2, spin, back))]

    def late_check(self, load, reg, mask, tag):
        a = self.a
        spin, back = a.label("lspin"), a.label("lback")
        cmp_, and_ = "v_cmp_ne_u32 vcc, %s, v%d" % (sNONCE, reg), "s_and_b64 vcc, vcc, %s" % mask
        self.cold.append("%s:\ns_mov_b32 %s, 0x40000\n%s_l:\n%s\ns_sub_u32 %s, %s, 1\ns_cbranch_scc1 L_main_done\ns_waitcnt vmcnt(0)\n%s\n%s\ns_cbranch_scc1 %s_l\ns_branch %s"
                         % (spin, sSPIN, spin, load, sSPIN, sSPIN, cmp_, and_, spin, back))
        return [("vm", load, tag)], [("wvm", tag), ("i", cmp_), ("atom", and_ + "\ns_cbranch_scc1 %s\n%s:" % (spin, back))]

    def dma_chunk(self, sbase, goff, loff, n, tag, sc=""):
        sw = {1: sLW, 2: sLW2, 4: sLW4}[n]
        setup = [("set", sTW, "s_add_u32 %s, %s, %d" % (sTW, sbase, goff)), ("set", "m0", "s_add_u32 m0, %s, %d" % (sw, loff))]
        return [setup + [("vm", "buffer_load_dwordx4 v%d, %s, %s offen offset:%d%s lds" % (vL16, WS, sTW, k * 1024, sc), tag if k == n - 1 else None)]
                for k in range(n)]

    def wq_chunk(self, i): return self.dma_chunk(sWQ4 if i < 6 else sWQ, i * 16384, i * 16384, 4 if i < 6 else 1, ("wq", i), " " + OPT["wf"].strip("-"))
    def kept(self): return self.digits("keep")
    def ring(self, ps):
        return [k for k in (2, 3, 4, 5, 6, 7, 8, 9, 0, 1) if ps or k not in self.kept()]
    def wg_slot(self, i, ps): return self.ring(ps)[i % len(self.ring(ps))]
    def wo_chunk(self, i): return self.dma_chunk(sWO, i * 16384, WO_SLOT[i] * 16384, 4, ("wo", i), " " + OPT["wf"].strip("-"))
    def wg_chunk(self, i, ps): return self.dma_chunk(sWG4 if i < 14 else sWG, i * 16384, self.wg_slot(i, ps) * 16384, 4 if i < 14 else 2, ("wg", i), " " + OPT["wf"].strip("-"))

    def reg_loads(self, dsts, bases, offs, stmp, vaddr, tagbase):
        ops, cur = [], None
        for k, (d, sb, off) in enumerate(zip(dsts, bases, offs)):
            if cur is None or cur[0] != sb or not (0 <= off - cur[1] < 4096):
                cur = (sb, off)
            ops.append([("set", stmp, "s_add_u32 %s, %s, %d" % (stmp, sb, cur[1])),
                        ("vm", "buffer_load_dwordx4 %s, v%d, %s, %s offen offset:%d %s" % (d, vaddr, WS, stmp, off - cur[1], OPT["wf" if tagbase[0] == "w" else "actf"].strip("-")), (tagbase, k))])
        return ops

    def touch(self, acc, sbase, off, tmp):
        return [[("i", self.getc(tmp, acc) + "\ns_add_u32 %s, %s, %d" % (sT1, sbase, off)),
                 ("vm", "buffer_load_dword a255, v%d, %s, %s offen sc1" % (tmp, WS, sT1))]]

    def code_touch(self, label, tmp, n=1):
        if not OPT["cpf"]: return []
        return [[("i", "s_add_u32 s15, %s, %s-L_pc+%d" % (sCPO, label, 16384 * k)), ("i", "s_min_u32 s15, s15, L_code_end-L_pc-4"),
                 ("i", "v_mov_b32 v%d, s15" % tmp), ("vm", "global_load_dword a255, v%d, %s" % (tmp, sPC))] for k in range(n)]

    def ln_from_sums(self, s1, s2, t):
        return [("i", x) for x in (
            "v_mul_f32 v%d, 0x3b000000, v%d" % (s1, s1),
            "v_mul_f32 v%d, v%d, v%d" % (t, s1, s1),
            "v_mul_f32 v%d, 0x3b000000, v%d" % (s2, s2),
            "v_sub_f32 v%d, v%d, v%d" % (s2, s2, t),
            "v_max_f32 v%d, 0, v%d" % (s2, s2),
            "v_cvt_pk_bf16_f32 v%d, v%d, v%d" % (s2, s2, s2),
            "v_lshlrev_b32 v%d, 16, v%d" % (s2, s2),
            "v_add_f32 v%d, 0x3727c5ac, v%d" % (s2, s2),
            "v_cvt_pk_bf16_f32 v%d, v%d, v%d" % (s2, s2, s2),
            "v_lshlrev_b32 v%d, 16, v%d" % (s2, s2),
            "v_sqrt_f32 v%d, v%d" % (s2, s2),
            "v_cvt_pk_bf16_f32 v%d, v%d, v%d" % (s2, s2, s2),
            "v_lshlrev_b32 v%d, 16, v%d" % (s2, s2),
            "v_rcp_f32 v%d, v%d" % (s2, s2))]

    def publish(self, xi):
        a = self.a
        S1, S2, S3, S4, AD = 26, 27, 28, 29, 25
        a.I("s_add_u32 %s, %s, %d" % (sTS, sXST, LY.XB[xi]))
        for e in range(2):
            a.vm("buffer_store_dwordx4 %s, v%d, %s, %s offen offset:%d%s" % (vr(XRES + 4 * e, 4), vQ, WS, sTS, e * 2048, " " + OPT["x0f"] if xi == 0 else ""))
        for k in range(4):
            for d, p, o in ((S1, XRES + k, sONE), (S2, XRES + k, None), (S3, XRES + 4 + k, sONE), (S4, XRES + 4 + k, None)):
                a.I("v_dot2_f32_bf16 v%d, v%d, %s, %s" % (d, p, o or "v%d" % p, "v%d" % d if k else "0"))
        a.I(self.getc(AD, aST) + "\ns_add_u32 %s, %s, %d" % (sTS, sSST, LY.SB[xi]))
        a.I("v_add_f32 v%d, v%d, v%d\nv_add_f32 v%d, v%d, v%d" % (S1, S1, S3, S2, S2, S4))
        a.I("v_permlane32_swap_b32 v%d, v%d\nv_add_f32 v%d, v%d, v%d\nv_mov_b32 v%d, v%d" % (S1, S2, S1, S1, S2, S2, S1))
        a.I("v_permlane16_swap_b32 v%d, v%d\nv_add_f32 v%d, v%d, v%d" % (S1, S2, S1, S1, S2))
        a.vm("buffer_store_dword v%d, v%d, %s, %s offen" % (S1, AD, WS, sTS), "pub")

    def startup(self):
        a = self.a
        lin = self.lin
        t8, kc, tok, g, hh, t32, u0, u1, rr, cc, q16, vA, vR, vB, vD, TA0, TA1, TD, TG, CSW, XA, XV, FAV, LINE = range(F, F + 24)
        ONES = F + 24
        def put(acc): a.I("v_accvgpr_write_b32 a%d, v%d" % (acc, u1))
        a.I("%s_kernel:" % NAME)
        a.I("s_cmp_ge_u32 s2, 256\ns_cbranch_scc1 L_main_done")
        a.I("s_load_dwordx16 s[64:79], s[0:1], 0\ns_load_dwordx2 s[4:5], s[0:1], 72")
        if OPT["stamps"] or OPT["diagpad"]:
            a.I("s_memrealtime s[98:99]")
        if OPT["stamps"]:
            a.I("s_memtime s[%d:%d]" % (sST, sST + 1))
        a.I("s_getpc_b64 s[56:57]\nL_pc:\ns_lshr_b32 s58, s2, 3\ns_lshl_b32 s58, s58, 11")
        a.I("v_lshrrev_b32 v16, 6, v0\nv_lshrrev_b32 v17, 4, v0\nv_lshlrev_b32 v17, 7, v17\nv_add_u32 v17, s58, v17")
        a.I("v_min_u32 v17, L_code_end-L_pc-4, v17\nv_and_b32 v0, 63, v0\nv_readfirstlane_b32 %s, v16" % sW)
        a.vm("global_load_dword a255, v17, s[56:57]")
        a.I("s_and_b32 %s, s2, 7\ns_bfe_u32 %s, s2, 0x40003\ns_lshr_b32 %s, s2, 7" % (sN, sJ, sP))
        a.I("s_lshr_b32 %s, %s, 3\ns_and_b32 %s, %s, 7" % (sR, sJ, sC, sJ))
        a.I("v_and_b32 v%d, 7, v0\nv_lshrrev_b32 v%d, 3, v0\nv_and_b32 v%d, 15, v0\nv_lshrrev_b32 v%d, 4, v0" % (t8, kc, tok, g))
        cuA, kkA, stA, cuG, kkG, sSG, sSD, kkD = "s28", "s29", "s30", "s32", "s33", "s6", "s7", "s36"
        self.sdivmod(kkA, cuA, "s2", 24)
        a.I("s_sub_u32 %s, s2, 192\ns_lshr_b32 %s, %s, 3" % (sT0, sT0, sT0))
        a.I("s_cmp_lt_u32 s2, 192\ns_cselect_b32 %s, %s, %s\ns_cselect_b32 %s, %s, %s\ns_cselect_b32 %s, 3, 1\ns_lshl_b32 %s, %s, 10" %
            (cuA, cuA, sN, kkA, kkA, sT0, stA, stA, stA))
        a.I("v_lshlrev_b32 v%d, 4, v%d\nv_mad_u32_u24 v%d, v%d, %s, v%d" % (u0, t8, vA, kc, stA, u0))
        a.I("s_lshl_b32 %s, %s, 2\ns_add_u32 %s, %s, %s\ns_lshl_b32 %s, %s, 4\ns_mul_i32 %s, %s, %s" % (sT0, kkA, sT0, sT0, sW, sT0, sT0, sT0, sT0, stA))
        a.I("s_lshl_b32 %s, %s, 7\ns_add_u32 %s, %s, %s\ns_lshl_b32 %s, %s, 3\ns_add_u32 %s, %s, %s\ns_sub_u32 %s, %s, 1024" %
            (sT1, cuA, sT0, sT0, sT1, sT1, stA, sT1, sT1, sT0, sT1, sT1))
        a.I("s_lshl_b32 %s, %s, 11\ns_add_u32 m0, %s, %d" % (sLW2, sW, sLW2, L_FMT))
        a.I("s_lshl_b32 s31, %s, 1\ns_add_u32 s31, s31, %s\ns_lshl_b32 s31, s31, 2\ns_add_u32 s31, s31, %s\ns_lshl_b32 s31, s31, 5" % (sN, sR, sW))
        a.I("s_add_u32 s31, s31, %s\ns_lshl_b32 s31, s31, 3\ns_add_u32 s31, s31, %s\ns_lshl_b32 s31, s31, 7" % (sP, sC))
        a.I("v_lshlrev_b32 v%d, 11, v%d\nv_lshl_add_u32 v%d, v%d, 4, v%d\nv_add_u32 v%d, s31, v%d" % (vR, tok, vR, g, vR, vR, vR))
        a.I("s_waitcnt lgkmcnt(0)")
        a.I("s_load_dword %s, s[4:5], %d" % (sNONCE, LY.EPOCH))
        a.I("s_cmp_lt_u32 s2, 192\ns_cselect_b32 s%d, s66, s68\ns_cselect_b32 s%d, s67, s69\ns_and_b32 s%d, s%d, 0xffff" % (SRC_A, SRC_A + 1, SRC_A + 1, SRC_A + 1))
        a.I("s_lshl_b32 s%d, %s, 9\ns_mov_b32 s%d, 0x20000" % (SRC_A + 2, stA, SRC_A + 3))
        sa = "s[%d:%d]" % (SRC_A, SRC_A + 3)
        a.vm("buffer_load_dwordx4 v%d, %s, %s offen lds" % (vA, sa, sT0))
        a.vm("buffer_load_dwordx4 v%d, %s, %s offen offset:1024 lds" % (vA, sa, sT1), "fa")
        self.srd(12, "s64", "s65", 2048 * 1024)
        a.vm("buffer_load_dwordx4 %s, v%d, %s, 0 offen" % (vr(XRES, 4), vR, XIN))
        a.vm("buffer_load_dwordx4 %s, v%d, %s, 0 offen offset:64" % (vr(XRES + 4, 4), vR, XIN), "x")
        if OPT["stamps"]:
            a.I("v_mov_b32 v%d, 0\nv_writelane_b32 v%d, s98, 62\nv_writelane_b32 v%d, s%d, 0" % (vSTAMP, vSTAMP, vSTAMP, sST))
            self.nstamp = 1
        if OPT["diagpad"]: a.I("s_mov_b32 s14, s98")
        self.stamp("p")
        self.srd(8, "s4", "s5", LY.WS_USED)
        a.I("s_lshl_b32 %s, %s, 1\ns_add_u32 %s, %s, %s" % (sG, sN, sG, sG, sP))
        lin(sFLG, str(LY.FL), [(sG, 256)])
        lin(sFLW, sFLG, [(sJ, 16), (sW, 4)])
        lin(sSST, str(LY.ACT), [(sG, LY.ACT_STRIDE), (sR, 4096), (sC, 8), (sW, 1024)])
        lin(sTS, sSST, [(sC, 120)])
        a.I("s_add_u32 %s, %s, %d\nv_mov_b32 v%d, %s\nv_mov_b32 v%d, %s\nv_cmp_gt_u32 vcc, 32, v0\nv_cndmask_b32 v%d, v%d, v%d, vcc" %
            (sTS, sTS, LY.SB[0], u1, sTS, XA, sFLW, XA, u1, XA))
        a.vm("buffer_load_dword a255, v%d, %s, 0 offen sc1" % (XA, WS))
        self.sdivmod(kkG, cuG, "s2", 28)
        a.I("v_mul_u32_u24 v%d, 3584, v%d\nv_add_u32 v%d, v%d, v%d\nv_lshl_add_u32 v%d, v%d, 10, v%d" % (vB, kc, vB, vB, u0, vD, kc, u0))
        a.I("s_lshr_b32 %s, s2, 3" % kkD)
        lin(sSG, "0", [(kkG, 64 * 3584), (sW, 16 * 3584), (cuG, 128)])
        lin(sSD, "0", [(kkD, 65536), (sW, 16384), (sN, 128)])
        self.srd(SRC_G, "s72", "s73", 512 * 3584)
        self.srd(SRC_U, "s74", "s75", 512 * 3584)
        self.srd(SRC_D, "s76", "s77", 1792 * 1024)
        def b_loads():
            for srdn, so, va, stride, lo in ((SRC_G, sSG, vB, 3584, 8192), (SRC_U, sSG, vB, 3584, 16384), (SRC_D, sSD, vD, 1024, 24576)):
                a.I("s_add_u32 m0, %s, %d\ns_add_u32 %s, %s, %d" % (sLW2, L_FMT + lo, sT0, so, 8 * stride - 1024))
                a.vm("buffer_load_dwordx4 v%d, s[%d:%d], %s offen lds" % (va, srdn, srdn + 3, so))
                a.vm("buffer_load_dwordx4 v%d, s[%d:%d], %s offen offset:1024 lds" % (va, srdn, srdn + 3, sT0), ("fb", lo))
        if OPT["b_pos"] == 0: b_loads()
        self.srd(16, "s78", "s79", 2048 * 1024)
        a.I("v_accvgpr_write_b32 a%d, v%d\nv_lshlrev_b32 v%d, 4, v0" % (aROW, vR, vL16))
        dA, dA2, dCS = "s3", "s0", "s1"
        a.I("s_and_b32 %s, %s, 7\ns_lshl_b32 %s, %s, 1\ns_lshr_b32 %s, %s, 1\ns_add_u32 %s, %s, %s" % (sT0, cuA, sT0, sT0, sT1, sW, sT0, sT0, sT1))
        a.I("s_mul_i32 %s, %s, %d\ns_add_u32 %s, %s, %d" % (sT0, sT0, LY.WQ_STRIDE, sT0, sT0, LY.WQ))
        a.I("s_lshr_b32 %s, %s, 3\ns_lshl_b32 %s, %s, 1\ns_and_b32 %s, %s, 1\ns_add_u32 %s, %s, %s" % (sT1, cuA, sT1, sT1, sT2, sW, sT1, sT1, sT2))
        lin(dA, sT0, [(kkA, 12288), (sT1, 1024)])
        lin(dCS, sT0, [(kkA, 64), (sT1, 512)])
        a.I("s_add_u32 %s, %s, 98304" % (dCS, dCS))
        lin(sT0, str(LY.WO), [(cuA, LY.WO_STRIDE), (kkA, 8192), (sW, 1024)])
        a.I("s_cmp_lt_u32 s2, 192\ns_cselect_b32 %s, %s, %s\ns_cselect_b32 %s, %s, 0x%x\ns_cselect_b32 %s, 6, 4\ns_cselect_b64 vcc, -1, 0" %
            (dA, dA, sT0, dCS, dCS, OOB, dA2))
        a.I("s_lshl_b32 %s, %s, 10\ns_add_u32 %s, %s, %s" % (dA2, dA2, dA2, dA2, dA))
        a.I("v_bfe_u32 v%d, v0, 2, 2\nv_and_b32 v%d, 3, v0\nv_bfe_u32 v%d, v0, 4, 1\nv_lshrrev_b32 v%d, 5, v0\nv_and_b32 v%d, 31, v0" % (rr, cc, q16, hh, t32))
        a.I("v_lshl_add_u32 v%d, v%d, 3, v%d\nv_lshlrev_b32 v%d, 7, v%d\nv_lshl_add_u32 v%d, v%d, 2, v%d\nv_lshlrev_b32 v%d, 7, v%d" % (u0, g, rr, u0, u0, u1, g, rr, u1, u1))
        a.I("s_lshr_b32 %s, %s, 1\ns_lshl_b32 %s, %s, 6\ns_and_b32 %s, %s, 1\ns_lshl_b32 %s, %s, 3\ns_add_u32 %s, %s, %s\ns_add_u32 %s, %s, %d" %
            (sT0, sW, sT0, sT0, sT1, sW, sT1, sT1, sT0, sT0, sT1, sT0, sT0, L_FMT))
        a.I("v_lshl_add_u32 v%d, v%d, 4, %s\nv_add_u32 v%d, v%d, v%d\nv_add_u32 v%d, v%d, v%d" % (TA1, cc, sT0, TD, TA1, u0, u1, u1, TA1))
        a.I("s_lshl_b32 %s, %s, 5\ns_add_u32 %s, %s, %d\nv_lshl_add_u32 v%d, v%d, 3, %s\nv_add_u32 v%d, v%d, v%d" % (sT0, sW, sT0, sT0, L_FMT, TA0, cc, sT0, u0, u0, TA0))
        a.I("v_mov_b32 v%d, v%d" % (TG, u0))
        a.I("v_cndmask_b32 v%d, v%d, v%d, vcc\nv_add_u32 v%d, 512, v%d\nv_add_u32 v%d, 2048, v%d\nv_cndmask_b32 v%d, v%d, v%d, vcc" % (TA0, u1, u0, u0, u0, u1, u1, TA1, u1, u0))
        for k in range(4): a.I("v_mov_b32 v%d, 0x3f803f80" % (ONES + k))
        a.I("v_lshlrev_b32 v%d, 2, v%d\nv_lshl_add_u32 v%d, v%d, 28, v%d" % (CSW, tok, CSW, g, CSW))
        a.I("s_mov_b32 %s, 0\ns_mov_b32 %s, 0x3f803f80" % (sSLOW, sONE))
        a.I("v_cmp_ne_u32 vcc, 0, v0\nv_mov_b32 v%d, 0x%x\nv_lshlrev_b32 v%d, 2, v0\nv_cndmask_b32 v%d, 0, v%d, vcc" % (vF1, OOB, vFL, vF1, vF1))
        a.I("s_lshl_b32 %s, %s, %d\ns_add_u32 %s, %s, 0x%x" % (sGB, sG, LY.ACT_SHIFT, sGB, sGB, LY.ACT))
        lin(sXLD, sGB, [(sW, 32768)])
        a.I("s_lshr_b32 %s, %s, 1\ns_and_b32 %s, %s, 1" % (sT0, sW, sT1, sW))
        lin(sXST, sGB, [(sR, 65536), (sC, 4096), (sT0, 32768), (sT1, 256)])
        lin(sOST, sXLD, [(sJ, 2048)])
        lin(sT0, str(LY.XF), [(sG, 2048)])
        a.I("v_lshl_add_u32 v%d, v%d, 7, %s\nv_lshl_add_u32 v%d, v%d, 30, v%d\nv_accvgpr_write_b32 a%d, v%d" % (XA, tok, sT0, LINE, hh, vFL, aLINE, LINE))
        a.I("v_lshlrev_b32 v%d, 4, v%d\nv_lshl_add_u32 v%d, v%d, 9, v%d" % (u0, tok, vQ, g, u0))
        a.I("v_lshlrev_b32 v%d, 6, v%d\nv_lshl_add_u32 v%d, v%d, 2, v%d\nv_lshl_add_u32 v%d, v%d, 30, v%d" % (u1, tok, u1, hh, u1, u1, q16, u1)); put(aST)
        def die_id():
            lin(sT0, str(LY.XF), [(sG, 2048), (sJ, 128)])
            a.I("s_cmp_eq_u32 %s, 0\ns_cselect_b32 %s, %s, 0x%x\ns_getreg_b32 %s, hwreg(HW_REG_XCC_ID, 0, 4)" % (sW, sT0, sT0, OOB, sT1))
            a.I("s_waitcnt lgkmcnt(0)\ns_add_u32 %s, %s, 0x9e3779b1\ns_xor_b32 %s, %s, %s\nv_mov_b32 v%d, %s" % (sNONCE, sNONCE, sT1, sT1, sNONCE, XV, sT1))
            a.vm("buffer_store_dword v%d, v%d, %s, %s offen sc1" % (XV, LINE, WS, sT0))
            self.stamp("p")
        if OPT["c_early"] < 2: die_id()
        def constants():
            lin(sB3, str(LY.WD), [(sN, LY.WD_STRIDE), (kkD, 8192), (sW, 1024)])
            a.I("s_lshl_b32 %s, %s, 2\ns_add_u32 %s, %s, %s" % (cuG, cuG, cuG, cuG, sW))
            self.sdivmod(sT0, sT1, cuG, 7)
            lin(sB2, str(LY.WG), [(sT0, LY.WG_STRIDE)])
            a.I("s_sub_u32 %s, 6, %s\ns_bitcmp1_b32 %s, 0\ns_cselect_b32 %s, %s, %s" % (sT2, sT1, sT0, sT1, sT1, sT2))
            S0, TL = GS0, 16 - GS0
            lin(sB0, sB2, [(kkG, 28 * 1024), (sT1, 2048)])
            lin(sB2, sB2, [(sT1, (2 * TL + 1) * 1024)])
            lin(sT0, sB2, [(kkG, 4096)])
            a.I("s_add_u32 %s, %s, %d\ns_cmp_lt_u32 %s, %d\ns_cselect_b32 %s, %s, %s\ns_cselect_b32 %s, 14, 2\ns_lshl_b32 %s, %s, 10" %
                (sT0, sT0, 12 * S0 * 1024, kkG, S0 // 2, sB0, sB0, sT0, sB1, sB1, sB1))
            lin(sB2, sB2, [(kkG, 64)])
            a.I("s_add_u32 %s, %s, %d" % (sB2, sB2, (14 * S0 + 2 * TL) * 1024))
            a.I("s_cmp_lt_u32 s2, 224")
            for r_ in (sB0, sB2, sB3): a.I("s_cselect_b32 %s, %s, 0x%x" % (r_, r_, OOB))
            lin(sHFL, str(LY.HFL), [(sG, 1024)])
            lin(sHDFL, sHFL, [(sC, 128)])
            lin(sFBO, str(LY.FA), [("s2", 128)])
            a.I("s_add_u32 %s, %s, 2048\ns_add_u32 %s, %s, 0x%x" % (sHDFL, sHDFL, sHDST, sGB, 2 * LY.ACT_STRIDE))
            a.I("s_cmp_eq_u32 %s, 0\ns_cselect_b32 %s, %s, 0x%x" % (sW, sFBO, sFBO, OOB))
            a.I("s_lshl_b32 %s, %s, 2\ns_add_u32 %s, %s, %s\ns_cmp_eq_u32 %s, 7\ns_cselect_b32 %s, 0, %s\ns_cmp_eq_u32 %s, 7" % (sT0, sR, sT0, sT0, sW, sN, sT0, sT0, sT0))
            a.I("s_cselect_b32 %s, %s, 0x%x" % (sHDST, sHDST, OOB))
            a.I("v_lshlrev_b32 v%d, 4, v%d\nv_lshl_add_u32 v%d, v%d, 7, v%d\nv_add_u32 v%d, %d, v%d" % (u0, t8, u0, g, u0, u1, L_HALO, u0)); put(aHX)
            a.I("s_lshl_b32 %s, %s, 10\nv_add3_u32 v%d, v%d, v%d, %s" % (sT0, sC, u1, u0, vA, sT0)); put(aHST)
            if "c" not in OPT["order"]: constants2()
        def constants2():
            if OPT["c_early"] == 2: die_id()
            a.I("s_lshr_b32 %s, s2, 3\ns_lshl_b32 %s, %s, 2\ns_add_u32 %s, %s, %s\ns_lshl_b32 %s, %s, 7" % (sCPO, sCPO, sCPO, sCPO, sCPO, sW, sCPO, sCPO))
            lin(sHST, sGB, [(sW, 114688), (sJ, 7168)])
            lin(sSLD, sGB, [(sW, 2048)])
            lin(sOL, sXST, [(sC, -4096)])
            a.I("s_bitcmp1_b32 %s, 0\ns_cselect_b32 %s, 1, -1\ns_cselect_b32 %s, 0, 6144\ns_lshl_b32 %s, %s, 10\ns_add_u32 %s, %s, %s" % (sJ, sHSTEP, sT0, sHSTEP, sHSTEP, sHST, sHST, sT0))
            a.I("s_lshr_b32 %s, %s, 1\ns_lshl_b32 %s, %s, 1\ns_add_u32 %s, %s, %s\ns_lshl_b32 s66, 0x11111111, %s\ns_mov_b32 s67, s66" % (sT0, sW, sT1, sR, sT0, sT0, sT1, sT0))
            lin(sHLD[3], sGB, [(sR, 229376), (sW, 28672)])
            for i in range(4):
                a.I("s_add_u32 %s, %s, %d\ns_and_b32 %s, %s, 3\ns_lshr_b32 %s, %s, 1\ns_and_b32 %s, %s, 1" % (sTA, sW, i + 1, sTA, sTA, sT0, sTA, sT1, sTA))
                lin(sHLD[i], sHLD[3], [(sT0, 114688), (sT1, 256)])
                if i < 3: lin(sXW[i], str(i * 4096), [(sTA, 12288)])
            lin(sXR, "0", [(sW, 12288)])
            lin(sWQ, str(LY.WQ), [(sJ, LY.WQ_STRIDE * (1 - OPT["hitw"]))])
            lin(sWG, str(LY.WG), [(sJ, LY.WG_STRIDE * (1 - OPT["hitw"]))])
            lin(sWO, str(LY.WO), [(sC, LY.WO_STRIDE * (1 - OPT["hitw"])), (sW, 4096)])
            lin(sWD, str(LY.WD), [(sC, LY.WD_STRIDE * (1 - OPT["hitw"])), (sW, 57344)])
            lin(sTAB, str(L_TAB), [(sW, 512)])
            a.I("s_lshl_b32 %s, %s, 10\ns_lshl_b32 %s, %s, 12\ns_add_u32 %s, %s, %s\ns_add_u32 %s, %s, %s" % (sLW, sW, sLW4, sW, sWQ4, sWQ, sLW4, sWG4, sWG, sLW4))
            a.I("s_cmp_eq_u32 %s, 0\ns_cselect_b32 %s, 0x%x, %s\ns_cselect_b32 s54, 0, 0xff\ns_mov_b32 s55, 0" % (sN, sHALO, OOB, sGB))
            a.I("s_add_u32 %s, %s, %s\ns_add_u32 %s, %s, %s\ns_add_u32 %s, %s, %s" % (sHALO2, sHALO, sLW2, sWQ, sWQ, sLW, sWG, sWG, sLW2))
            a.I("s_lshr_b32 %s, %s, 1\ns_lshl_b32 %s, %s, 5\ns_and_b32 %s, %s, 1\ns_lshl_b32 %s, %s, 1\ns_add_u32 %s, %s, %s" % (sT0, sW, sT0, sT0, sT1, sW, sT1, sT1, sT0, sT0, sT1))
            a.I("s_mov_b32 s40, 0x33333333\ns_mov_b32 s41, 0\ns_lshl_b64 s[40:41], s[40:41], %s" % sT0)
            a.I("s_lshl_b32 %s, %s, 1\ns_lshl_b32 %s, %s, 4\ns_add_u32 %s, %s, %s" % (sT0, sR, sT2, sW, sT0, sT0, sT2))
            a.I("s_mov_b32 s42, 0x3333\ns_mov_b32 s43, 0\ns_lshl_b64 s[42:43], s[42:43], %s" % sT0)
            a.I("v_add_u32 v%d, 0x10000, v%d\nv_add_u32 v%d, 0x20000, v%d" % (vL16b, vL16, vL16c, vL16))
            a.I("v_lshlrev_b32 v%d, 4, v%d\nv_lshl_add_u32 v%d, v%d, 6, v%d" % (u0, g, u1, tok, u0)); put(aSQ)
            a.I("v_lshl_add_u32 v%d, v%d, 6, v%d" % (u1, t8, u0)); put(aSH)
            a.I("v_lshlrev_b32 v%d, 7, v%d" % (u1, tok)); put(aTO)
            a.I("v_lshlrev_b32 v%d, 7, v%d\nv_lshl_add_u32 v%d, v%d, 5, v%d\nv_lshl_add_u32 v%d, v%d, 1, v%d\nv_lshlrev_b32 v%d, 3, v0" % (u0, rr, u0, g, u0, u0, cc, u0, u1))
            a.I("s_cmp_ge_u32 %s, 2\ns_cselect_b64 vcc, -1, 0\ns_cselect_b32 %s, 2, 8\nv_cndmask_b32 v%d, v%d, v%d, vcc" % (sW, sT1, u1, u0, u1))
            a.I("s_lshr_b32 %s, %s, 1\ns_add_u32 %s, %s, %d\nv_add_u32 v%d, %s, v%d" % (sT0, sLW, sT0, sT0, L_KV, u1, sT0, u1)); put(aHWR)
            a.I("v_mov_b32 v%d, %s" % (u1, sT1)); put(aHWS)
            a.I("v_min_u32 v%d, 6, v%d\ns_mul_i32 %s, %s, 7\nv_add_u32 v%d, %s, v%d" % (t32, t8, sT0, sW, t32, sT0, t32))
            a.I("s_lshl_b32 %s, %s, 1\nv_and_or_b32 v%d, v0, 1, %s" % (sT0, sW, t8, sT0))
            a.I("s_lshr_b32 %s, %s, 1\nv_mul_u32_u24 v%d, 24, v%d\nv_lshl_add_u32 v%d, v%d, 3, v%d\nv_add_u32 v%d, %s, v%d" % (sT0, sJ, u0, t8, u0, kc, u0, u0, sT0, u0))
            a.I("s_add_u32 %s, %s, 192\nv_lshl_add_u32 v%d, v%d, 3, %s\nv_cmp_gt_u32 vcc, 24, v0\nv_cndmask_b32 v%d, v%d, v%d, vcc" % (sT0, sC, u1, t8, sT0, u0, u1, u0))
            a.I("v_lshlrev_b32 v%d, 7, v%d\nv_add_u32 v%d, %d, v%d" % (u0, u0, FAV, LY.FA, u0))
            a.I("s_mul_i32 %s, %s, 7\ns_add_u32 %s, %s, 6\ns_lshr_b32 %s, %s, 2\ns_lshr_b32 %s, %s, 2" % (sT0, sJ, sT1, sT0, sT0, sT0, sT1, sT1))
            a.I("v_add_u32 v%d, %s, v%d\nv_min_u32 v%d, %s, v%d\nv_mad_u32_u24 v%d, v%d, 28, v%d" % (u0, sT0, kc, u0, sT1, u0, u0, t8, u0))
            a.I("v_lshl_add_u32 v%d, v%d, 3, %s\nv_cmp_gt_u32 vcc, 32, v0\nv_cndmask_b32 v%d, v%d, v%d, vcc" % (u1, t32, sC, u0, u1, u0))
            a.I("v_lshlrev_b32 v%d, 7, v%d\nv_add_u32 v%d, %d, v%d" % (u0, u0, u1, LY.FB, u0)); put(aFB)
            if OPT["c_early"] == 3: die_id()
            a.I("s_getpc_b64 %s\nL_pc2:\ns_sub_u32 s4, s4, L_pc2-L_pc\ns_subb_u32 s5, s5, 0" % sPC)
            NG, Z, M0_, M1_ = rr, cc, q16, hh
            a.I("s_or_b32 %s, %s, %s\ns_cmp_eq_u32 %s, 0\ns_cselect_b64 s[56:57], -1, 0" % (sT0, sN, sW, sT0))
            a.I("v_mov_b32 v%d, %s\nv_mov_b32 v%d, 0\nv_lshlrev_b32 v%d, 2, v%d\nv_sub_u32 v%d, v%d, v%d" % (NG, NEG, Z, vA, g, vA, tok, vA))
            for r in range(4):
                a.I("v_subrev_u32 v%d, %d, v%d\nv_mov_b32 v%d, %s" % (u0, r, vA, M0_, "0xffff0000" if r & 1 else "0xffff"))
                a.I("v_cmp_gt_u32 vcc, 8, v%d\nv_cmp_gt_i32 s[58:59], -8, v%d\nv_cmp_le_i32 s[60:61], 0, v%d" % (u0, u0, u0))
                a.I("v_cndmask_b32 v%d, v%d, v%d, vcc" % (u1, NG, Z)); put(aBC + r)
                a.I("v_cndmask_b32 v%d, v%d, v%d, s[58:59]" % (u1, NG, Z)); put(aBP + r)
                a.I("v_cndmask_b32 v%d, v%d, v%d, s[56:57]" % (u1, u1, NG)); put(aBP0 + r)
                if r & 1:
                    a.I("v_cndmask_b32 v%d, v%d, v%d, s[60:61]\nv_or_b32 v%d, v%d, v%d" % (u1, Z, M0_, u1, u1, M1_)); put(aMC + r // 2)
                else:
                    a.I("v_cndmask_b32 v%d, v%d, v%d, s[60:61]" % (M1_, Z, M0_))
        a.I("v_bfe_u32 v%d, v0, 3, 1\nv_xor_b32 v%d, 1, v%d\nv_lshlrev_b32 v%d, 29, v%d" % (vA, vA, vA, vA, vA))
        a.I("s_lshl_b32 %s, %s, 3\ns_add_u32 %s, %s, %d\nv_add3_u32 v%d, v%d, v%d, %s" % (sT0, sC, sT0, sT0, 8192 - 512, u1, u1, vA, sT0)); put(aHSS)
        if OPT["c_early"]: constants()
        self.stamp("p")
        if OPT["b_pos"] == -1: b_loads()
        a.vm_wait("fa")
        a.I("s_barrier")
        for sp in range(2):
            for half in range(2):
                a.ds("ds_read_b64_tr_b16 %s, v%d offset:%d" % (vr(ACC + 4 * sp + 2 * half, 2), (TA0, TA1)[half], sp * 4096), ("t", sp))
        self.stamp("p")
        for sp in range(2):
            a.ds_wait(("t", sp))
            a.vm("buffer_store_dwordx4 %s, v%d, %s, %s offen sc1" % (vr(ACC + 4 * sp, 4), vL16, WS, (dA, dA2)[sp]))
            a.I("v_mfma_f32_16x16x32_bf16 %s, %s, %s, %s" % (vr(ACC + 8, 4), vr(ONES, 4), vr(ACC + 4 * sp, 4), vr(ACC + 8, 4) if sp else "0"))
        a.I("\n".join(self.hi_lo(ACC + 12, ACC + 8, ACC + 13)))
        a.vm("buffer_store_dword v%d, v%d, %s, %s offen sc1" % (ACC + 12, CSW, WS, dCS), "fas")
        if OPT["b_pos"] == -2: b_loads()
        a.vm_wait("x")
        self.publish(0)
        xload = "buffer_load_dword v31, v%d, %s, 0 offen sc1" % (XA, WS)
        a.vm(xload, "xf")
        if OPT["b_pos"] == 1: b_loads()
        self.stamp("p")
        if not OPT["c_early"]: constants()
        def second_unit():
            G, D, CS = X + 96, X + 112, ACC + 48
            out = []
            def store(ops):
                if OPT["b_spread"] and "b" not in OPT["order"]: out.append(ops)
                else: a.run_all(ops)
            if "b" in OPT["order"]:
                a.vm_wait(("fb", 24576))
                a.I("s_barrier")
            for n_ in range(4):
                for half in range(2):
                    a.ds("ds_read_b64_tr_b16 %s, v%d offset:%d" % (vr(G + 4 * n_ + 2 * half, 2), TG, 8192 * (1 + n_ % 2) + (32 * (n_ // 2) + 4 * half) * 128), ("tg", n_))
            for sp in range(2):
                for half in range(2):
                    a.ds("ds_read_b64_tr_b16 %s, v%d offset:%d" % (vr(D + 4 * sp + 2 * half, 2), TD, 24576 + (32 * sp + 4 * half) * 128), ("td", sp))
            for n_ in range(4):
                a.ds_wait(("tg", n_))
                store(([("i", "s_add_u32 %s, %s, %s" % (sB0, sB0, sB1))] if n_ == 2 else []) +
                      [("vm", "buffer_store_dwordx4 %s, v%d, %s, %s offen offset:%d sc1" % (vr(G + 4 * n_, 4), vL16, WS, sB0, (n_ % 2) * 1024))])
                c_ = vr(CS + 4 * (n_ % 2), 4)
                a.I("v_mfma_f32_16x16x32_bf16 %s, %s, %s, %s" % (c_, vr(ONES, 4), vr(G + 4 * n_, 4), c_ if n_ >= 2 else "0"))
            for sp in range(2):
                a.ds_wait(("td", sp))
                store(([("i", "s_add_u32 %s, %s, 4096" % (sB3, sB3))] if sp else []) +
                      [("vm", "buffer_store_dwordx4 %s, v%d, %s, %s offen sc1" % (vr(D + 4 * sp, 4), vL16, WS, sB3))])
            a.I("v_cmp_gt_u32 vcc, 16, v0\nv_bfe_u32 v%d, v0, 4, 1\nv_mul_u32_u24 v%d, 448, v%d\nv_add_u32 v%d, v%d, v%d\nv_cndmask_b32 v%d, v%d, v%d, vcc" %
                (D + 9, D + 9, D + 9, D + 9, D + 9, LINE, CS, CS + 4, CS))
            a.I("\n".join(self.hi_lo(D + 8, CS, CS + 1)))
            store([("vm", "buffer_store_dword v%d, v%d, %s, %s offen sc1" % (D + 8, D + 9, WS, sB2), "fbs")])
            self.stamp("p")
            return out
        def first_flags():
            a.I("v_mov_b32 v30, %s" % sNONCE)
            a.vm_wait("fas")
            a.I("s_barrier")
            a.vm("buffer_store_dword v30, v%d, %s, %s offen sc1" % (LINE, WS, sFBO))
            a.I("s_add_u32 %s, %s, %d" % (sFBO, sFBO, LY.FB - LY.FA))
            self.stamp("p")
        def own_flags():
            spin, back = a.label("xspin"), a.label("xback")
            test = "v_xor_b32 v29, %s, v31\nv_cmp_lt_u32 vcc, 15, v29\ns_and_b64 vcc, vcc, exec" % sNONCE
            a.vm_wait("xf")
            a.I("%s\ns_cbranch_scc1 %s\n%s:" % (test, spin, back))
            self.cold.append("%s:\ns_mov_b32 %s, 0x40000\n%s_l:\n%s\ns_sub_u32 %s, %s, 1\ns_cbranch_scc1 L_main_done\ns_waitcnt vmcnt(0)\n%s\ns_cbranch_scc1 %s_l\ns_branch %s"
                             % (spin, sSPIN, spin, xload, sSPIN, sSPIN, test, spin, back))
            a.I("v_cmp_ne_u32 vcc, v%d, v31\ns_cmp_lg_u64 vcc, 0\ns_cselect_b32 %s, 1, 0\ns_mov_b32 s0, %s\ns_mov_b32 s1, 0" % (XV, sSLOW, sSLOW))
            self.signal(0, "pub", 0)
            self.stamp("p")
        for step in OPT["order"]:
            {"b": second_unit, "a": first_flags, "o": own_flags, "c": constants2}[step]()
        self.stamp("p")
        if "b" in OPT["order"]:
            a.vm_wait("fbs")
            a.I("s_barrier")
            a.vm("buffer_store_dword v30, v%d, %s, %s offen sc1" % (LINE, WS, sFBO))
        elif OPT["predrain"]:
            a.vm_drain()
        self.stamp("p")
        self.second_unit, self.b_loads = second_unit, b_loads
        self.fav = FAV

    def qkv(self, ps):
        a = self.a
        xi = 2 * ps
        late = self.wq_late(ps)
        lateb = ps == 0 and "b" not in OPT["order"]
        bst = []
        wql = [g for ch in late for g in self.wq_chunk(ch)]
        split = ps == 0 and OPT["q0_split"]
        HX, HW, HW2, HF, NM, RL, CQ, RR = 16, 17, 18, 19, 20, 26, 28, ACC + 52
        def setup():
            a.I(self.getc(30, aSQ) + "\n" + self.getc(31, aSH) + "\n" + self.getc(HX, aHX))
            a.I("s_add_u32 %s, %s, 2048\nv_add_u32 v%d, %s, v%d\nv_add_u32 v%d, 0xc000, v%d\nv_lshlrev_b32 v%d, 7, v0" % (sT2, sLW, HW, sT2, vL16, HW2, HW, CQ))
        self.poll(6 * ps, sMA, self.fav if ps == 0 and not split else None, setup)
        self.stamp()
        xl = self.reg_loads([vr(X + 8 * s + 4 * b, 4) for s in range(16) for b in range(2)], [sXLD] * 32,
                            [LY.XB[xi] + s * 2048 + b * 256 for s in range(16) for b in range(2)], sTA, vQ, "x")
        UP = OPT["q_up"] if ps else OPT["q0_up"]
        if ps == 0:
            late = late[1:]
            n = 4 + OPT["q0_w"]
            first = wql[:4] + xl[:UP] + wql[4:n]
            if split:
                l_fa, g_fa = self.late_check("buffer_load_dword v%d, v%d, %s, 0 offen sc1" % (HF, self.fav, WS), HF, "exec", "fa")
                n1 = OPT["q0_n1"]
                first = xl[:n1] + [l_fa] + xl[n1:UP] + [g_fa + [("i", "s_barrier")]] + wql[:n]
            else:
                first = xl[:2] + [[("i", "s_barrier")]] + wql[:4] + xl[2:UP] + wql[4:n]
            wql = wql[n:]
            if OPT["b_pos"] >= 2:
                k = OPT["b_pos"] - 2
                a.run_all(self.flat(first[:k])); first = first[k:]
                self.b_loads(); a.state.pop("m0", None)
            if lateb:
                k = len(first) - OPT["q0_b"]
                a.run_all(self.flat(first[:k])); first = first[k:]
                if OPT["b_pos"] >= 2: a.vm_wait(("fb", 24576))
                a.I("s_barrier")
                bst = self.second_unit()
            a.run_all(self.flat(first))
        else:
            a.run_all(self.flat(xl[:UP]))
        if ps == 0:
            a.vm_wait(("wq", 0))
        a.I("s_barrier")
        sl = Slots()
        sl.mpatience, sl.patience = OPT["q_mp%d" % ps], OPT["q_vp"]
        use = {}
        acc = lambda blk, b: vr(ACC + 8 * blk + 4 * b, 4)
        hbuf = lambda t: (F + 24, X)[t % 2]
        step0 = {}
        H0 = OPT["q_h0"]
        hpos = {}
        for t in range(16):
            p = (t * 6 * (16 - H0)) // 16 + 1
            hpos.setdefault((H0 + p // 6, p % 6), []).append(t)
        Y, Z = X + 8, X + 96
        BC, BP, BP0, MC, ONES, KW, CSA = Y, Y + 4, Y + 8, Y + 12, Y + 14, Y + 16, Y + 21
        def halo_mfma(t):
            d = acc(6, 0)
            if t < 16:
                i = sl.add("v_mfma_f32_16x16x32_bf16 %s, %s, %s, %s" % (d, vr(hbuf(t) + 4, 4), vr(hbuf(t), 4), "0" if t == 0 else d), [("wds", ("hx", t))])
            else:
                i = sl.add("v_mfma_f32_16x16x16_bf16 %s, %s, %s, %s" % (d, vr(NM + 4, 2), vr(hbuf(t), 2), d), [("wds", ("hw", t))])
            use[("h", t)] = i
        for s in range(17):
            step0[s] = sl.n()
            if s == 16: halo_mfma(16)
            for f in range(6):
                for b in range(2):
                    pre_ = []
                    if b == 0: pre_.append(("wds", ("f", s, f // OPT["q_grp"] * OPT["q_grp"] + OPT["q_grp"] - 1)))
                    if f == 0 and s < 16: pre_.append(("wvm", ("x", 2 * s + (b if s == 0 else 1))))
                    w = vr(F + 4 * f, 4 if s < 16 else 2)
                    x = vr(X + 8 * s + 4 * b, 4) if s < 16 else vr(NM + 2 * b, 2)
                    A, B = (w, x) if f < 4 else (x, w)
                    d = acc(f, b)
                    mn = "v_mfma_f32_16x16x32_bf16" if s < 16 else "v_mfma_f32_16x16x16_bf16"
                    use[(s, f)] = sl.add("%s %s, %s, %s, %s" % (mn, d, A, B, "0" if s == 0 else d), pre_)
                for t in hpos.get((s, f), ()): halo_mfma(t)
        reads = []
        for s in range(17):
            for f in range(6):
                d = F + 4 * f
                if s < 16: t = "ds_read_b128 %s, %s" % (vr(d, 4), ldsaddr(s * 6144 + f * 1024))
                else: t = "ds_read2st64_b32 %s, v%d offset0:%d offset1:%d" % (vr(d, 2), CSA, 2 * f, 2 * f + 1)
                reads.append((use[(s - 1, f)] if s else -1, (6 * s + f) // 16, ("ds", t, ("f", s, f))))
        hbar = step0[H0 - 1] + 4
        for t in range(17):
            pos = use[("h", t - 2)] if t >= 2 else hbar + 2 + 2 * t
            if t < 16:
                reads.append((pos, (6 * t + 5) // 16, ("ds", "ds_read_b128 %s, v%d offset:%d" % (vr(hbuf(t), 4), HW if t < 8 else HW2, (t % 8) * 6144), ("hw", t))))
                reads.append((pos + (1 if t >= 2 else 0), 0, ("ds", "ds_read_b128 %s, v%d offset:%d" % (vr(hbuf(t) + 4, 4), HX, t * 512), ("hx", t))))
            else:
                reads.append((pos, 6, ("ds", "ds_read2st64_b32 %s, v%d offset0:4 offset1:5" % (vr(hbuf(t), 2), CSA + 1), ("hw", t))))
        sl.put("c", step0[4], [("i", "v_add_u32 v%d, 98304, v%d\ns_lshr_b32 %s, %s, 1\nv_add_u32 v%d, %s, v%d" % (CSA, vFL, sT2, sLW, CSA + 1, sT2, CSA)), ("mark", "csaddr")])
        sl.after(step0[14], ("need", "csaddr"))
        sl.pre[step0[16]].append(("wds", ("nm", 2)))
        chbar = {}
        for ch in late:
            ops = [("wvm", ("wq", ch)), ("i", "s_barrier")]
            p = chbar[ch] = min(p for p, c, _ in reads if c == ch)
            if lateb and ch == OPT["q0_fbch"]:
                ops.insert(0, ("wvm", "fbs"))
                assert p >= step0[5]
                sl.put("f", p + 1, [("i", "v_mov_b32 v%d, %s\n%s" % (X + 32, sNONCE, self.getc(X + 33, aLINE))),
                                    ("vm", "buffer_store_dword v%d, v%d, %s, %s offen sc1" % (X + 32, X + 33, WS, sFBO))])
            sl.after(p, *ops)
        sl.after(hbar, ("wvm", "halo"), ("i", "s_barrier"))
        for pos, _, rd in reads:
            if pos < 0: a.run(rd)
            else: sl.after(pos, rd)
        l_hf, g_chk = self.late_check("buffer_load_dword v%d, v%d, %s, %s offen sc1" % (HF, CQ, WS, sT1), HF, sMH, "hf")
        g_hf = [("i", "v_and_b32 v%d, 0x380, v%d\ns_add_u32 %s, %s, %d" % (CQ, CQ, sT1, sHFL, ps * 16384))] + l_hf
        g_hd = self.dma_chunk(sHALO2, LY.HX[ps], L_HALO, 2, "halo", " sc1")
        g_hs = [("i", "s_add_u32 %s, %s, %d" % (sT1, sHALO, LY.HX[ps] + 8192)),
                ("vm", "buffer_load_dwordx4 %s, v31, %s, %s offen sc1" % (vr(RR + 8, 4), WS, sT1), "st")]
        g_s0 = [("i", "s_add_u32 %s, %s, %d" % (sT0, sSLD, LY.SB[xi])), ("vm", "buffer_load_dwordx4 %s, v30, %s, %s offen sc1" % (vr(RR, 4), WS, sT0))]
        g_s1 = [("vm", "buffer_load_dwordx4 %s, v30, %s, %s offen offset:1024 sc1" % (vr(RR + 4, 4), WS, sT0))]
        wbar = max(use[("h", 6)] + 2, step0[OPT["q_wbar"]])
        while sl.post[wbar]: wbar += 1
        sl.after(wbar, ("i", "s_barrier"))
        wo = [(0 if i < 2 else wbar + 2, g) for i in range(4) for g in self.wo_chunk(i)]
        rest = xl[UP:]
        h1 = OPT["q_hf"] if ps else OPT["q0_hf"]
        h2 = h1 + OPT["q_chk"] - 2
        seq = rest[:h1] + [g_hf, g_s0, g_s1] + rest[h1:h2] + [g_chk] + g_hd + [g_hs] + rest[h2:]
        if wql:
            due, d = [], sl.n()
            for g in reversed(seq):
                tag = g[-1][2] if len(g[-1]) > 2 else None
                if isinstance(tag, tuple) and tag[0] == "x": d = step0[tag[1] // 2]
                due.append((d, g))
            due.reverse()
            d, wdue = 0, []
            for g in reversed(wql):
                if g[-1][2] is not None: d = chbar[g[-1][2][1]] - OPT["q0_lead"]
                wdue.append((d, g)); d -= 6
            seq = [g for _, g in sorted(due + wdue[::-1], key=lambda t: t[0])]
        for n_, g in enumerate(bst):
            k = OPT["b_first"] + n_ * (OPT["b_gap"] + 1)
            assert not any(op[0] == "vm" and len(op) > 2 and isinstance(op[2], tuple) and op[2][0] == "x" and op[2][1] >= 24 for g2 in seq[:k] for op in g2)
            seq.insert(k, g)
        if ps == 0:
            if OPT["otouch"]: seq += self.touch(aTO, sOST, LY.OB[ps], CQ)
            l_fb, g_fb = self.late_check("%s\nbuffer_load_dword v%d, v%d, %s, 0 offen sc1" % (self.getc(Y + 23, aFB), Y + 23, Y + 23, WS), Y + 23, "exec", "fb")
            l_fb = [("i", l_fb[0][1].split("\n")[0]), ("vm", l_fb[0][1].split("\n")[1], "fb")]
            seq += [g + (OPT["q0_tail"] / 10,) for g in wo]
            sl.put("f", step0[OPT["q0_fbs"]], l_fb)
        else:
            seq += wo
        sl.put("g", step0[12], self.flat(self.code_touch("L_wo%d" % ps, CQ + 1)))
        left = sl.pace(seq, 0, (OPT["q_every"] if ps else OPT["q0_every"]) / 10)
        A0, A1, AH = RR, RR + 4, RR + 8
        st = [[("wvm", "st")]]
        for r_ in (A0, A1, AH):
            st.append([("i", "v_add_f32 v%d, v%d, v%d" % (r_, r_, r_ + 2))])
            st.append([("i", "v_add_f32 v%d, v%d, v%d" % (r_ + 1, r_ + 1, r_ + 3))])
        for o in (0, 1): st.append([("i", "v_mov_b32 v%d, v%d" % (AH + 2 + o, AH + o))])
        for o in (0, 1): st.append([("i", "v_permlane32_swap_b32 v%d, v%d" % (A0 + o, A1 + o))])
        for o in (0, 1): st.append([("i", "v_permlane32_swap_b32 v%d, v%d" % (AH + o, AH + 2 + o))])
        for o in (0, 1): st.append([("i", "v_add_f32 v%d, v%d, v%d" % (A0 + o, A0 + o, A1 + o))])
        for o in (0, 1): st.append([("i", "v_add_f32 v%d, v%d, v%d" % (AH + o, AH + o, AH + 2 + o))])
        for o in (0, 1): st.append([("i", "v_permlane16_swap_b32 v%d, v%d" % (A0 + o, AH + o))])
        for o in (0, 1): st.append([("i", "v_add_f32 v%d, v%d, v%d" % (A0 + o, A0 + o, AH + o))])
        st += [[op] for op in self.ln_from_sums(A0, A0 + 1, A0 + 2)]
        st.append([("i", "v_cvt_pk_bf16_f32 v%d, -v%d, -v%d" % (A0, A0, A0))])
        st.append([("i", "v_add_u32 v%d, %s, v%d" % (HF, sTAB, vFL))])
        st.append([("i", "v_and_or_b32 v30, v%d, 63, %s" % (vFL, sTAB))])
        st.append([("i", "v_and_or_b32 v31, v0, 48, %s" % sTAB)])
        st.append([("ds", "ds_write2st64_b32 v%d, v%d, v%d offset0:0 offset1:1" % (HF, A0 + 1, A0))])
        row = {0: 0, 1: 2, 2: 1}
        for b in range(3):
            o = 64 + row[b] * 16
            st.append([("ds", "ds_read2_b32 %s, v30 offset0:%d offset1:%d" % (vr(NM + 2 * b, 2), o, o), ("nm", b))])
        st.append([("ds", "ds_read2_b32 %s, v30 offset0:0 offset1:32" % vr(RL, 2))])
        for b in range(3):
            st.append([("ds", "ds_read_b128 %s, v31 offset:%d" % (vr(RR + 4 * b, 4), row[b] * 64), ("tab", b))])
        sl.spread(st, step0[H0] - OPT["q_st"], step0[14])
        cst = [[("i", self.getc(Y + k, aBC + k))] for k in range(14)]
        cst += [[("i", "v_mov_b32 v%d, %s" % (ONES + k, sONE))] for k in range(2)]
        cst += [[("i", self.getc(KW, aHWR))], [("i", self.getc(KW + 3, aHWS))], [("i", "s_add_u32 %s, %s, %d" % (sT2, sLW2, L_KV))],
                [("i", "v_add_u32 v%d, v%d, v%d" % (KW + 1, KW, KW + 3))], [("i", "v_lshl_add_u32 v%d, v0, 3, %s" % (KW + 4, sT2))],
                [("i", "v_add_u32 v%d, v%d, v%d" % (KW + 2, KW + 1, KW + 3))], [("i", "v_add_u32 v%d, v%d, v%d" % (KW + 3, KW + 2, KW + 3))]]
        sl.spread(cst, step0[4] + 2, step0[8], "c")
        Qp = lambda b, h: Z + 4 * h + 2 * b
        Kp = lambda b, h: Z + 8 + 6 * h + 2 * (b + 1)
        Vp = lambda b, h: Z + 20 + 6 * h + 2 * (b + 1)
        HP, HA = HX, ACC + 48
        ar_ = lambda blk, b: ACC + 8 * blk + 4 * b
        cvt = lambda d, s_: "v_cvt_pk_bf16_f32 v%d, v%d, v%d" % (d, s_, s_ + 1)
        tl = [("wds", ("tab", 2)), ("i", "v_mul_f32 v%d, 0x3eb8aa3b, v%d\nv_mul_f32 v%d, 0x3eb8aa3b, v%d" % (CQ, RL, CQ + 1, RL + 1))]
        tl += [("i", "v_mul_f32 v%d, v%d, v%d" % (HA + r, HA + r, RR + 8 + r)) for r in range(4)]
        tl += [("i", cvt(HP, HA)), ("i", cvt(HP + 1, HA + 2))]
        hw = [("ds", "ds_write_b16%s v%d, v%d" % ("_d16_hi" if r & 1 else "", KW + r, HP + r // 2)) for r in range(4)]
        qs = [(h, b) for h in range(2) for b in range(2)]
        sl.put("v", step0[16], tl)
        for n_, (h, b) in enumerate(qs):
            sl.put("v", use[(16, h)], [hw[n_], ("i", cvt(Qp(b, h), ar_(h, b))), ("i", cvt(Qp(b, h) + 1, ar_(h, b) + 2))])
        self.lite(sl, "q", [step0[s] for s in (0, 2, 4, 6, 8, 10, 12, 14)])
        self.report("qkv%d" % ps, sl.emit(a))
        self.stamp()
        body = []
        e = lambda t: body.extend(("i", x) for x in t.split("\n"))
        def pack(dst, src): e(cvt(dst, src) + "\n" + cvt(dst + 1, src + 2))
        def scale_l(src, b):
            for k in range(2): e("v_pk_mul_f32 %s, %s, %s op_sel:[0,%d] op_sel_hi:[1,%d]" % (vr(src + 2 * k, 2), vr(src + 2 * k, 2), vr(RL, 2), b, b))
        def scale_r(src, r0):
            for k in range(2): e("v_pk_mul_f32 %s, %s, %s" % (vr(src + 2 * k, 2), vr(src + 2 * k, 2), vr(r0 + 2 * k, 2)))
        kvw = lambda src, part: body.append(("ds", "ds_write_b64 v%d, %s offset:%d" % (KW + 4, vr(src, 2), 2048 + 512 * part)))
        for h in range(2):
            scale_l(ar_(2 + h, 1), 1); pack(Kp(1, h), ar_(2 + h, 1)); kvw(Kp(1, h), h); scale_l(ar_(2 + h, 0), 0)
        for h in range(2):
            scale_r(ar_(4 + h, 1), RR + 4); pack(Vp(1, h), ar_(4 + h, 1)); kvw(Vp(1, h), 2 + h); scale_r(ar_(4 + h, 0), RR)
        units = [(1, 0), (1, 1), (0, 0), (0, 1)]
        SC = lambda u: F + 8 * u
        SP = lambda u: F + 8 * u + 4
        smf = lambda d, kb, u, bias: "v_mfma_f32_16x16x16_bf16 %s, %s, %s, %s" % (vr(d, 4), vr(Kp(kb, units[u][1]), 2), vr(Qp(*units[u]), 2), vr(bias, 4))
        M = [ACC + u for u in range(4)]
        def merge(u):
            return ["v_max_f32 v%d, v%d, v%d" % (SC(u) + r, SC(u) + r, SP(u) + r) for r in range(4)] + [
                "v_max3_f32 v%d, v%d, v%d, v%d" % (M[u], SC(u), SC(u) + 1, SC(u) + 2), "v_max_f32 v%d, v%d, v%d" % (M[u], M[u], SC(u) + 3)]
        e(smf(SC(0), 1, 0, BC)); pack(Kp(0, 0), ar_(2, 0))
        e(smf(SC(1), 1, 1, BC)); pack(Kp(0, 1), ar_(3, 0))
        e(smf(SP(0), 0, 0, BP))
        if ps == 0: body.extend(g_fb)
        body.append(("wvm", ("wo", 1)))
        body.append(("dsdrain",)); e("s_barrier")
        nbar = len(body)
        rdkv = lambda dst, part, tag: body.append(("ds", "ds_read_b64 %s, v%d offset:%d" % (vr(dst, 2), KW + 4, 512 * part), tag))
        e(smf(SP(1), 0, 1, BP)); rdkv(Kp(-1, 0), 0, ("kp", 0)); rdkv(Kp(-1, 1), 1, ("kp", 1))
        e(smf(SC(2), 0, 2, BC)); rdkv(Vp(-1, 0), 2, ("vp", 0)); rdkv(Vp(-1, 1), 3, ("vp", 1))
        e(smf(SC(3), 0, 3, BC)); pack(Vp(0, 0), ar_(4, 0)); pack(Vp(0, 1), ar_(5, 0))
        m0, m1 = merge(0), merge(1)
        e("\n".join(m0))
        body.append(("wds", ("kp", 1)))
        e(smf(SP(2), -1, 2, BP0)); e("\n".join(m1[:2]))
        e(smf(SP(3), -1, 3, BP0)); e("\n".join(m1[2:]))
        e("s_add_u32 %s, %s, %d" % (sT0, sOST, LY.OB[ps]))
        e("\n".join(merge(2)[:2]))
        e("v_permlane32_swap_b32 v%d, v%d" % (M[0], M[1]))
        e("\n".join(merge(2)[2:] + merge(3)))
        e("v_max_f32 v%d, v%d, v%d" % (M[0], M[0], M[1]))
        e("v_permlane32_swap_b32 v%d, v%d\nv_max_f32 v%d, v%d, v%d" % (M[2], M[3], M[2], M[2], M[3]))
        e("v_permlane16_swap_b32 v%d, v%d\nv_max_f32 v%d, v%d, v%d\nv_max_f32 v%d, v%d, v%d" % (M[0], M[2], M[1], M[0], M[2], M[2], M[0], M[2]))
        e("v_permlane16_swap_b32 v%d, v%d" % (M[1], M[2]))
        e("v_mul_f32 v%d, v%d, v%d\nv_mul_f32 v%d, v%d, v%d" % (M[0], M[1], CQ + 1, M[1], M[1], CQ + 1))
        e("v_mul_f32 v%d, v%d, v%d\nv_mul_f32 v%d, v%d, v%d" % (M[3], M[2], CQ, M[2], M[2], CQ))
        def shift(u):
            for k in range(2):
                e("v_pk_fma_f32 %s, %s, %s, %s op_sel:[0,%d,%d] op_sel_hi:[1,%d,%d] neg_lo:[0,0,1] neg_hi:[0,0,1]" %
                  (vr(SC(u) + 2 * k, 2), vr(SC(u) + 2 * k, 2), vr(CQ, 2), vr(ACC + 2 * (u // 2), 2), units[u][0], u % 2, units[u][0], u % 2))
        e("v_permlane32_swap_b32 v%d, v%d" % (M[0], M[1])); shift(0)
        e("v_permlane32_swap_b32 v%d, v%d" % (M[2], M[3])); shift(1); shift(2); shift(3)
        PM = lambda u: ACC + 4 + 2 * u
        PS = lambda u: ACC + 12 + 4 * u
        OP = lambda b: ACC + 28 + 4 * b
        pv = lambda u: "v_mfma_f32_16x16x32_bf16 %s, %s, %s, 0" % (vr(SC(u), 4), vr(Vp(units[u][0] - 1, units[u][1]), 4), vr(PS(u), 4))
        for u, (b, h) in enumerate(units):
            for r in range(4):
                e("v_exp_f32 v%d, v%d" % (SC(u) + r, SC(u) + r))
                if r == 1 and u >= 1: e(pv(u - 1))
            if u == 2: body.append(("wds", ("vp", 1)))
            if u >= 2: e("v_rcp_f32 v%d, v%d" % (SP(u - 2), SP(u - 2)))
            pack(PM(u), SC(u))
            for k in range(2):
                e("v_bfi_b32 v%d, v%d, 0, v%d\nv_and_b32 v%d, v%d, v%d" % (PS(u) + k, MC + k, PM(u) + k, PS(u) + 2 + k, MC + k, PM(u) + k))
            e("v_mfma_f32_16x16x16_bf16 %s, %s, %s, 0" % (vr(SP(u), 4), vr(ONES, 2), vr(PM(u), 2)))
        e("v_rcp_f32 v%d, v%d" % (SP(2), SP(2)))
        e(pv(3))
        def fin(u, packed):
            b, h = units[u]
            if packed:
                for k in range(2): e("v_pk_mul_f32 %s, %s, %s op_sel_hi:[1,0]" % (vr(SC(u) + 2 * k, 2), vr(SC(u) + 2 * k, 2), vr(SP(u), 2)))
            else:
                for r in range(4): e("v_mul_f32 v%d, v%d, v%d" % (SC(u) + r, SC(u) + r, SP(u)))
            pack(OP(b) + 2 * h, SC(u))
            if h == 1:
                body.append(("vm", "buffer_store_dwordx4 %s, v%d, %s, %s offen offset:%d%s" % (vr(OP(b), 4), vQ, WS, sT0, b * 256, " sc1" if ps == 0 and not OPT["otouch"] else ""), "o" if b == 0 else None))
        fin(0, False); fin(1, True)
        e("v_rcp_f32 v%d, v%d" % (SP(3), SP(3)))
        fin(2, True); fin(3, True)
        left = self.weave(body[:nbar], left, 0, OPT["a_every"])
        stop = len(body) - OPT["a_quiet"]
        left = self.weave(body[nbar:stop], left + self.wgs("att", ps) + self.wds("att", ps), 4, OPT["a_every"])
        a.run_all(body[stop:])
        print("  attention: %d groups left for the hand-off" % len(left))
        self.stamp()
        self.wo_pre(0, OPT["w_pre"])
        self.signal(6 * ps + 1, "o")
        a.run_all(self.flat(left + self.wgs("h1", ps) + self.wds("h1", ps)))
        self.stamp()

    def wds(self, where, ps):
        if ps: return []
        if self.wd is None:
            ks = [4 * s + cb for s in DN_ORD for cb in range(4)]
            self.wd = self.reg_loads([ar(4 * k, 4) for k in ks], [sWD] * 56, [k * 1024 for k in ks], sTD, vL16, "wd")
        n = OPT.get("wd_" + where, 56)
        out, self.wd = self.wd[:n], self.wd[n:]
        return out

    WREG = [X + 4 * k for k in range(16)] + [ACC + 16 + 4 * k for k in range(12)] + [F + 4 * k for k in range(8)]
    def wo_read(self, k):
        return ("ds", "ds_read_b128 %s, %s" % (vr(self.WREG[k % 36], 4), ldsaddr(WO_SLOT[k // 16] * 16384 + (k % 16) * 1024)), ("w", k))
    def wo_pre(self, k0, k1):
        for k in range(k0, k1): self.a.run(self.wo_read(k))

    def finish(self, A, xo, h, pf, n, halo_pass):
        a = self.a
        for k in range(8): a.I("v_cvt_pk_bf16_f32 v%d, v%d, v%d" % (XRES + k, A + 2 * k, A + 2 * k + 1))
        if xo == 4:
            a.I(self.getc(16, aROW))
            for e_ in range(2): a.vm("buffer_store_dwordx4 %s, v16, %s, 0 offen offset:%d %s" % (vr(XRES + 4 * e_, 4), OUT, e_ * 64, OPT["outf"].strip("-")))
            self.stamp()
            return
        self.publish(xo)
        self.stamp()
        a.run_all(self.flat(pf[:n]))
        self.signal(h, "pub", halo_pass)
        a.run_all(self.flat(pf[n:]))
        self.stamp()

    def wo(self, ps):
        a = self.a
        def setup():
            for k in range(8):
                a.I("v_lshlrev_b32 v%d, 16, v%d\nv_and_b32 v%d, 0xffff0000, v%d" % (ACC + 2 * k, XRES + k, ACC + 2 * k + 1, XRES + k))
        keep = dict(a.ds_tag)
        if OPT["stamps"] and ps == 0:
            a.I("s_memtime s[%d:%d]" % (sST, sST + 1)); a.ds_drain(force=True); a.I("v_writelane_b32 v%d, s%d, 60" % (vSTAMP, sST))
        self.poll(6 * ps + 1, sMC, None, setup)
        a.ds_tag.update((t, n) for t, n in keep.items() if t[0] == "w")
        self.stamp()
        areg = lambda s: vr(X + 64 + 4 * s, 4)
        ld = self.reg_loads([areg(s) for s in range(16)], [sOL] * 16, [LY.OB[ps] + s * 2048 for s in range(16)], sTA, vQ, "act")
        UP = OPT["w_up"]
        rest = [self.wo_read(k) for k in range(OPT["w_pre"], 32)]
        for n_, g in enumerate(ld[:UP]):
            a.run_all(g)
            if n_ >= 3: a.run_all(rest[:3]); rest = rest[3:]
        a.run_all(rest)
        a.I("s_barrier")
        self.wo_pre(32, 36)
        sl = Slots()
        for k in range(64):
            s, cb = divmod(k, 4)
            d = vr(ACC + 4 * cb, 4)
            sl.add("v_mfma_f32_16x16x32_bf16 %s, %s, %s, %s" % (d, vr(self.WREG[k % 36], 4), areg(s), d),
                   [("wds", ("w", k))] + ([("wvm", ("act", s))] if cb == 0 else []))
            if cb == 0 and s + UP < 16: sl.put("m", k, ld[s + UP])
            if k + 36 < 64: sl.put("r", k, [self.wo_read(k + 36)])
        pf = sl.pace(self.wgs("wo", ps) + self.wds("wo", ps), 64 - 4 * UP + 2, 4.4, 64 - OPT["w_quiet"])
        self.lite(sl, "wo", [8 * k for k in range(8)])
        self.report("wo%d" % ps, sl.emit(a))
        self.stamp()
        self.finish(ACC, 2 * ps + 1, 6 * ps + 2, pf + self.wgs("h2", ps) + self.wds("h2", ps), 0, None)

    def dn_plan(self, ps):
        order = [(i, s) for lv in DN_S for i in range(3) for s in lv] + [(3, s) for s in range(14)]
        areg = lambda k: vr(X + 48 + 4 * (k % 16), 4)
        ld = self.reg_loads([areg(k) for k in range(56)], [sHLD[i] for i, s in order], [LY.HB[ps] + s * 2048 for i, s in order], sTA, vQ, "act")
        return order, areg, ld

    def dn(self, ps, issued, wd):
        a = self.a
        order, areg, ld = self.dn_plan(ps)
        XW, XR, R, P, U = 16, 19, 20, (ACC, ACC + 16, ACC + 32), ACC + 48
        io = L_SCR_DN - 65536
        UP = OPT["k_up"]
        widx = {s: n_ for n_, s in enumerate(DN_ORD)}
        wd_e = [g for g in wd if g[-1][2][1] < 24]
        wd_l = [g for g in wd if g[-1][2][1] >= 24]
        a.run_all(self.flat(ld[issued:UP] + wd_e))
        a.ds_drain()
        a.I("s_barrier")
        sl = Slots()
        accr = lambda i, cb: (X, X + 16, X + 32, X + 112)[i] + 4 * cb
        seen, endb = set(), {}
        for k, (i, s) in enumerate(order):
            for cb in range(4):
                d = vr(accr(i, cb), 4)
                pre = [("wvm", ("act", k))] if cb == 0 else []
                tag = ("wd", 4 * widx[s] + cb)
                if i == 0 and (tag in a.vm_tag or any(g[-1][2] == tag for g in wd_l)): pre.append(("wvm", tag))
                endb[i] = sl.add("v_mfma_f32_16x16x32_bf16 %s, %s, %s, %s" % (d, ar(16 * s + 4 * cb, 4), areg(k), d if (i, cb) in seen else "0"), pre)
                seen.add((i, cb))
        chk = {18: self.check_ops(6 * ps + 4, sMB, PA, "hf2"), 30: self.check_ops(6 * ps + 5, sMB, PA, "hf3")}
        if self.pending: sl.put("f", OPT["d_mid%d" % ps], self.pending)
        sl.put("f", OPT["d_sig%d" % ps], self.signal_ops(6 * ps + 5, "h6", PB))
        extra = list(wd_l)
        for k in range(max(UP, issued), 56):
            p = 4 * (k - min(OPT["d_up2"], UP + max(0, k - OPT["d_ramp"]) // 3))
            if k + OPT["d_chk"] in chk: sl.put("m", p, chk[k + OPT["d_chk"]][0])
            if k in chk:
                due = [g for g in extra if g[-1][2][1] < (40 if k == 18 else 56)]
                sl.put("m", p, self.flat(due) + chk[k][1]); extra = extra[len(due):]
            sl.put("m", p, ld[k])
            sl.put("m", p, self.flat(extra[:1])); extra = extra[1:]
        su = [[("i", "v_add_u32 v%d, %s, v%d" % (XW + i, sXW[i], vL16b))] for i in range(3)] + [[("i", "v_add_u32 v%d, %s, v%d" % (XR, sXR, vL16b))]]
        su += [[("i", "s_lshl_b32 %s, %s, 2\ns_add_u32 %s, %s, %s\ns_lshl_b32 %s, %s, 6\ns_add_u32 %s, %s, %d\nv_and_or_b32 v%d, v%d, 63, %s" %
                 (sT0, sR, sT0, sT0, sW, sT0, sT0, sT0, sT0, L_RS, R, vFL, sT0)), ("ds", "ds_read_b32 v%d, v%d" % (R, R))]]
        for k in range(8):
            su += [[("i", "v_lshlrev_b32 v%d, 16, v%d" % (U + 2 * k, XRES + k))], [("i", "v_and_b32 v%d, 0xffff0000, v%d" % (U + 2 * k + 1, XRES + k))]]
        sl.spread(su, 20, 70)
        writes = lambda i: [[("ds", "ds_write_b128 v%d, %s offset:%d" % (XW + i, vr(accr(i, cb), 4), io + cb * 1024))] for cb in range(4)]
        if OPT["d_w64"]:
            writes = lambda i: [[("ds", "ds_write_b64 v%d, %s offset:%d" % (XW + i, vr(accr(i, cb) + 2 * e_, 2), io + cb * 1024 + 8 * e_))] for cb in range(4) for e_ in range(2)]
        reads = lambda i: [[("ds", "ds_read_b128 %s, v%d offset:%d" % (vr(P[i] + 4 * cb, 4), XR, io + i * 4096 + cb * 1024), ("r", i, cb))] for cb in range(4)]
        add = lambda d, s_: [[("i", "v_add_f32 v%d, v%d, v%d" % (d + e_, d + e_, s_ + e_))] for e_ in range(16)]
        for i in range(3): sl.spread(writes(i), endb[i] + 2, endb[i] + 17)
        wb = []
        if ps and OPT["wb"]:
            go, back = a.label("wb"), a.label("wbback")
            self.cold.append("%s:\nbuffer_wbl2 sc1\ns_branch %s" % (go, back))
            wb = [[("i", "s_and_b32 %s, %s, %d\ns_or_b32 %s, %s, %s" % (sT1, sJ, 16 // OPT["wb"] - 1, sT1, sT1, sW)),
                   ("vm", "s_cmp_eq_u32 %s, 0\ns_cbranch_scc1 %s\nbuffer_load_dword a255, off, %s, %s nt\n%s:" % (sT1, go, WS, sFLG, back))]]
        seq = [[("dsdrain",), ("i", "s_barrier")]] + wb + reads(0) + reads(1) + reads(2) + [[("wds", ("r", 1, 3))]] + add(P[0], P[1]) + [[("wds", ("r", 2, 3))]] + add(P[0], P[2])
        seq += [[("i", "v_fma_f32 v%d, v%d, v%d, v%d" % (U + e_, P[0] + e_, R, U + e_))] for e_ in range(16)]
        sl.spread(seq, endb[2] + 20, endb[3] - 2)
        pf = [] if ps else [g for i in range(7) if i not in self.wq_late(1) + self.kept() for g in self.wq_chunk(i)]
        pf = sl.pace(pf, 224 - 4 * OPT["d_up2"] + 2, 4.4)
        self.lite(sl, "dn", [28 * k for k in range(8)])
        self.report("dn%d" % ps, sl.emit(a))
        self.stamp()
        A = accr(3, 0)
        for k in range(8): a.I("v_pk_fma_f32 %s, %s, %s, %s op_sel_hi:[1,0,1]" % (vr(A + 2 * k, 2), vr(A + 2 * k, 2), vr(R, 2), vr(U + 2 * k, 2)))
        self.finish(A, 2 * ps + 2, 6, pf, OPT["dn_pre"], 1)

    def gu(self, ps):
        a = self.a
        xi = 2 * ps + 1
        self.poll(6 * ps + 2, sMA)
        self.stamp()
        S0, TL, NR, XR_ = GS0, 16 - GS0, 8, 10
        SS, NM, HPK, CSA = 16, 24, 28, 21
        A0 = X + 80
        xreg = lambda s, b: X + 8 * (s % XR_) + 4 * b
        acc = lambda bl, m, b: A0 + 16 * bl + 8 * b + 4 * m
        xl = self.reg_loads([vr(xreg(s, b), 4) for s in range(16) for b in range(2)], [sXLD] * 32,
                            [LY.XB[xi] + s * 2048 + b * 256 for s in range(16) for b in range(2)], sTA, vQ, "x")
        UP = OPT["g_up"]
        a.run_all(self.flat(xl[:UP]))
        a.I("s_barrier")
        a.I(self.getc(NM, aSQ) + "\ns_add_u32 %s, %s, %d" % (sT0, sSLD, LY.SB[xi]))
        g_st = [[("vm", "buffer_load_dwordx4 %s, v%d, %s, %s offen sc1" % (vr(SS, 4), NM, WS, sT0))],
                [("vm", "buffer_load_dwordx4 %s, v%d, %s, %s offen offset:1024 sc1" % (vr(SS + 4, 4), NM, WS, sT0), "st")]]
        early = self.wg_early(ps)
        NS = len(self.ring(ps))
        assert 0 in early and len(set(early)) == len(early) and all(c < NS and self.wg_slot(c, ps) not in WO_SLOT for c in early)
        assert all(self.wg_slot(c, ps) != 7 for c in self.digits("wg_att%d" % ps) + self.digits("wg_h1%d" % ps)) and not set(self.kept()) - {2, 3, 4, 5}
        frags = [(s, bl, m) for s in range(S0) for bl in range(7) for m in range(2)]
        for bl in range(7): frags += [(s, bl, m) for s in range(S0, 16) for m in range(2)] + [(16, bl, 0)]
        sl = Slots()
        sl.mpatience, sl.patience = OPT["g_mp%d" % ps], OPT["g_vp"]
        first, last, end, xfirst, xlast = {}, {}, {}, {}, {}
        for k, (s, bl, m) in enumerate(frags):
            w = F + 4 * (k % NR)
            for mm, b in ([(m, 0), (m, 1)] if s < 16 else [(0, 0), (0, 1), (1, 0), (1, 1)]):
                G_ = OPT["g_grp"]
                pre = [] if k in first else [("wds", ("f", min(k // G_ * G_ + G_ - 1, len(frags) - 1)))]
                d = vr(acc(bl, mm, b), 4)
                if s < 16:
                    if (s, b) not in xfirst: pre.append(("wvm", ("x", 2 * s + (b if s == 0 else 1))))
                    n_ = sl.add("v_mfma_f32_16x16x32_bf16 %s, %s, %s, %s" % (d, vr(w, 4), vr(xreg(s, b), 4), "0" if s == 0 else d), pre)
                    xfirst.setdefault((s, b), n_); xlast[(s, b)] = n_
                else:
                    n_ = sl.add("v_mfma_f32_16x16x16_bf16 %s, %s, %s, %s" % (d, vr(w + 2 * mm, 2), vr(NM + 2 * b, 2), d), pre)
                first.setdefault(k, n_); last[k] = n_
            end[bl] = n_
        LA = OPT["g_la"]
        def rd(k):
            off = self.wg_slot(k // 16, ps) * 16384 + (k % 16) * 1024
            d = F + 4 * (k % NR)
            if frags[k][0] < 16:
                return [("ds", "ds_read_b128 %s, %s" % (vr(d, 4), ldsaddr(off)), ("f", k))]
            return [("ds", "ds_read2st64_b32 %s, v%d offset0:%d offset1:%d" % (vr(d + 2 * m, 2), CSA + (off >> 16), (off & 0xffff) // 256 + 2 * m, (off & 0xffff) // 256 + 2 * m + 1),
                     ("f", k) if m else None) for m in range(2)]
        for k in range(LA): a.run_all(rd(k))
        barpos, real = {}, []
        retire = lambda c: min(p for p in real if p > last[16 * c + 15])
        for k in range(LA, len(frags)):
            if k % 16 == 0:
                ch = k // 16
                pair = ps == 1 and OPT["g_bar1"] == 2 and ch >= OPT["g_pair0"]
                if pair and (ch - OPT["g_pair0"]) % 2:
                    barpos[ch] = barpos[ch - 1]
                elif ch not in early or 2 <= ch <= 16 - NS:
                    p = barpos[ch] = last[k - LA] - 1
                    real.append(p)
                    need = ch + 1 if pair and ch < 14 else ch
                    if need not in early: sl.pre[p + 1].append(("wvm", ("wg", need)))
                    sl.after(p, *(([("wvm", ("wg", need))] if need not in early else []) + [("i", "s_barrier")]))
            sl.after(last[k - LA], *rd(k))
        wl = [(retire(ch - NS) + 2 if ch >= NS else 0, g) for ch in range(15) if ch not in early for g in self.wg_chunk(ch, ps)]
        wdue = [barpos[ch] - 8 * (len(self.wg_chunk(ch, ps)) - 1 - n_) for ch in range(15) if ch not in early for n_ in range(len(self.wg_chunk(ch, ps)))]
        wd = self.wds("rest", ps)
        tail0 = xfirst[(S0, 0)]
        xs = []
        for n_ in range(UP, 32):
            s, b = divmod(n_, 2)
            due = min(xfirst[(s, b)], tail0 - (31 - n_) * OPT["g_xsp"])
            xs.append((due, xlast[(s - XR_, b)] + 1 if s >= XR_ else 0, xl[n_]))
        n_ = OPT["g_stat"]
        xs[n_:n_] = [(xs[n_][0], 0, g) for g in g_st]
        P = lambda key: OPT["g_%s%d" % (key, ps)] / 10
        pos, fab, ix, iw, idd, seq = 0.0, 0.0, 0, 0, 0, []
        stop = end[6] - OPT["g_tail"]
        while ix < len(xs) or iw < len(wl) or (idd < len(wd) and pos <= stop):
            xok = ix < len(xs) and xs[ix][1] <= pos
            xu = xok and xs[ix][0] - pos <= P("xlead")
            wok = iw < len(wl) and wl[iw][0] <= pos
            wu = wok and wdue[iw] - pos <= P("wmin")
            free = fab <= pos + P("slack")
            if xu and (not wu or xs[ix][0] <= wdue[iw] - P("wmin") + P("xlead")): pick = "x"
            elif wu: pick = "w"
            elif free and wok and wdue[iw] - pos <= P("wmax"): pick = "w"
            elif free and idd < len(wd) and pos <= stop: pick = "d"
            elif xok and xs[ix][0] - pos <= P("xmax"): pick = "x"
            else:
                pos = int(pos) + 1; continue
            if pick == "x": g = xs[ix][2]; ix += 1
            elif pick == "w": g = wl[iw][1]; iw += 1; fab = max(fab, pos) + P("wcost")
            else: g = wd[idd]; idd += 1; fab = max(fab, pos) + P("dcost")
            behind = (ix < len(xs) and xs[ix][0] - pos < 0.7 * P("xlead")) or (iw < len(wl) and wdue[iw] - pos < 0.7 * P("wmin"))
            seq.append((pos, g)); pos += 2.0 if behind else P("every")
            if g is g_st[1]: stpos = pos
        assert not sl.pace(seq, 0, 0)
        left = wd[idd:]
        st = [[("wvm", "st")]]
        for r_ in (SS, SS + 4):
            for o in (0, 1): st.append([("i", "v_add_f32 v%d, v%d, v%d" % (r_ + o, r_ + o, r_ + 2 + o))])
        for o in (0, 1): st.append([("i", "v_permlane32_swap_b32 v%d, v%d" % (SS + o, SS + 4 + o))])
        for o in (0, 1): st.append([("i", "v_add_f32 v%d, v%d, v%d" % (SS + o, SS + o, SS + 4 + o))])
        for o in (0, 1): st.append([("i", "v_mov_b32 v%d, v%d" % (SS + 2 + o, SS + o))])
        for k in range(3): st.append([("i", "v_add_u32 v%d, %d, v%d" % (CSA + k, k << 16, vFL))])
        for o in (0, 1): st.append([("i", "v_permlane16_swap_b32 v%d, v%d" % (SS + o, SS + 2 + o))])
        for o in (0, 1): st.append([("i", "v_add_f32 v%d, v%d, v%d" % (SS + o, SS + o, SS + 2 + o))])
        st += [[op] for op in self.ln_from_sums(SS, SS + 1, SS + 2)]
        st += [[("i", "v_cvt_pk_bf16_f32 v%d, -v%d, -v%d" % (NM + k, SS, SS))] for k in range(4)]
        st += [[("i", "v_mul_f32 v%d, v%d, v%d" % (SS + 1, SS + 1, SS + 1))],
               [("i", "s_lshr_b32 %s, %s, 3\ns_add_u32 %s, %s, %d" % (sT0, sLW, sT0, sT0, L_RS))],
               [("i", "v_and_or_b32 v%d, v%d, 63, %s" % (SS, vFL, sT0))], [("i", "v_and_b32 v%d, 32, v0" % (SS + 2))],
               [("i", "v_lshl_add_u32 v%d, v%d, 1, v%d" % (SS, SS + 2, SS))]]
        st += [[("i", "v_permlane32_swap_b32 v%d, v%d" % (NM + k, NM + 2 + k))] for k in range(2)] + [[("mark", "nm")]]
        sl.after(tail0 - 2 * LA, ("need", "nm"))
        sl.spread(st, int(stpos) + 40, tail0 - 2 * LA - 10)
        def epi(bl, packed=False):
            g = []
            for b in range(2):
                ga = acc(bl, 0, b)
                g += [[("i", "v_max_f32 v%d, 0, v%d" % (ga + r, ga + r))] for r in range(4)]
                if packed: g += [[("i", "v_pk_mul_f32 %s, %s, %s" % (vr(ga + r, 2), vr(ga + r, 2), vr(ga + 4 + r, 2)))] for r in (0, 2)]
                else: g += [[("i", "v_mul_f32 v%d, v%d, v%d" % (ga + r, ga + r, ga + 4 + r))] for r in range(4)]
                g += [[("i", "v_cvt_pk_bf16_f32 v%d, v%d, v%d" % (HPK + 2 * b + k, ga + 2 * k, ga + 2 * k + 1))] for k in range(2)]
            g.append([("i", "s_add_u32 %s, %s, %s" % ((sTS, sTS, sHSTEP) if bl else (sTS, sHST, LY.HB[ps])))])
            g += [[("i", "v_permlane16_swap_b32 v%d, v%d" % (HPK + k, HPK + 2 + k))] for k in range(2)]
            g.append([("vm", "buffer_store_dwordx4 %s, v%d, %s, %s offen%s" % (vr(HPK, 4), vL16, WS, sTS, {"s": " sc1", "n": " nt", "p": ""}[OPT["h_st%d" % ps][bl]]), "h%d" % bl)])
            return g
        for bl in range(6): sl.spread(epi(bl), end[bl] + 1, end[bl + 1] - OPT["g_epi"])
        l_e, g_e = self.check_ops(6 * ps + 3, sMB, SS + 3, "he")
        sl.put("f", end[3] + OPT["g_sig%d" % ps], self.signal_ops(6 * ps + 3, "h2", SS + 4))
        self.pending = self.signal_ops(6 * ps + 4, "h4", SS + 4)
        if OPT["d_mid%d" % ps] < 0:
            sl.put("f", end[5] + OPT["g_sig%d" % ps], self.pending); self.pending = None
        nh = OPT["g_h%d" % ps]
        assert S0 >= 10 and nh <= 12
        p = end[6] - OPT["g_chk%d" % ps]
        sl.put("h", p - OPT["g_lat%d" % ps], l_e)
        if nh:
            sl.put("h", p, g_e); g_e = []
            assert not sl.pace(self.dn_plan(ps)[2][:nh], p + 1, min(4.4, (end[6] - p - 2) / nh), name="h")
        sl.put("g", tail0, self.flat(self.code_touch("L_dn%d" % ps, SS + 3)))
        sl.put("c", max(tail0, retire(max(c for c in range(14) if self.wg_slot(c, ps) == 6)) + 1), [("ds", "ds_write_b32 v%d, v%d" % (SS, SS + 1))])
        if ps == 0:
            sl.put("c", end[6] - 8, [("i", "s_or_b32 %s, s2, %s" % (sT0, sW)), ("atom", "s_cmp_eq_u32 %s, 0\ns_cselect_b32 %s, %d, 0x%x" % (sT0, sT0, LY.EPOCH, OOB)),
                                     ("i", "v_mov_b32 v%d, %s" % (SS + 2, sNONCE)),
                                     ("vm", "buffer_store_dword v%d, v%d, %s, %s offen" % (SS + 2, vF1, WS, sT0))])
        self.lite(sl, "g", [56 * k for k in range(8)])
        self.report("gu%d" % ps, sl.emit(a))
        a.run_all(self.flat(epi(6, True)))
        self.stamp()
        a.run_all(g_e)
        self.stamp()
        print("  gu: %d loads left for the hand-off" % len(left))
        return nh, left

    def build(self):
        a = self.a
        self.startup()
        for ps in range(2):
            a.I("L_qkv%d:" % ps); self.qkv(ps)
            a.I("L_wo%d:" % ps); self.wo(ps)
            a.I("L_gu%d:" % ps); left = self.gu(ps)
            a.I("L_dn%d:" % ps); self.dn(ps, *left)
        if OPT["stamps"]:
            a.I("s_waitcnt vmcnt(0)\ns_memrealtime s[6:7]\ns_memtime s[80:81]\ns_waitcnt lgkmcnt(0)\nv_writelane_b32 v%d, s6, 63\nv_writelane_b32 v%d, s80, 61" % (vSTAMP, vSTAMP))
            a.I("s_lshl_b32 %s, s2, 10\ns_lshl_b32 %s, %s, 8\ns_add_u32 %s, %s, %s\ns_add_u32 %s, %s, %d" % (sT0, sT1, sW, sT0, sT0, sT1, sT0, sT0, LY.STAMP))
            a.I("buffer_store_dword v%d, v%d, %s, %s offen" % (vSTAMP, vFL, WS, sT0))
        if OPT["diagpad"]:
            a.I("s_mov_b32 s82, %d" % OPT["diagpad"])
            if OPT["diagat"]:
                a.I("s_sub_u32 s83, s%d, s14\ns_lshl_b32 s83, s83, 2" % sST)
                if OPT["diagwg"] >= 0: a.I("s_cmp_eq_u32 s2, %d\ns_cselect_b32 s83, s83, 0" % OPT["diagwg"])
                a.I("s_add_u32 s82, s82, s83")
            a.I("L_pad:\ns_memrealtime s[80:81]\ns_waitcnt lgkmcnt(0)\ns_sub_u32 s80, s80, s14\ns_cmp_lt_u32 s80, s82\ns_cbranch_scc1 L_pad")
        a.I("L_main_done:\ns_endpgm")
        for c in self.cold: a.I(c)
        a.I("L_code_end:")
        return a.lines

def main():
    ml, n2 = hazard_pass(Main().build())
    bad = check_async(ml)
    assert not bad, bad[:3]
    k = NAME + "_kernel"
    out = ["; Generated by gen/gen.py: one persistent kernel (weight re-layout, then four layers with flag hand-offs). " + " ".join(sys.argv[2:]),
           "; @launch grid=(256,1,1) block=(256,1,1) lds=163840",
           '.amdgcn_target "amdgcn-amd-amdhsa--gfx950"', ".text",
           ".globl %s" % k, ".p2align 8", ".type %s,@function" % k]
    out += [l if l.endswith(":") else "    " + l for l in ml]
    out += ['.section .rodata,"a"', ".p2align 6", """.amdhsa_kernel %s
  .amdhsa_next_free_vgpr 512
  .amdhsa_next_free_sgpr 102
  .amdhsa_accum_offset 256
  .amdhsa_group_segment_fixed_size 0
  .amdhsa_kernarg_size 80
  .amdhsa_user_sgpr_count 2
  .amdhsa_user_sgpr_kernarg_segment_ptr 1
  .amdhsa_system_sgpr_workgroup_id_x 1
  .amdhsa_float_denorm_mode_32 3
.end_amdhsa_kernel""" % k]
    if OPT["rt"]: out = [l.replace("s_memtime", "s_memrealtime") for l in out]
    open(sys.argv[1], "w").write("\n".join(out) + "\n")
    print("instructions: %d ; wait states added: %d" % (len(ml), n2))

main()
```

```python
import sys
from dsl import Asm, Slots, hazard_pass, check_async
import layout as LY

NAME = "interleave_layers__sliding_local_dilated__glu_gated_reglu__prompt"
OPT = dict(stamps=0, lite="-", hitw=0,
           q_up=8, q_every=45, q_hf=8, q_chk=6, q_h0=10, a_every=14, k_up=8, g_up=4, g_tail=0, g_la=7, g_xsp=11, g_stat=6,
           g_every0=36, g_xlead0=400, g_wmin0=600, g_wmax0=1000, g_slack0=40, g_wcost0=60, g_dcost0=30,
           g_xmax0=9000, g_xmax1=800, g_every1=46, g_xlead1=400, g_wmin1=560, g_wmax1=700, g_slack1=40, g_wcost1=60, g_dcost1=30,
           wq_late1="-", dn_pre=6, q0_up=6, q0_lead=20, q0_every=54,
           wg_att0="0", wg_h10="-", wg_wo0="1", wg_h20="-",
           wg_att1="01", wg_h11="-", wg_wo1="2", wg_h21="-",
           keep="2345", q_wbar=12, w_pre=20, w_up=8, w_quiet=12, d_sig0=16, d_sig1=16, d_up2=11, d_ramp=8, d_mid0=-1, d_mid1=-1, d_chk=8, g_epi=6, g_sig0=27, g_sig1=16, g_chk0=20, g_chk1=26, g_lat0=18, g_lat1=18, g_h0=4, g_h1=6,
           touch=0, h_st0="sssssss", h_st1="sspppp p".replace(" ", ""), x0f="sc1", wb=1, otouch=1, diagpad=0, diagat=0, diagwg=100, b_pos=1, q0_split=0, q0_n1=6, q0_hf=6, order="aoc", rt=0, rot=0, xdir=1, xd0=2, xd1=12, xd2=99, xd_gap=4, xd_h1=2, xd_h2=6, xd_h0=7, xd_st=8, xd_wbar=10, q_mp0=999, q_mp1=2, q_vp=10, g_mp0=2, g_mp1=999, g_vp=10, d_w64=0, q_st=0, g_grp=3, q_grp=3, g_bar1=1, g_pair0=7, outf="nt", c_early=0, b_spread=0, b_first=0, b_gap=3, pollf="nt", actf="sc1", wf="sc1", cpf=1, predrain=0, q0_b=0, q0_fbch=3, q0_fbs=12, q0_w=6, q0_tail=45, a_quiet=30, wd_q=0, wd_att=0, wd_h1=0, wd_wo=0, wd_h2=0)
for arg in sys.argv[2:]:
    k, v = arg.split("=")
    OPT[k] = v if isinstance(OPT[k], str) else int(v)

def vr(b, n): return "v[%d:%d]" % (b, b + n - 1)
def ar(b, n): return "a[%d:%d]" % (b, b + n - 1)
def magic(d): return (1 << 32) // d + 1
OOB = 0x40000000
GS0 = LY.GS0

WS, XIN, OUT = "s[8:11]", "s[12:15]", "s[16:19]"
sW, sJ, sR, sC, sG, sN, sNONCE, sSLOW = ("s%d" % i for i in range(20, 28))
sGB, sXLD, sXST, sOST, sXR, sHST, sSLD, sWQ, sWG, sWO, sWD, sLW = ("s%d" % i for i in range(28, 40))
sMA, sMB = "s[40:41]", "s[42:43]"
sFLG, sFLW, sHALO, sHFL, sTAB, sSST, sONE, sHDST, sHDFL, sP = ("s%d" % i for i in range(44, 54))
sMH = "s[54:55]"
sTA, sTW, sTD, sTS, sT0, sT1, sT2, sSPIN = ("s%d" % i for i in range(56, 64))
sHLD = ["s%d" % i for i in range(68, 72)]
sXW = ["s%d" % i for i in range(72, 75)]
sFBO, sB0, sB1, sB2, sB3 = "s75", "s76", "s77", "s78", "s79"
SRC_A, SRC_G, SRC_U, SRC_D = 80, 84, 88, 92
sLW2, sLW4, sWQ4, sWG4 = "s96", "s97", "s98", "s99"
sST = 100
sHALO2 = sP
sNH, sCPO, sPC, sSLOW2 = "s12", "s13", "s[4:5]", "s[0:1]"
sOL, sHSTEP, sMC = "s64", "s65", "s[66:67]"
vL, vL16, vL16b, vL16c, vQ, vF1, vFL, vSTAMP = 0, 1, 2, 3, 4, 5, 6, 7
XRES = 8
PA, PB = 22, 23
X, ACC, F = 32, 160, 224
aROW, aST, aSQ, aSH, aSG, aHX, aHWR, aHWS, aHST, aHSS, aFB, aLINE, aTO, aTH = range(224, 238)
aBC, aBP, aBP0, aMC = 240, 244, 248, 252
L_HALO, L_RS, L_KV, L_TAB, L_FMT = 102400, 110592, 114688, 124928, 131072
L_SCR_DN = 114688
WO_SLOT = (8, 9, 0, 1)
DN_S = ((2, 3, 4, 9, 10, 11), (1, 5, 8, 12), (0, 6, 7, 13))
DN_ORD = sum(DN_S, ())
NEG = "0xf149f2ca"

def ldsaddr(off):
    return "v%d offset:%d" % ((vL16, vL16b, vL16c)[off >> 16], off & 0xffff)

def isvm(g): return any(op[0] == "vm" for op in g)

class Main:
    def __init__(self):
        self.a = Asm()
        self.nstamp = 0
        self.cold = []
        self.nlite = 0
        self.wd = None
        self.ncall = 0

    def stamp(self, key=None):
        self.ncall += 1
        if OPT["diagpad"] and OPT["diagat"] == self.ncall:
            self.a.I("s_memrealtime s[%d:%d]" % (sST, sST + 1))
            self.a.ds_drain(force=True)
        if OPT["stamps"] != 1 or (key is not None and OPT["lite"] != key):
            return
        a = self.a
        a.I("s_memtime s[%d:%d]" % (sST, sST + 1))
        a.ds_drain(force=True)
        for k in range(self.nlite):
            a.I("v_writelane_b32 v%d, s%d, %d" % (vSTAMP, 80 + 2 * k, self.nstamp))
            self.nstamp += 1
        self.nlite = 0
        a.I("v_writelane_b32 v%d, s%d, %d" % (vSTAMP, sST, self.nstamp))
        self.nstamp += 1

    def lite(self, sl, key, slots):
        if OPT["lite"] != key:
            return
        for i in slots[:8]:
            sl.after(i, ("i", "s_memtime s[%d:%d]" % (80 + 2 * self.nlite, 81 + 2 * self.nlite)))
            self.nlite += 1

    def report(self, name, r):
        print("  %s: cycles over budget %d, ops left after the loop %d" % ((name,) + r))

    def getc(self, v, acc): return "v_accvgpr_read_b32 v%d, a%d" % (v, acc)
    def flat(self, groups): return [op for g in groups for op in g]
    def digits(self, key): return tuple(int(c, 16) for c in str(OPT[key]) if c != "-")
    def wgs(self, where, ps): return [g for i in self.digits("wg_%s%d" % (where, ps)) for g in self.wg_chunk(i, ps)]
    def wg_early(self, ps): return sum((self.digits("wg_%s%d" % (w, ps)) for w in ("att", "h1", "wo", "h2")), ())
    def wq_late(self, ps): return tuple(range(7)) if ps == 0 else self.digits("wq_late1")

    def srd(self, base, lo, hi, nbytes):
        self.a.I("s_mov_b32 s%d, %s\ns_and_b32 s%d, %s, 0xffff\ns_mov_b32 s%d, %s\ns_mov_b32 s%d, 0x20000" %
                 (base, lo, base + 1, hi, base + 2, nbytes, base + 3))

    def lin(self, dst, base, terms):
        first = True
        for reg, mul in terms:
            self.a.I("s_mul_i32 %s, %s, %d\ns_add_u32 %s, %s, %s" % (sT2, reg, mul, dst, base if first else dst, sT2))
            first = False

    def sdivmod(self, q, r, x, d):
        self.a.I("s_mul_hi_u32 %s, %s, 0x%x\ns_mul_i32 %s, %s, %d\ns_sub_u32 %s, %s, %s" % (q, x, magic(d), sT2, q, d, r, x, sT2))

    def hi_lo(self, dst, src, t):
        return ["v_cvt_pk_bf16_f32 v%d, v%d, v%d" % (dst, src, src), "v_lshlrev_b32 v%d, 16, v%d" % (t, dst),
                "v_sub_f32 v%d, v%d, v%d" % (t, src, t), "v_cvt_pk_bf16_f32 v%d, v%d, v%d" % (dst, src, t)]

    def scc_live(self, body, n):
        for t in body[n:]:
            mn = t.split()[0]
            if mn.startswith(("s_cselect", "s_subb", "s_addc", "s_cbranch_scc")) or t.endswith(":"): return True
            if mn.startswith(("s_cmp", "s_bitcmp", "s_add_", "s_sub_", "s_and_", "s_or_", "s_xor_", "s_lshl", "s_lshr", "s_min", "s_max", "s_bfe")): return False
        return False

    def weave(self, body, groups, first, every):
        k = 0
        for n_, op in enumerate(body):
            if n_ >= first and (n_ - first) % every == 0:
                while k < len(groups):
                    g = groups[k]; k += 1
                    self.a.run_all(g)
                    if isvm(g): break
            self.a.run(op)
        return groups[k:]

    def signal(self, h, wait=None, halo_pass=None):
        a = self.a
        slow, done = a.label("slow"), a.label("sig")
        a.I("s_add_u32 %s, %s, %d\nv_mov_b32 v30, %s" % (sNH, sNONCE, h, sNH))
        if halo_pass is not None:
            h1, b1, h2, b2 = a.label("halo"), a.label("hback"), a.label("halo"), a.label("hback")
            n = a.vm_n - max(a.vm_tag[wait], a.vm_done)
            nx = 0 if halo_pass == 0 and OPT["xdir"] else 2
            a.I("s_cmp_lg_u32 %s, 0x%x\ns_cbranch_scc1 %s" % (sHDST, OOB, h1))
            st = "\n".join("buffer_store_dwordx4 %s, v24, %s, %s offen offset:%d sc1" % (vr(XRES + 4 * e, 4), WS, sTS, e * 512) for e in range(nx))
            self.cold.append("%s:\n%s\n%s\ns_add_u32 %s, %s, %d\n%s\nbuffer_store_dword v26, v25, %s, %s offen sc1\ns_waitcnt vmcnt(%d)\ns_branch %s" %
                             (h1, self.getc(24, aHST), self.getc(25, aHSS), sTS, sHDST, LY.HX[halo_pass], st, WS, sTS, n + 1 + nx, b1))
            self.cold.append("%s:\ns_add_u32 %s, %s, %d\nv_mov_b32 v24, %s\n%s\ns_waitcnt vmcnt(1)\nbuffer_store_dword v24, v25, %s, %s offen sc1\ns_branch %s" %
                             (h2, sTS, sHDFL, halo_pass * 16384, sNONCE, self.getc(25, aLINE), WS, sTS, b2))
            a.vm_wait(wait)
            a.I("%s:\ns_cmp_lg_u32 %s, 0" % (b1, sSLOW))
        else:
            a.I("s_cmp_lg_u32 %s, 0" % sSLOW)
            if wait is None: a.vm_drain()
            else: a.vm_wait(wait)
        a.I("s_cbranch_scc1 %s" % slow)
        a.vm("buffer_store_dword v30, v%d, %s, %s offen" % (vF1, WS, sFLW))
        a.I("%s:" % done)
        self.cold.append("%s:\nbuffer_wbl2 sc1\ns_waitcnt vmcnt(0)\nbuffer_store_dword v30, v%d, %s, %s offen sc1\ns_branch %s" % (slow, vF1, WS, sFLW, done))
        self.sent = h
        if halo_pass is not None:
            a.I("s_cmp_lg_u32 %s, 0x%x\ns_cbranch_scc1 %s\n%s:" % (sHDST, OOB, h2, b2))

    def poll(self, h, mask, also=None, setup=None):
        a = self.a
        a.forget()
        assert self.sent == h
        if setup: setup()
        def loop(name, fl):
            ld = "buffer_load_dword v%d, v%d, %s, %s offen %s" % (PA, vFL, WS, sFLG, fl)
            ts = "v_subrev_u32 v%d, %s, v%d\nv_cmp_lt_u32 vcc, 15, v%d\ns_and_b64 vcc, vcc, %s" % (PA, sNH, PA, PA, mask)
            if also is not None:
                ld += "\nbuffer_load_dword v%d, v%d, %s, 0 offen sc1" % (PB, also, WS)
                ts = "v_cmp_ne_u32 s[60:61], %s, v%d\n%s\ns_or_b64 vcc, vcc, s[60:61]" % (sNONCE, PB, ts)
            return "%s:\n%s\ns_sub_u32 %s, %s, 1\ns_cbranch_scc1 L_main_done\ns_waitcnt vmcnt(0)\n%s\ns_cbranch_scc1 %s" % (name, ld, sSPIN, sSPIN, ts, name)
        far, ok = a.label("far"), a.label("ok")
        a.I("s_mov_b32 %s, 0x40000\ns_cmp_lg_u32 %s, 0\ns_cbranch_scc1 %s" % (sSPIN, sSLOW, far))
        a.I(loop(a.label("poll"), OPT["pollf"]) + "\n%s:" % ok)
        a.vm_done = a.vm_n
        self.cold.append(loop(far, "sc1") + "\nbuffer_inv sc1\ns_waitcnt vmcnt(0)\ns_branch %s" % ok)

    def signal_ops(self, h, wait, reg):
        a = self.a
        slow, done = a.label("slow"), a.label("sig")
        self.cold.append("%s:\nbuffer_wbl2 sc1\ns_waitcnt vmcnt(0)\nbuffer_store_dword v%d, v%d, %s, %s offen sc1\ns_branch %s" % (slow, reg, vF1, WS, sFLW, done))
        return [("i", "s_add_u32 %s, %s, %d" % (sNH, sNONCE, h)), ("i", "v_mov_b32 v%d, %s" % (reg, sNH)), ("wvm", wait),
                ("vm", "s_cmp_lg_u32 %s, 0\ns_cbranch_scc1 %s\nbuffer_store_dword v%d, v%d, %s, %s offen\n%s:" % (sSLOW, slow, reg, vF1, WS, sFLW, done))]

    def check_ops(self, h, mask, reg, tag):
        a = self.a
        spin, back = a.label("cspin"), a.label("cback")
        ld = lambda fl: "buffer_load_dword v%d, v%d, %s, %s offen %s" % (reg, vFL, WS, sFLG, fl)
        t = ["v_subrev_u32 v%d, s3, v%d" % (reg, reg), "v_cmp_lt_u32 vcc, 15, v%d" % reg, "s_and_b64 vcc, vcc, %s" % mask]
        loop = lambda name, fl: "%s:\n%s\ns_sub_u32 %s, %s, 1\ns_cbranch_scc1 L_main_done\ns_waitcnt vmcnt(0)\n%s\ns_cbranch_scc1 %s" % (name, ld(fl), sSPIN, sSPIN, "\n".join(t), name)
        self.cold.append("%s:\ns_mov_b32 %s, 0x40000\ns_cmp_lg_u32 %s, 0\ns_cbranch_scc1 %s_f\n%s\ns_branch %s\n%s\nbuffer_inv sc1\ns_waitcnt vmcnt(0)\ns_branch %s" %
                         (spin, sSPIN, sSLOW, spin, loop(spin + "_n", OPT["pollf"]), back, loop(spin + "_f", "sc1"), back))
        return [("vm", ld(OPT["pollf"]), tag)], [("i", "s_add_u32 s3, %s, %d" % (sNONCE, h)), ("wvm", tag), ("i", t[0]), ("i", t[1]),
                                                ("atom", "%s\ns_or_b64 vcc, vcc, %s\ns_cbranch_scc1 %s\n%s:" % (t[2], sSLOW2, spin, back))]

    def late_check(self, load, reg, mask, tag):
        a = self.a
        spin, back = a.label("lspin"), a.label("lback")
        cmp_, and_ = "v_cmp_ne_u32 vcc, %s, v%d" % (sNONCE, reg), "s_and_b64 vcc, vcc, %s" % mask
        self.cold.append("%s:\ns_mov_b32 %s, 0x40000\n%s_l:\n%s\ns_sub_u32 %s, %s, 1\ns_cbranch_scc1 L_main_done\ns_waitcnt vmcnt(0)\n%s\n%s\ns_cbranch_scc1 %s_l\ns_branch %s"
                         % (spin, sSPIN, spin, load, sSPIN, sSPIN, cmp_, and_, spin, back))
        return [("vm", load, tag)], [("wvm", tag), ("i", cmp_), ("atom", and_ + "\ns_cbranch_scc1 %s\n%s:" % (spin, back))]

    def dma_chunk(self, sbase, goff, loff, n, tag, sc=""):
        sw = {1: sLW, 2: sLW2, 4: sLW4}[n]
        setup = [("set", sTW, "s_add_u32 %s, %s, %d" % (sTW, sbase, goff)), ("set", "m0", "s_add_u32 m0, %s, %d" % (sw, loff))]
        return [setup + [("vm", "buffer_load_dwordx4 v%d, %s, %s offen offset:%d%s lds" % (vL16, WS, sTW, k * 1024, sc), tag if k == n - 1 else None)]
                for k in range(n)]

    def wq_chunk(self, i): return self.dma_chunk(sWQ4 if i < 6 else sWQ, i * 16384, i * 16384, 4 if i < 6 else 1, ("wq", i), " " + OPT["wf"].strip("-"))
    def kept(self): return self.digits("keep")
    def ring(self, ps):
        return [k for k in (2, 3, 4, 5, 6, 7, 8, 9, 0, 1) if ps or k not in self.kept()]
    def wg_slot(self, i, ps): return self.ring(ps)[i % len(self.ring(ps))]
    def wo_chunk(self, i): return self.dma_chunk(sWO, i * 16384, WO_SLOT[i] * 16384, 4, ("wo", i), " " + OPT["wf"].strip("-"))
    def wg_chunk(self, i, ps): return self.dma_chunk(sWG4 if i < 14 else sWG, i * 16384, self.wg_slot(i, ps) * 16384, 4 if i < 14 else 2, ("wg", i), " " + OPT["wf"].strip("-"))

    def reg_loads(self, dsts, bases, offs, stmp, vaddr, tagbase):
        ops, cur = [], None
        for k, (d, sb, off) in enumerate(zip(dsts, bases, offs)):
            if cur is None or cur[0] != sb or not (0 <= off - cur[1] < 4096):
                cur = (sb, off)
            ops.append([("set", stmp, "s_add_u32 %s, %s, %d" % (stmp, sb, cur[1])),
                        ("vm", "buffer_load_dwordx4 %s, v%d, %s, %s offen offset:%d %s" % (d, vaddr, WS, stmp, off - cur[1], OPT["wf" if tagbase[0] == "w" else "actf"].strip("-")), (tagbase, k))])
        return ops

    def touch(self, acc, sbase, off, tmp):
        return [[("i", self.getc(tmp, acc) + "\ns_add_u32 %s, %s, %d" % (sT1, sbase, off)),
                 ("vm", "buffer_load_dword a255, v%d, %s, %s offen sc1" % (tmp, WS, sT1))]]

    def code_touch(self, label, tmp, n=1):
        if not OPT["cpf"]: return []
        return [[("i", "s_add_u32 s15, %s, %s-L_pc+%d" % (sCPO, label, 16384 * k)), ("i", "s_min_u32 s15, s15, L_code_end-L_pc-4"),
                 ("i", "v_mov_b32 v%d, s15" % tmp), ("vm", "global_load_dword a255, v%d, %s" % (tmp, sPC))] for k in range(n)]

    def ln_from_sums(self, s1, s2, t):
        return [("i", x) for x in (
            "v_mul_f32 v%d, 0x3b000000, v%d" % (s1, s1),
            "v_mul_f32 v%d, v%d, v%d" % (t, s1, s1),
            "v_mul_f32 v%d, 0x3b000000, v%d" % (s2, s2),
            "v_sub_f32 v%d, v%d, v%d" % (s2, s2, t),
            "v_max_f32 v%d, 0, v%d" % (s2, s2),
            "v_cvt_pk_bf16_f32 v%d, v%d, v%d" % (s2, s2, s2),
            "v_lshlrev_b32 v%d, 16, v%d" % (s2, s2),
            "v_add_f32 v%d, 0x3727c5ac, v%d" % (s2, s2),
            "v_cvt_pk_bf16_f32 v%d, v%d, v%d" % (s2, s2, s2),
            "v_lshlrev_b32 v%d, 16, v%d" % (s2, s2),
            "v_sqrt_f32 v%d, v%d" % (s2, s2),
            "v_cvt_pk_bf16_f32 v%d, v%d, v%d" % (s2, s2, s2),
            "v_lshlrev_b32 v%d, 16, v%d" % (s2, s2),
            "v_rcp_f32 v%d, v%d" % (s2, s2))]

    def publish(self, xi):
        a = self.a
        S1, S2, S3, S4, AD = 26, 27, 28, 29, 25
        a.I("s_add_u32 %s, %s, %d" % (sTS, sXST, LY.XB[xi]))
        for e in range(0 if xi == 0 and OPT["xdir"] else 2):
            a.vm("buffer_store_dwordx4 %s, v%d, %s, %s offen offset:%d%s" % (vr(XRES + 4 * e, 4), vQ, WS, sTS, e * 2048, " " + OPT["x0f"] if xi == 0 else ""))
        for k in range(4):
            for d, p, o in ((S1, XRES + k, sONE), (S2, XRES + k, None), (S3, XRES + 4 + k, sONE), (S4, XRES + 4 + k, None)):
                a.I("v_dot2_f32_bf16 v%d, v%d, %s, %s" % (d, p, o or "v%d" % p, "v%d" % d if k else "0"))
        a.I(self.getc(AD, aST) + "\ns_add_u32 %s, %s, %d" % (sTS, sSST, LY.SB[xi]))
        a.I("v_add_f32 v%d, v%d, v%d\nv_add_f32 v%d, v%d, v%d" % (S1, S1, S3, S2, S2, S4))
        a.I("v_permlane32_swap_b32 v%d, v%d\nv_add_f32 v%d, v%d, v%d\nv_mov_b32 v%d, v%d" % (S1, S2, S1, S1, S2, S2, S1))
        a.I("v_permlane16_swap_b32 v%d, v%d\nv_add_f32 v%d, v%d, v%d" % (S1, S2, S1, S1, S2))
        a.vm("buffer_store_dword v%d, v%d, %s, %s offen" % (S1, AD, WS, sTS), "pub")

    def startup(self):
        a = self.a
        lin = self.lin
        t8, kc, tok, g, hh, t32, u0, u1, rr, cc, q16, vA, vR, vB, vD, TA0, TA1, TD, TG, CSW, XA, XV, FAV, LINE = range(F, F + 24)
        ONES = F + 24
        def put(acc): a.I("v_accvgpr_write_b32 a%d, v%d" % (acc, u1))
        a.I("%s_kernel:" % NAME)
        a.I("s_cmp_ge_u32 s2, 256\ns_cbranch_scc1 L_main_done")
        a.I("s_load_dwordx16 s[64:79], s[0:1], 0\ns_load_dwordx2 s[4:5], s[0:1], 72")
        if OPT["stamps"] or OPT["diagpad"]:
            a.I("s_memrealtime s[98:99]")
        if OPT["stamps"]:
            a.I("s_memtime s[%d:%d]" % (sST, sST + 1))
        a.I("s_getpc_b64 s[56:57]\nL_pc:\ns_lshr_b32 s58, s2, 3\ns_lshl_b32 s58, s58, 11")
        a.I("v_lshrrev_b32 v16, 6, v0\nv_lshrrev_b32 v17, 4, v0\nv_lshlrev_b32 v17, 7, v17\nv_add_u32 v17, s58, v17")
        a.I("v_min_u32 v17, L_code_end-L_pc-4, v17\nv_and_b32 v0, 63, v0\nv_readfirstlane_b32 %s, v16" % sW)
        a.vm("global_load_dword a255, v17, s[56:57]")
        a.I("s_and_b32 %s, s2, 7\ns_bfe_u32 %s, s2, 0x40003\ns_lshr_b32 %s, s2, 7" % (sN, sJ, sP))
        a.I("s_lshr_b32 %s, %s, 3\ns_and_b32 %s, %s, 7" % (sR, sJ, sC, sJ))
        a.I("v_and_b32 v%d, 7, v0\nv_lshrrev_b32 v%d, 3, v0\nv_and_b32 v%d, 15, v0\nv_lshrrev_b32 v%d, 4, v0" % (t8, kc, tok, g))
        cuA, kkA, stA, cuG, kkG, sSG, sSD, kkD = "s28", "s29", "s30", "s32", "s33", "s6", "s7", "s36"
        sU, sV = "s34", "s35"
        if OPT["rot"]:
            a.I("s_add_u32 %s, %s, %s\ns_and_b32 %s, %s, 7\ns_andn2_b32 %s, s2, 7\ns_or_b32 %s, %s, %s" % (sV, sN, sJ, sV, sV, sU, sU, sU, sV))
        else:
            sU, sV = "s2", sN
        self.sdivmod(kkA, cuA, sU, 24)
        a.I("s_sub_u32 %s, s2, 192\ns_lshr_b32 %s, %s, 3" % (sT0, sT0, sT0))
        a.I("s_cmp_lt_u32 s2, 192\ns_cselect_b32 %s, %s, %s\ns_cselect_b32 %s, %s, %s\ns_cselect_b32 %s, 3, 1\ns_lshl_b32 %s, %s, 10" %
            (cuA, cuA, sV, kkA, kkA, sT0, stA, stA, stA))
        a.I("v_lshlrev_b32 v%d, 4, v%d\nv_mad_u32_u24 v%d, v%d, %s, v%d" % (u0, t8, vA, kc, stA, u0))
        a.I("s_lshl_b32 %s, %s, 2\ns_add_u32 %s, %s, %s\ns_lshl_b32 %s, %s, 4\ns_mul_i32 %s, %s, %s" % (sT0, kkA, sT0, sT0, sW, sT0, sT0, sT0, sT0, stA))
        a.I("s_lshl_b32 %s, %s, 7\ns_add_u32 %s, %s, %s\ns_lshl_b32 %s, %s, 3\ns_add_u32 %s, %s, %s\ns_sub_u32 %s, %s, 1024" %
            (sT1, cuA, sT0, sT0, sT1, sT1, stA, sT1, sT1, sT0, sT1, sT1))
        a.I("s_lshl_b32 %s, %s, 11\ns_add_u32 m0, %s, %d" % (sLW2, sW, sLW2, L_FMT))
        a.I("s_lshl_b32 s31, %s, 1\ns_add_u32 s31, s31, %s\ns_lshl_b32 s31, s31, 2\ns_add_u32 s31, s31, %s\ns_lshl_b32 s31, s31, 5" % (sN, sR, sW))
        a.I("s_add_u32 s31, s31, %s\ns_lshl_b32 s31, s31, 3\ns_add_u32 s31, s31, %s\ns_lshl_b32 s31, s31, 7" % (sP, sC))
        a.I("v_and_b32 v%d, 14, v0\nv_lshlrev_b32 v%d, 11, v%d\nv_lshl_add_u32 v%d, v%d, 4, v%d\nv_and_b32 v%d, 1, v0\nv_lshlrev_b32 v%d, 6, v%d\nv_add3_u32 v%d, s31, v%d, v%d" %
            (vR, vR, vR, vR, g, vR, u1, u1, u1, vR, vR, u1))
        a.I("s_waitcnt lgkmcnt(0)")
        a.I("s_load_dword %s, s[4:5], %d" % (sNONCE, LY.EPOCH))
        a.I("s_cmp_lt_u32 s2, 192\ns_cselect_b32 s%d, s66, s68\ns_cselect_b32 s%d, s67, s69\ns_and_b32 s%d, s%d, 0xffff" % (SRC_A, SRC_A + 1, SRC_A + 1, SRC_A + 1))
        a.I("s_lshl_b32 s%d, %s, 9\ns_mov_b32 s%d, 0x20000" % (SRC_A + 2, stA, SRC_A + 3))
        sa = "s[%d:%d]" % (SRC_A, SRC_A + 3)
        a.vm("buffer_load_dwordx4 v%d, %s, %s offen lds" % (vA, sa, sT0))
        a.vm("buffer_load_dwordx4 v%d, %s, %s offen offset:1024 lds" % (vA, sa, sT1), "fa")
        self.srd(12, "s64", "s65", 2048 * 1024)
        a.vm("buffer_load_dwordx4 %s, v%d, %s, 0 offen" % (vr(ACC + 56, 4), vR, XIN))
        a.vm("buffer_load_dwordx4 %s, v%d, %s, 0 offen offset:2048" % (vr(ACC + 60, 4), vR, XIN), "x")
        if OPT["stamps"]:
            a.I("v_mov_b32 v%d, 0\nv_writelane_b32 v%d, s98, 62\nv_writelane_b32 v%d, s%d, 0" % (vSTAMP, vSTAMP, vSTAMP, sST))
            self.nstamp = 1
        if OPT["diagpad"]: a.I("s_mov_b32 s14, s98")
        self.stamp("p")
        self.srd(8, "s4", "s5", LY.WS_USED)
        a.I("s_lshl_b32 %s, %s, 1\ns_add_u32 %s, %s, %s" % (sG, sN, sG, sG, sP))
        lin(sFLG, str(LY.FL), [(sG, 256)])
        lin(sFLW, sFLG, [(sJ, 16), (sW, 4)])
        lin(sTS, str(LY.ACT), [(sG, LY.ACT_STRIDE), (sR, 4096), (sW, 1024), (sC, 128)])
        a.I("s_and_b32 %s, %s, 1" % (sT0, sC))
        lin(sSST, sTS, [(sT0, -120)])
        a.I("s_add_u32 %s, %s, %d\nv_mov_b32 v%d, %s\nv_mov_b32 v%d, %s\nv_cmp_gt_u32 vcc, 32, v0\nv_cndmask_b32 v%d, v%d, v%d, vcc" %
            (sTS, sTS, LY.SB[0], u1, sTS, XA, sFLW, XA, u1, XA))
        a.vm("buffer_load_dword a255, v%d, %s, 0 offen sc1" % (XA, WS))
        self.sdivmod(kkG, cuG, sU, 28)
        a.I("v_mul_u32_u24 v%d, 3584, v%d\nv_add_u32 v%d, v%d, v%d\nv_lshl_add_u32 v%d, v%d, 10, v%d" % (vB, kc, vB, vB, u0, vD, kc, u0))
        a.I("s_lshr_b32 %s, s2, 3" % kkD)
        lin(sSG, "0", [(kkG, 64 * 3584), (sW, 16 * 3584), (cuG, 128)])
        lin(sSD, "0", [(kkD, 65536), (sW, 16384), (sV, 128)])
        xd, swaps = [], []
        if OPT["xdir"]:
            vX, sXD, sHD, sXL = 31 - 10, "s98", "s14", "s99"
            self.srd(SRC_A, "s64", "s65", 2048 * 1024)
            a.I("v_xor_b32 v%d, v%d, v%d\nv_lshlrev_b32 v%d, 4, v%d\nv_lshl_add_u32 v%d, v%d, 11, v%d" % (vX, t8, kc, vX, vX, vX, kc, vX))
            lin(sHD, "0", [(sN, 262144), (sP, 1024)])
            lin(sXD, sHD, [(sW, 65536)])
            lin(sHD, sHD, [(sW, 256)])
            a.I("s_sub_u32 %s, %s, 16384\ns_cmp_eq_u32 %s, 0\ns_cselect_b32 %s, 0x%x, %s\ns_lshl_b32 %s, %s, 15" % (sHD, sHD, sN, sHD, OOB, sHD, sXL, sW))
            a.I("v_xor_b32 v16, v%d, v%d\nv_lshlrev_b32 v16, 4, v16\nv_lshl_add_u32 v%d, v%d, 7, v16\nv_add_u32 v%d, %d, v%d" % (t8, g, u1, t8, u1, L_HALO, u1)); put(aSH)
            a.I("v_lshl_add_u32 v16, v%d, 7, v16\nv_add_u32 v16, %s, v16\nv_xor_b32 v17, 64, v16" % (tok, sXL))
            for m in range(8):
                for k in range(4):
                    xd.append([("i", "s_add_u32 m0, %s, %d\ns_add_u32 s15, %s, %d" % (sXL, m * 4096, sXD, k * 16384 + m * 128 - k * 1024)),
                               ("vm", "buffer_load_dwordx4 v%d, %s, s15 offen offset:%d lds" % (vX, sa, k * 1024), ("xd", m, k))])
                swaps.append(("wvm", ("xd", m, 3)))
                swaps += [("ds", "ds_read_b128 %s, v%d offset:%d" % (vr(X + 8 * (2 * m + h_) + 4 * b_, 4), 16 + h_, m * 4096 + b_ * 2048)) for b_ in range(2) for h_ in range(2)]
            swaps.append(("dsdrain",))
            self.halo0 = [[("set", "m0", "s_add_u32 m0, %s, %d" % (sLW2, L_HALO + 1024 * k)), ("i", "s_add_u32 s15, %s, %d" % (sHD, 128 * k)),
                           ("vm", "buffer_load_dwordx4 v%d, %s, s15 offen lds" % (vX, sa), "halo" if k else None)] for k in range(2)]
            a.run_all(self.flat(xd[:OPT["xd0"]])); xd = xd[OPT["xd0"]:]
        self.srd(SRC_G, "s72", "s73", 512 * 3584)
        self.srd(SRC_U, "s74", "s75", 512 * 3584)
        self.srd(SRC_D, "s76", "s77", 1792 * 1024)
        def b_loads():
            for srdn, so, va, stride, lo in ((SRC_G, sSG, vB, 3584, 8192), (SRC_U, sSG, vB, 3584, 16384), (SRC_D, sSD, vD, 1024, 24576)):
                a.I("s_add_u32 m0, %s, %d\ns_add_u32 %s, %s, %d" % (sLW2, L_FMT + lo, sT0, so, 8 * stride - 1024))
                a.vm("buffer_load_dwordx4 v%d, s[%d:%d], %s offen lds" % (va, srdn, srdn + 3, so))
                a.vm("buffer_load_dwordx4 v%d, s[%d:%d], %s offen offset:1024 lds" % (va, srdn, srdn + 3, sT0), ("fb", lo))
        if OPT["b_pos"] == 0: b_loads()
        self.srd(16, "s78", "s79", 2048 * 1024)
        a.I("v_accvgpr_write_b32 a%d, v%d\nv_lshlrev_b32 v%d, 4, v0" % (aROW, vR, vL16))
        dA, dA2, dCS = "s3", "s0", "s1"
        a.I("s_and_b32 %s, %s, 7\ns_lshl_b32 %s, %s, 1\ns_lshr_b32 %s, %s, 1\ns_add_u32 %s, %s, %s" % (sT0, cuA, sT0, sT0, sT1, sW, sT0, sT0, sT1))
        a.I("s_mul_i32 %s, %s, %d\ns_add_u32 %s, %s, %d" % (sT0, sT0, LY.WQ_STRIDE, sT0, sT0, LY.WQ))
        a.I("s_lshr_b32 %s, %s, 3\ns_lshl_b32 %s, %s, 1\ns_and_b32 %s, %s, 1\ns_add_u32 %s, %s, %s" % (sT1, cuA, sT1, sT1, sT2, sW, sT1, sT1, sT2))
        lin(dA, sT0, [(kkA, 12288), (sT1, 1024)])
        lin(dCS, sT0, [(kkA, 64), (sT1, 512)])
        a.I("s_add_u32 %s, %s, 98304" % (dCS, dCS))
        lin(sT0, str(LY.WO), [(cuA, LY.WO_STRIDE), (kkA, 8192), (sW, 1024)])
        a.I("s_cmp_lt_u32 s2, 192\ns_cselect_b32 %s, %s, %s\ns_cselect_b32 %s, %s, 0x%x\ns_cselect_b32 %s, 6, 4\ns_cselect_b64 vcc, -1, 0" %
            (dA, dA, sT0, dCS, dCS, OOB, dA2))
        a.I("s_lshl_b32 %s, %s, 10\ns_add_u32 %s, %s, %s" % (dA2, dA2, dA2, dA2, dA))
        a.I("v_bfe_u32 v%d, v0, 2, 2\nv_and_b32 v%d, 3, v0\nv_bfe_u32 v%d, v0, 4, 1\nv_lshrrev_b32 v%d, 5, v0\nv_and_b32 v%d, 31, v0" % (rr, cc, q16, hh, t32))
        a.I("v_lshl_add_u32 v%d, v%d, 3, v%d\nv_lshlrev_b32 v%d, 7, v%d\nv_lshl_add_u32 v%d, v%d, 2, v%d\nv_lshlrev_b32 v%d, 7, v%d" % (u0, g, rr, u0, u0, u1, g, rr, u1, u1))
        a.I("s_lshr_b32 %s, %s, 1\ns_lshl_b32 %s, %s, 6\ns_and_b32 %s, %s, 1\ns_lshl_b32 %s, %s, 3\ns_add_u32 %s, %s, %s\ns_add_u32 %s, %s, %d" %
            (sT0, sW, sT0, sT0, sT1, sW, sT1, sT1, sT0, sT0, sT1, sT0, sT0, L_FMT))
        a.I("v_lshl_add_u32 v%d, v%d, 4, %s\nv_add_u32 v%d, v%d, v%d\nv_add_u32 v%d, v%d, v%d" % (TA1, cc, sT0, TD, TA1, u0, u1, u1, TA1))
        a.I("s_lshl_b32 %s, %s, 5\ns_add_u32 %s, %s, %d\nv_lshl_add_u32 v%d, v%d, 3, %s\nv_add_u32 v%d, v%d, v%d" % (sT0, sW, sT0, sT0, L_FMT, TA0, cc, sT0, u0, u0, TA0))
        a.I("v_mov_b32 v%d, v%d" % (TG, u0))
        a.I("v_cndmask_b32 v%d, v%d, v%d, vcc\nv_add_u32 v%d, 512, v%d\nv_add_u32 v%d, 2048, v%d\nv_cndmask_b32 v%d, v%d, v%d, vcc" % (TA0, u1, u0, u0, u0, u1, u1, TA1, u1, u0))
        for k in range(4): a.I("v_mov_b32 v%d, 0x3f803f80" % (ONES + k))
        a.I("v_lshlrev_b32 v%d, 2, v%d\nv_lshl_add_u32 v%d, v%d, 28, v%d" % (CSW, tok, CSW, g, CSW))
        a.I("s_mov_b32 %s, 0\ns_mov_b32 %s, 0x3f803f80" % (sSLOW, sONE))
        a.I("v_cmp_ne_u32 vcc, 0, v0\nv_mov_b32 v%d, 0x%x\nv_lshlrev_b32 v%d, 2, v0\nv_cndmask_b32 v%d, 0, v%d, vcc" % (vF1, OOB, vFL, vF1, vF1))
        a.I("s_lshl_b32 %s, %s, %d\ns_add_u32 %s, %s, 0x%x" % (sGB, sG, LY.ACT_SHIFT, sGB, sGB, LY.ACT))
        lin(sXLD, sGB, [(sW, 32768)])
        a.I("s_lshr_b32 %s, %s, 1\ns_and_b32 %s, %s, 1" % (sT0, sW, sT1, sW))
        lin(sXST, sGB, [(sR, 65536), (sC, 4096), (sT0, 32768), (sT1, 256)])
        lin(sOST, sXLD, [(sJ, 2048)])
        lin(sT0, str(LY.XF), [(sG, 2048)])
        a.I("v_lshrrev_b32 v%d, 2, v0\nv_lshl_add_u32 v%d, v%d, 7, %s\nv_lshl_add_u32 v%d, v%d, 30, v%d\nv_accvgpr_write_b32 a%d, v%d" % (XA, XA, XA, sT0, LINE, hh, vFL, aLINE, LINE))
        a.I("v_lshlrev_b32 v%d, 4, v%d\nv_lshl_add_u32 v%d, v%d, 9, v%d" % (u0, tok, vQ, g, u0))
        a.I("v_lshlrev_b32 v%d, 4, v%d\nv_lshl_add_u32 v%d, v%d, 2, v%d\nv_lshl_add_u32 v%d, v%d, 30, v%d" % (u1, tok, u1, hh, u1, u1, q16, u1)); put(aST)
        def die_id():
            lin(sT0, str(LY.XF), [(sG, 2048), (sJ, 128)])
            a.I("s_cmp_eq_u32 %s, 0\ns_cselect_b32 %s, %s, 0x%x\ns_getreg_b32 %s, hwreg(HW_REG_XCC_ID, 0, 4)" % (sW, sT0, sT0, OOB, sT1))
            a.I("s_waitcnt lgkmcnt(0)\ns_add_u32 %s, %s, 0x9e3779b1\ns_xor_b32 %s, %s, %s\nv_mov_b32 v%d, %s" % (sNONCE, sNONCE, sT1, sT1, sNONCE, XV, sT1))
            a.vm("buffer_store_dword v%d, v%d, %s, %s offen sc1" % (XV, LINE, WS, sT0))
            self.stamp("p")
        if OPT["c_early"] < 2: die_id()
        def constants():
            lin(sB3, str(LY.WD), [(sV, LY.WD_STRIDE), (kkD, 8192), (sW, 1024)])
            a.I("s_lshl_b32 %s, %s, 2\ns_add_u32 %s, %s, %s" % (cuG, cuG, cuG, cuG, sW))
            self.sdivmod(sT0, sT1, cuG, 7)
            lin(sB2, str(LY.WG), [(sT0, LY.WG_STRIDE)])
            a.I("s_sub_u32 %s, 6, %s\ns_bitcmp1_b32 %s, 0\ns_cselect_b32 %s, %s, %s" % (sT2, sT1, sT0, sT1, sT1, sT2))
            S0, TL = GS0, 16 - GS0
            lin(sB0, sB2, [(kkG, 28 * 1024), (sT1, 2048)])
            lin(sB2, sB2, [(sT1, (2 * TL + 1) * 1024)])
            lin(sT0, sB2, [(kkG, 4096)])
            a.I("s_add_u32 %s, %s, %d\ns_cmp_lt_u32 %s, %d\ns_cselect_b32 %s, %s, %s\ns_cselect_b32 %s, 14, 2\ns_lshl_b32 %s, %s, 10" %
                (sT0, sT0, 12 * S0 * 1024, kkG, S0 // 2, sB0, sB0, sT0, sB1, sB1, sB1))
            lin(sB2, sB2, [(kkG, 64)])
            a.I("s_add_u32 %s, %s, %d" % (sB2, sB2, (14 * S0 + 2 * TL) * 1024))
            a.I("s_cmp_lt_u32 s2, 224")
            for r_ in (sB0, sB2, sB3): a.I("s_cselect_b32 %s, %s, 0x%x" % (r_, r_, OOB))
            lin(sHFL, str(LY.HFL), [(sG, 1024)])
            lin(sHDFL, sHFL, [(sC, 128)])
            lin(sFBO, str(LY.FA), [(sU, 128)])
            a.I("s_add_u32 %s, %s, 2048\ns_add_u32 %s, %s, 0x%x" % (sHDFL, sHDFL, sHDST, sGB, 2 * LY.ACT_STRIDE))
            a.I("s_cmp_eq_u32 %s, 0\ns_cselect_b32 %s, %s, 0x%x" % (sW, sFBO, sFBO, OOB))
            a.I("s_lshl_b32 %s, %s, 2\ns_add_u32 %s, %s, %s\ns_cmp_eq_u32 %s, 7\ns_cselect_b32 %s, 0, %s\ns_cmp_eq_u32 %s, 7" % (sT0, sR, sT0, sT0, sW, sN, sT0, sT0, sT0))
            a.I("s_cselect_b32 %s, %s, 0x%x" % (sHDST, sHDST, OOB))
            a.I("v_lshlrev_b32 v%d, 4, v%d\nv_lshl_add_u32 v%d, v%d, 7, v%d\nv_add_u32 v%d, %d, v%d" % (u0, t8, u0, g, u0, u1, L_HALO, u0)); put(aHX)
            a.I("s_lshl_b32 %s, %s, 10\nv_add3_u32 v%d, v%d, v%d, %s" % (sT0, sC, u1, u0, vA, sT0)); put(aHST)
            if "c" not in OPT["order"]: constants2()
        def constants2():
            if OPT["c_early"] == 2: die_id()
            a.I("s_lshr_b32 %s, s2, 3\ns_lshl_b32 %s, %s, 2\ns_add_u32 %s, %s, %s\ns_lshl_b32 %s, %s, 7" % (sCPO, sCPO, sCPO, sCPO, sCPO, sW, sCPO, sCPO))
            lin(sHST, sGB, [(sW, 114688), (sJ, 7168)])
            lin(sSLD, sGB, [(sW, 2048)])
            lin(sOL, sXST, [(sC, -4096)])
            a.I("s_bitcmp1_b32 %s, 0\ns_cselect_b32 %s, 1, -1\ns_cselect_b32 %s, 0, 6144\ns_lshl_b32 %s, %s, 10\ns_add_u32 %s, %s, %s" % (sJ, sHSTEP, sT0, sHSTEP, sHSTEP, sHST, sHST, sT0))
            a.I("s_lshr_b32 %s, %s, 1\ns_lshl_b32 %s, %s, 1\ns_add_u32 %s, %s, %s\ns_lshl_b32 s66, 0x11111111, %s\ns_mov_b32 s67, s66" % (sT0, sW, sT1, sR, sT0, sT0, sT1, sT0))
            lin(sHLD[3], sGB, [(sR, 229376), (sW, 28672)])
            for i in range(4):
                a.I("s_add_u32 %s, %s, %d\ns_and_b32 %s, %s, 3\ns_lshr_b32 %s, %s, 1\ns_and_b32 %s, %s, 1" % (sTA, sW, i + 1, sTA, sTA, sT0, sTA, sT1, sTA))
                lin(sHLD[i], sHLD[3], [(sT0, 114688), (sT1, 256)])
                if i < 3: lin(sXW[i], str(i * 4096), [(sTA, 12288)])
            lin(sXR, "0", [(sW, 12288)])
            lin(sWQ, str(LY.WQ), [(sJ, LY.WQ_STRIDE * (1 - OPT["hitw"]))])
            lin(sWG, str(LY.WG), [(sJ, LY.WG_STRIDE * (1 - OPT["hitw"]))])
            lin(sWO, str(LY.WO), [(sC, LY.WO_STRIDE * (1 - OPT["hitw"])), (sW, 4096)])
            lin(sWD, str(LY.WD), [(sC, LY.WD_STRIDE * (1 - OPT["hitw"])), (sW, 57344)])
            lin(sTAB, str(L_TAB), [(sW, 512)])
            a.I("s_lshl_b32 %s, %s, 10\ns_lshl_b32 %s, %s, 12" % (sLW, sW, sLW4, sW))
            if not OPT["xdir"]: a.I("s_add_u32 %s, %s, %s\ns_add_u32 %s, %s, %s" % (sWQ4, sWQ, sLW4, sWG4, sWG, sLW4))
            a.I("s_cmp_eq_u32 %s, 0\ns_cselect_b32 %s, 0x%x, %s\ns_cselect_b64 s[54:55], 0, -1" % (sN, sHALO, OOB, sGB))
            a.I("s_add_u32 %s, %s, %s\ns_add_u32 %s, %s, %s\ns_add_u32 %s, %s, %s" % (sHALO2, sHALO, sLW2, sWQ, sWQ, sLW, sWG, sWG, sLW2))
            a.I("s_lshr_b32 %s, %s, 1\ns_lshl_b32 %s, %s, 5\ns_and_b32 %s, %s, 1\ns_lshl_b32 %s, %s, 1\ns_add_u32 %s, %s, %s" % (sT0, sW, sT0, sT0, sT1, sW, sT1, sT1, sT0, sT0, sT1))
            a.I("s_mov_b32 s40, 0x33333333\ns_mov_b32 s41, 0\ns_lshl_b64 s[40:41], s[40:41], %s" % sT0)
            a.I("s_lshl_b32 %s, %s, 1\ns_lshl_b32 %s, %s, 4\ns_add_u32 %s, %s, %s" % (sT0, sR, sT2, sW, sT0, sT0, sT2))
            a.I("s_mov_b32 s42, 0x3333\ns_mov_b32 s43, 0\ns_lshl_b64 s[42:43], s[42:43], %s" % sT0)
            a.I("v_add_u32 v%d, 0x10000, v%d\nv_add_u32 v%d, 0x20000, v%d" % (vL16b, vL16, vL16c, vL16))
            a.I("v_lshrrev_b32 v%d, %d, v0\nv_lshlrev_b32 v%d, 7, v%d" % (u1, 1 if OPT["xdir"] else 2, u1, u1))
            if OPT["xdir"]:
                a.I("s_add_u32 %s, %s, %d\nv_and_b32 v%d, 128, v%d\nv_add_u32 v%d, %s, v%d\nv_bfe_u32 v%d, v0, 2, 3" % (sT0, sOST, LY.OB[0], u0, u1, u1, sT0, u1, CSW))
                a.I("s_add_u32 %s, %s, %d\nv_lshl_add_u32 v%d, v%d, 9, v%d\nv_cmp_gt_u32 vcc, 32, v0\nv_add_u32 v%d, %s, v%d\nv_cndmask_b32 v%d, v%d, v%d, vcc" %
                    (sT0, sXST, LY.XB[1], u0, CSW, u0, u0, sT0, u0, u1, u0, u1))
            put(aTO)
            a.I("v_lshlrev_b32 v%d, 7, v%d\nv_lshl_add_u32 v%d, v%d, 5, v%d\nv_lshl_add_u32 v%d, v%d, 1, v%d\nv_lshlrev_b32 v%d, 3, v0" % (u0, rr, u0, g, u0, u0, cc, u0, u1))
            a.I("s_cmp_ge_u32 %s, 2\ns_cselect_b64 vcc, -1, 0\ns_cselect_b32 %s, 2, 8\nv_cndmask_b32 v%d, v%d, v%d, vcc" % (sW, sT1, u1, u0, u1))
            a.I("s_lshr_b32 %s, %s, 1\ns_add_u32 %s, %s, %d\nv_add_u32 v%d, %s, v%d" % (sT0, sLW, sT0, sT0, L_KV, u1, sT0, u1)); put(aHWR)
            a.I("v_mov_b32 v%d, %s" % (u1, sT1)); put(aHWS)
            a.I("v_bfe_u32 v%d, v0, 2, 3\nv_min_u32 v%d, 6, v%d\ns_mul_i32 %s, %s, 7\nv_add_u32 v%d, %s, v%d" % (t8, t32, t8, sT0, sW, t32, sT0, t32))
            a.I("s_lshl_b32 %s, %s, 1\nv_and_or_b32 v%d, v%d, 1, %s" % (sT0, sW, t8, t8, sT0))
            a.I("s_lshr_b32 %s, %s, 1\nv_mul_u32_u24 v%d, 24, v%d\nv_lshl_add_u32 v%d, v%d, 3, v%d\nv_add_u32 v%d, %s, v%d" % (sT0, sJ, u0, t8, u0, kc, u0, u0, sT0, u0))
            a.I("s_add_u32 %s, %s, 192\nv_lshl_add_u32 v%d, v%d, 3, %s\nv_cmp_gt_u32 vcc, 24, v0\nv_cndmask_b32 v%d, v%d, v%d, vcc" % (sT0, sC, u1, t8, sT0, u0, u1, u0))
            a.I("v_lshlrev_b32 v%d, 7, v%d\nv_add_u32 v%d, %d, v%d" % (u0, u0, FAV, LY.FA, u0))
            a.I("s_mul_i32 %s, %s, 7\ns_add_u32 %s, %s, 6\ns_lshr_b32 %s, %s, 2\ns_lshr_b32 %s, %s, 2" % (sT0, sJ, sT1, sT0, sT0, sT0, sT1, sT1))
            a.I("v_add_u32 v%d, %s, v%d\nv_min_u32 v%d, %s, v%d\nv_mad_u32_u24 v%d, v%d, 28, v%d" % (u0, sT0, kc, u0, sT1, u0, u0, t8, u0))
            a.I("v_lshl_add_u32 v%d, v%d, 3, %s\nv_cmp_gt_u32 vcc, 32, v0\nv_cndmask_b32 v%d, v%d, v%d, vcc" % (u1, t32, sC, u0, u1, u0))
            a.I("v_lshlrev_b32 v%d, 7, v%d\nv_add_u32 v%d, %d, v%d" % (u0, u0, u1, LY.FB, u0)); put(aFB)
            if OPT["c_early"] == 3: die_id()
            a.I("s_getpc_b64 %s\nL_pc2:\ns_sub_u32 s4, s4, L_pc2-L_pc\ns_subb_u32 s5, s5, 0" % sPC)
            NG, Z, M0_, M1_ = rr, cc, q16, hh
            a.I("s_or_b32 %s, %s, %s\ns_cmp_eq_u32 %s, 0\ns_cselect_b64 s[56:57], -1, 0" % (sT0, sN, sW, sT0))
            a.I("v_mov_b32 v%d, %s\nv_mov_b32 v%d, 0\nv_lshlrev_b32 v%d, 2, v%d\nv_sub_u32 v%d, v%d, v%d" % (NG, NEG, Z, vA, g, vA, tok, vA))
            for r in range(4):
                a.I("v_subrev_u32 v%d, %d, v%d\nv_mov_b32 v%d, %s" % (u0, r, vA, M0_, "0xffff0000" if r & 1 else "0xffff"))
                a.I("v_cmp_gt_u32 vcc, 8, v%d\nv_cmp_gt_i32 s[58:59], -8, v%d\nv_cmp_le_i32 s[60:61], 0, v%d" % (u0, u0, u0))
                a.I("v_cndmask_b32 v%d, v%d, v%d, vcc" % (u1, NG, Z)); put(aBC + r)
                a.I("v_cndmask_b32 v%d, v%d, v%d, s[58:59]" % (u1, NG, Z)); put(aBP + r)
                a.I("v_cndmask_b32 v%d, v%d, v%d, s[56:57]" % (u1, u1, NG)); put(aBP0 + r)
                if r & 1:
                    a.I("v_cndmask_b32 v%d, v%d, v%d, s[60:61]\nv_or_b32 v%d, v%d, v%d" % (u1, Z, M0_, u1, u1, M1_)); put(aMC + r // 2)
                else:
                    a.I("v_cndmask_b32 v%d, v%d, v%d, s[60:61]" % (M1_, Z, M0_))
        a.I("v_bfe_u32 v%d, v0, 3, 1\nv_xor_b32 v%d, 1, v%d\nv_lshlrev_b32 v%d, 29, v%d" % (vA, vA, vA, vA, vA))
        a.I("s_and_b32 %s, %s, 1" % (sT1, sC))
        lin(sT0, str(8192 - 128), [(sC, 64), (sT1, -56)])
        a.I("v_add3_u32 v%d, v%d, v%d, %s" % (u1, u1, vA, sT0)); put(aHSS)
        if OPT["c_early"]: constants()
        self.stamp("p")
        if OPT["b_pos"] == -1: b_loads()
        a.vm_wait("fa")
        a.I("s_barrier")
        for sp in range(2):
            for half in range(2):
                a.ds("ds_read_b64_tr_b16 %s, v%d offset:%d" % (vr(ACC + 4 * sp + 2 * half, 2), (TA0, TA1)[half], sp * 4096), ("t", sp))
        self.stamp("p")
        for sp in range(2):
            a.ds_wait(("t", sp))
            a.vm("buffer_store_dwordx4 %s, v%d, %s, %s offen sc1" % (vr(ACC + 4 * sp, 4), vL16, WS, (dA, dA2)[sp]))
            a.I("v_mfma_f32_16x16x32_bf16 %s, %s, %s, %s" % (vr(ACC + 8, 4), vr(ONES, 4), vr(ACC + 4 * sp, 4), vr(ACC + 8, 4) if sp else "0"))
        a.I("\n".join(self.hi_lo(ACC + 12, ACC + 8, ACC + 13)))
        a.vm("buffer_store_dword v%d, v%d, %s, %s offen sc1" % (ACC + 12, CSW, WS, dCS), "fas")
        if OPT["b_pos"] == -2: b_loads()
        a.vm_wait("x")
        self.pair_swap(XRES, ACC + 56)
        self.publish(0)
        xload = "buffer_load_dword v31, v%d, %s, 0 offen sc1" % (XA, WS)
        a.vm(xload, "xf")
        if OPT["b_pos"] == 1 and not OPT["xdir"]: b_loads()
        self.stamp("p")
        if OPT["xdir"]:
            n0 = len(a.lines)
            constants()
            body = a.lines[n0:]; del a.lines[n0:]
            k, since = 0, 99
            for n_, t in enumerate(body):
                if k < OPT["xd1"] and since >= OPT["xd_gap"] and not self.scc_live(body, n_):
                    a.run_all(xd[k]); k += 1; since = 0
                a.I(t); since += 1
            a.run_all(self.flat(xd[k:OPT["xd1"]])); xd = xd[OPT["xd1"]:]
        elif not OPT["c_early"]: constants()
        def second_unit():
            G, D, CS = (ACC + 16, ACC + 32, ACC + 48) if OPT["xdir"] else (X + 96, X + 112, ACC + 48)
            out = []
            def store(ops):
                if OPT["b_spread"] and "b" not in OPT["order"]: out.append(ops)
                else: a.run_all(ops)
            if "b" in OPT["order"]:
                a.vm_wait(("fb", 24576))
                a.I("s_barrier")
            for n_ in range(4):
                for half in range(2):
                    a.ds("ds_read_b64_tr_b16 %s, v%d offset:%d" % (vr(G + 4 * n_ + 2 * half, 2), TG, 8192 * (1 + n_ % 2) + (32 * (n_ // 2) + 4 * half) * 128), ("tg", n_))
            for sp in range(2):
                for half in range(2):
                    a.ds("ds_read_b64_tr_b16 %s, v%d offset:%d" % (vr(D + 4 * sp + 2 * half, 2), TD, 24576 + (32 * sp + 4 * half) * 128), ("td", sp))
            for n_ in range(4):
                a.ds_wait(("tg", n_))
                store(([("i", "s_add_u32 %s, %s, %s" % (sB0, sB0, sB1))] if n_ == 2 else []) +
                      [("vm", "buffer_store_dwordx4 %s, v%d, %s, %s offen offset:%d sc1" % (vr(G + 4 * n_, 4), vL16, WS, sB0, (n_ % 2) * 1024))])
                c_ = vr(CS + 4 * (n_ % 2), 4)
                a.I("v_mfma_f32_16x16x32_bf16 %s, %s, %s, %s" % (c_, vr(ONES, 4), vr(G + 4 * n_, 4), c_ if n_ >= 2 else "0"))
            for sp in range(2):
                a.ds_wait(("td", sp))
                store(([("i", "s_add_u32 %s, %s, 4096" % (sB3, sB3))] if sp else []) +
                      [("vm", "buffer_store_dwordx4 %s, v%d, %s, %s offen sc1" % (vr(D + 4 * sp, 4), vL16, WS, sB3))])
            a.I("v_cmp_gt_u32 vcc, 16, v0\nv_bfe_u32 v%d, v0, 4, 1\nv_mul_u32_u24 v%d, 448, v%d\nv_add_u32 v%d, v%d, v%d\nv_cndmask_b32 v%d, v%d, v%d, vcc" %
                (D + 9, D + 9, D + 9, D + 9, D + 9, LINE, CS, CS + 4, CS))
            a.I("\n".join(self.hi_lo(D + 8, CS, CS + 1)))
            store([("vm", "buffer_store_dword v%d, v%d, %s, %s offen sc1" % (D + 8, D + 9, WS, sB2), "fbs")])
            self.stamp("p")
            return out
        def first_flags():
            a.I("v_mov_b32 v30, %s" % sNONCE)
            a.vm_wait("fas")
            a.I("s_barrier")
            a.vm("buffer_store_dword v30, v%d, %s, %s offen sc1" % (LINE, WS, sFBO))
            a.I("s_add_u32 %s, %s, %d" % (sFBO, sFBO, LY.FB - LY.FA))
            self.stamp("p")
        def own_flags():
            spin, back = a.label("xspin"), a.label("xback")
            test = "v_xor_b32 v29, %s, v31\nv_cmp_lt_u32 vcc, 15, v29\ns_and_b64 vcc, vcc, exec" % sNONCE
            a.vm_wait("xf")
            a.I("%s\ns_cbranch_scc1 %s\n%s:" % (test, spin, back))
            self.cold.append("%s:\ns_mov_b32 %s, 0x40000\n%s_l:\n%s\ns_sub_u32 %s, %s, 1\ns_cbranch_scc1 L_main_done\ns_waitcnt vmcnt(0)\n%s\ns_cbranch_scc1 %s_l\ns_branch %s"
                             % (spin, sSPIN, spin, xload, sSPIN, sSPIN, test, spin, back))
            a.I("v_cmp_ne_u32 vcc, v%d, v31\ns_cmp_lg_u64 vcc, 0\ns_cselect_b32 %s, 1, 0\ns_mov_b32 s0, %s\ns_mov_b32 s1, 0" % (XV, sSLOW, sSLOW))
            self.signal(0, "pub", 0)
            self.stamp("p")
        for step in OPT["order"]:
            if step == "c" and OPT["xdir"]: continue
            {"b": second_unit, "a": first_flags, "o": own_flags, "c": constants2}[step]()
        if OPT["xdir"]:
            k = OPT["xd2"]
            a.run_all(self.flat(xd[:k]))
            b_loads()
            a.run_all(self.flat(xd[k:]))
            if "c" in OPT["order"]: constants2()
            a.I("s_add_u32 %s, %s, %s\ns_add_u32 %s, %s, %s" % (sWQ4, sWQ, sLW4, sWG4, sWG, sLW4))
            a.I("s_sub_u32 %s, %s, %s\ns_sub_u32 %s, %s, %s" % (sWQ4, sWQ4, sLW, sWG4, sWG4, sLW2))
            self.stamp("p")
            a.run_all(swaps)
        self.stamp("p")
        if "b" in OPT["order"]:
            a.vm_wait("fbs")
            a.I("s_barrier")
            a.vm("buffer_store_dword v30, v%d, %s, %s offen sc1" % (LINE, WS, sFBO))
        elif OPT["predrain"]:
            a.vm_drain()
        self.stamp("p")
        self.second_unit, self.b_loads = second_unit, b_loads
        self.fav = FAV

    def qkv(self, ps):
        a = self.a
        xi = 2 * ps
        late = self.wq_late(ps)
        lateb = ps == 0 and "b" not in OPT["order"]
        bst = []
        wql = [g for ch in late for g in self.wq_chunk(ch)]
        split = ps == 0 and OPT["q0_split"]
        HX, HW, HW2, HF, NM, RL, CQ, RR = 16, 17, 18, 19, 20, 26, 28, ACC + 52
        def setup():
            a.I(self.getc(HX, aHX))
            a.I("s_add_u32 %s, %s, 2048\nv_add_u32 v%d, %s, v%d\nv_add_u32 v%d, 0xc000, v%d\nv_and_b32 v%d, 0x380, v%d" % (sT2, sLW, HW, sT2, vL16, HW2, HW, CQ, vL16))
        self.poll(6 * ps, sMA, self.fav if ps == 0 and not split else None, setup)
        self.stamp()
        xl = self.reg_loads([vr(X + 8 * s + 4 * b, 4) for s in range(16) for b in range(2)], [sXLD] * 32,
                            [LY.XB[xi] + s * 2048 + b * 256 for s in range(16) for b in range(2)], sTA, vQ, "x")
        UP = OPT["q_up"] if ps else OPT["q0_up"]
        xdir = ps == 0 and OPT["xdir"]
        if xdir: xl = []
        if ps == 0:
            late = late[1:]
            n = 4 + OPT["q0_w"]
            first = wql[:4] + xl[:UP] + wql[4:n]
            if split:
                l_fa, g_fa = self.late_check("buffer_load_dword v%d, v%d, %s, 0 offen sc1" % (HF, self.fav, WS), HF, "exec", "fa")
                n1 = OPT["q0_n1"]
                first = xl[:n1] + [l_fa] + xl[n1:UP] + [g_fa + [("i", "s_barrier")]] + wql[:n]
            else:
                first = xl[:2] + [[("i", "s_barrier")]] + wql[:4] + xl[2:UP] + wql[4:n] + (self.halo0 if xdir else [])
            wql = wql[n:]
            if OPT["b_pos"] >= 2:
                k = OPT["b_pos"] - 2
                a.run_all(self.flat(first[:k])); first = first[k:]
                self.b_loads(); a.state.pop("m0", None)
            if lateb:
                k = len(first) - OPT["q0_b"]
                a.run_all(self.flat(first[:k])); first = first[k:]
                if OPT["b_pos"] >= 2: a.vm_wait(("fb", 24576))
                a.I("s_barrier")
                bst = self.second_unit()
            a.run_all(self.flat(first))
        else:
            a.run_all(self.flat(xl[:UP]))
        if ps == 0:
            a.vm_wait(("wq", 0))
        a.I("s_barrier")
        sl = Slots()
        sl.mpatience, sl.patience = OPT["q_mp%d" % ps], OPT["q_vp"]
        use = {}
        acc = lambda blk, b: vr(ACC + 8 * blk + 4 * b, 4)
        hbuf = lambda t: (F + 24, X)[t % 2]
        step0 = {}
        H0 = OPT["xd_h0"] if xdir else OPT["q_h0"]
        hpos = {}
        for t in range(16):
            p = (t * 6 * (16 - H0)) // 16 + 1
            hpos.setdefault((H0 + p // 6, p % 6), []).append(t)
        Y, Z = X + 8, X + 96
        BC, BP, BP0, MC, ONES, KW, CSA = Y, Y + 4, Y + 8, Y + 12, Y + 14, Y + 16, Y + 21
        def halo_mfma(t):
            d = acc(6, 0)
            if t < 16:
                i = sl.add("v_mfma_f32_16x16x32_bf16 %s, %s, %s, %s" % (d, vr(hbuf(t) + 4, 4), vr(hbuf(t), 4), "0" if t == 0 else d), [("wds", ("hx", t))])
            else:
                i = sl.add("v_mfma_f32_16x16x16_bf16 %s, %s, %s, %s" % (d, vr(NM + 4, 2), vr(hbuf(t), 2), d), [("wds", ("hw", t))])
            use[("h", t)] = i
        for s in range(17):
            step0[s] = sl.n()
            if s == 16: halo_mfma(16)
            for f in range(6):
                for b in range(2):
                    pre_ = []
                    if b == 0: pre_.append(("wds", ("f", s, f // OPT["q_grp"] * OPT["q_grp"] + OPT["q_grp"] - 1)))
                    if f == 0 and s < 16 and not xdir: pre_.append(("wvm", ("x", 2 * s + (b if s == 0 else 1))))
                    w = vr(F + 4 * f, 4 if s < 16 else 2)
                    x = vr(X + 8 * s + 4 * b, 4) if s < 16 else vr(NM + 2 * b, 2)
                    A, B = (w, x) if f < 4 else (x, w)
                    d = acc(f, b)
                    mn = "v_mfma_f32_16x16x32_bf16" if s < 16 else "v_mfma_f32_16x16x16_bf16"
                    use[(s, f)] = sl.add("%s %s, %s, %s, %s" % (mn, d, A, B, "0" if s == 0 else d), pre_)
                for t in hpos.get((s, f), ()): halo_mfma(t)
        reads = []
        for s in range(17):
            for f in range(6):
                d = F + 4 * f
                if s < 16: t = "ds_read_b128 %s, %s" % (vr(d, 4), ldsaddr(s * 6144 + f * 1024))
                else: t = "ds_read2st64_b32 %s, v%d offset0:%d offset1:%d" % (vr(d, 2), CSA, 2 * f, 2 * f + 1)
                reads.append((use[(s - 1, f)] if s else -1, (6 * s + f) // 16, ("ds", t, ("f", s, f))))
        hbar = step0[H0 - 1] + 4
        for t in range(17):
            pos = use[("h", t - 2)] if t >= 2 else hbar + 2 + 2 * t
            if t < 16:
                reads.append((pos, (6 * t + 5) // 16, ("ds", "ds_read_b128 %s, v%d offset:%d" % (vr(hbuf(t), 4), HW if t < 8 else HW2, (t % 8) * 6144), ("hw", t))))
                reads.append((pos + (1 if t >= 2 else 0), 0, ("ds", "ds_read_b128 %s, v%d offset:%d" % ((vr(hbuf(t) + 4, 4),) + ((X + 34 + t % 2, t // 2 * 1024) if xdir else (HX, t * 512))), ("hx", t))))
            else:
                reads.append((pos, 6, ("ds", "ds_read2st64_b32 %s, v%d offset0:4 offset1:5" % (vr(hbuf(t), 2), CSA + 1), ("hw", t))))
        sl.put("c", step0[4], [("i", "v_add_u32 v%d, 98304, v%d\ns_lshr_b32 %s, %s, 1\nv_add_u32 v%d, %s, v%d" % (CSA, vFL, sT2, sLW, CSA + 1, sT2, CSA)), ("mark", "csaddr")])
        sl.after(step0[14], ("need", "csaddr"))
        sl.pre[step0[16]].append(("wds", ("nm", 2)))
        chbar = {}
        for ch in late:
            ops = [("wvm", ("wq", ch)), ("i", "s_barrier")]
            p = chbar[ch] = min(p for p, c, _ in reads if c == ch)
            if lateb and ch == OPT["q0_fbch"]:
                ops.insert(0, ("wvm", "fbs"))
                assert p >= step0[5]
                sl.put("f", p + 1, [("i", "v_mov_b32 v%d, %s\n%s" % (X + 32, sNONCE, self.getc(X + 33, aLINE))),
                                    ("vm", "buffer_store_dword v%d, v%d, %s, %s offen sc1" % (X + 32, X + 33, WS, sFBO))])
            sl.after(p, *ops)
        sl.after(hbar, ("wvm", "halo"), ("i", "s_barrier"))
        if xdir:
            assert H0 >= 7 and not OPT["diagpad"]
            sl.put("g", step0[5], [("i", self.getc(X + 34, aSH) + "\nv_xor_b32 v%d, 64, v%d" % (X + 35, X + 34)), ("mark", "hx0")])
            sl.after(hbar, ("need", "hx0"))
        for pos, _, rd in reads:
            if pos < 0: a.run(rd)
            else: sl.after(pos, rd)
        l_hf, g_chk = self.late_check("buffer_load_dword v%d, v%d, %s, %s offen sc1" % (HF, CQ, WS, sT1), HF, sMH, "hf")
        g_hf = [("i", "s_add_u32 %s, %s, %d" % (sT1, sHFL, ps * 16384))] + l_hf
        g_hd = self.dma_chunk(sHALO2, LY.HX[ps], L_HALO, 2, "halo", " sc1")
        g_hs = [("i", "s_add_u32 %s, %s, %d" % (sT1, sHALO, LY.HX[ps] + 8192 - L_HALO)),
                ("vm", "buffer_load_dwordx4 %s, v%d, %s, %s offen sc1" % (vr(RR + 8, 4), HX, WS, sT1), "st")]
        g_s0 = [("i", "s_add_u32 %s, %s, %d" % (sT0, sSLD, LY.SB[xi])), ("vm", "buffer_load_dwordx4 %s, v%d, %s, %s offen sc1" % (vr(RR, 4), vL16, WS, sT0))]
        g_s1 = [("vm", "buffer_load_dwordx4 %s, v%d, %s, %s offen offset:1024 sc1" % (vr(RR + 4, 4), vL16, WS, sT0))]
        wbar = max(use[("h", 6)] + 2, step0[OPT["xd_wbar" if xdir else "q_wbar"]])
        while sl.post[wbar]: wbar += 1
        sl.after(wbar, ("i", "s_barrier"))
        wo = [(0 if i < 2 else wbar + 2, g) for i in range(4) for g in self.wo_chunk(i)]
        rest = xl[UP:]
        h1 = OPT["q_hf"] if ps else OPT["q0_hf"]
        h2 = h1 + OPT["q_chk"] - 2
        seq = rest[:h1] + [g_hf, g_s0, g_s1] + rest[h1:h2] + [g_chk] + g_hd + [g_hs] + rest[h2:]
        if xdir:
            k1, k2 = OPT["xd_h1"], OPT["xd_h1"] + OPT["xd_h2"]
            seq = wql[:k1] + [g_hf, g_s0, g_s1] + wql[k1:k2] + [g_chk, g_hs] + wql[k2:]
        elif wql:
            due, d = [], sl.n()
            for g in reversed(seq):
                tag = g[-1][2] if len(g[-1]) > 2 else None
                if isinstance(tag, tuple) and tag[0] == "x": d = step0[tag[1] // 2]
                due.append((d, g))
            due.reverse()
            d, wdue = 0, []
            for g in reversed(wql):
                if g[-1][2] is not None: d = chbar[g[-1][2][1]] - OPT["q0_lead"]
                wdue.append((d, g)); d -= 6
            seq = [g for _, g in sorted(due + wdue[::-1], key=lambda t: t[0])]
        for n_, g in enumerate(bst):
            k = OPT["b_first"] + n_ * (OPT["b_gap"] + 1)
            assert not any(op[0] == "vm" and len(op) > 2 and isinstance(op[2], tuple) and op[2][0] == "x" and op[2][1] >= 24 for g2 in seq[:k] for op in g2)
            seq.insert(k, g)
        if ps == 0:
            if OPT["xdir"]: seq += self.touch(aTO, "0", 0, CQ)
            elif OPT["otouch"]: seq += self.touch(aTO, sOST, LY.OB[ps], CQ)
            l_fb, g_fb = self.late_check("%s\nbuffer_load_dword v%d, v%d, %s, 0 offen sc1" % (self.getc(Y + 23, aFB), Y + 23, Y + 23, WS), Y + 23, "exec", "fb")
            l_fb = [("i", l_fb[0][1].split("\n")[0]), ("vm", l_fb[0][1].split("\n")[1], "fb")]
            seq += [g + (OPT["q0_tail"] / 10,) for g in wo]
            sl.put("f", step0[OPT["q0_fbs"]], l_fb)
        else:
            seq += wo
        sl.put("g", step0[12], self.flat(self.code_touch("L_wo%d" % ps, CQ + 1)))
        left = sl.pace(seq, 0, (OPT["q_every"] if ps else OPT["q0_every"]) / 10)
        A0, A1, AH = RR, RR + 4, RR + 8
        st = [[("wvm", "st")]]
        for r_ in (A0, A1, AH):
            st.append([("i", "v_add_f32 v%d, v%d, v%d" % (r_, r_, r_ + 2))])
            st.append([("i", "v_add_f32 v%d, v%d, v%d" % (r_ + 1, r_ + 1, r_ + 3))])
        for o in (0, 1): st.append([("i", "v_mov_b32 v%d, v%d" % (AH + 2 + o, AH + o))])
        for o in (0, 1): st.append([("i", "v_permlane32_swap_b32 v%d, v%d" % (A0 + o, A1 + o))])
        for o in (0, 1): st.append([("i", "v_permlane32_swap_b32 v%d, v%d" % (AH + o, AH + 2 + o))])
        for o in (0, 1): st.append([("i", "v_add_f32 v%d, v%d, v%d" % (A0 + o, A0 + o, A1 + o))])
        for o in (0, 1): st.append([("i", "v_add_f32 v%d, v%d, v%d" % (AH + o, AH + o, AH + 2 + o))])
        for o in (0, 1): st.append([("i", "v_permlane16_swap_b32 v%d, v%d" % (A0 + o, AH + o))])
        for o in (0, 1): st.append([("i", "v_add_f32 v%d, v%d, v%d" % (A0 + o, A0 + o, AH + o))])
        st += [[op] for op in self.ln_from_sums(A0, A0 + 1, A0 + 2)]
        st.append([("i", "v_cvt_pk_bf16_f32 v%d, -v%d, -v%d" % (A0, A0, A0))])
        st.append([("i", "v_add_u32 v%d, %s, v%d" % (HF, sTAB, vFL))])
        st.append([("i", "v_and_or_b32 v30, v%d, 63, %s" % (vFL, sTAB))])
        st.append([("i", "v_and_or_b32 v31, v0, 48, %s" % sTAB)])
        st.append([("ds", "ds_write2st64_b32 v%d, v%d, v%d offset0:0 offset1:1" % (HF, A0 + 1, A0))])
        row = {0: 0, 1: 2, 2: 1}
        for b in range(3):
            o = 64 + row[b] * 16
            st.append([("ds", "ds_read2_b32 %s, v30 offset0:%d offset1:%d" % (vr(NM + 2 * b, 2), o, o), ("nm", b))])
        st.append([("ds", "ds_read2_b32 %s, v30 offset0:0 offset1:32" % vr(RL, 2))])
        for b in range(3):
            st.append([("ds", "ds_read_b128 %s, v31 offset:%d" % (vr(RR + 4 * b, 4), row[b] * 64), ("tab", b))])
        sl.spread(st, step0[OPT["xd_st"]] if xdir else step0[H0] - OPT["q_st"], step0[14])
        cst = [[("i", self.getc(Y + k, aBC + k))] for k in range(14)]
        cst += [[("i", "v_mov_b32 v%d, %s" % (ONES + k, sONE))] for k in range(2)]
        cst += [[("i", self.getc(KW, aHWR))], [("i", self.getc(KW + 3, aHWS))], [("i", "s_add_u32 %s, %s, %d" % (sT2, sLW2, L_KV))],
                [("i", "v_add_u32 v%d, v%d, v%d" % (KW + 1, KW, KW + 3))], [("i", "v_lshl_add_u32 v%d, v0, 3, %s" % (KW + 4, sT2))],
                [("i", "v_add_u32 v%d, v%d, v%d" % (KW + 2, KW + 1, KW + 3))], [("i", "v_add_u32 v%d, v%d, v%d" % (KW + 3, KW + 2, KW + 3))]]
        sl.spread(cst, step0[4] + 2, step0[8], "c")
        Qp = lambda b, h: Z + 4 * h + 2 * b
        Kp = lambda b, h: Z + 8 + 6 * h + 2 * (b + 1)
        Vp = lambda b, h: Z + 20 + 6 * h + 2 * (b + 1)
        HP, HA = HX, ACC + 48
        ar_ = lambda blk, b: ACC + 8 * blk + 4 * b
        cvt = lambda d, s_: "v_cvt_pk_bf16_f32 v%d, v%d, v%d" % (d, s_, s_ + 1)
        tl = [("wds", ("tab", 2)), ("i", "v_mul_f32 v%d, 0x3eb8aa3b, v%d\nv_mul_f32 v%d, 0x3eb8aa3b, v%d" % (CQ, RL, CQ + 1, RL + 1))]
        tl += [("i", "v_mul_f32 v%d, v%d, v%d" % (HA + r, HA + r, RR + 8 + r)) for r in range(4)]
        tl += [("i", cvt(HP, HA)), ("i", cvt(HP + 1, HA + 2))]
        hw = [("ds", "ds_write_b16%s v%d, v%d" % ("_d16_hi" if r & 1 else "", KW + r, HP + r // 2)) for r in range(4)]
        qs = [(h, b) for h in range(2) for b in range(2)]
        sl.put("v", step0[16], tl)
        for n_, (h, b) in enumerate(qs):
            sl.put("v", use[(16, h)], [hw[n_], ("i", cvt(Qp(b, h), ar_(h, b))), ("i", cvt(Qp(b, h) + 1, ar_(h, b) + 2))])
        self.lite(sl, "q", [step0[s] for s in (0, 2, 4, 6, 8, 10, 12, 14)])
        self.report("qkv%d" % ps, sl.emit(a))
        self.stamp()
        body = []
        e = lambda t: body.extend(("i", x) for x in t.split("\n"))
        def pack(dst, src): e(cvt(dst, src) + "\n" + cvt(dst + 1, src + 2))
        def scale_l(src, b):
            for k in range(2): e("v_pk_mul_f32 %s, %s, %s op_sel:[0,%d] op_sel_hi:[1,%d]" % (vr(src + 2 * k, 2), vr(src + 2 * k, 2), vr(RL, 2), b, b))
        def scale_r(src, r0):
            for k in range(2): e("v_pk_mul_f32 %s, %s, %s" % (vr(src + 2 * k, 2), vr(src + 2 * k, 2), vr(r0 + 2 * k, 2)))
        kvw = lambda src, part: body.append(("ds", "ds_write_b64 v%d, %s offset:%d" % (KW + 4, vr(src, 2), 2048 + 512 * part)))
        for h in range(2):
            scale_l(ar_(2 + h, 1), 1); pack(Kp(1, h), ar_(2 + h, 1)); kvw(Kp(1, h), h); scale_l(ar_(2 + h, 0), 0)
        for h in range(2):
            scale_r(ar_(4 + h, 1), RR + 4); pack(Vp(1, h), ar_(4 + h, 1)); kvw(Vp(1, h), 2 + h); scale_r(ar_(4 + h, 0), RR)
        units = [(1, 0), (1, 1), (0, 0), (0, 1)]
        SC = lambda u: F + 8 * u
        SP = lambda u: F + 8 * u + 4
        smf = lambda d, kb, u, bias: "v_mfma_f32_16x16x16_bf16 %s, %s, %s, %s" % (vr(d, 4), vr(Kp(kb, units[u][1]), 2), vr(Qp(*units[u]), 2), vr(bias, 4))
        M = [ACC + u for u in range(4)]
        def merge(u):
            return ["v_max_f32 v%d, v%d, v%d" % (SC(u) + r, SC(u) + r, SP(u) + r) for r in range(4)] + [
                "v_max3_f32 v%d, v%d, v%d, v%d" % (M[u], SC(u), SC(u) + 1, SC(u) + 2), "v_max_f32 v%d, v%d, v%d" % (M[u], M[u], SC(u) + 3)]
        e(smf(SC(0), 1, 0, BC)); pack(Kp(0, 0), ar_(2, 0))
        e(smf(SC(1), 1, 1, BC)); pack(Kp(0, 1), ar_(3, 0))
        e(smf(SP(0), 0, 0, BP))
        if ps == 0: body.extend(g_fb)
        body.append(("wvm", ("wo", 1)))
        body.append(("dsdrain",)); e("s_barrier")
        nbar = len(body)
        rdkv = lambda dst, part, tag: body.append(("ds", "ds_read_b64 %s, v%d offset:%d" % (vr(dst, 2), KW + 4, 512 * part), tag))
        e(smf(SP(1), 0, 1, BP)); rdkv(Kp(-1, 0), 0, ("kp", 0)); rdkv(Kp(-1, 1), 1, ("kp", 1))
        e(smf(SC(2), 0, 2, BC)); rdkv(Vp(-1, 0), 2, ("vp", 0)); rdkv(Vp(-1, 1), 3, ("vp", 1))
        e(smf(SC(3), 0, 3, BC)); pack(Vp(0, 0), ar_(4, 0)); pack(Vp(0, 1), ar_(5, 0))
        m0, m1 = merge(0), merge(1)
        e("\n".join(m0))
        body.append(("wds", ("kp", 1)))
        e(smf(SP(2), -1, 2, BP0)); e("\n".join(m1[:2]))
        e(smf(SP(3), -1, 3, BP0)); e("\n".join(m1[2:]))
        e("s_add_u32 %s, %s, %d" % (sT0, sOST, LY.OB[ps]))
        e("\n".join(merge(2)[:2]))
        e("v_permlane32_swap_b32 v%d, v%d" % (M[0], M[1]))
        e("\n".join(merge(2)[2:] + merge(3)))
        e("v_max_f32 v%d, v%d, v%d" % (M[0], M[0], M[1]))
        e("v_permlane32_swap_b32 v%d, v%d\nv_max_f32 v%d, v%d, v%d" % (M[2], M[3], M[2], M[2], M[3]))
        e("v_permlane16_swap_b32 v%d, v%d\nv_max_f32 v%d, v%d, v%d\nv_max_f32 v%d, v%d, v%d" % (M[0], M[2], M[1], M[0], M[2], M[2], M[0], M[2]))
        e("v_permlane16_swap_b32 v%d, v%d" % (M[1], M[2]))
        e("v_mul_f32 v%d, v%d, v%d\nv_mul_f32 v%d, v%d, v%d" % (M[0], M[1], CQ + 1, M[1], M[1], CQ + 1))
        e("v_mul_f32 v%d, v%d, v%d\nv_mul_f32 v%d, v%d, v%d" % (M[3], M[2], CQ, M[2], M[2], CQ))
        def shift(u):
            for k in range(2):
                e("v_pk_fma_f32 %s, %s, %s, %s op_sel:[0,%d,%d] op_sel_hi:[1,%d,%d] neg_lo:[0,0,1] neg_hi:[0,0,1]" %
                  (vr(SC(u) + 2 * k, 2), vr(SC(u) + 2 * k, 2), vr(CQ, 2), vr(ACC + 2 * (u // 2), 2), units[u][0], u % 2, units[u][0], u % 2))
        e("v_permlane32_swap_b32 v%d, v%d" % (M[0], M[1])); shift(0)
        e("v_permlane32_swap_b32 v%d, v%d" % (M[2], M[3])); shift(1); shift(2); shift(3)
        PM = lambda u: ACC + 4 + 2 * u
        PS = lambda u: ACC + 12 + 4 * u
        OP = lambda b: ACC + 28 + 4 * b
        pv = lambda u: "v_mfma_f32_16x16x32_bf16 %s, %s, %s, 0" % (vr(SC(u), 4), vr(Vp(units[u][0] - 1, units[u][1]), 4), vr(PS(u), 4))
        for u, (b, h) in enumerate(units):
            for r in range(4):
                e("v_exp_f32 v%d, v%d" % (SC(u) + r, SC(u) + r))
                if r == 1 and u >= 1: e(pv(u - 1))
            if u == 2: body.append(("wds", ("vp", 1)))
            if u >= 2: e("v_rcp_f32 v%d, v%d" % (SP(u - 2), SP(u - 2)))
            pack(PM(u), SC(u))
            for k in range(2):
                e("v_bfi_b32 v%d, v%d, 0, v%d\nv_and_b32 v%d, v%d, v%d" % (PS(u) + k, MC + k, PM(u) + k, PS(u) + 2 + k, MC + k, PM(u) + k))
            e("v_mfma_f32_16x16x16_bf16 %s, %s, %s, 0" % (vr(SP(u), 4), vr(ONES, 2), vr(PM(u), 2)))
        e("v_rcp_f32 v%d, v%d" % (SP(2), SP(2)))
        e(pv(3))
        def fin(u, packed):
            b, h = units[u]
            if packed:
                for k in range(2): e("v_pk_mul_f32 %s, %s, %s op_sel_hi:[1,0]" % (vr(SC(u) + 2 * k, 2), vr(SC(u) + 2 * k, 2), vr(SP(u), 2)))
            else:
                for r in range(4): e("v_mul_f32 v%d, v%d, v%d" % (SC(u) + r, SC(u) + r, SP(u)))
            pack(OP(b) + 2 * h, SC(u))
            if h == 1:
                body.append(("vm", "buffer_store_dwordx4 %s, v%d, %s, %s offen offset:%d%s" % (vr(OP(b), 4), vQ, WS, sT0, b * 256, " sc1" if ps == 0 and not OPT["otouch"] else ""), "o" if b == 0 else None))
        fin(0, False); fin(1, True)
        e("v_rcp_f32 v%d, v%d" % (SP(3), SP(3)))
        fin(2, True); fin(3, True)
        left = self.weave(body[:nbar], left, 0, OPT["a_every"])
        stop = len(body) - OPT["a_quiet"]
        left = self.weave(body[nbar:stop], left + self.wgs("att", ps) + self.wds("att", ps), 4, OPT["a_every"])
        a.run_all(body[stop:])
        print("  attention: %d groups left for the hand-off" % len(left))
        self.stamp()
        self.wo_pre(0, OPT["w_pre"])
        self.signal(6 * ps + 1, "o")
        a.run_all(self.flat(left + self.wgs("h1", ps) + self.wds("h1", ps)))
        self.stamp()

    def wds(self, where, ps):
        if ps: return []
        if self.wd is None:
            ks = [4 * s + cb for s in DN_ORD for cb in range(4)]
            self.wd = self.reg_loads([ar(4 * k, 4) for k in ks], [sWD] * 56, [k * 1024 for k in ks], sTD, vL16, "wd")
        n = OPT.get("wd_" + where, 56)
        out, self.wd = self.wd[:n], self.wd[n:]
        return out

    WREG = [X + 4 * k for k in range(16)] + [ACC + 16 + 4 * k for k in range(12)] + [F + 4 * k for k in range(8)]
    def wo_read(self, k):
        return ("ds", "ds_read_b128 %s, %s" % (vr(self.WREG[k % 36], 4), ldsaddr(WO_SLOT[k // 16] * 16384 + (k % 16) * 1024)), ("w", k))
    def wo_pre(self, k0, k1):
        for k in range(k0, k1): self.a.run(self.wo_read(k))

    def pair_swap(self, dst, src):
        a = self.a
        dpp = "quad_perm:[1,0,3,2] row_mask:0xf bank_mask:0xf"
        a.I("s_mov_b32 vcc_lo, 0x55555555\ns_mov_b32 vcc_hi, 0x55555555")
        for d in range(4): a.I("v_cndmask_b32_dpp v%d, v%d, v%d, vcc %s" % (dst + d, src + 4 + d, src + d, dpp))
        a.I("s_not_b64 vcc, vcc")
        for d in range(4): a.I("v_cndmask_b32_dpp v%d, v%d, v%d, vcc %s" % (dst + 4 + d, src + d, src + 4 + d, dpp))

    def finish(self, A, xo, h, pf, n, halo_pass):
        a = self.a
        for k in range(8): a.I("v_cvt_pk_bf16_f32 v%d, v%d, v%d" % (XRES + k, A + 2 * k, A + 2 * k + 1))
        if xo == 4:
            a.I(self.getc(16, aROW))
            self.pair_swap(F, XRES)
            for e_ in range(2): a.vm("buffer_store_dwordx4 %s, v16, %s, 0 offen offset:%d %s" % (vr(F + 4 * e_, 4), OUT, e_ * 2048, OPT["outf"].strip("-")))
            self.stamp()
            return
        self.publish(xo)
        self.stamp()
        a.run_all(self.flat(pf[:n]))
        self.signal(h, "pub", halo_pass)
        a.run_all(self.flat(pf[n:]))
        self.stamp()

    def wo(self, ps):
        a = self.a
        def setup():
            for k in range(8):
                a.I("v_lshlrev_b32 v%d, 16, v%d\nv_and_b32 v%d, 0xffff0000, v%d" % (ACC + 2 * k, XRES + k, ACC + 2 * k + 1, XRES + k))
        keep = dict(a.ds_tag)
        if OPT["stamps"] and ps == 0:
            a.I("s_memtime s[%d:%d]" % (sST, sST + 1)); a.ds_drain(force=True); a.I("v_writelane_b32 v%d, s%d, 60" % (vSTAMP, sST))
        self.poll(6 * ps + 1, sMC, None, setup)
        a.ds_tag.update((t, n) for t, n in keep.items() if t[0] == "w")
        self.stamp()
        areg = lambda s: vr(X + 64 + 4 * s, 4)
        ld = self.reg_loads([areg(s) for s in range(16)], [sOL] * 16, [LY.OB[ps] + s * 2048 for s in range(16)], sTA, vQ, "act")
        UP = OPT["w_up"]
        rest = [self.wo_read(k) for k in range(OPT["w_pre"], 32)]
        for n_, g in enumerate(ld[:UP]):
            a.run_all(g)
            if n_ >= 3: a.run_all(rest[:3]); rest = rest[3:]
        a.run_all(rest)
        a.I("s_barrier")
        self.wo_pre(32, 36)
        sl = Slots()
        for k in range(64):
            s, cb = divmod(k, 4)
            d = vr(ACC + 4 * cb, 4)
            sl.add("v_mfma_f32_16x16x32_bf16 %s, %s, %s, %s" % (d, vr(self.WREG[k % 36], 4), areg(s), d),
                   [("wds", ("w", k))] + ([("wvm", ("act", s))] if cb == 0 else []))
            if cb == 0 and s + UP < 16: sl.put("m", k, ld[s + UP])
            if k + 36 < 64: sl.put("r", k, [self.wo_read(k + 36)])
        pf = sl.pace(self.wgs("wo", ps) + self.wds("wo", ps), 64 - 4 * UP + 2, 4.4, 64 - OPT["w_quiet"])
        self.lite(sl, "wo", [8 * k for k in range(8)])
        self.report("wo%d" % ps, sl.emit(a))
        self.stamp()
        self.finish(ACC, 2 * ps + 1, 6 * ps + 2, pf + self.wgs("h2", ps) + self.wds("h2", ps), 0, None)

    def dn_plan(self, ps):
        order = [(i, s) for lv in DN_S for i in range(3) for s in lv] + [(3, s) for s in range(14)]
        areg = lambda k: vr(X + 48 + 4 * (k % 16), 4)
        ld = self.reg_loads([areg(k) for k in range(56)], [sHLD[i] for i, s in order], [LY.HB[ps] + s * 2048 for i, s in order], sTA, vQ, "act")
        return order, areg, ld

    def dn(self, ps, issued, wd):
        a = self.a
        order, areg, ld = self.dn_plan(ps)
        XW, XR, R, P, U = 16, 19, 20, (ACC, ACC + 16, ACC + 32), ACC + 48
        io = L_SCR_DN - 65536
        UP = OPT["k_up"]
        widx = {s: n_ for n_, s in enumerate(DN_ORD)}
        wd_e = [g for g in wd if g[-1][2][1] < 24]
        wd_l = [g for g in wd if g[-1][2][1] >= 24]
        a.run_all(self.flat(ld[issued:UP] + wd_e))
        a.ds_drain()
        a.I("s_barrier")
        sl = Slots()
        accr = lambda i, cb: (X, X + 16, X + 32, X + 112)[i] + 4 * cb
        seen, endb = set(), {}
        for k, (i, s) in enumerate(order):
            for cb in range(4):
                d = vr(accr(i, cb), 4)
                pre = [("wvm", ("act", k))] if cb == 0 else []
                tag = ("wd", 4 * widx[s] + cb)
                if i == 0 and (tag in a.vm_tag or any(g[-1][2] == tag for g in wd_l)): pre.append(("wvm", tag))
                endb[i] = sl.add("v_mfma_f32_16x16x32_bf16 %s, %s, %s, %s" % (d, ar(16 * s + 4 * cb, 4), areg(k), d if (i, cb) in seen else "0"), pre)
                seen.add((i, cb))
        chk = {18: self.check_ops(6 * ps + 4, sMB, PA, "hf2"), 30: self.check_ops(6 * ps + 5, sMB, PA, "hf3")}
        if self.pending: sl.put("f", OPT["d_mid%d" % ps], self.pending)
        sl.put("f", OPT["d_sig%d" % ps], self.signal_ops(6 * ps + 5, "h6", PB))
        extra = list(wd_l)
        for k in range(max(UP, issued), 56):
            p = 4 * (k - min(OPT["d_up2"], UP + max(0, k - OPT["d_ramp"]) // 3))
            if k + OPT["d_chk"] in chk: sl.put("m", p, chk[k + OPT["d_chk"]][0])
            if k in chk:
                due = [g for g in extra if g[-1][2][1] < (40 if k == 18 else 56)]
                sl.put("m", p, self.flat(due) + chk[k][1]); extra = extra[len(due):]
            sl.put("m", p, ld[k])
            sl.put("m", p, self.flat(extra[:1])); extra = extra[1:]
        su = [[("i", "v_add_u32 v%d, %s, v%d" % (XW + i, sXW[i], vL16b))] for i in range(3)] + [[("i", "v_add_u32 v%d, %s, v%d" % (XR, sXR, vL16b))]]
        su += [[("i", "s_lshl_b32 %s, %s, 2\ns_add_u32 %s, %s, %s\ns_lshl_b32 %s, %s, 6\ns_add_u32 %s, %s, %d\nv_and_or_b32 v%d, v%d, 63, %s" %
                 (sT0, sR, sT0, sT0, sW, sT0, sT0, sT0, sT0, L_RS, R, vFL, sT0)), ("ds", "ds_read_b32 v%d, v%d" % (R, R))]]
        for k in range(8):
            su += [[("i", "v_lshlrev_b32 v%d, 16, v%d" % (U + 2 * k, XRES + k))], [("i", "v_and_b32 v%d, 0xffff0000, v%d" % (U + 2 * k + 1, XRES + k))]]
        sl.spread(su, 20, 70)
        writes = lambda i: [[("ds", "ds_write_b128 v%d, %s offset:%d" % (XW + i, vr(accr(i, cb), 4), io + cb * 1024))] for cb in range(4)]
        if OPT["d_w64"]:
            writes = lambda i: [[("ds", "ds_write_b64 v%d, %s offset:%d" % (XW + i, vr(accr(i, cb) + 2 * e_, 2), io + cb * 1024 + 8 * e_))] for cb in range(4) for e_ in range(2)]
        reads = lambda i: [[("ds", "ds_read_b128 %s, v%d offset:%d" % (vr(P[i] + 4 * cb, 4), XR, io + i * 4096 + cb * 1024), ("r", i, cb))] for cb in range(4)]
        add = lambda d, s_: [[("i", "v_add_f32 v%d, v%d, v%d" % (d + e_, d + e_, s_ + e_))] for e_ in range(16)]
        for i in range(3): sl.spread(writes(i), endb[i] + 2, endb[i] + 17)
        wb = []
        if ps and OPT["wb"]:
            go, back = a.label("wb"), a.label("wbback")
            self.cold.append("%s:\nbuffer_wbl2 sc1\ns_branch %s" % (go, back))
            wb = [[("i", "s_and_b32 %s, %s, %d\ns_or_b32 %s, %s, %s" % (sT1, sJ, 16 // OPT["wb"] - 1, sT1, sT1, sW)),
                   ("vm", "s_cmp_eq_u32 %s, 0\ns_cbranch_scc1 %s\nbuffer_load_dword a255, off, %s, %s nt\n%s:" % (sT1, go, WS, sFLG, back))]]
        seq = [[("dsdrain",), ("i", "s_barrier")]] + wb + reads(0) + reads(1) + reads(2) + [[("wds", ("r", 1, 3))]] + add(P[0], P[1]) + [[("wds", ("r", 2, 3))]] + add(P[0], P[2])
        seq += [[("i", "v_fma_f32 v%d, v%d, v%d, v%d" % (U + e_, P[0] + e_, R, U + e_))] for e_ in range(16)]
        sl.spread(seq, endb[2] + 20, endb[3] - 2)
        pf = [] if ps else [g for i in range(7) if i not in self.wq_late(1) + self.kept() for g in self.wq_chunk(i)]
        pf = sl.pace(pf, 224 - 4 * OPT["d_up2"] + 2, 4.4)
        self.lite(sl, "dn", [28 * k for k in range(8)])
        self.report("dn%d" % ps, sl.emit(a))
        self.stamp()
        A = accr(3, 0)
        for k in range(8): a.I("v_pk_fma_f32 %s, %s, %s, %s op_sel_hi:[1,0,1]" % (vr(A + 2 * k, 2), vr(A + 2 * k, 2), vr(R, 2), vr(U + 2 * k, 2)))
        self.finish(A, 2 * ps + 2, 6, pf, OPT["dn_pre"], 1)

    def gu(self, ps):
        a = self.a
        xi = 2 * ps + 1
        self.poll(6 * ps + 2, sMA)
        self.stamp()
        S0, TL, NR, XR_ = GS0, 16 - GS0, 8, 10
        SS, NM, HPK, CSA = 16, 24, 28, 21
        A0 = X + 80
        xreg = lambda s, b: X + 8 * (s % XR_) + 4 * b
        acc = lambda bl, m, b: A0 + 16 * bl + 8 * b + 4 * m
        xl = self.reg_loads([vr(xreg(s, b), 4) for s in range(16) for b in range(2)], [sXLD] * 32,
                            [LY.XB[xi] + s * 2048 + b * 256 for s in range(16) for b in range(2)], sTA, vQ, "x")
        UP = OPT["g_up"]
        a.run_all(self.flat(xl[:UP]))
        a.I("s_barrier")
        a.I("s_add_u32 %s, %s, %d" % (sT0, sSLD, LY.SB[xi]))
        g_st = [[("vm", "buffer_load_dwordx4 %s, v%d, %s, %s offen sc1" % (vr(SS, 4), vL16, WS, sT0))],
                [("vm", "buffer_load_dwordx4 %s, v%d, %s, %s offen offset:1024 sc1" % (vr(SS + 4, 4), vL16, WS, sT0), "st")]]
        early = self.wg_early(ps)
        NS = len(self.ring(ps))
        assert 0 in early and len(set(early)) == len(early) and all(c < NS and self.wg_slot(c, ps) not in WO_SLOT for c in early)
        assert all(self.wg_slot(c, ps) != 7 for c in self.digits("wg_att%d" % ps) + self.digits("wg_h1%d" % ps)) and not set(self.kept()) - {2, 3, 4, 5}
        frags = [(s, bl, m) for s in range(S0) for bl in range(7) for m in range(2)]
        for bl in range(7): frags += [(s, bl, m) for s in range(S0, 16) for m in range(2)] + [(16, bl, 0)]
        sl = Slots()
        sl.mpatience, sl.patience = OPT["g_mp%d" % ps], OPT["g_vp"]
        first, last, end, xfirst, xlast = {}, {}, {}, {}, {}
        for k, (s, bl, m) in enumerate(frags):
            w = F + 4 * (k % NR)
            for mm, b in ([(m, 0), (m, 1)] if s < 16 else [(0, 0), (0, 1), (1, 0), (1, 1)]):
                G_ = OPT["g_grp"]
                pre = [] if k in first else [("wds", ("f", min(k // G_ * G_ + G_ - 1, len(frags) - 1)))]
                d = vr(acc(bl, mm, b), 4)
                if s < 16:
                    if (s, b) not in xfirst: pre.append(("wvm", ("x", 2 * s + (b if s == 0 else 1))))
                    n_ = sl.add("v_mfma_f32_16x16x32_bf16 %s, %s, %s, %s" % (d, vr(w, 4), vr(xreg(s, b), 4), "0" if s == 0 else d), pre)
                    xfirst.setdefault((s, b), n_); xlast[(s, b)] = n_
                else:
                    n_ = sl.add("v_mfma_f32_16x16x16_bf16 %s, %s, %s, %s" % (d, vr(w + 2 * mm, 2), vr(NM + 2 * b, 2), d), pre)
                first.setdefault(k, n_); last[k] = n_
            end[bl] = n_
        LA = OPT["g_la"]
        def rd(k):
            off = self.wg_slot(k // 16, ps) * 16384 + (k % 16) * 1024
            d = F + 4 * (k % NR)
            if frags[k][0] < 16:
                return [("ds", "ds_read_b128 %s, %s" % (vr(d, 4), ldsaddr(off)), ("f", k))]
            return [("ds", "ds_read2st64_b32 %s, v%d offset0:%d offset1:%d" % (vr(d + 2 * m, 2), CSA + (off >> 16), (off & 0xffff) // 256 + 2 * m, (off & 0xffff) // 256 + 2 * m + 1),
                     ("f", k) if m else None) for m in range(2)]
        for k in range(LA): a.run_all(rd(k))
        barpos, real = {}, []
        retire = lambda c: min(p for p in real if p > last[16 * c + 15])
        for k in range(LA, len(frags)):
            if k % 16 == 0:
                ch = k // 16
                pair = ps == 1 and OPT["g_bar1"] == 2 and ch >= OPT["g_pair0"]
                if pair and (ch - OPT["g_pair0"]) % 2:
                    barpos[ch] = barpos[ch - 1]
                elif ch not in early or 2 <= ch <= 16 - NS:
                    p = barpos[ch] = last[k - LA] - 1
                    real.append(p)
                    need = ch + 1 if pair and ch < 14 else ch
                    if need not in early: sl.pre[p + 1].append(("wvm", ("wg", need)))
                    sl.after(p, *(([("wvm", ("wg", need))] if need not in early else []) + [("i", "s_barrier")]))
            sl.after(last[k - LA], *rd(k))
        wl = [(retire(ch - NS) + 2 if ch >= NS else 0, g) for ch in range(15) if ch not in early for g in self.wg_chunk(ch, ps)]
        wdue = [barpos[ch] - 8 * (len(self.wg_chunk(ch, ps)) - 1 - n_) for ch in range(15) if ch not in early for n_ in range(len(self.wg_chunk(ch, ps)))]
        wd = self.wds("rest", ps)
        tail0 = xfirst[(S0, 0)]
        xs = []
        for n_ in range(UP, 32):
            s, b = divmod(n_, 2)
            due = min(xfirst[(s, b)], tail0 - (31 - n_) * OPT["g_xsp"])
            xs.append((due, xlast[(s - XR_, b)] + 1 if s >= XR_ else 0, xl[n_]))
        n_ = OPT["g_stat"]
        xs[n_:n_] = [(xs[n_][0], 0, g) for g in g_st]
        P = lambda key: OPT["g_%s%d" % (key, ps)] / 10
        pos, fab, ix, iw, idd, seq = 0.0, 0.0, 0, 0, 0, []
        stop = end[6] - OPT["g_tail"]
        while ix < len(xs) or iw < len(wl) or (idd < len(wd) and pos <= stop):
            xok = ix < len(xs) and xs[ix][1] <= pos
            xu = xok and xs[ix][0] - pos <= P("xlead")
            wok = iw < len(wl) and wl[iw][0] <= pos
            wu = wok and wdue[iw] - pos <= P("wmin")
            free = fab <= pos + P("slack")
            if xu and (not wu or xs[ix][0] <= wdue[iw] - P("wmin") + P("xlead")): pick = "x"
            elif wu: pick = "w"
            elif free and wok and wdue[iw] - pos <= P("wmax"): pick = "w"
            elif free and idd < len(wd) and pos <= stop: pick = "d"
            elif xok and xs[ix][0] - pos <= P("xmax"): pick = "x"
            else:
                pos = int(pos) + 1; continue
            if pick == "x": g = xs[ix][2]; ix += 1
            elif pick == "w": g = wl[iw][1]; iw += 1; fab = max(fab, pos) + P("wcost")
            else: g = wd[idd]; idd += 1; fab = max(fab, pos) + P("dcost")
            behind = (ix < len(xs) and xs[ix][0] - pos < 0.7 * P("xlead")) or (iw < len(wl) and wdue[iw] - pos < 0.7 * P("wmin"))
            seq.append((pos, g)); pos += 2.0 if behind else P("every")
            if g is g_st[1]: stpos = pos
        assert not sl.pace(seq, 0, 0)
        left = wd[idd:]
        st = [[("wvm", "st")]]
        for r_ in (SS, SS + 4):
            for o in (0, 1): st.append([("i", "v_add_f32 v%d, v%d, v%d" % (r_ + o, r_ + o, r_ + 2 + o))])
        for o in (0, 1): st.append([("i", "v_permlane32_swap_b32 v%d, v%d" % (SS + o, SS + 4 + o))])
        for o in (0, 1): st.append([("i", "v_add_f32 v%d, v%d, v%d" % (SS + o, SS + o, SS + 4 + o))])
        for o in (0, 1): st.append([("i", "v_mov_b32 v%d, v%d" % (SS + 2 + o, SS + o))])
        for k in range(3): st.append([("i", "v_add_u32 v%d, %d, v%d" % (CSA + k, k << 16, vFL))])
        for o in (0, 1): st.append([("i", "v_permlane16_swap_b32 v%d, v%d" % (SS + o, SS + 2 + o))])
        for o in (0, 1): st.append([("i", "v_add_f32 v%d, v%d, v%d" % (SS + o, SS + o, SS + 2 + o))])
        st += [[op] for op in self.ln_from_sums(SS, SS + 1, SS + 2)]
        st += [[("i", "v_cvt_pk_bf16_f32 v%d, -v%d, -v%d" % (NM + k, SS, SS))] for k in range(4)]
        st += [[("i", "v_mul_f32 v%d, v%d, v%d" % (SS + 1, SS + 1, SS + 1))],
               [("i", "s_lshr_b32 %s, %s, 3\ns_add_u32 %s, %s, %d" % (sT0, sLW, sT0, sT0, L_RS))],
               [("i", "v_and_or_b32 v%d, v%d, 63, %s" % (SS, vFL, sT0))], [("i", "v_and_b32 v%d, 32, v0" % (SS + 2))],
               [("i", "v_lshl_add_u32 v%d, v%d, 1, v%d" % (SS, SS + 2, SS))]]
        st += [[("i", "v_permlane32_swap_b32 v%d, v%d" % (NM + k, NM + 2 + k))] for k in range(2)] + [[("mark", "nm")]]
        sl.after(tail0 - 2 * LA, ("need", "nm"))
        sl.spread(st, int(stpos) + 40, tail0 - 2 * LA - 10)
        def epi(bl, packed=False):
            g = []
            for b in range(2):
                ga = acc(bl, 0, b)
                g += [[("i", "v_max_f32 v%d, 0, v%d" % (ga + r, ga + r))] for r in range(4)]
                if packed: g += [[("i", "v_pk_mul_f32 %s, %s, %s" % (vr(ga + r, 2), vr(ga + r, 2), vr(ga + 4 + r, 2)))] for r in (0, 2)]
                else: g += [[("i", "v_mul_f32 v%d, v%d, v%d" % (ga + r, ga + r, ga + 4 + r))] for r in range(4)]
                g += [[("i", "v_cvt_pk_bf16_f32 v%d, v%d, v%d" % (HPK + 2 * b + k, ga + 2 * k, ga + 2 * k + 1))] for k in range(2)]
            g.append([("i", "s_add_u32 %s, %s, %s" % ((sTS, sTS, sHSTEP) if bl else (sTS, sHST, LY.HB[ps])))])
            g += [[("i", "v_permlane16_swap_b32 v%d, v%d" % (HPK + k, HPK + 2 + k))] for k in range(2)]
            g.append([("vm", "buffer_store_dwordx4 %s, v%d, %s, %s offen%s" % (vr(HPK, 4), vL16, WS, sTS, {"s": " sc1", "n": " nt", "p": ""}[OPT["h_st%d" % ps][bl]]), "h%d" % bl)])
            return g
        for bl in range(6): sl.spread(epi(bl), end[bl] + 1, end[bl + 1] - OPT["g_epi"])
        l_e, g_e = self.check_ops(6 * ps + 3, sMB, SS + 3, "he")
        sl.put("f", end[3] + OPT["g_sig%d" % ps], self.signal_ops(6 * ps + 3, "h2", SS + 4))
        self.pending = self.signal_ops(6 * ps + 4, "h4", SS + 4)
        if OPT["d_mid%d" % ps] < 0:
            sl.put("f", end[5] + OPT["g_sig%d" % ps], self.pending); self.pending = None
        nh = OPT["g_h%d" % ps]
        assert S0 >= 10 and nh <= 12
        p = end[6] - OPT["g_chk%d" % ps]
        sl.put("h", p - OPT["g_lat%d" % ps], l_e)
        if nh:
            sl.put("h", p, g_e); g_e = []
            assert not sl.pace(self.dn_plan(ps)[2][:nh], p + 1, min(4.4, (end[6] - p - 2) / nh), name="h")
        sl.put("g", tail0, self.flat(self.code_touch("L_dn%d" % ps, SS + 3)))
        sl.put("c", max(tail0, retire(max(c for c in range(14) if self.wg_slot(c, ps) == 6)) + 1), [("ds", "ds_write_b32 v%d, v%d" % (SS, SS + 1))])
        if ps == 0:
            sl.put("c", end[6] - 8, [("i", "s_or_b32 %s, s2, %s" % (sT0, sW)), ("atom", "s_cmp_eq_u32 %s, 0\ns_cselect_b32 %s, %d, 0x%x" % (sT0, sT0, LY.EPOCH, OOB)),
                                     ("i", "v_mov_b32 v%d, %s" % (SS + 2, sNONCE)),
                                     ("vm", "buffer_store_dword v%d, v%d, %s, %s offen" % (SS + 2, vF1, WS, sT0))])
        self.lite(sl, "g", [56 * k for k in range(8)])
        self.report("gu%d" % ps, sl.emit(a))
        a.run_all(self.flat(epi(6, True)))
        self.stamp()
        a.run_all(g_e)
        self.stamp()
        print("  gu: %d loads left for the hand-off" % len(left))
        return nh, left

    def build(self):
        a = self.a
        self.startup()
        for ps in range(2):
            a.I("L_qkv%d:" % ps); self.qkv(ps)
            a.I("L_wo%d:" % ps); self.wo(ps)
            a.I("L_gu%d:" % ps); left = self.gu(ps)
            a.I("L_dn%d:" % ps); self.dn(ps, *left)
        if OPT["stamps"]:
            a.I("s_waitcnt vmcnt(0)\ns_memrealtime s[6:7]\ns_memtime s[80:81]\ns_waitcnt lgkmcnt(0)\nv_writelane_b32 v%d, s6, 63\nv_writelane_b32 v%d, s80, 61" % (vSTAMP, vSTAMP))
            a.I("s_lshl_b32 %s, s2, 10\ns_lshl_b32 %s, %s, 8\ns_add_u32 %s, %s, %s\ns_add_u32 %s, %s, %d" % (sT0, sT1, sW, sT0, sT0, sT1, sT0, sT0, LY.STAMP))
            a.I("buffer_store_dword v%d, v%d, %s, %s offen" % (vSTAMP, vFL, WS, sT0))
        if OPT["diagpad"]:
            a.I("s_mov_b32 s82, %d" % OPT["diagpad"])
            if OPT["diagat"]:
                a.I("s_sub_u32 s83, s%d, s14\ns_lshl_b32 s83, s83, 2" % sST)
                if OPT["diagwg"] >= 0: a.I("s_cmp_eq_u32 s2, %d\ns_cselect_b32 s83, s83, 0" % OPT["diagwg"])
                a.I("s_add_u32 s82, s82, s83")
            a.I("L_pad:\ns_memrealtime s[80:81]\ns_waitcnt lgkmcnt(0)\ns_sub_u32 s80, s80, s14\ns_cmp_lt_u32 s80, s82\ns_cbranch_scc1 L_pad")
        a.I("L_main_done:\ns_endpgm")
        for c in self.cold: a.I(c)
        a.I("L_code_end:")
        return a.lines

def main():
    ml, n2 = hazard_pass(Main().build())
    bad = check_async(ml)
    assert not bad, bad[:3]
    k = NAME + "_kernel"
    out = ["; Generated by gen/gen.py: one persistent kernel (weight re-layout, then four layers with flag hand-offs). " + " ".join(sys.argv[2:]),
           "; @launch grid=(256,1,1) block=(256,1,1) lds=163840",
           '.amdgcn_target "amdgcn-amd-amdhsa--gfx950"', ".text",
           ".globl %s" % k, ".p2align 8", ".type %s,@function" % k]
    out += [l if l.endswith(":") else "    " + l for l in ml]
    out += ['.section .rodata,"a"', ".p2align 6", """.amdhsa_kernel %s
  .amdhsa_next_free_vgpr 512
  .amdhsa_next_free_sgpr 102
  .amdhsa_accum_offset 256
  .amdhsa_group_segment_fixed_size 0
  .amdhsa_kernarg_size 80
  .amdhsa_user_sgpr_count 2
  .amdhsa_user_sgpr_kernarg_segment_ptr 1
  .amdhsa_system_sgpr_workgroup_id_x 1
  .amdhsa_float_denorm_mode_32 3
.end_amdhsa_kernel""" % k]
    if OPT["rt"]: out = [l.replace("s_memtime", "s_memrealtime") for l in out]
    open(sys.argv[1], "w").write("\n".join(out) + "\n")
    print("instructions: %d ; wait states added: %d" % (len(ml), n2))

main()
```

```python
import sys
from dsl import Asm, Slots, hazard_pass, check_async
import layout as LY

NAME = "interleave_layers__sliding_local_dilated__glu_gated_reglu__prompt"
OPT = dict(stamps=0, lite="-", hitw=0,
           q_up=8, q_every=45, q_hf=8, q_chk=6, q_h0=10, a_every=14, k_up=8, g_up=4, g_tail=0, g_la=7, g_xsp=11, g_stat=6,
           g_every0=36, g_xlead0=400, g_wmin0=600, g_wmax0=1000, g_slack0=40, g_wcost0=60, g_dcost0=30,
           g_xmax0=9000, g_xmax1=800, g_every1=46, g_xlead1=400, g_wmin1=560, g_wmax1=700, g_slack1=40, g_wcost1=60, g_dcost1=30,
           wq_late1="-", dn_pre=6, q0_up=6, q0_lead=20, q0_every=40,
           wg_att0="0", wg_h10="-", wg_wo0="1", wg_h20="-",
           wg_att1="01", wg_h11="-", wg_wo1="2", wg_h21="-",
           keep="2345", q_wbar=12, w_pre=20, w_up=8, w_quiet=12, d_sig0=16, d_sig1=16, d_up2=11, d_ramp=8, d_mid0=-1, d_mid1=-1, d_chk=8, g_epi=6, g_sig0=27, g_sig1=16, g_chk0=20, g_chk1=26, g_lat0=18, g_lat1=18, g_h0=4, g_h1=6,
           touch=0, h_st0="sssssss", h_st1="sspppp p".replace(" ", ""), x0f="sc1", wb=1, otouch=1, diagpad=0, diagat=0, diagwg=100, b_pos=1, q0_split=0, q0_n1=6, q0_hf=6, order="aoc", rt=0, lead=1, follow="guxcd", fa_ld=0, fa_ck=0, q0_x=4, rot=0, xdir=1, xd0=2, xd1=8, xd_lag=14, xd_pre=0, xd_per=7, t_set="ox", t_pos=16, fb_at="att", fb_k=7, fb_s=36, inb=0, inb_at=0, inb_ch=1, inb_gap=6, inb_wait=0, xd_gap=6, xd_h1=0, xd_h2=6, xd_h0=8, xd_st=8, xd_wbar=10, q_mp0=999, q_mp1=2, q_vp=10, g_mp0=2, g_mp1=999, g_vp=10, d_w64=0, q_st=0, g_grp=3, q_grp=3, g_bar1=1, g_pair0=7, outf="nt", c_early=0, b_spread=0, b_first=0, b_gap=3, pollf="nt", actf="sc1", wf="sc1", cpf=1, predrain=0, q0_b=0, q0_fbch=3, q0_fbs=12, q0_w=8, q0_tail=45, a_quiet=30, wd_q=0, wd_att=0, wd_h1=0, wd_wo=0, wd_h2=0)
for arg in sys.argv[2:]:
    k, v = arg.split("=")
    OPT[k] = v if isinstance(OPT[k], str) else int(v)

def vr(b, n): return "v[%d:%d]" % (b, b + n - 1)
def ar(b, n): return "a[%d:%d]" % (b, b + n - 1)
def magic(d): return (1 << 32) // d + 1
OOB = 0x40000000
GS0 = LY.GS0

WS, XIN, OUT = "s[8:11]", "s[12:15]", "s[16:19]"
sW, sJ, sR, sC, sG, sN, sNONCE, sSLOW = ("s%d" % i for i in range(20, 28))
sGB, sXLD, sXST, sOST, sXR, sHST, sSLD, sWQ, sWG, sWO, sWD, sLW = ("s%d" % i for i in range(28, 40))
sMA, sMB = "s[40:41]", "s[42:43]"
sFLG, sFLW, sHALO, sHFL, sTAB, sSST, sONE, sHDST, sHDFL, sP = ("s%d" % i for i in range(44, 54))
sMH = "s[54:55]"
sTA, sTW, sTD, sTS, sT0, sT1, sT2, sSPIN = ("s%d" % i for i in range(56, 64))
sHLD = ["s%d" % i for i in range(68, 72)]
sXW = ["s%d" % i for i in range(72, 75)]
sFBO, sB0, sB1, sB2, sB3 = "s75", "s76", "s77", "s78", "s79"
SRC_A, SRC_G, SRC_U, SRC_D = 80, 84, 88, 92
sLW2, sLW4, sWQ4, sWG4 = "s96", "s97", "s98", "s99"
sST = 100
sHALO2 = sP
sNH, sCPO, sPC, sSLOW2 = "s12", "s13", "s[4:5]", "s[0:1]"
sOL, sHSTEP, sMC = "s64", "s65", "s[66:67]"
vL, vL16, vL16b, vL16c, vQ, vF1, vFL, vSTAMP = 0, 1, 2, 3, 4, 5, 6, 7
XRES = 8
PA, PB = 22, 23
X, ACC, F = 32, 160, 224
aROW, aST, aSQ, aSH, aSG, aHX, aHWR, aHWS, aHST, aHSS, aFB, aLINE, aTO, aTH = range(224, 238)
aBC, aBP, aBP0, aMC = 240, 244, 248, 252
L_HALO, L_RS, L_KV, L_TAB, L_FMT = 102400, 110592, 114688, 124928, 131072
L_SCR_DN = 114688
WO_SLOT = (8, 9, 0, 1)
DN_S = ((2, 3, 4, 9, 10, 11), (1, 5, 8, 12), (0, 6, 7, 13))
DN_ORD = sum(DN_S, ())
NEG = "0xf149f2ca"

def ldsaddr(off):
    return "v%d offset:%d" % ((vL16, vL16b, vL16c)[off >> 16], off & 0xffff)

def isvm(g): return any(op[0] == "vm" for op in g)

class Main:
    def __init__(self):
        self.a = Asm()
        self.nstamp = 0
        self.cold = []
        self.nlite = 0
        self.wd = None
        self.ncall = 0

    def stamp(self, key=None):
        self.ncall += 1
        if OPT["diagpad"] and OPT["diagat"] == self.ncall:
            self.a.I("s_memrealtime s[%d:%d]" % (sST, sST + 1))
            self.a.ds_drain(force=True)
        if OPT["stamps"] != 1 or (key is not None and OPT["lite"] != key):
            return
        a = self.a
        a.I("s_memtime s[%d:%d]" % (sST, sST + 1))
        a.ds_drain(force=True)
        for k in range(self.nlite):
            a.I("v_writelane_b32 v%d, s%d, %d" % (vSTAMP, 80 + 2 * k, self.nstamp))
            self.nstamp += 1
        self.nlite = 0
        a.I("v_writelane_b32 v%d, s%d, %d" % (vSTAMP, sST, self.nstamp))
        self.nstamp += 1

    def lite(self, sl, key, slots):
        if OPT["lite"] != key:
            return
        for i in slots[:8]:
            sl.after(i, ("i", "s_memtime s[%d:%d]" % (80 + 2 * self.nlite, 81 + 2 * self.nlite)))
            self.nlite += 1

    def report(self, name, r):
        print("  %s: cycles over budget %d, ops left after the loop %d" % ((name,) + r))

    def getc(self, v, acc): return "v_accvgpr_read_b32 v%d, a%d" % (v, acc)
    def flat(self, groups): return [op for g in groups for op in g]
    def digits(self, key): return tuple(int(c, 16) for c in str(OPT[key]) if c != "-")
    def wgs(self, where, ps): return [g for i in self.digits("wg_%s%d" % (where, ps)) for g in self.wg_chunk(i, ps)]
    def wg_early(self, ps): return sum((self.digits("wg_%s%d" % (w, ps)) for w in ("att", "h1", "wo", "h2")), ())
    def wq_late(self, ps): return tuple(range(7)) if ps == 0 else self.digits("wq_late1")

    def srd(self, base, lo, hi, nbytes):
        self.a.I("s_mov_b32 s%d, %s\ns_and_b32 s%d, %s, 0xffff\ns_mov_b32 s%d, %s\ns_mov_b32 s%d, 0x20000" %
                 (base, lo, base + 1, hi, base + 2, nbytes, base + 3))

    def lin(self, dst, base, terms):
        first = True
        for reg, mul in terms:
            self.a.I("s_mul_i32 %s, %s, %d\ns_add_u32 %s, %s, %s" % (sT2, reg, mul, dst, base if first else dst, sT2))
            first = False

    def sdivmod(self, q, r, x, d):
        self.a.I("s_mul_hi_u32 %s, %s, 0x%x\ns_mul_i32 %s, %s, %d\ns_sub_u32 %s, %s, %s" % (q, x, magic(d), sT2, q, d, r, x, sT2))

    def hi_lo(self, dst, src, t):
        return ["v_cvt_pk_bf16_f32 v%d, v%d, v%d" % (dst, src, src), "v_lshlrev_b32 v%d, 16, v%d" % (t, dst),
                "v_sub_f32 v%d, v%d, v%d" % (t, src, t), "v_cvt_pk_bf16_f32 v%d, v%d, v%d" % (dst, src, t)]

    def scc_live(self, body, n):
        for t in body[n:]:
            mn = t.split()[0]
            if mn.startswith(("s_cselect", "s_subb", "s_addc", "s_cbranch_scc")) or t.endswith(":"): return True
            if mn.startswith(("s_cmp", "s_bitcmp", "s_add_", "s_sub_", "s_and_", "s_or_", "s_xor_", "s_lshl", "s_lshr", "s_min", "s_max", "s_bfe")): return False
        return False

    def weave(self, body, groups, first, every):
        k = 0
        for n_, op in enumerate(body):
            if n_ >= first and (n_ - first) % every == 0:
                while k < len(groups):
                    g = groups[k]; k += 1
                    self.a.run_all(g)
                    if isvm(g): break
            self.a.run(op)
        return groups[k:]

    def signal(self, h, wait=None, halo_pass=None):
        a = self.a
        slow, done = a.label("slow"), a.label("sig")
        a.I("s_add_u32 %s, %s, %d\nv_mov_b32 v30, %s" % (sNH, sNONCE, h, sNH))
        if halo_pass is not None:
            h1, b1, h2, b2 = a.label("halo"), a.label("hback"), a.label("halo"), a.label("hback")
            n = a.vm_n - max(a.vm_tag[wait], a.vm_done)
            nx = 0 if halo_pass == 0 and OPT["xdir"] else 2
            a.I("s_cmp_lg_u32 %s, 0x%x\ns_cbranch_scc1 %s" % (sHDST, OOB, h1))
            st = "\n".join("buffer_store_dwordx4 %s, v24, %s, %s offen offset:%d sc1" % (vr(XRES + 4 * e, 4), WS, sTS, e * 512) for e in range(nx))
            self.cold.append("%s:\n%s\n%s\ns_add_u32 %s, %s, %d\n%s\nbuffer_store_dword v26, v25, %s, %s offen sc1\ns_waitcnt vmcnt(%d)\ns_branch %s" %
                             (h1, self.getc(24, aHST), self.getc(25, aHSS), sTS, sHDST, LY.HX[halo_pass], st, WS, sTS, n + 1 + nx, b1))
            self.cold.append("%s:\ns_add_u32 %s, %s, %d\nv_mov_b32 v24, %s\n%s\ns_waitcnt vmcnt(1)\nbuffer_store_dword v24, v25, %s, %s offen sc1\ns_branch %s" %
                             (h2, sTS, sHDFL, halo_pass * 16384, sNONCE, self.getc(25, aLINE), WS, sTS, b2))
            a.vm_wait(wait)
            a.I("%s:\ns_cmp_lg_u32 %s, 0" % (b1, sSLOW))
        else:
            a.I("s_cmp_lg_u32 %s, 0" % sSLOW)
            if wait is None: a.vm_drain()
            else: a.vm_wait(wait)
        a.I("s_cbranch_scc1 %s" % slow)
        a.vm("buffer_store_dword v30, v%d, %s, %s offen" % (vF1, WS, sFLW))
        a.I("%s:" % done)
        self.cold.append("%s:\nbuffer_wbl2 sc1\ns_waitcnt vmcnt(0)\nbuffer_store_dword v30, v%d, %s, %s offen sc1\ns_branch %s" % (slow, vF1, WS, sFLW, done))
        self.sent = h
        if halo_pass is not None:
            a.I("s_cmp_lg_u32 %s, 0x%x\ns_cbranch_scc1 %s\n%s:" % (sHDST, OOB, h2, b2))

    def poll(self, h, mask, also=None, setup=None):
        a = self.a
        a.forget()
        assert self.sent == h
        if setup: setup()
        def loop(name, fl):
            ld = "buffer_load_dword v%d, v%d, %s, %s offen %s" % (PA, vFL, WS, sFLG, fl)
            ts = "v_subrev_u32 v%d, %s, v%d\nv_cmp_lt_u32 vcc, 15, v%d\ns_and_b64 vcc, vcc, %s" % (PA, sNH, PA, PA, mask)
            if also is not None:
                ld += "\nbuffer_load_dword v%d, v%d, %s, 0 offen sc1" % (PB, also, WS)
                ts = "v_cmp_ne_u32 s[60:61], %s, v%d\n%s\ns_or_b64 vcc, vcc, s[60:61]" % (sNONCE, PB, ts)
            return "%s:\n%s\ns_sub_u32 %s, %s, 1\ns_cbranch_scc1 L_main_done\ns_waitcnt vmcnt(0)\n%s\ns_cbranch_scc1 %s" % (name, ld, sSPIN, sSPIN, ts, name)
        far, ok = a.label("far"), a.label("ok")
        a.I("s_mov_b32 %s, 0x40000\ns_cmp_lg_u32 %s, 0\ns_cbranch_scc1 %s" % (sSPIN, sSLOW, far))
        a.I(loop(a.label("poll"), OPT["pollf"]) + "\n%s:" % ok)
        a.vm_done = a.vm_n
        self.cold.append(loop(far, "sc1") + "\nbuffer_inv sc1\ns_waitcnt vmcnt(0)\ns_branch %s" % ok)

    def signal_ops(self, h, wait, reg):
        a = self.a
        slow, done = a.label("slow"), a.label("sig")
        self.cold.append("%s:\nbuffer_wbl2 sc1\ns_waitcnt vmcnt(0)\nbuffer_store_dword v%d, v%d, %s, %s offen sc1\ns_branch %s" % (slow, reg, vF1, WS, sFLW, done))
        return [("i", "s_add_u32 %s, %s, %d" % (sNH, sNONCE, h)), ("i", "v_mov_b32 v%d, %s" % (reg, sNH)), ("wvm", wait),
                ("vm", "s_cmp_lg_u32 %s, 0\ns_cbranch_scc1 %s\nbuffer_store_dword v%d, v%d, %s, %s offen\n%s:" % (sSLOW, slow, reg, vF1, WS, sFLW, done))]

    def check_ops(self, h, mask, reg, tag):
        a = self.a
        spin, back = a.label("cspin"), a.label("cback")
        ld = lambda fl: "buffer_load_dword v%d, v%d, %s, %s offen %s" % (reg, vFL, WS, sFLG, fl)
        t = ["v_subrev_u32 v%d, s3, v%d" % (reg, reg), "v_cmp_lt_u32 vcc, 15, v%d" % reg, "s_and_b64 vcc, vcc, %s" % mask]
        loop = lambda name, fl: "%s:\n%s\ns_sub_u32 %s, %s, 1\ns_cbranch_scc1 L_main_done\ns_waitcnt vmcnt(0)\n%s\ns_cbranch_scc1 %s" % (name, ld(fl), sSPIN, sSPIN, "\n".join(t), name)
        self.cold.append("%s:\ns_mov_b32 %s, 0x40000\ns_cmp_lg_u32 %s, 0\ns_cbranch_scc1 %s_f\n%s\ns_branch %s\n%s\nbuffer_inv sc1\ns_waitcnt vmcnt(0)\ns_branch %s" %
                         (spin, sSPIN, sSLOW, spin, loop(spin + "_n", OPT["pollf"]), back, loop(spin + "_f", "sc1"), back))
        return [("vm", ld(OPT["pollf"]), tag)], [("i", "s_add_u32 s3, %s, %d" % (sNONCE, h)), ("wvm", tag), ("i", t[0]), ("i", t[1]),
                                                ("atom", "%s\ns_or_b64 vcc, vcc, %s\ns_cbranch_scc1 %s\n%s:" % (t[2], sSLOW2, spin, back))]

    def late_check(self, load, reg, mask, tag):
        a = self.a
        spin, back = a.label("lspin"), a.label("lback")
        cmp_, and_ = "v_cmp_ne_u32 vcc, %s, v%d" % (sNONCE, reg), "s_and_b64 vcc, vcc, %s" % mask
        self.cold.append("%s:\ns_mov_b32 %s, 0x40000\n%s_l:\n%s\ns_sub_u32 %s, %s, 1\ns_cbranch_scc1 L_main_done\ns_waitcnt vmcnt(0)\n%s\n%s\ns_cbranch_scc1 %s_l\ns_branch %s"
                         % (spin, sSPIN, spin, load, sSPIN, sSPIN, cmp_, and_, spin, back))
        return [("vm", load, tag)], [("wvm", tag), ("i", cmp_), ("atom", and_ + "\ns_cbranch_scc1 %s\n%s:" % (spin, back))]

    def dma_chunk(self, sbase, goff, loff, n, tag, sc=""):
        sw = {1: sLW, 2: sLW2, 4: sLW4}[n]
        setup = [("set", sTW, "s_add_u32 %s, %s, %d" % (sTW, sbase, goff)), ("set", "m0", "s_add_u32 m0, %s, %d" % (sw, loff))]
        return [setup + [("vm", "buffer_load_dwordx4 v%d, %s, %s offen offset:%d%s lds" % (vL16, WS, sTW, k * 1024, sc), tag if k == n - 1 else None)]
                for k in range(n)]

    def wq_chunk(self, i): return self.dma_chunk(sWQ4 if i < 6 else sWQ, i * 16384, i * 16384, 4 if i < 6 else 1, ("wq", i), " " + OPT["wf"].strip("-"))
    def kept(self): return self.digits("keep")
    def ring(self, ps):
        return [k for k in (2, 3, 4, 5, 6, 7, 8, 9, 0, 1) if ps or k not in self.kept()]
    def wg_slot(self, i, ps): return self.ring(ps)[i % len(self.ring(ps))]
    def wo_chunk(self, i): return self.dma_chunk(sWO, i * 16384, WO_SLOT[i] * 16384, 4, ("wo", i), " " + OPT["wf"].strip("-"))
    def wg_chunk(self, i, ps): return self.dma_chunk(sWG4 if i < 14 else sWG, i * 16384, self.wg_slot(i, ps) * 16384, 4 if i < 14 else 2, ("wg", i), " " + OPT["wf"].strip("-"))

    def reg_loads(self, dsts, bases, offs, stmp, vaddr, tagbase):
        ops, cur = [], None
        for k, (d, sb, off) in enumerate(zip(dsts, bases, offs)):
            if cur is None or cur[0] != sb or not (0 <= off - cur[1] < 4096):
                cur = (sb, off)
            ops.append([("set", stmp, "s_add_u32 %s, %s, %d" % (stmp, sb, cur[1])),
                        ("vm", "buffer_load_dwordx4 %s, v%d, %s, %s offen offset:%d %s" % (d, vaddr, WS, stmp, off - cur[1], OPT["wf" if tagbase[0] == "w" else "actf"].strip("-")), (tagbase, k))])
        return ops

    def touch(self, acc, sbase, off, tmp):
        return [[("i", self.getc(tmp, acc) + "\ns_add_u32 %s, %s, %d" % (sT1, sbase, off)),
                 ("vm", "buffer_load_dword a255, v%d, %s, %s offen sc1" % (tmp, WS, sT1))]]

    def code_touch(self, label, tmp, n=1):
        if not OPT["cpf"]: return []
        return [[("i", "s_add_u32 s15, %s, %s-L_pc+%d" % (sCPO, label, 16384 * k)), ("i", "s_min_u32 s15, s15, L_code_end-L_pc-4"),
                 ("i", "v_mov_b32 v%d, s15" % tmp), ("vm", "global_load_dword a255, v%d, %s" % (tmp, sPC))] for k in range(n)]

    def ln_from_sums(self, s1, s2, t):
        return [("i", x) for x in (
            "v_mul_f32 v%d, 0x3b000000, v%d" % (s1, s1),
            "v_mul_f32 v%d, v%d, v%d" % (t, s1, s1),
            "v_mul_f32 v%d, 0x3b000000, v%d" % (s2, s2),
            "v_sub_f32 v%d, v%d, v%d" % (s2, s2, t),
            "v_max_f32 v%d, 0, v%d" % (s2, s2),
            "v_cvt_pk_bf16_f32 v%d, v%d, v%d" % (s2, s2, s2),
            "v_lshlrev_b32 v%d, 16, v%d" % (s2, s2),
            "v_add_f32 v%d, 0x3727c5ac, v%d" % (s2, s2),
            "v_cvt_pk_bf16_f32 v%d, v%d, v%d" % (s2, s2, s2),
            "v_lshlrev_b32 v%d, 16, v%d" % (s2, s2),
            "v_sqrt_f32 v%d, v%d" % (s2, s2),
            "v_cvt_pk_bf16_f32 v%d, v%d, v%d" % (s2, s2, s2),
            "v_lshlrev_b32 v%d, 16, v%d" % (s2, s2),
            "v_rcp_f32 v%d, v%d" % (s2, s2))]

    def publish(self, xi):
        a = self.a
        S1, S2, S3, S4, AD = 26, 27, 28, 29, 25
        a.I("s_add_u32 %s, %s, %d" % (sTS, sXST, LY.XB[xi]))
        for e in range(0 if xi == 0 and OPT["xdir"] else 2):
            a.vm("buffer_store_dwordx4 %s, v%d, %s, %s offen offset:%d%s" % (vr(XRES + 4 * e, 4), vQ, WS, sTS, e * 2048, " sc1" if xi == 1 and "x" not in OPT["t_set"] else ""))
        for k in range(4):
            for d, p, o in ((S1, XRES + k, sONE), (S2, XRES + k, None), (S3, XRES + 4 + k, sONE), (S4, XRES + 4 + k, None)):
                a.I("v_dot2_f32_bf16 v%d, v%d, %s, %s" % (d, p, o or "v%d" % p, "v%d" % d if k else "0"))
        a.I(self.getc(AD, aST) + "\ns_add_u32 %s, %s, %d" % (sTS, sSST, LY.SB[xi]))
        a.I("v_add_f32 v%d, v%d, v%d\nv_add_f32 v%d, v%d, v%d" % (S1, S1, S3, S2, S2, S4))
        a.I("v_permlane32_swap_b32 v%d, v%d\nv_add_f32 v%d, v%d, v%d\nv_mov_b32 v%d, v%d" % (S1, S2, S1, S1, S2, S2, S1))
        a.I("v_permlane16_swap_b32 v%d, v%d\nv_add_f32 v%d, v%d, v%d" % (S1, S2, S1, S1, S2))
        a.vm("buffer_store_dword v%d, v%d, %s, %s offen" % (S1, AD, WS, sTS), "pub")

    def startup(self):
        a = self.a
        lin = self.lin
        t8, kc, tok, g, hh, t32, u0, u1, rr, cc, q16, vA, vR, vB, vD, TA0, TA1, TD, TG, CSW, XA, XV, FAV, LINE = range(F, F + 24)
        ONES = F + 24
        def put(acc): a.I("v_accvgpr_write_b32 a%d, v%d" % (acc, u1))
        a.I("%s_kernel:" % NAME)
        a.I("s_cmp_ge_u32 s2, 256\ns_cbranch_scc1 L_main_done")
        a.I("s_load_dwordx16 s[64:79], s[0:1], 0\ns_load_dwordx2 s[4:5], s[0:1], 72")
        if OPT["stamps"] or OPT["diagpad"]:
            a.I("s_memrealtime s[98:99]")
        if OPT["stamps"]:
            a.I("s_memtime s[%d:%d]" % (sST, sST + 1))
        a.I("s_getpc_b64 s[56:57]\nL_pc:\ns_lshr_b32 s58, s2, 3\ns_lshl_b32 s58, s58, 11")
        a.I("v_lshrrev_b32 v16, 6, v0\nv_lshrrev_b32 v17, 4, v0\nv_lshlrev_b32 v17, 7, v17\nv_add_u32 v17, s58, v17")
        a.I("v_min_u32 v17, L_code_end-L_pc-4, v17\nv_and_b32 v0, 63, v0\nv_readfirstlane_b32 %s, v16" % sW)
        a.vm("global_load_dword a255, v17, s[56:57]")
        a.I("s_and_b32 %s, s2, 7\ns_bfe_u32 %s, s2, 0x40003\ns_lshr_b32 %s, s2, 7" % (sN, sJ, sP))
        a.I("s_lshr_b32 %s, %s, 3\ns_and_b32 %s, %s, 7" % (sR, sJ, sC, sJ))
        a.I("v_and_b32 v%d, 7, v0\nv_lshrrev_b32 v%d, 3, v0\nv_and_b32 v%d, 15, v0\nv_lshrrev_b32 v%d, 4, v0" % (t8, kc, tok, g))
        cuA, kkA, stA, cuG, kkG, sSG, sSD, kkD = "s28", "s29", "s30", "s32", "s33", "s6", "s7", "s36"
        sU, sV = "s34", "s35"
        if OPT["rot"]:
            a.I("s_add_u32 %s, %s, %s\ns_and_b32 %s, %s, 7\ns_andn2_b32 %s, s2, 7\ns_or_b32 %s, %s, %s" % (sV, sN, sJ, sV, sV, sU, sU, sU, sV))
        else:
            sU, sV = "s2", sN
        self.sdivmod(kkA, cuA, sU, 24)
        a.I("s_sub_u32 %s, s2, 192\ns_lshr_b32 %s, %s, 3" % (sT0, sT0, sT0))
        a.I("s_cmp_lt_u32 s2, 192\ns_cselect_b32 %s, %s, %s\ns_cselect_b32 %s, %s, %s\ns_cselect_b32 %s, 3, 1\ns_lshl_b32 %s, %s, 10" %
            (cuA, cuA, sV, kkA, kkA, sT0, stA, stA, stA))
        a.I("v_lshlrev_b32 v%d, 4, v%d\nv_mad_u32_u24 v%d, v%d, %s, v%d" % (u0, t8, vA, kc, stA, u0))
        a.I("s_lshl_b32 %s, %s, 2\ns_add_u32 %s, %s, %s\ns_lshl_b32 %s, %s, 4\ns_mul_i32 %s, %s, %s" % (sT0, kkA, sT0, sT0, sW, sT0, sT0, sT0, sT0, stA))
        a.I("s_lshl_b32 %s, %s, 7\ns_add_u32 %s, %s, %s\ns_lshl_b32 %s, %s, 3\ns_add_u32 %s, %s, %s\ns_sub_u32 %s, %s, 1024" %
            (sT1, cuA, sT0, sT0, sT1, sT1, stA, sT1, sT1, sT0, sT1, sT1))
        a.I("s_lshl_b32 %s, %s, 11\ns_add_u32 m0, %s, %d" % (sLW2, sW, sLW2, L_FMT))
        a.I("s_lshl_b32 s31, %s, 1\ns_add_u32 s31, s31, %s\ns_lshl_b32 s31, s31, 2\ns_add_u32 s31, s31, %s\ns_lshl_b32 s31, s31, 5" % (sN, sR, sW))
        a.I("s_add_u32 s31, s31, %s\ns_lshl_b32 s31, s31, 3\ns_add_u32 s31, s31, %s\ns_lshl_b32 s31, s31, 7" % (sP, sC))
        a.I("v_and_b32 v%d, 14, v0\nv_lshlrev_b32 v%d, 11, v%d\nv_lshl_add_u32 v%d, v%d, 4, v%d\nv_and_b32 v%d, 1, v0\nv_lshlrev_b32 v%d, 6, v%d\nv_add3_u32 v%d, s31, v%d, v%d" %
            (vR, vR, vR, vR, g, vR, u1, u1, u1, vR, vR, u1))
        a.I("s_waitcnt lgkmcnt(0)")
        a.I("s_load_dword %s, s[4:5], %d" % (sNONCE, LY.EPOCH))
        a.I("s_cmp_lt_u32 s2, 192\ns_cselect_b32 s%d, s66, s68\ns_cselect_b32 s%d, s67, s69\ns_and_b32 s%d, s%d, 0xffff" % (SRC_A, SRC_A + 1, SRC_A + 1, SRC_A + 1))
        a.I("s_lshl_b32 s%d, %s, 9\ns_mov_b32 s%d, 0x20000" % (SRC_A + 2, stA, SRC_A + 3))
        sa = "s[%d:%d]" % (SRC_A, SRC_A + 3)
        a.vm("buffer_load_dwordx4 v%d, %s, %s offen lds" % (vA, sa, sT0))
        a.vm("buffer_load_dwordx4 v%d, %s, %s offen offset:1024 lds" % (vA, sa, sT1), "fa")
        self.srd(12, "s64", "s65", 2048 * 1024)
        a.vm("buffer_load_dwordx4 %s, v%d, %s, 0 offen" % (vr(ACC + 56, 4), vR, XIN))
        a.vm("buffer_load_dwordx4 %s, v%d, %s, 0 offen offset:2048" % (vr(ACC + 60, 4), vR, XIN), "x")
        if OPT["stamps"]:
            a.I("v_mov_b32 v%d, 0\nv_writelane_b32 v%d, s98, 62\nv_writelane_b32 v%d, s%d, 0" % (vSTAMP, vSTAMP, vSTAMP, sST))
            self.nstamp = 1
        if OPT["diagpad"]: a.I("s_mov_b32 s14, s98")
        self.stamp("p")
        self.srd(8, "s4", "s5", LY.WS_USED)
        a.I("s_lshl_b32 %s, %s, 1\ns_add_u32 %s, %s, %s" % (sG, sN, sG, sG, sP))
        lin(sFLG, str(LY.FL), [(sG, 256)])
        lin(sFLW, sFLG, [(sJ, 16), (sW, 4)])
        lin(sTS, str(LY.ACT), [(sG, LY.ACT_STRIDE), (sR, 4096), (sW, 1024), (sC, 128)])
        a.I("s_and_b32 %s, %s, 1" % (sT0, sC))
        lin(sSST, sTS, [(sT0, -120)])
        a.I("s_add_u32 %s, %s, %d\nv_mov_b32 v%d, %s\nv_mov_b32 v%d, %s\nv_cmp_gt_u32 vcc, 32, v0\nv_cndmask_b32 v%d, v%d, v%d, vcc" %
            (sTS, sTS, LY.SB[0], u1, sTS, XA, sFLW, XA, u1, XA))
        a.vm("buffer_load_dword a255, v%d, %s, 0 offen sc1" % (XA, WS))
        self.sdivmod(kkG, cuG, sU, 28)
        a.I("v_mul_u32_u24 v%d, 3584, v%d\nv_add_u32 v%d, v%d, v%d\nv_lshl_add_u32 v%d, v%d, 10, v%d" % (vB, kc, vB, vB, u0, vD, kc, u0))
        a.I("s_lshr_b32 %s, s2, 3" % kkD)
        lin(sSG, "0", [(kkG, 64 * 3584), (sW, 16 * 3584), (cuG, 128)])
        lin(sSD, "0", [(kkD, 65536), (sW, 16384), (sV, 128)])
        xd, swaps = [], []
        if OPT["xdir"]:
            vX, sXD, sHD, sXL = 31 - 10, "s98", "s14", "s99"
            self.srd(SRC_A, "s64", "s65", 2048 * 1024)
            a.I("v_xor_b32 v%d, v%d, v%d\nv_lshlrev_b32 v%d, 4, v%d\nv_lshl_add_u32 v%d, v%d, 11, v%d" % (vX, t8, kc, vX, vX, vX, kc, vX))
            lin(sHD, "0", [(sN, 262144), (sP, 1024)])
            lin(sXD, sHD, [(sW, 65536)])
            lin(sHD, sHD, [(sW, 256)])
            a.I("s_sub_u32 %s, %s, 16384\ns_cmp_eq_u32 %s, 0\ns_cselect_b32 %s, 0x%x, %s\ns_lshl_b32 %s, %s, 15" % (sHD, sHD, sN, sHD, OOB, sHD, sXL, sW))
            a.I("v_xor_b32 v16, v%d, v%d\nv_lshlrev_b32 v16, 4, v16\nv_lshl_add_u32 v%d, v%d, 7, v16\nv_add_u32 v%d, %d, v%d" % (t8, g, u1, t8, u1, L_HALO, u1)); put(aSH)
            a.I("v_lshl_add_u32 v16, v%d, 7, v16\nv_add_u32 v16, %s, v16\nv_xor_b32 v17, 64, v16" % (tok, sXL))
            for m in range(8):
                for k in range(4):
                    xd.append([("i", "s_add_u32 m0, %s, %d\ns_add_u32 s15, %s, %d" % (sXL, m * 4096, sXD, k * 16384 + m * 128 - k * 1024)),
                               ("vm", "buffer_load_dwordx4 v%d, %s, s15 offen offset:%d lds" % (vX, sa, k * 1024), ("xd", m, k))])
                swaps.append(("wvm", ("xd", m, 3)))
                swaps += [("ds", "ds_read_b128 %s, v%d offset:%d" % (vr(X + 8 * (2 * m + h_) + 4 * b_, 4), 16 + h_, m * 4096 + b_ * 2048)) for b_ in range(2) for h_ in range(2)]
            swaps.append(("dsdrain",))
            self.halo0 = [[("set", "m0", "s_add_u32 m0, %s, %d" % (sLW2, L_HALO + 1024 * k)), ("i", "s_add_u32 s15, %s, %d" % (sHD, 128 * k)),
                           ("vm", "buffer_load_dwordx4 v%d, %s, s15 offen lds" % (vX, sa), "halo" if k else None)] for k in range(2)]
            a.run_all(self.flat(xd[:OPT["xd0"]])); xd = xd[OPT["xd0"]:]
        self.srd(SRC_G, "s72", "s73", 512 * 3584)
        self.srd(SRC_U, "s74", "s75", 512 * 3584)
        self.srd(SRC_D, "s76", "s77", 1792 * 1024)
        def b_loads():
            for srdn, so, va, stride, lo in ((SRC_G, sSG, vB, 3584, 8192), (SRC_U, sSG, vB, 3584, 16384), (SRC_D, sSD, vD, 1024, 24576)):
                a.I("s_add_u32 m0, %s, %d\ns_add_u32 s15, %s, %d" % (sLW2, L_FMT + lo, so, 8 * stride - 1024))
                a.vm("buffer_load_dwordx4 v%d, s[%d:%d], %s offen lds" % (va, srdn, srdn + 3, so))
                a.vm("buffer_load_dwordx4 v%d, s[%d:%d], %s offen offset:1024 lds" % (va, srdn, srdn + 3, "s15"), ("fb", lo))
        if OPT["b_pos"] == 0: b_loads()
        self.srd(16, "s78", "s79", 2048 * 1024)
        a.I("v_accvgpr_write_b32 a%d, v%d\nv_lshlrev_b32 v%d, 4, v0" % (aROW, vR, vL16))
        dA, dA2, dCS = "s3", "s0", "s1"
        a.I("s_and_b32 %s, %s, 7\ns_lshl_b32 %s, %s, 1\ns_lshr_b32 %s, %s, 1\ns_add_u32 %s, %s, %s" % (sT0, cuA, sT0, sT0, sT1, sW, sT0, sT0, sT1))
        a.I("s_mul_i32 %s, %s, %d\ns_add_u32 %s, %s, %d" % (sT0, sT0, LY.WQ_STRIDE, sT0, sT0, LY.WQ))
        a.I("s_lshr_b32 %s, %s, 3\ns_lshl_b32 %s, %s, 1\ns_and_b32 %s, %s, 1\ns_add_u32 %s, %s, %s" % (sT1, cuA, sT1, sT1, sT2, sW, sT1, sT1, sT2))
        lin(dA, sT0, [(kkA, 12288), (sT1, 1024)])
        lin(dCS, sT0, [(kkA, 64), (sT1, 512)])
        a.I("s_add_u32 %s, %s, 98304" % (dCS, dCS))
        lin(sT0, str(LY.WO), [(cuA, LY.WO_STRIDE), (kkA, 8192), (sW, 1024)])
        a.I("s_cmp_lt_u32 s2, 192\ns_cselect_b32 %s, %s, %s\ns_cselect_b32 %s, %s, 0x%x\ns_cselect_b32 %s, 6, 4\ns_cselect_b64 vcc, -1, 0" %
            (dA, dA, sT0, dCS, dCS, OOB, dA2))
        a.I("s_lshl_b32 %s, %s, 10\ns_add_u32 %s, %s, %s" % (dA2, dA2, dA2, dA2, dA))
        a.I("v_bfe_u32 v%d, v0, 2, 2\nv_and_b32 v%d, 3, v0\nv_bfe_u32 v%d, v0, 4, 1\nv_lshrrev_b32 v%d, 5, v0\nv_and_b32 v%d, 31, v0" % (rr, cc, q16, hh, t32))
        a.I("v_lshl_add_u32 v%d, v%d, 3, v%d\nv_lshlrev_b32 v%d, 7, v%d\nv_lshl_add_u32 v%d, v%d, 2, v%d\nv_lshlrev_b32 v%d, 7, v%d" % (u0, g, rr, u0, u0, u1, g, rr, u1, u1))
        a.I("s_lshr_b32 %s, %s, 1\ns_lshl_b32 %s, %s, 6\ns_and_b32 %s, %s, 1\ns_lshl_b32 %s, %s, 3\ns_add_u32 %s, %s, %s\ns_add_u32 %s, %s, %d" %
            (sT0, sW, sT0, sT0, sT1, sW, sT1, sT1, sT0, sT0, sT1, sT0, sT0, L_FMT))
        a.I("v_lshl_add_u32 v%d, v%d, 4, %s\nv_add_u32 v%d, v%d, v%d\nv_add_u32 v%d, v%d, v%d" % (TA1, cc, sT0, TD, TA1, u0, u1, u1, TA1))
        a.I("s_lshl_b32 %s, %s, 5\ns_add_u32 %s, %s, %d\nv_lshl_add_u32 v%d, v%d, 3, %s\nv_add_u32 v%d, v%d, v%d" % (sT0, sW, sT0, sT0, L_FMT, TA0, cc, sT0, u0, u0, TA0))
        a.I("v_mov_b32 v%d, v%d" % (TG, u0))
        a.I("v_cndmask_b32 v%d, v%d, v%d, vcc\nv_add_u32 v%d, 512, v%d\nv_add_u32 v%d, 2048, v%d\nv_cndmask_b32 v%d, v%d, v%d, vcc" % (TA0, u1, u0, u0, u0, u1, u1, TA1, u1, u0))
        for k in range(4): a.I("v_mov_b32 v%d, 0x3f803f80" % (ONES + k))
        a.I("v_lshlrev_b32 v%d, 2, v%d\nv_lshl_add_u32 v%d, v%d, 28, v%d" % (CSW, tok, CSW, g, CSW))
        a.I("s_mov_b32 %s, 0\ns_mov_b32 %s, 0x3f803f80" % (sSLOW, sONE))
        a.I("v_cmp_ne_u32 vcc, 0, v0\nv_mov_b32 v%d, 0x%x\nv_lshlrev_b32 v%d, 2, v0\nv_cndmask_b32 v%d, 0, v%d, vcc" % (vF1, OOB, vFL, vF1, vF1))
        a.I("s_lshl_b32 %s, %s, %d\ns_add_u32 %s, %s, 0x%x" % (sGB, sG, LY.ACT_SHIFT, sGB, sGB, LY.ACT))
        lin(sXLD, sGB, [(sW, 32768)])
        a.I("s_lshr_b32 %s, %s, 1\ns_and_b32 %s, %s, 1" % (sT0, sW, sT1, sW))
        lin(sXST, sGB, [(sR, 65536), (sC, 4096), (sT0, 32768), (sT1, 256)])
        lin(sOST, sXLD, [(sJ, 2048)])
        lin(sT0, str(LY.XF), [(sG, 2048)])
        a.I("v_lshrrev_b32 v%d, 2, v0\nv_lshl_add_u32 v%d, v%d, 7, %s\nv_lshl_add_u32 v%d, v%d, 30, v%d\nv_accvgpr_write_b32 a%d, v%d" % (XA, XA, XA, sT0, LINE, hh, vFL, aLINE, LINE))
        a.I("v_lshlrev_b32 v%d, 4, v%d\nv_lshl_add_u32 v%d, v%d, 9, v%d" % (u0, tok, vQ, g, u0))
        a.I("v_lshlrev_b32 v%d, 4, v%d\nv_lshl_add_u32 v%d, v%d, 2, v%d\nv_lshl_add_u32 v%d, v%d, 30, v%d" % (u1, tok, u1, hh, u1, u1, q16, u1)); put(aST)
        def die_id():
            lin(sT0, str(LY.XF), [(sG, 2048), (sJ, 128)])
            a.I("s_cmp_eq_u32 %s, 0\ns_cselect_b32 %s, %s, 0x%x\ns_getreg_b32 %s, hwreg(HW_REG_XCC_ID, 0, 4)" % (sW, sT0, sT0, OOB, sT1))
            a.I("s_waitcnt lgkmcnt(0)\ns_add_u32 %s, %s, 0x9e3779b1\ns_xor_b32 %s, %s, %s\nv_mov_b32 v%d, %s" % (sNONCE, sNONCE, sT1, sT1, sNONCE, XV, sT1))
            a.vm("buffer_store_dword v%d, v%d, %s, %s offen sc1" % (XV, LINE, WS, sT0))
            self.stamp("p")
        if OPT["c_early"] < 2: die_id()
        def constants():
            lin(sB3, str(LY.WD), [(sV, LY.WD_STRIDE), (kkD, 8192), (sW, 1024)])
            a.I("s_lshl_b32 %s, %s, 2\ns_add_u32 %s, %s, %s" % (cuG, cuG, cuG, cuG, sW))
            self.sdivmod(sT0, sT1, cuG, 7)
            lin(sB2, str(LY.WG), [(sT0, LY.WG_STRIDE)])
            a.I("s_sub_u32 %s, 6, %s\ns_bitcmp1_b32 %s, 0\ns_cselect_b32 %s, %s, %s" % (sT2, sT1, sT0, sT1, sT1, sT2))
            S0, TL = GS0, 16 - GS0
            lin(sB0, sB2, [(kkG, 28 * 1024), (sT1, 2048)])
            lin(sB2, sB2, [(sT1, (2 * TL + 1) * 1024)])
            lin(sT0, sB2, [(kkG, 4096)])
            a.I("s_add_u32 %s, %s, %d\ns_cmp_lt_u32 %s, %d\ns_cselect_b32 %s, %s, %s\ns_cselect_b32 %s, 14, 2\ns_lshl_b32 %s, %s, 10" %
                (sT0, sT0, 12 * S0 * 1024, kkG, S0 // 2, sB0, sB0, sT0, sB1, sB1, sB1))
            lin(sB2, sB2, [(kkG, 64)])
            a.I("s_add_u32 %s, %s, %d" % (sB2, sB2, (14 * S0 + 2 * TL) * 1024))
            a.I("s_cmp_lt_u32 s2, 224")
            for r_ in (sB0, sB2, sB3): a.I("s_cselect_b32 %s, %s, 0x%x" % (r_, r_, OOB))
            lin(sHFL, str(LY.HFL), [(sG, 1024)])
            lin(sHDFL, sHFL, [(sC, 128)])
            lin(sFBO, str(LY.FA), [(sU, 128)])
            a.I("s_add_u32 %s, %s, 2048\ns_add_u32 %s, %s, 0x%x" % (sHDFL, sHDFL, sHDST, sGB, 2 * LY.ACT_STRIDE))
            a.I("s_cmp_eq_u32 %s, 0\ns_cselect_b32 %s, %s, 0x%x" % (sW, sFBO, sFBO, OOB))
            a.I("s_lshl_b32 %s, %s, 2\ns_add_u32 %s, %s, %s\ns_cmp_eq_u32 %s, 7\ns_cselect_b32 %s, 0, %s\ns_cmp_eq_u32 %s, 7" % (sT0, sR, sT0, sT0, sW, sN, sT0, sT0, sT0))
            a.I("s_cselect_b32 %s, %s, 0x%x" % (sHDST, sHDST, OOB))
            a.I("v_lshlrev_b32 v%d, 4, v%d\nv_lshl_add_u32 v%d, v%d, 7, v%d\nv_add_u32 v%d, %d, v%d" % (u0, t8, u0, g, u0, u1, L_HALO, u0)); put(aHX)
            a.I("s_lshl_b32 %s, %s, 10\nv_add3_u32 v%d, v%d, v%d, %s" % (sT0, sC, u1, u0, vA, sT0)); put(aHST)
            if "c" not in OPT["order"]: constants2()
        def constants2():
            if OPT["c_early"] == 2: die_id()
            a.I("s_lshr_b32 %s, %s, 1\ns_lshl_b32 %s, %s, 5\ns_and_b32 %s, %s, 1\ns_lshl_b32 %s, %s, 1\ns_add_u32 %s, %s, %s" % (sT0, sW, sT0, sT0, sT1, sW, sT1, sT1, sT0, sT0, sT1))
            a.I("s_mov_b32 s40, 0x33333333\ns_mov_b32 s41, 0\ns_lshl_b64 s[40:41], s[40:41], %s" % sT0)
            a.I("s_lshl_b32 %s, %s, 1\ns_lshl_b32 %s, %s, 4\ns_add_u32 %s, %s, %s" % (sT0, sR, sT2, sW, sT0, sT0, sT2))
            a.I("s_mov_b32 s42, 0x3333\ns_mov_b32 s43, 0\ns_lshl_b64 s[42:43], s[42:43], %s" % sT0)
            a.I("v_bfe_u32 v%d, v0, 2, 3\nv_min_u32 v%d, 6, v%d\ns_mul_i32 %s, %s, 7\nv_add_u32 v%d, %s, v%d" % (t8, t32, t8, sT0, sW, t32, sT0, t32))
            a.I("s_lshl_b32 %s, %s, 1\nv_and_or_b32 v%d, v%d, 1, %s" % (sT0, sW, t8, t8, sT0))
            a.I("s_lshr_b32 %s, %s, 1\nv_mul_u32_u24 v%d, 24, v%d\nv_lshl_add_u32 v%d, v%d, 3, v%d\nv_add_u32 v%d, %s, v%d" % (sT0, sJ, u0, t8, u0, kc, u0, u0, sT0, u0))
            a.I("s_add_u32 %s, %s, 192\nv_lshl_add_u32 v%d, v%d, 3, %s\nv_cmp_gt_u32 vcc, 24, v0\nv_cndmask_b32 v%d, v%d, v%d, vcc" % (sT0, sC, u1, t8, sT0, u0, u1, u0))
            a.I("v_lshlrev_b32 v%d, 7, v%d\nv_add_u32 v%d, %d, v%d" % (u0, u0, FAV, LY.FA, u0))
            self.c_min = len(a.lines)
            a.I("s_lshr_b32 %s, s2, 3\ns_lshl_b32 %s, %s, 2\ns_add_u32 %s, %s, %s\ns_lshl_b32 %s, %s, 7" % (sCPO, sCPO, sCPO, sCPO, sCPO, sW, sCPO, sCPO))
            lin(sHST, sGB, [(sW, 114688), (sJ, 7168)])
            lin(sSLD, sGB, [(sW, 2048)])
            lin(sOL, sXST, [(sC, -4096)])
            a.I("s_bitcmp1_b32 %s, 0\ns_cselect_b32 %s, 1, -1\ns_cselect_b32 %s, 0, 6144\ns_lshl_b32 %s, %s, 10\ns_add_u32 %s, %s, %s" % (sJ, sHSTEP, sT0, sHSTEP, sHSTEP, sHST, sHST, sT0))
            a.I("s_lshr_b32 %s, %s, 1\ns_lshl_b32 %s, %s, 1\ns_add_u32 %s, %s, %s\ns_lshl_b32 s66, 0x11111111, %s\ns_mov_b32 s67, s66" % (sT0, sW, sT1, sR, sT0, sT0, sT1, sT0))
            lin(sHLD[3], sGB, [(sR, 229376), (sW, 28672)])
            for i in range(4):
                a.I("s_add_u32 %s, %s, %d\ns_and_b32 %s, %s, 3\ns_lshr_b32 %s, %s, 1\ns_and_b32 %s, %s, 1" % (sTA, sW, i + 1, sTA, sTA, sT0, sTA, sT1, sTA))
                lin(sHLD[i], sHLD[3], [(sT0, 114688), (sT1, 256)])
                if i < 3: lin(sXW[i], str(i * 4096), [(sTA, 12288)])
            lin(sXR, "0", [(sW, 12288)])
            lin(sWQ, str(LY.WQ), [(sJ, LY.WQ_STRIDE * (1 - OPT["hitw"]))])
            lin(sWG, str(LY.WG), [(sJ, LY.WG_STRIDE * (1 - OPT["hitw"]))])
            lin(sWO, str(LY.WO), [(sC, LY.WO_STRIDE * (1 - OPT["hitw"])), (sW, 4096)])
            lin(sWD, str(LY.WD), [(sC, LY.WD_STRIDE * (1 - OPT["hitw"])), (sW, 57344)])
            lin(sTAB, str(L_TAB), [(sW, 512)])
            a.I("s_lshl_b32 %s, %s, 10\ns_lshl_b32 %s, %s, 12" % (sLW, sW, sLW4, sW))
            if not OPT["xdir"]: a.I("s_add_u32 %s, %s, %s\ns_add_u32 %s, %s, %s" % (sWQ4, sWQ, sLW4, sWG4, sWG, sLW4))
            a.I("s_cmp_eq_u32 %s, 0\ns_cselect_b32 %s, 0x%x, %s\ns_cselect_b64 s[54:55], 0, -1" % (sN, sHALO, OOB, sGB))
            a.I("s_add_u32 %s, %s, %s\ns_add_u32 %s, %s, %s\ns_add_u32 %s, %s, %s" % (sHALO2, sHALO, sLW2, sWQ, sWQ, sLW, sWG, sWG, sLW2))
            a.I("v_add_u32 v%d, 0x10000, v%d\nv_add_u32 v%d, 0x20000, v%d" % (vL16b, vL16, vL16c, vL16))
            a.I("v_lshrrev_b32 v%d, %d, v0\nv_lshlrev_b32 v%d, 7, v%d" % (u1, 1 if OPT["xdir"] else 2, u1, u1))
            if OPT["xdir"]:
                a.I("s_add_u32 %s, %s, %d\nv_and_b32 v%d, 128, v%d\nv_add_u32 v%d, %s, v%d\nv_bfe_u32 v%d, v0, 2, 3" % (sT0, sOST, LY.OB[0], u0, u1, u1, sT0, u1, CSW))
                a.I("s_add_u32 %s, %s, %d\nv_lshl_add_u32 v%d, v%d, 9, v%d\nv_cmp_gt_u32 vcc, 32, v0\nv_add_u32 v%d, %s, v%d" %
                    (sT0, sXST, LY.XB[1], u0, CSW, u0, u0, sT0, u0))
                if "x" not in OPT["t_set"]: a.I("v_mov_b32 v%d, 0x%x" % (u0, OOB))
                if "o" not in OPT["t_set"]: a.I("v_mov_b32 v%d, 0x%x" % (u1, OOB))
                a.I("v_cndmask_b32 v%d, v%d, v%d, vcc" % (u1, u0, u1))
            put(aTO)
            a.I("v_lshlrev_b32 v%d, 7, v%d\nv_lshl_add_u32 v%d, v%d, 5, v%d\nv_lshl_add_u32 v%d, v%d, 1, v%d\nv_lshlrev_b32 v%d, 3, v0" % (u0, rr, u0, g, u0, u0, cc, u0, u1))
            a.I("s_cmp_ge_u32 %s, 2\ns_cselect_b64 vcc, -1, 0\ns_cselect_b32 %s, 2, 8\nv_cndmask_b32 v%d, v%d, v%d, vcc" % (sW, sT1, u1, u0, u1))
            a.I("s_lshr_b32 %s, %s, 1\ns_add_u32 %s, %s, %d\nv_add_u32 v%d, %s, v%d" % (sT0, sLW, sT0, sT0, L_KV, u1, sT0, u1)); put(aHWR)
            a.I("v_mov_b32 v%d, %s" % (u1, sT1)); put(aHWS)
            a.I("s_mul_i32 %s, %s, 7\ns_add_u32 %s, %s, 6\ns_lshr_b32 %s, %s, 2\ns_lshr_b32 %s, %s, 2" % (sT0, sJ, sT1, sT0, sT0, sT0, sT1, sT1))
            a.I("v_add_u32 v%d, %s, v%d\nv_min_u32 v%d, %s, v%d\nv_mad_u32_u24 v%d, v%d, 28, v%d" % (u0, sT0, kc, u0, sT1, u0, u0, t8, u0))
            a.I("v_lshl_add_u32 v%d, v%d, 3, %s\nv_cmp_gt_u32 vcc, 32, v0\nv_cndmask_b32 v%d, v%d, v%d, vcc" % (u1, t32, sC, u0, u1, u0))
            a.I("v_lshlrev_b32 v%d, 7, v%d\nv_add_u32 v%d, %d, v%d" % (u0, u0, u1, LY.FB, u0)); put(aFB)
            if OPT["c_early"] == 3: die_id()
            a.I("s_getpc_b64 %s\nL_pc2:\ns_sub_u32 s4, s4, L_pc2-L_pc\ns_subb_u32 s5, s5, 0" % sPC)
            NG, Z, M0_, M1_ = rr, cc, q16, hh
            a.I("s_or_b32 %s, %s, %s\ns_cmp_eq_u32 %s, 0\ns_cselect_b64 s[56:57], -1, 0" % (sT0, sN, sW, sT0))
            a.I("v_mov_b32 v%d, %s\nv_mov_b32 v%d, 0\nv_lshlrev_b32 v%d, 2, v%d\nv_sub_u32 v%d, v%d, v%d" % (NG, NEG, Z, vA, g, vA, tok, vA))
            for r in range(4):
                a.I("v_subrev_u32 v%d, %d, v%d\nv_mov_b32 v%d, %s" % (u0, r, vA, M0_, "0xffff0000" if r & 1 else "0xffff"))
                a.I("v_cmp_gt_u32 vcc, 8, v%d\nv_cmp_gt_i32 s[58:59], -8, v%d\nv_cmp_le_i32 s[60:61], 0, v%d" % (u0, u0, u0))
                a.I("v_cndmask_b32 v%d, v%d, v%d, vcc" % (u1, NG, Z)); put(aBC + r)
                a.I("v_cndmask_b32 v%d, v%d, v%d, s[58:59]" % (u1, NG, Z)); put(aBP + r)
                a.I("v_cndmask_b32 v%d, v%d, v%d, s[56:57]" % (u1, u1, NG)); put(aBP0 + r)
                if r & 1:
                    a.I("v_cndmask_b32 v%d, v%d, v%d, s[60:61]\nv_or_b32 v%d, v%d, v%d" % (u1, Z, M0_, u1, u1, M1_)); put(aMC + r // 2)
                else:
                    a.I("v_cndmask_b32 v%d, v%d, v%d, s[60:61]" % (M1_, Z, M0_))
        a.I("v_bfe_u32 v%d, v0, 3, 1\nv_xor_b32 v%d, 1, v%d\nv_lshlrev_b32 v%d, 29, v%d" % (vA, vA, vA, vA, vA))
        a.I("s_and_b32 %s, %s, 1" % (sT1, sC))
        lin(sT0, str(8192 - 128), [(sC, 64), (sT1, -56)])
        a.I("v_add3_u32 v%d, v%d, v%d, %s" % (u1, u1, vA, sT0)); put(aHSS)
        if OPT["c_early"]: constants()
        self.stamp("p")
        if OPT["b_pos"] == -1: b_loads()
        a.vm_wait("fa")
        a.I("s_barrier")
        for sp in range(2):
            for half in range(2):
                a.ds("ds_read_b64_tr_b16 %s, v%d offset:%d" % (vr(ACC + 4 * sp + 2 * half, 2), (TA0, TA1)[half], sp * 4096), ("t", sp))
        self.stamp("p")
        for sp in range(2):
            a.ds_wait(("t", sp))
            a.vm("buffer_store_dwordx4 %s, v%d, %s, %s offen sc1" % (vr(ACC + 4 * sp, 4), vL16, WS, (dA, dA2)[sp]))
            a.I("v_mfma_f32_16x16x32_bf16 %s, %s, %s, %s" % (vr(ACC + 8, 4), vr(ONES, 4), vr(ACC + 4 * sp, 4), vr(ACC + 8, 4) if sp else "0"))
        a.I("\n".join(self.hi_lo(ACC + 12, ACC + 8, ACC + 13)))
        a.vm("buffer_store_dword v%d, v%d, %s, %s offen sc1" % (ACC + 12, CSW, WS, dCS), "fas")
        if OPT["b_pos"] == -2: b_loads()
        a.vm_wait("x")
        self.pair_swap(XRES, ACC + 56)
        self.publish(0)
        xload = "buffer_load_dword v31, v%d, %s, 0 offen sc1" % (XA, WS)
        a.vm(xload, "xf")
        if OPT["b_pos"] == 1 and not OPT["xdir"]: b_loads()
        self.stamp("p")
        if OPT["xdir"]:
            n0 = len(a.lines)
            constants()
            body = a.lines[n0:]; del a.lines[n0:]
            k, since = 0, 99
            for n_, t in enumerate(body):
                if k < OPT["xd1"] and since >= OPT["xd_gap"] and not self.scc_live(body, n_):
                    a.run_all(xd[k]); k += 1; since = 0
                a.I(t); since += 1
            a.run_all(self.flat(xd[k:OPT["xd1"]])); xd = xd[OPT["xd1"]:]
        elif not OPT["c_early"]: constants()
        def second_unit():
            G, D, CS = (ACC + 16, ACC + 32, ACC + 48) if OPT["xdir"] else (X + 96, X + 112, ACC + 48)
            out = []
            def store(ops):
                if OPT["b_spread"] and "b" not in OPT["order"]: out.append(ops)
                else: a.run_all(ops)
            if "b" in OPT["order"]:
                a.vm_wait(("fb", 24576))
                a.I("s_barrier")
            for n_ in range(4):
                for half in range(2):
                    a.ds("ds_read_b64_tr_b16 %s, v%d offset:%d" % (vr(G + 4 * n_ + 2 * half, 2), TG, 8192 * (1 + n_ % 2) + (32 * (n_ // 2) + 4 * half) * 128), ("tg", n_))
            for sp in range(2):
                for half in range(2):
                    a.ds("ds_read_b64_tr_b16 %s, v%d offset:%d" % (vr(D + 4 * sp + 2 * half, 2), TD, 24576 + (32 * sp + 4 * half) * 128), ("td", sp))
            for n_ in range(4):
                a.ds_wait(("tg", n_))
                store(([("i", "s_add_u32 %s, %s, %s" % (sB0, sB0, sB1))] if n_ == 2 else []) +
                      [("vm", "buffer_store_dwordx4 %s, v%d, %s, %s offen offset:%d sc1" % (vr(G + 4 * n_, 4), vL16, WS, sB0, (n_ % 2) * 1024))])
                c_ = vr(CS + 4 * (n_ % 2), 4)
                a.I("v_mfma_f32_16x16x32_bf16 %s, %s, %s, %s" % (c_, vr(ONES, 4), vr(G + 4 * n_, 4), c_ if n_ >= 2 else "0"))
            for sp in range(2):
                a.ds_wait(("td", sp))
                store(([("i", "s_add_u32 %s, %s, 4096" % (sB3, sB3))] if sp else []) +
                      [("vm", "buffer_store_dwordx4 %s, v%d, %s, %s offen sc1" % (vr(D + 4 * sp, 4), vL16, WS, sB3))])
            a.I("v_cmp_gt_u32 vcc, 16, v0\nv_bfe_u32 v%d, v0, 4, 1\nv_mul_u32_u24 v%d, 448, v%d\nv_add_u32 v%d, v%d, v%d\nv_cndmask_b32 v%d, v%d, v%d, vcc" %
                (D + 9, D + 9, D + 9, D + 9, D + 9, LINE, CS, CS + 4, CS))
            a.I("\n".join(self.hi_lo(D + 8, CS, CS + 1)))
            store([("vm", "buffer_store_dword v%d, v%d, %s, %s offen sc1" % (D + 8, D + 9, WS, sB2), "fbs")])
            self.stamp("p")
            return out
        def first_flags():
            a.I("v_mov_b32 v30, %s" % sNONCE)
            a.vm_wait("fas")
            a.I("s_barrier")
            a.vm("buffer_store_dword v30, v%d, %s, %s offen sc1" % (LINE, WS, sFBO))
            a.I("s_add_u32 %s, %s, %d" % (sFBO, sFBO, LY.FB - LY.FA))
            self.stamp("p")
        def own_flags():
            spin, back = a.label("xspin"), a.label("xback")
            test = "v_xor_b32 v29, %s, v31\nv_cmp_lt_u32 vcc, 15, v29\ns_and_b64 vcc, vcc, exec" % sNONCE
            a.vm_wait("xf")
            a.I("%s\ns_cbranch_scc1 %s\n%s:" % (test, spin, back))
            self.cold.append("%s:\ns_mov_b32 %s, 0x40000\n%s_l:\n%s\ns_sub_u32 %s, %s, 1\ns_cbranch_scc1 L_main_done\ns_waitcnt vmcnt(0)\n%s\ns_cbranch_scc1 %s_l\ns_branch %s"
                             % (spin, sSPIN, spin, xload, sSPIN, sSPIN, test, spin, back))
            a.I("v_cmp_ne_u32 vcc, v%d, v31\ns_cmp_lg_u64 vcc, 0\ns_cselect_b32 %s, 1, 0\ns_mov_b32 s0, %s\ns_mov_b32 s1, 0" % (XV, sSLOW, sSLOW))
            self.signal(0, "pub", 0)
            self.stamp("p")
        for step in OPT["order"]:
            if step == "c" and OPT["xdir"]: continue
            {"b": second_unit, "a": first_flags, "o": own_flags, "c": constants2}[step]()
        if OPT["xdir"]:
            n0 = len(a.lines)
            constants2()
            body = a.lines[n0:]; del a.lines[n0:]
            per = max(OPT["xd_per"], -(-(self.c_min - n0) // len(xd)))
            pos, done = 0, 32 - len(xd)
            for g_ in xd:
                a.run_all(g_); done += 1
                stop = min(len(body), pos + per)
                while stop < len(body) and self.scc_live(body, stop): stop += 1
                a.I("\n".join(body[pos:stop])); pos = stop
                if len(swaps) > 1 and 4 * swaps[0][1][1] + 4 + OPT["xd_lag"] <= done:
                    a.run_all(swaps[:5]); swaps = swaps[5:]
            self.stamp("p")
            l_fa, g_fa = self.late_check("buffer_load_dword v%d, v%d, %s, 0 offen sc1" % (PB, FAV, WS), PB, "exec", "fa2")
            l_x, g_x = self.check_ops(0, sMA, PA, "x2")
            a.run_all(swaps[:5 * OPT["xd_pre"]]); swaps = swaps[5 * OPT["xd_pre"]:]
            a.run_all(l_x + l_fa)
            if not (OPT["inb"] and OPT["inb_at"]): b_loads()
            a.I("\n".join(body[pos:]))
            a.I("s_add_u32 %s, %s, %s\ns_add_u32 %s, %s, %s" % (sWQ4, sWQ, sLW4, sWG4, sWG, sLW4))
            a.I("s_sub_u32 %s, %s, %s\ns_sub_u32 %s, %s, %s" % (sWQ4, sWQ4, sLW, sWG4, sWG4, sLW2))
            if OPT["t_pos"] == -1: a.run_all(self.flat(self.touch(aTO, "0", 0, 18)))
            a.run_all(swaps + g_fa + g_x)
        self.stamp("p")
        if "b" in OPT["order"]:
            a.vm_wait("fbs")
            a.I("s_barrier")
            a.vm("buffer_store_dword v30, v%d, %s, %s offen sc1" % (LINE, WS, sFBO))
        elif OPT["predrain"]:
            a.vm_drain()
        self.stamp("p")
        def second_ops():
            G, D, CS, ON, AG, AD, T0, T1, T2 = 0, 16, 24, 32, 30, 31, 24, 25, 20
            pre = "v_mov_b32 v%d, v%d\nv_mov_b32 v%d, v%d\nv_bfe_u32 v%d, v0, 4, 1\nv_mul_u32_u24 v%d, 448, v%d\nv_add_u32 v%d, v%d, v%d\n" % (AG, TG, AD, TD, T2, T2, T2, T2, T2, LINE)
            pre += "\n".join("v_accvgpr_write_b32 a%d, v%d" % (ON + k, ONES) for k in range(4))
            rd = [("ds", "ds_read_b64_tr_b16 %s, v%d offset:%d" % (ar(G + 4 * n_ + 2 * half, 2), AG, 8192 * (1 + n_ % 2) + (32 * (n_ // 2) + 4 * half) * 128), ("tg", n_, half))
                  for n_ in range(4) for half in range(2)]
            rd += [("ds", "ds_read_b64_tr_b16 %s, v%d offset:%d" % (ar(D + 4 * sp + 2 * half, 2), AD, 24576 + (32 * sp + 4 * half) * 128), ("td", sp, half))
                   for sp in range(2) for half in range(2)]
            st = []
            for n_ in range(4):
                c_ = ar(CS + 4 * (n_ % 2), 4)
                st.append(([("i", "s_add_u32 %s, %s, %s" % (sB0, sB0, sB1))] if n_ == 2 else []) + [("wds", ("tg", n_, 1)),
                          ("vm", "buffer_store_dwordx4 %s, v%d, %s, %s offen offset:%d sc1" % (ar(G + 4 * n_, 4), vL16, WS, sB0, (n_ % 2) * 1024)),
                          ("i", "v_mfma_f32_16x16x32_bf16 %s, %s, %s, %s" % (c_, ar(ON, 4), ar(G + 4 * n_, 4), c_ if n_ >= 2 else "0"))])
            for sp in range(2):
                st.append(([("i", "s_add_u32 %s, %s, 4096" % (sB3, sB3))] if sp else []) + [("wds", ("td", sp, 1)),
                          ("vm", "buffer_store_dwordx4 %s, v%d, %s, %s offen sc1" % (ar(D + 4 * sp, 4), vL16, WS, sB3))])
            st.append([("i", "s_mov_b64 s[6:7], 0xffff\n%s\n%s\nv_cndmask_b32 v%d, v%d, v%d, s[6:7]" % (self.getc(T0, CS), self.getc(T1, CS + 4), T0, T1, T0)),
                       ("i", "\n".join(self.hi_lo(PA, T0, T1))),
                       ("vm", "buffer_store_dword v%d, v%d, %s, %s offen sc1" % (PA, T2, WS, sB2), "fbs"), ("mark", "bdone")])
            return pre, rd, st
        self.second_unit, self.b_loads, self.second_ops = second_unit, b_loads, second_ops
        self.fav = FAV

    def startup2(self):
        a = self.a
        lin = self.lin
        t8, kc, tok, g, hh, t32, u0, u1, rr, cc, q16, vA, vR, vD, TA0, TA1, TD, XA, XV, FAV, LINE = range(F, F + 21)
        ONES, CSW, L_T = F + 24, F + 21, 114688
        def put(acc): self.a.I("v_accvgpr_write_b32 a%d, v%d" % (acc, u1))
        a.I("%s_kernel:" % NAME)
        a.I("s_cmp_ge_u32 s2, 256\ns_cbranch_scc1 L_main_done")
        a.I("s_load_dwordx16 s[64:79], s[0:1], 0\ns_load_dwordx2 s[4:5], s[0:1], 72")
        if OPT["stamps"] or OPT["diagpad"]:
            a.I("s_memrealtime s[98:99]")
        if OPT["stamps"]:
            a.I("s_memtime s[%d:%d]" % (sST, sST + 1))
        a.I("s_getpc_b64 s[56:57]\nL_pc:\ns_lshr_b32 s58, s2, 3\ns_lshl_b32 s58, s58, 11")
        a.I("v_lshrrev_b32 v16, 6, v0\nv_lshrrev_b32 v17, 4, v0\nv_lshlrev_b32 v17, 7, v17\nv_add_u32 v17, s58, v17")
        a.I("v_min_u32 v17, L_code_end-L_pc-4, v17\nv_and_b32 v0, 63, v0\nv_readfirstlane_b32 %s, v16" % sW)
        a.I("global_load_dword a255, v17, s[56:57]")
        a.I("s_and_b32 %s, s2, 7\ns_bfe_u32 %s, s2, 0x40003\ns_lshr_b32 %s, s2, 7" % (sN, sJ, sP))
        a.I("s_lshr_b32 %s, %s, 3\ns_and_b32 %s, %s, 7" % (sR, sJ, sC, sJ))
        a.I("v_and_b32 v%d, 7, v0\nv_lshrrev_b32 v%d, 3, v0\nv_and_b32 v%d, 15, v0\nv_lshrrev_b32 v%d, 4, v0\nv_lshlrev_b32 v%d, 4, v%d" % (t8, kc, tok, g, u0, t8))
        a.I("s_lshl_b32 s31, %s, 1\ns_add_u32 s31, s31, %s\ns_lshl_b32 s31, s31, 2\ns_add_u32 s31, s31, %s\ns_lshl_b32 s31, s31, 5" % (sN, sR, sW))
        a.I("s_add_u32 s31, s31, %s\ns_lshl_b32 s31, s31, 3\ns_add_u32 s31, s31, %s\ns_lshl_b32 s31, s31, 7" % (sP, sC))
        a.I("v_and_b32 v%d, 14, v0\nv_lshlrev_b32 v%d, 11, v%d\nv_lshl_add_u32 v%d, v%d, 4, v%d\nv_and_b32 v%d, 1, v0\nv_lshlrev_b32 v%d, 6, v%d\nv_add3_u32 v%d, s31, v%d, v%d" %
            (vR, vR, vR, vR, g, vR, u1, u1, u1, vR, vR, u1))
        a.I("s_lshl_b32 %s, %s, 12\ns_cmp_lg_u32 %s, 0\ns_cbranch_scc1 L_follow" % (sLW4, sW, sP))
        cu, kp, st, so, so2 = "s32", "s33", "s34", "s35", "s36"
        D4 = [sB0, sB1, sB2, sB3]
        dCS, dD = "s3", "s0"

        def tile_dma(srdn, va, s_off, stride, lds, tag):
            a = self.a
            a.I("s_add_u32 m0, %s, %d" % (sLW4, L_T + lds))
            for k in range(4):
                if k: a.I("s_add_u32 %s, %s, %s" % (sT0, s_off if k == 1 else sT0, stride))
                a.vm("buffer_load_dwordx4 v%d, s[%d:%d], %s offen offset:%d lds" % (va, srdn, srdn + 3, sT0 if k else s_off, k * 1024), tag if k == 3 else None)
        def x_loads():
            a = self.a
            self.srd(12, "s64", "s65", 2048 * 1024)
            a.vm("buffer_load_dwordx4 %s, v%d, %s, 0 offen" % (vr(X, 4), vR, XIN))
            a.vm("buffer_load_dwordx4 %s, v%d, %s, 0 offen offset:2048" % (vr(X + 4, 4), vR, XIN), "x")
            if OPT["stamps"]:
                a.I("v_mov_b32 v%d, 0\nv_writelane_b32 v%d, s98, 62\nv_writelane_b32 v%d, s%d, 0" % (vSTAMP, vSTAMP, vSTAMP, sST))
                self.nstamp = 1
            if OPT["diagpad"]: a.I("s_mov_b32 s14, s98")
        def common():
            a = self.a
            self.srd(8, "s4", "s5", LY.WS_USED)
            a.I("s_lshl_b32 %s, %s, 1\ns_add_u32 %s, %s, %s" % (sG, sN, sG, sG, sP))
            a.I("s_lshl_b32 %s, %s, %d\ns_add_u32 %s, %s, 0x%x" % (sGB, sG, LY.ACT_SHIFT, sGB, sGB, LY.ACT))
            lin(sFLG, str(LY.FL), [(sG, 256)])
            lin(sFLW, sFLG, [(sJ, 16), (sW, 4)])
            lin(sTS, sGB, [(sR, 4096), (sW, 1024), (sC, 128)])
            a.I("s_and_b32 %s, %s, 1" % (sT0, sC))
            lin(sSST, sTS, [(sT0, -120)])
            a.I("s_add_u32 %s, %s, %d\nv_cmp_gt_u32 vcc, 32, v0\nv_mov_b32 v%d, %s\nv_mov_b32 v%d, %s\nv_cndmask_b32 v%d, v%d, v%d, vcc" %
                (sTS, sTS, LY.SB[0], u1, sTS, XA, sFLW, XA, u1, XA))
            a.vm("buffer_load_dword a255, v%d, %s, 0 offen sc1" % (XA, WS))
            self.srd(16, "s78", "s79", 2048 * 1024)
            a.I("v_accvgpr_write_b32 a%d, v%d\nv_lshlrev_b32 v%d, 4, v0\nv_lshlrev_b32 v%d, 2, v0" % (aROW, vR, vL16, vFL))
            a.I("v_bfe_u32 v%d, v0, 2, 2\nv_and_b32 v%d, 3, v0\nv_bfe_u32 v%d, v0, 4, 1\nv_lshrrev_b32 v%d, 5, v0" % (rr, cc, q16, hh))
            lin(sT0, str(LY.XF), [(sG, 2048)])
            a.I("v_lshrrev_b32 v%d, 2, v0\nv_lshl_add_u32 v%d, v%d, 7, %s\nv_lshl_add_u32 v%d, v%d, 30, v%d" % (XA, XA, XA, sT0, LINE, hh, vFL))
            lin(sT0, sT0, [(sJ, 128)])
            a.I("s_cmp_eq_u32 %s, 0\ns_cselect_b32 %s, %s, 0x%x\ns_getreg_b32 %s, hwreg(HW_REG_XCC_ID, 0, 4)" % (sW, sT0, sT0, OOB, sT1))
            a.I("s_waitcnt lgkmcnt(0)\ns_add_u32 %s, %s, 0x9e3779b1\ns_xor_b32 %s, %s, %s\nv_mov_b32 v%d, %s" % (sNONCE, sNONCE, sT1, sT1, sNONCE, XV, sT1))
            a.vm("buffer_store_dword v%d, v%d, %s, %s offen sc1" % (XV, LINE, WS, sT0))
            a.I("v_lshl_add_u32 v%d, v%d, 3, v%d\nv_lshlrev_b32 v%d, 7, v%d\nv_add_u32 v%d, %d, v%d" % (u0, g, rr, u0, u0, u0, L_T, u0))
            a.I("s_lshr_b32 %s, %s, 1\ns_and_b32 %s, %s, 1" % (sT0, sW, sT1, sW))
            lin(sXST, sGB, [(sR, 65536), (sC, 4096), (sT0, 32768), (sT1, 256)])
            a.I("s_lshl_b32 %s, %s, 6\ns_lshl_b32 %s, %s, 3\ns_add_u32 %s, %s, %s\nv_lshl_add_u32 v%d, v%d, 4, %s\nv_add_u32 v%d, v%d, v%d" %
                (sT0, sT0, sT1, sT1, sT0, sT0, sT1, TD, cc, sT0, TD, TD, u0))
            a.I("s_lshl_b32 %s, %s, 5\nv_lshl_add_u32 v%d, v%d, 3, %s\nv_add_u32 v%d, v%d, v%d" % (sT0, sW, TA0, cc, sT0, TA0, TA0, u0))
            for k in range(4): a.I("v_mov_b32 v%d, 0x3f803f80" % (ONES + k))
            a.I("s_mov_b32 %s, 0x3f803f80\nv_lshlrev_b32 v%d, 4, v%d\nv_lshl_add_u32 v%d, v%d, 9, v%d" % (sONE, u0, tok, vQ, g, u0))
            a.I("v_lshlrev_b32 v%d, 4, v%d\nv_lshl_add_u32 v%d, v%d, 2, v%d\nv_lshl_add_u32 v%d, v%d, 30, v%d" % (u1, tok, u1, hh, u1, u1, q16, u1)); put(aST)
        def tile_out(base, a0, a1, o1, lds, dst, cs):
            a = self.a
            for sp in range(4):
                a.ds("ds_read_b64_tr_b16 %s, v%d offset:%d" % (vr(base + 4 * sp, 2), a0, lds + sp * 4096))
                a.ds("ds_read_b64_tr_b16 %s, v%d offset:%d" % (vr(base + 4 * sp + 2, 2), a1, lds + sp * 4096 + o1), ("t", lds, sp))
            for sp in range(4):
                a.ds_wait(("t", lds, sp))
                a.vm("buffer_store_dwordx4 %s, v%d, %s, %s offen offset:%d sc1" % ((vr(base + 4 * sp, 4), vL16, WS) + dst(sp)))
                if cs: a.I("v_mfma_f32_16x16x32_bf16 %s, %s, %s, %s" % (vr(cs, 4), vr(ONES, 4), vr(base + 4 * sp, 4), vr(cs, 4) if sp else "0"))
        def cs_out(src, addr):
            a = self.a
            a.I("v_cmp_eq_u32 vcc, 0, v%d" % q16)
            a.I("\n".join(self.hi_lo(ACC + 60, src, ACC + 61)))
            a.I("v_cndmask_b32 v%d, 0, v%d, vcc" % (ACC + 60, ACC + 60))
            a.vm("buffer_store_dword v%d, v%d, %s, %s offen sc1" % (ACC + 60, addr, WS, dCS))
        xload = "buffer_load_dword v31, v%d, %s, 0 offen sc1" % (XA, WS)
        def pub():
            self.a.vm_wait("x")
            self.pair_swap(XRES, X)
            self.publish(0)
            self.a.vm(xload)

        self.sdivmod(kp, cu, "s2", 24)
        a.I("s_sub_u32 %s, %s, 12\ns_cmp_lt_u32 s2, 96\ns_cselect_b32 %s, %s, %s\ns_cselect_b32 %s, %s, %s\ns_cselect_b32 %s, 3, 1\ns_lshl_b32 %s, %s, 10" %
            (sT0, sJ, cu, cu, sN, kp, kp, sT0, st, st, st))
        a.I("v_mad_u32_u24 v%d, v%d, %s, v%d" % (vA, kc, st, u0))
        a.I("s_lshl_b32 %s, %s, 2\ns_add_u32 %s, %s, %s\ns_lshl_b32 %s, %s, 5\ns_mul_i32 %s, %s, %s\ns_lshl_b32 %s, %s, 7\ns_add_u32 %s, %s, %s" %
            (so, kp, so, so, sW, so, so, so, so, st, sT1, cu, so, so, sT1))
        a.I("s_lshl_b32 %s, %s, 3\ns_sub_u32 %s, %s, 1024" % (so2, st, so2, so2))
        a.I("s_lshl_b32 s%d, %s, 9\ns_mov_b32 s%d, 0x20000\ns_cmp_lt_u32 s2, 96\ns_waitcnt lgkmcnt(0)" % (SRC_A + 2, st, SRC_A + 3))
        a.I("s_load_dword %s, s[4:5], %d" % (sNONCE, LY.EPOCH))
        a.I("s_cselect_b32 s%d, s66, s68\ns_cselect_b32 s%d, s67, s69\ns_and_b32 s%d, s%d, 0xffff" % (SRC_A, SRC_A + 1, SRC_A + 1, SRC_A + 1))
        tile_dma(SRC_A, vA, so, so2, 0, "fa")
        x_loads()
        common()
        a.I("s_and_b32 %s, %s, 7\ns_lshl_b32 %s, %s, 1\ns_lshr_b32 %s, %s, 1\ns_add_u32 %s, %s, %s" % (sT0, cu, sT0, sT0, sT1, sW, sT0, sT0, sT1))
        a.I("s_mul_i32 %s, %s, %d\ns_add_u32 %s, %s, %d" % (sT0, sT0, LY.WQ_STRIDE, sT0, sT0, LY.WQ))
        a.I("s_lshr_b32 %s, %s, 3\ns_lshl_b32 %s, %s, 1\ns_and_b32 %s, %s, 1\ns_add_u32 %s, %s, %s" % (sT1, cu, sT1, sT1, sT2, sW, sT1, sT1, sT2))
        lin(D4[0], sT0, [(kp, 24576), (sT1, 1024)])
        lin(dCS, sT0, [(kp, 128), (sT1, 512)])
        a.I("s_add_u32 %s, %s, 98304" % (dCS, dCS))
        lin(sT0, str(LY.WO), [(cu, LY.WO_STRIDE), (kp, 16384), (sW, 1024)])
        a.I("s_cmp_lt_u32 s2, 96\ns_cselect_b32 %s, %s, %s\ns_cselect_b32 %s, %s, 0x%x\ns_cselect_b32 %s, 6, 4\ns_cselect_b64 vcc, -1, 0" %
            (D4[0], D4[0], sT0, dCS, dCS, OOB, sT1))
        a.I("s_lshl_b32 %s, %s, 10" % (sT1, sT1))
        for k in range(1, 4): a.I("s_add_u32 %s, %s, %s" % (D4[k], D4[k - 1], sT1))
        a.I("v_lshlrev_b32 v%d, 9, v%d\nv_sub_u32 v%d, v%d, v%d\nv_add_u32 v%d, 512, v%d\nv_add_u32 v%d, 2048, v%d" % (u0, g, TD, TD, u0, TA1, TA0, u0, TD))
        a.I("v_cndmask_b32 v%d, v%d, v%d, vcc\nv_cndmask_b32 v%d, v%d, v%d, vcc" % (TA0, TD, TA0, TA1, u0, TA1))
        self.stamp("p")
        a.vm_wait("fa")
        a.I("s_barrier")
        self.stamp("p")
        tile_out(ACC, TA0, TA1, 0, 0, lambda sp: (D4[sp], 0), ACC + 48)
        cs_out(ACC + 48, LINE)
        pub()
        self.stamp("p")
        a.I("L_join:")
        nst = self.nstamp
        self.a = b = Asm()
        b.I("L_follow:\ns_sub_u32 %s, s2, 128" % st)
        self.sdivmod(kp, cu, st, 28)
        b.I("v_mul_u32_u24 v%d, 3584, v%d\nv_add_u32 v%d, v%d, v%d\nv_lshl_add_u32 v%d, v%d, 10, v%d" % (vA, kc, vA, vA, u0, vD, kc, u0))
        lin(so, "0", [(kp, 128 * 3584), (sW, 32 * 3584), (cu, 128)])
        lin(so2, "0", [(sJ, 131072), (sW, 32768), (sN, 128)])
        b.I("s_waitcnt lgkmcnt(0)\ns_load_dword %s, s[4:5], %d" % (sNONCE, LY.EPOCH))
        steps = dict(g=lambda: tile_dma(SRC_G, vA, so, str(8 * 3584 - 1024), 0, "fg"), u=lambda: tile_dma(SRC_U, vA, so, str(8 * 3584 - 1024), 16384, "fu"),
                     d=lambda: tile_dma(SRC_D, vD, so2, str(7 * 1024), 32768, "fd"), x=x_loads, c=common, p=pub, w=b.vm_drain)
        self.srd(SRC_G, "s72", "s73", 512 * 3584)
        self.srd(SRC_U, "s74", "s75", 512 * 3584)
        self.srd(SRC_D, "s76", "s77", 1792 * 1024)
        for ch in OPT["follow"]: steps[ch]()
        lin(dD, str(LY.WD), [(sN, LY.WD_STRIDE), (sJ, 16384), (sW, 1024)])
        b.I("s_lshl_b32 %s, %s, 2\ns_add_u32 %s, %s, %s" % (cu, cu, cu, cu, sW))
        self.sdivmod(sT0, sT1, cu, 7)
        lin(dCS, str(LY.WG), [(sT0, LY.WG_STRIDE)])
        b.I("s_sub_u32 %s, 6, %s\ns_bitcmp1_b32 %s, 0\ns_cselect_b32 %s, %s, %s" % (sT2, sT1, sT0, sT1, sT1, sT2))
        S0, TL = GS0, 16 - GS0
        lin(so, dCS, [(kp, 56 * 1024), (sT1, 2048)])
        lin(dCS, dCS, [(sT1, (2 * TL + 1) * 1024)])
        lin(so2, dCS, [(kp, 8192)])
        for k in range(4):
            b.I("s_add_u32 %s, %s, %d\ns_add_u32 %s, %s, %d\ns_cmp_lt_u32 %s, %d\ns_cselect_b32 %s, %s, %s" %
                (sT0, so, 14 * 1024 * k, sT1, so2, (12 * S0 + 2 * k) * 1024, kp, (S0 - k + 3) // 4, D4[k], sT0, sT1))
        lin(dCS, dCS, [(kp, 128)])
        b.I("s_add_u32 %s, %s, %d\ns_cmp_lt_u32 s2, 240" % (dCS, dCS, (14 * S0 + 2 * TL) * 1024))
        for r_ in D4 + [dCS, dD]: b.I("s_cselect_b32 %s, %s, 0x%x" % (r_, r_, OOB))
        b.I("v_mul_u32_u24 v%d, 384, v%d\nv_add_u32 v%d, v%d, v%d" % (vA, hh, vA, vA, vFL))
        self.stamp("p")
        b.vm_wait("fu")
        b.I("s_barrier")
        self.stamp("p")
        tile_out(ACC, TA0, TA0, 512, 0, lambda sp: (D4[sp], 0), ACC + 48)
        tile_out(ACC + 16, TA0, TA0, 512, 16384, lambda sp: (D4[sp], 1024), ACC + 52)
        for k in range(4): b.I("s_add_u32 %s, %s, %d" % (D4[k], dD, 4096 * k))
        b.I("v_cmp_gt_u32 vcc, 32, v0\nv_cndmask_b32 v%d, v%d, v%d, vcc" % (ACC + 48, ACC + 52, ACC + 48))
        cs_out(ACC + 48, vA)
        b.vm_wait("fd")
        b.I("s_barrier")
        tile_out(ACC + 32, TD, TD, 512, 32768, lambda sp: (D4[sp], 0), None)
        if "p" not in OPT["follow"]: pub()
        self.stamp("p")
        b.I("s_branch L_join")
        assert nst == self.nstamp
        self.cold.append("\n".join(b.lines))
        self.a = a

        a.vm_tag["join"] = a.vm_n
        sa = "s[%d:%d]" % (SRC_A, SRC_A + 3)
        xd, swaps = [], []
        vX, sXD, sHD, sXL = 21, "s6", "s14", sLW4
        self.srd(SRC_A, "s64", "s65", 2048 * 1024)
        a.I("v_xor_b32 v%d, v%d, v%d\nv_lshlrev_b32 v%d, 4, v%d\nv_lshl_add_u32 v%d, v%d, 11, v%d" % (vX, t8, kc, vX, vX, vX, kc, vX))
        lin(sHD, "0", [(sN, 262144), (sP, 1024)])
        lin(sXD, sHD, [(sW, 65536)])
        lin(sHD, sHD, [(sW, 256)])
        a.I("s_sub_u32 %s, %s, 16384\ns_cmp_eq_u32 %s, 0\ns_cselect_b32 %s, 0x%x, %s" % (sHD, sHD, sN, sHD, OOB, sHD))
        a.I("v_xor_b32 v16, v%d, v%d\nv_lshlrev_b32 v16, 4, v16\nv_lshl_add_u32 v%d, v%d, 7, v16\nv_add_u32 v%d, %d, v%d" % (t8, g, u1, t8, u1, L_HALO, u1)); put(aSH)
        a.I("v_lshl_add_u32 v16, v%d, 7, v16\nv_add_u32 v16, %s, v16\nv_xor_b32 v17, 64, v16\nv_add_u32 v18, 0x10000, v16\nv_add_u32 v19, 0x10000, v17" % (tok, sXL))
        for m in range(8):
            for k in range(4):
                xd.append([("i", "s_add_u32 m0, %s, %d\ns_add_u32 s15, %s, %d" % (sXL, m * 16384, sXD, k * 16384 + m * 128 - k * 1024)),
                           ("vm", "buffer_load_dwordx4 v%d, %s, s15 offen offset:%d lds" % (vX, sa, k * 1024), ("xd", m, k))])
            swaps.append(("wvm", ("xd", m, 3)))
            swaps += [("ds", "ds_read_b128 %s, v%d offset:%d" % (vr(X + 8 * (2 * m + h_) + 4 * b_, 4), 16 + h_ + 2 * (m // 4), (m % 4) * 16384 + b_ * 2048)) for b_ in range(2) for h_ in range(2)]
        swaps.append(("dsdrain",))
        self.halo0 = [[("set", "m0", "s_add_u32 m0, %s, %d" % (sLW2, L_HALO + 1024 * k)), ("i", "s_add_u32 s15, %s, %d" % (sHD, 128 * k)),
                       ("vm", "buffer_load_dwordx4 v%d, %s, s15 offen lds" % (vX, sa), "halo" if k else None)] for k in range(2)]
        def flags():
            self.stamp("p")
            a.I("v_mov_b32 v30, %s" % sNONCE)
            a.vm_wait("join")
            a.I("s_barrier")
            a.vm("buffer_store_dword v30, v%d, %s, %s offen sc1" % (LINE, WS, sFBO))
            spin, back = a.label("xspin"), a.label("xback")
            test = "v_xor_b32 v29, %s, v31\nv_cmp_lt_u32 vcc, 15, v29\ns_and_b64 vcc, vcc, exec" % sNONCE
            a.I("%s\ns_cbranch_scc1 %s\n%s:" % (test, spin, back))
            self.cold.append("%s:\ns_mov_b32 %s, 0x40000\n%s_l:\n%s\ns_sub_u32 %s, %s, 1\ns_cbranch_scc1 L_main_done\ns_waitcnt vmcnt(0)\n%s\ns_cbranch_scc1 %s_l\ns_branch %s"
                             % (spin, sSPIN, spin, xload, sSPIN, sSPIN, test, spin, back))
            a.I("v_cmp_ne_u32 vcc, v%d, v31\ns_cmp_lg_u64 vcc, 0\ns_cselect_b32 %s, 1, 0\ns_mov_b32 s0, %s\ns_mov_b32 s1, 0" % (XV, sSLOW, sSLOW))
            self.signal(0, "pub", 0)
            self.stamp("p")
        def carry(ops, emit, per, lag):
            nonlocal swaps
            n0 = len(a.lines)
            self.c_min = n0
            emit()
            body = a.lines[n0:]; del a.lines[n0:]
            per = max(per, -(-(self.c_min - n0) // len(ops)))
            pos = 0
            for g_ in ops:
                a.run_all(g_)
                stop = min(len(body), pos + per)
                while stop < len(body) and self.scc_live(body, stop): stop += 1
                a.I("\n".join(body[pos:stop])); pos = stop
                m, k = g_[-1][2][1:]
                if len(swaps) > 1 and 4 * swaps[0][1][1] + 3 + lag <= 4 * m + k:
                    a.run_all(swaps[:5]); swaps = swaps[5:]
            return "\n".join(body[pos:])
        def consts1():
            a.I("v_cmp_ne_u32 vcc, 0, v0\nv_mov_b32 v%d, 0x%x\nv_accvgpr_write_b32 a%d, v%d\nv_cndmask_b32 v%d, 0, v%d, vcc" % (vF1, OOB, aLINE, LINE, vF1, vF1))
            lin(sXLD, sGB, [(sW, 32768)])
            lin(sOST, sXLD, [(sJ, 2048)])
            lin(sHFL, str(LY.HFL), [(sG, 1024)])
            lin(sHDFL, sHFL, [(sC, 128)])
            lin(sFBO, str(LY.FA), [("s2", 128)])
            a.I("s_add_u32 %s, %s, 2048\ns_add_u32 %s, %s, 0x%x\ns_lshl_b32 %s, %s, 11" % (sHDFL, sHDFL, sHDST, sGB, 2 * LY.ACT_STRIDE, sLW2, sW))
            a.I("s_cmp_eq_u32 %s, 0\ns_cselect_b32 %s, %s, 0x%x" % (sW, sFBO, sFBO, OOB))
            a.I("s_lshl_b32 %s, %s, 2\ns_add_u32 %s, %s, %s\ns_cmp_eq_u32 %s, 7\ns_cselect_b32 %s, 0, %s\ns_cmp_eq_u32 %s, 7" % (sT0, sR, sT0, sT0, sW, sN, sT0, sT0, sT0))
            a.I("s_cselect_b32 %s, %s, 0x%x" % (sHDST, sHDST, OOB))
            a.I("v_bfe_u32 v%d, v0, 3, 1\nv_xor_b32 v%d, 1, v%d\nv_lshlrev_b32 v%d, 29, v%d" % (vA, vA, vA, vA, vA))
            a.I("s_and_b32 %s, %s, 1\n%s" % (sT1, sC, self.getc(u1, aST)))
            lin(sT0, str(8192 - 128), [(sC, 64), (sT1, -56)])
            a.I("v_add3_u32 v%d, v%d, v%d, %s" % (u1, u1, vA, sT0)); put(aHSS)
            a.I("v_lshlrev_b32 v%d, 4, v%d\nv_lshl_add_u32 v%d, v%d, 7, v%d\nv_add_u32 v%d, %d, v%d" % (u0, t8, u0, g, u0, u1, L_HALO, u0)); put(aHX)
            a.I("s_lshl_b32 %s, %s, 10\nv_add3_u32 v%d, v%d, v%d, %s" % (sT0, sC, u1, u0, vA, sT0)); put(aHST)
        def consts2():
            a.I("s_lshr_b32 %s, %s, 1\ns_lshl_b32 %s, %s, 5\ns_and_b32 %s, %s, 1\ns_lshl_b32 %s, %s, 1\ns_add_u32 %s, %s, %s" % (sT0, sW, sT0, sT0, sT1, sW, sT1, sT1, sT0, sT0, sT1))
            a.I("s_mov_b32 s40, 0x33333333\ns_mov_b32 s41, 0\ns_lshl_b64 s[40:41], s[40:41], %s" % sT0)
            a.I("s_lshl_b32 %s, %s, 1\ns_lshl_b32 %s, %s, 4\ns_add_u32 %s, %s, %s" % (sT0, sR, sT2, sW, sT0, sT0, sT2))
            a.I("s_mov_b32 s42, 0x3333\ns_mov_b32 s43, 0\ns_lshl_b64 s[42:43], s[42:43], %s" % sT0)
            a.I("s_lshr_b32 %s, %s, 1\ns_mul_i32 %s, %s, 24\ns_add_u32 %s, %s, %s\nv_lshl_add_u32 v%d, v%d, 3, %s" % (sT0, sJ, sT1, sW, sT0, sT0, sT1, u0, kc, sT0))
            a.I("s_lshl_b32 %s, %s, 3\ns_add_u32 %s, %s, %s\ns_add_u32 %s, %s, 96\nv_mov_b32 v%d, %s\nv_cmp_gt_u32 vcc, 24, v0\nv_cndmask_b32 v%d, v%d, v%d, vcc" %
                (sT0, sW, sT0, sT0, sC, sT0, sT0, u1, sT0, u0, u1, u0))
            a.I("v_lshlrev_b32 v%d, 7, v%d\nv_add_u32 v%d, %d, v%d" % (u0, u0, FAV, LY.FA, u0))
            self.c_min = len(a.lines)
            a.I("s_lshr_b32 %s, s2, 3\ns_lshl_b32 %s, %s, 2\ns_add_u32 %s, %s, %s\ns_lshl_b32 %s, %s, 7" % (sCPO, sCPO, sCPO, sCPO, sCPO, sW, sCPO, sCPO))
            lin(sHST, sGB, [(sW, 114688), (sJ, 7168)])
            lin(sSLD, sGB, [(sW, 2048)])
            lin(sOL, sXST, [(sC, -4096)])
            a.I("s_bitcmp1_b32 %s, 0\ns_cselect_b32 %s, 1, -1\ns_cselect_b32 %s, 0, 6144\ns_lshl_b32 %s, %s, 10\ns_add_u32 %s, %s, %s" % (sJ, sHSTEP, sT0, sHSTEP, sHSTEP, sHST, sHST, sT0))
            a.I("s_lshr_b32 %s, %s, 1\ns_lshl_b32 %s, %s, 1\ns_add_u32 %s, %s, %s\ns_lshl_b32 s66, 0x11111111, %s\ns_mov_b32 s67, s66" % (sT0, sW, sT1, sR, sT0, sT0, sT1, sT0))
            lin(sHLD[3], sGB, [(sR, 229376), (sW, 28672)])
            for i in range(4):
                a.I("s_add_u32 %s, %s, %d\ns_and_b32 %s, %s, 3\ns_lshr_b32 %s, %s, 1\ns_and_b32 %s, %s, 1" % (sTA, sW, i + 1, sTA, sTA, sT0, sTA, sT1, sTA))
                lin(sHLD[i], sHLD[3], [(sT0, 114688), (sT1, 256)])
                if i < 3: lin(sXW[i], str(i * 4096), [(sTA, 12288)])
            lin(sXR, "0", [(sW, 12288)])
            lin(sWQ, str(LY.WQ), [(sJ, LY.WQ_STRIDE * (1 - OPT["hitw"]))])
            lin(sWG, str(LY.WG), [(sJ, LY.WG_STRIDE * (1 - OPT["hitw"]))])
            lin(sWO, str(LY.WO), [(sC, LY.WO_STRIDE * (1 - OPT["hitw"])), (sW, 4096)])
            lin(sWD, str(LY.WD), [(sC, LY.WD_STRIDE * (1 - OPT["hitw"])), (sW, 57344)])
            lin(sTAB, str(L_TAB), [(sW, 512)])
            a.I("s_lshl_b32 %s, %s, 10" % (sLW, sW))
            a.I("s_add_u32 %s, %s, %s\ns_add_u32 %s, %s, %s" % (sWQ4, sWQ, sLW4, sWG4, sWG, sLW4))
            a.I("s_cmp_eq_u32 %s, 0\ns_cselect_b32 %s, 0x%x, %s\ns_cselect_b64 s[54:55], 0, -1" % (sN, sHALO, OOB, sGB))
            a.I("s_add_u32 %s, %s, %s\ns_add_u32 %s, %s, %s\ns_add_u32 %s, %s, %s" % (sHALO2, sHALO, sLW2, sWQ, sWQ, sLW, sWG, sWG, sLW2))
            a.I("v_add_u32 v%d, 0x10000, v%d\nv_add_u32 v%d, 0x20000, v%d" % (vL16b, vL16, vL16c, vL16))
            a.I("v_lshrrev_b32 v%d, %d, v0\nv_lshlrev_b32 v%d, 7, v%d" % (u1, 1 if OPT["xdir"] else 2, u1, u1))
            if OPT["xdir"]:
                a.I("s_add_u32 %s, %s, %d\nv_and_b32 v%d, 128, v%d\nv_add_u32 v%d, %s, v%d\nv_bfe_u32 v%d, v0, 2, 3" % (sT0, sOST, LY.OB[0], u0, u1, u1, sT0, u1, CSW))
                a.I("s_add_u32 %s, %s, %d\nv_lshl_add_u32 v%d, v%d, 9, v%d\nv_cmp_gt_u32 vcc, 32, v0\nv_add_u32 v%d, %s, v%d" %
                    (sT0, sXST, LY.XB[1], u0, CSW, u0, u0, sT0, u0))
                if "x" not in OPT["t_set"]: a.I("v_mov_b32 v%d, 0x%x" % (u0, OOB))
                if "o" not in OPT["t_set"]: a.I("v_mov_b32 v%d, 0x%x" % (u1, OOB))
                a.I("v_cndmask_b32 v%d, v%d, v%d, vcc" % (u1, u0, u1))
            put(aTO)
            a.I("v_lshlrev_b32 v%d, 7, v%d\nv_lshl_add_u32 v%d, v%d, 5, v%d\nv_lshl_add_u32 v%d, v%d, 1, v%d\nv_lshlrev_b32 v%d, 3, v0" % (u0, rr, u0, g, u0, u0, cc, u0, u1))
            a.I("s_cmp_ge_u32 %s, 2\ns_cselect_b64 vcc, -1, 0\ns_cselect_b32 %s, 2, 8\nv_cndmask_b32 v%d, v%d, v%d, vcc" % (sW, sT1, u1, u0, u1))
            a.I("s_lshr_b32 %s, %s, 1\ns_add_u32 %s, %s, %d\nv_add_u32 v%d, %s, v%d" % (sT0, sLW, sT0, sT0, L_KV, u1, sT0, u1)); put(aHWR)
            a.I("v_mov_b32 v%d, %s" % (u1, sT1)); put(aHWS)
            a.I("s_mul_i32 %s, %s, 7\ns_add_u32 %s, %s, 6\ns_lshr_b32 %s, %s, 2\ns_lshr_b32 %s, %s, 2" % (sT0, sJ, sT1, sT0, sT0, sT0, sT1, sT1))
            a.I("v_add_u32 v%d, %s, v%d\nv_min_u32 v%d, %s, v%d\ns_mul_i32 %s, %s, 28\nv_add_u32 v%d, %s, v%d" % (u0, sT0, kc, u0, sT1, u0, sT0, sW, u0, sT0, u0))
            a.I("s_add_u32 %s, %s, 112\nv_cmp_gt_u32 vcc, 24, v0\nv_mov_b32 v%d, %s\nv_cndmask_b32 v%d, v%d, v%d, vcc" % (sT0, sJ, u1, sT0, u0, u1, u0))
            a.I("s_mul_i32 %s, %s, 7\ns_lshr_b32 %s, %s, 1\nv_and_b32 v%d, 3, v%d\nv_add_u32 v%d, %s, v%d\nv_lshl_add_u32 v%d, v%d, 3, %s" % (sT0, sW, sT0, sT0, u1, kc, u1, sT0, u1, u1, u1, sC))
            a.I("v_cmp_gt_u32 vcc, 32, v0\nv_cndmask_b32 v%d, v%d, v%d, vcc" % (u0, u1, u0))
            a.I("v_lshlrev_b32 v%d, 7, v%d\nv_add_u32 v%d, %d, v%d" % (u0, u0, u1, LY.FA + 128 * 128, u0)); put(aFB)
            a.I("s_getpc_b64 %s\nL_pc2:\ns_sub_u32 s4, s4, L_pc2-L_pc\ns_subb_u32 s5, s5, 0" % sPC)
            NG, Z, M0_, M1_ = rr, cc, q16, hh
            a.I("s_or_b32 %s, %s, %s\ns_cmp_eq_u32 %s, 0\ns_cselect_b64 s[56:57], -1, 0" % (sT0, sN, sW, sT0))
            a.I("v_mov_b32 v%d, %s\nv_mov_b32 v%d, 0\nv_lshlrev_b32 v%d, 2, v%d\nv_sub_u32 v%d, v%d, v%d" % (NG, NEG, Z, vA, g, vA, tok, vA))
            for r in range(4):
                a.I("v_subrev_u32 v%d, %d, v%d\nv_mov_b32 v%d, %s" % (u0, r, vA, M0_, "0xffff0000" if r & 1 else "0xffff"))
                a.I("v_cmp_gt_u32 vcc, 8, v%d\nv_cmp_gt_i32 s[58:59], -8, v%d\nv_cmp_le_i32 s[60:61], 0, v%d" % (u0, u0, u0))
                a.I("v_cndmask_b32 v%d, v%d, v%d, vcc" % (u1, NG, Z)); put(aBC + r)
                a.I("v_cndmask_b32 v%d, v%d, v%d, s[58:59]" % (u1, NG, Z)); put(aBP + r)
                a.I("v_cndmask_b32 v%d, v%d, v%d, s[56:57]" % (u1, u1, NG)); put(aBP0 + r)
                if r & 1:
                    a.I("v_cndmask_b32 v%d, v%d, v%d, s[60:61]\nv_or_b32 v%d, v%d, v%d" % (u1, Z, M0_, u1, u1, M1_)); put(aMC + r // 2)
                else:
                    a.I("v_cndmask_b32 v%d, v%d, v%d, s[60:61]" % (M1_, Z, M0_))
        n1, n2, n3 = OPT["xd1"], 32 - OPT["fa_ld"], 32 - OPT["fa_ck"]
        assert n1 <= 28
        a.I(carry(xd[:n1], consts1, OPT["xd_gap"], 99))
        flags()
        rest = carry(xd[n1:n2], consts2, OPT["xd_per"], OPT["xd_lag"])
        self.stamp("p")
        l_fa, g_fa = self.late_check("buffer_load_dword v%d, v%d, %s, 0 offen sc1" % (PB, FAV, WS), PB, "exec", "fa2")
        l_x, g_x = self.check_ops(0, sMA, PA, "x2")
        a.run_all(l_x + l_fa)
        a.I(carry(xd[n2:n3], lambda: a.I(rest), OPT["xd_per"], OPT["xd_lag"]) if n3 > n2 else rest)
        while len(swaps) > 1 and swaps[0][1][1] < 3:
            a.run_all(swaps[:5]); swaps = swaps[5:]
        a.run_all(g_fa + g_x)
        a.ds_drain()
        self.stamp("p")
        self.x_rest, self.x_reads = xd[n3:], swaps

    def qkv(self, ps):
        a = self.a
        xi = 2 * ps
        late = self.wq_late(ps)
        lateb = ps == 0 and "b" not in OPT["order"] and not OPT["lead"]
        bst = []
        wql = [g for ch in late for g in self.wq_chunk(ch)]
        split = ps == 0 and OPT["q0_split"]
        HX, HW, HW2, HF, NM, RL, CQ, RR = 16, 17, 18, 19, 20, 26, 28, ACC + 52
        def setup():
            a.I(self.getc(HX, aHX))
            a.I("s_add_u32 %s, %s, 2048\nv_add_u32 v%d, %s, v%d\nv_add_u32 v%d, 0xc000, v%d\nv_and_b32 v%d, 0x380, v%d" % (sT2, sLW, HW, sT2, vL16, HW2, HW, CQ, vL16))
        if ps == 0 and OPT["xdir"]:
            a.forget(("fb", "xd"))
            if not OPT["lead"]: setup()
        else:
            self.poll(6 * ps, sMA, self.fav if ps == 0 and not split else None, setup)
        self.stamp()
        xl = self.reg_loads([vr(X + 8 * s + 4 * b, 4) for s in range(16) for b in range(2)], [sXLD] * 32,
                            [LY.XB[xi] + s * 2048 + b * 256 for s in range(16) for b in range(2)], sTA, vQ, "x")
        UP = OPT["q_up"] if ps else OPT["q0_up"]
        xdir = ps == 0 and OPT["xdir"]
        if xdir: xl = []
        if ps == 0:
            late = late[1:]
            n = 4 + OPT["q0_w"]
            first = wql[:4] + xl[:UP] + wql[4:n]
            if split:
                l_fa, g_fa = self.late_check("buffer_load_dword v%d, v%d, %s, 0 offen sc1" % (HF, self.fav, WS), HF, "exec", "fa")
                n1 = OPT["q0_n1"]
                first = xl[:n1] + [l_fa] + xl[n1:UP] + [g_fa + [("i", "s_barrier")]] + wql[:n]
            else:
                first = xl[:2] + [[("i", "s_barrier")]] + wql[:4] + xl[2:UP] + wql[4:n] + (self.halo0 if xdir and not OPT["lead"] else [])
                if OPT["lead"]:
                    assert n <= 12
                    k = 1 + OPT["q0_x"]
                    first[k:k] = [g + [("call", lambda: a.state.pop("m0", None))] for g in self.x_rest]
            wql = wql[n:]
            if OPT["b_pos"] >= 2:
                k = OPT["b_pos"] - 2
                a.run_all(self.flat(first[:k])); first = first[k:]
                self.b_loads(); a.state.pop("m0", None)
            inb = xdir and OPT["inb"]
            if inb:
                bpre, brd, bst2 = self.second_ops()
                if OPT["inb_at"]:
                    k = OPT["inb_at"] + 1
                    a.run_all(self.flat(first[:k])); first = first[k:]
                    self.b_loads(); a.state.pop("m0", None)
                a.I(bpre)
            elif lateb:
                k = len(first) - OPT["q0_b"]
                a.run_all(self.flat(first[:k])); first = first[k:]
                if OPT["b_pos"] >= 2 or xdir: a.vm_wait(("fb", 24576))
                a.I("s_barrier")
                bst = self.second_unit()
            a.run_all(self.flat(first))
        else:
            a.run_all(self.flat(xl[:UP]))
        if ps == 0:
            if OPT["lead"]:
                a.run_all(self.x_reads); setup()
            a.vm_wait(("wq", 0))
            if inb and OPT["inb_ch"] == 0: a.vm_wait(("fb", 24576))
        a.I("s_barrier")
        sl = Slots()
        sl.mpatience, sl.patience = OPT["q_mp%d" % ps], OPT["q_vp"]
        use = {}
        acc = lambda blk, b: vr(ACC + 8 * blk + 4 * b, 4)
        hbuf = lambda t: (F + 24, X)[t % 2]
        step0 = {}
        H0 = OPT["xd_h0"] if xdir else OPT["q_h0"]
        hpos = {}
        for t in range(16):
            p = (t * 6 * (16 - H0)) // 16 + 1
            hpos.setdefault((H0 + p // 6, p % 6), []).append(t)
        Y, Z = X + 8, X + 96
        BC, BP, BP0, MC, ONES, KW, CSA = Y, Y + 4, Y + 8, Y + 12, Y + 14, Y + 16, Y + 21
        def halo_mfma(t):
            d = acc(6, 0)
            if t < 16:
                i = sl.add("v_mfma_f32_16x16x32_bf16 %s, %s, %s, %s" % (d, vr(hbuf(t) + 4, 4), vr(hbuf(t), 4), "0" if t == 0 else d), [("wds", ("hx", t))])
            else:
                i = sl.add("v_mfma_f32_16x16x16_bf16 %s, %s, %s, %s" % (d, vr(NM + 4, 2), vr(hbuf(t), 2), d), [("wds", ("hw", t))])
            use[("h", t)] = i
        for s in range(17):
            step0[s] = sl.n()
            if s == 16: halo_mfma(16)
            for f in range(6):
                for b in range(2):
                    pre_ = []
                    if b == 0: pre_.append(("wds", ("f", s, f // OPT["q_grp"] * OPT["q_grp"] + OPT["q_grp"] - 1)))
                    if f == 0 and s < 16 and not xdir: pre_.append(("wvm", ("x", 2 * s + (b if s == 0 else 1))))
                    w = vr(F + 4 * f, 4 if s < 16 else 2)
                    x = vr(X + 8 * s + 4 * b, 4) if s < 16 else vr(NM + 2 * b, 2)
                    A, B = (w, x) if f < 4 else (x, w)
                    d = acc(f, b)
                    mn = "v_mfma_f32_16x16x32_bf16" if s < 16 else "v_mfma_f32_16x16x16_bf16"
                    use[(s, f)] = sl.add("%s %s, %s, %s, %s" % (mn, d, A, B, "0" if s == 0 else d), pre_)
                for t in hpos.get((s, f), ()): halo_mfma(t)
        reads = []
        for s in range(17):
            for f in range(6):
                d = F + 4 * f
                if s < 16: t = "ds_read_b128 %s, %s" % (vr(d, 4), ldsaddr(s * 6144 + f * 1024))
                else: t = "ds_read2st64_b32 %s, v%d offset0:%d offset1:%d" % (vr(d, 2), CSA, 2 * f, 2 * f + 1)
                reads.append((use[(s - 1, f)] if s else -1, (6 * s + f) // 16, ("ds", t, ("f", s, f))))
        hbar = step0[H0 - 1] + 4
        for t in range(17):
            pos = use[("h", t - 2)] if t >= 2 else hbar + 2 + 2 * t
            if t < 16:
                reads.append((pos, (6 * t + 5) // 16, ("ds", "ds_read_b128 %s, v%d offset:%d" % (vr(hbuf(t), 4), HW if t < 8 else HW2, (t % 8) * 6144), ("hw", t))))
                reads.append((pos + (1 if t >= 2 else 0), 0, ("ds", "ds_read_b128 %s, v%d offset:%d" % ((vr(hbuf(t) + 4, 4),) + ((X + 34 + t % 2, t // 2 * 1024) if xdir else (HX, t * 512))), ("hx", t))))
            else:
                reads.append((pos, 6, ("ds", "ds_read2st64_b32 %s, v%d offset0:4 offset1:5" % (vr(hbuf(t), 2), CSA + 1), ("hw", t))))
        sl.put("c", step0[4], [("i", "v_add_u32 v%d, 98304, v%d\ns_lshr_b32 %s, %s, 1\nv_add_u32 v%d, %s, v%d" % (CSA, vFL, sT2, sLW, CSA + 1, sT2, CSA)), ("mark", "csaddr")])
        sl.after(step0[14], ("need", "csaddr"))
        sl.pre[step0[16]].append(("wds", ("nm", 2)))
        chbar = {}
        for ch in late:
            ops = [("wvm", ("wq", ch)), ("i", "s_barrier")]
            p = chbar[ch] = min(p for p, c, _ in reads if c == ch)
            if ps == 0 and inb and ch == OPT["inb_ch"]: ops.insert(0, ("wvm", ("fb", 24576)))
            if lateb and ch == OPT["q0_fbch"]:
                ops.insert(0, ("wvm", "fbs"))
                assert p >= step0[5]
                sl.put("f", p + 1, [("i", "v_mov_b32 v%d, %s\n%s" % (X + 32, sNONCE, self.getc(X + 33, aLINE))),
                                    ("vm", "buffer_store_dword v%d, v%d, %s, %s offen sc1" % (X + 32, X + 33, WS, sFBO))])
            sl.after(p, *ops)
        sl.after(hbar, ("wvm", "halo"), ("i", "s_barrier"))
        if ps == 0 and inb:
            p = chbar.get(OPT["inb_ch"], -1) + 1
            sl.put("b", p, brd)
            for n_, g in enumerate(bst2): sl.put("b", p + OPT["inb_wait"] + n_ * OPT["inb_gap"], g)
            bfree = chbar[OPT["q0_fbch"]] + 2
        if xdir:
            assert H0 >= 7 and not OPT["diagpad"]
            sl.put("g", step0[5], [("i", self.getc(X + 34, aSH) + "\nv_xor_b32 v%d, 64, v%d" % (X + 35, X + 34)), ("mark", "hx0")])
            sl.after(hbar, ("need", "hx0"))
        for pos, _, rd in reads:
            if pos < 0: a.run(rd)
            else: sl.after(pos, rd)
        l_hf, g_chk = self.late_check("buffer_load_dword v%d, v%d, %s, %s offen sc1" % (HF, CQ, WS, sT1), HF, sMH, "hf")
        g_hf = [("i", "s_add_u32 %s, %s, %d" % (sT1, sHFL, ps * 16384))] + l_hf
        g_hd = self.dma_chunk(sHALO2, LY.HX[ps], L_HALO, 2, "halo", " sc1")
        g_hs = [("i", "s_add_u32 %s, %s, %d" % (sT1, sHALO, LY.HX[ps] + 8192 - L_HALO)),
                ("vm", "buffer_load_dwordx4 %s, v%d, %s, %s offen sc1" % (vr(RR + 8, 4), HX, WS, sT1), "st")]
        g_s0 = [("i", "s_add_u32 %s, %s, %d" % (sT0, sSLD, LY.SB[xi])), ("vm", "buffer_load_dwordx4 %s, v%d, %s, %s offen sc1" % (vr(RR, 4), vL16, WS, sT0))]
        g_s1 = [("vm", "buffer_load_dwordx4 %s, v%d, %s, %s offen offset:1024 sc1" % (vr(RR + 4, 4), vL16, WS, sT0))]
        wbar = max(use[("h", 6)] + 2, step0[OPT["xd_wbar" if xdir else "q_wbar"]])
        while sl.post[wbar]: wbar += 1
        sl.after(wbar, ("i", "s_barrier"))
        wo = [((bfree if ps == 0 and inb else 0) if i < 2 else wbar + 2, g) for i in range(4) for g in self.wo_chunk(i)]
        rest = xl[UP:]
        h1 = OPT["q_hf"] if ps else OPT["q0_hf"]
        h2 = h1 + OPT["q_chk"] - 2
        seq = rest[:h1] + [g_hf, g_s0, g_s1] + rest[h1:h2] + [g_chk] + g_hd + [g_hs] + rest[h2:]
        if xdir:
            k1, k2 = OPT["xd_h1"], OPT["xd_h1"] + OPT["xd_h2"]
            seq = wql[:k1] + [g_hf, g_s0, g_s1] + (self.halo0 if OPT["lead"] else []) + wql[k1:k2] + [g_chk, g_hs] + wql[k2:]
        elif wql:
            due, d = [], sl.n()
            for g in reversed(seq):
                tag = g[-1][2] if len(g[-1]) > 2 else None
                if isinstance(tag, tuple) and tag[0] == "x": d = step0[tag[1] // 2]
                due.append((d, g))
            due.reverse()
            d, wdue = 0, []
            for g in reversed(wql):
                if g[-1][2] is not None: d = chbar[g[-1][2][1]] - OPT["q0_lead"]
                wdue.append((d, g)); d -= 6
            seq = [g for _, g in sorted(due + wdue[::-1], key=lambda t: t[0])]
        for n_, g in enumerate(bst):
            k = OPT["b_first"] + n_ * (OPT["b_gap"] + 1)
            assert not any(op[0] == "vm" and len(op) > 2 and isinstance(op[2], tuple) and op[2][0] == "x" and op[2][1] >= 24 for g2 in seq[:k] for op in g2)
            seq.insert(k, g)
        if ps == 0:
            tch = self.touch(aTO, "0", 0, X + 36) if OPT["t_set"] != "-" and OPT["t_pos"] >= 0 else []
            wo[OPT["t_pos"]:OPT["t_pos"]] = [(step0[5], g) for g in tch]
            l_fb, g_fb = self.late_check("%s\nbuffer_load_dword v%d, v%d, %s, 0 offen sc1" % (self.getc(Y + 23, aFB), Y + 23, Y + 23, WS), Y + 23, "exec", "fb")
            l_fb = [("i", l_fb[0][1].split("\n")[0]), ("vm", l_fb[0][1].split("\n")[1], "fb")]
            seq += [g + (OPT["q0_tail"] / 10,) for g in wo]
            if OPT["fb_at"] == "att": sl.put("f", step0[OPT["q0_fbs"]], l_fb)
            else:
                assert not (self.digits("wg_att0") or self.digits("wg_h10") or OPT["wd_att"] or OPT["wd_h1"])
                self.cold.pop(); g_fb = []
        else:
            seq += wo
        sl.put("g", step0[12], self.flat(self.code_touch("L_wo%d" % ps, CQ + 1)))
        left = sl.pace(seq, 0, (OPT["q_every"] if ps else OPT["q0_every"]) / 10)
        A0, A1, AH = RR, RR + 4, RR + 8
        st = [[("wvm", "st")]]
        for r_ in (A0, A1, AH):
            st.append([("i", "v_add_f32 v%d, v%d, v%d" % (r_, r_, r_ + 2))])
            st.append([("i", "v_add_f32 v%d, v%d, v%d" % (r_ + 1, r_ + 1, r_ + 3))])
        for o in (0, 1): st.append([("i", "v_mov_b32 v%d, v%d" % (AH + 2 + o, AH + o))])
        for o in (0, 1): st.append([("i", "v_permlane32_swap_b32 v%d, v%d" % (A0 + o, A1 + o))])
        for o in (0, 1): st.append([("i", "v_permlane32_swap_b32 v%d, v%d" % (AH + o, AH + 2 + o))])
        for o in (0, 1): st.append([("i", "v_add_f32 v%d, v%d, v%d" % (A0 + o, A0 + o, A1 + o))])
        for o in (0, 1): st.append([("i", "v_add_f32 v%d, v%d, v%d" % (AH + o, AH + o, AH + 2 + o))])
        for o in (0, 1): st.append([("i", "v_permlane16_swap_b32 v%d, v%d" % (A0 + o, AH + o))])
        for o in (0, 1): st.append([("i", "v_add_f32 v%d, v%d, v%d" % (A0 + o, A0 + o, AH + o))])
        st += [[op] for op in self.ln_from_sums(A0, A0 + 1, A0 + 2)]
        st.append([("i", "v_cvt_pk_bf16_f32 v%d, -v%d, -v%d" % (A0, A0, A0))])
        st.append([("i", "v_add_u32 v%d, %s, v%d" % (HF, sTAB, vFL))])
        st.append(([("need", "bdone")] if ps == 0 and inb else []) + [("i", "v_and_or_b32 v30, v%d, 63, %s" % (vFL, sTAB))])
        st.append([("i", "v_and_or_b32 v31, v0, 48, %s" % sTAB)])
        st.append([("ds", "ds_write2st64_b32 v%d, v%d, v%d offset0:0 offset1:1" % (HF, A0 + 1, A0))])
        row = {0: 0, 1: 2, 2: 1}
        for b in range(3):
            o = 64 + row[b] * 16
            st.append([("ds", "ds_read2_b32 %s, v30 offset0:%d offset1:%d" % (vr(NM + 2 * b, 2), o, o), ("nm", b))])
        st.append([("ds", "ds_read2_b32 %s, v30 offset0:0 offset1:32" % vr(RL, 2))])
        for b in range(3):
            st.append([("ds", "ds_read_b128 %s, v31 offset:%d" % (vr(RR + 4 * b, 4), row[b] * 64), ("tab", b))])
        sl.spread(st, step0[OPT["xd_st"]] if xdir else step0[H0] - OPT["q_st"], step0[14])
        cst = [[("i", self.getc(Y + k, aBC + k))] for k in range(14)]
        cst += [[("i", "v_mov_b32 v%d, %s" % (ONES + k, sONE))] for k in range(2)]
        cst += [[("i", self.getc(KW, aHWR))], [("i", self.getc(KW + 3, aHWS))], [("i", "s_add_u32 %s, %s, %d" % (sT2, sLW2, L_KV))],
                [("i", "v_add_u32 v%d, v%d, v%d" % (KW + 1, KW, KW + 3))], [("i", "v_lshl_add_u32 v%d, v0, 3, %s" % (KW + 4, sT2))],
                [("i", "v_add_u32 v%d, v%d, v%d" % (KW + 2, KW + 1, KW + 3))], [("i", "v_add_u32 v%d, v%d, v%d" % (KW + 3, KW + 2, KW + 3))]]
        sl.spread(cst, step0[4] + 2, step0[8], "c")
        Qp = lambda b, h: Z + 4 * h + 2 * b
        Kp = lambda b, h: Z + 8 + 6 * h + 2 * (b + 1)
        Vp = lambda b, h: Z + 20 + 6 * h + 2 * (b + 1)
        HP, HA = HX, ACC + 48
        ar_ = lambda blk, b: ACC + 8 * blk + 4 * b
        cvt = lambda d, s_: "v_cvt_pk_bf16_f32 v%d, v%d, v%d" % (d, s_, s_ + 1)
        tl = [("wds", ("tab", 2)), ("i", "v_mul_f32 v%d, 0x3eb8aa3b, v%d\nv_mul_f32 v%d, 0x3eb8aa3b, v%d" % (CQ, RL, CQ + 1, RL + 1))]
        tl += [("i", "v_mul_f32 v%d, v%d, v%d" % (HA + r, HA + r, RR + 8 + r)) for r in range(4)]
        tl += [("i", cvt(HP, HA)), ("i", cvt(HP + 1, HA + 2))]
        hw = [("ds", "ds_write_b16%s v%d, v%d" % ("_d16_hi" if r & 1 else "", KW + r, HP + r // 2)) for r in range(4)]
        qs = [(h, b) for h in range(2) for b in range(2)]
        sl.put("v", step0[16], tl)
        for n_, (h, b) in enumerate(qs):
            sl.put("v", use[(16, h)], [hw[n_], ("i", cvt(Qp(b, h), ar_(h, b))), ("i", cvt(Qp(b, h) + 1, ar_(h, b) + 2))])
        self.lite(sl, "q", [step0[s] for s in (0, 2, 4, 6, 8, 10, 12, 14)])
        self.report("qkv%d" % ps, sl.emit(a))
        self.stamp()
        body = []
        e = lambda t: body.extend(("i", x) for x in t.split("\n"))
        def pack(dst, src): e(cvt(dst, src) + "\n" + cvt(dst + 1, src + 2))
        def scale_l(src, b):
            for k in range(2): e("v_pk_mul_f32 %s, %s, %s op_sel:[0,%d] op_sel_hi:[1,%d]" % (vr(src + 2 * k, 2), vr(src + 2 * k, 2), vr(RL, 2), b, b))
        def scale_r(src, r0):
            for k in range(2): e("v_pk_mul_f32 %s, %s, %s" % (vr(src + 2 * k, 2), vr(src + 2 * k, 2), vr(r0 + 2 * k, 2)))
        kvw = lambda src, part: body.append(("ds", "ds_write_b64 v%d, %s offset:%d" % (KW + 4, vr(src, 2), 2048 + 512 * part)))
        for h in range(2):
            scale_l(ar_(2 + h, 1), 1); pack(Kp(1, h), ar_(2 + h, 1)); kvw(Kp(1, h), h); scale_l(ar_(2 + h, 0), 0)
        for h in range(2):
            scale_r(ar_(4 + h, 1), RR + 4); pack(Vp(1, h), ar_(4 + h, 1)); kvw(Vp(1, h), 2 + h); scale_r(ar_(4 + h, 0), RR)
        units = [(1, 0), (1, 1), (0, 0), (0, 1)]
        SC = lambda u: F + 8 * u
        SP = lambda u: F + 8 * u + 4
        smf = lambda d, kb, u, bias: "v_mfma_f32_16x16x16_bf16 %s, %s, %s, %s" % (vr(d, 4), vr(Kp(kb, units[u][1]), 2), vr(Qp(*units[u]), 2), vr(bias, 4))
        M = [ACC + u for u in range(4)]
        def merge(u):
            return ["v_max_f32 v%d, v%d, v%d" % (SC(u) + r, SC(u) + r, SP(u) + r) for r in range(4)] + [
                "v_max3_f32 v%d, v%d, v%d, v%d" % (M[u], SC(u), SC(u) + 1, SC(u) + 2), "v_max_f32 v%d, v%d, v%d" % (M[u], M[u], SC(u) + 3)]
        e(smf(SC(0), 1, 0, BC)); pack(Kp(0, 0), ar_(2, 0))
        e(smf(SC(1), 1, 1, BC)); pack(Kp(0, 1), ar_(3, 0))
        e(smf(SP(0), 0, 0, BP))
        if ps == 0: body.extend(g_fb)
        body.append(("wvm", ("wo", 1)))
        body.append(("dsdrain",)); e("s_barrier")
        nbar = len(body)
        rdkv = lambda dst, part, tag: body.append(("ds", "ds_read_b64 %s, v%d offset:%d" % (vr(dst, 2), KW + 4, 512 * part), tag))
        e(smf(SP(1), 0, 1, BP)); rdkv(Kp(-1, 0), 0, ("kp", 0)); rdkv(Kp(-1, 1), 1, ("kp", 1))
        e(smf(SC(2), 0, 2, BC)); rdkv(Vp(-1, 0), 2, ("vp", 0)); rdkv(Vp(-1, 1), 3, ("vp", 1))
        e(smf(SC(3), 0, 3, BC)); pack(Vp(0, 0), ar_(4, 0)); pack(Vp(0, 1), ar_(5, 0))
        m0, m1 = merge(0), merge(1)
        e("\n".join(m0))
        body.append(("wds", ("kp", 1)))
        e(smf(SP(2), -1, 2, BP0)); e("\n".join(m1[:2]))
        e(smf(SP(3), -1, 3, BP0)); e("\n".join(m1[2:]))
        e("s_add_u32 %s, %s, %d" % (sT0, sOST, LY.OB[ps]))
        e("\n".join(merge(2)[:2]))
        e("v_permlane32_swap_b32 v%d, v%d" % (M[0], M[1]))
        e("\n".join(merge(2)[2:] + merge(3)))
        e("v_max_f32 v%d, v%d, v%d" % (M[0], M[0], M[1]))
        e("v_permlane32_swap_b32 v%d, v%d\nv_max_f32 v%d, v%d, v%d" % (M[2], M[3], M[2], M[2], M[3]))
        e("v_permlane16_swap_b32 v%d, v%d\nv_max_f32 v%d, v%d, v%d\nv_max_f32 v%d, v%d, v%d" % (M[0], M[2], M[1], M[0], M[2], M[2], M[0], M[2]))
        e("v_permlane16_swap_b32 v%d, v%d" % (M[1], M[2]))
        e("v_mul_f32 v%d, v%d, v%d\nv_mul_f32 v%d, v%d, v%d" % (M[0], M[1], CQ + 1, M[1], M[1], CQ + 1))
        e("v_mul_f32 v%d, v%d, v%d\nv_mul_f32 v%d, v%d, v%d" % (M[3], M[2], CQ, M[2], M[2], CQ))
        def shift(u):
            for k in range(2):
                e("v_pk_fma_f32 %s, %s, %s, %s op_sel:[0,%d,%d] op_sel_hi:[1,%d,%d] neg_lo:[0,0,1] neg_hi:[0,0,1]" %
                  (vr(SC(u) + 2 * k, 2), vr(SC(u) + 2 * k, 2), vr(CQ, 2), vr(ACC + 2 * (u // 2), 2), units[u][0], u % 2, units[u][0], u % 2))
        e("v_permlane32_swap_b32 v%d, v%d" % (M[0], M[1])); shift(0)
        e("v_permlane32_swap_b32 v%d, v%d" % (M[2], M[3])); shift(1); shift(2); shift(3)
        PM = lambda u: ACC + 4 + 2 * u
        PS = lambda u: ACC + 12 + 4 * u
        OP = lambda b: ACC + 28 + 4 * b
        pv = lambda u: "v_mfma_f32_16x16x32_bf16 %s, %s, %s, 0" % (vr(SC(u), 4), vr(Vp(units[u][0] - 1, units[u][1]), 4), vr(PS(u), 4))
        for u, (b, h) in enumerate(units):
            for r in range(4):
                e("v_exp_f32 v%d, v%d" % (SC(u) + r, SC(u) + r))
                if r == 1 and u >= 1: e(pv(u - 1))
            if u == 2: body.append(("wds", ("vp", 1)))
            if u >= 2: e("v_rcp_f32 v%d, v%d" % (SP(u - 2), SP(u - 2)))
            pack(PM(u), SC(u))
            for k in range(2):
                e("v_bfi_b32 v%d, v%d, 0, v%d\nv_and_b32 v%d, v%d, v%d" % (PS(u) + k, MC + k, PM(u) + k, PS(u) + 2 + k, MC + k, PM(u) + k))
            e("v_mfma_f32_16x16x16_bf16 %s, %s, %s, 0" % (vr(SP(u), 4), vr(ONES, 2), vr(PM(u), 2)))
        e("v_rcp_f32 v%d, v%d" % (SP(2), SP(2)))
        e(pv(3))
        def fin(u, packed):
            b, h = units[u]
            if packed:
                for k in range(2): e("v_pk_mul_f32 %s, %s, %s op_sel_hi:[1,0]" % (vr(SC(u) + 2 * k, 2), vr(SC(u) + 2 * k, 2), vr(SP(u), 2)))
            else:
                for r in range(4): e("v_mul_f32 v%d, v%d, v%d" % (SC(u) + r, SC(u) + r, SP(u)))
            pack(OP(b) + 2 * h, SC(u))
            if h == 1:
                body.append(("vm", "buffer_store_dwordx4 %s, v%d, %s, %s offen offset:%d%s" % (vr(OP(b), 4), vQ, WS, sT0, b * 256, " sc1" if ps == 0 and "o" not in OPT["t_set"] else ""), "o" if b == 0 else None))
        fin(0, False); fin(1, True)
        e("v_rcp_f32 v%d, v%d" % (SP(3), SP(3)))
        fin(2, True); fin(3, True)
        left = self.weave(body[:nbar], left, 0, OPT["a_every"])
        stop = len(body) - OPT["a_quiet"]
        left = self.weave(body[nbar:stop], left + self.wgs("att", ps) + self.wds("att", ps), 4, OPT["a_every"])
        a.run_all(body[stop:])
        print("  attention: %d groups left for the hand-off" % len(left))
        self.stamp()
        self.wo_pre(0, OPT["w_pre"])
        self.signal(6 * ps + 1, "o")
        a.run_all(self.flat(left + self.wgs("h1", ps) + self.wds("h1", ps)))
        self.stamp()

    def wds(self, where, ps):
        if ps: return []
        if self.wd is None:
            ks = [4 * s + cb for s in DN_ORD for cb in range(4)]
            self.wd = self.reg_loads([ar(4 * k, 4) for k in ks], [sWD] * 56, [k * 1024 for k in ks], sTD, vL16, "wd")
        n = OPT.get("wd_" + where, 56)
        out, self.wd = self.wd[:n], self.wd[n:]
        return out

    WREG = [X + 4 * k for k in range(16)] + [ACC + 16 + 4 * k for k in range(12)] + [F + 4 * k for k in range(8)]
    def wo_read(self, k):
        return ("ds", "ds_read_b128 %s, %s" % (vr(self.WREG[k % 36], 4), ldsaddr(WO_SLOT[k // 16] * 16384 + (k % 16) * 1024)), ("w", k))
    def wo_pre(self, k0, k1):
        for k in range(k0, k1): self.a.run(self.wo_read(k))

    def pair_swap(self, dst, src):
        a = self.a
        dpp = "quad_perm:[1,0,3,2] row_mask:0xf bank_mask:0xf"
        a.I("s_mov_b32 vcc_lo, 0x55555555\ns_mov_b32 vcc_hi, 0x55555555")
        for d in range(4): a.I("v_cndmask_b32_dpp v%d, v%d, v%d, vcc %s" % (dst + d, src + 4 + d, src + d, dpp))
        a.I("s_not_b64 vcc, vcc")
        for d in range(4): a.I("v_cndmask_b32_dpp v%d, v%d, v%d, vcc %s" % (dst + 4 + d, src + d, src + 4 + d, dpp))

    def finish(self, A, xo, h, pf, n, halo_pass):
        a = self.a
        for k in range(8): a.I("v_cvt_pk_bf16_f32 v%d, v%d, v%d" % (XRES + k, A + 2 * k, A + 2 * k + 1))
        if xo == 4:
            a.I(self.getc(16, aROW))
            self.pair_swap(F, XRES)
            for e_ in range(2): a.vm("buffer_store_dwordx4 %s, v16, %s, 0 offen offset:%d %s" % (vr(F + 4 * e_, 4), OUT, e_ * 2048, OPT["outf"].strip("-")))
            self.stamp()
            return
        self.publish(xo)
        self.stamp()
        a.run_all(self.flat(pf[:n]))
        self.signal(h, "pub", halo_pass)
        a.run_all(self.flat(pf[n:]))
        self.stamp()

    def wo(self, ps):
        a = self.a
        def setup():
            for k in range(8):
                a.I("v_lshlrev_b32 v%d, 16, v%d\nv_and_b32 v%d, 0xffff0000, v%d" % (ACC + 2 * k, XRES + k, ACC + 2 * k + 1, XRES + k))
        keep = dict(a.ds_tag)
        if OPT["stamps"] and ps == 0:
            a.I("s_memtime s[%d:%d]" % (sST, sST + 1)); a.ds_drain(force=True); a.I("v_writelane_b32 v%d, s%d, 60" % (vSTAMP, sST))
        self.poll(6 * ps + 1, sMC, None, setup)
        a.ds_tag.update((t, n) for t, n in keep.items() if t[0] == "w")
        self.stamp()
        areg = lambda s: vr(X + 64 + 4 * s, 4)
        ld = self.reg_loads([areg(s) for s in range(16)], [sOL] * 16, [LY.OB[ps] + s * 2048 for s in range(16)], sTA, vQ, "act")
        UP = OPT["w_up"]
        g_fb = []
        if ps == 0 and OPT["fb_at"] == "wo":
            l_fb, g_fb = self.late_check("buffer_load_dword v17, v16, %s, 0 offen sc1" % WS, 17, "exec", "fb")
            ld[OPT["fb_k"]] = ld[OPT["fb_k"]] + [("i", self.getc(16, aFB))] + l_fb
        rest = [self.wo_read(k) for k in range(OPT["w_pre"], 32)]
        for n_, g in enumerate(ld[:UP]):
            a.run_all(g)
            if n_ >= 3: a.run_all(rest[:3]); rest = rest[3:]
        a.run_all(rest)
        a.I("s_barrier")
        self.wo_pre(32, 36)
        sl = Slots()
        for k in range(64):
            s, cb = divmod(k, 4)
            d = vr(ACC + 4 * cb, 4)
            sl.add("v_mfma_f32_16x16x32_bf16 %s, %s, %s, %s" % (d, vr(self.WREG[k % 36], 4), areg(s), d),
                   [("wds", ("w", k))] + ([("wvm", ("act", s))] if cb == 0 else []))
            if cb == 0 and s + UP < 16: sl.put("m", k, ld[s + UP])
            if k + 36 < 64: sl.put("r", k, [self.wo_read(k + 36)])
        pf = self.wgs("wo", ps) + self.wds("wo", ps)
        p0 = 64 - 4 * UP + 2
        if g_fb:
            p0 = max(p0, OPT["fb_s"])
            sl.put("m", p0 - 3, g_fb + [("i", "s_barrier")])
        pf = sl.pace(pf, p0, 4.4, 64 - OPT["w_quiet"])
        self.lite(sl, "wo", [8 * k for k in range(8)])
        self.report("wo%d" % ps, sl.emit(a))
        self.stamp()
        self.finish(ACC, 2 * ps + 1, 6 * ps + 2, pf + self.wgs("h2", ps) + self.wds("h2", ps), 0, None)

    def dn_plan(self, ps):
        order = [(i, s) for lv in DN_S for i in range(3) for s in lv] + [(3, s) for s in range(14)]
        areg = lambda k: vr(X + 48 + 4 * (k % 16), 4)
        ld = self.reg_loads([areg(k) for k in range(56)], [sHLD[i] for i, s in order], [LY.HB[ps] + s * 2048 for i, s in order], sTA, vQ, "act")
        return order, areg, ld

    def dn(self, ps, issued, wd):
        a = self.a
        order, areg, ld = self.dn_plan(ps)
        XW, XR, R, P, U = 16, 19, 20, (ACC, ACC + 16, ACC + 32), ACC + 48
        io = L_SCR_DN - 65536
        UP = OPT["k_up"]
        widx = {s: n_ for n_, s in enumerate(DN_ORD)}
        wd_e = [g for g in wd if g[-1][2][1] < 24]
        wd_l = [g for g in wd if g[-1][2][1] >= 24]
        a.run_all(self.flat(ld[issued:UP] + wd_e))
        a.ds_drain()
        a.I("s_barrier")
        sl = Slots()
        accr = lambda i, cb: (X, X + 16, X + 32, X + 112)[i] + 4 * cb
        seen, endb = set(), {}
        for k, (i, s) in enumerate(order):
            for cb in range(4):
                d = vr(accr(i, cb), 4)
                pre = [("wvm", ("act", k))] if cb == 0 else []
                tag = ("wd", 4 * widx[s] + cb)
                if i == 0 and (tag in a.vm_tag or any(g[-1][2] == tag for g in wd_l)): pre.append(("wvm", tag))
                endb[i] = sl.add("v_mfma_f32_16x16x32_bf16 %s, %s, %s, %s" % (d, ar(16 * s + 4 * cb, 4), areg(k), d if (i, cb) in seen else "0"), pre)
                seen.add((i, cb))
        chk = {18: self.check_ops(6 * ps + 4, sMB, PA, "hf2"), 30: self.check_ops(6 * ps + 5, sMB, PA, "hf3")}
        if self.pending: sl.put("f", OPT["d_mid%d" % ps], self.pending)
        sl.put("f", OPT["d_sig%d" % ps], self.signal_ops(6 * ps + 5, "h6", PB))
        extra = list(wd_l)
        for k in range(max(UP, issued), 56):
            p = 4 * (k - min(OPT["d_up2"], UP + max(0, k - OPT["d_ramp"]) // 3))
            if k + OPT["d_chk"] in chk: sl.put("m", p, chk[k + OPT["d_chk"]][0])
            if k in chk:
                due = [g for g in extra if g[-1][2][1] < (40 if k == 18 else 56)]
                sl.put("m", p, self.flat(due) + chk[k][1]); extra = extra[len(due):]
            sl.put("m", p, ld[k])
            sl.put("m", p, self.flat(extra[:1])); extra = extra[1:]
        su = [[("i", "v_add_u32 v%d, %s, v%d" % (XW + i, sXW[i], vL16b))] for i in range(3)] + [[("i", "v_add_u32 v%d, %s, v%d" % (XR, sXR, vL16b))]]
        su += [[("i", "s_lshl_b32 %s, %s, 2\ns_add_u32 %s, %s, %s\ns_lshl_b32 %s, %s, 6\ns_add_u32 %s, %s, %d\nv_and_or_b32 v%d, v%d, 63, %s" %
                 (sT0, sR, sT0, sT0, sW, sT0, sT0, sT0, sT0, L_RS, R, vFL, sT0)), ("ds", "ds_read_b32 v%d, v%d" % (R, R))]]
        for k in range(8):
            su += [[("i", "v_lshlrev_b32 v%d, 16, v%d" % (U + 2 * k, XRES + k))], [("i", "v_and_b32 v%d, 0xffff0000, v%d" % (U + 2 * k + 1, XRES + k))]]
        sl.spread(su, 20, 70)
        writes = lambda i: [[("ds", "ds_write_b128 v%d, %s offset:%d" % (XW + i, vr(accr(i, cb), 4), io + cb * 1024))] for cb in range(4)]
        if OPT["d_w64"]:
            writes = lambda i: [[("ds", "ds_write_b64 v%d, %s offset:%d" % (XW + i, vr(accr(i, cb) + 2 * e_, 2), io + cb * 1024 + 8 * e_))] for cb in range(4) for e_ in range(2)]
        reads = lambda i: [[("ds", "ds_read_b128 %s, v%d offset:%d" % (vr(P[i] + 4 * cb, 4), XR, io + i * 4096 + cb * 1024), ("r", i, cb))] for cb in range(4)]
        add = lambda d, s_: [[("i", "v_add_f32 v%d, v%d, v%d" % (d + e_, d + e_, s_ + e_))] for e_ in range(16)]
        for i in range(3): sl.spread(writes(i), endb[i] + 2, endb[i] + 17)
        wb = []
        if ps and OPT["wb"]:
            go, back = a.label("wb"), a.label("wbback")
            self.cold.append("%s:\nbuffer_wbl2 sc1\ns_branch %s" % (go, back))
            wb = [[("i", "s_and_b32 %s, %s, %d\ns_or_b32 %s, %s, %s" % (sT1, sJ, 16 // OPT["wb"] - 1, sT1, sT1, sW)),
                   ("vm", "s_cmp_eq_u32 %s, 0\ns_cbranch_scc1 %s\nbuffer_load_dword a255, off, %s, %s nt\n%s:" % (sT1, go, WS, sFLG, back))]]
        seq = [[("dsdrain",), ("i", "s_barrier")]] + wb + reads(0) + reads(1) + reads(2) + [[("wds", ("r", 1, 3))]] + add(P[0], P[1]) + [[("wds", ("r", 2, 3))]] + add(P[0], P[2])
        seq += [[("i", "v_fma_f32 v%d, v%d, v%d, v%d" % (U + e_, P[0] + e_, R, U + e_))] for e_ in range(16)]
        sl.spread(seq, endb[2] + 20, endb[3] - 2)
        pf = [] if ps else [g for i in range(7) if i not in self.wq_late(1) + self.kept() for g in self.wq_chunk(i)]
        pf = sl.pace(pf, 224 - 4 * OPT["d_up2"] + 2, 4.4)
        self.lite(sl, "dn", [28 * k for k in range(8)])
        self.report("dn%d" % ps, sl.emit(a))
        self.stamp()
        A = accr(3, 0)
        for k in range(8): a.I("v_pk_fma_f32 %s, %s, %s, %s op_sel_hi:[1,0,1]" % (vr(A + 2 * k, 2), vr(A + 2 * k, 2), vr(R, 2), vr(U + 2 * k, 2)))
        self.finish(A, 2 * ps + 2, 6, pf, OPT["dn_pre"], 1)

    def gu(self, ps):
        a = self.a
        xi = 2 * ps + 1
        self.poll(6 * ps + 2, sMA)
        self.stamp()
        S0, TL, NR, XR_ = GS0, 16 - GS0, 8, 10
        SS, NM, HPK, CSA = 16, 24, 28, 21
        A0 = X + 80
        xreg = lambda s, b: X + 8 * (s % XR_) + 4 * b
        acc = lambda bl, m, b: A0 + 16 * bl + 8 * b + 4 * m
        xl = self.reg_loads([vr(xreg(s, b), 4) for s in range(16) for b in range(2)], [sXLD] * 32,
                            [LY.XB[xi] + s * 2048 + b * 256 for s in range(16) for b in range(2)], sTA, vQ, "x")
        UP = OPT["g_up"]
        a.run_all(self.flat(xl[:UP]))
        a.I("s_barrier")
        a.I("s_add_u32 %s, %s, %d" % (sT0, sSLD, LY.SB[xi]))
        g_st = [[("vm", "buffer_load_dwordx4 %s, v%d, %s, %s offen sc1" % (vr(SS, 4), vL16, WS, sT0))],
                [("vm", "buffer_load_dwordx4 %s, v%d, %s, %s offen offset:1024 sc1" % (vr(SS + 4, 4), vL16, WS, sT0), "st")]]
        early = self.wg_early(ps)
        NS = len(self.ring(ps))
        assert 0 in early and len(set(early)) == len(early) and all(c < NS and self.wg_slot(c, ps) not in WO_SLOT for c in early)
        assert all(self.wg_slot(c, ps) != 7 for c in self.digits("wg_att%d" % ps) + self.digits("wg_h1%d" % ps)) and not set(self.kept()) - {2, 3, 4, 5}
        frags = [(s, bl, m) for s in range(S0) for bl in range(7) for m in range(2)]
        for bl in range(7): frags += [(s, bl, m) for s in range(S0, 16) for m in range(2)] + [(16, bl, 0)]
        sl = Slots()
        sl.mpatience, sl.patience = OPT["g_mp%d" % ps], OPT["g_vp"]
        first, last, end, xfirst, xlast = {}, {}, {}, {}, {}
        for k, (s, bl, m) in enumerate(frags):
            w = F + 4 * (k % NR)
            for mm, b in ([(m, 0), (m, 1)] if s < 16 else [(0, 0), (0, 1), (1, 0), (1, 1)]):
                G_ = OPT["g_grp"]
                pre = [] if k in first else [("wds", ("f", min(k // G_ * G_ + G_ - 1, len(frags) - 1)))]
                d = vr(acc(bl, mm, b), 4)
                if s < 16:
                    if (s, b) not in xfirst: pre.append(("wvm", ("x", 2 * s + (b if s == 0 else 1))))
                    n_ = sl.add("v_mfma_f32_16x16x32_bf16 %s, %s, %s, %s" % (d, vr(w, 4), vr(xreg(s, b), 4), "0" if s == 0 else d), pre)
                    xfirst.setdefault((s, b), n_); xlast[(s, b)] = n_
                else:
                    n_ = sl.add("v_mfma_f32_16x16x16_bf16 %s, %s, %s, %s" % (d, vr(w + 2 * mm, 2), vr(NM + 2 * b, 2), d), pre)
                first.setdefault(k, n_); last[k] = n_
            end[bl] = n_
        LA = OPT["g_la"]
        def rd(k):
            off = self.wg_slot(k // 16, ps) * 16384 + (k % 16) * 1024
            d = F + 4 * (k % NR)
            if frags[k][0] < 16:
                return [("ds", "ds_read_b128 %s, %s" % (vr(d, 4), ldsaddr(off)), ("f", k))]
            return [("ds", "ds_read2st64_b32 %s, v%d offset0:%d offset1:%d" % (vr(d + 2 * m, 2), CSA + (off >> 16), (off & 0xffff) // 256 + 2 * m, (off & 0xffff) // 256 + 2 * m + 1),
                     ("f", k) if m else None) for m in range(2)]
        for k in range(LA): a.run_all(rd(k))
        barpos, real = {}, []
        retire = lambda c: min(p for p in real if p > last[16 * c + 15])
        for k in range(LA, len(frags)):
            if k % 16 == 0:
                ch = k // 16
                pair = ps == 1 and OPT["g_bar1"] == 2 and ch >= OPT["g_pair0"]
                if pair and (ch - OPT["g_pair0"]) % 2:
                    barpos[ch] = barpos[ch - 1]
                elif ch not in early or 2 <= ch <= 16 - NS:
                    p = barpos[ch] = last[k - LA] - 1
                    real.append(p)
                    need = ch + 1 if pair and ch < 14 else ch
                    if need not in early: sl.pre[p + 1].append(("wvm", ("wg", need)))
                    sl.after(p, *(([("wvm", ("wg", need))] if need not in early else []) + [("i", "s_barrier")]))
            sl.after(last[k - LA], *rd(k))
        wl = [(retire(ch - NS) + 2 if ch >= NS else 0, g) for ch in range(15) if ch not in early for g in self.wg_chunk(ch, ps)]
        wdue = [barpos[ch] - 8 * (len(self.wg_chunk(ch, ps)) - 1 - n_) for ch in range(15) if ch not in early for n_ in range(len(self.wg_chunk(ch, ps)))]
        wd = self.wds("rest", ps)
        tail0 = xfirst[(S0, 0)]
        xs = []
        for n_ in range(UP, 32):
            s, b = divmod(n_, 2)
            due = min(xfirst[(s, b)], tail0 - (31 - n_) * OPT["g_xsp"])
            xs.append((due, xlast[(s - XR_, b)] + 1 if s >= XR_ else 0, xl[n_]))
        n_ = OPT["g_stat"]
        xs[n_:n_] = [(xs[n_][0], 0, g) for g in g_st]
        P = lambda key: OPT["g_%s%d" % (key, ps)] / 10
        pos, fab, ix, iw, idd, seq = 0.0, 0.0, 0, 0, 0, []
        stop = end[6] - OPT["g_tail"]
        while ix < len(xs) or iw < len(wl) or (idd < len(wd) and pos <= stop):
            xok = ix < len(xs) and xs[ix][1] <= pos
            xu = xok and xs[ix][0] - pos <= P("xlead")
            wok = iw < len(wl) and wl[iw][0] <= pos
            wu = wok and wdue[iw] - pos <= P("wmin")
            free = fab <= pos + P("slack")
            if xu and (not wu or xs[ix][0] <= wdue[iw] - P("wmin") + P("xlead")): pick = "x"
            elif wu: pick = "w"
            elif free and wok and wdue[iw] - pos <= P("wmax"): pick = "w"
            elif free and idd < len(wd) and pos <= stop: pick = "d"
            elif xok and xs[ix][0] - pos <= P("xmax"): pick = "x"
            else:
                pos = int(pos) + 1; continue
            if pick == "x": g = xs[ix][2]; ix += 1
            elif pick == "w": g = wl[iw][1]; iw += 1; fab = max(fab, pos) + P("wcost")
            else: g = wd[idd]; idd += 1; fab = max(fab, pos) + P("dcost")
            behind = (ix < len(xs) and xs[ix][0] - pos < 0.7 * P("xlead")) or (iw < len(wl) and wdue[iw] - pos < 0.7 * P("wmin"))
            seq.append((pos, g)); pos += 2.0 if behind else P("every")
            if g is g_st[1]: stpos = pos
        assert not sl.pace(seq, 0, 0)
        left = wd[idd:]
        st = [[("wvm", "st")]]
        for r_ in (SS, SS + 4):
            for o in (0, 1): st.append([("i", "v_add_f32 v%d, v%d, v%d" % (r_ + o, r_ + o, r_ + 2 + o))])
        for o in (0, 1): st.append([("i", "v_permlane32_swap_b32 v%d, v%d" % (SS + o, SS + 4 + o))])
        for o in (0, 1): st.append([("i", "v_add_f32 v%d, v%d, v%d" % (SS + o, SS + o, SS + 4 + o))])
        for o in (0, 1): st.append([("i", "v_mov_b32 v%d, v%d" % (SS + 2 + o, SS + o))])
        for k in range(3): st.append([("i", "v_add_u32 v%d, %d, v%d" % (CSA + k, k << 16, vFL))])
        for o in (0, 1): st.append([("i", "v_permlane16_swap_b32 v%d, v%d" % (SS + o, SS + 2 + o))])
        for o in (0, 1): st.append([("i", "v_add_f32 v%d, v%d, v%d" % (SS + o, SS + o, SS + 2 + o))])
        st += [[op] for op in self.ln_from_sums(SS, SS + 1, SS + 2)]
        st += [[("i", "v_cvt_pk_bf16_f32 v%d, -v%d, -v%d" % (NM + k, SS, SS))] for k in range(4)]
        st += [[("i", "v_mul_f32 v%d, v%d, v%d" % (SS + 1, SS + 1, SS + 1))],
               [("i", "s_lshr_b32 %s, %s, 3\ns_add_u32 %s, %s, %d" % (sT0, sLW, sT0, sT0, L_RS))],
               [("i", "v_and_or_b32 v%d, v%d, 63, %s" % (SS, vFL, sT0))], [("i", "v_and_b32 v%d, 32, v0" % (SS + 2))],
               [("i", "v_lshl_add_u32 v%d, v%d, 1, v%d" % (SS, SS + 2, SS))]]
        st += [[("i", "v_permlane32_swap_b32 v%d, v%d" % (NM + k, NM + 2 + k))] for k in range(2)] + [[("mark", "nm")]]
        sl.after(tail0 - 2 * LA, ("need", "nm"))
        sl.spread(st, int(stpos) + 40, tail0 - 2 * LA - 10)
        def epi(bl, packed=False):
            g = []
            for b in range(2):
                ga = acc(bl, 0, b)
                g += [[("i", "v_max_f32 v%d, 0, v%d" % (ga + r, ga + r))] for r in range(4)]
                if packed: g += [[("i", "v_pk_mul_f32 %s, %s, %s" % (vr(ga + r, 2), vr(ga + r, 2), vr(ga + 4 + r, 2)))] for r in (0, 2)]
                else: g += [[("i", "v_mul_f32 v%d, v%d, v%d" % (ga + r, ga + r, ga + 4 + r))] for r in range(4)]
                g += [[("i", "v_cvt_pk_bf16_f32 v%d, v%d, v%d" % (HPK + 2 * b + k, ga + 2 * k, ga + 2 * k + 1))] for k in range(2)]
            g.append([("i", "s_add_u32 %s, %s, %s" % ((sTS, sTS, sHSTEP) if bl else (sTS, sHST, LY.HB[ps])))])
            g += [[("i", "v_permlane16_swap_b32 v%d, v%d" % (HPK + k, HPK + 2 + k))] for k in range(2)]
            g.append([("vm", "buffer_store_dwordx4 %s, v%d, %s, %s offen%s" % (vr(HPK, 4), vL16, WS, sTS, {"s": " sc1", "n": " nt", "p": ""}[OPT["h_st%d" % ps][bl]]), "h%d" % bl)])
            return g
        for bl in range(6): sl.spread(epi(bl), end[bl] + 1, end[bl + 1] - OPT["g_epi"])
        l_e, g_e = self.check_ops(6 * ps + 3, sMB, SS + 3, "he")
        sl.put("f", end[3] + OPT["g_sig%d" % ps], self.signal_ops(6 * ps + 3, "h2", SS + 4))
        self.pending = self.signal_ops(6 * ps + 4, "h4", SS + 4)
        if OPT["d_mid%d" % ps] < 0:
            sl.put("f", end[5] + OPT["g_sig%d" % ps], self.pending); self.pending = None
        nh = OPT["g_h%d" % ps]
        assert S0 >= 10 and nh <= 12
        p = end[6] - OPT["g_chk%d" % ps]
        sl.put("h", p - OPT["g_lat%d" % ps], l_e)
        if nh:
            sl.put("h", p, g_e); g_e = []
            assert not sl.pace(self.dn_plan(ps)[2][:nh], p + 1, min(4.4, (end[6] - p - 2) / nh), name="h")
        sl.put("g", tail0, self.flat(self.code_touch("L_dn%d" % ps, SS + 3)))
        sl.put("c", max(tail0, retire(max(c for c in range(14) if self.wg_slot(c, ps) == 6)) + 1), [("ds", "ds_write_b32 v%d, v%d" % (SS, SS + 1))])
        if ps == 0:
            sl.put("c", end[6] - 8, [("i", "s_or_b32 %s, s2, %s" % (sT0, sW)), ("atom", "s_cmp_eq_u32 %s, 0\ns_cselect_b32 %s, %d, 0x%x" % (sT0, sT0, LY.EPOCH, OOB)),
                                     ("i", "v_mov_b32 v%d, %s" % (SS + 2, sNONCE)),
                                     ("vm", "buffer_store_dword v%d, v%d, %s, %s offen" % (SS + 2, vF1, WS, sT0))])
        self.lite(sl, "g", [56 * k for k in range(8)])
        self.report("gu%d" % ps, sl.emit(a))
        a.run_all(self.flat(epi(6, True)))
        self.stamp()
        a.run_all(g_e)
        self.stamp()
        print("  gu: %d loads left for the hand-off" % len(left))
        return nh, left

    def build(self):
        a = self.a
        (self.startup2 if OPT["lead"] else self.startup)()
        for ps in range(2):
            a.I("L_qkv%d:" % ps); self.qkv(ps)
            a.I("L_wo%d:" % ps); self.wo(ps)
            a.I("L_gu%d:" % ps); left = self.gu(ps)
            a.I("L_dn%d:" % ps); self.dn(ps, *left)
        if OPT["stamps"]:
            a.I("s_waitcnt vmcnt(0)\ns_memrealtime s[6:7]\ns_memtime s[80:81]\ns_waitcnt lgkmcnt(0)\nv_writelane_b32 v%d, s6, 63\nv_writelane_b32 v%d, s80, 61" % (vSTAMP, vSTAMP))
            a.I("s_lshl_b32 %s, s2, 10\ns_lshl_b32 %s, %s, 8\ns_add_u32 %s, %s, %s\ns_add_u32 %s, %s, %d" % (sT0, sT1, sW, sT0, sT0, sT1, sT0, sT0, LY.STAMP))
            a.I("buffer_store_dword v%d, v%d, %s, %s offen" % (vSTAMP, vFL, WS, sT0))
        if OPT["diagpad"]:
            a.I("s_mov_b32 s82, %d" % OPT["diagpad"])
            if OPT["diagat"]:
                a.I("s_sub_u32 s83, s%d, s14\ns_lshl_b32 s83, s83, 2" % sST)
                if OPT["diagwg"] >= 0: a.I("s_cmp_eq_u32 s2, %d\ns_cselect_b32 s83, s83, 0" % OPT["diagwg"])
                a.I("s_add_u32 s82, s82, s83")
            a.I("L_pad:\ns_memrealtime s[80:81]\ns_waitcnt lgkmcnt(0)\ns_sub_u32 s80, s80, s14\ns_cmp_lt_u32 s80, s82\ns_cbranch_scc1 L_pad")
        a.I("L_main_done:\ns_endpgm")
        for c in self.cold: a.I(c)
        a.I("L_code_end:")
        return a.lines

def main():
    ml, n2 = hazard_pass(Main().build())
    bad = check_async(ml)
    assert not bad, bad[:3]
    k = NAME + "_kernel"
    out = ["; Generated by gen/gen.py: one persistent kernel (weight re-layout, then four layers with flag hand-offs). " + " ".join(sys.argv[2:]),
           "; @launch grid=(256,1,1) block=(256,1,1) lds=163840",
           '.amdgcn_target "amdgcn-amd-amdhsa--gfx950"', ".text",
           ".globl %s" % k, ".p2align 8", ".type %s,@function" % k]
    out += [l if l.endswith(":") else "    " + l for l in ml]
    out += ['.section .rodata,"a"', ".p2align 6", """.amdhsa_kernel %s
  .amdhsa_next_free_vgpr 512
  .amdhsa_next_free_sgpr 102
  .amdhsa_accum_offset 256
  .amdhsa_group_segment_fixed_size 0
  .amdhsa_kernarg_size 80
  .amdhsa_user_sgpr_count 2
  .amdhsa_user_sgpr_kernarg_segment_ptr 1
  .amdhsa_system_sgpr_workgroup_id_x 1
  .amdhsa_float_denorm_mode_32 3
.end_amdhsa_kernel""" % k]
    if OPT["rt"]: out = [l.replace("s_memtime", "s_memrealtime") for l in out]
    open(sys.argv[1], "w").write("\n".join(out) + "\n")
    print("instructions: %d ; wait states added: %d" % (len(ml), n2))

main()
```

```python
import sys
from dsl import Asm, Slots, hazard_pass, check_async
import layout as LY

NAME = "interleave_layers__sliding_local_dilated__glu_gated_reglu__prompt"
OPT = dict(stamps=0, lite="-", hitw=0,
           q_up=8, q_every=42, q_hf=8, q_chk=6, q_h0=10, a_every=14, k_up=8, g_up=4, g_tail=0, g_la=7, g_xsp=11, g_stat=6,
           g_every0=36, g_xlead0=400, g_wmin0=600, g_wmax0=1000, g_slack0=40, g_wcost0=60, g_dcost0=30,
           g_xmax0=9000, g_xmax1=800, g_every1=46, g_xlead1=400, g_wmin1=560, g_wmax1=700, g_slack1=40, g_wcost1=60, g_dcost1=30,
           wq_late1="-", dn_pre=6, q0_up=6, q0_lead=20, q0_every=40,
           wg_att0="0", wg_h10="-", wg_wo0="1", wg_h20="-",
           wg_att1="2", wg_h11="-", wg_wo1="3", wg_h21="-",
           hreg=1, h_def=0, q0_fbl=3, wd_e=0, t_step=5, wg_q0="-", wg_q1="01", keep="2345", keepo="-", skipo=0, q_wbar=12, w_pre=20, w_up=8, w_quiet=12, d_sig0=16, d_sig1=16, d_up2=11, d_ramp=8, d_mid0=-1, d_mid1=-1, d_chk=8, d_chk3=8, d_f0=0, d_f1=0, d_min=0, g_c2=0, d_flat=20, g_epi=6, g_sig0=27, g_sig1=16, g_chk0=20, g_chk1=26, g_lat0=18, g_lat1=18, g_h0=4, g_h1=6,
           touch=0, h_st0="sssssss", h_st1="sspppp p".replace(" ", ""), x0f="sc1", wb=1, otouch=1, diagpad=0, diagat=0, diagwg=100, b_pos=1, q0_split=0, q0_n1=6, q0_hf=6, order="aoc", rt=0, lead=1, follow="xgucd", fa_ld=4, x_pre=3, sib=0, fa_ck=0, q0_x=4, rot=0, xdir=1, xd0=2, xd1=8, xd_lag=14, xd_pre=0, xd_per=7, t_set="ox", t_pos=16, fb_at="att", fb_k=7, fb_s=36, inb=0, inb_at=0, inb_ch=1, inb_gap=6, inb_wait=0, xd_gap=6, xd_h1=0, xd_h2=6, xd_h0=8, xd_st=8, xd_wbar=10, q_mp0=999, q_mp1=2, q_vp=10, g_mp0=2, g_mp1=999, g_vp=10, d_w64=0, q_st=0, g_grp=3, q_grp=3, g_bar1=1, g_pair0=7, outf="nt", c_early=0, b_spread=0, b_first=0, b_gap=3, pollf="nt", actf="sc1", wf="sc1", cpf=7, cp_g=60, cp_t=0, cp_d=150, cp_q=6, predrain=0, q0_b=0, q0_fbch=3, q0_fbs=9, q0_w=8, q0_tail=36, a_quiet=30, wd_q=10, wd_att=0, wd_h1=0, wd_wo=0, wd_h2=0)
for arg in sys.argv[2:]:
    k, v = arg.split("=")
    OPT[k] = v if isinstance(OPT[k], str) else int(v)

def vr(b, n): return "v[%d:%d]" % (b, b + n - 1)
def ar(b, n): return "a[%d:%d]" % (b, b + n - 1)
def magic(d): return (1 << 32) // d + 1
OOB = 0x40000000
GS0 = LY.GS0

WS, XIN, OUT = "s[8:11]", "s[12:15]", "s[16:19]"
sW, sJ, sR, sC, sG, sN, sNONCE, sSLOW = ("s%d" % i for i in range(20, 28))
sGB, sXLD, sXST, sOST, sXR, sHST, sSLD, sWQ, sWG, sWO, sWD, sLW = ("s%d" % i for i in range(28, 40))
sMA, sMB = "s[40:41]", "s[42:43]"
sFLG, sFLW, sHALO, sHFL, sTAB, sSST, sONE, sHDST, sHDFL, sP = ("s%d" % i for i in range(44, 54))
sMH = "s[54:55]"
sTA, sTW, sTD, sTS, sT0, sT1, sT2, sSPIN = ("s%d" % i for i in range(56, 64))
sHLD = ["s%d" % i for i in range(68, 72)]
sXW = ["s%d" % i for i in range(72, 75)]
sFBO, sB0, sB1, sB2, sB3 = "s75", "s76", "s77", "s78", "s79"
SRC_A, SRC_G, SRC_U, SRC_D = 80, 84, 88, 92
sLW2, sLW4, sWQ4, sWG4 = "s96", "s97", "s98", "s99"
sST = 100
LITE = (84, 86, 88, 90, 92, 94, 76, 78)
sHALO2 = sP
sNH, sCPO, sPC, sSLOW2 = "s12", "s13", "s[4:5]", "s[0:1]"
sOL, sHSTEP, sMC = "s64", "s65", "s[66:67]"
vL, vL16, vL16b, vL16c, vQ, vF1, vFL, vSTAMP = 0, 1, 2, 3, 4, 5, 6, 7
XRES = 8
PA, PB = 22, 23
X, ACC, F = 32, 160, 224
aROW, aST, aSQ, aSH, aSG, aHX, aHWR, aHWS, aHST, aHSS, aFB, aLINE, aTO, aTH = range(224, 238)
aBC, aBP, aBP0, aMC = 240, 244, 248, 252
L_HALO, L_RS, L_KV, L_TAB, L_FMT = 102400, 110592, 114688, 124928, 131072
L_SCR_DN = 114688
WO_SLOT = (8, 9, 0, 1)
DN_S = ((2, 3, 4, 9, 10, 11), (1, 5, 8, 12), (0, 6, 7, 13))
LV = LY.LV
if LV: DN_S = DN_S[::-1]
DN_ORD = sum(DN_S, ())
N1, N2 = len(DN_S[0]), len(DN_S[0]) + len(DN_S[1])
BIT = "s_bitcmp0_b32" if LV else "s_bitcmp1_b32"
NEG = "0xf149f2ca"

def ldsaddr(off):
    return "v%d offset:%d" % ((vL16, vL16b, vL16c)[off >> 16], off & 0xffff)

def isvm(g): return any(op[0] == "vm" for op in g)

class Main:
    def __init__(self):
        self.a = Asm()
        self.nstamp = 0
        self.cold = []
        self.nlite = 0
        self.wd = None
        self.ncall = 0

    def stamp(self, key=None):
        self.ncall += 1
        if OPT["diagpad"] and OPT["diagat"] == self.ncall:
            self.a.I("s_memrealtime s[%d:%d]" % (sST, sST + 1))
            self.a.ds_drain(force=True)
        if OPT["stamps"] != 1 or (key is not None and OPT["lite"] != key):
            return
        a = self.a
        a.I("s_memtime s[%d:%d]" % (sST, sST + 1))
        a.ds_drain(force=True)
        for k in range(self.nlite):
            a.I("v_writelane_b32 v%d, s%d, %d" % (vSTAMP, LITE[k], self.nstamp))
            self.nstamp += 1
        self.nlite = 0
        a.I("v_writelane_b32 v%d, s%d, %d" % (vSTAMP, sST, self.nstamp))
        self.nstamp += 1

    def lite(self, sl, key, slots):
        if OPT["lite"] != key:
            return
        for i in slots[:8]:
            sl.after(i, ("i", "s_memtime s[%d:%d]" % (LITE[self.nlite], LITE[self.nlite] + 1)))
            self.nlite += 1

    def report(self, name, r):
        print("  %s: cycles over budget %d, ops left after the loop %d" % ((name,) + r))

    def getc(self, v, acc): return "v_accvgpr_read_b32 v%d, a%d" % (v, acc)
    def flat(self, groups): return [op for g in groups for op in g]
    def digits(self, key): return tuple(int(c, 16) for c in str(OPT[key]) if c != "-")
    def wgs(self, where, ps): return [g for i in self.digits("wg_%s%d" % (where, ps)) for g in self.wg_chunk(i, ps)]
    def wg_early(self, ps): return sum((self.digits("wg_%s%d" % (w, ps)) for w in ("q", "att", "h1", "wo", "h2")), ())
    def wq_late(self, ps): return tuple(range(7)) if ps == 0 else self.digits("wq_late1")

    def srd(self, base, lo, hi, nbytes):
        self.a.I("s_mov_b32 s%d, %s\ns_and_b32 s%d, %s, 0xffff\ns_mov_b32 s%d, %s\ns_mov_b32 s%d, 0x20000" %
                 (base, lo, base + 1, hi, base + 2, nbytes, base + 3))

    def lin(self, dst, base, terms):
        first = True
        for reg, mul in terms:
            self.a.I("s_mul_i32 %s, %s, %d\ns_add_u32 %s, %s, %s" % (sT2, reg, mul, dst, base if first else dst, sT2))
            first = False

    def sdivmod(self, q, r, x, d):
        self.a.I("s_mul_hi_u32 %s, %s, 0x%x\ns_mul_i32 %s, %s, %d\ns_sub_u32 %s, %s, %s" % (q, x, magic(d), sT2, q, d, r, x, sT2))

    def hi_lo(self, dst, src, t):
        return ["v_cvt_pk_bf16_f32 v%d, v%d, v%d" % (dst, src, src), "v_lshlrev_b32 v%d, 16, v%d" % (t, dst),
                "v_sub_f32 v%d, v%d, v%d" % (t, src, t), "v_cvt_pk_bf16_f32 v%d, v%d, v%d" % (dst, src, t)]

    def scc_live(self, body, n):
        for t in body[n:]:
            mn = t.split()[0]
            if mn.startswith(("s_cselect", "s_subb", "s_addc", "s_cbranch_scc")) or t.endswith(":"): return True
            if mn.startswith(("s_cmp", "s_bitcmp", "s_add_", "s_sub_", "s_and_", "s_or_", "s_xor_", "s_lshl", "s_lshr", "s_min", "s_max", "s_bfe")): return False
        return False

    def weave(self, body, groups, first, every):
        k = 0
        for n_, op in enumerate(body):
            if n_ >= first and (n_ - first) % every == 0:
                while k < len(groups):
                    g = groups[k]; k += 1
                    self.a.run_all(g)
                    if isvm(g): break
            self.a.run(op)
        return groups[k:]

    def signal(self, h, wait=None, halo_pass=None, defer=False):
        a = self.a
        slow, done = a.label("slow"), a.label("sig")
        a.I("s_add_u32 %s, %s, %d\nv_mov_b32 v30, %s" % (sNH, sNONCE, h, sNH))
        if halo_pass is not None:
            h1, b1, h2, b2 = a.label("halo"), a.label("hback"), a.label("halo"), a.label("hback")
            n = a.vm_n - max(a.vm_tag[wait], a.vm_done)
            nx = 0 if halo_pass == 0 and OPT["xdir"] else 2
            a.I("s_cmp_lg_u32 %s, 0x%x\ns_cbranch_scc1 %s" % (sHDST, OOB, h1))
            st = "\n".join("buffer_store_dwordx4 %s, v24, %s, %s offen offset:%d sc1" % (vr(XRES + 4 * e, 4), WS, sTS, e * 512) for e in range(nx))
            self.cold.append("%s:\n%s\n%s\ns_add_u32 %s, %s, %d\n%s\nbuffer_store_dword v26, v25, %s, %s offen sc1\ns_waitcnt vmcnt(%d)\ns_branch %s" %
                             (h1, self.getc(24, aHST), self.getc(25, aHSS), sTS, sHDST, LY.HX[halo_pass], st, WS, sTS, n + 1 + nx, b1))
            a.vm_wait(wait)
            a.I("%s:\ns_cmp_lg_u32 %s, 0" % (b1, sSLOW))
        else:
            a.I("s_cmp_lg_u32 %s, 0" % sSLOW)
            if wait is None: a.vm_drain()
            else: a.vm_wait(wait)
        a.I("s_cbranch_scc1 %s" % slow)
        seq = a.vm("buffer_store_dword v30, v%d, %s, %s offen" % (vF1, WS, sFLW))
        a.I("%s:" % done)
        self.cold.append("%s:\nbuffer_wbl2 sc1\ns_waitcnt vmcnt(0)\nbuffer_store_dword v30, v%d, %s, %s offen sc1\ns_branch %s" % (slow, vF1, WS, sFLW, done))
        self.sent = h
        def halo_flag():
            self.cold.append("%s:\ns_add_u32 %s, %s, %d\nv_mov_b32 v24, %s\n%s\ns_waitcnt vmcnt(%d)\nbuffer_store_dword v24, v25, %s, %s offen sc1\ns_branch %s" %
                             (h2, sTS, sHDFL, halo_pass * 16384, sNONCE, self.getc(25, aLINE), a.vm_n - seq + 1, WS, sTS, b2))
            a.I("s_cmp_lg_u32 %s, 0x%x\ns_cbranch_scc1 %s\n%s:" % (sHDST, OOB, h2, b2))
        if halo_pass is not None:
            if defer: self.halo_flag = halo_flag
            else: halo_flag()

    def poll(self, h, mask, also=None, setup=None):
        a = self.a
        a.forget()
        assert self.sent == h
        if setup: setup()
        def loop(name, fl):
            ld = "buffer_load_dword v%d, v%d, %s, %s offen %s" % (PA, vFL, WS, sFLG, fl)
            ts = "v_subrev_u32 v%d, %s, v%d\nv_cmp_lt_u32 vcc, 15, v%d\ns_and_b64 vcc, vcc, %s" % (PA, sNH, PA, PA, mask)
            if also is not None:
                ld += "\nbuffer_load_dword v%d, v%d, %s, 0 offen sc1" % (PB, also, WS)
                ts = "v_cmp_ne_u32 s[60:61], %s, v%d\n%s\ns_or_b64 vcc, vcc, s[60:61]" % (sNONCE, PB, ts)
            return "%s:\n%s\ns_sub_u32 %s, %s, 1\ns_cbranch_scc1 L_main_done\ns_waitcnt vmcnt(0)\n%s\ns_cbranch_scc1 %s" % (name, ld, sSPIN, sSPIN, ts, name)
        far, ok = a.label("far"), a.label("ok")
        a.I("s_mov_b32 %s, 0x40000\ns_cmp_lg_u32 %s, 0\ns_cbranch_scc1 %s" % (sSPIN, sSLOW, far))
        a.I(loop(a.label("poll"), OPT["pollf"]) + "\n%s:" % ok)
        a.vm_done = a.vm_n
        self.cold.append(loop(far, "sc1") + "\nbuffer_inv sc1\ns_waitcnt vmcnt(0)\ns_branch %s" % ok)

    def signal_ops(self, h, wait, reg):
        a = self.a
        slow, done = a.label("slow"), a.label("sig")
        self.cold.append("%s:\nbuffer_wbl2 sc1\ns_waitcnt vmcnt(0)\nbuffer_store_dword v%d, v%d, %s, %s offen sc1\ns_branch %s" % (slow, reg, vF1, WS, sFLW, done))
        return [("i", "s_add_u32 %s, %s, %d" % (sNH, sNONCE, h)), ("i", "v_mov_b32 v%d, %s" % (reg, sNH)), ("wvm", wait),
                ("vm", "s_cmp_lg_u32 %s, 0\ns_cbranch_scc1 %s\nbuffer_store_dword v%d, v%d, %s, %s offen\n%s:" % (sSLOW, slow, reg, vF1, WS, sFLW, done))]

    def check_ops(self, h, mask, reg, tag):
        a = self.a
        spin, back = a.label("cspin"), a.label("cback")
        ld = lambda fl: "buffer_load_dword v%d, v%d, %s, %s offen %s" % (reg, vFL, WS, sFLG, fl)
        t = ["v_subrev_u32 v%d, s3, v%d" % (reg, reg), "v_cmp_lt_u32 vcc, 15, v%d" % reg, "s_and_b64 vcc, vcc, %s" % mask]
        loop = lambda name, fl: "%s:\n%s\ns_sub_u32 %s, %s, 1\ns_cbranch_scc1 L_main_done\ns_waitcnt vmcnt(0)\n%s\ns_cbranch_scc1 %s" % (name, ld(fl), sSPIN, sSPIN, "\n".join(t), name)
        self.cold.append("%s:\ns_mov_b32 %s, 0x40000\ns_cmp_lg_u32 %s, 0\ns_cbranch_scc1 %s_f\n%s\ns_branch %s\n%s\nbuffer_inv sc1\ns_waitcnt vmcnt(0)\ns_branch %s" %
                         (spin, sSPIN, sSLOW, spin, loop(spin + "_n", OPT["pollf"]), back, loop(spin + "_f", "sc1"), back))
        return [("vm", ld(OPT["pollf"]), tag)], [("i", "s_add_u32 s3, %s, %d" % (sNONCE, h)), ("wvm", tag), ("i", t[0]), ("i", t[1]),
                                                ("atom", "%s\ns_or_b64 vcc, vcc, %s\ns_cbranch_scc1 %s\n%s:" % (t[2], sSLOW2, spin, back))]

    def late_check(self, load, reg, mask, tag):
        a = self.a
        spin, back = a.label("lspin"), a.label("lback")
        cmp_, and_ = "v_cmp_ne_u32 vcc, %s, v%d" % (sNONCE, reg), "s_and_b64 vcc, vcc, %s" % mask
        self.cold.append("%s:\ns_mov_b32 %s, 0x40000\n%s_l:\n%s\ns_sub_u32 %s, %s, 1\ns_cbranch_scc1 L_main_done\ns_waitcnt vmcnt(0)\n%s\n%s\ns_cbranch_scc1 %s_l\ns_branch %s"
                         % (spin, sSPIN, spin, load, sSPIN, sSPIN, cmp_, and_, spin, back))
        return [("vm", load, tag)], [("wvm", tag), ("i", cmp_), ("atom", and_ + "\ns_cbranch_scc1 %s\n%s:" % (spin, back))]

    def dma_chunk(self, sbase, goff, loff, n, tag, sc=""):
        sw = {1: sLW, 2: sLW2, 4: sLW4}[n]
        setup = [("set", sTW, "s_add_u32 %s, %s, %d" % (sTW, sbase, goff)), ("set", "m0", "s_add_u32 m0, %s, %d" % (sw, loff))]
        return [setup + [("vm", "buffer_load_dwordx4 v%d, %s, %s offen offset:%d%s lds" % (vL16, WS, sTW, k * 1024, sc), tag if k == n - 1 else None)]
                for k in range(n)]

    def wq_chunk(self, i): return self.dma_chunk(sWQ4 if i < 6 else sWQ, i * 16384, i * 16384, 4 if i < 6 else 1, ("wq", i), " " + OPT["wf"].strip("-"))
    def kept(self): return self.digits("keep")
    def ring(self, ps):
        return [k for k in (2, 3, 4, 5, 6, 7, 8, 9, 0, 1) if ps or k not in self.kept() + self.digits("keepo")]
    def wg_slot(self, i, ps): return self.ring(ps)[i % len(self.ring(ps))]
    def wo_chunk(self, i): return self.dma_chunk(sWO, i * 16384, WO_SLOT[i] * 16384, 4, ("wo", i), " " + OPT["wf"].strip("-"))
    def wg_chunk(self, i, ps): return self.dma_chunk(sWG4 if i < 14 else sWG, i * 16384, self.wg_slot(i, ps) * 16384, 4 if i < 14 else 2, ("wg", i), " " + OPT["wf"].strip("-"))

    def reg_loads(self, dsts, bases, offs, stmp, vaddr, tagbase):
        ops, cur = [], None
        for k, (d, sb, off) in enumerate(zip(dsts, bases, offs)):
            if cur is None or cur[0] != sb or not (0 <= off - cur[1] < 4096):
                cur = (sb, off)
            ops.append([("set", stmp, "s_add_u32 %s, %s, %d" % (stmp, sb, cur[1])),
                        ("vm", "buffer_load_dwordx4 %s, v%d, %s, %s offen offset:%d %s" % (d, vaddr, WS, stmp, off - cur[1], OPT["wf" if tagbase[0] == "w" else "actf"].strip("-")), (tagbase, k))])
        return ops

    def touch(self, acc, sbase, off, tmp):
        return [[("i", self.getc(tmp, acc) + "\ns_add_u32 %s, %s, %d" % (sT1, sbase, off)),
                 ("vm", "buffer_load_dword a255, v%d, %s, %s offen sc1" % (tmp, WS, sT1))]]

    def code_touch(self, label, tmp, n=1):
        if not OPT["cpf"]: return []
        return [[("i", "s_add_u32 s15, %s, %s-L_pc+%d" % (sCPO, label, 16384 * k)), ("i", "s_min_u32 s15, s15, L_code_end-L_pc-4"),
                 ("i", "v_mov_b32 v%d, s15" % tmp), ("vm", "global_load_dword a255, v%d, %s" % (tmp, sPC))] for k in range(n)]

    def ln_from_sums(self, s1, s2, t):
        return [("i", x) for x in (
            "v_mul_f32 v%d, 0x3b000000, v%d" % (s1, s1),
            "v_mul_f32 v%d, v%d, v%d" % (t, s1, s1),
            "v_mul_f32 v%d, 0x3b000000, v%d" % (s2, s2),
            "v_sub_f32 v%d, v%d, v%d" % (s2, s2, t),
            "v_max_f32 v%d, 0, v%d" % (s2, s2),
            "v_cvt_pk_bf16_f32 v%d, v%d, v%d" % (s2, s2, s2),
            "v_lshlrev_b32 v%d, 16, v%d" % (s2, s2),
            "v_add_f32 v%d, 0x3727c5ac, v%d" % (s2, s2),
            "v_cvt_pk_bf16_f32 v%d, v%d, v%d" % (s2, s2, s2),
            "v_lshlrev_b32 v%d, 16, v%d" % (s2, s2),
            "v_sqrt_f32 v%d, v%d" % (s2, s2),
            "v_cvt_pk_bf16_f32 v%d, v%d, v%d" % (s2, s2, s2),
            "v_lshlrev_b32 v%d, 16, v%d" % (s2, s2),
            "v_rcp_f32 v%d, v%d" % (s2, s2))]

    def publish(self, xi):
        a = self.a
        S1, S2, S3, S4, AD = 26, 27, 28, 29, 25
        a.I("s_add_u32 %s, %s, %d" % (sTS, sXST, LY.XB[xi]))
        for e in range(0 if xi == 0 and OPT["xdir"] else 2):
            a.vm("buffer_store_dwordx4 %s, v%d, %s, %s offen offset:%d%s" % (vr(XRES + 4 * e, 4), vQ, WS, sTS, e * 2048, " sc1" if xi == 1 and "x" not in OPT["t_set"] else ""))
        for k in range(4):
            for d, p, o in ((S1, XRES + k, sONE), (S2, XRES + k, None), (S3, XRES + 4 + k, sONE), (S4, XRES + 4 + k, None)):
                a.I("v_dot2_f32_bf16 v%d, v%d, %s, %s" % (d, p, o or "v%d" % p, "v%d" % d if k else "0"))
        a.I(self.getc(AD, aST) + "\ns_add_u32 %s, %s, %d" % (sTS, sSST, LY.SB[xi]))
        a.I("v_add_f32 v%d, v%d, v%d\nv_add_f32 v%d, v%d, v%d" % (S1, S1, S3, S2, S2, S4))
        a.I("v_permlane32_swap_b32 v%d, v%d\nv_add_f32 v%d, v%d, v%d\nv_mov_b32 v%d, v%d" % (S1, S2, S1, S1, S2, S2, S1))
        a.I("v_permlane16_swap_b32 v%d, v%d\nv_add_f32 v%d, v%d, v%d" % (S1, S2, S1, S1, S2))
        a.vm("buffer_store_dword v%d, v%d, %s, %s offen" % (S1, AD, WS, sTS), "pub")

    def startup(self):
        a = self.a
        lin = self.lin
        t8, kc, tok, g, hh, t32, u0, u1, rr, cc, q16, vA, vR, vB, vD, TA0, TA1, TD, TG, CSW, XA, XV, FAV, LINE = range(F, F + 24)
        ONES = F + 24
        def put(acc): a.I("v_accvgpr_write_b32 a%d, v%d" % (acc, u1))
        a.I("%s_kernel:" % NAME)
        a.I("s_cmp_ge_u32 s2, 256\ns_cbranch_scc1 L_main_done")
        a.I("s_load_dwordx16 s[64:79], s[0:1], 0\ns_load_dwordx2 s[4:5], s[0:1], 72")
        if OPT["stamps"] or OPT["diagpad"]:
            a.I("s_memrealtime s[98:99]")
        if OPT["stamps"]:
            a.I("s_memtime s[%d:%d]" % (sST, sST + 1))
        a.I("s_getpc_b64 s[56:57]\nL_pc:\ns_lshr_b32 s58, s2, 3\ns_lshl_b32 s58, s58, 11")
        a.I("v_lshrrev_b32 v16, 6, v0\nv_lshrrev_b32 v17, 4, v0\nv_lshlrev_b32 v17, 7, v17\nv_add_u32 v17, s58, v17")
        a.I("v_min_u32 v17, L_code_end-L_pc-4, v17\nv_and_b32 v0, 63, v0\nv_readfirstlane_b32 %s, v16" % sW)
        a.vm("global_load_dword a255, v17, s[56:57]")
        a.I("s_and_b32 %s, s2, 7\ns_bfe_u32 %s, s2, 0x40003\ns_lshr_b32 %s, s2, 7" % (sN, sJ, sP))
        a.I("s_lshr_b32 %s, %s, 3\ns_and_b32 %s, %s, 7" % (sR, sJ, sC, sJ))
        a.I("v_and_b32 v%d, 7, v0\nv_lshrrev_b32 v%d, 3, v0\nv_and_b32 v%d, 15, v0\nv_lshrrev_b32 v%d, 4, v0" % (t8, kc, tok, g))
        cuA, kkA, stA, cuG, kkG, sSG, sSD, kkD = "s28", "s29", "s30", "s32", "s33", "s6", "s7", "s36"
        sU, sV = "s34", "s35"
        if OPT["rot"]:
            a.I("s_add_u32 %s, %s, %s\ns_and_b32 %s, %s, 7\ns_andn2_b32 %s, s2, 7\ns_or_b32 %s, %s, %s" % (sV, sN, sJ, sV, sV, sU, sU, sU, sV))
        else:
            sU, sV = "s2", sN
        self.sdivmod(kkA, cuA, sU, 24)
        a.I("s_sub_u32 %s, s2, 192\ns_lshr_b32 %s, %s, 3" % (sT0, sT0, sT0))
        a.I("s_cmp_lt_u32 s2, 192\ns_cselect_b32 %s, %s, %s\ns_cselect_b32 %s, %s, %s\ns_cselect_b32 %s, 3, 1\ns_lshl_b32 %s, %s, 10" %
            (cuA, cuA, sV, kkA, kkA, sT0, stA, stA, stA))
        a.I("v_lshlrev_b32 v%d, 4, v%d\nv_mad_u32_u24 v%d, v%d, %s, v%d" % (u0, t8, vA, kc, stA, u0))
        a.I("s_lshl_b32 %s, %s, 2\ns_add_u32 %s, %s, %s\ns_lshl_b32 %s, %s, 4\ns_mul_i32 %s, %s, %s" % (sT0, kkA, sT0, sT0, sW, sT0, sT0, sT0, sT0, stA))
        a.I("s_lshl_b32 %s, %s, 7\ns_add_u32 %s, %s, %s\ns_lshl_b32 %s, %s, 3\ns_add_u32 %s, %s, %s\ns_sub_u32 %s, %s, 1024" %
            (sT1, cuA, sT0, sT0, sT1, sT1, stA, sT1, sT1, sT0, sT1, sT1))
        a.I("s_lshl_b32 %s, %s, 11\ns_add_u32 m0, %s, %d" % (sLW2, sW, sLW2, L_FMT))
        a.I("s_lshl_b32 s31, %s, 1\ns_add_u32 s31, s31, %s\ns_lshl_b32 s31, s31, 2\ns_add_u32 s31, s31, %s\ns_lshl_b32 s31, s31, 5" % (sN, sR, sW))
        a.I("s_add_u32 s31, s31, %s\ns_lshl_b32 s31, s31, 3\ns_add_u32 s31, s31, %s\ns_lshl_b32 s31, s31, 7" % (sP, sC))
        a.I("v_and_b32 v%d, 14, v0\nv_lshlrev_b32 v%d, 11, v%d\nv_lshl_add_u32 v%d, v%d, 4, v%d\nv_and_b32 v%d, 1, v0\nv_lshlrev_b32 v%d, 6, v%d\nv_add3_u32 v%d, s31, v%d, v%d" %
            (vR, vR, vR, vR, g, vR, u1, u1, u1, vR, vR, u1))
        a.I("s_waitcnt lgkmcnt(0)")
        a.I("s_load_dword %s, s[4:5], %d" % (sNONCE, LY.EPOCH))
        a.I("s_cmp_lt_u32 s2, 192\ns_cselect_b32 s%d, s66, s68\ns_cselect_b32 s%d, s67, s69\ns_and_b32 s%d, s%d, 0xffff" % (SRC_A, SRC_A + 1, SRC_A + 1, SRC_A + 1))
        a.I("s_lshl_b32 s%d, %s, 9\ns_mov_b32 s%d, 0x20000" % (SRC_A + 2, stA, SRC_A + 3))
        sa = "s[%d:%d]" % (SRC_A, SRC_A + 3)
        a.vm("buffer_load_dwordx4 v%d, %s, %s offen lds" % (vA, sa, sT0))
        a.vm("buffer_load_dwordx4 v%d, %s, %s offen offset:1024 lds" % (vA, sa, sT1), "fa")
        self.srd(12, "s64", "s65", 2048 * 1024)
        a.vm("buffer_load_dwordx4 %s, v%d, %s, 0 offen" % (vr(ACC + 56, 4), vR, XIN))
        a.vm("buffer_load_dwordx4 %s, v%d, %s, 0 offen offset:2048" % (vr(ACC + 60, 4), vR, XIN), "x")
        if OPT["stamps"]:
            a.I("v_mov_b32 v%d, 0\nv_writelane_b32 v%d, s98, 62\nv_writelane_b32 v%d, s%d, 0" % (vSTAMP, vSTAMP, vSTAMP, sST))
            self.nstamp = 1
        if OPT["diagpad"]: a.I("s_mov_b32 s14, s98")
        self.stamp("p")
        self.srd(8, "s4", "s5", LY.WS_USED)
        a.I("s_lshl_b32 %s, %s, 1\ns_add_u32 %s, %s, %s" % (sG, sN, sG, sG, sP))
        lin(sFLG, str(LY.FL), [(sG, 256)])
        lin(sFLW, sFLG, [(sJ, 16), (sW, 4)])
        lin(sTS, str(LY.ACT), [(sG, LY.ACT_STRIDE), (sR, 4096), (sW, 1024), (sC, 128)])
        a.I("s_and_b32 %s, %s, 1" % (sT0, sC))
        lin(sSST, sTS, [(sT0, -120)])
        a.I("s_add_u32 %s, %s, %d\nv_mov_b32 v%d, %s\nv_mov_b32 v%d, %s\nv_cmp_gt_u32 vcc, 32, v0\nv_cndmask_b32 v%d, v%d, v%d, vcc" %
            (sTS, sTS, LY.SB[0], u1, sTS, XA, sFLW, XA, u1, XA))
        a.vm("buffer_load_dword a255, v%d, %s, 0 offen sc1" % (XA, WS))
        self.sdivmod(kkG, cuG, sU, 28)
        a.I("v_mul_u32_u24 v%d, 3584, v%d\nv_add_u32 v%d, v%d, v%d\nv_lshl_add_u32 v%d, v%d, 10, v%d" % (vB, kc, vB, vB, u0, vD, kc, u0))
        a.I("s_lshr_b32 %s, s2, 3" % kkD)
        lin(sSG, "0", [(kkG, 64 * 3584), (sW, 16 * 3584), (cuG, 128)])
        lin(sSD, "0", [(kkD, 65536), (sW, 16384), (sV, 128)])
        xd, swaps = [], []
        if OPT["xdir"]:
            vX, sXD, sHD, sXL = 31 - 10, "s98", "s14", "s99"
            self.srd(SRC_A, "s64", "s65", 2048 * 1024)
            a.I("v_xor_b32 v%d, v%d, v%d\nv_lshlrev_b32 v%d, 4, v%d\nv_lshl_add_u32 v%d, v%d, 11, v%d" % (vX, t8, kc, vX, vX, vX, kc, vX))
            lin(sHD, "0", [(sN, 262144), (sP, 1024)])
            lin(sXD, sHD, [(sW, 65536)])
            lin(sHD, sHD, [(sW, 256)])
            a.I("s_sub_u32 %s, %s, 16384\ns_cmp_eq_u32 %s, 0\ns_cselect_b32 %s, 0x%x, %s\ns_lshl_b32 %s, %s, 15" % (sHD, sHD, sN, sHD, OOB, sHD, sXL, sW))
            a.I("v_xor_b32 v16, v%d, v%d\nv_lshlrev_b32 v16, 4, v16\nv_lshl_add_u32 v%d, v%d, 7, v16\nv_add_u32 v%d, %d, v%d" % (t8, g, u1, t8, u1, L_HALO, u1)); put(aSH)
            a.I("v_lshl_add_u32 v16, v%d, 7, v16\nv_add_u32 v16, %s, v16\nv_xor_b32 v17, 64, v16" % (tok, sXL))
            for m in range(8):
                for k in range(4):
                    xd.append([("i", "s_add_u32 m0, %s, %d\ns_add_u32 s15, %s, %d" % (sXL, m * 4096, sXD, k * 16384 + m * 128 - k * 1024)),
                               ("vm", "buffer_load_dwordx4 v%d, %s, s15 offen offset:%d lds" % (vX, sa, k * 1024), ("xd", m, k))])
                swaps.append(("wvm", ("xd", m, 3)))
                swaps += [("ds", "ds_read_b128 %s, v%d offset:%d" % (vr(X + 8 * (2 * m + h_) + 4 * b_, 4), 16 + h_, m * 4096 + b_ * 2048)) for b_ in range(2) for h_ in range(2)]
            swaps.append(("dsdrain",))
            self.halo0 = [[("set", "m0", "s_add_u32 m0, %s, %d" % (sLW2, L_HALO + 1024 * k)), ("i", "s_add_u32 s15, %s, %d" % (sHD, 128 * k)),
                           ("vm", "buffer_load_dwordx4 v%d, %s, s15 offen lds" % (vX, sa), "halo" if k else None)] for k in range(2)]
            a.run_all(self.flat(xd[:OPT["xd0"]])); xd = xd[OPT["xd0"]:]
        self.srd(SRC_G, "s72", "s73", 512 * 3584)
        self.srd(SRC_U, "s74", "s75", 512 * 3584)
        self.srd(SRC_D, "s76", "s77", 1792 * 1024)
        def b_loads():
            for srdn, so, va, stride, lo in ((SRC_G, sSG, vB, 3584, 8192), (SRC_U, sSG, vB, 3584, 16384), (SRC_D, sSD, vD, 1024, 24576)):
                a.I("s_add_u32 m0, %s, %d\ns_add_u32 s15, %s, %d" % (sLW2, L_FMT + lo, so, 8 * stride - 1024))
                a.vm("buffer_load_dwordx4 v%d, s[%d:%d], %s offen lds" % (va, srdn, srdn + 3, so))
                a.vm("buffer_load_dwordx4 v%d, s[%d:%d], %s offen offset:1024 lds" % (va, srdn, srdn + 3, "s15"), ("fb", lo))
        if OPT["b_pos"] == 0: b_loads()
        self.srd(16, "s78", "s79", 2048 * 1024)
        a.I("v_accvgpr_write_b32 a%d, v%d\nv_lshlrev_b32 v%d, 4, v0" % (aROW, vR, vL16))
        dA, dA2, dCS = "s3", "s0", "s1"
        a.I("s_and_b32 %s, %s, 7\ns_lshl_b32 %s, %s, 1\ns_lshr_b32 %s, %s, 1\ns_add_u32 %s, %s, %s" % (sT0, cuA, sT0, sT0, sT1, sW, sT0, sT0, sT1))
        a.I("s_mul_i32 %s, %s, %d\ns_add_u32 %s, %s, %d" % (sT0, sT0, LY.WQ_STRIDE, sT0, sT0, LY.WQ))
        a.I("s_lshr_b32 %s, %s, 3\ns_lshl_b32 %s, %s, 1\ns_and_b32 %s, %s, 1\ns_add_u32 %s, %s, %s" % (sT1, cuA, sT1, sT1, sT2, sW, sT1, sT1, sT2))
        lin(dA, sT0, [(kkA, 12288), (sT1, 1024)])
        lin(dCS, sT0, [(kkA, 64), (sT1, 512)])
        a.I("s_add_u32 %s, %s, 98304" % (dCS, dCS))
        lin(sT0, str(LY.WO), [(cuA, LY.WO_STRIDE), (kkA, 8192), (sW, 1024)])
        a.I("s_cmp_lt_u32 s2, 192\ns_cselect_b32 %s, %s, %s\ns_cselect_b32 %s, %s, 0x%x\ns_cselect_b32 %s, 6, 4\ns_cselect_b64 vcc, -1, 0" %
            (dA, dA, sT0, dCS, dCS, OOB, dA2))
        a.I("s_lshl_b32 %s, %s, 10\ns_add_u32 %s, %s, %s" % (dA2, dA2, dA2, dA2, dA))
        a.I("v_bfe_u32 v%d, v0, 2, 2\nv_and_b32 v%d, 3, v0\nv_bfe_u32 v%d, v0, 4, 1\nv_lshrrev_b32 v%d, 5, v0\nv_and_b32 v%d, 31, v0" % (rr, cc, q16, hh, t32))
        a.I("v_lshl_add_u32 v%d, v%d, 3, v%d\nv_lshlrev_b32 v%d, 7, v%d\nv_lshl_add_u32 v%d, v%d, 2, v%d\nv_lshlrev_b32 v%d, 7, v%d" % (u0, g, rr, u0, u0, u1, g, rr, u1, u1))
        a.I("s_lshr_b32 %s, %s, 1\ns_lshl_b32 %s, %s, 6\ns_and_b32 %s, %s, 1\ns_lshl_b32 %s, %s, 3\ns_add_u32 %s, %s, %s\ns_add_u32 %s, %s, %d" %
            (sT0, sW, sT0, sT0, sT1, sW, sT1, sT1, sT0, sT0, sT1, sT0, sT0, L_FMT))
        a.I("v_lshl_add_u32 v%d, v%d, 4, %s\nv_add_u32 v%d, v%d, v%d\nv_add_u32 v%d, v%d, v%d" % (TA1, cc, sT0, TD, TA1, u0, u1, u1, TA1))
        a.I("s_lshl_b32 %s, %s, 5\ns_add_u32 %s, %s, %d\nv_lshl_add_u32 v%d, v%d, 3, %s\nv_add_u32 v%d, v%d, v%d" % (sT0, sW, sT0, sT0, L_FMT, TA0, cc, sT0, u0, u0, TA0))
        a.I("v_mov_b32 v%d, v%d" % (TG, u0))
        a.I("v_cndmask_b32 v%d, v%d, v%d, vcc\nv_add_u32 v%d, 512, v%d\nv_add_u32 v%d, 2048, v%d\nv_cndmask_b32 v%d, v%d, v%d, vcc" % (TA0, u1, u0, u0, u0, u1, u1, TA1, u1, u0))
        for k in range(4): a.I("v_mov_b32 v%d, 0x3f803f80" % (ONES + k))
        a.I("v_lshlrev_b32 v%d, 2, v%d\nv_lshl_add_u32 v%d, v%d, 28, v%d" % (CSW, tok, CSW, g, CSW))
        a.I("s_mov_b32 %s, 0\ns_mov_b32 %s, 0x3f803f80" % (sSLOW, sONE))
        a.I("v_cmp_ne_u32 vcc, 0, v0\nv_mov_b32 v%d, 0x%x\nv_lshlrev_b32 v%d, 2, v0\nv_cndmask_b32 v%d, 0, v%d, vcc" % (vF1, OOB, vFL, vF1, vF1))
        a.I("s_lshl_b32 %s, %s, %d\ns_add_u32 %s, %s, 0x%x" % (sGB, sG, LY.ACT_SHIFT, sGB, sGB, LY.ACT))
        lin(sXLD, sGB, [(sW, 32768)])
        a.I("s_lshr_b32 %s, %s, 1\ns_and_b32 %s, %s, 1" % (sT0, sW, sT1, sW))
        lin(sXST, sGB, [(sR, 65536), (sC, 4096), (sT0, 32768), (sT1, 256)])
        lin(sOST, sXLD, [(sJ, 2048)])
        lin(sT0, str(LY.XF), [(sG, 2048)])
        a.I("v_lshrrev_b32 v%d, 2, v0\nv_lshl_add_u32 v%d, v%d, 7, %s\nv_lshl_add_u32 v%d, v%d, 30, v%d\nv_accvgpr_write_b32 a%d, v%d" % (XA, XA, XA, sT0, LINE, hh, vFL, aLINE, LINE))
        a.I("v_lshlrev_b32 v%d, 4, v%d\nv_lshl_add_u32 v%d, v%d, 9, v%d" % (u0, tok, vQ, g, u0))
        a.I("v_lshlrev_b32 v%d, 4, v%d\nv_lshl_add_u32 v%d, v%d, 2, v%d\nv_lshl_add_u32 v%d, v%d, 30, v%d" % (u1, tok, u1, hh, u1, u1, q16, u1)); put(aST)
        def die_id():
            lin(sT0, str(LY.XF), [(sG, 2048), (sJ, 128)])
            a.I("s_cmp_eq_u32 %s, 0\ns_cselect_b32 %s, %s, 0x%x\ns_getreg_b32 %s, hwreg(HW_REG_XCC_ID, 0, 4)" % (sW, sT0, sT0, OOB, sT1))
            a.I("s_waitcnt lgkmcnt(0)\ns_add_u32 %s, %s, 0x9e3779b1\ns_xor_b32 %s, %s, %s\nv_mov_b32 v%d, %s" % (sNONCE, sNONCE, sT1, sT1, sNONCE, XV, sT1))
            a.vm("buffer_store_dword v%d, v%d, %s, %s offen sc1" % (XV, LINE, WS, sT0))
            self.stamp("p")
        if OPT["c_early"] < 2: die_id()
        def constants():
            lin(sB3, str(LY.WD), [(sV, LY.WD_STRIDE), (kkD, 8192), (sW, 1024)])
            a.I("s_lshl_b32 %s, %s, 2\ns_add_u32 %s, %s, %s" % (cuG, cuG, cuG, cuG, sW))
            self.sdivmod(sT0, sT1, cuG, 7)
            lin(sB2, str(LY.WG), [(sT0, LY.WG_STRIDE)])
            a.I("s_sub_u32 %s, 6, %s\n%s %s, 0\ns_cselect_b32 %s, %s, %s" % (sT2, sT1, BIT, sT0, sT1, sT1, sT2))
            S0, TL = GS0, 16 - GS0
            lin(sB0, sB2, [(kkG, 28 * 1024), (sT1, 2048)])
            lin(sB2, sB2, [(sT1, (2 * TL + 1) * 1024)])
            lin(sT0, sB2, [(kkG, 4096)])
            a.I("s_add_u32 %s, %s, %d\ns_cmp_lt_u32 %s, %d\ns_cselect_b32 %s, %s, %s\ns_cselect_b32 %s, 14, 2\ns_lshl_b32 %s, %s, 10" %
                (sT0, sT0, 12 * S0 * 1024, kkG, S0 // 2, sB0, sB0, sT0, sB1, sB1, sB1))
            lin(sB2, sB2, [(kkG, 64)])
            a.I("s_add_u32 %s, %s, %d" % (sB2, sB2, (14 * S0 + 2 * TL) * 1024))
            a.I("s_cmp_lt_u32 s2, 224")
            for r_ in (sB0, sB2, sB3): a.I("s_cselect_b32 %s, %s, 0x%x" % (r_, r_, OOB))
            lin(sHFL, str(LY.HFL), [(sG, 1024)])
            lin(sHDFL, sHFL, [(sC, 128)])
            lin(sFBO, str(LY.FA), [(sU, 128)])
            a.I("s_add_u32 %s, %s, 2048\ns_add_u32 %s, %s, 0x%x" % (sHDFL, sHDFL, sHDST, sGB, 2 * LY.ACT_STRIDE))
            a.I("s_cmp_eq_u32 %s, 0\ns_cselect_b32 %s, %s, 0x%x" % (sW, sFBO, sFBO, OOB))
            a.I("s_lshl_b32 %s, %s, 2\ns_add_u32 %s, %s, %s\ns_cmp_eq_u32 %s, 7\ns_cselect_b32 %s, 0, %s\ns_cmp_eq_u32 %s, 7" % (sT0, sR, sT0, sT0, sW, sN, sT0, sT0, sT0))
            a.I("s_cselect_b32 %s, %s, 0x%x" % (sHDST, sHDST, OOB))
            a.I("v_lshlrev_b32 v%d, 4, v%d\nv_lshl_add_u32 v%d, v%d, 7, v%d\nv_add_u32 v%d, %d, v%d" % (u0, t8, u0, g, u0, u1, L_HALO, u0)); put(aHX)
            a.I("s_lshl_b32 %s, %s, 10\nv_add3_u32 v%d, v%d, v%d, %s" % (sT0, sC, u1, u0, vA, sT0)); put(aHST)
            if "c" not in OPT["order"]: constants2()
        def constants2():
            if OPT["c_early"] == 2: die_id()
            a.I("s_lshr_b32 %s, %s, 1\ns_lshl_b32 %s, %s, 5\ns_and_b32 %s, %s, 1\ns_lshl_b32 %s, %s, 1\ns_add_u32 %s, %s, %s" % (sT0, sW, sT0, sT0, sT1, sW, sT1, sT1, sT0, sT0, sT1))
            a.I("s_mov_b32 s40, 0x33333333\ns_mov_b32 s41, 0\ns_lshl_b64 s[40:41], s[40:41], %s" % sT0)
            a.I("s_lshl_b32 %s, %s, 1\ns_lshl_b32 %s, %s, 4\ns_add_u32 %s, %s, %s" % (sT0, sR, sT2, sW, sT0, sT0, sT2))
            a.I("s_mov_b32 s42, 0x3333\ns_mov_b32 s43, 0\ns_lshl_b64 s[42:43], s[42:43], %s" % sT0)
            a.I("v_bfe_u32 v%d, v0, 2, 3\nv_min_u32 v%d, 6, v%d\ns_mul_i32 %s, %s, 7\nv_add_u32 v%d, %s, v%d" % (t8, t32, t8, sT0, sW, t32, sT0, t32))
            a.I("s_lshl_b32 %s, %s, 1\nv_and_or_b32 v%d, v%d, 1, %s" % (sT0, sW, t8, t8, sT0))
            a.I("s_lshr_b32 %s, %s, 1\nv_mul_u32_u24 v%d, 24, v%d\nv_lshl_add_u32 v%d, v%d, 3, v%d\nv_add_u32 v%d, %s, v%d" % (sT0, sJ, u0, t8, u0, kc, u0, u0, sT0, u0))
            a.I("s_add_u32 %s, %s, 192\nv_lshl_add_u32 v%d, v%d, 3, %s\nv_cmp_gt_u32 vcc, 24, v0\nv_cndmask_b32 v%d, v%d, v%d, vcc" % (sT0, sC, u1, t8, sT0, u0, u1, u0))
            a.I("v_lshlrev_b32 v%d, 7, v%d\nv_add_u32 v%d, %d, v%d" % (u0, u0, FAV, LY.FA, u0))
            self.c_min = len(a.lines)
            a.I("s_lshr_b32 %s, s2, 3\ns_lshl_b32 %s, %s, 2\ns_add_u32 %s, %s, %s\ns_lshl_b32 %s, %s, 7" % (sCPO, sCPO, sCPO, sCPO, sCPO, sW, sCPO, sCPO))
            lin(sHST, sGB, [(sW, 114688), (sJ, 7168)])
            lin(sSLD, sGB, [(sW, 2048)])
            lin(sOL, sXST, [(sC, -4096)])
            a.I(BIT + " %s, 0\ns_cselect_b32 %s, 1, -1\ns_cselect_b32 %s, 0, 6144\ns_lshl_b32 %s, %s, 10\ns_add_u32 %s, %s, %s" % (sJ, sHSTEP, sT0, sHSTEP, sHSTEP, sHST, sHST, sT0))
            a.I("s_lshr_b32 %s, %s, 1\ns_lshl_b32 %s, %s, 1\ns_add_u32 %s, %s, %s\ns_lshl_b32 s66, 0x11111111, %s\ns_mov_b32 s67, s66" % (sT0, sW, sT1, sR, sT0, sT0, sT1, sT0))
            lin(sHLD[3], sGB, [(sR, 229376), (sW, 28672)])
            for i in range(4):
                a.I("s_add_u32 %s, %s, %d\ns_and_b32 %s, %s, 3\ns_lshr_b32 %s, %s, 1\ns_and_b32 %s, %s, 1" % (sTA, sW, i + 1, sTA, sTA, sT0, sTA, sT1, sTA))
                lin(sHLD[i], sHLD[3], [(sT0, 114688), (sT1, 256)])
                if i < 3: lin(sXW[i], str(i * 4096), [(sTA, 12288)])
            lin(sXR, "0", [(sW, 12288)])
            lin(sWQ, str(LY.WQ), [(sJ, LY.WQ_STRIDE * (1 - OPT["hitw"]))])
            lin(sWG, str(LY.WG), [(sJ, LY.WG_STRIDE * (1 - OPT["hitw"]))])
            lin(sWO, str(LY.WO), [(sC, LY.WO_STRIDE * (1 - OPT["hitw"])), (sW, 4096)])
            lin(sWD, str(LY.WD), [(sC, LY.WD_STRIDE * (1 - OPT["hitw"])), (sW, 57344)])
            lin(sTAB, str(L_TAB), [(sW, 512)])
            a.I("s_lshl_b32 %s, %s, 10\ns_lshl_b32 %s, %s, 12" % (sLW, sW, sLW4, sW))
            if not OPT["xdir"]: a.I("s_add_u32 %s, %s, %s\ns_add_u32 %s, %s, %s" % (sWQ4, sWQ, sLW4, sWG4, sWG, sLW4))
            a.I("s_cmp_eq_u32 %s, 0\ns_cselect_b32 %s, 0x%x, %s\ns_cselect_b64 s[54:55], 0, -1" % (sN, sHALO, OOB, sGB))
            a.I("s_add_u32 %s, %s, %s\ns_add_u32 %s, %s, %s\ns_add_u32 %s, %s, %s" % (sHALO2, sHALO, sLW2, sWQ, sWQ, sLW, sWG, sWG, sLW2))
            a.I("v_add_u32 v%d, 0x10000, v%d\nv_add_u32 v%d, 0x20000, v%d" % (vL16b, vL16, vL16c, vL16))
            a.I("v_lshrrev_b32 v%d, %d, v0\nv_lshlrev_b32 v%d, 7, v%d" % (u1, 1 if OPT["xdir"] else 2, u1, u1))
            if OPT["xdir"]:
                a.I("s_add_u32 %s, %s, %d\nv_and_b32 v%d, 128, v%d\nv_add_u32 v%d, %s, v%d\nv_bfe_u32 v%d, v0, 2, 3" % (sT0, sOST, LY.OB[0], u0, u1, u1, sT0, u1, CSW))
                a.I("s_add_u32 %s, %s, %d\nv_lshl_add_u32 v%d, v%d, 9, v%d\nv_cmp_gt_u32 vcc, 32, v0\nv_add_u32 v%d, %s, v%d" %
                    (sT0, sXST, LY.XB[1], u0, CSW, u0, u0, sT0, u0))
                if "x" not in OPT["t_set"]: a.I("v_mov_b32 v%d, 0x%x" % (u0, OOB))
                if "o" not in OPT["t_set"]: a.I("v_mov_b32 v%d, 0x%x" % (u1, OOB))
                a.I("v_cndmask_b32 v%d, v%d, v%d, vcc" % (u1, u0, u1))
            put(aTO)
            a.I("v_lshlrev_b32 v%d, 7, v%d\nv_lshl_add_u32 v%d, v%d, 5, v%d\nv_lshl_add_u32 v%d, v%d, 1, v%d\nv_lshlrev_b32 v%d, 3, v0" % (u0, rr, u0, g, u0, u0, cc, u0, u1))
            a.I("s_cmp_ge_u32 %s, 2\ns_cselect_b64 vcc, -1, 0\ns_cselect_b32 %s, 2, 8\nv_cndmask_b32 v%d, v%d, v%d, vcc" % (sW, sT1, u1, u0, u1))
            a.I("s_lshr_b32 %s, %s, 1\ns_add_u32 %s, %s, %d\nv_add_u32 v%d, %s, v%d" % (sT0, sLW, sT0, sT0, L_KV, u1, sT0, u1)); put(aHWR)
            a.I("v_mov_b32 v%d, %s" % (u1, sT1)); put(aHWS)
            a.I("s_mul_i32 %s, %s, 7\ns_add_u32 %s, %s, 6\ns_lshr_b32 %s, %s, 2\ns_lshr_b32 %s, %s, 2" % (sT0, sJ, sT1, sT0, sT0, sT0, sT1, sT1))
            a.I("v_add_u32 v%d, %s, v%d\nv_min_u32 v%d, %s, v%d\nv_mad_u32_u24 v%d, v%d, 28, v%d" % (u0, sT0, kc, u0, sT1, u0, u0, t8, u0))
            a.I("v_lshl_add_u32 v%d, v%d, 3, %s\nv_cmp_gt_u32 vcc, 32, v0\nv_cndmask_b32 v%d, v%d, v%d, vcc" % (u1, t32, sC, u0, u1, u0))
            a.I("v_lshlrev_b32 v%d, 7, v%d\nv_add_u32 v%d, %d, v%d" % (u0, u0, u1, LY.FB, u0)); put(aFB)
            if OPT["c_early"] == 3: die_id()
            a.I("s_getpc_b64 %s\nL_pc2:\ns_sub_u32 s4, s4, L_pc2-L_pc\ns_subb_u32 s5, s5, 0" % sPC)
            NG, Z, M0_, M1_ = rr, cc, q16, hh
            a.I("s_or_b32 %s, %s, %s\ns_cmp_eq_u32 %s, 0\ns_cselect_b64 s[56:57], -1, 0" % (sT0, sN, sW, sT0))
            a.I("v_mov_b32 v%d, %s\nv_mov_b32 v%d, 0\nv_lshlrev_b32 v%d, 2, v%d\nv_sub_u32 v%d, v%d, v%d" % (NG, NEG, Z, vA, g, vA, tok, vA))
            for r in range(4):
                a.I("v_subrev_u32 v%d, %d, v%d\nv_mov_b32 v%d, %s" % (u0, r, vA, M0_, "0xffff0000" if r & 1 else "0xffff"))
                a.I("v_cmp_gt_u32 vcc, 8, v%d\nv_cmp_gt_i32 s[58:59], -8, v%d\nv_cmp_le_i32 s[60:61], 0, v%d" % (u0, u0, u0))
                a.I("v_cndmask_b32 v%d, v%d, v%d, vcc" % (u1, NG, Z)); put(aBC + r)
                a.I("v_cndmask_b32 v%d, v%d, v%d, s[58:59]" % (u1, NG, Z)); put(aBP + r)
                a.I("v_cndmask_b32 v%d, v%d, v%d, s[56:57]" % (u1, u1, NG)); put(aBP0 + r)
                if r & 1:
                    a.I("v_cndmask_b32 v%d, v%d, v%d, s[60:61]\nv_or_b32 v%d, v%d, v%d" % (u1, Z, M0_, u1, u1, M1_)); put(aMC + r // 2)
                else:
                    a.I("v_cndmask_b32 v%d, v%d, v%d, s[60:61]" % (M1_, Z, M0_))
        a.I("v_bfe_u32 v%d, v0, 3, 1\nv_xor_b32 v%d, 1, v%d\nv_lshlrev_b32 v%d, 29, v%d" % (vA, vA, vA, vA, vA))
        a.I("s_and_b32 %s, %s, 1" % (sT1, sC))
        lin(sT0, str(8192 - 128), [(sC, 64), (sT1, -56)])
        a.I("v_add3_u32 v%d, v%d, v%d, %s" % (u1, u1, vA, sT0)); put(aHSS)
        if OPT["c_early"]: constants()
        self.stamp("p")
        if OPT["b_pos"] == -1: b_loads()
        a.vm_wait("fa")
        a.I("s_barrier")
        for sp in range(2):
            for half in range(2):
                a.ds("ds_read_b64_tr_b16 %s, v%d offset:%d" % (vr(ACC + 4 * sp + 2 * half, 2), (TA0, TA1)[half], sp * 4096), ("t", sp))
        self.stamp("p")
        for sp in range(2):
            a.ds_wait(("t", sp))
            a.vm("buffer_store_dwordx4 %s, v%d, %s, %s offen sc1" % (vr(ACC + 4 * sp, 4), vL16, WS, (dA, dA2)[sp]))
            a.I("v_mfma_f32_16x16x32_bf16 %s, %s, %s, %s" % (vr(ACC + 8, 4), vr(ONES, 4), vr(ACC + 4 * sp, 4), vr(ACC + 8, 4) if sp else "0"))
        a.I("\n".join(self.hi_lo(ACC + 12, ACC + 8, ACC + 13)))
        a.vm("buffer_store_dword v%d, v%d, %s, %s offen sc1" % (ACC + 12, CSW, WS, dCS), "fas")
        if OPT["b_pos"] == -2: b_loads()
        a.vm_wait("x")
        self.pair_swap(XRES, ACC + 56)
        self.publish(0)
        xload = "buffer_load_dword v31, v%d, %s, 0 offen sc1" % (XA, WS)
        a.vm(xload, "xf")
        if OPT["b_pos"] == 1 and not OPT["xdir"]: b_loads()
        self.stamp("p")
        if OPT["xdir"]:
            n0 = len(a.lines)
            constants()
            body = a.lines[n0:]; del a.lines[n0:]
            k, since = 0, 99
            for n_, t in enumerate(body):
                if k < OPT["xd1"] and since >= OPT["xd_gap"] and not self.scc_live(body, n_):
                    a.run_all(xd[k]); k += 1; since = 0
                a.I(t); since += 1
            a.run_all(self.flat(xd[k:OPT["xd1"]])); xd = xd[OPT["xd1"]:]
        elif not OPT["c_early"]: constants()
        def second_unit():
            G, D, CS = (ACC + 16, ACC + 32, ACC + 48) if OPT["xdir"] else (X + 96, X + 112, ACC + 48)
            out = []
            def store(ops):
                if OPT["b_spread"] and "b" not in OPT["order"]: out.append(ops)
                else: a.run_all(ops)
            if "b" in OPT["order"]:
                a.vm_wait(("fb", 24576))
                a.I("s_barrier")
            for n_ in range(4):
                for half in range(2):
                    a.ds("ds_read_b64_tr_b16 %s, v%d offset:%d" % (vr(G + 4 * n_ + 2 * half, 2), TG, 8192 * (1 + n_ % 2) + (32 * (n_ // 2) + 4 * half) * 128), ("tg", n_))
            for sp in range(2):
                for half in range(2):
                    a.ds("ds_read_b64_tr_b16 %s, v%d offset:%d" % (vr(D + 4 * sp + 2 * half, 2), TD, 24576 + (32 * sp + 4 * half) * 128), ("td", sp))
            for n_ in range(4):
                a.ds_wait(("tg", n_))
                store(([("i", "s_add_u32 %s, %s, %s" % (sB0, sB0, sB1))] if n_ == 2 else []) +
                      [("vm", "buffer_store_dwordx4 %s, v%d, %s, %s offen offset:%d sc1" % (vr(G + 4 * n_, 4), vL16, WS, sB0, (n_ % 2) * 1024))])
                c_ = vr(CS + 4 * (n_ % 2), 4)
                a.I("v_mfma_f32_16x16x32_bf16 %s, %s, %s, %s" % (c_, vr(ONES, 4), vr(G + 4 * n_, 4), c_ if n_ >= 2 else "0"))
            for sp in range(2):
                a.ds_wait(("td", sp))
                store(([("i", "s_add_u32 %s, %s, 4096" % (sB3, sB3))] if sp else []) +
                      [("vm", "buffer_store_dwordx4 %s, v%d, %s, %s offen sc1" % (vr(D + 4 * sp, 4), vL16, WS, sB3))])
            a.I("v_cmp_gt_u32 vcc, 16, v0\nv_bfe_u32 v%d, v0, 4, 1\nv_mul_u32_u24 v%d, 448, v%d\nv_add_u32 v%d, v%d, v%d\nv_cndmask_b32 v%d, v%d, v%d, vcc" %
                (D + 9, D + 9, D + 9, D + 9, D + 9, LINE, CS, CS + 4, CS))
            a.I("\n".join(self.hi_lo(D + 8, CS, CS + 1)))
            store([("vm", "buffer_store_dword v%d, v%d, %s, %s offen sc1" % (D + 8, D + 9, WS, sB2), "fbs")])
            self.stamp("p")
            return out
        def first_flags():
            a.I("v_mov_b32 v30, %s" % sNONCE)
            a.vm_wait("fas")
            a.I("s_barrier")
            a.vm("buffer_store_dword v30, v%d, %s, %s offen sc1" % (LINE, WS, sFBO))
            a.I("s_add_u32 %s, %s, %d" % (sFBO, sFBO, LY.FB - LY.FA))
            self.stamp("p")
        def own_flags():
            spin, back = a.label("xspin"), a.label("xback")
            test = "v_xor_b32 v29, %s, v31\nv_cmp_lt_u32 vcc, 15, v29\ns_and_b64 vcc, vcc, exec" % sNONCE
            a.vm_wait("xf")
            a.I("%s\ns_cbranch_scc1 %s\n%s:" % (test, spin, back))
            self.cold.append("%s:\ns_mov_b32 %s, 0x40000\n%s_l:\n%s\ns_sub_u32 %s, %s, 1\ns_cbranch_scc1 L_main_done\ns_waitcnt vmcnt(0)\n%s\ns_cbranch_scc1 %s_l\ns_branch %s"
                             % (spin, sSPIN, spin, xload, sSPIN, sSPIN, test, spin, back))
            a.I("v_cmp_ne_u32 vcc, v%d, v31\ns_cmp_lg_u64 vcc, 0\ns_cselect_b32 %s, 1, 0\ns_mov_b32 s0, %s\ns_mov_b32 s1, 0" % (XV, sSLOW, sSLOW))
            self.signal(0, "pub", 0)
            self.stamp("p")
        for step in OPT["order"]:
            if step == "c" and OPT["xdir"]: continue
            {"b": second_unit, "a": first_flags, "o": own_flags, "c": constants2}[step]()
        if OPT["xdir"]:
            n0 = len(a.lines)
            constants2()
            body = a.lines[n0:]; del a.lines[n0:]
            per = max(OPT["xd_per"], -(-(self.c_min - n0) // len(xd)))
            pos, done = 0, 32 - len(xd)
            for g_ in xd:
                a.run_all(g_); done += 1
                stop = min(len(body), pos + per)
                while stop < len(body) and self.scc_live(body, stop): stop += 1
                a.I("\n".join(body[pos:stop])); pos = stop
                if len(swaps) > 1 and 4 * swaps[0][1][1] + 4 + OPT["xd_lag"] <= done:
                    a.run_all(swaps[:5]); swaps = swaps[5:]
            self.stamp("p")
            l_fa, g_fa = self.late_check("buffer_load_dword v%d, v%d, %s, 0 offen sc1" % (PB, FAV, WS), PB, "exec", "fa2")
            l_x, g_x = self.check_ops(0, sMA, PA, "x2")
            a.run_all(swaps[:5 * OPT["xd_pre"]]); swaps = swaps[5 * OPT["xd_pre"]:]
            a.run_all(l_x + l_fa)
            if not (OPT["inb"] and OPT["inb_at"]): b_loads()
            a.I("\n".join(body[pos:]))
            a.I("s_add_u32 %s, %s, %s\ns_add_u32 %s, %s, %s" % (sWQ4, sWQ, sLW4, sWG4, sWG, sLW4))
            a.I("s_sub_u32 %s, %s, %s\ns_sub_u32 %s, %s, %s" % (sWQ4, sWQ4, sLW, sWG4, sWG4, sLW2))
            if OPT["t_pos"] == -1: a.run_all(self.flat(self.touch(aTO, "0", 0, 18)))
            a.run_all(swaps + g_fa + g_x)
        self.stamp("p")
        if "b" in OPT["order"]:
            a.vm_wait("fbs")
            a.I("s_barrier")
            a.vm("buffer_store_dword v30, v%d, %s, %s offen sc1" % (LINE, WS, sFBO))
        elif OPT["predrain"]:
            a.vm_drain()
        self.stamp("p")
        def second_ops():
            G, D, CS, ON, AG, AD, T0, T1, T2 = 0, 16, 24, 32, 30, 31, 24, 25, 20
            pre = "v_mov_b32 v%d, v%d\nv_mov_b32 v%d, v%d\nv_bfe_u32 v%d, v0, 4, 1\nv_mul_u32_u24 v%d, 448, v%d\nv_add_u32 v%d, v%d, v%d\n" % (AG, TG, AD, TD, T2, T2, T2, T2, T2, LINE)
            pre += "\n".join("v_accvgpr_write_b32 a%d, v%d" % (ON + k, ONES) for k in range(4))
            rd = [("ds", "ds_read_b64_tr_b16 %s, v%d offset:%d" % (ar(G + 4 * n_ + 2 * half, 2), AG, 8192 * (1 + n_ % 2) + (32 * (n_ // 2) + 4 * half) * 128), ("tg", n_, half))
                  for n_ in range(4) for half in range(2)]
            rd += [("ds", "ds_read_b64_tr_b16 %s, v%d offset:%d" % (ar(D + 4 * sp + 2 * half, 2), AD, 24576 + (32 * sp + 4 * half) * 128), ("td", sp, half))
                   for sp in range(2) for half in range(2)]
            st = []
            for n_ in range(4):
                c_ = ar(CS + 4 * (n_ % 2), 4)
                st.append(([("i", "s_add_u32 %s, %s, %s" % (sB0, sB0, sB1))] if n_ == 2 else []) + [("wds", ("tg", n_, 1)),
                          ("vm", "buffer_store_dwordx4 %s, v%d, %s, %s offen offset:%d sc1" % (ar(G + 4 * n_, 4), vL16, WS, sB0, (n_ % 2) * 1024)),
                          ("i", "v_mfma_f32_16x16x32_bf16 %s, %s, %s, %s" % (c_, ar(ON, 4), ar(G + 4 * n_, 4), c_ if n_ >= 2 else "0"))])
            for sp in range(2):
                st.append(([("i", "s_add_u32 %s, %s, 4096" % (sB3, sB3))] if sp else []) + [("wds", ("td", sp, 1)),
                          ("vm", "buffer_store_dwordx4 %s, v%d, %s, %s offen sc1" % (ar(D + 4 * sp, 4), vL16, WS, sB3))])
            st.append([("i", "s_mov_b64 s[6:7], 0xffff\n%s\n%s\nv_cndmask_b32 v%d, v%d, v%d, s[6:7]" % (self.getc(T0, CS), self.getc(T1, CS + 4), T0, T1, T0)),
                       ("i", "\n".join(self.hi_lo(PA, T0, T1))),
                       ("vm", "buffer_store_dword v%d, v%d, %s, %s offen sc1" % (PA, T2, WS, sB2), "fbs"), ("mark", "bdone")])
            return pre, rd, st
        self.second_unit, self.b_loads, self.second_ops = second_unit, b_loads, second_ops
        self.fav = FAV

    def startup2(self):
        a = self.a
        lin = self.lin
        t8, kc, tok, g, hh, t32, u0, u1, rr, cc, q16, vA, vR, vD, TA0, TA1, TD, XA, XV, FAV, LINE = range(F, F + 21)
        ONES, CSW, L_T = F + 24, F + 21, 114688
        def put(acc): self.a.I("v_accvgpr_write_b32 a%d, v%d" % (acc, u1))
        a.I("%s_kernel:" % NAME)
        a.I("s_cmp_ge_u32 s2, 256\ns_cbranch_scc1 L_main_done")
        a.I("s_load_dwordx16 s[64:79], s[0:1], 0\ns_load_dwordx2 s[4:5], s[0:1], 72")
        if OPT["stamps"] or OPT["diagpad"]:
            a.I("s_memrealtime s[98:99]")
        if OPT["stamps"]:
            a.I("s_memtime s[%d:%d]" % (sST, sST + 1))
        a.I("s_getpc_b64 s[56:57]\nL_pc:\ns_lshr_b32 s58, s2, 3\ns_lshl_b32 s58, s58, 11")
        a.I("v_lshrrev_b32 v16, 6, v0\nv_lshrrev_b32 v17, 4, v0\nv_lshlrev_b32 v17, 7, v17\nv_add_u32 v17, s58, v17")
        a.I("v_min_u32 v17, L_code_end-L_pc-4, v17\nv_and_b32 v0, 63, v0\nv_readfirstlane_b32 %s, v16" % sW)
        a.I("global_load_dword a255, v17, s[56:57]")
        a.I("s_and_b32 %s, s2, 7\ns_bfe_u32 %s, s2, 0x40003\ns_lshr_b32 %s, s2, 7" % (sN, sJ, sP))
        a.I("s_lshr_b32 %s, %s, 3\ns_and_b32 %s, %s, 7" % (sR, sJ, sC, sJ))
        a.I("v_and_b32 v%d, 7, v0\nv_lshrrev_b32 v%d, 3, v0\nv_and_b32 v%d, 15, v0\nv_lshrrev_b32 v%d, 4, v0\nv_lshlrev_b32 v%d, 4, v%d" % (t8, kc, tok, g, u0, t8))
        a.I("s_lshl_b32 s31, %s, 1\ns_add_u32 s31, s31, %s\ns_lshl_b32 s31, s31, 2\ns_add_u32 s31, s31, %s\ns_lshl_b32 s31, s31, 5" % (sN, sR, sW))
        a.I("s_add_u32 s31, s31, %s\ns_lshl_b32 s31, s31, 3\ns_add_u32 s31, s31, %s\ns_lshl_b32 s31, s31, 7" % (sP, sC))
        a.I("v_and_b32 v%d, 14, v0\nv_lshlrev_b32 v%d, 11, v%d\nv_lshl_add_u32 v%d, v%d, 4, v%d\nv_and_b32 v%d, 1, v0\nv_lshlrev_b32 v%d, 6, v%d\nv_add3_u32 v%d, s31, v%d, v%d" %
            (vR, vR, vR, vR, g, vR, u1, u1, u1, vR, vR, u1))
        a.I("s_lshl_b32 %s, %s, 12\ns_cmp_lg_u32 %s, 0\ns_cbranch_scc1 L_follow" % (sLW4, sW, sP))
        cu, kp, st, so, so2 = "s32", "s33", "s34", "s35", "s36"
        D4 = [sB0, sB1, sB2, sB3]
        dCS, dD = "s3", "s0"

        def tile_dma(srdn, va, s_off, stride, lds, tag):
            a = self.a
            a.I("s_add_u32 m0, %s, %d" % (sLW4, L_T + lds))
            for k in range(4):
                if k: a.I("s_add_u32 %s, %s, %s" % (sT0, s_off if k == 1 else sT0, stride))
                a.vm("buffer_load_dwordx4 v%d, s[%d:%d], %s offen offset:%d lds" % (va, srdn, srdn + 3, sT0 if k else s_off, k * 1024), tag if k == 3 else None)
        def x_loads():
            a = self.a
            self.srd(12, "s64", "s65", 2048 * 1024)
            a.vm("buffer_load_dwordx4 %s, v%d, %s, 0 offen" % (vr(X, 4), vR, XIN))
            a.vm("buffer_load_dwordx4 %s, v%d, %s, 0 offen offset:2048" % (vr(X + 4, 4), vR, XIN), "x")
            if OPT["stamps"]:
                a.I("v_mov_b32 v%d, 0\nv_writelane_b32 v%d, s98, 62\nv_writelane_b32 v%d, s%d, 0" % (vSTAMP, vSTAMP, vSTAMP, sST))
                self.nstamp = 1
            if OPT["diagpad"]: a.I("s_mov_b32 s14, s98")
        def common():
            a = self.a
            self.srd(8, "s4", "s5", LY.WS_USED)
            a.I("s_lshl_b32 %s, %s, 1\ns_add_u32 %s, %s, %s" % (sG, sN, sG, sG, sP))
            a.I("s_lshl_b32 %s, %s, %d\ns_add_u32 %s, %s, 0x%x" % (sGB, sG, LY.ACT_SHIFT, sGB, sGB, LY.ACT))
            lin(sFLG, str(LY.FL), [(sG, 256)])
            lin(sFLW, sFLG, [(sJ, 16), (sW, 4)])
            lin(sTS, sGB, [(sR, 4096), (sW, 1024), (sC, 128)])
            a.I("s_and_b32 %s, %s, 1" % (sT0, sC))
            lin(sSST, sTS, [(sT0, -120)])
            a.I("s_add_u32 %s, %s, %d\nv_cmp_gt_u32 vcc, 32, v0\nv_mov_b32 v%d, %s\nv_mov_b32 v%d, %s\nv_cndmask_b32 v%d, v%d, v%d, vcc" %
                (sTS, sTS, LY.SB[0], u1, sTS, XA, sFLW, XA, u1, XA))
            a.vm("buffer_load_dword a255, v%d, %s, 0 offen sc1" % (XA, WS))
            self.srd(16, "s78", "s79", 2048 * 1024)
            a.I("v_accvgpr_write_b32 a%d, v%d\nv_lshlrev_b32 v%d, 4, v0\nv_lshlrev_b32 v%d, 2, v0" % (aROW, vR, vL16, vFL))
            a.I("v_bfe_u32 v%d, v0, 2, 2\nv_and_b32 v%d, 3, v0\nv_bfe_u32 v%d, v0, 4, 1\nv_lshrrev_b32 v%d, 5, v0" % (rr, cc, q16, hh))
            lin(sT0, str(LY.XF), [(sG, 2048)])
            a.I("v_lshrrev_b32 v%d, 2, v0\nv_lshl_add_u32 v%d, v%d, 7, %s\nv_lshl_add_u32 v%d, v%d, 30, v%d" % (XA, XA, XA, sT0, LINE, hh, vFL))
            lin(sT0, sT0, [(sJ, 128)])
            a.I("s_cmp_eq_u32 %s, 0\ns_cselect_b32 %s, %s, 0x%x\ns_getreg_b32 %s, hwreg(HW_REG_XCC_ID, 0, 4)" % (sW, sT0, sT0, OOB, sT1))
            a.I("s_waitcnt lgkmcnt(0)\ns_add_u32 %s, %s, 0x9e3779b1\ns_xor_b32 %s, %s, %s\nv_mov_b32 v%d, %s" % (sNONCE, sNONCE, sT1, sT1, sNONCE, XV, sT1))
            a.vm("buffer_store_dword v%d, v%d, %s, %s offen sc1" % (XV, LINE, WS, sT0))
            a.I("v_lshl_add_u32 v%d, v%d, 3, v%d\nv_lshlrev_b32 v%d, 7, v%d\nv_add_u32 v%d, %d, v%d" % (u0, g, rr, u0, u0, u0, L_T, u0))
            a.I("s_lshr_b32 %s, %s, 1\ns_and_b32 %s, %s, 1" % (sT0, sW, sT1, sW))
            lin(sXST, sGB, [(sR, 65536), (sC, 4096), (sT0, 32768), (sT1, 256)])
            a.I("s_lshl_b32 %s, %s, 6\ns_lshl_b32 %s, %s, 3\ns_add_u32 %s, %s, %s\nv_lshl_add_u32 v%d, v%d, 4, %s\nv_add_u32 v%d, v%d, v%d" %
                (sT0, sT0, sT1, sT1, sT0, sT0, sT1, TD, cc, sT0, TD, TD, u0))
            a.I("s_lshl_b32 %s, %s, 5\nv_lshl_add_u32 v%d, v%d, 3, %s\nv_add_u32 v%d, v%d, v%d" % (sT0, sW, TA0, cc, sT0, TA0, TA0, u0))
            for k in range(4): a.I("v_mov_b32 v%d, 0x3f803f80" % (ONES + k))
            a.I("s_mov_b32 %s, 0x3f803f80\nv_lshlrev_b32 v%d, 4, v%d\nv_lshl_add_u32 v%d, v%d, 9, v%d" % (sONE, u0, tok, vQ, g, u0))
            a.I("v_lshlrev_b32 v%d, 4, v%d\nv_lshl_add_u32 v%d, v%d, 2, v%d\nv_lshl_add_u32 v%d, v%d, 30, v%d" % (u1, tok, u1, hh, u1, u1, q16, u1)); put(aST)
        def tile_out(base, a0, a1, o1, lds, dst, cs):
            a = self.a
            for sp in range(4):
                a.ds("ds_read_b64_tr_b16 %s, v%d offset:%d" % (vr(base + 4 * sp, 2), a0, lds + sp * 4096))
                a.ds("ds_read_b64_tr_b16 %s, v%d offset:%d" % (vr(base + 4 * sp + 2, 2), a1, lds + sp * 4096 + o1), ("t", lds, sp))
            for sp in range(4):
                a.ds_wait(("t", lds, sp))
                a.vm("buffer_store_dwordx4 %s, v%d, %s, %s offen offset:%d sc1" % ((vr(base + 4 * sp, 4), vL16, WS) + dst(sp)))
                if cs: a.I("v_mfma_f32_16x16x32_bf16 %s, %s, %s, %s" % (vr(cs, 4), vr(ONES, 4), vr(base + 4 * sp, 4), vr(cs, 4) if sp else "0"))
        def cs_out(src, addr):
            a = self.a
            a.I("v_cmp_eq_u32 vcc, 0, v%d" % q16)
            a.I("\n".join(self.hi_lo(ACC + 60, src, ACC + 61)))
            a.I("v_cndmask_b32 v%d, 0, v%d, vcc" % (ACC + 60, ACC + 60))
            a.vm("buffer_store_dword v%d, v%d, %s, %s offen sc1" % (ACC + 60, addr, WS, dCS))
        xload = "buffer_load_dword v31, v%d, %s, 0 offen sc1" % (XA, WS)
        def pub():
            self.a.vm_wait("x")
            self.pair_swap(XRES, X)
            self.publish(0)
            self.a.vm(xload)

        self.sdivmod(kp, cu, "s2", 24)
        a.I("s_sub_u32 %s, %s, 12\ns_cmp_lt_u32 s2, 96\ns_cselect_b32 %s, %s, %s\ns_cselect_b32 %s, %s, %s\ns_cselect_b32 %s, 3, 1\ns_lshl_b32 %s, %s, 10" %
            (sT0, sJ, cu, cu, sN, kp, kp, sT0, st, st, st))
        a.I("v_mad_u32_u24 v%d, v%d, %s, v%d" % (vA, kc, st, u0))
        a.I("s_lshl_b32 %s, %s, 2\ns_add_u32 %s, %s, %s\ns_lshl_b32 %s, %s, 5\ns_mul_i32 %s, %s, %s\ns_lshl_b32 %s, %s, 7\ns_add_u32 %s, %s, %s" %
            (so, kp, so, so, sW, so, so, so, so, st, sT1, cu, so, so, sT1))
        a.I("s_lshl_b32 %s, %s, 3\ns_sub_u32 %s, %s, 1024" % (so2, st, so2, so2))
        a.I("s_lshl_b32 s%d, %s, 9\ns_mov_b32 s%d, 0x20000\ns_cmp_lt_u32 s2, 96\ns_waitcnt lgkmcnt(0)" % (SRC_A + 2, st, SRC_A + 3))
        a.I("s_load_dword %s, s[4:5], %d" % (sNONCE, LY.EPOCH))
        a.I("s_cselect_b32 s%d, s66, s68\ns_cselect_b32 s%d, s67, s69\ns_and_b32 s%d, s%d, 0xffff" % (SRC_A, SRC_A + 1, SRC_A + 1, SRC_A + 1))
        tile_dma(SRC_A, vA, so, so2, 0, "fa")
        x_loads()
        common()
        a.I("s_and_b32 %s, %s, 7\ns_lshl_b32 %s, %s, 1\ns_lshr_b32 %s, %s, 1\ns_add_u32 %s, %s, %s" % (sT0, cu, sT0, sT0, sT1, sW, sT0, sT0, sT1))
        a.I("s_mul_i32 %s, %s, %d\ns_add_u32 %s, %s, %d" % (sT0, sT0, LY.WQ_STRIDE, sT0, sT0, LY.WQ))
        a.I("s_lshr_b32 %s, %s, 3\ns_lshl_b32 %s, %s, 1\ns_and_b32 %s, %s, 1\ns_add_u32 %s, %s, %s" % (sT1, cu, sT1, sT1, sT2, sW, sT1, sT1, sT2))
        lin(D4[0], sT0, [(kp, 24576), (sT1, 1024)])
        lin(dCS, sT0, [(kp, 128), (sT1, 512)])
        a.I("s_add_u32 %s, %s, 98304" % (dCS, dCS))
        lin(sT0, str(LY.WO), [(cu, LY.WO_STRIDE), (kp, 16384), (sW, 1024)])
        a.I("s_cmp_lt_u32 s2, 96\ns_cselect_b32 %s, %s, %s\ns_cselect_b32 %s, %s, 0x%x\ns_cselect_b32 %s, 6, 4\ns_cselect_b64 vcc, -1, 0" %
            (D4[0], D4[0], sT0, dCS, dCS, OOB, sT1))
        a.I("s_lshl_b32 %s, %s, 10" % (sT1, sT1))
        for k in range(1, 4): a.I("s_add_u32 %s, %s, %s" % (D4[k], D4[k - 1], sT1))
        a.I("v_lshlrev_b32 v%d, 9, v%d\nv_sub_u32 v%d, v%d, v%d\nv_add_u32 v%d, 512, v%d\nv_add_u32 v%d, 2048, v%d" % (u0, g, TD, TD, u0, TA1, TA0, u0, TD))
        a.I("v_cndmask_b32 v%d, v%d, v%d, vcc\nv_cndmask_b32 v%d, v%d, v%d, vcc" % (TA0, TD, TA0, TA1, u0, TA1))
        self.stamp("p")
        a.vm_wait("fa")
        a.I("s_barrier")
        self.stamp("p")
        tile_out(ACC, TA0, TA1, 0, 0, lambda sp: (D4[sp], 0), ACC + 48)
        cs_out(ACC + 48, LINE)
        pub()
        self.stamp("p")
        a.I("L_join:")
        nst = self.nstamp
        self.a = b = Asm()
        b.I("L_follow:\ns_sub_u32 %s, s2, 128" % st)
        self.sdivmod(kp, cu, st, 28)
        b.I("v_mul_u32_u24 v%d, 3584, v%d\nv_add_u32 v%d, v%d, v%d\nv_lshl_add_u32 v%d, v%d, 10, v%d" % (vA, kc, vA, vA, u0, vD, kc, u0))
        lin(so, "0", [(kp, 128 * 3584), (sW, 32 * 3584), (cu, 128)])
        lin(so2, "0", [(sJ, 131072), (sW, 32768), (sN, 128)])
        b.I("s_waitcnt lgkmcnt(0)\ns_load_dword %s, s[4:5], %d" % (sNONCE, LY.EPOCH))
        steps = dict(g=lambda: tile_dma(SRC_G, vA, so, str(8 * 3584 - 1024), 0, "fg"), u=lambda: tile_dma(SRC_U, vA, so, str(8 * 3584 - 1024), 16384, "fu"),
                     d=lambda: tile_dma(SRC_D, vD, so2, str(7 * 1024), 32768, "fd"), x=x_loads, c=common, p=pub, w=b.vm_drain)
        self.srd(SRC_G, "s72", "s73", 512 * 3584)
        self.srd(SRC_U, "s74", "s75", 512 * 3584)
        self.srd(SRC_D, "s76", "s77", 1792 * 1024)
        for ch in OPT["follow"]: steps[ch]()
        lin(dD, str(LY.WD), [(sN, LY.WD_STRIDE), (sJ, 16384), (sW, 1024)])
        b.I("s_lshl_b32 %s, %s, 2\ns_add_u32 %s, %s, %s" % (cu, cu, cu, cu, sW))
        self.sdivmod(sT0, sT1, cu, 7)
        lin(dCS, str(LY.WG), [(sT0, LY.WG_STRIDE)])
        b.I("s_sub_u32 %s, 6, %s\n%s %s, 0\ns_cselect_b32 %s, %s, %s" % (sT2, sT1, BIT, sT0, sT1, sT1, sT2))
        S0, TL = GS0, 16 - GS0
        lin(so, dCS, [(kp, 56 * 1024), (sT1, 2048)])
        lin(dCS, dCS, [(sT1, (2 * TL + 1) * 1024)])
        lin(so2, dCS, [(kp, 8192)])
        for k in range(4):
            b.I("s_add_u32 %s, %s, %d\ns_add_u32 %s, %s, %d\ns_cmp_lt_u32 %s, %d\ns_cselect_b32 %s, %s, %s" %
                (sT0, so, 14 * 1024 * k, sT1, so2, (12 * S0 + 2 * k) * 1024, kp, (S0 - k + 3) // 4, D4[k], sT0, sT1))
        lin(dCS, dCS, [(kp, 128)])
        b.I("s_add_u32 %s, %s, %d\ns_cmp_lt_u32 s2, 240" % (dCS, dCS, (14 * S0 + 2 * TL) * 1024))
        for r_ in D4 + [dCS, dD]: b.I("s_cselect_b32 %s, %s, 0x%x" % (r_, r_, OOB))
        b.I("v_mul_u32_u24 v%d, 384, v%d\nv_add_u32 v%d, v%d, v%d" % (vA, hh, vA, vA, vFL))
        self.stamp("p")
        b.vm_wait("fu")
        b.I("s_barrier")
        self.stamp("p")
        tile_out(ACC, TA0, TA0, 512, 0, lambda sp: (D4[sp], 0), ACC + 48)
        tile_out(ACC + 16, TA0, TA0, 512, 16384, lambda sp: (D4[sp], 1024), ACC + 52)
        for k in range(4): b.I("s_add_u32 %s, %s, %d" % (D4[k], dD, 4096 * k))
        b.I("v_cmp_gt_u32 vcc, 32, v0\nv_cndmask_b32 v%d, v%d, v%d, vcc" % (ACC + 48, ACC + 52, ACC + 48))
        cs_out(ACC + 48, vA)
        b.vm_wait("fd")
        b.I("s_barrier")
        tile_out(ACC + 32, TD, TD, 512, 32768, lambda sp: (D4[sp], 0), None)
        if "p" not in OPT["follow"]: pub()
        self.stamp("p")
        b.I("s_branch L_join")
        assert nst == self.nstamp
        self.cold.append("\n".join(b.lines))
        self.a = a

        a.vm_tag["join"] = a.vm_n
        lin(sXLD, sGB, [(sW, 32768)])
        lin(sOST, sXLD, [(sJ, 2048)])
        def touch_list():
            a.I("v_lshrrev_b32 v%d, %d, v0\nv_lshlrev_b32 v%d, 7, v%d" % (u1, 1 if OPT["xdir"] else 2, u1, u1))
            if OPT["xdir"]:
                a.I("s_add_u32 %s, %s, %d\nv_and_b32 v%d, 128, v%d\nv_add_u32 v%d, %s, v%d\nv_bfe_u32 v%d, v0, 2, 3" % (sT0, sOST, LY.OB[0], u0, u1, u1, sT0, u1, CSW))
                a.I("s_add_u32 %s, %s, %d\nv_lshl_add_u32 v%d, v%d, 9, v%d\nv_cmp_gt_u32 vcc, 32, v0\nv_add_u32 v%d, %s, v%d" %
                    (sT0, sXST, LY.XB[1], u0, CSW, u0, u0, sT0, u0))
                if "x" not in OPT["t_set"]: a.I("v_mov_b32 v%d, 0x%x" % (u0, OOB))
                if "o" not in OPT["t_set"]: a.I("v_mov_b32 v%d, 0x%x" % (u1, OOB))
                a.I("v_cndmask_b32 v%d, v%d, v%d, vcc" % (u1, u0, u1))
            put(aTO)
        if OPT["t_pos"] == -2:
            touch_list()
            a.vm("buffer_load_dword a255, v%d, %s, 0 offen sc1" % (u1, WS))
        def sibling():
            touch_list()
            a.I("s_cmp_lt_u32 s2, 128\ns_cselect_b32 %s, 0x%x, 0\nv_add_u32 v%d, %s, v%d\nv_subrev_u32 v%d, 0x%x, v%d" % (sT0, OOB, u1, sT0, u1, u0, LY.ACT_STRIDE, u1)); put(aTO)
            a.vm("buffer_load_dword a255, v%d, %s, 0 offen sc1" % (u0, WS))
        if OPT["sib"] == 1: sibling()
        sa = "s[%d:%d]" % (SRC_A, SRC_A + 3)
        xd, swaps = [], []
        vX, sXD, sHD, sXL = 21, "s6", "s14", sLW4
        self.srd(SRC_A, "s64", "s65", 2048 * 1024)
        a.I("v_xor_b32 v%d, v%d, v%d\nv_lshlrev_b32 v%d, 4, v%d\nv_lshl_add_u32 v%d, v%d, 11, v%d" % (vX, t8, kc, vX, vX, vX, kc, vX))
        lin(sHD, "0", [(sN, 262144), (sP, 1024)])
        lin(sXD, sHD, [(sW, 65536)])
        lin(sHD, sHD, [(sW, 256)])
        a.I("s_sub_u32 %s, %s, 16384\ns_cmp_eq_u32 %s, 0\ns_cselect_b32 %s, 0x%x, %s" % (sHD, sHD, sN, sHD, OOB, sHD))
        a.I("v_xor_b32 v16, v%d, v%d\nv_lshlrev_b32 v16, 4, v16\nv_lshl_add_u32 v%d, v%d, 7, v16\nv_add_u32 v%d, %d, v%d" % (t8, g, u1, t8, u1, L_HALO, u1)); put(aSH)
        a.I("v_lshl_add_u32 v16, v%d, 7, v16\nv_add_u32 v16, %s, v16\nv_xor_b32 v17, 64, v16\nv_add_u32 v18, 0x10000, v16\nv_add_u32 v19, 0x10000, v17" % (tok, sXL))
        for m in range(8):
            for k in range(4):
                xd.append([("i", "s_add_u32 m0, %s, %d\ns_add_u32 s15, %s, %d" % (sXL, m * 16384, sXD, k * 16384 + m * 128 - k * 1024)),
                           ("vm", "buffer_load_dwordx4 v%d, %s, s15 offen offset:%d lds" % (vX, sa, k * 1024), ("xd", m, k))])
            swaps.append(("wvm", ("xd", m, 3)))
            swaps += [("ds", "ds_read_b128 %s, v%d offset:%d" % (vr(X + 8 * (2 * m + h_) + 4 * b_, 4), 16 + h_ + 2 * (m // 4), (m % 4) * 16384 + b_ * 2048)) for b_ in range(2) for h_ in range(2)]
        swaps.append(("dsdrain",))
        self.halo0 = [[("set", "m0", "s_add_u32 m0, %s, %d" % (sLW2, L_HALO + 1024 * k)), ("i", "s_add_u32 s15, %s, %d" % (sHD, 128 * k)),
                       ("vm", "buffer_load_dwordx4 v%d, %s, s15 offen lds" % (vX, sa), "halo" if k else None)] for k in range(2)]
        def flags():
            self.stamp("p")
            a.I("v_mov_b32 v30, %s" % sNONCE)
            a.vm_wait("join")
            a.I("s_barrier")
            a.vm("buffer_store_dword v30, v%d, %s, %s offen sc1" % (LINE, WS, sFBO))
            spin, back = a.label("xspin"), a.label("xback")
            test = "v_xor_b32 v29, %s, v31\nv_cmp_lt_u32 vcc, 15, v29\ns_and_b64 vcc, vcc, exec" % sNONCE
            a.I("%s\ns_cbranch_scc1 %s\n%s:" % (test, spin, back))
            self.cold.append("%s:\ns_mov_b32 %s, 0x40000\n%s_l:\n%s\ns_sub_u32 %s, %s, 1\ns_cbranch_scc1 L_main_done\ns_waitcnt vmcnt(0)\n%s\ns_cbranch_scc1 %s_l\ns_branch %s"
                             % (spin, sSPIN, spin, xload, sSPIN, sSPIN, test, spin, back))
            a.I("v_cmp_ne_u32 vcc, v%d, v31\ns_cmp_lg_u64 vcc, 0\ns_cselect_b32 %s, 1, 0\ns_mov_b32 s0, %s\ns_mov_b32 s1, 0" % (XV, sSLOW, sSLOW))
            self.signal(0, "pub", 0, OPT["h_def"] & 1)
            self.stamp("p")
        def carry(ops, emit, per, lag):
            nonlocal swaps
            n0 = len(a.lines)
            self.c_min = n0
            emit()
            body = a.lines[n0:]; del a.lines[n0:]
            per = max(per, -(-(self.c_min - n0) // len(ops)))
            pos = 0
            for g_ in ops:
                a.run_all(g_)
                stop = min(len(body), pos + per)
                while stop < len(body) and self.scc_live(body, stop): stop += 1
                a.I("\n".join(body[pos:stop])); pos = stop
                m, k = g_[-1][2][1:]
                if len(swaps) > 1 and 4 * swaps[0][1][1] + 3 + lag <= 4 * m + k:
                    a.run_all(swaps[:5]); swaps = swaps[5:]
            return "\n".join(body[pos:])
        def consts1():
            a.I("v_cmp_ne_u32 vcc, 0, v0\nv_mov_b32 v%d, 0x%x\nv_accvgpr_write_b32 a%d, v%d\nv_cndmask_b32 v%d, 0, v%d, vcc" % (vF1, OOB, aLINE, LINE, vF1, vF1))
            lin(sHFL, str(LY.HFL), [(sG, 1024)])
            lin(sHDFL, sHFL, [(sC, 128)])
            lin(sFBO, str(LY.FA), [("s2", 128)])
            a.I("s_add_u32 %s, %s, 2048\ns_add_u32 %s, %s, 0x%x\ns_lshl_b32 %s, %s, 11" % (sHDFL, sHDFL, sHDST, sGB, 2 * LY.ACT_STRIDE, sLW2, sW))
            a.I("s_cmp_eq_u32 %s, 0\ns_cselect_b32 %s, %s, 0x%x" % (sW, sFBO, sFBO, OOB))
            a.I("s_lshl_b32 %s, %s, 2\ns_add_u32 %s, %s, %s\ns_cmp_eq_u32 %s, 7\ns_cselect_b32 %s, 0, %s\ns_cmp_eq_u32 %s, 7" % (sT0, sR, sT0, sT0, sW, sN, sT0, sT0, sT0))
            a.I("s_cselect_b32 %s, %s, 0x%x" % (sHDST, sHDST, OOB))
            a.I("v_bfe_u32 v%d, v0, 3, 1\nv_xor_b32 v%d, 1, v%d\nv_lshlrev_b32 v%d, 29, v%d" % (vA, vA, vA, vA, vA))
            a.I("s_and_b32 %s, %s, 1\n%s" % (sT1, sC, self.getc(u1, aST)))
            lin(sT0, str(8192 - 128), [(sC, 64), (sT1, -56)])
            a.I("v_add3_u32 v%d, v%d, v%d, %s" % (u1, u1, vA, sT0)); put(aHSS)
            a.I("v_lshlrev_b32 v%d, 4, v%d\nv_lshl_add_u32 v%d, v%d, 7, v%d\nv_add_u32 v%d, %d, v%d" % (u0, t8, u0, g, u0, u1, L_HALO, u0)); put(aHX)
            a.I("s_lshl_b32 %s, %s, 10\nv_add3_u32 v%d, v%d, v%d, %s" % (sT0, sC, u1, u0, vA, sT0)); put(aHST)
        def consts2():
            a.I("s_lshr_b32 %s, %s, 1\ns_lshl_b32 %s, %s, 5\ns_and_b32 %s, %s, 1\ns_lshl_b32 %s, %s, 1\ns_add_u32 %s, %s, %s" % (sT0, sW, sT0, sT0, sT1, sW, sT1, sT1, sT0, sT0, sT1))
            a.I("s_mov_b32 s40, 0x33333333\ns_mov_b32 s41, 0\ns_lshl_b64 s[40:41], s[40:41], %s" % sT0)
            a.I("s_lshl_b32 %s, %s, 1\ns_lshl_b32 %s, %s, 4\ns_add_u32 %s, %s, %s" % (sT0, sR, sT2, sW, sT0, sT0, sT2))
            a.I("s_mov_b32 s42, 0x3333\ns_mov_b32 s43, 0\ns_lshl_b64 s[42:43], s[42:43], %s" % sT0)
            a.I("s_lshr_b32 %s, %s, 1\ns_mul_i32 %s, %s, 24\ns_add_u32 %s, %s, %s\nv_lshl_add_u32 v%d, v%d, 3, %s" % (sT0, sJ, sT1, sW, sT0, sT0, sT1, u0, kc, sT0))
            a.I("s_lshl_b32 %s, %s, 3\ns_add_u32 %s, %s, %s\ns_add_u32 %s, %s, 96\nv_mov_b32 v%d, %s\nv_cmp_gt_u32 vcc, 24, v0\nv_cndmask_b32 v%d, v%d, v%d, vcc" %
                (sT0, sW, sT0, sT0, sC, sT0, sT0, u1, sT0, u0, u1, u0))
            a.I("v_lshlrev_b32 v%d, 7, v%d\nv_add_u32 v%d, %d, v%d" % (u0, u0, FAV, LY.FA, u0))
            self.c_min = len(a.lines)
            a.I("s_lshr_b32 %s, s2, 3\ns_lshl_b32 %s, %s, 2\ns_add_u32 %s, %s, %s\ns_lshl_b32 %s, %s, 7" % (sCPO, sCPO, sCPO, sCPO, sCPO, sW, sCPO, sCPO))
            lin(sHST, sGB, [(sW, 114688), (sJ, 7168)])
            lin(sSLD, sGB, [(sW, 2048)])
            lin(sOL, sXST, [(sC, -4096)])
            a.I(BIT + " %s, 0\ns_cselect_b32 %s, 1, -1\ns_cselect_b32 %s, 0, 6144\ns_lshl_b32 %s, %s, 10\ns_add_u32 %s, %s, %s" % (sJ, sHSTEP, sT0, sHSTEP, sHSTEP, sHST, sHST, sT0))
            a.I("s_lshr_b32 %s, %s, 1\ns_lshl_b32 %s, %s, 1\ns_add_u32 %s, %s, %s\ns_lshl_b32 s66, 0x11111111, %s\ns_mov_b32 s67, s66" % (sT0, sW, sT1, sR, sT0, sT0, sT1, sT0))
            lin(sHLD[3], sGB, [(sR, 229376), (sW, 28672)])
            for i in range(4):
                a.I("s_add_u32 %s, %s, %d\ns_and_b32 %s, %s, 3\ns_lshr_b32 %s, %s, 1\ns_and_b32 %s, %s, 1" % (sTA, sW, i + 1, sTA, sTA, sT0, sTA, sT1, sTA))
                lin(sHLD[i], sHLD[3], [(sT0, 114688), (sT1, 256)])
                if i < 3: lin(sXW[i], str(i * 4096), [(sTA, 12288)])
            lin(sXR, "0", [(sW, 12288)])
            lin(sWQ, str(LY.WQ), [(sJ, LY.WQ_STRIDE * (1 - OPT["hitw"]))])
            lin(sWG, str(LY.WG), [(sJ, LY.WG_STRIDE * (1 - OPT["hitw"]))])
            lin(sWO, str(LY.WO), [(sC, LY.WO_STRIDE * (1 - OPT["hitw"])), (sW, 4096)])
            lin(sWD, str(LY.WD), [(sC, LY.WD_STRIDE * (1 - OPT["hitw"])), (sW, 57344)])
            lin(sTAB, str(L_TAB), [(sW, 512)])
            a.I("s_lshl_b32 %s, %s, 10" % (sLW, sW))
            a.I("s_add_u32 %s, %s, %s\ns_add_u32 %s, %s, %s" % (sWQ4, sWQ, sLW4, sWG4, sWG, sLW4))
            a.I("s_cmp_eq_u32 %s, 0\ns_cselect_b32 %s, 0x%x, %s\ns_cselect_b64 s[54:55], 0, -1" % (sN, sHALO, OOB, sGB))
            a.I("s_add_u32 %s, %s, %s\ns_add_u32 %s, %s, %s\ns_add_u32 %s, %s, %s" % (sHALO2, sHALO, sLW2, sWQ, sWQ, sLW, sWG, sWG, sLW2))
            a.I("v_add_u32 v%d, 0x10000, v%d\nv_add_u32 v%d, 0x20000, v%d" % (vL16b, vL16, vL16c, vL16))
            if OPT["t_pos"] != -2 and not OPT["sib"]: touch_list()
            a.I("v_lshlrev_b32 v%d, 7, v%d\nv_lshl_add_u32 v%d, v%d, 5, v%d\nv_lshl_add_u32 v%d, v%d, 1, v%d\nv_lshlrev_b32 v%d, 3, v0" % (u0, rr, u0, g, u0, u0, cc, u0, u1))
            a.I("s_cmp_ge_u32 %s, 2\ns_cselect_b64 vcc, -1, 0\ns_cselect_b32 %s, 2, 8\nv_cndmask_b32 v%d, v%d, v%d, vcc" % (sW, sT1, u1, u0, u1))
            a.I("s_lshr_b32 %s, %s, 1\ns_add_u32 %s, %s, %d\nv_add_u32 v%d, %s, v%d" % (sT0, sLW, sT0, sT0, L_KV, u1, sT0, u1)); put(aHWR)
            a.I("v_mov_b32 v%d, %s" % (u1, sT1)); put(aHWS)
            a.I("s_mul_i32 %s, %s, 7\ns_add_u32 %s, %s, 6\ns_lshr_b32 %s, %s, 2\ns_lshr_b32 %s, %s, 2" % (sT0, sJ, sT1, sT0, sT0, sT0, sT1, sT1))
            a.I("v_add_u32 v%d, %s, v%d\nv_min_u32 v%d, %s, v%d\ns_mul_i32 %s, %s, 28\nv_add_u32 v%d, %s, v%d" % (u0, sT0, kc, u0, sT1, u0, sT0, sW, u0, sT0, u0))
            a.I("s_add_u32 %s, %s, 112\nv_cmp_gt_u32 vcc, 24, v0\nv_mov_b32 v%d, %s\nv_cndmask_b32 v%d, v%d, v%d, vcc" % (sT0, sJ, u1, sT0, u0, u1, u0))
            a.I("s_mul_i32 %s, %s, 7\ns_lshr_b32 %s, %s, 1\nv_and_b32 v%d, 3, v%d\nv_add_u32 v%d, %s, v%d\nv_lshl_add_u32 v%d, v%d, 3, %s" % (sT0, sW, sT0, sT0, u1, kc, u1, sT0, u1, u1, u1, sC))
            a.I("v_cmp_gt_u32 vcc, 32, v0\nv_cndmask_b32 v%d, v%d, v%d, vcc" % (u0, u1, u0))
            a.I("v_lshlrev_b32 v%d, 7, v%d\nv_add_u32 v%d, %d, v%d" % (u0, u0, u1, LY.FA + 128 * 128, u0)); put(aFB)
            a.I("s_getpc_b64 %s\nL_pc2:\ns_sub_u32 s4, s4, L_pc2-L_pc\ns_subb_u32 s5, s5, 0" % sPC)
            NG, Z, M0_, M1_ = rr, cc, q16, hh
            a.I("s_or_b32 %s, %s, %s\ns_cmp_eq_u32 %s, 0\ns_cselect_b64 s[56:57], -1, 0" % (sT0, sN, sW, sT0))
            a.I("v_mov_b32 v%d, %s\nv_mov_b32 v%d, 0\nv_lshlrev_b32 v%d, 2, v%d\nv_sub_u32 v%d, v%d, v%d" % (NG, NEG, Z, vA, g, vA, tok, vA))
            for r in range(4):
                a.I("v_subrev_u32 v%d, %d, v%d\nv_mov_b32 v%d, %s" % (u0, r, vA, M0_, "0xffff0000" if r & 1 else "0xffff"))
                a.I("v_cmp_gt_u32 vcc, 8, v%d\nv_cmp_gt_i32 s[58:59], -8, v%d\nv_cmp_le_i32 s[60:61], 0, v%d" % (u0, u0, u0))
                a.I("v_cndmask_b32 v%d, v%d, v%d, vcc" % (u1, NG, Z)); put(aBC + r)
                a.I("v_cndmask_b32 v%d, v%d, v%d, s[58:59]" % (u1, NG, Z)); put(aBP + r)
                a.I("v_cndmask_b32 v%d, v%d, v%d, s[56:57]" % (u1, u1, NG)); put(aBP0 + r)
                if r & 1:
                    a.I("v_cndmask_b32 v%d, v%d, v%d, s[60:61]\nv_or_b32 v%d, v%d, v%d" % (u1, Z, M0_, u1, u1, M1_)); put(aMC + r // 2)
                else:
                    a.I("v_cndmask_b32 v%d, v%d, v%d, s[60:61]" % (M1_, Z, M0_))
        n1, n2, n3 = OPT["xd1"], 32 - OPT["fa_ld"], 32 - OPT["fa_ck"]
        assert n1 <= 28
        a.I(carry(xd[:n1], consts1, OPT["xd_gap"], 99))
        flags()
        rest = carry(xd[n1:n2], consts2, OPT["xd_per"], OPT["xd_lag"])
        self.stamp("p")
        l_fa, g_fa = self.late_check("buffer_load_dword v%d, v%d, %s, 0 offen sc1" % (PB, FAV, WS), PB, "exec", "fa2")
        l_x, g_x = self.check_ops(0, sMA, PA, "x2")
        if OPT["h_def"] & 1:
            assert "s[58:59]" not in rest or "v_cmp_gt_i32 s[58:59]" in rest.split("s[58:59]")[0] + "s[58:59]"
            self.halo_flag()
        a.run_all(l_x + l_fa)
        a.I(carry(xd[n2:n3], lambda: a.I(rest), OPT["xd_per"], OPT["xd_lag"]) if n3 > n2 else rest)
        if OPT["t_pos"] == -1: a.run_all(self.flat(self.touch(aTO, "0", 0, 20)))
        if OPT["sib"] == 2: sibling()
        while len(swaps) > 1 and swaps[0][1][1] < max(3, min(OPT["x_pre"], n3 // 4)):
            a.run_all(swaps[:5]); swaps = swaps[5:]
        a.run_all(g_fa + g_x)
        a.ds_drain()
        self.stamp("p")
        self.x_rest, self.x_reads = xd[n3:], swaps

    def qkv(self, ps):
        a = self.a
        xi = 2 * ps
        late = self.wq_late(ps)
        lateb = ps == 0 and "b" not in OPT["order"] and not OPT["lead"]
        bst = []
        wql = [g for ch in late for g in self.wq_chunk(ch)]
        split = ps == 0 and OPT["q0_split"]
        HX, HW, HW2, HF, NM, RL, CQ, RR = 16, 17, 18, 19, 20, 26, 28, ACC + 52
        def setup():
            a.I(self.getc(HX, aHX))
            a.I("s_add_u32 %s, %s, 2048\nv_add_u32 v%d, %s, v%d\nv_add_u32 v%d, 0xc000, v%d\nv_and_b32 v%d, 0x380, v%d" % (sT2, sLW, HW, sT2, vL16, HW2, HW, CQ, vL16))
        if ps == 0 and OPT["xdir"]:
            a.forget(("fb", "xd"))
            if not OPT["lead"]: setup()
        else:
            self.poll(6 * ps, sMA, self.fav if ps == 0 and not split else None, setup)
        self.stamp()
        xl = self.reg_loads([vr(X + 8 * s + 4 * b, 4) for s in range(16) for b in range(2)], [sXLD] * 32,
                            [LY.XB[xi] + s * 2048 + b * 256 for s in range(16) for b in range(2)], sTA, vQ, "x")
        UP = OPT["q_up"] if ps else OPT["q0_up"]
        xdir = ps == 0 and OPT["xdir"]
        if xdir: xl = []
        if ps == 0:
            late = late[1:]
            n = 4 + OPT["q0_w"]
            first = wql[:4] + xl[:UP] + wql[4:n]
            if split:
                l_fa, g_fa = self.late_check("buffer_load_dword v%d, v%d, %s, 0 offen sc1" % (HF, self.fav, WS), HF, "exec", "fa")
                n1 = OPT["q0_n1"]
                first = xl[:n1] + [l_fa] + xl[n1:UP] + [g_fa + [("i", "s_barrier")]] + wql[:n]
            else:
                first = xl[:2] + [[("i", "s_barrier")]] + wql[:4] + xl[2:UP] + wql[4:n] + (self.halo0 if xdir and not OPT["lead"] else [])
                if OPT["lead"]:
                    assert n <= 12
                    k = 1 + OPT["q0_x"]
                    first[k:k] = [g + [("call", lambda: a.state.pop("m0", None))] for g in self.x_rest]
            wql = wql[n:]
            if OPT["b_pos"] >= 2:
                k = OPT["b_pos"] - 2
                a.run_all(self.flat(first[:k])); first = first[k:]
                self.b_loads(); a.state.pop("m0", None)
            inb = xdir and OPT["inb"]
            if inb:
                bpre, brd, bst2 = self.second_ops()
                if OPT["inb_at"]:
                    k = OPT["inb_at"] + 1
                    a.run_all(self.flat(first[:k])); first = first[k:]
                    self.b_loads(); a.state.pop("m0", None)
                a.I(bpre)
            elif lateb:
                k = len(first) - OPT["q0_b"]
                a.run_all(self.flat(first[:k])); first = first[k:]
                if OPT["b_pos"] >= 2 or xdir: a.vm_wait(("fb", 24576))
                a.I("s_barrier")
                bst = self.second_unit()
            a.run_all(self.flat(first))
        else:
            a.run_all(self.flat(xl[:UP]))
            if OPT["h_def"] & 2: self.halo_flag()
        if ps == 0:
            if OPT["lead"]:
                a.run_all(self.x_reads); setup()
            a.vm_wait(("wq", 0))
            if inb and OPT["inb_ch"] == 0: a.vm_wait(("fb", 24576))
        a.I("s_barrier")
        sl = Slots()
        sl.mpatience, sl.patience = OPT["q_mp%d" % ps], OPT["q_vp"]
        use = {}
        acc = lambda blk, b: vr(ACC + 8 * blk + 4 * b, 4)
        hbuf = lambda t: (F + 24, X)[t % 2]
        HR = OPT["hreg"]
        hwreg = (lambda t: X + 32 + 4 * t) if HR else hbuf
        T0 = X if HR else X + 34
        step0 = {}
        H0 = OPT["xd_h0"] if xdir else OPT["q_h0"]
        hpos = {}
        for t in range(16):
            p = (t * 6 * (16 - H0)) // 16 + 1
            hpos.setdefault((H0 + p // 6, p % 6), []).append(t)
        Y, Z = X + 8, X + 96
        BC, BP, BP0, MC, ONES, KW, CSA = Y, Y + 4, Y + 8, Y + 12, Y + 14, Y + 16, Y + 21
        def halo_mfma(t):
            d = acc(6, 0)
            if t < 16:
                i = sl.add("v_mfma_f32_16x16x32_bf16 %s, %s, %s, %s" % (d, vr(hbuf(t) + 4, 4), vr(hwreg(t), 4), "0" if t == 0 else d), [("wds", ("hw", t)), ("wds", ("hx", t))])
            else:
                i = sl.add("v_mfma_f32_16x16x16_bf16 %s, %s, %s, %s" % (d, vr(NM + 4, 2), vr(hbuf(t), 2), d), [("wds", ("hw", t))])
            use[("h", t)] = i
        for s in range(17):
            step0[s] = sl.n()
            if s == 16: halo_mfma(16)
            for f in range(6):
                for b in range(2):
                    pre_ = []
                    if b == 0: pre_.append(("wds", ("f", s, f // OPT["q_grp"] * OPT["q_grp"] + OPT["q_grp"] - 1)))
                    if f == 0 and s < 16 and not xdir: pre_.append(("wvm", ("x", 2 * s + (b if s == 0 else 1))))
                    w = vr(F + 4 * f, 4 if s < 16 else 2)
                    x = vr(X + 8 * s + 4 * b, 4) if s < 16 else vr(NM + 2 * b, 2)
                    A, B = (w, x) if f < 4 else (x, w)
                    d = acc(f, b)
                    mn = "v_mfma_f32_16x16x32_bf16" if s < 16 else "v_mfma_f32_16x16x16_bf16"
                    use[(s, f)] = sl.add("%s %s, %s, %s, %s" % (mn, d, A, B, "0" if s == 0 else d), pre_)
                for t in hpos.get((s, f), ()): halo_mfma(t)
        reads = []
        for s in range(17):
            for f in range(6):
                d = F + 4 * f
                if s < 16: t = "ds_read_b128 %s, %s" % (vr(d, 4), ldsaddr(s * 6144 + f * 1024))
                else: t = "ds_read2st64_b32 %s, v%d offset0:%d offset1:%d" % (vr(d, 2), CSA, 2 * f, 2 * f + 1)
                reads.append((use[(s - 1, f)] if s else -1, (6 * s + f) // 16, ("ds", t, ("f", s, f))))
        hbar = step0[H0 - 1] + 4
        for t in range(17):
            pos = use[("h", t - 2)] if t >= 2 else hbar + 2 + 2 * t
            if t < 16:
                reads.append((use[(max(5 + t // 2, t - 1), 1 + 3 * (t % 2))] if HR else pos, (6 * t + 5) // 16, ("ds", "ds_read_b128 %s, v%d offset:%d" % (vr(hwreg(t), 4), HW if t < 8 else HW2, (t % 8) * 6144), ("hw", t))))
                reads.append((pos + (1 if t >= 2 and not HR else 0), 0, ("ds", "ds_read_b128 %s, v%d offset:%d" % ((vr(hbuf(t) + 4, 4),) + ((T0 + t % 2, t // 2 * 1024) if xdir else (HX, t * 512))), ("hx", t))))
            else:
                reads.append((pos, 6, ("ds", "ds_read2st64_b32 %s, v%d offset0:4 offset1:5" % (vr(hbuf(t), 2), CSA + 1), ("hw", t))))
        sl.put("c", step0[4], [("i", "v_add_u32 v%d, 98304, v%d\ns_lshr_b32 %s, %s, 1\nv_add_u32 v%d, %s, v%d" % (CSA, vFL, sT2, sLW, CSA + 1, sT2, CSA)), ("mark", "csaddr")])
        sl.after(step0[14], ("need", "csaddr"))
        sl.pre[step0[16]].append(("wds", ("nm", 2)))
        chbar = {}
        for ch in late:
            ops = [("wvm", ("wq", ch)), ("i", "s_barrier")]
            p = chbar[ch] = min(p for p, c, _ in reads if c == ch)
            if ps == 0 and inb and ch == OPT["inb_ch"]: ops.insert(0, ("wvm", ("fb", 24576)))
            if lateb and ch == OPT["q0_fbch"]:
                ops.insert(0, ("wvm", "fbs"))
                assert p >= step0[5]
                sl.put("f", p + 1, [("i", "v_mov_b32 v%d, %s\n%s" % (X + 32, sNONCE, self.getc(X + 33, aLINE))),
                                    ("vm", "buffer_store_dword v%d, v%d, %s, %s offen sc1" % (X + 32, X + 33, WS, sFBO))])
            sl.after(p, *ops)
        sl.after(hbar, ("wvm", "halo"), ("i", "s_barrier"))
        if ps == 0 and inb:
            p = chbar.get(OPT["inb_ch"], -1) + 1
            sl.put("b", p, brd)
            for n_, g in enumerate(bst2): sl.put("b", p + OPT["inb_wait"] + n_ * OPT["inb_gap"], g)
            bfree = chbar[OPT["q0_fbch"]] + 2
        if xdir:
            assert H0 >= 7 and not OPT["diagpad"]
            sl.put("g", step0[5], [("i", self.getc(T0, aSH) + "\nv_xor_b32 v%d, 64, v%d" % (T0 + 1, T0)), ("mark", "hx0")])
            sl.after(hbar, ("need", "hx0"))
        for pos, _, rd in reads:
            if pos < 0: a.run(rd)
            else: sl.after(pos, rd)
        l_hf, g_chk = self.late_check("buffer_load_dword v%d, v%d, %s, %s offen sc1" % (HF, CQ, WS, sT1), HF, sMH, "hf")
        g_hf = [("i", "s_add_u32 %s, %s, %d" % (sT1, sHFL, ps * 16384))] + l_hf
        g_hd = self.dma_chunk(sHALO2, LY.HX[ps], L_HALO, 2, "halo", " sc1")
        g_hs = [("i", "s_add_u32 %s, %s, %d" % (sT1, sHALO, LY.HX[ps] + 8192 - L_HALO)),
                ("vm", "buffer_load_dwordx4 %s, v%d, %s, %s offen sc1" % (vr(RR + 8, 4), HX, WS, sT1), "st")]
        g_s0 = [("i", "s_add_u32 %s, %s, %d" % (sT0, sSLD, LY.SB[xi])), ("vm", "buffer_load_dwordx4 %s, v%d, %s, %s offen sc1" % (vr(RR, 4), vL16, WS, sT0))]
        g_s1 = [("vm", "buffer_load_dwordx4 %s, v%d, %s, %s offen offset:1024 sc1" % (vr(RR + 4, 4), vL16, WS, sT0))]
        wgq = []
        if HR:
            assert OPT["lead"]
            wbar = min(p for p in [hbar] + list(chbar.values()) if p >= step0[8])
            sl.post[wbar].insert(0, ("wds", ("hw", 5)))
            if ps and self.digits("wg_q1"):
                w2 = step0[max(11, OPT["q_wbar"])]
                while sl.post[w2]: w2 += 1
                sl.after(w2, ("wds", ("hw", 10)), ("i", "s_barrier"))
                assert set(self.digits("wg_q1")) <= {0, 1}
                wgq = [(w2 + 2, g) for g in self.wgs("q", ps)]
        else:
            wbar = max(use[("h", 6)] + 2, step0[OPT["xd_wbar" if xdir else "q_wbar"]])
            while sl.post[wbar]: wbar += 1
            sl.after(wbar, ("i", "s_barrier"))
        wo = [((bfree if ps == 0 and inb else 0) if i < 2 else wbar + 2, g) for i in range(4) for g in self.wo_chunk(i) if not (ps and OPT["skipo"] and WO_SLOT[i] in self.digits("keepo"))]
        rest = xl[UP:]
        h1 = OPT["q_hf"] if ps else OPT["q0_hf"]
        h2 = h1 + OPT["q_chk"] - 2
        seq = rest[:h1] + [g_hf, g_s0, g_s1] + rest[h1:h2] + [g_chk] + g_hd + [g_hs] + rest[h2:]
        if xdir:
            k1, k2 = OPT["xd_h1"], OPT["xd_h1"] + OPT["xd_h2"]
            seq = wql[:k1] + [g_hf, g_s0, g_s1] + (self.halo0 if OPT["lead"] else []) + wql[k1:k2] + [g_chk, g_hs] + wql[k2:]
        elif wql:
            due, d = [], sl.n()
            for g in reversed(seq):
                tag = g[-1][2] if len(g[-1]) > 2 else None
                if isinstance(tag, tuple) and tag[0] == "x": d = step0[tag[1] // 2]
                due.append((d, g))
            due.reverse()
            d, wdue = 0, []
            for g in reversed(wql):
                if g[-1][2] is not None: d = chbar[g[-1][2][1]] - OPT["q0_lead"]
                wdue.append((d, g)); d -= 6
            seq = [g for _, g in sorted(due + wdue[::-1], key=lambda t: t[0])]
        for n_, g in enumerate(bst):
            k = OPT["b_first"] + n_ * (OPT["b_gap"] + 1)
            assert not any(op[0] == "vm" and len(op) > 2 and isinstance(op[2], tuple) and op[2][0] == "x" and op[2][1] >= 24 for g2 in seq[:k] for op in g2)
            seq.insert(k, g)
        if ps == 0:
            tch = self.touch(aTO, "0", 0, T0 + 2) if OPT["t_set"] != "-" and OPT["t_pos"] >= 0 else []
            wo[OPT["t_pos"]:OPT["t_pos"]] = [(step0[OPT["t_step"]], g) for g in tch]
            l_fb, g_fb = self.late_check("%s\nbuffer_load_dword v%d, v%d, %s, 0 offen sc1" % (self.getc(Y + 23, aFB), Y + 23, Y + 23, WS), Y + 23, "exec", "fb")
            l_fb = [("i", l_fb[0][1].split("\n")[0]), ("vm", l_fb[0][1].split("\n")[1], "fb")]
            seq += [g + (OPT["q0_tail"] / 10,) for g in wo]
            if OPT["fb_at"] == "att":
                sl.put("f", step0[OPT["q0_fbs"]], l_fb)
                if OPT["wd_q"]:
                    p = step0[OPT["q0_fbs"] + OPT["q0_fbl"]]
                    sl.put("f", p, [("need", "hchk")] + g_fb); g_fb = []
                    g_chk.append(("mark", "hchk"))
                    assert not sl.pace(self.wds("q", ps), p + 2, (sl.n() - p - 4 - OPT["wd_e"]) / OPT["wd_q"], name="f")
            else:
                assert not (self.digits("wg_att0") or self.digits("wg_h10") or OPT["wd_att"] or OPT["wd_h1"])
                self.cold.pop(); g_fb = []
        else:
            seq += wo + wgq
        if OPT["cpf"] & 8: sl.put("g", step0[OPT["cp_q"]], self.flat(self.code_touch("L_qkv%d" % ps, CQ + 1)))
        sl.put("g", step0[12], self.flat(self.code_touch("L_wo%d" % ps, CQ + 1)))
        left = sl.pace(seq, 0, (OPT["q_every"] if ps else OPT["q0_every"]) / 10)
        A0, A1, AH = RR, RR + 4, RR + 8
        st = [[("wvm", "st")]]
        for r_ in (A0, A1, AH):
            st.append([("i", "v_add_f32 v%d, v%d, v%d" % (r_, r_, r_ + 2))])
            st.append([("i", "v_add_f32 v%d, v%d, v%d" % (r_ + 1, r_ + 1, r_ + 3))])
        for o in (0, 1): st.append([("i", "v_mov_b32 v%d, v%d" % (AH + 2 + o, AH + o))])
        for o in (0, 1): st.append([("i", "v_permlane32_swap_b32 v%d, v%d" % (A0 + o, A1 + o))])
        for o in (0, 1): st.append([("i", "v_permlane32_swap_b32 v%d, v%d" % (AH + o, AH + 2 + o))])
        for o in (0, 1): st.append([("i", "v_add_f32 v%d, v%d, v%d" % (A0 + o, A0 + o, A1 + o))])
        for o in (0, 1): st.append([("i", "v_add_f32 v%d, v%d, v%d" % (AH + o, AH + o, AH + 2 + o))])
        for o in (0, 1): st.append([("i", "v_permlane16_swap_b32 v%d, v%d" % (A0 + o, AH + o))])
        for o in (0, 1): st.append([("i", "v_add_f32 v%d, v%d, v%d" % (A0 + o, A0 + o, AH + o))])
        st += [[op] for op in self.ln_from_sums(A0, A0 + 1, A0 + 2)]
        st.append([("i", "v_cvt_pk_bf16_f32 v%d, -v%d, -v%d" % (A0, A0, A0))])
        st.append([("i", "v_add_u32 v%d, %s, v%d" % (HF, sTAB, vFL))])
        st.append(([("need", "bdone")] if ps == 0 and inb else []) + [("i", "v_and_or_b32 v30, v%d, 63, %s" % (vFL, sTAB))])
        st.append([("i", "v_and_or_b32 v31, v0, 48, %s" % sTAB)])
        st.append([("ds", "ds_write2st64_b32 v%d, v%d, v%d offset0:0 offset1:1" % (HF, A0 + 1, A0))])
        row = {0: 0, 1: 2, 2: 1}
        for b in range(3):
            o = 64 + row[b] * 16
            st.append([("ds", "ds_read2_b32 %s, v30 offset0:%d offset1:%d" % (vr(NM + 2 * b, 2), o, o), ("nm", b))])
        st.append([("ds", "ds_read2_b32 %s, v30 offset0:0 offset1:32" % vr(RL, 2))])
        for b in range(3):
            st.append([("ds", "ds_read_b128 %s, v31 offset:%d" % (vr(RR + 4 * b, 4), row[b] * 64), ("tab", b))])
        sl.spread(st, step0[OPT["xd_st"]] if xdir else step0[H0] - OPT["q_st"], step0[14])
        cst = [[("i", self.getc(Y + k, aBC + k))] for k in range(14)]
        cst += [[("i", "v_mov_b32 v%d, %s" % (ONES + k, sONE))] for k in range(2)]
        cst += [[("i", self.getc(KW, aHWR))], [("i", self.getc(KW + 3, aHWS))], [("i", "s_add_u32 %s, %s, %d" % (sT2, sLW2, L_KV))],
                [("i", "v_add_u32 v%d, v%d, v%d" % (KW + 1, KW, KW + 3))], [("i", "v_lshl_add_u32 v%d, v0, 3, %s" % (KW + 4, sT2))],
                [("i", "v_add_u32 v%d, v%d, v%d" % (KW + 2, KW + 1, KW + 3))], [("i", "v_add_u32 v%d, v%d, v%d" % (KW + 3, KW + 2, KW + 3))]]
        sl.spread(cst, step0[4] + 2, step0[8], "c")
        Qp = lambda b, h: Z + 4 * h + 2 * b
        Kp = lambda b, h: Z + 8 + 6 * h + 2 * (b + 1)
        Vp = lambda b, h: Z + 20 + 6 * h + 2 * (b + 1)
        HP, HA = HX, ACC + 48
        ar_ = lambda blk, b: ACC + 8 * blk + 4 * b
        cvt = lambda d, s_: "v_cvt_pk_bf16_f32 v%d, v%d, v%d" % (d, s_, s_ + 1)
        tl = [("wds", ("tab", 2)), ("i", "v_mul_f32 v%d, 0x3eb8aa3b, v%d\nv_mul_f32 v%d, 0x3eb8aa3b, v%d" % (CQ, RL, CQ + 1, RL + 1))]
        tl += [("i", "v_mul_f32 v%d, v%d, v%d" % (HA + r, HA + r, RR + 8 + r)) for r in range(4)]
        tl += [("i", cvt(HP, HA)), ("i", cvt(HP + 1, HA + 2))]
        hw = [("ds", "ds_write_b16%s v%d, v%d" % ("_d16_hi" if r & 1 else "", KW + r, HP + r // 2)) for r in range(4)]
        qs = [(h, b) for h in range(2) for b in range(2)]
        sl.put("v", step0[16], tl)
        for n_, (h, b) in enumerate(qs):
            sl.put("v", use[(16, h)], [hw[n_], ("i", cvt(Qp(b, h), ar_(h, b))), ("i", cvt(Qp(b, h) + 1, ar_(h, b) + 2))])
        self.lite(sl, "q", [step0[s] for s in (0, 2, 4, 6, 8, 10, 12, 14)])
        self.report("qkv%d" % ps, sl.emit(a))
        self.stamp()
        body = []
        e = lambda t: body.extend(("i", x) for x in t.split("\n"))
        def pack(dst, src): e(cvt(dst, src) + "\n" + cvt(dst + 1, src + 2))
        def scale_l(src, b):
            for k in range(2): e("v_pk_mul_f32 %s, %s, %s op_sel:[0,%d] op_sel_hi:[1,%d]" % (vr(src + 2 * k, 2), vr(src + 2 * k, 2), vr(RL, 2), b, b))
        def scale_r(src, r0):
            for k in range(2): e("v_pk_mul_f32 %s, %s, %s" % (vr(src + 2 * k, 2), vr(src + 2 * k, 2), vr(r0 + 2 * k, 2)))
        kvw = lambda src, part: body.append(("ds", "ds_write_b64 v%d, %s offset:%d" % (KW + 4, vr(src, 2), 2048 + 512 * part)))
        for h in range(2):
            scale_l(ar_(2 + h, 1), 1); pack(Kp(1, h), ar_(2 + h, 1)); kvw(Kp(1, h), h); scale_l(ar_(2 + h, 0), 0)
        for h in range(2):
            scale_r(ar_(4 + h, 1), RR + 4); pack(Vp(1, h), ar_(4 + h, 1)); kvw(Vp(1, h), 2 + h); scale_r(ar_(4 + h, 0), RR)
        units = [(1, 0), (1, 1), (0, 0), (0, 1)]
        SC = lambda u: F + 8 * u
        SP = lambda u: F + 8 * u + 4
        smf = lambda d, kb, u, bias: "v_mfma_f32_16x16x16_bf16 %s, %s, %s, %s" % (vr(d, 4), vr(Kp(kb, units[u][1]), 2), vr(Qp(*units[u]), 2), vr(bias, 4))
        M = [ACC + u for u in range(4)]
        def merge(u):
            return ["v_max_f32 v%d, v%d, v%d" % (SC(u) + r, SC(u) + r, SP(u) + r) for r in range(4)] + [
                "v_max3_f32 v%d, v%d, v%d, v%d" % (M[u], SC(u), SC(u) + 1, SC(u) + 2), "v_max_f32 v%d, v%d, v%d" % (M[u], M[u], SC(u) + 3)]
        e(smf(SC(0), 1, 0, BC)); pack(Kp(0, 0), ar_(2, 0))
        e(smf(SC(1), 1, 1, BC)); pack(Kp(0, 1), ar_(3, 0))
        e(smf(SP(0), 0, 0, BP))
        if ps == 0: body.extend(g_fb)
        body.extend(("wvm", ("wo", i)) for i in range(2) if not (ps and OPT["skipo"] and WO_SLOT[i] in self.digits("keepo")))
        body.append(("dsdrain",)); e("s_barrier")
        nbar = len(body)
        rdkv = lambda dst, part, tag: body.append(("ds", "ds_read_b64 %s, v%d offset:%d" % (vr(dst, 2), KW + 4, 512 * part), tag))
        e(smf(SP(1), 0, 1, BP)); rdkv(Kp(-1, 0), 0, ("kp", 0)); rdkv(Kp(-1, 1), 1, ("kp", 1))
        e(smf(SC(2), 0, 2, BC)); rdkv(Vp(-1, 0), 2, ("vp", 0)); rdkv(Vp(-1, 1), 3, ("vp", 1))
        e(smf(SC(3), 0, 3, BC)); pack(Vp(0, 0), ar_(4, 0)); pack(Vp(0, 1), ar_(5, 0))
        m0, m1 = merge(0), merge(1)
        e("\n".join(m0))
        body.append(("wds", ("kp", 1)))
        e(smf(SP(2), -1, 2, BP0)); e("\n".join(m1[:2]))
        e(smf(SP(3), -1, 3, BP0)); e("\n".join(m1[2:]))
        e("s_add_u32 %s, %s, %d" % (sT0, sOST, LY.OB[ps]))
        e("\n".join(merge(2)[:2]))
        e("v_permlane32_swap_b32 v%d, v%d" % (M[0], M[1]))
        e("\n".join(merge(2)[2:] + merge(3)))
        e("v_max_f32 v%d, v%d, v%d" % (M[0], M[0], M[1]))
        e("v_permlane32_swap_b32 v%d, v%d\nv_max_f32 v%d, v%d, v%d" % (M[2], M[3], M[2], M[2], M[3]))
        e("v_permlane16_swap_b32 v%d, v%d\nv_max_f32 v%d, v%d, v%d\nv_max_f32 v%d, v%d, v%d" % (M[0], M[2], M[1], M[0], M[2], M[2], M[0], M[2]))
        e("v_permlane16_swap_b32 v%d, v%d" % (M[1], M[2]))
        e("v_mul_f32 v%d, v%d, v%d\nv_mul_f32 v%d, v%d, v%d" % (M[0], M[1], CQ + 1, M[1], M[1], CQ + 1))
        e("v_mul_f32 v%d, v%d, v%d\nv_mul_f32 v%d, v%d, v%d" % (M[3], M[2], CQ, M[2], M[2], CQ))
        def shift(u):
            for k in range(2):
                e("v_pk_fma_f32 %s, %s, %s, %s op_sel:[0,%d,%d] op_sel_hi:[1,%d,%d] neg_lo:[0,0,1] neg_hi:[0,0,1]" %
                  (vr(SC(u) + 2 * k, 2), vr(SC(u) + 2 * k, 2), vr(CQ, 2), vr(ACC + 2 * (u // 2), 2), units[u][0], u % 2, units[u][0], u % 2))
        e("v_permlane32_swap_b32 v%d, v%d" % (M[0], M[1])); shift(0)
        e("v_permlane32_swap_b32 v%d, v%d" % (M[2], M[3])); shift(1); shift(2); shift(3)
        PM = lambda u: ACC + 4 + 2 * u
        PS = lambda u: ACC + 12 + 4 * u
        OP = lambda b: ACC + 28 + 4 * b
        pv = lambda u: "v_mfma_f32_16x16x32_bf16 %s, %s, %s, 0" % (vr(SC(u), 4), vr(Vp(units[u][0] - 1, units[u][1]), 4), vr(PS(u), 4))
        for u, (b, h) in enumerate(units):
            for r in range(4):
                e("v_exp_f32 v%d, v%d" % (SC(u) + r, SC(u) + r))
                if r == 1 and u >= 1: e(pv(u - 1))
            if u == 2: body.append(("wds", ("vp", 1)))
            if u >= 2: e("v_rcp_f32 v%d, v%d" % (SP(u - 2), SP(u - 2)))
            pack(PM(u), SC(u))
            for k in range(2):
                e("v_bfi_b32 v%d, v%d, 0, v%d\nv_and_b32 v%d, v%d, v%d" % (PS(u) + k, MC + k, PM(u) + k, PS(u) + 2 + k, MC + k, PM(u) + k))
            e("v_mfma_f32_16x16x16_bf16 %s, %s, %s, 0" % (vr(SP(u), 4), vr(ONES, 2), vr(PM(u), 2)))
        e("v_rcp_f32 v%d, v%d" % (SP(2), SP(2)))
        e(pv(3))
        def fin(u, packed):
            b, h = units[u]
            if packed:
                for k in range(2): e("v_pk_mul_f32 %s, %s, %s op_sel_hi:[1,0]" % (vr(SC(u) + 2 * k, 2), vr(SC(u) + 2 * k, 2), vr(SP(u), 2)))
            else:
                for r in range(4): e("v_mul_f32 v%d, v%d, v%d" % (SC(u) + r, SC(u) + r, SP(u)))
            pack(OP(b) + 2 * h, SC(u))
            if h == 1:
                body.append(("vm", "buffer_store_dwordx4 %s, v%d, %s, %s offen offset:%d%s" % (vr(OP(b), 4), vQ, WS, sT0, b * 256, " sc1" if ps == 0 and "o" not in OPT["t_set"] else ""), "o" if b == 0 else None))
        fin(0, False); fin(1, True)
        e("v_rcp_f32 v%d, v%d" % (SP(3), SP(3)))
        fin(2, True); fin(3, True)
        left = self.weave(body[:nbar], left, 0, OPT["a_every"])
        stop = len(body) - OPT["a_quiet"]
        left = self.weave(body[nbar:stop], left + self.wgs("att", ps) + self.wds("att", ps), 4, OPT["a_every"])
        a.run_all(body[stop:])
        print("  attention: %d groups left for the hand-off" % len(left))
        self.stamp()
        self.wo_pre(0, OPT["w_pre"])
        self.signal(6 * ps + 1, "o")
        a.run_all(self.flat(left + self.wgs("h1", ps) + self.wds("h1", ps)))
        self.stamp()

    def wds(self, where, ps):
        if ps: return []
        if self.wd is None:
            ks = [4 * s + cb for s in DN_ORD for cb in range(4)]
            self.wd = self.reg_loads([ar(4 * k, 4) for k in ks], [sWD] * 56, [k * 1024 for k in ks], sTD, vL16, "wd")
        n = OPT.get("wd_" + where, 56)
        out, self.wd = self.wd[:n], self.wd[n:]
        return out

    WREG = [X + 4 * k for k in range(16)] + [ACC + 16 + 4 * k for k in range(12)] + [F + 4 * k for k in range(8)]
    def wo_read(self, k):
        return ("ds", "ds_read_b128 %s, %s" % (vr(self.WREG[k % 36], 4), ldsaddr(WO_SLOT[k // 16] * 16384 + (k % 16) * 1024)), ("w", k))
    def wo_pre(self, k0, k1):
        for k in range(k0, k1): self.a.run(self.wo_read(k))

    def pair_swap(self, dst, src):
        a = self.a
        dpp = "quad_perm:[1,0,3,2] row_mask:0xf bank_mask:0xf"
        a.I("s_mov_b32 vcc_lo, 0x55555555\ns_mov_b32 vcc_hi, 0x55555555")
        for d in range(4): a.I("v_cndmask_b32_dpp v%d, v%d, v%d, vcc %s" % (dst + d, src + 4 + d, src + d, dpp))
        a.I("s_not_b64 vcc, vcc")
        for d in range(4): a.I("v_cndmask_b32_dpp v%d, v%d, v%d, vcc %s" % (dst + 4 + d, src + d, src + 4 + d, dpp))

    def finish(self, A, xo, h, pf, n, halo_pass):
        a = self.a
        for k in range(8): a.I("v_cvt_pk_bf16_f32 v%d, v%d, v%d" % (XRES + k, A + 2 * k, A + 2 * k + 1))
        if xo == 4:
            a.I(self.getc(16, aROW))
            self.pair_swap(F, XRES)
            for e_ in range(2): a.vm("buffer_store_dwordx4 %s, v16, %s, 0 offen offset:%d %s" % (vr(F + 4 * e_, 4), OUT, e_ * 2048, OPT["outf"].strip("-")))
            self.stamp()
            return
        self.publish(xo)
        self.stamp()
        a.run_all(self.flat(pf[:n]))
        self.signal(h, "pub", halo_pass, OPT["h_def"] & 2)
        a.run_all(self.flat(pf[n:]))
        self.stamp()

    def wo(self, ps):
        a = self.a
        def setup():
            for k in range(8):
                a.I("v_lshlrev_b32 v%d, 16, v%d\nv_and_b32 v%d, 0xffff0000, v%d" % (ACC + 2 * k, XRES + k, ACC + 2 * k + 1, XRES + k))
        keep = dict(a.ds_tag)
        if OPT["stamps"] and ps == 0:
            a.I("s_memtime s[%d:%d]" % (sST, sST + 1)); a.ds_drain(force=True); a.I("v_writelane_b32 v%d, s%d, 60" % (vSTAMP, sST))
        self.poll(6 * ps + 1, sMC, None, setup)
        a.ds_tag.update((t, n) for t, n in keep.items() if t[0] == "w")
        self.stamp()
        areg = lambda s: vr(X + 64 + 4 * s, 4)
        ld = self.reg_loads([areg(s) for s in range(16)], [sOL] * 16, [LY.OB[ps] + s * 2048 for s in range(16)], sTA, vQ, "act")
        UP = OPT["w_up"]
        g_fb = []
        if ps == 0 and OPT["fb_at"] == "wo":
            l_fb, g_fb = self.late_check("buffer_load_dword v17, v16, %s, 0 offen sc1" % WS, 17, "exec", "fb")
            ld[OPT["fb_k"]] = ld[OPT["fb_k"]] + [("i", self.getc(16, aFB))] + l_fb
        rest = [self.wo_read(k) for k in range(OPT["w_pre"], 32)]
        for n_, g in enumerate(ld[:UP]):
            a.run_all(g)
            if n_ >= 3: a.run_all(rest[:3]); rest = rest[3:]
        a.run_all(rest)
        a.I("s_barrier")
        self.wo_pre(32, 36)
        sl = Slots()
        for k in range(64):
            s, cb = divmod(k, 4)
            d = vr(ACC + 4 * cb, 4)
            sl.add("v_mfma_f32_16x16x32_bf16 %s, %s, %s, %s" % (d, vr(self.WREG[k % 36], 4), areg(s), d),
                   [("wds", ("w", k))] + ([("wvm", ("act", s))] if cb == 0 else []))
            if cb == 0 and s + UP < 16: sl.put("m", k, ld[s + UP])
            if k + 36 < 64: sl.put("r", k, [self.wo_read(k + 36)])
        pf = self.wgs("wo", ps) + self.wds("wo", ps)
        p0 = 64 - 4 * UP + 2
        if g_fb:
            p0 = max(p0, OPT["fb_s"])
            sl.put("m", p0 - 3, g_fb + [("i", "s_barrier")])
        pf = sl.pace(pf, p0, 4.4, 64 - OPT["w_quiet"])
        self.lite(sl, "wo", [8 * k for k in range(8)])
        self.report("wo%d" % ps, sl.emit(a))
        self.stamp()
        self.finish(ACC, 2 * ps + 1, 6 * ps + 2, pf + self.wgs("h2", ps) + self.wds("h2", ps), 0, None)

    def dn_plan(self, ps):
        order = [(i, s) for lv in DN_S for i in range(3) for s in lv] + [(3, s) for s in range(14)]
        areg = lambda k: vr(X + 48 + 4 * (k % 16), 4)
        ld = self.reg_loads([areg(k) for k in range(56)], [sHLD[i] for i, s in order], [LY.HB[ps] + s * 2048 for i, s in order], sTA, vQ, "act")
        return order, areg, ld

    def dn(self, ps, issued, wd):
        a = self.a
        order, areg, ld = self.dn_plan(ps)
        XW, XR, R, P, U = 16, 19, 20, (ACC, ACC + 16, ACC + 32), ACC + 48
        io = L_SCR_DN - 65536
        UP = OPT["k_up"]
        widx = {s: n_ for n_, s in enumerate(DN_ORD)}
        wd_e = [g for g in wd if g[-1][2][1] < 4 * N1]
        wd_l = [g for g in wd if g[-1][2][1] >= 4 * N1]
        a.run_all(self.flat(ld[issued:UP] + wd_e))
        a.ds_drain()
        a.I("s_barrier")
        sl = Slots()
        accr = lambda i, cb: (X, X + 16, X + 32, X + 112)[i] + 4 * cb
        seen, endb = set(), {}
        for k, (i, s) in enumerate(order):
            for cb in range(4):
                d = vr(accr(i, cb), 4)
                pre = [("wvm", ("act", k))] if cb == 0 else []
                tag = ("wd", 4 * widx[s] + cb)
                if i == 0 and (tag in a.vm_tag or any(g[-1][2] == tag for g in wd_l)): pre.append(("wvm", tag))
                endb[i] = sl.add("v_mfma_f32_16x16x32_bf16 %s, %s, %s, %s" % (d, ar(16 * s + 4 * cb, 4), areg(k), d if (i, cb) in seen else "0"), pre)
                seen.add((i, cb))
        chk = {3 * N1: self.chk2, 3 * N2: self.check_ops(6 * ps + 5, sMB, PA, "hf3")}
        if self.pending: sl.put("f", OPT["d_mid%d" % ps], self.pending)
        sl.put("f", OPT["d_sig%d" % ps], self.signal_ops(6 * ps + 5, "h6", PB))
        extra = list(wd_l)
        k0 = max(UP, issued)
        assert k0 <= 3 * N1
        for k in range(k0, 56):
            p = max(4 * (k - min(OPT["d_up2"], k0 + max(0, k - OPT["d_ramp"]) // 3)), int(OPT["d_min"] / 10 * (k - k0)))
            for kc_ in chk:
                if k == max(k0, kc_ - OPT["d_chk" if kc_ == 3 * N1 else "d_chk3"]): sl.put("m", max(p, OPT["d_f%d" % ps] if kc_ == 3 * N2 else 0), chk[kc_][0])
            if k in chk:
                due = [g for g in extra if g[-1][2][1] < (4 * N2 if k == 3 * N1 else 56)]
                sl.put("m", p, self.flat(due)); extra = extra[len(due):]
                sl.put("m", max(p, OPT["d_f%d" % ps] + OPT["d_flat"] if k == 3 * N2 and OPT["d_f%d" % ps] else 0), chk[k][1])
            sl.put("m", p, ld[k])
            sl.put("m", p, self.flat(extra[:1])); extra = extra[1:]
        su = [[("i", "v_add_u32 v%d, %s, v%d" % (XW + i, sXW[i], vL16b))] for i in range(3)] + [[("i", "v_add_u32 v%d, %s, v%d" % (XR, sXR, vL16b))]]
        su += [[("i", "s_lshl_b32 %s, %s, 2\ns_add_u32 %s, %s, %s\ns_lshl_b32 %s, %s, 6\ns_add_u32 %s, %s, %d\nv_and_or_b32 v%d, v%d, 63, %s" %
                 (sT0, sR, sT0, sT0, sW, sT0, sT0, sT0, sT0, L_RS, R, vFL, sT0)), ("ds", "ds_read_b32 v%d, v%d" % (R, R))]]
        for k in range(8):
            su += [[("i", "v_lshlrev_b32 v%d, 16, v%d" % (U + 2 * k, XRES + k))], [("i", "v_and_b32 v%d, 0xffff0000, v%d" % (U + 2 * k + 1, XRES + k))]]
        if OPT["g_c2"]: su.insert(3, [("need", "c2")])
        sl.spread(su, 30, 80)
        if ps == 0 and OPT["cpf"] & 4: sl.put("g", OPT["cp_d"], self.flat(self.code_touch("L_qkv1", 24)))
        writes = lambda i: [[("ds", "ds_write_b128 v%d, %s offset:%d" % (XW + i, vr(accr(i, cb), 4), io + cb * 1024))] for cb in range(4)]
        if OPT["d_w64"]:
            writes = lambda i: [[("ds", "ds_write_b64 v%d, %s offset:%d" % (XW + i, vr(accr(i, cb) + 2 * e_, 2), io + cb * 1024 + 8 * e_))] for cb in range(4) for e_ in range(2)]
        reads = lambda i: [[("ds", "ds_read_b128 %s, v%d offset:%d" % (vr(P[i] + 4 * cb, 4), XR, io + i * 4096 + cb * 1024), ("r", i, cb))] for cb in range(4)]
        add = lambda d, s_: [[("i", "v_add_f32 v%d, v%d, v%d" % (d + e_, d + e_, s_ + e_))] for e_ in range(16)]
        for i in range(3): sl.spread(writes(i), endb[i] + 2, endb[i] + 17)
        wb = []
        if ps and OPT["wb"]:
            go, back = a.label("wb"), a.label("wbback")
            self.cold.append("%s:\nbuffer_wbl2 sc1\ns_branch %s" % (go, back))
            wb = [[("i", "s_and_b32 %s, %s, %d\ns_or_b32 %s, %s, %s" % (sT1, sJ, 16 // OPT["wb"] - 1, sT1, sT1, sW)),
                   ("vm", "s_cmp_eq_u32 %s, 0\ns_cbranch_scc1 %s\nbuffer_load_dword a255, off, %s, %s nt\n%s:" % (sT1, go, WS, sFLG, back))]]
        seq = [[("dsdrain",), ("i", "s_barrier")]] + wb + reads(0) + reads(1) + reads(2) + [[("wds", ("r", 1, 3))]] + add(P[0], P[1]) + [[("wds", ("r", 2, 3))]] + add(P[0], P[2])
        seq += [[("i", "v_fma_f32 v%d, v%d, v%d, v%d" % (U + e_, P[0] + e_, R, U + e_))] for e_ in range(16)]
        sl.spread(seq, endb[2] + 20, endb[3] - 2)
        pf = [] if ps else [g for i in range(7) if i not in self.wq_late(1) + self.kept() for g in self.wq_chunk(i)]
        pf = sl.pace(pf, 224 - 4 * OPT["d_up2"] + 2, 4.4)
        self.lite(sl, "dn", [28 * k for k in range(8)])
        self.report("dn%d" % ps, sl.emit(a))
        self.stamp()
        A = accr(3, 0)
        for k in range(8): a.I("v_pk_fma_f32 %s, %s, %s, %s op_sel_hi:[1,0,1]" % (vr(A + 2 * k, 2), vr(A + 2 * k, 2), vr(R, 2), vr(U + 2 * k, 2)))
        self.finish(A, 2 * ps + 2, 6, pf, OPT["dn_pre"], 1)

    def gu(self, ps):
        a = self.a
        xi = 2 * ps + 1
        self.poll(6 * ps + 2, sMA)
        self.stamp()
        S0, TL, NR, XR_ = GS0, 16 - GS0, 8, 10
        SS, NM, HPK, CSA = 16, 24, 28, 21
        A0 = X + 80
        xreg = lambda s, b: X + 8 * (s % XR_) + 4 * b
        acc = lambda bl, m, b: A0 + 16 * bl + 8 * b + 4 * m
        xl = self.reg_loads([vr(xreg(s, b), 4) for s in range(16) for b in range(2)], [sXLD] * 32,
                            [LY.XB[xi] + s * 2048 + b * 256 for s in range(16) for b in range(2)], sTA, vQ, "x")
        UP = OPT["g_up"]
        a.run_all(self.flat(xl[:UP]))
        a.I("s_barrier")
        a.I("s_add_u32 %s, %s, %d" % (sT0, sSLD, LY.SB[xi]))
        g_st = [[("vm", "buffer_load_dwordx4 %s, v%d, %s, %s offen sc1" % (vr(SS, 4), vL16, WS, sT0))],
                [("vm", "buffer_load_dwordx4 %s, v%d, %s, %s offen offset:1024 sc1" % (vr(SS + 4, 4), vL16, WS, sT0), "st")]]
        early = self.wg_early(ps)
        NS = len(self.ring(ps))
        assert 0 in early and len(set(early)) == len(early) and all(c < NS and self.wg_slot(c, ps) not in WO_SLOT for c in early)
        assert all(self.wg_slot(c, ps) != 7 for c in self.digits("wg_att%d" % ps) + self.digits("wg_h1%d" % ps)) and not set(self.kept()) - {2, 3, 4, 5}
        frags = [(s, bl, m) for s in range(S0) for bl in range(7) for m in range(2)]
        for bl in range(7): frags += [(s, bl, m) for s in range(S0, 16) for m in range(2)] + [(16, bl, 0)]
        sl = Slots()
        sl.mpatience, sl.patience = OPT["g_mp%d" % ps], OPT["g_vp"]
        first, last, end, xfirst, xlast = {}, {}, {}, {}, {}
        for k, (s, bl, m) in enumerate(frags):
            w = F + 4 * (k % NR)
            for mm, b in ([(m, 0), (m, 1)] if s < 16 else [(0, 0), (0, 1), (1, 0), (1, 1)]):
                G_ = OPT["g_grp"]
                pre = [] if k in first else [("wds", ("f", min(k // G_ * G_ + G_ - 1, len(frags) - 1)))]
                d = vr(acc(bl, mm, b), 4)
                if s < 16:
                    if (s, b) not in xfirst: pre.append(("wvm", ("x", 2 * s + (b if s == 0 else 1))))
                    n_ = sl.add("v_mfma_f32_16x16x32_bf16 %s, %s, %s, %s" % (d, vr(w, 4), vr(xreg(s, b), 4), "0" if s == 0 else d), pre)
                    xfirst.setdefault((s, b), n_); xlast[(s, b)] = n_
                else:
                    n_ = sl.add("v_mfma_f32_16x16x16_bf16 %s, %s, %s, %s" % (d, vr(w + 2 * mm, 2), vr(NM + 2 * b, 2), d), pre)
                first.setdefault(k, n_); last[k] = n_
            end[bl] = n_
        LA = OPT["g_la"]
        def rd(k):
            off = self.wg_slot(k // 16, ps) * 16384 + (k % 16) * 1024
            d = F + 4 * (k % NR)
            if frags[k][0] < 16:
                return [("ds", "ds_read_b128 %s, %s" % (vr(d, 4), ldsaddr(off)), ("f", k))]
            return [("ds", "ds_read2st64_b32 %s, v%d offset0:%d offset1:%d" % (vr(d + 2 * m, 2), CSA + (off >> 16), (off & 0xffff) // 256 + 2 * m, (off & 0xffff) // 256 + 2 * m + 1),
                     ("f", k) if m else None) for m in range(2)]
        for k in range(LA): a.run_all(rd(k))
        barpos, real = {}, []
        retire = lambda c: min(p for p in real if p > last[16 * c + 15])
        for k in range(LA, len(frags)):
            if k % 16 == 0:
                ch = k // 16
                pair = ps == 1 and OPT["g_bar1"] == 2 and ch >= OPT["g_pair0"]
                if pair and (ch - OPT["g_pair0"]) % 2:
                    barpos[ch] = barpos[ch - 1]
                elif ch not in early or 2 <= ch <= 16 - NS:
                    p = barpos[ch] = last[k - LA] - 1
                    real.append(p)
                    need = ch + 1 if pair and ch < 14 else ch
                    if need not in early: sl.pre[p + 1].append(("wvm", ("wg", need)))
                    sl.after(p, *(([("wvm", ("wg", need))] if need not in early else []) + [("i", "s_barrier")]))
            sl.after(last[k - LA], *rd(k))
        wl = [(retire(ch - NS) + 2 if ch >= NS else 0, g) for ch in range(15) if ch not in early for g in self.wg_chunk(ch, ps)]
        wdue = [barpos[ch] - 8 * (len(self.wg_chunk(ch, ps)) - 1 - n_) for ch in range(15) if ch not in early for n_ in range(len(self.wg_chunk(ch, ps)))]
        wd = self.wds("rest", ps)
        tail0 = xfirst[(S0, 0)]
        xs = []
        for n_ in range(UP, 32):
            s, b = divmod(n_, 2)
            due = min(xfirst[(s, b)], tail0 - (31 - n_) * OPT["g_xsp"])
            xs.append((due, xlast[(s - XR_, b)] + 1 if s >= XR_ else 0, xl[n_]))
        n_ = OPT["g_stat"]
        xs[n_:n_] = [(xs[n_][0], 0, g) for g in g_st]
        P = lambda key: OPT["g_%s%d" % (key, ps)] / 10
        pos, fab, ix, iw, idd, seq = 0.0, 0.0, 0, 0, 0, []
        stop = end[6] - OPT["g_tail"]
        while ix < len(xs) or iw < len(wl) or (idd < len(wd) and pos <= stop):
            xok = ix < len(xs) and xs[ix][1] <= pos
            xu = xok and xs[ix][0] - pos <= P("xlead")
            wok = iw < len(wl) and wl[iw][0] <= pos
            wu = wok and wdue[iw] - pos <= P("wmin")
            free = fab <= pos + P("slack")
            if xu and (not wu or xs[ix][0] <= wdue[iw] - P("wmin") + P("xlead")): pick = "x"
            elif wu: pick = "w"
            elif free and wok and wdue[iw] - pos <= P("wmax"): pick = "w"
            elif free and idd < len(wd) and pos <= stop: pick = "d"
            elif xok and xs[ix][0] - pos <= P("xmax"): pick = "x"
            else:
                pos = int(pos) + 1; continue
            if pick == "x": g = xs[ix][2]; ix += 1
            elif pick == "w": g = wl[iw][1]; iw += 1; fab = max(fab, pos) + P("wcost")
            else: g = wd[idd]; idd += 1; fab = max(fab, pos) + P("dcost")
            behind = (ix < len(xs) and xs[ix][0] - pos < 0.7 * P("xlead")) or (iw < len(wl) and wdue[iw] - pos < 0.7 * P("wmin"))
            seq.append((pos, g)); pos += 2.0 if behind else P("every")
            if g is g_st[1]: stpos = pos
        assert not sl.pace(seq, 0, 0)
        left = wd[idd:]
        st = [[("wvm", "st")]]
        for r_ in (SS, SS + 4):
            for o in (0, 1): st.append([("i", "v_add_f32 v%d, v%d, v%d" % (r_ + o, r_ + o, r_ + 2 + o))])
        for o in (0, 1): st.append([("i", "v_permlane32_swap_b32 v%d, v%d" % (SS + o, SS + 4 + o))])
        for o in (0, 1): st.append([("i", "v_add_f32 v%d, v%d, v%d" % (SS + o, SS + o, SS + 4 + o))])
        for o in (0, 1): st.append([("i", "v_mov_b32 v%d, v%d" % (SS + 2 + o, SS + o))])
        for k in range(3): st.append([("i", "v_add_u32 v%d, %d, v%d" % (CSA + k, k << 16, vFL))])
        for o in (0, 1): st.append([("i", "v_permlane16_swap_b32 v%d, v%d" % (SS + o, SS + 2 + o))])
        for o in (0, 1): st.append([("i", "v_add_f32 v%d, v%d, v%d" % (SS + o, SS + o, SS + 2 + o))])
        st += [[op] for op in self.ln_from_sums(SS, SS + 1, SS + 2)]
        st += [[("i", "v_cvt_pk_bf16_f32 v%d, -v%d, -v%d" % (NM + k, SS, SS))] for k in range(4)]
        st += [[("i", "v_mul_f32 v%d, v%d, v%d" % (SS + 1, SS + 1, SS + 1))],
               [("i", "s_lshr_b32 %s, %s, 3\ns_add_u32 %s, %s, %d" % (sT0, sLW, sT0, sT0, L_RS))],
               [("i", "v_and_or_b32 v%d, v%d, 63, %s" % (SS, vFL, sT0))], [("i", "v_and_b32 v%d, 32, v0" % (SS + 2))],
               [("i", "v_lshl_add_u32 v%d, v%d, 1, v%d" % (SS, SS + 2, SS))]]
        st += [[("i", "v_permlane32_swap_b32 v%d, v%d" % (NM + k, NM + 2 + k))] for k in range(2)] + [[("mark", "nm")]]
        sl.after(tail0 - 2 * LA, ("need", "nm"))
        sl.spread(st, int(stpos) + 40, tail0 - 2 * LA - 10)
        def epi(bl, packed=False):
            g = []
            for b in range(2):
                ga = acc(bl, 0, b)
                g += [[("i", "v_max_f32 v%d, 0, v%d" % (ga + r, ga + r))] for r in range(4)]
                if packed: g += [[("i", "v_pk_mul_f32 %s, %s, %s" % (vr(ga + r, 2), vr(ga + r, 2), vr(ga + 4 + r, 2)))] for r in (0, 2)]
                else: g += [[("i", "v_mul_f32 v%d, v%d, v%d" % (ga + r, ga + r, ga + 4 + r))] for r in range(4)]
                g += [[("i", "v_cvt_pk_bf16_f32 v%d, v%d, v%d" % (HPK + 2 * b + k, ga + 2 * k, ga + 2 * k + 1))] for k in range(2)]
            g.append([("i", "s_add_u32 %s, %s, %s" % ((sTS, sTS, sHSTEP) if bl else (sTS, sHST, LY.HB[ps])))])
            g += [[("i", "v_permlane16_swap_b32 v%d, v%d" % (HPK + k, HPK + 2 + k))] for k in range(2)]
            g.append([("vm", "buffer_store_dwordx4 %s, v%d, %s, %s offen%s" % (vr(HPK, 4), vL16, WS, sTS, {"s": " sc1", "n": " nt", "p": ""}[OPT["h_st%d" % ps][bl]]), "h%d" % bl)])
            return g
        for bl in range(6): sl.spread(epi(bl), end[bl] + 1, end[bl + 1] - OPT["g_epi"])
        l_e, g_e = self.check_ops(6 * ps + 3, sMB, SS + 3, "he")
        sl.put("f", end[3 - LV] + OPT["g_sig%d" % ps], self.signal_ops(6 * ps + 3, "h%d" % (2 - LV), SS + 4))
        self.pending = self.signal_ops(6 * ps + 4, "h%d" % (4 - LV), SS + 4)
        if OPT["d_mid%d" % ps] < 0:
            sl.put("f", end[5 - LV] + OPT["g_sig%d" % ps], self.pending); self.pending = None
        self.chk2 = self.check_ops(6 * ps + 4, sMB, SS + 3 if OPT["g_c2"] else PA, "hf2")
        nh = OPT["g_h%d" % ps]
        assert S0 >= 10 and nh <= 12
        p = end[6] - OPT["g_chk%d" % ps]
        sl.put("h", p - OPT["g_lat%d" % ps], l_e)
        if nh:
            sl.put("h", p, g_e); g_e = []
            hl = self.dn_plan(ps)[2][:nh]
            if OPT["g_c2"]:
                hl.insert(nh + 1 - OPT["g_c2"], self.chk2[0]); self.chk2 = ([], self.chk2[1] + [("mark", "c2")])
            assert not sl.pace(hl, p + 1, min(4.4, (end[6] - p - 2) / len(hl)), name="h")
        if OPT["cpf"] & 2: sl.put("g", OPT["cp_g"], self.flat(self.code_touch("L_gu%d" % ps, HPK)))
        sl.put("g", tail0 + OPT["cp_t"], self.flat(self.code_touch("L_dn%d" % ps, SS + 3)))
        sl.put("c", max(tail0, retire(max(c for c in range(14) if self.wg_slot(c, ps) == 6)) + 1), [("ds", "ds_write_b32 v%d, v%d" % (SS, SS + 1))])
        if ps == 0:
            sl.put("c", end[6] - 8, [("i", "s_or_b32 %s, s2, %s" % (sT0, sW)), ("atom", "s_cmp_eq_u32 %s, 0\ns_cselect_b32 %s, %d, 0x%x" % (sT0, sT0, LY.EPOCH, OOB)),
                                     ("i", "v_mov_b32 v%d, %s" % (SS + 2, sNONCE)),
                                     ("vm", "buffer_store_dword v%d, v%d, %s, %s offen" % (SS + 2, vF1, WS, sT0))])
        self.lite(sl, "g", [56 * k for k in range(8)])
        self.report("gu%d" % ps, sl.emit(a))
        a.run_all(self.flat(epi(6, True)))

        self.stamp()
        a.run_all(g_e)
        self.stamp()
        print("  gu: %d loads left for the hand-off" % len(left))
        return nh, left

    def build(self):
        a = self.a
        (self.startup2 if OPT["lead"] else self.startup)()
        for ps in range(2):
            a.I("L_qkv%d:" % ps); self.qkv(ps)
            a.I("L_wo%d:" % ps); self.wo(ps)
            a.I("L_gu%d:" % ps); left = self.gu(ps)
            a.I("L_dn%d:" % ps); self.dn(ps, *left)
        if OPT["stamps"]:
            a.I("s_waitcnt vmcnt(0)\ns_memrealtime s[6:7]\ns_memtime s[80:81]\ns_waitcnt lgkmcnt(0)\nv_writelane_b32 v%d, s6, 63\nv_writelane_b32 v%d, s80, 61" % (vSTAMP, vSTAMP))
            a.I("s_lshl_b32 %s, s2, 10\ns_lshl_b32 %s, %s, 8\ns_add_u32 %s, %s, %s\ns_add_u32 %s, %s, %d" % (sT0, sT1, sW, sT0, sT0, sT1, sT0, sT0, LY.STAMP))
            a.I("buffer_store_dword v%d, v%d, %s, %s offen" % (vSTAMP, vFL, WS, sT0))
        if OPT["diagpad"]:
            a.I("s_mov_b32 s82, %d" % OPT["diagpad"])
            if OPT["diagat"]:
                a.I("s_sub_u32 s83, s%d, s14\ns_lshl_b32 s83, s83, 2" % sST)
                if OPT["diagwg"] >= 0: a.I("s_cmp_eq_u32 s2, %d\ns_cselect_b32 s83, s83, 0" % OPT["diagwg"])
                a.I("s_add_u32 s82, s82, s83")
            a.I("L_pad:\ns_memrealtime s[80:81]\ns_waitcnt lgkmcnt(0)\ns_sub_u32 s80, s80, s14\ns_cmp_lt_u32 s80, s82\ns_cbranch_scc1 L_pad")
        a.I("L_main_done:\ns_endpgm")
        for c in self.cold: a.I(c)
        a.I("L_code_end:")
        return a.lines

def main():
    ml, n2 = hazard_pass(Main().build())
    bad = check_async(ml)
    assert not bad, bad[:3]
    if OPT["lead"]:
        i, j, k = ml.index("s_cbranch_scc1 L_follow"), ml.index("L_follow:"), ml.index("s_branch L_join")
        alt = ml[:i + 1] + ml[j:k + 1] + ml[ml.index("L_join:"):j]
        bad = check_async(alt)
        assert not bad and hazard_pass(alt)[1] == 0, bad[:3]
    k = NAME + "_kernel"
    out = ["; Generated by gen/gen.py: one persistent kernel (weight re-layout, then four layers with flag hand-offs). " + " ".join(sys.argv[2:]),
           "; @launch grid=(256,1,1) block=(256,1,1) lds=163840",
           '.amdgcn_target "amdgcn-amd-amdhsa--gfx950"', ".text",
           ".globl %s" % k, ".p2align 8", ".type %s,@function" % k]
    out += [l if l.endswith(":") else "    " + l for l in ml]
    out += ['.section .rodata,"a"', ".p2align 6", """.amdhsa_kernel %s
  .amdhsa_next_free_vgpr 512
  .amdhsa_next_free_sgpr 102
  .amdhsa_accum_offset 256
  .amdhsa_group_segment_fixed_size 0
  .amdhsa_kernarg_size 80
  .amdhsa_user_sgpr_count 2
  .amdhsa_user_sgpr_kernarg_segment_ptr 1
  .amdhsa_system_sgpr_workgroup_id_x 1
  .amdhsa_float_denorm_mode_32 3
.end_amdhsa_kernel""" % k]
    if OPT["rt"]: out = [l.replace("s_memtime", "s_memrealtime") for l in out]
    open(sys.argv[1], "w").write("\n".join(out) + "\n")
    print("instructions: %d ; wait states added: %d" % (len(ml), n2))

main()
```

```python
import sys
from dsl import Asm, Slots, hazard_pass, check_async
import layout as LY

NAME = "interleave_layers__sliding_local_dilated__glu_gated_reglu__prompt"
OPT = dict(stamps=0, lite="-", hitw=0,
           q_up=8, q_every=42, q_hf=12, q_chk=6, q_h0=11, a_every=14, k_up=8, g_up=4, g_tail=0, g_la=7, g_xsp=11, g_stat=6,
           g_every0=36, g_xlead0=400, g_wmin0=600, g_wmax0=1000, g_slack0=40, g_wcost0=60, g_dcost0=30,
           g_xmax0=9000, g_xmax1=800, g_every1=46, g_xlead1=400, g_wmin1=560, g_wmax1=700, g_slack1=40, g_wcost1=60, g_dcost1=30,
           wq_late1="-", dn_pre=6, q0_up=6, q0_lead=20, q0_every=40,
           wg_att0="0", wg_h10="-", wg_wo0="1", wg_h20="-",
           wg_att1="2", wg_h11="-", wg_wo1="3", wg_h21="-",
           hreg=1, h_late=0, h_rb0="-", h_rb1="-", d_own=0, h_hold0="-", h_hold1="-", eb=1, h_def=0, q0_fbl=3, wd_e=0, t_step=5, wg_q0="-", wg_q1="01", keep="2345", keepo="-", skipo=0, q_wbar=12, w_pre=20, w_up=8, w_quiet=12, d_sig0=16, d_sig1=16, d_up2=11, d_ramp=8, d_mid0=-1, d_mid1=-1, d_chk=8, d_chk3=8, d_f0=0, d_f1=0, d_min=0, g_c2=0, d_flat=20, g_epi=6, g_sig0=27, g_sig1=16, g_chk0=20, g_chk1=26, g_lat0=18, g_lat1=18, g_h0=4, g_h1=6,
           touch=0, h_st0="sssssss", h_st1="sspppp p".replace(" ", ""), x0f="sc1", wb=1, otouch=1, diagpad=0, diagat=0, diagwg=100, b_pos=1, q0_split=0, q0_n1=6, q0_hf=6, order="aoc", rt=0, lead=1, follow="xgucd", fa_ld=4, x_pre=3, sib=0, fa_ck=0, q0_x=4, rot=0, xdir=1, xd0=2, xd1=8, xd_lag=14, xd_pre=0, xd_per=7, t_set="ox", t_pos=16, fb_at="att", fb_k=7, fb_s=36, inb=0, inb_at=0, inb_ch=1, inb_gap=6, inb_wait=0, xd_gap=6, xd_h1=0, xd_h2=6, xd_h0=8, xd_st=8, xd_wbar=10, q_mp0=999, q_mp1=2, q_vp=10, g_mp0=2, g_mp1=999, g_vp=10, d_w64=0, q_st=0, g_grp=3, q_grp=3, g_bar1=2, g_pair0=13, outf="nt", c_early=0, b_spread=0, b_first=0, b_gap=3, pollf="nt", actf="sc1", wf="sc1", cpf=7, cp_g=60, cp_t=0, cp_d=150, cp_q=6, predrain=0, q0_b=0, q0_fbch=3, q0_fbs=9, q0_w=8, q0_tail=36, a_quiet=30, wd_q=10, wd_att=0, wd_h1=0, wd_wo=0, wd_h2=0)
for arg in sys.argv[2:]:
    k, v = arg.split("=")
    OPT[k] = v if isinstance(OPT[k], str) else int(v)

def vr(b, n): return "v[%d:%d]" % (b, b + n - 1)
def ar(b, n): return "a[%d:%d]" % (b, b + n - 1)
def magic(d): return (1 << 32) // d + 1
OOB = 0x40000000
GS0 = LY.GS0

WS, XIN, OUT = "s[8:11]", "s[12:15]", "s[16:19]"
sW, sJ, sR, sC, sG, sN, sNONCE, sSLOW = ("s%d" % i for i in range(20, 28))
sGB, sXLD, sXST, sOST, sXR, sHST, sSLD, sWQ, sWG, sWO, sWD, sLW = ("s%d" % i for i in range(28, 40))
sMA, sMB = "s[40:41]", "s[42:43]"
sFLG, sFLW, sHALO, sHFL, sTAB, sSST, sONE, sHDST, sHDFL, sP = ("s%d" % i for i in range(44, 54))
sMH = "s[54:55]"
sTA, sTW, sTD, sTS, sT0, sT1, sT2, sSPIN = ("s%d" % i for i in range(56, 64))
sHLD = ["s%d" % i for i in range(68, 72)]
sXW = ["s%d" % i for i in range(72, 75)]
sFBO, sB0, sB1, sB2, sB3 = "s75", "s76", "s77", "s78", "s79"
SRC_A, SRC_G, SRC_U, SRC_D = 80, 84, 88, 92
sLW2, sLW4, sWQ4, sWG4 = "s96", "s97", "s98", "s99"
sST = 100
LITE = (84, 86, 88, 90, 92, 94, 76, 78)
sHALO2 = sP
sNH, sCPO, sPC, sSLOW2 = "s12", "s13", "s[4:5]", "s[0:1]"
sOL, sHSTEP, sMC = "s64", "s65", "s[66:67]"
vL, vL16, vL16b, vL16c, vQ, vF1, vFL, vSTAMP = 0, 1, 2, 3, 4, 5, 6, 7
XRES = 8
PA, PB = 22, 23
X, ACC, F = 32, 160, 224
aROW, aST, aSQ, aSH, aSG, aHX, aHWR, aHWS, aHST, aHSS, aFB, aLINE, aTO, aTH = range(224, 238)
aBC, aBP, aBP0, aMC = 240, 244, 248, 252
L_HALO, L_RS, L_KV, L_TAB, L_FMT = 102400, 110592, 114688, 124928, 131072
L_SCR_DN = 114688
WO_SLOT = (8, 9, 0, 1)
DN_S = ((2, 3, 4, 9, 10, 11), (1, 5, 8, 12), (0, 6, 7, 13))
LV = LY.LV
if LV: DN_S = DN_S[::-1]
DN_ORD = sum(DN_S, ())
N1, N2 = len(DN_S[0]), len(DN_S[0]) + len(DN_S[1])
BIT = "s_bitcmp0_b32" if LV else "s_bitcmp1_b32"
NEG = "0xf149f2ca"

def ldsaddr(off):
    return "v%d offset:%d" % ((vL16, vL16b, vL16c)[off >> 16], off & 0xffff)

def isvm(g): return any(op[0] == "vm" for op in g)

class Main:
    def __init__(self):
        self.a = Asm()
        self.nstamp = 0
        self.cold = []
        self.nlite = 0
        self.wd = None
        self.ncall = 0

    def stamp(self, key=None):
        self.ncall += 1
        if OPT["diagpad"] and OPT["diagat"] == self.ncall:
            self.a.I("s_memrealtime s[%d:%d]" % (sST, sST + 1))
            self.a.ds_drain(force=True)
        if OPT["stamps"] != 1 or (key is not None and OPT["lite"] != key):
            return
        a = self.a
        a.I("s_memtime s[%d:%d]" % (sST, sST + 1))
        a.ds_drain(force=True)
        for k in range(self.nlite):
            a.I("v_writelane_b32 v%d, s%d, %d" % (vSTAMP, LITE[k], self.nstamp))
            self.nstamp += 1
        self.nlite = 0
        a.I("v_writelane_b32 v%d, s%d, %d" % (vSTAMP, sST, self.nstamp))
        self.nstamp += 1

    def lite(self, sl, key, slots):
        if OPT["lite"] != key:
            return
        for i in slots[:8]:
            sl.after(i, ("i", "s_memtime s[%d:%d]" % (LITE[self.nlite], LITE[self.nlite] + 1)))
            self.nlite += 1

    def report(self, name, r):
        print("  %s: cycles over budget %d, ops left after the loop %d" % ((name,) + r))

    def getc(self, v, acc): return "v_accvgpr_read_b32 v%d, a%d" % (v, acc)
    def flat(self, groups): return [op for g in groups for op in g]
    def digits(self, key): return tuple(int(c, 16) for c in str(OPT[key]) if c != "-")
    def wgs(self, where, ps): return [g for i in self.digits("wg_%s%d" % (where, ps)) for g in self.wg_chunk(i, ps)]
    def wg_early(self, ps): return sum((self.digits("wg_%s%d" % (w, ps)) for w in ("q", "att", "h1", "wo", "h2")), ())
    def wq_late(self, ps): return tuple(range(7)) if ps == 0 else self.digits("wq_late1")

    def srd(self, base, lo, hi, nbytes):
        self.a.I("s_mov_b32 s%d, %s\ns_and_b32 s%d, %s, 0xffff\ns_mov_b32 s%d, %s\ns_mov_b32 s%d, 0x20000" %
                 (base, lo, base + 1, hi, base + 2, nbytes, base + 3))

    def lin(self, dst, base, terms):
        first = True
        for reg, mul in terms:
            self.a.I("s_mul_i32 %s, %s, %d\ns_add_u32 %s, %s, %s" % (sT2, reg, mul, dst, base if first else dst, sT2))
            first = False

    def sdivmod(self, q, r, x, d):
        self.a.I("s_mul_hi_u32 %s, %s, 0x%x\ns_mul_i32 %s, %s, %d\ns_sub_u32 %s, %s, %s" % (q, x, magic(d), sT2, q, d, r, x, sT2))

    def hi_lo(self, dst, src, t):
        return ["v_cvt_pk_bf16_f32 v%d, v%d, v%d" % (dst, src, src), "v_lshlrev_b32 v%d, 16, v%d" % (t, dst),
                "v_sub_f32 v%d, v%d, v%d" % (t, src, t), "v_cvt_pk_bf16_f32 v%d, v%d, v%d" % (dst, src, t)]

    def scc_live(self, body, n):
        for t in body[n:]:
            mn = t.split()[0]
            if mn.startswith(("s_cselect", "s_subb", "s_addc", "s_cbranch_scc")) or t.endswith(":"): return True
            if mn.startswith(("s_cmp", "s_bitcmp", "s_add_", "s_sub_", "s_and_", "s_or_", "s_xor_", "s_lshl", "s_lshr", "s_min", "s_max", "s_bfe")): return False
        return False

    def weave(self, body, groups, first, every):
        k = 0
        for n_, op in enumerate(body):
            if n_ >= first and (n_ - first) % every == 0:
                while k < len(groups):
                    g = groups[k]; k += 1
                    self.a.run_all(g)
                    if isvm(g): break
            self.a.run(op)
        return groups[k:]

    def signal(self, h, wait=None, halo_pass=None, defer=False):
        a = self.a
        slow, done = a.label("slow"), a.label("sig")
        a.I("s_add_u32 %s, %s, %d\nv_mov_b32 v30, %s" % (sNH, sNONCE, h, sNH))
        if halo_pass is not None:
            h1, b1, h2, b2 = a.label("halo"), a.label("hback"), a.label("halo"), a.label("hback")
            n = a.vm_n - max(a.vm_tag[wait], a.vm_done)
            nx = 0 if halo_pass == 0 and OPT["xdir"] else 2
            a.I("s_cmp_lg_u32 %s, 0x%x\ns_cbranch_scc1 %s" % (sHDST, OOB, h1))
            st = "\n".join("buffer_store_dwordx4 %s, v24, %s, %s offen offset:%d sc1" % (vr(XRES + 4 * e, 4), WS, sTS, e * 512) for e in range(nx))
            self.cold.append("%s:\n%s\n%s\ns_add_u32 %s, %s, %d\n%s\nbuffer_store_dword v26, v25, %s, %s offen sc1\ns_waitcnt vmcnt(%d)\ns_branch %s" %
                             (h1, self.getc(24, aHST), self.getc(25, aHSS), sTS, sHDST, LY.HX[halo_pass], st, WS, sTS, n + 1 + nx, b1))
            a.vm_wait(wait)
            a.I("%s:\ns_cmp_lg_u32 %s, 0" % (b1, sSLOW))
        else:
            a.I("s_cmp_lg_u32 %s, 0" % sSLOW)
            if wait is None: a.vm_drain()
            else: a.vm_wait(wait)
        a.I("s_cbranch_scc1 %s" % slow)
        seq = a.vm("buffer_store_dword v30, v%d, %s, %s offen" % (vF1, WS, sFLW))
        a.I("%s:" % done)
        self.cold.append("%s:\nbuffer_wbl2 sc1\ns_waitcnt vmcnt(0)\nbuffer_store_dword v30, v%d, %s, %s offen sc1\ns_branch %s" % (slow, vF1, WS, sFLW, done))
        self.sent = h
        def halo_flag():
            self.cold.append("%s:\ns_add_u32 %s, %s, %d\nv_mov_b32 v24, %s\n%s\ns_waitcnt vmcnt(%d)\nbuffer_store_dword v24, v25, %s, %s offen sc1\ns_branch %s" %
                             (h2, sTS, sHDFL, halo_pass * 16384, sNONCE, self.getc(25, aLINE), a.vm_n - seq + 1, WS, sTS, b2))
            a.I("s_cmp_lg_u32 %s, 0x%x\ns_cbranch_scc1 %s\n%s:" % (sHDST, OOB, h2, b2))
        if halo_pass is not None:
            if defer: self.halo_flag = halo_flag
            else: halo_flag()

    def poll(self, h, mask, also=None, setup=None):
        a = self.a
        a.forget()
        assert self.sent == h
        if setup: setup()
        def loop(name, fl):
            ld = "buffer_load_dword v%d, v%d, %s, %s offen %s" % (PA, vFL, WS, sFLG, fl)
            ts = "v_subrev_u32 v%d, %s, v%d\nv_cmp_lt_u32 vcc, 15, v%d\ns_and_b64 vcc, vcc, %s" % (PA, sNH, PA, PA, mask)
            if also is not None:
                ld += "\nbuffer_load_dword v%d, v%d, %s, 0 offen sc1" % (PB, also, WS)
                ts = "v_cmp_ne_u32 s[60:61], %s, v%d\n%s\ns_or_b64 vcc, vcc, s[60:61]" % (sNONCE, PB, ts)
            return "%s:\n%s\ns_sub_u32 %s, %s, 1\ns_cbranch_scc1 L_main_done\ns_waitcnt vmcnt(0)\n%s\ns_cbranch_scc1 %s" % (name, ld, sSPIN, sSPIN, ts, name)
        far, ok = a.label("far"), a.label("ok")
        a.I("s_mov_b32 %s, 0x40000\ns_cmp_lg_u32 %s, 0\ns_cbranch_scc1 %s" % (sSPIN, sSLOW, far))
        a.I(loop(a.label("poll"), OPT["pollf"]) + "\n%s:" % ok)
        a.vm_done = a.vm_n
        self.cold.append(loop(far, "sc1") + "\nbuffer_inv sc1\ns_waitcnt vmcnt(0)\ns_branch %s" % ok)

    def halo_late(self, hp):
        a = self.a
        h1, b1, h2, b2 = a.label("halo"), a.label("hback"), a.label("halo"), a.label("hback")
        st = "\n".join("buffer_store_dwordx4 %s, v24, %s, %s offen offset:%d sc1" % (vr(XRES + 4 * e, 4), WS, sTS, e * 512) for e in range(2))
        self.cold.append("%s:\n%s\n%s\ns_add_u32 %s, %s, %d\n%s\nbuffer_store_dword v26, v25, %s, %s offen sc1\ns_branch %s" %
                         (h1, self.getc(24, aHST), self.getc(25, aHSS), sTS, sHDST, LY.HX[hp], st, WS, sTS, b1))
        a.I("s_cmp_lg_u32 %s, 0x%x\ns_cbranch_scc1 %s\n%s:" % (sHDST, OOB, h1, b1))
        seq = a.vm_n
        def flag():
            self.cold.append("%s:\ns_add_u32 %s, %s, %d\nv_mov_b32 v24, %s\n%s\ns_waitcnt vmcnt(%d)\nbuffer_store_dword v24, v25, %s, %s offen sc1\ns_branch %s" %
                             (h2, sTS, sHDFL, hp * 16384, sNONCE, self.getc(25, aLINE), a.vm_n - seq, WS, sTS, b2))
        return [("call", flag), ("atom", "s_cmp_lg_u32 %s, 0x%x\ns_cbranch_scc1 %s\n%s:" % (sHDST, OOB, h2, b2))]

    def signal_ops(self, h, wait, reg):
        a = self.a
        slow, done = a.label("slow"), a.label("sig")
        self.cold.append("%s:\nbuffer_wbl2 sc1\ns_waitcnt vmcnt(0)\nbuffer_store_dword v%d, v%d, %s, %s offen sc1\ns_branch %s" % (slow, reg, vF1, WS, sFLW, done))
        return [("i", "s_add_u32 %s, %s, %d" % (sNH, sNONCE, h)), ("i", "v_mov_b32 v%d, %s" % (reg, sNH)), ("wvm", wait),
                ("vm", "s_cmp_lg_u32 %s, 0\ns_cbranch_scc1 %s\nbuffer_store_dword v%d, v%d, %s, %s offen\n%s:" % (sSLOW, slow, reg, vF1, WS, sFLW, done))]

    def check_ops(self, h, mask, reg, tag):
        a = self.a
        spin, back = a.label("cspin"), a.label("cback")
        ld = lambda fl: "buffer_load_dword v%d, v%d, %s, %s offen %s" % (reg, vFL, WS, sFLG, fl)
        t = ["v_subrev_u32 v%d, s3, v%d" % (reg, reg), "v_cmp_lt_u32 vcc, 15, v%d" % reg, "s_and_b64 vcc, vcc, %s" % mask]
        loop = lambda name, fl: "%s:\n%s\ns_sub_u32 %s, %s, 1\ns_cbranch_scc1 L_main_done\ns_waitcnt vmcnt(0)\n%s\ns_cbranch_scc1 %s" % (name, ld(fl), sSPIN, sSPIN, "\n".join(t), name)
        self.cold.append("%s:\ns_mov_b32 %s, 0x40000\ns_cmp_lg_u32 %s, 0\ns_cbranch_scc1 %s_f\n%s\ns_branch %s\n%s\nbuffer_inv sc1\ns_waitcnt vmcnt(0)\ns_branch %s" %
                         (spin, sSPIN, sSLOW, spin, loop(spin + "_n", OPT["pollf"]), back, loop(spin + "_f", "sc1"), back))
        return [("vm", ld(OPT["pollf"]), tag)], [("i", "s_add_u32 s3, %s, %d" % (sNONCE, h)), ("wvm", tag), ("i", t[0]), ("i", t[1]),
                                                ("atom", "%s\ns_or_b64 vcc, vcc, %s\ns_cbranch_scc1 %s\n%s:" % (t[2], sSLOW2, spin, back))]

    def late_check(self, load, reg, mask, tag):
        a = self.a
        spin, back = a.label("lspin"), a.label("lback")
        cmp_, and_ = "v_cmp_ne_u32 vcc, %s, v%d" % (sNONCE, reg), "s_and_b64 vcc, vcc, %s" % mask
        self.cold.append("%s:\ns_mov_b32 %s, 0x40000\n%s_l:\n%s\ns_sub_u32 %s, %s, 1\ns_cbranch_scc1 L_main_done\ns_waitcnt vmcnt(0)\n%s\n%s\ns_cbranch_scc1 %s_l\ns_branch %s"
                         % (spin, sSPIN, spin, load, sSPIN, sSPIN, cmp_, and_, spin, back))
        return [("vm", load, tag)], [("wvm", tag), ("i", cmp_), ("atom", and_ + "\ns_cbranch_scc1 %s\n%s:" % (spin, back))]

    def dma_chunk(self, sbase, goff, loff, n, tag, sc=""):
        sw = {1: sLW, 2: sLW2, 4: sLW4}[n]
        setup = [("set", sTW, "s_add_u32 %s, %s, %d" % (sTW, sbase, goff)), ("set", "m0", "s_add_u32 m0, %s, %d" % (sw, loff))]
        return [setup + [("vm", "buffer_load_dwordx4 v%d, %s, %s offen offset:%d%s lds" % (vL16, WS, sTW, k * 1024, sc), tag if k == n - 1 else None)]
                for k in range(n)]

    def wq_chunk(self, i): return self.dma_chunk(sWQ4 if i < 6 else sWQ, i * 16384, i * 16384, 4 if i < 6 else 1, ("wq", i), " " + OPT["wf"].strip("-"))
    def kept(self): return self.digits("keep")
    def ring(self, ps):
        return [k for k in (2, 3, 4, 5, 6, 7, 8, 9, 0, 1) if ps or k not in self.kept() + self.digits("keepo")]
    def wg_slot(self, i, ps): return self.ring(ps)[i % len(self.ring(ps))]
    def wo_chunk(self, i): return self.dma_chunk(sWO, i * 16384, WO_SLOT[i] * 16384, 4, ("wo", i), " " + OPT["wf"].strip("-"))
    def wg_chunk(self, i, ps): return self.dma_chunk(sWG4 if i < 14 else sWG, i * 16384, self.wg_slot(i, ps) * 16384, 4 if i < 14 else 2, ("wg", i), " " + OPT["wf"].strip("-"))

    def reg_loads(self, dsts, bases, offs, stmp, vaddr, tagbase):
        ops, cur = [], None
        for k, (d, sb, off) in enumerate(zip(dsts, bases, offs)):
            if cur is None or cur[0] != sb or not (0 <= off - cur[1] < 4096):
                cur = (sb, off)
            ops.append([("set", stmp, "s_add_u32 %s, %s, %d" % (stmp, sb, cur[1])),
                        ("vm", "buffer_load_dwordx4 %s, v%d, %s, %s offen offset:%d %s" % (d, vaddr, WS, stmp, off - cur[1], OPT["wf" if tagbase[0] == "w" else "actf"].strip("-")), (tagbase, k))])
        return ops

    def touch(self, acc, sbase, off, tmp):
        return [[("i", self.getc(tmp, acc) + "\ns_add_u32 %s, %s, %d" % (sT1, sbase, off)),
                 ("vm", "buffer_load_dword a255, v%d, %s, %s offen sc1" % (tmp, WS, sT1))]]

    def code_touch(self, label, tmp, n=1):
        if not OPT["cpf"]: return []
        return [[("i", "s_add_u32 s15, %s, %s-L_pc+%d" % (sCPO, label, 16384 * k)), ("i", "s_min_u32 s15, s15, L_code_end-L_pc-4"),
                 ("i", "v_mov_b32 v%d, s15" % tmp), ("vm", "global_load_dword a255, v%d, %s" % (tmp, sPC))] for k in range(n)]

    def ln_from_sums(self, s1, s2, t):
        return [("i", x) for x in (
            "v_mul_f32 v%d, 0x3b000000, v%d" % (s1, s1),
            "v_mul_f32 v%d, v%d, v%d" % (t, s1, s1),
            "v_mul_f32 v%d, 0x3b000000, v%d" % (s2, s2),
            "v_sub_f32 v%d, v%d, v%d" % (s2, s2, t),
            "v_max_f32 v%d, 0, v%d" % (s2, s2),
            "v_cvt_pk_bf16_f32 v%d, v%d, v%d" % (s2, s2, s2),
            "v_lshlrev_b32 v%d, 16, v%d" % (s2, s2),
            "v_add_f32 v%d, 0x3727c5ac, v%d" % (s2, s2),
            "v_cvt_pk_bf16_f32 v%d, v%d, v%d" % (s2, s2, s2),
            "v_lshlrev_b32 v%d, 16, v%d" % (s2, s2),
            "v_sqrt_f32 v%d, v%d" % (s2, s2),
            "v_cvt_pk_bf16_f32 v%d, v%d, v%d" % (s2, s2, s2),
            "v_lshlrev_b32 v%d, 16, v%d" % (s2, s2),
            "v_rcp_f32 v%d, v%d" % (s2, s2))]

    def publish(self, xi):
        a = self.a
        S1, S2, S3, S4, AD = 26, 27, 28, 29, 25
        a.I("s_add_u32 %s, %s, %d" % (sTS, sXST, LY.XB[xi]))
        for e in range(0 if xi == 0 and OPT["xdir"] else 2):
            a.vm("buffer_store_dwordx4 %s, v%d, %s, %s offen offset:%d%s" % (vr(XRES + 4 * e, 4), vQ, WS, sTS, e * 2048, " sc1" if xi == 1 and "x" not in OPT["t_set"] else ""))
        for k in range(4):
            for d, p, o in ((S1, XRES + k, sONE), (S2, XRES + k, None), (S3, XRES + 4 + k, sONE), (S4, XRES + 4 + k, None)):
                a.I("v_dot2_f32_bf16 v%d, v%d, %s, %s" % (d, p, o or "v%d" % p, "v%d" % d if k else "0"))
        a.I(self.getc(AD, aST) + "\ns_add_u32 %s, %s, %d" % (sTS, sSST, LY.SB[xi]))
        a.I("v_add_f32 v%d, v%d, v%d\nv_add_f32 v%d, v%d, v%d" % (S1, S1, S3, S2, S2, S4))
        a.I("v_permlane32_swap_b32 v%d, v%d\nv_add_f32 v%d, v%d, v%d\nv_mov_b32 v%d, v%d" % (S1, S2, S1, S1, S2, S2, S1))
        a.I("v_permlane16_swap_b32 v%d, v%d\nv_add_f32 v%d, v%d, v%d" % (S1, S2, S1, S1, S2))
        a.vm("buffer_store_dword v%d, v%d, %s, %s offen" % (S1, AD, WS, sTS), "pub")

    def startup(self):
        a = self.a
        lin = self.lin
        t8, kc, tok, g, hh, t32, u0, u1, rr, cc, q16, vA, vR, vB, vD, TA0, TA1, TD, TG, CSW, XA, XV, FAV, LINE = range(F, F + 24)
        ONES = F + 24
        def put(acc): a.I("v_accvgpr_write_b32 a%d, v%d" % (acc, u1))
        a.I("%s_kernel:" % NAME)
        a.I("s_cmp_ge_u32 s2, 256\ns_cbranch_scc1 L_main_done")
        a.I("s_load_dwordx16 s[64:79], s[0:1], 0\ns_load_dwordx2 s[4:5], s[0:1], 72")
        if OPT["stamps"] or OPT["diagpad"]:
            a.I("s_memrealtime s[98:99]")
        if OPT["stamps"]:
            a.I("s_memtime s[%d:%d]" % (sST, sST + 1))
        a.I("s_getpc_b64 s[56:57]\nL_pc:\ns_lshr_b32 s58, s2, 3\ns_lshl_b32 s58, s58, 11")
        a.I("v_lshrrev_b32 v16, 6, v0\nv_lshrrev_b32 v17, 4, v0\nv_lshlrev_b32 v17, 7, v17\nv_add_u32 v17, s58, v17")
        a.I("v_min_u32 v17, L_code_end-L_pc-4, v17\nv_and_b32 v0, 63, v0\nv_readfirstlane_b32 %s, v16" % sW)
        a.vm("global_load_dword a255, v17, s[56:57]")
        a.I("s_and_b32 %s, s2, 7\ns_bfe_u32 %s, s2, 0x40003\ns_lshr_b32 %s, s2, 7" % (sN, sJ, sP))
        a.I("s_lshr_b32 %s, %s, 3\ns_and_b32 %s, %s, 7" % (sR, sJ, sC, sJ))
        a.I("v_and_b32 v%d, 7, v0\nv_lshrrev_b32 v%d, 3, v0\nv_and_b32 v%d, 15, v0\nv_lshrrev_b32 v%d, 4, v0" % (t8, kc, tok, g))
        cuA, kkA, stA, cuG, kkG, sSG, sSD, kkD = "s28", "s29", "s30", "s32", "s33", "s6", "s7", "s36"
        sU, sV = "s34", "s35"
        if OPT["rot"]:
            a.I("s_add_u32 %s, %s, %s\ns_and_b32 %s, %s, 7\ns_andn2_b32 %s, s2, 7\ns_or_b32 %s, %s, %s" % (sV, sN, sJ, sV, sV, sU, sU, sU, sV))
        else:
            sU, sV = "s2", sN
        self.sdivmod(kkA, cuA, sU, 24)
        a.I("s_sub_u32 %s, s2, 192\ns_lshr_b32 %s, %s, 3" % (sT0, sT0, sT0))
        a.I("s_cmp_lt_u32 s2, 192\ns_cselect_b32 %s, %s, %s\ns_cselect_b32 %s, %s, %s\ns_cselect_b32 %s, 3, 1\ns_lshl_b32 %s, %s, 10" %
            (cuA, cuA, sV, kkA, kkA, sT0, stA, stA, stA))
        a.I("v_lshlrev_b32 v%d, 4, v%d\nv_mad_u32_u24 v%d, v%d, %s, v%d" % (u0, t8, vA, kc, stA, u0))
        a.I("s_lshl_b32 %s, %s, 2\ns_add_u32 %s, %s, %s\ns_lshl_b32 %s, %s, 4\ns_mul_i32 %s, %s, %s" % (sT0, kkA, sT0, sT0, sW, sT0, sT0, sT0, sT0, stA))
        a.I("s_lshl_b32 %s, %s, 7\ns_add_u32 %s, %s, %s\ns_lshl_b32 %s, %s, 3\ns_add_u32 %s, %s, %s\ns_sub_u32 %s, %s, 1024" %
            (sT1, cuA, sT0, sT0, sT1, sT1, stA, sT1, sT1, sT0, sT1, sT1))
        a.I("s_lshl_b32 %s, %s, 11\ns_add_u32 m0, %s, %d" % (sLW2, sW, sLW2, L_FMT))
        a.I("s_lshl_b32 s31, %s, 1\ns_add_u32 s31, s31, %s\ns_lshl_b32 s31, s31, 2\ns_add_u32 s31, s31, %s\ns_lshl_b32 s31, s31, 5" % (sN, sR, sW))
        a.I("s_add_u32 s31, s31, %s\ns_lshl_b32 s31, s31, 3\ns_add_u32 s31, s31, %s\ns_lshl_b32 s31, s31, 7" % (sP, sC))
        a.I("v_and_b32 v%d, 14, v0\nv_lshlrev_b32 v%d, 11, v%d\nv_lshl_add_u32 v%d, v%d, 4, v%d\nv_and_b32 v%d, 1, v0\nv_lshlrev_b32 v%d, 6, v%d\nv_add3_u32 v%d, s31, v%d, v%d" %
            (vR, vR, vR, vR, g, vR, u1, u1, u1, vR, vR, u1))
        a.I("s_waitcnt lgkmcnt(0)")
        a.I("s_load_dword %s, s[4:5], %d" % (sNONCE, LY.EPOCH))
        a.I("s_cmp_lt_u32 s2, 192\ns_cselect_b32 s%d, s66, s68\ns_cselect_b32 s%d, s67, s69\ns_and_b32 s%d, s%d, 0xffff" % (SRC_A, SRC_A + 1, SRC_A + 1, SRC_A + 1))
        a.I("s_lshl_b32 s%d, %s, 9\ns_mov_b32 s%d, 0x20000" % (SRC_A + 2, stA, SRC_A + 3))
        sa = "s[%d:%d]" % (SRC_A, SRC_A + 3)
        a.vm("buffer_load_dwordx4 v%d, %s, %s offen lds" % (vA, sa, sT0))
        a.vm("buffer_load_dwordx4 v%d, %s, %s offen offset:1024 lds" % (vA, sa, sT1), "fa")
        self.srd(12, "s64", "s65", 2048 * 1024)
        a.vm("buffer_load_dwordx4 %s, v%d, %s, 0 offen" % (vr(ACC + 56, 4), vR, XIN))
        a.vm("buffer_load_dwordx4 %s, v%d, %s, 0 offen offset:2048" % (vr(ACC + 60, 4), vR, XIN), "x")
        if OPT["stamps"]:
            a.I("v_mov_b32 v%d, 0\nv_writelane_b32 v%d, s98, 62\nv_writelane_b32 v%d, s%d, 0" % (vSTAMP, vSTAMP, vSTAMP, sST))
            self.nstamp = 1
        if OPT["diagpad"]: a.I("s_mov_b32 s14, s98")
        self.stamp("p")
        self.srd(8, "s4", "s5", LY.WS_USED)
        a.I("s_lshl_b32 %s, %s, 1\ns_add_u32 %s, %s, %s" % (sG, sN, sG, sG, sP))
        lin(sFLG, str(LY.FL), [(sG, 256)])
        lin(sFLW, sFLG, [(sJ, 16), (sW, 4)])
        lin(sTS, str(LY.ACT), [(sG, LY.ACT_STRIDE), (sR, 4096), (sW, 1024), (sC, 128)])
        a.I("s_and_b32 %s, %s, 1" % (sT0, sC))
        lin(sSST, sTS, [(sT0, -120)])
        a.I("s_add_u32 %s, %s, %d\nv_mov_b32 v%d, %s\nv_mov_b32 v%d, %s\nv_cmp_gt_u32 vcc, 32, v0\nv_cndmask_b32 v%d, v%d, v%d, vcc" %
            (sTS, sTS, LY.SB[0], u1, sTS, XA, sFLW, XA, u1, XA))
        a.vm("buffer_load_dword a255, v%d, %s, 0 offen sc1" % (XA, WS))
        self.sdivmod(kkG, cuG, sU, 28)
        a.I("v_mul_u32_u24 v%d, 3584, v%d\nv_add_u32 v%d, v%d, v%d\nv_lshl_add_u32 v%d, v%d, 10, v%d" % (vB, kc, vB, vB, u0, vD, kc, u0))
        a.I("s_lshr_b32 %s, s2, 3" % kkD)
        lin(sSG, "0", [(kkG, 64 * 3584), (sW, 16 * 3584), (cuG, 128)])
        lin(sSD, "0", [(kkD, 65536), (sW, 16384), (sV, 128)])
        xd, swaps = [], []
        if OPT["xdir"]:
            vX, sXD, sHD, sXL = 31 - 10, "s98", "s14", "s99"
            self.srd(SRC_A, "s64", "s65", 2048 * 1024)
            a.I("v_xor_b32 v%d, v%d, v%d\nv_lshlrev_b32 v%d, 4, v%d\nv_lshl_add_u32 v%d, v%d, 11, v%d" % (vX, t8, kc, vX, vX, vX, kc, vX))
            lin(sHD, "0", [(sN, 262144), (sP, 1024)])
            lin(sXD, sHD, [(sW, 65536)])
            lin(sHD, sHD, [(sW, 256)])
            a.I("s_sub_u32 %s, %s, 16384\ns_cmp_eq_u32 %s, 0\ns_cselect_b32 %s, 0x%x, %s\ns_lshl_b32 %s, %s, 15" % (sHD, sHD, sN, sHD, OOB, sHD, sXL, sW))
            a.I("v_xor_b32 v16, v%d, v%d\nv_lshlrev_b32 v16, 4, v16\nv_lshl_add_u32 v%d, v%d, 7, v16\nv_add_u32 v%d, %d, v%d" % (t8, g, u1, t8, u1, L_HALO, u1)); put(aSH)
            a.I("v_lshl_add_u32 v16, v%d, 7, v16\nv_add_u32 v16, %s, v16\nv_xor_b32 v17, 64, v16" % (tok, sXL))
            for m in range(8):
                for k in range(4):
                    xd.append([("i", "s_add_u32 m0, %s, %d\ns_add_u32 s15, %s, %d" % (sXL, m * 4096, sXD, k * 16384 + m * 128 - k * 1024)),
                               ("vm", "buffer_load_dwordx4 v%d, %s, s15 offen offset:%d lds" % (vX, sa, k * 1024), ("xd", m, k))])
                swaps.append(("wvm", ("xd", m, 3)))
                swaps += [("ds", "ds_read_b128 %s, v%d offset:%d" % (vr(X + 8 * (2 * m + h_) + 4 * b_, 4), 16 + h_, m * 4096 + b_ * 2048)) for b_ in range(2) for h_ in range(2)]
            swaps.append(("dsdrain",))
            self.halo0 = [[("set", "m0", "s_add_u32 m0, %s, %d" % (sLW2, L_HALO + 1024 * k)), ("i", "s_add_u32 s15, %s, %d" % (sHD, 128 * k)),
                           ("vm", "buffer_load_dwordx4 v%d, %s, s15 offen lds" % (vX, sa), "halo" if k else None)] for k in range(2)]
            a.run_all(self.flat(xd[:OPT["xd0"]])); xd = xd[OPT["xd0"]:]
        self.srd(SRC_G, "s72", "s73", 512 * 3584)
        self.srd(SRC_U, "s74", "s75", 512 * 3584)
        self.srd(SRC_D, "s76", "s77", 1792 * 1024)
        def b_loads():
            for srdn, so, va, stride, lo in ((SRC_G, sSG, vB, 3584, 8192), (SRC_U, sSG, vB, 3584, 16384), (SRC_D, sSD, vD, 1024, 24576)):
                a.I("s_add_u32 m0, %s, %d\ns_add_u32 s15, %s, %d" % (sLW2, L_FMT + lo, so, 8 * stride - 1024))
                a.vm("buffer_load_dwordx4 v%d, s[%d:%d], %s offen lds" % (va, srdn, srdn + 3, so))
                a.vm("buffer_load_dwordx4 v%d, s[%d:%d], %s offen offset:1024 lds" % (va, srdn, srdn + 3, "s15"), ("fb", lo))
        if OPT["b_pos"] == 0: b_loads()
        self.srd(16, "s78", "s79", 2048 * 1024)
        a.I("v_accvgpr_write_b32 a%d, v%d\nv_lshlrev_b32 v%d, 4, v0" % (aROW, vR, vL16))
        dA, dA2, dCS = "s3", "s0", "s1"
        a.I("s_and_b32 %s, %s, 7\ns_lshl_b32 %s, %s, 1\ns_lshr_b32 %s, %s, 1\ns_add_u32 %s, %s, %s" % (sT0, cuA, sT0, sT0, sT1, sW, sT0, sT0, sT1))
        a.I("s_mul_i32 %s, %s, %d\ns_add_u32 %s, %s, %d" % (sT0, sT0, LY.WQ_STRIDE, sT0, sT0, LY.WQ))
        a.I("s_lshr_b32 %s, %s, 3\ns_lshl_b32 %s, %s, 1\ns_and_b32 %s, %s, 1\ns_add_u32 %s, %s, %s" % (sT1, cuA, sT1, sT1, sT2, sW, sT1, sT1, sT2))
        lin(dA, sT0, [(kkA, 12288), (sT1, 1024)])
        lin(dCS, sT0, [(kkA, 64), (sT1, 512)])
        a.I("s_add_u32 %s, %s, 98304" % (dCS, dCS))
        lin(sT0, str(LY.WO), [(cuA, LY.WO_STRIDE), (kkA, 8192), (sW, 1024)])
        a.I("s_cmp_lt_u32 s2, 192\ns_cselect_b32 %s, %s, %s\ns_cselect_b32 %s, %s, 0x%x\ns_cselect_b32 %s, 6, 4\ns_cselect_b64 vcc, -1, 0" %
            (dA, dA, sT0, dCS, dCS, OOB, dA2))
        a.I("s_lshl_b32 %s, %s, 10\ns_add_u32 %s, %s, %s" % (dA2, dA2, dA2, dA2, dA))
        a.I("v_bfe_u32 v%d, v0, 2, 2\nv_and_b32 v%d, 3, v0\nv_bfe_u32 v%d, v0, 4, 1\nv_lshrrev_b32 v%d, 5, v0\nv_and_b32 v%d, 31, v0" % (rr, cc, q16, hh, t32))
        a.I("v_lshl_add_u32 v%d, v%d, 3, v%d\nv_lshlrev_b32 v%d, 7, v%d\nv_lshl_add_u32 v%d, v%d, 2, v%d\nv_lshlrev_b32 v%d, 7, v%d" % (u0, g, rr, u0, u0, u1, g, rr, u1, u1))
        a.I("s_lshr_b32 %s, %s, 1\ns_lshl_b32 %s, %s, 6\ns_and_b32 %s, %s, 1\ns_lshl_b32 %s, %s, 3\ns_add_u32 %s, %s, %s\ns_add_u32 %s, %s, %d" %
            (sT0, sW, sT0, sT0, sT1, sW, sT1, sT1, sT0, sT0, sT1, sT0, sT0, L_FMT))
        a.I("v_lshl_add_u32 v%d, v%d, 4, %s\nv_add_u32 v%d, v%d, v%d\nv_add_u32 v%d, v%d, v%d" % (TA1, cc, sT0, TD, TA1, u0, u1, u1, TA1))
        a.I("s_lshl_b32 %s, %s, 5\ns_add_u32 %s, %s, %d\nv_lshl_add_u32 v%d, v%d, 3, %s\nv_add_u32 v%d, v%d, v%d" % (sT0, sW, sT0, sT0, L_FMT, TA0, cc, sT0, u0, u0, TA0))
        a.I("v_mov_b32 v%d, v%d" % (TG, u0))
        a.I("v_cndmask_b32 v%d, v%d, v%d, vcc\nv_add_u32 v%d, 512, v%d\nv_add_u32 v%d, 2048, v%d\nv_cndmask_b32 v%d, v%d, v%d, vcc" % (TA0, u1, u0, u0, u0, u1, u1, TA1, u1, u0))
        for k in range(4): a.I("v_mov_b32 v%d, 0x3f803f80" % (ONES + k))
        a.I("v_lshlrev_b32 v%d, 2, v%d\nv_lshl_add_u32 v%d, v%d, 28, v%d" % (CSW, tok, CSW, g, CSW))
        a.I("s_mov_b32 %s, 0\ns_mov_b32 %s, 0x3f803f80" % (sSLOW, sONE))
        a.I("v_cmp_ne_u32 vcc, 0, v0\nv_mov_b32 v%d, 0x%x\nv_lshlrev_b32 v%d, 2, v0\nv_cndmask_b32 v%d, 0, v%d, vcc" % (vF1, OOB, vFL, vF1, vF1))
        a.I("s_lshl_b32 %s, %s, %d\ns_add_u32 %s, %s, 0x%x" % (sGB, sG, LY.ACT_SHIFT, sGB, sGB, LY.ACT))
        lin(sXLD, sGB, [(sW, 32768)])
        a.I("s_lshr_b32 %s, %s, 1\ns_and_b32 %s, %s, 1" % (sT0, sW, sT1, sW))
        lin(sXST, sGB, [(sR, 65536), (sC, 4096), (sT0, 32768), (sT1, 256)])
        lin(sOST, sXLD, [(sJ, 2048)])
        lin(sT0, str(LY.XF), [(sG, 2048)])
        a.I("v_lshrrev_b32 v%d, 2, v0\nv_lshl_add_u32 v%d, v%d, 7, %s\nv_lshl_add_u32 v%d, v%d, 30, v%d\nv_accvgpr_write_b32 a%d, v%d" % (XA, XA, XA, sT0, LINE, hh, vFL, aLINE, LINE))
        a.I("v_lshlrev_b32 v%d, 4, v%d\nv_lshl_add_u32 v%d, v%d, 9, v%d" % (u0, tok, vQ, g, u0))
        a.I("v_lshlrev_b32 v%d, 4, v%d\nv_lshl_add_u32 v%d, v%d, 2, v%d\nv_lshl_add_u32 v%d, v%d, 30, v%d" % (u1, tok, u1, hh, u1, u1, q16, u1)); put(aST)
        def die_id():
            lin(sT0, str(LY.XF), [(sG, 2048), (sJ, 128)])
            a.I("s_cmp_eq_u32 %s, 0\ns_cselect_b32 %s, %s, 0x%x\ns_getreg_b32 %s, hwreg(HW_REG_XCC_ID, 0, 4)" % (sW, sT0, sT0, OOB, sT1))
            a.I("s_waitcnt lgkmcnt(0)\ns_add_u32 %s, %s, 0x9e3779b1\ns_xor_b32 %s, %s, %s\nv_mov_b32 v%d, %s" % (sNONCE, sNONCE, sT1, sT1, sNONCE, XV, sT1))
            a.vm("buffer_store_dword v%d, v%d, %s, %s offen sc1" % (XV, LINE, WS, sT0))
            self.stamp("p")
        if OPT["c_early"] < 2: die_id()
        def constants():
            lin(sB3, str(LY.WD), [(sV, LY.WD_STRIDE), (kkD, 8192), (sW, 1024)])
            a.I("s_lshl_b32 %s, %s, 2\ns_add_u32 %s, %s, %s" % (cuG, cuG, cuG, cuG, sW))
            self.sdivmod(sT0, sT1, cuG, 7)
            lin(sB2, str(LY.WG), [(sT0, LY.WG_STRIDE)])
            a.I("s_sub_u32 %s, 6, %s\n%s %s, 0\ns_cselect_b32 %s, %s, %s" % (sT2, sT1, BIT, sT0, sT1, sT1, sT2))
            S0, TL = GS0, 16 - GS0
            lin(sB0, sB2, [(kkG, 28 * 1024), (sT1, 2048)])
            lin(sB2, sB2, [(sT1, (2 * TL + 1) * 1024)])
            lin(sT0, sB2, [(kkG, 4096)])
            a.I("s_add_u32 %s, %s, %d\ns_cmp_lt_u32 %s, %d\ns_cselect_b32 %s, %s, %s\ns_cselect_b32 %s, 14, 2\ns_lshl_b32 %s, %s, 10" %
                (sT0, sT0, 12 * S0 * 1024, kkG, S0 // 2, sB0, sB0, sT0, sB1, sB1, sB1))
            lin(sB2, sB2, [(kkG, 64)])
            a.I("s_add_u32 %s, %s, %d" % (sB2, sB2, (14 * S0 + 2 * TL) * 1024))
            a.I("s_cmp_lt_u32 s2, 224")
            for r_ in (sB0, sB2, sB3): a.I("s_cselect_b32 %s, %s, 0x%x" % (r_, r_, OOB))
            lin(sHFL, str(LY.HFL), [(sG, 1024)])
            lin(sHDFL, sHFL, [(sC, 128)])
            lin(sFBO, str(LY.FA), [(sU, 128)])
            a.I("s_add_u32 %s, %s, 2048\ns_add_u32 %s, %s, 0x%x" % (sHDFL, sHDFL, sHDST, sGB, 2 * LY.ACT_STRIDE))
            a.I("s_cmp_eq_u32 %s, 0\ns_cselect_b32 %s, %s, 0x%x" % (sW, sFBO, sFBO, OOB))
            a.I("s_lshl_b32 %s, %s, 2\ns_add_u32 %s, %s, %s\ns_cmp_eq_u32 %s, 7\ns_cselect_b32 %s, 0, %s\ns_cmp_eq_u32 %s, 7" % (sT0, sR, sT0, sT0, sW, sN, sT0, sT0, sT0))
            a.I("s_cselect_b32 %s, %s, 0x%x" % (sHDST, sHDST, OOB))
            a.I("v_lshlrev_b32 v%d, 4, v%d\nv_lshl_add_u32 v%d, v%d, 7, v%d\nv_add_u32 v%d, %d, v%d" % (u0, t8, u0, g, u0, u1, L_HALO, u0)); put(aHX)
            a.I("s_lshl_b32 %s, %s, 10\nv_add3_u32 v%d, v%d, v%d, %s" % (sT0, sC, u1, u0, vA, sT0)); put(aHST)
            if "c" not in OPT["order"]: constants2()
        def constants2():
            if OPT["c_early"] == 2: die_id()
            a.I("s_lshr_b32 %s, %s, 1\ns_lshl_b32 %s, %s, 5\ns_and_b32 %s, %s, 1\ns_lshl_b32 %s, %s, 1\ns_add_u32 %s, %s, %s" % (sT0, sW, sT0, sT0, sT1, sW, sT1, sT1, sT0, sT0, sT1))
            a.I("s_mov_b32 s40, 0x33333333\ns_mov_b32 s41, 0\ns_lshl_b64 s[40:41], s[40:41], %s" % sT0)
            a.I("s_lshl_b32 %s, %s, 1\ns_lshl_b32 %s, %s, 4\ns_add_u32 %s, %s, %s" % (sT0, sR, sT2, sW, sT0, sT0, sT2))
            a.I("s_mov_b32 s42, 0x3333\ns_mov_b32 s43, 0\ns_lshl_b64 s[42:43], s[42:43], %s" % sT0)
            a.I("v_bfe_u32 v%d, v0, 2, 3\nv_min_u32 v%d, 6, v%d\ns_mul_i32 %s, %s, 7\nv_add_u32 v%d, %s, v%d" % (t8, t32, t8, sT0, sW, t32, sT0, t32))
            a.I("s_lshl_b32 %s, %s, 1\nv_and_or_b32 v%d, v%d, 1, %s" % (sT0, sW, t8, t8, sT0))
            a.I("s_lshr_b32 %s, %s, 1\nv_mul_u32_u24 v%d, 24, v%d\nv_lshl_add_u32 v%d, v%d, 3, v%d\nv_add_u32 v%d, %s, v%d" % (sT0, sJ, u0, t8, u0, kc, u0, u0, sT0, u0))
            a.I("s_add_u32 %s, %s, 192\nv_lshl_add_u32 v%d, v%d, 3, %s\nv_cmp_gt_u32 vcc, 24, v0\nv_cndmask_b32 v%d, v%d, v%d, vcc" % (sT0, sC, u1, t8, sT0, u0, u1, u0))
            a.I("v_lshlrev_b32 v%d, 7, v%d\nv_add_u32 v%d, %d, v%d" % (u0, u0, FAV, LY.FA, u0))
            self.c_min = len(a.lines)
            a.I("s_lshr_b32 %s, s2, 3\ns_lshl_b32 %s, %s, 2\ns_add_u32 %s, %s, %s\ns_lshl_b32 %s, %s, 7" % (sCPO, sCPO, sCPO, sCPO, sCPO, sW, sCPO, sCPO))
            lin(sHST, sGB, [(sW, 114688), (sJ, 7168)])
            lin(sSLD, sGB, [(sW, 2048)])
            lin(sOL, sXST, [(sC, -4096)])
            a.I(BIT + " %s, 0\ns_cselect_b32 %s, 1, -1\ns_cselect_b32 %s, 0, 6144\ns_lshl_b32 %s, %s, 10\ns_add_u32 %s, %s, %s" % (sJ, sHSTEP, sT0, sHSTEP, sHSTEP, sHST, sHST, sT0))
            a.I("s_lshr_b32 %s, %s, 1\ns_lshl_b32 %s, %s, 1\ns_add_u32 %s, %s, %s\ns_lshl_b32 s66, 0x11111111, %s\ns_mov_b32 s67, s66" % (sT0, sW, sT1, sR, sT0, sT0, sT1, sT0))
            lin(sHLD[3], sGB, [(sR, 229376), (sW, 28672)])
            for i in range(4):
                a.I("s_add_u32 %s, %s, %d\ns_and_b32 %s, %s, 3\ns_lshr_b32 %s, %s, 1\ns_and_b32 %s, %s, 1" % (sTA, sW, i + 1, sTA, sTA, sT0, sTA, sT1, sTA))
                lin(sHLD[i], sHLD[3], [(sT0, 114688), (sT1, 256)])
                if i < 3: lin(sXW[i], str(i * 4096), [(sTA, 12288)])
            lin(sXR, "0", [(sW, 12288)])
            lin(sWQ, str(LY.WQ), [(sJ, LY.WQ_STRIDE * (1 - OPT["hitw"]))])
            lin(sWG, str(LY.WG), [(sJ, LY.WG_STRIDE * (1 - OPT["hitw"]))])
            lin(sWO, str(LY.WO), [(sC, LY.WO_STRIDE * (1 - OPT["hitw"])), (sW, 4096)])
            lin(sWD, str(LY.WD), [(sC, LY.WD_STRIDE * (1 - OPT["hitw"])), (sW, 57344)])
            lin(sTAB, str(L_TAB), [(sW, 512)])
            a.I("s_lshl_b32 %s, %s, 10\ns_lshl_b32 %s, %s, 12" % (sLW, sW, sLW4, sW))
            if not OPT["xdir"]: a.I("s_add_u32 %s, %s, %s\ns_add_u32 %s, %s, %s" % (sWQ4, sWQ, sLW4, sWG4, sWG, sLW4))
            a.I("s_cmp_eq_u32 %s, 0\ns_cselect_b32 %s, 0x%x, %s\ns_cselect_b64 s[54:55], 0, -1" % (sN, sHALO, OOB, sGB))
            a.I("s_add_u32 %s, %s, %s\ns_add_u32 %s, %s, %s\ns_add_u32 %s, %s, %s" % (sHALO2, sHALO, sLW2, sWQ, sWQ, sLW, sWG, sWG, sLW2))
            a.I("v_add_u32 v%d, 0x10000, v%d\nv_add_u32 v%d, 0x20000, v%d" % (vL16b, vL16, vL16c, vL16))
            a.I("v_lshrrev_b32 v%d, %d, v0\nv_lshlrev_b32 v%d, 7, v%d" % (u1, 1 if OPT["xdir"] else 2, u1, u1))
            if OPT["xdir"]:
                a.I("s_add_u32 %s, %s, %d\nv_and_b32 v%d, 128, v%d\nv_add_u32 v%d, %s, v%d\nv_bfe_u32 v%d, v0, 2, 3" % (sT0, sOST, LY.OB[0], u0, u1, u1, sT0, u1, CSW))
                a.I("s_add_u32 %s, %s, %d\nv_lshl_add_u32 v%d, v%d, 9, v%d\nv_cmp_gt_u32 vcc, 32, v0\nv_add_u32 v%d, %s, v%d" %
                    (sT0, sXST, LY.XB[1], u0, CSW, u0, u0, sT0, u0))
                if "x" not in OPT["t_set"]: a.I("v_mov_b32 v%d, 0x%x" % (u0, OOB))
                if "o" not in OPT["t_set"]: a.I("v_mov_b32 v%d, 0x%x" % (u1, OOB))
                a.I("v_cndmask_b32 v%d, v%d, v%d, vcc" % (u1, u0, u1))
            put(aTO)
            a.I("v_lshlrev_b32 v%d, 7, v%d\nv_lshl_add_u32 v%d, v%d, 5, v%d\nv_lshl_add_u32 v%d, v%d, 1, v%d\nv_lshlrev_b32 v%d, 3, v0" % (u0, rr, u0, g, u0, u0, cc, u0, u1))
            a.I("s_cmp_ge_u32 %s, 2\ns_cselect_b64 vcc, -1, 0\ns_cselect_b32 %s, 2, 8\nv_cndmask_b32 v%d, v%d, v%d, vcc" % (sW, sT1, u1, u0, u1))
            a.I("s_lshr_b32 %s, %s, 1\ns_add_u32 %s, %s, %d\nv_add_u32 v%d, %s, v%d" % (sT0, sLW, sT0, sT0, L_KV, u1, sT0, u1)); put(aHWR)
            a.I("v_mov_b32 v%d, %s" % (u1, sT1)); put(aHWS)
            a.I("s_mul_i32 %s, %s, 7\ns_add_u32 %s, %s, 6\ns_lshr_b32 %s, %s, 2\ns_lshr_b32 %s, %s, 2" % (sT0, sJ, sT1, sT0, sT0, sT0, sT1, sT1))
            a.I("v_add_u32 v%d, %s, v%d\nv_min_u32 v%d, %s, v%d\nv_mad_u32_u24 v%d, v%d, 28, v%d" % (u0, sT0, kc, u0, sT1, u0, u0, t8, u0))
            a.I("v_lshl_add_u32 v%d, v%d, 3, %s\nv_cmp_gt_u32 vcc, 32, v0\nv_cndmask_b32 v%d, v%d, v%d, vcc" % (u1, t32, sC, u0, u1, u0))
            a.I("v_lshlrev_b32 v%d, 7, v%d\nv_add_u32 v%d, %d, v%d" % (u0, u0, u1, LY.FB, u0)); put(aFB)
            if OPT["c_early"] == 3: die_id()
            a.I("s_getpc_b64 %s\nL_pc2:\ns_sub_u32 s4, s4, L_pc2-L_pc\ns_subb_u32 s5, s5, 0" % sPC)
            NG, Z, M0_, M1_ = rr, cc, q16, hh
            a.I("s_or_b32 %s, %s, %s\ns_cmp_eq_u32 %s, 0\ns_cselect_b64 s[56:57], -1, 0" % (sT0, sN, sW, sT0))
            a.I("v_mov_b32 v%d, %s\nv_mov_b32 v%d, 0\nv_lshlrev_b32 v%d, 2, v%d\nv_sub_u32 v%d, v%d, v%d" % (NG, NEG, Z, vA, g, vA, tok, vA))
            for r in range(4):
                a.I("v_subrev_u32 v%d, %d, v%d\nv_mov_b32 v%d, %s" % (u0, r, vA, M0_, "0xffff0000" if r & 1 else "0xffff"))
                a.I("v_cmp_gt_u32 vcc, 8, v%d\nv_cmp_gt_i32 s[58:59], -8, v%d\nv_cmp_le_i32 s[60:61], 0, v%d" % (u0, u0, u0))
                a.I("v_cndmask_b32 v%d, v%d, v%d, vcc" % (u1, NG, Z)); put(aBC + r)
                a.I("v_cndmask_b32 v%d, v%d, v%d, s[58:59]" % (u1, NG, Z)); put(aBP + r)
                a.I("v_cndmask_b32 v%d, v%d, v%d, s[56:57]" % (u1, u1, NG)); put(aBP0 + r)
                if r & 1:
                    a.I("v_cndmask_b32 v%d, v%d, v%d, s[60:61]\nv_or_b32 v%d, v%d, v%d" % (u1, Z, M0_, u1, u1, M1_)); put(aMC + r // 2)
                else:
                    a.I("v_cndmask_b32 v%d, v%d, v%d, s[60:61]" % (M1_, Z, M0_))
        a.I("v_bfe_u32 v%d, v0, 3, 1\nv_xor_b32 v%d, 1, v%d\nv_lshlrev_b32 v%d, 29, v%d" % (vA, vA, vA, vA, vA))
        a.I("s_and_b32 %s, %s, 1" % (sT1, sC))
        lin(sT0, str(8192 - 128), [(sC, 64), (sT1, -56)])
        a.I("v_add3_u32 v%d, v%d, v%d, %s" % (u1, u1, vA, sT0)); put(aHSS)
        if OPT["c_early"]: constants()
        self.stamp("p")
        if OPT["b_pos"] == -1: b_loads()
        a.vm_wait("fa")
        a.I("s_barrier")
        for sp in range(2):
            for half in range(2):
                a.ds("ds_read_b64_tr_b16 %s, v%d offset:%d" % (vr(ACC + 4 * sp + 2 * half, 2), (TA0, TA1)[half], sp * 4096), ("t", sp))
        self.stamp("p")
        for sp in range(2):
            a.ds_wait(("t", sp))
            a.vm("buffer_store_dwordx4 %s, v%d, %s, %s offen sc1" % (vr(ACC + 4 * sp, 4), vL16, WS, (dA, dA2)[sp]))
            a.I("v_mfma_f32_16x16x32_bf16 %s, %s, %s, %s" % (vr(ACC + 8, 4), vr(ONES, 4), vr(ACC + 4 * sp, 4), vr(ACC + 8, 4) if sp else "0"))
        a.I("\n".join(self.hi_lo(ACC + 12, ACC + 8, ACC + 13)))
        a.vm("buffer_store_dword v%d, v%d, %s, %s offen sc1" % (ACC + 12, CSW, WS, dCS), "fas")
        if OPT["b_pos"] == -2: b_loads()
        a.vm_wait("x")
        self.pair_swap(XRES, ACC + 56)
        self.publish(0)
        xload = "buffer_load_dword v31, v%d, %s, 0 offen sc1" % (XA, WS)
        a.vm(xload, "xf")
        if OPT["b_pos"] == 1 and not OPT["xdir"]: b_loads()
        self.stamp("p")
        if OPT["xdir"]:
            n0 = len(a.lines)
            constants()
            body = a.lines[n0:]; del a.lines[n0:]
            k, since = 0, 99
            for n_, t in enumerate(body):
                if k < OPT["xd1"] and since >= OPT["xd_gap"] and not self.scc_live(body, n_):
                    a.run_all(xd[k]); k += 1; since = 0
                a.I(t); since += 1
            a.run_all(self.flat(xd[k:OPT["xd1"]])); xd = xd[OPT["xd1"]:]
        elif not OPT["c_early"]: constants()
        def second_unit():
            G, D, CS = (ACC + 16, ACC + 32, ACC + 48) if OPT["xdir"] else (X + 96, X + 112, ACC + 48)
            out = []
            def store(ops):
                if OPT["b_spread"] and "b" not in OPT["order"]: out.append(ops)
                else: a.run_all(ops)
            if "b" in OPT["order"]:
                a.vm_wait(("fb", 24576))
                a.I("s_barrier")
            for n_ in range(4):
                for half in range(2):
                    a.ds("ds_read_b64_tr_b16 %s, v%d offset:%d" % (vr(G + 4 * n_ + 2 * half, 2), TG, 8192 * (1 + n_ % 2) + (32 * (n_ // 2) + 4 * half) * 128), ("tg", n_))
            for sp in range(2):
                for half in range(2):
                    a.ds("ds_read_b64_tr_b16 %s, v%d offset:%d" % (vr(D + 4 * sp + 2 * half, 2), TD, 24576 + (32 * sp + 4 * half) * 128), ("td", sp))
            for n_ in range(4):
                a.ds_wait(("tg", n_))
                store(([("i", "s_add_u32 %s, %s, %s" % (sB0, sB0, sB1))] if n_ == 2 else []) +
                      [("vm", "buffer_store_dwordx4 %s, v%d, %s, %s offen offset:%d sc1" % (vr(G + 4 * n_, 4), vL16, WS, sB0, (n_ % 2) * 1024))])
                c_ = vr(CS + 4 * (n_ % 2), 4)
                a.I("v_mfma_f32_16x16x32_bf16 %s, %s, %s, %s" % (c_, vr(ONES, 4), vr(G + 4 * n_, 4), c_ if n_ >= 2 else "0"))
            for sp in range(2):
                a.ds_wait(("td", sp))
                store(([("i", "s_add_u32 %s, %s, 4096" % (sB3, sB3))] if sp else []) +
                      [("vm", "buffer_store_dwordx4 %s, v%d, %s, %s offen sc1" % (vr(D + 4 * sp, 4), vL16, WS, sB3))])
            a.I("v_cmp_gt_u32 vcc, 16, v0\nv_bfe_u32 v%d, v0, 4, 1\nv_mul_u32_u24 v%d, 448, v%d\nv_add_u32 v%d, v%d, v%d\nv_cndmask_b32 v%d, v%d, v%d, vcc" %
                (D + 9, D + 9, D + 9, D + 9, D + 9, LINE, CS, CS + 4, CS))
            a.I("\n".join(self.hi_lo(D + 8, CS, CS + 1)))
            store([("vm", "buffer_store_dword v%d, v%d, %s, %s offen sc1" % (D + 8, D + 9, WS, sB2), "fbs")])
            self.stamp("p")
            return out
        def first_flags():
            a.I("v_mov_b32 v30, %s" % sNONCE)
            a.vm_wait("fas")
            a.I("s_barrier")
            a.vm("buffer_store_dword v30, v%d, %s, %s offen sc1" % (LINE, WS, sFBO))
            a.I("s_add_u32 %s, %s, %d" % (sFBO, sFBO, LY.FB - LY.FA))
            self.stamp("p")
        def own_flags():
            spin, back = a.label("xspin"), a.label("xback")
            test = "v_xor_b32 v29, %s, v31\nv_cmp_lt_u32 vcc, 15, v29\ns_and_b64 vcc, vcc, exec" % sNONCE
            a.vm_wait("xf")
            a.I("%s\ns_cbranch_scc1 %s\n%s:" % (test, spin, back))
            self.cold.append("%s:\ns_mov_b32 %s, 0x40000\n%s_l:\n%s\ns_sub_u32 %s, %s, 1\ns_cbranch_scc1 L_main_done\ns_waitcnt vmcnt(0)\n%s\ns_cbranch_scc1 %s_l\ns_branch %s"
                             % (spin, sSPIN, spin, xload, sSPIN, sSPIN, test, spin, back))
            a.I("v_cmp_ne_u32 vcc, v%d, v31\ns_cmp_lg_u64 vcc, 0\ns_cselect_b32 %s, 1, 0\ns_mov_b32 s0, %s\ns_mov_b32 s1, 0" % (XV, sSLOW, sSLOW))
            self.signal(0, "pub", 0)
            self.stamp("p")
        for step in OPT["order"]:
            if step == "c" and OPT["xdir"]: continue
            {"b": second_unit, "a": first_flags, "o": own_flags, "c": constants2}[step]()
        if OPT["xdir"]:
            n0 = len(a.lines)
            constants2()
            body = a.lines[n0:]; del a.lines[n0:]
            per = max(OPT["xd_per"], -(-(self.c_min - n0) // len(xd)))
            pos, done = 0, 32 - len(xd)
            for g_ in xd:
                a.run_all(g_); done += 1
                stop = min(len(body), pos + per)
                while stop < len(body) and self.scc_live(body, stop): stop += 1
                a.I("\n".join(body[pos:stop])); pos = stop
                if len(swaps) > 1 and 4 * swaps[0][1][1] + 4 + OPT["xd_lag"] <= done:
                    a.run_all(swaps[:5]); swaps = swaps[5:]
            self.stamp("p")
            l_fa, g_fa = self.late_check("buffer_load_dword v%d, v%d, %s, 0 offen sc1" % (PB, FAV, WS), PB, "exec", "fa2")
            l_x, g_x = self.check_ops(0, sMA, PA, "x2")
            a.run_all(swaps[:5 * OPT["xd_pre"]]); swaps = swaps[5 * OPT["xd_pre"]:]
            a.run_all(l_x + l_fa)
            if not (OPT["inb"] and OPT["inb_at"]): b_loads()
            a.I("\n".join(body[pos:]))
            a.I("s_add_u32 %s, %s, %s\ns_add_u32 %s, %s, %s" % (sWQ4, sWQ, sLW4, sWG4, sWG, sLW4))
            a.I("s_sub_u32 %s, %s, %s\ns_sub_u32 %s, %s, %s" % (sWQ4, sWQ4, sLW, sWG4, sWG4, sLW2))
            if OPT["t_pos"] == -1: a.run_all(self.flat(self.touch(aTO, "0", 0, 18)))
            a.run_all(swaps + g_fa + g_x)
        self.stamp("p")
        if "b" in OPT["order"]:
            a.vm_wait("fbs")
            a.I("s_barrier")
            a.vm("buffer_store_dword v30, v%d, %s, %s offen sc1" % (LINE, WS, sFBO))
        elif OPT["predrain"]:
            a.vm_drain()
        self.stamp("p")
        def second_ops():
            G, D, CS, ON, AG, AD, T0, T1, T2 = 0, 16, 24, 32, 30, 31, 24, 25, 20
            pre = "v_mov_b32 v%d, v%d\nv_mov_b32 v%d, v%d\nv_bfe_u32 v%d, v0, 4, 1\nv_mul_u32_u24 v%d, 448, v%d\nv_add_u32 v%d, v%d, v%d\n" % (AG, TG, AD, TD, T2, T2, T2, T2, T2, LINE)
            pre += "\n".join("v_accvgpr_write_b32 a%d, v%d" % (ON + k, ONES) for k in range(4))
            rd = [("ds", "ds_read_b64_tr_b16 %s, v%d offset:%d" % (ar(G + 4 * n_ + 2 * half, 2), AG, 8192 * (1 + n_ % 2) + (32 * (n_ // 2) + 4 * half) * 128), ("tg", n_, half))
                  for n_ in range(4) for half in range(2)]
            rd += [("ds", "ds_read_b64_tr_b16 %s, v%d offset:%d" % (ar(D + 4 * sp + 2 * half, 2), AD, 24576 + (32 * sp + 4 * half) * 128), ("td", sp, half))
                   for sp in range(2) for half in range(2)]
            st = []
            for n_ in range(4):
                c_ = ar(CS + 4 * (n_ % 2), 4)
                st.append(([("i", "s_add_u32 %s, %s, %s" % (sB0, sB0, sB1))] if n_ == 2 else []) + [("wds", ("tg", n_, 1)),
                          ("vm", "buffer_store_dwordx4 %s, v%d, %s, %s offen offset:%d sc1" % (ar(G + 4 * n_, 4), vL16, WS, sB0, (n_ % 2) * 1024)),
                          ("i", "v_mfma_f32_16x16x32_bf16 %s, %s, %s, %s" % (c_, ar(ON, 4), ar(G + 4 * n_, 4), c_ if n_ >= 2 else "0"))])
            for sp in range(2):
                st.append(([("i", "s_add_u32 %s, %s, 4096" % (sB3, sB3))] if sp else []) + [("wds", ("td", sp, 1)),
                          ("vm", "buffer_store_dwordx4 %s, v%d, %s, %s offen sc1" % (ar(D + 4 * sp, 4), vL16, WS, sB3))])
            st.append([("i", "s_mov_b64 s[6:7], 0xffff\n%s\n%s\nv_cndmask_b32 v%d, v%d, v%d, s[6:7]" % (self.getc(T0, CS), self.getc(T1, CS + 4), T0, T1, T0)),
                       ("i", "\n".join(self.hi_lo(PA, T0, T1))),
                       ("vm", "buffer_store_dword v%d, v%d, %s, %s offen sc1" % (PA, T2, WS, sB2), "fbs"), ("mark", "bdone")])
            return pre, rd, st
        self.second_unit, self.b_loads, self.second_ops = second_unit, b_loads, second_ops
        self.fav = FAV

    def startup2(self):
        a = self.a
        lin = self.lin
        t8, kc, tok, g, hh, t32, u0, u1, rr, cc, q16, vA, vR, vD, TA0, TA1, TD, XA, XV, FAV, LINE = range(F, F + 21)
        ONES, CSW, L_T = F + 24, F + 21, 114688
        def put(acc): self.a.I("v_accvgpr_write_b32 a%d, v%d" % (acc, u1))
        a.I("%s_kernel:" % NAME)
        a.I("s_cmp_ge_u32 s2, 256\ns_cbranch_scc1 L_main_done")
        a.I("s_load_dwordx16 s[64:79], s[0:1], 0\ns_load_dwordx2 s[4:5], s[0:1], 72")
        if OPT["stamps"] or OPT["diagpad"]:
            a.I("s_memrealtime s[98:99]")
        if OPT["stamps"]:
            a.I("s_memtime s[%d:%d]" % (sST, sST + 1))
        a.I("s_getpc_b64 s[56:57]\nL_pc:\ns_lshr_b32 s58, s2, 3\ns_lshl_b32 s58, s58, 11")
        a.I("v_lshrrev_b32 v16, 6, v0\nv_lshrrev_b32 v17, 4, v0\nv_lshlrev_b32 v17, 7, v17\nv_add_u32 v17, s58, v17")
        a.I("v_min_u32 v17, L_code_end-L_pc-4, v17\nv_and_b32 v0, 63, v0\nv_readfirstlane_b32 %s, v16" % sW)
        a.I("global_load_dword a255, v17, s[56:57]")
        a.I("s_and_b32 %s, s2, 7\ns_bfe_u32 %s, s2, 0x40003\ns_lshr_b32 %s, s2, 7" % (sN, sJ, sP))
        a.I("s_lshr_b32 %s, %s, 3\ns_and_b32 %s, %s, 7" % (sR, sJ, sC, sJ))
        a.I("v_and_b32 v%d, 7, v0\nv_lshrrev_b32 v%d, 3, v0\nv_and_b32 v%d, 15, v0\nv_lshrrev_b32 v%d, 4, v0\nv_lshlrev_b32 v%d, 4, v%d" % (t8, kc, tok, g, u0, t8))
        a.I("s_lshl_b32 s31, %s, 1\ns_add_u32 s31, s31, %s\ns_lshl_b32 s31, s31, 2\ns_add_u32 s31, s31, %s\ns_lshl_b32 s31, s31, 5" % (sN, sR, sW))
        a.I("s_add_u32 s31, s31, %s\ns_lshl_b32 s31, s31, 3\ns_add_u32 s31, s31, %s\ns_lshl_b32 s31, s31, 7" % (sP, sC))
        a.I("v_and_b32 v%d, 14, v0\nv_lshlrev_b32 v%d, 11, v%d\nv_lshl_add_u32 v%d, v%d, 4, v%d\nv_and_b32 v%d, 1, v0\nv_lshlrev_b32 v%d, 6, v%d\nv_add3_u32 v%d, s31, v%d, v%d" %
            (vR, vR, vR, vR, g, vR, u1, u1, u1, vR, vR, u1))
        a.I("s_lshl_b32 %s, %s, 12\ns_cmp_lg_u32 %s, 0\ns_cbranch_scc1 L_follow" % (sLW4, sW, sP))
        cu, kp, st, so, so2 = "s32", "s33", "s34", "s35", "s36"
        D4 = [sB0, sB1, sB2, sB3]
        dCS, dD = "s3", "s0"

        def tile_dma(srdn, va, s_off, stride, lds, tag):
            a = self.a
            a.I("s_add_u32 m0, %s, %d" % (sLW4, L_T + lds))
            for k in range(4):
                if k: a.I("s_add_u32 %s, %s, %s" % (sT0, s_off if k == 1 else sT0, stride))
                a.vm("buffer_load_dwordx4 v%d, s[%d:%d], %s offen offset:%d lds" % (va, srdn, srdn + 3, sT0 if k else s_off, k * 1024), tag if k == 3 else None)
        def x_loads():
            a = self.a
            self.srd(12, "s64", "s65", 2048 * 1024)
            a.vm("buffer_load_dwordx4 %s, v%d, %s, 0 offen" % (vr(X, 4), vR, XIN))
            a.vm("buffer_load_dwordx4 %s, v%d, %s, 0 offen offset:2048" % (vr(X + 4, 4), vR, XIN), "x")
            if OPT["stamps"]:
                a.I("v_mov_b32 v%d, 0\nv_writelane_b32 v%d, s98, 62\nv_writelane_b32 v%d, s%d, 0" % (vSTAMP, vSTAMP, vSTAMP, sST))
                self.nstamp = 1
            if OPT["diagpad"]: a.I("s_mov_b32 s14, s98")
        def common():
            a = self.a
            self.srd(8, "s4", "s5", LY.WS_USED)
            a.I("s_lshl_b32 %s, %s, 1\ns_add_u32 %s, %s, %s" % (sG, sN, sG, sG, sP))
            a.I("s_lshl_b32 %s, %s, %d\ns_add_u32 %s, %s, 0x%x" % (sGB, sG, LY.ACT_SHIFT, sGB, sGB, LY.ACT))
            lin(sFLG, str(LY.FL), [(sG, 256)])
            lin(sFLW, sFLG, [(sJ, 16), (sW, 4)])
            lin(sTS, sGB, [(sR, 4096), (sW, 1024), (sC, 128)])
            a.I("s_and_b32 %s, %s, 1" % (sT0, sC))
            lin(sSST, sTS, [(sT0, -120)])
            a.I("s_add_u32 %s, %s, %d\nv_cmp_gt_u32 vcc, 32, v0\nv_mov_b32 v%d, %s\nv_mov_b32 v%d, %s\nv_cndmask_b32 v%d, v%d, v%d, vcc" %
                (sTS, sTS, LY.SB[0], u1, sTS, XA, sFLW, XA, u1, XA))
            a.vm("buffer_load_dword a255, v%d, %s, 0 offen sc1" % (XA, WS))
            self.srd(16, "s78", "s79", 2048 * 1024)
            a.I("v_accvgpr_write_b32 a%d, v%d\nv_lshlrev_b32 v%d, 4, v0\nv_lshlrev_b32 v%d, 2, v0" % (aROW, vR, vL16, vFL))
            a.I("v_bfe_u32 v%d, v0, 2, 2\nv_and_b32 v%d, 3, v0\nv_bfe_u32 v%d, v0, 4, 1\nv_lshrrev_b32 v%d, 5, v0" % (rr, cc, q16, hh))
            lin(sT0, str(LY.XF), [(sG, 2048)])
            a.I("v_lshrrev_b32 v%d, 2, v0\nv_lshl_add_u32 v%d, v%d, 7, %s\nv_lshl_add_u32 v%d, v%d, 30, v%d" % (XA, XA, XA, sT0, LINE, hh, vFL))
            lin(sT0, sT0, [(sJ, 128)])
            a.I("s_cmp_eq_u32 %s, 0\ns_cselect_b32 %s, %s, 0x%x\ns_getreg_b32 %s, hwreg(HW_REG_XCC_ID, 0, 4)" % (sW, sT0, sT0, OOB, sT1))
            a.I("s_waitcnt lgkmcnt(0)\ns_add_u32 %s, %s, 0x9e3779b1\ns_xor_b32 %s, %s, %s\nv_mov_b32 v%d, %s" % (sNONCE, sNONCE, sT1, sT1, sNONCE, XV, sT1))
            a.vm("buffer_store_dword v%d, v%d, %s, %s offen sc1" % (XV, LINE, WS, sT0))
            a.I("v_lshl_add_u32 v%d, v%d, 3, v%d\nv_lshlrev_b32 v%d, 7, v%d\nv_add_u32 v%d, %d, v%d" % (u0, g, rr, u0, u0, u0, L_T, u0))
            a.I("s_lshr_b32 %s, %s, 1\ns_and_b32 %s, %s, 1" % (sT0, sW, sT1, sW))
            lin(sXST, sGB, [(sR, 65536), (sC, 4096), (sT0, 32768), (sT1, 256)])
            a.I("s_lshl_b32 %s, %s, 6\ns_lshl_b32 %s, %s, 3\ns_add_u32 %s, %s, %s\nv_lshl_add_u32 v%d, v%d, 4, %s\nv_add_u32 v%d, v%d, v%d" %
                (sT0, sT0, sT1, sT1, sT0, sT0, sT1, TD, cc, sT0, TD, TD, u0))
            a.I("s_lshl_b32 %s, %s, 5\nv_lshl_add_u32 v%d, v%d, 3, %s\nv_add_u32 v%d, v%d, v%d" % (sT0, sW, TA0, cc, sT0, TA0, TA0, u0))
            for k in range(4): a.I("v_mov_b32 v%d, 0x3f803f80" % (ONES + k))
            a.I("s_mov_b32 %s, 0x3f803f80\nv_lshlrev_b32 v%d, 4, v%d\nv_lshl_add_u32 v%d, v%d, 9, v%d" % (sONE, u0, tok, vQ, g, u0))
            a.I("v_lshlrev_b32 v%d, 4, v%d\nv_lshl_add_u32 v%d, v%d, 2, v%d\nv_lshl_add_u32 v%d, v%d, 30, v%d" % (u1, tok, u1, hh, u1, u1, q16, u1)); put(aST)
        def tile_out(base, a0, a1, o1, lds, dst, cs):
            a = self.a
            for sp in range(4):
                a.ds("ds_read_b64_tr_b16 %s, v%d offset:%d" % (vr(base + 4 * sp, 2), a0, lds + sp * 4096))
                a.ds("ds_read_b64_tr_b16 %s, v%d offset:%d" % (vr(base + 4 * sp + 2, 2), a1, lds + sp * 4096 + o1), ("t", lds, sp))
            for sp in range(4):
                a.ds_wait(("t", lds, sp))
                a.vm("buffer_store_dwordx4 %s, v%d, %s, %s offen offset:%d sc1" % ((vr(base + 4 * sp, 4), vL16, WS) + dst(sp)))
                if cs: a.I("v_mfma_f32_16x16x32_bf16 %s, %s, %s, %s" % (vr(cs, 4), vr(ONES, 4), vr(base + 4 * sp, 4), vr(cs, 4) if sp else "0"))
        def cs_out(src, addr):
            a = self.a
            a.I("v_cmp_eq_u32 vcc, 0, v%d" % q16)
            a.I("\n".join(self.hi_lo(ACC + 60, src, ACC + 61)))
            a.I("v_cndmask_b32 v%d, 0, v%d, vcc" % (ACC + 60, ACC + 60))
            a.vm("buffer_store_dword v%d, v%d, %s, %s offen sc1" % (ACC + 60, addr, WS, dCS))
        xload = "buffer_load_dword v31, v%d, %s, 0 offen sc1" % (XA, WS)
        def pub():
            self.a.vm_wait("x")
            self.pair_swap(XRES, X)
            self.publish(0)
            self.a.vm(xload)

        self.sdivmod(kp, cu, "s2", 24)
        a.I("s_sub_u32 %s, %s, 12\ns_cmp_lt_u32 s2, 96\ns_cselect_b32 %s, %s, %s\ns_cselect_b32 %s, %s, %s\ns_cselect_b32 %s, 3, 1\ns_lshl_b32 %s, %s, 10" %
            (sT0, sJ, cu, cu, sN, kp, kp, sT0, st, st, st))
        a.I("v_mad_u32_u24 v%d, v%d, %s, v%d" % (vA, kc, st, u0))
        a.I("s_lshl_b32 %s, %s, 2\ns_add_u32 %s, %s, %s\ns_lshl_b32 %s, %s, 5\ns_mul_i32 %s, %s, %s\ns_lshl_b32 %s, %s, 7\ns_add_u32 %s, %s, %s" %
            (so, kp, so, so, sW, so, so, so, so, st, sT1, cu, so, so, sT1))
        a.I("s_lshl_b32 %s, %s, 3\ns_sub_u32 %s, %s, 1024" % (so2, st, so2, so2))
        a.I("s_lshl_b32 s%d, %s, 9\ns_mov_b32 s%d, 0x20000\ns_cmp_lt_u32 s2, 96\ns_waitcnt lgkmcnt(0)" % (SRC_A + 2, st, SRC_A + 3))
        a.I("s_load_dword %s, s[4:5], %d" % (sNONCE, LY.EPOCH))
        a.I("s_cselect_b32 s%d, s66, s68\ns_cselect_b32 s%d, s67, s69\ns_and_b32 s%d, s%d, 0xffff" % (SRC_A, SRC_A + 1, SRC_A + 1, SRC_A + 1))
        tile_dma(SRC_A, vA, so, so2, 0, "fa")
        x_loads()
        common()
        a.I("s_and_b32 %s, %s, 7\ns_lshl_b32 %s, %s, 1\ns_lshr_b32 %s, %s, 1\ns_add_u32 %s, %s, %s" % (sT0, cu, sT0, sT0, sT1, sW, sT0, sT0, sT1))
        a.I("s_mul_i32 %s, %s, %d\ns_add_u32 %s, %s, %d" % (sT0, sT0, LY.WQ_STRIDE, sT0, sT0, LY.WQ))
        a.I("s_lshr_b32 %s, %s, 3\ns_lshl_b32 %s, %s, 1\ns_and_b32 %s, %s, 1\ns_add_u32 %s, %s, %s" % (sT1, cu, sT1, sT1, sT2, sW, sT1, sT1, sT2))
        lin(D4[0], sT0, [(kp, 24576), (sT1, 1024)])
        lin(dCS, sT0, [(kp, 128), (sT1, 512)])
        a.I("s_add_u32 %s, %s, 98304" % (dCS, dCS))
        lin(sT0, str(LY.WO), [(cu, LY.WO_STRIDE), (kp, 16384), (sW, 1024)])
        a.I("s_cmp_lt_u32 s2, 96\ns_cselect_b32 %s, %s, %s\ns_cselect_b32 %s, %s, 0x%x\ns_cselect_b32 %s, 6, 4\ns_cselect_b64 vcc, -1, 0" %
            (D4[0], D4[0], sT0, dCS, dCS, OOB, sT1))
        a.I("s_lshl_b32 %s, %s, 10" % (sT1, sT1))
        for k in range(1, 4): a.I("s_add_u32 %s, %s, %s" % (D4[k], D4[k - 1], sT1))
        a.I("v_lshlrev_b32 v%d, 9, v%d\nv_sub_u32 v%d, v%d, v%d\nv_add_u32 v%d, 512, v%d\nv_add_u32 v%d, 2048, v%d" % (u0, g, TD, TD, u0, TA1, TA0, u0, TD))
        a.I("v_cndmask_b32 v%d, v%d, v%d, vcc\nv_cndmask_b32 v%d, v%d, v%d, vcc" % (TA0, TD, TA0, TA1, u0, TA1))
        self.stamp("p")
        a.vm_wait("fa")
        a.I("s_barrier")
        self.stamp("p")
        tile_out(ACC, TA0, TA1, 0, 0, lambda sp: (D4[sp], 0), ACC + 48)
        cs_out(ACC + 48, LINE)
        pub()
        self.stamp("p")
        a.I("L_join:")
        nst = self.nstamp
        self.a = b = Asm()
        b.I("L_follow:\ns_sub_u32 %s, s2, 128" % st)
        self.sdivmod(kp, cu, st, 28)
        b.I("v_mul_u32_u24 v%d, 3584, v%d\nv_add_u32 v%d, v%d, v%d\nv_lshl_add_u32 v%d, v%d, 10, v%d" % (vA, kc, vA, vA, u0, vD, kc, u0))
        lin(so, "0", [(kp, 128 * 3584), (sW, 32 * 3584), (cu, 128)])
        lin(so2, "0", [(sJ, 131072), (sW, 32768), (sN, 128)])
        b.I("s_waitcnt lgkmcnt(0)\ns_load_dword %s, s[4:5], %d" % (sNONCE, LY.EPOCH))
        steps = dict(g=lambda: tile_dma(SRC_G, vA, so, str(8 * 3584 - 1024), 0, "fg"), u=lambda: tile_dma(SRC_U, vA, so, str(8 * 3584 - 1024), 16384, "fu"),
                     d=lambda: tile_dma(SRC_D, vD, so2, str(7 * 1024), 32768, "fd"), x=x_loads, c=common, p=pub, w=b.vm_drain)
        self.srd(SRC_G, "s72", "s73", 512 * 3584)
        self.srd(SRC_U, "s74", "s75", 512 * 3584)
        self.srd(SRC_D, "s76", "s77", 1792 * 1024)
        for ch in OPT["follow"]: steps[ch]()
        lin(dD, str(LY.WD), [(sN, LY.WD_STRIDE), (sJ, 16384), (sW, 1024)])
        b.I("s_lshl_b32 %s, %s, 2\ns_add_u32 %s, %s, %s" % (cu, cu, cu, cu, sW))
        self.sdivmod(sT0, sT1, cu, 7)
        lin(dCS, str(LY.WG), [(sT0, LY.WG_STRIDE)])
        b.I("s_sub_u32 %s, 6, %s\n%s %s, 0\ns_cselect_b32 %s, %s, %s" % (sT2, sT1, BIT, sT0, sT1, sT1, sT2))
        S0, TL = GS0, 16 - GS0
        lin(so, dCS, [(kp, 56 * 1024), (sT1, 2048)])
        lin(dCS, dCS, [(sT1, (2 * TL + 1) * 1024)])
        lin(so2, dCS, [(kp, 8192)])
        for k in range(4):
            b.I("s_add_u32 %s, %s, %d\ns_add_u32 %s, %s, %d\ns_cmp_lt_u32 %s, %d\ns_cselect_b32 %s, %s, %s" %
                (sT0, so, 14 * 1024 * k, sT1, so2, (12 * S0 + 2 * k) * 1024, kp, (S0 - k + 3) // 4, D4[k], sT0, sT1))
        lin(dCS, dCS, [(kp, 128)])
        b.I("s_add_u32 %s, %s, %d\ns_cmp_lt_u32 s2, 240" % (dCS, dCS, (14 * S0 + 2 * TL) * 1024))
        for r_ in D4 + [dCS, dD]: b.I("s_cselect_b32 %s, %s, 0x%x" % (r_, r_, OOB))
        b.I("v_mul_u32_u24 v%d, 384, v%d\nv_add_u32 v%d, v%d, v%d" % (vA, hh, vA, vA, vFL))
        self.stamp("p")
        b.vm_wait("fu")
        b.I("s_barrier")
        self.stamp("p")
        tile_out(ACC, TA0, TA0, 512, 0, lambda sp: (D4[sp], 0), ACC + 48)
        tile_out(ACC + 16, TA0, TA0, 512, 16384, lambda sp: (D4[sp], 1024), ACC + 52)
        for k in range(4): b.I("s_add_u32 %s, %s, %d" % (D4[k], dD, 4096 * k))
        b.I("v_cmp_gt_u32 vcc, 32, v0\nv_cndmask_b32 v%d, v%d, v%d, vcc" % (ACC + 48, ACC + 52, ACC + 48))
        cs_out(ACC + 48, vA)
        b.vm_wait("fd")
        b.I("s_barrier")
        tile_out(ACC + 32, TD, TD, 512, 32768, lambda sp: (D4[sp], 0), None)
        if "p" not in OPT["follow"]: pub()
        self.stamp("p")
        b.I("s_branch L_join")
        assert nst == self.nstamp
        self.cold.append("\n".join(b.lines))
        self.a = a

        a.vm_tag["join"] = a.vm_n
        lin(sXLD, sGB, [(sW, 32768)])
        lin(sOST, sXLD, [(sJ, 2048)])
        def touch_list():
            a.I("v_lshrrev_b32 v%d, %d, v0\nv_lshlrev_b32 v%d, 7, v%d" % (u1, 1 if OPT["xdir"] else 2, u1, u1))
            if OPT["xdir"]:
                a.I("s_add_u32 %s, %s, %d\nv_and_b32 v%d, 128, v%d\nv_add_u32 v%d, %s, v%d\nv_bfe_u32 v%d, v0, 2, 3" % (sT0, sOST, LY.OB[0], u0, u1, u1, sT0, u1, CSW))
                a.I("s_add_u32 %s, %s, %d\nv_lshl_add_u32 v%d, v%d, 9, v%d\nv_cmp_gt_u32 vcc, 32, v0\nv_add_u32 v%d, %s, v%d" %
                    (sT0, sXST, LY.XB[1], u0, CSW, u0, u0, sT0, u0))
                if "x" not in OPT["t_set"]: a.I("v_mov_b32 v%d, 0x%x" % (u0, OOB))
                if "o" not in OPT["t_set"]: a.I("v_mov_b32 v%d, 0x%x" % (u1, OOB))
                a.I("v_cndmask_b32 v%d, v%d, v%d, vcc" % (u1, u0, u1))
            put(aTO)
        if OPT["t_pos"] == -2:
            touch_list()
            a.vm("buffer_load_dword a255, v%d, %s, 0 offen sc1" % (u1, WS))
        def sibling():
            touch_list()
            a.I("s_cmp_lt_u32 s2, 128\ns_cselect_b32 %s, 0x%x, 0\nv_add_u32 v%d, %s, v%d\nv_subrev_u32 v%d, 0x%x, v%d" % (sT0, OOB, u1, sT0, u1, u0, LY.ACT_STRIDE, u1)); put(aTO)
            a.vm("buffer_load_dword a255, v%d, %s, 0 offen sc1" % (u0, WS))
        if OPT["sib"] == 1: sibling()
        sa = "s[%d:%d]" % (SRC_A, SRC_A + 3)
        xd, swaps = [], []
        vX, sXD, sHD, sXL = 21, "s6", "s14", sLW4
        self.srd(SRC_A, "s64", "s65", 2048 * 1024)
        a.I("v_xor_b32 v%d, v%d, v%d\nv_lshlrev_b32 v%d, 4, v%d\nv_lshl_add_u32 v%d, v%d, 11, v%d" % (vX, t8, kc, vX, vX, vX, kc, vX))
        lin(sHD, "0", [(sN, 262144), (sP, 1024)])
        lin(sXD, sHD, [(sW, 65536)])
        lin(sHD, sHD, [(sW, 256)])
        a.I("s_sub_u32 %s, %s, 16384\ns_cmp_eq_u32 %s, 0\ns_cselect_b32 %s, 0x%x, %s" % (sHD, sHD, sN, sHD, OOB, sHD))
        a.I("v_xor_b32 v16, v%d, v%d\nv_lshlrev_b32 v16, 4, v16\nv_lshl_add_u32 v%d, v%d, 7, v16\nv_add_u32 v%d, %d, v%d" % (t8, g, u1, t8, u1, L_HALO, u1)); put(aSH)
        a.I("v_lshl_add_u32 v16, v%d, 7, v16\nv_add_u32 v16, %s, v16\nv_xor_b32 v17, 64, v16\nv_add_u32 v18, 0x10000, v16\nv_add_u32 v19, 0x10000, v17" % (tok, sXL))
        for m in range(8):
            for k in range(4):
                xd.append([("i", "s_add_u32 m0, %s, %d\ns_add_u32 s15, %s, %d" % (sXL, m * 16384, sXD, k * 16384 + m * 128 - k * 1024)),
                           ("vm", "buffer_load_dwordx4 v%d, %s, s15 offen offset:%d lds" % (vX, sa, k * 1024), ("xd", m, k))])
            swaps.append(("wvm", ("xd", m, 3)))
            swaps += [("ds", "ds_read_b128 %s, v%d offset:%d" % (vr(X + 8 * (2 * m + h_) + 4 * b_, 4), 16 + h_ + 2 * (m // 4), (m % 4) * 16384 + b_ * 2048)) for b_ in range(2) for h_ in range(2)]
        swaps.append(("dsdrain",))
        self.halo0 = [[("set", "m0", "s_add_u32 m0, %s, %d" % (sLW2, L_HALO + 1024 * k)), ("i", "s_add_u32 s15, %s, %d" % (sHD, 128 * k)),
                       ("vm", "buffer_load_dwordx4 v%d, %s, s15 offen lds" % (vX, sa), "halo" if k else None)] for k in range(2)]
        def flags():
            self.stamp("p")
            a.I("v_mov_b32 v30, %s" % sNONCE)
            a.vm_wait("join")
            a.I("s_barrier")
            a.vm("buffer_store_dword v30, v%d, %s, %s offen sc1" % (LINE, WS, sFBO))
            spin, back = a.label("xspin"), a.label("xback")
            test = "v_xor_b32 v29, %s, v31\nv_cmp_lt_u32 vcc, 15, v29\ns_and_b64 vcc, vcc, exec" % sNONCE
            a.I("%s\ns_cbranch_scc1 %s\n%s:" % (test, spin, back))
            self.cold.append("%s:\ns_mov_b32 %s, 0x40000\n%s_l:\n%s\ns_sub_u32 %s, %s, 1\ns_cbranch_scc1 L_main_done\ns_waitcnt vmcnt(0)\n%s\ns_cbranch_scc1 %s_l\ns_branch %s"
                             % (spin, sSPIN, spin, xload, sSPIN, sSPIN, test, spin, back))
            a.I("v_cmp_ne_u32 vcc, v%d, v31\ns_cmp_lg_u64 vcc, 0\ns_cselect_b32 %s, 1, 0\ns_mov_b32 s0, %s\ns_mov_b32 s1, 0" % (XV, sSLOW, sSLOW))
            self.signal(0, "pub", 0, OPT["h_def"] & 1)
            self.stamp("p")
        def carry(ops, emit, per, lag):
            nonlocal swaps
            n0 = len(a.lines)
            self.c_min = n0
            emit()
            body = a.lines[n0:]; del a.lines[n0:]
            per = max(per, -(-(self.c_min - n0) // len(ops)))
            pos = 0
            for g_ in ops:
                a.run_all(g_)
                stop = min(len(body), pos + per)
                while stop < len(body) and self.scc_live(body, stop): stop += 1
                a.I("\n".join(body[pos:stop])); pos = stop
                m, k = g_[-1][2][1:]
                if len(swaps) > 1 and 4 * swaps[0][1][1] + 3 + lag <= 4 * m + k:
                    a.run_all(swaps[:5]); swaps = swaps[5:]
            return "\n".join(body[pos:])
        def consts1():
            a.I("v_cmp_ne_u32 vcc, 0, v0\nv_mov_b32 v%d, 0x%x\nv_accvgpr_write_b32 a%d, v%d\nv_cndmask_b32 v%d, 0, v%d, vcc" % (vF1, OOB, aLINE, LINE, vF1, vF1))
            lin(sHFL, str(LY.HFL), [(sG, 1024)])
            lin(sHDFL, sHFL, [(sC, 128)])
            lin(sFBO, str(LY.FA), [("s2", 128)])
            a.I("s_add_u32 %s, %s, 2048\ns_add_u32 %s, %s, 0x%x\ns_lshl_b32 %s, %s, 11" % (sHDFL, sHDFL, sHDST, sGB, 2 * LY.ACT_STRIDE, sLW2, sW))
            a.I("s_cmp_eq_u32 %s, 0\ns_cselect_b32 %s, %s, 0x%x" % (sW, sFBO, sFBO, OOB))
            a.I("s_lshl_b32 %s, %s, 2\ns_add_u32 %s, %s, %s\ns_cmp_eq_u32 %s, 7\ns_cselect_b32 %s, 0, %s\ns_cmp_eq_u32 %s, 7" % (sT0, sR, sT0, sT0, sW, sN, sT0, sT0, sT0))
            a.I("s_cselect_b32 %s, %s, 0x%x" % (sHDST, sHDST, OOB))
            a.I("v_bfe_u32 v%d, v0, 3, 1\nv_xor_b32 v%d, 1, v%d\nv_lshlrev_b32 v%d, 29, v%d" % (vA, vA, vA, vA, vA))
            a.I("s_and_b32 %s, %s, 1\n%s" % (sT1, sC, self.getc(u1, aST)))
            lin(sT0, str(8192 - 128), [(sC, 64), (sT1, -56)])
            a.I("v_add3_u32 v%d, v%d, v%d, %s" % (u1, u1, vA, sT0)); put(aHSS)
            a.I("v_lshlrev_b32 v%d, 4, v%d\nv_lshl_add_u32 v%d, v%d, 7, v%d\nv_add_u32 v%d, %d, v%d" % (u0, t8, u0, g, u0, u1, L_HALO, u0)); put(aHX)
            a.I("s_lshl_b32 %s, %s, 10\nv_add3_u32 v%d, v%d, v%d, %s" % (sT0, sC, u1, u0, vA, sT0)); put(aHST)
        def consts2():
            a.I("s_lshr_b32 %s, %s, 1\ns_lshl_b32 %s, %s, 5\ns_and_b32 %s, %s, 1\ns_lshl_b32 %s, %s, 1\ns_add_u32 %s, %s, %s" % (sT0, sW, sT0, sT0, sT1, sW, sT1, sT1, sT0, sT0, sT1))
            a.I("s_mov_b32 s40, 0x33333333\ns_mov_b32 s41, 0\ns_lshl_b64 s[40:41], s[40:41], %s" % sT0)
            a.I("s_lshl_b32 %s, %s, 1\ns_lshl_b32 %s, %s, 4\ns_add_u32 %s, %s, %s" % (sT0, sR, sT2, sW, sT0, sT0, sT2))
            a.I("s_mov_b32 s42, 0x3333\ns_mov_b32 s43, 0\ns_lshl_b64 s[42:43], s[42:43], %s" % sT0)
            a.I("s_lshr_b32 %s, %s, 1\ns_mul_i32 %s, %s, 24\ns_add_u32 %s, %s, %s\nv_lshl_add_u32 v%d, v%d, 3, %s" % (sT0, sJ, sT1, sW, sT0, sT0, sT1, u0, kc, sT0))
            a.I("s_lshl_b32 %s, %s, 3\ns_add_u32 %s, %s, %s\ns_add_u32 %s, %s, 96\nv_mov_b32 v%d, %s\nv_cmp_gt_u32 vcc, 24, v0\nv_cndmask_b32 v%d, v%d, v%d, vcc" %
                (sT0, sW, sT0, sT0, sC, sT0, sT0, u1, sT0, u0, u1, u0))
            a.I("v_lshlrev_b32 v%d, 7, v%d\nv_add_u32 v%d, %d, v%d" % (u0, u0, FAV, LY.FA, u0))
            self.c_min = len(a.lines)
            a.I("s_lshr_b32 %s, s2, 3\ns_lshl_b32 %s, %s, 2\ns_add_u32 %s, %s, %s\ns_lshl_b32 %s, %s, 7" % (sCPO, sCPO, sCPO, sCPO, sCPO, sW, sCPO, sCPO))
            lin(sHST, sGB, [(sW, 114688), (sJ, 7168)])
            lin(sSLD, sGB, [(sW, 2048)])
            lin(sOL, sXST, [(sC, -4096)])
            a.I(BIT + " %s, 0\ns_cselect_b32 %s, 1, -1\ns_cselect_b32 %s, 0, 6144\ns_lshl_b32 %s, %s, 10\ns_add_u32 %s, %s, %s" % (sJ, sHSTEP, sT0, sHSTEP, sHSTEP, sHST, sHST, sT0))
            a.I("s_lshr_b32 %s, %s, 1\ns_lshl_b32 %s, %s, 1\ns_add_u32 %s, %s, %s\ns_lshl_b32 s66, 0x11111111, %s\ns_mov_b32 s67, s66" % (sT0, sW, sT1, sR, sT0, sT0, sT1, sT0))
            lin(sHLD[3], sGB, [(sR, 229376), (sW, 28672)])
            for i in range(4):
                a.I("s_add_u32 %s, %s, %d\ns_and_b32 %s, %s, 3\ns_lshr_b32 %s, %s, 1\ns_and_b32 %s, %s, 1" % (sTA, sW, i + 1, sTA, sTA, sT0, sTA, sT1, sTA))
                lin(sHLD[i], sHLD[3], [(sT0, 114688), (sT1, 256)])
                if i < 3: lin(sXW[i], str(i * 4096), [(sTA, 12288)])
            lin(sXR, "0", [(sW, 12288)])
            lin(sWQ, str(LY.WQ), [(sJ, LY.WQ_STRIDE * (1 - OPT["hitw"]))])
            lin(sWG, str(LY.WG), [(sJ, LY.WG_STRIDE * (1 - OPT["hitw"]))])
            lin(sWO, str(LY.WO), [(sC, LY.WO_STRIDE * (1 - OPT["hitw"])), (sW, 4096)])
            lin(sWD, str(LY.WD), [(sC, LY.WD_STRIDE * (1 - OPT["hitw"])), (sW, 57344)])
            lin(sTAB, str(L_TAB), [(sW, 512)])
            a.I("s_lshl_b32 %s, %s, 10" % (sLW, sW))
            a.I("s_add_u32 %s, %s, %s\ns_add_u32 %s, %s, %s" % (sWQ4, sWQ, sLW4, sWG4, sWG, sLW4))
            a.I("s_cmp_eq_u32 %s, 0\ns_cselect_b32 %s, 0x%x, %s\ns_cselect_b64 s[54:55], 0, -1" % (sN, sHALO, OOB, sGB))
            a.I("s_add_u32 %s, %s, %s\ns_add_u32 %s, %s, %s\ns_add_u32 %s, %s, %s" % (sHALO2, sHALO, sLW2, sWQ, sWQ, sLW, sWG, sWG, sLW2))
            a.I("v_add_u32 v%d, 0x10000, v%d\nv_add_u32 v%d, 0x20000, v%d" % (vL16b, vL16, vL16c, vL16))
            if OPT["t_pos"] != -2 and not OPT["sib"]: touch_list()
            a.I("v_lshlrev_b32 v%d, 7, v%d\nv_lshl_add_u32 v%d, v%d, 5, v%d\nv_lshl_add_u32 v%d, v%d, 1, v%d\nv_lshlrev_b32 v%d, 3, v0" % (u0, rr, u0, g, u0, u0, cc, u0, u1))
            a.I("s_cmp_ge_u32 %s, 2\ns_cselect_b64 vcc, -1, 0\ns_cselect_b32 %s, 2, 8\nv_cndmask_b32 v%d, v%d, v%d, vcc" % (sW, sT1, u1, u0, u1))
            a.I("s_lshr_b32 %s, %s, 1\ns_add_u32 %s, %s, %d\nv_add_u32 v%d, %s, v%d" % (sT0, sLW, sT0, sT0, L_KV, u1, sT0, u1)); put(aHWR)
            a.I("v_mov_b32 v%d, %s" % (u1, sT1)); put(aHWS)
            a.I("s_mul_i32 %s, %s, 7\ns_add_u32 %s, %s, 6\ns_lshr_b32 %s, %s, 2\ns_lshr_b32 %s, %s, 2" % (sT0, sJ, sT1, sT0, sT0, sT0, sT1, sT1))
            a.I("v_add_u32 v%d, %s, v%d\nv_min_u32 v%d, %s, v%d\ns_mul_i32 %s, %s, 28\nv_add_u32 v%d, %s, v%d" % (u0, sT0, kc, u0, sT1, u0, sT0, sW, u0, sT0, u0))
            a.I("s_add_u32 %s, %s, 112\nv_cmp_gt_u32 vcc, 24, v0\nv_mov_b32 v%d, %s\nv_cndmask_b32 v%d, v%d, v%d, vcc" % (sT0, sJ, u1, sT0, u0, u1, u0))
            a.I("s_mul_i32 %s, %s, 7\ns_lshr_b32 %s, %s, 1\nv_and_b32 v%d, 3, v%d\nv_add_u32 v%d, %s, v%d\nv_lshl_add_u32 v%d, v%d, 3, %s" % (sT0, sW, sT0, sT0, u1, kc, u1, sT0, u1, u1, u1, sC))
            a.I("v_cmp_gt_u32 vcc, 32, v0\nv_cndmask_b32 v%d, v%d, v%d, vcc" % (u0, u1, u0))
            a.I("v_lshlrev_b32 v%d, 7, v%d\nv_add_u32 v%d, %d, v%d" % (u0, u0, u1, LY.FA + 128 * 128, u0)); put(aFB)
            a.I("s_getpc_b64 %s\nL_pc2:\ns_sub_u32 s4, s4, L_pc2-L_pc\ns_subb_u32 s5, s5, 0" % sPC)
            NG, Z, M0_, M1_ = rr, cc, q16, hh
            a.I("s_or_b32 %s, %s, %s\ns_cmp_eq_u32 %s, 0\ns_cselect_b64 s[56:57], -1, 0" % (sT0, sN, sW, sT0))
            a.I("v_mov_b32 v%d, %s\nv_mov_b32 v%d, 0\nv_lshlrev_b32 v%d, 2, v%d\nv_sub_u32 v%d, v%d, v%d" % (NG, NEG, Z, vA, g, vA, tok, vA))
            for r in range(4):
                a.I("v_subrev_u32 v%d, %d, v%d\nv_mov_b32 v%d, %s" % (u0, r, vA, M0_, "0xffff0000" if r & 1 else "0xffff"))
                a.I("v_cmp_gt_u32 vcc, 8, v%d\nv_cmp_gt_i32 s[58:59], -8, v%d\nv_cmp_le_i32 s[60:61], 0, v%d" % (u0, u0, u0))
                a.I("v_cndmask_b32 v%d, v%d, v%d, vcc" % (u1, NG, Z)); put(aBC + r)
                a.I("v_cndmask_b32 v%d, v%d, v%d, s[58:59]" % (u1, NG, Z)); put(aBP + r)
                a.I("v_cndmask_b32 v%d, v%d, v%d, s[56:57]" % (u1, u1, NG)); put(aBP0 + r)
                if r & 1:
                    a.I("v_cndmask_b32 v%d, v%d, v%d, s[60:61]\nv_or_b32 v%d, v%d, v%d" % (u1, Z, M0_, u1, u1, M1_)); put(aMC + r // 2)
                else:
                    a.I("v_cndmask_b32 v%d, v%d, v%d, s[60:61]" % (M1_, Z, M0_))
        n1, n2, n3 = OPT["xd1"], 32 - OPT["fa_ld"], 32 - OPT["fa_ck"]
        assert n1 <= 28
        a.I(carry(xd[:n1], consts1, OPT["xd_gap"], 99))
        flags()
        rest = carry(xd[n1:n2], consts2, OPT["xd_per"], OPT["xd_lag"])
        self.stamp("p")
        l_fa, g_fa = self.late_check("buffer_load_dword v%d, v%d, %s, 0 offen sc1" % (PB, FAV, WS), PB, "exec", "fa2")
        l_x, g_x = self.check_ops(0, sMA, PA, "x2")
        if OPT["h_def"] & 1:
            assert "s[58:59]" not in rest or "v_cmp_gt_i32 s[58:59]" in rest.split("s[58:59]")[0] + "s[58:59]"
            self.halo_flag()
        a.run_all(l_x + l_fa)
        a.I(carry(xd[n2:n3], lambda: a.I(rest), OPT["xd_per"], OPT["xd_lag"]) if n3 > n2 else rest)
        if OPT["t_pos"] == -1: a.run_all(self.flat(self.touch(aTO, "0", 0, 20)))
        if OPT["sib"] == 2: sibling()
        while len(swaps) > 1 and swaps[0][1][1] < max(3, min(OPT["x_pre"], n3 // 4)):
            a.run_all(swaps[:5]); swaps = swaps[5:]
        a.run_all(g_fa + g_x)
        a.ds_drain()
        self.stamp("p")
        self.x_rest, self.x_reads = xd[n3:], swaps

    def qkv(self, ps):
        a = self.a
        xi = 2 * ps
        late = self.wq_late(ps)
        lateb = ps == 0 and "b" not in OPT["order"] and not OPT["lead"]
        bst = []
        wql = [g for ch in late for g in self.wq_chunk(ch)]
        split = ps == 0 and OPT["q0_split"]
        HX, HW, HW2, HF, NM, RL, CQ, RR = 16, 17, 18, 19, 20, 26, 28, ACC + 52
        def setup():
            a.I(self.getc(HX, aHX))
            a.I("s_add_u32 %s, %s, 2048\nv_add_u32 v%d, %s, v%d\nv_add_u32 v%d, 0xc000, v%d\nv_and_b32 v%d, 0x380, v%d" % (sT2, sLW, HW, sT2, vL16, HW2, HW, CQ, vL16))
            if EB:
                self.early_barrier()
                for f in range(6): a.ds("ds_read_b128 %s, %s" % (vr(F + 4 * f, 4), ldsaddr(f * 1024)), ("f", 0, f))
        EB = ps == 1 and OPT["eb"] & 2
        if ps == 0 and OPT["xdir"]:
            a.forget(("fb", "xd"))
            if not OPT["lead"]: setup()
        else:
            self.poll(6 * ps, sMA, self.fav if ps == 0 and not split else None, setup)
        self.stamp()
        xl = self.reg_loads([vr(X + 8 * s + 4 * b, 4) for s in range(16) for b in range(2)], [sXLD] * 32,
                            [LY.XB[xi] + s * 2048 + b * 256 for s in range(16) for b in range(2)], sTA, vQ, "x")
        UP = OPT["q_up"] if ps else OPT["q0_up"]
        xdir = ps == 0 and OPT["xdir"]
        if xdir: xl = []
        if ps == 0:
            late = late[1:]
            n = 4 + OPT["q0_w"]
            first = wql[:4] + xl[:UP] + wql[4:n]
            if split:
                l_fa, g_fa = self.late_check("buffer_load_dword v%d, v%d, %s, 0 offen sc1" % (HF, self.fav, WS), HF, "exec", "fa")
                n1 = OPT["q0_n1"]
                first = xl[:n1] + [l_fa] + xl[n1:UP] + [g_fa + [("i", "s_barrier")]] + wql[:n]
            else:
                first = xl[:2] + [[("i", "s_barrier")]] + wql[:4] + xl[2:UP] + wql[4:n] + (self.halo0 if xdir and not OPT["lead"] else [])
                if OPT["lead"]:
                    assert n <= 12
                    k = 1 + OPT["q0_x"]
                    first[k:k] = [g + [("call", lambda: a.state.pop("m0", None))] for g in self.x_rest]
            wql = wql[n:]
            if OPT["b_pos"] >= 2:
                k = OPT["b_pos"] - 2
                a.run_all(self.flat(first[:k])); first = first[k:]
                self.b_loads(); a.state.pop("m0", None)
            inb = xdir and OPT["inb"]
            if inb:
                bpre, brd, bst2 = self.second_ops()
                if OPT["inb_at"]:
                    k = OPT["inb_at"] + 1
                    a.run_all(self.flat(first[:k])); first = first[k:]
                    self.b_loads(); a.state.pop("m0", None)
                a.I(bpre)
            elif lateb:
                k = len(first) - OPT["q0_b"]
                a.run_all(self.flat(first[:k])); first = first[k:]
                if OPT["b_pos"] >= 2 or xdir: a.vm_wait(("fb", 24576))
                a.I("s_barrier")
                bst = self.second_unit()
            a.run_all(self.flat(first))
        else:
            a.run_all(self.flat(xl[:UP]))
            if OPT["h_def"] & 2: self.halo_flag()
            if OPT["h_late"]: hflag = self.halo_late(1)
        if ps == 0:
            if OPT["lead"]:
                a.run_all(self.x_reads); setup()
            a.vm_wait(("wq", 0))
            if inb and OPT["inb_ch"] == 0: a.vm_wait(("fb", 24576))
        if not EB: a.I("s_barrier")
        sl = Slots()
        sl.mpatience, sl.patience = OPT["q_mp%d" % ps], OPT["q_vp"]
        use = {}
        acc = lambda blk, b: vr(ACC + 8 * blk + 4 * b, 4)
        hbuf = lambda t: (F + 24, X)[t % 2]
        HR = OPT["hreg"]
        hwreg = (lambda t: X + 32 + 4 * t) if HR else hbuf
        T0 = X if HR else X + 34
        step0 = {}
        H0 = OPT["xd_h0"] if xdir else OPT["q_h0"]
        hpos = {}
        for t in range(16):
            p = (t * 6 * (16 - H0)) // 16 + 1
            hpos.setdefault((H0 + p // 6, p % 6), []).append(t)
        Y, Z = X + 8, X + 96
        BC, BP, BP0, MC, ONES, KW, CSA = Y, Y + 4, Y + 8, Y + 12, Y + 14, Y + 16, Y + 21
        def halo_mfma(t):
            d = acc(6, 0)
            if t < 16:
                i = sl.add("v_mfma_f32_16x16x32_bf16 %s, %s, %s, %s" % (d, vr(hbuf(t) + 4, 4), vr(hwreg(t), 4), "0" if t == 0 else d), [("wds", ("hw", t)), ("wds", ("hx", t))])
            else:
                i = sl.add("v_mfma_f32_16x16x16_bf16 %s, %s, %s, %s" % (d, vr(NM + 4, 2), vr(hbuf(t), 2), d), [("wds", ("hw", t))])
            use[("h", t)] = i
        for s in range(17):
            step0[s] = sl.n()
            if s == 16: halo_mfma(16)
            for f in range(6):
                for b in range(2):
                    pre_ = []
                    if b == 0: pre_.append(("wds", ("f", s, f // OPT["q_grp"] * OPT["q_grp"] + OPT["q_grp"] - 1)))
                    if f == 0 and s < 16 and not xdir: pre_.append(("wvm", ("x", 2 * s + (b if s == 0 else 1))))
                    w = vr(F + 4 * f, 4 if s < 16 else 2)
                    x = vr(X + 8 * s + 4 * b, 4) if s < 16 else vr(NM + 2 * b, 2)
                    A, B = (w, x) if f < 4 else (x, w)
                    d = acc(f, b)
                    mn = "v_mfma_f32_16x16x32_bf16" if s < 16 else "v_mfma_f32_16x16x16_bf16"
                    use[(s, f)] = sl.add("%s %s, %s, %s, %s" % (mn, d, A, B, "0" if s == 0 else d), pre_)
                for t in hpos.get((s, f), ()): halo_mfma(t)
        reads = []
        for s in range(17):
            for f in range(6):
                d = F + 4 * f
                if s < 16: t = "ds_read_b128 %s, %s" % (vr(d, 4), ldsaddr(s * 6144 + f * 1024))
                else: t = "ds_read2st64_b32 %s, v%d offset0:%d offset1:%d" % (vr(d, 2), CSA, 2 * f, 2 * f + 1)
                reads.append((use[(s - 1, f)] if s else -1, (6 * s + f) // 16, ("ds", t, ("f", s, f))))
        hbar = step0[H0 - 1] + 4
        for t in range(17):
            pos = use[("h", t - 2)] if t >= 2 else hbar + 2 + 2 * t
            if t < 16:
                reads.append((use[(max(5 + t // 2, t - 1), 1 + 3 * (t % 2))] if HR else pos, (6 * t + 5) // 16, ("ds", "ds_read_b128 %s, v%d offset:%d" % (vr(hwreg(t), 4), HW if t < 8 else HW2, (t % 8) * 6144), ("hw", t))))
                reads.append((pos + (1 if t >= 2 and not HR else 0), 0, ("ds", "ds_read_b128 %s, v%d offset:%d" % ((vr(hbuf(t) + 4, 4),) + ((T0 + t % 2, t // 2 * 1024) if xdir else (HX, t * 512))), ("hx", t))))
            else:
                reads.append((pos, 6, ("ds", "ds_read2st64_b32 %s, v%d offset0:4 offset1:5" % (vr(hbuf(t), 2), CSA + 1), ("hw", t))))
        sl.put("c", step0[4], [("i", "v_add_u32 v%d, 98304, v%d\ns_lshr_b32 %s, %s, 1\nv_add_u32 v%d, %s, v%d" % (CSA, vFL, sT2, sLW, CSA + 1, sT2, CSA)), ("mark", "csaddr")])
        sl.after(step0[14], ("need", "csaddr"))
        sl.pre[step0[16]].append(("wds", ("nm", 2)))
        chbar = {}
        for ch in late:
            ops = [("wvm", ("wq", ch)), ("i", "s_barrier")]
            p = chbar[ch] = min(p for p, c, _ in reads if c == ch)
            if ps == 0 and inb and ch == OPT["inb_ch"]: ops.insert(0, ("wvm", ("fb", 24576)))
            if lateb and ch == OPT["q0_fbch"]:
                ops.insert(0, ("wvm", "fbs"))
                assert p >= step0[5]
                sl.put("f", p + 1, [("i", "v_mov_b32 v%d, %s\n%s" % (X + 32, sNONCE, self.getc(X + 33, aLINE))),
                                    ("vm", "buffer_store_dword v%d, v%d, %s, %s offen sc1" % (X + 32, X + 33, WS, sFBO))])
            if xdir and ch == 5: ops.insert(0, ("wvm", ("wq", 6)))
            if xdir and ch == 3:
                assert p <= hbar
                ops.insert(0, ("wvm", "halo"))
            if xdir and ch == 6: del chbar[6]
            else: sl.after(p, *ops)
        if not xdir: sl.after(hbar, ("wvm", "halo"), ("i", "s_barrier"))
        if ps == 0 and inb:
            p = chbar.get(OPT["inb_ch"], -1) + 1
            sl.put("b", p, brd)
            for n_, g in enumerate(bst2): sl.put("b", p + OPT["inb_wait"] + n_ * OPT["inb_gap"], g)
            bfree = chbar[OPT["q0_fbch"]] + 2
        if xdir:
            assert H0 >= 7 and not OPT["diagpad"]
            sl.put("g", step0[5], [("i", self.getc(T0, aSH) + "\nv_xor_b32 v%d, 64, v%d" % (T0 + 1, T0)), ("mark", "hx0")])
            sl.after(hbar, ("need", "hx0"))
        for pos, _, rd in reads:
            if pos < 0:
                if not EB: a.run(rd)
            else: sl.after(pos, rd)
        l_hf, g_chk = self.late_check("buffer_load_dword v%d, v%d, %s, %s offen sc1" % (HF, CQ, WS, sT1), HF, sMH, "hf")
        g_hf = [("i", "s_add_u32 %s, %s, %d" % (sT1, sHFL, ps * 16384))] + l_hf
        g_hd = self.dma_chunk(sHALO2, LY.HX[ps], L_HALO, 2, "halo", " sc1")
        g_hs = [("i", "s_add_u32 %s, %s, %d" % (sT1, sHALO, LY.HX[ps] + 8192 - L_HALO)),
                ("vm", "buffer_load_dwordx4 %s, v%d, %s, %s offen sc1" % (vr(RR + 8, 4), HX, WS, sT1), "st")]
        g_s0 = [("i", "s_add_u32 %s, %s, %d" % (sT0, sSLD, LY.SB[xi])), ("vm", "buffer_load_dwordx4 %s, v%d, %s, %s offen sc1" % (vr(RR, 4), vL16, WS, sT0))]
        g_s1 = [("vm", "buffer_load_dwordx4 %s, v%d, %s, %s offen offset:1024 sc1" % (vr(RR + 4, 4), vL16, WS, sT0))]
        wgq = []
        if HR:
            assert OPT["lead"]
            wbar = min(p for p in ([] if xdir else [hbar]) + list(chbar.values()) if p >= step0[8])
            sl.post[wbar].insert(0, ("wds", ("hw", 5)))
            if ps and self.digits("wg_q1"):
                w2 = step0[max(11, OPT["q_wbar"])]
                while sl.post[w2]: w2 += 1
                sl.after(w2, ("wds", ("hw", 10)), ("i", "s_barrier"))
                assert set(self.digits("wg_q1")) <= {0, 1}
                wgq = [(w2 + 2, g) for g in self.wgs("q", ps)]
        else:
            wbar = max(use[("h", 6)] + 2, step0[OPT["xd_wbar" if xdir else "q_wbar"]])
            while sl.post[wbar]: wbar += 1
            sl.after(wbar, ("i", "s_barrier"))
        wo = [((bfree if ps == 0 and inb else 0) if i < 2 else wbar + 2, g) for i in range(4) for g in self.wo_chunk(i) if not (ps and OPT["skipo"] and WO_SLOT[i] in self.digits("keepo"))]
        rest = xl[UP:]
        h1 = OPT["q_hf"] if ps else OPT["q0_hf"]
        h2 = h1 + OPT["q_chk"] - 2
        seq = rest[:h1] + [g_hf, g_s0, g_s1] + rest[h1:h2] + [g_chk] + g_hd + [g_hs] + rest[h2:]
        if ps and OPT["h_late"]: seq.insert(OPT["h_late"], hflag)
        if xdir:
            k1, k2 = OPT["xd_h1"], OPT["xd_h1"] + OPT["xd_h2"]
            seq = wql[:k1] + [g_hf, g_s0, g_s1] + (self.halo0 if OPT["lead"] else []) + wql[k1:k2] + [g_chk, g_hs] + wql[k2:]
        elif wql:
            due, d = [], sl.n()
            for g in reversed(seq):
                tag = g[-1][2] if len(g[-1]) > 2 else None
                if isinstance(tag, tuple) and tag[0] == "x": d = step0[tag[1] // 2]
                due.append((d, g))
            due.reverse()
            d, wdue = 0, []
            for g in reversed(wql):
                if g[-1][2] is not None: d = chbar[g[-1][2][1]] - OPT["q0_lead"]
                wdue.append((d, g)); d -= 6
            seq = [g for _, g in sorted(due + wdue[::-1], key=lambda t: t[0])]
        for n_, g in enumerate(bst):
            k = OPT["b_first"] + n_ * (OPT["b_gap"] + 1)
            assert not any(op[0] == "vm" and len(op) > 2 and isinstance(op[2], tuple) and op[2][0] == "x" and op[2][1] >= 24 for g2 in seq[:k] for op in g2)
            seq.insert(k, g)
        if ps == 0:
            tch = self.touch(aTO, "0", 0, T0 + 2) if OPT["t_set"] != "-" and OPT["t_pos"] >= 0 else []
            wo[OPT["t_pos"]:OPT["t_pos"]] = [(step0[OPT["t_step"]], g) for g in tch]
            l_fb, g_fb = self.late_check("%s\nbuffer_load_dword v%d, v%d, %s, 0 offen sc1" % (self.getc(Y + 23, aFB), Y + 23, Y + 23, WS), Y + 23, "exec", "fb")
            l_fb = [("i", l_fb[0][1].split("\n")[0]), ("vm", l_fb[0][1].split("\n")[1], "fb")]
            seq += [g + (OPT["q0_tail"] / 10,) for g in wo]
            if OPT["fb_at"] == "att":
                sl.put("f", step0[OPT["q0_fbs"]], l_fb)
                if OPT["wd_q"]:
                    p = step0[OPT["q0_fbs"] + OPT["q0_fbl"]]
                    sl.put("f", p, [("need", "hchk")] + g_fb); g_fb = []
                    g_chk.append(("mark", "hchk"))
                    assert not sl.pace(self.wds("q", ps), p + 2, (sl.n() - p - 4 - OPT["wd_e"]) / OPT["wd_q"], name="f")
            else:
                assert not (self.digits("wg_att0") or self.digits("wg_h10") or OPT["wd_att"] or OPT["wd_h1"])
                self.cold.pop(); g_fb = []
        else:
            seq += wo + wgq
        if OPT["cpf"] & 8: sl.put("g", step0[OPT["cp_q"]], self.flat(self.code_touch("L_qkv%d" % ps, CQ + 1)))
        sl.put("g", step0[12], self.flat(self.code_touch("L_wo%d" % ps, CQ + 1)))
        left = sl.pace(seq, 0, (OPT["q_every"] if ps else OPT["q0_every"]) / 10)
        A0, A1, AH = RR, RR + 4, RR + 8
        st = [[("wvm", "st")]]
        for r_ in (A0, A1, AH):
            st.append([("i", "v_add_f32 v%d, v%d, v%d" % (r_, r_, r_ + 2))])
            st.append([("i", "v_add_f32 v%d, v%d, v%d" % (r_ + 1, r_ + 1, r_ + 3))])
        for o in (0, 1): st.append([("i", "v_mov_b32 v%d, v%d" % (AH + 2 + o, AH + o))])
        for o in (0, 1): st.append([("i", "v_permlane32_swap_b32 v%d, v%d" % (A0 + o, A1 + o))])
        for o in (0, 1): st.append([("i", "v_permlane32_swap_b32 v%d, v%d" % (AH + o, AH + 2 + o))])
        for o in (0, 1): st.append([("i", "v_add_f32 v%d, v%d, v%d" % (A0 + o, A0 + o, A1 + o))])
        for o in (0, 1): st.append([("i", "v_add_f32 v%d, v%d, v%d" % (AH + o, AH + o, AH + 2 + o))])
        for o in (0, 1): st.append([("i", "v_permlane16_swap_b32 v%d, v%d" % (A0 + o, AH + o))])
        for o in (0, 1): st.append([("i", "v_add_f32 v%d, v%d, v%d" % (A0 + o, A0 + o, AH + o))])
        st += [[op] for op in self.ln_from_sums(A0, A0 + 1, A0 + 2)]
        st.append([("i", "v_cvt_pk_bf16_f32 v%d, -v%d, -v%d" % (A0, A0, A0))])
        st.append([("i", "v_add_u32 v%d, %s, v%d" % (HF, sTAB, vFL))])
        st.append(([("need", "bdone")] if ps == 0 and inb else []) + [("i", "v_and_or_b32 v30, v%d, 63, %s" % (vFL, sTAB))])
        st.append([("i", "v_and_or_b32 v31, v0, 48, %s" % sTAB)])
        st.append([("ds", "ds_write2st64_b32 v%d, v%d, v%d offset0:0 offset1:1" % (HF, A0 + 1, A0))])
        row = {0: 0, 1: 2, 2: 1}
        for b in range(3):
            o = 64 + row[b] * 16
            st.append([("ds", "ds_read2_b32 %s, v30 offset0:%d offset1:%d" % (vr(NM + 2 * b, 2), o, o), ("nm", b))])
        st.append([("ds", "ds_read2_b32 %s, v30 offset0:0 offset1:32" % vr(RL, 2))])
        for b in range(3):
            st.append([("ds", "ds_read_b128 %s, v31 offset:%d" % (vr(RR + 4 * b, 4), row[b] * 64), ("tab", b))])
        sl.spread(st, step0[OPT["xd_st"]] if xdir else step0[H0] - OPT["q_st"], step0[14])
        cst = [[("i", self.getc(Y + k, aBC + k))] for k in range(14)]
        cst += [[("i", "v_mov_b32 v%d, %s" % (ONES + k, sONE))] for k in range(2)]
        cst += [[("i", self.getc(KW, aHWR))], [("i", self.getc(KW + 3, aHWS))], [("i", "s_add_u32 %s, %s, %d" % (sT2, sLW2, L_KV))],
                [("i", "v_add_u32 v%d, v%d, v%d" % (KW + 1, KW, KW + 3))], [("i", "v_lshl_add_u32 v%d, v0, 3, %s" % (KW + 4, sT2))],
                [("i", "v_add_u32 v%d, v%d, v%d" % (KW + 2, KW + 1, KW + 3))], [("i", "v_add_u32 v%d, v%d, v%d" % (KW + 3, KW + 2, KW + 3))]]
        sl.spread(cst, step0[4] + 2, step0[8], "c")
        Qp = lambda b, h: Z + 4 * h + 2 * b
        Kp = lambda b, h: Z + 8 + 6 * h + 2 * (b + 1)
        Vp = lambda b, h: Z + 20 + 6 * h + 2 * (b + 1)
        HP, HA = HX, ACC + 48
        ar_ = lambda blk, b: ACC + 8 * blk + 4 * b
        cvt = lambda d, s_: "v_cvt_pk_bf16_f32 v%d, v%d, v%d" % (d, s_, s_ + 1)
        tl = [("wds", ("tab", 2)), ("i", "v_mul_f32 v%d, 0x3eb8aa3b, v%d\nv_mul_f32 v%d, 0x3eb8aa3b, v%d" % (CQ, RL, CQ + 1, RL + 1))]
        tl += [("i", "v_mul_f32 v%d, v%d, v%d" % (HA + r, HA + r, RR + 8 + r)) for r in range(4)]
        tl += [("i", cvt(HP, HA)), ("i", cvt(HP + 1, HA + 2))]
        hw = [("ds", "ds_write_b16%s v%d, v%d" % ("_d16_hi" if r & 1 else "", KW + r, HP + r // 2)) for r in range(4)]
        qs = [(h, b) for h in range(2) for b in range(2)]
        sl.put("v", step0[16], tl)
        for n_, (h, b) in enumerate(qs):
            sl.put("v", use[(16, h)], [hw[n_], ("i", cvt(Qp(b, h), ar_(h, b))), ("i", cvt(Qp(b, h) + 1, ar_(h, b) + 2))])
        self.lite(sl, "q", [step0[s] for s in (0, 2, 4, 6, 8, 10, 12, 14)])
        self.report("qkv%d" % ps, sl.emit(a))
        self.stamp()
        body = []
        e = lambda t: body.extend(("i", x) for x in t.split("\n"))
        def pack(dst, src): e(cvt(dst, src) + "\n" + cvt(dst + 1, src + 2))
        def scale_l(src, b):
            for k in range(2): e("v_pk_mul_f32 %s, %s, %s op_sel:[0,%d] op_sel_hi:[1,%d]" % (vr(src + 2 * k, 2), vr(src + 2 * k, 2), vr(RL, 2), b, b))
        def scale_r(src, r0):
            for k in range(2): e("v_pk_mul_f32 %s, %s, %s" % (vr(src + 2 * k, 2), vr(src + 2 * k, 2), vr(r0 + 2 * k, 2)))
        kvw = lambda src, part: body.append(("ds", "ds_write_b64 v%d, %s offset:%d" % (KW + 4, vr(src, 2), 2048 + 512 * part)))
        for h in range(2):
            scale_l(ar_(2 + h, 1), 1); pack(Kp(1, h), ar_(2 + h, 1)); kvw(Kp(1, h), h); scale_l(ar_(2 + h, 0), 0)
        for h in range(2):
            scale_r(ar_(4 + h, 1), RR + 4); pack(Vp(1, h), ar_(4 + h, 1)); kvw(Vp(1, h), 2 + h); scale_r(ar_(4 + h, 0), RR)
        units = [(1, 0), (1, 1), (0, 0), (0, 1)]
        SC = lambda u: F + 8 * u
        SP = lambda u: F + 8 * u + 4
        smf = lambda d, kb, u, bias: "v_mfma_f32_16x16x16_bf16 %s, %s, %s, %s" % (vr(d, 4), vr(Kp(kb, units[u][1]), 2), vr(Qp(*units[u]), 2), vr(bias, 4))
        M = [ACC + u for u in range(4)]
        def merge(u):
            return ["v_max_f32 v%d, v%d, v%d" % (SC(u) + r, SC(u) + r, SP(u) + r) for r in range(4)] + [
                "v_max3_f32 v%d, v%d, v%d, v%d" % (M[u], SC(u), SC(u) + 1, SC(u) + 2), "v_max_f32 v%d, v%d, v%d" % (M[u], M[u], SC(u) + 3)]
        e(smf(SC(0), 1, 0, BC)); pack(Kp(0, 0), ar_(2, 0))
        e(smf(SC(1), 1, 1, BC)); pack(Kp(0, 1), ar_(3, 0))
        e(smf(SP(0), 0, 0, BP))
        if ps == 0: body.extend(g_fb)
        body.extend(("wvm", ("wo", i)) for i in range(2) if not (ps and OPT["skipo"] and WO_SLOT[i] in self.digits("keepo")))
        body.append(("dsdrain",)); e("s_barrier")
        nbar = len(body)
        rdkv = lambda dst, part, tag: body.append(("ds", "ds_read_b64 %s, v%d offset:%d" % (vr(dst, 2), KW + 4, 512 * part), tag))
        e(smf(SP(1), 0, 1, BP)); rdkv(Kp(-1, 0), 0, ("kp", 0)); rdkv(Kp(-1, 1), 1, ("kp", 1))
        e(smf(SC(2), 0, 2, BC)); rdkv(Vp(-1, 0), 2, ("vp", 0)); rdkv(Vp(-1, 1), 3, ("vp", 1))
        e(smf(SC(3), 0, 3, BC)); pack(Vp(0, 0), ar_(4, 0)); pack(Vp(0, 1), ar_(5, 0))
        m0, m1 = merge(0), merge(1)
        e("\n".join(m0))
        body.append(("wds", ("kp", 1)))
        e(smf(SP(2), -1, 2, BP0)); e("\n".join(m1[:2]))
        e(smf(SP(3), -1, 3, BP0)); e("\n".join(m1[2:]))
        e("s_add_u32 %s, %s, %d" % (sT0, sOST, LY.OB[ps]))
        e("\n".join(merge(2)[:2]))
        e("v_permlane32_swap_b32 v%d, v%d" % (M[0], M[1]))
        e("\n".join(merge(2)[2:] + merge(3)))
        e("v_max_f32 v%d, v%d, v%d" % (M[0], M[0], M[1]))
        e("v_permlane32_swap_b32 v%d, v%d\nv_max_f32 v%d, v%d, v%d" % (M[2], M[3], M[2], M[2], M[3]))
        e("v_permlane16_swap_b32 v%d, v%d\nv_max_f32 v%d, v%d, v%d\nv_max_f32 v%d, v%d, v%d" % (M[0], M[2], M[1], M[0], M[2], M[2], M[0], M[2]))
        e("v_permlane16_swap_b32 v%d, v%d" % (M[1], M[2]))
        e("v_mul_f32 v%d, v%d, v%d\nv_mul_f32 v%d, v%d, v%d" % (M[0], M[1], CQ + 1, M[1], M[1], CQ + 1))
        e("v_mul_f32 v%d, v%d, v%d\nv_mul_f32 v%d, v%d, v%d" % (M[3], M[2], CQ, M[2], M[2], CQ))
        def shift(u):
            for k in range(2):
                e("v_pk_fma_f32 %s, %s, %s, %s op_sel:[0,%d,%d] op_sel_hi:[1,%d,%d] neg_lo:[0,0,1] neg_hi:[0,0,1]" %
                  (vr(SC(u) + 2 * k, 2), vr(SC(u) + 2 * k, 2), vr(CQ, 2), vr(ACC + 2 * (u // 2), 2), units[u][0], u % 2, units[u][0], u % 2))
        e("v_permlane32_swap_b32 v%d, v%d" % (M[0], M[1])); shift(0)
        e("v_permlane32_swap_b32 v%d, v%d" % (M[2], M[3])); shift(1); shift(2); shift(3)
        PM = lambda u: ACC + 4 + 2 * u
        PS = lambda u: ACC + 12 + 4 * u
        OP = lambda b: ACC + 28 + 4 * b
        pv = lambda u: "v_mfma_f32_16x16x32_bf16 %s, %s, %s, 0" % (vr(SC(u), 4), vr(Vp(units[u][0] - 1, units[u][1]), 4), vr(PS(u), 4))
        for u, (b, h) in enumerate(units):
            for r in range(4):
                e("v_exp_f32 v%d, v%d" % (SC(u) + r, SC(u) + r))
                if r == 1 and u >= 1: e(pv(u - 1))
            if u == 2: body.append(("wds", ("vp", 1)))
            if u >= 2: e("v_rcp_f32 v%d, v%d" % (SP(u - 2), SP(u - 2)))
            pack(PM(u), SC(u))
            for k in range(2):
                e("v_bfi_b32 v%d, v%d, 0, v%d\nv_and_b32 v%d, v%d, v%d" % (PS(u) + k, MC + k, PM(u) + k, PS(u) + 2 + k, MC + k, PM(u) + k))
            e("v_mfma_f32_16x16x16_bf16 %s, %s, %s, 0" % (vr(SP(u), 4), vr(ONES, 2), vr(PM(u), 2)))
        e("v_rcp_f32 v%d, v%d" % (SP(2), SP(2)))
        e(pv(3))
        def fin(u, packed):
            b, h = units[u]
            if packed:
                for k in range(2): e("v_pk_mul_f32 %s, %s, %s op_sel_hi:[1,0]" % (vr(SC(u) + 2 * k, 2), vr(SC(u) + 2 * k, 2), vr(SP(u), 2)))
            else:
                for r in range(4): e("v_mul_f32 v%d, v%d, v%d" % (SC(u) + r, SC(u) + r, SP(u)))
            pack(OP(b) + 2 * h, SC(u))
            if h == 1:
                body.append(("vm", "buffer_store_dwordx4 %s, v%d, %s, %s offen offset:%d%s" % (vr(OP(b), 4), vQ, WS, sT0, b * 256, " sc1" if ps == 0 and "o" not in OPT["t_set"] else ""), "o" if b == 0 else None))
        fin(0, False); fin(1, True)
        e("v_rcp_f32 v%d, v%d" % (SP(3), SP(3)))
        fin(2, True); fin(3, True)
        left = self.weave(body[:nbar], left, 0, OPT["a_every"])
        stop = len(body) - OPT["a_quiet"]
        left = self.weave(body[nbar:stop], left + self.wgs("att", ps) + self.wds("att", ps), 4, OPT["a_every"])
        a.run_all(body[stop:])
        print("  attention: %d groups left for the hand-off" % len(left))
        self.stamp()
        self.wo_pre(0, OPT["w_pre"])
        self.signal(6 * ps + 1, "o")
        a.run_all(self.flat(left + self.wgs("h1", ps) + self.wds("h1", ps)))
        self.stamp()

    def early_barrier(self):
        a = self.a
        n = [k for k, t in enumerate(l for l in reversed(a.lines) if l.startswith(("buffer_load", "buffer_store", "global_load"))) if t.endswith(" lds")][0]
        a.vm_wait_n(a.vm_n - n)
        a.ds_drain()
        a.I("s_barrier")

    def wds(self, where, ps):
        if ps: return []
        if self.wd is None:
            ks = [4 * s + cb for s in DN_ORD for cb in range(4)]
            self.wd = self.reg_loads([ar(4 * k, 4) for k in ks], [sWD] * 56, [k * 1024 for k in ks], sTD, vL16, "wd")
        n = OPT.get("wd_" + where, 56)
        out, self.wd = self.wd[:n], self.wd[n:]
        return out

    WREG = [X + 4 * k for k in range(16)] + [ACC + 16 + 4 * k for k in range(12)] + [F + 4 * k for k in range(8)]
    def wo_read(self, k):
        return ("ds", "ds_read_b128 %s, %s" % (vr(self.WREG[k % 36], 4), ldsaddr(WO_SLOT[k // 16] * 16384 + (k % 16) * 1024)), ("w", k))
    def wo_pre(self, k0, k1):
        for k in range(k0, k1): self.a.run(self.wo_read(k))

    def pair_swap(self, dst, src):
        a = self.a
        dpp = "quad_perm:[1,0,3,2] row_mask:0xf bank_mask:0xf"
        a.I("s_mov_b32 vcc_lo, 0x55555555\ns_mov_b32 vcc_hi, 0x55555555")
        for d in range(4): a.I("v_cndmask_b32_dpp v%d, v%d, v%d, vcc %s" % (dst + d, src + 4 + d, src + d, dpp))
        a.I("s_not_b64 vcc, vcc")
        for d in range(4): a.I("v_cndmask_b32_dpp v%d, v%d, v%d, vcc %s" % (dst + 4 + d, src + d, src + 4 + d, dpp))

    def finish(self, A, xo, h, pf, n, halo_pass):
        a = self.a
        for k in range(8): a.I("v_cvt_pk_bf16_f32 v%d, v%d, v%d" % (XRES + k, A + 2 * k, A + 2 * k + 1))
        if xo == 4:
            a.I(self.getc(16, aROW))
            self.pair_swap(F, XRES)
            for e_ in range(2): a.vm("buffer_store_dwordx4 %s, v16, %s, 0 offen offset:%d %s" % (vr(F + 4 * e_, 4), OUT, e_ * 2048, OPT["outf"].strip("-")))
            self.stamp()
            return
        self.publish(xo)
        self.stamp()
        a.run_all(self.flat(pf[:n]))
        self.signal(h, "pub", halo_pass, OPT["h_def"] & 2)
        a.run_all(self.flat(pf[n:]))
        self.stamp()

    def wo(self, ps):
        a = self.a
        def setup():
            for k in range(8):
                a.I("v_lshlrev_b32 v%d, 16, v%d\nv_and_b32 v%d, 0xffff0000, v%d" % (ACC + 2 * k, XRES + k, ACC + 2 * k + 1, XRES + k))
            if OPT["eb"] & 4: self.early_barrier()
        keep = dict(a.ds_tag)
        if OPT["stamps"] and ps == 0:
            a.I("s_memtime s[%d:%d]" % (sST, sST + 1)); a.ds_drain(force=True); a.I("v_writelane_b32 v%d, s%d, 60" % (vSTAMP, sST))
        self.poll(6 * ps + 1, sMC, None, setup)
        a.ds_tag.update((t, n) for t, n in keep.items() if t[0] == "w")
        self.stamp()
        areg = lambda s: vr(X + 64 + 4 * s, 4)
        ld = self.reg_loads([areg(s) for s in range(16)], [sOL] * 16, [LY.OB[ps] + s * 2048 for s in range(16)], sTA, vQ, "act")
        UP = OPT["w_up"]
        g_fb = []
        if ps == 0 and OPT["fb_at"] == "wo":
            l_fb, g_fb = self.late_check("buffer_load_dword v17, v16, %s, 0 offen sc1" % WS, 17, "exec", "fb")
            ld[OPT["fb_k"]] = ld[OPT["fb_k"]] + [("i", self.getc(16, aFB))] + l_fb
        rest = [self.wo_read(k) for k in range(OPT["w_pre"], 32)]
        for n_, g in enumerate(ld[:UP]):
            a.run_all(g)
            if n_ >= 3: a.run_all(rest[:3]); rest = rest[3:]
        a.run_all(rest)
        if not OPT["eb"] & 4: a.I("s_barrier")
        self.wo_pre(32, 36)
        sl = Slots()
        for k in range(64):
            s, cb = divmod(k, 4)
            d = vr(ACC + 4 * cb, 4)
            sl.add("v_mfma_f32_16x16x32_bf16 %s, %s, %s, %s" % (d, vr(self.WREG[k % 36], 4), areg(s), d),
                   [("wds", ("w", k))] + ([("wvm", ("act", s))] if cb == 0 else []))
            if cb == 0 and s + UP < 16: sl.put("m", k, ld[s + UP])
            if k + 36 < 64: sl.put("r", k, [self.wo_read(k + 36)])
        pf = self.wgs("wo", ps) + self.wds("wo", ps)
        p0 = 64 - 4 * UP + 2
        if g_fb:
            p0 = max(p0, OPT["fb_s"])
            sl.put("m", p0 - 3, g_fb + [("i", "s_barrier")])
        pf = sl.pace(pf, p0, 4.4, 64 - OPT["w_quiet"])
        self.lite(sl, "wo", [8 * k for k in range(8)])
        self.report("wo%d" % ps, sl.emit(a))
        self.stamp()
        self.finish(ACC, 2 * ps + 1, 6 * ps + 2, pf + self.wgs("h2", ps) + self.wds("h2", ps), 0, None)

    def dn_plan(self, ps):
        no = OPT["d_own"]
        order = [(i, s) for lv in DN_S for i in range(3) for s in lv]
        order[3 * N1:3 * N1] = [(3, s) for s in DN_ORD[:no]]
        order += [(3, s) for s in sorted(DN_ORD[no:])]
        areg = lambda k: vr(X + 48 + 4 * (k % 16), 4)
        ld = self.reg_loads([areg(k) for k in range(56)], [sHLD[i] for i, s in order], [LY.HB[ps] + s * 2048 for i, s in order], sTA, vQ, "act")
        return order, areg, ld

    def dn(self, ps, issued, wd):
        a = self.a
        order, areg, ld = self.dn_plan(ps)
        XW, XR, R, P, U = 16, 19, 20, (ACC, ACC + 16, ACC + 32), ACC + 48
        io = L_SCR_DN - 65536
        UP = OPT["k_up"]
        widx = {s: n_ for n_, s in enumerate(DN_ORD)}
        wd_e = [g for g in wd if g[-1][2][1] < 4 * N1]
        wd_l = [g for g in wd if g[-1][2][1] >= 4 * N1]
        a.run_all(self.flat(ld[issued:UP] + wd_e))
        if ps == 0:
            a.ds_drain()
            a.I("s_barrier")
        sl = Slots()
        accr = lambda i, cb: (X, X + 16, X + 32, X + 112)[i] + 4 * cb
        seen, endb = set(), {}
        for k, (i, s) in enumerate(order):
            for cb in range(4):
                d = vr(accr(i, cb), 4)
                pre = [("wvm", ("act", k))] if cb == 0 else []
                tag = ("wd", 4 * widx[s] + cb)
                if i == 0 and (tag in a.vm_tag or any(g[-1][2] == tag for g in wd_l)): pre.append(("wvm", tag))
                endb[i] = sl.add("v_mfma_f32_16x16x32_bf16 %s, %s, %s, %s" % (d, ar(16 * s + 4 * cb, 4), areg(k), d if (i, cb) in seen else "0"), pre)
                seen.add((i, cb))
        K1, K2 = 3 * N1 + OPT["d_own"], 3 * N2 + OPT["d_own"]
        chk = {K1: self.chk2, K2: self.check_ops(6 * ps + 5, sMB, PA, "hf3")}
        if self.pending: sl.put("f", OPT["d_mid%d" % ps], self.pending)
        sl.put("f", OPT["d_sig%d" % ps], self.signal_ops(6 * ps + 5, "h6", PB))
        extra = list(wd_l)
        k0 = max(UP, issued)
        assert k0 <= K1
        for k in range(k0, 56):
            p = max(4 * (k - min(OPT["d_up2"], k0 + max(0, k - OPT["d_ramp"]) // 3)), int(OPT["d_min"] / 10 * (k - k0)))
            for kc_ in chk:
                if k == max(k0, kc_ - OPT["d_chk" if kc_ == K1 else "d_chk3"]): sl.put("m", max(p, OPT["d_f%d" % ps] if kc_ == K2 else 0), chk[kc_][0])
            if k in chk:
                due = [g for g in extra if g[-1][2][1] < (4 * N2 if k == K1 else 56)]
                sl.put("m", p, self.flat(due)); extra = extra[len(due):]
                sl.put("m", max(p, OPT["d_f%d" % ps] + OPT["d_flat"] if k == K2 and OPT["d_f%d" % ps] else 0), chk[k][1])
            sl.put("m", p, ld[k])
            sl.put("m", p, self.flat(extra[:1])); extra = extra[1:]
        su = [[("i", "v_add_u32 v%d, %s, v%d" % (XW + i, sXW[i], vL16b))] for i in range(3)] + [[("i", "v_add_u32 v%d, %s, v%d" % (XR, sXR, vL16b))]]
        su += [[("i", "s_lshl_b32 %s, %s, 2\ns_add_u32 %s, %s, %s\ns_lshl_b32 %s, %s, 6\ns_add_u32 %s, %s, %d\nv_and_or_b32 v%d, v%d, 63, %s" %
                 (sT0, sR, sT0, sT0, sW, sT0, sT0, sT0, sT0, L_RS, R, vFL, sT0)), ("ds", "ds_read_b32 v%d, v%d" % (R, R))]]
        for k in range(8):
            su += [[("i", "v_lshlrev_b32 v%d, 16, v%d" % (U + 2 * k, XRES + k))], [("i", "v_and_b32 v%d, 0xffff0000, v%d" % (U + 2 * k + 1, XRES + k))]]
        if OPT["g_c2"]: su.insert(3, [("need", "c2")])
        sl.spread(su, 30, 80)
        if ps == 0 and OPT["cpf"] & 4: sl.put("g", OPT["cp_d"], self.flat(self.code_touch("L_qkv1", 24)))
        writes = lambda i: [[("ds", "ds_write_b128 v%d, %s offset:%d" % (XW + i, vr(accr(i, cb), 4), io + cb * 1024))] for cb in range(4)]
        if OPT["d_w64"]:
            writes = lambda i: [[("ds", "ds_write_b64 v%d, %s offset:%d" % (XW + i, vr(accr(i, cb) + 2 * e_, 2), io + cb * 1024 + 8 * e_))] for cb in range(4) for e_ in range(2)]
        reads = lambda i: [[("ds", "ds_read_b128 %s, v%d offset:%d" % (vr(P[i] + 4 * cb, 4), XR, io + i * 4096 + cb * 1024), ("r", i, cb))] for cb in range(4)]
        add = lambda d, s_: [[("i", "v_add_f32 v%d, v%d, v%d" % (d + e_, d + e_, s_ + e_))] for e_ in range(16)]
        wb = []
        if ps and OPT["wb"]:
            go, back = a.label("wb"), a.label("wbback")
            self.cold.append("%s:\nbuffer_wbl2 sc1\ns_branch %s" % (go, back))
            wb = [[("i", "s_and_b32 %s, %s, %d\ns_or_b32 %s, %s, %s" % (sT1, sJ, 16 // OPT["wb"] - 1, sT1, sT1, sW)),
                   ("vm", "s_cmp_eq_u32 %s, 0\ns_cbranch_scc1 %s\nbuffer_load_dword a255, off, %s, %s nt\n%s:" % (sT1, go, WS, sFLG, back))]]
        bar = [[("dsdrain",), ("i", "s_barrier")]]
        fma = lambda p_: [[("i", "v_fma_f32 v%d, v%d, v%d, v%d" % (U + e_, p_ + e_, R, U + e_))] for e_ in range(16)]
        if OPT["d_own"]:
            for i in range(2): sl.spread(writes(i), endb[i] + 2, endb[i] + 15)
            r01, w2 = reads(0) + reads(1), writes(2)
            mix = [x for n_ in range(4) for x in (r01[2 * n_], r01[2 * n_ + 1], w2[n_])]
            sl.spread(bar + mix, endb[2] + 1, endb[2] + 15)
            sl.spread([[("wds", ("r", 0, 3))]] + fma(P[0])[:8] + bar + wb + reads(2) + fma(P[0])[8:] + fma(P[1]), endb[2] + 16, endb[3] - 1)
        else:
            for i in range(3): sl.spread(writes(i), endb[i] + 2, endb[i] + 17)
            seq = bar + wb + reads(0) + reads(1) + reads(2) + [[("wds", ("r", 1, 3))]] + add(P[0], P[1]) + [[("wds", ("r", 2, 3))]] + add(P[0], P[2]) + fma(P[0])
            sl.spread(seq, endb[2] + 20, endb[3] - 2)
        pf = [] if ps else [g for i in range(7) if i not in self.wq_late(1) + self.kept() for g in self.wq_chunk(i)]
        pf = sl.pace(pf, 224 - 4 * OPT["d_up2"] + 2, 4.4)
        self.lite(sl, "dn", [28 * k for k in range(8)])
        self.report("dn%d" % ps, sl.emit(a))
        self.stamp()
        A = accr(3, 0)
        if OPT["d_own"]:
            a.ds_wait(("r", 2, 3))
            for k in range(8): a.I("v_pk_fma_f32 %s, %s, %s, %s op_sel_hi:[1,0,1]" % (vr(U + 2 * k, 2), vr(P[2] + 2 * k, 2), vr(R, 2), vr(U + 2 * k, 2)))
        for k in range(8): a.I("v_pk_fma_f32 %s, %s, %s, %s op_sel_hi:[1,0,1]" % (vr(A + 2 * k, 2), vr(A + 2 * k, 2), vr(R, 2), vr(U + 2 * k, 2)))
        self.finish(A, 2 * ps + 2, 6, pf, OPT["dn_pre"], None if OPT["h_late"] else 1)

    def gu(self, ps):
        a = self.a
        xi = 2 * ps + 1
        def setup():
            self.early_barrier()
            for k in range(OPT["g_la"]): a.ds("ds_read_b128 %s, %s" % (vr(F + 4 * k, 4), ldsaddr(self.wg_slot(0, ps) * 16384 + k * 1024)), ("f", k))
        EB = OPT["eb"] & 1
        self.poll(6 * ps + 2, sMA, None, setup if EB else None)
        self.stamp()
        S0, TL, NR, XR_ = GS0, 16 - GS0, 8, 10
        SS, NM, HPK, CSA = 16, 24, 28, 21
        A0 = X + 80
        xreg = lambda s, b: X + 8 * (s % XR_) + 4 * b
        acc = lambda bl, m, b: A0 + 16 * bl + 8 * b + 4 * m
        xl = self.reg_loads([vr(xreg(s, b), 4) for s in range(16) for b in range(2)], [sXLD] * 32,
                            [LY.XB[xi] + s * 2048 + b * 256 for s in range(16) for b in range(2)], sTA, vQ, "x")
        UP = OPT["g_up"]
        a.run_all(self.flat(xl[:UP]))
        if not EB: a.I("s_barrier")
        a.I("s_add_u32 %s, %s, %d" % (sT0, sSLD, LY.SB[xi]))
        g_st = [[("vm", "buffer_load_dwordx4 %s, v%d, %s, %s offen sc1" % (vr(SS, 4), vL16, WS, sT0))],
                [("vm", "buffer_load_dwordx4 %s, v%d, %s, %s offen offset:1024 sc1" % (vr(SS + 4, 4), vL16, WS, sT0), "st")]]
        early = self.wg_early(ps)
        NS = len(self.ring(ps))
        assert 0 in early and len(set(early)) == len(early) and all(c < NS and self.wg_slot(c, ps) not in WO_SLOT for c in early)
        assert all(self.wg_slot(c, ps) != 7 for c in self.digits("wg_att%d" % ps) + self.digits("wg_h1%d" % ps)) and not set(self.kept()) - {2, 3, 4, 5}
        frags = [(s, bl, m) for s in range(S0) for bl in range(7) for m in range(2)]
        for bl in range(7): frags += [(s, bl, m) for s in range(S0, 16) for m in range(2)] + [(16, bl, 0)]
        sl = Slots()
        sl.mpatience, sl.patience = OPT["g_mp%d" % ps], OPT["g_vp"]
        first, last, end, xfirst, xlast = {}, {}, {}, {}, {}
        for k, (s, bl, m) in enumerate(frags):
            w = F + 4 * (k % NR)
            for mm, b in ([(m, 0), (m, 1)] if s < 16 else [(0, 0), (0, 1), (1, 0), (1, 1)]):
                G_ = OPT["g_grp"]
                pre = [] if k in first else [("wds", ("f", min(k // G_ * G_ + G_ - 1, len(frags) - 1)))]
                d = vr(acc(bl, mm, b), 4)
                if s < 16:
                    if (s, b) not in xfirst: pre.append(("wvm", ("x", 2 * s + (b if s == 0 else 1))))
                    n_ = sl.add("v_mfma_f32_16x16x32_bf16 %s, %s, %s, %s" % (d, vr(w, 4), vr(xreg(s, b), 4), "0" if s == 0 else d), pre)
                    xfirst.setdefault((s, b), n_); xlast[(s, b)] = n_
                else:
                    n_ = sl.add("v_mfma_f32_16x16x16_bf16 %s, %s, %s, %s" % (d, vr(w + 2 * mm, 2), vr(NM + 2 * b, 2), d), pre)
                first.setdefault(k, n_); last[k] = n_
            end[bl] = n_
        LA = OPT["g_la"]
        def rd(k):
            off = self.wg_slot(k // 16, ps) * 16384 + (k % 16) * 1024
            d = F + 4 * (k % NR)
            if frags[k][0] < 16:
                return [("ds", "ds_read_b128 %s, %s" % (vr(d, 4), ldsaddr(off)), ("f", k))]
            return [("ds", "ds_read2st64_b32 %s, v%d offset0:%d offset1:%d" % (vr(d + 2 * m, 2), CSA + (off >> 16), (off & 0xffff) // 256 + 2 * m, (off & 0xffff) // 256 + 2 * m + 1),
                     ("f", k) if m else None) for m in range(2)]
        for k in range(0 if EB else LA): a.run_all(rd(k))
        barpos, real = {}, []
        retire = lambda c: min(p for p in real if p > last[16 * c + 15])
        for k in range(LA, len(frags)):
            if k % 16 == 0:
                ch = k // 16
                pair = ps == 1 and OPT["g_bar1"] == 2 and ch >= OPT["g_pair0"]
                if pair and (ch - OPT["g_pair0"]) % 2:
                    barpos[ch] = barpos[ch - 1]
                elif ch not in early:
                    p = barpos[ch] = last[k - LA] - 1
                    real.append(p)
                    need = ch + 1 if pair and ch < 14 else ch
                    if need not in early: sl.pre[p + 1].append(("wvm", ("wg", need)))
                    sl.after(p, *(([("wvm", ("wg", need))] if need not in early else []) + [("i", "s_barrier")]))
            sl.after(last[k - LA], *rd(k))
        wl = [(retire(ch - NS) + 2 if ch >= NS else 0, g) for ch in range(15) if ch not in early for g in self.wg_chunk(ch, ps)]
        wdue = [barpos[ch] - 8 * (len(self.wg_chunk(ch, ps)) - 1 - n_) for ch in range(15) if ch not in early for n_ in range(len(self.wg_chunk(ch, ps)))]
        wd = self.wds("rest", ps)
        tail0 = xfirst[(S0, 0)]
        xs = []
        for n_ in range(UP, 32):
            s, b = divmod(n_, 2)
            due = min(xfirst[(s, b)], tail0 - (31 - n_) * OPT["g_xsp"])
            xs.append((due, xlast[(s - XR_, b)] + 1 if s >= XR_ else 0, xl[n_]))
        n_ = OPT["g_stat"]
        xs[n_:n_] = [(xs[n_][0], 0, g) for g in g_st]
        P = lambda key: OPT["g_%s%d" % (key, ps)] / 10
        pos, fab, ix, iw, idd, seq = 0.0, 0.0, 0, 0, 0, []
        stop = end[6] - OPT["g_tail"]
        while ix < len(xs) or iw < len(wl) or (idd < len(wd) and pos <= stop):
            xok = ix < len(xs) and xs[ix][1] <= pos
            xu = xok and xs[ix][0] - pos <= P("xlead")
            wok = iw < len(wl) and wl[iw][0] <= pos
            wu = wok and wdue[iw] - pos <= P("wmin")
            free = fab <= pos + P("slack")
            if xu and (not wu or xs[ix][0] <= wdue[iw] - P("wmin") + P("xlead")): pick = "x"
            elif wu: pick = "w"
            elif free and wok and wdue[iw] - pos <= P("wmax"): pick = "w"
            elif free and idd < len(wd) and pos <= stop: pick = "d"
            elif xok and xs[ix][0] - pos <= P("xmax"): pick = "x"
            else:
                pos = int(pos) + 1; continue
            if pick == "x": g = xs[ix][2]; ix += 1
            elif pick == "w": g = wl[iw][1]; iw += 1; fab = max(fab, pos) + P("wcost")
            else: g = wd[idd]; idd += 1; fab = max(fab, pos) + P("dcost")
            behind = (ix < len(xs) and xs[ix][0] - pos < 0.7 * P("xlead")) or (iw < len(wl) and wdue[iw] - pos < 0.7 * P("wmin"))
            seq.append((pos, g)); pos += 2.0 if behind else P("every")
            if g is g_st[1]: stpos = pos
        assert not sl.pace(seq, 0, 0)
        left = wd[idd:]
        st = [[("wvm", "st")]]
        for r_ in (SS, SS + 4):
            for o in (0, 1): st.append([("i", "v_add_f32 v%d, v%d, v%d" % (r_ + o, r_ + o, r_ + 2 + o))])
        for o in (0, 1): st.append([("i", "v_permlane32_swap_b32 v%d, v%d" % (SS + o, SS + 4 + o))])
        for o in (0, 1): st.append([("i", "v_add_f32 v%d, v%d, v%d" % (SS + o, SS + o, SS + 4 + o))])
        for o in (0, 1): st.append([("i", "v_mov_b32 v%d, v%d" % (SS + 2 + o, SS + o))])
        for k in range(3): st.append([("i", "v_add_u32 v%d, %d, v%d" % (CSA + k, k << 16, vFL))])
        for o in (0, 1): st.append([("i", "v_permlane16_swap_b32 v%d, v%d" % (SS + o, SS + 2 + o))])
        for o in (0, 1): st.append([("i", "v_add_f32 v%d, v%d, v%d" % (SS + o, SS + o, SS + 2 + o))])
        st += [[op] for op in self.ln_from_sums(SS, SS + 1, SS + 2)]
        st += [[("i", "v_cvt_pk_bf16_f32 v%d, -v%d, -v%d" % (NM + k, SS, SS))] for k in range(4)]
        st += [[("i", "v_mul_f32 v%d, v%d, v%d" % (SS + 1, SS + 1, SS + 1))],
               [("i", "s_lshr_b32 %s, %s, 3\ns_add_u32 %s, %s, %d" % (sT0, sLW, sT0, sT0, L_RS))],
               [("i", "v_and_or_b32 v%d, v%d, 63, %s" % (SS, vFL, sT0))], [("i", "v_and_b32 v%d, 32, v0" % (SS + 2))],
               [("i", "v_lshl_add_u32 v%d, v%d, 1, v%d" % (SS, SS + 2, SS))]]
        st += [[("i", "v_permlane32_swap_b32 v%d, v%d" % (NM + k, NM + 2 + k))] for k in range(2)] + [[("mark", "nm")]]
        sl.after(tail0 - 2 * LA, ("need", "nm"))
        sl.spread(st, int(stpos) + 40, tail0 - 2 * LA - 10)
        held = []
        def epi(bl, packed=False):
            g = []
            H = acc(bl, 1, 0)
            for b in range(2):
                ga = acc(bl, 0, b)
                g += [[("i", "v_max_f32 v%d, 0, v%d" % (ga + r, ga + r))] for r in range(4)]
                if packed: g += [[("i", "v_pk_mul_f32 %s, %s, %s" % (vr(ga + r, 2), vr(ga + r, 2), vr(ga + 4 + r, 2)))] for r in (0, 2)]
                else: g += [[("i", "v_mul_f32 v%d, v%d, v%d" % (ga + r, ga + r, ga + 4 + r))] for r in range(4)]
                g += [[("i", "v_cvt_pk_bf16_f32 v%d, v%d, v%d" % (H + 2 * b + k, ga + 2 * k, ga + 2 * k + 1))] for k in range(2)]
            out = [[("i", "s_add_u32 %s, %s, %s" % ((sTS, sTS, sHSTEP) if bl else (sTS, sHST, LY.HB[ps])))],
                   [("vm", "buffer_store_dwordx4 %s, v%d, %s, %s offen%s" % (vr(H, 4), vL16, WS, sTS, {"s": " sc1", "n": " nt", "p": ""}[OPT["h_st%d" % ps][bl]]), "h%d" % bl)]]
            if bl in self.digits("h_rb%d" % ps):
                out.append([("vm", "buffer_load_dword a255, v%d, %s, %s offen sc1" % (vL16, WS, sTS))])
            sw = [[("i", "v_permlane16_swap_b32 v%d, v%d" % (H + k, H + 2 + k))] for k in range(2)]
            if bl in self.digits("h_hold%d" % ps):
                held.extend(out)
                return g + sw
            g += held + out[:1] + sw + out[1:]
            del held[:]
            return g
        for bl in range(6): sl.spread(epi(bl), end[bl] + 1, end[bl + 1] - OPT["g_epi"])
        l_e, g_e = self.check_ops(6 * ps + 3, sMB, SS + 3, "he")
        sl.put("f", end[3 - LV] + OPT["g_sig%d" % ps], self.signal_ops(6 * ps + 3, "h%d" % (2 - LV), SS + 4))
        self.pending = self.signal_ops(6 * ps + 4, "h%d" % (4 - LV), SS + 4)
        if OPT["d_mid%d" % ps] < 0:
            sl.put("f", end[5 - LV] + OPT["g_sig%d" % ps], self.pending); self.pending = None
        self.chk2 = self.check_ops(6 * ps + 4, sMB, SS + 3 if OPT["g_c2"] else PA, "hf2")
        nh = OPT["g_h%d" % ps]
        assert S0 >= 10 and nh <= 12
        p = end[6] - OPT["g_chk%d" % ps]
        sl.put("h", p - OPT["g_lat%d" % ps], l_e)
        if nh:
            sl.put("h", p, g_e); g_e = []
            hl = self.dn_plan(ps)[2][:nh]
            if OPT["g_c2"]:
                hl.insert(nh + 1 - OPT["g_c2"], self.chk2[0]); self.chk2 = ([], self.chk2[1] + [("mark", "c2")])
            assert not sl.pace(hl, p + 1, min(4.4, (end[6] - p - 2) / len(hl)), name="h")
        if OPT["cpf"] & 2: sl.put("g", OPT["cp_g"], self.flat(self.code_touch("L_gu%d" % ps, HPK)))
        sl.put("g", tail0 + OPT["cp_t"], self.flat(self.code_touch("L_dn%d" % ps, SS + 3)))
        sl.put("c", max(tail0, retire(max(c for c in range(14) if self.wg_slot(c, ps) == 6)) + 1), [("ds", "ds_write_b32 v%d, v%d" % (SS, SS + 1))])
        if ps == 0:
            sl.put("c", end[6] - 8, [("i", "s_or_b32 %s, s2, %s" % (sT0, sW)), ("atom", "s_cmp_eq_u32 %s, 0\ns_cselect_b32 %s, %d, 0x%x" % (sT0, sT0, LY.EPOCH, OOB)),
                                     ("i", "v_mov_b32 v%d, %s" % (SS + 2, sNONCE)),
                                     ("vm", "buffer_store_dword v%d, v%d, %s, %s offen" % (SS + 2, vF1, WS, sT0))])
        self.lite(sl, "g", [56 * k for k in range(8)])
        self.report("gu%d" % ps, sl.emit(a))
        a.run_all(self.flat(epi(6, True)))

        self.stamp()
        a.run_all(g_e)
        self.stamp()
        print("  gu: %d loads left for the hand-off" % len(left))
        return nh, left

    def build(self):
        a = self.a
        (self.startup2 if OPT["lead"] else self.startup)()
        for ps in range(2):
            a.I("L_qkv%d:" % ps); self.qkv(ps)
            a.I("L_wo%d:" % ps); self.wo(ps)
            a.I("L_gu%d:" % ps); left = self.gu(ps)
            a.I("L_dn%d:" % ps); self.dn(ps, *left)
        if OPT["stamps"]:
            a.I("s_waitcnt vmcnt(0)\ns_memrealtime s[6:7]\ns_memtime s[80:81]\ns_waitcnt lgkmcnt(0)\nv_writelane_b32 v%d, s6, 63\nv_writelane_b32 v%d, s80, 61" % (vSTAMP, vSTAMP))
            a.I("s_lshl_b32 %s, s2, 10\ns_lshl_b32 %s, %s, 8\ns_add_u32 %s, %s, %s\ns_add_u32 %s, %s, %d" % (sT0, sT1, sW, sT0, sT0, sT1, sT0, sT0, LY.STAMP))
            a.I("buffer_store_dword v%d, v%d, %s, %s offen" % (vSTAMP, vFL, WS, sT0))
        if OPT["diagpad"]:
            a.I("s_mov_b32 s82, %d" % OPT["diagpad"])
            if OPT["diagat"]:
                a.I("s_sub_u32 s83, s%d, s14\ns_lshl_b32 s83, s83, 2" % sST)
                if OPT["diagwg"] >= 0: a.I("s_cmp_eq_u32 s2, %d\ns_cselect_b32 s83, s83, 0" % OPT["diagwg"])
                a.I("s_add_u32 s82, s82, s83")
            a.I("L_pad:\ns_memrealtime s[80:81]\ns_waitcnt lgkmcnt(0)\ns_sub_u32 s80, s80, s14\ns_cmp_lt_u32 s80, s82\ns_cbranch_scc1 L_pad")
        a.I("L_main_done:\ns_endpgm")
        for c in self.cold: a.I(c)
        a.I("L_code_end:")
        return a.lines

def main():
    ml, n2 = hazard_pass(Main().build())
    bad = check_async(ml)
    assert not bad, bad[:3]
    if OPT["lead"]:
        i, j, k = ml.index("s_cbranch_scc1 L_follow"), ml.index("L_follow:"), ml.index("s_branch L_join")
        alt = ml[:i + 1] + ml[j:k + 1] + ml[ml.index("L_join:"):j]
        bad = check_async(alt)
        assert not bad and hazard_pass(alt)[1] == 0, bad[:3]
    k = NAME + "_kernel"
    out = ["; Generated by gen/gen.py. " + " ".join(sys.argv[2:]),
           "; One persistent kernel, one workgroup per CU. Kernarg: x, wqkv, wo, (unused), w_gate, w_up, w_down, out, debug, ws.",
           "; Rows of one parity form an independent sequence; 16 workgroups share a block of 128 such rows through all four layers:",
           ";   start-up : weights re-laid out once in MFMA fragment order (plus column sums for the LayerNorm mean) in the workspace",
           ";   qkv      : 128 rows x 2 heads, LayerNorm folded in, windowed attention in registers",
           ";   wo / dn  : 64 x 64 output tiles plus residual, partial LayerNorm sums published with the tile",
           ";   gu       : 128 rows x 112 hidden columns, ReGLU in the epilogue",
           "; Hand-offs use flags tagged with a per-launch value derived from a workspace word. A group whose members are on one die",
           "; (checked at run time) hands over through that die's L2; any other group uses release / acquire at device scope.",
           "; @launch grid=(256,1,1) block=(256,1,1) lds=163840",
           '.amdgcn_target "amdgcn-amd-amdhsa--gfx950"', ".text",
           ".globl %s" % k, ".p2align 8", ".type %s,@function" % k]
    out += [l if l.endswith(":") else "    " + l for l in ml]
    out += ['.section .rodata,"a"', ".p2align 6", """.amdhsa_kernel %s
  .amdhsa_next_free_vgpr 512
  .amdhsa_next_free_sgpr 102
  .amdhsa_accum_offset 256
  .amdhsa_group_segment_fixed_size 0
  .amdhsa_kernarg_size 80
  .amdhsa_user_sgpr_count 2
  .amdhsa_user_sgpr_kernarg_segment_ptr 1
  .amdhsa_system_sgpr_workgroup_id_x 1
  .amdhsa_float_denorm_mode_32 3
.end_amdhsa_kernel""" % k]
    if OPT["rt"]: out = [l.replace("s_memtime", "s_memrealtime") for l in out]
    open(sys.argv[1], "w").write("\n".join(out) + "\n")
    print("instructions: %d ; wait states added: %d" % (len(ml), n2))

main()
```

```python
import re

TRANS = ("v_exp_f32", "v_log_f32", "v_rcp_f32", "v_rsq_f32", "v_sqrt_f32", "v_sin_f32", "v_cos_f32")

def regs_of(tok):
    tok = tok.strip()
    neg = tok.lstrip("-")
    if neg.startswith("abs(") and neg.endswith(")"):
        neg = neg[4:-1]
    if neg.startswith("|") and neg.endswith("|"):
        neg = neg[1:-1]
    m = re.fullmatch(r"([vas])(\d+)", neg)
    if m:
        return [(m.group(1), int(m.group(2)))]
    m = re.fullmatch(r"([vas])\[(\d+):(\d+)\]", neg)
    if m:
        return [(m.group(1), i) for i in range(int(m.group(2)), int(m.group(3)) + 1)]
    if neg == "vcc":
        return [("s", 106), ("s", 107)]
    if neg == "vcc_lo":
        return [("s", 106)]
    if neg == "vcc_hi":
        return [("s", 107)]
    if neg == "exec":
        return [("s", 126), ("s", 127)]
    if neg == "m0":
        return [("s", 124)]
    return []

class Ins:
    __slots__ = ("text", "mn", "cls", "dst", "src", "srcc", "passes", "extra")
    def __init__(self, text):
        self.text = text
        t = text.split(";")[0].strip()
        self.dst, self.src, self.srcc, self.passes, self.extra = [], [], [], 0, ""
        if not t or t.endswith(":") or t.startswith("."):
            self.mn, self.cls = t, "pseudo"
            return
        t = re.sub(r"\s+(op_sel|op_sel_hi|neg_lo|neg_hi|quad_perm):\[[^\]]*\]", "", t)
        t = re.sub(r"hwreg\([^)]*\)", "hwreg", t)
        parts = t.split(None, 1)
        mn = parts[0]
        self.mn = mn
        ops = []
        if len(parts) > 1:
            raw = [o.strip() for o in parts[1].split(",")]
            last = raw[-1].split()
            raw[-1] = last[0] if last else ""
            self.extra = " ".join(last[1:])
            ops = raw
        R = [regs_of(o) for o in ops]
        flat = lambda xs: [r for x in xs for r in x]
        if mn.startswith("v_mfma"):
            self.cls = "mfma"
            self.dst, self.src, self.srcc = R[0], R[1] + R[2], R[3]
            self.passes = 8 if "32x32" in mn else 4
        elif mn.startswith("v_"):
            self.cls = "valu"
            if mn.startswith("v_cmp"):
                self.dst, self.src = R[0], flat(R[1:])
            elif mn.startswith(("v_add_co", "v_sub_co", "v_addc_co", "v_subb_co")):
                self.dst, self.src = R[0] + R[1], flat(R[2:])
            elif mn.startswith("v_permlane") and "swap" in mn:
                self.dst, self.src = R[0] + R[1], R[0] + R[1]
            elif mn.startswith(("v_fmac", "v_dot2c", "v_writelane")):
                self.dst, self.src = R[0], flat(R)
            elif mn == "v_nop":
                pass
            else:
                self.dst, self.src = R[0], flat(R[1:])
                if "dpp" in mn:
                    self.src = self.src + R[0]
        elif mn.startswith("ds_"):
            self.cls = "ds"
            if mn.startswith(("ds_read", "ds_bpermute", "ds_permute", "ds_swizzle")):
                self.dst, self.src = R[0], flat(R[1:])
            else:
                self.src = flat(R)
        elif mn.startswith(("buffer_", "global_")):
            self.cls = "vmem"
            if mn in ("buffer_wbl2", "buffer_inv"):
                pass
            elif "lds" in self.extra.split() or "_lds_" in mn:
                self.src = flat(R) + [("s", 124)]
            elif "load" in mn:
                self.dst, self.src = R[0], flat(R[1:])
            else:
                self.src = flat(R)
        elif mn.startswith(("s_load", "s_buffer_load", "s_memtime", "s_memrealtime")):
            self.cls = "smem"
            self.dst, self.src = R[0], flat(R[1:])
        elif mn.startswith("s_"):
            self.cls = "salu"
            if mn.startswith(("s_cmp", "s_cbranch", "s_branch", "s_waitcnt", "s_nop", "s_barrier", "s_endpgm",
                              "s_sleep", "s_setprio", "s_bitcmp")):
                self.src = flat(R)
            else:
                self.dst, self.src = (R[0] if R else []), flat(R[1:])
                if "saveexec" in mn:
                    self.dst = self.dst + regs_of("exec")
        else:
            raise ValueError("unknown instruction: " + text)

    def states(self):
        if self.cls == "pseudo":
            return 0
        if self.mn == "s_nop":
            return int(self.text.split()[1], 0) + 1
        return 1

def required(p, c):
    need = 0
    pd = set(p.dst)
    cs, cc, cd = set(c.src), set(c.srcc), set(c.dst)
    vec = lambda s: {r for r in s if r[0] in "va"}
    sc = lambda s: {r for r in s if r[0] == "s"}
    if p.cls == "valu":
        isdot = p.mn.startswith("v_dot")
        if c.cls == "mfma" and vec(pd) & (cs | cc):
            need = max(need, 3 if isdot else 2)
        if isdot and vec(pd) & (cs | cd):
            same = c.mn == p.mn
            if not same:
                need = max(need, 3)
            else:
                ops = [o.strip() for o in c.text.split(None, 1)[1].split(",")]
                ab = set(regs_of(ops[1]) + regs_of(ops[2].split()[0]))
                if pd & ab:
                    need = max(need, 3)
        if c.cls == "valu":
            if c.mn.startswith("v_permlane") and vec(pd) & cs:
                need = max(need, 2)
            if "dpp" in c.mn and vec(pd) & cs:
                need = max(need, 2)
            if c.mn.startswith(("v_readlane", "v_readfirstlane")) and vec(pd) & cs:
                need = max(need, 1)
            if p.mn.startswith(TRANS) and vec(pd) & cs:
                need = max(need, 1)
            if "sdwa" in p.mn and vec(pd) & (cs | cd):
                need = max(need, 1)
            if sc(pd) & cs:
                need = max(need, 4 if c.mn.startswith(("v_readlane", "v_writelane")) else 2)
        if c.cls == "vmem" and sc(pd) & cs:
            need = max(need, 5)
        if c.cls in ("salu", "smem") and sc(pd) & cs:
            need = max(need, 1)
    elif p.cls == "mfma":
        big = {4: 8, 8: 12}[p.passes]
        if c.cls == "mfma":
            if pd & cs:
                need = max(need, big)
            if pd & cc:
                if not (p.dst == c.srcc and p.mn == c.mn):
                    need = max(need, {4: 6, 8: 10}[p.passes])
            elif pd & cd:
                need = max(need, {4: 6, 8: 10}[p.passes])
        elif c.cls in ("valu", "ds", "vmem"):
            if pd & (cs | cd):
                need = max(need, big)
            if set(p.srcc) & cd:
                need = max(need, {4: 3, 8: 7}[p.passes])
    elif p.cls == "vmem":
        if not p.dst and ("x4" in p.mn or "x3" in p.mn) and "store" in p.mn:
            data = set(regs_of(p.text.split(None, 1)[1].split(",")[0 if p.mn.startswith("buffer") else 1]))
            if data & cd:
                need = max(need, 2)
    elif p.cls == "ds":
        if p.mn.startswith("ds_write_b128") and c.cls == "valu" and vec(set(p.src)) & cd:
            need = max(need, 1)
    elif p.cls == "salu":
        if ("s", 124) in pd and c.cls == "vmem" and ("s", 124) in cs:
            need = max(need, 1)
    return need

def hazard_pass(lines):
    out = []
    added = 0
    for text in lines:
        c = Ins(text)
        if c.cls != "pseudo":
            dist, worst = 0, 0
            for p in reversed(out):
                if dist >= 12:
                    break
                if p.cls != "pseudo":
                    worst = max(worst, required(p, c) - dist)
                    dist += p.states()
            if worst > 0:
                out.append(Ins("s_nop %d" % (worst - 1)))
                added += worst
        out.append(c)
    return [i.text for i in out], added

class Asm:
    def __init__(self):
        self.lines = []
        self.vm_n = 0; self.vm_done = 0; self.vm_tag = {}
        self.ds_n = 0; self.ds_done = 0; self.ds_tag = {}
        self.uid = 0
        self.state = {}
    def I(self, text):
        for t in text.split("\n"):
            t = t.strip()
            if t:
                self.lines.append(t)
    def label(self, base):
        self.uid += 1
        return "L_%s_%d" % (base, self.uid)
    def vm(self, text, tag=None):
        if self.vm_n - self.vm_done >= 62:
            self.vm_wait_n(self.vm_done + 1)
        self.I(text)
        self.vm_n += 1
        if tag is not None:
            assert tag not in self.vm_tag, tag
            self.vm_tag[tag] = self.vm_n
        return self.vm_n
    def forget(self, keep=()):
        self.vm_tag = {t: n for t, n in self.vm_tag.items() if (t[0] if isinstance(t, tuple) else t) in keep}
        self.ds_tag = {}
    def setreg(self, key, text):
        if self.state.get(key) != text:
            self.I(text)
            self.state[key] = text
    def vm_wait_n(self, seq):
        if seq > self.vm_done:
            self.I("s_waitcnt vmcnt(%d)" % (self.vm_n - seq))
            self.vm_done = seq
    def vm_wait(self, tag):
        self.vm_wait_n(self.vm_tag[tag])
    def vm_drain(self, force=False):
        if force or self.vm_n > self.vm_done:
            self.I("s_waitcnt vmcnt(0)")
        self.vm_done = self.vm_n
    def ds(self, text, tag=None):
        if self.ds_n - self.ds_done >= 15:
            self.ds_wait_n(self.ds_done + 1)
        self.I(text)
        self.ds_n += 1
        if tag is not None:
            self.ds_tag[tag] = self.ds_n
        return self.ds_n
    def ds_wait_n(self, seq):
        if seq > self.ds_done:
            self.I("s_waitcnt lgkmcnt(%d)" % (self.ds_n - seq))
            self.ds_done = seq
    def ds_wait(self, tag):
        self.ds_wait_n(self.ds_tag[tag])
    def ds_drain(self, force=False):
        if force or self.ds_n > self.ds_done:
            self.I("s_waitcnt lgkmcnt(0)")
        self.ds_done = self.ds_n
    def run(self, op):
        k = op[0]
        if k in ("i", "atom"): self.I(op[1])
        elif k == "vm": self.vm(op[1], op[2] if len(op) > 2 else None)
        elif k == "ds": self.ds(op[1], op[2] if len(op) > 2 else None)
        elif k == "wvm": self.vm_wait(op[1])
        elif k == "wds": self.ds_wait(op[1])
        elif k == "dsdrain": self.ds_drain()
        elif k == "vmdrain": self.vm_drain()
        elif k == "set": self.setreg(op[1], op[2])
        elif k == "call": op[1]()
        else: raise ValueError(op)
    def run_all(self, ops):
        for op in ops:
            self.run(op)

def split_ops(ops):
    out = []
    for op in ops:
        if op[0] == "i":
            out += [("i", t.strip()) for t in op[1].split("\n") if t.strip()]
        else:
            out.append(op)
    return out

def op_cost(a, op):
    k = op[0]
    if k == "set":
        return [] if a.state.get(op[1]) == op[2] else [(False, 4)] * len(op[2].split("\n"))
    if k == "wvm":
        return [] if a.vm_tag[op[1]] <= a.vm_done else [(False, 4)]
    if k == "wds":
        return [] if a.ds_tag[op[1]] <= a.ds_done else [(False, 4)]
    if k in ("dsdrain", "vmdrain"):
        return [(False, 4)]
    if k in ("mark", "need", "call"):
        return []
    res = []
    for t in op[1].split("\n"):
        c = Ins(t)
        if c.cls == "pseudo": continue
        if c.mn == "s_barrier": res.append((False, 20))
        elif c.cls == "mfma": res.append((True, 24))
        elif c.cls in ("salu", "smem"): res.append((False, 4))
        elif c.cls == "vmem" and "store_dwordx4" in c.mn: res.append((True, 20))
        elif c.cls == "vmem" or c.mn.startswith(TRANS) or c.mn.startswith(("ds_write_b128", "v_permlane")): res.append((True, 8))
        else: res.append((True, 4))
    return res

def needs_nop(a, op):
    if op[0] not in ("i", "ds", "vm", "atom"):
        return False
    c = Ins(op[1].split("\n")[0])
    if c.cls == "pseudo":
        return False
    dist = 0
    for t in reversed(a.lines[-14:]):
        p = Ins(t)
        if p.cls == "pseudo": continue
        if required(p, c) > dist: return True
        dist += p.states()
    return False

class Slots:
    def __init__(self):
        self.pre, self.mf, self.post = [], [], []
        self.streams = {}
        self.patience = 10
        self.mpatience = 999
    def add(self, mfma, pre=()):
        self.pre.append(list(pre)); self.mf.append(mfma); self.post.append([])
        return len(self.mf) - 1
    def n(self):
        return len(self.mf)
    def after(self, i, *ops):
        self.post[min(max(i, 0), len(self.mf) - 1)].extend(ops)
    def put(self, name, i, ops):
        self.streams.setdefault(name, []).extend((i, op) for op in split_ops(ops))
    def spread(self, groups, first, last, name="v"):
        n = len(groups)
        for k, g in enumerate(groups):
            self.put(name, first + (k * (last - first + 1)) // max(n, 1), g)
    def pace(self, groups, first, every, last=None, name="m"):
        last = len(self.mf) - 1 if last is None else last
        pos = float(first)
        for k, g in enumerate(groups):
            step = every
            if isinstance(g, tuple):
                pos = max(pos, g[0])
                if len(g) > 2: step = g[2]
                g = g[1]
            if pos > last:
                return [x[1] if isinstance(x, tuple) else x for x in groups[k:]]
            for op in g:
                self.put(name, int(pos) - (1 if op[0] == "set" else 0), [op])
            if any(op[0] == "vm" for op in g):
                pos += step
        return []
    def emit(self, a):
        marks = set()
        over = 0
        def run(op):
            if op[0] == "mark": marks.add(op[1])
            elif op[0] == "need": assert op[1] in marks, op
            elif op[0] == "atom": a.I(op[1])
            else: a.run(op)
        def waits(ops):
            n0 = len(a.lines)
            for op in ops: run(op)
            new = a.lines[n0:]
            if len(new) >= 2 and all(t.startswith("s_waitcnt") for t in new):
                last = {t.split()[1][:2]: t.split()[1] for t in new}
                a.lines[n0:] = ["s_waitcnt " + " ".join(sorted(last.values(), reverse=True))]
            return len(a.lines) - n0
        def advance(t, cost):
            for vec, c in cost:
                t = (max(t, 8) if vec else t) + c
            return t
        names = sorted(self.streams)
        head = {n: 0 for n in names}
        last = {n: -1 for n in names}
        waits(self.pre[0])
        for i in range(len(self.mf)):
            a.I(self.mf[i])
            G = 32 if "32x32" in self.mf[i] else 16
            nxt = self.pre[i + 1] if i + 1 < len(self.mf) else []
            fixed = split_ops(self.post[i])
            issued = {op[2] for op in fixed if op[0] in ("ds", "vm") and len(op) > 2}
            ready = lambda op: op[0] == "wds" and op[1] in a.ds_tag or op[0] == "wvm" and op[1] in a.vm_tag
            early = [op for op in nxt if ready(op)]
            late = [op for op in nxt if not ready(op)]
            t = 4 + 4 * waits(early)
            def fill(t, limit, scalar_only):
                progress = True
                while progress:
                    progress = False
                    for n in sorted(names, key=lambda n: last[n]):
                        q = self.streams[n]
                        while head[n] < len(q) and q[head[n]][0] <= i:
                            op = q[head[n]][1]
                            cost = op_cost(a, op)
                            if scalar_only and any(v for v, _ in cost): break
                            t2 = advance(t, cost)
                            big = not scalar_only and (advance(4, cost) > G and t <= 8 or i - q[head[n]][0] >= (self.mpatience if n == "m" else self.patience) and t <= limit - (4 if n == "m" else 0))
                            if (t2 > limit and not big) or needs_nop(a, op): break
                            run(op); t = t2; head[n] += 1; progress = True
                            if any(v for v, _ in cost): last[n] = i
                return t
            t = fill(t, 8, True)
            for op in fixed:
                t = advance(t, op_cost(a, op)); run(op)
            t = fill(t, G - (4 if late else 0), False)
            t += 4 * waits(late)
            over += max(0, t - G)
        left = [op for n in names for _, op in self.streams[n][head[n]:]]
        for op in left: run(op)
        return over, len(left)

def check_async(lines):
    vm, lg, bad = [], [], []
    for n, text in enumerate(lines):
        c = Ins(text)
        if c.mn == "s_endpgm": break
        if c.cls == "pseudo": continue
        if c.mn == "s_waitcnt":
            m = re.search(r"vmcnt\((\d+)\)", text)
            if m: vm = vm[len(vm) - int(m.group(1)):] if int(m.group(1)) < len(vm) else vm
            m = re.search(r"lgkmcnt\((\d+)\)", text)
            if m:
                k = int(m.group(1))
                if k == 0: lg = []
                else:
                    ds = [x for x in lg if x[0] == "ds"]
                    keep = ds[len(ds) - k:] if k < len(ds) else ds
                    lg = [x for x in lg if x[0] != "ds" or x in keep]
            continue
        rd, wr = set(c.src) | set(c.srcc), set(c.dst)
        for cls, pend in (("vmem", vm), ("lgkm", lg)):
            for kind, regs, at in pend:
                same = (c.cls == "vmem" and cls == "vmem") or (c.cls == "ds" and kind == "ds")
                hit = regs & (rd if same else rd | wr)
                hit.discard(("a", 255))
                if c.cls == "smem" and kind == "smem": hit -= wr
                if hit: bad.append((n, text, at, lines[at]))
        if c.cls == "vmem": vm.append(("vm", wr, n))
        elif c.cls in ("ds", "smem"): lg.append((c.cls, wr, n))
        assert len(vm) <= 63 and len([x for x in lg if x[0] == "ds"]) <= 15, (n, text)
    return bad

def role_path(lines, half):
    br, fo, jb, jo, end = (lines.index(t) for t in ("s_cbranch_scc1 L_follow", "L_follow:", "s_branch L_join", "L_join:", "s_endpgm"))
    if fo < jo:
        return lines[:jb + 1] + lines[jo:end + 1] if half == 0 else lines[:br + 1] + lines[fo:end + 1]
    return lines[:end + 1] if half == 0 else lines[:br + 1] + lines[fo:jb + 1] + lines[jo:end + 1]
```

```python
import sys
from dsl import Asm, Slots, hazard_pass, check_async, role_path
import layout as LY

NAME = "interleave_layers__sliding_local_dilated__glu_gated_reglu__prompt"
OPT = dict(stamps=0, lite="-", hitw=0,
           q_up=8, q_every=42, q_hf=12, q_chk=6, q_h0=11, a_every=14, k_up=8, g_up=4, g_tail=0, g_la=7, g_xsp=11, g_stat=6,
           g_every0=36, g_xlead0=400, g_wmin0=600, g_wmax0=1000, g_slack0=40, g_wcost0=60, g_dcost0=30,
           g_xmax0=9000, g_xmax1=800, g_every1=46, g_xlead1=400, g_wmin1=560, g_wmax1=700, g_slack1=40, g_wcost1=60, g_dcost1=30,
           wq_late1="-", dn_pre=6, q0_up=6, q0_lead=20, q0_every=40,
           wg_att0="0", wg_h10="-", wg_wo0="1", wg_h20="-",
           wg_att1="2", wg_h11="-", wg_wo1="3", wg_h21="-",
           hreg=1, near=1, align=12, h_late=0, h_rb0="-", h_rb1="-", d_own=0, h_hold0="-", h_hold1="-", eb=1, h_def=0, q0_fbl=3, wd_e=0, t_step=5, wg_q0="-", wg_q1="01", keep="2345", keepo="-", skipo=0, q_wbar=12, w_pre=20, w_up=8, w_quiet=12, d_sig0=16, d_sig1=16, d_up2=11, d_ramp=8, d_mid0=-1, d_mid1=-1, d_chk=8, d_chk3=8, d_f0=0, d_f1=0, d_min=0, g_c2=0, d_flat=20, g_epi=6, g_sig0=27, g_sig1=16, g_chk0=20, g_chk1=26, g_lat0=18, g_lat1=18, g_h0=4, g_h1=6,
           touch=0, h_st0="sssssss", h_st1="sspppp p".replace(" ", ""), x0f="sc1", wb=1, otouch=1, diagpad=0, diagat=0, diagwg=100, b_pos=1, q0_split=0, q0_n1=6, q0_hf=6, order="aoc", rt=0, lead=1, follow="xgucd", fa_ld=4, x_pre=3, sib=0, fa_ck=0, q0_x=4, rot=0, xdir=1, xd0=2, xd1=8, xd_lag=14, xd_pre=0, xd_per=7, t_set="ox", t_pos=16, fb_at="att", fb_k=7, fb_s=36, inb=0, inb_at=0, inb_ch=1, inb_gap=6, inb_wait=0, xd_gap=6, xd_h1=0, xd_h2=6, xd_h0=8, xd_st=8, xd_wbar=10, q_mp0=999, q_mp1=2, q_vp=10, g_mp0=2, g_mp1=999, g_vp=10, d_w64=0, q_st=0, g_grp=3, q_grp=3, g_bar1=2, g_pair0=13, outf="nt", c_early=0, b_spread=0, b_first=0, b_gap=3, pollf="nt", actf="sc1", wf="sc1", cpf=7, cp_g=60, cp_t=0, cp_d=150, cp_q=6, predrain=0, q0_b=0, q0_fbch=3, q0_fbs=9, q0_w=8, q0_tail=36, a_quiet=30, wd_q=10, wd_att=0, wd_h1=0, wd_wo=0, wd_h2=0)
for arg in sys.argv[2:]:
    k, v = arg.split("=")
    OPT[k] = v if isinstance(OPT[k], str) else int(v)

def vr(b, n): return "v[%d:%d]" % (b, b + n - 1)
def ar(b, n): return "a[%d:%d]" % (b, b + n - 1)
def magic(d): return (1 << 32) // d + 1
OOB = 0x40000000
GS0 = LY.GS0

WS, XIN, OUT = "s[8:11]", "s[12:15]", "s[16:19]"
sW, sJ, sR, sC, sG, sN, sNONCE, sSLOW = ("s%d" % i for i in range(20, 28))
sGB, sXLD, sXST, sOST, sXR, sHST, sSLD, sWQ, sWG, sWO, sWD, sLW = ("s%d" % i for i in range(28, 40))
sMA, sMB = "s[40:41]", "s[42:43]"
sFLG, sFLW, sHALO, sHFL, sTAB, sSST, sONE, sHDST, sHDFL, sP = ("s%d" % i for i in range(44, 54))
sMH = "s[54:55]"
sTA, sTW, sTD, sTS, sT0, sT1, sT2, sSPIN = ("s%d" % i for i in range(56, 64))
sHLD = ["s%d" % i for i in range(68, 72)]
sXW = ["s%d" % i for i in range(72, 75)]
sFBO, sB0, sB1, sB2, sB3 = "s75", "s76", "s77", "s78", "s79"
SRC_A, SRC_G, SRC_U, SRC_D = 80, 84, 88, 92
sLW2, sLW4, sWQ4, sWG4 = "s96", "s97", "s98", "s99"
sST = 100
LITE = (84, 86, 88, 90, 92, 94, 76, 78)
sHALO2 = sP
sNH, sCPO, sPC, sSLOW2 = "s12", "s13", "s[4:5]", "s[0:1]"
sOL, sHSTEP, sMC = "s64", "s65", "s[66:67]"
vL, vL16, vL16b, vL16c, vQ, vF1, vFL, vSTAMP = 0, 1, 2, 3, 4, 5, 6, 7
XRES = 8
PA, PB = 22, 23
X, ACC, F = 32, 160, 224
aROW, aST, aSQ, aSH, aSG, aHX, aHWR, aHWS, aHST, aHSS, aFB, aLINE, aTO, aTH = range(224, 238)
aBC, aBP, aBP0, aMC = 240, 244, 248, 252
L_HALO, L_RS, L_KV, L_TAB, L_FMT = 102400, 110592, 114688, 124928, 131072
L_SCR_DN = 114688
WO_SLOT = (8, 9, 0, 1)
DN_S = ((2, 3, 4, 9, 10, 11), (1, 5, 8, 12), (0, 6, 7, 13))
LV = LY.LV
if LV: DN_S = DN_S[::-1]
DN_ORD = sum(DN_S, ())
N1, N2 = len(DN_S[0]), len(DN_S[0]) + len(DN_S[1])
BIT = "s_bitcmp0_b32" if LV else "s_bitcmp1_b32"
NEG = "0xf149f2ca"

def ldsaddr(off):
    return "v%d offset:%d" % ((vL16, vL16b, vL16c)[off >> 16], off & 0xffff)

def isvm(g): return any(op[0] == "vm" for op in g)

class Main:
    def __init__(self):
        self.a = Asm()
        self.nstamp = 0
        self.cold = []
        self.nlite = 0
        self.wd = None
        self.ncall = 0

    def stamp(self, key=None):
        self.ncall += 1
        if OPT["diagpad"] and OPT["diagat"] == self.ncall:
            self.a.I("s_memrealtime s[%d:%d]" % (sST, sST + 1))
            self.a.ds_drain(force=True)
        if OPT["stamps"] != 1 or (key is not None and OPT["lite"] != key):
            return
        a = self.a
        a.I("s_memtime s[%d:%d]" % (sST, sST + 1))
        a.ds_drain(force=True)
        for k in range(self.nlite):
            a.I("v_writelane_b32 v%d, s%d, %d" % (vSTAMP, LITE[k], self.nstamp))
            self.nstamp += 1
        self.nlite = 0
        a.I("v_writelane_b32 v%d, s%d, %d" % (vSTAMP, sST, self.nstamp))
        self.nstamp += 1

    def lite(self, sl, key, slots):
        if OPT["lite"] != key:
            return
        for i in slots[:8]:
            sl.after(i, ("i", "s_memtime s[%d:%d]" % (LITE[self.nlite], LITE[self.nlite] + 1)))
            self.nlite += 1

    def report(self, name, r):
        print("  %s: cycles over budget %d, ops left after the loop %d" % ((name,) + r))

    def getc(self, v, acc): return "v_accvgpr_read_b32 v%d, a%d" % (v, acc)
    def flat(self, groups): return [op for g in groups for op in g]
    def digits(self, key): return tuple(int(c, 16) for c in str(OPT[key]) if c != "-")
    def wgs(self, where, ps): return [g for i in self.digits("wg_%s%d" % (where, ps)) for g in self.wg_chunk(i, ps)]
    def wg_early(self, ps): return sum((self.digits("wg_%s%d" % (w, ps)) for w in ("q", "att", "h1", "wo", "h2")), ())
    def wq_late(self, ps): return tuple(range(7)) if ps == 0 else self.digits("wq_late1")

    def srd(self, base, lo, hi, nbytes):
        self.a.I("s_mov_b32 s%d, %s\ns_and_b32 s%d, %s, 0xffff\ns_mov_b32 s%d, %s\ns_mov_b32 s%d, 0x20000" %
                 (base, lo, base + 1, hi, base + 2, nbytes, base + 3))

    def lin(self, dst, base, terms):
        first = True
        for reg, mul in terms:
            self.a.I("s_mul_i32 %s, %s, %d\ns_add_u32 %s, %s, %s" % (sT2, reg, mul, dst, base if first else dst, sT2))
            first = False

    def sdivmod(self, q, r, x, d):
        self.a.I("s_mul_hi_u32 %s, %s, 0x%x\ns_mul_i32 %s, %s, %d\ns_sub_u32 %s, %s, %s" % (q, x, magic(d), sT2, q, d, r, x, sT2))

    def hi_lo(self, dst, src, t):
        return ["v_cvt_pk_bf16_f32 v%d, v%d, v%d" % (dst, src, src), "v_lshlrev_b32 v%d, 16, v%d" % (t, dst),
                "v_sub_f32 v%d, v%d, v%d" % (t, src, t), "v_cvt_pk_bf16_f32 v%d, v%d, v%d" % (dst, src, t)]

    def scc_live(self, body, n):
        for t in body[n:]:
            mn = t.split()[0]
            if mn.startswith(("s_cselect", "s_subb", "s_addc", "s_cbranch_scc")) or t.endswith(":"): return True
            if mn.startswith(("s_cmp", "s_bitcmp", "s_add_", "s_sub_", "s_and_", "s_or_", "s_xor_", "s_lshl", "s_lshr", "s_min", "s_max", "s_bfe")): return False
        return False

    def weave(self, body, groups, first, every):
        k = 0
        for n_, op in enumerate(body):
            if n_ >= first and (n_ - first) % every == 0:
                while k < len(groups):
                    g = groups[k]; k += 1
                    self.a.run_all(g)
                    if isvm(g): break
            self.a.run(op)
        return groups[k:]

    def signal(self, h, wait=None, halo_pass=None, defer=False):
        a = self.a
        slow, done = a.label("slow"), a.label("sig")
        a.I("s_add_u32 %s, %s, %d\nv_mov_b32 v30, %s" % (sNH, sNONCE, h, sNH))
        if halo_pass is not None:
            h1, b1, h2, b2 = a.label("halo"), a.label("hback"), a.label("halo"), a.label("hback")
            n = a.vm_n - max(a.vm_tag[wait], a.vm_done)
            nx = 0 if halo_pass == 0 and OPT["xdir"] else 2
            a.I("s_cmp_lg_u32 %s, 0x%x\ns_cbranch_scc1 %s" % (sHDST, OOB, h1))
            st = "\n".join("buffer_store_dwordx4 %s, v24, %s, %s offen offset:%d sc1" % (vr(XRES + 4 * e, 4), WS, sTS, e * 512) for e in range(nx))
            self.cold.append("%s:\n%s\n%s\ns_add_u32 %s, %s, %d\n%s\nbuffer_store_dword v26, v25, %s, %s offen sc1\ns_waitcnt vmcnt(%d)\ns_branch %s" %
                             (h1, self.getc(24, aHST), self.getc(25, aHSS), sTS, sHDST, LY.HX[halo_pass], st, WS, sTS, n + 1 + nx, b1))
            a.vm_wait(wait)
            a.I("%s:\ns_cmp_lg_u32 %s, 0" % (b1, sSLOW))
        else:
            a.I("s_cmp_lg_u32 %s, 0" % sSLOW)
            if wait is None: a.vm_drain()
            else: a.vm_wait(wait)
        a.I("s_cbranch_scc1 %s" % slow)
        seq = a.vm("buffer_store_dword v30, v%d, %s, %s offen" % (vF1, WS, sFLW))
        a.I("%s:" % done)
        self.cold.append("%s:\nbuffer_wbl2 sc1\ns_waitcnt vmcnt(0)\nbuffer_store_dword v30, v%d, %s, %s offen sc1\ns_branch %s" % (slow, vF1, WS, sFLW, done))
        self.sent = h
        def halo_flag():
            self.cold.append("%s:\ns_add_u32 %s, %s, %d\nv_mov_b32 v24, %s\n%s\ns_waitcnt vmcnt(%d)\nbuffer_store_dword v24, v25, %s, %s offen sc1\ns_branch %s" %
                             (h2, sTS, sHDFL, halo_pass * 16384, sNONCE, self.getc(25, aLINE), a.vm_n - seq + 1, WS, sTS, b2))
            a.I("s_cmp_lg_u32 %s, 0x%x\ns_cbranch_scc1 %s\n%s:" % (sHDST, OOB, h2, b2))
        if halo_pass is not None:
            if defer: self.halo_flag = halo_flag
            else: halo_flag()

    def poll(self, h, mask, also=None, setup=None):
        a = self.a
        a.forget()
        assert self.sent == h
        if setup: setup()
        def loop(name, fl):
            ld = "buffer_load_dword v%d, v%d, %s, %s offen %s" % (PA, vFL, WS, sFLG, fl)
            ts = "v_subrev_u32 v%d, %s, v%d\nv_cmp_lt_u32 vcc, 15, v%d\ns_and_b64 vcc, vcc, %s" % (PA, sNH, PA, PA, mask)
            if also is not None:
                ld += "\nbuffer_load_dword v%d, v%d, %s, 0 offen sc1" % (PB, also, WS)
                ts = "v_cmp_ne_u32 s[60:61], %s, v%d\n%s\ns_or_b64 vcc, vcc, s[60:61]" % (sNONCE, PB, ts)
            return "%s:\n%s\ns_sub_u32 %s, %s, 1\ns_cbranch_scc1 L_main_done\ns_waitcnt vmcnt(0)\n%s\ns_cbranch_scc1 %s" % (name, ld, sSPIN, sSPIN, ts, name)
        far, ok = a.label("far"), a.label("ok")
        a.I("s_mov_b32 %s, 0x40000\ns_cmp_lg_u32 %s, 0\ns_cbranch_scc1 %s" % (sSPIN, sSLOW, far))
        a.I(loop(a.label("poll"), OPT["pollf"]) + "\n%s:" % ok)
        a.vm_done = a.vm_n
        self.cold.append(loop(far, "sc1") + "\nbuffer_inv sc1\ns_waitcnt vmcnt(0)\ns_branch %s" % ok)

    def halo_late(self, hp):
        a = self.a
        h1, b1, h2, b2 = a.label("halo"), a.label("hback"), a.label("halo"), a.label("hback")
        st = "\n".join("buffer_store_dwordx4 %s, v24, %s, %s offen offset:%d sc1" % (vr(XRES + 4 * e, 4), WS, sTS, e * 512) for e in range(2))
        self.cold.append("%s:\n%s\n%s\ns_add_u32 %s, %s, %d\n%s\nbuffer_store_dword v26, v25, %s, %s offen sc1\ns_branch %s" %
                         (h1, self.getc(24, aHST), self.getc(25, aHSS), sTS, sHDST, LY.HX[hp], st, WS, sTS, b1))
        a.I("s_cmp_lg_u32 %s, 0x%x\ns_cbranch_scc1 %s\n%s:" % (sHDST, OOB, h1, b1))
        seq = a.vm_n
        def flag():
            self.cold.append("%s:\ns_add_u32 %s, %s, %d\nv_mov_b32 v24, %s\n%s\ns_waitcnt vmcnt(%d)\nbuffer_store_dword v24, v25, %s, %s offen sc1\ns_branch %s" %
                             (h2, sTS, sHDFL, hp * 16384, sNONCE, self.getc(25, aLINE), a.vm_n - seq, WS, sTS, b2))
        return [("call", flag), ("atom", "s_cmp_lg_u32 %s, 0x%x\ns_cbranch_scc1 %s\n%s:" % (sHDST, OOB, h2, b2))]

    def signal_ops(self, h, wait, reg):
        a = self.a
        slow, done = a.label("slow"), a.label("sig")
        self.cold.append("%s:\nbuffer_wbl2 sc1\ns_waitcnt vmcnt(0)\nbuffer_store_dword v%d, v%d, %s, %s offen sc1\ns_branch %s" % (slow, reg, vF1, WS, sFLW, done))
        return [("i", "s_add_u32 %s, %s, %d" % (sNH, sNONCE, h)), ("i", "v_mov_b32 v%d, %s" % (reg, sNH)), ("wvm", wait),
                ("vm", "s_cmp_lg_u32 %s, 0\ns_cbranch_scc1 %s\nbuffer_store_dword v%d, v%d, %s, %s offen\n%s:" % (sSLOW, slow, reg, vF1, WS, sFLW, done))]

    def check_ops(self, h, mask, reg, tag):
        a = self.a
        spin, back = a.label("cspin"), a.label("cback")
        ld = lambda fl: "buffer_load_dword v%d, v%d, %s, %s offen %s" % (reg, vFL, WS, sFLG, fl)
        t = ["v_subrev_u32 v%d, s3, v%d" % (reg, reg), "v_cmp_lt_u32 vcc, 15, v%d" % reg, "s_and_b64 vcc, vcc, %s" % mask]
        loop = lambda name, fl: "%s:\n%s\ns_sub_u32 %s, %s, 1\ns_cbranch_scc1 L_main_done\ns_waitcnt vmcnt(0)\n%s\ns_cbranch_scc1 %s" % (name, ld(fl), sSPIN, sSPIN, "\n".join(t), name)
        self.cold.append("%s:\ns_mov_b32 %s, 0x40000\ns_cmp_lg_u32 %s, 0\ns_cbranch_scc1 %s_f\n%s\ns_branch %s\n%s\nbuffer_inv sc1\ns_waitcnt vmcnt(0)\ns_branch %s" %
                         (spin, sSPIN, sSLOW, spin, loop(spin + "_n", OPT["pollf"]), back, loop(spin + "_f", "sc1"), back))
        return [("vm", ld(OPT["pollf"]), tag)], [("i", "s_add_u32 s3, %s, %d" % (sNONCE, h)), ("wvm", tag), ("i", t[0]), ("i", t[1]),
                                                ("atom", "%s\ns_or_b64 vcc, vcc, %s\ns_cbranch_scc1 %s\n%s:" % (t[2], sSLOW2, spin, back))]

    def late_check(self, load, reg, mask, tag):
        a = self.a
        spin, back = a.label("lspin"), a.label("lback")
        cmp_, and_ = "v_cmp_ne_u32 vcc, %s, v%d" % (sNONCE, reg), "s_and_b64 vcc, vcc, %s" % mask
        self.cold.append("%s:\ns_mov_b32 %s, 0x40000\n%s_l:\n%s\ns_sub_u32 %s, %s, 1\ns_cbranch_scc1 L_main_done\ns_waitcnt vmcnt(0)\n%s\n%s\ns_cbranch_scc1 %s_l\ns_branch %s"
                         % (spin, sSPIN, spin, load, sSPIN, sSPIN, cmp_, and_, spin, back))
        return [("vm", load, tag)], [("wvm", tag), ("i", cmp_), ("atom", and_ + "\ns_cbranch_scc1 %s\n%s:" % (spin, back))]

    def dma_chunk(self, sbase, goff, loff, n, tag, sc=""):
        sw = {1: sLW, 2: sLW2, 4: sLW4}[n]
        setup = [("set", sTW, "s_add_u32 %s, %s, %d" % (sTW, sbase, goff)), ("set", "m0", "s_add_u32 m0, %s, %d" % (sw, loff))]
        return [setup + [("vm", "buffer_load_dwordx4 v%d, %s, %s offen offset:%d%s lds" % (vL16, WS, sTW, k * 1024, sc), tag if k == n - 1 else None)]
                for k in range(n)]

    def wq_chunk(self, i): return self.dma_chunk(sWQ4 if i < 6 else sWQ, i * 16384, i * 16384, 4 if i < 6 else 1, ("wq", i), " " + OPT["wf"].strip("-"))
    def kept(self): return self.digits("keep")
    def ring(self, ps):
        return [k for k in (2, 3, 4, 5, 6, 7, 8, 9, 0, 1) if ps or k not in self.kept() + self.digits("keepo")]
    def wg_slot(self, i, ps): return self.ring(ps)[i % len(self.ring(ps))]
    def wo_chunk(self, i): return self.dma_chunk(sWO, i * 16384, WO_SLOT[i] * 16384, 4, ("wo", i), " " + OPT["wf"].strip("-"))
    def wg_chunk(self, i, ps): return self.dma_chunk(sWG4 if i < 14 else sWG, i * 16384, self.wg_slot(i, ps) * 16384, 4 if i < 14 else 2, ("wg", i), " " + OPT["wf"].strip("-"))

    def reg_loads(self, dsts, bases, offs, stmp, vaddr, tagbase):
        ops, cur = [], None
        for k, (d, sb, off) in enumerate(zip(dsts, bases, offs)):
            if cur is None or cur[0] != sb or not (0 <= off - cur[1] < 4096):
                cur = (sb, off)
            ops.append([("set", stmp, "s_add_u32 %s, %s, %d" % (stmp, sb, cur[1])),
                        ("vm", "buffer_load_dwordx4 %s, v%d, %s, %s offen offset:%d %s" % (d, vaddr, WS, stmp, off - cur[1], OPT["wf" if tagbase[0] == "w" else "actf"].strip("-")), (tagbase, k))])
        return ops

    def touch(self, acc, sbase, off, tmp):
        return [[("i", self.getc(tmp, acc) + "\ns_add_u32 %s, %s, %d" % (sT1, sbase, off)),
                 ("vm", "buffer_load_dword a255, v%d, %s, %s offen sc1" % (tmp, WS, sT1))]]

    def code_touch(self, label, tmp, n=1):
        if not OPT["cpf"]: return []
        return [[("i", "s_add_u32 s15, %s, %s-L_pc+%d" % (sCPO, label, 16384 * k)), ("i", "s_min_u32 s15, s15, L_code_end-L_pc-4"),
                 ("i", "v_mov_b32 v%d, s15" % tmp), ("vm", "global_load_dword a255, v%d, %s" % (tmp, sPC))] for k in range(n)]

    def ln_from_sums(self, s1, s2, t):
        return [("i", x) for x in (
            "v_mul_f32 v%d, 0x3b000000, v%d" % (s1, s1),
            "v_mul_f32 v%d, v%d, v%d" % (t, s1, s1),
            "v_mul_f32 v%d, 0x3b000000, v%d" % (s2, s2),
            "v_sub_f32 v%d, v%d, v%d" % (s2, s2, t),
            "v_max_f32 v%d, 0, v%d" % (s2, s2),
            "v_cvt_pk_bf16_f32 v%d, v%d, v%d" % (s2, s2, s2),
            "v_lshlrev_b32 v%d, 16, v%d" % (s2, s2),
            "v_add_f32 v%d, 0x3727c5ac, v%d" % (s2, s2),
            "v_cvt_pk_bf16_f32 v%d, v%d, v%d" % (s2, s2, s2),
            "v_lshlrev_b32 v%d, 16, v%d" % (s2, s2),
            "v_sqrt_f32 v%d, v%d" % (s2, s2),
            "v_cvt_pk_bf16_f32 v%d, v%d, v%d" % (s2, s2, s2),
            "v_lshlrev_b32 v%d, 16, v%d" % (s2, s2),
            "v_rcp_f32 v%d, v%d" % (s2, s2))]

    def publish(self, xi):
        a = self.a
        S1, S2, S3, S4, AD = 26, 27, 28, 29, 25
        a.I("s_add_u32 %s, %s, %d" % (sTS, sXST, LY.XB[xi]))
        for e in range(0 if xi == 0 and OPT["xdir"] else 2):
            a.vm("buffer_store_dwordx4 %s, v%d, %s, %s offen offset:%d%s" % (vr(XRES + 4 * e, 4), vQ, WS, sTS, e * 2048, " sc1" if xi == 1 and "x" not in OPT["t_set"] else ""))
        for k in range(4):
            for d, p, o in ((S1, XRES + k, sONE), (S2, XRES + k, None), (S3, XRES + 4 + k, sONE), (S4, XRES + 4 + k, None)):
                a.I("v_dot2_f32_bf16 v%d, v%d, %s, %s" % (d, p, o or "v%d" % p, "v%d" % d if k else "0"))
        a.I(self.getc(AD, aST) + "\ns_add_u32 %s, %s, %d" % (sTS, sSST, LY.SB[xi]))
        a.I("v_add_f32 v%d, v%d, v%d\nv_add_f32 v%d, v%d, v%d" % (S1, S1, S3, S2, S2, S4))
        a.I("v_permlane32_swap_b32 v%d, v%d\nv_add_f32 v%d, v%d, v%d\nv_mov_b32 v%d, v%d" % (S1, S2, S1, S1, S2, S2, S1))
        a.I("v_permlane16_swap_b32 v%d, v%d\nv_add_f32 v%d, v%d, v%d" % (S1, S2, S1, S1, S2))
        a.vm("buffer_store_dword v%d, v%d, %s, %s offen" % (S1, AD, WS, sTS), "pub")

    def startup(self):
        a = self.a
        lin = self.lin
        t8, kc, tok, g, hh, t32, u0, u1, rr, cc, q16, vA, vR, vB, vD, TA0, TA1, TD, TG, CSW, XA, XV, FAV, LINE = range(F, F + 24)
        ONES = F + 24
        def put(acc): a.I("v_accvgpr_write_b32 a%d, v%d" % (acc, u1))
        a.I("%s_kernel:" % NAME)
        a.I("s_cmp_ge_u32 s2, 256\ns_cbranch_scc1 L_main_done")
        a.I("s_load_dwordx16 s[64:79], s[0:1], 0\ns_load_dwordx2 s[4:5], s[0:1], 72")
        if OPT["stamps"] or OPT["diagpad"]:
            a.I("s_memrealtime s[98:99]")
        if OPT["stamps"]:
            a.I("s_memtime s[%d:%d]" % (sST, sST + 1))
        a.I("s_getpc_b64 s[56:57]\nL_pc:\ns_lshr_b32 s58, s2, 3\ns_lshl_b32 s58, s58, 11")
        a.I("v_lshrrev_b32 v16, 6, v0\nv_lshrrev_b32 v17, 4, v0\nv_lshlrev_b32 v17, 7, v17\nv_add_u32 v17, s58, v17")
        a.I("v_min_u32 v17, L_code_end-L_pc-4, v17\nv_and_b32 v0, 63, v0\nv_readfirstlane_b32 %s, v16" % sW)
        a.vm("global_load_dword a255, v17, s[56:57]")
        a.I("s_and_b32 %s, s2, 7\ns_bfe_u32 %s, s2, 0x40003\ns_lshr_b32 %s, s2, 7" % (sN, sJ, sP))
        a.I("s_lshr_b32 %s, %s, 3\ns_and_b32 %s, %s, 7" % (sR, sJ, sC, sJ))
        a.I("v_and_b32 v%d, 7, v0\nv_lshrrev_b32 v%d, 3, v0\nv_and_b32 v%d, 15, v0\nv_lshrrev_b32 v%d, 4, v0" % (t8, kc, tok, g))
        cuA, kkA, stA, cuG, kkG, sSG, sSD, kkD = "s28", "s29", "s30", "s32", "s33", "s6", "s7", "s36"
        sU, sV = "s34", "s35"
        if OPT["rot"]:
            a.I("s_add_u32 %s, %s, %s\ns_and_b32 %s, %s, 7\ns_andn2_b32 %s, s2, 7\ns_or_b32 %s, %s, %s" % (sV, sN, sJ, sV, sV, sU, sU, sU, sV))
        else:
            sU, sV = "s2", sN
        self.sdivmod(kkA, cuA, sU, 24)
        a.I("s_sub_u32 %s, s2, 192\ns_lshr_b32 %s, %s, 3" % (sT0, sT0, sT0))
        a.I("s_cmp_lt_u32 s2, 192\ns_cselect_b32 %s, %s, %s\ns_cselect_b32 %s, %s, %s\ns_cselect_b32 %s, 3, 1\ns_lshl_b32 %s, %s, 10" %
            (cuA, cuA, sV, kkA, kkA, sT0, stA, stA, stA))
        a.I("v_lshlrev_b32 v%d, 4, v%d\nv_mad_u32_u24 v%d, v%d, %s, v%d" % (u0, t8, vA, kc, stA, u0))
        a.I("s_lshl_b32 %s, %s, 2\ns_add_u32 %s, %s, %s\ns_lshl_b32 %s, %s, 4\ns_mul_i32 %s, %s, %s" % (sT0, kkA, sT0, sT0, sW, sT0, sT0, sT0, sT0, stA))
        a.I("s_lshl_b32 %s, %s, 7\ns_add_u32 %s, %s, %s\ns_lshl_b32 %s, %s, 3\ns_add_u32 %s, %s, %s\ns_sub_u32 %s, %s, 1024" %
            (sT1, cuA, sT0, sT0, sT1, sT1, stA, sT1, sT1, sT0, sT1, sT1))
        a.I("s_lshl_b32 %s, %s, 11\ns_add_u32 m0, %s, %d" % (sLW2, sW, sLW2, L_FMT))
        a.I("s_lshl_b32 s31, %s, 1\ns_add_u32 s31, s31, %s\ns_lshl_b32 s31, s31, 2\ns_add_u32 s31, s31, %s\ns_lshl_b32 s31, s31, 5" % (sN, sR, sW))
        a.I("s_add_u32 s31, s31, %s\ns_lshl_b32 s31, s31, 3\ns_add_u32 s31, s31, %s\ns_lshl_b32 s31, s31, 7" % (sP, sC))
        a.I("v_and_b32 v%d, 14, v0\nv_lshlrev_b32 v%d, 11, v%d\nv_lshl_add_u32 v%d, v%d, 4, v%d\nv_and_b32 v%d, 1, v0\nv_lshlrev_b32 v%d, 6, v%d\nv_add3_u32 v%d, s31, v%d, v%d" %
            (vR, vR, vR, vR, g, vR, u1, u1, u1, vR, vR, u1))
        a.I("s_waitcnt lgkmcnt(0)")
        a.I("s_load_dword %s, s[4:5], %d" % (sNONCE, LY.EPOCH))
        a.I("s_cmp_lt_u32 s2, 192\ns_cselect_b32 s%d, s66, s68\ns_cselect_b32 s%d, s67, s69\ns_and_b32 s%d, s%d, 0xffff" % (SRC_A, SRC_A + 1, SRC_A + 1, SRC_A + 1))
        a.I("s_lshl_b32 s%d, %s, 9\ns_mov_b32 s%d, 0x20000" % (SRC_A + 2, stA, SRC_A + 3))
        sa = "s[%d:%d]" % (SRC_A, SRC_A + 3)
        a.vm("buffer_load_dwordx4 v%d, %s, %s offen lds" % (vA, sa, sT0))
        a.vm("buffer_load_dwordx4 v%d, %s, %s offen offset:1024 lds" % (vA, sa, sT1), "fa")
        self.srd(12, "s64", "s65", 2048 * 1024)
        a.vm("buffer_load_dwordx4 %s, v%d, %s, 0 offen" % (vr(ACC + 56, 4), vR, XIN))
        a.vm("buffer_load_dwordx4 %s, v%d, %s, 0 offen offset:2048" % (vr(ACC + 60, 4), vR, XIN), "x")
        if OPT["stamps"]:
            a.I("v_mov_b32 v%d, 0\nv_writelane_b32 v%d, s98, 62\nv_writelane_b32 v%d, s%d, 0" % (vSTAMP, vSTAMP, vSTAMP, sST))
            self.nstamp = 1
        if OPT["diagpad"]: a.I("s_mov_b32 s14, s98")
        self.stamp("p")
        self.srd(8, "s4", "s5", LY.WS_USED)
        a.I("s_lshl_b32 %s, %s, 1\ns_add_u32 %s, %s, %s" % (sG, sN, sG, sG, sP))
        lin(sFLG, str(LY.FL), [(sG, 256)])
        lin(sFLW, sFLG, [(sJ, 16), (sW, 4)])
        lin(sTS, str(LY.ACT), [(sG, LY.ACT_STRIDE), (sR, 4096), (sW, 1024), (sC, 128)])
        a.I("s_and_b32 %s, %s, 1" % (sT0, sC))
        lin(sSST, sTS, [(sT0, -120)])
        a.I("s_add_u32 %s, %s, %d\nv_mov_b32 v%d, %s\nv_mov_b32 v%d, %s\nv_cmp_gt_u32 vcc, 32, v0\nv_cndmask_b32 v%d, v%d, v%d, vcc" %
            (sTS, sTS, LY.SB[0], u1, sTS, XA, sFLW, XA, u1, XA))
        a.vm("buffer_load_dword a255, v%d, %s, 0 offen sc1" % (XA, WS))
        self.sdivmod(kkG, cuG, sU, 28)
        a.I("v_mul_u32_u24 v%d, 3584, v%d\nv_add_u32 v%d, v%d, v%d\nv_lshl_add_u32 v%d, v%d, 10, v%d" % (vB, kc, vB, vB, u0, vD, kc, u0))
        a.I("s_lshr_b32 %s, s2, 3" % kkD)
        lin(sSG, "0", [(kkG, 64 * 3584), (sW, 16 * 3584), (cuG, 128)])
        lin(sSD, "0", [(kkD, 65536), (sW, 16384), (sV, 128)])
        xd, swaps = [], []
        if OPT["xdir"]:
            vX, sXD, sHD, sXL = 31 - 10, "s98", "s14", "s99"
            self.srd(SRC_A, "s64", "s65", 2048 * 1024)
            a.I("v_xor_b32 v%d, v%d, v%d\nv_lshlrev_b32 v%d, 4, v%d\nv_lshl_add_u32 v%d, v%d, 11, v%d" % (vX, t8, kc, vX, vX, vX, kc, vX))
            lin(sHD, "0", [(sN, 262144), (sP, 1024)])
            lin(sXD, sHD, [(sW, 65536)])
            lin(sHD, sHD, [(sW, 256)])
            a.I("s_sub_u32 %s, %s, 16384\ns_cmp_eq_u32 %s, 0\ns_cselect_b32 %s, 0x%x, %s\ns_lshl_b32 %s, %s, 15" % (sHD, sHD, sN, sHD, OOB, sHD, sXL, sW))
            a.I("v_xor_b32 v16, v%d, v%d\nv_lshlrev_b32 v16, 4, v16\nv_lshl_add_u32 v%d, v%d, 7, v16\nv_add_u32 v%d, %d, v%d" % (t8, g, u1, t8, u1, L_HALO, u1)); put(aSH)
            a.I("v_lshl_add_u32 v16, v%d, 7, v16\nv_add_u32 v16, %s, v16\nv_xor_b32 v17, 64, v16" % (tok, sXL))
            for m in range(8):
                for k in range(4):
                    xd.append([("i", "s_add_u32 m0, %s, %d\ns_add_u32 s15, %s, %d" % (sXL, m * 4096, sXD, k * 16384 + m * 128 - k * 1024)),
                               ("vm", "buffer_load_dwordx4 v%d, %s, s15 offen offset:%d lds" % (vX, sa, k * 1024), ("xd", m, k))])
                swaps.append(("wvm", ("xd", m, 3)))
                swaps += [("ds", "ds_read_b128 %s, v%d offset:%d" % (vr(X + 8 * (2 * m + h_) + 4 * b_, 4), 16 + h_, m * 4096 + b_ * 2048)) for b_ in range(2) for h_ in range(2)]
            swaps.append(("dsdrain",))
            self.halo0 = [[("set", "m0", "s_add_u32 m0, %s, %d" % (sLW2, L_HALO + 1024 * k)), ("i", "s_add_u32 s15, %s, %d" % (sHD, 128 * k)),
                           ("vm", "buffer_load_dwordx4 v%d, %s, s15 offen lds" % (vX, sa), "halo" if k else None)] for k in range(2)]
            a.run_all(self.flat(xd[:OPT["xd0"]])); xd = xd[OPT["xd0"]:]
        self.srd(SRC_G, "s72", "s73", 512 * 3584)
        self.srd(SRC_U, "s74", "s75", 512 * 3584)
        self.srd(SRC_D, "s76", "s77", 1792 * 1024)
        def b_loads():
            for srdn, so, va, stride, lo in ((SRC_G, sSG, vB, 3584, 8192), (SRC_U, sSG, vB, 3584, 16384), (SRC_D, sSD, vD, 1024, 24576)):
                a.I("s_add_u32 m0, %s, %d\ns_add_u32 s15, %s, %d" % (sLW2, L_FMT + lo, so, 8 * stride - 1024))
                a.vm("buffer_load_dwordx4 v%d, s[%d:%d], %s offen lds" % (va, srdn, srdn + 3, so))
                a.vm("buffer_load_dwordx4 v%d, s[%d:%d], %s offen offset:1024 lds" % (va, srdn, srdn + 3, "s15"), ("fb", lo))
        if OPT["b_pos"] == 0: b_loads()
        self.srd(16, "s78", "s79", 2048 * 1024)
        a.I("v_accvgpr_write_b32 a%d, v%d\nv_lshlrev_b32 v%d, 4, v0" % (aROW, vR, vL16))
        dA, dA2, dCS = "s3", "s0", "s1"
        a.I("s_and_b32 %s, %s, 7\ns_lshl_b32 %s, %s, 1\ns_lshr_b32 %s, %s, 1\ns_add_u32 %s, %s, %s" % (sT0, cuA, sT0, sT0, sT1, sW, sT0, sT0, sT1))
        a.I("s_mul_i32 %s, %s, %d\ns_add_u32 %s, %s, %d" % (sT0, sT0, LY.WQ_STRIDE, sT0, sT0, LY.WQ))
        a.I("s_lshr_b32 %s, %s, 3\ns_lshl_b32 %s, %s, 1\ns_and_b32 %s, %s, 1\ns_add_u32 %s, %s, %s" % (sT1, cuA, sT1, sT1, sT2, sW, sT1, sT1, sT2))
        lin(dA, sT0, [(kkA, 12288), (sT1, 1024)])
        lin(dCS, sT0, [(kkA, 64), (sT1, 512)])
        a.I("s_add_u32 %s, %s, 98304" % (dCS, dCS))
        lin(sT0, str(LY.WO), [(cuA, LY.WO_STRIDE), (kkA, 8192), (sW, 1024)])
        a.I("s_cmp_lt_u32 s2, 192\ns_cselect_b32 %s, %s, %s\ns_cselect_b32 %s, %s, 0x%x\ns_cselect_b32 %s, 6, 4\ns_cselect_b64 vcc, -1, 0" %
            (dA, dA, sT0, dCS, dCS, OOB, dA2))
        a.I("s_lshl_b32 %s, %s, 10\ns_add_u32 %s, %s, %s" % (dA2, dA2, dA2, dA2, dA))
        a.I("v_bfe_u32 v%d, v0, 2, 2\nv_and_b32 v%d, 3, v0\nv_bfe_u32 v%d, v0, 4, 1\nv_lshrrev_b32 v%d, 5, v0\nv_and_b32 v%d, 31, v0" % (rr, cc, q16, hh, t32))
        a.I("v_lshl_add_u32 v%d, v%d, 3, v%d\nv_lshlrev_b32 v%d, 7, v%d\nv_lshl_add_u32 v%d, v%d, 2, v%d\nv_lshlrev_b32 v%d, 7, v%d" % (u0, g, rr, u0, u0, u1, g, rr, u1, u1))
        a.I("s_lshr_b32 %s, %s, 1\ns_lshl_b32 %s, %s, 6\ns_and_b32 %s, %s, 1\ns_lshl_b32 %s, %s, 3\ns_add_u32 %s, %s, %s\ns_add_u32 %s, %s, %d" %
            (sT0, sW, sT0, sT0, sT1, sW, sT1, sT1, sT0, sT0, sT1, sT0, sT0, L_FMT))
        a.I("v_lshl_add_u32 v%d, v%d, 4, %s\nv_add_u32 v%d, v%d, v%d\nv_add_u32 v%d, v%d, v%d" % (TA1, cc, sT0, TD, TA1, u0, u1, u1, TA1))
        a.I("s_lshl_b32 %s, %s, 5\ns_add_u32 %s, %s, %d\nv_lshl_add_u32 v%d, v%d, 3, %s\nv_add_u32 v%d, v%d, v%d" % (sT0, sW, sT0, sT0, L_FMT, TA0, cc, sT0, u0, u0, TA0))
        a.I("v_mov_b32 v%d, v%d" % (TG, u0))
        a.I("v_cndmask_b32 v%d, v%d, v%d, vcc\nv_add_u32 v%d, 512, v%d\nv_add_u32 v%d, 2048, v%d\nv_cndmask_b32 v%d, v%d, v%d, vcc" % (TA0, u1, u0, u0, u0, u1, u1, TA1, u1, u0))
        for k in range(4): a.I("v_mov_b32 v%d, 0x3f803f80" % (ONES + k))
        a.I("v_lshlrev_b32 v%d, 2, v%d\nv_lshl_add_u32 v%d, v%d, 28, v%d" % (CSW, tok, CSW, g, CSW))
        a.I("s_mov_b32 %s, 0\ns_mov_b32 %s, 0x3f803f80" % (sSLOW, sONE))
        a.I("v_cmp_ne_u32 vcc, 0, v0\nv_mov_b32 v%d, 0x%x\nv_lshlrev_b32 v%d, 2, v0\nv_cndmask_b32 v%d, 0, v%d, vcc" % (vF1, OOB, vFL, vF1, vF1))
        a.I("s_lshl_b32 %s, %s, %d\ns_add_u32 %s, %s, 0x%x" % (sGB, sG, LY.ACT_SHIFT, sGB, sGB, LY.ACT))
        lin(sXLD, sGB, [(sW, 32768)])
        a.I("s_lshr_b32 %s, %s, 1\ns_and_b32 %s, %s, 1" % (sT0, sW, sT1, sW))
        lin(sXST, sGB, [(sR, 65536), (sC, 4096), (sT0, 32768), (sT1, 256)])
        lin(sOST, sXLD, [(sJ, 2048)])
        lin(sT0, str(LY.XF), [(sG, 2048)])
        a.I("v_lshrrev_b32 v%d, 2, v0\nv_lshl_add_u32 v%d, v%d, 7, %s\nv_lshl_add_u32 v%d, v%d, 30, v%d\nv_accvgpr_write_b32 a%d, v%d" % (XA, XA, XA, sT0, LINE, hh, vFL, aLINE, LINE))
        a.I("v_lshlrev_b32 v%d, 4, v%d\nv_lshl_add_u32 v%d, v%d, 9, v%d" % (u0, tok, vQ, g, u0))
        a.I("v_lshlrev_b32 v%d, 4, v%d\nv_lshl_add_u32 v%d, v%d, 2, v%d\nv_lshl_add_u32 v%d, v%d, 30, v%d" % (u1, tok, u1, hh, u1, u1, q16, u1)); put(aST)
        def die_id():
            lin(sT0, str(LY.XF), [(sG, 2048), (sJ, 128)])
            a.I("s_cmp_eq_u32 %s, 0\ns_cselect_b32 %s, %s, 0x%x\ns_getreg_b32 %s, hwreg(HW_REG_XCC_ID, 0, 4)" % (sW, sT0, sT0, OOB, sT1))
            a.I("s_waitcnt lgkmcnt(0)\ns_add_u32 %s, %s, 0x9e3779b1\ns_xor_b32 %s, %s, %s\nv_mov_b32 v%d, %s" % (sNONCE, sNONCE, sT1, sT1, sNONCE, XV, sT1))
            a.vm("buffer_store_dword v%d, v%d, %s, %s offen sc1" % (XV, LINE, WS, sT0))
            self.stamp("p")
        if OPT["c_early"] < 2: die_id()
        def constants():
            lin(sB3, str(LY.WD), [(sV, LY.WD_STRIDE), (kkD, 8192), (sW, 1024)])
            a.I("s_lshl_b32 %s, %s, 2\ns_add_u32 %s, %s, %s" % (cuG, cuG, cuG, cuG, sW))
            self.sdivmod(sT0, sT1, cuG, 7)
            lin(sB2, str(LY.WG), [(sT0, LY.WG_STRIDE)])
            a.I("s_sub_u32 %s, 6, %s\n%s %s, 0\ns_cselect_b32 %s, %s, %s" % (sT2, sT1, BIT, sT0, sT1, sT1, sT2))
            S0, TL = GS0, 16 - GS0
            lin(sB0, sB2, [(kkG, 28 * 1024), (sT1, 2048)])
            lin(sB2, sB2, [(sT1, (2 * TL + 1) * 1024)])
            lin(sT0, sB2, [(kkG, 4096)])
            a.I("s_add_u32 %s, %s, %d\ns_cmp_lt_u32 %s, %d\ns_cselect_b32 %s, %s, %s\ns_cselect_b32 %s, 14, 2\ns_lshl_b32 %s, %s, 10" %
                (sT0, sT0, 12 * S0 * 1024, kkG, S0 // 2, sB0, sB0, sT0, sB1, sB1, sB1))
            lin(sB2, sB2, [(kkG, 64)])
            a.I("s_add_u32 %s, %s, %d" % (sB2, sB2, (14 * S0 + 2 * TL) * 1024))
            a.I("s_cmp_lt_u32 s2, 224")
            for r_ in (sB0, sB2, sB3): a.I("s_cselect_b32 %s, %s, 0x%x" % (r_, r_, OOB))
            lin(sHFL, str(LY.HFL), [(sG, 1024)])
            lin(sHDFL, sHFL, [(sC, 128)])
            lin(sFBO, str(LY.FA), [(sU, 128)])
            a.I("s_add_u32 %s, %s, 2048\ns_add_u32 %s, %s, 0x%x" % (sHDFL, sHDFL, sHDST, sGB, 2 * LY.ACT_STRIDE))
            a.I("s_cmp_eq_u32 %s, 0\ns_cselect_b32 %s, %s, 0x%x" % (sW, sFBO, sFBO, OOB))
            a.I("s_lshl_b32 %s, %s, 2\ns_add_u32 %s, %s, %s\ns_cmp_eq_u32 %s, 7\ns_cselect_b32 %s, 0, %s\ns_cmp_eq_u32 %s, 7" % (sT0, sR, sT0, sT0, sW, sN, sT0, sT0, sT0))
            a.I("s_cselect_b32 %s, %s, 0x%x" % (sHDST, sHDST, OOB))
            a.I("v_lshlrev_b32 v%d, 4, v%d\nv_lshl_add_u32 v%d, v%d, 7, v%d\nv_add_u32 v%d, %d, v%d" % (u0, t8, u0, g, u0, u1, L_HALO, u0)); put(aHX)
            a.I("s_lshl_b32 %s, %s, 10\nv_add3_u32 v%d, v%d, v%d, %s" % (sT0, sC, u1, u0, vA, sT0)); put(aHST)
            if "c" not in OPT["order"]: constants2()
        def constants2():
            if OPT["c_early"] == 2: die_id()
            a.I("s_lshr_b32 %s, %s, 1\ns_lshl_b32 %s, %s, 5\ns_and_b32 %s, %s, 1\ns_lshl_b32 %s, %s, 1\ns_add_u32 %s, %s, %s" % (sT0, sW, sT0, sT0, sT1, sW, sT1, sT1, sT0, sT0, sT1))
            a.I("s_mov_b32 s40, 0x33333333\ns_mov_b32 s41, 0\ns_lshl_b64 s[40:41], s[40:41], %s" % sT0)
            a.I("s_lshl_b32 %s, %s, 1\ns_lshl_b32 %s, %s, 4\ns_add_u32 %s, %s, %s" % (sT0, sR, sT2, sW, sT0, sT0, sT2))
            a.I("s_mov_b32 s42, 0x3333\ns_mov_b32 s43, 0\ns_lshl_b64 s[42:43], s[42:43], %s" % sT0)
            a.I("v_bfe_u32 v%d, v0, 2, 3\nv_min_u32 v%d, 6, v%d\ns_mul_i32 %s, %s, 7\nv_add_u32 v%d, %s, v%d" % (t8, t32, t8, sT0, sW, t32, sT0, t32))
            a.I("s_lshl_b32 %s, %s, 1\nv_and_or_b32 v%d, v%d, 1, %s" % (sT0, sW, t8, t8, sT0))
            a.I("s_lshr_b32 %s, %s, 1\nv_mul_u32_u24 v%d, 24, v%d\nv_lshl_add_u32 v%d, v%d, 3, v%d\nv_add_u32 v%d, %s, v%d" % (sT0, sJ, u0, t8, u0, kc, u0, u0, sT0, u0))
            a.I("s_add_u32 %s, %s, 192\nv_lshl_add_u32 v%d, v%d, 3, %s\nv_cmp_gt_u32 vcc, 24, v0\nv_cndmask_b32 v%d, v%d, v%d, vcc" % (sT0, sC, u1, t8, sT0, u0, u1, u0))
            a.I("v_lshlrev_b32 v%d, 7, v%d\nv_add_u32 v%d, %d, v%d" % (u0, u0, FAV, LY.FA, u0))
            self.c_min = len(a.lines)
            a.I("s_lshr_b32 %s, s2, 3\ns_lshl_b32 %s, %s, 2\ns_add_u32 %s, %s, %s\ns_lshl_b32 %s, %s, 7" % (sCPO, sCPO, sCPO, sCPO, sCPO, sW, sCPO, sCPO))
            lin(sHST, sGB, [(sW, 114688), (sJ, 7168)])
            lin(sSLD, sGB, [(sW, 2048)])
            lin(sOL, sXST, [(sC, -4096)])
            a.I(BIT + " %s, 0\ns_cselect_b32 %s, 1, -1\ns_cselect_b32 %s, 0, 6144\ns_lshl_b32 %s, %s, 10\ns_add_u32 %s, %s, %s" % (sJ, sHSTEP, sT0, sHSTEP, sHSTEP, sHST, sHST, sT0))
            a.I("s_lshr_b32 %s, %s, 1\ns_lshl_b32 %s, %s, 1\ns_add_u32 %s, %s, %s\ns_lshl_b32 s66, 0x11111111, %s\ns_mov_b32 s67, s66" % (sT0, sW, sT1, sR, sT0, sT0, sT1, sT0))
            lin(sHLD[3], sGB, [(sR, 229376), (sW, 28672)])
            for i in range(4):
                a.I("s_add_u32 %s, %s, %d\ns_and_b32 %s, %s, 3\ns_lshr_b32 %s, %s, 1\ns_and_b32 %s, %s, 1" % (sTA, sW, i + 1, sTA, sTA, sT0, sTA, sT1, sTA))
                lin(sHLD[i], sHLD[3], [(sT0, 114688), (sT1, 256)])
                if i < 3: lin(sXW[i], str(i * 4096), [(sTA, 12288)])
            lin(sXR, "0", [(sW, 12288)])
            lin(sWQ, str(LY.WQ), [(sJ, LY.WQ_STRIDE * (1 - OPT["hitw"]))])
            lin(sWG, str(LY.WG), [(sJ, LY.WG_STRIDE * (1 - OPT["hitw"]))])
            lin(sWO, str(LY.WO), [(sC, LY.WO_STRIDE * (1 - OPT["hitw"])), (sW, 4096)])
            lin(sWD, str(LY.WD), [(sC, LY.WD_STRIDE * (1 - OPT["hitw"])), (sW, 57344)])
            lin(sTAB, str(L_TAB), [(sW, 512)])
            a.I("s_lshl_b32 %s, %s, 10\ns_lshl_b32 %s, %s, 12" % (sLW, sW, sLW4, sW))
            if not OPT["xdir"]: a.I("s_add_u32 %s, %s, %s\ns_add_u32 %s, %s, %s" % (sWQ4, sWQ, sLW4, sWG4, sWG, sLW4))
            a.I("s_cmp_eq_u32 %s, 0\ns_cselect_b32 %s, 0x%x, %s\ns_cselect_b64 s[54:55], 0, -1" % (sN, sHALO, OOB, sGB))
            a.I("s_add_u32 %s, %s, %s\ns_add_u32 %s, %s, %s\ns_add_u32 %s, %s, %s" % (sHALO2, sHALO, sLW2, sWQ, sWQ, sLW, sWG, sWG, sLW2))
            a.I("v_add_u32 v%d, 0x10000, v%d\nv_add_u32 v%d, 0x20000, v%d" % (vL16b, vL16, vL16c, vL16))
            a.I("v_lshrrev_b32 v%d, %d, v0\nv_lshlrev_b32 v%d, 7, v%d" % (u1, 1 if OPT["xdir"] else 2, u1, u1))
            if OPT["xdir"]:
                a.I("s_add_u32 %s, %s, %d\nv_and_b32 v%d, 128, v%d\nv_add_u32 v%d, %s, v%d\nv_bfe_u32 v%d, v0, 2, 3" % (sT0, sOST, LY.OB[0], u0, u1, u1, sT0, u1, CSW))
                a.I("s_add_u32 %s, %s, %d\nv_lshl_add_u32 v%d, v%d, 9, v%d\nv_cmp_gt_u32 vcc, 32, v0\nv_add_u32 v%d, %s, v%d" %
                    (sT0, sXST, LY.XB[1], u0, CSW, u0, u0, sT0, u0))
                if "x" not in OPT["t_set"]: a.I("v_mov_b32 v%d, 0x%x" % (u0, OOB))
                if "o" not in OPT["t_set"]: a.I("v_mov_b32 v%d, 0x%x" % (u1, OOB))
                a.I("v_cndmask_b32 v%d, v%d, v%d, vcc" % (u1, u0, u1))
            put(aTO)
            a.I("v_lshlrev_b32 v%d, 7, v%d\nv_lshl_add_u32 v%d, v%d, 5, v%d\nv_lshl_add_u32 v%d, v%d, 1, v%d\nv_lshlrev_b32 v%d, 3, v0" % (u0, rr, u0, g, u0, u0, cc, u0, u1))
            a.I("s_cmp_ge_u32 %s, 2\ns_cselect_b64 vcc, -1, 0\ns_cselect_b32 %s, 2, 8\nv_cndmask_b32 v%d, v%d, v%d, vcc" % (sW, sT1, u1, u0, u1))
            a.I("s_lshr_b32 %s, %s, 1\ns_add_u32 %s, %s, %d\nv_add_u32 v%d, %s, v%d" % (sT0, sLW, sT0, sT0, L_KV, u1, sT0, u1)); put(aHWR)
            a.I("v_mov_b32 v%d, %s" % (u1, sT1)); put(aHWS)
            a.I("s_mul_i32 %s, %s, 7\ns_add_u32 %s, %s, 6\ns_lshr_b32 %s, %s, 2\ns_lshr_b32 %s, %s, 2" % (sT0, sJ, sT1, sT0, sT0, sT0, sT1, sT1))
            a.I("v_add_u32 v%d, %s, v%d\nv_min_u32 v%d, %s, v%d\nv_mad_u32_u24 v%d, v%d, 28, v%d" % (u0, sT0, kc, u0, sT1, u0, u0, t8, u0))
            a.I("v_lshl_add_u32 v%d, v%d, 3, %s\nv_cmp_gt_u32 vcc, 32, v0\nv_cndmask_b32 v%d, v%d, v%d, vcc" % (u1, t32, sC, u0, u1, u0))
            a.I("v_lshlrev_b32 v%d, 7, v%d\nv_add_u32 v%d, %d, v%d" % (u0, u0, u1, LY.FB, u0)); put(aFB)
            if OPT["c_early"] == 3: die_id()
            a.I("s_getpc_b64 %s\nL_pc2:\ns_sub_u32 s4, s4, L_pc2-L_pc\ns_subb_u32 s5, s5, 0" % sPC)
            NG, Z, M0_, M1_ = rr, cc, q16, hh
            a.I("s_or_b32 %s, %s, %s\ns_cmp_eq_u32 %s, 0\ns_cselect_b64 s[56:57], -1, 0" % (sT0, sN, sW, sT0))
            a.I("v_mov_b32 v%d, %s\nv_mov_b32 v%d, 0\nv_lshlrev_b32 v%d, 2, v%d\nv_sub_u32 v%d, v%d, v%d" % (NG, NEG, Z, vA, g, vA, tok, vA))
            for r in range(4):
                a.I("v_subrev_u32 v%d, %d, v%d\nv_mov_b32 v%d, %s" % (u0, r, vA, M0_, "0xffff0000" if r & 1 else "0xffff"))
                a.I("v_cmp_gt_u32 vcc, 8, v%d\nv_cmp_gt_i32 s[58:59], -8, v%d\nv_cmp_le_i32 s[60:61], 0, v%d" % (u0, u0, u0))
                a.I("v_cndmask_b32 v%d, v%d, v%d, vcc" % (u1, NG, Z)); put(aBC + r)
                a.I("v_cndmask_b32 v%d, v%d, v%d, s[58:59]" % (u1, NG, Z)); put(aBP + r)
                a.I("v_cndmask_b32 v%d, v%d, v%d, s[56:57]" % (u1, u1, NG)); put(aBP0 + r)
                if r & 1:
                    a.I("v_cndmask_b32 v%d, v%d, v%d, s[60:61]\nv_or_b32 v%d, v%d, v%d" % (u1, Z, M0_, u1, u1, M1_)); put(aMC + r // 2)
                else:
                    a.I("v_cndmask_b32 v%d, v%d, v%d, s[60:61]" % (M1_, Z, M0_))
        a.I("v_bfe_u32 v%d, v0, 3, 1\nv_xor_b32 v%d, 1, v%d\nv_lshlrev_b32 v%d, 29, v%d" % (vA, vA, vA, vA, vA))
        a.I("s_and_b32 %s, %s, 1" % (sT1, sC))
        lin(sT0, str(8192 - 128), [(sC, 64), (sT1, -56)])
        a.I("v_add3_u32 v%d, v%d, v%d, %s" % (u1, u1, vA, sT0)); put(aHSS)
        if OPT["c_early"]: constants()
        self.stamp("p")
        if OPT["b_pos"] == -1: b_loads()
        a.vm_wait("fa")
        a.I("s_barrier")
        for sp in range(2):
            for half in range(2):
                a.ds("ds_read_b64_tr_b16 %s, v%d offset:%d" % (vr(ACC + 4 * sp + 2 * half, 2), (TA0, TA1)[half], sp * 4096), ("t", sp))
        self.stamp("p")
        for sp in range(2):
            a.ds_wait(("t", sp))
            a.vm("buffer_store_dwordx4 %s, v%d, %s, %s offen sc1" % (vr(ACC + 4 * sp, 4), vL16, WS, (dA, dA2)[sp]))
            a.I("v_mfma_f32_16x16x32_bf16 %s, %s, %s, %s" % (vr(ACC + 8, 4), vr(ONES, 4), vr(ACC + 4 * sp, 4), vr(ACC + 8, 4) if sp else "0"))
        a.I("\n".join(self.hi_lo(ACC + 12, ACC + 8, ACC + 13)))
        a.vm("buffer_store_dword v%d, v%d, %s, %s offen sc1" % (ACC + 12, CSW, WS, dCS), "fas")
        if OPT["b_pos"] == -2: b_loads()
        a.vm_wait("x")
        self.pair_swap(XRES, ACC + 56)
        self.publish(0)
        xload = "buffer_load_dword v31, v%d, %s, 0 offen sc1" % (XA, WS)
        a.vm(xload, "xf")
        if OPT["b_pos"] == 1 and not OPT["xdir"]: b_loads()
        self.stamp("p")
        if OPT["xdir"]:
            n0 = len(a.lines)
            constants()
            body = a.lines[n0:]; del a.lines[n0:]
            k, since = 0, 99
            for n_, t in enumerate(body):
                if k < OPT["xd1"] and since >= OPT["xd_gap"] and not self.scc_live(body, n_):
                    a.run_all(xd[k]); k += 1; since = 0
                a.I(t); since += 1
            a.run_all(self.flat(xd[k:OPT["xd1"]])); xd = xd[OPT["xd1"]:]
        elif not OPT["c_early"]: constants()
        def second_unit():
            G, D, CS = (ACC + 16, ACC + 32, ACC + 48) if OPT["xdir"] else (X + 96, X + 112, ACC + 48)
            out = []
            def store(ops):
                if OPT["b_spread"] and "b" not in OPT["order"]: out.append(ops)
                else: a.run_all(ops)
            if "b" in OPT["order"]:
                a.vm_wait(("fb", 24576))
                a.I("s_barrier")
            for n_ in range(4):
                for half in range(2):
                    a.ds("ds_read_b64_tr_b16 %s, v%d offset:%d" % (vr(G + 4 * n_ + 2 * half, 2), TG, 8192 * (1 + n_ % 2) + (32 * (n_ // 2) + 4 * half) * 128), ("tg", n_))
            for sp in range(2):
                for half in range(2):
                    a.ds("ds_read_b64_tr_b16 %s, v%d offset:%d" % (vr(D + 4 * sp + 2 * half, 2), TD, 24576 + (32 * sp + 4 * half) * 128), ("td", sp))
            for n_ in range(4):
                a.ds_wait(("tg", n_))
                store(([("i", "s_add_u32 %s, %s, %s" % (sB0, sB0, sB1))] if n_ == 2 else []) +
                      [("vm", "buffer_store_dwordx4 %s, v%d, %s, %s offen offset:%d sc1" % (vr(G + 4 * n_, 4), vL16, WS, sB0, (n_ % 2) * 1024))])
                c_ = vr(CS + 4 * (n_ % 2), 4)
                a.I("v_mfma_f32_16x16x32_bf16 %s, %s, %s, %s" % (c_, vr(ONES, 4), vr(G + 4 * n_, 4), c_ if n_ >= 2 else "0"))
            for sp in range(2):
                a.ds_wait(("td", sp))
                store(([("i", "s_add_u32 %s, %s, 4096" % (sB3, sB3))] if sp else []) +
                      [("vm", "buffer_store_dwordx4 %s, v%d, %s, %s offen sc1" % (vr(D + 4 * sp, 4), vL16, WS, sB3))])
            a.I("v_cmp_gt_u32 vcc, 16, v0\nv_bfe_u32 v%d, v0, 4, 1\nv_mul_u32_u24 v%d, 448, v%d\nv_add_u32 v%d, v%d, v%d\nv_cndmask_b32 v%d, v%d, v%d, vcc" %
                (D + 9, D + 9, D + 9, D + 9, D + 9, LINE, CS, CS + 4, CS))
            a.I("\n".join(self.hi_lo(D + 8, CS, CS + 1)))
            store([("vm", "buffer_store_dword v%d, v%d, %s, %s offen sc1" % (D + 8, D + 9, WS, sB2), "fbs")])
            self.stamp("p")
            return out
        def first_flags():
            a.I("v_mov_b32 v30, %s" % sNONCE)
            a.vm_wait("fas")
            a.I("s_barrier")
            a.vm("buffer_store_dword v30, v%d, %s, %s offen sc1" % (LINE, WS, sFBO))
            a.I("s_add_u32 %s, %s, %d" % (sFBO, sFBO, LY.FB - LY.FA))
            self.stamp("p")
        def own_flags():
            spin, back = a.label("xspin"), a.label("xback")
            test = "v_xor_b32 v29, %s, v31\nv_cmp_lt_u32 vcc, 15, v29\ns_and_b64 vcc, vcc, exec" % sNONCE
            a.vm_wait("xf")
            a.I("%s\ns_cbranch_scc1 %s\n%s:" % (test, spin, back))
            self.cold.append("%s:\ns_mov_b32 %s, 0x40000\n%s_l:\n%s\ns_sub_u32 %s, %s, 1\ns_cbranch_scc1 L_main_done\ns_waitcnt vmcnt(0)\n%s\ns_cbranch_scc1 %s_l\ns_branch %s"
                             % (spin, sSPIN, spin, xload, sSPIN, sSPIN, test, spin, back))
            a.I("v_cmp_ne_u32 vcc, v%d, v31\ns_cmp_lg_u64 vcc, 0\ns_cselect_b32 %s, 1, 0\ns_mov_b32 s0, %s\ns_mov_b32 s1, 0" % (XV, sSLOW, sSLOW))
            self.signal(0, "pub", 0)
            self.stamp("p")
        for step in OPT["order"]:
            if step == "c" and OPT["xdir"]: continue
            {"b": second_unit, "a": first_flags, "o": own_flags, "c": constants2}[step]()
        if OPT["xdir"]:
            n0 = len(a.lines)
            constants2()
            body = a.lines[n0:]; del a.lines[n0:]
            per = max(OPT["xd_per"], -(-(self.c_min - n0) // len(xd)))
            pos, done = 0, 32 - len(xd)
            for g_ in xd:
                a.run_all(g_); done += 1
                stop = min(len(body), pos + per)
                while stop < len(body) and self.scc_live(body, stop): stop += 1
                a.I("\n".join(body[pos:stop])); pos = stop
                if len(swaps) > 1 and 4 * swaps[0][1][1] + 4 + OPT["xd_lag"] <= done:
                    a.run_all(swaps[:5]); swaps = swaps[5:]
            self.stamp("p")
            l_fa, g_fa = self.late_check("buffer_load_dword v%d, v%d, %s, 0 offen sc1" % (PB, FAV, WS), PB, "exec", "fa2")
            l_x, g_x = self.check_ops(0, sMA, PA, "x2")
            a.run_all(swaps[:5 * OPT["xd_pre"]]); swaps = swaps[5 * OPT["xd_pre"]:]
            a.run_all(l_x + l_fa)
            if not (OPT["inb"] and OPT["inb_at"]): b_loads()
            a.I("\n".join(body[pos:]))
            a.I("s_add_u32 %s, %s, %s\ns_add_u32 %s, %s, %s" % (sWQ4, sWQ, sLW4, sWG4, sWG, sLW4))
            a.I("s_sub_u32 %s, %s, %s\ns_sub_u32 %s, %s, %s" % (sWQ4, sWQ4, sLW, sWG4, sWG4, sLW2))
            if OPT["t_pos"] == -1: a.run_all(self.flat(self.touch(aTO, "0", 0, 18)))
            a.run_all(swaps + g_fa + g_x)
        self.stamp("p")
        if "b" in OPT["order"]:
            a.vm_wait("fbs")
            a.I("s_barrier")
            a.vm("buffer_store_dword v30, v%d, %s, %s offen sc1" % (LINE, WS, sFBO))
        elif OPT["predrain"]:
            a.vm_drain()
        self.stamp("p")
        def second_ops():
            G, D, CS, ON, AG, AD, T0, T1, T2 = 0, 16, 24, 32, 30, 31, 24, 25, 20
            pre = "v_mov_b32 v%d, v%d\nv_mov_b32 v%d, v%d\nv_bfe_u32 v%d, v0, 4, 1\nv_mul_u32_u24 v%d, 448, v%d\nv_add_u32 v%d, v%d, v%d\n" % (AG, TG, AD, TD, T2, T2, T2, T2, T2, LINE)
            pre += "\n".join("v_accvgpr_write_b32 a%d, v%d" % (ON + k, ONES) for k in range(4))
            rd = [("ds", "ds_read_b64_tr_b16 %s, v%d offset:%d" % (ar(G + 4 * n_ + 2 * half, 2), AG, 8192 * (1 + n_ % 2) + (32 * (n_ // 2) + 4 * half) * 128), ("tg", n_, half))
                  for n_ in range(4) for half in range(2)]
            rd += [("ds", "ds_read_b64_tr_b16 %s, v%d offset:%d" % (ar(D + 4 * sp + 2 * half, 2), AD, 24576 + (32 * sp + 4 * half) * 128), ("td", sp, half))
                   for sp in range(2) for half in range(2)]
            st = []
            for n_ in range(4):
                c_ = ar(CS + 4 * (n_ % 2), 4)
                st.append(([("i", "s_add_u32 %s, %s, %s" % (sB0, sB0, sB1))] if n_ == 2 else []) + [("wds", ("tg", n_, 1)),
                          ("vm", "buffer_store_dwordx4 %s, v%d, %s, %s offen offset:%d sc1" % (ar(G + 4 * n_, 4), vL16, WS, sB0, (n_ % 2) * 1024)),
                          ("i", "v_mfma_f32_16x16x32_bf16 %s, %s, %s, %s" % (c_, ar(ON, 4), ar(G + 4 * n_, 4), c_ if n_ >= 2 else "0"))])
            for sp in range(2):
                st.append(([("i", "s_add_u32 %s, %s, 4096" % (sB3, sB3))] if sp else []) + [("wds", ("td", sp, 1)),
                          ("vm", "buffer_store_dwordx4 %s, v%d, %s, %s offen sc1" % (ar(D + 4 * sp, 4), vL16, WS, sB3))])
            st.append([("i", "s_mov_b64 s[6:7], 0xffff\n%s\n%s\nv_cndmask_b32 v%d, v%d, v%d, s[6:7]" % (self.getc(T0, CS), self.getc(T1, CS + 4), T0, T1, T0)),
                       ("i", "\n".join(self.hi_lo(PA, T0, T1))),
                       ("vm", "buffer_store_dword v%d, v%d, %s, %s offen sc1" % (PA, T2, WS, sB2), "fbs"), ("mark", "bdone")])
            return pre, rd, st
        self.second_unit, self.b_loads, self.second_ops = second_unit, b_loads, second_ops
        self.fav = FAV

    def startup2(self):
        a = self.a
        lin = self.lin
        t8, kc, tok, g, hh, t32, u0, u1, rr, cc, q16, vA, vR, vD, TA0, TA1, TD, XA, XV, FAV, LINE = range(F, F + 21)
        ONES, CSW, L_T = F + 24, F + 21, 114688
        def put(acc): self.a.I("v_accvgpr_write_b32 a%d, v%d" % (acc, u1))
        a.I("%s_kernel:" % NAME)
        a.I("s_cmp_ge_u32 s2, 256\ns_cbranch_scc1 L_main_done")
        a.I("s_load_dwordx16 s[64:79], s[0:1], 0\ns_load_dwordx2 s[4:5], s[0:1], 72")
        if OPT["stamps"] or OPT["diagpad"]:
            a.I("s_memrealtime s[98:99]")
        if OPT["stamps"]:
            a.I("s_memtime s[%d:%d]" % (sST, sST + 1))
        a.I("s_getpc_b64 s[56:57]\nL_pc:\ns_lshr_b32 s58, s2, 3\ns_lshl_b32 s58, s58, 11")
        a.I("v_lshrrev_b32 v16, 6, v0\nv_lshrrev_b32 v17, 4, v0\nv_lshlrev_b32 v17, 7, v17\nv_add_u32 v17, s58, v17")
        a.I("v_min_u32 v17, L_code_end-L_pc-4, v17\nv_and_b32 v0, 63, v0\nv_readfirstlane_b32 %s, v16" % sW)
        a.I("global_load_dword a255, v17, s[56:57]")
        a.I("s_and_b32 %s, s2, 7\ns_bfe_u32 %s, s2, 0x40003\ns_lshr_b32 %s, s2, 7" % (sN, sJ, sP))
        a.I("s_lshr_b32 %s, %s, 3\ns_and_b32 %s, %s, 7" % (sR, sJ, sC, sJ))
        a.I("v_and_b32 v%d, 7, v0\nv_lshrrev_b32 v%d, 3, v0\nv_and_b32 v%d, 15, v0\nv_lshrrev_b32 v%d, 4, v0\nv_lshlrev_b32 v%d, 4, v%d" % (t8, kc, tok, g, u0, t8))
        a.I("s_lshl_b32 s31, %s, 1\ns_add_u32 s31, s31, %s\ns_lshl_b32 s31, s31, 2\ns_add_u32 s31, s31, %s\ns_lshl_b32 s31, s31, 5" % (sN, sR, sW))
        a.I("s_add_u32 s31, s31, %s\ns_lshl_b32 s31, s31, 3\ns_add_u32 s31, s31, %s\ns_lshl_b32 s31, s31, 7" % (sP, sC))
        a.I("v_and_b32 v%d, 14, v0\nv_lshlrev_b32 v%d, 11, v%d\nv_lshl_add_u32 v%d, v%d, 4, v%d\nv_and_b32 v%d, 1, v0\nv_lshlrev_b32 v%d, 6, v%d\nv_add3_u32 v%d, s31, v%d, v%d" %
            (vR, vR, vR, vR, g, vR, u1, u1, u1, vR, vR, u1))
        a.I("s_lshl_b32 %s, %s, 12\ns_cmp_lg_u32 %s, 0\ns_cbranch_scc1 L_follow" % (sLW4, sW, sP))
        cu, kp, st, so, so2 = "s32", "s33", "s34", "s35", "s36"
        D4 = [sB0, sB1, sB2, sB3]
        dCS, dD = "s3", "s0"

        def tile_dma(srdn, va, s_off, stride, lds, tag):
            a = self.a
            a.I("s_add_u32 m0, %s, %d" % (sLW4, L_T + lds))
            for k in range(4):
                if k: a.I("s_add_u32 %s, %s, %s" % (sT0, s_off if k == 1 else sT0, stride))
                a.vm("buffer_load_dwordx4 v%d, s[%d:%d], %s offen offset:%d lds" % (va, srdn, srdn + 3, sT0 if k else s_off, k * 1024), tag if k == 3 else None)
        def x_loads():
            a = self.a
            self.srd(12, "s64", "s65", 2048 * 1024)
            a.vm("buffer_load_dwordx4 %s, v%d, %s, 0 offen" % (vr(X, 4), vR, XIN))
            a.vm("buffer_load_dwordx4 %s, v%d, %s, 0 offen offset:2048" % (vr(X + 4, 4), vR, XIN), "x")
            if OPT["stamps"]:
                a.I("v_mov_b32 v%d, 0\nv_writelane_b32 v%d, s98, 62\nv_writelane_b32 v%d, s%d, 0" % (vSTAMP, vSTAMP, vSTAMP, sST))
                self.nstamp = 1
            if OPT["diagpad"]: a.I("s_mov_b32 s14, s98")
        def common():
            a = self.a
            self.srd(8, "s4", "s5", LY.WS_USED)
            a.I("s_lshl_b32 %s, %s, 1\ns_add_u32 %s, %s, %s" % (sG, sN, sG, sG, sP))
            a.I("s_lshl_b32 %s, %s, %d\ns_add_u32 %s, %s, 0x%x" % (sGB, sG, LY.ACT_SHIFT, sGB, sGB, LY.ACT))
            lin(sFLG, str(LY.FL), [(sG, 256)])
            lin(sFLW, sFLG, [(sJ, 16), (sW, 4)])
            lin(sTS, sGB, [(sR, 4096), (sW, 1024), (sC, 128)])
            a.I("s_and_b32 %s, %s, 1" % (sT0, sC))
            lin(sSST, sTS, [(sT0, -120)])
            a.I("s_add_u32 %s, %s, %d\nv_cmp_gt_u32 vcc, 32, v0\nv_mov_b32 v%d, %s\nv_mov_b32 v%d, %s\nv_cndmask_b32 v%d, v%d, v%d, vcc" %
                (sTS, sTS, LY.SB[0], u1, sTS, XA, sFLW, XA, u1, XA))
            a.vm("buffer_load_dword a255, v%d, %s, 0 offen sc1" % (XA, WS))
            self.srd(16, "s78", "s79", 2048 * 1024)
            a.I("v_accvgpr_write_b32 a%d, v%d\nv_lshlrev_b32 v%d, 4, v0\nv_lshlrev_b32 v%d, 2, v0" % (aROW, vR, vL16, vFL))
            a.I("v_bfe_u32 v%d, v0, 2, 2\nv_and_b32 v%d, 3, v0\nv_bfe_u32 v%d, v0, 4, 1\nv_lshrrev_b32 v%d, 5, v0" % (rr, cc, q16, hh))
            lin(sT0, str(LY.XF), [(sG, 2048)])
            a.I("v_lshrrev_b32 v%d, 2, v0\nv_lshl_add_u32 v%d, v%d, 7, %s\nv_lshl_add_u32 v%d, v%d, 30, v%d" % (XA, XA, XA, sT0, LINE, hh, vFL))
            lin(sT0, sT0, [(sJ, 128)])
            a.I("s_cmp_eq_u32 %s, 0\ns_cselect_b32 %s, %s, 0x%x\ns_getreg_b32 %s, hwreg(HW_REG_XCC_ID, 0, 4)" % (sW, sT0, sT0, OOB, sT1))
            a.I("s_waitcnt lgkmcnt(0)\ns_add_u32 %s, %s, 0x9e3779b1\ns_xor_b32 %s, %s, %s\nv_mov_b32 v%d, %s" % (sNONCE, sNONCE, sT1, sT1, sNONCE, XV, sT1))
            a.vm("buffer_store_dword v%d, v%d, %s, %s offen sc1" % (XV, LINE, WS, sT0))
            a.I("v_lshl_add_u32 v%d, v%d, 3, v%d\nv_lshlrev_b32 v%d, 7, v%d\nv_add_u32 v%d, %d, v%d" % (u0, g, rr, u0, u0, u0, L_T, u0))
            a.I("s_lshr_b32 %s, %s, 1\ns_and_b32 %s, %s, 1" % (sT0, sW, sT1, sW))
            lin(sXST, sGB, [(sR, 65536), (sC, 4096), (sT0, 32768), (sT1, 256)])
            a.I("s_lshl_b32 %s, %s, 6\ns_lshl_b32 %s, %s, 3\ns_add_u32 %s, %s, %s\nv_lshl_add_u32 v%d, v%d, 4, %s\nv_add_u32 v%d, v%d, v%d" %
                (sT0, sT0, sT1, sT1, sT0, sT0, sT1, TD, cc, sT0, TD, TD, u0))
            a.I("s_lshl_b32 %s, %s, 5\nv_lshl_add_u32 v%d, v%d, 3, %s\nv_add_u32 v%d, v%d, v%d" % (sT0, sW, TA0, cc, sT0, TA0, TA0, u0))
            for k in range(4): a.I("v_mov_b32 v%d, 0x3f803f80" % (ONES + k))
            a.I("s_mov_b32 %s, 0x3f803f80\nv_lshlrev_b32 v%d, 4, v%d\nv_lshl_add_u32 v%d, v%d, 9, v%d" % (sONE, u0, tok, vQ, g, u0))
            a.I("v_lshlrev_b32 v%d, 4, v%d\nv_lshl_add_u32 v%d, v%d, 2, v%d\nv_lshl_add_u32 v%d, v%d, 30, v%d" % (u1, tok, u1, hh, u1, u1, q16, u1)); put(aST)
        def tile_out(base, a0, a1, o1, lds, dst, cs):
            a = self.a
            for sp in range(4):
                a.ds("ds_read_b64_tr_b16 %s, v%d offset:%d" % (vr(base + 4 * sp, 2), a0, lds + sp * 4096))
                a.ds("ds_read_b64_tr_b16 %s, v%d offset:%d" % (vr(base + 4 * sp + 2, 2), a1, lds + sp * 4096 + o1), ("t", lds, sp))
            for sp in range(4):
                a.ds_wait(("t", lds, sp))
                a.vm("buffer_store_dwordx4 %s, v%d, %s, %s offen offset:%d sc1" % ((vr(base + 4 * sp, 4), vL16, WS) + dst(sp)))
                if cs: a.I("v_mfma_f32_16x16x32_bf16 %s, %s, %s, %s" % (vr(cs, 4), vr(ONES, 4), vr(base + 4 * sp, 4), vr(cs, 4) if sp else "0"))
        def cs_out(src, addr):
            a = self.a
            a.I("v_cmp_eq_u32 vcc, 0, v%d" % q16)
            a.I("\n".join(self.hi_lo(ACC + 60, src, ACC + 61)))
            a.I("v_cndmask_b32 v%d, 0, v%d, vcc" % (ACC + 60, ACC + 60))
            a.vm("buffer_store_dword v%d, v%d, %s, %s offen sc1" % (ACC + 60, addr, WS, dCS))
        xload = "buffer_load_dword v31, v%d, %s, 0 offen sc1" % (XA, WS)
        def pub():
            self.a.vm_wait("x")
            self.pair_swap(XRES, X)
            self.publish(0)
            self.a.vm(xload)

        self.sdivmod(kp, cu, "s2", 24)
        a.I("s_sub_u32 %s, %s, 12\ns_cmp_lt_u32 s2, 96\ns_cselect_b32 %s, %s, %s\ns_cselect_b32 %s, %s, %s\ns_cselect_b32 %s, 3, 1\ns_lshl_b32 %s, %s, 10" %
            (sT0, sJ, cu, cu, sN, kp, kp, sT0, st, st, st))
        a.I("v_mad_u32_u24 v%d, v%d, %s, v%d" % (vA, kc, st, u0))
        a.I("s_lshl_b32 %s, %s, 2\ns_add_u32 %s, %s, %s\ns_lshl_b32 %s, %s, 5\ns_mul_i32 %s, %s, %s\ns_lshl_b32 %s, %s, 7\ns_add_u32 %s, %s, %s" %
            (so, kp, so, so, sW, so, so, so, so, st, sT1, cu, so, so, sT1))
        a.I("s_lshl_b32 %s, %s, 3\ns_sub_u32 %s, %s, 1024" % (so2, st, so2, so2))
        a.I("s_lshl_b32 s%d, %s, 9\ns_mov_b32 s%d, 0x20000\ns_cmp_lt_u32 s2, 96\ns_waitcnt lgkmcnt(0)" % (SRC_A + 2, st, SRC_A + 3))
        a.I("s_load_dword %s, s[4:5], %d" % (sNONCE, LY.EPOCH))
        a.I("s_cselect_b32 s%d, s66, s68\ns_cselect_b32 s%d, s67, s69\ns_and_b32 s%d, s%d, 0xffff" % (SRC_A, SRC_A + 1, SRC_A + 1, SRC_A + 1))
        tile_dma(SRC_A, vA, so, so2, 0, "fa")
        x_loads()
        common()
        a.I("s_and_b32 %s, %s, 7\ns_lshl_b32 %s, %s, 1\ns_lshr_b32 %s, %s, 1\ns_add_u32 %s, %s, %s" % (sT0, cu, sT0, sT0, sT1, sW, sT0, sT0, sT1))
        a.I("s_mul_i32 %s, %s, %d\ns_add_u32 %s, %s, %d" % (sT0, sT0, LY.WQ_STRIDE, sT0, sT0, LY.WQ))
        a.I("s_lshr_b32 %s, %s, 3\ns_lshl_b32 %s, %s, 1\ns_and_b32 %s, %s, 1\ns_add_u32 %s, %s, %s" % (sT1, cu, sT1, sT1, sT2, sW, sT1, sT1, sT2))
        lin(D4[0], sT0, [(kp, 24576), (sT1, 1024)])
        lin(dCS, sT0, [(kp, 128), (sT1, 512)])
        a.I("s_add_u32 %s, %s, 98304" % (dCS, dCS))
        lin(sT0, str(LY.WO), [(cu, LY.WO_STRIDE), (kp, 16384), (sW, 1024)])
        a.I("s_cmp_lt_u32 s2, 96\ns_cselect_b32 %s, %s, %s\ns_cselect_b32 %s, %s, 0x%x\ns_cselect_b32 %s, 6, 4\ns_cselect_b64 vcc, -1, 0" %
            (D4[0], D4[0], sT0, dCS, dCS, OOB, sT1))
        a.I("s_lshl_b32 %s, %s, 10" % (sT1, sT1))
        for k in range(1, 4): a.I("s_add_u32 %s, %s, %s" % (D4[k], D4[k - 1], sT1))
        a.I("v_lshlrev_b32 v%d, 9, v%d\nv_sub_u32 v%d, v%d, v%d\nv_add_u32 v%d, 512, v%d\nv_add_u32 v%d, 2048, v%d" % (u0, g, TD, TD, u0, TA1, TA0, u0, TD))
        a.I("v_cndmask_b32 v%d, v%d, v%d, vcc\nv_cndmask_b32 v%d, v%d, v%d, vcc" % (TA0, TD, TA0, TA1, u0, TA1))
        self.stamp("p")
        a.vm_wait("fa")
        a.I("s_barrier")
        self.stamp("p")
        tile_out(ACC, TA0, TA1, 0, 0, lambda sp: (D4[sp], 0), ACC + 48)
        cs_out(ACC + 48, LINE)
        pub()
        self.stamp("p")
        if not OPT["near"]: a.I("L_join:")
        nst = self.nstamp
        self.a = b = Asm()
        b.I("L_follow:\ns_sub_u32 %s, s2, 128" % st)
        self.sdivmod(kp, cu, st, 28)
        b.I("v_mul_u32_u24 v%d, 3584, v%d\nv_add_u32 v%d, v%d, v%d\nv_lshl_add_u32 v%d, v%d, 10, v%d" % (vA, kc, vA, vA, u0, vD, kc, u0))
        lin(so, "0", [(kp, 128 * 3584), (sW, 32 * 3584), (cu, 128)])
        lin(so2, "0", [(sJ, 131072), (sW, 32768), (sN, 128)])
        b.I("s_waitcnt lgkmcnt(0)\ns_load_dword %s, s[4:5], %d" % (sNONCE, LY.EPOCH))
        steps = dict(g=lambda: tile_dma(SRC_G, vA, so, str(8 * 3584 - 1024), 0, "fg"), u=lambda: tile_dma(SRC_U, vA, so, str(8 * 3584 - 1024), 16384, "fu"),
                     d=lambda: tile_dma(SRC_D, vD, so2, str(7 * 1024), 32768, "fd"), x=x_loads, c=common, p=pub, w=b.vm_drain)
        self.srd(SRC_G, "s72", "s73", 512 * 3584)
        self.srd(SRC_U, "s74", "s75", 512 * 3584)
        self.srd(SRC_D, "s76", "s77", 1792 * 1024)
        for ch in OPT["follow"]: steps[ch]()
        lin(dD, str(LY.WD), [(sN, LY.WD_STRIDE), (sJ, 16384), (sW, 1024)])
        b.I("s_lshl_b32 %s, %s, 2\ns_add_u32 %s, %s, %s" % (cu, cu, cu, cu, sW))
        self.sdivmod(sT0, sT1, cu, 7)
        lin(dCS, str(LY.WG), [(sT0, LY.WG_STRIDE)])
        b.I("s_sub_u32 %s, 6, %s\n%s %s, 0\ns_cselect_b32 %s, %s, %s" % (sT2, sT1, BIT, sT0, sT1, sT1, sT2))
        S0, TL = GS0, 16 - GS0
        lin(so, dCS, [(kp, 56 * 1024), (sT1, 2048)])
        lin(dCS, dCS, [(sT1, (2 * TL + 1) * 1024)])
        lin(so2, dCS, [(kp, 8192)])
        for k in range(4):
            b.I("s_add_u32 %s, %s, %d\ns_add_u32 %s, %s, %d\ns_cmp_lt_u32 %s, %d\ns_cselect_b32 %s, %s, %s" %
                (sT0, so, 14 * 1024 * k, sT1, so2, (12 * S0 + 2 * k) * 1024, kp, (S0 - k + 3) // 4, D4[k], sT0, sT1))
        lin(dCS, dCS, [(kp, 128)])
        b.I("s_add_u32 %s, %s, %d\ns_cmp_lt_u32 s2, 240" % (dCS, dCS, (14 * S0 + 2 * TL) * 1024))
        for r_ in D4 + [dCS, dD]: b.I("s_cselect_b32 %s, %s, 0x%x" % (r_, r_, OOB))
        b.I("v_mul_u32_u24 v%d, 384, v%d\nv_add_u32 v%d, v%d, v%d" % (vA, hh, vA, vA, vFL))
        self.stamp("p")
        b.vm_wait("fu")
        b.I("s_barrier")
        self.stamp("p")
        tile_out(ACC, TA0, TA0, 512, 0, lambda sp: (D4[sp], 0), ACC + 48)
        tile_out(ACC + 16, TA0, TA0, 512, 16384, lambda sp: (D4[sp], 1024), ACC + 52)
        for k in range(4): b.I("s_add_u32 %s, %s, %d" % (D4[k], dD, 4096 * k))
        b.I("v_cmp_gt_u32 vcc, 32, v0\nv_cndmask_b32 v%d, v%d, v%d, vcc" % (ACC + 48, ACC + 52, ACC + 48))
        cs_out(ACC + 48, vA)
        b.vm_wait("fd")
        b.I("s_barrier")
        tile_out(ACC + 32, TD, TD, 512, 32768, lambda sp: (D4[sp], 0), None)
        if "p" not in OPT["follow"]: pub()
        self.stamp("p")
        assert nst == self.nstamp
        if OPT["near"]:
            a.I("s_branch L_join\n" + "\n".join(b.lines) + "\nL_join:")
        else:
            b.I("s_branch L_join")
            self.cold.append("\n".join(b.lines))
        self.a = a

        a.vm_tag["join"] = a.vm_n
        lin(sXLD, sGB, [(sW, 32768)])
        lin(sOST, sXLD, [(sJ, 2048)])
        def touch_list():
            a.I("v_lshrrev_b32 v%d, %d, v0\nv_lshlrev_b32 v%d, 7, v%d" % (u1, 1 if OPT["xdir"] else 2, u1, u1))
            if OPT["xdir"]:
                a.I("s_add_u32 %s, %s, %d\nv_and_b32 v%d, 128, v%d\nv_add_u32 v%d, %s, v%d\nv_bfe_u32 v%d, v0, 2, 3" % (sT0, sOST, LY.OB[0], u0, u1, u1, sT0, u1, CSW))
                a.I("s_add_u32 %s, %s, %d\nv_lshl_add_u32 v%d, v%d, 9, v%d\nv_cmp_gt_u32 vcc, 32, v0\nv_add_u32 v%d, %s, v%d" %
                    (sT0, sXST, LY.XB[1], u0, CSW, u0, u0, sT0, u0))
                if "x" not in OPT["t_set"]: a.I("v_mov_b32 v%d, 0x%x" % (u0, OOB))
                if "o" not in OPT["t_set"]: a.I("v_mov_b32 v%d, 0x%x" % (u1, OOB))
                a.I("v_cndmask_b32 v%d, v%d, v%d, vcc" % (u1, u0, u1))
            put(aTO)
        if OPT["t_pos"] == -2:
            touch_list()
            a.vm("buffer_load_dword a255, v%d, %s, 0 offen sc1" % (u1, WS))
        def sibling():
            touch_list()
            a.I("s_cmp_lt_u32 s2, 128\ns_cselect_b32 %s, 0x%x, 0\nv_add_u32 v%d, %s, v%d\nv_subrev_u32 v%d, 0x%x, v%d" % (sT0, OOB, u1, sT0, u1, u0, LY.ACT_STRIDE, u1)); put(aTO)
            a.vm("buffer_load_dword a255, v%d, %s, 0 offen sc1" % (u0, WS))
        if OPT["sib"] == 1: sibling()
        sa = "s[%d:%d]" % (SRC_A, SRC_A + 3)
        xd, swaps = [], []
        vX, sXD, sHD, sXL = 21, "s6", "s14", sLW4
        self.srd(SRC_A, "s64", "s65", 2048 * 1024)
        a.I("v_xor_b32 v%d, v%d, v%d\nv_lshlrev_b32 v%d, 4, v%d\nv_lshl_add_u32 v%d, v%d, 11, v%d" % (vX, t8, kc, vX, vX, vX, kc, vX))
        lin(sHD, "0", [(sN, 262144), (sP, 1024)])
        lin(sXD, sHD, [(sW, 65536)])
        lin(sHD, sHD, [(sW, 256)])
        a.I("s_sub_u32 %s, %s, 16384\ns_cmp_eq_u32 %s, 0\ns_cselect_b32 %s, 0x%x, %s" % (sHD, sHD, sN, sHD, OOB, sHD))
        a.I("v_xor_b32 v16, v%d, v%d\nv_lshlrev_b32 v16, 4, v16\nv_lshl_add_u32 v%d, v%d, 7, v16\nv_add_u32 v%d, %d, v%d" % (t8, g, u1, t8, u1, L_HALO, u1)); put(aSH)
        a.I("v_lshl_add_u32 v16, v%d, 7, v16\nv_add_u32 v16, %s, v16\nv_xor_b32 v17, 64, v16\nv_add_u32 v18, 0x10000, v16\nv_add_u32 v19, 0x10000, v17" % (tok, sXL))
        for m in range(8):
            for k in range(4):
                xd.append([("i", "s_add_u32 m0, %s, %d\ns_add_u32 s15, %s, %d" % (sXL, m * 16384, sXD, k * 16384 + m * 128 - k * 1024)),
                           ("vm", "buffer_load_dwordx4 v%d, %s, s15 offen offset:%d lds" % (vX, sa, k * 1024), ("xd", m, k))])
            swaps.append(("wvm", ("xd", m, 3)))
            swaps += [("ds", "ds_read_b128 %s, v%d offset:%d" % (vr(X + 8 * (2 * m + h_) + 4 * b_, 4), 16 + h_ + 2 * (m // 4), (m % 4) * 16384 + b_ * 2048)) for b_ in range(2) for h_ in range(2)]
        swaps.append(("dsdrain",))
        self.halo0 = [[("set", "m0", "s_add_u32 m0, %s, %d" % (sLW2, L_HALO + 1024 * k)), ("i", "s_add_u32 s15, %s, %d" % (sHD, 128 * k)),
                       ("vm", "buffer_load_dwordx4 v%d, %s, s15 offen lds" % (vX, sa), "halo" if k else None)] for k in range(2)]
        def flags():
            self.stamp("p")
            a.I("v_mov_b32 v30, %s" % sNONCE)
            a.vm_wait("join")
            a.I("s_barrier")
            a.vm("buffer_store_dword v30, v%d, %s, %s offen sc1" % (LINE, WS, sFBO))
            spin, back = a.label("xspin"), a.label("xback")
            test = "v_xor_b32 v29, %s, v31\nv_cmp_lt_u32 vcc, 15, v29\ns_and_b64 vcc, vcc, exec" % sNONCE
            a.I("%s\ns_cbranch_scc1 %s\n%s:" % (test, spin, back))
            self.cold.append("%s:\ns_mov_b32 %s, 0x40000\n%s_l:\n%s\ns_sub_u32 %s, %s, 1\ns_cbranch_scc1 L_main_done\ns_waitcnt vmcnt(0)\n%s\ns_cbranch_scc1 %s_l\ns_branch %s"
                             % (spin, sSPIN, spin, xload, sSPIN, sSPIN, test, spin, back))
            a.I("v_cmp_ne_u32 vcc, v%d, v31\ns_cmp_lg_u64 vcc, 0\ns_cselect_b32 %s, 1, 0\ns_mov_b32 s0, %s\ns_mov_b32 s1, 0" % (XV, sSLOW, sSLOW))
            self.signal(0, "pub", 0, OPT["h_def"] & 1)
            self.stamp("p")
        def carry(ops, emit, per, lag):
            nonlocal swaps
            n0 = len(a.lines)
            self.c_min = n0
            emit()
            body = a.lines[n0:]; del a.lines[n0:]
            per = max(per, -(-(self.c_min - n0) // len(ops)))
            pos = 0
            for g_ in ops:
                a.run_all(g_)
                stop = min(len(body), pos + per)
                while stop < len(body) and self.scc_live(body, stop): stop += 1
                a.I("\n".join(body[pos:stop])); pos = stop
                m, k = g_[-1][2][1:]
                if len(swaps) > 1 and 4 * swaps[0][1][1] + 3 + lag <= 4 * m + k:
                    a.run_all(swaps[:5]); swaps = swaps[5:]
            return "\n".join(body[pos:])
        def consts1():
            a.I("v_cmp_ne_u32 vcc, 0, v0\nv_mov_b32 v%d, 0x%x\nv_accvgpr_write_b32 a%d, v%d\nv_cndmask_b32 v%d, 0, v%d, vcc" % (vF1, OOB, aLINE, LINE, vF1, vF1))
            lin(sHFL, str(LY.HFL), [(sG, 1024)])
            lin(sHDFL, sHFL, [(sC, 128)])
            lin(sFBO, str(LY.FA), [("s2", 128)])
            a.I("s_add_u32 %s, %s, 2048\ns_add_u32 %s, %s, 0x%x\ns_lshl_b32 %s, %s, 11" % (sHDFL, sHDFL, sHDST, sGB, 2 * LY.ACT_STRIDE, sLW2, sW))
            a.I("s_cmp_eq_u32 %s, 0\ns_cselect_b32 %s, %s, 0x%x" % (sW, sFBO, sFBO, OOB))
            a.I("s_lshl_b32 %s, %s, 2\ns_add_u32 %s, %s, %s\ns_cmp_eq_u32 %s, 7\ns_cselect_b32 %s, 0, %s\ns_cmp_eq_u32 %s, 7" % (sT0, sR, sT0, sT0, sW, sN, sT0, sT0, sT0))
            a.I("s_cselect_b32 %s, %s, 0x%x" % (sHDST, sHDST, OOB))
            a.I("v_bfe_u32 v%d, v0, 3, 1\nv_xor_b32 v%d, 1, v%d\nv_lshlrev_b32 v%d, 29, v%d" % (vA, vA, vA, vA, vA))
            a.I("s_and_b32 %s, %s, 1\n%s" % (sT1, sC, self.getc(u1, aST)))
            lin(sT0, str(8192 - 128), [(sC, 64), (sT1, -56)])
            a.I("v_add3_u32 v%d, v%d, v%d, %s" % (u1, u1, vA, sT0)); put(aHSS)
            a.I("v_lshlrev_b32 v%d, 4, v%d\nv_lshl_add_u32 v%d, v%d, 7, v%d\nv_add_u32 v%d, %d, v%d" % (u0, t8, u0, g, u0, u1, L_HALO, u0)); put(aHX)
            a.I("s_lshl_b32 %s, %s, 10\nv_add3_u32 v%d, v%d, v%d, %s" % (sT0, sC, u1, u0, vA, sT0)); put(aHST)
        def consts2():
            a.I("s_lshr_b32 %s, %s, 1\ns_lshl_b32 %s, %s, 5\ns_and_b32 %s, %s, 1\ns_lshl_b32 %s, %s, 1\ns_add_u32 %s, %s, %s" % (sT0, sW, sT0, sT0, sT1, sW, sT1, sT1, sT0, sT0, sT1))
            a.I("s_mov_b32 s40, 0x33333333\ns_mov_b32 s41, 0\ns_lshl_b64 s[40:41], s[40:41], %s" % sT0)
            a.I("s_lshl_b32 %s, %s, 1\ns_lshl_b32 %s, %s, 4\ns_add_u32 %s, %s, %s" % (sT0, sR, sT2, sW, sT0, sT0, sT2))
            a.I("s_mov_b32 s42, 0x3333\ns_mov_b32 s43, 0\ns_lshl_b64 s[42:43], s[42:43], %s" % sT0)
            a.I("s_lshr_b32 %s, %s, 1\ns_mul_i32 %s, %s, 24\ns_add_u32 %s, %s, %s\nv_lshl_add_u32 v%d, v%d, 3, %s" % (sT0, sJ, sT1, sW, sT0, sT0, sT1, u0, kc, sT0))
            a.I("s_lshl_b32 %s, %s, 3\ns_add_u32 %s, %s, %s\ns_add_u32 %s, %s, 96\nv_mov_b32 v%d, %s\nv_cmp_gt_u32 vcc, 24, v0\nv_cndmask_b32 v%d, v%d, v%d, vcc" %
                (sT0, sW, sT0, sT0, sC, sT0, sT0, u1, sT0, u0, u1, u0))
            a.I("v_lshlrev_b32 v%d, 7, v%d\nv_add_u32 v%d, %d, v%d" % (u0, u0, FAV, LY.FA, u0))
            self.c_min = len(a.lines)
            a.I("s_lshr_b32 %s, s2, 3\ns_lshl_b32 %s, %s, 2\ns_add_u32 %s, %s, %s\ns_lshl_b32 %s, %s, 7" % (sCPO, sCPO, sCPO, sCPO, sCPO, sW, sCPO, sCPO))
            lin(sHST, sGB, [(sW, 114688), (sJ, 7168)])
            lin(sSLD, sGB, [(sW, 2048)])
            lin(sOL, sXST, [(sC, -4096)])
            a.I(BIT + " %s, 0\ns_cselect_b32 %s, 1, -1\ns_cselect_b32 %s, 0, 6144\ns_lshl_b32 %s, %s, 10\ns_add_u32 %s, %s, %s" % (sJ, sHSTEP, sT0, sHSTEP, sHSTEP, sHST, sHST, sT0))
            a.I("s_lshr_b32 %s, %s, 1\ns_lshl_b32 %s, %s, 1\ns_add_u32 %s, %s, %s\ns_lshl_b32 s66, 0x11111111, %s\ns_mov_b32 s67, s66" % (sT0, sW, sT1, sR, sT0, sT0, sT1, sT0))
            lin(sHLD[3], sGB, [(sR, 229376), (sW, 28672)])
            for i in range(4):
                a.I("s_add_u32 %s, %s, %d\ns_and_b32 %s, %s, 3\ns_lshr_b32 %s, %s, 1\ns_and_b32 %s, %s, 1" % (sTA, sW, i + 1, sTA, sTA, sT0, sTA, sT1, sTA))
                lin(sHLD[i], sHLD[3], [(sT0, 114688), (sT1, 256)])
                if i < 3: lin(sXW[i], str(i * 4096), [(sTA, 12288)])
            lin(sXR, "0", [(sW, 12288)])
            lin(sWQ, str(LY.WQ), [(sJ, LY.WQ_STRIDE * (1 - OPT["hitw"]))])
            lin(sWG, str(LY.WG), [(sJ, LY.WG_STRIDE * (1 - OPT["hitw"]))])
            lin(sWO, str(LY.WO), [(sC, LY.WO_STRIDE * (1 - OPT["hitw"])), (sW, 4096)])
            lin(sWD, str(LY.WD), [(sC, LY.WD_STRIDE * (1 - OPT["hitw"])), (sW, 57344)])
            lin(sTAB, str(L_TAB), [(sW, 512)])
            a.I("s_lshl_b32 %s, %s, 10" % (sLW, sW))
            a.I("s_add_u32 %s, %s, %s\ns_add_u32 %s, %s, %s" % (sWQ4, sWQ, sLW4, sWG4, sWG, sLW4))
            a.I("s_cmp_eq_u32 %s, 0\ns_cselect_b32 %s, 0x%x, %s\ns_cselect_b64 s[54:55], 0, -1" % (sN, sHALO, OOB, sGB))
            a.I("s_add_u32 %s, %s, %s\ns_add_u32 %s, %s, %s\ns_add_u32 %s, %s, %s" % (sHALO2, sHALO, sLW2, sWQ, sWQ, sLW, sWG, sWG, sLW2))
            a.I("v_add_u32 v%d, 0x10000, v%d\nv_add_u32 v%d, 0x20000, v%d" % (vL16b, vL16, vL16c, vL16))
            if OPT["t_pos"] != -2 and not OPT["sib"]: touch_list()
            a.I("v_lshlrev_b32 v%d, 7, v%d\nv_lshl_add_u32 v%d, v%d, 5, v%d\nv_lshl_add_u32 v%d, v%d, 1, v%d\nv_lshlrev_b32 v%d, 3, v0" % (u0, rr, u0, g, u0, u0, cc, u0, u1))
            a.I("s_cmp_ge_u32 %s, 2\ns_cselect_b64 vcc, -1, 0\ns_cselect_b32 %s, 2, 8\nv_cndmask_b32 v%d, v%d, v%d, vcc" % (sW, sT1, u1, u0, u1))
            a.I("s_lshr_b32 %s, %s, 1\ns_add_u32 %s, %s, %d\nv_add_u32 v%d, %s, v%d" % (sT0, sLW, sT0, sT0, L_KV, u1, sT0, u1)); put(aHWR)
            a.I("v_mov_b32 v%d, %s" % (u1, sT1)); put(aHWS)
            a.I("s_mul_i32 %s, %s, 7\ns_add_u32 %s, %s, 6\ns_lshr_b32 %s, %s, 2\ns_lshr_b32 %s, %s, 2" % (sT0, sJ, sT1, sT0, sT0, sT0, sT1, sT1))
            a.I("v_add_u32 v%d, %s, v%d\nv_min_u32 v%d, %s, v%d\ns_mul_i32 %s, %s, 28\nv_add_u32 v%d, %s, v%d" % (u0, sT0, kc, u0, sT1, u0, sT0, sW, u0, sT0, u0))
            a.I("s_add_u32 %s, %s, 112\nv_cmp_gt_u32 vcc, 24, v0\nv_mov_b32 v%d, %s\nv_cndmask_b32 v%d, v%d, v%d, vcc" % (sT0, sJ, u1, sT0, u0, u1, u0))
            a.I("s_mul_i32 %s, %s, 7\ns_lshr_b32 %s, %s, 1\nv_and_b32 v%d, 3, v%d\nv_add_u32 v%d, %s, v%d\nv_lshl_add_u32 v%d, v%d, 3, %s" % (sT0, sW, sT0, sT0, u1, kc, u1, sT0, u1, u1, u1, sC))
            a.I("v_cmp_gt_u32 vcc, 32, v0\nv_cndmask_b32 v%d, v%d, v%d, vcc" % (u0, u1, u0))
            a.I("v_lshlrev_b32 v%d, 7, v%d\nv_add_u32 v%d, %d, v%d" % (u0, u0, u1, LY.FA + 128 * 128, u0)); put(aFB)
            a.I("s_getpc_b64 %s\nL_pc2:\ns_sub_u32 s4, s4, L_pc2-L_pc\ns_subb_u32 s5, s5, 0" % sPC)
            NG, Z, M0_, M1_ = rr, cc, q16, hh
            a.I("s_or_b32 %s, %s, %s\ns_cmp_eq_u32 %s, 0\ns_cselect_b64 s[56:57], -1, 0" % (sT0, sN, sW, sT0))
            a.I("v_mov_b32 v%d, %s\nv_mov_b32 v%d, 0\nv_lshlrev_b32 v%d, 2, v%d\nv_sub_u32 v%d, v%d, v%d" % (NG, NEG, Z, vA, g, vA, tok, vA))
            for r in range(4):
                a.I("v_subrev_u32 v%d, %d, v%d\nv_mov_b32 v%d, %s" % (u0, r, vA, M0_, "0xffff0000" if r & 1 else "0xffff"))
                a.I("v_cmp_gt_u32 vcc, 8, v%d\nv_cmp_gt_i32 s[58:59], -8, v%d\nv_cmp_le_i32 s[60:61], 0, v%d" % (u0, u0, u0))
                a.I("v_cndmask_b32 v%d, v%d, v%d, vcc" % (u1, NG, Z)); put(aBC + r)
                a.I("v_cndmask_b32 v%d, v%d, v%d, s[58:59]" % (u1, NG, Z)); put(aBP + r)
                a.I("v_cndmask_b32 v%d, v%d, v%d, s[56:57]" % (u1, u1, NG)); put(aBP0 + r)
                if r & 1:
                    a.I("v_cndmask_b32 v%d, v%d, v%d, s[60:61]\nv_or_b32 v%d, v%d, v%d" % (u1, Z, M0_, u1, u1, M1_)); put(aMC + r // 2)
                else:
                    a.I("v_cndmask_b32 v%d, v%d, v%d, s[60:61]" % (M1_, Z, M0_))
        n1, n2, n3 = OPT["xd1"], 32 - OPT["fa_ld"], 32 - OPT["fa_ck"]
        assert n1 <= 28
        a.I(carry(xd[:n1], consts1, OPT["xd_gap"], 99))
        flags()
        rest = carry(xd[n1:n2], consts2, OPT["xd_per"], OPT["xd_lag"])
        self.stamp("p")
        l_fa, g_fa = self.late_check("buffer_load_dword v%d, v%d, %s, 0 offen sc1" % (PB, FAV, WS), PB, "exec", "fa2")
        l_x, g_x = self.check_ops(0, sMA, PA, "x2")
        if OPT["h_def"] & 1:
            assert "s[58:59]" not in rest or "v_cmp_gt_i32 s[58:59]" in rest.split("s[58:59]")[0] + "s[58:59]"
            self.halo_flag()
        a.run_all(l_x + l_fa)
        a.I(carry(xd[n2:n3], lambda: a.I(rest), OPT["xd_per"], OPT["xd_lag"]) if n3 > n2 else rest)
        if OPT["t_pos"] == -1: a.run_all(self.flat(self.touch(aTO, "0", 0, 20)))
        if OPT["sib"] == 2: sibling()
        while len(swaps) > 1 and swaps[0][1][1] < max(3, min(OPT["x_pre"], n3 // 4)):
            a.run_all(swaps[:5]); swaps = swaps[5:]
        a.run_all(g_fa + g_x)
        a.ds_drain()
        self.stamp("p")
        self.x_rest, self.x_reads = xd[n3:], swaps

    def qkv(self, ps):
        a = self.a
        xi = 2 * ps
        late = self.wq_late(ps)
        lateb = ps == 0 and "b" not in OPT["order"] and not OPT["lead"]
        bst = []
        wql = [g for ch in late for g in self.wq_chunk(ch)]
        split = ps == 0 and OPT["q0_split"]
        HX, HW, HW2, HF, NM, RL, CQ, RR = 16, 17, 18, 19, 20, 26, 28, ACC + 52
        def setup():
            a.I(self.getc(HX, aHX))
            a.I("s_add_u32 %s, %s, 2048\nv_add_u32 v%d, %s, v%d\nv_add_u32 v%d, 0xc000, v%d\nv_and_b32 v%d, 0x380, v%d" % (sT2, sLW, HW, sT2, vL16, HW2, HW, CQ, vL16))
            if EB:
                self.early_barrier()
                for f in range(6): a.ds("ds_read_b128 %s, %s" % (vr(F + 4 * f, 4), ldsaddr(f * 1024)), ("f", 0, f))
        EB = ps == 1 and OPT["eb"] & 2
        if ps == 0 and OPT["xdir"]:
            a.forget(("fb", "xd"))
            if not OPT["lead"]: setup()
        else:
            self.poll(6 * ps, sMA, self.fav if ps == 0 and not split else None, setup)
        self.stamp()
        xl = self.reg_loads([vr(X + 8 * s + 4 * b, 4) for s in range(16) for b in range(2)], [sXLD] * 32,
                            [LY.XB[xi] + s * 2048 + b * 256 for s in range(16) for b in range(2)], sTA, vQ, "x")
        UP = OPT["q_up"] if ps else OPT["q0_up"]
        xdir = ps == 0 and OPT["xdir"]
        if xdir: xl = []
        if ps == 0:
            late = late[1:]
            n = 4 + OPT["q0_w"]
            first = wql[:4] + xl[:UP] + wql[4:n]
            if split:
                l_fa, g_fa = self.late_check("buffer_load_dword v%d, v%d, %s, 0 offen sc1" % (HF, self.fav, WS), HF, "exec", "fa")
                n1 = OPT["q0_n1"]
                first = xl[:n1] + [l_fa] + xl[n1:UP] + [g_fa + [("i", "s_barrier")]] + wql[:n]
            else:
                first = xl[:2] + [[("i", "s_barrier")]] + wql[:4] + xl[2:UP] + wql[4:n] + (self.halo0 if xdir and not OPT["lead"] else [])
                if OPT["lead"]:
                    assert n <= 12
                    k = 1 + OPT["q0_x"]
                    first[k:k] = [g + [("call", lambda: a.state.pop("m0", None))] for g in self.x_rest]
            wql = wql[n:]
            if OPT["b_pos"] >= 2:
                k = OPT["b_pos"] - 2
                a.run_all(self.flat(first[:k])); first = first[k:]
                self.b_loads(); a.state.pop("m0", None)
            inb = xdir and OPT["inb"]
            if inb:
                bpre, brd, bst2 = self.second_ops()
                if OPT["inb_at"]:
                    k = OPT["inb_at"] + 1
                    a.run_all(self.flat(first[:k])); first = first[k:]
                    self.b_loads(); a.state.pop("m0", None)
                a.I(bpre)
            elif lateb:
                k = len(first) - OPT["q0_b"]
                a.run_all(self.flat(first[:k])); first = first[k:]
                if OPT["b_pos"] >= 2 or xdir: a.vm_wait(("fb", 24576))
                a.I("s_barrier")
                bst = self.second_unit()
            a.run_all(self.flat(first))
        else:
            a.run_all(self.flat(xl[:UP]))
            if OPT["h_def"] & 2: self.halo_flag()
            if OPT["h_late"]: hflag = self.halo_late(1)
        if ps == 0:
            if OPT["lead"]:
                a.run_all(self.x_reads); setup()
            a.vm_wait(("wq", 0))
            if inb and OPT["inb_ch"] == 0: a.vm_wait(("fb", 24576))
        if not EB: a.I("s_barrier")
        sl = Slots()
        sl.mpatience, sl.patience = OPT["q_mp%d" % ps], OPT["q_vp"]
        use = {}
        acc = lambda blk, b: vr(ACC + 8 * blk + 4 * b, 4)
        hbuf = lambda t: (F + 24, X)[t % 2]
        HR = OPT["hreg"]
        hwreg = (lambda t: X + 32 + 4 * t) if HR else hbuf
        T0 = X if HR else X + 34
        step0 = {}
        H0 = OPT["xd_h0"] if xdir else OPT["q_h0"]
        hpos = {}
        for t in range(16):
            p = (t * 6 * (16 - H0)) // 16 + 1
            hpos.setdefault((H0 + p // 6, p % 6), []).append(t)
        Y, Z = X + 8, X + 96
        BC, BP, BP0, MC, ONES, KW, CSA = Y, Y + 4, Y + 8, Y + 12, Y + 14, Y + 16, Y + 21
        def halo_mfma(t):
            d = acc(6, 0)
            if t < 16:
                i = sl.add("v_mfma_f32_16x16x32_bf16 %s, %s, %s, %s" % (d, vr(hbuf(t) + 4, 4), vr(hwreg(t), 4), "0" if t == 0 else d), [("wds", ("hw", t)), ("wds", ("hx", t))])
            else:
                i = sl.add("v_mfma_f32_16x16x16_bf16 %s, %s, %s, %s" % (d, vr(NM + 4, 2), vr(hbuf(t), 2), d), [("wds", ("hw", t))])
            use[("h", t)] = i
        for s in range(17):
            step0[s] = sl.n()
            if s == 16: halo_mfma(16)
            for f in range(6):
                for b in range(2):
                    pre_ = []
                    if b == 0: pre_.append(("wds", ("f", s, f // OPT["q_grp"] * OPT["q_grp"] + OPT["q_grp"] - 1)))
                    if f == 0 and s < 16 and not xdir: pre_.append(("wvm", ("x", 2 * s + (b if s == 0 else 1))))
                    w = vr(F + 4 * f, 4 if s < 16 else 2)
                    x = vr(X + 8 * s + 4 * b, 4) if s < 16 else vr(NM + 2 * b, 2)
                    A, B = (w, x) if f < 4 else (x, w)
                    d = acc(f, b)
                    mn = "v_mfma_f32_16x16x32_bf16" if s < 16 else "v_mfma_f32_16x16x16_bf16"
                    use[(s, f)] = sl.add("%s %s, %s, %s, %s" % (mn, d, A, B, "0" if s == 0 else d), pre_)
                for t in hpos.get((s, f), ()): halo_mfma(t)
        reads = []
        for s in range(17):
            for f in range(6):
                d = F + 4 * f
                if s < 16: t = "ds_read_b128 %s, %s" % (vr(d, 4), ldsaddr(s * 6144 + f * 1024))
                else: t = "ds_read2st64_b32 %s, v%d offset0:%d offset1:%d" % (vr(d, 2), CSA, 2 * f, 2 * f + 1)
                reads.append((use[(s - 1, f)] if s else -1, (6 * s + f) // 16, ("ds", t, ("f", s, f))))
        hbar = step0[H0 - 1] + 4
        for t in range(17):
            pos = use[("h", t - 2)] if t >= 2 else hbar + 2 + 2 * t
            if t < 16:
                reads.append((use[(max(5 + t // 2, t - 1), 1 + 3 * (t % 2))] if HR else pos, (6 * t + 5) // 16, ("ds", "ds_read_b128 %s, v%d offset:%d" % (vr(hwreg(t), 4), HW if t < 8 else HW2, (t % 8) * 6144), ("hw", t))))
                reads.append((pos + (1 if t >= 2 and not HR else 0), 0, ("ds", "ds_read_b128 %s, v%d offset:%d" % ((vr(hbuf(t) + 4, 4),) + ((T0 + t % 2, t // 2 * 1024) if xdir else (HX, t * 512))), ("hx", t))))
            else:
                reads.append((pos, 6, ("ds", "ds_read2st64_b32 %s, v%d offset0:4 offset1:5" % (vr(hbuf(t), 2), CSA + 1), ("hw", t))))
        sl.put("c", step0[4], [("i", "v_add_u32 v%d, 98304, v%d\ns_lshr_b32 %s, %s, 1\nv_add_u32 v%d, %s, v%d" % (CSA, vFL, sT2, sLW, CSA + 1, sT2, CSA)), ("mark", "csaddr")])
        sl.after(step0[14], ("need", "csaddr"))
        sl.pre[step0[16]].append(("wds", ("nm", 2)))
        chbar = {}
        for ch in late:
            ops = [("wvm", ("wq", ch)), ("i", "s_barrier")]
            p = chbar[ch] = min(p for p, c, _ in reads if c == ch)
            if ps == 0 and inb and ch == OPT["inb_ch"]: ops.insert(0, ("wvm", ("fb", 24576)))
            if lateb and ch == OPT["q0_fbch"]:
                ops.insert(0, ("wvm", "fbs"))
                assert p >= step0[5]
                sl.put("f", p + 1, [("i", "v_mov_b32 v%d, %s\n%s" % (X + 32, sNONCE, self.getc(X + 33, aLINE))),
                                    ("vm", "buffer_store_dword v%d, v%d, %s, %s offen sc1" % (X + 32, X + 33, WS, sFBO))])
            if xdir and ch == 5: ops.insert(0, ("wvm", ("wq", 6)))
            if xdir and ch == 3:
                assert p <= hbar
                ops.insert(0, ("wvm", "halo"))
            if xdir and ch == 6: del chbar[6]
            else: sl.after(p, *ops)
        if not xdir: sl.after(hbar, ("wvm", "halo"), ("i", "s_barrier"))
        if ps == 0 and inb:
            p = chbar.get(OPT["inb_ch"], -1) + 1
            sl.put("b", p, brd)
            for n_, g in enumerate(bst2): sl.put("b", p + OPT["inb_wait"] + n_ * OPT["inb_gap"], g)
            bfree = chbar[OPT["q0_fbch"]] + 2
        if xdir:
            assert H0 >= 7 and not OPT["diagpad"]
            sl.put("g", step0[5], [("i", self.getc(T0, aSH) + "\nv_xor_b32 v%d, 64, v%d" % (T0 + 1, T0)), ("mark", "hx0")])
            sl.after(hbar, ("need", "hx0"))
        for pos, _, rd in reads:
            if pos < 0:
                if not EB: a.run(rd)
            else: sl.after(pos, rd)
        l_hf, g_chk = self.late_check("buffer_load_dword v%d, v%d, %s, %s offen sc1" % (HF, CQ, WS, sT1), HF, sMH, "hf")
        g_hf = [("i", "s_add_u32 %s, %s, %d" % (sT1, sHFL, ps * 16384))] + l_hf
        g_hd = self.dma_chunk(sHALO2, LY.HX[ps], L_HALO, 2, "halo", " sc1")
        g_hs = [("i", "s_add_u32 %s, %s, %d" % (sT1, sHALO, LY.HX[ps] + 8192 - L_HALO)),
                ("vm", "buffer_load_dwordx4 %s, v%d, %s, %s offen sc1" % (vr(RR + 8, 4), HX, WS, sT1), "st")]
        g_s0 = [("i", "s_add_u32 %s, %s, %d" % (sT0, sSLD, LY.SB[xi])), ("vm", "buffer_load_dwordx4 %s, v%d, %s, %s offen sc1" % (vr(RR, 4), vL16, WS, sT0))]
        g_s1 = [("vm", "buffer_load_dwordx4 %s, v%d, %s, %s offen offset:1024 sc1" % (vr(RR + 4, 4), vL16, WS, sT0))]
        wgq = []
        if HR:
            assert OPT["lead"]
            wbar = min(p for p in ([] if xdir else [hbar]) + list(chbar.values()) if p >= step0[8])
            sl.post[wbar].insert(0, ("wds", ("hw", 5)))
            if ps and self.digits("wg_q1"):
                w2 = step0[max(11, OPT["q_wbar"])]
                while sl.post[w2]: w2 += 1
                sl.after(w2, ("wds", ("hw", 10)), ("i", "s_barrier"))
                assert set(self.digits("wg_q1")) <= {0, 1}
                wgq = [(w2 + 2, g) for g in self.wgs("q", ps)]
        else:
            wbar = max(use[("h", 6)] + 2, step0[OPT["xd_wbar" if xdir else "q_wbar"]])
            while sl.post[wbar]: wbar += 1
            sl.after(wbar, ("i", "s_barrier"))
        wo = [((bfree if ps == 0 and inb else 0) if i < 2 else wbar + 2, g) for i in range(4) for g in self.wo_chunk(i) if not (ps and OPT["skipo"] and WO_SLOT[i] in self.digits("keepo"))]
        rest = xl[UP:]
        h1 = OPT["q_hf"] if ps else OPT["q0_hf"]
        h2 = h1 + OPT["q_chk"] - 2
        seq = rest[:h1] + [g_hf, g_s0, g_s1] + rest[h1:h2] + [g_chk] + g_hd + [g_hs] + rest[h2:]
        if ps and OPT["h_late"]: seq.insert(OPT["h_late"], hflag)
        if xdir:
            k1, k2 = OPT["xd_h1"], OPT["xd_h1"] + OPT["xd_h2"]
            seq = wql[:k1] + [g_hf, g_s0, g_s1] + (self.halo0 if OPT["lead"] else []) + wql[k1:k2] + [g_chk, g_hs] + wql[k2:]
        elif wql:
            due, d = [], sl.n()
            for g in reversed(seq):
                tag = g[-1][2] if len(g[-1]) > 2 else None
                if isinstance(tag, tuple) and tag[0] == "x": d = step0[tag[1] // 2]
                due.append((d, g))
            due.reverse()
            d, wdue = 0, []
            for g in reversed(wql):
                if g[-1][2] is not None: d = chbar[g[-1][2][1]] - OPT["q0_lead"]
                wdue.append((d, g)); d -= 6
            seq = [g for _, g in sorted(due + wdue[::-1], key=lambda t: t[0])]
        for n_, g in enumerate(bst):
            k = OPT["b_first"] + n_ * (OPT["b_gap"] + 1)
            assert not any(op[0] == "vm" and len(op) > 2 and isinstance(op[2], tuple) and op[2][0] == "x" and op[2][1] >= 24 for g2 in seq[:k] for op in g2)
            seq.insert(k, g)
        if ps == 0:
            tch = self.touch(aTO, "0", 0, T0 + 2) if OPT["t_set"] != "-" and OPT["t_pos"] >= 0 else []
            wo[OPT["t_pos"]:OPT["t_pos"]] = [(step0[OPT["t_step"]], g) for g in tch]
            l_fb, g_fb = self.late_check("%s\nbuffer_load_dword v%d, v%d, %s, 0 offen sc1" % (self.getc(Y + 23, aFB), Y + 23, Y + 23, WS), Y + 23, "exec", "fb")
            l_fb = [("i", l_fb[0][1].split("\n")[0]), ("vm", l_fb[0][1].split("\n")[1], "fb")]
            seq += [g + (OPT["q0_tail"] / 10,) for g in wo]
            if OPT["fb_at"] == "att":
                sl.put("f", step0[OPT["q0_fbs"]], l_fb)
                if OPT["wd_q"]:
                    p = step0[OPT["q0_fbs"] + OPT["q0_fbl"]]
                    sl.put("f", p, [("need", "hchk")] + g_fb); g_fb = []
                    g_chk.append(("mark", "hchk"))
                    assert not sl.pace(self.wds("q", ps), p + 2, (sl.n() - p - 4 - OPT["wd_e"]) / OPT["wd_q"], name="f")
            else:
                assert not (self.digits("wg_att0") or self.digits("wg_h10") or OPT["wd_att"] or OPT["wd_h1"])
                self.cold.pop(); g_fb = []
        else:
            seq += wo + wgq
        if OPT["cpf"] & 8: sl.put("g", step0[OPT["cp_q"]], self.flat(self.code_touch("L_qkv%d" % ps, CQ + 1)))
        sl.put("g", step0[12], self.flat(self.code_touch("L_wo%d" % ps, CQ + 1)))
        left = sl.pace(seq, 0, (OPT["q_every"] if ps else OPT["q0_every"]) / 10)
        A0, A1, AH = RR, RR + 4, RR + 8
        st = [[("wvm", "st")]]
        for r_ in (A0, A1, AH):
            st.append([("i", "v_add_f32 v%d, v%d, v%d" % (r_, r_, r_ + 2))])
            st.append([("i", "v_add_f32 v%d, v%d, v%d" % (r_ + 1, r_ + 1, r_ + 3))])
        for o in (0, 1): st.append([("i", "v_mov_b32 v%d, v%d" % (AH + 2 + o, AH + o))])
        for o in (0, 1): st.append([("i", "v_permlane32_swap_b32 v%d, v%d" % (A0 + o, A1 + o))])
        for o in (0, 1): st.append([("i", "v_permlane32_swap_b32 v%d, v%d" % (AH + o, AH + 2 + o))])
        for o in (0, 1): st.append([("i", "v_add_f32 v%d, v%d, v%d" % (A0 + o, A0 + o, A1 + o))])
        for o in (0, 1): st.append([("i", "v_add_f32 v%d, v%d, v%d" % (AH + o, AH + o, AH + 2 + o))])
        for o in (0, 1): st.append([("i", "v_permlane16_swap_b32 v%d, v%d" % (A0 + o, AH + o))])
        for o in (0, 1): st.append([("i", "v_add_f32 v%d, v%d, v%d" % (A0 + o, A0 + o, AH + o))])
        st += [[op] for op in self.ln_from_sums(A0, A0 + 1, A0 + 2)]
        st.append([("i", "v_cvt_pk_bf16_f32 v%d, -v%d, -v%d" % (A0, A0, A0))])
        st.append([("i", "v_add_u32 v%d, %s, v%d" % (HF, sTAB, vFL))])
        st.append(([("need", "bdone")] if ps == 0 and inb else []) + [("i", "v_and_or_b32 v30, v%d, 63, %s" % (vFL, sTAB))])
        st.append([("i", "v_and_or_b32 v31, v0, 48, %s" % sTAB)])
        st.append([("ds", "ds_write2st64_b32 v%d, v%d, v%d offset0:0 offset1:1" % (HF, A0 + 1, A0))])
        row = {0: 0, 1: 2, 2: 1}
        for b in range(3):
            o = 64 + row[b] * 16
            st.append([("ds", "ds_read2_b32 %s, v30 offset0:%d offset1:%d" % (vr(NM + 2 * b, 2), o, o), ("nm", b))])
        st.append([("ds", "ds_read2_b32 %s, v30 offset0:0 offset1:32" % vr(RL, 2))])
        for b in range(3):
            st.append([("ds", "ds_read_b128 %s, v31 offset:%d" % (vr(RR + 4 * b, 4), row[b] * 64), ("tab", b))])
        sl.spread(st, step0[OPT["xd_st"]] if xdir else step0[H0] - OPT["q_st"], step0[14])
        cst = [[("i", self.getc(Y + k, aBC + k))] for k in range(14)]
        cst += [[("i", "v_mov_b32 v%d, %s" % (ONES + k, sONE))] for k in range(2)]
        cst += [[("i", self.getc(KW, aHWR))], [("i", self.getc(KW + 3, aHWS))], [("i", "s_add_u32 %s, %s, %d" % (sT2, sLW2, L_KV))],
                [("i", "v_add_u32 v%d, v%d, v%d" % (KW + 1, KW, KW + 3))], [("i", "v_lshl_add_u32 v%d, v0, 3, %s" % (KW + 4, sT2))],
                [("i", "v_add_u32 v%d, v%d, v%d" % (KW + 2, KW + 1, KW + 3))], [("i", "v_add_u32 v%d, v%d, v%d" % (KW + 3, KW + 2, KW + 3))]]
        sl.spread(cst, step0[4] + 2, step0[8], "c")
        Qp = lambda b, h: Z + 4 * h + 2 * b
        Kp = lambda b, h: Z + 8 + 6 * h + 2 * (b + 1)
        Vp = lambda b, h: Z + 20 + 6 * h + 2 * (b + 1)
        HP, HA = HX, ACC + 48
        ar_ = lambda blk, b: ACC + 8 * blk + 4 * b
        cvt = lambda d, s_: "v_cvt_pk_bf16_f32 v%d, v%d, v%d" % (d, s_, s_ + 1)
        tl = [("wds", ("tab", 2)), ("i", "v_mul_f32 v%d, 0x3eb8aa3b, v%d\nv_mul_f32 v%d, 0x3eb8aa3b, v%d" % (CQ, RL, CQ + 1, RL + 1))]
        tl += [("i", "v_mul_f32 v%d, v%d, v%d" % (HA + r, HA + r, RR + 8 + r)) for r in range(4)]
        tl += [("i", cvt(HP, HA)), ("i", cvt(HP + 1, HA + 2))]
        hw = [("ds", "ds_write_b16%s v%d, v%d" % ("_d16_hi" if r & 1 else "", KW + r, HP + r // 2)) for r in range(4)]
        qs = [(h, b) for h in range(2) for b in range(2)]
        sl.put("v", step0[16], tl)
        for n_, (h, b) in enumerate(qs):
            sl.put("v", use[(16, h)], [hw[n_], ("i", cvt(Qp(b, h), ar_(h, b))), ("i", cvt(Qp(b, h) + 1, ar_(h, b) + 2))])
        self.lite(sl, "q", [step0[s] for s in (0, 2, 4, 6, 8, 10, 12, 14)])
        self.report("qkv%d" % ps, sl.emit(a))
        self.stamp()
        body = []
        e = lambda t: body.extend(("i", x) for x in t.split("\n"))
        def pack(dst, src): e(cvt(dst, src) + "\n" + cvt(dst + 1, src + 2))
        def scale_l(src, b):
            for k in range(2): e("v_pk_mul_f32 %s, %s, %s op_sel:[0,%d] op_sel_hi:[1,%d]" % (vr(src + 2 * k, 2), vr(src + 2 * k, 2), vr(RL, 2), b, b))
        def scale_r(src, r0):
            for k in range(2): e("v_pk_mul_f32 %s, %s, %s" % (vr(src + 2 * k, 2), vr(src + 2 * k, 2), vr(r0 + 2 * k, 2)))
        kvw = lambda src, part: body.append(("ds", "ds_write_b64 v%d, %s offset:%d" % (KW + 4, vr(src, 2), 2048 + 512 * part)))
        for h in range(2):
            scale_l(ar_(2 + h, 1), 1); pack(Kp(1, h), ar_(2 + h, 1)); kvw(Kp(1, h), h); scale_l(ar_(2 + h, 0), 0)
        for h in range(2):
            scale_r(ar_(4 + h, 1), RR + 4); pack(Vp(1, h), ar_(4 + h, 1)); kvw(Vp(1, h), 2 + h); scale_r(ar_(4 + h, 0), RR)
        units = [(1, 0), (1, 1), (0, 0), (0, 1)]
        SC = lambda u: F + 8 * u
        SP = lambda u: F + 8 * u + 4
        smf = lambda d, kb, u, bias: "v_mfma_f32_16x16x16_bf16 %s, %s, %s, %s" % (vr(d, 4), vr(Kp(kb, units[u][1]), 2), vr(Qp(*units[u]), 2), vr(bias, 4))
        M = [ACC + u for u in range(4)]
        def merge(u):
            return ["v_max_f32 v%d, v%d, v%d" % (SC(u) + r, SC(u) + r, SP(u) + r) for r in range(4)] + [
                "v_max3_f32 v%d, v%d, v%d, v%d" % (M[u], SC(u), SC(u) + 1, SC(u) + 2), "v_max_f32 v%d, v%d, v%d" % (M[u], M[u], SC(u) + 3)]
        e(smf(SC(0), 1, 0, BC)); pack(Kp(0, 0), ar_(2, 0))
        e(smf(SC(1), 1, 1, BC)); pack(Kp(0, 1), ar_(3, 0))
        e(smf(SP(0), 0, 0, BP))
        if ps == 0: body.extend(g_fb)
        body.extend(("wvm", ("wo", i)) for i in range(2) if not (ps and OPT["skipo"] and WO_SLOT[i] in self.digits("keepo")))
        body.append(("dsdrain",)); e("s_barrier")
        nbar = len(body)
        rdkv = lambda dst, part, tag: body.append(("ds", "ds_read_b64 %s, v%d offset:%d" % (vr(dst, 2), KW + 4, 512 * part), tag))
        e(smf(SP(1), 0, 1, BP)); rdkv(Kp(-1, 0), 0, ("kp", 0)); rdkv(Kp(-1, 1), 1, ("kp", 1))
        e(smf(SC(2), 0, 2, BC)); rdkv(Vp(-1, 0), 2, ("vp", 0)); rdkv(Vp(-1, 1), 3, ("vp", 1))
        e(smf(SC(3), 0, 3, BC)); pack(Vp(0, 0), ar_(4, 0)); pack(Vp(0, 1), ar_(5, 0))
        m0, m1 = merge(0), merge(1)
        e("\n".join(m0))
        body.append(("wds", ("kp", 1)))
        e(smf(SP(2), -1, 2, BP0)); e("\n".join(m1[:2]))
        e(smf(SP(3), -1, 3, BP0)); e("\n".join(m1[2:]))
        e("s_add_u32 %s, %s, %d" % (sT0, sOST, LY.OB[ps]))
        e("\n".join(merge(2)[:2]))
        e("v_permlane32_swap_b32 v%d, v%d" % (M[0], M[1]))
        e("\n".join(merge(2)[2:] + merge(3)))
        e("v_max_f32 v%d, v%d, v%d" % (M[0], M[0], M[1]))
        e("v_permlane32_swap_b32 v%d, v%d\nv_max_f32 v%d, v%d, v%d" % (M[2], M[3], M[2], M[2], M[3]))
        e("v_permlane16_swap_b32 v%d, v%d\nv_max_f32 v%d, v%d, v%d\nv_max_f32 v%d, v%d, v%d" % (M[0], M[2], M[1], M[0], M[2], M[2], M[0], M[2]))
        e("v_permlane16_swap_b32 v%d, v%d" % (M[1], M[2]))
        e("v_mul_f32 v%d, v%d, v%d\nv_mul_f32 v%d, v%d, v%d" % (M[0], M[1], CQ + 1, M[1], M[1], CQ + 1))
        e("v_mul_f32 v%d, v%d, v%d\nv_mul_f32 v%d, v%d, v%d" % (M[3], M[2], CQ, M[2], M[2], CQ))
        def shift(u):
            for k in range(2):
                e("v_pk_fma_f32 %s, %s, %s, %s op_sel:[0,%d,%d] op_sel_hi:[1,%d,%d] neg_lo:[0,0,1] neg_hi:[0,0,1]" %
                  (vr(SC(u) + 2 * k, 2), vr(SC(u) + 2 * k, 2), vr(CQ, 2), vr(ACC + 2 * (u // 2), 2), units[u][0], u % 2, units[u][0], u % 2))
        e("v_permlane32_swap_b32 v%d, v%d" % (M[0], M[1])); shift(0)
        e("v_permlane32_swap_b32 v%d, v%d" % (M[2], M[3])); shift(1); shift(2); shift(3)
        PM = lambda u: ACC + 4 + 2 * u
        PS = lambda u: ACC + 12 + 4 * u
        OP = lambda b: ACC + 28 + 4 * b
        pv = lambda u: "v_mfma_f32_16x16x32_bf16 %s, %s, %s, 0" % (vr(SC(u), 4), vr(Vp(units[u][0] - 1, units[u][1]), 4), vr(PS(u), 4))
        for u, (b, h) in enumerate(units):
            for r in range(4):
                e("v_exp_f32 v%d, v%d" % (SC(u) + r, SC(u) + r))
                if r == 1 and u >= 1: e(pv(u - 1))
            if u == 2: body.append(("wds", ("vp", 1)))
            if u >= 2: e("v_rcp_f32 v%d, v%d" % (SP(u - 2), SP(u - 2)))
            pack(PM(u), SC(u))
            for k in range(2):
                e("v_bfi_b32 v%d, v%d, 0, v%d\nv_and_b32 v%d, v%d, v%d" % (PS(u) + k, MC + k, PM(u) + k, PS(u) + 2 + k, MC + k, PM(u) + k))
            e("v_mfma_f32_16x16x16_bf16 %s, %s, %s, 0" % (vr(SP(u), 4), vr(ONES, 2), vr(PM(u), 2)))
        e("v_rcp_f32 v%d, v%d" % (SP(2), SP(2)))
        e(pv(3))
        def fin(u, packed):
            b, h = units[u]
            if packed:
                for k in range(2): e("v_pk_mul_f32 %s, %s, %s op_sel_hi:[1,0]" % (vr(SC(u) + 2 * k, 2), vr(SC(u) + 2 * k, 2), vr(SP(u), 2)))
            else:
                for r in range(4): e("v_mul_f32 v%d, v%d, v%d" % (SC(u) + r, SC(u) + r, SP(u)))
            pack(OP(b) + 2 * h, SC(u))
            if h == 1:
                body.append(("vm", "buffer_store_dwordx4 %s, v%d, %s, %s offen offset:%d%s" % (vr(OP(b), 4), vQ, WS, sT0, b * 256, " sc1" if ps == 0 and "o" not in OPT["t_set"] else ""), "o" if b == 0 else None))
        fin(0, False); fin(1, True)
        e("v_rcp_f32 v%d, v%d" % (SP(3), SP(3)))
        fin(2, True); fin(3, True)
        left = self.weave(body[:nbar], left, 0, OPT["a_every"])
        stop = len(body) - OPT["a_quiet"]
        left = self.weave(body[nbar:stop], left + self.wgs("att", ps) + self.wds("att", ps), 4, OPT["a_every"])
        a.run_all(body[stop:])
        print("  attention: %d groups left for the hand-off" % len(left))
        self.stamp()
        self.wo_pre(0, OPT["w_pre"])
        self.signal(6 * ps + 1, "o")
        a.run_all(self.flat(left + self.wgs("h1", ps) + self.wds("h1", ps)))
        self.stamp()

    def early_barrier(self):
        a = self.a
        n = [k for k, t in enumerate(l for l in reversed(a.lines) if l.startswith(("buffer_load", "buffer_store", "global_load"))) if t.endswith(" lds")][0]
        a.vm_wait_n(a.vm_n - n)
        a.ds_drain()
        a.I("s_barrier")

    def wds(self, where, ps):
        if ps: return []
        if self.wd is None:
            ks = [4 * s + cb for s in DN_ORD for cb in range(4)]
            self.wd = self.reg_loads([ar(4 * k, 4) for k in ks], [sWD] * 56, [k * 1024 for k in ks], sTD, vL16, "wd")
        n = OPT.get("wd_" + where, 56)
        out, self.wd = self.wd[:n], self.wd[n:]
        return out

    WREG = [X + 4 * k for k in range(16)] + [ACC + 16 + 4 * k for k in range(12)] + [F + 4 * k for k in range(8)]
    def wo_read(self, k):
        return ("ds", "ds_read_b128 %s, %s" % (vr(self.WREG[k % 36], 4), ldsaddr(WO_SLOT[k // 16] * 16384 + (k % 16) * 1024)), ("w", k))
    def wo_pre(self, k0, k1):
        for k in range(k0, k1): self.a.run(self.wo_read(k))

    def pair_swap(self, dst, src):
        a = self.a
        dpp = "quad_perm:[1,0,3,2] row_mask:0xf bank_mask:0xf"
        a.I("s_mov_b32 vcc_lo, 0x55555555\ns_mov_b32 vcc_hi, 0x55555555")
        for d in range(4): a.I("v_cndmask_b32_dpp v%d, v%d, v%d, vcc %s" % (dst + d, src + 4 + d, src + d, dpp))
        a.I("s_not_b64 vcc, vcc")
        for d in range(4): a.I("v_cndmask_b32_dpp v%d, v%d, v%d, vcc %s" % (dst + 4 + d, src + d, src + 4 + d, dpp))

    def finish(self, A, xo, h, pf, n, halo_pass):
        a = self.a
        for k in range(8): a.I("v_cvt_pk_bf16_f32 v%d, v%d, v%d" % (XRES + k, A + 2 * k, A + 2 * k + 1))
        if xo == 4:
            a.I(self.getc(16, aROW))
            self.pair_swap(F, XRES)
            for e_ in range(2): a.vm("buffer_store_dwordx4 %s, v16, %s, 0 offen offset:%d %s" % (vr(F + 4 * e_, 4), OUT, e_ * 2048, OPT["outf"].strip("-")))
            self.stamp()
            return
        self.publish(xo)
        self.stamp()
        a.run_all(self.flat(pf[:n]))
        self.signal(h, "pub", halo_pass, OPT["h_def"] & 2)
        a.run_all(self.flat(pf[n:]))
        self.stamp()

    def wo(self, ps):
        a = self.a
        def setup():
            for k in range(8):
                a.I("v_lshlrev_b32 v%d, 16, v%d\nv_and_b32 v%d, 0xffff0000, v%d" % (ACC + 2 * k, XRES + k, ACC + 2 * k + 1, XRES + k))
            if OPT["eb"] & 4: self.early_barrier()
        keep = dict(a.ds_tag)
        if OPT["stamps"] and ps == 0:
            a.I("s_memtime s[%d:%d]" % (sST, sST + 1)); a.ds_drain(force=True); a.I("v_writelane_b32 v%d, s%d, 60" % (vSTAMP, sST))
        self.poll(6 * ps + 1, sMC, None, setup)
        a.ds_tag.update((t, n) for t, n in keep.items() if t[0] == "w")
        self.stamp()
        areg = lambda s: vr(X + 64 + 4 * s, 4)
        ld = self.reg_loads([areg(s) for s in range(16)], [sOL] * 16, [LY.OB[ps] + s * 2048 for s in range(16)], sTA, vQ, "act")
        UP = OPT["w_up"]
        g_fb = []
        if ps == 0 and OPT["fb_at"] == "wo":
            l_fb, g_fb = self.late_check("buffer_load_dword v17, v16, %s, 0 offen sc1" % WS, 17, "exec", "fb")
            ld[OPT["fb_k"]] = ld[OPT["fb_k"]] + [("i", self.getc(16, aFB))] + l_fb
        rest = [self.wo_read(k) for k in range(OPT["w_pre"], 32)]
        for n_, g in enumerate(ld[:UP]):
            a.run_all(g)
            if n_ >= 3: a.run_all(rest[:3]); rest = rest[3:]
        a.run_all(rest)
        if not OPT["eb"] & 4: a.I("s_barrier")
        self.wo_pre(32, 36)
        sl = Slots()
        for k in range(64):
            s, cb = divmod(k, 4)
            d = vr(ACC + 4 * cb, 4)
            sl.add("v_mfma_f32_16x16x32_bf16 %s, %s, %s, %s" % (d, vr(self.WREG[k % 36], 4), areg(s), d),
                   [("wds", ("w", k))] + ([("wvm", ("act", s))] if cb == 0 else []))
            if cb == 0 and s + UP < 16: sl.put("m", k, ld[s + UP])
            if k + 36 < 64: sl.put("r", k, [self.wo_read(k + 36)])
        pf = self.wgs("wo", ps) + self.wds("wo", ps)
        p0 = 64 - 4 * UP + 2
        if g_fb:
            p0 = max(p0, OPT["fb_s"])
            sl.put("m", p0 - 3, g_fb + [("i", "s_barrier")])
        pf = sl.pace(pf, p0, 4.4, 64 - OPT["w_quiet"])
        self.lite(sl, "wo", [8 * k for k in range(8)])
        self.report("wo%d" % ps, sl.emit(a))
        self.stamp()
        self.finish(ACC, 2 * ps + 1, 6 * ps + 2, pf + self.wgs("h2", ps) + self.wds("h2", ps), 0, None)

    def dn_plan(self, ps):
        no = OPT["d_own"]
        order = [(i, s) for lv in DN_S for i in range(3) for s in lv]
        order[3 * N1:3 * N1] = [(3, s) for s in DN_ORD[:no]]
        order += [(3, s) for s in sorted(DN_ORD[no:])]
        areg = lambda k: vr(X + 48 + 4 * (k % 16), 4)
        ld = self.reg_loads([areg(k) for k in range(56)], [sHLD[i] for i, s in order], [LY.HB[ps] + s * 2048 for i, s in order], sTA, vQ, "act")
        return order, areg, ld

    def dn(self, ps, issued, wd):
        a = self.a
        order, areg, ld = self.dn_plan(ps)
        XW, XR, R, P, U = 16, 19, 20, (ACC, ACC + 16, ACC + 32), ACC + 48
        io = L_SCR_DN - 65536
        UP = OPT["k_up"]
        widx = {s: n_ for n_, s in enumerate(DN_ORD)}
        wd_e = [g for g in wd if g[-1][2][1] < 4 * N1]
        wd_l = [g for g in wd if g[-1][2][1] >= 4 * N1]
        a.run_all(self.flat(ld[issued:UP] + wd_e))
        if ps == 0:
            a.ds_drain()
            a.I("s_barrier")
        sl = Slots()
        accr = lambda i, cb: (X, X + 16, X + 32, X + 112)[i] + 4 * cb
        seen, endb = set(), {}
        for k, (i, s) in enumerate(order):
            for cb in range(4):
                d = vr(accr(i, cb), 4)
                pre = [("wvm", ("act", k))] if cb == 0 else []
                tag = ("wd", 4 * widx[s] + cb)
                if i == 0 and (tag in a.vm_tag or any(g[-1][2] == tag for g in wd_l)): pre.append(("wvm", tag))
                endb[i] = sl.add("v_mfma_f32_16x16x32_bf16 %s, %s, %s, %s" % (d, ar(16 * s + 4 * cb, 4), areg(k), d if (i, cb) in seen else "0"), pre)
                seen.add((i, cb))
        K1, K2 = 3 * N1 + OPT["d_own"], 3 * N2 + OPT["d_own"]
        chk = {K1: self.chk2, K2: self.check_ops(6 * ps + 5, sMB, PA, "hf3")}
        if self.pending: sl.put("f", OPT["d_mid%d" % ps], self.pending)
        sl.put("f", OPT["d_sig%d" % ps], self.signal_ops(6 * ps + 5, "h6", PB))
        extra = list(wd_l)
        k0 = max(UP, issued)
        assert k0 <= K1
        for k in range(k0, 56):
            p = max(4 * (k - min(OPT["d_up2"], k0 + max(0, k - OPT["d_ramp"]) // 3)), int(OPT["d_min"] / 10 * (k - k0)))
            for kc_ in chk:
                if k == max(k0, kc_ - OPT["d_chk" if kc_ == K1 else "d_chk3"]): sl.put("m", max(p, OPT["d_f%d" % ps] if kc_ == K2 else 0), chk[kc_][0])
            if k in chk:
                due = [g for g in extra if g[-1][2][1] < (4 * N2 if k == K1 else 56)]
                sl.put("m", p, self.flat(due)); extra = extra[len(due):]
                sl.put("m", max(p, OPT["d_f%d" % ps] + OPT["d_flat"] if k == K2 and OPT["d_f%d" % ps] else 0), chk[k][1])
            sl.put("m", p, ld[k])
            sl.put("m", p, self.flat(extra[:1])); extra = extra[1:]
        su = [[("i", "v_add_u32 v%d, %s, v%d" % (XW + i, sXW[i], vL16b))] for i in range(3)] + [[("i", "v_add_u32 v%d, %s, v%d" % (XR, sXR, vL16b))]]
        su += [[("i", "s_lshl_b32 %s, %s, 2\ns_add_u32 %s, %s, %s\ns_lshl_b32 %s, %s, 6\ns_add_u32 %s, %s, %d\nv_and_or_b32 v%d, v%d, 63, %s" %
                 (sT0, sR, sT0, sT0, sW, sT0, sT0, sT0, sT0, L_RS, R, vFL, sT0)), ("ds", "ds_read_b32 v%d, v%d" % (R, R))]]
        for k in range(8):
            su += [[("i", "v_lshlrev_b32 v%d, 16, v%d" % (U + 2 * k, XRES + k))], [("i", "v_and_b32 v%d, 0xffff0000, v%d" % (U + 2 * k + 1, XRES + k))]]
        if OPT["g_c2"]: su.insert(3, [("need", "c2")])
        sl.spread(su, 30, 80)
        if ps == 0 and OPT["cpf"] & 4: sl.put("g", OPT["cp_d"], self.flat(self.code_touch("L_qkv1", 24)))
        writes = lambda i: [[("ds", "ds_write_b128 v%d, %s offset:%d" % (XW + i, vr(accr(i, cb), 4), io + cb * 1024))] for cb in range(4)]
        if OPT["d_w64"]:
            writes = lambda i: [[("ds", "ds_write_b64 v%d, %s offset:%d" % (XW + i, vr(accr(i, cb) + 2 * e_, 2), io + cb * 1024 + 8 * e_))] for cb in range(4) for e_ in range(2)]
        reads = lambda i: [[("ds", "ds_read_b128 %s, v%d offset:%d" % (vr(P[i] + 4 * cb, 4), XR, io + i * 4096 + cb * 1024), ("r", i, cb))] for cb in range(4)]
        add = lambda d, s_: [[("i", "v_add_f32 v%d, v%d, v%d" % (d + e_, d + e_, s_ + e_))] for e_ in range(16)]
        wb = []
        if ps and OPT["wb"]:
            go, back = a.label("wb"), a.label("wbback")
            self.cold.append("%s:\nbuffer_wbl2 sc1\ns_branch %s" % (go, back))
            wb = [[("i", "s_and_b32 %s, %s, %d\ns_or_b32 %s, %s, %s" % (sT1, sJ, 16 // OPT["wb"] - 1, sT1, sT1, sW)),
                   ("vm", "s_cmp_eq_u32 %s, 0\ns_cbranch_scc1 %s\nbuffer_load_dword a255, off, %s, %s nt\n%s:" % (sT1, go, WS, sFLG, back))]]
        bar = [[("dsdrain",), ("i", "s_barrier")]]
        fma = lambda p_: [[("i", "v_fma_f32 v%d, v%d, v%d, v%d" % (U + e_, p_ + e_, R, U + e_))] for e_ in range(16)]
        if OPT["d_own"]:
            for i in range(2): sl.spread(writes(i), endb[i] + 2, endb[i] + 15)
            r01, w2 = reads(0) + reads(1), writes(2)
            mix = [x for n_ in range(4) for x in (r01[2 * n_], r01[2 * n_ + 1], w2[n_])]
            sl.spread(bar + mix, endb[2] + 1, endb[2] + 15)
            sl.spread([[("wds", ("r", 0, 3))]] + fma(P[0])[:8] + bar + wb + reads(2) + fma(P[0])[8:] + fma(P[1]), endb[2] + 16, endb[3] - 1)
        else:
            for i in range(3): sl.spread(writes(i), endb[i] + 2, endb[i] + 17)
            seq = bar + wb + reads(0) + reads(1) + reads(2) + [[("wds", ("r", 1, 3))]] + add(P[0], P[1]) + [[("wds", ("r", 2, 3))]] + add(P[0], P[2]) + fma(P[0])
            sl.spread(seq, endb[2] + 20, endb[3] - 2)
        pf = [] if ps else [g for i in range(7) if i not in self.wq_late(1) + self.kept() for g in self.wq_chunk(i)]
        pf = sl.pace(pf, 224 - 4 * OPT["d_up2"] + 2, 4.4)
        self.lite(sl, "dn", [28 * k for k in range(8)])
        self.report("dn%d" % ps, sl.emit(a))
        self.stamp()
        A = accr(3, 0)
        if OPT["d_own"]:
            a.ds_wait(("r", 2, 3))
            for k in range(8): a.I("v_pk_fma_f32 %s, %s, %s, %s op_sel_hi:[1,0,1]" % (vr(U + 2 * k, 2), vr(P[2] + 2 * k, 2), vr(R, 2), vr(U + 2 * k, 2)))
        for k in range(8): a.I("v_pk_fma_f32 %s, %s, %s, %s op_sel_hi:[1,0,1]" % (vr(A + 2 * k, 2), vr(A + 2 * k, 2), vr(R, 2), vr(U + 2 * k, 2)))
        self.finish(A, 2 * ps + 2, 6, pf, OPT["dn_pre"], None if OPT["h_late"] else 1)

    def gu(self, ps):
        a = self.a
        xi = 2 * ps + 1
        def setup():
            self.early_barrier()
            for k in range(OPT["g_la"]): a.ds("ds_read_b128 %s, %s" % (vr(F + 4 * k, 4), ldsaddr(self.wg_slot(0, ps) * 16384 + k * 1024)), ("f", k))
        EB = OPT["eb"] & 1
        self.poll(6 * ps + 2, sMA, None, setup if EB else None)
        self.stamp()
        S0, TL, NR, XR_ = GS0, 16 - GS0, 8, 10
        SS, NM, HPK, CSA = 16, 24, 28, 21
        A0 = X + 80
        xreg = lambda s, b: X + 8 * (s % XR_) + 4 * b
        acc = lambda bl, m, b: A0 + 16 * bl + 8 * b + 4 * m
        xl = self.reg_loads([vr(xreg(s, b), 4) for s in range(16) for b in range(2)], [sXLD] * 32,
                            [LY.XB[xi] + s * 2048 + b * 256 for s in range(16) for b in range(2)], sTA, vQ, "x")
        UP = OPT["g_up"]
        a.run_all(self.flat(xl[:UP]))
        if not EB: a.I("s_barrier")
        a.I("s_add_u32 %s, %s, %d" % (sT0, sSLD, LY.SB[xi]))
        g_st = [[("vm", "buffer_load_dwordx4 %s, v%d, %s, %s offen sc1" % (vr(SS, 4), vL16, WS, sT0))],
                [("vm", "buffer_load_dwordx4 %s, v%d, %s, %s offen offset:1024 sc1" % (vr(SS + 4, 4), vL16, WS, sT0), "st")]]
        early = self.wg_early(ps)
        NS = len(self.ring(ps))
        assert 0 in early and len(set(early)) == len(early) and all(c < NS and self.wg_slot(c, ps) not in WO_SLOT for c in early)
        assert all(self.wg_slot(c, ps) != 7 for c in self.digits("wg_att%d" % ps) + self.digits("wg_h1%d" % ps)) and not set(self.kept()) - {2, 3, 4, 5}
        frags = [(s, bl, m) for s in range(S0) for bl in range(7) for m in range(2)]
        for bl in range(7): frags += [(s, bl, m) for s in range(S0, 16) for m in range(2)] + [(16, bl, 0)]
        sl = Slots()
        sl.mpatience, sl.patience = OPT["g_mp%d" % ps], OPT["g_vp"]
        first, last, end, xfirst, xlast = {}, {}, {}, {}, {}
        for k, (s, bl, m) in enumerate(frags):
            w = F + 4 * (k % NR)
            for mm, b in ([(m, 0), (m, 1)] if s < 16 else [(0, 0), (0, 1), (1, 0), (1, 1)]):
                G_ = OPT["g_grp"]
                pre = [] if k in first else [("wds", ("f", min(k // G_ * G_ + G_ - 1, len(frags) - 1)))]
                d = vr(acc(bl, mm, b), 4)
                if s < 16:
                    if (s, b) not in xfirst: pre.append(("wvm", ("x", 2 * s + (b if s == 0 else 1))))
                    n_ = sl.add("v_mfma_f32_16x16x32_bf16 %s, %s, %s, %s" % (d, vr(w, 4), vr(xreg(s, b), 4), "0" if s == 0 else d), pre)
                    xfirst.setdefault((s, b), n_); xlast[(s, b)] = n_
                else:
                    n_ = sl.add("v_mfma_f32_16x16x16_bf16 %s, %s, %s, %s" % (d, vr(w + 2 * mm, 2), vr(NM + 2 * b, 2), d), pre)
                first.setdefault(k, n_); last[k] = n_
            end[bl] = n_
        LA = OPT["g_la"]
        def rd(k):
            off = self.wg_slot(k // 16, ps) * 16384 + (k % 16) * 1024
            d = F + 4 * (k % NR)
            if frags[k][0] < 16:
                return [("ds", "ds_read_b128 %s, %s" % (vr(d, 4), ldsaddr(off)), ("f", k))]
            return [("ds", "ds_read2st64_b32 %s, v%d offset0:%d offset1:%d" % (vr(d + 2 * m, 2), CSA + (off >> 16), (off & 0xffff) // 256 + 2 * m, (off & 0xffff) // 256 + 2 * m + 1),
                     ("f", k) if m else None) for m in range(2)]
        for k in range(0 if EB else LA): a.run_all(rd(k))
        barpos, real = {}, []
        retire = lambda c: min(p for p in real if p > last[16 * c + 15])
        for k in range(LA, len(frags)):
            if k % 16 == 0:
                ch = k // 16
                pair = ps == 1 and OPT["g_bar1"] == 2 and ch >= OPT["g_pair0"]
                if pair and (ch - OPT["g_pair0"]) % 2:
                    barpos[ch] = barpos[ch - 1]
                elif ch not in early:
                    p = barpos[ch] = last[k - LA] - 1
                    real.append(p)
                    need = ch + 1 if pair and ch < 14 else ch
                    if need not in early: sl.pre[p + 1].append(("wvm", ("wg", need)))
                    sl.after(p, *(([("wvm", ("wg", need))] if need not in early else []) + [("i", "s_barrier")]))
            sl.after(last[k - LA], *rd(k))
        wl = [(retire(ch - NS) + 2 if ch >= NS else 0, g) for ch in range(15) if ch not in early for g in self.wg_chunk(ch, ps)]
        wdue = [barpos[ch] - 8 * (len(self.wg_chunk(ch, ps)) - 1 - n_) for ch in range(15) if ch not in early for n_ in range(len(self.wg_chunk(ch, ps)))]
        wd = self.wds("rest", ps)
        tail0 = xfirst[(S0, 0)]
        xs = []
        for n_ in range(UP, 32):
            s, b = divmod(n_, 2)
            due = min(xfirst[(s, b)], tail0 - (31 - n_) * OPT["g_xsp"])
            xs.append((due, xlast[(s - XR_, b)] + 1 if s >= XR_ else 0, xl[n_]))
        n_ = OPT["g_stat"]
        xs[n_:n_] = [(xs[n_][0], 0, g) for g in g_st]
        P = lambda key: OPT["g_%s%d" % (key, ps)] / 10
        pos, fab, ix, iw, idd, seq = 0.0, 0.0, 0, 0, 0, []
        stop = end[6] - OPT["g_tail"]
        while ix < len(xs) or iw < len(wl) or (idd < len(wd) and pos <= stop):
            xok = ix < len(xs) and xs[ix][1] <= pos
            xu = xok and xs[ix][0] - pos <= P("xlead")
            wok = iw < len(wl) and wl[iw][0] <= pos
            wu = wok and wdue[iw] - pos <= P("wmin")
            free = fab <= pos + P("slack")
            if xu and (not wu or xs[ix][0] <= wdue[iw] - P("wmin") + P("xlead")): pick = "x"
            elif wu: pick = "w"
            elif free and wok and wdue[iw] - pos <= P("wmax"): pick = "w"
            elif free and idd < len(wd) and pos <= stop: pick = "d"
            elif xok and xs[ix][0] - pos <= P("xmax"): pick = "x"
            else:
                pos = int(pos) + 1; continue
            if pick == "x": g = xs[ix][2]; ix += 1
            elif pick == "w": g = wl[iw][1]; iw += 1; fab = max(fab, pos) + P("wcost")
            else: g = wd[idd]; idd += 1; fab = max(fab, pos) + P("dcost")
            behind = (ix < len(xs) and xs[ix][0] - pos < 0.7 * P("xlead")) or (iw < len(wl) and wdue[iw] - pos < 0.7 * P("wmin"))
            seq.append((pos, g)); pos += 2.0 if behind else P("every")
            if g is g_st[1]: stpos = pos
        assert not sl.pace(seq, 0, 0)
        left = wd[idd:]
        st = [[("wvm", "st")]]
        for r_ in (SS, SS + 4):
            for o in (0, 1): st.append([("i", "v_add_f32 v%d, v%d, v%d" % (r_ + o, r_ + o, r_ + 2 + o))])
        for o in (0, 1): st.append([("i", "v_permlane32_swap_b32 v%d, v%d" % (SS + o, SS + 4 + o))])
        for o in (0, 1): st.append([("i", "v_add_f32 v%d, v%d, v%d" % (SS + o, SS + o, SS + 4 + o))])
        for o in (0, 1): st.append([("i", "v_mov_b32 v%d, v%d" % (SS + 2 + o, SS + o))])
        for k in range(3): st.append([("i", "v_add_u32 v%d, %d, v%d" % (CSA + k, k << 16, vFL))])
        for o in (0, 1): st.append([("i", "v_permlane16_swap_b32 v%d, v%d" % (SS + o, SS + 2 + o))])
        for o in (0, 1): st.append([("i", "v_add_f32 v%d, v%d, v%d" % (SS + o, SS + o, SS + 2 + o))])
        st += [[op] for op in self.ln_from_sums(SS, SS + 1, SS + 2)]
        st += [[("i", "v_cvt_pk_bf16_f32 v%d, -v%d, -v%d" % (NM + k, SS, SS))] for k in range(4)]
        st += [[("i", "v_mul_f32 v%d, v%d, v%d" % (SS + 1, SS + 1, SS + 1))],
               [("i", "s_lshr_b32 %s, %s, 3\ns_add_u32 %s, %s, %d" % (sT0, sLW, sT0, sT0, L_RS))],
               [("i", "v_and_or_b32 v%d, v%d, 63, %s" % (SS, vFL, sT0))], [("i", "v_and_b32 v%d, 32, v0" % (SS + 2))],
               [("i", "v_lshl_add_u32 v%d, v%d, 1, v%d" % (SS, SS + 2, SS))]]
        st += [[("i", "v_permlane32_swap_b32 v%d, v%d" % (NM + k, NM + 2 + k))] for k in range(2)] + [[("mark", "nm")]]
        sl.after(tail0 - 2 * LA, ("need", "nm"))
        sl.spread(st, int(stpos) + 40, tail0 - 2 * LA - 10)
        held = []
        def epi(bl, packed=False):
            g = []
            H = acc(bl, 1, 0)
            for b in range(2):
                ga = acc(bl, 0, b)
                g += [[("i", "v_max_f32 v%d, 0, v%d" % (ga + r, ga + r))] for r in range(4)]
                if packed: g += [[("i", "v_pk_mul_f32 %s, %s, %s" % (vr(ga + r, 2), vr(ga + r, 2), vr(ga + 4 + r, 2)))] for r in (0, 2)]
                else: g += [[("i", "v_mul_f32 v%d, v%d, v%d" % (ga + r, ga + r, ga + 4 + r))] for r in range(4)]
                g += [[("i", "v_cvt_pk_bf16_f32 v%d, v%d, v%d" % (H + 2 * b + k, ga + 2 * k, ga + 2 * k + 1))] for k in range(2)]
            out = [[("i", "s_add_u32 %s, %s, %s" % ((sTS, sTS, sHSTEP) if bl else (sTS, sHST, LY.HB[ps])))],
                   [("vm", "buffer_store_dwordx4 %s, v%d, %s, %s offen%s" % (vr(H, 4), vL16, WS, sTS, {"s": " sc1", "n": " nt", "p": ""}[OPT["h_st%d" % ps][bl]]), "h%d" % bl)]]
            if bl in self.digits("h_rb%d" % ps):
                out.append([("vm", "buffer_load_dword a255, v%d, %s, %s offen sc1" % (vL16, WS, sTS))])
            sw = [[("i", "v_permlane16_swap_b32 v%d, v%d" % (H + k, H + 2 + k))] for k in range(2)]
            if bl in self.digits("h_hold%d" % ps):
                held.extend(out)
                return g + sw
            g += held + out[:1] + sw + out[1:]
            del held[:]
            return g
        for bl in range(6): sl.spread(epi(bl), end[bl] + 1, end[bl + 1] - OPT["g_epi"])
        l_e, g_e = self.check_ops(6 * ps + 3, sMB, SS + 3, "he")
        sl.put("f", end[3 - LV] + OPT["g_sig%d" % ps], self.signal_ops(6 * ps + 3, "h%d" % (2 - LV), SS + 4))
        self.pending = self.signal_ops(6 * ps + 4, "h%d" % (4 - LV), SS + 4)
        if OPT["d_mid%d" % ps] < 0:
            sl.put("f", end[5 - LV] + OPT["g_sig%d" % ps], self.pending); self.pending = None
        self.chk2 = self.check_ops(6 * ps + 4, sMB, SS + 3 if OPT["g_c2"] else PA, "hf2")
        nh = OPT["g_h%d" % ps]
        assert S0 >= 10 and nh <= 12
        p = end[6] - OPT["g_chk%d" % ps]
        sl.put("h", p - OPT["g_lat%d" % ps], l_e)
        if nh:
            sl.put("h", p, g_e); g_e = []
            hl = self.dn_plan(ps)[2][:nh]
            if OPT["g_c2"]:
                hl.insert(nh + 1 - OPT["g_c2"], self.chk2[0]); self.chk2 = ([], self.chk2[1] + [("mark", "c2")])
            assert not sl.pace(hl, p + 1, min(4.4, (end[6] - p - 2) / len(hl)), name="h")
        if OPT["cpf"] & 2: sl.put("g", OPT["cp_g"], self.flat(self.code_touch("L_gu%d" % ps, HPK)))
        sl.put("g", tail0 + OPT["cp_t"], self.flat(self.code_touch("L_dn%d" % ps, SS + 3)))
        sl.put("c", max(tail0, retire(max(c for c in range(14) if self.wg_slot(c, ps) == 6)) + 1), [("ds", "ds_write_b32 v%d, v%d" % (SS, SS + 1))])
        if ps == 0:
            sl.put("c", end[6] - 8, [("i", "s_or_b32 %s, s2, %s" % (sT0, sW)), ("atom", "s_cmp_eq_u32 %s, 0\ns_cselect_b32 %s, %d, 0x%x" % (sT0, sT0, LY.EPOCH, OOB)),
                                     ("i", "v_mov_b32 v%d, %s" % (SS + 2, sNONCE)),
                                     ("vm", "buffer_store_dword v%d, v%d, %s, %s offen" % (SS + 2, vF1, WS, sT0))])
        self.lite(sl, "g", [56 * k for k in range(8)])
        self.report("gu%d" % ps, sl.emit(a))
        a.run_all(self.flat(epi(6, True)))

        self.stamp()
        a.run_all(g_e)
        self.stamp()
        print("  gu: %d loads left for the hand-off" % len(left))
        return nh, left

    def build(self):
        a = self.a
        (self.startup2 if OPT["lead"] else self.startup)()
        for ps in range(2):
            a.I("L_qkv%d:" % ps); self.qkv(ps)
            a.I("L_wo%d:" % ps); self.wo(ps)
            a.I("L_gu%d:" % ps); left = self.gu(ps)
            a.I("L_dn%d:" % ps); self.dn(ps, *left)
        if OPT["stamps"]:
            a.I("s_waitcnt vmcnt(0)\ns_memrealtime s[6:7]\ns_memtime s[80:81]\ns_waitcnt lgkmcnt(0)\nv_writelane_b32 v%d, s6, 63\nv_writelane_b32 v%d, s80, 61" % (vSTAMP, vSTAMP))
            a.I("s_lshl_b32 %s, s2, 10\ns_lshl_b32 %s, %s, 8\ns_add_u32 %s, %s, %s\ns_add_u32 %s, %s, %d" % (sT0, sT1, sW, sT0, sT0, sT1, sT0, sT0, LY.STAMP))
            a.I("buffer_store_dword v%d, v%d, %s, %s offen" % (vSTAMP, vFL, WS, sT0))
        if OPT["diagpad"]:
            a.I("s_mov_b32 s82, %d" % OPT["diagpad"])
            if OPT["diagat"]:
                a.I("s_sub_u32 s83, s%d, s14\ns_lshl_b32 s83, s83, 2" % sST)
                if OPT["diagwg"] >= 0: a.I("s_cmp_eq_u32 s2, %d\ns_cselect_b32 s83, s83, 0" % OPT["diagwg"])
                a.I("s_add_u32 s82, s82, s83")
            a.I("L_pad:\ns_memrealtime s[80:81]\ns_waitcnt lgkmcnt(0)\ns_sub_u32 s80, s80, s14\ns_cmp_lt_u32 s80, s82\ns_cbranch_scc1 L_pad")
        a.I("L_main_done:\ns_endpgm")
        for c in self.cold: a.I(c)
        a.I("L_code_end:")
        return a.lines

def main():
    ml, n2 = hazard_pass(Main().build())
    for half in range(2):
        alt = role_path(ml, half)
        bad = check_async(alt)
        assert not bad and hazard_pass(alt)[1] == 0, bad[:3]
    k = NAME + "_kernel"
    out = ["; Generated by gen/gen.py. " + " ".join(sys.argv[2:]),
           "; One persistent kernel, one workgroup per CU. Kernarg: x, wqkv, wo, (unused), w_gate, w_up, w_down, out, debug, ws.",
           "; Rows of one parity form an independent sequence; 16 workgroups share a block of 128 such rows through all four layers:",
           ";   start-up : weights re-laid out once in MFMA fragment order (plus column sums for the LayerNorm mean) in the workspace",
           ";   qkv      : 128 rows x 2 heads, LayerNorm folded in, windowed attention in registers",
           ";   wo / dn  : 64 x 64 output tiles plus residual, partial LayerNorm sums published with the tile",
           ";   gu       : 128 rows x 112 hidden columns, ReGLU in the epilogue",
           "; Hand-offs use flags tagged with a per-launch value derived from a workspace word. A group whose members are on one die",
           "; (checked at run time) hands over through that die's L2; any other group uses release / acquire at device scope.",
           "; @launch grid=(256,1,1) block=(256,1,1) lds=163840",
           '.amdgcn_target "amdgcn-amd-amdhsa--gfx950"', ".text",
           ".globl %s" % k, ".p2align %d" % OPT["align"], ".p2align 8", ".type %s,@function" % k]
    out += [l if l.endswith(":") else "    " + l for l in ml]
    out += ['.section .rodata,"a"', ".p2align 6", """.amdhsa_kernel %s
  .amdhsa_next_free_vgpr 512
  .amdhsa_next_free_sgpr 102
  .amdhsa_accum_offset 256
  .amdhsa_group_segment_fixed_size 0
  .amdhsa_kernarg_size 80
  .amdhsa_user_sgpr_count 2
  .amdhsa_user_sgpr_kernarg_segment_ptr 1
  .amdhsa_system_sgpr_workgroup_id_x 1
  .amdhsa_float_denorm_mode_32 3
.end_amdhsa_kernel""" % k]
    if OPT["rt"]: out = [l.replace("s_memtime", "s_memrealtime") for l in out]
    open(sys.argv[1], "w").write("\n".join(out) + "\n")
    print("instructions: %d ; wait states added: %d" % (len(ml), n2))

main()
```

```python
import sys
from dsl import Asm, Slots, hazard_pass, check_async, role_path
import layout as LY

NAME = "interleave_layers__sliding_local_dilated__glu_gated_reglu__prompt"
OPT = dict(stamps=0, lite="-", hitw=0,
           q_up=8, q_every=42, q_hf=12, q_chk=6, q_h0=11, a_every=14, k_up=8, g_up=4, g_tail=0, g_la=7, g_xsp=11, g_stat=6,
           g_every0=36, g_xlead0=400, g_wmin0=600, g_wmax0=1000, g_slack0=40, g_wcost0=60, g_dcost0=30,
           g_xmax0=9000, g_xmax1=800, g_every1=46, g_xlead1=400, g_wmin1=560, g_wmax1=700, g_slack1=40, g_wcost1=60, g_dcost1=30,
           wq_late1="-", dn_pre=6, q0_up=6, q0_lead=20, q0_every=40,
           wg_att0="0", wg_h10="-", wg_wo0="1", wg_h20="-",
           wg_att1="2", wg_h11="-", wg_wo1="3", wg_h21="-",
           hreg=1, st_at=0, st_hold=0, lf_at=1, pb=15, near=1, align=12, h_late=0, h_rb0="-", h_rb1="-", d_own=0, h_hold0="-", h_hold1="-", eb=1, h_def=0, q0_fbl=3, wd_e=0, t_step=5, wg_q0="-", wg_q1="01", keep="2345", keepo="-", skipo=0, q_wbar=12, w_pre=20, w_up=8, w_quiet=12, d_sig0=16, d_sig1=16, d_up2=11, d_ramp=8, d_mid0=-1, d_mid1=-1, d_chk=8, d_chk3=8, d_f0=0, d_f1=0, d_min=0, g_c2=0, d_flat=20, g_epi=6, g_sig0=27, g_sig1=16, g_chk0=20, g_chk1=26, g_lat0=18, g_lat1=18, g_h0=4, g_h1=6,
           touch=0, h_st0="sssssss", h_st1="sspppp p".replace(" ", ""), x0f="sc1", wb=1, otouch=1, diagpad=0, diagat=0, diagwg=100, b_pos=1, q0_split=0, q0_n1=6, q0_hf=6, order="aoc", rt=0, lead=1, follow="xgucd", fa_ld=4, x_pre=3, sib=0, fa_ck=0, q0_x=4, rot=0, xdir=1, xd0=2, xd1=8, xd_lag=14, xd_pre=0, xd_per=7, t_set="ox", t_pos=16, fb_at="att", fb_k=7, fb_s=36, inb=0, inb_at=0, inb_ch=1, inb_gap=6, inb_wait=0, xd_gap=6, xd_h1=0, xd_h2=6, xd_h0=8, xd_st=8, xd_wbar=10, q_mp0=999, q_mp1=2, q_vp=10, g_mp0=2, g_mp1=999, g_vp=10, d_w64=0, q_st=0, g_grp=3, q_grp=3, g_bar1=2, g_pair0=13, outf="nt", c_early=0, b_spread=0, b_first=0, b_gap=3, pollf="nt", actf="sc1", wf="sc1", cpf=7, cp_g=60, cp_t=0, cp_d=150, cp_q=6, predrain=0, q0_b=0, q0_fbch=3, q0_fbs=9, q0_w=8, q0_tail=36, a_quiet=30, wd_q=10, wd_att=0, wd_h1=0, wd_wo=0, wd_h2=0)
for arg in sys.argv[2:]:
    k, v = arg.split("=")
    OPT[k] = v if isinstance(OPT[k], str) else int(v)

def vr(b, n): return "v[%d:%d]" % (b, b + n - 1)
def ar(b, n): return "a[%d:%d]" % (b, b + n - 1)
def magic(d): return (1 << 32) // d + 1
OOB = 0x40000000
GS0 = LY.GS0

WS, XIN, OUT = "s[8:11]", "s[12:15]", "s[16:19]"
sW, sJ, sR, sC, sG, sN, sNONCE, sSLOW = ("s%d" % i for i in range(20, 28))
sGB, sXLD, sXST, sOST, sXR, sHST, sSLD, sWQ, sWG, sWO, sWD, sLW = ("s%d" % i for i in range(28, 40))
sMA, sMB = "s[40:41]", "s[42:43]"
sFLG, sFLW, sHALO, sHFL, sTAB, sSST, sONE, sHDST, sHDFL, sP = ("s%d" % i for i in range(44, 54))
sMH = "s[54:55]"
sTA, sTW, sTD, sTS, sT0, sT1, sT2, sSPIN = ("s%d" % i for i in range(56, 64))
sHLD = ["s%d" % i for i in range(68, 72)]
sXW = ["s%d" % i for i in range(72, 75)]
sFBO, sB0, sB1, sB2, sB3 = "s75", "s76", "s77", "s78", "s79"
SRC_A, SRC_G, SRC_U, SRC_D = 80, 84, 88, 92
sLW2, sLW4, sWQ4, sWG4 = "s96", "s97", "s98", "s99"
sST = 100
LITE = (84, 86, 88, 90, 92, 94, 76, 78)
sHALO2 = sP
sNH, sCPO, sPC, sSLOW2 = "s12", "s13", "s[4:5]", "s[0:1]"
sOL, sHSTEP, sMC = "s64", "s65", "s[66:67]"
vL, vL16, vL16b, vL16c, vQ, vF1, vFL, vSTAMP = 0, 1, 2, 3, 4, 5, 6, 7
XRES = 8
PA, PB = 22, 23
X, ACC, F = 32, 160, 224
aROW, aST, aSQ, aSH, aSG, aHX, aHWR, aHWS, aHST, aHSS, aFB, aLINE, aTO, aTH = range(224, 238)
aBC, aBP, aBP0, aMC = 240, 244, 248, 252
L_HALO, L_RS, L_KV, L_TAB, L_FMT = 102400, 110592, 114688, 124928, 131072
L_SCR_DN = 114688
WO_SLOT = (8, 9, 0, 1)
DN_S = ((2, 3, 4, 9, 10, 11), (1, 5, 8, 12), (0, 6, 7, 13))
LV = LY.LV
if LV: DN_S = DN_S[::-1]
DN_ORD = sum(DN_S, ())
N1, N2 = len(DN_S[0]), len(DN_S[0]) + len(DN_S[1])
BIT = "s_bitcmp0_b32" if LV else "s_bitcmp1_b32"
NEG = "0xf149f2ca"

def ldsaddr(off):
    return "v%d offset:%d" % ((vL16, vL16b, vL16c)[off >> 16], off & 0xffff)

def isvm(g): return any(op[0] == "vm" for op in g)

class Main:
    def __init__(self):
        self.a = Asm()
        self.nstamp = 0
        self.cold = []
        self.nlite = 0
        self.wd = None
        self.ncall = 0

    def stamp(self, key=None):
        self.ncall += 1
        if OPT["diagpad"] and OPT["diagat"] == self.ncall:
            self.a.I("s_memrealtime s[%d:%d]" % (sST, sST + 1))
            self.a.ds_drain(force=True)
        if OPT["stamps"] != 1 or (key is not None and OPT["lite"] != key):
            return
        a = self.a
        a.I("s_memtime s[%d:%d]" % (sST, sST + 1))
        a.ds_drain(force=True)
        for k in range(self.nlite):
            a.I("v_writelane_b32 v%d, s%d, %d" % (vSTAMP, LITE[k], self.nstamp))
            self.nstamp += 1
        self.nlite = 0
        a.I("v_writelane_b32 v%d, s%d, %d" % (vSTAMP, sST, self.nstamp))
        self.nstamp += 1

    def lite(self, sl, key, slots):
        if OPT["lite"] != key:
            return
        for i in slots[:8]:
            sl.after(i, ("i", "s_memtime s[%d:%d]" % (LITE[self.nlite], LITE[self.nlite] + 1)))
            self.nlite += 1

    def report(self, name, r):
        print("  %s: cycles over budget %d, ops left after the loop %d" % ((name,) + r))

    def getc(self, v, acc): return "v_accvgpr_read_b32 v%d, a%d" % (v, acc)
    def flat(self, groups): return [op for g in groups for op in g]
    def digits(self, key): return tuple(int(c, 16) for c in str(OPT[key]) if c != "-")
    def wgs(self, where, ps): return [g for i in self.digits("wg_%s%d" % (where, ps)) for g in self.wg_chunk(i, ps)]
    def wg_early(self, ps): return sum((self.digits("wg_%s%d" % (w, ps)) for w in ("q", "att", "h1", "wo", "h2")), ())
    def wq_late(self, ps): return tuple(range(7)) if ps == 0 else self.digits("wq_late1")

    def srd(self, base, lo, hi, nbytes):
        self.a.I("s_mov_b32 s%d, %s\ns_and_b32 s%d, %s, 0xffff\ns_mov_b32 s%d, %s\ns_mov_b32 s%d, 0x20000" %
                 (base, lo, base + 1, hi, base + 2, nbytes, base + 3))

    def lin(self, dst, base, terms):
        first = True
        for reg, mul in terms:
            self.a.I("s_mul_i32 %s, %s, %d\ns_add_u32 %s, %s, %s" % (sT2, reg, mul, dst, base if first else dst, sT2))
            first = False

    def sdivmod(self, q, r, x, d):
        self.a.I("s_mul_hi_u32 %s, %s, 0x%x\ns_mul_i32 %s, %s, %d\ns_sub_u32 %s, %s, %s" % (q, x, magic(d), sT2, q, d, r, x, sT2))

    def hi_lo(self, dst, src, t):
        return ["v_cvt_pk_bf16_f32 v%d, v%d, v%d" % (dst, src, src), "v_lshlrev_b32 v%d, 16, v%d" % (t, dst),
                "v_sub_f32 v%d, v%d, v%d" % (t, src, t), "v_cvt_pk_bf16_f32 v%d, v%d, v%d" % (dst, src, t)]

    def scc_live(self, body, n):
        for t in body[n:]:
            mn = t.split()[0]
            if mn.startswith(("s_cselect", "s_subb", "s_addc", "s_cbranch_scc")) or t.endswith(":"): return True
            if mn.startswith(("s_cmp", "s_bitcmp", "s_add_", "s_sub_", "s_and_", "s_or_", "s_xor_", "s_lshl", "s_lshr", "s_min", "s_max", "s_bfe")): return False
        return False

    def weave(self, body, groups, first, every):
        k = 0
        for n_, op in enumerate(body):
            if n_ >= first and (n_ - first) % every == 0:
                while k < len(groups):
                    g = groups[k]; k += 1
                    self.a.run_all(g)
                    if isvm(g): break
            self.a.run(op)
        return groups[k:]

    def signal(self, h, wait=None, halo_pass=None, defer=False):
        a = self.a
        slow, done = a.label("slow"), a.label("sig")
        a.I("s_add_u32 %s, %s, %d\nv_mov_b32 v30, %s" % (sNH, sNONCE, h, sNH))
        if halo_pass is not None:
            h1, b1, h2, b2 = a.label("halo"), a.label("hback"), a.label("halo"), a.label("hback")
            n = a.vm_n - max(a.vm_tag[wait], a.vm_done)
            nx = 0 if halo_pass == 0 and OPT["xdir"] else 2
            a.I("s_cmp_lg_u32 %s, 0x%x\ns_cbranch_scc1 %s" % (sHDST, OOB, h1))
            st = "\n".join("buffer_store_dwordx4 %s, v24, %s, %s offen offset:%d sc1" % (vr(XRES + 4 * e, 4), WS, sTS, e * 512) for e in range(nx))
            self.cold.append("%s:\n%s\n%s\ns_add_u32 %s, %s, %d\n%s\nv_permlane32_swap_b32 v26, v27\nbuffer_store_dwordx2 v[26:27], v25, %s, %s offen sc1\ns_waitcnt vmcnt(%d)\ns_branch %s" %
                             (h1, "v_mov_b32 v27, v26\n" + self.getc(24, aHST), self.getc(25, aHSS), sTS, sHDST, LY.HX[halo_pass], st, WS, sTS, n + 1 + nx, b1))
            a.vm_wait(wait)
            a.I("%s:\ns_cmp_lg_u32 %s, 0" % (b1, sSLOW))
        else:
            a.I("s_cmp_lg_u32 %s, 0" % sSLOW)
            if wait is None: a.vm_drain()
            else: a.vm_wait(wait)
        a.I("s_cbranch_scc1 %s" % slow)
        seq = a.vm("buffer_store_dword v30, v%d, %s, %s offen" % (vF1, WS, sFLW))
        a.I("%s:" % done)
        self.cold.append("%s:\nbuffer_wbl2 sc1\ns_waitcnt vmcnt(0)\nbuffer_store_dword v30, v%d, %s, %s offen sc1\ns_branch %s" % (slow, vF1, WS, sFLW, done))
        self.sent = h
        def halo_flag():
            self.cold.append("%s:\ns_add_u32 %s, %s, %d\nv_mov_b32 v24, %s\n%s\ns_waitcnt vmcnt(%d)\nbuffer_store_dword v24, v25, %s, %s offen sc1\ns_branch %s" %
                             (h2, sTS, sHDFL, halo_pass * 16384, sNONCE, self.getc(25, aLINE), a.vm_n - seq + 1, WS, sTS, b2))
            a.I("s_cmp_lg_u32 %s, 0x%x\ns_cbranch_scc1 %s\n%s:" % (sHDST, OOB, h2, b2))
        if halo_pass is not None:
            if defer: self.halo_flag = halo_flag
            else: halo_flag()

    def poll(self, h, mask, also=None, setup=None):
        a = self.a
        a.forget()
        assert self.sent == h
        if setup: setup()
        def loop(name, fl):
            ld = "buffer_load_dword v%d, v%d, %s, %s offen %s" % (PA, vFL, WS, sFLG, fl)
            ts = "v_subrev_u32 v%d, %s, v%d\nv_cmp_lt_u32 vcc, 15, v%d\ns_and_b64 vcc, vcc, %s" % (PA, sNH, PA, PA, mask)
            if also is not None:
                ld += "\nbuffer_load_dword v%d, v%d, %s, 0 offen sc1" % (PB, also, WS)
                ts = "v_cmp_ne_u32 s[60:61], %s, v%d\n%s\ns_or_b64 vcc, vcc, s[60:61]" % (sNONCE, PB, ts)
            return "%s:\n%s\ns_sub_u32 %s, %s, 1\ns_cbranch_scc1 L_main_done\ns_waitcnt vmcnt(0)\n%s\ns_cbranch_scc1 %s" % (name, ld, sSPIN, sSPIN, ts, name)
        far, ok = a.label("far"), a.label("ok")
        a.I("s_mov_b32 %s, 0x40000\ns_cmp_lg_u32 %s, 0\ns_cbranch_scc1 %s" % (sSPIN, sSLOW, far))
        a.I(loop(a.label("poll"), OPT["pollf"]) + "\n%s:" % ok)
        a.vm_done = a.vm_n
        self.cold.append(loop(far, "sc1") + "\nbuffer_inv sc1\ns_waitcnt vmcnt(0)\ns_branch %s" % ok)

    def halo_late(self, hp):
        a = self.a
        h1, b1, h2, b2 = a.label("halo"), a.label("hback"), a.label("halo"), a.label("hback")
        st = "\n".join("buffer_store_dwordx4 %s, v24, %s, %s offen offset:%d sc1" % (vr(XRES + 4 * e, 4), WS, sTS, e * 512) for e in range(2))
        self.cold.append("%s:\n%s\n%s\ns_add_u32 %s, %s, %d\n%s\nbuffer_store_dword v26, v25, %s, %s offen sc1\ns_branch %s" %
                         (h1, self.getc(24, aHST), self.getc(25, aHSS), sTS, sHDST, LY.HX[hp], st, WS, sTS, b1))
        a.I("s_cmp_lg_u32 %s, 0x%x\ns_cbranch_scc1 %s\n%s:" % (sHDST, OOB, h1, b1))
        seq = a.vm_n
        def flag():
            self.cold.append("%s:\ns_add_u32 %s, %s, %d\nv_mov_b32 v24, %s\n%s\ns_waitcnt vmcnt(%d)\nbuffer_store_dword v24, v25, %s, %s offen sc1\ns_branch %s" %
                             (h2, sTS, sHDFL, hp * 16384, sNONCE, self.getc(25, aLINE), a.vm_n - seq, WS, sTS, b2))
        return [("call", flag), ("atom", "s_cmp_lg_u32 %s, 0x%x\ns_cbranch_scc1 %s\n%s:" % (sHDST, OOB, h2, b2))]

    def signal_ops(self, h, wait, reg):
        a = self.a
        slow, done = a.label("slow"), a.label("sig")
        self.cold.append("%s:\nbuffer_wbl2 sc1\ns_waitcnt vmcnt(0)\nbuffer_store_dword v%d, v%d, %s, %s offen sc1\ns_branch %s" % (slow, reg, vF1, WS, sFLW, done))
        return [("i", "s_add_u32 %s, %s, %d" % (sNH, sNONCE, h)), ("i", "v_mov_b32 v%d, %s" % (reg, sNH)), ("wvm", wait),
                ("vm", "s_cmp_lg_u32 %s, 0\ns_cbranch_scc1 %s\nbuffer_store_dword v%d, v%d, %s, %s offen\n%s:" % (sSLOW, slow, reg, vF1, WS, sFLW, done))]

    def check_ops(self, h, mask, reg, tag):
        a = self.a
        spin, back = a.label("cspin"), a.label("cback")
        ld = lambda fl: "buffer_load_dword v%d, v%d, %s, %s offen %s" % (reg, vFL, WS, sFLG, fl)
        t = ["v_subrev_u32 v%d, s3, v%d" % (reg, reg), "v_cmp_lt_u32 vcc, 15, v%d" % reg, "s_and_b64 vcc, vcc, %s" % mask]
        loop = lambda name, fl: "%s:\n%s\ns_sub_u32 %s, %s, 1\ns_cbranch_scc1 L_main_done\ns_waitcnt vmcnt(0)\n%s\ns_cbranch_scc1 %s" % (name, ld(fl), sSPIN, sSPIN, "\n".join(t), name)
        self.cold.append("%s:\ns_mov_b32 %s, 0x40000\ns_cmp_lg_u32 %s, 0\ns_cbranch_scc1 %s_f\n%s\ns_branch %s\n%s\nbuffer_inv sc1\ns_waitcnt vmcnt(0)\ns_branch %s" %
                         (spin, sSPIN, sSLOW, spin, loop(spin + "_n", OPT["pollf"]), back, loop(spin + "_f", "sc1"), back))
        return [("vm", ld(OPT["pollf"]), tag)], [("i", "s_add_u32 s3, %s, %d" % (sNONCE, h)), ("wvm", tag), ("i", t[0]), ("i", t[1]),
                                                ("atom", "%s\ns_or_b64 vcc, vcc, %s\ns_cbranch_scc1 %s\n%s:" % (t[2], sSLOW2, spin, back))]

    def late_check(self, load, reg, mask, tag):
        a = self.a
        spin, back = a.label("lspin"), a.label("lback")
        cmp_, and_ = "v_cmp_ne_u32 vcc, %s, v%d" % (sNONCE, reg), "s_and_b64 vcc, vcc, %s" % mask
        self.cold.append("%s:\ns_mov_b32 %s, 0x40000\n%s_l:\n%s\ns_sub_u32 %s, %s, 1\ns_cbranch_scc1 L_main_done\ns_waitcnt vmcnt(0)\n%s\n%s\ns_cbranch_scc1 %s_l\ns_branch %s"
                         % (spin, sSPIN, spin, load, sSPIN, sSPIN, cmp_, and_, spin, back))
        return [("vm", load, tag)], [("wvm", tag), ("i", cmp_), ("atom", and_ + "\ns_cbranch_scc1 %s\n%s:" % (spin, back))]

    def dma_chunk(self, sbase, goff, loff, n, tag, sc=""):
        sw = {1: sLW, 2: sLW2, 4: sLW4}[n]
        setup = [("set", sTW, "s_add_u32 %s, %s, %d" % (sTW, sbase, goff)), ("set", "m0", "s_add_u32 m0, %s, %d" % (sw, loff))]
        return [setup + [("vm", "buffer_load_dwordx4 v%d, %s, %s offen offset:%d%s lds" % (vL16, WS, sTW, k * 1024, sc), tag if k == n - 1 else None)]
                for k in range(n)]

    def wq_chunk(self, i): return self.dma_chunk(sWQ4 if i < 6 else sWQ, i * 16384, i * 16384, 4 if i < 6 else 1, ("wq", i), " " + OPT["wf"].strip("-"))
    def kept(self): return self.digits("keep")
    def ring(self, ps):
        return [k for k in (2, 3, 4, 5, 6, 7, 8, 9, 0, 1) if ps or k not in self.kept() + self.digits("keepo")]
    def wg_slot(self, i, ps): return self.ring(ps)[i % len(self.ring(ps))]
    def wo_chunk(self, i): return self.dma_chunk(sWO, i * 16384, WO_SLOT[i] * 16384, 4, ("wo", i), " " + OPT["wf"].strip("-"))
    def wg_chunk(self, i, ps): return self.dma_chunk(sWG4 if i < 14 else sWG, i * 16384, self.wg_slot(i, ps) * 16384, 4 if i < 14 else 2, ("wg", i), " " + OPT["wf"].strip("-"))

    def reg_loads(self, dsts, bases, offs, stmp, vaddr, tagbase):
        ops, cur = [], None
        for k, (d, sb, off) in enumerate(zip(dsts, bases, offs)):
            if cur is None or cur[0] != sb or not (0 <= off - cur[1] < 4096):
                cur = (sb, off)
            ops.append([("set", stmp, "s_add_u32 %s, %s, %d" % (stmp, sb, cur[1])),
                        ("vm", "buffer_load_dwordx4 %s, v%d, %s, %s offen offset:%d %s" % (d, vaddr, WS, stmp, off - cur[1], OPT["wf" if tagbase[0] == "w" else "actf"].strip("-")), (tagbase, k))])
        return ops

    def touch(self, acc, sbase, off, tmp):
        return [[("i", self.getc(tmp, acc) + "\ns_add_u32 %s, %s, %d" % (sT1, sbase, off)),
                 ("vm", "buffer_load_dword a255, v%d, %s, %s offen sc1" % (tmp, WS, sT1))]]

    def code_touch(self, label, tmp, n=1):
        if not OPT["cpf"]: return []
        return [[("i", "s_add_u32 s15, %s, %s-L_pc+%d" % (sCPO, label, 16384 * k)), ("i", "s_min_u32 s15, s15, L_code_end-L_pc-4"),
                 ("i", "v_mov_b32 v%d, s15" % tmp), ("vm", "global_load_dword a255, v%d, %s" % (tmp, sPC))] for k in range(n)]

    def ln_from_sums(self, s1, s2, t):
        return [("i", x) for x in (
            "v_mul_f32 v%d, 0x3b000000, v%d" % (s1, s1),
            "v_mul_f32 v%d, v%d, v%d" % (t, s1, s1),
            "v_mul_f32 v%d, 0x3b000000, v%d" % (s2, s2),
            "v_sub_f32 v%d, v%d, v%d" % (s2, s2, t),
            "v_max_f32 v%d, 0, v%d" % (s2, s2),
            "v_cvt_pk_bf16_f32 v%d, v%d, v%d" % (s2, s2, s2),
            "v_lshlrev_b32 v%d, 16, v%d" % (s2, s2),
            "v_add_f32 v%d, 0x3727c5ac, v%d" % (s2, s2),
            "v_cvt_pk_bf16_f32 v%d, v%d, v%d" % (s2, s2, s2),
            "v_lshlrev_b32 v%d, 16, v%d" % (s2, s2),
            "v_sqrt_f32 v%d, v%d" % (s2, s2),
            "v_cvt_pk_bf16_f32 v%d, v%d, v%d" % (s2, s2, s2),
            "v_lshlrev_b32 v%d, 16, v%d" % (s2, s2),
            "v_rcp_f32 v%d, v%d" % (s2, s2))]

    def publish(self, xi):
        a = self.a
        S1, S2, S3, S4, AD = 26, 27, 28, 29, 25
        a.I("s_add_u32 %s, %s, %d" % (sTS, sXST, LY.XB[xi]))
        for e in range(0 if xi == 0 and OPT["xdir"] else 2):
            a.vm("buffer_store_dwordx4 %s, v%d, %s, %s offen offset:%d%s" % (vr(XRES + 4 * e, 4), vQ, WS, sTS, e * 2048, " sc1" if xi == 1 and "x" not in OPT["t_set"] else ""))
        for k in range(4):
            for d, p, o in ((S1, XRES + k, sONE), (S2, XRES + k, None), (S3, XRES + 4 + k, sONE), (S4, XRES + 4 + k, None)):
                a.I("v_dot2_f32_bf16 v%d, v%d, %s, %s" % (d, p, o or "v%d" % p, "v%d" % d if k else "0"))
        a.I(self.getc(AD, aST) + "\ns_add_u32 %s, %s, %d" % (sTS, sSST, LY.SB[xi]))
        a.I("v_add_f32 v%d, v%d, v%d\nv_add_f32 v%d, v%d, v%d" % (S1, S1, S3, S2, S2, S4))
        a.I("v_permlane32_swap_b32 v%d, v%d\nv_add_f32 v%d, v%d, v%d\nv_mov_b32 v%d, v%d" % (S1, S2, S1, S1, S2, S2, S1))
        a.I("v_permlane16_swap_b32 v%d, v%d\nv_add_f32 v%d, v%d, v%d" % (S1, S2, S1, S1, S2))
        a.vm("buffer_store_dword v%d, v%d, %s, %s offen" % (S1, AD, WS, sTS), "pub")

    def startup(self):
        a = self.a
        lin = self.lin
        t8, kc, tok, g, hh, t32, u0, u1, rr, cc, q16, vA, vR, vB, vD, TA0, TA1, TD, TG, CSW, XA, XV, FAV, LINE = range(F, F + 24)
        ONES = F + 24
        def put(acc): a.I("v_accvgpr_write_b32 a%d, v%d" % (acc, u1))
        a.I("%s_kernel:" % NAME)
        a.I("s_cmp_ge_u32 s2, 256\ns_cbranch_scc1 L_main_done")
        a.I("s_load_dwordx16 s[64:79], s[0:1], 0\ns_load_dwordx2 s[4:5], s[0:1], 72")
        if OPT["stamps"] or OPT["diagpad"]:
            a.I("s_memrealtime s[98:99]")
        if OPT["stamps"]:
            a.I("s_memtime s[%d:%d]" % (sST, sST + 1))
        a.I("s_getpc_b64 s[56:57]\nL_pc:\ns_lshr_b32 s58, s2, 3\ns_lshl_b32 s58, s58, 11")
        a.I("v_lshrrev_b32 v16, 6, v0\nv_lshrrev_b32 v17, 4, v0\nv_lshlrev_b32 v17, 7, v17\nv_add_u32 v17, s58, v17")
        a.I("v_min_u32 v17, L_code_end-L_pc-4, v17\nv_and_b32 v0, 63, v0\nv_readfirstlane_b32 %s, v16" % sW)
        a.vm("global_load_dword a255, v17, s[56:57]")
        a.I("s_and_b32 %s, s2, 7\ns_bfe_u32 %s, s2, 0x40003\ns_lshr_b32 %s, s2, 7" % (sN, sJ, sP))
        a.I("s_lshr_b32 %s, %s, 3\ns_and_b32 %s, %s, 7" % (sR, sJ, sC, sJ))
        a.I("v_and_b32 v%d, 7, v0\nv_lshrrev_b32 v%d, 3, v0\nv_and_b32 v%d, 15, v0\nv_lshrrev_b32 v%d, 4, v0" % (t8, kc, tok, g))
        cuA, kkA, stA, cuG, kkG, sSG, sSD, kkD = "s28", "s29", "s30", "s32", "s33", "s6", "s7", "s36"
        sU, sV = "s34", "s35"
        if OPT["rot"]:
            a.I("s_add_u32 %s, %s, %s\ns_and_b32 %s, %s, 7\ns_andn2_b32 %s, s2, 7\ns_or_b32 %s, %s, %s" % (sV, sN, sJ, sV, sV, sU, sU, sU, sV))
        else:
            sU, sV = "s2", sN
        self.sdivmod(kkA, cuA, sU, 24)
        a.I("s_sub_u32 %s, s2, 192\ns_lshr_b32 %s, %s, 3" % (sT0, sT0, sT0))
        a.I("s_cmp_lt_u32 s2, 192\ns_cselect_b32 %s, %s, %s\ns_cselect_b32 %s, %s, %s\ns_cselect_b32 %s, 3, 1\ns_lshl_b32 %s, %s, 10" %
            (cuA, cuA, sV, kkA, kkA, sT0, stA, stA, stA))
        a.I("v_lshlrev_b32 v%d, 4, v%d\nv_mad_u32_u24 v%d, v%d, %s, v%d" % (u0, t8, vA, kc, stA, u0))
        a.I("s_lshl_b32 %s, %s, 2\ns_add_u32 %s, %s, %s\ns_lshl_b32 %s, %s, 4\ns_mul_i32 %s, %s, %s" % (sT0, kkA, sT0, sT0, sW, sT0, sT0, sT0, sT0, stA))
        a.I("s_lshl_b32 %s, %s, 7\ns_add_u32 %s, %s, %s\ns_lshl_b32 %s, %s, 3\ns_add_u32 %s, %s, %s\ns_sub_u32 %s, %s, 1024" %
            (sT1, cuA, sT0, sT0, sT1, sT1, stA, sT1, sT1, sT0, sT1, sT1))
        a.I("s_lshl_b32 %s, %s, 11\ns_add_u32 m0, %s, %d" % (sLW2, sW, sLW2, L_FMT))
        a.I("s_lshl_b32 s31, %s, 1\ns_add_u32 s31, s31, %s\ns_lshl_b32 s31, s31, 2\ns_add_u32 s31, s31, %s\ns_lshl_b32 s31, s31, 5" % (sN, sR, sW))
        a.I("s_add_u32 s31, s31, %s\ns_lshl_b32 s31, s31, 3\ns_add_u32 s31, s31, %s\ns_lshl_b32 s31, s31, 7" % (sP, sC))
        a.I("v_and_b32 v%d, 14, v0\nv_lshlrev_b32 v%d, 11, v%d\nv_lshl_add_u32 v%d, v%d, 4, v%d\nv_and_b32 v%d, 1, v0\nv_lshlrev_b32 v%d, 6, v%d\nv_add3_u32 v%d, s31, v%d, v%d" %
            (vR, vR, vR, vR, g, vR, u1, u1, u1, vR, vR, u1))
        a.I("s_waitcnt lgkmcnt(0)")
        a.I("s_load_dword %s, s[4:5], %d" % (sNONCE, LY.EPOCH))
        a.I("s_cmp_lt_u32 s2, 192\ns_cselect_b32 s%d, s66, s68\ns_cselect_b32 s%d, s67, s69\ns_and_b32 s%d, s%d, 0xffff" % (SRC_A, SRC_A + 1, SRC_A + 1, SRC_A + 1))
        a.I("s_lshl_b32 s%d, %s, 9\ns_mov_b32 s%d, 0x20000" % (SRC_A + 2, stA, SRC_A + 3))
        sa = "s[%d:%d]" % (SRC_A, SRC_A + 3)
        a.vm("buffer_load_dwordx4 v%d, %s, %s offen lds" % (vA, sa, sT0))
        a.vm("buffer_load_dwordx4 v%d, %s, %s offen offset:1024 lds" % (vA, sa, sT1), "fa")
        self.srd(12, "s64", "s65", 2048 * 1024)
        a.vm("buffer_load_dwordx4 %s, v%d, %s, 0 offen" % (vr(ACC + 56, 4), vR, XIN))
        a.vm("buffer_load_dwordx4 %s, v%d, %s, 0 offen offset:2048" % (vr(ACC + 60, 4), vR, XIN), "x")
        if OPT["stamps"]:
            a.I("v_mov_b32 v%d, 0\nv_writelane_b32 v%d, s98, 62\nv_writelane_b32 v%d, s%d, 0" % (vSTAMP, vSTAMP, vSTAMP, sST))
            self.nstamp = 1
        if OPT["diagpad"]: a.I("s_mov_b32 s14, s98")
        self.stamp("p")
        self.srd(8, "s4", "s5", LY.WS_USED)
        a.I("s_lshl_b32 %s, %s, 1\ns_add_u32 %s, %s, %s" % (sG, sN, sG, sG, sP))
        lin(sFLG, str(LY.FL), [(sG, 256)])
        lin(sFLW, sFLG, [(sJ, 16), (sW, 4)])
        lin(sTS, str(LY.ACT), [(sG, LY.ACT_STRIDE), (sR, 4096), (sW, 1024), (sC, 128)])
        a.I("s_and_b32 %s, %s, 1" % (sT0, sC))
        lin(sSST, sTS, [(sT0, -120)])
        a.I("s_add_u32 %s, %s, %d\nv_mov_b32 v%d, %s\nv_mov_b32 v%d, %s\nv_cmp_gt_u32 vcc, 32, v0\nv_cndmask_b32 v%d, v%d, v%d, vcc" %
            (sTS, sTS, LY.SB[0], u1, sTS, XA, sFLW, XA, u1, XA))
        a.vm("buffer_load_dword a255, v%d, %s, 0 offen sc1" % (XA, WS))
        self.sdivmod(kkG, cuG, sU, 28)
        a.I("v_mul_u32_u24 v%d, 3584, v%d\nv_add_u32 v%d, v%d, v%d\nv_lshl_add_u32 v%d, v%d, 10, v%d" % (vB, kc, vB, vB, u0, vD, kc, u0))
        a.I("s_lshr_b32 %s, s2, 3" % kkD)
        lin(sSG, "0", [(kkG, 64 * 3584), (sW, 16 * 3584), (cuG, 128)])
        lin(sSD, "0", [(kkD, 65536), (sW, 16384), (sV, 128)])
        xd, swaps = [], []
        if OPT["xdir"]:
            vX, sXD, sHD, sXL = 31 - 10, "s98", "s14", "s99"
            self.srd(SRC_A, "s64", "s65", 2048 * 1024)
            a.I("v_xor_b32 v%d, v%d, v%d\nv_lshlrev_b32 v%d, 4, v%d\nv_lshl_add_u32 v%d, v%d, 11, v%d" % (vX, t8, kc, vX, vX, vX, kc, vX))
            lin(sHD, "0", [(sN, 262144), (sP, 1024)])
            lin(sXD, sHD, [(sW, 65536)])
            lin(sHD, sHD, [(sW, 256)])
            a.I("s_sub_u32 %s, %s, 16384\ns_cmp_eq_u32 %s, 0\ns_cselect_b32 %s, 0x%x, %s\ns_lshl_b32 %s, %s, 15" % (sHD, sHD, sN, sHD, OOB, sHD, sXL, sW))
            a.I("v_xor_b32 v16, v%d, v%d\nv_lshlrev_b32 v16, 4, v16\nv_lshl_add_u32 v%d, v%d, 7, v16\nv_add_u32 v%d, %d, v%d" % (t8, g, u1, t8, u1, L_HALO, u1)); put(aSH)
            a.I("v_lshl_add_u32 v16, v%d, 7, v16\nv_add_u32 v16, %s, v16\nv_xor_b32 v17, 64, v16" % (tok, sXL))
            for m in range(8):
                for k in range(4):
                    xd.append([("i", "s_add_u32 m0, %s, %d\ns_add_u32 s15, %s, %d" % (sXL, m * 4096, sXD, k * 16384 + m * 128 - k * 1024)),
                               ("vm", "buffer_load_dwordx4 v%d, %s, s15 offen offset:%d lds" % (vX, sa, k * 1024), ("xd", m, k))])
                swaps.append(("wvm", ("xd", m, 3)))
                swaps += [("ds", "ds_read_b128 %s, v%d offset:%d" % (vr(X + 8 * (2 * m + h_) + 4 * b_, 4), 16 + h_, m * 4096 + b_ * 2048)) for b_ in range(2) for h_ in range(2)]
            swaps.append(("dsdrain",))
            self.halo0 = [[("set", "m0", "s_add_u32 m0, %s, %d" % (sLW2, L_HALO + 1024 * k)), ("i", "s_add_u32 s15, %s, %d" % (sHD, 128 * k)),
                           ("vm", "buffer_load_dwordx4 v%d, %s, s15 offen lds" % (vX, sa), "halo" if k else None)] for k in range(2)]
            a.run_all(self.flat(xd[:OPT["xd0"]])); xd = xd[OPT["xd0"]:]
        self.srd(SRC_G, "s72", "s73", 512 * 3584)
        self.srd(SRC_U, "s74", "s75", 512 * 3584)
        self.srd(SRC_D, "s76", "s77", 1792 * 1024)
        def b_loads():
            for srdn, so, va, stride, lo in ((SRC_G, sSG, vB, 3584, 8192), (SRC_U, sSG, vB, 3584, 16384), (SRC_D, sSD, vD, 1024, 24576)):
                a.I("s_add_u32 m0, %s, %d\ns_add_u32 s15, %s, %d" % (sLW2, L_FMT + lo, so, 8 * stride - 1024))
                a.vm("buffer_load_dwordx4 v%d, s[%d:%d], %s offen lds" % (va, srdn, srdn + 3, so))
                a.vm("buffer_load_dwordx4 v%d, s[%d:%d], %s offen offset:1024 lds" % (va, srdn, srdn + 3, "s15"), ("fb", lo))
        if OPT["b_pos"] == 0: b_loads()
        self.srd(16, "s78", "s79", 2048 * 1024)
        a.I("v_accvgpr_write_b32 a%d, v%d\nv_lshlrev_b32 v%d, 4, v0" % (aROW, vR, vL16))
        dA, dA2, dCS = "s3", "s0", "s1"
        a.I("s_and_b32 %s, %s, 7\ns_lshl_b32 %s, %s, 1\ns_lshr_b32 %s, %s, 1\ns_add_u32 %s, %s, %s" % (sT0, cuA, sT0, sT0, sT1, sW, sT0, sT0, sT1))
        a.I("s_mul_i32 %s, %s, %d\ns_add_u32 %s, %s, %d" % (sT0, sT0, LY.WQ_STRIDE, sT0, sT0, LY.WQ))
        a.I("s_lshr_b32 %s, %s, 3\ns_lshl_b32 %s, %s, 1\ns_and_b32 %s, %s, 1\ns_add_u32 %s, %s, %s" % (sT1, cuA, sT1, sT1, sT2, sW, sT1, sT1, sT2))
        lin(dA, sT0, [(kkA, 12288), (sT1, 1024)])
        lin(dCS, sT0, [(kkA, 64), (sT1, 512)])
        a.I("s_add_u32 %s, %s, 98304" % (dCS, dCS))
        lin(sT0, str(LY.WO), [(cuA, LY.WO_STRIDE), (kkA, 8192), (sW, 1024)])
        a.I("s_cmp_lt_u32 s2, 192\ns_cselect_b32 %s, %s, %s\ns_cselect_b32 %s, %s, 0x%x\ns_cselect_b32 %s, 6, 4\ns_cselect_b64 vcc, -1, 0" %
            (dA, dA, sT0, dCS, dCS, OOB, dA2))
        a.I("s_lshl_b32 %s, %s, 10\ns_add_u32 %s, %s, %s" % (dA2, dA2, dA2, dA2, dA))
        a.I("v_bfe_u32 v%d, v0, 2, 2\nv_and_b32 v%d, 3, v0\nv_bfe_u32 v%d, v0, 4, 1\nv_lshrrev_b32 v%d, 5, v0\nv_and_b32 v%d, 31, v0" % (rr, cc, q16, hh, t32))
        a.I("v_lshl_add_u32 v%d, v%d, 3, v%d\nv_lshlrev_b32 v%d, 7, v%d\nv_lshl_add_u32 v%d, v%d, 2, v%d\nv_lshlrev_b32 v%d, 7, v%d" % (u0, g, rr, u0, u0, u1, g, rr, u1, u1))
        a.I("s_lshr_b32 %s, %s, 1\ns_lshl_b32 %s, %s, 6\ns_and_b32 %s, %s, 1\ns_lshl_b32 %s, %s, 3\ns_add_u32 %s, %s, %s\ns_add_u32 %s, %s, %d" %
            (sT0, sW, sT0, sT0, sT1, sW, sT1, sT1, sT0, sT0, sT1, sT0, sT0, L_FMT))
        a.I("v_lshl_add_u32 v%d, v%d, 4, %s\nv_add_u32 v%d, v%d, v%d\nv_add_u32 v%d, v%d, v%d" % (TA1, cc, sT0, TD, TA1, u0, u1, u1, TA1))
        a.I("s_lshl_b32 %s, %s, 5\ns_add_u32 %s, %s, %d\nv_lshl_add_u32 v%d, v%d, 3, %s\nv_add_u32 v%d, v%d, v%d" % (sT0, sW, sT0, sT0, L_FMT, TA0, cc, sT0, u0, u0, TA0))
        a.I("v_mov_b32 v%d, v%d" % (TG, u0))
        a.I("v_cndmask_b32 v%d, v%d, v%d, vcc\nv_add_u32 v%d, 512, v%d\nv_add_u32 v%d, 2048, v%d\nv_cndmask_b32 v%d, v%d, v%d, vcc" % (TA0, u1, u0, u0, u0, u1, u1, TA1, u1, u0))
        for k in range(4): a.I("v_mov_b32 v%d, 0x3f803f80" % (ONES + k))
        a.I("v_lshlrev_b32 v%d, 2, v%d\nv_lshl_add_u32 v%d, v%d, 28, v%d" % (CSW, tok, CSW, g, CSW))
        a.I("s_mov_b32 %s, 0\ns_mov_b32 %s, 0x3f803f80" % (sSLOW, sONE))
        a.I("v_cmp_ne_u32 vcc, 0, v0\nv_mov_b32 v%d, 0x%x\nv_lshlrev_b32 v%d, 2, v0\nv_cndmask_b32 v%d, 0, v%d, vcc" % (vF1, OOB, vFL, vF1, vF1))
        a.I("s_lshl_b32 %s, %s, %d\ns_add_u32 %s, %s, 0x%x" % (sGB, sG, LY.ACT_SHIFT, sGB, sGB, LY.ACT))
        lin(sXLD, sGB, [(sW, 32768)])
        a.I("s_lshr_b32 %s, %s, 1\ns_and_b32 %s, %s, 1" % (sT0, sW, sT1, sW))
        lin(sXST, sGB, [(sR, 65536), (sC, 4096), (sT0, 32768), (sT1, 256)])
        lin(sOST, sXLD, [(sJ, 2048)])
        lin(sT0, str(LY.XF), [(sG, 2048)])
        a.I("v_lshrrev_b32 v%d, 2, v0\nv_lshl_add_u32 v%d, v%d, 7, %s\nv_lshl_add_u32 v%d, v%d, 30, v%d\nv_accvgpr_write_b32 a%d, v%d" % (XA, XA, XA, sT0, LINE, hh, vFL, aLINE, LINE))
        a.I("v_lshlrev_b32 v%d, 4, v%d\nv_lshl_add_u32 v%d, v%d, 9, v%d" % (u0, tok, vQ, g, u0))
        a.I("v_lshlrev_b32 v%d, 4, v%d\nv_lshl_add_u32 v%d, v%d, 2, v%d\nv_lshl_add_u32 v%d, v%d, 30, v%d" % (u1, tok, u1, hh, u1, u1, q16, u1)); put(aST)
        def die_id():
            lin(sT0, str(LY.XF), [(sG, 2048), (sJ, 128)])
            a.I("s_cmp_eq_u32 %s, 0\ns_cselect_b32 %s, %s, 0x%x\ns_getreg_b32 %s, hwreg(HW_REG_XCC_ID, 0, 4)" % (sW, sT0, sT0, OOB, sT1))
            a.I("s_waitcnt lgkmcnt(0)\ns_add_u32 %s, %s, 0x9e3779b1\ns_xor_b32 %s, %s, %s\nv_mov_b32 v%d, %s" % (sNONCE, sNONCE, sT1, sT1, sNONCE, XV, sT1))
            a.vm("buffer_store_dword v%d, v%d, %s, %s offen sc1" % (XV, LINE, WS, sT0))
            self.stamp("p")
        if OPT["c_early"] < 2: die_id()
        def constants():
            lin(sB3, str(LY.WD), [(sV, LY.WD_STRIDE), (kkD, 8192), (sW, 1024)])
            a.I("s_lshl_b32 %s, %s, 2\ns_add_u32 %s, %s, %s" % (cuG, cuG, cuG, cuG, sW))
            self.sdivmod(sT0, sT1, cuG, 7)
            lin(sB2, str(LY.WG), [(sT0, LY.WG_STRIDE)])
            a.I("s_sub_u32 %s, 6, %s\n%s %s, 0\ns_cselect_b32 %s, %s, %s" % (sT2, sT1, BIT, sT0, sT1, sT1, sT2))
            S0, TL = GS0, 16 - GS0
            lin(sB0, sB2, [(kkG, 28 * 1024), (sT1, 2048)])
            lin(sB2, sB2, [(sT1, (2 * TL + 1) * 1024)])
            lin(sT0, sB2, [(kkG, 4096)])
            a.I("s_add_u32 %s, %s, %d\ns_cmp_lt_u32 %s, %d\ns_cselect_b32 %s, %s, %s\ns_cselect_b32 %s, 14, 2\ns_lshl_b32 %s, %s, 10" %
                (sT0, sT0, 12 * S0 * 1024, kkG, S0 // 2, sB0, sB0, sT0, sB1, sB1, sB1))
            lin(sB2, sB2, [(kkG, 64)])
            a.I("s_add_u32 %s, %s, %d" % (sB2, sB2, (14 * S0 + 2 * TL) * 1024))
            a.I("s_cmp_lt_u32 s2, 224")
            for r_ in (sB0, sB2, sB3): a.I("s_cselect_b32 %s, %s, 0x%x" % (r_, r_, OOB))
            lin(sHFL, str(LY.HFL), [(sG, 1024)])
            lin(sHDFL, sHFL, [(sC, 128)])
            lin(sFBO, str(LY.FA), [(sU, 128)])
            a.I("s_add_u32 %s, %s, 2048\ns_add_u32 %s, %s, 0x%x" % (sHDFL, sHDFL, sHDST, sGB, 2 * LY.ACT_STRIDE))
            a.I("s_cmp_eq_u32 %s, 0\ns_cselect_b32 %s, %s, 0x%x" % (sW, sFBO, sFBO, OOB))
            a.I("s_lshl_b32 %s, %s, 2\ns_add_u32 %s, %s, %s\ns_cmp_eq_u32 %s, 7\ns_cselect_b32 %s, 0, %s\ns_cmp_eq_u32 %s, 7" % (sT0, sR, sT0, sT0, sW, sN, sT0, sT0, sT0))
            a.I("s_cselect_b32 %s, %s, 0x%x" % (sHDST, sHDST, OOB))
            a.I("v_lshlrev_b32 v%d, 4, v%d\nv_lshl_add_u32 v%d, v%d, 7, v%d\nv_add_u32 v%d, %d, v%d" % (u0, t8, u0, g, u0, u1, L_HALO, u0)); put(aHX)
            a.I("s_lshl_b32 %s, %s, 10\nv_add3_u32 v%d, v%d, v%d, %s" % (sT0, sC, u1, u0, vA, sT0)); put(aHST)
            if "c" not in OPT["order"]: constants2()
        def constants2():
            if OPT["c_early"] == 2: die_id()
            a.I("s_lshr_b32 %s, %s, 1\ns_lshl_b32 %s, %s, 5\ns_and_b32 %s, %s, 1\ns_lshl_b32 %s, %s, 1\ns_add_u32 %s, %s, %s" % (sT0, sW, sT0, sT0, sT1, sW, sT1, sT1, sT0, sT0, sT1))
            a.I("s_mov_b32 s40, 0x33333333\ns_mov_b32 s41, 0\ns_lshl_b64 s[40:41], s[40:41], %s" % sT0)
            a.I("s_lshl_b32 %s, %s, 1\ns_lshl_b32 %s, %s, 4\ns_add_u32 %s, %s, %s" % (sT0, sR, sT2, sW, sT0, sT0, sT2))
            a.I("s_mov_b32 s42, 0x3333\ns_mov_b32 s43, 0\ns_lshl_b64 s[42:43], s[42:43], %s" % sT0)
            a.I("v_bfe_u32 v%d, v0, 2, 3\nv_min_u32 v%d, 6, v%d\ns_mul_i32 %s, %s, 7\nv_add_u32 v%d, %s, v%d" % (t8, t32, t8, sT0, sW, t32, sT0, t32))
            a.I("s_lshl_b32 %s, %s, 1\nv_and_or_b32 v%d, v%d, 1, %s" % (sT0, sW, t8, t8, sT0))
            a.I("s_lshr_b32 %s, %s, 1\nv_mul_u32_u24 v%d, 24, v%d\nv_lshl_add_u32 v%d, v%d, 3, v%d\nv_add_u32 v%d, %s, v%d" % (sT0, sJ, u0, t8, u0, kc, u0, u0, sT0, u0))
            a.I("s_add_u32 %s, %s, 192\nv_lshl_add_u32 v%d, v%d, 3, %s\nv_cmp_gt_u32 vcc, 24, v0\nv_cndmask_b32 v%d, v%d, v%d, vcc" % (sT0, sC, u1, t8, sT0, u0, u1, u0))
            a.I("v_lshlrev_b32 v%d, 7, v%d\nv_add_u32 v%d, %d, v%d" % (u0, u0, FAV, LY.FA, u0))
            self.c_min = len(a.lines)
            a.I("s_lshr_b32 %s, s2, 3\ns_lshl_b32 %s, %s, 2\ns_add_u32 %s, %s, %s\ns_lshl_b32 %s, %s, 7" % (sCPO, sCPO, sCPO, sCPO, sCPO, sW, sCPO, sCPO))
            lin(sHST, sGB, [(sW, 114688), (sJ, 7168)])
            lin(sSLD, sGB, [(sW, 2048)])
            lin(sOL, sXST, [(sC, -4096)])
            a.I(BIT + " %s, 0\ns_cselect_b32 %s, 1, -1\ns_cselect_b32 %s, 0, 6144\ns_lshl_b32 %s, %s, 10\ns_add_u32 %s, %s, %s" % (sJ, sHSTEP, sT0, sHSTEP, sHSTEP, sHST, sHST, sT0))
            a.I("s_lshr_b32 %s, %s, 1\ns_lshl_b32 %s, %s, 1\ns_add_u32 %s, %s, %s\ns_lshl_b32 s66, 0x11111111, %s\ns_mov_b32 s67, s66" % (sT0, sW, sT1, sR, sT0, sT0, sT1, sT0))
            lin(sHLD[3], sGB, [(sR, 229376), (sW, 28672)])
            for i in range(4):
                a.I("s_add_u32 %s, %s, %d\ns_and_b32 %s, %s, 3\ns_lshr_b32 %s, %s, 1\ns_and_b32 %s, %s, 1" % (sTA, sW, i + 1, sTA, sTA, sT0, sTA, sT1, sTA))
                lin(sHLD[i], sHLD[3], [(sT0, 114688), (sT1, 256)])
                if i < 3: lin(sXW[i], str(i * 4096), [(sTA, 12288)])
            lin(sXR, "0", [(sW, 12288)])
            lin(sWQ, str(LY.WQ), [(sJ, LY.WQ_STRIDE * (1 - OPT["hitw"]))])
            lin(sWG, str(LY.WG), [(sJ, LY.WG_STRIDE * (1 - OPT["hitw"]))])
            lin(sWO, str(LY.WO), [(sC, LY.WO_STRIDE * (1 - OPT["hitw"])), (sW, 4096)])
            lin(sWD, str(LY.WD), [(sC, LY.WD_STRIDE * (1 - OPT["hitw"])), (sW, 57344)])
            lin(sTAB, str(L_TAB), [(sW, 512)])
            a.I("s_lshl_b32 %s, %s, 10\ns_lshl_b32 %s, %s, 12" % (sLW, sW, sLW4, sW))
            if not OPT["xdir"]: a.I("s_add_u32 %s, %s, %s\ns_add_u32 %s, %s, %s" % (sWQ4, sWQ, sLW4, sWG4, sWG, sLW4))
            a.I("s_cmp_eq_u32 %s, 0\ns_cselect_b32 %s, 0x%x, %s\ns_cselect_b64 s[54:55], 0, -1" % (sN, sHALO, OOB, sGB))
            a.I("s_add_u32 %s, %s, %s\ns_add_u32 %s, %s, %s\ns_add_u32 %s, %s, %s" % (sHALO2, sHALO, sLW2, sWQ, sWQ, sLW, sWG, sWG, sLW2))
            a.I("v_add_u32 v%d, 0x10000, v%d\nv_add_u32 v%d, 0x20000, v%d" % (vL16b, vL16, vL16c, vL16))
            a.I("v_lshrrev_b32 v%d, %d, v0\nv_lshlrev_b32 v%d, 7, v%d" % (u1, 1 if OPT["xdir"] else 2, u1, u1))
            if OPT["xdir"]:
                a.I("s_add_u32 %s, %s, %d\nv_and_b32 v%d, 128, v%d\nv_add_u32 v%d, %s, v%d\nv_bfe_u32 v%d, v0, 2, 3" % (sT0, sOST, LY.OB[0], u0, u1, u1, sT0, u1, CSW))
                a.I("s_add_u32 %s, %s, %d\nv_lshl_add_u32 v%d, v%d, 9, v%d\nv_cmp_gt_u32 vcc, 32, v0\nv_add_u32 v%d, %s, v%d" %
                    (sT0, sXST, LY.XB[1], u0, CSW, u0, u0, sT0, u0))
                if "x" not in OPT["t_set"]: a.I("v_mov_b32 v%d, 0x%x" % (u0, OOB))
                if "o" not in OPT["t_set"]: a.I("v_mov_b32 v%d, 0x%x" % (u1, OOB))
                a.I("v_cndmask_b32 v%d, v%d, v%d, vcc" % (u1, u0, u1))
            put(aTO)
            a.I("v_lshlrev_b32 v%d, 7, v%d\nv_lshl_add_u32 v%d, v%d, 5, v%d\nv_lshl_add_u32 v%d, v%d, 1, v%d\nv_lshlrev_b32 v%d, 3, v0" % (u0, rr, u0, g, u0, u0, cc, u0, u1))
            a.I("s_cmp_ge_u32 %s, 2\ns_cselect_b64 vcc, -1, 0\ns_cselect_b32 %s, 2, 8\nv_cndmask_b32 v%d, v%d, v%d, vcc" % (sW, sT1, u1, u0, u1))
            a.I("s_lshr_b32 %s, %s, 1\ns_add_u32 %s, %s, %d\nv_add_u32 v%d, %s, v%d" % (sT0, sLW, sT0, sT0, L_KV, u1, sT0, u1)); put(aHWR)
            a.I("v_mov_b32 v%d, %s" % (u1, sT1)); put(aHWS)
            a.I("s_mul_i32 %s, %s, 7\ns_add_u32 %s, %s, 6\ns_lshr_b32 %s, %s, 2\ns_lshr_b32 %s, %s, 2" % (sT0, sJ, sT1, sT0, sT0, sT0, sT1, sT1))
            a.I("v_add_u32 v%d, %s, v%d\nv_min_u32 v%d, %s, v%d\nv_mad_u32_u24 v%d, v%d, 28, v%d" % (u0, sT0, kc, u0, sT1, u0, u0, t8, u0))
            a.I("v_lshl_add_u32 v%d, v%d, 3, %s\nv_cmp_gt_u32 vcc, 32, v0\nv_cndmask_b32 v%d, v%d, v%d, vcc" % (u1, t32, sC, u0, u1, u0))
            a.I("v_lshlrev_b32 v%d, 7, v%d\nv_add_u32 v%d, %d, v%d" % (u0, u0, u1, LY.FB, u0)); put(aFB)
            if OPT["c_early"] == 3: die_id()
            a.I("s_getpc_b64 %s\nL_pc2:\ns_sub_u32 s4, s4, L_pc2-L_pc\ns_subb_u32 s5, s5, 0" % sPC)
            NG, Z, M0_, M1_ = rr, cc, q16, hh
            a.I("s_or_b32 %s, %s, %s\ns_cmp_eq_u32 %s, 0\ns_cselect_b64 s[56:57], -1, 0" % (sT0, sN, sW, sT0))
            a.I("v_mov_b32 v%d, %s\nv_mov_b32 v%d, 0\nv_lshlrev_b32 v%d, 2, v%d\nv_sub_u32 v%d, v%d, v%d" % (NG, NEG, Z, vA, g, vA, tok, vA))
            for r in range(4):
                a.I("v_subrev_u32 v%d, %d, v%d\nv_mov_b32 v%d, %s" % (u0, r, vA, M0_, "0xffff0000" if r & 1 else "0xffff"))
                a.I("v_cmp_gt_u32 vcc, 8, v%d\nv_cmp_gt_i32 s[58:59], -8, v%d\nv_cmp_le_i32 s[60:61], 0, v%d" % (u0, u0, u0))
                a.I("v_cndmask_b32 v%d, v%d, v%d, vcc" % (u1, NG, Z)); put(aBC + r)
                a.I("v_cndmask_b32 v%d, v%d, v%d, s[58:59]" % (u1, NG, Z)); put(aBP + r)
                a.I("v_cndmask_b32 v%d, v%d, v%d, s[56:57]" % (u1, u1, NG)); put(aBP0 + r)
                if r & 1:
                    a.I("v_cndmask_b32 v%d, v%d, v%d, s[60:61]\nv_or_b32 v%d, v%d, v%d" % (u1, Z, M0_, u1, u1, M1_)); put(aMC + r // 2)
                else:
                    a.I("v_cndmask_b32 v%d, v%d, v%d, s[60:61]" % (M1_, Z, M0_))
        a.I("v_bfe_u32 v%d, v0, 3, 1\nv_xor_b32 v%d, 1, v%d\nv_lshlrev_b32 v%d, 29, v%d" % (vA, vA, vA, vA, vA))
        a.I("s_and_b32 %s, %s, 1" % (sT1, sC))
        lin(sT0, str(8192 - 128), [(sC, 64), (sT1, -56)])
        a.I("v_add3_u32 v%d, v%d, v%d, %s" % (u1, u1, vA, sT0)); put(aHSS)
        if OPT["c_early"]: constants()
        self.stamp("p")
        if OPT["b_pos"] == -1: b_loads()
        a.vm_wait("fa")
        a.I("s_barrier")
        for sp in range(2):
            for half in range(2):
                a.ds("ds_read_b64_tr_b16 %s, v%d offset:%d" % (vr(ACC + 4 * sp + 2 * half, 2), (TA0, TA1)[half], sp * 4096), ("t", sp))
        self.stamp("p")
        for sp in range(2):
            a.ds_wait(("t", sp))
            a.vm("buffer_store_dwordx4 %s, v%d, %s, %s offen sc1" % (vr(ACC + 4 * sp, 4), vL16, WS, (dA, dA2)[sp]))
            a.I("v_mfma_f32_16x16x32_bf16 %s, %s, %s, %s" % (vr(ACC + 8, 4), vr(ONES, 4), vr(ACC + 4 * sp, 4), vr(ACC + 8, 4) if sp else "0"))
        a.I("\n".join(self.hi_lo(ACC + 12, ACC + 8, ACC + 13)))
        a.vm("buffer_store_dword v%d, v%d, %s, %s offen sc1" % (ACC + 12, CSW, WS, dCS), "fas")
        if OPT["b_pos"] == -2: b_loads()
        a.vm_wait("x")
        self.pair_swap(XRES, ACC + 56)
        self.publish(0)
        xload = "buffer_load_dword v31, v%d, %s, 0 offen sc1" % (XA, WS)
        a.vm(xload, "xf")
        if OPT["b_pos"] == 1 and not OPT["xdir"]: b_loads()
        self.stamp("p")
        if OPT["xdir"]:
            n0 = len(a.lines)
            constants()
            body = a.lines[n0:]; del a.lines[n0:]
            k, since = 0, 99
            for n_, t in enumerate(body):
                if k < OPT["xd1"] and since >= OPT["xd_gap"] and not self.scc_live(body, n_):
                    a.run_all(xd[k]); k += 1; since = 0
                a.I(t); since += 1
            a.run_all(self.flat(xd[k:OPT["xd1"]])); xd = xd[OPT["xd1"]:]
        elif not OPT["c_early"]: constants()
        def second_unit():
            G, D, CS = (ACC + 16, ACC + 32, ACC + 48) if OPT["xdir"] else (X + 96, X + 112, ACC + 48)
            out = []
            def store(ops):
                if OPT["b_spread"] and "b" not in OPT["order"]: out.append(ops)
                else: a.run_all(ops)
            if "b" in OPT["order"]:
                a.vm_wait(("fb", 24576))
                a.I("s_barrier")
            for n_ in range(4):
                for half in range(2):
                    a.ds("ds_read_b64_tr_b16 %s, v%d offset:%d" % (vr(G + 4 * n_ + 2 * half, 2), TG, 8192 * (1 + n_ % 2) + (32 * (n_ // 2) + 4 * half) * 128), ("tg", n_))
            for sp in range(2):
                for half in range(2):
                    a.ds("ds_read_b64_tr_b16 %s, v%d offset:%d" % (vr(D + 4 * sp + 2 * half, 2), TD, 24576 + (32 * sp + 4 * half) * 128), ("td", sp))
            for n_ in range(4):
                a.ds_wait(("tg", n_))
                store(([("i", "s_add_u32 %s, %s, %s" % (sB0, sB0, sB1))] if n_ == 2 else []) +
                      [("vm", "buffer_store_dwordx4 %s, v%d, %s, %s offen offset:%d sc1" % (vr(G + 4 * n_, 4), vL16, WS, sB0, (n_ % 2) * 1024))])
                c_ = vr(CS + 4 * (n_ % 2), 4)
                a.I("v_mfma_f32_16x16x32_bf16 %s, %s, %s, %s" % (c_, vr(ONES, 4), vr(G + 4 * n_, 4), c_ if n_ >= 2 else "0"))
            for sp in range(2):
                a.ds_wait(("td", sp))
                store(([("i", "s_add_u32 %s, %s, 4096" % (sB3, sB3))] if sp else []) +
                      [("vm", "buffer_store_dwordx4 %s, v%d, %s, %s offen sc1" % (vr(D + 4 * sp, 4), vL16, WS, sB3))])
            a.I("v_cmp_gt_u32 vcc, 16, v0\nv_bfe_u32 v%d, v0, 4, 1\nv_mul_u32_u24 v%d, 448, v%d\nv_add_u32 v%d, v%d, v%d\nv_cndmask_b32 v%d, v%d, v%d, vcc" %
                (D + 9, D + 9, D + 9, D + 9, D + 9, LINE, CS, CS + 4, CS))
            a.I("\n".join(self.hi_lo(D + 8, CS, CS + 1)))
            store([("vm", "buffer_store_dword v%d, v%d, %s, %s offen sc1" % (D + 8, D + 9, WS, sB2), "fbs")])
            self.stamp("p")
            return out
        def first_flags():
            a.I("v_mov_b32 v30, %s" % sNONCE)
            a.vm_wait("fas")
            a.I("s_barrier")
            a.vm("buffer_store_dword v30, v%d, %s, %s offen sc1" % (LINE, WS, sFBO))
            a.I("s_add_u32 %s, %s, %d" % (sFBO, sFBO, LY.FB - LY.FA))
            self.stamp("p")
        def own_flags():
            spin, back = a.label("xspin"), a.label("xback")
            test = "v_xor_b32 v29, %s, v31\nv_cmp_lt_u32 vcc, 15, v29\ns_and_b64 vcc, vcc, exec" % sNONCE
            a.vm_wait("xf")
            a.I("%s\ns_cbranch_scc1 %s\n%s:" % (test, spin, back))
            self.cold.append("%s:\ns_mov_b32 %s, 0x40000\n%s_l:\n%s\ns_sub_u32 %s, %s, 1\ns_cbranch_scc1 L_main_done\ns_waitcnt vmcnt(0)\n%s\ns_cbranch_scc1 %s_l\ns_branch %s"
                             % (spin, sSPIN, spin, xload, sSPIN, sSPIN, test, spin, back))
            a.I("v_cmp_ne_u32 vcc, v%d, v31\ns_cmp_lg_u64 vcc, 0\ns_cselect_b32 %s, 1, 0\ns_mov_b32 s0, %s\ns_mov_b32 s1, 0" % (XV, sSLOW, sSLOW))
            self.signal(0, "pub", 0)
            self.stamp("p")
        for step in OPT["order"]:
            if step == "c" and OPT["xdir"]: continue
            {"b": second_unit, "a": first_flags, "o": own_flags, "c": constants2}[step]()
        if OPT["xdir"]:
            n0 = len(a.lines)
            constants2()
            body = a.lines[n0:]; del a.lines[n0:]
            per = max(OPT["xd_per"], -(-(self.c_min - n0) // len(xd)))
            pos, done = 0, 32 - len(xd)
            for g_ in xd:
                a.run_all(g_); done += 1
                stop = min(len(body), pos + per)
                while stop < len(body) and self.scc_live(body, stop): stop += 1
                a.I("\n".join(body[pos:stop])); pos = stop
                if len(swaps) > 1 and 4 * swaps[0][1][1] + 4 + OPT["xd_lag"] <= done:
                    a.run_all(swaps[:5]); swaps = swaps[5:]
            self.stamp("p")
            l_fa, g_fa = self.late_check("buffer_load_dword v%d, v%d, %s, 0 offen sc1" % (PB, FAV, WS), PB, "exec", "fa2")
            l_x, g_x = self.check_ops(0, sMA, PA, "x2")
            a.run_all(swaps[:5 * OPT["xd_pre"]]); swaps = swaps[5 * OPT["xd_pre"]:]
            a.run_all(l_x + l_fa)
            if not (OPT["inb"] and OPT["inb_at"]): b_loads()
            a.I("\n".join(body[pos:]))
            a.I("s_add_u32 %s, %s, %s\ns_add_u32 %s, %s, %s" % (sWQ4, sWQ, sLW4, sWG4, sWG, sLW4))
            a.I("s_sub_u32 %s, %s, %s\ns_sub_u32 %s, %s, %s" % (sWQ4, sWQ4, sLW, sWG4, sWG4, sLW2))
            if OPT["t_pos"] == -1: a.run_all(self.flat(self.touch(aTO, "0", 0, 18)))
            a.run_all(swaps + g_fa + g_x)
        self.stamp("p")
        if "b" in OPT["order"]:
            a.vm_wait("fbs")
            a.I("s_barrier")
            a.vm("buffer_store_dword v30, v%d, %s, %s offen sc1" % (LINE, WS, sFBO))
        elif OPT["predrain"]:
            a.vm_drain()
        self.stamp("p")
        def second_ops():
            G, D, CS, ON, AG, AD, T0, T1, T2 = 0, 16, 24, 32, 30, 31, 24, 25, 20
            pre = "v_mov_b32 v%d, v%d\nv_mov_b32 v%d, v%d\nv_bfe_u32 v%d, v0, 4, 1\nv_mul_u32_u24 v%d, 448, v%d\nv_add_u32 v%d, v%d, v%d\n" % (AG, TG, AD, TD, T2, T2, T2, T2, T2, LINE)
            pre += "\n".join("v_accvgpr_write_b32 a%d, v%d" % (ON + k, ONES) for k in range(4))
            rd = [("ds", "ds_read_b64_tr_b16 %s, v%d offset:%d" % (ar(G + 4 * n_ + 2 * half, 2), AG, 8192 * (1 + n_ % 2) + (32 * (n_ // 2) + 4 * half) * 128), ("tg", n_, half))
                  for n_ in range(4) for half in range(2)]
            rd += [("ds", "ds_read_b64_tr_b16 %s, v%d offset:%d" % (ar(D + 4 * sp + 2 * half, 2), AD, 24576 + (32 * sp + 4 * half) * 128), ("td", sp, half))
                   for sp in range(2) for half in range(2)]
            st = []
            for n_ in range(4):
                c_ = ar(CS + 4 * (n_ % 2), 4)
                st.append(([("i", "s_add_u32 %s, %s, %s" % (sB0, sB0, sB1))] if n_ == 2 else []) + [("wds", ("tg", n_, 1)),
                          ("vm", "buffer_store_dwordx4 %s, v%d, %s, %s offen offset:%d sc1" % (ar(G + 4 * n_, 4), vL16, WS, sB0, (n_ % 2) * 1024)),
                          ("i", "v_mfma_f32_16x16x32_bf16 %s, %s, %s, %s" % (c_, ar(ON, 4), ar(G + 4 * n_, 4), c_ if n_ >= 2 else "0"))])
            for sp in range(2):
                st.append(([("i", "s_add_u32 %s, %s, 4096" % (sB3, sB3))] if sp else []) + [("wds", ("td", sp, 1)),
                          ("vm", "buffer_store_dwordx4 %s, v%d, %s, %s offen sc1" % (ar(D + 4 * sp, 4), vL16, WS, sB3))])
            st.append([("i", "s_mov_b64 s[6:7], 0xffff\n%s\n%s\nv_cndmask_b32 v%d, v%d, v%d, s[6:7]" % (self.getc(T0, CS), self.getc(T1, CS + 4), T0, T1, T0)),
                       ("i", "\n".join(self.hi_lo(PA, T0, T1))),
                       ("vm", "buffer_store_dword v%d, v%d, %s, %s offen sc1" % (PA, T2, WS, sB2), "fbs"), ("mark", "bdone")])
            return pre, rd, st
        self.second_unit, self.b_loads, self.second_ops = second_unit, b_loads, second_ops
        self.fav = FAV

    def startup2(self):
        a = self.a
        lin = self.lin
        t8, kc, tok, g, hh, t32, u0, u1, rr, cc, q16, vA, vR, vD, TA0, TA1, TD, XA, XV, FAV, LINE = range(F, F + 21)
        ONES, CSW, L_T = F + 24, F + 21, 114688
        def put(acc): self.a.I("v_accvgpr_write_b32 a%d, v%d" % (acc, u1))
        a.I("%s_kernel:" % NAME)
        a.I("s_cmp_ge_u32 s2, 256\ns_cbranch_scc1 L_main_done")
        a.I("s_load_dwordx16 s[64:79], s[0:1], 0\ns_load_dwordx2 s[4:5], s[0:1], 72")
        if OPT["stamps"] or OPT["diagpad"]:
            a.I("s_memrealtime s[98:99]")
        if OPT["stamps"]:
            a.I("s_memtime s[%d:%d]" % (sST, sST + 1))
        a.I("s_getpc_b64 s[56:57]\nL_pc:\ns_lshr_b32 s58, s2, 3\ns_lshl_b32 s58, s58, 11")
        a.I("v_lshrrev_b32 v16, 6, v0\nv_lshrrev_b32 v17, 4, v0\nv_lshlrev_b32 v17, 7, v17\nv_add_u32 v17, s58, v17")
        a.I("v_min_u32 v17, L_code_end-L_pc-4, v17\nv_and_b32 v0, 63, v0\nv_readfirstlane_b32 %s, v16" % sW)
        a.I("global_load_dword a255, v17, s[56:57]")
        a.I("s_and_b32 %s, s2, 7\ns_bfe_u32 %s, s2, 0x40003\ns_lshr_b32 %s, s2, 7" % (sN, sJ, sP))
        a.I("s_lshr_b32 %s, %s, 3\ns_and_b32 %s, %s, 7" % (sR, sJ, sC, sJ))
        a.I("v_and_b32 v%d, 7, v0\nv_lshrrev_b32 v%d, 3, v0\nv_and_b32 v%d, 15, v0\nv_lshrrev_b32 v%d, 4, v0\nv_lshlrev_b32 v%d, 4, v%d" % (t8, kc, tok, g, u0, t8))
        a.I("s_lshl_b32 s31, %s, 1\ns_add_u32 s31, s31, %s\ns_lshl_b32 s31, s31, 2\ns_add_u32 s31, s31, %s\ns_lshl_b32 s31, s31, 5" % (sN, sR, sW))
        a.I("s_add_u32 s31, s31, %s\ns_lshl_b32 s31, s31, 3\ns_add_u32 s31, s31, %s\ns_lshl_b32 s31, s31, 7" % (sP, sC))
        a.I("v_and_b32 v%d, 14, v0\nv_lshlrev_b32 v%d, 11, v%d\nv_lshl_add_u32 v%d, v%d, 4, v%d\nv_and_b32 v%d, 1, v0\nv_lshlrev_b32 v%d, 6, v%d\nv_add3_u32 v%d, s31, v%d, v%d" %
            (vR, vR, vR, vR, g, vR, u1, u1, u1, vR, vR, u1))
        a.I("s_lshl_b32 %s, %s, 12\ns_cmp_lg_u32 %s, 0\ns_cbranch_scc1 L_follow" % (sLW4, sW, sP))
        cu, kp, st, so, so2 = "s32", "s33", "s34", "s35", "s36"
        D4 = [sB0, sB1, sB2, sB3]
        dCS, dD = "s3", "s7"
        held = None
        def out(text):
            if held is None: (self.a.vm if text.startswith("buffer") else self.a.I)(text)
            else: held.append(text)

        def tile_dma(srdn, va, s_off, stride, lds, tag):
            a = self.a
            a.I("s_add_u32 m0, %s, %d" % (sLW4, L_T + lds))
            for k in range(4):
                if k: a.I("s_add_u32 %s, %s, %s" % (sT0, s_off if k == 1 else sT0, stride))
                a.vm("buffer_load_dwordx4 v%d, s[%d:%d], %s offen offset:%d lds" % (va, srdn, srdn + 3, sT0 if k else s_off, k * 1024), tag if k == 3 else None)
        def x_loads():
            a = self.a
            self.srd(12, "s64", "s65", 2048 * 1024)
            a.vm("buffer_load_dwordx4 %s, v%d, %s, 0 offen" % (vr(X, 4), vR, XIN))
            a.vm("buffer_load_dwordx4 %s, v%d, %s, 0 offen offset:2048" % (vr(X + 4, 4), vR, XIN), "x")
            if OPT["stamps"]:
                a.I("v_mov_b32 v%d, 0\nv_writelane_b32 v%d, s98, 62\nv_writelane_b32 v%d, s%d, 0" % (vSTAMP, vSTAMP, vSTAMP, sST))
                self.nstamp = 1
            if OPT["diagpad"]: a.I("s_mov_b32 s14, s98")
        def common():
            a = self.a
            self.srd(8, "s4", "s5", LY.WS_USED)
            a.I("s_lshl_b32 %s, %s, 1\ns_add_u32 %s, %s, %s" % (sG, sN, sG, sG, sP))
            a.I("s_lshl_b32 %s, %s, %d\ns_add_u32 %s, %s, 0x%x" % (sGB, sG, LY.ACT_SHIFT, sGB, sGB, LY.ACT))
            lin(sFLG, str(LY.FL), [(sG, 256)])
            lin(sFLW, sFLG, [(sJ, 16), (sW, 4)])
            lin(sTS, sGB, [(sR, 4096), (sW, 1024), (sC, 128)])
            a.I("s_and_b32 %s, %s, 1" % (sT0, sC))
            lin(sSST, sTS, [(sT0, -120)])
            a.I("s_add_u32 %s, %s, %d\nv_cmp_gt_u32 vcc, 32, v0\nv_mov_b32 v%d, %s\nv_mov_b32 v%d, %s\nv_cndmask_b32 v%d, v%d, v%d, vcc" %
                (sTS, sTS, LY.SB[0], u1, sTS, XA, sFLW, XA, u1, XA))
            a.vm("buffer_load_dword a255, v%d, %s, 0 offen sc1" % (XA, WS))
            self.srd(16, "s78", "s79", 2048 * 1024)
            a.I("v_accvgpr_write_b32 a%d, v%d\nv_lshlrev_b32 v%d, 4, v0\nv_lshlrev_b32 v%d, 2, v0" % (aROW, vR, vL16, vFL))
            a.I("v_bfe_u32 v%d, v0, 2, 2\nv_and_b32 v%d, 3, v0\nv_bfe_u32 v%d, v0, 4, 1\nv_lshrrev_b32 v%d, 5, v0" % (rr, cc, q16, hh))
            lin(sT0, str(LY.XF), [(sG, 2048)])
            a.I("v_lshrrev_b32 v%d, 2, v0\nv_lshl_add_u32 v%d, v%d, 7, %s\nv_lshl_add_u32 v%d, v%d, 30, v%d" % (XA, XA, XA, sT0, LINE, hh, vFL))
            lin(sT0, sT0, [(sJ, 128)])
            a.I("s_cmp_eq_u32 %s, 0\ns_cselect_b32 %s, %s, 0x%x\ns_getreg_b32 %s, hwreg(HW_REG_XCC_ID, 0, 4)" % (sW, sT0, sT0, OOB, sT1))
            a.I("s_waitcnt lgkmcnt(0)\ns_add_u32 %s, %s, 0x9e3779b1\ns_xor_b32 %s, %s, %s\nv_mov_b32 v%d, %s" % (sNONCE, sNONCE, sT1, sT1, sNONCE, XV, sT1))
            a.vm("buffer_store_dword v%d, v%d, %s, %s offen sc1" % (XV, LINE, WS, sT0))
            a.I("v_lshl_add_u32 v%d, v%d, 3, v%d\nv_lshlrev_b32 v%d, 7, v%d\nv_add_u32 v%d, %d, v%d" % (u0, g, rr, u0, u0, u0, L_T, u0))
            a.I("s_lshr_b32 %s, %s, 1\ns_and_b32 %s, %s, 1" % (sT0, sW, sT1, sW))
            lin(sXST, sGB, [(sR, 65536), (sC, 4096), (sT0, 32768), (sT1, 256)])
            a.I("s_lshl_b32 %s, %s, 6\ns_lshl_b32 %s, %s, 3\ns_add_u32 %s, %s, %s\nv_lshl_add_u32 v%d, v%d, 4, %s\nv_add_u32 v%d, v%d, v%d" %
                (sT0, sT0, sT1, sT1, sT0, sT0, sT1, TD, cc, sT0, TD, TD, u0))
            a.I("s_lshl_b32 %s, %s, 5\nv_lshl_add_u32 v%d, v%d, 3, %s\nv_add_u32 v%d, v%d, v%d" % (sT0, sW, TA0, cc, sT0, TA0, TA0, u0))
            for k in range(4): a.I("v_mov_b32 v%d, 0x3f803f80" % (ONES + k))
            a.I("s_mov_b32 %s, 0x3f803f80\nv_lshlrev_b32 v%d, 4, v%d\nv_lshl_add_u32 v%d, v%d, 9, v%d" % (sONE, u0, tok, vQ, g, u0))
            a.I("v_lshlrev_b32 v%d, 4, v%d\nv_lshl_add_u32 v%d, v%d, 2, v%d\nv_lshl_add_u32 v%d, v%d, 30, v%d" % (u1, tok, u1, hh, u1, u1, q16, u1)); put(aST)
        def tile_out(base, a0, a1, o1, lds, dst, cs):
            a = self.a
            for sp in range(4):
                a.ds("ds_read_b64_tr_b16 %s, v%d offset:%d" % (vr(base + 4 * sp, 2), a0, lds + sp * 4096))
                a.ds("ds_read_b64_tr_b16 %s, v%d offset:%d" % (vr(base + 4 * sp + 2, 2), a1, lds + sp * 4096 + o1), ("t", lds, sp))
            for sp in range(4):
                a.ds_wait(("t", lds, sp))
                out("buffer_store_dwordx4 %s, v%d, %s, %s offen offset:%d sc1" % ((vr(base + 4 * sp, 4), vL16, WS) + dst(sp)))
                if cs: a.I("v_mfma_f32_16x16x32_bf16 %s, %s, %s, %s" % (vr(cs, 4), vr(ONES, 4), vr(base + 4 * sp, 4), vr(cs, 4) if sp else "0"))
        def cs_out(src, addr):
            a = self.a
            a.I("v_cmp_eq_u32 vcc, 0, v%d" % q16)
            a.I("\n".join(self.hi_lo(ACC + 60, src, ACC + 61)))
            a.I("v_cndmask_b32 v%d, 0, v%d, vcc" % (ACC + 60, ACC + 60))
            out("buffer_store_dword v%d, v%d, %s, %s offen sc1" % (ACC + 60, addr, WS, dCS))
        xload = "buffer_load_dword v31, v%d, %s, 0 offen sc1" % (XA, WS)
        def pub():
            self.a.vm_wait("x")
            self.pair_swap(XRES, X)
            self.publish(0)
            self.a.vm(xload)

        self.sdivmod(kp, cu, "s2", 24)
        a.I("s_sub_u32 %s, %s, 12\ns_cmp_lt_u32 s2, 96\ns_cselect_b32 %s, %s, %s\ns_cselect_b32 %s, %s, %s\ns_cselect_b32 %s, 3, 1\ns_lshl_b32 %s, %s, 10" %
            (sT0, sJ, cu, cu, sN, kp, kp, sT0, st, st, st))
        a.I("v_mad_u32_u24 v%d, v%d, %s, v%d" % (vA, kc, st, u0))
        a.I("s_lshl_b32 %s, %s, 2\ns_add_u32 %s, %s, %s\ns_lshl_b32 %s, %s, 5\ns_mul_i32 %s, %s, %s\ns_lshl_b32 %s, %s, 7\ns_add_u32 %s, %s, %s" %
            (so, kp, so, so, sW, so, so, so, so, st, sT1, cu, so, so, sT1))
        a.I("s_lshl_b32 %s, %s, 3\ns_sub_u32 %s, %s, 1024" % (so2, st, so2, so2))
        a.I("s_lshl_b32 s%d, %s, 9\ns_mov_b32 s%d, 0x20000\ns_cmp_lt_u32 s2, 96\ns_waitcnt lgkmcnt(0)" % (SRC_A + 2, st, SRC_A + 3))
        a.I("s_load_dword %s, s[4:5], %d" % (sNONCE, LY.EPOCH))
        a.I("s_cselect_b32 s%d, s66, s68\ns_cselect_b32 s%d, s67, s69\ns_and_b32 s%d, s%d, 0xffff" % (SRC_A, SRC_A + 1, SRC_A + 1, SRC_A + 1))
        tile_dma(SRC_A, vA, so, so2, 0, "fa")
        x_loads()
        common()
        a.I("s_and_b32 %s, %s, 7\ns_lshl_b32 %s, %s, 1\ns_lshr_b32 %s, %s, 1\ns_add_u32 %s, %s, %s" % (sT0, cu, sT0, sT0, sT1, sW, sT0, sT0, sT1))
        a.I("s_mul_i32 %s, %s, %d\ns_add_u32 %s, %s, %d" % (sT0, sT0, LY.WQ_STRIDE, sT0, sT0, LY.WQ))
        a.I("s_lshr_b32 %s, %s, 3\ns_lshl_b32 %s, %s, 1\ns_and_b32 %s, %s, 1\ns_add_u32 %s, %s, %s" % (sT1, cu, sT1, sT1, sT2, sW, sT1, sT1, sT2))
        lin(D4[0], sT0, [(kp, 24576), (sT1, 1024)])
        lin(dCS, sT0, [(kp, 128), (sT1, 512)])
        a.I("s_add_u32 %s, %s, 98304" % (dCS, dCS))
        lin(sT0, str(LY.WO), [(cu, LY.WO_STRIDE), (kp, 16384), (sW, 1024)])
        a.I("s_cmp_lt_u32 s2, 96\ns_cselect_b32 %s, %s, %s\ns_cselect_b32 %s, %s, 0x%x\ns_cselect_b32 %s, 6, 4\ns_cselect_b64 vcc, -1, 0" %
            (D4[0], D4[0], sT0, dCS, dCS, OOB, sT1))
        a.I("s_lshl_b32 %s, %s, 10" % (sT1, sT1))
        for k in range(1, 4): a.I("s_add_u32 %s, %s, %s" % (D4[k], D4[k - 1], sT1))
        a.I("v_lshlrev_b32 v%d, 9, v%d\nv_sub_u32 v%d, v%d, v%d\nv_add_u32 v%d, 512, v%d\nv_add_u32 v%d, 2048, v%d" % (u0, g, TD, TD, u0, TA1, TA0, u0, TD))
        a.I("v_cndmask_b32 v%d, v%d, v%d, vcc\nv_cndmask_b32 v%d, v%d, v%d, vcc" % (TA0, TD, TA0, TA1, u0, TA1))
        self.stamp("p")
        a.vm_wait("fa")
        a.I("s_barrier")
        self.stamp("p")
        tile_out(ACC, TA0, TA1, 0, 0, lambda sp: (D4[sp], 0), ACC + 48)
        cs_out(ACC + 48, LINE)
        pub()
        self.stamp("p")
        if not OPT["near"]: a.I("L_join:")
        nst = self.nstamp
        self.a = b = Asm()
        b.I("L_follow:\ns_sub_u32 %s, s2, 128" % st)
        self.sdivmod(kp, cu, st, 28)
        b.I("v_mul_u32_u24 v%d, 3584, v%d\nv_add_u32 v%d, v%d, v%d\nv_lshl_add_u32 v%d, v%d, 10, v%d" % (vA, kc, vA, vA, u0, vD, kc, u0))
        lin(so, "0", [(kp, 128 * 3584), (sW, 32 * 3584), (cu, 128)])
        lin(so2, "0", [(sJ, 131072), (sW, 32768), (sN, 128)])
        b.I("s_waitcnt lgkmcnt(0)\ns_load_dword %s, s[4:5], %d" % (sNONCE, LY.EPOCH))
        steps = dict(g=lambda: tile_dma(SRC_G, vA, so, str(8 * 3584 - 1024), 0, "fg"), u=lambda: tile_dma(SRC_U, vA, so, str(8 * 3584 - 1024), 16384, "fu"),
                     d=lambda: tile_dma(SRC_D, vD, so2, str(7 * 1024), 32768, "fd"), x=x_loads, c=common, p=pub, w=b.vm_drain)
        self.srd(SRC_G, "s72", "s73", 512 * 3584)
        self.srd(SRC_U, "s74", "s75", 512 * 3584)
        self.srd(SRC_D, "s76", "s77", 1792 * 1024)
        for ch in OPT["follow"]: steps[ch]()
        lin(dD, str(LY.WD), [(sN, LY.WD_STRIDE), (sJ, 16384), (sW, 1024)])
        b.I("s_lshl_b32 %s, %s, 2\ns_add_u32 %s, %s, %s" % (cu, cu, cu, cu, sW))
        self.sdivmod(sT0, sT1, cu, 7)
        lin(dCS, str(LY.WG), [(sT0, LY.WG_STRIDE)])
        b.I("s_sub_u32 %s, 6, %s\n%s %s, 0\ns_cselect_b32 %s, %s, %s" % (sT2, sT1, BIT, sT0, sT1, sT1, sT2))
        S0, TL = GS0, 16 - GS0
        lin(so, dCS, [(kp, 56 * 1024), (sT1, 2048)])
        lin(dCS, dCS, [(sT1, (2 * TL + 1) * 1024)])
        lin(so2, dCS, [(kp, 8192)])
        for k in range(4):
            b.I("s_add_u32 %s, %s, %d\ns_add_u32 %s, %s, %d\ns_cmp_lt_u32 %s, %d\ns_cselect_b32 %s, %s, %s" %
                (sT0, so, 14 * 1024 * k, sT1, so2, (12 * S0 + 2 * k) * 1024, kp, (S0 - k + 3) // 4, D4[k], sT0, sT1))
        lin(dCS, dCS, [(kp, 128)])
        b.I("s_add_u32 %s, %s, %d\ns_cmp_lt_u32 s2, 240" % (dCS, dCS, (14 * S0 + 2 * TL) * 1024))
        for r_ in D4 + [dCS, dD]: b.I("s_cselect_b32 %s, %s, 0x%x" % (r_, r_, OOB))
        b.I("v_mul_u32_u24 v%d, 384, v%d\nv_add_u32 v%d, v%d, v%d" % (vA, hh, ACC + 62, vA, vFL))
        if OPT["st_at"] or OPT["st_hold"] == 2: held = []
        self.stamp("p")
        b.vm_wait("fu")
        b.I("s_barrier")
        self.stamp("p")
        tile_out(ACC, TA0, TA0, 512, 0, lambda sp: (D4[sp], 0), ACC + 48)
        if OPT["st_hold"] == 1: held = []
        tile_out(ACC + 16, TA0, TA0, 512, 16384, lambda sp: (D4[sp], 1024), ACC + 52)
        for k in range(4): out("s_add_u32 %s, %s, %d" % (D4[k], dD, 4096 * k))
        b.I("v_cmp_gt_u32 vcc, 32, v0\nv_cndmask_b32 v%d, v%d, v%d, vcc" % (ACC + 48, ACC + 52, ACC + 48))
        cs_out(ACC + 48, ACC + 62)
        if OPT["st_hold"] and "p" not in OPT["follow"]: pub()
        b.vm_wait("fd")
        if OPT["st_hold"]:
            pend, held = held, None
            for text in pend: out(text)
        b.I("s_barrier")
        tile_out(ACC + 32, TD, TD, 512, 32768, lambda sp: (D4[sp], 0), None)
        if "p" not in OPT["follow"] and not OPT["st_hold"]: pub()
        self.stamp("p")
        assert nst == self.nstamp
        if OPT["near"]:
            a.I("s_branch L_join\n" + "\n".join(b.lines) + "\nL_join:")
        else:
            b.I("s_branch L_join")
            self.cold.append("\n".join(b.lines))
        self.a = a

        a.vm_tag["join"] = a.vm_n
        lin(sXLD, sGB, [(sW, 32768)])
        lin(sOST, sXLD, [(sJ, 2048)])
        def touch_list():
            a.I("v_lshrrev_b32 v%d, %d, v0\nv_lshlrev_b32 v%d, 7, v%d" % (u1, 1 if OPT["xdir"] else 2, u1, u1))
            if OPT["xdir"]:
                a.I("s_add_u32 %s, %s, %d\nv_and_b32 v%d, 128, v%d\nv_add_u32 v%d, %s, v%d\nv_bfe_u32 v%d, v0, 2, 3" % (sT0, sOST, LY.OB[0], u0, u1, u1, sT0, u1, CSW))
                a.I("s_add_u32 %s, %s, %d\nv_lshl_add_u32 v%d, v%d, 9, v%d\nv_cmp_gt_u32 vcc, 32, v0\nv_add_u32 v%d, %s, v%d" %
                    (sT0, sXST, LY.XB[1], u0, CSW, u0, u0, sT0, u0))
                if "x" not in OPT["t_set"]: a.I("v_mov_b32 v%d, 0x%x" % (u0, OOB))
                if "o" not in OPT["t_set"]: a.I("v_mov_b32 v%d, 0x%x" % (u1, OOB))
                a.I("v_cndmask_b32 v%d, v%d, v%d, vcc" % (u1, u0, u1))
            put(aTO)
        if OPT["t_pos"] == -2:
            touch_list()
            a.vm("buffer_load_dword a255, v%d, %s, 0 offen sc1" % (u1, WS))
        def sibling():
            touch_list()
            a.I("s_cmp_lt_u32 s2, 128\ns_cselect_b32 %s, 0x%x, 0\nv_add_u32 v%d, %s, v%d\nv_subrev_u32 v%d, 0x%x, v%d" % (sT0, OOB, u1, sT0, u1, u0, LY.ACT_STRIDE, u1)); put(aTO)
            a.vm("buffer_load_dword a255, v%d, %s, 0 offen sc1" % (u0, WS))
        if OPT["sib"] == 1: sibling()
        sa = "s[%d:%d]" % (SRC_A, SRC_A + 3)
        xd, swaps = [], []
        vX, sXD, sHD, sXL = 21, "s6", "s14", sLW4
        self.srd(SRC_A, "s64", "s65", 2048 * 1024)
        a.I("v_xor_b32 v%d, v%d, v%d\nv_lshlrev_b32 v%d, 4, v%d\nv_lshl_add_u32 v%d, v%d, 11, v%d" % (vX, t8, kc, vX, vX, vX, kc, vX))
        lin(sHD, "0", [(sN, 262144), (sP, 1024)])
        lin(sXD, sHD, [(sW, 65536)])
        lin(sHD, sHD, [(sW, 256)])
        a.I("s_sub_u32 %s, %s, 16384\ns_cmp_eq_u32 %s, 0\ns_cselect_b32 %s, 0x%x, %s" % (sHD, sHD, sN, sHD, OOB, sHD))
        a.I("v_xor_b32 v16, v%d, v%d\nv_lshlrev_b32 v16, 4, v16\nv_lshl_add_u32 v%d, v%d, 7, v16\nv_add_u32 v%d, %d, v%d" % (t8, g, u1, t8, u1, L_HALO, u1)); put(aSH)
        a.I("v_lshl_add_u32 v16, v%d, 7, v16\nv_add_u32 v16, %s, v16\nv_xor_b32 v17, 64, v16\nv_add_u32 v18, 0x10000, v16\nv_add_u32 v19, 0x10000, v17" % (tok, sXL))
        for m in range(8):
            for k in range(4):
                xd.append([("i", "s_add_u32 m0, %s, %d\ns_add_u32 s15, %s, %d" % (sXL, m * 16384, sXD, k * 16384 + m * 128 - k * 1024)),
                           ("vm", "buffer_load_dwordx4 v%d, %s, s15 offen offset:%d lds" % (vX, sa, k * 1024), ("xd", m, k))])
            swaps.append(("wvm", ("xd", m, 3)))
            swaps += [("ds", "ds_read_b128 %s, v%d offset:%d" % (vr(X + 8 * (2 * m + h_) + 4 * b_, 4), 16 + h_ + 2 * (m // 4), (m % 4) * 16384 + b_ * 2048)) for b_ in range(2) for h_ in range(2)]
        swaps.append(("dsdrain",))
        self.halo0 = [[("set", "m0", "s_add_u32 m0, %s, %d" % (sLW2, L_HALO + 1024 * k)), ("i", "s_add_u32 s15, %s, %d" % (sHD, 128 * k)),
                       ("vm", "buffer_load_dwordx4 v%d, %s, s15 offen lds" % (vX, sa), "halo" if k else None)] for k in range(2)]
        def flags():
            self.stamp("p")
            a.I("v_mov_b32 v30, %s" % sNONCE)
            a.vm_wait("join")
            a.I("s_barrier")
            if OPT["st_at"]:
                a.I("s_cmp_lt_u32 s2, 128\ns_cselect_b32 %s, %s, 0x%x\ns_cselect_b32 %s, 0x%x, %s" % (sT0, sFBO, OOB, sFBO, OOB, sFBO))
            a.vm("buffer_store_dword v30, v%d, %s, %s offen sc1" % (LINE, WS, sT0 if OPT["st_at"] else sFBO))
            spin, back = a.label("xspin"), a.label("xback")
            test = "v_xor_b32 v29, %s, v31\nv_cmp_lt_u32 vcc, 15, v29\ns_and_b64 vcc, vcc, exec" % sNONCE
            a.I("%s\ns_cbranch_scc1 %s\n%s:" % (test, spin, back))
            self.cold.append("%s:\ns_mov_b32 %s, 0x40000\n%s_l:\n%s\ns_sub_u32 %s, %s, 1\ns_cbranch_scc1 L_main_done\ns_waitcnt vmcnt(0)\n%s\ns_cbranch_scc1 %s_l\ns_branch %s"
                             % (spin, sSPIN, spin, xload, sSPIN, sSPIN, test, spin, back))
            a.I("v_cmp_ne_u32 vcc, v%d, v31\ns_cmp_lg_u64 vcc, 0\ns_cselect_b32 %s, 1, 0\ns_mov_b32 s0, %s\ns_mov_b32 s1, 0" % (XV, sSLOW, sSLOW))
            self.signal(0, "pub", 0, OPT["h_def"] & 1)
            self.stamp("p")
        def carry(ops, emit, per, lag):
            nonlocal swaps
            n0 = len(a.lines)
            self.c_min = n0
            emit()
            body = a.lines[n0:]; del a.lines[n0:]
            per = max(per, -(-(self.c_min - n0) // len(ops)))
            pos = 0
            for g_ in ops:
                a.run_all(g_)
                stop = min(len(body), pos + per)
                while stop < len(body) and self.scc_live(body, stop): stop += 1
                a.I("\n".join(body[pos:stop])); pos = stop
                m, k = g_[-1][2][1:]
                if len(swaps) > 1 and 4 * swaps[0][1][1] + 3 + lag <= 4 * m + k:
                    a.run_all(swaps[:5]); swaps = swaps[5:]
            return "\n".join(body[pos:])
        def consts1():
            a.I("v_cmp_ne_u32 vcc, 0, v0\nv_mov_b32 v%d, 0x%x\nv_accvgpr_write_b32 a%d, v%d\nv_cndmask_b32 v%d, 0, v%d, vcc" % (vF1, OOB, aLINE, LINE, vF1, vF1))
            lin(sHFL, str(LY.HFL), [(sG, 1024)])
            lin(sHDFL, sHFL, [(sC, 128)])
            lin(sFBO, str(LY.FA), [("s2", 128)])
            a.I("s_add_u32 %s, %s, 2048\ns_add_u32 %s, %s, 0x%x\ns_lshl_b32 %s, %s, 11" % (sHDFL, sHDFL, sHDST, sGB, 2 * LY.ACT_STRIDE, sLW2, sW))
            a.I("s_cmp_eq_u32 %s, 0\ns_cselect_b32 %s, %s, 0x%x" % (sW, sFBO, sFBO, OOB))
            a.I("s_lshl_b32 %s, %s, 2\ns_add_u32 %s, %s, %s\ns_cmp_eq_u32 %s, 7\ns_cselect_b32 %s, 0, %s\ns_cmp_eq_u32 %s, 7" % (sT0, sR, sT0, sT0, sW, sN, sT0, sT0, sT0))
            a.I("s_cselect_b32 %s, %s, 0x%x" % (sHDST, sHDST, OOB))
            a.I("v_bfe_u32 v%d, v0, 3, 1\nv_xor_b32 v%d, 1, v%d\nv_lshlrev_b32 v%d, 29, v%d" % (vA, vA, vA, vA, vA))
            lin(sT0, "8192", [(sC, 128)])
            a.I("v_lshl_add_u32 v%d, v%d, 3, %s\nv_lshl_add_u32 v%d, v%d, 28, v%d" % (u1, tok, sT0, u1, g, u1)); put(aHSS)
            a.I("v_lshlrev_b32 v%d, 4, v%d\nv_lshl_add_u32 v%d, v%d, 7, v%d\nv_add_u32 v%d, %d, v%d" % (u0, t8, u0, g, u0, u1, L_HALO, u0)); put(aHX)
            a.I("s_lshl_b32 %s, %s, 10\nv_add3_u32 v%d, v%d, v%d, %s" % (sT0, sC, u1, u0, vA, sT0)); put(aHST)
        def consts2():
            a.I("s_lshr_b32 %s, %s, 1\ns_lshl_b32 %s, %s, 5\ns_and_b32 %s, %s, 1\ns_lshl_b32 %s, %s, 1\ns_add_u32 %s, %s, %s" % (sT0, sW, sT0, sT0, sT1, sW, sT1, sT1, sT0, sT0, sT1))
            a.I("s_mov_b32 s40, 0x33333333\ns_mov_b32 s41, 0\ns_lshl_b64 s[40:41], s[40:41], %s" % sT0)
            a.I("s_lshl_b32 %s, %s, 1\ns_lshl_b32 %s, %s, 4\ns_add_u32 %s, %s, %s" % (sT0, sR, sT2, sW, sT0, sT0, sT2))
            a.I("s_mov_b32 s42, 0x3333\ns_mov_b32 s43, 0\ns_lshl_b64 s[42:43], s[42:43], %s" % sT0)
            a.I("s_lshr_b32 %s, %s, 1\ns_mul_i32 %s, %s, 24\ns_add_u32 %s, %s, %s\nv_lshl_add_u32 v%d, v%d, 3, %s" % (sT0, sJ, sT1, sW, sT0, sT0, sT1, u0, kc, sT0))
            a.I("s_lshl_b32 %s, %s, 3\ns_add_u32 %s, %s, %s\ns_add_u32 %s, %s, 96\nv_mov_b32 v%d, %s\nv_cmp_gt_u32 vcc, 24, v0\nv_cndmask_b32 v%d, v%d, v%d, vcc" %
                (sT0, sW, sT0, sT0, sC, sT0, sT0, u1, sT0, u0, u1, u0))
            a.I("v_lshlrev_b32 v%d, 7, v%d\nv_add_u32 v%d, %d, v%d" % (u0, u0, FAV, LY.FA, u0))
            self.c_min = len(a.lines)
            a.I("s_lshr_b32 %s, s2, 3\ns_lshl_b32 %s, %s, 2\ns_add_u32 %s, %s, %s\ns_lshl_b32 %s, %s, 7" % (sCPO, sCPO, sCPO, sCPO, sCPO, sW, sCPO, sCPO))
            lin(sHST, sGB, [(sW, 114688), (sJ, 7168)])
            lin(sSLD, sGB, [(sW, 2048)])
            lin(sOL, sXST, [(sC, -4096)])
            a.I(BIT + " %s, 0\ns_cselect_b32 %s, 1, -1\ns_cselect_b32 %s, 0, 6144\ns_lshl_b32 %s, %s, 10\ns_add_u32 %s, %s, %s" % (sJ, sHSTEP, sT0, sHSTEP, sHSTEP, sHST, sHST, sT0))
            a.I("s_lshr_b32 %s, %s, 1\ns_lshl_b32 %s, %s, 1\ns_add_u32 %s, %s, %s\ns_lshl_b32 s66, 0x11111111, %s\ns_mov_b32 s67, s66" % (sT0, sW, sT1, sR, sT0, sT0, sT1, sT0))
            lin(sHLD[3], sGB, [(sR, 229376), (sW, 28672)])
            for i in range(4):
                a.I("s_add_u32 %s, %s, %d\ns_and_b32 %s, %s, 3\ns_lshr_b32 %s, %s, 1\ns_and_b32 %s, %s, 1" % (sTA, sW, i + 1, sTA, sTA, sT0, sTA, sT1, sTA))
                lin(sHLD[i], sHLD[3], [(sT0, 114688), (sT1, 256)])
                if i < 3: lin(sXW[i], str(i * 4096), [(sTA, 12288)])
            lin(sXR, "0", [(sW, 12288)])
            lin(sWQ, str(LY.WQ), [(sJ, LY.WQ_STRIDE * (1 - OPT["hitw"]))])
            lin(sWG, str(LY.WG), [(sJ, LY.WG_STRIDE * (1 - OPT["hitw"]))])
            lin(sWO, str(LY.WO), [(sC, LY.WO_STRIDE * (1 - OPT["hitw"])), (sW, 4096)])
            lin(sWD, str(LY.WD), [(sC, LY.WD_STRIDE * (1 - OPT["hitw"])), (sW, 57344)])
            lin(sTAB, str(L_TAB), [(sW, 512)])
            a.I("s_lshl_b32 %s, %s, 10" % (sLW, sW))
            a.I("s_add_u32 %s, %s, %s\ns_add_u32 %s, %s, %s" % (sWQ4, sWQ, sLW4, sWG4, sWG, sLW4))
            a.I("s_cmp_eq_u32 %s, 0\ns_cselect_b32 %s, 0x%x, %s\ns_cselect_b64 s[54:55], 0, -1" % (sN, sHALO, OOB, sGB))
            a.I("s_add_u32 %s, %s, %s\ns_add_u32 %s, %s, %s\ns_add_u32 %s, %s, %s" % (sHALO2, sHALO, sLW2, sWQ, sWQ, sLW, sWG, sWG, sLW2))
            a.I("v_add_u32 v%d, 0x10000, v%d\nv_add_u32 v%d, 0x20000, v%d" % (vL16b, vL16, vL16c, vL16))
            if OPT["t_pos"] != -2 and not OPT["sib"]: touch_list()
            a.I("v_lshlrev_b32 v%d, 7, v%d\nv_lshl_add_u32 v%d, v%d, 5, v%d\nv_lshl_add_u32 v%d, v%d, 1, v%d\nv_lshlrev_b32 v%d, 3, v0" % (u0, rr, u0, g, u0, u0, cc, u0, u1))
            a.I("s_cmp_ge_u32 %s, 2\ns_cselect_b64 vcc, -1, 0\ns_cselect_b32 %s, 2, 8\nv_cndmask_b32 v%d, v%d, v%d, vcc" % (sW, sT1, u1, u0, u1))
            a.I("s_lshr_b32 %s, %s, 1\ns_add_u32 %s, %s, %d\nv_add_u32 v%d, %s, v%d" % (sT0, sLW, sT0, sT0, L_KV, u1, sT0, u1)); put(aHWR)
            a.I("v_mov_b32 v%d, %s" % (u1, sT1)); put(aHWS)
            a.I("s_mul_i32 %s, %s, 7\ns_add_u32 %s, %s, 6\ns_lshr_b32 %s, %s, 2\ns_lshr_b32 %s, %s, 2" % (sT0, sJ, sT1, sT0, sT0, sT0, sT1, sT1))
            a.I("v_add_u32 v%d, %s, v%d\nv_min_u32 v%d, %s, v%d\ns_mul_i32 %s, %s, 28\nv_add_u32 v%d, %s, v%d" % (u0, sT0, kc, u0, sT1, u0, sT0, sW, u0, sT0, u0))
            a.I("s_add_u32 %s, %s, 112\nv_cmp_gt_u32 vcc, 24, v0\nv_mov_b32 v%d, %s\nv_cndmask_b32 v%d, v%d, v%d, vcc" % (sT0, sJ, u1, sT0, u0, u1, u0))
            a.I("s_mul_i32 %s, %s, 7\ns_lshr_b32 %s, %s, 1\nv_and_b32 v%d, 3, v%d\nv_add_u32 v%d, %s, v%d\nv_lshl_add_u32 v%d, v%d, 3, %s" % (sT0, sW, sT0, sT0, u1, kc, u1, sT0, u1, u1, u1, sC))
            a.I("v_cmp_gt_u32 vcc, 32, v0\nv_cndmask_b32 v%d, v%d, v%d, vcc" % (u0, u1, u0))
            a.I("v_lshlrev_b32 v%d, 7, v%d\nv_add_u32 v%d, %d, v%d" % (u0, u0, u1, LY.FA + 128 * 128, u0)); put(aFB)
            a.I("s_getpc_b64 %s\nL_pc2:\ns_sub_u32 s4, s4, L_pc2-L_pc\ns_subb_u32 s5, s5, 0" % sPC)
            NG, Z, M0_, M1_ = rr, cc, q16, hh
            a.I("s_or_b32 %s, %s, %s\ns_cmp_eq_u32 %s, 0\ns_cselect_b64 s[56:57], -1, 0" % (sT0, sN, sW, sT0))
            a.I("v_mov_b32 v%d, %s\nv_mov_b32 v%d, 0\nv_lshlrev_b32 v%d, 2, v%d\nv_sub_u32 v%d, v%d, v%d" % (NG, NEG, Z, vA, g, vA, tok, vA))
            for r in range(4):
                a.I("v_subrev_u32 v%d, %d, v%d\nv_mov_b32 v%d, %s" % (u0, r, vA, M0_, "0xffff0000" if r & 1 else "0xffff"))
                a.I("v_cmp_gt_u32 vcc, 8, v%d\nv_cmp_gt_i32 s[58:59], -8, v%d\nv_cmp_le_i32 s[60:61], 0, v%d" % (u0, u0, u0))
                a.I("v_cndmask_b32 v%d, v%d, v%d, vcc" % (u1, NG, Z)); put(aBC + r)
                a.I("v_cndmask_b32 v%d, v%d, v%d, s[58:59]" % (u1, NG, Z)); put(aBP + r)
                a.I("v_cndmask_b32 v%d, v%d, v%d, s[56:57]" % (u1, u1, NG)); put(aBP0 + r)
                if r & 1:
                    a.I("v_cndmask_b32 v%d, v%d, v%d, s[60:61]\nv_or_b32 v%d, v%d, v%d" % (u1, Z, M0_, u1, u1, M1_)); put(aMC + r // 2)
                else:
                    a.I("v_cndmask_b32 v%d, v%d, v%d, s[60:61]" % (M1_, Z, M0_))
        n1, n2, n3 = OPT["xd1"], 32 - OPT["fa_ld"], 32 - OPT["fa_ck"]
        assert n1 <= 28
        self.late_flag = []
        if OPT["st_at"]:
            assert OPT["st_at"] < n2
            self.cold.append("L_held:\n%s\ns_branch L_heldback" % "\n".join(held))
            xd[OPT["st_at"]].insert(0, ("i", "s_cmp_ge_u32 s2, 128\ns_cbranch_scc1 L_held\nL_heldback:"))
            self.late_flag = [[("vm", "buffer_store_dword v30, v%d, %s, %s offen sc1" % (LINE, WS, sFBO))]]
        a.I(carry(xd[:n1], consts1, OPT["xd_gap"], 99))
        flags()
        rest = carry(xd[n1:n2], consts2, OPT["xd_per"], OPT["xd_lag"])
        self.stamp("p")
        l_fa, g_fa = self.late_check("buffer_load_dword v%d, v%d, %s, 0 offen sc1" % (PB, FAV, WS), PB, "exec", "fa2")
        l_x, g_x = self.check_ops(0, sMA, PA, "x2")
        if OPT["h_def"] & 1:
            assert "s[58:59]" not in rest or "v_cmp_gt_i32 s[58:59]" in rest.split("s[58:59]")[0] + "s[58:59]"
            self.halo_flag()
        a.run_all(l_x + l_fa)
        a.I(carry(xd[n2:n3], lambda: a.I(rest), OPT["xd_per"], OPT["xd_lag"]) if n3 > n2 else rest)
        if OPT["t_pos"] == -1: a.run_all(self.flat(self.touch(aTO, "0", 0, 20)))
        if OPT["sib"] == 2: sibling()
        while len(swaps) > 1 and swaps[0][1][1] < max(3, min(OPT["x_pre"], n3 // 4)):
            a.run_all(swaps[:5]); swaps = swaps[5:]
        self.page_break(1)
        a.run_all(g_fa + g_x)
        a.ds_drain()
        self.stamp("p")
        self.x_rest, self.x_reads = xd[n3:], swaps

    def qkv(self, ps):
        a = self.a
        xi = 2 * ps
        late = self.wq_late(ps)
        lateb = ps == 0 and "b" not in OPT["order"] and not OPT["lead"]
        bst = []
        wql = [g for ch in late for g in self.wq_chunk(ch)]
        split = ps == 0 and OPT["q0_split"]
        HX, HW, HW2, HF, NM, RL, CQ, RR = 16, 17, 18, 19, 20, 26, 28, ACC + 52
        def setup():
            a.I(self.getc(HX, aHX))
            a.I("s_add_u32 %s, %s, 2048\nv_add_u32 v%d, %s, v%d\nv_add_u32 v%d, 0xc000, v%d\nv_and_b32 v%d, 0x380, v%d" % (sT2, sLW, HW, sT2, vL16, HW2, HW, CQ, vL16))
            if EB:
                self.early_barrier()
                for f in range(6): a.ds("ds_read_b128 %s, %s" % (vr(F + 4 * f, 4), ldsaddr(f * 1024)), ("f", 0, f))
        EB = ps == 1 and OPT["eb"] & 2
        if ps == 0 and OPT["xdir"]:
            a.forget(("fb", "xd"))
            if not OPT["lead"]: setup()
        else:
            self.poll(6 * ps, sMA, self.fav if ps == 0 and not split else None, setup)
        self.stamp()
        xl = self.reg_loads([vr(X + 8 * s + 4 * b, 4) for s in range(16) for b in range(2)], [sXLD] * 32,
                            [LY.XB[xi] + s * 2048 + b * 256 for s in range(16) for b in range(2)], sTA, vQ, "x")
        UP = OPT["q_up"] if ps else OPT["q0_up"]
        xdir = ps == 0 and OPT["xdir"]
        if xdir: xl = []
        if ps == 0:
            late = late[1:]
            n = 4 + OPT["q0_w"]
            first = wql[:4] + xl[:UP] + wql[4:n]
            if split:
                l_fa, g_fa = self.late_check("buffer_load_dword v%d, v%d, %s, 0 offen sc1" % (HF, self.fav, WS), HF, "exec", "fa")
                n1 = OPT["q0_n1"]
                first = xl[:n1] + [l_fa] + xl[n1:UP] + [g_fa + [("i", "s_barrier")]] + wql[:n]
            else:
                first = xl[:2] + [[("i", "s_barrier")]] + wql[:4] + xl[2:UP] + wql[4:n] + (self.halo0 if xdir and not OPT["lead"] else [])
                if OPT["lead"]:
                    assert n <= 12
                    k = 1 + OPT["q0_x"]
                    first[k:k] = [g + [("call", lambda: a.state.pop("m0", None))] for g in self.x_rest]
                    first[OPT["lf_at"]:OPT["lf_at"]] = self.late_flag
            wql = wql[n:]
            if OPT["b_pos"] >= 2:
                k = OPT["b_pos"] - 2
                a.run_all(self.flat(first[:k])); first = first[k:]
                self.b_loads(); a.state.pop("m0", None)
            inb = xdir and OPT["inb"]
            if inb:
                bpre, brd, bst2 = self.second_ops()
                if OPT["inb_at"]:
                    k = OPT["inb_at"] + 1
                    a.run_all(self.flat(first[:k])); first = first[k:]
                    self.b_loads(); a.state.pop("m0", None)
                a.I(bpre)
            elif lateb:
                k = len(first) - OPT["q0_b"]
                a.run_all(self.flat(first[:k])); first = first[k:]
                if OPT["b_pos"] >= 2 or xdir: a.vm_wait(("fb", 24576))
                a.I("s_barrier")
                bst = self.second_unit()
            a.run_all(self.flat(first))
        else:
            a.run_all(self.flat(xl[:UP]))
            if OPT["h_def"] & 2: self.halo_flag()
            if OPT["h_late"]: hflag = self.halo_late(1)
        if ps == 0:
            if OPT["lead"]:
                a.run_all(self.x_reads); setup()
            a.vm_wait(("wq", 0))
            if inb and OPT["inb_ch"] == 0: a.vm_wait(("fb", 24576))
        if not EB: a.I("s_barrier")
        sl = Slots()
        sl.mpatience, sl.patience = OPT["q_mp%d" % ps], OPT["q_vp"]
        use = {}
        acc = lambda blk, b: vr(ACC + 8 * blk + 4 * b, 4)
        hbuf = lambda t: (F + 24, X)[t % 2]
        HR = OPT["hreg"]
        hwreg = (lambda t: X + 32 + 4 * t) if HR else hbuf
        T0 = X if HR else X + 34
        step0 = {}
        H0 = OPT["xd_h0"] if xdir else OPT["q_h0"]
        hpos = {}
        for t in range(16):
            p = (t * 6 * (16 - H0)) // 16 + 1
            hpos.setdefault((H0 + p // 6, p % 6), []).append(t)
        Y, Z = X + 8, X + 96
        BC, BP, BP0, MC, ONES, KW, CSA = Y, Y + 4, Y + 8, Y + 12, Y + 14, Y + 16, Y + 21
        def halo_mfma(t):
            d = acc(6, 0)
            if t < 16:
                i = sl.add("v_mfma_f32_16x16x32_bf16 %s, %s, %s, %s" % (d, vr(hbuf(t) + 4, 4), vr(hwreg(t), 4), "0" if t == 0 else d), [("wds", ("hw", t)), ("wds", ("hx", t))])
            else:
                i = sl.add("v_mfma_f32_16x16x16_bf16 %s, %s, %s, %s" % (d, vr(NM + 4, 2), vr(hbuf(t), 2), d), [("wds", ("hw", t))])
            use[("h", t)] = i
        for s in range(17):
            step0[s] = sl.n()
            if s == 16: halo_mfma(16)
            for f in range(6):
                for b in range(2):
                    pre_ = []
                    if b == 0: pre_.append(("wds", ("f", s, f // OPT["q_grp"] * OPT["q_grp"] + OPT["q_grp"] - 1)))
                    if f == 0 and s < 16 and not xdir: pre_.append(("wvm", ("x", 2 * s + (b if s == 0 else 1))))
                    w = vr(F + 4 * f, 4 if s < 16 else 2)
                    x = vr(X + 8 * s + 4 * b, 4) if s < 16 else vr(NM + 2 * b, 2)
                    A, B = (w, x) if f < 4 else (x, w)
                    d = acc(f, b)
                    mn = "v_mfma_f32_16x16x32_bf16" if s < 16 else "v_mfma_f32_16x16x16_bf16"
                    use[(s, f)] = sl.add("%s %s, %s, %s, %s" % (mn, d, A, B, "0" if s == 0 else d), pre_)
                for t in hpos.get((s, f), ()): halo_mfma(t)
        reads = []
        for s in range(17):
            for f in range(6):
                d = F + 4 * f
                if s < 16: t = "ds_read_b128 %s, %s" % (vr(d, 4), ldsaddr(s * 6144 + f * 1024))
                else: t = "ds_read2st64_b32 %s, v%d offset0:%d offset1:%d" % (vr(d, 2), CSA, 2 * f, 2 * f + 1)
                reads.append((use[(s - 1, f)] if s else -1, (6 * s + f) // 16, ("ds", t, ("f", s, f))))
        hbar = step0[H0 - 1] + 4
        for t in range(17):
            pos = use[("h", t - 2)] if t >= 2 else hbar + 2 + 2 * t
            if t < 16:
                reads.append((use[(max(5 + t // 2, t - 1), 1 + 3 * (t % 2))] if HR else pos, (6 * t + 5) // 16, ("ds", "ds_read_b128 %s, v%d offset:%d" % (vr(hwreg(t), 4), HW if t < 8 else HW2, (t % 8) * 6144), ("hw", t))))
                reads.append((pos + (1 if t >= 2 and not HR else 0), 0, ("ds", "ds_read_b128 %s, v%d offset:%d" % ((vr(hbuf(t) + 4, 4),) + ((T0 + t % 2, t // 2 * 1024) if xdir else (HX, t * 512))), ("hx", t))))
            else:
                reads.append((pos, 6, ("ds", "ds_read2st64_b32 %s, v%d offset0:4 offset1:5" % (vr(hbuf(t), 2), CSA + 1), ("hw", t))))
        sl.put("c", step0[4], [("i", "v_add_u32 v%d, 98304, v%d\ns_lshr_b32 %s, %s, 1\nv_add_u32 v%d, %s, v%d" % (CSA, vFL, sT2, sLW, CSA + 1, sT2, CSA)), ("mark", "csaddr")])
        sl.after(step0[14], ("need", "csaddr"))
        sl.pre[step0[16]].append(("wds", ("nm", 2)))
        chbar = {}
        for ch in late:
            ops = [("wvm", ("wq", ch)), ("i", "s_barrier")]
            p = chbar[ch] = min(p for p, c, _ in reads if c == ch)
            if ps == 0 and inb and ch == OPT["inb_ch"]: ops.insert(0, ("wvm", ("fb", 24576)))
            if lateb and ch == OPT["q0_fbch"]:
                ops.insert(0, ("wvm", "fbs"))
                assert p >= step0[5]
                sl.put("f", p + 1, [("i", "v_mov_b32 v%d, %s\n%s" % (X + 32, sNONCE, self.getc(X + 33, aLINE))),
                                    ("vm", "buffer_store_dword v%d, v%d, %s, %s offen sc1" % (X + 32, X + 33, WS, sFBO))])
            if xdir and ch == 5: ops.insert(0, ("wvm", ("wq", 6)))
            if xdir and ch == 3:
                assert p <= hbar
                ops.insert(0, ("wvm", "halo"))
            if xdir and ch == 6: del chbar[6]
            else: sl.after(p, *ops)
        if not xdir: sl.after(hbar, ("wvm", "halo"), ("i", "s_barrier"))
        if ps == 0 and inb:
            p = chbar.get(OPT["inb_ch"], -1) + 1
            sl.put("b", p, brd)
            for n_, g in enumerate(bst2): sl.put("b", p + OPT["inb_wait"] + n_ * OPT["inb_gap"], g)
            bfree = chbar[OPT["q0_fbch"]] + 2
        if xdir:
            assert H0 >= 7 and not OPT["diagpad"]
            sl.put("g", step0[5], [("i", self.getc(T0, aSH) + "\nv_xor_b32 v%d, 64, v%d" % (T0 + 1, T0)), ("mark", "hx0")])
            sl.after(hbar, ("need", "hx0"))
        for pos, _, rd in reads:
            if pos < 0:
                if not EB: a.run(rd)
            else: sl.after(pos, rd)
        l_hf, g_chk = self.late_check("buffer_load_dword v%d, v%d, %s, %s offen sc1" % (HF, CQ, WS, sT1), HF, sMH, "hf")
        g_hf = [("i", "s_add_u32 %s, %s, %d" % (sT1, sHFL, ps * 16384))] + l_hf
        g_hd = self.dma_chunk(sHALO2, LY.HX[ps], L_HALO, 2, "halo", " sc1")
        g_hs = [("i", "s_add_u32 %s, %s, %d\nv_and_b32 v%d, 7, v0\nv_lshl_add_u32 v%d, v%d, 3, v%d" % (sT1, sHALO, LY.HX[ps] + 8192 + 64, HF, HF, HF, CQ)),
                ("vm", "buffer_load_dwordx2 %s, v%d, %s, %s offen sc1" % (vr(RR + 8, 2), HF, WS, sT1), "st")]
        g_s0 = [("i", "s_add_u32 %s, %s, %d" % (sT0, sSLD, LY.SB[xi])), ("vm", "buffer_load_dwordx4 %s, v%d, %s, %s offen sc1" % (vr(RR, 4), vL16, WS, sT0))]
        g_s1 = [("vm", "buffer_load_dwordx4 %s, v%d, %s, %s offen offset:1024 sc1" % (vr(RR + 4, 4), vL16, WS, sT0))]
        wgq = []
        if HR:
            assert OPT["lead"]
            wbar = min(p for p in ([] if xdir else [hbar]) + list(chbar.values()) if p >= step0[8])
            sl.post[wbar].insert(0, ("wds", ("hw", 5)))
            if ps and self.digits("wg_q1"):
                w2 = step0[max(11, OPT["q_wbar"])]
                while sl.post[w2]: w2 += 1
                sl.after(w2, ("wds", ("hw", 10)), ("i", "s_barrier"))
                assert set(self.digits("wg_q1")) <= {0, 1}
                wgq = [(w2 + 2, g) for g in self.wgs("q", ps)]
        else:
            wbar = max(use[("h", 6)] + 2, step0[OPT["xd_wbar" if xdir else "q_wbar"]])
            while sl.post[wbar]: wbar += 1
            sl.after(wbar, ("i", "s_barrier"))
        wo = [((bfree if ps == 0 and inb else 0) if i < 2 else wbar + 2, g) for i in range(4) for g in self.wo_chunk(i) if not (ps and OPT["skipo"] and WO_SLOT[i] in self.digits("keepo"))]
        rest = xl[UP:]
        h1 = OPT["q_hf"] if ps else OPT["q0_hf"]
        h2 = h1 + OPT["q_chk"] - 2
        seq = rest[:h1] + [g_hf, g_s0, g_s1] + rest[h1:h2] + [g_chk] + g_hd + [g_hs] + rest[h2:]
        if ps and OPT["h_late"]: seq.insert(OPT["h_late"], hflag)
        if xdir:
            k1, k2 = OPT["xd_h1"], OPT["xd_h1"] + OPT["xd_h2"]
            seq = wql[:k1] + [g_hf, g_s0, g_s1] + (self.halo0 if OPT["lead"] else []) + wql[k1:k2] + [g_chk, g_hs] + wql[k2:]
        elif wql:
            due, d = [], sl.n()
            for g in reversed(seq):
                tag = g[-1][2] if len(g[-1]) > 2 else None
                if isinstance(tag, tuple) and tag[0] == "x": d = step0[tag[1] // 2]
                due.append((d, g))
            due.reverse()
            d, wdue = 0, []
            for g in reversed(wql):
                if g[-1][2] is not None: d = chbar[g[-1][2][1]] - OPT["q0_lead"]
                wdue.append((d, g)); d -= 6
            seq = [g for _, g in sorted(due + wdue[::-1], key=lambda t: t[0])]
        for n_, g in enumerate(bst):
            k = OPT["b_first"] + n_ * (OPT["b_gap"] + 1)
            assert not any(op[0] == "vm" and len(op) > 2 and isinstance(op[2], tuple) and op[2][0] == "x" and op[2][1] >= 24 for g2 in seq[:k] for op in g2)
            seq.insert(k, g)
        if ps == 0:
            tch = self.touch(aTO, "0", 0, T0 + 2) if OPT["t_set"] != "-" and OPT["t_pos"] >= 0 else []
            wo[OPT["t_pos"]:OPT["t_pos"]] = [(step0[OPT["t_step"]], g) for g in tch]
            l_fb, g_fb = self.late_check("%s\nbuffer_load_dword v%d, v%d, %s, 0 offen sc1" % (self.getc(Y + 23, aFB), Y + 23, Y + 23, WS), Y + 23, "exec", "fb")
            l_fb = [("i", l_fb[0][1].split("\n")[0]), ("vm", l_fb[0][1].split("\n")[1], "fb")]
            seq += [g + (OPT["q0_tail"] / 10,) for g in wo]
            if OPT["fb_at"] == "att":
                sl.put("f", step0[OPT["q0_fbs"]], l_fb)
                if OPT["wd_q"]:
                    p = step0[OPT["q0_fbs"] + OPT["q0_fbl"]]
                    sl.put("f", p, [("need", "hchk")] + g_fb); g_fb = []
                    g_chk.append(("mark", "hchk"))
                    assert not sl.pace(self.wds("q", ps), p + 2, (sl.n() - p - 4 - OPT["wd_e"]) / OPT["wd_q"], name="f")
            else:
                assert not (self.digits("wg_att0") or self.digits("wg_h10") or OPT["wd_att"] or OPT["wd_h1"])
                self.cold.pop(); g_fb = []
        else:
            seq += wo + wgq
        if OPT["cpf"] & 8: sl.put("g", step0[OPT["cp_q"]], self.flat(self.code_touch("L_qkv%d" % ps, CQ + 1)))
        sl.put("g", step0[12], self.flat(self.code_touch("L_wo%d" % ps, CQ + 1)))
        left = sl.pace(seq, 0, (OPT["q_every"] if ps else OPT["q0_every"]) / 10)
        A0, A1, AH = RR, RR + 4, RR + 8
        st = [[("wvm", "st")]]
        for o in (0, 1): st.append([("i", "v_add_f32_dpp v%d, v%d, v%d row_ror:8 row_mask:0xf bank_mask:0xf" % (AH + o, AH + o, AH + o))])
        for r_ in (A0, A1):
            st.append([("i", "v_add_f32 v%d, v%d, v%d" % (r_, r_, r_ + 2))])
            st.append([("i", "v_add_f32 v%d, v%d, v%d" % (r_ + 1, r_ + 1, r_ + 3))])
        for o in (0, 1): st.append([("i", "v_mov_b32 v%d, v%d" % (AH + 2 + o, AH + o))])
        for o in (0, 1): st.append([("i", "v_permlane32_swap_b32 v%d, v%d" % (A0 + o, A1 + o))])
        for o in (0, 1): st.append([("i", "v_permlane32_swap_b32 v%d, v%d" % (AH + o, AH + 2 + o))])
        for o in (0, 1): st.append([("i", "v_add_f32 v%d, v%d, v%d" % (A0 + o, A0 + o, A1 + o))])
        for o in (0, 1): st.append([("i", "v_add_f32 v%d, v%d, v%d" % (AH + o, AH + o, AH + 2 + o))])
        for o in (0, 1): st.append([("i", "v_permlane16_swap_b32 v%d, v%d" % (A0 + o, AH + o))])
        for o in (0, 1): st.append([("i", "v_add_f32 v%d, v%d, v%d" % (A0 + o, A0 + o, AH + o))])
        st += [[op] for op in self.ln_from_sums(A0, A0 + 1, A0 + 2)]
        st.append([("i", "v_cvt_pk_bf16_f32 v%d, -v%d, -v%d" % (A0, A0, A0))])
        st.append([("i", "v_add_u32 v%d, %s, v%d" % (HF, sTAB, vFL))])
        st.append(([("need", "bdone")] if ps == 0 and inb else []) + [("i", "v_and_or_b32 v30, v%d, 63, %s" % (vFL, sTAB))])
        st.append([("i", "v_and_or_b32 v31, v0, 48, %s" % sTAB)])
        st.append([("ds", "ds_write2st64_b32 v%d, v%d, v%d offset0:0 offset1:1" % (HF, A0 + 1, A0))])
        row = {0: 0, 1: 2, 2: 1}
        for b in range(3):
            o = 64 + row[b] * 16
            st.append([("ds", "ds_read2_b32 %s, v30 offset0:%d offset1:%d" % (vr(NM + 2 * b, 2), o, o), ("nm", b))])
        st.append([("ds", "ds_read2_b32 %s, v30 offset0:0 offset1:32" % vr(RL, 2))])
        for b in range(3):
            st.append([("ds", "ds_read_b128 %s, v31 offset:%d" % (vr(RR + 4 * b, 4), row[b] * 64), ("tab", b))])
        sl.spread(st, step0[OPT["xd_st"]] if xdir else step0[H0] - OPT["q_st"], step0[14])
        cst = [[("i", self.getc(Y + k, aBC + k))] for k in range(14)]
        cst += [[("i", "v_mov_b32 v%d, %s" % (ONES + k, sONE))] for k in range(2)]
        cst += [[("i", self.getc(KW, aHWR))], [("i", self.getc(KW + 3, aHWS))], [("i", "s_add_u32 %s, %s, %d" % (sT2, sLW2, L_KV))],
                [("i", "v_add_u32 v%d, v%d, v%d" % (KW + 1, KW, KW + 3))], [("i", "v_lshl_add_u32 v%d, v0, 3, %s" % (KW + 4, sT2))],
                [("i", "v_add_u32 v%d, v%d, v%d" % (KW + 2, KW + 1, KW + 3))], [("i", "v_add_u32 v%d, v%d, v%d" % (KW + 3, KW + 2, KW + 3))]]
        sl.spread(cst, step0[4] + 2, step0[8], "c")
        Qp = lambda b, h: Z + 4 * h + 2 * b
        Kp = lambda b, h: Z + 8 + 6 * h + 2 * (b + 1)
        Vp = lambda b, h: Z + 20 + 6 * h + 2 * (b + 1)
        HP, HA = HX, ACC + 48
        ar_ = lambda blk, b: ACC + 8 * blk + 4 * b
        cvt = lambda d, s_: "v_cvt_pk_bf16_f32 v%d, v%d, v%d" % (d, s_, s_ + 1)
        tl = [("wds", ("tab", 2)), ("i", "v_mul_f32 v%d, 0x3eb8aa3b, v%d\nv_mul_f32 v%d, 0x3eb8aa3b, v%d" % (CQ, RL, CQ + 1, RL + 1))]
        tl += [("i", "v_mul_f32 v%d, v%d, v%d" % (HA + r, HA + r, RR + 8 + r)) for r in range(4)]
        tl += [("i", cvt(HP, HA)), ("i", cvt(HP + 1, HA + 2))]
        hw = [("ds", "ds_write_b16%s v%d, v%d" % ("_d16_hi" if r & 1 else "", KW + r, HP + r // 2)) for r in range(4)]
        qs = [(h, b) for h in range(2) for b in range(2)]
        sl.put("v", step0[16], tl)
        for n_, (h, b) in enumerate(qs):
            sl.put("v", use[(16, h)], [hw[n_], ("i", cvt(Qp(b, h), ar_(h, b))), ("i", cvt(Qp(b, h) + 1, ar_(h, b) + 2))])
        self.lite(sl, "q", [step0[s] for s in (0, 2, 4, 6, 8, 10, 12, 14)])
        self.report("qkv%d" % ps, sl.emit(a))
        self.stamp()
        body = []
        e = lambda t: body.extend(("i", x) for x in t.split("\n"))
        def pack(dst, src): e(cvt(dst, src) + "\n" + cvt(dst + 1, src + 2))
        def scale_l(src, b):
            for k in range(2): e("v_pk_mul_f32 %s, %s, %s op_sel:[0,%d] op_sel_hi:[1,%d]" % (vr(src + 2 * k, 2), vr(src + 2 * k, 2), vr(RL, 2), b, b))
        def scale_r(src, r0):
            for k in range(2): e("v_pk_mul_f32 %s, %s, %s" % (vr(src + 2 * k, 2), vr(src + 2 * k, 2), vr(r0 + 2 * k, 2)))
        kvw = lambda src, part: body.append(("ds", "ds_write_b64 v%d, %s offset:%d" % (KW + 4, vr(src, 2), 2048 + 512 * part)))
        for h in range(2):
            scale_l(ar_(2 + h, 1), 1); pack(Kp(1, h), ar_(2 + h, 1)); kvw(Kp(1, h), h); scale_l(ar_(2 + h, 0), 0)
        for h in range(2):
            scale_r(ar_(4 + h, 1), RR + 4); pack(Vp(1, h), ar_(4 + h, 1)); kvw(Vp(1, h), 2 + h); scale_r(ar_(4 + h, 0), RR)
        units = [(1, 0), (1, 1), (0, 0), (0, 1)]
        SC = lambda u: F + 8 * u
        SP = lambda u: F + 8 * u + 4
        smf = lambda d, kb, u, bias: "v_mfma_f32_16x16x16_bf16 %s, %s, %s, %s" % (vr(d, 4), vr(Kp(kb, units[u][1]), 2), vr(Qp(*units[u]), 2), vr(bias, 4))
        M = [ACC + u for u in range(4)]
        def merge(u):
            return ["v_max_f32 v%d, v%d, v%d" % (SC(u) + r, SC(u) + r, SP(u) + r) for r in range(4)] + [
                "v_max3_f32 v%d, v%d, v%d, v%d" % (M[u], SC(u), SC(u) + 1, SC(u) + 2), "v_max_f32 v%d, v%d, v%d" % (M[u], M[u], SC(u) + 3)]
        e(smf(SC(0), 1, 0, BC)); pack(Kp(0, 0), ar_(2, 0))
        e(smf(SC(1), 1, 1, BC)); pack(Kp(0, 1), ar_(3, 0))
        e(smf(SP(0), 0, 0, BP))
        if ps == 0: body.extend(g_fb)
        body.extend(("wvm", ("wo", i)) for i in range(2) if not (ps and OPT["skipo"] and WO_SLOT[i] in self.digits("keepo")))
        body.append(("dsdrain",)); e("s_barrier")
        nbar = len(body)
        rdkv = lambda dst, part, tag: body.append(("ds", "ds_read_b64 %s, v%d offset:%d" % (vr(dst, 2), KW + 4, 512 * part), tag))
        e(smf(SP(1), 0, 1, BP)); rdkv(Kp(-1, 0), 0, ("kp", 0)); rdkv(Kp(-1, 1), 1, ("kp", 1))
        e(smf(SC(2), 0, 2, BC)); rdkv(Vp(-1, 0), 2, ("vp", 0)); rdkv(Vp(-1, 1), 3, ("vp", 1))
        e(smf(SC(3), 0, 3, BC)); pack(Vp(0, 0), ar_(4, 0)); pack(Vp(0, 1), ar_(5, 0))
        m0, m1 = merge(0), merge(1)
        e("\n".join(m0))
        body.append(("wds", ("kp", 1)))
        e(smf(SP(2), -1, 2, BP0)); e("\n".join(m1[:2]))
        e(smf(SP(3), -1, 3, BP0)); e("\n".join(m1[2:]))
        e("s_add_u32 %s, %s, %d" % (sT0, sOST, LY.OB[ps]))
        e("\n".join(merge(2)[:2]))
        e("v_permlane32_swap_b32 v%d, v%d" % (M[0], M[1]))
        e("\n".join(merge(2)[2:] + merge(3)))
        e("v_max_f32 v%d, v%d, v%d" % (M[0], M[0], M[1]))
        e("v_permlane32_swap_b32 v%d, v%d\nv_max_f32 v%d, v%d, v%d" % (M[2], M[3], M[2], M[2], M[3]))
        e("v_permlane16_swap_b32 v%d, v%d\nv_max_f32 v%d, v%d, v%d\nv_max_f32 v%d, v%d, v%d" % (M[0], M[2], M[1], M[0], M[2], M[2], M[0], M[2]))
        e("v_permlane16_swap_b32 v%d, v%d" % (M[1], M[2]))
        e("v_mul_f32 v%d, v%d, v%d\nv_mul_f32 v%d, v%d, v%d" % (M[0], M[1], CQ + 1, M[1], M[1], CQ + 1))
        e("v_mul_f32 v%d, v%d, v%d\nv_mul_f32 v%d, v%d, v%d" % (M[3], M[2], CQ, M[2], M[2], CQ))
        def shift(u):
            for k in range(2):
                e("v_pk_fma_f32 %s, %s, %s, %s op_sel:[0,%d,%d] op_sel_hi:[1,%d,%d] neg_lo:[0,0,1] neg_hi:[0,0,1]" %
                  (vr(SC(u) + 2 * k, 2), vr(SC(u) + 2 * k, 2), vr(CQ, 2), vr(ACC + 2 * (u // 2), 2), units[u][0], u % 2, units[u][0], u % 2))
        e("v_permlane32_swap_b32 v%d, v%d" % (M[0], M[1])); shift(0)
        e("v_permlane32_swap_b32 v%d, v%d" % (M[2], M[3])); shift(1); shift(2); shift(3)
        PM = lambda u: ACC + 4 + 2 * u
        PS = lambda u: ACC + 12 + 4 * u
        OP = lambda b: ACC + 28 + 4 * b
        pv = lambda u: "v_mfma_f32_16x16x32_bf16 %s, %s, %s, 0" % (vr(SC(u), 4), vr(Vp(units[u][0] - 1, units[u][1]), 4), vr(PS(u), 4))
        for u, (b, h) in enumerate(units):
            for r in range(4):
                e("v_exp_f32 v%d, v%d" % (SC(u) + r, SC(u) + r))
                if r == 1 and u >= 1: e(pv(u - 1))
            if u == 2: body.append(("wds", ("vp", 1)))
            if u >= 2: e("v_rcp_f32 v%d, v%d" % (SP(u - 2), SP(u - 2)))
            pack(PM(u), SC(u))
            for k in range(2):
                e("v_bfi_b32 v%d, v%d, 0, v%d\nv_and_b32 v%d, v%d, v%d" % (PS(u) + k, MC + k, PM(u) + k, PS(u) + 2 + k, MC + k, PM(u) + k))
            e("v_mfma_f32_16x16x16_bf16 %s, %s, %s, 0" % (vr(SP(u), 4), vr(ONES, 2), vr(PM(u), 2)))
        e("v_rcp_f32 v%d, v%d" % (SP(2), SP(2)))
        e(pv(3))
        def fin(u, packed):
            b, h = units[u]
            if packed:
                for k in range(2): e("v_pk_mul_f32 %s, %s, %s op_sel_hi:[1,0]" % (vr(SC(u) + 2 * k, 2), vr(SC(u) + 2 * k, 2), vr(SP(u), 2)))
            else:
                for r in range(4): e("v_mul_f32 v%d, v%d, v%d" % (SC(u) + r, SC(u) + r, SP(u)))
            pack(OP(b) + 2 * h, SC(u))
            if h == 1:
                body.append(("vm", "buffer_store_dwordx4 %s, v%d, %s, %s offen offset:%d%s" % (vr(OP(b), 4), vQ, WS, sT0, b * 256, " sc1" if ps == 0 and "o" not in OPT["t_set"] else ""), "o" if b == 0 else None))
        fin(0, False); fin(1, True)
        e("v_rcp_f32 v%d, v%d" % (SP(3), SP(3)))
        fin(2, True); fin(3, True)
        left = self.weave(body[:nbar], left, 0, OPT["a_every"])
        stop = len(body) - OPT["a_quiet"]
        left = self.weave(body[nbar:stop], left + self.wgs("att", ps) + self.wds("att", ps), 4, OPT["a_every"])
        a.run_all(body[stop:])
        print("  attention: %d groups left for the hand-off" % len(left))
        self.stamp()
        self.wo_pre(0, OPT["w_pre"])
        self.signal(6 * ps + 1, "o")
        a.run_all(self.flat(left + self.wgs("h1", ps) + self.wds("h1", ps)))
        self.stamp()

    def page_break(self, bit):
        if OPT["pb"] & bit:
            l = self.a.label("page")
            self.a.I("s_branch %s\n.p2align 12\n%s:" % (l, l))

    def early_barrier(self):
        a = self.a
        n = [k for k, t in enumerate(l for l in reversed(a.lines) if l.startswith(("buffer_load", "buffer_store", "global_load"))) if t.endswith(" lds")][0]
        a.vm_wait_n(a.vm_n - n)
        a.ds_drain()
        a.I("s_barrier")

    def wds(self, where, ps):
        if ps: return []
        if self.wd is None:
            ks = [4 * s + cb for s in DN_ORD for cb in range(4)]
            self.wd = self.reg_loads([ar(4 * k, 4) for k in ks], [sWD] * 56, [k * 1024 for k in ks], sTD, vL16, "wd")
        n = OPT.get("wd_" + where, 56)
        out, self.wd = self.wd[:n], self.wd[n:]
        return out

    WREG = [X + 4 * k for k in range(16)] + [ACC + 16 + 4 * k for k in range(12)] + [F + 4 * k for k in range(8)]
    def wo_read(self, k):
        return ("ds", "ds_read_b128 %s, %s" % (vr(self.WREG[k % 36], 4), ldsaddr(WO_SLOT[k // 16] * 16384 + (k % 16) * 1024)), ("w", k))
    def wo_pre(self, k0, k1):
        for k in range(k0, k1): self.a.run(self.wo_read(k))

    def pair_swap(self, dst, src):
        a = self.a
        dpp = "quad_perm:[1,0,3,2] row_mask:0xf bank_mask:0xf"
        a.I("s_mov_b32 vcc_lo, 0x55555555\ns_mov_b32 vcc_hi, 0x55555555")
        for d in range(4): a.I("v_cndmask_b32_dpp v%d, v%d, v%d, vcc %s" % (dst + d, src + 4 + d, src + d, dpp))
        a.I("s_not_b64 vcc, vcc")
        for d in range(4): a.I("v_cndmask_b32_dpp v%d, v%d, v%d, vcc %s" % (dst + 4 + d, src + d, src + 4 + d, dpp))

    def finish(self, A, xo, h, pf, n, halo_pass):
        a = self.a
        for k in range(8): a.I("v_cvt_pk_bf16_f32 v%d, v%d, v%d" % (XRES + k, A + 2 * k, A + 2 * k + 1))
        if xo == 4:
            a.I(self.getc(16, aROW))
            self.pair_swap(F, XRES)
            for e_ in range(2): a.vm("buffer_store_dwordx4 %s, v16, %s, 0 offen offset:%d %s" % (vr(F + 4 * e_, 4), OUT, e_ * 2048, OPT["outf"].strip("-")))
            self.stamp()
            return
        self.publish(xo)
        self.stamp()
        a.run_all(self.flat(pf[:n]))
        self.signal(h, "pub", halo_pass, OPT["h_def"] & 2)
        a.run_all(self.flat(pf[n:]))
        self.stamp()

    def wo(self, ps):
        a = self.a
        def setup():
            for k in range(8):
                a.I("v_lshlrev_b32 v%d, 16, v%d\nv_and_b32 v%d, 0xffff0000, v%d" % (ACC + 2 * k, XRES + k, ACC + 2 * k + 1, XRES + k))
            if OPT["eb"] & 4: self.early_barrier()
        keep = dict(a.ds_tag)
        if OPT["stamps"] and ps == 0:
            a.I("s_memtime s[%d:%d]" % (sST, sST + 1)); a.ds_drain(force=True); a.I("v_writelane_b32 v%d, s%d, 60" % (vSTAMP, sST))
        self.poll(6 * ps + 1, sMC, None, setup)
        a.ds_tag.update((t, n) for t, n in keep.items() if t[0] == "w")
        self.stamp()
        areg = lambda s: vr(X + 64 + 4 * s, 4)
        ld = self.reg_loads([areg(s) for s in range(16)], [sOL] * 16, [LY.OB[ps] + s * 2048 for s in range(16)], sTA, vQ, "act")
        UP = OPT["w_up"]
        g_fb = []
        if ps == 0 and OPT["fb_at"] == "wo":
            l_fb, g_fb = self.late_check("buffer_load_dword v17, v16, %s, 0 offen sc1" % WS, 17, "exec", "fb")
            ld[OPT["fb_k"]] = ld[OPT["fb_k"]] + [("i", self.getc(16, aFB))] + l_fb
        rest = [self.wo_read(k) for k in range(OPT["w_pre"], 32)]
        for n_, g in enumerate(ld[:UP]):
            a.run_all(g)
            if n_ >= 3: a.run_all(rest[:3]); rest = rest[3:]
        a.run_all(rest)
        if not OPT["eb"] & 4: a.I("s_barrier")
        self.wo_pre(32, 36)
        sl = Slots()
        for k in range(64):
            s, cb = divmod(k, 4)
            d = vr(ACC + 4 * cb, 4)
            sl.add("v_mfma_f32_16x16x32_bf16 %s, %s, %s, %s" % (d, vr(self.WREG[k % 36], 4), areg(s), d),
                   [("wds", ("w", k))] + ([("wvm", ("act", s))] if cb == 0 else []))
            if cb == 0 and s + UP < 16: sl.put("m", k, ld[s + UP])
            if k + 36 < 64: sl.put("r", k, [self.wo_read(k + 36)])
        pf = self.wgs("wo", ps) + self.wds("wo", ps)
        p0 = 64 - 4 * UP + 2
        if g_fb:
            p0 = max(p0, OPT["fb_s"])
            sl.put("m", p0 - 3, g_fb + [("i", "s_barrier")])
        pf = sl.pace(pf, p0, 4.4, 64 - OPT["w_quiet"])
        self.lite(sl, "wo", [8 * k for k in range(8)])
        self.report("wo%d" % ps, sl.emit(a))
        self.stamp()
        self.finish(ACC, 2 * ps + 1, 6 * ps + 2, pf + self.wgs("h2", ps) + self.wds("h2", ps), 0, None)

    def dn_plan(self, ps):
        no = OPT["d_own"]
        order = [(i, s) for lv in DN_S for i in range(3) for s in lv]
        order[3 * N1:3 * N1] = [(3, s) for s in DN_ORD[:no]]
        order += [(3, s) for s in sorted(DN_ORD[no:])]
        areg = lambda k: vr(X + 48 + 4 * (k % 16), 4)
        ld = self.reg_loads([areg(k) for k in range(56)], [sHLD[i] for i, s in order], [LY.HB[ps] + s * 2048 for i, s in order], sTA, vQ, "act")
        return order, areg, ld

    def dn(self, ps, issued, wd):
        a = self.a
        order, areg, ld = self.dn_plan(ps)
        XW, XR, R, P, U = 16, 19, 20, (ACC, ACC + 16, ACC + 32), ACC + 48
        io = L_SCR_DN - 65536
        UP = OPT["k_up"]
        widx = {s: n_ for n_, s in enumerate(DN_ORD)}
        wd_e = [g for g in wd if g[-1][2][1] < 4 * N1]
        wd_l = [g for g in wd if g[-1][2][1] >= 4 * N1]
        a.run_all(self.flat(ld[issued:UP] + wd_e))
        if ps == 0:
            a.ds_drain()
            a.I("s_barrier")
        sl = Slots()
        accr = lambda i, cb: (X, X + 16, X + 32, X + 112)[i] + 4 * cb
        seen, endb = set(), {}
        for k, (i, s) in enumerate(order):
            for cb in range(4):
                d = vr(accr(i, cb), 4)
                pre = [("wvm", ("act", k))] if cb == 0 else []
                tag = ("wd", 4 * widx[s] + cb)
                if i == 0 and (tag in a.vm_tag or any(g[-1][2] == tag for g in wd_l)): pre.append(("wvm", tag))
                endb[i] = sl.add("v_mfma_f32_16x16x32_bf16 %s, %s, %s, %s" % (d, ar(16 * s + 4 * cb, 4), areg(k), d if (i, cb) in seen else "0"), pre)
                seen.add((i, cb))
        K1, K2 = 3 * N1 + OPT["d_own"], 3 * N2 + OPT["d_own"]
        chk = {K1: self.chk2, K2: self.check_ops(6 * ps + 5, sMB, PA, "hf3")}
        if self.pending: sl.put("f", OPT["d_mid%d" % ps], self.pending)
        sl.put("f", OPT["d_sig%d" % ps], self.signal_ops(6 * ps + 5, "h6", PB))
        extra = list(wd_l)
        k0 = max(UP, issued)
        assert k0 <= K1
        for k in range(k0, 56):
            p = max(4 * (k - min(OPT["d_up2"], k0 + max(0, k - OPT["d_ramp"]) // 3)), int(OPT["d_min"] / 10 * (k - k0)))
            for kc_ in chk:
                if k == max(k0, kc_ - OPT["d_chk" if kc_ == K1 else "d_chk3"]): sl.put("m", max(p, OPT["d_f%d" % ps] if kc_ == K2 else 0), chk[kc_][0])
            if k in chk:
                due = [g for g in extra if g[-1][2][1] < (4 * N2 if k == K1 else 56)]
                sl.put("m", p, self.flat(due)); extra = extra[len(due):]
                sl.put("m", max(p, OPT["d_f%d" % ps] + OPT["d_flat"] if k == K2 and OPT["d_f%d" % ps] else 0), chk[k][1])
            sl.put("m", p, ld[k])
            sl.put("m", p, self.flat(extra[:1])); extra = extra[1:]
        su = [[("i", "v_add_u32 v%d, %s, v%d" % (XW + i, sXW[i], vL16b))] for i in range(3)] + [[("i", "v_add_u32 v%d, %s, v%d" % (XR, sXR, vL16b))]]
        su += [[("i", "s_lshl_b32 %s, %s, 2\ns_add_u32 %s, %s, %s\ns_lshl_b32 %s, %s, 6\ns_add_u32 %s, %s, %d\nv_and_or_b32 v%d, v%d, 63, %s" %
                 (sT0, sR, sT0, sT0, sW, sT0, sT0, sT0, sT0, L_RS, R, vFL, sT0)), ("ds", "ds_read_b32 v%d, v%d" % (R, R))]]
        for k in range(8):
            su += [[("i", "v_lshlrev_b32 v%d, 16, v%d" % (U + 2 * k, XRES + k))], [("i", "v_and_b32 v%d, 0xffff0000, v%d" % (U + 2 * k + 1, XRES + k))]]
        if OPT["g_c2"]: su.insert(3, [("need", "c2")])
        sl.spread(su, 30, 80)
        if ps == 0 and OPT["cpf"] & 4: sl.put("g", OPT["cp_d"], self.flat(self.code_touch("L_qkv1", 24)))
        writes = lambda i: [[("ds", "ds_write_b128 v%d, %s offset:%d" % (XW + i, vr(accr(i, cb), 4), io + cb * 1024))] for cb in range(4)]
        if OPT["d_w64"]:
            writes = lambda i: [[("ds", "ds_write_b64 v%d, %s offset:%d" % (XW + i, vr(accr(i, cb) + 2 * e_, 2), io + cb * 1024 + 8 * e_))] for cb in range(4) for e_ in range(2)]
        reads = lambda i: [[("ds", "ds_read_b128 %s, v%d offset:%d" % (vr(P[i] + 4 * cb, 4), XR, io + i * 4096 + cb * 1024), ("r", i, cb))] for cb in range(4)]
        add = lambda d, s_: [[("i", "v_add_f32 v%d, v%d, v%d" % (d + e_, d + e_, s_ + e_))] for e_ in range(16)]
        wb = []
        if ps and OPT["wb"]:
            go, back = a.label("wb"), a.label("wbback")
            self.cold.append("%s:\nbuffer_wbl2 sc1\ns_branch %s" % (go, back))
            wb = [[("i", "s_and_b32 %s, %s, %d\ns_or_b32 %s, %s, %s" % (sT1, sJ, 16 // OPT["wb"] - 1, sT1, sT1, sW)),
                   ("vm", "s_cmp_eq_u32 %s, 0\ns_cbranch_scc1 %s\nbuffer_load_dword a255, off, %s, %s nt\n%s:" % (sT1, go, WS, sFLG, back))]]
        bar = [[("dsdrain",), ("i", "s_barrier")]]
        fma = lambda p_: [[("i", "v_fma_f32 v%d, v%d, v%d, v%d" % (U + e_, p_ + e_, R, U + e_))] for e_ in range(16)]
        if OPT["d_own"]:
            for i in range(2): sl.spread(writes(i), endb[i] + 2, endb[i] + 15)
            r01, w2 = reads(0) + reads(1), writes(2)
            mix = [x for n_ in range(4) for x in (r01[2 * n_], r01[2 * n_ + 1], w2[n_])]
            sl.spread(bar + mix, endb[2] + 1, endb[2] + 15)
            sl.spread([[("wds", ("r", 0, 3))]] + fma(P[0])[:8] + bar + wb + reads(2) + fma(P[0])[8:] + fma(P[1]), endb[2] + 16, endb[3] - 1)
        else:
            for i in range(3): sl.spread(writes(i), endb[i] + 2, endb[i] + 17)
            seq = bar + wb + reads(0) + reads(1) + reads(2) + [[("wds", ("r", 1, 3))]] + add(P[0], P[1]) + [[("wds", ("r", 2, 3))]] + add(P[0], P[2]) + fma(P[0])
            sl.spread(seq, endb[2] + 20, endb[3] - 2)
        pf = [] if ps else [g for i in range(7) if i not in self.wq_late(1) + self.kept() for g in self.wq_chunk(i)]
        pf = sl.pace(pf, 224 - 4 * OPT["d_up2"] + 2, 4.4)
        self.lite(sl, "dn", [28 * k for k in range(8)])
        self.report("dn%d" % ps, sl.emit(a))
        self.stamp()
        A = accr(3, 0)
        if OPT["d_own"]:
            a.ds_wait(("r", 2, 3))
            for k in range(8): a.I("v_pk_fma_f32 %s, %s, %s, %s op_sel_hi:[1,0,1]" % (vr(U + 2 * k, 2), vr(P[2] + 2 * k, 2), vr(R, 2), vr(U + 2 * k, 2)))
        for k in range(8): a.I("v_pk_fma_f32 %s, %s, %s, %s op_sel_hi:[1,0,1]" % (vr(A + 2 * k, 2), vr(A + 2 * k, 2), vr(R, 2), vr(U + 2 * k, 2)))
        self.finish(A, 2 * ps + 2, 6, pf, OPT["dn_pre"], None if OPT["h_late"] else 1)

    def gu(self, ps):
        a = self.a
        xi = 2 * ps + 1
        def setup():
            self.early_barrier()
            for k in range(OPT["g_la"]): a.ds("ds_read_b128 %s, %s" % (vr(F + 4 * k, 4), ldsaddr(self.wg_slot(0, ps) * 16384 + k * 1024)), ("f", k))
        EB = OPT["eb"] & 1
        self.poll(6 * ps + 2, sMA, None, setup if EB else None)
        self.stamp()
        S0, TL, NR, XR_ = GS0, 16 - GS0, 8, 10
        SS, NM, HPK, CSA = 16, 24, 28, 21
        A0 = X + 80
        xreg = lambda s, b: X + 8 * (s % XR_) + 4 * b
        acc = lambda bl, m, b: A0 + 16 * bl + 8 * b + 4 * m
        xl = self.reg_loads([vr(xreg(s, b), 4) for s in range(16) for b in range(2)], [sXLD] * 32,
                            [LY.XB[xi] + s * 2048 + b * 256 for s in range(16) for b in range(2)], sTA, vQ, "x")
        UP = OPT["g_up"]
        a.run_all(self.flat(xl[:UP]))
        if not EB: a.I("s_barrier")
        a.I("s_add_u32 %s, %s, %d" % (sT0, sSLD, LY.SB[xi]))
        g_st = [[("vm", "buffer_load_dwordx4 %s, v%d, %s, %s offen sc1" % (vr(SS, 4), vL16, WS, sT0))],
                [("vm", "buffer_load_dwordx4 %s, v%d, %s, %s offen offset:1024 sc1" % (vr(SS + 4, 4), vL16, WS, sT0), "st")]]
        early = self.wg_early(ps)
        NS = len(self.ring(ps))
        assert 0 in early and len(set(early)) == len(early) and all(c < NS and self.wg_slot(c, ps) not in WO_SLOT for c in early)
        assert all(self.wg_slot(c, ps) != 7 for c in self.digits("wg_att%d" % ps) + self.digits("wg_h1%d" % ps)) and not set(self.kept()) - {2, 3, 4, 5}
        frags = [(s, bl, m) for s in range(S0) for bl in range(7) for m in range(2)]
        for bl in range(7): frags += [(s, bl, m) for s in range(S0, 16) for m in range(2)] + [(16, bl, 0)]
        sl = Slots()
        sl.mpatience, sl.patience = OPT["g_mp%d" % ps], OPT["g_vp"]
        first, last, end, xfirst, xlast = {}, {}, {}, {}, {}
        for k, (s, bl, m) in enumerate(frags):
            w = F + 4 * (k % NR)
            for mm, b in ([(m, 0), (m, 1)] if s < 16 else [(0, 0), (0, 1), (1, 0), (1, 1)]):
                G_ = OPT["g_grp"]
                pre = [] if k in first else [("wds", ("f", min(k // G_ * G_ + G_ - 1, len(frags) - 1)))]
                d = vr(acc(bl, mm, b), 4)
                if s < 16:
                    if (s, b) not in xfirst: pre.append(("wvm", ("x", 2 * s + (b if s == 0 else 1))))
                    n_ = sl.add("v_mfma_f32_16x16x32_bf16 %s, %s, %s, %s" % (d, vr(w, 4), vr(xreg(s, b), 4), "0" if s == 0 else d), pre)
                    xfirst.setdefault((s, b), n_); xlast[(s, b)] = n_
                else:
                    n_ = sl.add("v_mfma_f32_16x16x16_bf16 %s, %s, %s, %s" % (d, vr(w + 2 * mm, 2), vr(NM + 2 * b, 2), d), pre)
                first.setdefault(k, n_); last[k] = n_
            end[bl] = n_
        LA = OPT["g_la"]
        def rd(k):
            off = self.wg_slot(k // 16, ps) * 16384 + (k % 16) * 1024
            d = F + 4 * (k % NR)
            if frags[k][0] < 16:
                return [("ds", "ds_read_b128 %s, %s" % (vr(d, 4), ldsaddr(off)), ("f", k))]
            return [("ds", "ds_read2st64_b32 %s, v%d offset0:%d offset1:%d" % (vr(d + 2 * m, 2), CSA + (off >> 16), (off & 0xffff) // 256 + 2 * m, (off & 0xffff) // 256 + 2 * m + 1),
                     ("f", k) if m else None) for m in range(2)]
        for k in range(0 if EB else LA): a.run_all(rd(k))
        barpos, real = {}, []
        retire = lambda c: min(p for p in real if p > last[16 * c + 15])
        for k in range(LA, len(frags)):
            if k % 16 == 0:
                ch = k // 16
                pair = ps == 1 and OPT["g_bar1"] == 2 and ch >= OPT["g_pair0"]
                if pair and (ch - OPT["g_pair0"]) % 2:
                    barpos[ch] = barpos[ch - 1]
                elif ch not in early:
                    p = barpos[ch] = last[k - LA] - 1
                    real.append(p)
                    need = ch + 1 if pair and ch < 14 else ch
                    if need not in early: sl.pre[p + 1].append(("wvm", ("wg", need)))
                    sl.after(p, *(([("wvm", ("wg", need))] if need not in early else []) + [("i", "s_barrier")]))
            sl.after(last[k - LA], *rd(k))
        wl = [(retire(ch - NS) + 2 if ch >= NS else 0, g) for ch in range(15) if ch not in early for g in self.wg_chunk(ch, ps)]
        wdue = [barpos[ch] - 8 * (len(self.wg_chunk(ch, ps)) - 1 - n_) for ch in range(15) if ch not in early for n_ in range(len(self.wg_chunk(ch, ps)))]
        wd = self.wds("rest", ps)
        tail0 = xfirst[(S0, 0)]
        xs = []
        for n_ in range(UP, 32):
            s, b = divmod(n_, 2)
            due = min(xfirst[(s, b)], tail0 - (31 - n_) * OPT["g_xsp"])
            xs.append((due, xlast[(s - XR_, b)] + 1 if s >= XR_ else 0, xl[n_]))
        n_ = OPT["g_stat"]
        xs[n_:n_] = [(xs[n_][0], 0, g) for g in g_st]
        P = lambda key: OPT["g_%s%d" % (key, ps)] / 10
        pos, fab, ix, iw, idd, seq = 0.0, 0.0, 0, 0, 0, []
        stop = end[6] - OPT["g_tail"]
        while ix < len(xs) or iw < len(wl) or (idd < len(wd) and pos <= stop):
            xok = ix < len(xs) and xs[ix][1] <= pos
            xu = xok and xs[ix][0] - pos <= P("xlead")
            wok = iw < len(wl) and wl[iw][0] <= pos
            wu = wok and wdue[iw] - pos <= P("wmin")
            free = fab <= pos + P("slack")
            if xu and (not wu or xs[ix][0] <= wdue[iw] - P("wmin") + P("xlead")): pick = "x"
            elif wu: pick = "w"
            elif free and wok and wdue[iw] - pos <= P("wmax"): pick = "w"
            elif free and idd < len(wd) and pos <= stop: pick = "d"
            elif xok and xs[ix][0] - pos <= P("xmax"): pick = "x"
            else:
                pos = int(pos) + 1; continue
            if pick == "x": g = xs[ix][2]; ix += 1
            elif pick == "w": g = wl[iw][1]; iw += 1; fab = max(fab, pos) + P("wcost")
            else: g = wd[idd]; idd += 1; fab = max(fab, pos) + P("dcost")
            behind = (ix < len(xs) and xs[ix][0] - pos < 0.7 * P("xlead")) or (iw < len(wl) and wdue[iw] - pos < 0.7 * P("wmin"))
            seq.append((pos, g)); pos += 2.0 if behind else P("every")
            if g is g_st[1]: stpos = pos
        assert not sl.pace(seq, 0, 0)
        left = wd[idd:]
        st = [[("wvm", "st")]]
        for r_ in (SS, SS + 4):
            for o in (0, 1): st.append([("i", "v_add_f32 v%d, v%d, v%d" % (r_ + o, r_ + o, r_ + 2 + o))])
        for o in (0, 1): st.append([("i", "v_permlane32_swap_b32 v%d, v%d" % (SS + o, SS + 4 + o))])
        for o in (0, 1): st.append([("i", "v_add_f32 v%d, v%d, v%d" % (SS + o, SS + o, SS + 4 + o))])
        for o in (0, 1): st.append([("i", "v_mov_b32 v%d, v%d" % (SS + 2 + o, SS + o))])
        for k in range(3): st.append([("i", "v_add_u32 v%d, %d, v%d" % (CSA + k, k << 16, vFL))])
        for o in (0, 1): st.append([("i", "v_permlane16_swap_b32 v%d, v%d" % (SS + o, SS + 2 + o))])
        for o in (0, 1): st.append([("i", "v_add_f32 v%d, v%d, v%d" % (SS + o, SS + o, SS + 2 + o))])
        st += [[op] for op in self.ln_from_sums(SS, SS + 1, SS + 2)]
        st += [[("i", "v_cvt_pk_bf16_f32 v%d, -v%d, -v%d" % (NM + k, SS, SS))] for k in range(4)]
        st += [[("i", "v_mul_f32 v%d, v%d, v%d" % (SS + 1, SS + 1, SS + 1))],
               [("i", "s_lshr_b32 %s, %s, 3\ns_add_u32 %s, %s, %d" % (sT0, sLW, sT0, sT0, L_RS))],
               [("i", "v_and_or_b32 v%d, v%d, 63, %s" % (SS, vFL, sT0))], [("i", "v_and_b32 v%d, 32, v0" % (SS + 2))],
               [("i", "v_lshl_add_u32 v%d, v%d, 1, v%d" % (SS, SS + 2, SS))]]
        st += [[("i", "v_permlane32_swap_b32 v%d, v%d" % (NM + k, NM + 2 + k))] for k in range(2)] + [[("mark", "nm")]]
        sl.after(tail0 - 2 * LA, ("need", "nm"))
        sl.spread(st, int(stpos) + 40, tail0 - 2 * LA - 10)
        held = []
        def epi(bl, packed=False):
            g = []
            H = acc(bl, 1, 0)
            for b in range(2):
                ga = acc(bl, 0, b)
                g += [[("i", "v_max_f32 v%d, 0, v%d" % (ga + r, ga + r))] for r in range(4)]
                if packed: g += [[("i", "v_pk_mul_f32 %s, %s, %s" % (vr(ga + r, 2), vr(ga + r, 2), vr(ga + 4 + r, 2)))] for r in (0, 2)]
                else: g += [[("i", "v_mul_f32 v%d, v%d, v%d" % (ga + r, ga + r, ga + 4 + r))] for r in range(4)]
                g += [[("i", "v_cvt_pk_bf16_f32 v%d, v%d, v%d" % (H + 2 * b + k, ga + 2 * k, ga + 2 * k + 1))] for k in range(2)]
            out = [[("i", "s_add_u32 %s, %s, %s" % ((sTS, sTS, sHSTEP) if bl else (sTS, sHST, LY.HB[ps])))],
                   [("vm", "buffer_store_dwordx4 %s, v%d, %s, %s offen%s" % (vr(H, 4), vL16, WS, sTS, {"s": " sc1", "n": " nt", "p": ""}[OPT["h_st%d" % ps][bl]]), "h%d" % bl)]]
            if bl in self.digits("h_rb%d" % ps):
                out.append([("vm", "buffer_load_dword a255, v%d, %s, %s offen sc1" % (vL16, WS, sTS))])
            sw = [[("i", "v_permlane16_swap_b32 v%d, v%d" % (H + k, H + 2 + k))] for k in range(2)]
            if bl in self.digits("h_hold%d" % ps):
                held.extend(out)
                return g + sw
            g += held + out[:1] + sw + out[1:]
            del held[:]
            return g
        for bl in range(6): sl.spread(epi(bl), end[bl] + 1, end[bl + 1] - OPT["g_epi"])
        l_e, g_e = self.check_ops(6 * ps + 3, sMB, SS + 3, "he")
        sl.put("f", end[3 - LV] + OPT["g_sig%d" % ps], self.signal_ops(6 * ps + 3, "h%d" % (2 - LV), SS + 4))
        self.pending = self.signal_ops(6 * ps + 4, "h%d" % (4 - LV), SS + 4)
        if OPT["d_mid%d" % ps] < 0:
            sl.put("f", end[5 - LV] + OPT["g_sig%d" % ps], self.pending); self.pending = None
        self.chk2 = self.check_ops(6 * ps + 4, sMB, SS + 3 if OPT["g_c2"] else PA, "hf2")
        nh = OPT["g_h%d" % ps]
        assert S0 >= 10 and nh <= 12
        p = end[6] - OPT["g_chk%d" % ps]
        sl.put("h", p - OPT["g_lat%d" % ps], l_e)
        if nh:
            sl.put("h", p, g_e); g_e = []
            hl = self.dn_plan(ps)[2][:nh]
            if OPT["g_c2"]:
                hl.insert(nh + 1 - OPT["g_c2"], self.chk2[0]); self.chk2 = ([], self.chk2[1] + [("mark", "c2")])
            assert not sl.pace(hl, p + 1, min(4.4, (end[6] - p - 2) / len(hl)), name="h")
        if OPT["cpf"] & 2: sl.put("g", OPT["cp_g"], self.flat(self.code_touch("L_gu%d" % ps, HPK)))
        sl.put("g", tail0 + OPT["cp_t"], self.flat(self.code_touch("L_dn%d" % ps, SS + 3)))
        sl.put("c", max(tail0, retire(max(c for c in range(14) if self.wg_slot(c, ps) == 6)) + 1), [("ds", "ds_write_b32 v%d, v%d" % (SS, SS + 1))])
        if ps == 0:
            sl.put("c", end[6] - 8, [("i", "s_or_b32 %s, s2, %s" % (sT0, sW)), ("atom", "s_cmp_eq_u32 %s, 0\ns_cselect_b32 %s, %d, 0x%x" % (sT0, sT0, LY.EPOCH, OOB)),
                                     ("i", "v_mov_b32 v%d, %s" % (SS + 2, sNONCE)),
                                     ("vm", "buffer_store_dword v%d, v%d, %s, %s offen" % (SS + 2, vF1, WS, sT0))])
        self.lite(sl, "g", [56 * k for k in range(8)])
        self.report("gu%d" % ps, sl.emit(a))
        a.run_all(self.flat(epi(6, True)))

        self.stamp()
        a.run_all(g_e)
        self.stamp()
        print("  gu: %d loads left for the hand-off" % len(left))
        return nh, left

    def build(self):
        a = self.a
        (self.startup2 if OPT["lead"] else self.startup)()
        for ps in range(2):
            if ps: self.page_break(4)
            a.I("L_qkv%d:" % ps); self.qkv(ps)
            a.I("L_wo%d:" % ps); self.wo(ps)
            self.page_break(8 if ps else 2)
            a.I("L_gu%d:" % ps); left = self.gu(ps)
            a.I("L_dn%d:" % ps); self.dn(ps, *left)
        if OPT["stamps"]:
            a.I("s_waitcnt vmcnt(0)\ns_memrealtime s[6:7]\ns_memtime s[80:81]\ns_waitcnt lgkmcnt(0)\nv_writelane_b32 v%d, s6, 63\nv_writelane_b32 v%d, s80, 61" % (vSTAMP, vSTAMP))
            a.I("s_lshl_b32 %s, s2, 10\ns_lshl_b32 %s, %s, 8\ns_add_u32 %s, %s, %s\ns_add_u32 %s, %s, %d" % (sT0, sT1, sW, sT0, sT0, sT1, sT0, sT0, LY.STAMP))
            a.I("buffer_store_dword v%d, v%d, %s, %s offen" % (vSTAMP, vFL, WS, sT0))
        if OPT["diagpad"]:
            a.I("s_mov_b32 s82, %d" % OPT["diagpad"])
            if OPT["diagat"]:
                a.I("s_sub_u32 s83, s%d, s14\ns_lshl_b32 s83, s83, 2" % sST)
                if OPT["diagwg"] >= 0: a.I("s_cmp_eq_u32 s2, %d\ns_cselect_b32 s83, s83, 0" % OPT["diagwg"])
                a.I("s_add_u32 s82, s82, s83")
            a.I("L_pad:\ns_memrealtime s[80:81]\ns_waitcnt lgkmcnt(0)\ns_sub_u32 s80, s80, s14\ns_cmp_lt_u32 s80, s82\ns_cbranch_scc1 L_pad")
        a.I("L_main_done:\ns_endpgm")
        for c in self.cold: a.I(c)
        a.I("L_code_end:")
        return a.lines

def main():
    ml, n2 = hazard_pass(Main().build())
    for half in range(2):
        alt = role_path(ml, half)
        bad = check_async(alt)
        assert not bad and hazard_pass(alt)[1] == 0, bad[:3]
    k = NAME + "_kernel"
    out = ["; Generated by gen/gen.py. " + " ".join(sys.argv[2:]),
           "; One persistent kernel, one workgroup per CU. Kernarg: x, wqkv, wo, (unused), w_gate, w_up, w_down, out, debug, ws.",
           "; Rows of one parity form an independent sequence; 16 workgroups share a block of 128 such rows through all four layers:",
           ";   start-up : weights re-laid out once in MFMA fragment order (plus column sums for the LayerNorm mean) in the workspace",
           ";   qkv      : 128 rows x 2 heads, LayerNorm folded in, windowed attention in registers",
           ";   wo / dn  : 64 x 64 output tiles plus residual, partial LayerNorm sums published with the tile",
           ";   gu       : 128 rows x 112 hidden columns, ReGLU in the epilogue",
           "; Hand-offs use flags tagged with a per-launch value derived from a workspace word. A group whose members are on one die",
           "; (checked at run time) hands over through that die's L2; any other group uses release / acquire at device scope.",
           "; @launch grid=(256,1,1) block=(256,1,1) lds=163840",
           '.amdgcn_target "amdgcn-amd-amdhsa--gfx950"', ".text",
           ".globl %s" % k, ".p2align %d" % OPT["align"], ".p2align 8", ".type %s,@function" % k]
    out += [l if l.endswith(":") else "    " + l for l in ml]
    out += ['.section .rodata,"a"', ".p2align 6", """.amdhsa_kernel %s
  .amdhsa_next_free_vgpr 512
  .amdhsa_next_free_sgpr 102
  .amdhsa_accum_offset 256
  .amdhsa_group_segment_fixed_size 0
  .amdhsa_kernarg_size 80
  .amdhsa_user_sgpr_count 2
  .amdhsa_user_sgpr_kernarg_segment_ptr 1
  .amdhsa_system_sgpr_workgroup_id_x 1
  .amdhsa_float_denorm_mode_32 3
.end_amdhsa_kernel""" % k]
    if OPT["rt"]: out = [l.replace("s_memtime", "s_memrealtime") for l in out]
    open(sys.argv[1], "w").write("\n".join(out) + "\n")
    print("instructions: %d ; wait states added: %d" % (len(ml), n2))

main()
```

```python
import sys
from dsl import Asm, Slots, hazard_pass, check_async, role_path
import layout as LY

NAME = "interleave_layers__sliding_local_dilated__glu_gated_reglu__prompt"
OPT = dict(stamps=0, lite="-", hitw=0,
           q_up=8, q_every=42, q_hf=12, q_chk=6, q_h0=11, a_every=14, k_up=8, g_up=4, g_tail=0, g_la=7, g_xsp=11, g_stat=6,
           g_every0=36, g_xlead0=400, g_wmin0=600, g_wmax0=1000, g_slack0=40, g_wcost0=60, g_dcost0=30,
           g_xmax0=9000, g_xmax1=800, g_every1=46, g_xlead1=400, g_wmin1=700, g_wmax1=1400, g_slack1=40, g_wcost1=60, g_dcost1=30,
           wq_late1="-", dn_pre=6, q0_up=6, q0_lead=20, q0_every=46,
           wg_att0="0", wg_h10="-", wg_wo0="1", wg_h20="-",
           wg_att1="2", wg_h11="-", wg_wo1="3", wg_h21="-",
           hreg=1, poll2=0, snake=0, dfirst=0, follow2="-", q0_fd=20, q0_fdl=40, spf=0, spf_e=22, st_at=0, st_hold=0, lf_at=1, pb=15, near=1, align=12, h_late=0, h_rb0="-", h_rb1="-", d_own=0, h_hold0="-", h_hold1="-", eb=1, h_def=0, q0_fbl=3, wd_e=0, t_step=5, wg_q0="-", wg_q1="01", keep="2345", keepo="-", skipo=0, q_wbar=12, w_pre=20, w_up=8, w_quiet=12, d_sig0=16, d_sig1=16, d_up2=11, d_ramp=8, d_mid0=-1, d_mid1=-1, d_chk=8, d_chk3=8, d_f0=0, d_f1=0, d_min=0, g_c2=0, d_flat=20, g_epi=6, g_sig0=27, g_sig1=16, g_chk0=20, g_chk1=26, g_lat0=12, g_lat1=12, g_h0=4, g_h1=6,
           touch=0, h_st0="sssssss", h_st1="sspssss", x0f="sc1", wb=0, otouch=1, diagpad=0, diagat=0, diagwg=100, b_pos=1, q0_split=0, q0_n1=6, q0_hf=6, order="aoc", rt=0, lead=1, follow="guxcd", fa_ld=4, x_pre=3, sib=0, fa_ck=0, q0_x=4, rot=0, xdir=1, xd0=2, xd1=8, xd_lag=14, xd_pre=0, xd_per=7, t_set="ox", t_pos=16, fb_at="att", fb_k=7, fb_s=36, inb=0, inb_at=0, inb_ch=1, inb_gap=6, inb_wait=0, xd_gap=6, xd_h1=0, xd_h2=6, xd_h0=8, xd_st=8, xd_wbar=10, q_mp0=999, q_mp1=2, q_vp=10, g_mp0=2, g_mp1=999, g_vp=10, d_w64=0, q_st=0, g_grp=3, q_grp=3, g_bar1=2, g_pair0=13, outf="nt", c_early=0, b_spread=0, b_first=0, b_gap=3, pollf="nt", actf="sc1", wf="sc1", cpf=7, cp_g=60, cp_t=0, cp_d=150, cp_q=6, predrain=0, q0_b=0, q0_fbch=3, q0_fbs=9, q0_w=8, q0_tail=36, a_quiet=30, wd_q=10, wd_att=0, wd_h1=0, wd_wo=0, wd_h2=0)
for arg in sys.argv[2:]:
    k, v = arg.split("=")
    OPT[k] = v if isinstance(OPT[k], str) else int(v)

def vr(b, n): return "v[%d:%d]" % (b, b + n - 1)
def ar(b, n): return "a[%d:%d]" % (b, b + n - 1)
def magic(d): return (1 << 32) // d + 1
OOB = 0x40000000
GS0 = LY.GS0

WS, XIN, OUT = "s[8:11]", "s[12:15]", "s[16:19]"
sW, sJ, sR, sC, sG, sN, sNONCE, sSLOW = ("s%d" % i for i in range(20, 28))
sGB, sXLD, sXST, sOST, sXR, sHST, sSLD, sWQ, sWG, sWO, sWD, sLW = ("s%d" % i for i in range(28, 40))
sMA, sMB = "s[40:41]", "s[42:43]"
sFLG, sFLW, sHALO, sHFL, sTAB, sSST, sONE, sHDST, sHDFL, sP = ("s%d" % i for i in range(44, 54))
sMH = "s[54:55]"
sTA, sTW, sTD, sTS, sT0, sT1, sT2, sSPIN = ("s%d" % i for i in range(56, 64))
sHLD = ["s%d" % i for i in range(68, 72)]
sXW = ["s%d" % i for i in range(72, 75)]
sFBO, sB0, sB1, sB2, sB3 = "s75", "s76", "s77", "s78", "s79"
SRC_A, SRC_G, SRC_U, SRC_D = 80, 84, 88, 92
sLW2, sLW4, sWQ4, sWG4 = "s96", "s97", "s98", "s99"
sST = 100
LITE = (84, 86, 88, 90, 92, 94, 76, 78)
sHALO2 = sP
sNH, sCPO, sPC, sSLOW2 = "s12", "s13", "s[4:5]", "s[0:1]"
sOL, sHSTEP, sMC = "s64", "s65", "s[66:67]"
vL, vL16, vL16b, vL16c, vQ, vF1, vFL, vSTAMP = 0, 1, 2, 3, 4, 5, 6, 7
XRES = 8
PA, PB = 22, 23
X, ACC, F = 32, 160, 224
aROW, aST, aSQ, aSH, aSG, aHX, aHWR, aHWS, aHST, aHSS, aFB, aLINE, aTO, aTH = range(224, 238)
aBC, aBP, aBP0, aMC = 240, 244, 248, 252
L_HALO, L_RS, L_KV, L_TAB, L_FMT = 102400, 110592, 114688, 124928, 131072
L_SCR_DN = 114688
WO_SLOT = (8, 9, 0, 1)
DN_S = ((2, 3, 4, 9, 10, 11), (1, 5, 8, 12), (0, 6, 7, 13))
LV = LY.LV
if LV: DN_S = DN_S[::-1]
DN_ORD = sum(DN_S, ())
N1, N2 = len(DN_S[0]), len(DN_S[0]) + len(DN_S[1])
BIT = "s_bitcmp0_b32" if LV else "s_bitcmp1_b32"
NEG = "0xf149f2ca"

def ldsaddr(off):
    return "v%d offset:%d" % ((vL16, vL16b, vL16c)[off >> 16], off & 0xffff)

def isvm(g): return any(op[0] == "vm" for op in g)

class Main:
    def __init__(self):
        self.a = Asm()
        self.nstamp = 0
        self.cold = []
        self.nlite = 0
        self.wd = None
        self.ncall = 0

    def stamp(self, key=None):
        self.ncall += 1
        if OPT["diagpad"] and OPT["diagat"] == self.ncall:
            self.a.I("s_memrealtime s[%d:%d]" % (sST, sST + 1))
            self.a.ds_drain(force=True)
        if OPT["stamps"] != 1 or (key is not None and OPT["lite"] != key):
            return
        a = self.a
        a.I("s_memtime s[%d:%d]" % (sST, sST + 1))
        a.ds_drain(force=True)
        for k in range(self.nlite):
            a.I("v_writelane_b32 v%d, s%d, %d" % (vSTAMP, LITE[k], self.nstamp))
            self.nstamp += 1
        self.nlite = 0
        a.I("v_writelane_b32 v%d, s%d, %d" % (vSTAMP, sST, self.nstamp))
        self.nstamp += 1

    def lite(self, sl, key, slots):
        if OPT["lite"] != key:
            return
        for i in slots[:8]:
            sl.after(i, ("i", "s_memtime s[%d:%d]" % (LITE[self.nlite], LITE[self.nlite] + 1)))
            self.nlite += 1

    def report(self, name, r):
        print("  %s: cycles over budget %d, ops left after the loop %d" % ((name,) + r))

    def getc(self, v, acc): return "v_accvgpr_read_b32 v%d, a%d" % (v, acc)
    def flat(self, groups): return [op for g in groups for op in g]
    def digits(self, key): return tuple(int(c, 16) for c in str(OPT[key]) if c != "-")
    def wgs(self, where, ps): return [g for i in self.digits("wg_%s%d" % (where, ps)) for g in self.wg_chunk(i, ps)]
    def wg_early(self, ps): return sum((self.digits("wg_%s%d" % (w, ps)) for w in ("q", "att", "h1", "wo", "h2")), ())
    def wq_late(self, ps): return tuple(range(7)) if ps == 0 else self.digits("wq_late1")

    def srd(self, base, lo, hi, nbytes):
        self.a.I("s_mov_b32 s%d, %s\ns_and_b32 s%d, %s, 0xffff\ns_mov_b32 s%d, %s\ns_mov_b32 s%d, 0x20000" %
                 (base, lo, base + 1, hi, base + 2, nbytes, base + 3))

    def lin(self, dst, base, terms):
        first = True
        for reg, mul in terms:
            self.a.I("s_mul_i32 %s, %s, %d\ns_add_u32 %s, %s, %s" % (sT2, reg, mul, dst, base if first else dst, sT2))
            first = False

    def sdivmod(self, q, r, x, d):
        self.a.I("s_mul_hi_u32 %s, %s, 0x%x\ns_mul_i32 %s, %s, %d\ns_sub_u32 %s, %s, %s" % (q, x, magic(d), sT2, q, d, r, x, sT2))

    def hi_lo(self, dst, src, t):
        return ["v_cvt_pk_bf16_f32 v%d, v%d, v%d" % (dst, src, src), "v_lshlrev_b32 v%d, 16, v%d" % (t, dst),
                "v_sub_f32 v%d, v%d, v%d" % (t, src, t), "v_cvt_pk_bf16_f32 v%d, v%d, v%d" % (dst, src, t)]

    def scc_live(self, body, n):
        for t in body[n:]:
            mn = t.split()[0]
            if mn.startswith(("s_cselect", "s_subb", "s_addc", "s_cbranch_scc")) or t.endswith(":"): return True
            if mn.startswith(("s_cmp", "s_bitcmp", "s_add_", "s_sub_", "s_and_", "s_or_", "s_xor_", "s_lshl", "s_lshr", "s_min", "s_max", "s_bfe")): return False
        return False

    def weave(self, body, groups, first, every):
        k = 0
        for n_, op in enumerate(body):
            if n_ >= first and (n_ - first) % every == 0:
                while k < len(groups):
                    g = groups[k]; k += 1
                    self.a.run_all(g)
                    if isvm(g): break
            self.a.run(op)
        return groups[k:]

    def signal(self, h, wait=None, halo_pass=None, defer=False):
        a = self.a
        slow, done = a.label("slow"), a.label("sig")
        a.I("s_add_u32 %s, %s, %d\nv_mov_b32 v30, %s" % (sNH, sNONCE, h, sNH))
        if halo_pass is not None:
            h1, b1, h2, b2 = a.label("halo"), a.label("hback"), a.label("halo"), a.label("hback")
            n = a.vm_n - max(a.vm_tag[wait], a.vm_done)
            nx = 0 if halo_pass == 0 and OPT["xdir"] else 2
            a.I("s_cmp_lg_u32 %s, 0x%x\ns_cbranch_scc1 %s" % (sHDST, OOB, h1))
            st = "\n".join("buffer_store_dwordx4 %s, v24, %s, %s offen offset:%d sc1" % (vr(XRES + 4 * e, 4), WS, sTS, e * 512) for e in range(nx))
            self.cold.append("%s:\n%s\n%s\ns_add_u32 %s, %s, %d\n%s\nv_permlane32_swap_b32 v26, v27\nbuffer_store_dwordx2 v[26:27], v25, %s, %s offen sc1\ns_waitcnt vmcnt(%d)\ns_branch %s" %
                             (h1, "v_mov_b32 v27, v26\n" + self.getc(24, aHST), self.getc(25, aHSS), sTS, sHDST, LY.HX[halo_pass], st, WS, sTS, n + 1 + nx, b1))
            a.vm_wait(wait)
            a.I("%s:\ns_cmp_lg_u32 %s, 0" % (b1, sSLOW))
        else:
            a.I("s_cmp_lg_u32 %s, 0" % sSLOW)
            if wait is None: a.vm_drain()
            else: a.vm_wait(wait)
        a.I("s_cbranch_scc1 %s" % slow)
        seq = a.vm("buffer_store_dword v30, v%d, %s, %s offen" % (vF1, WS, sFLW))
        a.I("%s:" % done)
        self.cold.append("%s:\nbuffer_wbl2 sc1\ns_waitcnt vmcnt(0)\nbuffer_store_dword v30, v%d, %s, %s offen sc1\ns_branch %s" % (slow, vF1, WS, sFLW, done))
        self.sent = h
        def halo_flag():
            self.cold.append("%s:\ns_add_u32 %s, %s, %d\nv_mov_b32 v24, %s\n%s\ns_waitcnt vmcnt(%d)\nbuffer_store_dword v24, v25, %s, %s offen sc1\ns_branch %s" %
                             (h2, sTS, sHDFL, halo_pass * 16384, sNONCE, self.getc(25, aLINE), a.vm_n - seq + 1, WS, sTS, b2))
            a.I("s_cmp_lg_u32 %s, 0x%x\ns_cbranch_scc1 %s\n%s:" % (sHDST, OOB, h2, b2))
        if halo_pass is not None:
            if defer: self.halo_flag = halo_flag
            else: halo_flag()

    def poll(self, h, mask, also=None, setup=None):
        a = self.a
        a.forget()
        assert self.sent == h
        if setup: setup()
        def loop(name, fl):
            ld = "buffer_load_dword v%d, v%d, %s, %s offen %s" % (PA, vFL, WS, sFLG, fl)
            ts = "v_subrev_u32 v%d, %s, v%d\nv_cmp_lt_u32 vcc, 15, v%d\ns_and_b64 vcc, vcc, %s" % (PA, sNH, PA, PA, mask)
            if also is not None:
                ld += "\nbuffer_load_dword v%d, v%d, %s, 0 offen sc1" % (PB, also, WS)
                ts = "v_cmp_ne_u32 s[60:61], %s, v%d\n%s\ns_or_b64 vcc, vcc, s[60:61]" % (sNONCE, PB, ts)
            return "%s:\n%s\ns_sub_u32 %s, %s, 1\ns_cbranch_scc1 L_main_done\ns_waitcnt vmcnt(0)\n%s\ns_cbranch_scc1 %s" % (name, ld, sSPIN, sSPIN, ts, name)
        far, ok = a.label("far"), a.label("ok")
        a.I("s_mov_b32 %s, 0x40000\ns_cmp_lg_u32 %s, 0\ns_cbranch_scc1 %s" % (sSPIN, sSLOW, far))
        if OPT["poll2"] and also is None:
            name = a.label("poll")
            ld = lambda r: "buffer_load_dword v%d, v%d, %s, %s offen %s" % (r, vFL, WS, sFLG, OPT["pollf"])
            ts = lambda r: "s_waitcnt vmcnt(1)\nv_subrev_u32 v%d, %s, v%d\nv_cmp_lt_u32 vcc, 15, v%d\ns_and_b64 vcc, vcc, %s" % (r, sNH, r, r, mask)
            a.I(ld(PA))
            for k in range(OPT["poll2"]): a.I("s_nop 7")
            a.I("%s:\n%s\n%s\ns_cbranch_scc0 %s\n%s\ns_sub_u32 %s, %s, 1\ns_cbranch_scc1 L_main_done\n%s\ns_cbranch_scc1 %s\n%s:" %
                (name, ld(PB), ts(PA), ok, ld(PA), sSPIN, sSPIN, ts(PB), name, ok))
            a.vm_done = a.vm_n
            a.vm_n += 1
        else:
            a.I(loop(a.label("poll"), OPT["pollf"]) + "\n%s:" % ok)
            a.vm_done = a.vm_n
        self.cold.append(loop(far, "sc1") + "\nbuffer_inv sc1\ns_waitcnt vmcnt(0)\ns_branch %s" % ok)

    def halo_late(self, hp):
        a = self.a
        h1, b1, h2, b2 = a.label("halo"), a.label("hback"), a.label("halo"), a.label("hback")
        st = "\n".join("buffer_store_dwordx4 %s, v24, %s, %s offen offset:%d sc1" % (vr(XRES + 4 * e, 4), WS, sTS, e * 512) for e in range(2))
        self.cold.append("%s:\n%s\n%s\ns_add_u32 %s, %s, %d\n%s\nbuffer_store_dword v26, v25, %s, %s offen sc1\ns_branch %s" %
                         (h1, self.getc(24, aHST), self.getc(25, aHSS), sTS, sHDST, LY.HX[hp], st, WS, sTS, b1))
        a.I("s_cmp_lg_u32 %s, 0x%x\ns_cbranch_scc1 %s\n%s:" % (sHDST, OOB, h1, b1))
        seq = a.vm_n
        def flag():
            self.cold.append("%s:\ns_add_u32 %s, %s, %d\nv_mov_b32 v24, %s\n%s\ns_waitcnt vmcnt(%d)\nbuffer_store_dword v24, v25, %s, %s offen sc1\ns_branch %s" %
                             (h2, sTS, sHDFL, hp * 16384, sNONCE, self.getc(25, aLINE), a.vm_n - seq, WS, sTS, b2))
        return [("call", flag), ("atom", "s_cmp_lg_u32 %s, 0x%x\ns_cbranch_scc1 %s\n%s:" % (sHDST, OOB, h2, b2))]

    def signal_ops(self, h, wait, reg):
        a = self.a
        slow, done = a.label("slow"), a.label("sig")
        self.cold.append("%s:\nbuffer_wbl2 sc1\ns_waitcnt vmcnt(0)\nbuffer_store_dword v%d, v%d, %s, %s offen sc1\ns_branch %s" % (slow, reg, vF1, WS, sFLW, done))
        return [("i", "s_add_u32 %s, %s, %d" % (sNH, sNONCE, h)), ("i", "v_mov_b32 v%d, %s" % (reg, sNH)), ("wvm", wait),
                ("vm", "s_cmp_lg_u32 %s, 0\ns_cbranch_scc1 %s\nbuffer_store_dword v%d, v%d, %s, %s offen\n%s:" % (sSLOW, slow, reg, vF1, WS, sFLW, done))]

    def check_ops(self, h, mask, reg, tag):
        a = self.a
        spin, back = a.label("cspin"), a.label("cback")
        ld = lambda fl: "buffer_load_dword v%d, v%d, %s, %s offen %s" % (reg, vFL, WS, sFLG, fl)
        t = ["v_subrev_u32 v%d, s3, v%d" % (reg, reg), "v_cmp_lt_u32 vcc, 15, v%d" % reg, "s_and_b64 vcc, vcc, %s" % mask]
        loop = lambda name, fl: "%s:\n%s\ns_sub_u32 %s, %s, 1\ns_cbranch_scc1 L_main_done\ns_waitcnt vmcnt(0)\n%s\ns_cbranch_scc1 %s" % (name, ld(fl), sSPIN, sSPIN, "\n".join(t), name)
        self.cold.append("%s:\ns_mov_b32 %s, 0x40000\ns_cmp_lg_u32 %s, 0\ns_cbranch_scc1 %s_f\n%s\ns_branch %s\n%s\nbuffer_inv sc1\ns_waitcnt vmcnt(0)\ns_branch %s" %
                         (spin, sSPIN, sSLOW, spin, loop(spin + "_n", OPT["pollf"]), back, loop(spin + "_f", "sc1"), back))
        return [("vm", ld(OPT["pollf"]), tag)], [("i", "s_add_u32 s3, %s, %d" % (sNONCE, h)), ("wvm", tag), ("i", t[0]), ("i", t[1]),
                                                ("atom", "%s\ns_or_b64 vcc, vcc, %s\ns_cbranch_scc1 %s\n%s:" % (t[2], sSLOW2, spin, back))]

    def late_check(self, load, reg, mask, tag):
        a = self.a
        spin, back = a.label("lspin"), a.label("lback")
        cmp_, and_ = "v_cmp_ne_u32 vcc, %s, v%d" % (sNONCE, reg), "s_and_b64 vcc, vcc, %s" % mask
        self.cold.append("%s:\ns_mov_b32 %s, 0x40000\n%s_l:\n%s\ns_sub_u32 %s, %s, 1\ns_cbranch_scc1 L_main_done\ns_waitcnt vmcnt(0)\n%s\n%s\ns_cbranch_scc1 %s_l\ns_branch %s"
                         % (spin, sSPIN, spin, load, sSPIN, sSPIN, cmp_, and_, spin, back))
        return [("vm", load, tag)], [("wvm", tag), ("i", cmp_), ("atom", and_ + "\ns_cbranch_scc1 %s\n%s:" % (spin, back))]

    def dma_chunk(self, sbase, goff, loff, n, tag, sc=""):
        sw = {1: sLW, 2: sLW2, 4: sLW4}[n]
        setup = [("set", sTW, "s_add_u32 %s, %s, %d" % (sTW, sbase, goff)), ("set", "m0", "s_add_u32 m0, %s, %d" % (sw, loff))]
        return [setup + [("vm", "buffer_load_dwordx4 v%d, %s, %s offen offset:%d%s lds" % (vL16, WS, sTW, k * 1024, sc), tag if k == n - 1 else None)]
                for k in range(n)]

    def wq_chunk(self, i): return self.dma_chunk(sWQ4 if i < 6 else sWQ, i * 16384, i * 16384, 4 if i < 6 else 1, ("wq", i), " " + OPT["wf"].strip("-"))
    def kept(self): return self.digits("keep")
    def ring(self, ps):
        return [k for k in (2, 3, 4, 5, 6, 7, 8, 9, 0, 1) if ps or k not in self.kept() + self.digits("keepo")]
    def wg_slot(self, i, ps): return self.ring(ps)[i % len(self.ring(ps))]
    def wo_chunk(self, i): return self.dma_chunk(sWO, i * 16384, WO_SLOT[i] * 16384, 4, ("wo", i), " " + OPT["wf"].strip("-"))
    def wg_chunk(self, i, ps): return self.dma_chunk(sWG4 if i < 14 else sWG, i * 16384, self.wg_slot(i, ps) * 16384, 4 if i < 14 else 2, ("wg", i), " " + OPT["wf"].strip("-"))

    def reg_loads(self, dsts, bases, offs, stmp, vaddr, tagbase):
        ops, cur = [], None
        for k, (d, sb, off) in enumerate(zip(dsts, bases, offs)):
            if cur is None or cur[0] != sb or not (0 <= off - cur[1] < 4096):
                cur = (sb, off)
            ops.append([("set", stmp, "s_add_u32 %s, %s, %d" % (stmp, sb, cur[1])),
                        ("vm", "buffer_load_dwordx4 %s, v%d, %s, %s offen offset:%d %s" % (d, vaddr, WS, stmp, off - cur[1], OPT["wf" if tagbase[0] == "w" else "actf"].strip("-")), (tagbase, k))])
        return ops

    def touch(self, acc, sbase, off, tmp):
        return [[("i", self.getc(tmp, acc) + "\ns_add_u32 %s, %s, %d" % (sT1, sbase, off)),
                 ("vm", "buffer_load_dword a255, v%d, %s, %s offen sc1" % (tmp, WS, sT1))]]

    def code_touch(self, label, tmp, n=1):
        if not OPT["cpf"]: return []
        return [[("i", "s_add_u32 s15, %s, %s-L_pc+%d" % (sCPO, label, 16384 * k)), ("i", "s_min_u32 s15, s15, L_code_end-L_pc-4"),
                 ("i", "v_mov_b32 v%d, s15" % tmp), ("vm", "global_load_dword a255, v%d, %s" % (tmp, sPC))] for k in range(n)]

    def ln_from_sums(self, s1, s2, t):
        return [("i", x) for x in (
            "v_mul_f32 v%d, 0x3b000000, v%d" % (s1, s1),
            "v_mul_f32 v%d, v%d, v%d" % (t, s1, s1),
            "v_mul_f32 v%d, 0x3b000000, v%d" % (s2, s2),
            "v_sub_f32 v%d, v%d, v%d" % (s2, s2, t),
            "v_max_f32 v%d, 0, v%d" % (s2, s2),
            "v_cvt_pk_bf16_f32 v%d, v%d, v%d" % (s2, s2, s2),
            "v_lshlrev_b32 v%d, 16, v%d" % (s2, s2),
            "v_add_f32 v%d, 0x3727c5ac, v%d" % (s2, s2),
            "v_cvt_pk_bf16_f32 v%d, v%d, v%d" % (s2, s2, s2),
            "v_lshlrev_b32 v%d, 16, v%d" % (s2, s2),
            "v_sqrt_f32 v%d, v%d" % (s2, s2),
            "v_cvt_pk_bf16_f32 v%d, v%d, v%d" % (s2, s2, s2),
            "v_lshlrev_b32 v%d, 16, v%d" % (s2, s2),
            "v_rcp_f32 v%d, v%d" % (s2, s2))]

    def publish(self, xi):
        a = self.a
        S1, S2, S3, S4, AD = 26, 27, 28, 29, 25
        a.I("s_add_u32 %s, %s, %d" % (sTS, sXST, LY.XB[xi]))
        for e in range(0 if xi == 0 and OPT["xdir"] else 2):
            a.vm("buffer_store_dwordx4 %s, v%d, %s, %s offen offset:%d%s" % (vr(XRES + 4 * e, 4), vQ, WS, sTS, e * 2048, " sc1" if xi == 1 and "x" not in OPT["t_set"] else ""))
        for k in range(4):
            for d, p, o in ((S1, XRES + k, sONE), (S2, XRES + k, None), (S3, XRES + 4 + k, sONE), (S4, XRES + 4 + k, None)):
                a.I("v_dot2_f32_bf16 v%d, v%d, %s, %s" % (d, p, o or "v%d" % p, "v%d" % d if k else "0"))
        a.I(self.getc(AD, aST) + "\ns_add_u32 %s, %s, %d" % (sTS, sSST, LY.SB[xi]))
        a.I("v_add_f32 v%d, v%d, v%d\nv_add_f32 v%d, v%d, v%d" % (S1, S1, S3, S2, S2, S4))
        a.I("v_permlane32_swap_b32 v%d, v%d\nv_add_f32 v%d, v%d, v%d\nv_mov_b32 v%d, v%d" % (S1, S2, S1, S1, S2, S2, S1))
        a.I("v_permlane16_swap_b32 v%d, v%d\nv_add_f32 v%d, v%d, v%d" % (S1, S2, S1, S1, S2))
        a.vm("buffer_store_dword v%d, v%d, %s, %s offen" % (S1, AD, WS, sTS), "pub")

    def startup(self):
        a = self.a
        lin = self.lin
        t8, kc, tok, g, hh, t32, u0, u1, rr, cc, q16, vA, vR, vB, vD, TA0, TA1, TD, TG, CSW, XA, XV, FAV, LINE = range(F, F + 24)
        ONES = F + 24
        def put(acc): a.I("v_accvgpr_write_b32 a%d, v%d" % (acc, u1))
        a.I("%s_kernel:" % NAME)
        a.I("s_cmp_ge_u32 s2, 256\ns_cbranch_scc1 L_main_done")
        a.I("s_load_dwordx16 s[64:79], s[0:1], 0\ns_load_dwordx2 s[4:5], s[0:1], 72")
        if OPT["stamps"] or OPT["diagpad"]:
            a.I("s_memrealtime s[98:99]")
        if OPT["stamps"]:
            a.I("s_memtime s[%d:%d]" % (sST, sST + 1))
        a.I("s_getpc_b64 s[56:57]\nL_pc:\ns_lshr_b32 s58, s2, 3\ns_lshl_b32 s58, s58, 11")
        a.I("v_lshrrev_b32 v16, 6, v0\nv_lshrrev_b32 v17, 4, v0\nv_lshlrev_b32 v17, 7, v17\nv_add_u32 v17, s58, v17")
        a.I("v_min_u32 v17, L_code_end-L_pc-4, v17\nv_and_b32 v0, 63, v0\nv_readfirstlane_b32 %s, v16" % sW)
        a.vm("global_load_dword a255, v17, s[56:57]")
        a.I("s_and_b32 %s, s2, 7\ns_bfe_u32 %s, s2, 0x40003\ns_lshr_b32 %s, s2, 7" % (sN, sJ, sP))
        a.I("s_lshr_b32 %s, %s, 3\ns_and_b32 %s, %s, 7" % (sR, sJ, sC, sJ))
        a.I("v_and_b32 v%d, 7, v0\nv_lshrrev_b32 v%d, 3, v0\nv_and_b32 v%d, 15, v0\nv_lshrrev_b32 v%d, 4, v0" % (t8, kc, tok, g))
        cuA, kkA, stA, cuG, kkG, sSG, sSD, kkD = "s28", "s29", "s30", "s32", "s33", "s6", "s7", "s36"
        sU, sV = "s34", "s35"
        if OPT["rot"]:
            a.I("s_add_u32 %s, %s, %s\ns_and_b32 %s, %s, 7\ns_andn2_b32 %s, s2, 7\ns_or_b32 %s, %s, %s" % (sV, sN, sJ, sV, sV, sU, sU, sU, sV))
        else:
            sU, sV = "s2", sN
        self.sdivmod(kkA, cuA, sU, 24)
        a.I("s_sub_u32 %s, s2, 192\ns_lshr_b32 %s, %s, 3" % (sT0, sT0, sT0))
        a.I("s_cmp_lt_u32 s2, 192\ns_cselect_b32 %s, %s, %s\ns_cselect_b32 %s, %s, %s\ns_cselect_b32 %s, 3, 1\ns_lshl_b32 %s, %s, 10" %
            (cuA, cuA, sV, kkA, kkA, sT0, stA, stA, stA))
        a.I("v_lshlrev_b32 v%d, 4, v%d\nv_mad_u32_u24 v%d, v%d, %s, v%d" % (u0, t8, vA, kc, stA, u0))
        a.I("s_lshl_b32 %s, %s, 2\ns_add_u32 %s, %s, %s\ns_lshl_b32 %s, %s, 4\ns_mul_i32 %s, %s, %s" % (sT0, kkA, sT0, sT0, sW, sT0, sT0, sT0, sT0, stA))
        a.I("s_lshl_b32 %s, %s, 7\ns_add_u32 %s, %s, %s\ns_lshl_b32 %s, %s, 3\ns_add_u32 %s, %s, %s\ns_sub_u32 %s, %s, 1024" %
            (sT1, cuA, sT0, sT0, sT1, sT1, stA, sT1, sT1, sT0, sT1, sT1))
        a.I("s_lshl_b32 %s, %s, 11\ns_add_u32 m0, %s, %d" % (sLW2, sW, sLW2, L_FMT))
        a.I("s_lshl_b32 s31, %s, 1\ns_add_u32 s31, s31, %s\ns_lshl_b32 s31, s31, 2\ns_add_u32 s31, s31, %s\ns_lshl_b32 s31, s31, 5" % (sN, sR, sW))
        a.I("s_add_u32 s31, s31, %s\ns_lshl_b32 s31, s31, 3\ns_add_u32 s31, s31, %s\ns_lshl_b32 s31, s31, 7" % (sP, sC))
        a.I("v_and_b32 v%d, 14, v0\nv_lshlrev_b32 v%d, 11, v%d\nv_lshl_add_u32 v%d, v%d, 4, v%d\nv_and_b32 v%d, 1, v0\nv_lshlrev_b32 v%d, 6, v%d\nv_add3_u32 v%d, s31, v%d, v%d" %
            (vR, vR, vR, vR, g, vR, u1, u1, u1, vR, vR, u1))
        a.I("s_waitcnt lgkmcnt(0)")
        a.I("s_load_dword %s, s[4:5], %d" % (sNONCE, LY.EPOCH))
        a.I("s_cmp_lt_u32 s2, 192\ns_cselect_b32 s%d, s66, s68\ns_cselect_b32 s%d, s67, s69\ns_and_b32 s%d, s%d, 0xffff" % (SRC_A, SRC_A + 1, SRC_A + 1, SRC_A + 1))
        a.I("s_lshl_b32 s%d, %s, 9\ns_mov_b32 s%d, 0x20000" % (SRC_A + 2, stA, SRC_A + 3))
        sa = "s[%d:%d]" % (SRC_A, SRC_A + 3)
        a.vm("buffer_load_dwordx4 v%d, %s, %s offen lds" % (vA, sa, sT0))
        a.vm("buffer_load_dwordx4 v%d, %s, %s offen offset:1024 lds" % (vA, sa, sT1), "fa")
        self.srd(12, "s64", "s65", 2048 * 1024)
        a.vm("buffer_load_dwordx4 %s, v%d, %s, 0 offen" % (vr(ACC + 56, 4), vR, XIN))
        a.vm("buffer_load_dwordx4 %s, v%d, %s, 0 offen offset:2048" % (vr(ACC + 60, 4), vR, XIN), "x")
        if OPT["stamps"]:
            a.I("v_mov_b32 v%d, 0\nv_writelane_b32 v%d, s98, 62\nv_writelane_b32 v%d, s%d, 0" % (vSTAMP, vSTAMP, vSTAMP, sST))
            self.nstamp = 1
        if OPT["diagpad"]: a.I("s_mov_b32 s14, s98")
        self.stamp("p")
        self.srd(8, "s4", "s5", LY.WS_USED)
        a.I("s_lshl_b32 %s, %s, 1\ns_add_u32 %s, %s, %s" % (sG, sN, sG, sG, sP))
        lin(sFLG, str(LY.FL), [(sG, 256)])
        lin(sFLW, sFLG, [(sJ, 16), (sW, 4)])
        lin(sTS, str(LY.ACT), [(sG, LY.ACT_STRIDE), (sR, 4096), (sW, 1024), (sC, 128)])
        a.I("s_and_b32 %s, %s, 1" % (sT0, sC))
        lin(sSST, sTS, [(sT0, -120)])
        a.I("s_add_u32 %s, %s, %d\nv_mov_b32 v%d, %s\nv_mov_b32 v%d, %s\nv_cmp_gt_u32 vcc, 32, v0\nv_cndmask_b32 v%d, v%d, v%d, vcc" %
            (sTS, sTS, LY.SB[0], u1, sTS, XA, sFLW, XA, u1, XA))
        a.vm("buffer_load_dword a255, v%d, %s, 0 offen sc1" % (XA, WS))
        self.sdivmod(kkG, cuG, sU, 28)
        a.I("v_mul_u32_u24 v%d, 3584, v%d\nv_add_u32 v%d, v%d, v%d\nv_lshl_add_u32 v%d, v%d, 10, v%d" % (vB, kc, vB, vB, u0, vD, kc, u0))
        a.I("s_lshr_b32 %s, s2, 3" % kkD)
        lin(sSG, "0", [(kkG, 64 * 3584), (sW, 16 * 3584), (cuG, 128)])
        lin(sSD, "0", [(kkD, 65536), (sW, 16384), (sV, 128)])
        xd, swaps = [], []
        if OPT["xdir"]:
            vX, sXD, sHD, sXL = 31 - 10, "s98", "s14", "s99"
            self.srd(SRC_A, "s64", "s65", 2048 * 1024)
            a.I("v_xor_b32 v%d, v%d, v%d\nv_lshlrev_b32 v%d, 4, v%d\nv_lshl_add_u32 v%d, v%d, 11, v%d" % (vX, t8, kc, vX, vX, vX, kc, vX))
            lin(sHD, "0", [(sN, 262144), (sP, 1024)])
            lin(sXD, sHD, [(sW, 65536)])
            lin(sHD, sHD, [(sW, 256)])
            a.I("s_sub_u32 %s, %s, 16384\ns_cmp_eq_u32 %s, 0\ns_cselect_b32 %s, 0x%x, %s\ns_lshl_b32 %s, %s, 15" % (sHD, sHD, sN, sHD, OOB, sHD, sXL, sW))
            a.I("v_xor_b32 v16, v%d, v%d\nv_lshlrev_b32 v16, 4, v16\nv_lshl_add_u32 v%d, v%d, 7, v16\nv_add_u32 v%d, %d, v%d" % (t8, g, u1, t8, u1, L_HALO, u1)); put(aSH)
            a.I("v_lshl_add_u32 v16, v%d, 7, v16\nv_add_u32 v16, %s, v16\nv_xor_b32 v17, 64, v16" % (tok, sXL))
            for m in range(8):
                for k in range(4):
                    xd.append([("i", "s_add_u32 m0, %s, %d\ns_add_u32 s15, %s, %d" % (sXL, m * 4096, sXD, k * 16384 + m * 128 - k * 1024)),
                               ("vm", "buffer_load_dwordx4 v%d, %s, s15 offen offset:%d lds" % (vX, sa, k * 1024), ("xd", m, k))])
                swaps.append(("wvm", ("xd", m, 3)))
                swaps += [("ds", "ds_read_b128 %s, v%d offset:%d" % (vr(X + 8 * (2 * m + h_) + 4 * b_, 4), 16 + h_, m * 4096 + b_ * 2048)) for b_ in range(2) for h_ in range(2)]
            swaps.append(("dsdrain",))
            self.halo0 = [[("set", "m0", "s_add_u32 m0, %s, %d" % (sLW2, L_HALO + 1024 * k)), ("i", "s_add_u32 s15, %s, %d" % (sHD, 128 * k)),
                           ("vm", "buffer_load_dwordx4 v%d, %s, s15 offen lds" % (vX, sa), "halo" if k else None)] for k in range(2)]
            a.run_all(self.flat(xd[:OPT["xd0"]])); xd = xd[OPT["xd0"]:]
        self.srd(SRC_G, "s72", "s73", 512 * 3584)
        self.srd(SRC_U, "s74", "s75", 512 * 3584)
        self.srd(SRC_D, "s76", "s77", 1792 * 1024)
        def b_loads():
            for srdn, so, va, stride, lo in ((SRC_G, sSG, vB, 3584, 8192), (SRC_U, sSG, vB, 3584, 16384), (SRC_D, sSD, vD, 1024, 24576)):
                a.I("s_add_u32 m0, %s, %d\ns_add_u32 s15, %s, %d" % (sLW2, L_FMT + lo, so, 8 * stride - 1024))
                a.vm("buffer_load_dwordx4 v%d, s[%d:%d], %s offen lds" % (va, srdn, srdn + 3, so))
                a.vm("buffer_load_dwordx4 v%d, s[%d:%d], %s offen offset:1024 lds" % (va, srdn, srdn + 3, "s15"), ("fb", lo))
        if OPT["b_pos"] == 0: b_loads()
        self.srd(16, "s78", "s79", 2048 * 1024)
        a.I("v_accvgpr_write_b32 a%d, v%d\nv_lshlrev_b32 v%d, 4, v0" % (aROW, vR, vL16))
        dA, dA2, dCS = "s3", "s0", "s1"
        a.I("s_and_b32 %s, %s, 7\ns_lshl_b32 %s, %s, 1\ns_lshr_b32 %s, %s, 1\ns_add_u32 %s, %s, %s" % (sT0, cuA, sT0, sT0, sT1, sW, sT0, sT0, sT1))
        a.I("s_mul_i32 %s, %s, %d\ns_add_u32 %s, %s, %d" % (sT0, sT0, LY.WQ_STRIDE, sT0, sT0, LY.WQ))
        a.I("s_lshr_b32 %s, %s, 3\ns_lshl_b32 %s, %s, 1\ns_and_b32 %s, %s, 1\ns_add_u32 %s, %s, %s" % (sT1, cuA, sT1, sT1, sT2, sW, sT1, sT1, sT2))
        lin(dA, sT0, [(kkA, 12288), (sT1, 1024)])
        lin(dCS, sT0, [(kkA, 64), (sT1, 512)])
        a.I("s_add_u32 %s, %s, 98304" % (dCS, dCS))
        lin(sT0, str(LY.WO), [(cuA, LY.WO_STRIDE), (kkA, 8192), (sW, 1024)])
        a.I("s_cmp_lt_u32 s2, 192\ns_cselect_b32 %s, %s, %s\ns_cselect_b32 %s, %s, 0x%x\ns_cselect_b32 %s, 6, 4\ns_cselect_b64 vcc, -1, 0" %
            (dA, dA, sT0, dCS, dCS, OOB, dA2))
        a.I("s_lshl_b32 %s, %s, 10\ns_add_u32 %s, %s, %s" % (dA2, dA2, dA2, dA2, dA))
        a.I("v_bfe_u32 v%d, v0, 2, 2\nv_and_b32 v%d, 3, v0\nv_bfe_u32 v%d, v0, 4, 1\nv_lshrrev_b32 v%d, 5, v0\nv_and_b32 v%d, 31, v0" % (rr, cc, q16, hh, t32))
        a.I("v_lshl_add_u32 v%d, v%d, 3, v%d\nv_lshlrev_b32 v%d, 7, v%d\nv_lshl_add_u32 v%d, v%d, 2, v%d\nv_lshlrev_b32 v%d, 7, v%d" % (u0, g, rr, u0, u0, u1, g, rr, u1, u1))
        a.I("s_lshr_b32 %s, %s, 1\ns_lshl_b32 %s, %s, 6\ns_and_b32 %s, %s, 1\ns_lshl_b32 %s, %s, 3\ns_add_u32 %s, %s, %s\ns_add_u32 %s, %s, %d" %
            (sT0, sW, sT0, sT0, sT1, sW, sT1, sT1, sT0, sT0, sT1, sT0, sT0, L_FMT))
        a.I("v_lshl_add_u32 v%d, v%d, 4, %s\nv_add_u32 v%d, v%d, v%d\nv_add_u32 v%d, v%d, v%d" % (TA1, cc, sT0, TD, TA1, u0, u1, u1, TA1))
        a.I("s_lshl_b32 %s, %s, 5\ns_add_u32 %s, %s, %d\nv_lshl_add_u32 v%d, v%d, 3, %s\nv_add_u32 v%d, v%d, v%d" % (sT0, sW, sT0, sT0, L_FMT, TA0, cc, sT0, u0, u0, TA0))
        a.I("v_mov_b32 v%d, v%d" % (TG, u0))
        a.I("v_cndmask_b32 v%d, v%d, v%d, vcc\nv_add_u32 v%d, 512, v%d\nv_add_u32 v%d, 2048, v%d\nv_cndmask_b32 v%d, v%d, v%d, vcc" % (TA0, u1, u0, u0, u0, u1, u1, TA1, u1, u0))
        for k in range(4): a.I("v_mov_b32 v%d, 0x3f803f80" % (ONES + k))
        a.I("v_lshlrev_b32 v%d, 2, v%d\nv_lshl_add_u32 v%d, v%d, 28, v%d" % (CSW, tok, CSW, g, CSW))
        a.I("s_mov_b32 %s, 0\ns_mov_b32 %s, 0x3f803f80" % (sSLOW, sONE))
        a.I("v_cmp_ne_u32 vcc, 0, v0\nv_mov_b32 v%d, 0x%x\nv_lshlrev_b32 v%d, 2, v0\nv_cndmask_b32 v%d, 0, v%d, vcc" % (vF1, OOB, vFL, vF1, vF1))
        a.I("s_lshl_b32 %s, %s, %d\ns_add_u32 %s, %s, 0x%x" % (sGB, sG, LY.ACT_SHIFT, sGB, sGB, LY.ACT))
        lin(sXLD, sGB, [(sW, 32768)])
        a.I("s_lshr_b32 %s, %s, 1\ns_and_b32 %s, %s, 1" % (sT0, sW, sT1, sW))
        lin(sXST, sGB, [(sR, 65536), (sC, 4096), (sT0, 32768), (sT1, 256)])
        lin(sOST, sXLD, [(sJ, 2048)])
        lin(sT0, str(LY.XF), [(sG, 2048)])
        a.I("v_lshrrev_b32 v%d, 2, v0\nv_lshl_add_u32 v%d, v%d, 7, %s\nv_lshl_add_u32 v%d, v%d, 30, v%d\nv_accvgpr_write_b32 a%d, v%d" % (XA, XA, XA, sT0, LINE, hh, vFL, aLINE, LINE))
        a.I("v_lshlrev_b32 v%d, 4, v%d\nv_lshl_add_u32 v%d, v%d, 9, v%d" % (u0, tok, vQ, g, u0))
        a.I("v_lshlrev_b32 v%d, 4, v%d\nv_lshl_add_u32 v%d, v%d, 2, v%d\nv_lshl_add_u32 v%d, v%d, 30, v%d" % (u1, tok, u1, hh, u1, u1, q16, u1)); put(aST)
        def die_id():
            lin(sT0, str(LY.XF), [(sG, 2048), (sJ, 128)])
            a.I("s_cmp_eq_u32 %s, 0\ns_cselect_b32 %s, %s, 0x%x\ns_getreg_b32 %s, hwreg(HW_REG_XCC_ID, 0, 4)" % (sW, sT0, sT0, OOB, sT1))
            a.I("s_waitcnt lgkmcnt(0)\ns_add_u32 %s, %s, 0x9e3779b1\ns_xor_b32 %s, %s, %s\nv_mov_b32 v%d, %s" % (sNONCE, sNONCE, sT1, sT1, sNONCE, XV, sT1))
            a.vm("buffer_store_dword v%d, v%d, %s, %s offen sc1" % (XV, LINE, WS, sT0))
            self.stamp("p")
        if OPT["c_early"] < 2: die_id()
        def constants():
            lin(sB3, str(LY.WD), [(sV, LY.WD_STRIDE), (kkD, 8192), (sW, 1024)])
            a.I("s_lshl_b32 %s, %s, 2\ns_add_u32 %s, %s, %s" % (cuG, cuG, cuG, cuG, sW))
            self.sdivmod(sT0, sT1, cuG, 7)
            lin(sB2, str(LY.WG), [(sT0, LY.WG_STRIDE)])
            a.I("s_sub_u32 %s, 6, %s\n%s %s, 0\ns_cselect_b32 %s, %s, %s" % (sT2, sT1, BIT, sT0, sT1, sT1, sT2))
            S0, TL = GS0, 16 - GS0
            lin(sB0, sB2, [(kkG, 28 * 1024), (sT1, 2048)])
            lin(sB2, sB2, [(sT1, (2 * TL + 1) * 1024)])
            lin(sT0, sB2, [(kkG, 4096)])
            a.I("s_add_u32 %s, %s, %d\ns_cmp_lt_u32 %s, %d\ns_cselect_b32 %s, %s, %s\ns_cselect_b32 %s, 14, 2\ns_lshl_b32 %s, %s, 10" %
                (sT0, sT0, 12 * S0 * 1024, kkG, S0 // 2, sB0, sB0, sT0, sB1, sB1, sB1))
            lin(sB2, sB2, [(kkG, 64)])
            a.I("s_add_u32 %s, %s, %d" % (sB2, sB2, (14 * S0 + 2 * TL) * 1024))
            a.I("s_cmp_lt_u32 s2, 224")
            for r_ in (sB0, sB2, sB3): a.I("s_cselect_b32 %s, %s, 0x%x" % (r_, r_, OOB))
            lin(sHFL, str(LY.HFL), [(sG, 1024)])
            lin(sHDFL, sHFL, [(sC, 128)])
            lin(sFBO, str(LY.FA), [(sU, 128)])
            a.I("s_add_u32 %s, %s, 2048\ns_add_u32 %s, %s, 0x%x" % (sHDFL, sHDFL, sHDST, sGB, 2 * LY.ACT_STRIDE))
            a.I("s_cmp_eq_u32 %s, 0\ns_cselect_b32 %s, %s, 0x%x" % (sW, sFBO, sFBO, OOB))
            a.I("s_lshl_b32 %s, %s, 2\ns_add_u32 %s, %s, %s\ns_cmp_eq_u32 %s, 7\ns_cselect_b32 %s, 0, %s\ns_cmp_eq_u32 %s, 7" % (sT0, sR, sT0, sT0, sW, sN, sT0, sT0, sT0))
            a.I("s_cselect_b32 %s, %s, 0x%x" % (sHDST, sHDST, OOB))
            a.I("v_lshlrev_b32 v%d, 4, v%d\nv_lshl_add_u32 v%d, v%d, 7, v%d\nv_add_u32 v%d, %d, v%d" % (u0, t8, u0, g, u0, u1, L_HALO, u0)); put(aHX)
            a.I("s_lshl_b32 %s, %s, 10\nv_add3_u32 v%d, v%d, v%d, %s" % (sT0, sC, u1, u0, vA, sT0)); put(aHST)
            if "c" not in OPT["order"]: constants2()
        def constants2():
            if OPT["c_early"] == 2: die_id()
            a.I("s_lshr_b32 %s, %s, 1\ns_lshl_b32 %s, %s, 5\ns_and_b32 %s, %s, 1\ns_lshl_b32 %s, %s, 1\ns_add_u32 %s, %s, %s" % (sT0, sW, sT0, sT0, sT1, sW, sT1, sT1, sT0, sT0, sT1))
            a.I("s_mov_b32 s40, 0x33333333\ns_mov_b32 s41, 0\ns_lshl_b64 s[40:41], s[40:41], %s" % sT0)
            a.I("s_lshl_b32 %s, %s, 1\ns_lshl_b32 %s, %s, 4\ns_add_u32 %s, %s, %s" % (sT0, sR, sT2, sW, sT0, sT0, sT2))
            a.I("s_mov_b32 s42, 0x3333\ns_mov_b32 s43, 0\ns_lshl_b64 s[42:43], s[42:43], %s" % sT0)
            a.I("v_bfe_u32 v%d, v0, 2, 3\nv_min_u32 v%d, 6, v%d\ns_mul_i32 %s, %s, 7\nv_add_u32 v%d, %s, v%d" % (t8, t32, t8, sT0, sW, t32, sT0, t32))
            a.I("s_lshl_b32 %s, %s, 1\nv_and_or_b32 v%d, v%d, 1, %s" % (sT0, sW, t8, t8, sT0))
            a.I("s_lshr_b32 %s, %s, 1\nv_mul_u32_u24 v%d, 24, v%d\nv_lshl_add_u32 v%d, v%d, 3, v%d\nv_add_u32 v%d, %s, v%d" % (sT0, sJ, u0, t8, u0, kc, u0, u0, sT0, u0))
            a.I("s_add_u32 %s, %s, 192\nv_lshl_add_u32 v%d, v%d, 3, %s\nv_cmp_gt_u32 vcc, 24, v0\nv_cndmask_b32 v%d, v%d, v%d, vcc" % (sT0, sC, u1, t8, sT0, u0, u1, u0))
            a.I("v_lshlrev_b32 v%d, 7, v%d\nv_add_u32 v%d, %d, v%d" % (u0, u0, FAV, LY.FA, u0))
            self.c_min = len(a.lines)
            a.I("s_lshr_b32 %s, s2, 3\ns_lshl_b32 %s, %s, 2\ns_add_u32 %s, %s, %s\ns_lshl_b32 %s, %s, 7" % (sCPO, sCPO, sCPO, sCPO, sCPO, sW, sCPO, sCPO))
            lin(sHST, sGB, [(sW, 114688), (sJ, 7168)])
            lin(sSLD, sGB, [(sW, 2048)])
            lin(sOL, sXST, [(sC, -4096)])
            a.I(BIT + " %s, 0\ns_cselect_b32 %s, 1, -1\ns_cselect_b32 %s, 0, 6144\ns_lshl_b32 %s, %s, 10\ns_add_u32 %s, %s, %s" % (sJ, sHSTEP, sT0, sHSTEP, sHSTEP, sHST, sHST, sT0))
            a.I("s_lshr_b32 %s, %s, 1\ns_lshl_b32 %s, %s, 1\ns_add_u32 %s, %s, %s\ns_lshl_b32 s66, 0x11111111, %s\ns_mov_b32 s67, s66" % (sT0, sW, sT1, sR, sT0, sT0, sT1, sT0))
            lin(sHLD[3], sGB, [(sR, 229376), (sW, 28672)])
            for i in range(4):
                a.I("s_add_u32 %s, %s, %d\ns_and_b32 %s, %s, 3\ns_lshr_b32 %s, %s, 1\ns_and_b32 %s, %s, 1" % (sTA, sW, i + 1, sTA, sTA, sT0, sTA, sT1, sTA))
                lin(sHLD[i], sHLD[3], [(sT0, 114688), (sT1, 256)])
                if i < 3: lin(sXW[i], str(i * 4096), [(sTA, 12288)])
            lin(sXR, "0", [(sW, 12288)])
            lin(sWQ, str(LY.WQ), [(sJ, LY.WQ_STRIDE * (1 - OPT["hitw"]))])
            lin(sWG, str(LY.WG), [(sJ, LY.WG_STRIDE * (1 - OPT["hitw"]))])
            lin(sWO, str(LY.WO), [(sC, LY.WO_STRIDE * (1 - OPT["hitw"])), (sW, 4096)])
            lin(sWD, str(LY.WD), [(sC, LY.WD_STRIDE * (1 - OPT["hitw"])), (sW, 57344)])
            lin(sTAB, str(L_TAB), [(sW, 512)])
            a.I("s_lshl_b32 %s, %s, 10\ns_lshl_b32 %s, %s, 12" % (sLW, sW, sLW4, sW))
            if not OPT["xdir"]: a.I("s_add_u32 %s, %s, %s\ns_add_u32 %s, %s, %s" % (sWQ4, sWQ, sLW4, sWG4, sWG, sLW4))
            a.I("s_cmp_eq_u32 %s, 0\ns_cselect_b32 %s, 0x%x, %s\ns_cselect_b64 s[54:55], 0, -1" % (sN, sHALO, OOB, sGB))
            a.I("s_add_u32 %s, %s, %s\ns_add_u32 %s, %s, %s\ns_add_u32 %s, %s, %s" % (sHALO2, sHALO, sLW2, sWQ, sWQ, sLW, sWG, sWG, sLW2))
            a.I("v_add_u32 v%d, 0x10000, v%d\nv_add_u32 v%d, 0x20000, v%d" % (vL16b, vL16, vL16c, vL16))
            a.I("v_lshrrev_b32 v%d, %d, v0\nv_lshlrev_b32 v%d, 7, v%d" % (u1, 1 if OPT["xdir"] else 2, u1, u1))
            if OPT["xdir"]:
                a.I("s_add_u32 %s, %s, %d\nv_and_b32 v%d, 128, v%d\nv_add_u32 v%d, %s, v%d\nv_bfe_u32 v%d, v0, 2, 3" % (sT0, sOST, LY.OB[0], u0, u1, u1, sT0, u1, CSW))
                a.I("s_add_u32 %s, %s, %d\nv_lshl_add_u32 v%d, v%d, 9, v%d\nv_cmp_gt_u32 vcc, 32, v0\nv_add_u32 v%d, %s, v%d" %
                    (sT0, sXST, LY.XB[1], u0, CSW, u0, u0, sT0, u0))
                if "x" not in OPT["t_set"]: a.I("v_mov_b32 v%d, 0x%x" % (u0, OOB))
                if "o" not in OPT["t_set"]: a.I("v_mov_b32 v%d, 0x%x" % (u1, OOB))
                a.I("v_cndmask_b32 v%d, v%d, v%d, vcc" % (u1, u0, u1))
            put(aTO)
            a.I("v_lshlrev_b32 v%d, 7, v%d\nv_lshl_add_u32 v%d, v%d, 5, v%d\nv_lshl_add_u32 v%d, v%d, 1, v%d\nv_lshlrev_b32 v%d, 3, v0" % (u0, rr, u0, g, u0, u0, cc, u0, u1))
            a.I("s_cmp_ge_u32 %s, 2\ns_cselect_b64 vcc, -1, 0\ns_cselect_b32 %s, 2, 8\nv_cndmask_b32 v%d, v%d, v%d, vcc" % (sW, sT1, u1, u0, u1))
            a.I("s_lshr_b32 %s, %s, 1\ns_add_u32 %s, %s, %d\nv_add_u32 v%d, %s, v%d" % (sT0, sLW, sT0, sT0, L_KV, u1, sT0, u1)); put(aHWR)
            a.I("v_mov_b32 v%d, %s" % (u1, sT1)); put(aHWS)
            a.I("s_mul_i32 %s, %s, 7\ns_add_u32 %s, %s, 6\ns_lshr_b32 %s, %s, 2\ns_lshr_b32 %s, %s, 2" % (sT0, sJ, sT1, sT0, sT0, sT0, sT1, sT1))
            a.I("v_add_u32 v%d, %s, v%d\nv_min_u32 v%d, %s, v%d\nv_mad_u32_u24 v%d, v%d, 28, v%d" % (u0, sT0, kc, u0, sT1, u0, u0, t8, u0))
            a.I("v_lshl_add_u32 v%d, v%d, 3, %s\nv_cmp_gt_u32 vcc, 32, v0\nv_cndmask_b32 v%d, v%d, v%d, vcc" % (u1, t32, sC, u0, u1, u0))
            a.I("v_lshlrev_b32 v%d, 7, v%d\nv_add_u32 v%d, %d, v%d" % (u0, u0, u1, LY.FB, u0)); put(aFB)
            if OPT["c_early"] == 3: die_id()
            a.I("s_getpc_b64 %s\nL_pc2:\ns_sub_u32 s4, s4, L_pc2-L_pc\ns_subb_u32 s5, s5, 0" % sPC)
            NG, Z, M0_, M1_ = rr, cc, q16, hh
            a.I("s_or_b32 %s, %s, %s\ns_cmp_eq_u32 %s, 0\ns_cselect_b64 s[56:57], -1, 0" % (sT0, sN, sW, sT0))
            a.I("v_mov_b32 v%d, %s\nv_mov_b32 v%d, 0\nv_lshlrev_b32 v%d, 2, v%d\nv_sub_u32 v%d, v%d, v%d" % (NG, NEG, Z, vA, g, vA, tok, vA))
            for r in range(4):
                a.I("v_subrev_u32 v%d, %d, v%d\nv_mov_b32 v%d, %s" % (u0, r, vA, M0_, "0xffff0000" if r & 1 else "0xffff"))
                a.I("v_cmp_gt_u32 vcc, 8, v%d\nv_cmp_gt_i32 s[58:59], -8, v%d\nv_cmp_le_i32 s[60:61], 0, v%d" % (u0, u0, u0))
                a.I("v_cndmask_b32 v%d, v%d, v%d, vcc" % (u1, NG, Z)); put(aBC + r)
                a.I("v_cndmask_b32 v%d, v%d, v%d, s[58:59]" % (u1, NG, Z)); put(aBP + r)
                a.I("v_cndmask_b32 v%d, v%d, v%d, s[56:57]" % (u1, u1, NG)); put(aBP0 + r)
                if r & 1:
                    a.I("v_cndmask_b32 v%d, v%d, v%d, s[60:61]\nv_or_b32 v%d, v%d, v%d" % (u1, Z, M0_, u1, u1, M1_)); put(aMC + r // 2)
                else:
                    a.I("v_cndmask_b32 v%d, v%d, v%d, s[60:61]" % (M1_, Z, M0_))
        a.I("v_bfe_u32 v%d, v0, 3, 1\nv_xor_b32 v%d, 1, v%d\nv_lshlrev_b32 v%d, 29, v%d" % (vA, vA, vA, vA, vA))
        a.I("s_and_b32 %s, %s, 1" % (sT1, sC))
        lin(sT0, str(8192 - 128), [(sC, 64), (sT1, -56)])
        a.I("v_add3_u32 v%d, v%d, v%d, %s" % (u1, u1, vA, sT0)); put(aHSS)
        if OPT["c_early"]: constants()
        self.stamp("p")
        if OPT["b_pos"] == -1: b_loads()
        a.vm_wait("fa")
        a.I("s_barrier")
        for sp in range(2):
            for half in range(2):
                a.ds("ds_read_b64_tr_b16 %s, v%d offset:%d" % (vr(ACC + 4 * sp + 2 * half, 2), (TA0, TA1)[half], sp * 4096), ("t", sp))
        self.stamp("p")
        for sp in range(2):
            a.ds_wait(("t", sp))
            a.vm("buffer_store_dwordx4 %s, v%d, %s, %s offen sc1" % (vr(ACC + 4 * sp, 4), vL16, WS, (dA, dA2)[sp]))
            a.I("v_mfma_f32_16x16x32_bf16 %s, %s, %s, %s" % (vr(ACC + 8, 4), vr(ONES, 4), vr(ACC + 4 * sp, 4), vr(ACC + 8, 4) if sp else "0"))
        a.I("\n".join(self.hi_lo(ACC + 12, ACC + 8, ACC + 13)))
        a.vm("buffer_store_dword v%d, v%d, %s, %s offen sc1" % (ACC + 12, CSW, WS, dCS), "fas")
        if OPT["b_pos"] == -2: b_loads()
        a.vm_wait("x")
        self.pair_swap(XRES, ACC + 56)
        self.publish(0)
        xload = "buffer_load_dword v31, v%d, %s, 0 offen sc1" % (XA, WS)
        a.vm(xload, "xf")
        if OPT["b_pos"] == 1 and not OPT["xdir"]: b_loads()
        self.stamp("p")
        if OPT["xdir"]:
            n0 = len(a.lines)
            constants()
            body = a.lines[n0:]; del a.lines[n0:]
            k, since = 0, 99
            for n_, t in enumerate(body):
                if k < OPT["xd1"] and since >= OPT["xd_gap"] and not self.scc_live(body, n_):
                    a.run_all(xd[k]); k += 1; since = 0
                a.I(t); since += 1
            a.run_all(self.flat(xd[k:OPT["xd1"]])); xd = xd[OPT["xd1"]:]
        elif not OPT["c_early"]: constants()
        def second_unit():
            G, D, CS = (ACC + 16, ACC + 32, ACC + 48) if OPT["xdir"] else (X + 96, X + 112, ACC + 48)
            out = []
            def store(ops):
                if OPT["b_spread"] and "b" not in OPT["order"]: out.append(ops)
                else: a.run_all(ops)
            if "b" in OPT["order"]:
                a.vm_wait(("fb", 24576))
                a.I("s_barrier")
            for n_ in range(4):
                for half in range(2):
                    a.ds("ds_read_b64_tr_b16 %s, v%d offset:%d" % (vr(G + 4 * n_ + 2 * half, 2), TG, 8192 * (1 + n_ % 2) + (32 * (n_ // 2) + 4 * half) * 128), ("tg", n_))
            for sp in range(2):
                for half in range(2):
                    a.ds("ds_read_b64_tr_b16 %s, v%d offset:%d" % (vr(D + 4 * sp + 2 * half, 2), TD, 24576 + (32 * sp + 4 * half) * 128), ("td", sp))
            for n_ in range(4):
                a.ds_wait(("tg", n_))
                store(([("i", "s_add_u32 %s, %s, %s" % (sB0, sB0, sB1))] if n_ == 2 else []) +
                      [("vm", "buffer_store_dwordx4 %s, v%d, %s, %s offen offset:%d sc1" % (vr(G + 4 * n_, 4), vL16, WS, sB0, (n_ % 2) * 1024))])
                c_ = vr(CS + 4 * (n_ % 2), 4)
                a.I("v_mfma_f32_16x16x32_bf16 %s, %s, %s, %s" % (c_, vr(ONES, 4), vr(G + 4 * n_, 4), c_ if n_ >= 2 else "0"))
            for sp in range(2):
                a.ds_wait(("td", sp))
                store(([("i", "s_add_u32 %s, %s, 4096" % (sB3, sB3))] if sp else []) +
                      [("vm", "buffer_store_dwordx4 %s, v%d, %s, %s offen sc1" % (vr(D + 4 * sp, 4), vL16, WS, sB3))])
            a.I("v_cmp_gt_u32 vcc, 16, v0\nv_bfe_u32 v%d, v0, 4, 1\nv_mul_u32_u24 v%d, 448, v%d\nv_add_u32 v%d, v%d, v%d\nv_cndmask_b32 v%d, v%d, v%d, vcc" %
                (D + 9, D + 9, D + 9, D + 9, D + 9, LINE, CS, CS + 4, CS))
            a.I("\n".join(self.hi_lo(D + 8, CS, CS + 1)))
            store([("vm", "buffer_store_dword v%d, v%d, %s, %s offen sc1" % (D + 8, D + 9, WS, sB2), "fbs")])
            self.stamp("p")
            return out
        def first_flags():
            a.I("v_mov_b32 v30, %s" % sNONCE)
            a.vm_wait("fas")
            a.I("s_barrier")
            a.vm("buffer_store_dword v30, v%d, %s, %s offen sc1" % (LINE, WS, sFBO))
            a.I("s_add_u32 %s, %s, %d" % (sFBO, sFBO, LY.FB - LY.FA))
            self.stamp("p")
        def own_flags():
            spin, back = a.label("xspin"), a.label("xback")
            test = "v_xor_b32 v29, %s, v31\nv_cmp_lt_u32 vcc, 15, v29\ns_and_b64 vcc, vcc, exec" % sNONCE
            a.vm_wait("xf")
            a.I("%s\ns_cbranch_scc1 %s\n%s:" % (test, spin, back))
            self.cold.append("%s:\ns_mov_b32 %s, 0x40000\n%s_l:\n%s\ns_sub_u32 %s, %s, 1\ns_cbranch_scc1 L_main_done\ns_waitcnt vmcnt(0)\n%s\ns_cbranch_scc1 %s_l\ns_branch %s"
                             % (spin, sSPIN, spin, xload, sSPIN, sSPIN, test, spin, back))
            a.I("v_cmp_ne_u32 vcc, v%d, v31\ns_cmp_lg_u64 vcc, 0\ns_cselect_b32 %s, 1, 0\ns_mov_b32 s0, %s\ns_mov_b32 s1, 0" % (XV, sSLOW, sSLOW))
            self.signal(0, "pub", 0)
            self.stamp("p")
        for step in OPT["order"]:
            if step == "c" and OPT["xdir"]: continue
            {"b": second_unit, "a": first_flags, "o": own_flags, "c": constants2}[step]()
        if OPT["xdir"]:
            n0 = len(a.lines)
            constants2()
            body = a.lines[n0:]; del a.lines[n0:]
            per = max(OPT["xd_per"], -(-(self.c_min - n0) // len(xd)))
            pos, done = 0, 32 - len(xd)
            for g_ in xd:
                a.run_all(g_); done += 1
                stop = min(len(body), pos + per)
                while stop < len(body) and self.scc_live(body, stop): stop += 1
                a.I("\n".join(body[pos:stop])); pos = stop
                if len(swaps) > 1 and 4 * swaps[0][1][1] + 4 + OPT["xd_lag"] <= done:
                    a.run_all(swaps[:5]); swaps = swaps[5:]
            self.stamp("p")
            l_fa, g_fa = self.late_check("buffer_load_dword v%d, v%d, %s, 0 offen sc1" % (PB, FAV, WS), PB, "exec", "fa2")
            l_x, g_x = self.check_ops(0, sMA, PA, "x2")
            a.run_all(swaps[:5 * OPT["xd_pre"]]); swaps = swaps[5 * OPT["xd_pre"]:]
            a.run_all(l_x + l_fa)
            if not (OPT["inb"] and OPT["inb_at"]): b_loads()
            a.I("\n".join(body[pos:]))
            a.I("s_add_u32 %s, %s, %s\ns_add_u32 %s, %s, %s" % (sWQ4, sWQ, sLW4, sWG4, sWG, sLW4))
            a.I("s_sub_u32 %s, %s, %s\ns_sub_u32 %s, %s, %s" % (sWQ4, sWQ4, sLW, sWG4, sWG4, sLW2))
            if OPT["t_pos"] == -1: a.run_all(self.flat(self.touch(aTO, "0", 0, 18)))
            a.run_all(swaps + g_fa + g_x)
        self.stamp("p")
        if "b" in OPT["order"]:
            a.vm_wait("fbs")
            a.I("s_barrier")
            a.vm("buffer_store_dword v30, v%d, %s, %s offen sc1" % (LINE, WS, sFBO))
        elif OPT["predrain"]:
            a.vm_drain()
        self.stamp("p")
        def second_ops():
            G, D, CS, ON, AG, AD, T0, T1, T2 = 0, 16, 24, 32, 30, 31, 24, 25, 20
            pre = "v_mov_b32 v%d, v%d\nv_mov_b32 v%d, v%d\nv_bfe_u32 v%d, v0, 4, 1\nv_mul_u32_u24 v%d, 448, v%d\nv_add_u32 v%d, v%d, v%d\n" % (AG, TG, AD, TD, T2, T2, T2, T2, T2, LINE)
            pre += "\n".join("v_accvgpr_write_b32 a%d, v%d" % (ON + k, ONES) for k in range(4))
            rd = [("ds", "ds_read_b64_tr_b16 %s, v%d offset:%d" % (ar(G + 4 * n_ + 2 * half, 2), AG, 8192 * (1 + n_ % 2) + (32 * (n_ // 2) + 4 * half) * 128), ("tg", n_, half))
                  for n_ in range(4) for half in range(2)]
            rd += [("ds", "ds_read_b64_tr_b16 %s, v%d offset:%d" % (ar(D + 4 * sp + 2 * half, 2), AD, 24576 + (32 * sp + 4 * half) * 128), ("td", sp, half))
                   for sp in range(2) for half in range(2)]
            st = []
            for n_ in range(4):
                c_ = ar(CS + 4 * (n_ % 2), 4)
                st.append(([("i", "s_add_u32 %s, %s, %s" % (sB0, sB0, sB1))] if n_ == 2 else []) + [("wds", ("tg", n_, 1)),
                          ("vm", "buffer_store_dwordx4 %s, v%d, %s, %s offen offset:%d sc1" % (ar(G + 4 * n_, 4), vL16, WS, sB0, (n_ % 2) * 1024)),
                          ("i", "v_mfma_f32_16x16x32_bf16 %s, %s, %s, %s" % (c_, ar(ON, 4), ar(G + 4 * n_, 4), c_ if n_ >= 2 else "0"))])
            for sp in range(2):
                st.append(([("i", "s_add_u32 %s, %s, 4096" % (sB3, sB3))] if sp else []) + [("wds", ("td", sp, 1)),
                          ("vm", "buffer_store_dwordx4 %s, v%d, %s, %s offen sc1" % (ar(D + 4 * sp, 4), vL16, WS, sB3))])
            st.append([("i", "s_mov_b64 s[6:7], 0xffff\n%s\n%s\nv_cndmask_b32 v%d, v%d, v%d, s[6:7]" % (self.getc(T0, CS), self.getc(T1, CS + 4), T0, T1, T0)),
                       ("i", "\n".join(self.hi_lo(PA, T0, T1))),
                       ("vm", "buffer_store_dword v%d, v%d, %s, %s offen sc1" % (PA, T2, WS, sB2), "fbs"), ("mark", "bdone")])
            return pre, rd, st
        self.second_unit, self.b_loads, self.second_ops = second_unit, b_loads, second_ops
        self.fav = FAV

    def startup2(self):
        a = self.a
        lin = self.lin
        t8, kc, tok, g, hh, t32, u0, u1, rr, cc, q16, vA, vR, vD, TA0, TA1, TD, XA, XV, FAV, LINE = range(F, F + 21)
        ONES, CSW, L_T = F + 24, F + 21, 114688
        def put(acc): self.a.I("v_accvgpr_write_b32 a%d, v%d" % (acc, u1))
        a.I("%s_kernel:" % NAME)
        a.I("s_cmp_ge_u32 s2, 256\ns_cbranch_scc1 L_main_done")
        a.I("s_load_dwordx16 s[64:79], s[0:1], 0\ns_load_dwordx2 s[4:5], s[0:1], 72")
        if OPT["stamps"] or OPT["diagpad"]:
            a.I("s_memrealtime s[98:99]")
        if OPT["stamps"]:
            a.I("s_memtime s[%d:%d]" % (sST, sST + 1))
        a.I("s_getpc_b64 s[56:57]\nL_pc:\ns_lshr_b32 s58, s2, 3\ns_lshl_b32 s58, s58, 11")
        a.I("v_lshrrev_b32 v16, 6, v0\nv_lshrrev_b32 v17, 4, v0\nv_lshlrev_b32 v17, 7, v17\nv_add_u32 v17, s58, v17")
        a.I("v_min_u32 v17, L_code_end-L_pc-4, v17\nv_and_b32 v0, 63, v0\nv_readfirstlane_b32 %s, v16" % sW)
        a.I("global_load_dword a255, v17, s[56:57]")
        a.I("s_and_b32 %s, s2, 7\ns_bfe_u32 %s, s2, 0x40003\ns_lshr_b32 %s, s2, 7" % (sN, sJ, sP))
        a.I("s_lshr_b32 %s, %s, 3\ns_and_b32 %s, %s, 7" % (sR, sJ, sC, sJ))
        a.I("v_and_b32 v%d, 7, v0\nv_lshrrev_b32 v%d, 3, v0\nv_and_b32 v%d, 15, v0\nv_lshrrev_b32 v%d, 4, v0\nv_lshlrev_b32 v%d, 4, v%d" % (t8, kc, tok, g, u0, t8))
        a.I("s_lshl_b32 s31, %s, 1\ns_add_u32 s31, s31, %s\ns_lshl_b32 s31, s31, 2\ns_add_u32 s31, s31, %s\ns_lshl_b32 s31, s31, 5" % (sN, sR, sW))
        a.I("s_add_u32 s31, s31, %s\ns_lshl_b32 s31, s31, 3\ns_add_u32 s31, s31, %s\ns_lshl_b32 s31, s31, 7" % (sP, sC))
        a.I("v_and_b32 v%d, 14, v0\nv_lshlrev_b32 v%d, 11, v%d\nv_lshl_add_u32 v%d, v%d, 4, v%d\nv_and_b32 v%d, 1, v0\nv_lshlrev_b32 v%d, 6, v%d\nv_add3_u32 v%d, s31, v%d, v%d" %
            (vR, vR, vR, vR, g, vR, u1, u1, u1, vR, vR, u1))
        a.I("s_lshl_b32 %s, %s, 12\ns_cmp_lg_u32 %s, 0\ns_cbranch_scc1 L_follow" % (sLW4, sW, sP))
        cu, kp, st, so, so2 = "s32", "s33", "s34", "s35", "s36"
        D4 = [sB0, sB1, sB2, sB3]
        dCS, dD = "s3", "s7"
        held = None
        def out(text):
            if held is None: (self.a.vm if text.startswith("buffer") else self.a.I)(text)
            else: held.append(text)

        def tile_dma(srdn, va, s_off, stride, lds, tag):
            a = self.a
            a.I("s_add_u32 m0, %s, %d" % (sLW4, L_T + lds))
            for k in range(4):
                if k: a.I("s_add_u32 %s, %s, %s" % (sT0, s_off if k == 1 else sT0, stride))
                a.vm("buffer_load_dwordx4 v%d, s[%d:%d], %s offen offset:%d lds" % (va, srdn, srdn + 3, sT0 if k else s_off, k * 1024), tag if k == 3 else None)
        def x_loads():
            a = self.a
            self.srd(12, "s64", "s65", 2048 * 1024)
            a.vm("buffer_load_dwordx4 %s, v%d, %s, 0 offen" % (vr(X, 4), vR, XIN))
            a.vm("buffer_load_dwordx4 %s, v%d, %s, 0 offen offset:2048" % (vr(X + 4, 4), vR, XIN), "x")
            if OPT["stamps"]:
                a.I("v_mov_b32 v%d, 0\nv_writelane_b32 v%d, s98, 62\nv_writelane_b32 v%d, s%d, 0" % (vSTAMP, vSTAMP, vSTAMP, sST))
                self.nstamp = 1
            if OPT["diagpad"]: a.I("s_mov_b32 s14, s98")
        def common():
            a = self.a
            self.srd(8, "s4", "s5", LY.WS_USED)
            a.I("s_lshl_b32 %s, %s, 1\ns_add_u32 %s, %s, %s" % (sG, sN, sG, sG, sP))
            a.I("s_lshl_b32 %s, %s, %d\ns_add_u32 %s, %s, 0x%x" % (sGB, sG, LY.ACT_SHIFT, sGB, sGB, LY.ACT))
            lin(sFLG, str(LY.FL), [(sG, 256)])
            lin(sFLW, sFLG, [(sJ, 16), (sW, 4)])
            lin(sTS, sGB, [(sR, 4096), (sW, 1024), (sC, 128)])
            a.I("s_and_b32 %s, %s, 1" % (sT0, sC))
            lin(sSST, sTS, [(sT0, -120)])
            a.I("s_add_u32 %s, %s, %d\nv_cmp_gt_u32 vcc, 32, v0\nv_mov_b32 v%d, %s\nv_mov_b32 v%d, %s\nv_cndmask_b32 v%d, v%d, v%d, vcc" %
                (sTS, sTS, LY.SB[0], u1, sTS, XA, sFLW, XA, u1, XA))
            a.vm("buffer_load_dword a255, v%d, %s, 0 offen sc1" % (XA, WS))
            self.srd(16, "s78", "s79", 2048 * 1024)
            a.I("v_accvgpr_write_b32 a%d, v%d\nv_lshlrev_b32 v%d, 4, v0\nv_lshlrev_b32 v%d, 2, v0" % (aROW, vR, vL16, vFL))
            a.I("v_bfe_u32 v%d, v0, 2, 2\nv_and_b32 v%d, 3, v0\nv_bfe_u32 v%d, v0, 4, 1\nv_lshrrev_b32 v%d, 5, v0" % (rr, cc, q16, hh))
            lin(sT0, str(LY.XF), [(sG, 2048)])
            a.I("v_lshrrev_b32 v%d, 2, v0\nv_lshl_add_u32 v%d, v%d, 7, %s\nv_lshl_add_u32 v%d, v%d, 30, v%d" % (XA, XA, XA, sT0, LINE, hh, vFL))
            lin(sT0, sT0, [(sJ, 128)])
            a.I("s_cmp_eq_u32 %s, 0\ns_cselect_b32 %s, %s, 0x%x\ns_getreg_b32 %s, hwreg(HW_REG_XCC_ID, 0, 4)" % (sW, sT0, sT0, OOB, sT1))
            a.I("s_waitcnt lgkmcnt(0)\ns_add_u32 %s, %s, 0x9e3779b1\ns_xor_b32 %s, %s, %s\nv_mov_b32 v%d, %s" % (sNONCE, sNONCE, sT1, sT1, sNONCE, XV, sT1))
            a.vm("buffer_store_dword v%d, v%d, %s, %s offen sc1" % (XV, LINE, WS, sT0))
            a.I("v_lshl_add_u32 v%d, v%d, 3, v%d\nv_lshlrev_b32 v%d, 7, v%d\nv_add_u32 v%d, %d, v%d" % (u0, g, rr, u0, u0, u0, L_T, u0))
            a.I("s_lshr_b32 %s, %s, 1\ns_and_b32 %s, %s, 1" % (sT0, sW, sT1, sW))
            lin(sXST, sGB, [(sR, 65536), (sC, 4096), (sT0, 32768), (sT1, 256)])
            a.I("s_lshl_b32 %s, %s, 6\ns_lshl_b32 %s, %s, 3\ns_add_u32 %s, %s, %s\nv_lshl_add_u32 v%d, v%d, 4, %s\nv_add_u32 v%d, v%d, v%d" %
                (sT0, sT0, sT1, sT1, sT0, sT0, sT1, TD, cc, sT0, TD, TD, u0))
            a.I("s_lshl_b32 %s, %s, 5\nv_lshl_add_u32 v%d, v%d, 3, %s\nv_add_u32 v%d, v%d, v%d" % (sT0, sW, TA0, cc, sT0, TA0, TA0, u0))
            for k in range(4): a.I("v_mov_b32 v%d, 0x3f803f80" % (ONES + k))
            a.I("s_mov_b32 %s, 0x3f803f80\nv_lshlrev_b32 v%d, 4, v%d\nv_lshl_add_u32 v%d, v%d, 9, v%d" % (sONE, u0, tok, vQ, g, u0))
            a.I("v_lshlrev_b32 v%d, 4, v%d\nv_lshl_add_u32 v%d, v%d, 2, v%d\nv_lshl_add_u32 v%d, v%d, 30, v%d" % (u1, tok, u1, hh, u1, u1, q16, u1)); put(aST)
        def tile_out(base, a0, a1, o1, lds, dst, cs):
            a = self.a
            for sp in range(4):
                a.ds("ds_read_b64_tr_b16 %s, v%d offset:%d" % (vr(base + 4 * sp, 2), a0, lds + sp * 4096))
                a.ds("ds_read_b64_tr_b16 %s, v%d offset:%d" % (vr(base + 4 * sp + 2, 2), a1, lds + sp * 4096 + o1), ("t", lds, sp))
            for sp in range(4):
                a.ds_wait(("t", lds, sp))
                out("buffer_store_dwordx4 %s, v%d, %s, %s offen offset:%d sc1" % ((vr(base + 4 * sp, 4), vL16, WS) + dst(sp)))
                if cs: a.I("v_mfma_f32_16x16x32_bf16 %s, %s, %s, %s" % (vr(cs, 4), vr(ONES, 4), vr(base + 4 * sp, 4), vr(cs, 4) if sp else "0"))
        def cs_out(src, addr):
            a = self.a
            a.I("v_cmp_eq_u32 vcc, 0, v%d" % q16)
            a.I("\n".join(self.hi_lo(ACC + 60, src, ACC + 61)))
            a.I("v_cndmask_b32 v%d, 0, v%d, vcc" % (ACC + 60, ACC + 60))
            out("buffer_store_dword v%d, v%d, %s, %s offen sc1" % (ACC + 60, addr, WS, dCS))
        xload = "buffer_load_dword v31, v%d, %s, 0 offen sc1" % (XA, WS)
        def pub():
            self.a.vm_wait("x")
            self.pair_swap(XRES, X)
            self.publish(0)
            self.a.vm(xload)

        self.sdivmod(kp, cu, "s2", 24)
        a.I("s_sub_u32 %s, %s, 12\ns_cmp_lt_u32 s2, 96\ns_cselect_b32 %s, %s, %s\ns_cselect_b32 %s, %s, %s\ns_cselect_b32 %s, 3, 1\ns_lshl_b32 %s, %s, 10" %
            (sT0, sJ, cu, cu, sN, kp, kp, sT0, st, st, st))
        a.I("v_mad_u32_u24 v%d, v%d, %s, v%d" % (vA, kc, st, u0))
        a.I("s_lshl_b32 %s, %s, 2\ns_add_u32 %s, %s, %s\ns_lshl_b32 %s, %s, 5\ns_mul_i32 %s, %s, %s\ns_lshl_b32 %s, %s, 7\ns_add_u32 %s, %s, %s" %
            (so, kp, so, so, sW, so, so, so, so, st, sT1, cu, so, so, sT1))
        a.I("s_lshl_b32 %s, %s, 3\ns_sub_u32 %s, %s, 1024" % (so2, st, so2, so2))
        a.I("s_lshl_b32 s%d, %s, 9\ns_mov_b32 s%d, 0x20000\ns_cmp_lt_u32 s2, 96\ns_waitcnt lgkmcnt(0)" % (SRC_A + 2, st, SRC_A + 3))
        a.I("s_load_dword %s, s[4:5], %d" % (sNONCE, LY.EPOCH))
        a.I("s_cselect_b32 s%d, s66, s68\ns_cselect_b32 s%d, s67, s69\ns_and_b32 s%d, s%d, 0xffff" % (SRC_A, SRC_A + 1, SRC_A + 1, SRC_A + 1))
        tile_dma(SRC_A, vA, so, so2, 0, "fa")
        x_loads()
        common()
        a.I("s_and_b32 %s, %s, 7\ns_lshl_b32 %s, %s, 1\ns_lshr_b32 %s, %s, 1\ns_add_u32 %s, %s, %s" % (sT0, cu, sT0, sT0, sT1, sW, sT0, sT0, sT1))
        a.I("s_mul_i32 %s, %s, %d\ns_add_u32 %s, %s, %d" % (sT0, sT0, LY.WQ_STRIDE, sT0, sT0, LY.WQ))
        a.I("s_lshr_b32 %s, %s, 3\ns_lshl_b32 %s, %s, 1\ns_and_b32 %s, %s, 1\ns_add_u32 %s, %s, %s" % (sT1, cu, sT1, sT1, sT2, sW, sT1, sT1, sT2))
        lin(D4[0], sT0, [(kp, 24576), (sT1, 1024)])
        lin(dCS, sT0, [(kp, 128), (sT1, 512)])
        a.I("s_add_u32 %s, %s, 98304" % (dCS, dCS))
        lin(sT0, str(LY.WO), [(cu, LY.WO_STRIDE), (kp, 16384), (sW, 1024)])
        a.I("s_cmp_lt_u32 s2, 96\ns_cselect_b32 %s, %s, %s\ns_cselect_b32 %s, %s, 0x%x\ns_cselect_b32 %s, 6, 4\ns_cselect_b64 vcc, -1, 0" %
            (D4[0], D4[0], sT0, dCS, dCS, OOB, sT1))
        a.I("s_lshl_b32 %s, %s, 10" % (sT1, sT1))
        for k in range(1, 4): a.I("s_add_u32 %s, %s, %s" % (D4[k], D4[k - 1], sT1))
        a.I("v_lshlrev_b32 v%d, 9, v%d\nv_sub_u32 v%d, v%d, v%d\nv_add_u32 v%d, 512, v%d\nv_add_u32 v%d, 2048, v%d" % (u0, g, TD, TD, u0, TA1, TA0, u0, TD))
        a.I("v_cndmask_b32 v%d, v%d, v%d, vcc\nv_cndmask_b32 v%d, v%d, v%d, vcc" % (TA0, TD, TA0, TA1, u0, TA1))
        self.stamp("p")
        a.vm_wait("fa")
        a.I("s_barrier")
        self.stamp("p")
        tile_out(ACC, TA0, TA1, 0, 0, lambda sp: (D4[sp], 0), ACC + 48)
        cs_out(ACC + 48, LINE)
        pub()
        self.stamp("p")
        if not OPT["near"]: a.I("L_join:")
        nst = self.nstamp
        self.a = b = Asm()
        b.I("L_follow:\ns_sub_u32 %s, s2, 128" % st)
        self.sdivmod(kp, cu, st, 28)
        b.I("v_mul_u32_u24 v%d, 3584, v%d\nv_add_u32 v%d, v%d, v%d\nv_lshl_add_u32 v%d, v%d, 10, v%d" % (vA, kc, vA, vA, u0, vD, kc, u0))
        lin(so, "0", [(kp, 128 * 3584), (sW, 32 * 3584), (cu, 128)])
        lin(so2, "0", [(sJ, 131072), (sW, 32768), (sN, 128)])
        b.I("s_waitcnt lgkmcnt(0)\ns_load_dword %s, s[4:5], %d" % (sNONCE, LY.EPOCH))
        b.I("s_mov_b32 s6, %s" % so)
        steps = dict(g=lambda: tile_dma(SRC_G, vA, "s6", str(8 * 3584 - 1024), 0, "fg"), u=lambda: tile_dma(SRC_U, vA, "s6", str(8 * 3584 - 1024), 16384, "fu"),
                     d=lambda: tile_dma(SRC_D, vD, so2, str(7 * 1024), 32768, "fd"), x=x_loads, c=common, p=pub, w=b.vm_drain)
        self.srd(SRC_G, "s72", "s73", 512 * 3584)
        self.srd(SRC_U, "s74", "s75", 512 * 3584)
        self.srd(SRC_D, "s76", "s77", 1792 * 1024)
        for ch in OPT["follow"]: steps[ch]()
        lin(dD, str(LY.WD), [(sN, LY.WD_STRIDE), (sJ, 16384), (sW, 1024)])
        b.I("s_lshl_b32 %s, %s, 2\ns_add_u32 %s, %s, %s" % (cu, cu, cu, cu, sW))
        self.sdivmod(sT0, sT1, cu, 7)
        lin(dCS, str(LY.WG), [(sT0, LY.WG_STRIDE)])
        b.I("s_sub_u32 %s, 6, %s\n%s %s, 0\ns_cselect_b32 %s, %s, %s" % (sT2, sT1, BIT, sT0, sT1, sT1, sT2))
        S0, TL = GS0, 16 - GS0
        lin(so, dCS, [(kp, 56 * 1024), (sT1, 2048)])
        lin(dCS, dCS, [(sT1, (2 * TL + 1) * 1024)])
        lin(so2, dCS, [(kp, 8192)])
        for k in range(4):
            b.I("s_add_u32 %s, %s, %d\ns_add_u32 %s, %s, %d\ns_cmp_lt_u32 %s, %d\ns_cselect_b32 %s, %s, %s" %
                (sT0, so, 14 * 1024 * k, sT1, so2, (12 * S0 + 2 * k) * 1024, kp, (S0 - k + 3) // 4, D4[k], sT0, sT1))
        lin(dCS, dCS, [(kp, 128)])
        b.I("s_add_u32 %s, %s, %d\ns_cmp_lt_u32 s2, 240" % (dCS, dCS, (14 * S0 + 2 * TL) * 1024))
        for r_ in D4 + [dCS, dD]: b.I("s_cselect_b32 %s, %s, 0x%x" % (r_, r_, OOB))
        b.I("v_mul_u32_u24 v%d, 384, v%d\nv_add_u32 v%d, v%d, v%d" % (ACC + 62, hh, ACC + 62, ACC + 62, vFL))
        if OPT["dfirst"]:
            E4 = ["s37", "s38", "s39", dD]
            for k in range(4): b.I("s_add_u32 %s, %s, %d" % (E4[k], dD, 4096 * k))
            lin(so, str(LY.FB), [("s2", 128)])
            b.I("s_cmp_eq_u32 %s, 0\ns_cselect_b32 %s, %s, 0x%x\nv_mov_b32 v30, %s" % (sW, so, so, OOB, sNONCE))
            def d_flag():
                b.vm_wait_n(dseq)
                b.I("s_barrier")
                b.vm("buffer_store_dword v30, v%d, %s, %s offen sc1" % (LINE, WS, so))
            self.stamp("p")
            b.vm_wait("fd")
            b.I("s_barrier")
            tile_out(ACC + 32, TD, TD, 512, 32768, lambda sp: (E4[sp], 0), None)
            dseq = b.vm_n
            for ch in OPT["follow2"].strip("-"): steps[ch]()
            self.stamp("p")
            if OPT["dfirst"] == 1: d_flag()
            b.vm_wait("fg"); b.vm_wait("fu")
            b.I("s_barrier")
            tile_out(ACC, TA0, TA0, 512, 0, lambda sp: (D4[sp], 0), ACC + 48)
            if OPT["dfirst"] == 2: d_flag()
            tile_out(ACC + 16, TA0, TA0, 512, 16384, lambda sp: (D4[sp], 1024), ACC + 52)
            b.I("v_cmp_gt_u32 vcc, 32, v0\nv_cndmask_b32 v%d, v%d, v%d, vcc" % (ACC + 48, ACC + 52, ACC + 48))
            cs_out(ACC + 48, ACC + 62)
            if "p" not in OPT["follow"] + OPT["follow2"]: pub()
            self.stamp("p")
        else:
            if OPT["st_at"] or OPT["st_hold"] == 2: held = []
            self.stamp("p")
            b.vm_wait("fu")
            b.I("s_barrier")
            self.stamp("p")
            tile_out(ACC, TA0, TA0, 512, 0, lambda sp: (D4[sp], 0), ACC + 48)
            if OPT["st_hold"] == 1: held = []
            tile_out(ACC + 16, TA0, TA0, 512, 16384, lambda sp: (D4[sp], 1024), ACC + 52)
            for k in range(4): out("s_add_u32 %s, %s, %d" % (D4[k], dD, 4096 * k))
            b.I("v_cmp_gt_u32 vcc, 32, v0\nv_cndmask_b32 v%d, v%d, v%d, vcc" % (ACC + 48, ACC + 52, ACC + 48))
            cs_out(ACC + 48, ACC + 62)
            if OPT["st_hold"] and "p" not in OPT["follow"]: pub()
            b.vm_wait("fd")
            if OPT["st_hold"]:
                pend, held = held, None
                for text in pend: out(text)
            b.I("s_barrier")
            tile_out(ACC + 32, TD, TD, 512, 32768, lambda sp: (D4[sp], 0), None)
            if "p" not in OPT["follow"] and not OPT["st_hold"]: pub()
            self.stamp("p")
        assert nst == self.nstamp
        if OPT["near"]:
            a.I("s_branch L_join\n" + "\n".join(b.lines) + "\nL_join:")
        else:
            b.I("s_branch L_join")
            self.cold.append("\n".join(b.lines))
        self.a = a

        a.vm_tag["join"] = a.vm_n
        lin(sXLD, sGB, [(sW, 32768)])
        lin(sOST, sXLD, [(sJ, 2048)])
        def touch_list():
            a.I("v_lshrrev_b32 v%d, %d, v0\nv_lshlrev_b32 v%d, 7, v%d" % (u1, 1 if OPT["xdir"] else 2, u1, u1))
            if OPT["xdir"]:
                a.I("s_add_u32 %s, %s, %d\nv_and_b32 v%d, 128, v%d\nv_add_u32 v%d, %s, v%d\nv_bfe_u32 v%d, v0, 2, 3" % (sT0, sOST, LY.OB[0], u0, u1, u1, sT0, u1, CSW))
                a.I("s_add_u32 %s, %s, %d\nv_lshl_add_u32 v%d, v%d, 9, v%d\nv_cmp_gt_u32 vcc, 32, v0\nv_add_u32 v%d, %s, v%d" %
                    (sT0, sXST, LY.XB[1], u0, CSW, u0, u0, sT0, u0))
                if "x" not in OPT["t_set"]: a.I("v_mov_b32 v%d, 0x%x" % (u0, OOB))
                if "o" not in OPT["t_set"]: a.I("v_mov_b32 v%d, 0x%x" % (u1, OOB))
                a.I("v_cndmask_b32 v%d, v%d, v%d, vcc" % (u1, u0, u1))
            put(aTO)
        if OPT["t_pos"] == -2:
            touch_list()
            a.vm("buffer_load_dword a255, v%d, %s, 0 offen sc1" % (u1, WS))
        def sibling():
            touch_list()
            a.I("s_cmp_lt_u32 s2, 128\ns_cselect_b32 %s, 0x%x, 0\nv_add_u32 v%d, %s, v%d\nv_subrev_u32 v%d, 0x%x, v%d" % (sT0, OOB, u1, sT0, u1, u0, LY.ACT_STRIDE, u1)); put(aTO)
            a.vm("buffer_load_dword a255, v%d, %s, 0 offen sc1" % (u0, WS))
        if OPT["sib"] == 1: sibling()
        sa = "s[%d:%d]" % (SRC_A, SRC_A + 3)
        xd, swaps = [], []
        vX, sXD, sHD, sXL = 21, "s6", "s14", sLW4
        self.srd(SRC_A, "s64", "s65", 2048 * 1024)
        a.I("v_xor_b32 v%d, v%d, v%d\nv_lshlrev_b32 v%d, 4, v%d\nv_lshl_add_u32 v%d, v%d, 11, v%d" % (vX, t8, kc, vX, vX, vX, kc, vX))
        lin(sHD, "0", [(sN, 262144), (sP, 1024)])
        lin(sXD, sHD, [(sW, 65536)])
        lin(sHD, sHD, [(sW, 256)])
        a.I("s_sub_u32 %s, %s, 16384\ns_cmp_eq_u32 %s, 0\ns_cselect_b32 %s, 0x%x, %s" % (sHD, sHD, sN, sHD, OOB, sHD))
        a.I("v_xor_b32 v16, v%d, v%d\nv_lshlrev_b32 v16, 4, v16\nv_lshl_add_u32 v%d, v%d, 7, v16\nv_add_u32 v%d, %d, v%d" % (t8, g, u1, t8, u1, L_HALO, u1)); put(aSH)
        a.I("v_lshl_add_u32 v16, v%d, 7, v16\nv_add_u32 v16, %s, v16\nv_xor_b32 v17, 64, v16\nv_add_u32 v18, 0x10000, v16\nv_add_u32 v19, 0x10000, v17" % (tok, sXL))
        for m in range(8):
            for k in range(4):
                xd.append([("i", "s_add_u32 m0, %s, %d\ns_add_u32 s15, %s, %d" % (sXL, m * 16384, sXD, k * 16384 + m * 128 - k * 1024)),
                           ("vm", "buffer_load_dwordx4 v%d, %s, s15 offen offset:%d lds" % (vX, sa, k * 1024), ("xd", m, k))])
            swaps.append(("wvm", ("xd", m, 3)))
            swaps += [("ds", "ds_read_b128 %s, v%d offset:%d" % (vr(X + 8 * (2 * m + h_) + 4 * b_, 4), 16 + h_ + 2 * (m // 4), (m % 4) * 16384 + b_ * 2048)) for b_ in range(2) for h_ in range(2)]
        swaps.append(("dsdrain",))
        self.halo0 = [[("set", "m0", "s_add_u32 m0, %s, %d" % (sLW2, L_HALO + 1024 * k)), ("i", "s_add_u32 s15, %s, %d" % (sHD, 128 * k)),
                       ("vm", "buffer_load_dwordx4 v%d, %s, s15 offen lds" % (vX, sa), "halo" if k else None)] for k in range(2)]
        def flags():
            self.stamp("p")
            a.I("v_mov_b32 v30, %s" % sNONCE)
            a.vm_wait("join")
            a.I("s_barrier")
            if OPT["st_at"]:
                a.I("s_cmp_lt_u32 s2, 128\ns_cselect_b32 %s, %s, 0x%x\ns_cselect_b32 %s, 0x%x, %s" % (sT0, sFBO, OOB, sFBO, OOB, sFBO))
            a.vm("buffer_store_dword v30, v%d, %s, %s offen sc1" % (LINE, WS, sT0 if OPT["st_at"] else sFBO))
            spin, back = a.label("xspin"), a.label("xback")
            test = "v_xor_b32 v29, %s, v31\nv_cmp_lt_u32 vcc, 15, v29\ns_and_b64 vcc, vcc, exec" % sNONCE
            a.I("%s\ns_cbranch_scc1 %s\n%s:" % (test, spin, back))
            self.cold.append("%s:\ns_mov_b32 %s, 0x40000\n%s_l:\n%s\ns_sub_u32 %s, %s, 1\ns_cbranch_scc1 L_main_done\ns_waitcnt vmcnt(0)\n%s\ns_cbranch_scc1 %s_l\ns_branch %s"
                             % (spin, sSPIN, spin, xload, sSPIN, sSPIN, test, spin, back))
            a.I("v_cmp_ne_u32 vcc, v%d, v31\ns_cmp_lg_u64 vcc, 0\ns_cselect_b32 %s, 1, 0\ns_mov_b32 s0, %s\ns_mov_b32 s1, 0" % (XV, sSLOW, sSLOW))
            self.signal(0, "pub", 0, OPT["h_def"] & 1)
            self.stamp("p")
        def carry(ops, emit, per, lag):
            nonlocal swaps
            n0 = len(a.lines)
            self.c_min = n0
            emit()
            body = a.lines[n0:]; del a.lines[n0:]
            per = max(per, -(-(self.c_min - n0) // len(ops)))
            pos = 0
            for g_ in ops:
                a.run_all(g_)
                stop = min(len(body), pos + per)
                while stop < len(body) and self.scc_live(body, stop): stop += 1
                a.I("\n".join(body[pos:stop])); pos = stop
                m, k = g_[-1][2][1:]
                if len(swaps) > 1 and 4 * swaps[0][1][1] + 3 + lag <= 4 * m + k:
                    a.run_all(swaps[:5]); swaps = swaps[5:]
            return "\n".join(body[pos:])
        def consts1():
            a.I("v_cmp_ne_u32 vcc, 0, v0\nv_mov_b32 v%d, 0x%x\nv_accvgpr_write_b32 a%d, v%d\nv_cndmask_b32 v%d, 0, v%d, vcc" % (vF1, OOB, aLINE, LINE, vF1, vF1))
            lin(sHFL, str(LY.HFL), [(sG, 1024)])
            lin(sHDFL, sHFL, [(sC, 128)])
            lin(sFBO, str(LY.FA), [("s2", 128)])
            a.I("s_add_u32 %s, %s, 2048\ns_add_u32 %s, %s, 0x%x\ns_lshl_b32 %s, %s, 11" % (sHDFL, sHDFL, sHDST, sGB, 2 * LY.ACT_STRIDE, sLW2, sW))
            a.I("s_cmp_eq_u32 %s, 0\ns_cselect_b32 %s, %s, 0x%x" % (sW, sFBO, sFBO, OOB))
            a.I("s_lshl_b32 %s, %s, 2\ns_add_u32 %s, %s, %s\ns_cmp_eq_u32 %s, 7\ns_cselect_b32 %s, 0, %s\ns_cmp_eq_u32 %s, 7" % (sT0, sR, sT0, sT0, sW, sN, sT0, sT0, sT0))
            a.I("s_cselect_b32 %s, %s, 0x%x" % (sHDST, sHDST, OOB))
            a.I("v_bfe_u32 v%d, v0, 3, 1\nv_xor_b32 v%d, 1, v%d\nv_lshlrev_b32 v%d, 29, v%d" % (vA, vA, vA, vA, vA))
            lin(sT0, "8192", [(sC, 128)])
            a.I("v_lshl_add_u32 v%d, v%d, 3, %s\nv_lshl_add_u32 v%d, v%d, 28, v%d" % (u1, tok, sT0, u1, g, u1)); put(aHSS)
            a.I("v_lshlrev_b32 v%d, 4, v%d\nv_lshl_add_u32 v%d, v%d, 7, v%d\nv_add_u32 v%d, %d, v%d" % (u0, t8, u0, g, u0, u1, L_HALO, u0)); put(aHX)
            a.I("s_lshl_b32 %s, %s, 10\nv_add3_u32 v%d, v%d, v%d, %s" % (sT0, sC, u1, u0, vA, sT0)); put(aHST)
        def consts2():
            a.I("s_lshr_b32 %s, %s, 1\ns_lshl_b32 %s, %s, 5\ns_and_b32 %s, %s, 1\ns_lshl_b32 %s, %s, 1\ns_add_u32 %s, %s, %s" % (sT0, sW, sT0, sT0, sT1, sW, sT1, sT1, sT0, sT0, sT1))
            a.I("s_mov_b32 s40, 0x33333333\ns_mov_b32 s41, 0\ns_lshl_b64 s[40:41], s[40:41], %s" % sT0)
            a.I("s_lshl_b32 %s, %s, 1\ns_lshl_b32 %s, %s, 4\ns_add_u32 %s, %s, %s" % (sT0, sR, sT2, sW, sT0, sT0, sT2))
            a.I("s_mov_b32 s42, 0x3333\ns_mov_b32 s43, 0\ns_lshl_b64 s[42:43], s[42:43], %s" % sT0)
            a.I("s_lshr_b32 %s, %s, 1\ns_mul_i32 %s, %s, 24\ns_add_u32 %s, %s, %s\nv_lshl_add_u32 v%d, v%d, 3, %s" % (sT0, sJ, sT1, sW, sT0, sT0, sT1, u0, kc, sT0))
            a.I("s_lshl_b32 %s, %s, 3\ns_add_u32 %s, %s, %s\ns_add_u32 %s, %s, 96\nv_mov_b32 v%d, %s\nv_cmp_gt_u32 vcc, 24, v0\nv_cndmask_b32 v%d, v%d, v%d, vcc" %
                (sT0, sW, sT0, sT0, sC, sT0, sT0, u1, sT0, u0, u1, u0))
            a.I("v_lshlrev_b32 v%d, 7, v%d\nv_add_u32 v%d, %d, v%d" % (u0, u0, FAV, LY.FA, u0))
            self.c_min = len(a.lines)
            a.I("s_lshr_b32 %s, s2, 3\ns_lshl_b32 %s, %s, 2\ns_add_u32 %s, %s, %s\ns_lshl_b32 %s, %s, 7" % (sCPO, sCPO, sCPO, sCPO, sCPO, sW, sCPO, sCPO))
            lin(sHST, sGB, [(sW, 114688), (sJ, 7168)])
            lin(sSLD, sGB, [(sW, 2048)])
            lin(sOL, sXST, [(sC, -4096)])
            a.I(BIT + " %s, 0\ns_cselect_b32 %s, 1, -1\ns_cselect_b32 %s, 0, 6144\ns_lshl_b32 %s, %s, 10\ns_add_u32 %s, %s, %s" % (sJ, sHSTEP, sT0, sHSTEP, sHSTEP, sHST, sHST, sT0))
            a.I("s_lshr_b32 %s, %s, 1\ns_lshl_b32 %s, %s, 1\ns_add_u32 %s, %s, %s\ns_lshl_b32 s66, 0x11111111, %s\ns_mov_b32 s67, s66" % (sT0, sW, sT1, sR, sT0, sT0, sT1, sT0))
            lin(sHLD[3], sGB, [(sR, 229376), (sW, 28672)])
            for i in range(4):
                a.I("s_add_u32 %s, %s, %d\ns_and_b32 %s, %s, 3\ns_lshr_b32 %s, %s, 1\ns_and_b32 %s, %s, 1" % (sTA, sW, i + 1, sTA, sTA, sT0, sTA, sT1, sTA))
                lin(sHLD[i], sHLD[3], [(sT0, 114688), (sT1, 256)])
                if i < 3: lin(sXW[i], str(i * 4096), [(sTA, 12288)])
            lin(sXR, "0", [(sW, 12288)])
            lin(sWQ, str(LY.WQ), [(sJ, LY.WQ_STRIDE * (1 - OPT["hitw"]))])
            lin(sWG, str(LY.WG), [(sJ, LY.WG_STRIDE * (1 - OPT["hitw"]))])
            lin(sWO, str(LY.WO), [(sC, LY.WO_STRIDE * (1 - OPT["hitw"])), (sW, 4096)])
            lin(sWD, str(LY.WD), [(sC, LY.WD_STRIDE * (1 - OPT["hitw"])), (sW, 57344)])
            lin(sTAB, str(L_TAB), [(sW, 512)])
            a.I("s_lshl_b32 %s, %s, 10" % (sLW, sW))
            a.I("s_add_u32 %s, %s, %s\ns_add_u32 %s, %s, %s" % (sWQ4, sWQ, sLW4, sWG4, sWG, sLW4))
            a.I("s_cmp_eq_u32 %s, 0\ns_cselect_b32 %s, 0x%x, %s\ns_cselect_b64 s[54:55], 0, -1" % (sN, sHALO, OOB, sGB))
            a.I("s_add_u32 %s, %s, %s\ns_add_u32 %s, %s, %s\ns_add_u32 %s, %s, %s" % (sHALO2, sHALO, sLW2, sWQ, sWQ, sLW, sWG, sWG, sLW2))
            a.I("v_add_u32 v%d, 0x10000, v%d\nv_add_u32 v%d, 0x20000, v%d" % (vL16b, vL16, vL16c, vL16))
            if OPT["t_pos"] != -2 and not OPT["sib"]: touch_list()
            a.I("v_lshlrev_b32 v%d, 7, v%d\nv_lshl_add_u32 v%d, v%d, 5, v%d\nv_lshl_add_u32 v%d, v%d, 1, v%d\nv_lshlrev_b32 v%d, 3, v0" % (u0, rr, u0, g, u0, u0, cc, u0, u1))
            a.I("s_cmp_ge_u32 %s, 2\ns_cselect_b64 vcc, -1, 0\ns_cselect_b32 %s, 2, 8\nv_cndmask_b32 v%d, v%d, v%d, vcc" % (sW, sT1, u1, u0, u1))
            a.I("s_lshr_b32 %s, %s, 1\ns_add_u32 %s, %s, %d\nv_add_u32 v%d, %s, v%d" % (sT0, sLW, sT0, sT0, L_KV, u1, sT0, u1)); put(aHWR)
            a.I("v_mov_b32 v%d, %s" % (u1, sT1)); put(aHWS)
            a.I("s_mul_i32 %s, %s, 7\ns_add_u32 %s, %s, 6\ns_lshr_b32 %s, %s, 2\ns_lshr_b32 %s, %s, 2" % (sT0, sJ, sT1, sT0, sT0, sT0, sT1, sT1))
            a.I("v_add_u32 v%d, %s, v%d\nv_min_u32 v%d, %s, v%d\ns_mul_i32 %s, %s, 28\nv_add_u32 v%d, %s, v%d" % (u0, sT0, kc, u0, sT1, u0, sT0, sW, u0, sT0, u0))
            a.I("s_add_u32 %s, %s, 112\nv_cmp_gt_u32 vcc, 24, v0\nv_mov_b32 v%d, %s\nv_cndmask_b32 v%d, v%d, v%d, vcc" % (sT0, sJ, u1, sT0, u0, u1, u0))
            a.I("s_mul_i32 %s, %s, 7\ns_lshr_b32 %s, %s, 1\nv_and_b32 v%d, 3, v%d\nv_add_u32 v%d, %s, v%d\nv_lshl_add_u32 v%d, v%d, 3, %s" % (sT0, sW, sT0, sT0, u1, kc, u1, sT0, u1, u1, u1, sC))
            if OPT["dfirst"]:
                a.I("v_lshlrev_b32 v%d, 7, v%d\nv_add_u32 v%d, %d, v%d" % (u1, u1, u1, LY.FB + 128 * 128, u1)); put(aSG)
            else:
                a.I("v_cmp_gt_u32 vcc, 32, v0\nv_cndmask_b32 v%d, v%d, v%d, vcc" % (u0, u1, u0))
            a.I("v_lshlrev_b32 v%d, 7, v%d\nv_add_u32 v%d, %d, v%d" % (u0, u0, u1, LY.FA + 128 * 128, u0)); put(aFB)
            a.I("s_getpc_b64 %s\nL_pc2:\ns_sub_u32 s4, s4, L_pc2-L_pc\ns_subb_u32 s5, s5, 0" % sPC)
            NG, Z, M0_, M1_ = rr, cc, q16, hh
            a.I("s_or_b32 %s, %s, %s\ns_cmp_eq_u32 %s, 0\ns_cselect_b64 s[56:57], -1, 0" % (sT0, sN, sW, sT0))
            a.I("v_mov_b32 v%d, %s\nv_mov_b32 v%d, 0\nv_lshlrev_b32 v%d, 2, v%d\nv_sub_u32 v%d, v%d, v%d" % (NG, NEG, Z, vA, g, vA, tok, vA))
            for r in range(4):
                a.I("v_subrev_u32 v%d, %d, v%d\nv_mov_b32 v%d, %s" % (u0, r, vA, M0_, "0xffff0000" if r & 1 else "0xffff"))
                a.I("v_cmp_gt_u32 vcc, 8, v%d\nv_cmp_gt_i32 s[58:59], -8, v%d\nv_cmp_le_i32 s[60:61], 0, v%d" % (u0, u0, u0))
                a.I("v_cndmask_b32 v%d, v%d, v%d, vcc" % (u1, NG, Z)); put(aBC + r)
                a.I("v_cndmask_b32 v%d, v%d, v%d, s[58:59]" % (u1, NG, Z)); put(aBP + r)
                a.I("v_cndmask_b32 v%d, v%d, v%d, s[56:57]" % (u1, u1, NG)); put(aBP0 + r)
                if r & 1:
                    a.I("v_cndmask_b32 v%d, v%d, v%d, s[60:61]\nv_or_b32 v%d, v%d, v%d" % (u1, Z, M0_, u1, u1, M1_)); put(aMC + r // 2)
                else:
                    a.I("v_cndmask_b32 v%d, v%d, v%d, s[60:61]" % (M1_, Z, M0_))
        n1, n2, n3 = OPT["xd1"], 32 - OPT["fa_ld"], 32 - OPT["fa_ck"]
        assert n1 <= 28
        self.late_flag = []
        if OPT["st_at"]:
            assert OPT["st_at"] < n2
            self.cold.append("L_held:\n%s\ns_branch L_heldback" % "\n".join(held))
            xd[OPT["st_at"]].insert(0, ("i", "s_cmp_ge_u32 s2, 128\ns_cbranch_scc1 L_held\nL_heldback:"))
            self.late_flag = [[("vm", "buffer_store_dword v30, v%d, %s, %s offen sc1" % (LINE, WS, sFBO))]]
        a.I(carry(xd[:n1], consts1, OPT["xd_gap"], 99))
        flags()
        rest = carry(xd[n1:n2], consts2, OPT["xd_per"], OPT["xd_lag"])
        self.stamp("p")
        l_fa, g_fa = self.late_check("buffer_load_dword v%d, v%d, %s, 0 offen sc1" % (PB, FAV, WS), PB, "exec", "fa2")
        l_x, g_x = self.check_ops(0, sMA, PA, "x2")
        if OPT["h_def"] & 1:
            assert "s[58:59]" not in rest or "v_cmp_gt_i32 s[58:59]" in rest.split("s[58:59]")[0] + "s[58:59]"
            self.halo_flag()
        a.run_all(l_x + l_fa)
        a.I(carry(xd[n2:n3], lambda: a.I(rest), OPT["xd_per"], OPT["xd_lag"]) if n3 > n2 else rest)
        if OPT["t_pos"] == -1: a.run_all(self.flat(self.touch(aTO, "0", 0, 20)))
        if OPT["sib"] == 2: sibling()
        while len(swaps) > 1 and swaps[0][1][1] < max(3, min(OPT["x_pre"], n3 // 4)):
            a.run_all(swaps[:5]); swaps = swaps[5:]
        self.page_break(1)
        a.run_all(g_fa + g_x)
        a.ds_drain()
        self.stamp("p")
        self.x_rest, self.x_reads = xd[n3:], swaps

    def qkv(self, ps):
        a = self.a
        xi = 2 * ps
        late = self.wq_late(ps)
        lateb = ps == 0 and "b" not in OPT["order"] and not OPT["lead"]
        bst = []
        wql = [g for ch in late for g in self.wq_chunk(ch)]
        split = ps == 0 and OPT["q0_split"]
        HX, HW, HW2, HF, NM, RL, CQ, RR = 16, 17, 18, 19, 20, 26, 28, ACC + 52
        def setup():
            a.I(self.getc(HX, aHX))
            a.I("s_add_u32 %s, %s, 2048\nv_add_u32 v%d, %s, v%d\nv_add_u32 v%d, 0xc000, v%d\nv_and_b32 v%d, 0x380, v%d" % (sT2, sLW, HW, sT2, vL16, HW2, HW, CQ, vL16))
            if EB:
                self.early_barrier()
                for f in range(6): a.ds("ds_read_b128 %s, %s" % (vr(F + 4 * f, 4), ldsaddr(f * 1024)), ("f", 0, f))
        EB = ps == 1 and OPT["eb"] & 2
        if ps == 0 and OPT["xdir"]:
            a.forget(("fb", "xd"))
            if not OPT["lead"]: setup()
        else:
            self.poll(6 * ps, sMA, self.fav if ps == 0 and not split else None, setup)
        self.stamp()
        xl = self.reg_loads([vr(X + 8 * s + 4 * b, 4) for s in range(16) for b in range(2)], [sXLD] * 32,
                            [LY.XB[xi] + s * 2048 + b * 256 for s in range(16) for b in range(2)], sTA, vQ, "x")
        UP = OPT["q_up"] if ps else OPT["q0_up"]
        xdir = ps == 0 and OPT["xdir"]
        if xdir: xl = []
        if ps == 0:
            late = late[1:]
            n = 4 + OPT["q0_w"]
            first = wql[:4] + xl[:UP] + wql[4:n]
            if split:
                l_fa, g_fa = self.late_check("buffer_load_dword v%d, v%d, %s, 0 offen sc1" % (HF, self.fav, WS), HF, "exec", "fa")
                n1 = OPT["q0_n1"]
                first = xl[:n1] + [l_fa] + xl[n1:UP] + [g_fa + [("i", "s_barrier")]] + wql[:n]
            else:
                first = xl[:2] + [[("i", "s_barrier")]] + wql[:4] + xl[2:UP] + wql[4:n] + (self.halo0 if xdir and not OPT["lead"] else [])
                if OPT["lead"]:
                    assert n <= 12
                    k = 1 + OPT["q0_x"]
                    first[k:k] = [g + [("call", lambda: a.state.pop("m0", None))] for g in self.x_rest]
                    first[OPT["lf_at"]:OPT["lf_at"]] = self.late_flag
            wql = wql[n:]
            if OPT["b_pos"] >= 2:
                k = OPT["b_pos"] - 2
                a.run_all(self.flat(first[:k])); first = first[k:]
                self.b_loads(); a.state.pop("m0", None)
            inb = xdir and OPT["inb"]
            if inb:
                bpre, brd, bst2 = self.second_ops()
                if OPT["inb_at"]:
                    k = OPT["inb_at"] + 1
                    a.run_all(self.flat(first[:k])); first = first[k:]
                    self.b_loads(); a.state.pop("m0", None)
                a.I(bpre)
            elif lateb:
                k = len(first) - OPT["q0_b"]
                a.run_all(self.flat(first[:k])); first = first[k:]
                if OPT["b_pos"] >= 2 or xdir: a.vm_wait(("fb", 24576))
                a.I("s_barrier")
                bst = self.second_unit()
            a.run_all(self.flat(first))
        else:
            a.run_all(self.flat(xl[:UP]))
            if OPT["h_def"] & 2: self.halo_flag()
            if OPT["h_late"]: hflag = self.halo_late(1)
        if ps == 0:
            if OPT["lead"]:
                a.run_all(self.x_reads); setup()
            a.vm_wait(("wq", 0))
            if inb and OPT["inb_ch"] == 0: a.vm_wait(("fb", 24576))
        if not EB: a.I("s_barrier")
        sl = Slots()
        sl.mpatience, sl.patience = OPT["q_mp%d" % ps], OPT["q_vp"]
        use = {}
        acc = lambda blk, b: vr(ACC + 8 * blk + 4 * b, 4)
        hbuf = lambda t: (F + 24, X)[t % 2]
        HR = OPT["hreg"]
        hwreg = (lambda t: X + 32 + 4 * t) if HR else hbuf
        T0 = X if HR else X + 34
        step0 = {}
        H0 = OPT["xd_h0"] if xdir else OPT["q_h0"]
        hpos = {}
        for t in range(16):
            p = (t * 6 * (16 - H0)) // 16 + 1
            hpos.setdefault((H0 + p // 6, p % 6), []).append(t)
        Y, Z = X + 8, X + 96
        BC, BP, BP0, MC, ONES, KW, CSA = Y, Y + 4, Y + 8, Y + 12, Y + 14, Y + 16, Y + 21
        def halo_mfma(t):
            d = acc(6, 0)
            if t < 16:
                i = sl.add("v_mfma_f32_16x16x32_bf16 %s, %s, %s, %s" % (d, vr(hbuf(t) + 4, 4), vr(hwreg(t), 4), "0" if t == 0 else d), [("wds", ("hw", t)), ("wds", ("hx", t))])
            else:
                i = sl.add("v_mfma_f32_16x16x16_bf16 %s, %s, %s, %s" % (d, vr(NM + 4, 2), vr(hbuf(t), 2), d), [("wds", ("hw", t))])
            use[("h", t)] = i
        for s in range(17):
            step0[s] = sl.n()
            if s == 16: halo_mfma(16)
            for f in range(6):
                for b0 in range(2):
                    b = b0 ^ (f & OPT["snake"])
                    pre_ = []
                    if b0 == 0: pre_.append(("wds", ("f", s, f // OPT["q_grp"] * OPT["q_grp"] + OPT["q_grp"] - 1)))
                    if f == 0 and s < 16 and not xdir: pre_.append(("wvm", ("x", 2 * s + (b if s == 0 else 1))))
                    w = vr(F + 4 * f, 4 if s < 16 else 2)
                    x = vr(X + 8 * s + 4 * b, 4) if s < 16 else vr(NM + 2 * b, 2)
                    A, B = (w, x) if f < 4 else (x, w)
                    d = acc(f, b)
                    mn = "v_mfma_f32_16x16x32_bf16" if s < 16 else "v_mfma_f32_16x16x16_bf16"
                    use[(s, f)] = sl.add("%s %s, %s, %s, %s" % (mn, d, A, B, "0" if s == 0 else d), pre_)
                for t in hpos.get((s, f), ()): halo_mfma(t)
        reads = []
        for s in range(17):
            for f in range(6):
                d = F + 4 * f
                if s < 16: t = "ds_read_b128 %s, %s" % (vr(d, 4), ldsaddr(s * 6144 + f * 1024))
                else: t = "ds_read2st64_b32 %s, v%d offset0:%d offset1:%d" % (vr(d, 2), CSA, 2 * f, 2 * f + 1)
                reads.append((use[(s - 1, f)] if s else -1, (6 * s + f) // 16, ("ds", t, ("f", s, f))))
        hbar = step0[H0 - 1] + 4
        for t in range(17):
            pos = use[("h", t - 2)] if t >= 2 else hbar + 2 + 2 * t
            if t < 16:
                reads.append((use[(max(5 + t // 2, t - 1), 1 + 3 * (t % 2))] if HR else pos, (6 * t + 5) // 16, ("ds", "ds_read_b128 %s, v%d offset:%d" % (vr(hwreg(t), 4), HW if t < 8 else HW2, (t % 8) * 6144), ("hw", t))))
                reads.append((pos + (1 if t >= 2 and not HR else 0), 0, ("ds", "ds_read_b128 %s, v%d offset:%d" % ((vr(hbuf(t) + 4, 4),) + ((T0 + t % 2, t // 2 * 1024) if xdir else (HX, t * 512))), ("hx", t))))
            else:
                reads.append((pos, 6, ("ds", "ds_read2st64_b32 %s, v%d offset0:4 offset1:5" % (vr(hbuf(t), 2), CSA + 1), ("hw", t))))
        sl.put("c", step0[4], [("i", "v_add_u32 v%d, 98304, v%d\ns_lshr_b32 %s, %s, 1\nv_add_u32 v%d, %s, v%d" % (CSA, vFL, sT2, sLW, CSA + 1, sT2, CSA)), ("mark", "csaddr")])
        sl.after(step0[14], ("need", "csaddr"))
        sl.pre[step0[16]].append(("wds", ("nm", 2)))
        chbar = {}
        for ch in late:
            ops = [("wvm", ("wq", ch)), ("i", "s_barrier")]
            p = chbar[ch] = min(p for p, c, _ in reads if c == ch)
            if ps == 0 and inb and ch == OPT["inb_ch"]: ops.insert(0, ("wvm", ("fb", 24576)))
            if lateb and ch == OPT["q0_fbch"]:
                ops.insert(0, ("wvm", "fbs"))
                assert p >= step0[5]
                sl.put("f", p + 1, [("i", "v_mov_b32 v%d, %s\n%s" % (X + 32, sNONCE, self.getc(X + 33, aLINE))),
                                    ("vm", "buffer_store_dword v%d, v%d, %s, %s offen sc1" % (X + 32, X + 33, WS, sFBO))])
            if xdir and ch == 5: ops.insert(0, ("wvm", ("wq", 6)))
            if xdir and ch == 3:
                assert p <= hbar
                ops.insert(0, ("wvm", "halo"))
            if xdir and ch == 6: del chbar[6]
            else: sl.after(p, *ops)
        if not xdir: sl.after(hbar, ("wvm", "halo"), ("i", "s_barrier"))
        if ps == 0 and inb:
            p = chbar.get(OPT["inb_ch"], -1) + 1
            sl.put("b", p, brd)
            for n_, g in enumerate(bst2): sl.put("b", p + OPT["inb_wait"] + n_ * OPT["inb_gap"], g)
            bfree = chbar[OPT["q0_fbch"]] + 2
        if xdir:
            assert H0 >= 7 and not OPT["diagpad"]
            sl.put("g", step0[5], [("i", self.getc(T0, aSH) + "\nv_xor_b32 v%d, 64, v%d" % (T0 + 1, T0)), ("mark", "hx0")])
            sl.after(hbar, ("need", "hx0"))
        for pos, _, rd in reads:
            if pos < 0:
                if not EB: a.run(rd)
            else: sl.after(pos, rd)
        l_hf, g_chk = self.late_check("buffer_load_dword v%d, v%d, %s, %s offen sc1" % (HF, CQ, WS, sT1), HF, sMH, "hf")
        g_hf = [("i", "s_add_u32 %s, %s, %d" % (sT1, sHFL, ps * 16384))] + l_hf
        g_hd = self.dma_chunk(sHALO2, LY.HX[ps], L_HALO, 2, "halo", " sc1")
        g_hs = [("i", "s_add_u32 %s, %s, %d\nv_and_b32 v%d, 7, v0\nv_lshl_add_u32 v%d, v%d, 3, v%d" % (sT1, sHALO, LY.HX[ps] + 8192 + 64, HF, HF, HF, CQ)),
                ("vm", "buffer_load_dwordx2 %s, v%d, %s, %s offen sc1" % (vr(RR + 8, 2), HF, WS, sT1), "st")]
        g_s0 = [("i", "s_add_u32 %s, %s, %d" % (sT0, sSLD, LY.SB[xi])), ("vm", "buffer_load_dwordx4 %s, v%d, %s, %s offen sc1" % (vr(RR, 4), vL16, WS, sT0))]
        g_s1 = [("vm", "buffer_load_dwordx4 %s, v%d, %s, %s offen offset:1024 sc1" % (vr(RR + 4, 4), vL16, WS, sT0))]
        wgq = []
        if HR:
            assert OPT["lead"]
            wbar = min(p for p in ([] if xdir else [hbar]) + list(chbar.values()) if p >= step0[8])
            sl.post[wbar].insert(0, ("wds", ("hw", 5)))
            if ps and self.digits("wg_q1"):
                w2 = step0[max(11, OPT["q_wbar"])]
                while sl.post[w2]: w2 += 1
                sl.after(w2, ("wds", ("hw", 10)), ("i", "s_barrier"))
                assert set(self.digits("wg_q1")) <= {0, 1}
                wgq = [(w2 + 2, g) for g in self.wgs("q", ps)]
        else:
            wbar = max(use[("h", 6)] + 2, step0[OPT["xd_wbar" if xdir else "q_wbar"]])
            while sl.post[wbar]: wbar += 1
            sl.after(wbar, ("i", "s_barrier"))
        wo = [((bfree if ps == 0 and inb else 0) if i < 2 else wbar + 2, g) for i in range(4) for g in self.wo_chunk(i) if not (ps and OPT["skipo"] and WO_SLOT[i] in self.digits("keepo"))]
        rest = xl[UP:]
        h1 = OPT["q_hf"] if ps else OPT["q0_hf"]
        h2 = h1 + OPT["q_chk"] - 2
        seq = rest[:h1] + [g_hf, g_s0, g_s1] + rest[h1:h2] + [g_chk] + g_hd + [g_hs] + rest[h2:]
        if ps and OPT["h_late"]: seq.insert(OPT["h_late"], hflag)
        if xdir:
            k1, k2 = OPT["xd_h1"], OPT["xd_h1"] + OPT["xd_h2"]
            seq = wql[:k1] + [g_hf, g_s0, g_s1] + (self.halo0 if OPT["lead"] else []) + wql[k1:k2] + [g_chk, g_hs] + wql[k2:]
        elif wql:
            due, d = [], sl.n()
            for g in reversed(seq):
                tag = g[-1][2] if len(g[-1]) > 2 else None
                if isinstance(tag, tuple) and tag[0] == "x": d = step0[tag[1] // 2]
                due.append((d, g))
            due.reverse()
            d, wdue = 0, []
            for g in reversed(wql):
                if g[-1][2] is not None: d = chbar[g[-1][2][1]] - OPT["q0_lead"]
                wdue.append((d, g)); d -= 6
            seq = [g for _, g in sorted(due + wdue[::-1], key=lambda t: t[0])]
        for n_, g in enumerate(bst):
            k = OPT["b_first"] + n_ * (OPT["b_gap"] + 1)
            assert not any(op[0] == "vm" and len(op) > 2 and isinstance(op[2], tuple) and op[2][0] == "x" and op[2][1] >= 24 for g2 in seq[:k] for op in g2)
            seq.insert(k, g)
        if ps == 0:
            tch = self.touch(aTO, "0", 0, T0 + 2) if OPT["t_set"] != "-" and OPT["t_pos"] >= 0 else []
            wo[OPT["t_pos"]:OPT["t_pos"]] = [(step0[OPT["t_step"]], g) for g in tch]
            l_fb, g_fb = self.late_check("%s\nbuffer_load_dword v%d, v%d, %s, 0 offen sc1" % (self.getc(Y + 23, aFB), Y + 23, Y + 23, WS), Y + 23, "exec", "fb")
            l_fb = [("i", l_fb[0][1].split("\n")[0]), ("vm", l_fb[0][1].split("\n")[1], "fb")]
            seq += [g + (OPT["q0_tail"] / 10,) for g in wo]
            if OPT["dfirst"]:
                l_fd, g_fd = self.late_check("%s\nbuffer_load_dword v%d, v%d, %s, 0 offen sc1" % (self.getc(PA, aSG), PA, PA, WS), PA, "exec", "fd")
                sl.put("f", OPT["q0_fd"], [("i", l_fd[0][1].split("\n")[0]), ("vm", l_fd[0][1].split("\n")[1], "fd")])
                p = OPT["q0_fd"] + OPT["q0_fdl"]
                g_fd = [g_fd[0], ("atom", g_fd[1][1] + "\n" + g_fd[2][1]), ("mark", "fd")]
                g_chk[1:] = [("atom", g_chk[1][1] + "\n" + g_chk[2][1])]
                sl.put("f", p, g_fd)
                sl.after(step0[11], ("need", "fd"))
                assert not sl.pace(self.wds("q", ps), p + 2, (sl.n() - p - 4 - OPT["wd_e"]) / OPT["wd_q"], name="f")
                sl.put("e", step0[OPT["q0_fbs"]], l_fb)
            elif OPT["fb_at"] == "att":
                sl.put("f", step0[OPT["q0_fbs"]], l_fb)
                if OPT["wd_q"]:
                    p = step0[OPT["q0_fbs"] + OPT["q0_fbl"]]
                    sl.put("f", p, [("need", "hchk")] + g_fb); g_fb = []
                    g_chk.append(("mark", "hchk"))
                    assert not sl.pace(self.wds("q", ps), p + 2, (sl.n() - p - 4 - OPT["wd_e"]) / OPT["wd_q"], name="f")
            else:
                assert not (self.digits("wg_att0") or self.digits("wg_h10") or OPT["wd_att"] or OPT["wd_h1"])
                self.cold.pop(); g_fb = []
        else:
            seq += wo + wgq
        if OPT["cpf"] & 8: sl.put("g", step0[OPT["cp_q"]], self.flat(self.code_touch("L_qkv%d" % ps, CQ + 1)))
        sl.put("g", step0[12], self.flat(self.code_touch("L_wo%d" % ps, CQ + 1)))
        left = sl.pace(seq, 0, (OPT["q_every"] if ps else OPT["q0_every"]) / 10)
        A0, A1, AH = RR, RR + 4, RR + 8
        st = [[("wvm", "st")]]
        for o in (0, 1): st.append([("i", "v_add_f32_dpp v%d, v%d, v%d row_ror:8 row_mask:0xf bank_mask:0xf" % (AH + o, AH + o, AH + o))])
        for r_ in (A0, A1):
            st.append([("i", "v_add_f32 v%d, v%d, v%d" % (r_, r_, r_ + 2))])
            st.append([("i", "v_add_f32 v%d, v%d, v%d" % (r_ + 1, r_ + 1, r_ + 3))])
        for o in (0, 1): st.append([("i", "v_mov_b32 v%d, v%d" % (AH + 2 + o, AH + o))])
        for o in (0, 1): st.append([("i", "v_permlane32_swap_b32 v%d, v%d" % (A0 + o, A1 + o))])
        for o in (0, 1): st.append([("i", "v_permlane32_swap_b32 v%d, v%d" % (AH + o, AH + 2 + o))])
        for o in (0, 1): st.append([("i", "v_add_f32 v%d, v%d, v%d" % (A0 + o, A0 + o, A1 + o))])
        for o in (0, 1): st.append([("i", "v_add_f32 v%d, v%d, v%d" % (AH + o, AH + o, AH + 2 + o))])
        for o in (0, 1): st.append([("i", "v_permlane16_swap_b32 v%d, v%d" % (A0 + o, AH + o))])
        for o in (0, 1): st.append([("i", "v_add_f32 v%d, v%d, v%d" % (A0 + o, A0 + o, AH + o))])
        st += [[op] for op in self.ln_from_sums(A0, A0 + 1, A0 + 2)]
        st.append([("i", "v_cvt_pk_bf16_f32 v%d, -v%d, -v%d" % (A0, A0, A0))])
        st.append([("i", "v_add_u32 v%d, %s, v%d" % (HF, sTAB, vFL))])
        st.append(([("need", "bdone")] if ps == 0 and inb else []) + [("i", "v_and_or_b32 v30, v%d, 63, %s" % (vFL, sTAB))])
        st.append([("i", "v_and_or_b32 v31, v0, 48, %s" % sTAB)])
        st.append([("ds", "ds_write2st64_b32 v%d, v%d, v%d offset0:0 offset1:1" % (HF, A0 + 1, A0))])
        row = {0: 0, 1: 2, 2: 1}
        for b in range(3):
            o = 64 + row[b] * 16
            st.append([("ds", "ds_read2_b32 %s, v30 offset0:%d offset1:%d" % (vr(NM + 2 * b, 2), o, o), ("nm", b))])
        st.append([("ds", "ds_read2_b32 %s, v30 offset0:0 offset1:32" % vr(RL, 2))])
        for b in range(3):
            st.append([("ds", "ds_read_b128 %s, v31 offset:%d" % (vr(RR + 4 * b, 4), row[b] * 64), ("tab", b))])
        sl.spread(st, step0[OPT["xd_st"]] if xdir else step0[H0] - OPT["q_st"], step0[14])
        cst = [[("i", self.getc(Y + k, aBC + k))] for k in range(14)]
        cst += [[("i", "v_mov_b32 v%d, %s" % (ONES + k, sONE))] for k in range(2)]
        cst += [[("i", self.getc(KW, aHWR))], [("i", self.getc(KW + 3, aHWS))], [("i", "s_add_u32 %s, %s, %d" % (sT2, sLW2, L_KV))],
                [("i", "v_add_u32 v%d, v%d, v%d" % (KW + 1, KW, KW + 3))], [("i", "v_lshl_add_u32 v%d, v0, 3, %s" % (KW + 4, sT2))],
                [("i", "v_add_u32 v%d, v%d, v%d" % (KW + 2, KW + 1, KW + 3))], [("i", "v_add_u32 v%d, v%d, v%d" % (KW + 3, KW + 2, KW + 3))]]
        sl.spread(cst, step0[4] + 2, step0[8], "c")
        Qp = lambda b, h: Z + 4 * h + 2 * b
        Kp = lambda b, h: Z + 8 + 6 * h + 2 * (b + 1)
        Vp = lambda b, h: Z + 20 + 6 * h + 2 * (b + 1)
        HP, HA = HX, ACC + 48
        ar_ = lambda blk, b: ACC + 8 * blk + 4 * b
        cvt = lambda d, s_: "v_cvt_pk_bf16_f32 v%d, v%d, v%d" % (d, s_, s_ + 1)
        tl = [("wds", ("tab", 2)), ("i", "v_mul_f32 v%d, 0x3eb8aa3b, v%d\nv_mul_f32 v%d, 0x3eb8aa3b, v%d" % (CQ, RL, CQ + 1, RL + 1))]
        tl += [("i", "v_mul_f32 v%d, v%d, v%d" % (HA + r, HA + r, RR + 8 + r)) for r in range(4)]
        tl += [("i", cvt(HP, HA)), ("i", cvt(HP + 1, HA + 2))]
        hw = [("ds", "ds_write_b16%s v%d, v%d" % ("_d16_hi" if r & 1 else "", KW + r, HP + r // 2)) for r in range(4)]
        qs = [(h, b) for h in range(2) for b in range(2)]
        sl.put("v", step0[16], tl)
        for n_, (h, b) in enumerate(qs):
            sl.put("v", use[(16, h)], [hw[n_], ("i", cvt(Qp(b, h), ar_(h, b))), ("i", cvt(Qp(b, h) + 1, ar_(h, b) + 2))])
        self.lite(sl, "q", [step0[s] for s in (0, 2, 4, 6, 8, 10, 12, 14)])
        self.report("qkv%d" % ps, sl.emit(a))
        self.stamp()
        body = []
        e = lambda t: body.extend(("i", x) for x in t.split("\n"))
        def pack(dst, src): e(cvt(dst, src) + "\n" + cvt(dst + 1, src + 2))
        def scale_l(src, b):
            for k in range(2): e("v_pk_mul_f32 %s, %s, %s op_sel:[0,%d] op_sel_hi:[1,%d]" % (vr(src + 2 * k, 2), vr(src + 2 * k, 2), vr(RL, 2), b, b))
        def scale_r(src, r0):
            for k in range(2): e("v_pk_mul_f32 %s, %s, %s" % (vr(src + 2 * k, 2), vr(src + 2 * k, 2), vr(r0 + 2 * k, 2)))
        kvw = lambda src, part: body.append(("ds", "ds_write_b64 v%d, %s offset:%d" % (KW + 4, vr(src, 2), 2048 + 512 * part)))
        for h in range(2):
            scale_l(ar_(2 + h, 1), 1); pack(Kp(1, h), ar_(2 + h, 1)); kvw(Kp(1, h), h); scale_l(ar_(2 + h, 0), 0)
        for h in range(2):
            scale_r(ar_(4 + h, 1), RR + 4); pack(Vp(1, h), ar_(4 + h, 1)); kvw(Vp(1, h), 2 + h); scale_r(ar_(4 + h, 0), RR)
        units = [(1, 0), (1, 1), (0, 0), (0, 1)]
        SC = lambda u: F + 8 * u
        SP = lambda u: F + 8 * u + 4
        smf = lambda d, kb, u, bias: "v_mfma_f32_16x16x16_bf16 %s, %s, %s, %s" % (vr(d, 4), vr(Kp(kb, units[u][1]), 2), vr(Qp(*units[u]), 2), vr(bias, 4))
        M = [ACC + u for u in range(4)]
        def merge(u):
            return ["v_max_f32 v%d, v%d, v%d" % (SC(u) + r, SC(u) + r, SP(u) + r) for r in range(4)] + [
                "v_max3_f32 v%d, v%d, v%d, v%d" % (M[u], SC(u), SC(u) + 1, SC(u) + 2), "v_max_f32 v%d, v%d, v%d" % (M[u], M[u], SC(u) + 3)]
        e(smf(SC(0), 1, 0, BC)); pack(Kp(0, 0), ar_(2, 0))
        e(smf(SC(1), 1, 1, BC)); pack(Kp(0, 1), ar_(3, 0))
        e(smf(SP(0), 0, 0, BP))
        if ps == 0: body.extend(g_fb)
        body.extend(("wvm", ("wo", i)) for i in range(2) if not (ps and OPT["skipo"] and WO_SLOT[i] in self.digits("keepo")))
        body.append(("dsdrain",)); e("s_barrier")
        nbar = len(body)
        rdkv = lambda dst, part, tag: body.append(("ds", "ds_read_b64 %s, v%d offset:%d" % (vr(dst, 2), KW + 4, 512 * part), tag))
        e(smf(SP(1), 0, 1, BP)); rdkv(Kp(-1, 0), 0, ("kp", 0)); rdkv(Kp(-1, 1), 1, ("kp", 1))
        e(smf(SC(2), 0, 2, BC)); rdkv(Vp(-1, 0), 2, ("vp", 0)); rdkv(Vp(-1, 1), 3, ("vp", 1))
        e(smf(SC(3), 0, 3, BC)); pack(Vp(0, 0), ar_(4, 0)); pack(Vp(0, 1), ar_(5, 0))
        m0, m1 = merge(0), merge(1)
        e("\n".join(m0))
        body.append(("wds", ("kp", 1)))
        e(smf(SP(2), -1, 2, BP0)); e("\n".join(m1[:2]))
        e(smf(SP(3), -1, 3, BP0)); e("\n".join(m1[2:]))
        e("s_add_u32 %s, %s, %d" % (sT0, sOST, LY.OB[ps]))
        e("\n".join(merge(2)[:2]))
        e("v_permlane32_swap_b32 v%d, v%d" % (M[0], M[1]))
        e("\n".join(merge(2)[2:] + merge(3)))
        e("v_max_f32 v%d, v%d, v%d" % (M[0], M[0], M[1]))
        e("v_permlane32_swap_b32 v%d, v%d\nv_max_f32 v%d, v%d, v%d" % (M[2], M[3], M[2], M[2], M[3]))
        e("v_permlane16_swap_b32 v%d, v%d\nv_max_f32 v%d, v%d, v%d\nv_max_f32 v%d, v%d, v%d" % (M[0], M[2], M[1], M[0], M[2], M[2], M[0], M[2]))
        e("v_permlane16_swap_b32 v%d, v%d" % (M[1], M[2]))
        e("v_mul_f32 v%d, v%d, v%d\nv_mul_f32 v%d, v%d, v%d" % (M[0], M[1], CQ + 1, M[1], M[1], CQ + 1))
        e("v_mul_f32 v%d, v%d, v%d\nv_mul_f32 v%d, v%d, v%d" % (M[3], M[2], CQ, M[2], M[2], CQ))
        def shift(u):
            for k in range(2):
                e("v_pk_fma_f32 %s, %s, %s, %s op_sel:[0,%d,%d] op_sel_hi:[1,%d,%d] neg_lo:[0,0,1] neg_hi:[0,0,1]" %
                  (vr(SC(u) + 2 * k, 2), vr(SC(u) + 2 * k, 2), vr(CQ, 2), vr(ACC + 2 * (u // 2), 2), units[u][0], u % 2, units[u][0], u % 2))
        e("v_permlane32_swap_b32 v%d, v%d" % (M[0], M[1])); shift(0)
        e("v_permlane32_swap_b32 v%d, v%d" % (M[2], M[3])); shift(1); shift(2); shift(3)
        PM = lambda u: ACC + 4 + 2 * u
        PS = lambda u: ACC + 12 + 4 * u
        OP = lambda b: ACC + 28 + 4 * b
        pv = lambda u: "v_mfma_f32_16x16x32_bf16 %s, %s, %s, 0" % (vr(SC(u), 4), vr(Vp(units[u][0] - 1, units[u][1]), 4), vr(PS(u), 4))
        for u, (b, h) in enumerate(units):
            for r in range(4):
                e("v_exp_f32 v%d, v%d" % (SC(u) + r, SC(u) + r))
                if r == 1 and u >= 1: e(pv(u - 1))
            if u == 2: body.append(("wds", ("vp", 1)))
            if u >= 2: e("v_rcp_f32 v%d, v%d" % (SP(u - 2), SP(u - 2)))
            pack(PM(u), SC(u))
            for k in range(2):
                e("v_bfi_b32 v%d, v%d, 0, v%d\nv_and_b32 v%d, v%d, v%d" % (PS(u) + k, MC + k, PM(u) + k, PS(u) + 2 + k, MC + k, PM(u) + k))
            e("v_mfma_f32_16x16x16_bf16 %s, %s, %s, 0" % (vr(SP(u), 4), vr(ONES, 2), vr(PM(u), 2)))
        e("v_rcp_f32 v%d, v%d" % (SP(2), SP(2)))
        e(pv(3))
        def fin(u, packed):
            b, h = units[u]
            if packed:
                for k in range(2): e("v_pk_mul_f32 %s, %s, %s op_sel_hi:[1,0]" % (vr(SC(u) + 2 * k, 2), vr(SC(u) + 2 * k, 2), vr(SP(u), 2)))
            else:
                for r in range(4): e("v_mul_f32 v%d, v%d, v%d" % (SC(u) + r, SC(u) + r, SP(u)))
            pack(OP(b) + 2 * h, SC(u))
            if h == 1:
                body.append(("vm", "buffer_store_dwordx4 %s, v%d, %s, %s offen offset:%d%s" % (vr(OP(b), 4), vQ, WS, sT0, b * 256, " sc1" if ps == 0 and "o" not in OPT["t_set"] else ""), "o" if b == 0 else None))
        fin(0, False); fin(1, True)
        e("v_rcp_f32 v%d, v%d" % (SP(3), SP(3)))
        fin(2, True); fin(3, True)
        left = self.weave(body[:nbar], left, 0, OPT["a_every"])
        stop = len(body) - OPT["a_quiet"]
        left = self.weave(body[nbar:stop], left + self.wgs("att", ps) + self.wds("att", ps), 4, OPT["a_every"])
        a.run_all(body[stop:])
        print("  attention: %d groups left for the hand-off" % len(left))
        self.stamp()
        self.wo_pre(0, OPT["w_pre"])
        self.signal(6 * ps + 1, "o")
        a.run_all(self.flat(left + self.wgs("h1", ps) + self.wds("h1", ps)))
        self.stamp()

    def page_break(self, bit):
        if OPT["pb"] & bit:
            l = self.a.label("page")
            self.a.I("s_branch %s\n.p2align 12\n%s:" % (l, l))

    def early_barrier(self):
        a = self.a
        n = [k for k, t in enumerate(l for l in reversed(a.lines) if l.startswith(("buffer_load", "buffer_store", "global_load"))) if t.endswith(" lds")][0]
        a.vm_wait_n(a.vm_n - n)
        a.ds_drain()
        a.I("s_barrier")

    def wds(self, where, ps):
        if ps: return []
        if self.wd is None:
            ks = [4 * s + cb for s in DN_ORD for cb in range(4)]
            self.wd = self.reg_loads([ar(4 * k, 4) for k in ks], [sWD] * 56, [k * 1024 for k in ks], sTD, vL16, "wd")
        n = OPT.get("wd_" + where, 56)
        out, self.wd = self.wd[:n], self.wd[n:]
        return out

    WREG = [X + 4 * k for k in range(16)] + [ACC + 16 + 4 * k for k in range(12)] + [F + 4 * k for k in range(8)]
    def wo_read(self, k):
        return ("ds", "ds_read_b128 %s, %s" % (vr(self.WREG[k % 36], 4), ldsaddr(WO_SLOT[k // 16] * 16384 + (k % 16) * 1024)), ("w", k))
    def wo_pre(self, k0, k1):
        for k in range(k0, k1): self.a.run(self.wo_read(k))

    def pair_swap(self, dst, src):
        a = self.a
        dpp = "quad_perm:[1,0,3,2] row_mask:0xf bank_mask:0xf"
        a.I("s_mov_b32 vcc_lo, 0x55555555\ns_mov_b32 vcc_hi, 0x55555555")
        for d in range(4): a.I("v_cndmask_b32_dpp v%d, v%d, v%d, vcc %s" % (dst + d, src + 4 + d, src + d, dpp))
        a.I("s_not_b64 vcc, vcc")
        for d in range(4): a.I("v_cndmask_b32_dpp v%d, v%d, v%d, vcc %s" % (dst + 4 + d, src + d, src + 4 + d, dpp))

    def finish(self, A, xo, h, pf, n, halo_pass):
        a = self.a
        for k in range(8): a.I("v_cvt_pk_bf16_f32 v%d, v%d, v%d" % (XRES + k, A + 2 * k, A + 2 * k + 1))
        if xo == 4:
            a.I(self.getc(16, aROW))
            self.pair_swap(F, XRES)
            for e_ in range(2): a.vm("buffer_store_dwordx4 %s, v16, %s, 0 offen offset:%d %s" % (vr(F + 4 * e_, 4), OUT, e_ * 2048, OPT["outf"].strip("-")))
            self.stamp()
            return
        self.publish(xo)
        self.stamp()
        a.run_all(self.flat(pf[:n]))
        self.signal(h, "pub", halo_pass, OPT["h_def"] & 2)
        a.run_all(self.flat(pf[n:]))
        self.stamp()

    def wo(self, ps):
        a = self.a
        def setup():
            for k in range(8):
                a.I("v_lshlrev_b32 v%d, 16, v%d\nv_and_b32 v%d, 0xffff0000, v%d" % (ACC + 2 * k, XRES + k, ACC + 2 * k + 1, XRES + k))
            if OPT["eb"] & 4: self.early_barrier()
        keep = dict(a.ds_tag)
        if OPT["stamps"] and ps == 0:
            a.I("s_memtime s[%d:%d]" % (sST, sST + 1)); a.ds_drain(force=True); a.I("v_writelane_b32 v%d, s%d, 60" % (vSTAMP, sST))
        self.poll(6 * ps + 1, sMC, None, setup)
        a.ds_tag.update((t, n) for t, n in keep.items() if t[0] == "w")
        self.stamp()
        areg = lambda s: vr(X + 64 + 4 * s, 4)
        ld = self.reg_loads([areg(s) for s in range(16)], [sOL] * 16, [LY.OB[ps] + s * 2048 for s in range(16)], sTA, vQ, "act")
        UP = OPT["w_up"]
        g_fb = []
        if ps == 0 and OPT["fb_at"] == "wo":
            l_fb, g_fb = self.late_check("buffer_load_dword v17, v16, %s, 0 offen sc1" % WS, 17, "exec", "fb")
            ld[OPT["fb_k"]] = ld[OPT["fb_k"]] + [("i", self.getc(16, aFB))] + l_fb
        rest = [self.wo_read(k) for k in range(OPT["w_pre"], 32)]
        for n_, g in enumerate(ld[:UP]):
            a.run_all(g)
            if n_ >= 3: a.run_all(rest[:3]); rest = rest[3:]
        a.run_all(rest)
        if not OPT["eb"] & 4: a.I("s_barrier")
        self.wo_pre(32, 36)
        sl = Slots()
        for k in range(64):
            s, cb = divmod(k, 4)
            d = vr(ACC + 4 * cb, 4)
            sl.add("v_mfma_f32_16x16x32_bf16 %s, %s, %s, %s" % (d, vr(self.WREG[k % 36], 4), areg(s), d),
                   [("wds", ("w", k))] + ([("wvm", ("act", s))] if cb == 0 else []))
            if cb == 0 and s + UP < 16: sl.put("m", k, ld[s + UP])
            if k + 36 < 64: sl.put("r", k, [self.wo_read(k + 36)])
        pf = self.wgs("wo", ps) + self.wds("wo", ps)
        p0 = 64 - 4 * UP + 2
        if g_fb:
            p0 = max(p0, OPT["fb_s"])
            sl.put("m", p0 - 3, g_fb + [("i", "s_barrier")])
        pf = sl.pace(pf, p0, 4.4, 64 - OPT["w_quiet"])
        self.lite(sl, "wo", [8 * k for k in range(8)])
        self.report("wo%d" % ps, sl.emit(a))
        self.stamp()
        self.finish(ACC, 2 * ps + 1, 6 * ps + 2, pf + self.wgs("h2", ps) + self.wds("h2", ps), 0, None)

    def dn_plan(self, ps):
        no = OPT["d_own"]
        order = [(i, s) for lv in DN_S for i in range(3) for s in lv]
        order[3 * N1:3 * N1] = [(3, s) for s in DN_ORD[:no]]
        order += [(3, s) for s in sorted(DN_ORD[no:])]
        areg = lambda k: vr(X + 48 + 4 * (k % 16), 4)
        ld = self.reg_loads([areg(k) for k in range(56)], [sHLD[i] for i, s in order], [LY.HB[ps] + s * 2048 for i, s in order], sTA, vQ, "act")
        return order, areg, ld

    def dn(self, ps, issued, wd):
        a = self.a
        order, areg, ld = self.dn_plan(ps)
        XW, XR, R, P, U = 16, 19, 20, (ACC, ACC + 16, ACC + 32), ACC + 48
        io = L_SCR_DN - 65536
        UP = OPT["k_up"]
        widx = {s: n_ for n_, s in enumerate(DN_ORD)}
        wd_e = [g for g in wd if g[-1][2][1] < 4 * N1]
        wd_l = [g for g in wd if g[-1][2][1] >= 4 * N1]
        a.run_all(self.flat(ld[issued:UP] + wd_e))
        if ps == 0:
            a.ds_drain()
            a.I("s_barrier")
        sl = Slots()
        accr = lambda i, cb: (X, X + 16, X + 32, X + 112)[i] + 4 * cb
        seen, endb = set(), {}
        for k, (i, s) in enumerate(order):
            for cb in range(4):
                d = vr(accr(i, cb), 4)
                pre = [("wvm", ("act", k))] if cb == 0 else []
                tag = ("wd", 4 * widx[s] + cb)
                if i == 0 and (tag in a.vm_tag or any(g[-1][2] == tag for g in wd_l)): pre.append(("wvm", tag))
                endb[i] = sl.add("v_mfma_f32_16x16x32_bf16 %s, %s, %s, %s" % (d, ar(16 * s + 4 * cb, 4), areg(k), d if (i, cb) in seen else "0"), pre)
                seen.add((i, cb))
        K1, K2 = 3 * N1 + OPT["d_own"], 3 * N2 + OPT["d_own"]
        chk = {K1: self.chk2, K2: self.check_ops(6 * ps + 5, sMB, PA, "hf3")}
        if self.pending: sl.put("f", OPT["d_mid%d" % ps], self.pending)
        sl.put("f", OPT["d_sig%d" % ps], self.signal_ops(6 * ps + 5, "h6", PB))
        extra = list(wd_l)
        k0 = max(UP, issued)
        assert k0 <= K1
        for k in range(k0, 56):
            p = max(4 * (k - min(OPT["d_up2"], k0 + max(0, k - OPT["d_ramp"]) // 3)), int(OPT["d_min"] / 10 * (k - k0)))
            for kc_ in chk:
                if k == max(k0, kc_ - OPT["d_chk" if kc_ == K1 else "d_chk3"]): sl.put("m", max(p, OPT["d_f%d" % ps] if kc_ == K2 else 0), chk[kc_][0])
            if k in chk:
                due = [g for g in extra if g[-1][2][1] < (4 * N2 if k == K1 else 56)]
                sl.put("m", p, self.flat(due)); extra = extra[len(due):]
                sl.put("m", max(p, OPT["d_f%d" % ps] + OPT["d_flat"] if k == K2 and OPT["d_f%d" % ps] else 0), chk[k][1])
            sl.put("m", p, ld[k])
            sl.put("m", p, self.flat(extra[:1])); extra = extra[1:]
        su = [[("i", "v_add_u32 v%d, %s, v%d" % (XW + i, sXW[i], vL16b))] for i in range(3)] + [[("i", "v_add_u32 v%d, %s, v%d" % (XR, sXR, vL16b))]]
        su += [[("i", "s_lshl_b32 %s, %s, 2\ns_add_u32 %s, %s, %s\ns_lshl_b32 %s, %s, 6\ns_add_u32 %s, %s, %d\nv_and_or_b32 v%d, v%d, 63, %s" %
                 (sT0, sR, sT0, sT0, sW, sT0, sT0, sT0, sT0, L_RS, R, vFL, sT0)), ("ds", "ds_read_b32 v%d, v%d" % (R, R))]]
        for k in range(8):
            su += [[("i", "v_lshlrev_b32 v%d, 16, v%d" % (U + 2 * k, XRES + k))], [("i", "v_and_b32 v%d, 0xffff0000, v%d" % (U + 2 * k + 1, XRES + k))]]
        if OPT["g_c2"]: su.insert(3, [("need", "c2")])
        sl.spread(su, 30, 80)
        if ps == 0 and OPT["spf"]:
            sl.put("s", 0, [("i", "s_lshl_b32 s6, %s, 5\ns_add_u32 s6, s6, %d" % (sCPO, LY.WO))])
            for k in range(OPT["spf"]):
                sl.put("s", 2 + int(k * OPT["spf_e"] / 10), [("i", ("s_waitcnt lgkmcnt(10)\n" if k % 4 == 0 else "") + "s_buffer_load_dword s7, %s, s6 offset:%d" % (WS, 64 * k))])
        if ps == 0 and OPT["cpf"] & 4: sl.put("g", OPT["cp_d"], self.flat(self.code_touch("L_qkv1", 24)))
        writes = lambda i: [[("ds", "ds_write_b128 v%d, %s offset:%d" % (XW + i, vr(accr(i, cb), 4), io + cb * 1024))] for cb in range(4)]
        if OPT["d_w64"]:
            writes = lambda i: [[("ds", "ds_write_b64 v%d, %s offset:%d" % (XW + i, vr(accr(i, cb) + 2 * e_, 2), io + cb * 1024 + 8 * e_))] for cb in range(4) for e_ in range(2)]
        reads = lambda i: [[("ds", "ds_read_b128 %s, v%d offset:%d" % (vr(P[i] + 4 * cb, 4), XR, io + i * 4096 + cb * 1024), ("r", i, cb))] for cb in range(4)]
        add = lambda d, s_: [[("i", "v_add_f32 v%d, v%d, v%d" % (d + e_, d + e_, s_ + e_))] for e_ in range(16)]
        wb = []
        if ps and OPT["wb"]:
            go, back = a.label("wb"), a.label("wbback")
            self.cold.append("%s:\nbuffer_wbl2 sc1\ns_branch %s" % (go, back))
            wb = [[("i", "s_and_b32 %s, %s, %d\ns_or_b32 %s, %s, %s" % (sT1, sJ, 16 // OPT["wb"] - 1, sT1, sT1, sW)),
                   ("vm", "buffer_load_dword a255, off, %s, %s nt" % (WS, sFLG)), ("atom", "s_cmp_eq_u32 %s, 0\ns_cbranch_scc1 %s\n%s:" % (sT1, go, back))]]
        bar = [[("dsdrain",), ("i", "s_barrier")]]
        fma = lambda p_: [[("i", "v_fma_f32 v%d, v%d, v%d, v%d" % (U + e_, p_ + e_, R, U + e_))] for e_ in range(16)]
        if OPT["d_own"]:
            for i in range(2): sl.spread(writes(i), endb[i] + 2, endb[i] + 15)
            r01, w2 = reads(0) + reads(1), writes(2)
            mix = [x for n_ in range(4) for x in (r01[2 * n_], r01[2 * n_ + 1], w2[n_])]
            sl.spread(bar + mix, endb[2] + 1, endb[2] + 15)
            sl.spread([[("wds", ("r", 0, 3))]] + fma(P[0])[:8] + bar + wb + reads(2) + fma(P[0])[8:] + fma(P[1]), endb[2] + 16, endb[3] - 1)
        else:
            for i in range(3): sl.spread(writes(i), endb[i] + 2, endb[i] + 17)
            seq = bar + wb + reads(0) + reads(1) + reads(2) + [[("wds", ("r", 1, 3))]] + add(P[0], P[1]) + [[("wds", ("r", 2, 3))]] + add(P[0], P[2]) + fma(P[0])
            sl.spread(seq, endb[2] + 20, endb[3] - 2)
        pf = [] if ps else [g for i in range(7) if i not in self.wq_late(1) + self.kept() for g in self.wq_chunk(i)]
        pf = sl.pace(pf, 224 - 4 * OPT["d_up2"] + 2, 4.4)
        self.lite(sl, "dn", [28 * k for k in range(8)])
        self.report("dn%d" % ps, sl.emit(a))
        self.stamp()
        A = accr(3, 0)
        if OPT["d_own"]:
            a.ds_wait(("r", 2, 3))
            for k in range(8): a.I("v_pk_fma_f32 %s, %s, %s, %s op_sel_hi:[1,0,1]" % (vr(U + 2 * k, 2), vr(P[2] + 2 * k, 2), vr(R, 2), vr(U + 2 * k, 2)))
        for k in range(8): a.I("v_pk_fma_f32 %s, %s, %s, %s op_sel_hi:[1,0,1]" % (vr(A + 2 * k, 2), vr(A + 2 * k, 2), vr(R, 2), vr(U + 2 * k, 2)))
        self.finish(A, 2 * ps + 2, 6, pf, OPT["dn_pre"], None if OPT["h_late"] else 1)

    def gu(self, ps):
        a = self.a
        xi = 2 * ps + 1
        def setup():
            self.early_barrier()
            for k in range(OPT["g_la"]): a.ds("ds_read_b128 %s, %s" % (vr(F + 4 * k, 4), ldsaddr(self.wg_slot(0, ps) * 16384 + k * 1024)), ("f", k))
        EB = OPT["eb"] & 1
        self.poll(6 * ps + 2, sMA, None, setup if EB else None)
        self.stamp()
        S0, TL, NR, XR_ = GS0, 16 - GS0, 8, 10
        SS, NM, HPK, CSA = 16, 24, 28, 21
        A0 = X + 80
        xreg = lambda s, b: X + 8 * (s % XR_) + 4 * b
        acc = lambda bl, m, b: A0 + 16 * bl + 8 * b + 4 * m
        xl = self.reg_loads([vr(xreg(s, b), 4) for s in range(16) for b in range(2)], [sXLD] * 32,
                            [LY.XB[xi] + s * 2048 + b * 256 for s in range(16) for b in range(2)], sTA, vQ, "x")
        UP = OPT["g_up"]
        a.run_all(self.flat(xl[:UP]))
        if not EB: a.I("s_barrier")
        a.I("s_add_u32 %s, %s, %d" % (sT0, sSLD, LY.SB[xi]))
        g_st = [[("vm", "buffer_load_dwordx4 %s, v%d, %s, %s offen sc1" % (vr(SS, 4), vL16, WS, sT0))],
                [("vm", "buffer_load_dwordx4 %s, v%d, %s, %s offen offset:1024 sc1" % (vr(SS + 4, 4), vL16, WS, sT0), "st")]]
        early = self.wg_early(ps)
        NS = len(self.ring(ps))
        assert 0 in early and len(set(early)) == len(early) and all(c < NS and self.wg_slot(c, ps) not in WO_SLOT for c in early)
        assert all(self.wg_slot(c, ps) != 7 for c in self.digits("wg_att%d" % ps) + self.digits("wg_h1%d" % ps)) and not set(self.kept()) - {2, 3, 4, 5}
        frags = [(s, bl, m) for s in range(S0) for bl in range(7) for m in range(2)]
        for bl in range(7): frags += [(s, bl, m) for s in range(S0, 16) for m in range(2)] + [(16, bl, 0)]
        sl = Slots()
        sl.mpatience, sl.patience = OPT["g_mp%d" % ps], OPT["g_vp"]
        first, last, end, xfirst, xlast = {}, {}, {}, {}, {}
        for k, (s, bl, m) in enumerate(frags):
            w = F + 4 * (k % NR)
            for mm, b in ([(m, m & OPT["snake"]), (m, 1 - (m & OPT["snake"]))] if s < 16 else [(0, 0), (0, 1), (1, 0), (1, 1)]):
                G_ = OPT["g_grp"]
                pre = [] if k in first else [("wds", ("f", min(k // G_ * G_ + G_ - 1, len(frags) - 1)))]
                d = vr(acc(bl, mm, b), 4)
                if s < 16:
                    if (s, b) not in xfirst: pre.append(("wvm", ("x", 2 * s + (b if s == 0 else 1))))
                    n_ = sl.add("v_mfma_f32_16x16x32_bf16 %s, %s, %s, %s" % (d, vr(w, 4), vr(xreg(s, b), 4), "0" if s == 0 else d), pre)
                    xfirst.setdefault((s, b), n_); xlast[(s, b)] = n_
                else:
                    n_ = sl.add("v_mfma_f32_16x16x16_bf16 %s, %s, %s, %s" % (d, vr(w + 2 * mm, 2), vr(NM + 2 * b, 2), d), pre)
                first.setdefault(k, n_); last[k] = n_
            end[bl] = n_
        LA = OPT["g_la"]
        def rd(k):
            off = self.wg_slot(k // 16, ps) * 16384 + (k % 16) * 1024
            d = F + 4 * (k % NR)
            if frags[k][0] < 16:
                return [("ds", "ds_read_b128 %s, %s" % (vr(d, 4), ldsaddr(off)), ("f", k))]
            return [("ds", "ds_read2st64_b32 %s, v%d offset0:%d offset1:%d" % (vr(d + 2 * m, 2), CSA + (off >> 16), (off & 0xffff) // 256 + 2 * m, (off & 0xffff) // 256 + 2 * m + 1),
                     ("f", k) if m else None) for m in range(2)]
        for k in range(0 if EB else LA): a.run_all(rd(k))
        barpos, real = {}, []
        retire = lambda c: min(p for p in real if p > last[16 * c + 15])
        for k in range(LA, len(frags)):
            if k % 16 == 0:
                ch = k // 16
                pair = ps == 1 and OPT["g_bar1"] == 2 and ch >= OPT["g_pair0"]
                if pair and (ch - OPT["g_pair0"]) % 2:
                    barpos[ch] = barpos[ch - 1]
                elif ch not in early:
                    p = barpos[ch] = last[k - LA] - 1
                    real.append(p)
                    need = ch + 1 if pair and ch < 14 else ch
                    if need not in early: sl.pre[p + 1].append(("wvm", ("wg", need)))
                    sl.after(p, *(([("wvm", ("wg", need))] if need not in early else []) + [("i", "s_barrier")]))
            sl.after(last[k - LA], *rd(k))
        wl = [(retire(ch - NS) + 2 if ch >= NS else 0, g) for ch in range(15) if ch not in early for g in self.wg_chunk(ch, ps)]
        wdue = [barpos[ch] - 8 * (len(self.wg_chunk(ch, ps)) - 1 - n_) for ch in range(15) if ch not in early for n_ in range(len(self.wg_chunk(ch, ps)))]
        wd = self.wds("rest", ps)
        tail0 = xfirst[(S0, 0)]
        xs = []
        for n_ in range(UP, 32):
            s, b = divmod(n_, 2)
            due = min(xfirst[(s, b)], tail0 - (31 - n_) * OPT["g_xsp"])
            xs.append((due, xlast[(s - XR_, b)] + 1 if s >= XR_ else 0, xl[n_]))
        n_ = OPT["g_stat"]
        xs[n_:n_] = [(xs[n_][0], 0, g) for g in g_st]
        P = lambda key: OPT["g_%s%d" % (key, ps)] / 10
        pos, fab, ix, iw, idd, seq = 0.0, 0.0, 0, 0, 0, []
        stop = end[6] - OPT["g_tail"]
        while ix < len(xs) or iw < len(wl) or (idd < len(wd) and pos <= stop):
            xok = ix < len(xs) and xs[ix][1] <= pos
            xu = xok and xs[ix][0] - pos <= P("xlead")
            wok = iw < len(wl) and wl[iw][0] <= pos
            wu = wok and wdue[iw] - pos <= P("wmin")
            free = fab <= pos + P("slack")
            if xu and (not wu or xs[ix][0] <= wdue[iw] - P("wmin") + P("xlead")): pick = "x"
            elif wu: pick = "w"
            elif free and wok and wdue[iw] - pos <= P("wmax"): pick = "w"
            elif free and idd < len(wd) and pos <= stop: pick = "d"
            elif xok and xs[ix][0] - pos <= P("xmax"): pick = "x"
            else:
                pos = int(pos) + 1; continue
            if pick == "x": g = xs[ix][2]; ix += 1
            elif pick == "w": g = wl[iw][1]; iw += 1; fab = max(fab, pos) + P("wcost")
            else: g = wd[idd]; idd += 1; fab = max(fab, pos) + P("dcost")
            behind = (ix < len(xs) and xs[ix][0] - pos < 0.7 * P("xlead")) or (iw < len(wl) and wdue[iw] - pos < 0.7 * P("wmin"))
            seq.append((pos, g)); pos += 2.0 if behind else P("every")
            if g is g_st[1]: stpos = pos
        assert not sl.pace(seq, 0, 0)
        left = wd[idd:]
        st = [[("wvm", "st")]]
        for r_ in (SS, SS + 4):
            for o in (0, 1): st.append([("i", "v_add_f32 v%d, v%d, v%d" % (r_ + o, r_ + o, r_ + 2 + o))])
        for o in (0, 1): st.append([("i", "v_permlane32_swap_b32 v%d, v%d" % (SS + o, SS + 4 + o))])
        for o in (0, 1): st.append([("i", "v_add_f32 v%d, v%d, v%d" % (SS + o, SS + o, SS + 4 + o))])
        for o in (0, 1): st.append([("i", "v_mov_b32 v%d, v%d" % (SS + 2 + o, SS + o))])
        for k in range(3): st.append([("i", "v_add_u32 v%d, %d, v%d" % (CSA + k, k << 16, vFL))])
        for o in (0, 1): st.append([("i", "v_permlane16_swap_b32 v%d, v%d" % (SS + o, SS + 2 + o))])
        for o in (0, 1): st.append([("i", "v_add_f32 v%d, v%d, v%d" % (SS + o, SS + o, SS + 2 + o))])
        st += [[op] for op in self.ln_from_sums(SS, SS + 1, SS + 2)]
        st += [[("i", "v_cvt_pk_bf16_f32 v%d, -v%d, -v%d" % (NM + k, SS, SS))] for k in range(4)]
        st += [[("i", "v_mul_f32 v%d, v%d, v%d" % (SS + 1, SS + 1, SS + 1))],
               [("i", "s_lshr_b32 %s, %s, 3\ns_add_u32 %s, %s, %d" % (sT0, sLW, sT0, sT0, L_RS))],
               [("i", "v_and_or_b32 v%d, v%d, 63, %s" % (SS, vFL, sT0))], [("i", "v_and_b32 v%d, 32, v0" % (SS + 2))],
               [("i", "v_lshl_add_u32 v%d, v%d, 1, v%d" % (SS, SS + 2, SS))]]
        st += [[("i", "v_permlane32_swap_b32 v%d, v%d" % (NM + k, NM + 2 + k))] for k in range(2)] + [[("mark", "nm")]]
        sl.after(tail0 - 2 * LA, ("need", "nm"))
        sl.spread(st, int(stpos) + 40, tail0 - 2 * LA - 10)
        held = []
        def epi(bl, packed=False):
            g = []
            H = acc(bl, 1, 0)
            for b in range(2):
                ga = acc(bl, 0, b)
                g += [[("i", "v_max_f32 v%d, 0, v%d" % (ga + r, ga + r))] for r in range(4)]
                if packed: g += [[("i", "v_pk_mul_f32 %s, %s, %s" % (vr(ga + r, 2), vr(ga + r, 2), vr(ga + 4 + r, 2)))] for r in (0, 2)]
                else: g += [[("i", "v_mul_f32 v%d, v%d, v%d" % (ga + r, ga + r, ga + 4 + r))] for r in range(4)]
                g += [[("i", "v_cvt_pk_bf16_f32 v%d, v%d, v%d" % (H + 2 * b + k, ga + 2 * k, ga + 2 * k + 1))] for k in range(2)]
            out = [[("i", "s_add_u32 %s, %s, %s" % ((sTS, sTS, sHSTEP) if bl else (sTS, sHST, LY.HB[ps])))],
                   [("vm", "buffer_store_dwordx4 %s, v%d, %s, %s offen%s" % (vr(H, 4), vL16, WS, sTS, {"s": " sc1", "n": " nt", "p": "", "c": " sc0", "b": " sc0 sc1", "m": " sc1 nt"}[OPT["h_st%d" % ps][bl]]), "h%d" % bl)]]
            if bl in self.digits("h_rb%d" % ps):
                out.append([("vm", "buffer_load_dword a255, v%d, %s, %s offen sc1" % (vL16, WS, sTS))])
            sw = [[("i", "v_permlane16_swap_b32 v%d, v%d" % (H + k, H + 2 + k))] for k in range(2)]
            if bl in self.digits("h_hold%d" % ps):
                held.extend(out)
                return g + sw
            g += held + out[:1] + sw + out[1:]
            del held[:]
            return g
        for bl in range(6): sl.spread(epi(bl), end[bl] + 1, end[bl + 1] - OPT["g_epi"])
        l_e, g_e = self.check_ops(6 * ps + 3, sMB, SS + 3, "he")
        sl.put("f", end[3 - LV] + OPT["g_sig%d" % ps], self.signal_ops(6 * ps + 3, "h%d" % (2 - LV), SS + 4))
        self.pending = self.signal_ops(6 * ps + 4, "h%d" % (4 - LV), SS + 4)
        if OPT["d_mid%d" % ps] < 0:
            sl.put("f", end[5 - LV] + OPT["g_sig%d" % ps], self.pending); self.pending = None
        self.chk2 = self.check_ops(6 * ps + 4, sMB, SS + 3 if OPT["g_c2"] else PA, "hf2")
        nh = OPT["g_h%d" % ps]
        assert S0 >= 10 and nh <= 12
        p = end[6] - OPT["g_chk%d" % ps]
        sl.put("h", p - OPT["g_lat%d" % ps], l_e)
        if nh:
            sl.put("h", p, g_e); g_e = []
            hl = self.dn_plan(ps)[2][:nh]
            if OPT["g_c2"]:
                hl.insert(nh + 1 - OPT["g_c2"], self.chk2[0]); self.chk2 = ([], self.chk2[1] + [("mark", "c2")])
            assert not sl.pace(hl, p + 1, min(4.4, (end[6] - p - 2) / len(hl)), name="h")
        if OPT["cpf"] & 2: sl.put("g", OPT["cp_g"], self.flat(self.code_touch("L_gu%d" % ps, HPK)))
        sl.put("g", tail0 + OPT["cp_t"], self.flat(self.code_touch("L_dn%d" % ps, SS + 3)))
        sl.put("c", max(tail0, retire(max(c for c in range(14) if self.wg_slot(c, ps) == 6)) + 1), [("ds", "ds_write_b32 v%d, v%d" % (SS, SS + 1))])
        if ps == 0:
            sl.put("c", end[6] - 8, [("i", "s_or_b32 %s, s2, %s" % (sT0, sW)), ("atom", "s_cmp_eq_u32 %s, 0\ns_cselect_b32 %s, %d, 0x%x" % (sT0, sT0, LY.EPOCH, OOB)),
                                     ("i", "v_mov_b32 v%d, %s" % (SS + 2, sNONCE)),
                                     ("vm", "buffer_store_dword v%d, v%d, %s, %s offen" % (SS + 2, vF1, WS, sT0))])
        self.lite(sl, "g", [56 * k for k in range(8)])
        self.report("gu%d" % ps, sl.emit(a))
        a.run_all(self.flat(epi(6, True)))

        self.stamp()
        a.run_all(g_e)
        self.stamp()
        print("  gu: %d loads left for the hand-off" % len(left))
        return nh, left

    def build(self):
        a = self.a
        (self.startup2 if OPT["lead"] else self.startup)()
        for ps in range(2):
            if ps: self.page_break(4)
            a.I("L_qkv%d:" % ps); self.qkv(ps)
            a.I("L_wo%d:" % ps); self.wo(ps)
            self.page_break(8 if ps else 2)
            a.I("L_gu%d:" % ps); left = self.gu(ps)
            a.I("L_dn%d:" % ps); self.dn(ps, *left)
        if OPT["stamps"]:
            a.I("s_waitcnt vmcnt(0)\ns_memrealtime s[6:7]\ns_memtime s[80:81]\ns_waitcnt lgkmcnt(0)\nv_writelane_b32 v%d, s6, 63\nv_writelane_b32 v%d, s80, 61" % (vSTAMP, vSTAMP))
            a.I("s_lshl_b32 %s, s2, 10\ns_lshl_b32 %s, %s, 8\ns_add_u32 %s, %s, %s\ns_add_u32 %s, %s, %d" % (sT0, sT1, sW, sT0, sT0, sT1, sT0, sT0, LY.STAMP))
            a.I("buffer_store_dword v%d, v%d, %s, %s offen" % (vSTAMP, vFL, WS, sT0))
        if OPT["diagpad"]:
            a.I("s_mov_b32 s82, %d" % OPT["diagpad"])
            if OPT["diagat"]:
                a.I("s_sub_u32 s83, s%d, s14\ns_lshl_b32 s83, s83, 2" % sST)
                if OPT["diagwg"] >= 0: a.I("s_cmp_eq_u32 s2, %d\ns_cselect_b32 s83, s83, 0" % OPT["diagwg"])
                a.I("s_add_u32 s82, s82, s83")
            a.I("L_pad:\ns_memrealtime s[80:81]\ns_waitcnt lgkmcnt(0)\ns_sub_u32 s80, s80, s14\ns_cmp_lt_u32 s80, s82\ns_cbranch_scc1 L_pad")
        a.I("L_main_done:\ns_endpgm")
        for c in self.cold: a.I(c)
        a.I("L_code_end:")
        return a.lines

def main():
    ml, n2 = hazard_pass(Main().build())
    for half in range(2):
        alt = role_path(ml, half)
        bad = check_async(alt)
        assert not bad and hazard_pass(alt)[1] == 0, bad[:3]
    k = NAME + "_kernel"
    out = ["; Generated by gen/gen.py. " + " ".join(sys.argv[2:]),
           "; One persistent kernel, one workgroup per CU. Kernarg: x, wqkv, wo, (unused), w_gate, w_up, w_down, out, debug, ws.",
           "; Rows of one parity form an independent sequence; 16 workgroups share a block of 128 such rows through all four layers:",
           ";   start-up : weights re-laid out once in MFMA fragment order (plus column sums for the LayerNorm mean) in the workspace",
           ";   qkv      : 128 rows x 2 heads, LayerNorm folded in, windowed attention in registers",
           ";   wo / dn  : 64 x 64 output tiles plus residual, partial LayerNorm sums published with the tile",
           ";   gu       : 128 rows x 112 hidden columns, ReGLU in the epilogue",
           "; Hand-offs use flags tagged with a per-launch value derived from a workspace word. A group whose members are on one die",
           "; (checked at run time) hands over through that die's L2; any other group uses release / acquire at device scope.",
           "; @launch grid=(256,1,1) block=(256,1,1) lds=163840",
           '.amdgcn_target "amdgcn-amd-amdhsa--gfx950"', ".text",
           ".globl %s" % k, ".p2align %d" % OPT["align"], ".p2align 8", ".type %s,@function" % k]
    out += [l if l.endswith(":") else "    " + l for l in ml]
    out += ['.section .rodata,"a"', ".p2align 6", """.amdhsa_kernel %s
  .amdhsa_next_free_vgpr 512
  .amdhsa_next_free_sgpr 102
  .amdhsa_accum_offset 256
  .amdhsa_group_segment_fixed_size 0
  .amdhsa_kernarg_size 80
  .amdhsa_user_sgpr_count 2
  .amdhsa_user_sgpr_kernarg_segment_ptr 1
  .amdhsa_system_sgpr_workgroup_id_x 1
  .amdhsa_float_denorm_mode_32 3
.end_amdhsa_kernel""" % k]
    if OPT["rt"]: out = [l.replace("s_memtime", "s_memrealtime") for l in out]
    open(sys.argv[1], "w").write("\n".join(out) + "\n")
    print("instructions: %d ; wait states added: %d" % (len(ml), n2))

main()
```

```python
import sys
from dsl import Asm, Slots, hazard_pass, check_async, role_path
import layout as LY

NAME = "interleave_layers__sliding_local_dilated__glu_gated_reglu__prompt"
OPT = dict(stamps=0, lite="-", hitw=0,
           q_up=8, q_every=44, q_hf=12, q_chk=6, q_h0=11, a_every=14, k_up=8, g_up=4, g_tail=0, g_la=6, g_xsp0=11, g_xsp1=11, g_stat0=6, g_stat1=6,
           g_every0=36, g_xlead0=400, g_wmin0=600, g_wmax0=1000, g_slack0=40, g_wcost0=60, g_dcost0=30,
           g_xmax0=9000, g_xmax1=800, g_every1=46, g_xlead1=400, g_wmin1=700, g_wmax1=1400, g_slack1=40, g_wcost1=60, g_dcost1=30,
           wq_late1="-", dn_pre=6, q0_up=6, q0_lead=20, q0_every=46,
           wg_att0="0", wg_h10="-", wg_wo0="1", wg_h20="-",
           wg_att1="2", wg_h11="-", wg_wo1="3", wg_h21="-",
           hreg=1, xr_mix=4, g_tev0=0, g_tev1=0, g_t0=40, rawd=0, poll2=0, snake=0, dfirst=0, follow2="-", q0_fd=20, q0_fdl=40, spf=0, spf_e=22, st_at=0, st_hold=0, lf_at=1, pb=15, near=1, align=12, h_late=0, h_rb0="-", h_rb1="-", d_own=0, h_hold0="-", h_hold1="-", eb=1, h_def=0, q0_fbl=3, wd_e=0, t_step=5, wg_q0="-", wg_q1="01", keep="2345", keepo="-", skipo=0, q_wbar=12, w_pre=20, w_up=8, w_quiet=12, d_sig0=16, d_sig1=16, d_up2=8, d_ramp=8, d_mid0=-1, d_mid1=-1, d_chk=7, d_chk3=7, d_f0=0, d_f1=0, d_min=0, g_c2=0, d_flat=20, g_epi=6, g_sig0=27, g_sig1=16, g_chk0=20, g_chk1=26, g_lat0=12, g_lat1=12, g_h0=4, g_h1=6,
           touch=0, h_st0="sssssss", h_st1="sspssss", x0f="sc1", wb=0, otouch=1, diagpad=0, diagat=0, diagwg=100, b_pos=1, q0_split=0, q0_n1=6, q0_hf=6, order="aoc", rt=0, lead=1, follow="guxcd", fa_ld=4, x_pre=3, sib=0, fa_ck=0, q0_x=4, rot=0, xdir=1, xd0=2, xd1=8, xd_lag=14, xd_pre=0, xd_per=7, t_set="ox", t_pos=16, fb_at="att", fb_k=7, fb_s=36, inb=0, inb_at=0, inb_ch=1, inb_gap=6, inb_wait=0, xd_gap=6, xd_h1=0, xd_h2=6, xd_h0=8, xd_st=8, xd_wbar=10, q_mp0=999, q_mp1=2, q_vp=10, g_mp0=2, g_mp1=999, g_vp=10, d_w64=0, q_st=0, g_grp=2, q_grp=3, g_bar1=2, g_pair0=13, outf="nt", c_early=0, b_spread=0, b_first=0, b_gap=3, pollf="nt", actf="sc1", wf="sc1", cpf=7, cp_g=60, cp_t=0, cp_d=150, cp_q=6, predrain=0, q0_b=0, q0_fbch=3, q0_fbs=9, q0_w=8, q0_tail=36, a_quiet=30, wd_q=10, wd_att=0, wd_h1=0, wd_wo=0, wd_h2=0)
for arg in sys.argv[2:]:
    k, v = arg.split("=")
    OPT[k] = v if isinstance(OPT[k], str) else int(v)

def vr(b, n): return "v[%d:%d]" % (b, b + n - 1)
def ar(b, n): return "a[%d:%d]" % (b, b + n - 1)
def magic(d): return (1 << 32) // d + 1
OOB = 0x40000000
GS0 = LY.GS0

WS, XIN, OUT = "s[8:11]", "s[12:15]", "s[16:19]"
sW, sJ, sR, sC, sG, sN, sNONCE, sSLOW = ("s%d" % i for i in range(20, 28))
sGB, sXLD, sXST, sOST, sXR, sHST, sSLD, sWQ, sWG, sWO, sWD, sLW = ("s%d" % i for i in range(28, 40))
sMA, sMB = "s[40:41]", "s[42:43]"
sFLG, sFLW, sHALO, sHFL, sTAB, sSST, sONE, sHDST, sHDFL, sP = ("s%d" % i for i in range(44, 54))
sMH = "s[54:55]"
sTA, sTW, sTD, sTS, sT0, sT1, sT2, sSPIN = ("s%d" % i for i in range(56, 64))
sHLD = ["s%d" % i for i in range(68, 72)]
sXW = ["s%d" % i for i in range(72, 75)]
sFBO, sB0, sB1, sB2, sB3 = "s75", "s76", "s77", "s78", "s79"
SRC_A, SRC_G, SRC_U, SRC_D = 80, 84, 88, 92
sLW2, sLW4, sWQ4, sWG4 = "s96", "s97", "s98", "s99"
sST = 100
LITE = (84, 86, 88, 90, 92, 94, 76, 78)
sHALO2 = sP
sNH, sCPO, sPC, sSLOW2 = "s12", "s13", "s[4:5]", "s[0:1]"
sOL, sHSTEP, sMC = "s64", "s65", "s[66:67]"
vL, vL16, vL16b, vL16c, vQ, vF1, vFL, vSTAMP = 0, 1, 2, 3, 4, 5, 6, 7
XRES = 8
PA, PB = 22, 23
X, ACC, F = 32, 160, 224
aROW, aST, aSQ, aSH, aSG, aHX, aHWR, aHWS, aHST, aHSS, aFB, aLINE, aTO, aTH = range(224, 238)
aBC, aBP, aBP0, aMC = 240, 244, 248, 252
L_HALO, L_RS, L_KV, L_TAB, L_FMT = 102400, 110592, 114688, 124928, 131072
L_SCR_DN = 114688
WO_SLOT = (8, 9, 0, 1)
DN_S = ((2, 3, 4, 9, 10, 11), (1, 5, 8, 12), (0, 6, 7, 13))
LV = LY.LV
if LV: DN_S = DN_S[::-1]
DN_ORD = sum(DN_S, ())
N1, N2 = len(DN_S[0]), len(DN_S[0]) + len(DN_S[1])
BIT = "s_bitcmp0_b32" if LV else "s_bitcmp1_b32"
NEG = "0xf149f2ca"

def ldsaddr(off):
    return "v%d offset:%d" % ((vL16, vL16b, vL16c)[off >> 16], off & 0xffff)

def isvm(g): return any(op[0] == "vm" for op in g)

class Main:
    def __init__(self):
        self.a = Asm()
        self.nstamp = 0
        self.cold = []
        self.nlite = 0
        self.wd = None
        self.ncall = 0

    def stamp(self, key=None):
        self.ncall += 1
        if OPT["diagpad"] and OPT["diagat"] == self.ncall:
            self.a.I("s_memrealtime s[%d:%d]" % (sST, sST + 1))
            self.a.ds_drain(force=True)
        if OPT["stamps"] != 1 or (key is not None and OPT["lite"] != key):
            return
        a = self.a
        a.I("s_memtime s[%d:%d]" % (sST, sST + 1))
        a.ds_drain(force=True)
        for k in range(self.nlite):
            a.I("v_writelane_b32 v%d, s%d, %d" % (vSTAMP, LITE[k], self.nstamp))
            self.nstamp += 1
        self.nlite = 0
        a.I("v_writelane_b32 v%d, s%d, %d" % (vSTAMP, sST, self.nstamp))
        self.nstamp += 1

    def lite(self, sl, key, slots):
        if OPT["lite"] != key:
            return
        for i in slots[:8]:
            sl.after(i, ("i", "s_memtime s[%d:%d]" % (LITE[self.nlite], LITE[self.nlite] + 1)))
            self.nlite += 1

    def report(self, name, r):
        print("  %s: cycles over budget %d, ops left after the loop %d" % ((name,) + r))

    def getc(self, v, acc): return "v_accvgpr_read_b32 v%d, a%d" % (v, acc)
    def flat(self, groups): return [op for g in groups for op in g]
    def digits(self, key): return tuple(int(c, 16) for c in str(OPT[key]) if c != "-")
    def wgs(self, where, ps): return [g for i in self.digits("wg_%s%d" % (where, ps)) for g in self.wg_chunk(i, ps)]
    def wg_early(self, ps): return sum((self.digits("wg_%s%d" % (w, ps)) for w in ("q", "att", "h1", "wo", "h2")), ())
    def wq_late(self, ps): return tuple(range(7)) if ps == 0 else self.digits("wq_late1")

    def srd(self, base, lo, hi, nbytes):
        self.a.I("s_mov_b32 s%d, %s\ns_and_b32 s%d, %s, 0xffff\ns_mov_b32 s%d, %s\ns_mov_b32 s%d, 0x20000" %
                 (base, lo, base + 1, hi, base + 2, nbytes, base + 3))

    def lin(self, dst, base, terms):
        first = True
        for reg, mul in terms:
            self.a.I("s_mul_i32 %s, %s, %d\ns_add_u32 %s, %s, %s" % (sT2, reg, mul, dst, base if first else dst, sT2))
            first = False

    def sdivmod(self, q, r, x, d):
        self.a.I("s_mul_hi_u32 %s, %s, 0x%x\ns_mul_i32 %s, %s, %d\ns_sub_u32 %s, %s, %s" % (q, x, magic(d), sT2, q, d, r, x, sT2))

    def hi_lo(self, dst, src, t):
        return ["v_cvt_pk_bf16_f32 v%d, v%d, v%d" % (dst, src, src), "v_lshlrev_b32 v%d, 16, v%d" % (t, dst),
                "v_sub_f32 v%d, v%d, v%d" % (t, src, t), "v_cvt_pk_bf16_f32 v%d, v%d, v%d" % (dst, src, t)]

    def scc_live(self, body, n):
        for t in body[n:]:
            mn = t.split()[0]
            if mn.startswith(("s_cselect", "s_subb", "s_addc", "s_cbranch_scc")) or t.endswith(":"): return True
            if mn.startswith(("s_cmp", "s_bitcmp", "s_add_", "s_sub_", "s_and_", "s_or_", "s_xor_", "s_lshl", "s_lshr", "s_min", "s_max", "s_bfe")): return False
        return False

    def weave(self, body, groups, first, every):
        k = 0
        for n_, op in enumerate(body):
            if n_ >= first and (n_ - first) % every == 0:
                while k < len(groups):
                    g = groups[k]; k += 1
                    self.a.run_all(g)
                    if isvm(g): break
            self.a.run(op)
        return groups[k:]

    def signal(self, h, wait=None, halo_pass=None, defer=False):
        a = self.a
        slow, done = a.label("slow"), a.label("sig")
        a.I("s_add_u32 %s, %s, %d\nv_mov_b32 v30, %s" % (sNH, sNONCE, h, sNH))
        if halo_pass is not None:
            h1, b1, h2, b2 = a.label("halo"), a.label("hback"), a.label("halo"), a.label("hback")
            n = a.vm_n - max(a.vm_tag[wait], a.vm_done)
            nx = 0 if halo_pass == 0 and OPT["xdir"] else 2
            a.I("s_cmp_lg_u32 %s, 0x%x\ns_cbranch_scc1 %s" % (sHDST, OOB, h1))
            st = "\n".join("buffer_store_dwordx4 %s, v24, %s, %s offen offset:%d sc1" % (vr(XRES + 4 * e, 4), WS, sTS, e * 512) for e in range(nx))
            self.cold.append("%s:\n%s\n%s\ns_add_u32 %s, %s, %d\n%s\nv_permlane32_swap_b32 v26, v27\nbuffer_store_dwordx2 v[26:27], v25, %s, %s offen sc1\ns_waitcnt vmcnt(%d)\ns_branch %s" %
                             (h1, "v_mov_b32 v27, v26\n" + self.getc(24, aHST), self.getc(25, aHSS), sTS, sHDST, LY.HX[halo_pass], st, WS, sTS, n + 1 + nx, b1))
            a.vm_wait(wait)
            a.I("%s:\ns_cmp_lg_u32 %s, 0" % (b1, sSLOW))
        else:
            a.I("s_cmp_lg_u32 %s, 0" % sSLOW)
            if wait is None: a.vm_drain()
            else: a.vm_wait(wait)
        a.I("s_cbranch_scc1 %s" % slow)
        seq = a.vm("buffer_store_dword v30, v%d, %s, %s offen" % (vF1, WS, sFLW))
        a.I("%s:" % done)
        self.cold.append("%s:\nbuffer_wbl2 sc1\ns_waitcnt vmcnt(0)\nbuffer_store_dword v30, v%d, %s, %s offen sc1\ns_branch %s" % (slow, vF1, WS, sFLW, done))
        self.sent = h
        def halo_flag():
            self.cold.append("%s:\ns_add_u32 %s, %s, %d\nv_mov_b32 v24, %s\n%s\ns_waitcnt vmcnt(%d)\nbuffer_store_dword v24, v25, %s, %s offen sc1\ns_branch %s" %
                             (h2, sTS, sHDFL, halo_pass * 16384, sNONCE, self.getc(25, aLINE), a.vm_n - seq + 1, WS, sTS, b2))
            a.I("s_cmp_lg_u32 %s, 0x%x\ns_cbranch_scc1 %s\n%s:" % (sHDST, OOB, h2, b2))
        if halo_pass is not None:
            if defer: self.halo_flag = halo_flag
            else: halo_flag()

    def poll(self, h, mask, also=None, setup=None):
        a = self.a
        a.forget()
        assert self.sent == h
        if setup: setup()
        def loop(name, fl):
            ld = "buffer_load_dword v%d, v%d, %s, %s offen %s" % (PA, vFL, WS, sFLG, fl)
            ts = "v_subrev_u32 v%d, %s, v%d\nv_cmp_lt_u32 vcc, 15, v%d\ns_and_b64 vcc, vcc, %s" % (PA, sNH, PA, PA, mask)
            if also is not None:
                ld += "\nbuffer_load_dword v%d, v%d, %s, 0 offen sc1" % (PB, also, WS)
                ts = "v_cmp_ne_u32 s[60:61], %s, v%d\n%s\ns_or_b64 vcc, vcc, s[60:61]" % (sNONCE, PB, ts)
            return "%s:\n%s\ns_sub_u32 %s, %s, 1\ns_cbranch_scc1 L_main_done\ns_waitcnt vmcnt(0)\n%s\ns_cbranch_scc1 %s" % (name, ld, sSPIN, sSPIN, ts, name)
        far, ok = a.label("far"), a.label("ok")
        a.I("s_mov_b32 %s, 0x40000\ns_cmp_lg_u32 %s, 0\ns_cbranch_scc1 %s" % (sSPIN, sSLOW, far))
        if OPT["poll2"] and also is None:
            name = a.label("poll")
            ld = lambda r: "buffer_load_dword v%d, v%d, %s, %s offen %s" % (r, vFL, WS, sFLG, OPT["pollf"])
            ts = lambda r: "s_waitcnt vmcnt(1)\nv_subrev_u32 v%d, %s, v%d\nv_cmp_lt_u32 vcc, 15, v%d\ns_and_b64 vcc, vcc, %s" % (r, sNH, r, r, mask)
            a.I(ld(PA))
            for k in range(OPT["poll2"]): a.I("s_nop 7")
            a.I("%s:\n%s\n%s\ns_cbranch_scc0 %s\n%s\ns_sub_u32 %s, %s, 1\ns_cbranch_scc1 L_main_done\n%s\ns_cbranch_scc1 %s\n%s:" %
                (name, ld(PB), ts(PA), ok, ld(PA), sSPIN, sSPIN, ts(PB), name, ok))
            a.vm_done = a.vm_n
            a.vm_n += 1
        else:
            a.I(loop(a.label("poll"), OPT["pollf"]) + "\n%s:" % ok)
            a.vm_done = a.vm_n
        self.cold.append(loop(far, "sc1") + "\nbuffer_inv sc1\ns_waitcnt vmcnt(0)\ns_branch %s" % ok)

    def halo_late(self, hp):
        a = self.a
        h1, b1, h2, b2 = a.label("halo"), a.label("hback"), a.label("halo"), a.label("hback")
        st = "\n".join("buffer_store_dwordx4 %s, v24, %s, %s offen offset:%d sc1" % (vr(XRES + 4 * e, 4), WS, sTS, e * 512) for e in range(2))
        self.cold.append("%s:\n%s\n%s\ns_add_u32 %s, %s, %d\n%s\nbuffer_store_dword v26, v25, %s, %s offen sc1\ns_branch %s" %
                         (h1, self.getc(24, aHST), self.getc(25, aHSS), sTS, sHDST, LY.HX[hp], st, WS, sTS, b1))
        a.I("s_cmp_lg_u32 %s, 0x%x\ns_cbranch_scc1 %s\n%s:" % (sHDST, OOB, h1, b1))
        seq = a.vm_n
        def flag():
            self.cold.append("%s:\ns_add_u32 %s, %s, %d\nv_mov_b32 v24, %s\n%s\ns_waitcnt vmcnt(%d)\nbuffer_store_dword v24, v25, %s, %s offen sc1\ns_branch %s" %
                             (h2, sTS, sHDFL, hp * 16384, sNONCE, self.getc(25, aLINE), a.vm_n - seq, WS, sTS, b2))
        return [("call", flag), ("atom", "s_cmp_lg_u32 %s, 0x%x\ns_cbranch_scc1 %s\n%s:" % (sHDST, OOB, h2, b2))]

    def signal_ops(self, h, wait, reg):
        a = self.a
        slow, done = a.label("slow"), a.label("sig")
        self.cold.append("%s:\nbuffer_wbl2 sc1\ns_waitcnt vmcnt(0)\nbuffer_store_dword v%d, v%d, %s, %s offen sc1\ns_branch %s" % (slow, reg, vF1, WS, sFLW, done))
        return [("i", "s_add_u32 %s, %s, %d" % (sNH, sNONCE, h)), ("i", "v_mov_b32 v%d, %s" % (reg, sNH)), ("wvm", wait),
                ("vm", "s_cmp_lg_u32 %s, 0\ns_cbranch_scc1 %s\nbuffer_store_dword v%d, v%d, %s, %s offen\n%s:" % (sSLOW, slow, reg, vF1, WS, sFLW, done))]

    def check_ops(self, h, mask, reg, tag):
        a = self.a
        spin, back = a.label("cspin"), a.label("cback")
        ld = lambda fl: "buffer_load_dword v%d, v%d, %s, %s offen %s" % (reg, vFL, WS, sFLG, fl)
        t = ["v_subrev_u32 v%d, s3, v%d" % (reg, reg), "v_cmp_lt_u32 vcc, 15, v%d" % reg, "s_and_b64 vcc, vcc, %s" % mask]
        loop = lambda name, fl: "%s:\n%s\ns_sub_u32 %s, %s, 1\ns_cbranch_scc1 L_main_done\ns_waitcnt vmcnt(0)\n%s\ns_cbranch_scc1 %s" % (name, ld(fl), sSPIN, sSPIN, "\n".join(t), name)
        self.cold.append("%s:\ns_mov_b32 %s, 0x40000\ns_cmp_lg_u32 %s, 0\ns_cbranch_scc1 %s_f\n%s\ns_branch %s\n%s\nbuffer_inv sc1\ns_waitcnt vmcnt(0)\ns_branch %s" %
                         (spin, sSPIN, sSLOW, spin, loop(spin + "_n", OPT["pollf"]), back, loop(spin + "_f", "sc1"), back))
        return [("vm", ld(OPT["pollf"]), tag)], [("i", "s_add_u32 s3, %s, %d" % (sNONCE, h)), ("wvm", tag), ("i", t[0]), ("i", t[1]),
                                                ("atom", "%s\ns_or_b64 vcc, vcc, %s\ns_cbranch_scc1 %s\n%s:" % (t[2], sSLOW2, spin, back))]

    def late_check(self, load, reg, mask, tag):
        a = self.a
        spin, back = a.label("lspin"), a.label("lback")
        cmp_, and_ = "v_cmp_ne_u32 vcc, %s, v%d" % (sNONCE, reg), "s_and_b64 vcc, vcc, %s" % mask
        self.cold.append("%s:\ns_mov_b32 %s, 0x40000\n%s_l:\n%s\ns_sub_u32 %s, %s, 1\ns_cbranch_scc1 L_main_done\ns_waitcnt vmcnt(0)\n%s\n%s\ns_cbranch_scc1 %s_l\ns_branch %s"
                         % (spin, sSPIN, spin, load, sSPIN, sSPIN, cmp_, and_, spin, back))
        return [("vm", load, tag)], [("wvm", tag), ("i", cmp_), ("atom", and_ + "\ns_cbranch_scc1 %s\n%s:" % (spin, back))]

    def dma_chunk(self, sbase, goff, loff, n, tag, sc=""):
        sw = {1: sLW, 2: sLW2, 4: sLW4}[n]
        setup = [("set", sTW, "s_add_u32 %s, %s, %d" % (sTW, sbase, goff)), ("set", "m0", "s_add_u32 m0, %s, %d" % (sw, loff))]
        return [setup + [("vm", "buffer_load_dwordx4 v%d, %s, %s offen offset:%d%s lds" % (vL16, WS, sTW, k * 1024, sc), tag if k == n - 1 else None)]
                for k in range(n)]

    def wq_chunk(self, i): return self.dma_chunk(sWQ4 if i < 6 else sWQ, i * 16384, i * 16384, 4 if i < 6 else 1, ("wq", i), " " + OPT["wf"].strip("-"))
    def kept(self): return self.digits("keep")
    def ring(self, ps):
        return [k for k in (2, 3, 4, 5, 6, 7, 8, 9, 0, 1) if ps or k not in self.kept() + self.digits("keepo")]
    def wg_slot(self, i, ps): return self.ring(ps)[i % len(self.ring(ps))]
    def wo_chunk(self, i): return self.dma_chunk(sWO, i * 16384, WO_SLOT[i] * 16384, 4, ("wo", i), " " + OPT["wf"].strip("-"))
    def wg_chunk(self, i, ps): return self.dma_chunk(sWG4 if i < 14 else sWG, i * 16384, self.wg_slot(i, ps) * 16384, 4 if i < 14 else 2, ("wg", i), " " + OPT["wf"].strip("-"))

    def reg_loads(self, dsts, bases, offs, stmp, vaddr, tagbase):
        ops, cur = [], None
        for k, (d, sb, off) in enumerate(zip(dsts, bases, offs)):
            if cur is None or cur[0] != sb or not (0 <= off - cur[1] < 4096):
                cur = (sb, off)
            ops.append([("set", stmp, "s_add_u32 %s, %s, %d" % (stmp, sb, cur[1])),
                        ("vm", "buffer_load_dwordx4 %s, v%d, %s, %s offen offset:%d %s" % (d, vaddr, WS, stmp, off - cur[1], OPT["wf" if tagbase[0] == "w" else "actf"].strip("-")), (tagbase, k))])
        return ops

    def touch(self, acc, sbase, off, tmp):
        return [[("i", self.getc(tmp, acc) + "\ns_add_u32 %s, %s, %d" % (sT1, sbase, off)),
                 ("vm", "buffer_load_dword a255, v%d, %s, %s offen sc1" % (tmp, WS, sT1))]]

    def code_touch(self, label, tmp, n=1):
        if not OPT["cpf"]: return []
        return [[("i", "s_add_u32 s15, %s, %s-L_pc+%d" % (sCPO, label, 16384 * k)), ("i", "s_min_u32 s15, s15, L_code_end-L_pc-4"),
                 ("i", "v_mov_b32 v%d, s15" % tmp), ("vm", "global_load_dword a255, v%d, %s" % (tmp, sPC))] for k in range(n)]

    def ln_from_sums(self, s1, s2, t):
        return [("i", x) for x in (
            "v_mul_f32 v%d, 0x3b000000, v%d" % (s1, s1),
            "v_mul_f32 v%d, v%d, v%d" % (t, s1, s1),
            "v_mul_f32 v%d, 0x3b000000, v%d" % (s2, s2),
            "v_sub_f32 v%d, v%d, v%d" % (s2, s2, t),
            "v_max_f32 v%d, 0, v%d" % (s2, s2),
            "v_cvt_pk_bf16_f32 v%d, v%d, v%d" % (s2, s2, s2),
            "v_lshlrev_b32 v%d, 16, v%d" % (s2, s2),
            "v_add_f32 v%d, 0x3727c5ac, v%d" % (s2, s2),
            "v_cvt_pk_bf16_f32 v%d, v%d, v%d" % (s2, s2, s2),
            "v_lshlrev_b32 v%d, 16, v%d" % (s2, s2),
            "v_sqrt_f32 v%d, v%d" % (s2, s2),
            "v_cvt_pk_bf16_f32 v%d, v%d, v%d" % (s2, s2, s2),
            "v_lshlrev_b32 v%d, 16, v%d" % (s2, s2),
            "v_rcp_f32 v%d, v%d" % (s2, s2))]

    def publish(self, xi):
        a = self.a
        S1, S2, S3, S4, AD = 26, 27, 28, 29, 25
        a.I("s_add_u32 %s, %s, %d" % (sTS, sXST, LY.XB[xi]))
        for e in range(0 if xi == 0 and OPT["xdir"] else 2):
            a.vm("buffer_store_dwordx4 %s, v%d, %s, %s offen offset:%d%s" % (vr(XRES + 4 * e, 4), vQ, WS, sTS, e * 2048, " sc1" if xi == 1 and "x" not in OPT["t_set"] else ""))
        for k in range(4):
            for d, p, o in ((S1, XRES + k, sONE), (S2, XRES + k, None), (S3, XRES + 4 + k, sONE), (S4, XRES + 4 + k, None)):
                a.I("v_dot2_f32_bf16 v%d, v%d, %s, %s" % (d, p, o or "v%d" % p, "v%d" % d if k else "0"))
        a.I(self.getc(AD, aST) + "\ns_add_u32 %s, %s, %d" % (sTS, sSST, LY.SB[xi]))
        a.I("v_add_f32 v%d, v%d, v%d\nv_add_f32 v%d, v%d, v%d" % (S1, S1, S3, S2, S2, S4))
        a.I("v_permlane32_swap_b32 v%d, v%d\nv_add_f32 v%d, v%d, v%d\nv_mov_b32 v%d, v%d" % (S1, S2, S1, S1, S2, S2, S1))
        a.I("v_permlane16_swap_b32 v%d, v%d\nv_add_f32 v%d, v%d, v%d" % (S1, S2, S1, S1, S2))
        a.vm("buffer_store_dword v%d, v%d, %s, %s offen" % (S1, AD, WS, sTS), "pub")

    def startup(self):
        a = self.a
        lin = self.lin
        t8, kc, tok, g, hh, t32, u0, u1, rr, cc, q16, vA, vR, vB, vD, TA0, TA1, TD, TG, CSW, XA, XV, FAV, LINE = range(F, F + 24)
        ONES = F + 24
        def put(acc): a.I("v_accvgpr_write_b32 a%d, v%d" % (acc, u1))
        a.I("%s_kernel:" % NAME)
        a.I("s_cmp_ge_u32 s2, 256\ns_cbranch_scc1 L_main_done")
        a.I("s_load_dwordx16 s[64:79], s[0:1], 0\ns_load_dwordx2 s[4:5], s[0:1], 72")
        if OPT["stamps"] or OPT["diagpad"]:
            a.I("s_memrealtime s[98:99]")
        if OPT["stamps"]:
            a.I("s_memtime s[%d:%d]" % (sST, sST + 1))
        a.I("s_getpc_b64 s[56:57]\nL_pc:\ns_lshr_b32 s58, s2, 3\ns_lshl_b32 s58, s58, 11")
        a.I("v_lshrrev_b32 v16, 6, v0\nv_lshrrev_b32 v17, 4, v0\nv_lshlrev_b32 v17, 7, v17\nv_add_u32 v17, s58, v17")
        a.I("v_min_u32 v17, L_code_end-L_pc-4, v17\nv_and_b32 v0, 63, v0\nv_readfirstlane_b32 %s, v16" % sW)
        a.vm("global_load_dword a255, v17, s[56:57]")
        a.I("s_and_b32 %s, s2, 7\ns_bfe_u32 %s, s2, 0x40003\ns_lshr_b32 %s, s2, 7" % (sN, sJ, sP))
        a.I("s_lshr_b32 %s, %s, 3\ns_and_b32 %s, %s, 7" % (sR, sJ, sC, sJ))
        a.I("v_and_b32 v%d, 7, v0\nv_lshrrev_b32 v%d, 3, v0\nv_and_b32 v%d, 15, v0\nv_lshrrev_b32 v%d, 4, v0" % (t8, kc, tok, g))
        cuA, kkA, stA, cuG, kkG, sSG, sSD, kkD = "s28", "s29", "s30", "s32", "s33", "s6", "s7", "s36"
        sU, sV = "s34", "s35"
        if OPT["rot"]:
            a.I("s_add_u32 %s, %s, %s\ns_and_b32 %s, %s, 7\ns_andn2_b32 %s, s2, 7\ns_or_b32 %s, %s, %s" % (sV, sN, sJ, sV, sV, sU, sU, sU, sV))
        else:
            sU, sV = "s2", sN
        self.sdivmod(kkA, cuA, sU, 24)
        a.I("s_sub_u32 %s, s2, 192\ns_lshr_b32 %s, %s, 3" % (sT0, sT0, sT0))
        a.I("s_cmp_lt_u32 s2, 192\ns_cselect_b32 %s, %s, %s\ns_cselect_b32 %s, %s, %s\ns_cselect_b32 %s, 3, 1\ns_lshl_b32 %s, %s, 10" %
            (cuA, cuA, sV, kkA, kkA, sT0, stA, stA, stA))
        a.I("v_lshlrev_b32 v%d, 4, v%d\nv_mad_u32_u24 v%d, v%d, %s, v%d" % (u0, t8, vA, kc, stA, u0))
        a.I("s_lshl_b32 %s, %s, 2\ns_add_u32 %s, %s, %s\ns_lshl_b32 %s, %s, 4\ns_mul_i32 %s, %s, %s" % (sT0, kkA, sT0, sT0, sW, sT0, sT0, sT0, sT0, stA))
        a.I("s_lshl_b32 %s, %s, 7\ns_add_u32 %s, %s, %s\ns_lshl_b32 %s, %s, 3\ns_add_u32 %s, %s, %s\ns_sub_u32 %s, %s, 1024" %
            (sT1, cuA, sT0, sT0, sT1, sT1, stA, sT1, sT1, sT0, sT1, sT1))
        a.I("s_lshl_b32 %s, %s, 11\ns_add_u32 m0, %s, %d" % (sLW2, sW, sLW2, L_FMT))
        a.I("s_lshl_b32 s31, %s, 1\ns_add_u32 s31, s31, %s\ns_lshl_b32 s31, s31, 2\ns_add_u32 s31, s31, %s\ns_lshl_b32 s31, s31, 5" % (sN, sR, sW))
        a.I("s_add_u32 s31, s31, %s\ns_lshl_b32 s31, s31, 3\ns_add_u32 s31, s31, %s\ns_lshl_b32 s31, s31, 7" % (sP, sC))
        a.I("v_and_b32 v%d, 14, v0\nv_lshlrev_b32 v%d, 11, v%d\nv_lshl_add_u32 v%d, v%d, 4, v%d\nv_and_b32 v%d, 1, v0\nv_lshlrev_b32 v%d, 6, v%d\nv_add3_u32 v%d, s31, v%d, v%d" %
            (vR, vR, vR, vR, g, vR, u1, u1, u1, vR, vR, u1))
        a.I("s_waitcnt lgkmcnt(0)")
        a.I("s_load_dword %s, s[4:5], %d" % (sNONCE, LY.EPOCH))
        a.I("s_cmp_lt_u32 s2, 192\ns_cselect_b32 s%d, s66, s68\ns_cselect_b32 s%d, s67, s69\ns_and_b32 s%d, s%d, 0xffff" % (SRC_A, SRC_A + 1, SRC_A + 1, SRC_A + 1))
        a.I("s_lshl_b32 s%d, %s, 9\ns_mov_b32 s%d, 0x20000" % (SRC_A + 2, stA, SRC_A + 3))
        sa = "s[%d:%d]" % (SRC_A, SRC_A + 3)
        a.vm("buffer_load_dwordx4 v%d, %s, %s offen lds" % (vA, sa, sT0))
        a.vm("buffer_load_dwordx4 v%d, %s, %s offen offset:1024 lds" % (vA, sa, sT1), "fa")
        self.srd(12, "s64", "s65", 2048 * 1024)
        a.vm("buffer_load_dwordx4 %s, v%d, %s, 0 offen" % (vr(ACC + 56, 4), vR, XIN))
        a.vm("buffer_load_dwordx4 %s, v%d, %s, 0 offen offset:2048" % (vr(ACC + 60, 4), vR, XIN), "x")
        if OPT["stamps"]:
            a.I("v_mov_b32 v%d, 0\nv_writelane_b32 v%d, s98, 62\nv_writelane_b32 v%d, s%d, 0" % (vSTAMP, vSTAMP, vSTAMP, sST))
            self.nstamp = 1
        if OPT["diagpad"]: a.I("s_mov_b32 s14, s98")
        self.stamp("p")
        self.srd(8, "s4", "s5", LY.WS_USED)
        a.I("s_lshl_b32 %s, %s, 1\ns_add_u32 %s, %s, %s" % (sG, sN, sG, sG, sP))
        lin(sFLG, str(LY.FL), [(sG, 256)])
        lin(sFLW, sFLG, [(sJ, 16), (sW, 4)])
        lin(sTS, str(LY.ACT), [(sG, LY.ACT_STRIDE), (sR, 4096), (sW, 1024), (sC, 128)])
        a.I("s_and_b32 %s, %s, 1" % (sT0, sC))
        lin(sSST, sTS, [(sT0, -120)])
        a.I("s_add_u32 %s, %s, %d\nv_mov_b32 v%d, %s\nv_mov_b32 v%d, %s\nv_cmp_gt_u32 vcc, 32, v0\nv_cndmask_b32 v%d, v%d, v%d, vcc" %
            (sTS, sTS, LY.SB[0], u1, sTS, XA, sFLW, XA, u1, XA))
        a.vm("buffer_load_dword a255, v%d, %s, 0 offen sc1" % (XA, WS))
        self.sdivmod(kkG, cuG, sU, 28)
        a.I("v_mul_u32_u24 v%d, 3584, v%d\nv_add_u32 v%d, v%d, v%d\nv_lshl_add_u32 v%d, v%d, 10, v%d" % (vB, kc, vB, vB, u0, vD, kc, u0))
        a.I("s_lshr_b32 %s, s2, 3" % kkD)
        lin(sSG, "0", [(kkG, 64 * 3584), (sW, 16 * 3584), (cuG, 128)])
        lin(sSD, "0", [(kkD, 65536), (sW, 16384), (sV, 128)])
        xd, swaps = [], []
        if OPT["xdir"]:
            vX, sXD, sHD, sXL = 31 - 10, "s98", "s14", "s99"
            self.srd(SRC_A, "s64", "s65", 2048 * 1024)
            a.I("v_xor_b32 v%d, v%d, v%d\nv_lshlrev_b32 v%d, 4, v%d\nv_lshl_add_u32 v%d, v%d, 11, v%d" % (vX, t8, kc, vX, vX, vX, kc, vX))
            lin(sHD, "0", [(sN, 262144), (sP, 1024)])
            lin(sXD, sHD, [(sW, 65536)])
            lin(sHD, sHD, [(sW, 256)])
            a.I("s_sub_u32 %s, %s, 16384\ns_cmp_eq_u32 %s, 0\ns_cselect_b32 %s, 0x%x, %s\ns_lshl_b32 %s, %s, 15" % (sHD, sHD, sN, sHD, OOB, sHD, sXL, sW))
            a.I("v_xor_b32 v16, v%d, v%d\nv_lshlrev_b32 v16, 4, v16\nv_lshl_add_u32 v%d, v%d, 7, v16\nv_add_u32 v%d, %d, v%d" % (t8, g, u1, t8, u1, L_HALO, u1)); put(aSH)
            a.I("v_lshl_add_u32 v16, v%d, 7, v16\nv_add_u32 v16, %s, v16\nv_xor_b32 v17, 64, v16" % (tok, sXL))
            for m in range(8):
                for k in range(4):
                    xd.append([("i", "s_add_u32 m0, %s, %d\ns_add_u32 s15, %s, %d" % (sXL, m * 4096, sXD, k * 16384 + m * 128 - k * 1024)),
                               ("vm", "buffer_load_dwordx4 v%d, %s, s15 offen offset:%d lds" % (vX, sa, k * 1024), ("xd", m, k))])
                swaps.append(("wvm", ("xd", m, 3)))
                swaps += [("ds", "ds_read_b128 %s, v%d offset:%d" % (vr(X + 8 * (2 * m + h_) + 4 * b_, 4), 16 + h_, m * 4096 + b_ * 2048)) for b_ in range(2) for h_ in range(2)]
            swaps.append(("dsdrain",))
            self.halo0 = [[("set", "m0", "s_add_u32 m0, %s, %d" % (sLW2, L_HALO + 1024 * k)), ("i", "s_add_u32 s15, %s, %d" % (sHD, 128 * k)),
                           ("vm", "buffer_load_dwordx4 v%d, %s, s15 offen lds" % (vX, sa), "halo" if k else None)] for k in range(2)]
            a.run_all(self.flat(xd[:OPT["xd0"]])); xd = xd[OPT["xd0"]:]
        self.srd(SRC_G, "s72", "s73", 512 * 3584)
        self.srd(SRC_U, "s74", "s75", 512 * 3584)
        self.srd(SRC_D, "s76", "s77", 1792 * 1024)
        def b_loads():
            for srdn, so, va, stride, lo in ((SRC_G, sSG, vB, 3584, 8192), (SRC_U, sSG, vB, 3584, 16384), (SRC_D, sSD, vD, 1024, 24576)):
                a.I("s_add_u32 m0, %s, %d\ns_add_u32 s15, %s, %d" % (sLW2, L_FMT + lo, so, 8 * stride - 1024))
                a.vm("buffer_load_dwordx4 v%d, s[%d:%d], %s offen lds" % (va, srdn, srdn + 3, so))
                a.vm("buffer_load_dwordx4 v%d, s[%d:%d], %s offen offset:1024 lds" % (va, srdn, srdn + 3, "s15"), ("fb", lo))
        if OPT["b_pos"] == 0: b_loads()
        self.srd(16, "s78", "s79", 2048 * 1024)
        a.I("v_accvgpr_write_b32 a%d, v%d\nv_lshlrev_b32 v%d, 4, v0" % (aROW, vR, vL16))
        dA, dA2, dCS = "s3", "s0", "s1"
        a.I("s_and_b32 %s, %s, 7\ns_lshl_b32 %s, %s, 1\ns_lshr_b32 %s, %s, 1\ns_add_u32 %s, %s, %s" % (sT0, cuA, sT0, sT0, sT1, sW, sT0, sT0, sT1))
        a.I("s_mul_i32 %s, %s, %d\ns_add_u32 %s, %s, %d" % (sT0, sT0, LY.WQ_STRIDE, sT0, sT0, LY.WQ))
        a.I("s_lshr_b32 %s, %s, 3\ns_lshl_b32 %s, %s, 1\ns_and_b32 %s, %s, 1\ns_add_u32 %s, %s, %s" % (sT1, cuA, sT1, sT1, sT2, sW, sT1, sT1, sT2))
        lin(dA, sT0, [(kkA, 12288), (sT1, 1024)])
        lin(dCS, sT0, [(kkA, 64), (sT1, 512)])
        a.I("s_add_u32 %s, %s, 98304" % (dCS, dCS))
        lin(sT0, str(LY.WO), [(cuA, LY.WO_STRIDE), (kkA, 8192), (sW, 1024)])
        a.I("s_cmp_lt_u32 s2, 192\ns_cselect_b32 %s, %s, %s\ns_cselect_b32 %s, %s, 0x%x\ns_cselect_b32 %s, 6, 4\ns_cselect_b64 vcc, -1, 0" %
            (dA, dA, sT0, dCS, dCS, OOB, dA2))
        a.I("s_lshl_b32 %s, %s, 10\ns_add_u32 %s, %s, %s" % (dA2, dA2, dA2, dA2, dA))
        a.I("v_bfe_u32 v%d, v0, 2, 2\nv_and_b32 v%d, 3, v0\nv_bfe_u32 v%d, v0, 4, 1\nv_lshrrev_b32 v%d, 5, v0\nv_and_b32 v%d, 31, v0" % (rr, cc, q16, hh, t32))
        a.I("v_lshl_add_u32 v%d, v%d, 3, v%d\nv_lshlrev_b32 v%d, 7, v%d\nv_lshl_add_u32 v%d, v%d, 2, v%d\nv_lshlrev_b32 v%d, 7, v%d" % (u0, g, rr, u0, u0, u1, g, rr, u1, u1))
        a.I("s_lshr_b32 %s, %s, 1\ns_lshl_b32 %s, %s, 6\ns_and_b32 %s, %s, 1\ns_lshl_b32 %s, %s, 3\ns_add_u32 %s, %s, %s\ns_add_u32 %s, %s, %d" %
            (sT0, sW, sT0, sT0, sT1, sW, sT1, sT1, sT0, sT0, sT1, sT0, sT0, L_FMT))
        a.I("v_lshl_add_u32 v%d, v%d, 4, %s\nv_add_u32 v%d, v%d, v%d\nv_add_u32 v%d, v%d, v%d" % (TA1, cc, sT0, TD, TA1, u0, u1, u1, TA1))
        a.I("s_lshl_b32 %s, %s, 5\ns_add_u32 %s, %s, %d\nv_lshl_add_u32 v%d, v%d, 3, %s\nv_add_u32 v%d, v%d, v%d" % (sT0, sW, sT0, sT0, L_FMT, TA0, cc, sT0, u0, u0, TA0))
        a.I("v_mov_b32 v%d, v%d" % (TG, u0))
        a.I("v_cndmask_b32 v%d, v%d, v%d, vcc\nv_add_u32 v%d, 512, v%d\nv_add_u32 v%d, 2048, v%d\nv_cndmask_b32 v%d, v%d, v%d, vcc" % (TA0, u1, u0, u0, u0, u1, u1, TA1, u1, u0))
        for k in range(4): a.I("v_mov_b32 v%d, 0x3f803f80" % (ONES + k))
        a.I("v_lshlrev_b32 v%d, 2, v%d\nv_lshl_add_u32 v%d, v%d, 28, v%d" % (CSW, tok, CSW, g, CSW))
        a.I("s_mov_b32 %s, 0\ns_mov_b32 %s, 0x3f803f80" % (sSLOW, sONE))
        a.I("v_cmp_ne_u32 vcc, 0, v0\nv_mov_b32 v%d, 0x%x\nv_lshlrev_b32 v%d, 2, v0\nv_cndmask_b32 v%d, 0, v%d, vcc" % (vF1, OOB, vFL, vF1, vF1))
        a.I("s_lshl_b32 %s, %s, %d\ns_add_u32 %s, %s, 0x%x" % (sGB, sG, LY.ACT_SHIFT, sGB, sGB, LY.ACT))
        lin(sXLD, sGB, [(sW, 32768)])
        a.I("s_lshr_b32 %s, %s, 1\ns_and_b32 %s, %s, 1" % (sT0, sW, sT1, sW))
        lin(sXST, sGB, [(sR, 65536), (sC, 4096), (sT0, 32768), (sT1, 256)])
        lin(sOST, sXLD, [(sJ, 2048)])
        lin(sT0, str(LY.XF), [(sG, 2048)])
        a.I("v_lshrrev_b32 v%d, 2, v0\nv_lshl_add_u32 v%d, v%d, 7, %s\nv_lshl_add_u32 v%d, v%d, 30, v%d\nv_accvgpr_write_b32 a%d, v%d" % (XA, XA, XA, sT0, LINE, hh, vFL, aLINE, LINE))
        a.I("v_lshlrev_b32 v%d, 4, v%d\nv_lshl_add_u32 v%d, v%d, 9, v%d" % (u0, tok, vQ, g, u0))
        a.I("v_lshlrev_b32 v%d, 4, v%d\nv_lshl_add_u32 v%d, v%d, 2, v%d\nv_lshl_add_u32 v%d, v%d, 30, v%d" % (u1, tok, u1, hh, u1, u1, q16, u1)); put(aST)
        def die_id():
            lin(sT0, str(LY.XF), [(sG, 2048), (sJ, 128)])
            a.I("s_cmp_eq_u32 %s, 0\ns_cselect_b32 %s, %s, 0x%x\ns_getreg_b32 %s, hwreg(HW_REG_XCC_ID, 0, 4)" % (sW, sT0, sT0, OOB, sT1))
            a.I("s_waitcnt lgkmcnt(0)\ns_add_u32 %s, %s, 0x9e3779b1\ns_xor_b32 %s, %s, %s\nv_mov_b32 v%d, %s" % (sNONCE, sNONCE, sT1, sT1, sNONCE, XV, sT1))
            a.vm("buffer_store_dword v%d, v%d, %s, %s offen sc1" % (XV, LINE, WS, sT0))
            self.stamp("p")
        if OPT["c_early"] < 2: die_id()
        def constants():
            lin(sB3, str(LY.WD), [(sV, LY.WD_STRIDE), (kkD, 8192), (sW, 1024)])
            a.I("s_lshl_b32 %s, %s, 2\ns_add_u32 %s, %s, %s" % (cuG, cuG, cuG, cuG, sW))
            self.sdivmod(sT0, sT1, cuG, 7)
            lin(sB2, str(LY.WG), [(sT0, LY.WG_STRIDE)])
            a.I("s_sub_u32 %s, 6, %s\n%s %s, 0\ns_cselect_b32 %s, %s, %s" % (sT2, sT1, BIT, sT0, sT1, sT1, sT2))
            S0, TL = GS0, 16 - GS0
            lin(sB0, sB2, [(kkG, 28 * 1024), (sT1, 2048)])
            lin(sB2, sB2, [(sT1, (2 * TL + 1) * 1024)])
            lin(sT0, sB2, [(kkG, 4096)])
            a.I("s_add_u32 %s, %s, %d\ns_cmp_lt_u32 %s, %d\ns_cselect_b32 %s, %s, %s\ns_cselect_b32 %s, 14, 2\ns_lshl_b32 %s, %s, 10" %
                (sT0, sT0, 12 * S0 * 1024, kkG, S0 // 2, sB0, sB0, sT0, sB1, sB1, sB1))
            lin(sB2, sB2, [(kkG, 64)])
            a.I("s_add_u32 %s, %s, %d" % (sB2, sB2, (14 * S0 + 2 * TL) * 1024))
            a.I("s_cmp_lt_u32 s2, 224")
            for r_ in (sB0, sB2, sB3): a.I("s_cselect_b32 %s, %s, 0x%x" % (r_, r_, OOB))
            lin(sHFL, str(LY.HFL), [(sG, 1024)])
            lin(sHDFL, sHFL, [(sC, 128)])
            lin(sFBO, str(LY.FA), [(sU, 128)])
            a.I("s_add_u32 %s, %s, 2048\ns_add_u32 %s, %s, 0x%x" % (sHDFL, sHDFL, sHDST, sGB, 2 * LY.ACT_STRIDE))
            a.I("s_cmp_eq_u32 %s, 0\ns_cselect_b32 %s, %s, 0x%x" % (sW, sFBO, sFBO, OOB))
            a.I("s_lshl_b32 %s, %s, 2\ns_add_u32 %s, %s, %s\ns_cmp_eq_u32 %s, 7\ns_cselect_b32 %s, 0, %s\ns_cmp_eq_u32 %s, 7" % (sT0, sR, sT0, sT0, sW, sN, sT0, sT0, sT0))
            a.I("s_cselect_b32 %s, %s, 0x%x" % (sHDST, sHDST, OOB))
            a.I("v_lshlrev_b32 v%d, 4, v%d\nv_lshl_add_u32 v%d, v%d, 7, v%d\nv_add_u32 v%d, %d, v%d" % (u0, t8, u0, g, u0, u1, L_HALO, u0)); put(aHX)
            a.I("s_lshl_b32 %s, %s, 10\nv_add3_u32 v%d, v%d, v%d, %s" % (sT0, sC, u1, u0, vA, sT0)); put(aHST)
            if "c" not in OPT["order"]: constants2()
        def constants2():
            if OPT["c_early"] == 2: die_id()
            a.I("s_lshr_b32 %s, %s, 1\ns_lshl_b32 %s, %s, 5\ns_and_b32 %s, %s, 1\ns_lshl_b32 %s, %s, 1\ns_add_u32 %s, %s, %s" % (sT0, sW, sT0, sT0, sT1, sW, sT1, sT1, sT0, sT0, sT1))
            a.I("s_mov_b32 s40, 0x33333333\ns_mov_b32 s41, 0\ns_lshl_b64 s[40:41], s[40:41], %s" % sT0)
            a.I("s_lshl_b32 %s, %s, 1\ns_lshl_b32 %s, %s, 4\ns_add_u32 %s, %s, %s" % (sT0, sR, sT2, sW, sT0, sT0, sT2))
            a.I("s_mov_b32 s42, 0x3333\ns_mov_b32 s43, 0\ns_lshl_b64 s[42:43], s[42:43], %s" % sT0)
            a.I("v_bfe_u32 v%d, v0, 2, 3\nv_min_u32 v%d, 6, v%d\ns_mul_i32 %s, %s, 7\nv_add_u32 v%d, %s, v%d" % (t8, t32, t8, sT0, sW, t32, sT0, t32))
            a.I("s_lshl_b32 %s, %s, 1\nv_and_or_b32 v%d, v%d, 1, %s" % (sT0, sW, t8, t8, sT0))
            a.I("s_lshr_b32 %s, %s, 1\nv_mul_u32_u24 v%d, 24, v%d\nv_lshl_add_u32 v%d, v%d, 3, v%d\nv_add_u32 v%d, %s, v%d" % (sT0, sJ, u0, t8, u0, kc, u0, u0, sT0, u0))
            a.I("s_add_u32 %s, %s, 192\nv_lshl_add_u32 v%d, v%d, 3, %s\nv_cmp_gt_u32 vcc, 24, v0\nv_cndmask_b32 v%d, v%d, v%d, vcc" % (sT0, sC, u1, t8, sT0, u0, u1, u0))
            a.I("v_lshlrev_b32 v%d, 7, v%d\nv_add_u32 v%d, %d, v%d" % (u0, u0, FAV, LY.FA, u0))
            self.c_min = len(a.lines)
            a.I("s_lshr_b32 %s, s2, 3\ns_lshl_b32 %s, %s, 2\ns_add_u32 %s, %s, %s\ns_lshl_b32 %s, %s, 7" % (sCPO, sCPO, sCPO, sCPO, sCPO, sW, sCPO, sCPO))
            lin(sHST, sGB, [(sW, 114688), (sJ, 7168)])
            lin(sSLD, sGB, [(sW, 2048)])
            lin(sOL, sXST, [(sC, -4096)])
            a.I(BIT + " %s, 0\ns_cselect_b32 %s, 1, -1\ns_cselect_b32 %s, 0, 6144\ns_lshl_b32 %s, %s, 10\ns_add_u32 %s, %s, %s" % (sJ, sHSTEP, sT0, sHSTEP, sHSTEP, sHST, sHST, sT0))
            a.I("s_lshr_b32 %s, %s, 1\ns_lshl_b32 %s, %s, 1\ns_add_u32 %s, %s, %s\ns_lshl_b32 s66, 0x11111111, %s\ns_mov_b32 s67, s66" % (sT0, sW, sT1, sR, sT0, sT0, sT1, sT0))
            lin(sHLD[3], sGB, [(sR, 229376), (sW, 28672)])
            for i in range(4):
                a.I("s_add_u32 %s, %s, %d\ns_and_b32 %s, %s, 3\ns_lshr_b32 %s, %s, 1\ns_and_b32 %s, %s, 1" % (sTA, sW, i + 1, sTA, sTA, sT0, sTA, sT1, sTA))
                lin(sHLD[i], sHLD[3], [(sT0, 114688), (sT1, 256)])
                if i < 3: lin(sXW[i], str(i * 4096), [(sTA, 12288)])
            lin(sXR, "0", [(sW, 12288)])
            lin(sWQ, str(LY.WQ), [(sJ, LY.WQ_STRIDE * (1 - OPT["hitw"]))])
            lin(sWG, str(LY.WG), [(sJ, LY.WG_STRIDE * (1 - OPT["hitw"]))])
            lin(sWO, str(LY.WO), [(sC, LY.WO_STRIDE * (1 - OPT["hitw"])), (sW, 4096)])
            lin(sWD, str(LY.WD), [(sC, LY.WD_STRIDE * (1 - OPT["hitw"])), (sW, 57344)])
            lin(sTAB, str(L_TAB), [(sW, 512)])
            a.I("s_lshl_b32 %s, %s, 10\ns_lshl_b32 %s, %s, 12" % (sLW, sW, sLW4, sW))
            if not OPT["xdir"]: a.I("s_add_u32 %s, %s, %s\ns_add_u32 %s, %s, %s" % (sWQ4, sWQ, sLW4, sWG4, sWG, sLW4))
            a.I("s_cmp_eq_u32 %s, 0\ns_cselect_b32 %s, 0x%x, %s\ns_cselect_b64 s[54:55], 0, -1" % (sN, sHALO, OOB, sGB))
            a.I("s_add_u32 %s, %s, %s\ns_add_u32 %s, %s, %s\ns_add_u32 %s, %s, %s" % (sHALO2, sHALO, sLW2, sWQ, sWQ, sLW, sWG, sWG, sLW2))
            a.I("v_add_u32 v%d, 0x10000, v%d\nv_add_u32 v%d, 0x20000, v%d" % (vL16b, vL16, vL16c, vL16))
            a.I("v_lshrrev_b32 v%d, %d, v0\nv_lshlrev_b32 v%d, 7, v%d" % (u1, 1 if OPT["xdir"] else 2, u1, u1))
            if OPT["xdir"]:
                a.I("s_add_u32 %s, %s, %d\nv_and_b32 v%d, 128, v%d\nv_add_u32 v%d, %s, v%d\nv_bfe_u32 v%d, v0, 2, 3" % (sT0, sOST, LY.OB[0], u0, u1, u1, sT0, u1, CSW))
                a.I("s_add_u32 %s, %s, %d\nv_lshl_add_u32 v%d, v%d, 9, v%d\nv_cmp_gt_u32 vcc, 32, v0\nv_add_u32 v%d, %s, v%d" %
                    (sT0, sXST, LY.XB[1], u0, CSW, u0, u0, sT0, u0))
                if "x" not in OPT["t_set"]: a.I("v_mov_b32 v%d, 0x%x" % (u0, OOB))
                if "o" not in OPT["t_set"]: a.I("v_mov_b32 v%d, 0x%x" % (u1, OOB))
                a.I("v_cndmask_b32 v%d, v%d, v%d, vcc" % (u1, u0, u1))
            put(aTO)
            a.I("v_lshlrev_b32 v%d, 7, v%d\nv_lshl_add_u32 v%d, v%d, 5, v%d\nv_lshl_add_u32 v%d, v%d, 1, v%d\nv_lshlrev_b32 v%d, 3, v0" % (u0, rr, u0, g, u0, u0, cc, u0, u1))
            a.I("s_cmp_ge_u32 %s, 2\ns_cselect_b64 vcc, -1, 0\ns_cselect_b32 %s, 2, 8\nv_cndmask_b32 v%d, v%d, v%d, vcc" % (sW, sT1, u1, u0, u1))
            a.I("s_lshr_b32 %s, %s, 1\ns_add_u32 %s, %s, %d\nv_add_u32 v%d, %s, v%d" % (sT0, sLW, sT0, sT0, L_KV, u1, sT0, u1)); put(aHWR)
            a.I("v_mov_b32 v%d, %s" % (u1, sT1)); put(aHWS)
            a.I("s_mul_i32 %s, %s, 7\ns_add_u32 %s, %s, 6\ns_lshr_b32 %s, %s, 2\ns_lshr_b32 %s, %s, 2" % (sT0, sJ, sT1, sT0, sT0, sT0, sT1, sT1))
            a.I("v_add_u32 v%d, %s, v%d\nv_min_u32 v%d, %s, v%d\nv_mad_u32_u24 v%d, v%d, 28, v%d" % (u0, sT0, kc, u0, sT1, u0, u0, t8, u0))
            a.I("v_lshl_add_u32 v%d, v%d, 3, %s\nv_cmp_gt_u32 vcc, 32, v0\nv_cndmask_b32 v%d, v%d, v%d, vcc" % (u1, t32, sC, u0, u1, u0))
            a.I("v_lshlrev_b32 v%d, 7, v%d\nv_add_u32 v%d, %d, v%d" % (u0, u0, u1, LY.FB, u0)); put(aFB)
            if OPT["c_early"] == 3: die_id()
            a.I("s_getpc_b64 %s\nL_pc2:\ns_sub_u32 s4, s4, L_pc2-L_pc\ns_subb_u32 s5, s5, 0" % sPC)
            NG, Z, M0_, M1_ = rr, cc, q16, hh
            a.I("s_or_b32 %s, %s, %s\ns_cmp_eq_u32 %s, 0\ns_cselect_b64 s[56:57], -1, 0" % (sT0, sN, sW, sT0))
            a.I("v_mov_b32 v%d, %s\nv_mov_b32 v%d, 0\nv_lshlrev_b32 v%d, 2, v%d\nv_sub_u32 v%d, v%d, v%d" % (NG, NEG, Z, vA, g, vA, tok, vA))
            for r in range(4):
                a.I("v_subrev_u32 v%d, %d, v%d\nv_mov_b32 v%d, %s" % (u0, r, vA, M0_, "0xffff0000" if r & 1 else "0xffff"))
                a.I("v_cmp_gt_u32 vcc, 8, v%d\nv_cmp_gt_i32 s[58:59], -8, v%d\nv_cmp_le_i32 s[60:61], 0, v%d" % (u0, u0, u0))
                a.I("v_cndmask_b32 v%d, v%d, v%d, vcc" % (u1, NG, Z)); put(aBC + r)
                a.I("v_cndmask_b32 v%d, v%d, v%d, s[58:59]" % (u1, NG, Z)); put(aBP + r)
                a.I("v_cndmask_b32 v%d, v%d, v%d, s[56:57]" % (u1, u1, NG)); put(aBP0 + r)
                if r & 1:
                    a.I("v_cndmask_b32 v%d, v%d, v%d, s[60:61]\nv_or_b32 v%d, v%d, v%d" % (u1, Z, M0_, u1, u1, M1_)); put(aMC + r // 2)
                else:
                    a.I("v_cndmask_b32 v%d, v%d, v%d, s[60:61]" % (M1_, Z, M0_))
        a.I("v_bfe_u32 v%d, v0, 3, 1\nv_xor_b32 v%d, 1, v%d\nv_lshlrev_b32 v%d, 29, v%d" % (vA, vA, vA, vA, vA))
        a.I("s_and_b32 %s, %s, 1" % (sT1, sC))
        lin(sT0, str(8192 - 128), [(sC, 64), (sT1, -56)])
        a.I("v_add3_u32 v%d, v%d, v%d, %s" % (u1, u1, vA, sT0)); put(aHSS)
        if OPT["c_early"]: constants()
        self.stamp("p")
        if OPT["b_pos"] == -1: b_loads()
        a.vm_wait("fa")
        a.I("s_barrier")
        for sp in range(2):
            for half in range(2):
                a.ds("ds_read_b64_tr_b16 %s, v%d offset:%d" % (vr(ACC + 4 * sp + 2 * half, 2), (TA0, TA1)[half], sp * 4096), ("t", sp))
        self.stamp("p")
        for sp in range(2):
            a.ds_wait(("t", sp))
            a.vm("buffer_store_dwordx4 %s, v%d, %s, %s offen sc1" % (vr(ACC + 4 * sp, 4), vL16, WS, (dA, dA2)[sp]))
            a.I("v_mfma_f32_16x16x32_bf16 %s, %s, %s, %s" % (vr(ACC + 8, 4), vr(ONES, 4), vr(ACC + 4 * sp, 4), vr(ACC + 8, 4) if sp else "0"))
        a.I("\n".join(self.hi_lo(ACC + 12, ACC + 8, ACC + 13)))
        a.vm("buffer_store_dword v%d, v%d, %s, %s offen sc1" % (ACC + 12, CSW, WS, dCS), "fas")
        if OPT["b_pos"] == -2: b_loads()
        a.vm_wait("x")
        self.pair_swap(XRES, ACC + 56)
        self.publish(0)
        xload = "buffer_load_dword v31, v%d, %s, 0 offen sc1" % (XA, WS)
        a.vm(xload, "xf")
        if OPT["b_pos"] == 1 and not OPT["xdir"]: b_loads()
        self.stamp("p")
        if OPT["xdir"]:
            n0 = len(a.lines)
            constants()
            body = a.lines[n0:]; del a.lines[n0:]
            k, since = 0, 99
            for n_, t in enumerate(body):
                if k < OPT["xd1"] and since >= OPT["xd_gap"] and not self.scc_live(body, n_):
                    a.run_all(xd[k]); k += 1; since = 0
                a.I(t); since += 1
            a.run_all(self.flat(xd[k:OPT["xd1"]])); xd = xd[OPT["xd1"]:]
        elif not OPT["c_early"]: constants()
        def second_unit():
            G, D, CS = (ACC + 16, ACC + 32, ACC + 48) if OPT["xdir"] else (X + 96, X + 112, ACC + 48)
            out = []
            def store(ops):
                if OPT["b_spread"] and "b" not in OPT["order"]: out.append(ops)
                else: a.run_all(ops)
            if "b" in OPT["order"]:
                a.vm_wait(("fb", 24576))
                a.I("s_barrier")
            for n_ in range(4):
                for half in range(2):
                    a.ds("ds_read_b64_tr_b16 %s, v%d offset:%d" % (vr(G + 4 * n_ + 2 * half, 2), TG, 8192 * (1 + n_ % 2) + (32 * (n_ // 2) + 4 * half) * 128), ("tg", n_))
            for sp in range(2):
                for half in range(2):
                    a.ds("ds_read_b64_tr_b16 %s, v%d offset:%d" % (vr(D + 4 * sp + 2 * half, 2), TD, 24576 + (32 * sp + 4 * half) * 128), ("td", sp))
            for n_ in range(4):
                a.ds_wait(("tg", n_))
                store(([("i", "s_add_u32 %s, %s, %s" % (sB0, sB0, sB1))] if n_ == 2 else []) +
                      [("vm", "buffer_store_dwordx4 %s, v%d, %s, %s offen offset:%d sc1" % (vr(G + 4 * n_, 4), vL16, WS, sB0, (n_ % 2) * 1024))])
                c_ = vr(CS + 4 * (n_ % 2), 4)
                a.I("v_mfma_f32_16x16x32_bf16 %s, %s, %s, %s" % (c_, vr(ONES, 4), vr(G + 4 * n_, 4), c_ if n_ >= 2 else "0"))
            for sp in range(2):
                a.ds_wait(("td", sp))
                store(([("i", "s_add_u32 %s, %s, 4096" % (sB3, sB3))] if sp else []) +
                      [("vm", "buffer_store_dwordx4 %s, v%d, %s, %s offen sc1" % (vr(D + 4 * sp, 4), vL16, WS, sB3))])
            a.I("v_cmp_gt_u32 vcc, 16, v0\nv_bfe_u32 v%d, v0, 4, 1\nv_mul_u32_u24 v%d, 448, v%d\nv_add_u32 v%d, v%d, v%d\nv_cndmask_b32 v%d, v%d, v%d, vcc" %
                (D + 9, D + 9, D + 9, D + 9, D + 9, LINE, CS, CS + 4, CS))
            a.I("\n".join(self.hi_lo(D + 8, CS, CS + 1)))
            store([("vm", "buffer_store_dword v%d, v%d, %s, %s offen sc1" % (D + 8, D + 9, WS, sB2), "fbs")])
            self.stamp("p")
            return out
        def first_flags():
            a.I("v_mov_b32 v30, %s" % sNONCE)
            a.vm_wait("fas")
            a.I("s_barrier")
            a.vm("buffer_store_dword v30, v%d, %s, %s offen sc1" % (LINE, WS, sFBO))
            a.I("s_add_u32 %s, %s, %d" % (sFBO, sFBO, LY.FB - LY.FA))
            self.stamp("p")
        def own_flags():
            spin, back = a.label("xspin"), a.label("xback")
            test = "v_xor_b32 v29, %s, v31\nv_cmp_lt_u32 vcc, 15, v29\ns_and_b64 vcc, vcc, exec" % sNONCE
            a.vm_wait("xf")
            a.I("%s\ns_cbranch_scc1 %s\n%s:" % (test, spin, back))
            self.cold.append("%s:\ns_mov_b32 %s, 0x40000\n%s_l:\n%s\ns_sub_u32 %s, %s, 1\ns_cbranch_scc1 L_main_done\ns_waitcnt vmcnt(0)\n%s\ns_cbranch_scc1 %s_l\ns_branch %s"
                             % (spin, sSPIN, spin, xload, sSPIN, sSPIN, test, spin, back))
            a.I("v_cmp_ne_u32 vcc, v%d, v31\ns_cmp_lg_u64 vcc, 0\ns_cselect_b32 %s, 1, 0\ns_mov_b32 s0, %s\ns_mov_b32 s1, 0" % (XV, sSLOW, sSLOW))
            self.signal(0, "pub", 0)
            self.stamp("p")
        for step in OPT["order"]:
            if step == "c" and OPT["xdir"]: continue
            {"b": second_unit, "a": first_flags, "o": own_flags, "c": constants2}[step]()
        if OPT["xdir"]:
            n0 = len(a.lines)
            constants2()
            body = a.lines[n0:]; del a.lines[n0:]
            per = max(OPT["xd_per"], -(-(self.c_min - n0) // len(xd)))
            pos, done = 0, 32 - len(xd)
            for g_ in xd:
                a.run_all(g_); done += 1
                stop = min(len(body), pos + per)
                while stop < len(body) and self.scc_live(body, stop): stop += 1
                a.I("\n".join(body[pos:stop])); pos = stop
                if len(swaps) > 1 and 4 * swaps[0][1][1] + 4 + OPT["xd_lag"] <= done:
                    a.run_all(swaps[:5]); swaps = swaps[5:]
            self.stamp("p")
            l_fa, g_fa = self.late_check("buffer_load_dword v%d, v%d, %s, 0 offen sc1" % (PB, FAV, WS), PB, "exec", "fa2")
            l_x, g_x = self.check_ops(0, sMA, PA, "x2")
            a.run_all(swaps[:5 * OPT["xd_pre"]]); swaps = swaps[5 * OPT["xd_pre"]:]
            a.run_all(l_x + l_fa)
            if not (OPT["inb"] and OPT["inb_at"]): b_loads()
            a.I("\n".join(body[pos:]))
            a.I("s_add_u32 %s, %s, %s\ns_add_u32 %s, %s, %s" % (sWQ4, sWQ, sLW4, sWG4, sWG, sLW4))
            a.I("s_sub_u32 %s, %s, %s\ns_sub_u32 %s, %s, %s" % (sWQ4, sWQ4, sLW, sWG4, sWG4, sLW2))
            if OPT["t_pos"] == -1: a.run_all(self.flat(self.touch(aTO, "0", 0, 18)))
            a.run_all(swaps + g_fa + g_x)
        self.stamp("p")
        if "b" in OPT["order"]:
            a.vm_wait("fbs")
            a.I("s_barrier")
            a.vm("buffer_store_dword v30, v%d, %s, %s offen sc1" % (LINE, WS, sFBO))
        elif OPT["predrain"]:
            a.vm_drain()
        self.stamp("p")
        def second_ops():
            G, D, CS, ON, AG, AD, T0, T1, T2 = 0, 16, 24, 32, 30, 31, 24, 25, 20
            pre = "v_mov_b32 v%d, v%d\nv_mov_b32 v%d, v%d\nv_bfe_u32 v%d, v0, 4, 1\nv_mul_u32_u24 v%d, 448, v%d\nv_add_u32 v%d, v%d, v%d\n" % (AG, TG, AD, TD, T2, T2, T2, T2, T2, LINE)
            pre += "\n".join("v_accvgpr_write_b32 a%d, v%d" % (ON + k, ONES) for k in range(4))
            rd = [("ds", "ds_read_b64_tr_b16 %s, v%d offset:%d" % (ar(G + 4 * n_ + 2 * half, 2), AG, 8192 * (1 + n_ % 2) + (32 * (n_ // 2) + 4 * half) * 128), ("tg", n_, half))
                  for n_ in range(4) for half in range(2)]
            rd += [("ds", "ds_read_b64_tr_b16 %s, v%d offset:%d" % (ar(D + 4 * sp + 2 * half, 2), AD, 24576 + (32 * sp + 4 * half) * 128), ("td", sp, half))
                   for sp in range(2) for half in range(2)]
            st = []
            for n_ in range(4):
                c_ = ar(CS + 4 * (n_ % 2), 4)
                st.append(([("i", "s_add_u32 %s, %s, %s" % (sB0, sB0, sB1))] if n_ == 2 else []) + [("wds", ("tg", n_, 1)),
                          ("vm", "buffer_store_dwordx4 %s, v%d, %s, %s offen offset:%d sc1" % (ar(G + 4 * n_, 4), vL16, WS, sB0, (n_ % 2) * 1024)),
                          ("i", "v_mfma_f32_16x16x32_bf16 %s, %s, %s, %s" % (c_, ar(ON, 4), ar(G + 4 * n_, 4), c_ if n_ >= 2 else "0"))])
            for sp in range(2):
                st.append(([("i", "s_add_u32 %s, %s, 4096" % (sB3, sB3))] if sp else []) + [("wds", ("td", sp, 1)),
                          ("vm", "buffer_store_dwordx4 %s, v%d, %s, %s offen sc1" % (ar(D + 4 * sp, 4), vL16, WS, sB3))])
            st.append([("i", "s_mov_b64 s[6:7], 0xffff\n%s\n%s\nv_cndmask_b32 v%d, v%d, v%d, s[6:7]" % (self.getc(T0, CS), self.getc(T1, CS + 4), T0, T1, T0)),
                       ("i", "\n".join(self.hi_lo(PA, T0, T1))),
                       ("vm", "buffer_store_dword v%d, v%d, %s, %s offen sc1" % (PA, T2, WS, sB2), "fbs"), ("mark", "bdone")])
            return pre, rd, st
        self.second_unit, self.b_loads, self.second_ops = second_unit, b_loads, second_ops
        self.fav = FAV

    def startup2(self):
        a = self.a
        lin = self.lin
        t8, kc, tok, g, hh, t32, u0, u1, rr, cc, q16, vA, vR, vD, TA0, TA1, TD, XA, XV, FAV, LINE = range(F, F + 21)
        ONES, CSW, L_T = F + 24, F + 21, 114688
        def put(acc): self.a.I("v_accvgpr_write_b32 a%d, v%d" % (acc, u1))
        a.I("%s_kernel:" % NAME)
        a.I("s_cmp_ge_u32 s2, 256\ns_cbranch_scc1 L_main_done")
        a.I("s_load_dwordx16 s[64:79], s[0:1], 0\ns_load_dwordx2 s[4:5], s[0:1], 72")
        if OPT["stamps"] or OPT["diagpad"]:
            a.I("s_memrealtime s[98:99]")
        if OPT["stamps"]:
            a.I("s_memtime s[%d:%d]" % (sST, sST + 1))
        a.I("s_getpc_b64 s[56:57]\nL_pc:\ns_lshr_b32 s58, s2, 3\ns_lshl_b32 s58, s58, 11")
        a.I("v_lshrrev_b32 v16, 6, v0\nv_lshrrev_b32 v17, 4, v0\nv_lshlrev_b32 v17, 7, v17\nv_add_u32 v17, s58, v17")
        a.I("v_min_u32 v17, L_code_end-L_pc-4, v17\nv_and_b32 v0, 63, v0\nv_readfirstlane_b32 %s, v16" % sW)
        a.I("global_load_dword a255, v17, s[56:57]")
        a.I("s_and_b32 %s, s2, 7\ns_bfe_u32 %s, s2, 0x40003\ns_lshr_b32 %s, s2, 7" % (sN, sJ, sP))
        a.I("s_lshr_b32 %s, %s, 3\ns_and_b32 %s, %s, 7" % (sR, sJ, sC, sJ))
        a.I("v_and_b32 v%d, 7, v0\nv_lshrrev_b32 v%d, 3, v0\nv_and_b32 v%d, 15, v0\nv_lshrrev_b32 v%d, 4, v0\nv_lshlrev_b32 v%d, 4, v%d" % (t8, kc, tok, g, u0, t8))
        a.I("s_lshl_b32 s31, %s, 1\ns_add_u32 s31, s31, %s\ns_lshl_b32 s31, s31, 2\ns_add_u32 s31, s31, %s\ns_lshl_b32 s31, s31, 5" % (sN, sR, sW))
        a.I("s_add_u32 s31, s31, %s\ns_lshl_b32 s31, s31, 3\ns_add_u32 s31, s31, %s\ns_lshl_b32 s31, s31, 7" % (sP, sC))
        a.I("v_and_b32 v%d, 14, v0\nv_lshlrev_b32 v%d, 11, v%d\nv_lshl_add_u32 v%d, v%d, 4, v%d\nv_and_b32 v%d, 1, v0\nv_lshlrev_b32 v%d, 6, v%d\nv_add3_u32 v%d, s31, v%d, v%d" %
            (vR, vR, vR, vR, g, vR, u1, u1, u1, vR, vR, u1))
        a.I("s_lshl_b32 %s, %s, 12\ns_cmp_lg_u32 %s, 0\ns_cbranch_scc1 L_follow" % (sLW4, sW, sP))
        self.follower = None
        cu, kp, st, so, so2 = "s32", "s33", "s34", "s35", "s36"
        D4 = [sB0, sB1, sB2, sB3]
        dCS, dD = "s3", "s7"
        held = None
        def out(text):
            if held is None: (self.a.vm if text.startswith("buffer") else self.a.I)(text)
            else: held.append(text)

        def tile_dma(srdn, va, s_off, stride, lds, tag):
            a = self.a
            a.I("s_add_u32 m0, %s, %d" % (sLW4, L_T + lds))
            for k in range(4):
                if k: a.I("s_add_u32 %s, %s, %s" % (sT0, s_off if k == 1 else sT0, stride))
                a.vm("buffer_load_dwordx4 v%d, s[%d:%d], %s offen offset:%d lds" % (va, srdn, srdn + 3, sT0 if k else s_off, k * 1024), tag if k == 3 else None)
        def x_loads():
            a = self.a
            self.srd(12, "s64", "s65", 2048 * 1024)
            a.vm("buffer_load_dwordx4 %s, v%d, %s, 0 offen" % (vr(X, 4), vR, XIN))
            a.vm("buffer_load_dwordx4 %s, v%d, %s, 0 offen offset:2048" % (vr(X + 4, 4), vR, XIN), "x")
            if OPT["stamps"]:
                a.I("v_mov_b32 v%d, 0\nv_writelane_b32 v%d, s98, 62\nv_writelane_b32 v%d, s%d, 0" % (vSTAMP, vSTAMP, vSTAMP, sST))
                self.nstamp = 1
            if OPT["diagpad"]: a.I("s_mov_b32 s14, s98")
        def common():
            a = self.a
            self.srd(8, "s4", "s5", LY.WS_USED)
            a.I("s_lshl_b32 %s, %s, 1\ns_add_u32 %s, %s, %s" % (sG, sN, sG, sG, sP))
            a.I("s_lshl_b32 %s, %s, %d\ns_add_u32 %s, %s, 0x%x" % (sGB, sG, LY.ACT_SHIFT, sGB, sGB, LY.ACT))
            lin(sFLG, str(LY.FL), [(sG, 256)])
            lin(sFLW, sFLG, [(sJ, 16), (sW, 4)])
            lin(sTS, sGB, [(sR, 4096), (sW, 1024), (sC, 128)])
            a.I("s_and_b32 %s, %s, 1" % (sT0, sC))
            lin(sSST, sTS, [(sT0, -120)])
            a.I("s_add_u32 %s, %s, %d\nv_cmp_gt_u32 vcc, 32, v0\nv_mov_b32 v%d, %s\nv_mov_b32 v%d, %s\nv_cndmask_b32 v%d, v%d, v%d, vcc" %
                (sTS, sTS, LY.SB[0], u1, sTS, XA, sFLW, XA, u1, XA))
            a.vm("buffer_load_dword a255, v%d, %s, 0 offen sc1" % (XA, WS))
            self.srd(16, "s78", "s79", 2048 * 1024)
            if OPT["rawd"] and a is not self.follower: self.srd(SRC_D, "s76", "s77", 1792 * 1024)
            a.I("v_accvgpr_write_b32 a%d, v%d\nv_lshlrev_b32 v%d, 4, v0\nv_lshlrev_b32 v%d, 2, v0" % (aROW, vR, vL16, vFL))
            a.I("v_bfe_u32 v%d, v0, 2, 2\nv_and_b32 v%d, 3, v0\nv_bfe_u32 v%d, v0, 4, 1\nv_lshrrev_b32 v%d, 5, v0" % (rr, cc, q16, hh))
            lin(sT0, str(LY.XF), [(sG, 2048)])
            a.I("v_lshrrev_b32 v%d, 2, v0\nv_lshl_add_u32 v%d, v%d, 7, %s\nv_lshl_add_u32 v%d, v%d, 30, v%d" % (XA, XA, XA, sT0, LINE, hh, vFL))
            lin(sT0, sT0, [(sJ, 128)])
            a.I("s_cmp_eq_u32 %s, 0\ns_cselect_b32 %s, %s, 0x%x\ns_getreg_b32 %s, hwreg(HW_REG_XCC_ID, 0, 4)" % (sW, sT0, sT0, OOB, sT1))
            a.I("s_waitcnt lgkmcnt(0)\ns_add_u32 %s, %s, 0x9e3779b1\ns_xor_b32 %s, %s, %s\nv_mov_b32 v%d, %s" % (sNONCE, sNONCE, sT1, sT1, sNONCE, XV, sT1))
            a.vm("buffer_store_dword v%d, v%d, %s, %s offen sc1" % (XV, LINE, WS, sT0))
            a.I("v_lshl_add_u32 v%d, v%d, 3, v%d\nv_lshlrev_b32 v%d, 7, v%d\nv_add_u32 v%d, %d, v%d" % (u0, g, rr, u0, u0, u0, L_T, u0))
            a.I("s_lshr_b32 %s, %s, 1\ns_and_b32 %s, %s, 1" % (sT0, sW, sT1, sW))
            lin(sXST, sGB, [(sR, 65536), (sC, 4096), (sT0, 32768), (sT1, 256)])
            a.I("s_lshl_b32 %s, %s, 6\ns_lshl_b32 %s, %s, 3\ns_add_u32 %s, %s, %s\nv_lshl_add_u32 v%d, v%d, 4, %s\nv_add_u32 v%d, v%d, v%d" %
                (sT0, sT0, sT1, sT1, sT0, sT0, sT1, TD, cc, sT0, TD, TD, u0))
            a.I("s_lshl_b32 %s, %s, 5\nv_lshl_add_u32 v%d, v%d, 3, %s\nv_add_u32 v%d, v%d, v%d" % (sT0, sW, TA0, cc, sT0, TA0, TA0, u0))
            for k in range(4): a.I("v_mov_b32 v%d, 0x3f803f80" % (ONES + k))
            a.I("s_mov_b32 %s, 0x3f803f80\nv_lshlrev_b32 v%d, 4, v%d\nv_lshl_add_u32 v%d, v%d, 9, v%d" % (sONE, u0, tok, vQ, g, u0))
            a.I("v_lshlrev_b32 v%d, 4, v%d\nv_lshl_add_u32 v%d, v%d, 2, v%d\nv_lshl_add_u32 v%d, v%d, 30, v%d" % (u1, tok, u1, hh, u1, u1, q16, u1)); put(aST)
        def tile_out(base, a0, a1, o1, lds, dst, cs):
            a = self.a
            for sp in range(4):
                a.ds("ds_read_b64_tr_b16 %s, v%d offset:%d" % (vr(base + 4 * sp, 2), a0, lds + sp * 4096))
                a.ds("ds_read_b64_tr_b16 %s, v%d offset:%d" % (vr(base + 4 * sp + 2, 2), a1, lds + sp * 4096 + o1), ("t", lds, sp))
            for sp in range(4):
                a.ds_wait(("t", lds, sp))
                out("buffer_store_dwordx4 %s, v%d, %s, %s offen offset:%d sc1" % ((vr(base + 4 * sp, 4), vL16, WS) + dst(sp)))
                if cs: a.I("v_mfma_f32_16x16x32_bf16 %s, %s, %s, %s" % (vr(cs, 4), vr(ONES, 4), vr(base + 4 * sp, 4), vr(cs, 4) if sp else "0"))
        def cs_out(src, addr):
            a = self.a
            a.I("v_cmp_eq_u32 vcc, 0, v%d" % q16)
            a.I("\n".join(self.hi_lo(ACC + 60, src, ACC + 61)))
            a.I("v_cndmask_b32 v%d, 0, v%d, vcc" % (ACC + 60, ACC + 60))
            out("buffer_store_dword v%d, v%d, %s, %s offen sc1" % (ACC + 60, addr, WS, dCS))
        xload = "buffer_load_dword v31, v%d, %s, 0 offen sc1" % (XA, WS)
        def pub():
            self.a.vm_wait("x")
            self.pair_swap(XRES, X)
            self.publish(0)
            self.a.vm(xload)

        self.sdivmod(kp, cu, "s2", 24)
        a.I("s_sub_u32 %s, %s, 12\ns_cmp_lt_u32 s2, 96\ns_cselect_b32 %s, %s, %s\ns_cselect_b32 %s, %s, %s\ns_cselect_b32 %s, 3, 1\ns_lshl_b32 %s, %s, 10" %
            (sT0, sJ, cu, cu, sN, kp, kp, sT0, st, st, st))
        a.I("v_mad_u32_u24 v%d, v%d, %s, v%d" % (vA, kc, st, u0))
        a.I("s_lshl_b32 %s, %s, 2\ns_add_u32 %s, %s, %s\ns_lshl_b32 %s, %s, 5\ns_mul_i32 %s, %s, %s\ns_lshl_b32 %s, %s, 7\ns_add_u32 %s, %s, %s" %
            (so, kp, so, so, sW, so, so, so, so, st, sT1, cu, so, so, sT1))
        a.I("s_lshl_b32 %s, %s, 3\ns_sub_u32 %s, %s, 1024" % (so2, st, so2, so2))
        a.I("s_lshl_b32 s%d, %s, 9\ns_mov_b32 s%d, 0x20000\ns_cmp_lt_u32 s2, 96\ns_waitcnt lgkmcnt(0)" % (SRC_A + 2, st, SRC_A + 3))
        a.I("s_load_dword %s, s[4:5], %d" % (sNONCE, LY.EPOCH))
        a.I("s_cselect_b32 s%d, s66, s68\ns_cselect_b32 s%d, s67, s69\ns_and_b32 s%d, s%d, 0xffff" % (SRC_A, SRC_A + 1, SRC_A + 1, SRC_A + 1))
        tile_dma(SRC_A, vA, so, so2, 0, "fa")
        x_loads()
        common()
        a.I("s_and_b32 %s, %s, 7\ns_lshl_b32 %s, %s, 1\ns_lshr_b32 %s, %s, 1\ns_add_u32 %s, %s, %s" % (sT0, cu, sT0, sT0, sT1, sW, sT0, sT0, sT1))
        a.I("s_mul_i32 %s, %s, %d\ns_add_u32 %s, %s, %d" % (sT0, sT0, LY.WQ_STRIDE, sT0, sT0, LY.WQ))
        a.I("s_lshr_b32 %s, %s, 3\ns_lshl_b32 %s, %s, 1\ns_and_b32 %s, %s, 1\ns_add_u32 %s, %s, %s" % (sT1, cu, sT1, sT1, sT2, sW, sT1, sT1, sT2))
        lin(D4[0], sT0, [(kp, 24576), (sT1, 1024)])
        lin(dCS, sT0, [(kp, 128), (sT1, 512)])
        a.I("s_add_u32 %s, %s, 98304" % (dCS, dCS))
        lin(sT0, str(LY.WO), [(cu, LY.WO_STRIDE), (kp, 16384), (sW, 1024)])
        a.I("s_cmp_lt_u32 s2, 96\ns_cselect_b32 %s, %s, %s\ns_cselect_b32 %s, %s, 0x%x\ns_cselect_b32 %s, 6, 4\ns_cselect_b64 vcc, -1, 0" %
            (D4[0], D4[0], sT0, dCS, dCS, OOB, sT1))
        a.I("s_lshl_b32 %s, %s, 10" % (sT1, sT1))
        for k in range(1, 4): a.I("s_add_u32 %s, %s, %s" % (D4[k], D4[k - 1], sT1))
        a.I("v_lshlrev_b32 v%d, 9, v%d\nv_sub_u32 v%d, v%d, v%d\nv_add_u32 v%d, 512, v%d\nv_add_u32 v%d, 2048, v%d" % (u0, g, TD, TD, u0, TA1, TA0, u0, TD))
        a.I("v_cndmask_b32 v%d, v%d, v%d, vcc\nv_cndmask_b32 v%d, v%d, v%d, vcc" % (TA0, TD, TA0, TA1, u0, TA1))
        self.stamp("p")
        a.vm_wait("fa")
        a.I("s_barrier")
        self.stamp("p")
        tile_out(ACC, TA0, TA1, 0, 0, lambda sp: (D4[sp], 0), ACC + 48)
        cs_out(ACC + 48, LINE)
        pub()
        self.stamp("p")
        if not OPT["near"]: a.I("L_join:")
        nst = self.nstamp
        self.a = b = self.follower = Asm()
        b.I("L_follow:\ns_sub_u32 %s, s2, 128" % st)
        self.sdivmod(kp, cu, st, 28)
        b.I("v_mul_u32_u24 v%d, 3584, v%d\nv_add_u32 v%d, v%d, v%d\nv_lshl_add_u32 v%d, v%d, 10, v%d" % (vA, kc, vA, vA, u0, vD, kc, u0))
        lin(so, "0", [(kp, 128 * 3584), (sW, 32 * 3584), (cu, 128)])
        lin(so2, "0", [(sJ, 131072), (sW, 32768), (sN, 128)])
        b.I("s_waitcnt lgkmcnt(0)\ns_load_dword %s, s[4:5], %d" % (sNONCE, LY.EPOCH))
        b.I("s_mov_b32 s6, %s" % so)
        steps = dict(g=lambda: tile_dma(SRC_G, vA, "s6", str(8 * 3584 - 1024), 0, "fg"), u=lambda: tile_dma(SRC_U, vA, "s6", str(8 * 3584 - 1024), 16384, "fu"),
                     d=lambda: tile_dma(SRC_D, vD, so2, str(7 * 1024), 32768, "fd"), x=x_loads, c=common, p=pub, w=b.vm_drain)
        self.srd(SRC_G, "s72", "s73", 512 * 3584)
        self.srd(SRC_U, "s74", "s75", 512 * 3584)
        self.srd(SRC_D, "s76", "s77", 1792 * 1024)
        for ch in OPT["follow"]: steps[ch]()
        lin(dD, str(LY.WD), [(sN, LY.WD_STRIDE), (sJ, 16384), (sW, 1024)])
        b.I("s_lshl_b32 %s, %s, 2\ns_add_u32 %s, %s, %s" % (cu, cu, cu, cu, sW))
        self.sdivmod(sT0, sT1, cu, 7)
        lin(dCS, str(LY.WG), [(sT0, LY.WG_STRIDE)])
        b.I("s_sub_u32 %s, 6, %s\n%s %s, 0\ns_cselect_b32 %s, %s, %s" % (sT2, sT1, BIT, sT0, sT1, sT1, sT2))
        S0, TL = GS0, 16 - GS0
        lin(so, dCS, [(kp, 56 * 1024), (sT1, 2048)])
        lin(dCS, dCS, [(sT1, (2 * TL + 1) * 1024)])
        lin(so2, dCS, [(kp, 8192)])
        for k in range(4):
            b.I("s_add_u32 %s, %s, %d\ns_add_u32 %s, %s, %d\ns_cmp_lt_u32 %s, %d\ns_cselect_b32 %s, %s, %s" %
                (sT0, so, 14 * 1024 * k, sT1, so2, (12 * S0 + 2 * k) * 1024, kp, (S0 - k + 3) // 4, D4[k], sT0, sT1))
        lin(dCS, dCS, [(kp, 128)])
        b.I("s_add_u32 %s, %s, %d\ns_cmp_lt_u32 s2, 240" % (dCS, dCS, (14 * S0 + 2 * TL) * 1024))
        for r_ in D4 + [dCS, dD]: b.I("s_cselect_b32 %s, %s, 0x%x" % (r_, r_, OOB))
        b.I("v_mul_u32_u24 v%d, 384, v%d\nv_add_u32 v%d, v%d, v%d" % (ACC + 62, hh, ACC + 62, ACC + 62, vFL))
        if OPT["dfirst"]:
            E4 = ["s37", "s38", "s39", dD]
            for k in range(4): b.I("s_add_u32 %s, %s, %d" % (E4[k], dD, 4096 * k))
            lin(so, str(LY.FB), [("s2", 128)])
            b.I("s_cmp_eq_u32 %s, 0\ns_cselect_b32 %s, %s, 0x%x\nv_mov_b32 v30, %s" % (sW, so, so, OOB, sNONCE))
            def d_flag():
                b.vm_wait_n(dseq)
                b.I("s_barrier")
                b.vm("buffer_store_dword v30, v%d, %s, %s offen sc1" % (LINE, WS, so))
            self.stamp("p")
            b.vm_wait("fd")
            b.I("s_barrier")
            tile_out(ACC + 32, TD, TD, 512, 32768, lambda sp: (E4[sp], 0), None)
            dseq = b.vm_n
            for ch in OPT["follow2"].strip("-"): steps[ch]()
            self.stamp("p")
            if OPT["dfirst"] == 1: d_flag()
            b.vm_wait("fg"); b.vm_wait("fu")
            b.I("s_barrier")
            tile_out(ACC, TA0, TA0, 512, 0, lambda sp: (D4[sp], 0), ACC + 48)
            if OPT["dfirst"] == 2: d_flag()
            tile_out(ACC + 16, TA0, TA0, 512, 16384, lambda sp: (D4[sp], 1024), ACC + 52)
            b.I("v_cmp_gt_u32 vcc, 32, v0\nv_cndmask_b32 v%d, v%d, v%d, vcc" % (ACC + 48, ACC + 52, ACC + 48))
            cs_out(ACC + 48, ACC + 62)
            if "p" not in OPT["follow"] + OPT["follow2"]: pub()
            self.stamp("p")
        else:
            if OPT["st_at"] or OPT["st_hold"] == 2: held = []
            self.stamp("p")
            b.vm_wait("fu")
            b.I("s_barrier")
            self.stamp("p")
            tile_out(ACC, TA0, TA0, 512, 0, lambda sp: (D4[sp], 0), ACC + 48)
            if OPT["st_hold"] == 1: held = []
            tile_out(ACC + 16, TA0, TA0, 512, 16384, lambda sp: (D4[sp], 1024), ACC + 52)
            for k in range(4): out("s_add_u32 %s, %s, %d" % (D4[k], dD, 4096 * k))
            b.I("v_cmp_gt_u32 vcc, 32, v0\nv_cndmask_b32 v%d, v%d, v%d, vcc" % (ACC + 48, ACC + 52, ACC + 48))
            cs_out(ACC + 48, ACC + 62)
            if OPT["st_hold"] and "p" not in OPT["follow"]: pub()
            b.vm_wait("fd")
            if OPT["st_hold"]:
                pend, held = held, None
                for text in pend: out(text)
            b.I("s_barrier")
            tile_out(ACC + 32, TD, TD, 512, 32768, lambda sp: (D4[sp], 0), None)
            if "p" not in OPT["follow"] and not OPT["st_hold"]: pub()
            self.stamp("p")
        assert nst == self.nstamp
        if OPT["near"]:
            a.I("s_branch L_join\n" + "\n".join(b.lines) + "\nL_join:")
        else:
            b.I("s_branch L_join")
            self.cold.append("\n".join(b.lines))
        self.a = a

        a.vm_tag["join"] = a.vm_n
        lin(sXLD, sGB, [(sW, 32768)])
        lin(sOST, sXLD, [(sJ, 2048)])
        def touch_list():
            a.I("v_lshrrev_b32 v%d, %d, v0\nv_lshlrev_b32 v%d, 7, v%d" % (u1, 1 if OPT["xdir"] else 2, u1, u1))
            if OPT["xdir"]:
                a.I("s_add_u32 %s, %s, %d\nv_and_b32 v%d, 128, v%d\nv_add_u32 v%d, %s, v%d\nv_bfe_u32 v%d, v0, 2, 3" % (sT0, sOST, LY.OB[0], u0, u1, u1, sT0, u1, CSW))
                a.I("s_add_u32 %s, %s, %d\nv_lshl_add_u32 v%d, v%d, 9, v%d\nv_cmp_gt_u32 vcc, 32, v0\nv_add_u32 v%d, %s, v%d" %
                    (sT0, sXST, LY.XB[1], u0, CSW, u0, u0, sT0, u0))
                if "x" not in OPT["t_set"]: a.I("v_mov_b32 v%d, 0x%x" % (u0, OOB))
                if "o" not in OPT["t_set"]: a.I("v_mov_b32 v%d, 0x%x" % (u1, OOB))
                a.I("v_cndmask_b32 v%d, v%d, v%d, vcc" % (u1, u0, u1))
            put(aTO)
        if OPT["t_pos"] == -2:
            touch_list()
            a.vm("buffer_load_dword a255, v%d, %s, 0 offen sc1" % (u1, WS))
        def sibling():
            touch_list()
            a.I("s_cmp_lt_u32 s2, 128\ns_cselect_b32 %s, 0x%x, 0\nv_add_u32 v%d, %s, v%d\nv_subrev_u32 v%d, 0x%x, v%d" % (sT0, OOB, u1, sT0, u1, u0, LY.ACT_STRIDE, u1)); put(aTO)
            a.vm("buffer_load_dword a255, v%d, %s, 0 offen sc1" % (u0, WS))
        if OPT["sib"] == 1: sibling()
        sa = "s[%d:%d]" % (SRC_A, SRC_A + 3)
        xd, swaps = [], []
        vX, sXD, sHD, sXL = 21, "s6", "s14", sLW4
        self.srd(SRC_A, "s64", "s65", 2048 * 1024)
        a.I("v_xor_b32 v%d, v%d, v%d\nv_lshlrev_b32 v%d, 4, v%d\nv_lshl_add_u32 v%d, v%d, 11, v%d" % (vX, t8, kc, vX, vX, vX, kc, vX))
        lin(sHD, "0", [(sN, 262144), (sP, 1024)])
        lin(sXD, sHD, [(sW, 65536)])
        lin(sHD, sHD, [(sW, 256)])
        a.I("s_sub_u32 %s, %s, 16384\ns_cmp_eq_u32 %s, 0\ns_cselect_b32 %s, 0x%x, %s" % (sHD, sHD, sN, sHD, OOB, sHD))
        a.I("v_xor_b32 v16, v%d, v%d\nv_lshlrev_b32 v16, 4, v16\nv_lshl_add_u32 v%d, v%d, 7, v16\nv_add_u32 v%d, %d, v%d" % (t8, g, u1, t8, u1, L_HALO, u1)); put(aSH)
        a.I("v_lshl_add_u32 v16, v%d, 7, v16\nv_add_u32 v16, %s, v16\nv_xor_b32 v17, 64, v16\nv_add_u32 v18, 0x10000, v16\nv_add_u32 v19, 0x10000, v17" % (tok, sXL))
        for m in range(8):
            for k in range(4):
                xd.append([("i", "s_add_u32 m0, %s, %d\ns_add_u32 s15, %s, %d" % (sXL, m * 16384, sXD, k * 16384 + m * 128 - k * 1024)),
                           ("vm", "buffer_load_dwordx4 v%d, %s, s15 offen offset:%d lds" % (vX, sa, k * 1024), ("xd", m, k))])
            swaps.append(("wvm", ("xd", m, 3)))
            swaps += [("ds", "ds_read_b128 %s, v%d offset:%d" % (vr(X + 8 * (2 * m + h_) + 4 * b_, 4), 16 + h_ + 2 * (m // 4), (m % 4) * 16384 + b_ * 2048)) for b_ in range(2) for h_ in range(2)]
        swaps.append(("dsdrain",))
        self.halo0 = [[("set", "m0", "s_add_u32 m0, %s, %d" % (sLW2, L_HALO + 1024 * k)), ("i", "s_add_u32 s15, %s, %d" % (sHD, 128 * k)),
                       ("vm", "buffer_load_dwordx4 v%d, %s, s15 offen lds" % (vX, sa), "halo" if k else None)] for k in range(2)]
        def flags():
            self.stamp("p")
            a.I("v_mov_b32 v30, %s" % sNONCE)
            a.vm_wait("join")
            a.I("s_barrier")
            if OPT["st_at"]:
                a.I("s_cmp_lt_u32 s2, 128\ns_cselect_b32 %s, %s, 0x%x\ns_cselect_b32 %s, 0x%x, %s" % (sT0, sFBO, OOB, sFBO, OOB, sFBO))
            a.vm("buffer_store_dword v30, v%d, %s, %s offen sc1" % (LINE, WS, sT0 if OPT["st_at"] else sFBO))
            spin, back = a.label("xspin"), a.label("xback")
            test = "v_xor_b32 v29, %s, v31\nv_cmp_lt_u32 vcc, 15, v29\ns_and_b64 vcc, vcc, exec" % sNONCE
            a.I("%s\ns_cbranch_scc1 %s\n%s:" % (test, spin, back))
            self.cold.append("%s:\ns_mov_b32 %s, 0x40000\n%s_l:\n%s\ns_sub_u32 %s, %s, 1\ns_cbranch_scc1 L_main_done\ns_waitcnt vmcnt(0)\n%s\ns_cbranch_scc1 %s_l\ns_branch %s"
                             % (spin, sSPIN, spin, xload, sSPIN, sSPIN, test, spin, back))
            a.I("v_cmp_ne_u32 vcc, v%d, v31\ns_cmp_lg_u64 vcc, 0\ns_cselect_b32 %s, 1, 0\ns_mov_b32 s0, %s\ns_mov_b32 s1, 0" % (XV, sSLOW, sSLOW))
            self.signal(0, "pub", 0, OPT["h_def"] & 1)
            self.stamp("p")
        def carry(ops, emit, per, lag):
            nonlocal swaps
            n0 = len(a.lines)
            self.c_min = n0
            emit()
            body = a.lines[n0:]; del a.lines[n0:]
            per = max(per, -(-(self.c_min - n0) // len(ops)))
            pos = 0
            for g_ in ops:
                a.run_all(g_)
                stop = min(len(body), pos + per)
                while stop < len(body) and self.scc_live(body, stop): stop += 1
                a.I("\n".join(body[pos:stop])); pos = stop
                m, k = g_[-1][2][1:]
                if len(swaps) > 1 and 4 * swaps[0][1][1] + 3 + lag <= 4 * m + k:
                    a.run_all(swaps[:5]); swaps = swaps[5:]
            return "\n".join(body[pos:])
        def consts1():
            a.I("v_cmp_ne_u32 vcc, 0, v0\nv_mov_b32 v%d, 0x%x\nv_accvgpr_write_b32 a%d, v%d\nv_cndmask_b32 v%d, 0, v%d, vcc" % (vF1, OOB, aLINE, LINE, vF1, vF1))
            lin(sHFL, str(LY.HFL), [(sG, 1024)])
            lin(sHDFL, sHFL, [(sC, 128)])
            lin(sFBO, str(LY.FA), [("s2", 128)])
            a.I("s_add_u32 %s, %s, 2048\ns_add_u32 %s, %s, 0x%x\ns_lshl_b32 %s, %s, 11" % (sHDFL, sHDFL, sHDST, sGB, 2 * LY.ACT_STRIDE, sLW2, sW))
            a.I("s_cmp_eq_u32 %s, 0\ns_cselect_b32 %s, %s, 0x%x" % (sW, sFBO, sFBO, OOB))
            a.I("s_lshl_b32 %s, %s, 2\ns_add_u32 %s, %s, %s\ns_cmp_eq_u32 %s, 7\ns_cselect_b32 %s, 0, %s\ns_cmp_eq_u32 %s, 7" % (sT0, sR, sT0, sT0, sW, sN, sT0, sT0, sT0))
            a.I("s_cselect_b32 %s, %s, 0x%x" % (sHDST, sHDST, OOB))
            a.I("v_bfe_u32 v%d, v0, 3, 1\nv_xor_b32 v%d, 1, v%d\nv_lshlrev_b32 v%d, 29, v%d" % (vA, vA, vA, vA, vA))
            lin(sT0, "8192", [(sC, 128)])
            a.I("v_lshl_add_u32 v%d, v%d, 3, %s\nv_lshl_add_u32 v%d, v%d, 28, v%d" % (u1, tok, sT0, u1, g, u1)); put(aHSS)
            a.I("v_lshlrev_b32 v%d, 4, v%d\nv_lshl_add_u32 v%d, v%d, 7, v%d\nv_add_u32 v%d, %d, v%d" % (u0, t8, u0, g, u0, u1, L_HALO, u0)); put(aHX)
            a.I("s_lshl_b32 %s, %s, 10\nv_add3_u32 v%d, v%d, v%d, %s" % (sT0, sC, u1, u0, vA, sT0)); put(aHST)
        def consts2():
            a.I("s_lshr_b32 %s, %s, 1\ns_lshl_b32 %s, %s, 5\ns_and_b32 %s, %s, 1\ns_lshl_b32 %s, %s, 1\ns_add_u32 %s, %s, %s" % (sT0, sW, sT0, sT0, sT1, sW, sT1, sT1, sT0, sT0, sT1))
            a.I("s_mov_b32 s40, 0x33333333\ns_mov_b32 s41, 0\ns_lshl_b64 s[40:41], s[40:41], %s" % sT0)
            a.I("s_lshl_b32 %s, %s, 1\ns_lshl_b32 %s, %s, 4\ns_add_u32 %s, %s, %s" % (sT0, sR, sT2, sW, sT0, sT0, sT2))
            a.I("s_mov_b32 s42, 0x3333\ns_mov_b32 s43, 0\ns_lshl_b64 s[42:43], s[42:43], %s" % sT0)
            a.I("s_lshr_b32 %s, %s, 1\ns_mul_i32 %s, %s, 24\ns_add_u32 %s, %s, %s\nv_lshl_add_u32 v%d, v%d, 3, %s" % (sT0, sJ, sT1, sW, sT0, sT0, sT1, u0, kc, sT0))
            a.I("s_lshl_b32 %s, %s, 3\ns_add_u32 %s, %s, %s\ns_add_u32 %s, %s, 96\nv_mov_b32 v%d, %s\nv_cmp_gt_u32 vcc, 24, v0\nv_cndmask_b32 v%d, v%d, v%d, vcc" %
                (sT0, sW, sT0, sT0, sC, sT0, sT0, u1, sT0, u0, u1, u0))
            a.I("v_lshlrev_b32 v%d, 7, v%d\nv_add_u32 v%d, %d, v%d" % (u0, u0, FAV, LY.FA, u0))
            self.c_min = len(a.lines)
            a.I("s_lshr_b32 %s, s2, 3\ns_lshl_b32 %s, %s, 2\ns_add_u32 %s, %s, %s\ns_lshl_b32 %s, %s, 7" % (sCPO, sCPO, sCPO, sCPO, sCPO, sW, sCPO, sCPO))
            lin(sHST, sGB, [(sW, 114688), (sJ, 7168)])
            lin(sSLD, sGB, [(sW, 2048)])
            lin(sOL, sXST, [(sC, -4096)])
            a.I(BIT + " %s, 0\ns_cselect_b32 %s, 1, -1\ns_cselect_b32 %s, 0, 6144\ns_lshl_b32 %s, %s, 10\ns_add_u32 %s, %s, %s" % (sJ, sHSTEP, sT0, sHSTEP, sHSTEP, sHST, sHST, sT0))
            a.I("s_lshr_b32 %s, %s, 1\ns_lshl_b32 %s, %s, 1\ns_add_u32 %s, %s, %s\ns_lshl_b32 s66, 0x11111111, %s\ns_mov_b32 s67, s66" % (sT0, sW, sT1, sR, sT0, sT0, sT1, sT0))
            lin(sHLD[3], sGB, [(sR, 229376), (sW, 28672)])
            for i in range(4):
                a.I("s_add_u32 %s, %s, %d\ns_and_b32 %s, %s, 3\ns_lshr_b32 %s, %s, 1\ns_and_b32 %s, %s, 1" % (sTA, sW, i + 1, sTA, sTA, sT0, sTA, sT1, sTA))
                lin(sHLD[i], sHLD[3], [(sT0, 114688), (sT1, 256)])
                if i < 3: lin(sXW[i], str(i * 4096), [(sTA, 12288)])
            lin(sXR, "0", [(sW, 12288)])
            lin(sWQ, str(LY.WQ), [(sJ, LY.WQ_STRIDE * (1 - OPT["hitw"]))])
            lin(sWG, str(LY.WG), [(sJ, LY.WG_STRIDE * (1 - OPT["hitw"]))])
            lin(sWO, str(LY.WO), [(sC, LY.WO_STRIDE * (1 - OPT["hitw"])), (sW, 4096)])
            lin(sWD, str(LY.WD), [(sC, LY.WD_STRIDE * (1 - OPT["hitw"])), (sW, 57344)])
            lin(sTAB, str(L_TAB), [(sW, 512)])
            a.I("s_lshl_b32 %s, %s, 10" % (sLW, sW))
            a.I("s_add_u32 %s, %s, %s\ns_add_u32 %s, %s, %s" % (sWQ4, sWQ, sLW4, sWG4, sWG, sLW4))
            a.I("s_cmp_eq_u32 %s, 0\ns_cselect_b32 %s, 0x%x, %s\ns_cselect_b64 s[54:55], 0, -1" % (sN, sHALO, OOB, sGB))
            a.I("s_add_u32 %s, %s, %s\ns_add_u32 %s, %s, %s\ns_add_u32 %s, %s, %s" % (sHALO2, sHALO, sLW2, sWQ, sWQ, sLW, sWG, sWG, sLW2))
            a.I("v_add_u32 v%d, 0x10000, v%d\nv_add_u32 v%d, 0x20000, v%d" % (vL16b, vL16, vL16c, vL16))
            if OPT["t_pos"] != -2 and not OPT["sib"]: touch_list()
            a.I("v_lshlrev_b32 v%d, 7, v%d\nv_lshl_add_u32 v%d, v%d, 5, v%d\nv_lshl_add_u32 v%d, v%d, 1, v%d\nv_lshlrev_b32 v%d, 3, v0" % (u0, rr, u0, g, u0, u0, cc, u0, u1))
            a.I("s_cmp_ge_u32 %s, 2\ns_cselect_b64 vcc, -1, 0\ns_cselect_b32 %s, 2, 8\nv_cndmask_b32 v%d, v%d, v%d, vcc" % (sW, sT1, u1, u0, u1))
            a.I("s_lshr_b32 %s, %s, 1\ns_add_u32 %s, %s, %d\nv_add_u32 v%d, %s, v%d" % (sT0, sLW, sT0, sT0, L_KV, u1, sT0, u1)); put(aHWR)
            a.I("v_mov_b32 v%d, %s" % (u1, sT1)); put(aHWS)
            a.I("s_mul_i32 %s, %s, 7\ns_add_u32 %s, %s, 6\ns_lshr_b32 %s, %s, 2\ns_lshr_b32 %s, %s, 2" % (sT0, sJ, sT1, sT0, sT0, sT0, sT1, sT1))
            a.I("v_add_u32 v%d, %s, v%d\nv_min_u32 v%d, %s, v%d\ns_mul_i32 %s, %s, 28\nv_add_u32 v%d, %s, v%d" % (u0, sT0, kc, u0, sT1, u0, sT0, sW, u0, sT0, u0))
            a.I("s_add_u32 %s, %s, 112\nv_cmp_gt_u32 vcc, 24, v0\nv_mov_b32 v%d, %s\nv_cndmask_b32 v%d, v%d, v%d, vcc" % (sT0, sJ, u1, sT0, u0, u1, u0))
            a.I("s_mul_i32 %s, %s, 7\ns_lshr_b32 %s, %s, 1\nv_and_b32 v%d, 3, v%d\nv_add_u32 v%d, %s, v%d\nv_lshl_add_u32 v%d, v%d, 3, %s" % (sT0, sW, sT0, sT0, u1, kc, u1, sT0, u1, u1, u1, sC))
            if OPT["dfirst"]:
                a.I("v_lshlrev_b32 v%d, 7, v%d\nv_add_u32 v%d, %d, v%d" % (u1, u1, u1, LY.FB + 128 * 128, u1)); put(aSG)
            else:
                a.I("v_cmp_gt_u32 vcc, 32, v0\nv_cndmask_b32 v%d, v%d, v%d, vcc" % (u0, u1, u0))
            a.I("v_lshlrev_b32 v%d, 7, v%d\nv_add_u32 v%d, %d, v%d" % (u0, u0, u1, LY.FA + 128 * 128, u0)); put(aFB)
            a.I("s_getpc_b64 %s\nL_pc2:\ns_sub_u32 s4, s4, L_pc2-L_pc\ns_subb_u32 s5, s5, 0" % sPC)
            NG, Z, M0_, M1_ = rr, cc, q16, hh
            a.I("s_or_b32 %s, %s, %s\ns_cmp_eq_u32 %s, 0\ns_cselect_b64 s[56:57], -1, 0" % (sT0, sN, sW, sT0))
            a.I("v_mov_b32 v%d, %s\nv_mov_b32 v%d, 0\nv_lshlrev_b32 v%d, 2, v%d\nv_sub_u32 v%d, v%d, v%d" % (NG, NEG, Z, vA, g, vA, tok, vA))
            for r in range(4):
                a.I("v_subrev_u32 v%d, %d, v%d\nv_mov_b32 v%d, %s" % (u0, r, vA, M0_, "0xffff0000" if r & 1 else "0xffff"))
                a.I("v_cmp_gt_u32 vcc, 8, v%d\nv_cmp_gt_i32 s[58:59], -8, v%d\nv_cmp_le_i32 s[60:61], 0, v%d" % (u0, u0, u0))
                a.I("v_cndmask_b32 v%d, v%d, v%d, vcc" % (u1, NG, Z)); put(aBC + r)
                a.I("v_cndmask_b32 v%d, v%d, v%d, s[58:59]" % (u1, NG, Z)); put(aBP + r)
                a.I("v_cndmask_b32 v%d, v%d, v%d, s[56:57]" % (u1, u1, NG)); put(aBP0 + r)
                if r & 1:
                    a.I("v_cndmask_b32 v%d, v%d, v%d, s[60:61]\nv_or_b32 v%d, v%d, v%d" % (u1, Z, M0_, u1, u1, M1_)); put(aMC + r // 2)
                else:
                    a.I("v_cndmask_b32 v%d, v%d, v%d, s[60:61]" % (M1_, Z, M0_))
        n1, n2, n3 = OPT["xd1"], 32 - OPT["fa_ld"], 32 - OPT["fa_ck"]
        assert n1 <= 28
        self.late_flag = []
        if OPT["st_at"]:
            assert OPT["st_at"] < n2
            self.cold.append("L_held:\n%s\ns_branch L_heldback" % "\n".join(held))
            xd[OPT["st_at"]].insert(0, ("i", "s_cmp_ge_u32 s2, 128\ns_cbranch_scc1 L_held\nL_heldback:"))
            self.late_flag = [[("vm", "buffer_store_dword v30, v%d, %s, %s offen sc1" % (LINE, WS, sFBO))]]
        a.I(carry(xd[:n1], consts1, OPT["xd_gap"], 99))
        flags()
        rest = carry(xd[n1:n2], consts2, OPT["xd_per"], OPT["xd_lag"])
        self.stamp("p")
        l_fa, g_fa = self.late_check("buffer_load_dword v%d, v%d, %s, 0 offen sc1" % (PB, FAV, WS), PB, "exec", "fa2")
        l_x, g_x = self.check_ops(0, sMA, PA, "x2")
        if OPT["h_def"] & 1:
            assert "s[58:59]" not in rest or "v_cmp_gt_i32 s[58:59]" in rest.split("s[58:59]")[0] + "s[58:59]"
            self.halo_flag()
        a.run_all(l_x + l_fa)
        a.I(carry(xd[n2:n3], lambda: a.I(rest), OPT["xd_per"], OPT["xd_lag"]) if n3 > n2 else rest)
        self.raw_reads = []
        if OPT["rawd"]:
            a.I("v_lshrrev_b32 v20, 3, v0\nv_and_b32 v24, 0x70, v%d\nv_lshl_add_u32 v20, v20, 10, v24" % vL16)
            a.I("v_lshrrev_b32 v24, 4, v0\nv_bfe_u32 v25, v0, 2, 2\nv_lshl_add_u32 v24, v24, 3, v25\nv_and_b32 v25, 0x30, v%d\nv_lshl_add_u32 v24, v24, 7, v25" % vL16)
            a.I("s_lshl_b32 %s, %s, 1\ns_add_u32 %s, %s, 131072\nv_add_u32 v24, %s, v24" % (sT1, sLW4, sT1, sT1, sT1))
            lin(sT0, "0", [(sW, 448 * 1024), (sC, 128)])
            for n_, s_ in enumerate(DN_ORD[:OPT["rawd"]]):
                a.I("s_add_u32 m0, %s, %d" % (sT1, 4096 * n_))
                for k in range(4):
                    a.I("s_add_u32 s15, %s, %d" % (sT0, s_ * 32768 + k * 7168))
                    a.vm("buffer_load_dwordx4 v20, s[%d:%d], s15 offen offset:%d lds" % (SRC_D, SRC_D + 3, k * 1024), ("xd", "raw", n_, k))
                self.raw_reads.append(("wvm", ("xd", "raw", n_, 3)))
                self.raw_reads += [("ds", "ds_read_b64_tr_b16 %s, v24 offset:%d" % (ar(16 * s_ + 4 * cb + 2 * hf, 2), 4096 * n_ + 64 * (cb // 2) + 8 * (cb % 2) + 512 * hf))
                                   for cb in range(4) for hf in range(2)]
        if OPT["t_pos"] == -1: a.run_all(self.flat(self.touch(aTO, "0", 0, 20)))
        if OPT["sib"] == 2: sibling()
        while len(swaps) > 1 and swaps[0][1][1] < max(3, min(OPT["x_pre"], n3 // 4)):
            a.run_all(swaps[:5]); swaps = swaps[5:]
        self.page_break(1)
        a.run_all(g_fa + g_x)
        a.ds_drain()
        self.stamp("p")
        self.x_rest, self.x_reads = xd[n3:], swaps

    def qkv(self, ps):
        a = self.a
        xi = 2 * ps
        late = self.wq_late(ps)
        lateb = ps == 0 and "b" not in OPT["order"] and not OPT["lead"]
        bst = []
        wql = [g for ch in late for g in self.wq_chunk(ch)]
        split = ps == 0 and OPT["q0_split"]
        HX, HW, HW2, HF, NM, RL, CQ, RR = 16, 17, 18, 19, 20, 26, 28, ACC + 52
        def setup():
            a.I(self.getc(HX, aHX))
            a.I("s_add_u32 %s, %s, 2048\nv_add_u32 v%d, %s, v%d\nv_add_u32 v%d, 0xc000, v%d\nv_and_b32 v%d, 0x380, v%d" % (sT2, sLW, HW, sT2, vL16, HW2, HW, CQ, vL16))
            if EB:
                self.early_barrier()
                for f in range(6): a.ds("ds_read_b128 %s, %s" % (vr(F + 4 * f, 4), ldsaddr(f * 1024)), ("f", 0, f))
        EB = ps == 1 and OPT["eb"] & 2
        if ps == 0 and OPT["xdir"]:
            a.forget(("fb", "xd"))
            if not OPT["lead"]: setup()
        else:
            self.poll(6 * ps, sMA, self.fav if ps == 0 and not split else None, setup)
        self.stamp()
        xl = self.reg_loads([vr(X + 8 * s + 4 * b, 4) for s in range(16) for b in range(2)], [sXLD] * 32,
                            [LY.XB[xi] + s * 2048 + b * 256 for s in range(16) for b in range(2)], sTA, vQ, "x")
        UP = OPT["q_up"] if ps else OPT["q0_up"]
        xdir = ps == 0 and OPT["xdir"]
        if xdir: xl = []
        if ps == 0:
            late = late[1:]
            n = 4 + OPT["q0_w"]
            first = wql[:4] + xl[:UP] + wql[4:n]
            if split:
                l_fa, g_fa = self.late_check("buffer_load_dword v%d, v%d, %s, 0 offen sc1" % (HF, self.fav, WS), HF, "exec", "fa")
                n1 = OPT["q0_n1"]
                first = xl[:n1] + [l_fa] + xl[n1:UP] + [g_fa + [("i", "s_barrier")]] + wql[:n]
            else:
                first = xl[:2] + [[("i", "s_barrier")]] + wql[:4] + xl[2:UP] + wql[4:n] + (self.halo0 if xdir and not OPT["lead"] else [])
                if OPT["lead"]:
                    assert n <= 12
                    k = 1 + OPT["q0_x"]
                    first[k:k] = [g + [("call", lambda: a.state.pop("m0", None))] for g in self.x_rest]
                    first[OPT["lf_at"]:OPT["lf_at"]] = self.late_flag
                    if OPT["xr_mix"] and not self.x_rest:
                        for k in range(OPT["xr_mix"], len(first)):
                            take = min(3, len(self.x_reads) - 1)
                            first[k] = first[k] + self.x_reads[:take]; self.x_reads = self.x_reads[take:]
            wql = wql[n:]
            if OPT["b_pos"] >= 2:
                k = OPT["b_pos"] - 2
                a.run_all(self.flat(first[:k])); first = first[k:]
                self.b_loads(); a.state.pop("m0", None)
            inb = xdir and OPT["inb"]
            if inb:
                bpre, brd, bst2 = self.second_ops()
                if OPT["inb_at"]:
                    k = OPT["inb_at"] + 1
                    a.run_all(self.flat(first[:k])); first = first[k:]
                    self.b_loads(); a.state.pop("m0", None)
                a.I(bpre)
            elif lateb:
                k = len(first) - OPT["q0_b"]
                a.run_all(self.flat(first[:k])); first = first[k:]
                if OPT["b_pos"] >= 2 or xdir: a.vm_wait(("fb", 24576))
                a.I("s_barrier")
                bst = self.second_unit()
            a.run_all(self.flat(first))
        else:
            a.run_all(self.flat(xl[:UP]))
            if OPT["h_def"] & 2: self.halo_flag()
            if OPT["h_late"]: hflag = self.halo_late(1)
        if ps == 0:
            if OPT["lead"]:
                a.run_all(self.x_reads[:-1] + self.raw_reads + self.x_reads[-1:]); setup()
            a.vm_wait(("wq", 0))
            if inb and OPT["inb_ch"] == 0: a.vm_wait(("fb", 24576))
        if not EB: a.I("s_barrier")
        sl = Slots()
        sl.mpatience, sl.patience = OPT["q_mp%d" % ps], OPT["q_vp"]
        use = {}
        acc = lambda blk, b: vr(ACC + 8 * blk + 4 * b, 4)
        hbuf = lambda t: (F + 24, X)[t % 2]
        HR = OPT["hreg"]
        hwreg = (lambda t: X + 32 + 4 * t) if HR else hbuf
        T0 = X if HR else X + 34
        step0 = {}
        H0 = OPT["xd_h0"] if xdir else OPT["q_h0"]
        hpos = {}
        for t in range(16):
            p = (t * 6 * (16 - H0)) // 16 + 1
            hpos.setdefault((H0 + p // 6, p % 6), []).append(t)
        Y, Z = X + 8, X + 96
        BC, BP, BP0, MC, ONES, KW, CSA = Y, Y + 4, Y + 8, Y + 12, Y + 14, Y + 16, Y + 21
        def halo_mfma(t):
            d = acc(6, 0)
            if t < 16:
                i = sl.add("v_mfma_f32_16x16x32_bf16 %s, %s, %s, %s" % (d, vr(hbuf(t) + 4, 4), vr(hwreg(t), 4), "0" if t == 0 else d), [("wds", ("hw", t)), ("wds", ("hx", t))])
            else:
                i = sl.add("v_mfma_f32_16x16x16_bf16 %s, %s, %s, %s" % (d, vr(NM + 4, 2), vr(hbuf(t), 2), d), [("wds", ("hw", t))])
            use[("h", t)] = i
        for s in range(17):
            step0[s] = sl.n()
            if s == 16: halo_mfma(16)
            for f in range(6):
                for b0 in range(2):
                    b = b0 ^ (f & OPT["snake"])
                    pre_ = []
                    if b0 == 0: pre_.append(("wds", ("f", s, f // OPT["q_grp"] * OPT["q_grp"] + OPT["q_grp"] - 1)))
                    if f == 0 and s < 16 and not xdir: pre_.append(("wvm", ("x", 2 * s + (b if s == 0 else 1))))
                    w = vr(F + 4 * f, 4 if s < 16 else 2)
                    x = vr(X + 8 * s + 4 * b, 4) if s < 16 else vr(NM + 2 * b, 2)
                    A, B = (w, x) if f < 4 else (x, w)
                    d = acc(f, b)
                    mn = "v_mfma_f32_16x16x32_bf16" if s < 16 else "v_mfma_f32_16x16x16_bf16"
                    use[(s, f)] = sl.add("%s %s, %s, %s, %s" % (mn, d, A, B, "0" if s == 0 else d), pre_)
                for t in hpos.get((s, f), ()): halo_mfma(t)
        reads = []
        for s in range(17):
            for f in range(6):
                d = F + 4 * f
                if s < 16: t = "ds_read_b128 %s, %s" % (vr(d, 4), ldsaddr(s * 6144 + f * 1024))
                else: t = "ds_read2st64_b32 %s, v%d offset0:%d offset1:%d" % (vr(d, 2), CSA, 2 * f, 2 * f + 1)
                reads.append((use[(s - 1, f)] if s else -1, (6 * s + f) // 16, ("ds", t, ("f", s, f))))
        hbar = step0[H0 - 1] + 4
        for t in range(17):
            pos = use[("h", t - 2)] if t >= 2 else hbar + 2 + 2 * t
            if t < 16:
                reads.append((use[(max(5 + t // 2, t - 1), 1 + 3 * (t % 2))] if HR else pos, (6 * t + 5) // 16, ("ds", "ds_read_b128 %s, v%d offset:%d" % (vr(hwreg(t), 4), HW if t < 8 else HW2, (t % 8) * 6144), ("hw", t))))
                reads.append((pos + (1 if t >= 2 and not HR else 0), 0, ("ds", "ds_read_b128 %s, v%d offset:%d" % ((vr(hbuf(t) + 4, 4),) + ((T0 + t % 2, t // 2 * 1024) if xdir else (HX, t * 512))), ("hx", t))))
            else:
                reads.append((pos, 6, ("ds", "ds_read2st64_b32 %s, v%d offset0:4 offset1:5" % (vr(hbuf(t), 2), CSA + 1), ("hw", t))))
        sl.put("c", step0[4], [("i", "v_add_u32 v%d, 98304, v%d\ns_lshr_b32 %s, %s, 1\nv_add_u32 v%d, %s, v%d" % (CSA, vFL, sT2, sLW, CSA + 1, sT2, CSA)), ("mark", "csaddr")])
        sl.after(step0[14], ("need", "csaddr"))
        sl.pre[step0[16]].append(("wds", ("nm", 2)))
        chbar = {}
        for ch in late:
            ops = [("wvm", ("wq", ch)), ("i", "s_barrier")]
            p = chbar[ch] = min(p for p, c, _ in reads if c == ch)
            if ps == 0 and inb and ch == OPT["inb_ch"]: ops.insert(0, ("wvm", ("fb", 24576)))
            if lateb and ch == OPT["q0_fbch"]:
                ops.insert(0, ("wvm", "fbs"))
                assert p >= step0[5]
                sl.put("f", p + 1, [("i", "v_mov_b32 v%d, %s\n%s" % (X + 32, sNONCE, self.getc(X + 33, aLINE))),
                                    ("vm", "buffer_store_dword v%d, v%d, %s, %s offen sc1" % (X + 32, X + 33, WS, sFBO))])
            if xdir and ch == 5: ops.insert(0, ("wvm", ("wq", 6)))
            if xdir and ch == 3:
                assert p <= hbar
                ops.insert(0, ("wvm", "halo"))
            if xdir and ch == 6: del chbar[6]
            else: sl.after(p, *ops)
        if not xdir: sl.after(hbar, ("wvm", "halo"), ("i", "s_barrier"))
        if ps == 0 and inb:
            p = chbar.get(OPT["inb_ch"], -1) + 1
            sl.put("b", p, brd)
            for n_, g in enumerate(bst2): sl.put("b", p + OPT["inb_wait"] + n_ * OPT["inb_gap"], g)
            bfree = chbar[OPT["q0_fbch"]] + 2
        if xdir:
            assert H0 >= 7 and not OPT["diagpad"]
            sl.put("g", step0[5], [("i", self.getc(T0, aSH) + "\nv_xor_b32 v%d, 64, v%d" % (T0 + 1, T0)), ("mark", "hx0")])
            sl.after(hbar, ("need", "hx0"))
        for pos, _, rd in reads:
            if pos < 0:
                if not EB: a.run(rd)
            else: sl.after(pos, rd)
        l_hf, g_chk = self.late_check("buffer_load_dword v%d, v%d, %s, %s offen sc1" % (HF, CQ, WS, sT1), HF, sMH, "hf")
        g_hf = [("i", "s_add_u32 %s, %s, %d" % (sT1, sHFL, ps * 16384))] + l_hf
        g_hd = self.dma_chunk(sHALO2, LY.HX[ps], L_HALO, 2, "halo", " sc1")
        g_hs = [("i", "s_add_u32 %s, %s, %d\nv_and_b32 v%d, 7, v0\nv_lshl_add_u32 v%d, v%d, 3, v%d" % (sT1, sHALO, LY.HX[ps] + 8192 + 64, HF, HF, HF, CQ)),
                ("vm", "buffer_load_dwordx2 %s, v%d, %s, %s offen sc1" % (vr(RR + 8, 2), HF, WS, sT1), "st")]
        g_s0 = [("i", "s_add_u32 %s, %s, %d" % (sT0, sSLD, LY.SB[xi])), ("vm", "buffer_load_dwordx4 %s, v%d, %s, %s offen sc1" % (vr(RR, 4), vL16, WS, sT0))]
        g_s1 = [("vm", "buffer_load_dwordx4 %s, v%d, %s, %s offen offset:1024 sc1" % (vr(RR + 4, 4), vL16, WS, sT0))]
        wgq = []
        if HR:
            assert OPT["lead"]
            wbar = min(p for p in ([] if xdir else [hbar]) + list(chbar.values()) if p >= step0[8])
            sl.post[wbar].insert(0, ("wds", ("hw", 5)))
            if ps and self.digits("wg_q1"):
                w2 = step0[max(11, OPT["q_wbar"])]
                while sl.post[w2]: w2 += 1
                sl.after(w2, ("wds", ("hw", 10)), ("i", "s_barrier"))
                assert set(self.digits("wg_q1")) <= {0, 1}
                wgq = [(w2 + 2, g) for g in self.wgs("q", ps)]
        else:
            wbar = max(use[("h", 6)] + 2, step0[OPT["xd_wbar" if xdir else "q_wbar"]])
            while sl.post[wbar]: wbar += 1
            sl.after(wbar, ("i", "s_barrier"))
        wo = [((bfree if ps == 0 and inb else 0) if i < 2 else wbar + 2, g) for i in range(4) for g in self.wo_chunk(i) if not (ps and OPT["skipo"] and WO_SLOT[i] in self.digits("keepo"))]
        rest = xl[UP:]
        h1 = OPT["q_hf"] if ps else OPT["q0_hf"]
        h2 = h1 + OPT["q_chk"] - 2
        seq = rest[:h1] + [g_hf, g_s0, g_s1] + rest[h1:h2] + [g_chk] + g_hd + [g_hs] + rest[h2:]
        if ps and OPT["h_late"]: seq.insert(OPT["h_late"], hflag)
        if xdir:
            k1, k2 = OPT["xd_h1"], OPT["xd_h1"] + OPT["xd_h2"]
            seq = wql[:k1] + [g_hf, g_s0, g_s1] + (self.halo0 if OPT["lead"] else []) + wql[k1:k2] + [g_chk, g_hs] + wql[k2:]
        elif wql:
            due, d = [], sl.n()
            for g in reversed(seq):
                tag = g[-1][2] if len(g[-1]) > 2 else None
                if isinstance(tag, tuple) and tag[0] == "x": d = step0[tag[1] // 2]
                due.append((d, g))
            due.reverse()
            d, wdue = 0, []
            for g in reversed(wql):
                if g[-1][2] is not None: d = chbar[g[-1][2][1]] - OPT["q0_lead"]
                wdue.append((d, g)); d -= 6
            seq = [g for _, g in sorted(due + wdue[::-1], key=lambda t: t[0])]
        for n_, g in enumerate(bst):
            k = OPT["b_first"] + n_ * (OPT["b_gap"] + 1)
            assert not any(op[0] == "vm" and len(op) > 2 and isinstance(op[2], tuple) and op[2][0] == "x" and op[2][1] >= 24 for g2 in seq[:k] for op in g2)
            seq.insert(k, g)
        if ps == 0:
            tch = self.touch(aTO, "0", 0, T0 + 2) if OPT["t_set"] != "-" and OPT["t_pos"] >= 0 else []
            wo[OPT["t_pos"]:OPT["t_pos"]] = [(step0[OPT["t_step"]], g) for g in tch]
            l_fb, g_fb = self.late_check("%s\nbuffer_load_dword v%d, v%d, %s, 0 offen sc1" % (self.getc(Y + 23, aFB), Y + 23, Y + 23, WS), Y + 23, "exec", "fb")
            l_fb = [("i", l_fb[0][1].split("\n")[0]), ("vm", l_fb[0][1].split("\n")[1], "fb")]
            seq += [g + (OPT["q0_tail"] / 10,) for g in wo]
            if OPT["dfirst"]:
                l_fd, g_fd = self.late_check("%s\nbuffer_load_dword v%d, v%d, %s, 0 offen sc1" % (self.getc(PA, aSG), PA, PA, WS), PA, "exec", "fd")
                sl.put("f", OPT["q0_fd"], [("i", l_fd[0][1].split("\n")[0]), ("vm", l_fd[0][1].split("\n")[1], "fd")])
                p = OPT["q0_fd"] + OPT["q0_fdl"]
                g_fd = [g_fd[0], ("atom", g_fd[1][1] + "\n" + g_fd[2][1]), ("mark", "fd")]
                g_chk[1:] = [("atom", g_chk[1][1] + "\n" + g_chk[2][1])]
                sl.put("f", p, g_fd)
                sl.after(step0[11], ("need", "fd"))
                assert not sl.pace(self.wds("q", ps), p + 2, (sl.n() - p - 4 - OPT["wd_e"]) / OPT["wd_q"], name="f")
                sl.put("e", step0[OPT["q0_fbs"]], l_fb)
            elif OPT["fb_at"] == "att":
                sl.put("f", step0[OPT["q0_fbs"]], l_fb)
                if OPT["wd_q"]:
                    p = step0[OPT["q0_fbs"] + OPT["q0_fbl"]]
                    sl.put("f", p, [("need", "hchk")] + g_fb); g_fb = []
                    g_chk.append(("mark", "hchk"))
                    assert not sl.pace(self.wds("q", ps), p + 2, (sl.n() - p - 4 - OPT["wd_e"]) / OPT["wd_q"], name="f")
            else:
                assert not (self.digits("wg_att0") or self.digits("wg_h10") or OPT["wd_att"] or OPT["wd_h1"])
                self.cold.pop(); g_fb = []
        else:
            seq += wo + wgq
        if OPT["cpf"] & 8: sl.put("g", step0[OPT["cp_q"]], self.flat(self.code_touch("L_qkv%d" % ps, CQ + 1)))
        sl.put("g", step0[12], self.flat(self.code_touch("L_wo%d" % ps, CQ + 1)))
        left = sl.pace(seq, 0, (OPT["q_every"] if ps else OPT["q0_every"]) / 10)
        A0, A1, AH = RR, RR + 4, RR + 8
        st = [[("wvm", "st")]]
        for o in (0, 1): st.append([("i", "v_add_f32_dpp v%d, v%d, v%d row_ror:8 row_mask:0xf bank_mask:0xf" % (AH + o, AH + o, AH + o))])
        for r_ in (A0, A1):
            st.append([("i", "v_add_f32 v%d, v%d, v%d" % (r_, r_, r_ + 2))])
            st.append([("i", "v_add_f32 v%d, v%d, v%d" % (r_ + 1, r_ + 1, r_ + 3))])
        for o in (0, 1): st.append([("i", "v_mov_b32 v%d, v%d" % (AH + 2 + o, AH + o))])
        for o in (0, 1): st.append([("i", "v_permlane32_swap_b32 v%d, v%d" % (A0 + o, A1 + o))])
        for o in (0, 1): st.append([("i", "v_permlane32_swap_b32 v%d, v%d" % (AH + o, AH + 2 + o))])
        for o in (0, 1): st.append([("i", "v_add_f32 v%d, v%d, v%d" % (A0 + o, A0 + o, A1 + o))])
        for o in (0, 1): st.append([("i", "v_add_f32 v%d, v%d, v%d" % (AH + o, AH + o, AH + 2 + o))])
        for o in (0, 1): st.append([("i", "v_permlane16_swap_b32 v%d, v%d" % (A0 + o, AH + o))])
        for o in (0, 1): st.append([("i", "v_add_f32 v%d, v%d, v%d" % (A0 + o, A0 + o, AH + o))])
        st += [[op] for op in self.ln_from_sums(A0, A0 + 1, A0 + 2)]
        st.append([("i", "v_cvt_pk_bf16_f32 v%d, -v%d, -v%d" % (A0, A0, A0))])
        st.append([("i", "v_add_u32 v%d, %s, v%d" % (HF, sTAB, vFL))])
        st.append(([("need", "bdone")] if ps == 0 and inb else []) + [("i", "v_and_or_b32 v30, v%d, 63, %s" % (vFL, sTAB))])
        st.append([("i", "v_and_or_b32 v31, v0, 48, %s" % sTAB)])
        st.append([("ds", "ds_write2st64_b32 v%d, v%d, v%d offset0:0 offset1:1" % (HF, A0 + 1, A0))])
        row = {0: 0, 1: 2, 2: 1}
        for b in range(3):
            o = 64 + row[b] * 16
            st.append([("ds", "ds_read2_b32 %s, v30 offset0:%d offset1:%d" % (vr(NM + 2 * b, 2), o, o), ("nm", b))])
        st.append([("ds", "ds_read2_b32 %s, v30 offset0:0 offset1:32" % vr(RL, 2))])
        for b in range(3):
            st.append([("ds", "ds_read_b128 %s, v31 offset:%d" % (vr(RR + 4 * b, 4), row[b] * 64), ("tab", b))])
        sl.spread(st, step0[OPT["xd_st"]] if xdir else step0[H0] - OPT["q_st"], step0[14])
        cst = [[("i", self.getc(Y + k, aBC + k))] for k in range(14)]
        cst += [[("i", "v_mov_b32 v%d, %s" % (ONES + k, sONE))] for k in range(2)]
        cst += [[("i", self.getc(KW, aHWR))], [("i", self.getc(KW + 3, aHWS))], [("i", "s_add_u32 %s, %s, %d" % (sT2, sLW2, L_KV))],
                [("i", "v_add_u32 v%d, v%d, v%d" % (KW + 1, KW, KW + 3))], [("i", "v_lshl_add_u32 v%d, v0, 3, %s" % (KW + 4, sT2))],
                [("i", "v_add_u32 v%d, v%d, v%d" % (KW + 2, KW + 1, KW + 3))], [("i", "v_add_u32 v%d, v%d, v%d" % (KW + 3, KW + 2, KW + 3))]]
        sl.spread(cst, step0[4] + 2, step0[8], "c")
        Qp = lambda b, h: Z + 4 * h + 2 * b
        Kp = lambda b, h: Z + 8 + 6 * h + 2 * (b + 1)
        Vp = lambda b, h: Z + 20 + 6 * h + 2 * (b + 1)
        HP, HA = HX, ACC + 48
        ar_ = lambda blk, b: ACC + 8 * blk + 4 * b
        cvt = lambda d, s_: "v_cvt_pk_bf16_f32 v%d, v%d, v%d" % (d, s_, s_ + 1)
        tl = [("wds", ("tab", 2)), ("i", "v_mul_f32 v%d, 0x3eb8aa3b, v%d\nv_mul_f32 v%d, 0x3eb8aa3b, v%d" % (CQ, RL, CQ + 1, RL + 1))]
        tl += [("i", "v_mul_f32 v%d, v%d, v%d" % (HA + r, HA + r, RR + 8 + r)) for r in range(4)]
        tl += [("i", cvt(HP, HA)), ("i", cvt(HP + 1, HA + 2))]
        hw = [("ds", "ds_write_b16%s v%d, v%d" % ("_d16_hi" if r & 1 else "", KW + r, HP + r // 2)) for r in range(4)]
        qs = [(h, b) for h in range(2) for b in range(2)]
        sl.put("v", step0[16], tl)
        for n_, (h, b) in enumerate(qs):
            sl.put("v", use[(16, h)], [hw[n_], ("i", cvt(Qp(b, h), ar_(h, b))), ("i", cvt(Qp(b, h) + 1, ar_(h, b) + 2))])
        self.lite(sl, "q", [step0[s] for s in (0, 2, 4, 6, 8, 10, 12, 14)])
        self.report("qkv%d" % ps, sl.emit(a))
        self.stamp()
        body = []
        e = lambda t: body.extend(("i", x) for x in t.split("\n"))
        def pack(dst, src): e(cvt(dst, src) + "\n" + cvt(dst + 1, src + 2))
        def scale_l(src, b):
            for k in range(2): e("v_pk_mul_f32 %s, %s, %s op_sel:[0,%d] op_sel_hi:[1,%d]" % (vr(src + 2 * k, 2), vr(src + 2 * k, 2), vr(RL, 2), b, b))
        def scale_r(src, r0):
            for k in range(2): e("v_pk_mul_f32 %s, %s, %s" % (vr(src + 2 * k, 2), vr(src + 2 * k, 2), vr(r0 + 2 * k, 2)))
        kvw = lambda src, part: body.append(("ds", "ds_write_b64 v%d, %s offset:%d" % (KW + 4, vr(src, 2), 2048 + 512 * part)))
        for h in range(2):
            scale_l(ar_(2 + h, 1), 1); pack(Kp(1, h), ar_(2 + h, 1)); kvw(Kp(1, h), h); scale_l(ar_(2 + h, 0), 0)
        for h in range(2):
            scale_r(ar_(4 + h, 1), RR + 4); pack(Vp(1, h), ar_(4 + h, 1)); kvw(Vp(1, h), 2 + h); scale_r(ar_(4 + h, 0), RR)
        units = [(1, 0), (1, 1), (0, 0), (0, 1)]
        SC = lambda u: F + 8 * u
        SP = lambda u: F + 8 * u + 4
        smf = lambda d, kb, u, bias: "v_mfma_f32_16x16x16_bf16 %s, %s, %s, %s" % (vr(d, 4), vr(Kp(kb, units[u][1]), 2), vr(Qp(*units[u]), 2), vr(bias, 4))
        M = [ACC + u for u in range(4)]
        def merge(u):
            return ["v_max_f32 v%d, v%d, v%d" % (SC(u) + r, SC(u) + r, SP(u) + r) for r in range(4)] + [
                "v_max3_f32 v%d, v%d, v%d, v%d" % (M[u], SC(u), SC(u) + 1, SC(u) + 2), "v_max_f32 v%d, v%d, v%d" % (M[u], M[u], SC(u) + 3)]
        e(smf(SC(0), 1, 0, BC)); pack(Kp(0, 0), ar_(2, 0))
        e(smf(SC(1), 1, 1, BC)); pack(Kp(0, 1), ar_(3, 0))
        e(smf(SP(0), 0, 0, BP))
        if ps == 0: body.extend(g_fb)
        body.extend(("wvm", ("wo", i)) for i in range(2) if not (ps and OPT["skipo"] and WO_SLOT[i] in self.digits("keepo")))
        body.append(("dsdrain",)); e("s_barrier")
        nbar = len(body)
        rdkv = lambda dst, part, tag: body.append(("ds", "ds_read_b64 %s, v%d offset:%d" % (vr(dst, 2), KW + 4, 512 * part), tag))
        e(smf(SP(1), 0, 1, BP)); rdkv(Kp(-1, 0), 0, ("kp", 0)); rdkv(Kp(-1, 1), 1, ("kp", 1))
        e(smf(SC(2), 0, 2, BC)); rdkv(Vp(-1, 0), 2, ("vp", 0)); rdkv(Vp(-1, 1), 3, ("vp", 1))
        e(smf(SC(3), 0, 3, BC)); pack(Vp(0, 0), ar_(4, 0)); pack(Vp(0, 1), ar_(5, 0))
        m0, m1 = merge(0), merge(1)
        e("\n".join(m0))
        body.append(("wds", ("kp", 1)))
        e(smf(SP(2), -1, 2, BP0)); e("\n".join(m1[:2]))
        e(smf(SP(3), -1, 3, BP0)); e("\n".join(m1[2:]))
        e("s_add_u32 %s, %s, %d" % (sT0, sOST, LY.OB[ps]))
        e("\n".join(merge(2)[:2]))
        e("v_permlane32_swap_b32 v%d, v%d" % (M[0], M[1]))
        e("\n".join(merge(2)[2:] + merge(3)))
        e("v_max_f32 v%d, v%d, v%d" % (M[0], M[0], M[1]))
        e("v_permlane32_swap_b32 v%d, v%d\nv_max_f32 v%d, v%d, v%d" % (M[2], M[3], M[2], M[2], M[3]))
        e("v_permlane16_swap_b32 v%d, v%d\nv_max_f32 v%d, v%d, v%d\nv_max_f32 v%d, v%d, v%d" % (M[0], M[2], M[1], M[0], M[2], M[2], M[0], M[2]))
        e("v_permlane16_swap_b32 v%d, v%d" % (M[1], M[2]))
        e("v_mul_f32 v%d, v%d, v%d\nv_mul_f32 v%d, v%d, v%d" % (M[0], M[1], CQ + 1, M[1], M[1], CQ + 1))
        e("v_mul_f32 v%d, v%d, v%d\nv_mul_f32 v%d, v%d, v%d" % (M[3], M[2], CQ, M[2], M[2], CQ))
        def shift(u):
            for k in range(2):
                e("v_pk_fma_f32 %s, %s, %s, %s op_sel:[0,%d,%d] op_sel_hi:[1,%d,%d] neg_lo:[0,0,1] neg_hi:[0,0,1]" %
                  (vr(SC(u) + 2 * k, 2), vr(SC(u) + 2 * k, 2), vr(CQ, 2), vr(ACC + 2 * (u // 2), 2), units[u][0], u % 2, units[u][0], u % 2))
        e("v_permlane32_swap_b32 v%d, v%d" % (M[0], M[1])); shift(0)
        e("v_permlane32_swap_b32 v%d, v%d" % (M[2], M[3])); shift(1); shift(2); shift(3)
        PM = lambda u: ACC + 4 + 2 * u
        PS = lambda u: ACC + 12 + 4 * u
        OP = lambda b: ACC + 28 + 4 * b
        pv = lambda u: "v_mfma_f32_16x16x32_bf16 %s, %s, %s, 0" % (vr(SC(u), 4), vr(Vp(units[u][0] - 1, units[u][1]), 4), vr(PS(u), 4))
        for u, (b, h) in enumerate(units):
            for r in range(4):
                e("v_exp_f32 v%d, v%d" % (SC(u) + r, SC(u) + r))
                if r == 1 and u >= 1: e(pv(u - 1))
            if u == 2: body.append(("wds", ("vp", 1)))
            if u >= 2: e("v_rcp_f32 v%d, v%d" % (SP(u - 2), SP(u - 2)))
            pack(PM(u), SC(u))
            for k in range(2):
                e("v_bfi_b32 v%d, v%d, 0, v%d\nv_and_b32 v%d, v%d, v%d" % (PS(u) + k, MC + k, PM(u) + k, PS(u) + 2 + k, MC + k, PM(u) + k))
            e("v_mfma_f32_16x16x16_bf16 %s, %s, %s, 0" % (vr(SP(u), 4), vr(ONES, 2), vr(PM(u), 2)))
        e("v_rcp_f32 v%d, v%d" % (SP(2), SP(2)))
        e(pv(3))
        def fin(u, packed):
            b, h = units[u]
            if packed:
                for k in range(2): e("v_pk_mul_f32 %s, %s, %s op_sel_hi:[1,0]" % (vr(SC(u) + 2 * k, 2), vr(SC(u) + 2 * k, 2), vr(SP(u), 2)))
            else:
                for r in range(4): e("v_mul_f32 v%d, v%d, v%d" % (SC(u) + r, SC(u) + r, SP(u)))
            pack(OP(b) + 2 * h, SC(u))
            if h == 1:
                body.append(("vm", "buffer_store_dwordx4 %s, v%d, %s, %s offen offset:%d%s" % (vr(OP(b), 4), vQ, WS, sT0, b * 256, " sc1" if ps == 0 and "o" not in OPT["t_set"] else ""), "o" if b == 0 else None))
        fin(0, False); fin(1, True)
        e("v_rcp_f32 v%d, v%d" % (SP(3), SP(3)))
        fin(2, True); fin(3, True)
        left = self.weave(body[:nbar], left, 0, OPT["a_every"])
        stop = len(body) - OPT["a_quiet"]
        left = self.weave(body[nbar:stop], left + self.wgs("att", ps) + self.wds("att", ps), 4, OPT["a_every"])
        a.run_all(body[stop:])
        print("  attention: %d groups left for the hand-off" % len(left))
        self.stamp()
        self.wo_pre(0, OPT["w_pre"])
        self.signal(6 * ps + 1, "o")
        a.run_all(self.flat(left + self.wgs("h1", ps) + self.wds("h1", ps)))
        self.stamp()

    def page_break(self, bit):
        if OPT["pb"] & bit:
            l = self.a.label("page")
            self.a.I("s_branch %s\n.p2align 12\n%s:" % (l, l))

    def early_barrier(self):
        a = self.a
        n = [k for k, t in enumerate(l for l in reversed(a.lines) if l.startswith(("buffer_load", "buffer_store", "global_load"))) if t.endswith(" lds")][0]
        a.vm_wait_n(a.vm_n - n)
        a.ds_drain()
        a.I("s_barrier")

    def wds(self, where, ps):
        if ps: return []
        if self.wd is None:
            ks = [4 * s + cb for s in DN_ORD for cb in range(4)]
            self.wd = self.reg_loads([ar(4 * k, 4) for k in ks], [sWD] * 56, [k * 1024 for k in ks], sTD, vL16, "wd")[4 * OPT["rawd"]:]
        n = OPT.get("wd_" + where, 56)
        out, self.wd = self.wd[:n], self.wd[n:]
        return out

    WREG = [X + 4 * k for k in range(16)] + [ACC + 16 + 4 * k for k in range(12)] + [F + 4 * k for k in range(8)]
    def wo_read(self, k):
        return ("ds", "ds_read_b128 %s, %s" % (vr(self.WREG[k % 36], 4), ldsaddr(WO_SLOT[k // 16] * 16384 + (k % 16) * 1024)), ("w", k))
    def wo_pre(self, k0, k1):
        for k in range(k0, k1): self.a.run(self.wo_read(k))

    def pair_swap(self, dst, src):
        a = self.a
        dpp = "quad_perm:[1,0,3,2] row_mask:0xf bank_mask:0xf"
        a.I("s_mov_b32 vcc_lo, 0x55555555\ns_mov_b32 vcc_hi, 0x55555555")
        for d in range(4): a.I("v_cndmask_b32_dpp v%d, v%d, v%d, vcc %s" % (dst + d, src + 4 + d, src + d, dpp))
        a.I("s_not_b64 vcc, vcc")
        for d in range(4): a.I("v_cndmask_b32_dpp v%d, v%d, v%d, vcc %s" % (dst + 4 + d, src + d, src + 4 + d, dpp))

    def finish(self, A, xo, h, pf, n, halo_pass):
        a = self.a
        for k in range(8): a.I("v_cvt_pk_bf16_f32 v%d, v%d, v%d" % (XRES + k, A + 2 * k, A + 2 * k + 1))
        if xo == 4:
            a.I(self.getc(16, aROW))
            self.pair_swap(F, XRES)
            for e_ in range(2): a.vm("buffer_store_dwordx4 %s, v16, %s, 0 offen offset:%d %s" % (vr(F + 4 * e_, 4), OUT, e_ * 2048, OPT["outf"].strip("-")))
            self.stamp()
            return
        self.publish(xo)
        self.stamp()
        a.run_all(self.flat(pf[:n]))
        self.signal(h, "pub", halo_pass, OPT["h_def"] & 2)
        a.run_all(self.flat(pf[n:]))
        self.stamp()

    def wo(self, ps):
        a = self.a
        def setup():
            for k in range(8):
                a.I("v_lshlrev_b32 v%d, 16, v%d\nv_and_b32 v%d, 0xffff0000, v%d" % (ACC + 2 * k, XRES + k, ACC + 2 * k + 1, XRES + k))
            if OPT["eb"] & 4: self.early_barrier()
        keep = dict(a.ds_tag)
        if OPT["stamps"] and ps == 0:
            a.I("s_memtime s[%d:%d]" % (sST, sST + 1)); a.ds_drain(force=True); a.I("v_writelane_b32 v%d, s%d, 60" % (vSTAMP, sST))
        self.poll(6 * ps + 1, sMC, None, setup)
        a.ds_tag.update((t, n) for t, n in keep.items() if t[0] == "w")
        self.stamp()
        areg = lambda s: vr(X + 64 + 4 * s, 4)
        ld = self.reg_loads([areg(s) for s in range(16)], [sOL] * 16, [LY.OB[ps] + s * 2048 for s in range(16)], sTA, vQ, "act")
        UP = OPT["w_up"]
        g_fb = []
        if ps == 0 and OPT["fb_at"] == "wo":
            l_fb, g_fb = self.late_check("buffer_load_dword v17, v16, %s, 0 offen sc1" % WS, 17, "exec", "fb")
            ld[OPT["fb_k"]] = ld[OPT["fb_k"]] + [("i", self.getc(16, aFB))] + l_fb
        rest = [self.wo_read(k) for k in range(OPT["w_pre"], 32)]
        for n_, g in enumerate(ld[:UP]):
            a.run_all(g)
            if n_ >= 3: a.run_all(rest[:3]); rest = rest[3:]
        a.run_all(rest)
        if not OPT["eb"] & 4: a.I("s_barrier")
        self.wo_pre(32, 36)
        sl = Slots()
        for k in range(64):
            s, cb = divmod(k, 4)
            d = vr(ACC + 4 * cb, 4)
            sl.add("v_mfma_f32_16x16x32_bf16 %s, %s, %s, %s" % (d, vr(self.WREG[k % 36], 4), areg(s), d),
                   [("wds", ("w", k))] + ([("wvm", ("act", s))] if cb == 0 else []))
            if cb == 0 and s + UP < 16: sl.put("m", k, ld[s + UP])
            if k + 36 < 64: sl.put("r", k, [self.wo_read(k + 36)])
        pf = self.wgs("wo", ps) + self.wds("wo", ps)
        p0 = 64 - 4 * UP + 2
        if g_fb:
            p0 = max(p0, OPT["fb_s"])
            sl.put("m", p0 - 3, g_fb + [("i", "s_barrier")])
        pf = sl.pace(pf, p0, 4.4, 64 - OPT["w_quiet"])
        self.lite(sl, "wo", [8 * k for k in range(8)])
        self.report("wo%d" % ps, sl.emit(a))
        self.stamp()
        self.finish(ACC, 2 * ps + 1, 6 * ps + 2, pf + self.wgs("h2", ps) + self.wds("h2", ps), 0, None)

    def dn_plan(self, ps):
        no = OPT["d_own"]
        order = [(i, s) for lv in DN_S for i in range(3) for s in lv]
        order[3 * N1:3 * N1] = [(3, s) for s in DN_ORD[:no]]
        order += [(3, s) for s in sorted(DN_ORD[no:])]
        areg = lambda k: vr(X + 48 + 4 * (k % 16), 4)
        ld = self.reg_loads([areg(k) for k in range(56)], [sHLD[i] for i, s in order], [LY.HB[ps] + s * 2048 for i, s in order], sTA, vQ, "act")
        return order, areg, ld

    def dn(self, ps, issued, wd):
        a = self.a
        order, areg, ld = self.dn_plan(ps)
        XW, XR, R, P, U = 16, 19, 20, (ACC, ACC + 16, ACC + 32), ACC + 48
        io = L_SCR_DN - 65536
        UP = OPT["k_up"]
        widx = {s: n_ for n_, s in enumerate(DN_ORD)}
        wd_e = [g for g in wd if g[-1][2][1] < 4 * N1]
        wd_l = [g for g in wd if g[-1][2][1] >= 4 * N1]
        a.run_all(self.flat(ld[issued:UP] + wd_e))
        if ps == 0:
            a.ds_drain()
            a.I("s_barrier")
        sl = Slots()
        accr = lambda i, cb: (X, X + 16, X + 32, X + 112)[i] + 4 * cb
        seen, endb = set(), {}
        for k, (i, s) in enumerate(order):
            for cb in range(4):
                d = vr(accr(i, cb), 4)
                pre = [("wvm", ("act", k))] if cb == 0 else []
                tag = ("wd", 4 * widx[s] + cb)
                if i == 0 and (tag in a.vm_tag or any(g[-1][2] == tag for g in wd_l)): pre.append(("wvm", tag))
                endb[i] = sl.add("v_mfma_f32_16x16x32_bf16 %s, %s, %s, %s" % (d, ar(16 * s + 4 * cb, 4), areg(k), d if (i, cb) in seen else "0"), pre)
                seen.add((i, cb))
        K1, K2 = 3 * N1 + OPT["d_own"], 3 * N2 + OPT["d_own"]
        chk = {K1: self.chk2, K2: self.check_ops(6 * ps + 5, sMB, PA, "hf3")}
        if self.pending: sl.put("f", OPT["d_mid%d" % ps], self.pending)
        sl.put("f", OPT["d_sig%d" % ps], self.signal_ops(6 * ps + 5, "h6", PB))
        extra = list(wd_l)
        k0 = max(UP, issued)
        assert k0 <= K1
        for k in range(k0, 56):
            p = max(4 * (k - min(OPT["d_up2"], k0 + max(0, k - OPT["d_ramp"]) // 3)), int(OPT["d_min"] / 10 * (k - k0)))
            for kc_ in chk:
                if k == max(k0, kc_ - OPT["d_chk" if kc_ == K1 else "d_chk3"]): sl.put("m", max(p, OPT["d_f%d" % ps] if kc_ == K2 else 0), chk[kc_][0])
            if k in chk:
                due = [g for g in extra if g[-1][2][1] < (4 * N2 if k == K1 else 56)]
                sl.put("m", p, self.flat(due)); extra = extra[len(due):]
                sl.put("m", max(p, OPT["d_f%d" % ps] + OPT["d_flat"] if k == K2 and OPT["d_f%d" % ps] else 0), chk[k][1])
            sl.put("m", p, ld[k])
            sl.put("m", p, self.flat(extra[:1])); extra = extra[1:]
        su = [[("i", "v_add_u32 v%d, %s, v%d" % (XW + i, sXW[i], vL16b))] for i in range(3)] + [[("i", "v_add_u32 v%d, %s, v%d" % (XR, sXR, vL16b))]]
        su += [[("i", "s_lshl_b32 %s, %s, 2\ns_add_u32 %s, %s, %s\ns_lshl_b32 %s, %s, 6\ns_add_u32 %s, %s, %d\nv_and_or_b32 v%d, v%d, 63, %s" %
                 (sT0, sR, sT0, sT0, sW, sT0, sT0, sT0, sT0, L_RS, R, vFL, sT0)), ("ds", "ds_read_b32 v%d, v%d" % (R, R))]]
        for k in range(8):
            su += [[("i", "v_lshlrev_b32 v%d, 16, v%d" % (U + 2 * k, XRES + k))], [("i", "v_and_b32 v%d, 0xffff0000, v%d" % (U + 2 * k + 1, XRES + k))]]
        if OPT["g_c2"]: su.insert(3, [("need", "c2")])
        sl.spread(su, 30, 80)
        if ps == 0 and OPT["spf"]:
            sl.put("s", 0, [("i", "s_lshl_b32 s6, %s, 5\ns_add_u32 s6, s6, %d" % (sCPO, LY.WO))])
            for k in range(OPT["spf"]):
                sl.put("s", 2 + int(k * OPT["spf_e"] / 10), [("i", ("s_waitcnt lgkmcnt(10)\n" if k % 4 == 0 else "") + "s_buffer_load_dword s7, %s, s6 offset:%d" % (WS, 64 * k))])
        if ps == 0 and OPT["cpf"] & 4: sl.put("g", OPT["cp_d"], self.flat(self.code_touch("L_qkv1", 24)))
        writes = lambda i: [[("ds", "ds_write_b128 v%d, %s offset:%d" % (XW + i, vr(accr(i, cb), 4), io + cb * 1024))] for cb in range(4)]
        if OPT["d_w64"]:
            writes = lambda i: [[("ds", "ds_write_b64 v%d, %s offset:%d" % (XW + i, vr(accr(i, cb) + 2 * e_, 2), io + cb * 1024 + 8 * e_))] for cb in range(4) for e_ in range(2)]
        reads = lambda i: [[("ds", "ds_read_b128 %s, v%d offset:%d" % (vr(P[i] + 4 * cb, 4), XR, io + i * 4096 + cb * 1024), ("r", i, cb))] for cb in range(4)]
        add = lambda d, s_: [[("i", "v_add_f32 v%d, v%d, v%d" % (d + e_, d + e_, s_ + e_))] for e_ in range(16)]
        wb = []
        if ps and OPT["wb"]:
            go, back = a.label("wb"), a.label("wbback")
            self.cold.append("%s:\nbuffer_wbl2 sc1\ns_branch %s" % (go, back))
            wb = [[("i", "s_and_b32 %s, %s, %d\ns_or_b32 %s, %s, %s" % (sT1, sJ, 16 // OPT["wb"] - 1, sT1, sT1, sW)),
                   ("vm", "buffer_load_dword a255, off, %s, %s nt" % (WS, sFLG)), ("atom", "s_cmp_eq_u32 %s, 0\ns_cbranch_scc1 %s\n%s:" % (sT1, go, back))]]
        bar = [[("dsdrain",), ("i", "s_barrier")]]
        fma = lambda p_: [[("i", "v_fma_f32 v%d, v%d, v%d, v%d" % (U + e_, p_ + e_, R, U + e_))] for e_ in range(16)]
        if OPT["d_own"]:
            for i in range(2): sl.spread(writes(i), endb[i] + 2, endb[i] + 15)
            r01, w2 = reads(0) + reads(1), writes(2)
            mix = [x for n_ in range(4) for x in (r01[2 * n_], r01[2 * n_ + 1], w2[n_])]
            sl.spread(bar + mix, endb[2] + 1, endb[2] + 15)
            sl.spread([[("wds", ("r", 0, 3))]] + fma(P[0])[:8] + bar + wb + reads(2) + fma(P[0])[8:] + fma(P[1]), endb[2] + 16, endb[3] - 1)
        else:
            for i in range(3): sl.spread(writes(i), endb[i] + 2, endb[i] + 17)
            seq = bar + wb + reads(0) + reads(1) + reads(2) + [[("wds", ("r", 1, 3))]] + add(P[0], P[1]) + [[("wds", ("r", 2, 3))]] + add(P[0], P[2]) + fma(P[0])
            sl.spread(seq, endb[2] + 20, endb[3] - 2)
        pf = [] if ps else [g for i in range(7) if i not in self.wq_late(1) + self.kept() for g in self.wq_chunk(i)]
        pf = sl.pace(pf, 224 - 4 * OPT["d_up2"] + 2, 4.4)
        self.lite(sl, "dn", [28 * k for k in range(8)])
        self.lite(sl, "d1", [0, 15, 21, 27, 35, 75, 81, 136])
        self.lite(sl, "d2", [81, 108, 136, 160, 185, 191, 205, 222])
        self.report("dn%d" % ps, sl.emit(a))
        self.stamp()
        A = accr(3, 0)
        if OPT["d_own"]:
            a.ds_wait(("r", 2, 3))
            for k in range(8): a.I("v_pk_fma_f32 %s, %s, %s, %s op_sel_hi:[1,0,1]" % (vr(U + 2 * k, 2), vr(P[2] + 2 * k, 2), vr(R, 2), vr(U + 2 * k, 2)))
        for k in range(8): a.I("v_pk_fma_f32 %s, %s, %s, %s op_sel_hi:[1,0,1]" % (vr(A + 2 * k, 2), vr(A + 2 * k, 2), vr(R, 2), vr(U + 2 * k, 2)))
        self.finish(A, 2 * ps + 2, 6, pf, OPT["dn_pre"], None if OPT["h_late"] else 1)

    def gu(self, ps):
        a = self.a
        xi = 2 * ps + 1
        def setup():
            self.early_barrier()
            for k in range(OPT["g_la"]): a.ds("ds_read_b128 %s, %s" % (vr(F + 4 * k, 4), ldsaddr(self.wg_slot(0, ps) * 16384 + k * 1024)), ("f", k))
        EB = OPT["eb"] & 1
        self.poll(6 * ps + 2, sMA, None, setup if EB else None)
        self.stamp()
        S0, TL, NR, XR_ = GS0, 16 - GS0, 8, 10
        SS, NM, HPK, CSA = 16, 24, 28, 21
        A0 = X + 80
        xreg = lambda s, b: X + 8 * (s % XR_) + 4 * b
        acc = lambda bl, m, b: A0 + 16 * bl + 8 * b + 4 * m
        xl = self.reg_loads([vr(xreg(s, b), 4) for s in range(16) for b in range(2)], [sXLD] * 32,
                            [LY.XB[xi] + s * 2048 + b * 256 for s in range(16) for b in range(2)], sTA, vQ, "x")
        UP = OPT["g_up"]
        a.run_all(self.flat(xl[:UP]))
        if not EB: a.I("s_barrier")
        a.I("s_add_u32 %s, %s, %d" % (sT0, sSLD, LY.SB[xi]))
        g_st = [[("vm", "buffer_load_dwordx4 %s, v%d, %s, %s offen sc1" % (vr(SS, 4), vL16, WS, sT0))],
                [("vm", "buffer_load_dwordx4 %s, v%d, %s, %s offen offset:1024 sc1" % (vr(SS + 4, 4), vL16, WS, sT0), "st")]]
        early = self.wg_early(ps)
        NS = len(self.ring(ps))
        assert 0 in early and len(set(early)) == len(early) and all(c < NS and self.wg_slot(c, ps) not in WO_SLOT for c in early)
        assert all(self.wg_slot(c, ps) != 7 for c in self.digits("wg_att%d" % ps) + self.digits("wg_h1%d" % ps)) and not set(self.kept()) - {2, 3, 4, 5}
        frags = [(s, bl, m) for s in range(S0) for bl in range(7) for m in range(2)]
        for bl in range(7): frags += [(s, bl, m) for s in range(S0, 16) for m in range(2)] + [(16, bl, 0)]
        sl = Slots()
        sl.mpatience, sl.patience = OPT["g_mp%d" % ps], OPT["g_vp"]
        first, last, end, xfirst, xlast = {}, {}, {}, {}, {}
        for k, (s, bl, m) in enumerate(frags):
            w = F + 4 * (k % NR)
            for mm, b in ([(m, m & OPT["snake"]), (m, 1 - (m & OPT["snake"]))] if s < 16 else [(0, 0), (0, 1), (1, 0), (1, 1)]):
                G_ = OPT["g_grp"]
                pre = [] if k in first else [("wds", ("f", min(k // G_ * G_ + G_ - 1, len(frags) - 1)))]
                d = vr(acc(bl, mm, b), 4)
                if s < 16:
                    if (s, b) not in xfirst: pre.append(("wvm", ("x", 2 * s + (b if s == 0 else 1))))
                    n_ = sl.add("v_mfma_f32_16x16x32_bf16 %s, %s, %s, %s" % (d, vr(w, 4), vr(xreg(s, b), 4), "0" if s == 0 else d), pre)
                    xfirst.setdefault((s, b), n_); xlast[(s, b)] = n_
                else:
                    n_ = sl.add("v_mfma_f32_16x16x16_bf16 %s, %s, %s, %s" % (d, vr(w + 2 * mm, 2), vr(NM + 2 * b, 2), d), pre)
                first.setdefault(k, n_); last[k] = n_
            end[bl] = n_
        LA = OPT["g_la"]
        def rd(k):
            off = self.wg_slot(k // 16, ps) * 16384 + (k % 16) * 1024
            d = F + 4 * (k % NR)
            if frags[k][0] < 16:
                return [("ds", "ds_read_b128 %s, %s" % (vr(d, 4), ldsaddr(off)), ("f", k))]
            return [("ds", "ds_read2st64_b32 %s, v%d offset0:%d offset1:%d" % (vr(d + 2 * m, 2), CSA + (off >> 16), (off & 0xffff) // 256 + 2 * m, (off & 0xffff) // 256 + 2 * m + 1),
                     ("f", k) if m else None) for m in range(2)]
        for k in range(0 if EB else LA): a.run_all(rd(k))
        barpos, real = {}, []
        retire = lambda c: min(p for p in real if p > last[16 * c + 15])
        for k in range(LA, len(frags)):
            if k % 16 == 0:
                ch = k // 16
                pair = ps == 1 and OPT["g_bar1"] == 2 and ch >= OPT["g_pair0"]
                if pair and (ch - OPT["g_pair0"]) % 2:
                    barpos[ch] = barpos[ch - 1]
                elif ch not in early:
                    p = barpos[ch] = last[k - LA] - 1
                    real.append(p)
                    need = ch + 1 if pair and ch < 14 else ch
                    if need not in early: sl.pre[p + 1].append(("wvm", ("wg", need)))
                    sl.after(p, *(([("wvm", ("wg", need))] if need not in early else []) + [("i", "s_barrier")]))
            sl.after(last[k - LA], *rd(k))
        wl = [(retire(ch - NS) + 2 if ch >= NS else 0, g) for ch in range(15) if ch not in early for g in self.wg_chunk(ch, ps)]
        wdue = [barpos[ch] - 8 * (len(self.wg_chunk(ch, ps)) - 1 - n_) for ch in range(15) if ch not in early for n_ in range(len(self.wg_chunk(ch, ps)))]
        wd = self.wds("rest", ps)
        tail0 = xfirst[(S0, 0)]
        xs = []
        for n_ in range(UP, 32):
            s, b = divmod(n_, 2)
            due = min(xfirst[(s, b)], tail0 - (31 - n_) * OPT["g_xsp%d" % ps])
            xs.append((due, xlast[(s - XR_, b)] + 1 if s >= XR_ else 0, xl[n_]))
        n_ = OPT["g_stat%d" % ps]
        xs[n_:n_] = [(xs[n_][0], 0, g) for g in g_st]
        P = lambda key: OPT["g_%s%d" % (key, ps)] / 10
        pos, fab, ix, iw, idd, seq = 0.0, 0.0, 0, 0, 0, []
        stop = end[6] - OPT["g_tail"]
        while ix < len(xs) or iw < len(wl) or (idd < len(wd) and pos <= stop):
            xok = ix < len(xs) and xs[ix][1] <= pos
            xu = xok and xs[ix][0] - pos <= P("xlead")
            wok = iw < len(wl) and wl[iw][0] <= pos
            wu = wok and wdue[iw] - pos <= P("wmin")
            free = fab <= pos + P("slack")
            if xu and (not wu or xs[ix][0] <= wdue[iw] - P("wmin") + P("xlead")): pick = "x"
            elif wu: pick = "w"
            elif free and wok and wdue[iw] - pos <= P("wmax"): pick = "w"
            elif free and idd < len(wd) and pos <= stop: pick = "d"
            elif xok and xs[ix][0] - pos <= P("xmax"): pick = "x"
            else:
                pos = int(pos) + 1; continue
            if pick == "x": g = xs[ix][2]; ix += 1
            elif pick == "w": g = wl[iw][1]; iw += 1; fab = max(fab, pos) + P("wcost")
            else: g = wd[idd]; idd += 1; fab = max(fab, pos) + P("dcost")
            behind = (ix < len(xs) and xs[ix][0] - pos < 0.7 * P("xlead")) or (iw < len(wl) and wdue[iw] - pos < 0.7 * P("wmin"))
            seq.append((pos, g)); pos += 2.0 if behind else P("tev") if pos >= tail0 + OPT["g_t0"] and P("tev") else P("every")
            if g is g_st[1]: stpos = pos
        assert not sl.pace(seq, 0, 0)
        left = wd[idd:]
        st = [[("wvm", "st")]]
        for r_ in (SS, SS + 4):
            for o in (0, 1): st.append([("i", "v_add_f32 v%d, v%d, v%d" % (r_ + o, r_ + o, r_ + 2 + o))])
        for o in (0, 1): st.append([("i", "v_permlane32_swap_b32 v%d, v%d" % (SS + o, SS + 4 + o))])
        for o in (0, 1): st.append([("i", "v_add_f32 v%d, v%d, v%d" % (SS + o, SS + o, SS + 4 + o))])
        for o in (0, 1): st.append([("i", "v_mov_b32 v%d, v%d" % (SS + 2 + o, SS + o))])
        for k in range(3): st.append([("i", "v_add_u32 v%d, %d, v%d" % (CSA + k, k << 16, vFL))])
        for o in (0, 1): st.append([("i", "v_permlane16_swap_b32 v%d, v%d" % (SS + o, SS + 2 + o))])
        for o in (0, 1): st.append([("i", "v_add_f32 v%d, v%d, v%d" % (SS + o, SS + o, SS + 2 + o))])
        st += [[op] for op in self.ln_from_sums(SS, SS + 1, SS + 2)]
        st += [[("i", "v_cvt_pk_bf16_f32 v%d, -v%d, -v%d" % (NM + k, SS, SS))] for k in range(4)]
        st += [[("i", "v_mul_f32 v%d, v%d, v%d" % (SS + 1, SS + 1, SS + 1))],
               [("i", "s_lshr_b32 %s, %s, 3\ns_add_u32 %s, %s, %d" % (sT0, sLW, sT0, sT0, L_RS))],
               [("i", "v_and_or_b32 v%d, v%d, 63, %s" % (SS, vFL, sT0))], [("i", "v_and_b32 v%d, 32, v0" % (SS + 2))],
               [("i", "v_lshl_add_u32 v%d, v%d, 1, v%d" % (SS, SS + 2, SS))]]
        st += [[("i", "v_permlane32_swap_b32 v%d, v%d" % (NM + k, NM + 2 + k))] for k in range(2)] + [[("mark", "nm")]]
        sl.after(tail0 - 2 * LA, ("need", "nm"))
        sl.spread(st, int(stpos) + 40, tail0 - 2 * LA - 10)
        held = []
        def epi(bl, packed=False):
            g = []
            H = acc(bl, 1, 0)
            for b in range(2):
                ga = acc(bl, 0, b)
                g += [[("i", "v_max_f32 v%d, 0, v%d" % (ga + r, ga + r))] for r in range(4)]
                if packed: g += [[("i", "v_pk_mul_f32 %s, %s, %s" % (vr(ga + r, 2), vr(ga + r, 2), vr(ga + 4 + r, 2)))] for r in (0, 2)]
                else: g += [[("i", "v_mul_f32 v%d, v%d, v%d" % (ga + r, ga + r, ga + 4 + r))] for r in range(4)]
                g += [[("i", "v_cvt_pk_bf16_f32 v%d, v%d, v%d" % (H + 2 * b + k, ga + 2 * k, ga + 2 * k + 1))] for k in range(2)]
            out = [[("i", "s_add_u32 %s, %s, %s" % ((sTS, sTS, sHSTEP) if bl else (sTS, sHST, LY.HB[ps])))],
                   [("vm", "buffer_store_dwordx4 %s, v%d, %s, %s offen%s" % (vr(H, 4), vL16, WS, sTS, {"s": " sc1", "n": " nt", "p": "", "c": " sc0", "b": " sc0 sc1", "m": " sc1 nt"}[OPT["h_st%d" % ps][bl]]), "h%d" % bl)]]
            if bl in self.digits("h_rb%d" % ps):
                out.append([("vm", "buffer_load_dword a255, v%d, %s, %s offen sc1" % (vL16, WS, sTS))])
            sw = [[("i", "v_permlane16_swap_b32 v%d, v%d" % (H + k, H + 2 + k))] for k in range(2)]
            if bl in self.digits("h_hold%d" % ps):
                held.extend(out)
                return g + sw
            g += held + out[:1] + sw + out[1:]
            del held[:]
            return g
        for bl in range(6): sl.spread(epi(bl), end[bl] + 1, end[bl + 1] - OPT["g_epi"])
        l_e, g_e = self.check_ops(6 * ps + 3, sMB, SS + 3, "he")
        sl.put("f", end[3 - LV] + OPT["g_sig%d" % ps], self.signal_ops(6 * ps + 3, "h%d" % (2 - LV), SS + 4))
        self.pending = self.signal_ops(6 * ps + 4, "h%d" % (4 - LV), SS + 4)
        if OPT["d_mid%d" % ps] < 0:
            sl.put("f", end[5 - LV] + OPT["g_sig%d" % ps], self.pending); self.pending = None
        self.chk2 = self.check_ops(6 * ps + 4, sMB, SS + 3 if OPT["g_c2"] else PA, "hf2")
        nh = OPT["g_h%d" % ps]
        assert S0 >= 10 and nh <= 12
        p = end[6] - OPT["g_chk%d" % ps]
        sl.put("h", p - OPT["g_lat%d" % ps], l_e)
        if nh:
            sl.put("h", p, g_e); g_e = []
            hl = self.dn_plan(ps)[2][:nh]
            if OPT["g_c2"]:
                hl.insert(nh + 1 - OPT["g_c2"], self.chk2[0]); self.chk2 = ([], self.chk2[1] + [("mark", "c2")])
            assert not sl.pace(hl, p + 1, min(4.4, (end[6] - p - 2) / len(hl)), name="h")
        if OPT["cpf"] & 2: sl.put("g", OPT["cp_g"], self.flat(self.code_touch("L_gu%d" % ps, HPK)))
        sl.put("g", tail0 + OPT["cp_t"], self.flat(self.code_touch("L_dn%d" % ps, SS + 3)))
        sl.put("c", max(tail0, retire(max(c for c in range(14) if self.wg_slot(c, ps) == 6)) + 1), [("ds", "ds_write_b32 v%d, v%d" % (SS, SS + 1))])
        if ps == 0:
            sl.put("c", end[6] - 8, [("i", "s_or_b32 %s, s2, %s" % (sT0, sW)), ("atom", "s_cmp_eq_u32 %s, 0\ns_cselect_b32 %s, %d, 0x%x" % (sT0, sT0, LY.EPOCH, OOB)),
                                     ("i", "v_mov_b32 v%d, %s" % (SS + 2, sNONCE)),
                                     ("vm", "buffer_store_dword v%d, v%d, %s, %s offen" % (SS + 2, vF1, WS, sT0))])
        self.lite(sl, "g", [56 * k for k in range(8)])
        q1, q2, q3 = end[3 - LV] + OPT["g_sig%d" % ps], end[6] - OPT["g_chk%d" % ps], min(end[5 - LV] + OPT["g_sig%d" % ps], end[6] - 3)
        self.lite(sl, "t", [336, 392] + sorted([q1 - 1, q1 + 5, q2 - 1, q2 + 5, q3 - 1, min(q3 + 5, end[6])]))
        self.report("gu%d" % ps, sl.emit(a))
        a.run_all(self.flat(epi(6, True)))

        self.stamp()
        a.run_all(g_e)
        self.stamp()
        print("  gu: %d loads left for the hand-off" % len(left))
        return nh, left

    def build(self):
        a = self.a
        (self.startup2 if OPT["lead"] else self.startup)()
        for ps in range(2):
            if ps: self.page_break(4)
            a.I("L_qkv%d:" % ps); self.qkv(ps)
            a.I("L_wo%d:" % ps); self.wo(ps)
            self.page_break(8 if ps else 2)
            a.I("L_gu%d:" % ps); left = self.gu(ps)
            a.I("L_dn%d:" % ps); self.dn(ps, *left)
        if OPT["stamps"]:
            a.I("s_waitcnt vmcnt(0)\ns_memrealtime s[6:7]\ns_memtime s[80:81]\ns_waitcnt lgkmcnt(0)\nv_writelane_b32 v%d, s6, 63\nv_writelane_b32 v%d, s80, 61" % (vSTAMP, vSTAMP))
            a.I("s_lshl_b32 %s, s2, 10\ns_lshl_b32 %s, %s, 8\ns_add_u32 %s, %s, %s\ns_add_u32 %s, %s, %d" % (sT0, sT1, sW, sT0, sT0, sT1, sT0, sT0, LY.STAMP))
            a.I("buffer_store_dword v%d, v%d, %s, %s offen" % (vSTAMP, vFL, WS, sT0))
        if OPT["diagpad"]:
            a.I("s_mov_b32 s82, %d" % OPT["diagpad"])
            if OPT["diagat"]:
                a.I("s_sub_u32 s83, s%d, s14\ns_lshl_b32 s83, s83, 2" % sST)
                if OPT["diagwg"] >= 0: a.I("s_cmp_eq_u32 s2, %d\ns_cselect_b32 s83, s83, 0" % OPT["diagwg"])
                a.I("s_add_u32 s82, s82, s83")
            a.I("L_pad:\ns_memrealtime s[80:81]\ns_waitcnt lgkmcnt(0)\ns_sub_u32 s80, s80, s14\ns_cmp_lt_u32 s80, s82\ns_cbranch_scc1 L_pad")
        a.I("L_main_done:\ns_endpgm")
        for c in self.cold: a.I(c)
        a.I("L_code_end:")
        return a.lines

def main():
    ml, n2 = hazard_pass(Main().build())
    for half in range(2):
        alt = role_path(ml, half)
        bad = check_async(alt)
        assert not bad and hazard_pass(alt)[1] == 0, bad[:3]
    k = NAME + "_kernel"
    out = ["; Generated by gen/gen.py. " + " ".join(sys.argv[2:]),
           "; One persistent kernel, one workgroup per CU. Kernarg: x, wqkv, wo, (unused), w_gate, w_up, w_down, out, debug, ws.",
           "; Rows of one parity form an independent sequence; 16 workgroups share a block of 128 such rows through all four layers:",
           ";   start-up : weights re-laid out once in MFMA fragment order (plus column sums for the LayerNorm mean) in the workspace",
           ";   qkv      : 128 rows x 2 heads, LayerNorm folded in, windowed attention in registers",
           ";   wo / dn  : 64 x 64 output tiles plus residual, partial LayerNorm sums published with the tile",
           ";   gu       : 128 rows x 112 hidden columns, ReGLU in the epilogue",
           "; Hand-offs use flags tagged with a per-launch value derived from a workspace word. A group whose members are on one die",
           "; (checked at run time) hands over through that die's L2; any other group uses release / acquire at device scope.",
           "; @launch grid=(256,1,1) block=(256,1,1) lds=163840",
           '.amdgcn_target "amdgcn-amd-amdhsa--gfx950"', ".text",
           ".globl %s" % k, ".p2align %d" % OPT["align"], ".p2align 8", ".type %s,@function" % k]
    out += [l if l.endswith(":") else "    " + l for l in ml]
    out += ['.section .rodata,"a"', ".p2align 6", """.amdhsa_kernel %s
  .amdhsa_next_free_vgpr 512
  .amdhsa_next_free_sgpr 102
  .amdhsa_accum_offset 256
  .amdhsa_group_segment_fixed_size 0
  .amdhsa_kernarg_size 80
  .amdhsa_user_sgpr_count 2
  .amdhsa_user_sgpr_kernarg_segment_ptr 1
  .amdhsa_system_sgpr_workgroup_id_x 1
  .amdhsa_float_denorm_mode_32 3
.end_amdhsa_kernel""" % k]
    if OPT["rt"]: out = [l.replace("s_memtime", "s_memrealtime") for l in out]
    open(sys.argv[1], "w").write("\n".join(out) + "\n")
    print("instructions: %d ; wait states added: %d" % (len(ml), n2))

main()
```
